```python
import torch

def _softmax(x, axis=-1):
    return torch.softmax(x, dim=axis)
def _gelu(x):
    return torch.nn.functional.gelu(x, approximate="tanh")
def _silu(x):
    return torch.nn.functional.silu(x)
def _sigmoid(x):
    return torch.sigmoid(x)
def _layernorm(x, axis=-1, eps=1e-5):
    m = x.mean(dim=axis, keepdim=True)
    v = x.var(dim=axis, keepdim=True, unbiased=False)
    return (x - m) / torch.sqrt(v + eps)
def _scatter_add(tgt, idx, src, axis=0):
    return tgt.clone().index_add_(axis, idx, src)
def _segment_sum(src, seg, n):
    out = torch.zeros((n,) + src.shape[1:], dtype=src.dtype)
    return out.index_add_(0, seg, src)
def _pad(x, pw):
    flat = tuple(v for pair in reversed(pw) for v in pair)
    return torch.nn.functional.pad(x, flat)

kernel_name = 'sequential_preLN__grouped_kv_mqa__glu_gated_glu__prompt'

def setup_inputs():

    _w = (lambda a: (lambda t: t.to(torch.bfloat16) if t.is_floating_point() else t)(torch.as_tensor(a)))
    def _A_setup():
        B, S, D, H = 1, 2048, 1024, 32
        Dh = D // H
        return {
            "x": _w((lambda *s: torch.randn(*s, dtype=torch.bfloat16) * 0.05)(B, S, D)),
            "wq": _w((lambda *s: torch.randn(*s, dtype=torch.bfloat16) * 0.05)(D, H * Dh)),
            "wk": _w((lambda *s: torch.randn(*s, dtype=torch.bfloat16) * 0.05)(D, Dh)),
            "wv": _w((lambda *s: torch.randn(*s, dtype=torch.bfloat16) * 0.05)(D, Dh)),
            "wo": _w((lambda *s: torch.randn(*s, dtype=torch.bfloat16) * 0.05)(H * Dh, D)),
        }
    _A_in = _A_setup()

    def _B_setup():
        B, S, D, F = 1, 2048, 1024, 3584
        return {
            "x": _w((lambda *s: torch.randn(*s, dtype=torch.bfloat16) * 0.05)(B, S, D)),
            "w_gate": _w((lambda *s: torch.randn(*s, dtype=torch.bfloat16) * 0.05)(D, F)),
            "w_up": _w((lambda *s: torch.randn(*s, dtype=torch.bfloat16) * 0.05)(D, F)),
            "w_down": _w((lambda *s: torch.randn(*s, dtype=torch.bfloat16) * 0.05)(F, D)),
        }
    _B_in = _B_setup()

    return {
        "A_x": _A_in["x"],
        "A_wq": _A_in["wq"],
        "A_wk": _A_in["wk"],
        "A_wv": _A_in["wv"],
        "A_wo": _A_in["wo"],
        "B_x": _B_in["x"],
        "B_w_gate": _B_in["w_gate"],
        "B_w_up": _B_in["w_up"],
        "B_w_down": _B_in["w_down"],
    }

def reference(A_x, A_wq, A_wk, A_wv, A_wo, B_x, B_w_gate, B_w_up, B_w_down):
    def _A_ref(x, wq, wk, wv, wo):
        B, S, D = x.shape
        H = 32
        Dh = D // H
        q = (lambda x, *d: x.permute(*d))((x @ wq).reshape(B, S, H, Dh), 0, 2, 1, 3)
        k = x @ wk
        v = x @ wv
        scores = torch.einsum("bhqd,bkd->bhqk", q, k) * (Dh ** -0.5)
        p = _softmax(scores, axis=-1)
        o = torch.einsum("bhqk,bkd->bhqd", p, v)
        return (lambda x, *d: x.permute(*d))(o, 0, 2, 1, 3).reshape(B, S, H * Dh) @ wo

    def _B_ref(x, w_gate, w_up, w_down):
        g = torch.einsum("bsd,df->bsf", x, w_gate)
        u = torch.einsum("bsd,df->bsf", x, w_up)
        h = _sigmoid(g) * u
        return torch.einsum("bsf,fd->bsd", h, w_down)

    x = A_x
    h = x + _A_ref(_layernorm(x, axis=-1), A_wq, A_wk, A_wv, A_wo)
    h2 = h + _B_ref(_layernorm(h, axis=-1), B_w_gate, B_w_up, B_w_down)
    return h2
```

```python
import struct


def f32(x):
    return "0x%08x" % struct.unpack("<I", struct.pack("<f", x))[0]


def vr(i, n=1, p="v"):
    return f"{p}{i}" if n == 1 else f"{p}[{i}:{i+n-1}]"


def ar(i, n=1):
    return vr(i, n, "a")


def sr(i, n=1):
    return vr(i, n, "s")


def m16(d, a, b, c=None):
    return f"v_mfma_f32_16x16x32_bf16 {d}, {a}, {b}, {d if c is None else c}"


def m32(d, a, b, c=None):
    return f"v_mfma_f32_32x32x16_bf16 {d}, {a}, {b}, {d if c is None else c}"


class Alloc:
    def __init__(self, start=0, limit=256):
        self.n = start
        self.limit = limit

    def __call__(self, n=1, align=1):
        if n >= 2 and align == 1:
            align = 2
        self.n = (self.n + align - 1) // align * align
        r = self.n
        self.n += n
        assert self.n <= self.limit, f"out of registers {self.n} > {self.limit}"
        return r


class Kern:
    def __init__(self, name, grid, block, lds):
        self.name, self.grid, self.block, self.lds = name, grid, block, lds
        self.l = []
        self.vgpr = 256
        self.acc = 256
        self.sgpr = 102

    def __call__(self, *xs):
        for x in xs:
            if x is None:
                continue
            if isinstance(x, (list, tuple)):
                self(*x)
            else:
                for ln in x.split("\n"):
                    ln = ln.strip()
                    if ln:
                        self.l.append(ln)

    def label(self, s):
        self.l.append(s + ":")

    def launch_line(self):
        return f"; @launch kernel={self.name} grid=({self.grid},1,1) block=({self.block},1,1) lds={self.lds}"

    def text(self):
        o = [f".globl {self.name}", ".p2align 8", f".type {self.name},@function", f"{self.name}:"]
        for x in self.l:
            o.append(x if (x.endswith(":") or x.startswith(".")) else "    " + x)
        return "\n".join(o) + "\n"

    def desc(self):
        return f""".p2align 6
.amdhsa_kernel {self.name}
  .amdhsa_next_free_vgpr {self.vgpr}
  .amdhsa_next_free_sgpr {self.sgpr}
  .amdhsa_accum_offset {self.acc}
  .amdhsa_group_segment_fixed_size 0
  .amdhsa_kernarg_size 96
  .amdhsa_user_sgpr_count 2
  .amdhsa_user_sgpr_kernarg_segment_ptr 1
  .amdhsa_system_sgpr_workgroup_id_x 1
.end_amdhsa_kernel
"""


def weave(base, extras, start=0, stop=None, per=1):
    n = len(base)
    stop = n if stop is None else stop
    m = len(extras)
    slots = [[] for _ in range(n)]
    span = stop - start
    for j, e in enumerate(extras):
        p = start + (j * span) // m
        slots[p].append(e)
    out = []
    for i, b in enumerate(base):
        out.append(b)
        for e in slots[i]:
            out.extend(e if isinstance(e, (list, tuple)) else [e])
    return out
```

```python
import sys, math
sys.path.insert(0, __file__.rsplit("/", 1)[0])
from asmlib import *

MB = 1 << 20
QF, KVF, OF, HF, AF = 0, 4 * MB, 5 * MB, 9 * MB, 13 * MB
WOF, WGU, WDF, CSP, STP, STAMP = 28 * MB, 30 * MB, 44 * MB, 52 * MB, 53 * MB, 60 * MB
WS_SZ = 64 * MB
OOB = 0x40000000
LOG2E = 1.4426950408889634
QSCALE = LOG2E / math.sqrt(32.0)
EPS = 1e-5
OPT = dict(stamp=False, force_slow=False)
A_X, A_WQ, A_WK, A_WV, A_WO, A_WG, A_WU, A_WD, A_OUT, A_WS = 0, 8, 16, 24, 32, 48, 56, 64, 72, 88


def srd_tail(s, size):
    return [f"s_mov_b32 s{s+2}, {size}", f"s_mov_b32 s{s+3}, 0x00020000"]


def srd_from(s, base, off, size):
    return [f"s_add_u32 s{s}, s{base}, {off}", f"s_addc_u32 s{s+1}, s{base+1}, 0"] + srd_tail(s, size)


def head(k):
    k("s_cmp_ge_u32 s2, 256", f"s_cbranch_scc1 L_end_{k.name}")
    if OPT["stamp"]:
        k("s_memrealtime s[92:93]", "s_load_dwordx2 s[90:91], s[0:1], 88", "s_mov_b32 s89, s2")


def mid_stamp(k, i):
    if OPT["stamp"]:
        k(f"s_memrealtime s[{96+2*i}:{97+2*i}]")


def tail(k, kidx, swave):
    if OPT["stamp"]:
        k("s_waitcnt vmcnt(0)", "s_memrealtime s[94:95]", "s_waitcnt lgkmcnt(0)",
          "v_mov_b32 v0, s92", "v_mov_b32 v1, s96", "v_mov_b32 v2, s98", "v_mov_b32 v3, s94",
          "s_lshl_b32 s89, s89, 2", f"s_add_u32 s89, s89, s{swave}", "s_lshl_b32 s89, s89, 4",
          f"s_add_u32 s89, s89, {STAMP + kidx*16384}", "v_mov_b32 v4, s89",
          "global_store_dwordx4 v4, v[0:3], s[90:91]")
    k.label(f"L_end_{k.name}")
    k("s_endpgm")


def ids_8x4(k, s_a, s_b, tmp):
    k(f"s_lshr_b32 s{tmp}, s2, 3",
      f"s_and_b32 s{s_a}, s{tmp}, 3",
      f"s_lshr_b32 s{s_b}, s{tmp}, 2",
      f"s_and_b32 s{tmp}, s2, 1",
      f"s_lshl_b32 s{tmp}, s{tmp}, 2",
      f"s_add_u32 s{s_a}, s{s_a}, s{tmp}",
      f"s_and_b32 s{tmp}, s2, 6",
      f"s_lshl_b32 s{tmp}, s{tmp}, 2",
      f"s_add_u32 s{s_b}, s{s_b}, s{tmp}")


def code_prefetch(k, vtmp, vdst, stmp, start, nkb_per_wg=1):
    k(f"s_getpc_b64 s[{stmp}:{stmp+1}]")
    lab = f"L_pc_{k.name}_{start}"
    k.label(lab)
    k(f"s_add_u32 s{stmp}, s{stmp}, {start}-{lab}",
      f"s_addc_u32 s{stmp+1}, s{stmp+1}, 0",
      f"global_load_dwordx4 {vr(vdst,4)}, v{vtmp}, s[{stmp}:{stmp+1}]")


def k0_qkv():
    STG, NS = 28672, 5
    TBL = STG * NS
    k = Kern("qkv_kernel", 256, 256, TBL + 1024)
    SX, SWQ, SE, SWS = 4, 8, 12, 16
    sW, sTB, sHG, sN, sX, sWo, sEo, sRd, sWr, sT, sT2, sTH, sCH, sBW = range(24, 38)
    v = Alloc(1)
    L, G, R, CQ, TOK, T0, T1, T2 = [v() for _ in range(8)]
    vX, vX2, vE = v(), v(), v()
    vW = [v() for _ in range(4)]
    bX = [[v() for i in range(2)] for s in range(2)]
    bW = [v() for _ in range(4)]
    bE = v()
    aX = [[v() for i in range(2)] for s in range(2)]
    aW = [v() for _ in range(4)]
    aE = v()
    F = [dict(X=[v(4, 4) for _ in range(2)], W=[v(4, 4) for _ in range(4)], E=v(4, 4)) for _ in range(2)]
    acc0 = v.n = (v.n + 3) // 4 * 4
    acc = [[v(4, 4) for i in range(2)] for t in range(4)]
    accE = [v(4, 4) for i in range(2)]
    cs = [v(4, 4) for _ in range(2)]
    csE, sx, sxx = v(4, 4), v(4, 4), v(4, 4)
    acc1 = v.n
    ONES = v(4, 4)
    PF = v(4, 4)
    k.vgpr = k.acc = (v.n + 7) // 8 * 8
    head(k)
    k(f"s_load_dwordx2 s[{SX}:{SX+1}], s[0:1], {A_X}",
      f"s_load_dwordx2 s[{SWQ}:{SWQ+1}], s[0:1], {A_WQ}",
      f"s_load_dwordx4 s[20:23], s[0:1], {A_WK}",
      f"s_load_dwordx2 s[{SWS}:{SWS+1}], s[0:1], {A_WS}")
    k(f"v_lshlrev_b32 v{T0}, 4, v0")
    code_prefetch(k, T0, PF, 40, "L_k0_body")
    k.label("L_k0_body")
    k(f"v_lshrrev_b32 v{T1}, 6, v0", f"v_and_b32 v{L}, 63, v0", f"v_readfirstlane_b32 s{sW}, v{T1}")
    ids_8x4(k, sHG, sTB, sT)
    k(f"s_and_b32 s{sTH}, s{sW}, 1", f"s_lshr_b32 s{sCH}, s{sW}, 1")
    k(f"v_lshrrev_b32 v{T0}, 3, v{L}",
      f"v_lshrrev_b32 v{T1}, 4, v{L}",
      f"s_lshl_b32 s{sT}, s{sTH}, 2",
      f"v_add_u32 v{T1}, s{sT}, v{T1}",
      f"v_and_b32 v{T2}, 7, v{L}",
      f"v_xor_b32 v{T1}, v{T1}, v{T2}",
      f"s_lshl_b32 s{sT}, s{sTB}, 6",
      f"s_lshl_b32 s{sT2}, s{sW}, 3",
      f"s_add_u32 s{sT}, s{sT}, s{sT2}",
      f"v_add_u32 v{T0}, s{sT}, v{T0}",
      f"v_lshlrev_b32 v{T0}, 11, v{T0}",
      f"v_lshl_add_u32 v{vX}, v{T1}, 4, v{T0}",
      f"v_add_u32 v{vX2}, 0x10000, v{vX}")
    k(f"v_lshrrev_b32 v{G}, 4, v{L}",
      f"v_and_b32 v{TOK}, 15, v{L}",
      f"v_lshlrev_b32 v{T1}, 1, v{G}",
      f"v_xor_b32 v{T1}, v{T1}, v{TOK}",
      f"s_lshl_b32 s{sT}, s{sTH}, 3",
      f"v_xor_b32 v{T1}, s{sT}, v{T1}",
      f"s_lshl_b32 s{sBW}, s{sTH}, 1",
      f"s_add_u32 s{sBW}, s{sBW}, s{sCH}",
      f"s_lshl_b32 s{sT}, s{sBW}, 13",
      f"s_lshl_b32 s{sT2}, s{sHG}, 8",
      f"s_add_u32 s{sT}, s{sT}, s{sT2}",
      f"v_lshlrev_b32 v{T0}, 11, v{G}",
      f"v_add_u32 v{T0}, s{sT}, v{T0}",
      f"v_lshl_add_u32 v{vW[0]}, v{T1}, 4, v{T0}")
    for i in range(1, 4):
        k(f"v_add_u32 v{vW[i]}, {32768*i}, v{vW[0]}")
    k(f"v_lshrrev_b32 v{T0}, 5, v{L}",
      f"v_lshlrev_b32 v{T0}, 1, v{T0}",
      f"v_xor_b32 v{T0}, v{T0}, v{L}",
      f"s_lshl_b32 s{sT}, s{sW}, 10",
      f"v_lshl_add_u32 v{vE}, v{T0}, 4, s{sT}")
    k(f"s_sub_u32 s{sBW}, s{sBW}, s{sW}", f"s_lshl_b32 s{sBW}, s{sBW}, 10", f"s_add_u32 s{sBW}, s{sBW}, 8192",
      f"s_lshl_b32 s{sWr}, s{sW}, 10", f"s_mov_b32 s{sX}, 0", f"s_mov_b32 s{sWo}, 0", f"s_mov_b32 s{sEo}, 0")
    k("s_waitcnt lgkmcnt(0)")
    k(srd_tail(SX, 4 * MB), srd_tail(SWQ, 2 * MB), srd_tail(SWS, WS_SZ))
    k(f"s_cmp_eq_u32 s{sHG}, 0", f"s_cselect_b32 s{SE}, s20, s22", f"s_cselect_b32 s{SE+1}, s21, s23",
      f"s_and_b32 s{sT}, s{sHG}, 3", f"s_cmp_eq_u32 s{sT}, 0", f"s_cselect_b32 s{SE+2}, 0x10000, 0",
      f"s_mov_b32 s{SE+3}, 0x00020000")

    def dma_stage():
        o = [[f"s_mov_b32 m0, s{sWr}", f"s_add_u32 s{sT}, s{sWr}, s{sBW}", f"buffer_load_dwordx4 v{vX}, s[{SX}:{SX+3}], s{sX} offen lds"],
             [f"s_add_u32 m0, s{sWr}, 4096", "s_nop 0", f"buffer_load_dwordx4 v{vX2}, s[{SX}:{SX+3}], s{sX} offen lds"]]
        for i in range(4):
            o.append([f"s_add_u32 m0, s{sT}, {4096*i}", "s_nop 0", f"buffer_load_dwordx4 v{vW[i]}, s[{SWQ}:{SWQ+3}], s{sWo} offen lds"])
        o.append([f"s_add_u32 m0, s{sWr}, 24576", f"s_add_u32 s{sWo}, s{sWo}, 0x20000", f"buffer_load_dwordx4 v{vE}, s[{SE}:{SE+3}], s{sEo} offen lds"])
        o.append([f"s_add_u32 s{sEo}, s{sEo}, 4096", f"s_add_u32 s{sX}, s{sX}, 128", f"s_cmp_eq_u32 s{sX}, 2048",
                  f"s_cselect_b32 s{sX}, {OOB}, s{sX}"])
        o.append([f"s_add_u32 s{sWr}, s{sWr}, {STG}", f"s_cmp_ge_u32 s{sWr}, {TBL}", f"s_cselect_b32 s{sT}, {TBL}, 0",
                  f"s_sub_u32 s{sWr}, s{sWr}, s{sT}"])
        return o
    k(f"s_mov_b32 s{sN}, {NS}")
    k.label("L_k0_pro")
    k(dma_stage())
    k(f"s_sub_u32 s{sN}, s{sN}, 1", f"s_cmp_lg_u32 s{sN}, 0", "s_cbranch_scc1 L_k0_pro")
    k(f"v_bfe_u32 v{R}, v{L}, 2, 2", f"v_and_b32 v{CQ}, 3, v{L}")
    k(f"v_lshrrev_b32 v{T0}, 1, v{TOK}", f"v_xor_b32 v{T0}, v{T0}, v{G}", f"v_lshlrev_b32 v{T0}, 4, v{T0}",
      f"v_lshl_add_u32 v{T0}, v{TOK}, 7, v{T0}",
      f"s_lshl_b32 s{sT}, s{sTH}, 1", f"s_add_u32 s{sT}, s{sT}, s{sCH}", f"s_lshl_b32 s{sT}, s{sT}, 11",
      f"v_add_u32 v{bX[0][0]}, s{sT}, v{T0}",
      f"v_xor_b32 v{bX[0][1]}, 2048, v{bX[0][0]}",
      f"v_xor_b32 v{bX[1][0]}, 64, v{bX[0][0]}",
      f"v_xor_b32 v{bX[1][1]}, 64, v{bX[0][1]}")
    k(f"v_and_b32 v{T2}, 1, v{G}",
      f"v_lshlrev_b32 v{T0}, 2, v{T2}", f"v_xor_b32 v{T0}, v{T0}, v{R}",
      f"s_lshl_b32 s{sT}, s{sCH}, 2", f"s_lshl_b32 s{sT2}, s{sTH}, 1", f"s_add_u32 s{sT}, s{sT}, s{sT2}",
      f"v_xor_b32 v{T0}, s{sT}, v{T0}",
      f"v_lshlrev_b32 v{T0}, 5, v{T0}",
      f"v_lshl_add_u32 v{T0}, v{CQ}, 3, v{T0}",
      f"v_lshl_add_u32 v{T0}, v{R}, 8, v{T0}",
      f"v_lshl_add_u32 v{T0}, v{G}, 11, v{T0}",
      f"v_add_u32 v{bW[0]}, 8192, v{T0}")
    for t in range(1, 4):
        k(f"v_xor_b32 v{bW[t]}, {32*t}, v{bW[0]}")
    k(f"v_xor_b32 v{T0}, s{sCH}, v{T2}", f"v_lshlrev_b32 v{T0}, 5, v{T0}", f"v_lshl_add_u32 v{T0}, v{CQ}, 3, v{T0}",
      f"v_lshl_add_u32 v{T0}, v{R}, 6, v{T0}", f"v_lshl_add_u32 v{T0}, v{G}, 9, v{T0}",
      f"v_add_u32 v{bE}, 24576, v{T0}")
    bases = [(aX[s][i], bX[s][i]) for s in range(2) for i in range(2)] + list(zip(aW, bW)) + [(aE, bE)]
    for a, b in bases:
        k(f"v_mov_b32 v{a}, v{b}")
    for i in range(acc0, acc1):
        k(f"v_mov_b32 v{i}, 0")
    for i in range(4):
        k(f"v_mov_b32 v{ONES+i}, 0x3f803f80")

    def reads(f, s):
        f = F[f]
        o = [f"ds_read_b128 {vr(f['X'][i],4)}, v{aX[s][i]}" for i in range(2)]
        for t in range(4):
            for j in range(2):
                o.append(f"ds_read_b64_tr_b16 {vr(f['W'][t]+2*j,2)}, v{aW[t]} offset:{s*8192+j*1024}")
        for j in range(2):
            o.append(f"ds_read_b64_tr_b16 {vr(f['E']+2*j,2)}, v{aE} offset:{s*2048+j*256}")
        return o

    def mfmas(f):
        f = F[f]
        X = [vr(x, 4) for x in f["X"]]; W = [vr(x, 4) for x in f["W"]]; E = vr(f["E"], 4); O = vr(ONES, 4)
        o = [m16(vr(sx, 4), O, X[0]), m16(vr(sxx, 4), X[0], X[0])]
        for t in range(4):
            o += [m16(vr(acc[t][0], 4), W[t], X[0]), m16(vr(acc[t][1], 4), W[t], X[1])]
            if t < 2:
                o.append(m16(vr(cs[t], 4), W[t], O))
        o += [m16(vr(accE[0], 4), E, X[0]), m16(vr(accE[1], 4), E, X[1]), m16(vr(csE, 4), E, O)]
        return o
    k(f"s_mov_b32 s{sRd}, 0", f"s_mov_b32 s{sN}, 16")
    k(f"s_waitcnt vmcnt({7*(NS-1)})", "s_barrier")
    mid_stamp(k, 0)
    k(reads(0, 0))
    k.label("L_k0_loop")
    k("s_waitcnt lgkmcnt(0)")
    k(weave(mfmas(0), reads(1, 1), 0, 9))
    k(f"s_add_u32 s{sRd}, s{sRd}, {STG}", f"s_cmp_eq_u32 s{sRd}, {TBL}", f"s_cselect_b32 s{sRd}, 0, s{sRd}")
    k(f"s_waitcnt vmcnt({7*(NS-2)}) lgkmcnt(0)", "s_barrier")
    for a, b in bases:
        k(f"v_add_u32 v{a}, s{sRd}, v{b}")
    k(weave(weave(mfmas(1), reads(0, 0), 0, 8), dma_stage(), 8))
    k(f"s_sub_u32 s{sN}, s{sN}, 1", f"s_cmp_lg_u32 s{sN}, 0", "s_cbranch_scc1 L_k0_loop")
    mid_stamp(k, 1)
    k(f"s_lshr_b32 s{sT}, s2, 3", f"s_lshl_b32 s{sT}, s{sT}, 10", f"v_lshlrev_b32 v{T0}, 2, v0", f"v_add_u32 v{T0}, s{sT}, v{T0}")
    k(f"s_getpc_b64 s[40:41]")
    k.label("L_k0_pc2")
    k("s_add_u32 s40, s40, L_code_rest-L_k0_pc2", "s_addc_u32 s41, s41, 0",
      f"v_min_u32 v{T0}, L_code_end-L_code_rest-4, v{T0}",
      f"global_load_dword v{PF}, v{T0}, s[40:41]")
    ST = F[0]["X"]
    k("s_waitcnt lgkmcnt(0)")
    k(f"v_and_b32 v{T0}, 1, v{TOK}", f"v_cmp_eq_u32 vcc, 1, v{T0}", f"v_and_b32 v{T1}, 2, v{TOK}", "s_nop 1",
      f"v_cndmask_b32 v{T0}, v{sxx}, v{sxx+1}, vcc", f"v_cndmask_b32 v{T2}, v{sxx+2}, v{sxx+3}, vcc",
      f"v_cmp_eq_u32 vcc, 2, v{T1}", "s_nop 1",
      f"v_cndmask_b32 v{sx+1}, v{T0}, v{T2}, vcc")
    k(f"s_lshl_b32 s{sT}, s{sTH}, 1", f"s_add_u32 s{sT}, s{sT}, s{sCH}", f"s_lshl_b32 s{sT}, s{sT}, 7", f"s_add_u32 s{sT}, s{sT}, {TBL}",
      f"v_lshl_add_u32 v{T0}, v{TOK}, 3, s{sT}",
      f"s_lshl_b32 s{sT}, s{sCH}, 2", f"s_lshl_b32 s{sT2}, s{sTH}, 1", f"s_add_u32 s{sT}, s{sT}, s{sT2}", f"s_lshl_b32 s{sT}, s{sT}, 6",
      f"s_add_u32 s{sT}, s{sT}, {TBL+512}",
      f"v_lshl_add_u32 v{T1}, v{G}, 4, s{sT}",
      f"ds_write_b128 v{T1}, {vr(cs[0],4)}", f"ds_write_b128 v{T1}, {vr(cs[1],4)} offset:64",
      f"v_cmp_eq_u32 vcc, v{R}, v{G}", "s_and_saveexec_b64 s[42:43], vcc",
      f"ds_write_b64 v{T0}, {vr(sx,2)}", "s_mov_b64 exec, s[42:43]",
      "s_waitcnt lgkmcnt(0)", "s_barrier")
    c2, c3 = F[0]["W"][0], F[0]["W"][1]
    k(f"v_xor_b32 v{T2}, 128, v{T0}", f"v_xor_b32 v{T1}, 128, v{T1}",
      f"ds_read_b64 {vr(ST[0],2)}, v{T0}", f"ds_read_b64 {vr(ST[1],2)}, v{T2}",
      f"ds_read_b128 {vr(c2,4)}, v{T1}", f"ds_read_b128 {vr(c3,4)}, v{T1} offset:64")
    vQ, vK, vV = vX, vX2, vE
    k(f"v_lshlrev_b32 v{T0}, 9, v{G}", f"v_lshl_add_u32 v{T0}, v{TOK}, 4, v{T0}",
      f"s_lshl_b32 s{sT}, s{sCH}, 8", f"v_add_u32 v{vQ}, s{sT}, v{T0}",
      f"s_lshl_b32 s{sT}, s{sCH}, 3", f"v_add_u32 v{vK}, s{sT}, v{vQ}")
    k(f"v_and_b32 v{T0}, 1, v{G}", f"v_lshlrev_b32 v{T0}, 7, v{T0}", f"v_lshrrev_b32 v{T1}, 1, v{G}", f"v_lshl_add_u32 v{T0}, v{T1}, 6, v{T0}",
      f"v_bfe_u32 v{T1}, v{L}, 3, 1", f"v_lshl_add_u32 v{T0}, v{T1}, 9, v{T0}", f"v_and_b32 v{T1}, 7, v{L}", f"v_lshl_add_u32 v{T0}, v{T1}, 1, v{T0}",
      f"s_mul_i32 s{sT}, s{sCH}, 1280", f"s_add_u32 s{sT}, s{sT}, 2048", f"v_add_u32 v{vV}, s{sT}, v{T0}")
    sQ0, sQ1, sKV = sX, sWo, sEo
    k(f"s_lshl_b32 s{sT}, s{sTB}, 1", f"s_add_u32 s{sT}, s{sT}, s{sTH}",
      f"s_lshl_b32 s{sKV}, s{sT}, 12", f"s_add_u32 s{sKV}, s{sKV}, {KVF}",
      f"s_lshl_b32 s{sT2}, s{sHG}, 2", f"s_lshl_b32 s{sQ0}, s{sCH}, 1", f"s_add_u32 s{sT2}, s{sT2}, s{sQ0}", f"s_add_u32 s{sT2}, s{sT2}, s{sTH}",
      f"s_lshl_b32 s{sQ0}, s{sT2}, 6", f"s_add_u32 s{sQ0}, s{sQ0}, s{sT}", f"s_lshl_b32 s{sQ0}, s{sQ0}, 11",
      f"s_xor_b32 s{sQ1}, s{sQ0}, {1<<17}")
    k("s_waitcnt lgkmcnt(0)")
    for i in range(2):
        s = ST[i]
        k(f"v_mul_f32 v{s}, {f32(1/1024)}, v{s}",
          f"v_mul_f32 v{s+1}, {f32(1/1024)}, v{s+1}",
          f"v_fma_f32 v{s+1}, -v{s}, v{s}, v{s+1}",
          f"v_max_f32 v{s+1}, 0, v{s+1}",
          f"v_add_f32 v{s+1}, {f32(EPS)}, v{s+1}",
          f"v_rsq_f32 v{s+2}, v{s+1}", "s_nop 0",
          f"v_mul_f32 v{s+3}, v{s}, v{s+2}",
          f"v_sub_f32 v{s+3}, 0, v{s+3}",
          f"v_mul_f32 v{s}, {f32(QSCALE)}, v{s+2}",
          f"v_mul_f32 v{s+1}, {f32(QSCALE)}, v{s+3}")
    csr = [cs[0], cs[1], c2, c3]
    OUTR = F[1]["W"]
    vQ1 = vW[0]; vK1 = vW[1]; vV1 = vW[2]
    k(f"v_xor_b32 v{vQ1}, 256, v{vQ}", f"v_xor_b32 v{vK1}, 256, v{vK}", f"v_xor_b32 v{vV1}, 1024, v{vV}")
    for p in range(2):
        for i in range(2):
            o = OUTR[2 * p + i]
            for jt in range(2):
                t = 2 * p + jt
                a = acc[t][i]
                for r in range(4):
                    k(f"v_mul_f32 v{a+r}, v{ST[i]}, v{a+r}", f"v_fmac_f32 v{a+r}, v{ST[i]+1}, v{csr[t]+r}")
                k(f"v_cvt_pk_bf16_f32 v{o+2*jt}, v{a}, v{a+1}", f"v_cvt_pk_bf16_f32 v{o+2*jt+1}, v{a+2}, v{a+3}")
            k(f"buffer_store_dwordx4 {vr(o,4)}, v{[vQ,vQ1][i]}, s[{SWS}:{SWS+3}], s{[sQ0,sQ1][p]} offen sc1")
    k(f"s_and_b32 s{sT}, s{sHG}, 3", f"s_cmp_lg_u32 s{sT}, 0", "s_cbranch_scc1 L_k0_done")
    o = F[1]["E"]
    for i in range(2):
        a = accE[i]
        for r in range(4):
            k(f"v_mul_f32 v{a+r}, v{ST[i]+2}, v{a+r}", f"v_fmac_f32 v{a+r}, v{ST[i]+3}, v{csE+r}")
        k(f"v_cvt_pk_bf16_f32 v{o+2*i}, v{a}, v{a+1}", f"v_cvt_pk_bf16_f32 v{o+2*i+1}, v{a+2}, v{a+3}")
    k(f"s_cmp_lg_u32 s{sHG}, 0", "s_cbranch_scc1 L_k0_v")
    for i in range(2):
        k(f"buffer_store_dwordx2 {vr(o+2*i,2)}, v{[vK,vK1][i]}, s[{SWS}:{SWS+3}], s{sKV} offen sc1")
    k("s_branch L_k0_done")
    k.label("L_k0_v")
    for i in range(2):
        for r in range(4):
            op = "buffer_store_short" if r % 2 == 0 else "buffer_store_short_d16_hi"
            k(f"{op} v{o+2*i+r//2}, v{[vV,vV1][i]}, s[{SWS}:{SWS+3}], s{sKV} offen offset:{16*r} sc1")
    k.label("L_k0_done")
    tail(k, 0, sW)
    return k


def k1_attn():
    SLOT = 49152
    k = Kern("attn_kernel", 256, 256, 3 * SLOT)
    SWS, SKV, SJ = 4, 8, 12
    (sW, sTB, sHG, sC, sT, sT2, sRd, sWr, sKo, sJo, sJa, sJb, sGW, sStr, sDstep, sDA, sOo) = range(32, 49)
    sD = [50, 51, 52, 53]
    sDa = [54, 55, 56, 57]
    sCs = [58, 59, 60, 61]
    sDB, sBsz, sWrJ = 62, 63, 64
    v = Alloc(1)
    L, T0, T1, T2, vLin, vRd, vJ, vJB, IDX, vCs = [v() for _ in range(10)]
    bJ = [v(), v()]; aJ = [v(), v()]
    Q = [v(8, 4) for _ in range(2)]
    S = [v(16, 4) for _ in range(4)]
    O = [v(16, 4) for _ in range(2)]
    LS = [v(4, 4) for _ in range(2)]
    KB = [v(8, 4) for _ in range(2)]
    VB = [v(8, 4) for _ in range(2)]
    SUMA = v(4, 4)
    JF = [v(4, 4) for _ in range(4)]
    CS = [v(4, 4) for _ in range(4)]
    ONES = v(4, 4)
    k.vgpr = k.acc = (v.n + 7) // 8 * 8
    head(k)
    k(f"s_load_dwordx2 s[{SWS}:{SWS+1}], s[0:1], {A_WS}",
      f"s_load_dwordx2 s[20:21], s[0:1], {A_WO}",
      f"s_load_dwordx4 s[24:27], s[0:1], {A_WG}",
      f"s_load_dwordx2 s[28:29], s[0:1], {A_WD}")
    k(f"v_lshrrev_b32 v{T1}, 6, v0", f"v_and_b32 v{L}, 63, v0", f"v_readfirstlane_b32 s{sW}, v{T1}", f"v_lshlrev_b32 v{vLin}, 4, v{L}")
    ids_8x4(k, sHG, sTB, sT)
    k(f"s_lshl_b32 s{sT}, s{sHG}, 2", f"s_add_u32 s{sT}, s{sT}, s{sW}",
      f"s_lshl_b32 s{sOo}, s{sTB}, 5", f"s_add_u32 s{sOo}, s{sOo}, s{sT}", f"s_lshl_b32 s{sOo}, s{sOo}, 12", f"s_add_u32 s{sOo}, s{sOo}, {OF}",
      f"s_lshl_b32 s{sT}, s{sT}, 17", f"s_lshl_b32 s{sT2}, s{sTB}, 12", f"s_add_u32 s{sT}, s{sT}, s{sT2}",
      f"s_lshl_b32 s{sKo}, s{sW}, 13", f"s_mov_b32 s{sWr}, s{sKo}")
    k("s_waitcnt lgkmcnt(0)")
    k(srd_tail(SWS, WS_SZ), srd_from(SKV, SWS, KVF, 262144))
    for q in range(2):
        for m in range(2):
            k(f"buffer_load_dwordx4 {vr(Q[q]+4*m,4)}, v{vLin}, s[{SWS}:{SWS+3}], s{sT} offen offset:{2048*q+1024*m}")

    def kv_dma():
        o = []
        for h in range(2):
            for i in range(4):
                g = []
                if i == 0:
                    g += [f"s_add_u32 m0, s{sWr}, {4096*h}", "s_nop 0"]
                g.append(f"buffer_load_dwordx4 v{vLin}, s[{SKV}:{SKV+3}], s{sKo} offen offset:{1024*i} lds")
                if i == 3:
                    g.append(f"s_add_u32 s{sKo}, s{sKo}, {4096 if h == 0 else 32768-4096}")
                o.append(g)
        return o
    for c in range(2):
        k(kv_dma(), f"s_add_u32 s{sWr}, s{sWr}, {SLOT}")
    k(f"s_lshl_b32 s{sGW}, s2, 2", f"s_add_u32 s{sGW}, s{sGW}, s{sW}")
    k(f"s_lshl_b32 s{sWrJ}, s{sW}, 12", f"s_sub_u32 s{sWrJ}, 32768, s{sWrJ}")
    strip, kb0, mat = 66, 67, 68
    k(f"s_lshr_b32 s{strip}, s{sGW}, 3", f"s_and_b32 s{kb0}, s{sGW}, 7", f"s_lshl_b32 s{kb0}, s{kb0}, 2",
      f"s_cmp_ge_u32 s{strip}, 112", "s_cbranch_scc1 L_k1_wo")
    k(f"s_cmp_ge_u32 s{strip}, 56", f"s_cselect_b32 s{mat}, 1, 0",
      f"s_cselect_b32 s{SJ}, s26, s24", f"s_cselect_b32 s{SJ+1}, s27, s25",
      f"s_mul_i32 s{sT}, s{mat}, 56", f"s_sub_u32 s{strip}, s{strip}, s{sT}",
      f"s_mov_b32 s{SJ+2}, {1024*7168}", f"s_mov_b32 s{sStr}, 7168", f"s_mov_b32 s{sDA}, {14*1024}",
      f"s_mov_b32 s{sBsz}, {3584*2048}")
    for i in range(4):
        T, fb, pos = 69, 70, 71
        k(f"s_lshl_b32 s{T}, s{strip}, 2", f"s_add_u32 s{T}, s{T}, {i}",
          f"s_mul_i32 s{fb}, s{T}, 9363", f"s_lshr_b32 s{fb}, s{fb}, 16",
          f"s_mul_i32 s{pos}, s{fb}, 7", f"s_sub_u32 s{pos}, s{T}, s{pos}",
          f"s_and_b32 s{sT}, s{fb}, 1", f"s_sub_u32 s{pos}, s{pos}, s{sT}",
          f"s_cmp_lt_i32 s{pos}, 0", f"s_cselect_b32 s{pos}, 6, s{pos}",
          f"s_mul_i32 s{sT}, s{mat}, 7", f"s_add_u32 s{pos}, s{pos}, s{sT}",
          f"s_lshl_b32 s{sT}, s{fb}, 5", f"s_add_u32 s{sT}, s{sT}, s{kb0}", f"s_mul_i32 s{sT}, s{sT}, 14",
          f"s_add_u32 s{sT}, s{sT}, s{pos}", f"s_lshl_b32 s{sT}, s{sT}, 10", f"s_add_u32 s{sDa[i]}, s{sT}, {WGU}",
          f"s_lshl_b32 s{sT}, s{kb0}, 3", f"s_add_u32 s{sT}, s{sT}, s{fb}", f"s_mul_i32 s{sT}, s{sT}, 14",
          f"s_add_u32 s{sT}, s{sT}, s{pos}", f"s_lshl_b32 s{sT}, s{sT}, 6", f"s_add_u32 s{sCs[i]}, s{sT}, {CSP}")
    k("s_branch L_k1_jp")
    k.label("L_k1_wo")
    k(f"s_sub_u32 s{strip}, s{strip}, 112", f"s_mov_b32 s{SJ}, s20", f"s_mov_b32 s{SJ+1}, s21",
      f"s_mov_b32 s{SJ+2}, {2*MB}", f"s_mov_b32 s{sStr}, 2048", f"s_mov_b32 s{sDA}, 8192", f"s_mov_b32 s{sBsz}, 0",
      f"s_lshr_b32 s{sT}, s{strip}, 1", f"s_lshl_b32 s{sT}, s{sT}, 5", f"s_add_u32 s{sT}, s{sT}, s{kb0}", f"s_lshl_b32 s{sT}, s{sT}, 1",
      f"s_and_b32 s{sT2}, s{strip}, 1", f"s_add_u32 s{sT}, s{sT}, s{sT2}", f"s_lshl_b32 s{sT}, s{sT}, 12")
    for i in range(4):
        k(f"s_add_u32 s{sDa[i]}, s{sT}, {WOF+1024*i}", f"s_mov_b32 s{sCs[i]}, {OOB}")
    k.label("L_k1_jp")
    k(f"s_mov_b32 s{SJ+3}, 0x00020000")
    k(f"v_lshrrev_b32 v{T0}, 3, v{L}", f"v_bfe_u32 v{T1}, v{L}, 4, 1", f"v_lshlrev_b32 v{T1}, 2, v{T1}",
      f"v_and_b32 v{T2}, 7, v{L}", f"v_xor_b32 v{T1}, v{T1}, v{T2}", f"v_lshlrev_b32 v{T1}, 4, v{T1}",
      f"v_mul_lo_u32 v{vJ}, v{T0}, s{sStr}", f"v_lshl_add_u32 v{vJB}, v{T0}, 11, v{T1}", f"v_add_u32 v{vJ}, v{vJ}, v{T1}",
      f"s_lshl_b32 s{sT}, s{kb0}, 5", f"s_mul_i32 s{sT}, s{sT}, s{sStr}", f"s_lshl_b32 s{sT2}, s{strip}, 7", f"s_add_u32 s{sT}, s{sT}, s{sT2}",
      f"v_add_u32 v{vJ}, s{sT}, v{vJ}",
      f"s_lshl_b32 s{sT}, s{sStr}, 3", f"s_sub_u32 s{sJa}, s{sT}, 1024", f"s_add_u32 s{sJb}, s{sT}, 3072", f"s_mov_b32 s{sJo}, 0")
    k(f"s_mul_i32 s{strip}, s{sGW}, 1171", f"s_lshr_b32 s{strip}, s{strip}, 16",
      f"s_mul_i32 s{sT}, s{strip}, 56", f"s_sub_u32 s{kb0}, s{sGW}, s{sT}", f"s_lshl_b32 s{kb0}, s{kb0}, 1",
      f"s_lshl_b32 s{sT}, s{kb0}, 16", f"s_lshl_b32 s{sT2}, s{strip}, 7", f"s_add_u32 s{sT}, s{sT}, s{sT2}",
      f"v_add_u32 v{vJB}, s{sT}, v{vJB}",
      f"s_lshr_b32 s{sT}, s{strip}, 1", f"s_mul_i32 s{sT}, s{sT}, 112", f"s_add_u32 s{sT}, s{sT}, s{kb0}", f"s_lshl_b32 s{sT}, s{sT}, 1",
      f"s_and_b32 s{sT2}, s{strip}, 1", f"s_add_u32 s{sT}, s{sT}, s{sT2}", f"s_lshl_b32 s{sT}, s{sT}, 12",
      f"s_add_u32 s{sDB}, s{sT}, {WDF}", f"s_cmp_eq_u32 s{sBsz}, 0", f"s_cselect_b32 s{sDB}, {OOB}, s{sDB}")
    for i in range(4):
        k(f"s_mov_b32 s{sD[i]}, {OOB}")
    k(f"s_mov_b32 s{sDstep}, 0")
    k(f"v_lshrrev_b32 v{T0}, 4, v{L}", f"v_lshlrev_b32 v{T0}, 10, v{T0}", f"v_bfe_u32 v{T1}, v{L}, 2, 2", f"v_lshl_add_u32 v{T0}, v{T1}, 7, v{T0}",
      f"v_bfe_u32 v{T1}, v{L}, 3, 1", f"v_lshl_add_u32 v{T0}, v{T1}, 6, v{T0}", f"v_and_b32 v{T1}, 3, v{L}", f"v_lshl_add_u32 v{T0}, v{T1}, 4, v{T0}",
      f"s_lshl_b32 s{sT}, s{sW}, 12", f"s_add_u32 s{sT}, s{sT}, 32768", f"v_add_u32 v{bJ[0]}, s{sT}, v{T0}", f"v_xor_b32 v{bJ[1]}, 64, v{bJ[0]}",
      f"v_mov_b32 v{aJ[0]}, v{bJ[0]}", f"v_mov_b32 v{aJ[1]}, v{bJ[1]}")
    k(f"v_and_b32 v{T0}, 15, v{L}", f"v_cmp_eq_u32 vcc, 0, v{T0}", f"v_mov_b32 v{T1}, {OOB}", f"v_mov_b32 v{IDX}, 0xdddd",
      f"v_cndmask_b32 v{vCs}, v{T1}, v{L}, vcc")
    k(f"v_and_b32 v{T0}, 7, v{L}", f"v_mov_b32 v{T1}, 0x3f803f80", f"v_cmp_eq_u32 vcc, 0, v{T0}", f"v_mov_b32 v{vRd}, v{vLin}", "s_nop 0",
      f"v_cndmask_b32 v{SUMA}, 0, v{T1}, vcc", f"v_cndmask_b32 v{SUMA+1}, 0, v{T1}, vcc",
      f"v_cmp_eq_u32 vcc, 4, v{T0}", "s_nop 1",
      f"v_cndmask_b32 v{SUMA+2}, 0, v{T1}, vcc", f"v_cndmask_b32 v{SUMA+3}, 0, v{T1}, vcc")
    for i in range(4):
        k(f"v_mov_b32 v{ONES+i}, v{T1}")
    for r0, n in ((O[0], 16), (O[1], 16), (LS[0], 4), (LS[1], 4), (S[3], 16), (VB[1], 8)):
        for i in range(n):
            k(f"v_mov_b32 v{r0+i}, 0")
    k(f"s_mov_b32 s{sRd}, 0", f"s_mov_b32 s{sC}, 0")
    k("s_waitcnt vmcnt(8)", "s_barrier")
    mid_stamp(k, 0)
    rdK = lambda t: [f"ds_read_b128 {vr(KB[t&1]+4*m,4)}, v{vRd} offset:{(t%8)*4096+1024*m}" for m in range(2)]
    rdV = lambda t: [f"ds_read_b128 {vr(VB[t&1]+4*m,4)}, v{vRd} offset:{(t%8)*4096+2048+1024*m}" for m in range(2)]
    qk = lambda u, c="0": [m32(vr(S[u % 4], 16), vr(KB[(u >> 1) & 1], 4), vr(Q[u & 1], 4), c),
                           m32(vr(S[u % 4], 16), vr(KB[(u >> 1) & 1] + 4, 4), vr(Q[u & 1] + 4, 4))]
    pv = lambda u: [f"v_smfmac_f32_32x32x32_bf16 {vr(O[u&1],16)}, {vr(VB[(u>>1)&1]+4*m,4)}, {vr(S[u%4]+8*m,8)}, v{IDX}" for m in range(2)]
    sm = lambda u: [f"v_smfmac_f32_16x16x64_bf16 {vr(LS[u&1],4)}, {vr(SUMA,4)}, {vr(S[u%4]+8*m,8)}, v{IDX}" for m in range(2)]
    k(rdK(0), rdV(0), "s_waitcnt lgkmcnt(0)", qk(0), "s_nop 7", "s_nop 3")

    jdma = []
    for i in range(4):
        g = []
        if i == 0:
            g += [f"s_add_u32 m0, s{sWr}, s{sWrJ}", "s_nop 0"]
        g += [f"buffer_load_dwordx4 v{vJ}, s[{SJ}:{SJ+3}], s{sJo} offen offset:{1024*i} lds",
              f"s_add_u32 s{sJo}, s{sJo}, s{sJa if i < 3 else sJb}"]
        jdma.append(g)
    kvd = kv_dma()
    jrd = lambda f: [f"ds_read_b64_tr_b16 {vr(JF[f]+2*jj,2)}, v{aJ[f>>1]} offset:{jj*512+(f&1)*8}" for jj in range(2)]
    jst = lambda f: [f"buffer_store_dwordx4 {vr(JF[f],4)}, v{vLin}, s[{SWS}:{SWS+3}], s{sD[f]} offen sc1", f"s_add_u32 s{sD[f]}, s{sD[f]}, s{sDstep}"]
    jmf = lambda f: m16(vr(CS[f], 4), vr(JF[f], 4), vr(ONES, 4))
    k(".p2align 6")
    k.label("L_k1_loop")
    for u in range(16):
        ex = [f"v_exp_f32 v{S[u%4]+i}, v{S[u%4]+i}" for i in range(16)]
        mf = qk(u + 1) + pv(u - 1) + sm(u - 1)
        sl = [[] for _ in range(6)]
        t = u >> 1
        rd = rdK(t + 1) if u % 2 == 0 else rdV(t + 1)
        if u == 14:
            sl[0] += [f"s_add_u32 s{sRd}, s{sRd}, {SLOT}", f"s_cmp_eq_u32 s{sRd}, {3*SLOT}", f"s_cselect_b32 s{sRd}, 0, s{sRd}",
                      "s_waitcnt vmcnt(16) lgkmcnt(0)", "s_barrier", f"v_add_u32 v{vRd}, s{sRd}, v{vLin}"]
            sl[1] += rd
        else:
            sl[0].append(rd[0]); sl[1].append(rd[1])
        if u == 15:
            sl[2] += [f"v_add_u32 v{aJ[0]}, s{sRd}, v{bJ[0]}", f"v_add_u32 v{aJ[1]}, s{sRd}, v{bJ[1]}"]
            sl[3] += [f"s_add_u32 s{sWr}, s{sWr}, {SLOT}", f"s_cmp_ge_u32 s{sWr}, {3*SLOT}"]
            sl[4] += [f"s_cselect_b32 s{sT}, {3*SLOT}, 0", f"s_sub_u32 s{sWr}, s{sWr}, s{sT}"]
            sl[5] += [f"s_add_u32 s{sC}, s{sC}, 1", f"s_bitcmp1_b32 s{sC}, 0"]
        if u < 4:
            sl[2] += jdma[u]
        elif u < 12:
            sl[2] += kvd[u - 4]
        if u in (1, 3, 5, 7):
            j = jrd(u // 2)
            sl[3].append(j[0]); sl[4].append(j[1])
        if u in (3, 5, 7, 9):
            sl[5] += jst((u - 3) // 2)
        if u in (4, 6, 8, 10):
            sl[3].append(jmf((u - 4) // 2))
        if u % 2 == 0:
            sl[5].append("s_waitcnt lgkmcnt(0)")
        cuts = [0, 3, 6, 9, 12, 14, 16]
        for i in range(6):
            k(mf[i], sl[i], ex[cuts[i]:cuts[i + 1]])
    k("s_cbranch_scc1 L_k1_loop")
    k(f"s_cmp_eq_u32 s{sC}, 8", "s_cbranch_scc1 L_k1_fin",
      f"s_cmp_eq_u32 s{sC}, 4", "s_cbranch_scc1 L_k1_sw4",
      f"s_cmp_eq_u32 s{sC}, 6", "s_cbranch_scc1 L_k1_sw6")
    for i in range(4):
        k(f"s_mov_b32 s{sD[i]}, s{sDa[i]}")
        for r in range(4):
            k(f"v_mov_b32 v{CS[i]+r}, 0")
    k(f"s_mov_b32 s{sDstep}, s{sDA}", "s_branch L_k1_loop")
    k.label("L_k1_sw4")
    k(f"s_mov_b32 s{SJ}, s28", f"s_mov_b32 s{SJ+1}, s29", f"s_mov_b32 s{SJ+2}, s{sBsz}", f"v_mov_b32 v{vJ}, v{vJB}",
      f"s_mov_b32 s{sJo}, 0", f"s_mov_b32 s{sJa}, {16384-1024}", f"s_mov_b32 s{sJb}, {16384+3072}", "s_branch L_k1_loop")
    k.label("L_k1_sw6")
    k(f"s_mov_b32 s{SJ+2}, 0", f"s_mov_b32 s{sDstep}, 8192")
    for i in range(4):
        k(f"buffer_store_dwordx4 {vr(CS[i],4)}, v{vCs}, s[{SWS}:{SWS+3}], s{sCs[i]} offen sc1",
          f"s_add_u32 s{sD[i]}, s{sDB}, {1024*i}")
    k("s_branch L_k1_loop")
    k.label("L_k1_fin")
    mid_stamp(k, 1)
    k("s_nop 1", pv(15), sm(15))
    vO = vRd
    k(f"v_bfe_u32 v{T0}, v{L}, 4, 1", f"v_lshlrev_b32 v{T0}, 10, v{T0}", f"v_lshrrev_b32 v{T1}, 5, v{L}", f"v_lshl_add_u32 v{T0}, v{T1}, 8, v{T0}",
      f"v_and_b32 v{T1}, 15, v{L}", f"v_lshl_add_u32 v{vO}, v{T1}, 4, v{T0}")
    k("s_nop 15", "s_waitcnt lgkmcnt(0)")
    k(f"v_maximum3_f32 v{T0}, abs(v{O[0]}), abs(v{O[0]+1}), v{LS[0]}", f"v_maximum3_f32 v{T1}, abs(v{O[1]}), abs(v{O[1]+1}), v{LS[1]}")
    for i in range(2, 16, 2):
        k(f"v_maximum3_f32 v{T0}, abs(v{O[0]+i}), abs(v{O[0]+i+1}), v{T0}", f"v_maximum3_f32 v{T1}, abs(v{O[1]+i}), abs(v{O[1]+i+1}), v{T1}")
    k(f"v_maximum3_f32 v{T0}, v{T0}, v{T1}, v{T1}", f"v_min_f32 v{T1}, v{LS[0]}, v{LS[1]}",
      f"v_cmp_nge_f32 vcc, {f32(2.0**100)}, v{T0}", f"s_mov_b64 s[70:71], vcc",
      f"v_cmp_nle_f32 vcc, {f32(2.0**-80)}, v{T1}", f"s_or_b64 s[70:71], s[70:71], vcc")
    if OPT["force_slow"]:
        k("s_branch L_k1_slow")
    k("s_cbranch_scc1 L_k1_slow")
    k.label("L_k1_out")
    k(f"v_rcp_f32 v{T0}, v{LS[0]}", f"v_rcp_f32 v{T1}, v{LS[1]}", "s_nop 0")
    for q in range(2):
        for m in range(2):
            o = S[0] + 8 * q + 4 * m
            for i in range(8):
                k(f"v_mul_f32 v{O[q]+8*m+i}, v{[T0,T1][q]}, v{O[q]+8*m+i}")
            for i in range(4):
                k(f"v_cvt_pk_bf16_f32 v{o+i}, v{O[q]+8*m+2*i}, v{O[q]+8*m+2*i+1}")
            k(f"buffer_store_dwordx4 {vr(o,4)}, v{vO}, s[{SWS}:{SWS+3}], s{sOo} offen offset:{2048*q+512*m} sc1")
    k("s_branch L_k1_done")
    k.label("L_k1_slow")
    C = [S[2], S[3]]
    ldK = [f"buffer_load_dwordx4 {vr(KB[0]+4*m,4)}, v{vLin}, s[{SKV}:{SKV+3}], s{sKo} offen offset:{1024*m}" for m in range(2)]
    ldV = [f"buffer_load_dwordx4 {vr(VB[0]+4*m,4)}, v{vLin}, s[{SKV}:{SKV+3}], s{sKo} offen offset:{2048+1024*m}" for m in range(2)]
    k(f"v_mov_b32 v{T0}, 0xff800000", f"v_mov_b32 v{T1}, 0xff800000", f"s_mov_b32 s{sKo}, 0")
    k.label("L_k1_s1")
    k(ldK, "s_waitcnt vmcnt(0)", qk(0), qk(1), "s_nop 15")
    for q in range(2):
        for i in range(0, 16, 2):
            k(f"v_max3_f32 v{[T0,T1][q]}, v{S[q]+i}, v{S[q]+i+1}, v{[T0,T1][q]}")
    k(f"s_add_u32 s{sKo}, s{sKo}, 4096", f"s_cmp_lt_u32 s{sKo}, 262144", "s_cbranch_scc1 L_k1_s1")
    for q in range(2):
        t = [T0, T1][q]
        k(f"v_mov_b32 v{T2}, v{t}", "s_nop 1", f"v_permlane32_swap_b32 v{t}, v{T2}", "s_nop 1", f"v_max_f32 v{t}, v{t}, v{T2}")
        for i in range(16):
            k(f"v_sub_f32 v{C[q]+i}, 0, v{t}", f"v_mov_b32 v{O[q]+i}, 0")
        for i in range(4):
            k(f"v_mov_b32 v{LS[q]+i}, 0")
    k(f"s_mov_b32 s{sKo}, 0")
    k.label("L_k1_s2")
    k(ldK, ldV, "s_waitcnt vmcnt(0)", qk(0, vr(C[0], 16)), qk(1, vr(C[1], 16)), "s_nop 15")
    for q in range(2):
        for i in range(16):
            k(f"v_exp_f32 v{S[q]+i}, v{S[q]+i}")
    k("s_nop 1", pv(0), sm(0), pv(1), sm(1))
    k(f"s_add_u32 s{sKo}, s{sKo}, 4096", f"s_cmp_lt_u32 s{sKo}, 262144", "s_cbranch_scc1 L_k1_s2")
    k("s_nop 15", "s_nop 7", "s_branch L_k1_out")
    k.label("L_k1_done")
    tail(k, 1, sW)
    return k


def k_gemm(name, kidx, K, tok_region, w_region, is_down):
    STG, NS = 24576, 6
    k = Kern(name, 256, 256, STG * NS)
    SWS, ST_, SW_, SR, SO = 4, 8, 12, 16, 20
    sW, sTB, sNB, sN, sT, sT2, sRd, sWr, sTo, sWo, sTH, sCH, sRes, sDW = range(28, 42)
    v = Alloc(1)
    L, G, TOK, T0, T1, vLin, bT, bW, aT, aW, vRow = [v() for _ in range(11)]
    F = [dict(X=[v(4, 4) for _ in range(2)], W=[v(4, 4) for _ in range(4)]) for _ in range(2)]
    acc = [[v(4, 4) for i in range(2)] for t in range(4)]
    RES = [[v(4, 4) for b in range(2)] for i in range(2)]
    k.vgpr = k.acc = (v.n + 7) // 8 * 8
    head(k)
    k(f"s_load_dwordx2 s[{SWS}:{SWS+1}], s[0:1], {A_WS}",
      f"s_load_dwordx2 s[{SO}:{SO+1}], s[0:1], {A_OUT if is_down else A_X}")
    k(f"v_lshrrev_b32 v{T1}, 6, v0", f"v_and_b32 v{L}, 63, v0", f"v_readfirstlane_b32 s{sW}, v{T1}", f"v_lshlrev_b32 v{vLin}, 4, v{L}")
    ids_8x4(k, sNB, sTB, sT)
    k(f"s_and_b32 s{sTH}, s{sW}, 1", f"s_lshr_b32 s{sCH}, s{sW}, 1",
      f"s_lshl_b32 s{sTo}, s{sW}, 11", f"s_lshl_b32 s{sWo}, s{sW}, 12", f"s_mov_b32 s{sWr}, s{sTo}",
      f"s_add_u32 s{sDW}, s{sTo}, 8192",
      f"s_mul_i32 s{sT}, s{sTB}, {K*128}", f"s_add_u32 s{sT}, s{sT}, {tok_region}",
      f"s_mul_i32 s{sT2}, s{sNB}, {K*256}", f"s_add_u32 s{sT2}, s{sT2}, {w_region}")
    k(f"v_lshrrev_b32 v{G}, 4, v{L}", f"v_and_b32 v{TOK}, 15, v{L}",
      f"v_lshlrev_b32 v{T0}, 11, v{TOK}", f"v_lshl_add_u32 v{T0}, v{G}, 4, v{T0}",
      f"s_lshl_b32 s{sN}, s{sTB}, 1", f"s_add_u32 s{sN}, s{sN}, s{sTH}", f"s_lshl_b32 s{sN}, s{sN}, 16",
      f"s_lshl_b32 s{sRes}, s{sNB}, 1", f"s_add_u32 s{sRes}, s{sRes}, s{sCH}", f"s_lshl_b32 s{sRd}, s{sRes}, 7",
      f"s_add_u32 s{sN}, s{sN}, s{sRd}", f"v_add_u32 v{vRow}, s{sN}, v{T0}")
    k(f"s_lshl_b32 s{sRes}, s{sRes}, 13", f"s_lshl_b32 s{sN}, s{sTB}, 17", f"s_add_u32 s{sRes}, s{sRes}, s{sN}",
      f"s_lshl_b32 s{sN}, s{sTH}, 11", f"s_add_u32 s{sRes}, s{sRes}, s{sN}", f"s_add_u32 s{sRes}, s{sRes}, {HF}")
    k("s_waitcnt lgkmcnt(0)")
    k(srd_from(ST_, SWS, f"s{sT}", K * 128), srd_from(SW_, SWS, f"s{sT2}", K * 256), srd_tail(SWS, WS_SZ), srd_tail(SO, 4 * MB))

    def dma_stage():
        o = []
        for i in range(2):
            g = [f"s_mov_b32 m0, s{sWr}", "s_nop 0"] if i == 0 else []
            g.append(f"buffer_load_dwordx4 v{vLin}, s[{ST_}:{ST_+3}], s{sTo} offen offset:{1024*i} lds")
            o.append(g)
        for i in range(4):
            g = [f"s_add_u32 m0, s{sWr}, s{sDW}", f"s_add_u32 s{sTo}, s{sTo}, 8192"] if i == 0 else []
            g.append(f"buffer_load_dwordx4 v{vLin}, s[{SW_}:{SW_+3}], s{sWo} offen offset:{1024*i} lds")
            o.append(g)
        o.append([f"s_add_u32 s{sWo}, s{sWo}, 16384", f"s_add_u32 s{sWr}, s{sWr}, {STG}", f"s_cmp_ge_u32 s{sWr}, {STG*NS}",
                  f"s_cselect_b32 s{sT}, {STG*NS}, 0", f"s_sub_u32 s{sWr}, s{sWr}, s{sT}"])
        return o
    k(dma_stage())
    k(f"s_add_u32 s{sT2}, s{sRes}, 4096", f"s_mov_b32 s{sN}, 32768")
    for i in range(2):
        for b in range(2):
            if is_down:
                k(f"buffer_load_dwordx4 {vr(RES[i][b],4)}, v{vLin}, s[{SWS}:{SWS+3}], s{[sRes,sT2][b]} offen offset:{1024*i}")
            else:
                k(f"buffer_load_dwordx4 {vr(RES[i][b],4)}, v{vRow}, s[{SO}:{SO+3}], {['0', f's{sN}'][i]} offen offset:{64*b}")
    k(f"s_mov_b32 s{sN}, {NS-1}")
    k.label(f"L_{name}_pro")
    k(dma_stage())
    k(f"s_sub_u32 s{sN}, s{sN}, 1", f"s_cmp_lg_u32 s{sN}, 0", f"s_cbranch_scc1 L_{name}_pro")
    k(f"s_lshl_b32 s{sT}, s{sTH}, 11", f"v_add_u32 v{bT}, s{sT}, v{vLin}",
      f"s_lshl_b32 s{sT}, s{sCH}, 12", f"s_add_u32 s{sT}, s{sT}, 8192", f"v_add_u32 v{bW}, s{sT}, v{vLin}",
      f"v_mov_b32 v{aT}, v{bT}", f"v_mov_b32 v{aW}, v{bW}")
    for t in range(4):
        for i in range(2):
            for r in range(4):
                k(f"v_mov_b32 v{acc[t][i]+r}, 0")

    def reads(f, s):
        f = F[f]
        o = [f"ds_read_b128 {vr(f['X'][i],4)}, v{aT} offset:{s*4096+i*1024}" for i in range(2)]
        o += [f"ds_read_b128 {vr(f['W'][t],4)}, v{aW} offset:{s*8192+t*1024}" for t in range(4)]
        return o

    def mfmas(f):
        f = F[f]
        return [m16(vr(acc[t][i ^ (t & 1)], 4), vr(f["W"][t], 4), vr(f["X"][i ^ (t & 1)], 4)) for t in range(4) for i in range(2)]
    k(f"s_mov_b32 s{sRd}, 0", f"s_mov_b32 s{sN}, {K//64}")
    k(f"s_waitcnt vmcnt({6*(NS-1)+4})", "s_barrier")
    mid_stamp(k, 0)
    k(reads(0, 0))
    k(".p2align 6")
    k.label(f"L_{name}_loop")
    k("s_waitcnt lgkmcnt(0)")
    k(weave(mfmas(0), reads(1, 1), 0, 4))
    k(f"s_add_u32 s{sRd}, s{sRd}, {STG}", f"s_cmp_eq_u32 s{sRd}, {STG*NS}", f"s_cselect_b32 s{sRd}, 0, s{sRd}")
    k(f"s_waitcnt vmcnt({6*(NS-2)}) lgkmcnt(0)", "s_barrier")
    k(f"v_add_u32 v{aT}, s{sRd}, v{bT}", f"v_add_u32 v{aW}, s{sRd}, v{bW}")
    k(weave(weave(mfmas(1), reads(0, 0), 0, 3), dma_stage(), 6))
    k(f"s_sub_u32 s{sN}, s{sN}, 1", f"s_cmp_lg_u32 s{sN}, 0", f"s_cbranch_scc1 L_{name}_loop")
    mid_stamp(k, 1)
    k("s_waitcnt lgkmcnt(0)", f"s_add_u32 s{sT2}, s{sRes}, 4096", f"s_mov_b32 s{sN}, 32768", "s_nop 3")
    SUM = F[0]["X"]
    U = F[0]["W"][0]
    for i in range(2):
        if not is_down:
            k(f"v_mov_b32 v{SUM[i]}, 0", f"v_mov_b32 v{SUM[i]+1}, 0")
        for b in range(2):
            o = F[1]["W"][2 * i + b]
            for jt in range(2):
                a = acc[2 * b + jt][i]
                for h in range(2):
                    r = RES[i][b] + 2 * jt + h
                    k(f"v_lshlrev_b32 v{U}, 16, v{r}", f"v_and_b32 v{U+1}, 0xffff0000, v{r}",
                      f"v_add_f32 v{a+2*h}, v{a+2*h}, v{U}", f"v_add_f32 v{a+2*h+1}, v{a+2*h+1}, v{U+1}",
                      f"v_cvt_pk_bf16_f32 v{o+2*jt+h}, v{a+2*h}, v{a+2*h+1}")
                    if not is_down:
                        for e in range(2):
                            k(f"v_add_f32 v{SUM[i]}, v{SUM[i]}, v{a+2*h+e}", f"v_fmac_f32 v{SUM[i]+1}, v{a+2*h+e}, v{a+2*h+e}")
            if is_down:
                k(f"buffer_store_dwordx4 {vr(o,4)}, v{vRow}, s[{SO}:{SO+3}], {['0', f's{sN}'][i]} offen offset:{64*b} sc1")
            else:
                k(f"buffer_store_dwordx4 {vr(o,4)}, v{vLin}, s[{SWS}:{SWS+3}], s{[sRes,sT2][b]} offen offset:{1024*i} sc1")
    if not is_down:
        k("s_nop 0", f"v_permlane32_swap_b32 v{SUM[0]}, v{SUM[0]+1}", f"v_permlane32_swap_b32 v{SUM[1]}, v{SUM[1]+1}", "s_nop 0",
          f"v_add_f32 v{SUM[0]}, v{SUM[0]}, v{SUM[0]+1}", f"v_add_f32 v{SUM[1]}, v{SUM[1]}, v{SUM[1]+1}",
          f"v_and_b32 v{T0}, 31, v{L}", f"v_lshlrev_b32 v{T0}, 7, v{T0}",
          f"v_permlane16_swap_b32 v{SUM[0]}, v{SUM[1]}",
          f"v_lshrrev_b32 v{T1}, 5, v{L}", f"v_lshl_add_u32 v{T0}, v{T1}, 2, v{T0}",
          f"v_add_f32 v{SUM[0]}, v{SUM[0]}, v{SUM[1]}",
          f"s_lshl_b32 s{sT}, s{sTB}, 1", f"s_add_u32 s{sT}, s{sT}, s{sTH}", f"s_lshl_b32 s{sT}, s{sT}, 12",
          f"s_lshl_b32 s{sT2}, s{sNB}, 1", f"s_add_u32 s{sT2}, s{sT2}, s{sCH}", f"s_lshl_b32 s{sT2}, s{sT2}, 3",
          f"s_add_u32 s{sT}, s{sT}, s{sT2}", f"s_add_u32 s{sT}, s{sT}, {STP}",
          f"buffer_store_dword v{SUM[0]}, v{T0}, s[{SWS}:{SWS+3}], s{sT} offen sc1")
    tail(k, kidx, sW)
    return k


def k3_gateup():
    STG = 28672
    TBL = 4 * STG
    k = Kern("gateup_kernel", 256, 256, TBL + 1024)
    SWS, ST_, SW_ = 4, 8, 12
    sW, sMB, sFB, sN, sT, sT2, sTo, sWo, sWr, sTB, sA0, sA1 = range(28, 40)
    v = Alloc(1)
    T0, T1, vLin, vR0, vR1 = [v() for _ in range(5)]
    PA = [v(2, 2) for _ in range(4)]
    SD = [v(2, 2) for _ in range(2)]
    TMP = v(8, 4)
    OUT = v(4, 4)
    assert v.n <= 32, v.n
    acc = [[32 + (a * 4 + b) * 4 for b in range(4)] for a in range(14)]
    TK = [[[32 * n + 16 * s + 4 * b for b in range(4)] for s in range(2)] for n in range(4)]
    WF = [[128 + 8 * n + 4 * s for s in range(2)] for n in range(4)]
    k.vgpr, k.acc = 256 + 160, 256
    head(k)
    k(f"s_load_dwordx2 s[{SWS}:{SWS+1}], s[0:1], {A_WS}")
    k(f"v_lshrrev_b32 v{T1}, 6, v0", f"v_and_b32 v{T0}, 63, v0", f"v_readfirstlane_b32 s{sW}, v{T1}", f"v_lshlrev_b32 v{vLin}, 4, v{T0}")
    k(f"s_lshr_b32 s{sT}, s2, 3", f"s_lshr_b32 s{sMB}, s{sT}, 2", f"s_and_b32 s{sT}, s{sT}, 3",
      f"s_and_b32 s{sFB}, s2, 7", f"s_lshl_b32 s{sFB}, s{sFB}, 2", f"s_add_u32 s{sFB}, s{sFB}, s{sT}",
      f"s_lshl_b32 s{sTB}, s{sMB}, 2", f"s_add_u32 s{sTB}, s{sTB}, s{sW}",
      f"s_lshl_b32 s{sT}, s{sTB}, 17", f"s_add_u32 s{sT}, s{sT}, {HF}",
      f"s_mul_i32 s{sT2}, s{sFB}, {32*14*1024}", f"s_add_u32 s{sT2}, s{sT2}, {WGU}",
      f"s_mul_i32 s{sWo}, s{sW}, 7168", f"s_mov_b32 s{sWr}, s{sWo}", f"s_mov_b32 s{sTo}, 0")
    k(f"v_and_b32 v{T1}, 15, v{T0}", f"v_lshlrev_b32 v{T1}, 7, v{T1}", f"v_and_b32 v{T0}, 48, v{T0}", f"v_add_u32 v{T1}, v{T1}, v{T0}",
      f"v_lshlrev_b32 v{T0}, 2, v0", f"v_mov_b32 v{vR0}, v{vLin}", f"v_add_u32 v{vR1}, {2*STG}, v{vLin}")
    k("s_waitcnt lgkmcnt(0)")
    k(srd_from(ST_, SWS, f"s{sT}", 131072), srd_from(SW_, SWS, f"s{sT2}", 32 * 14 * 1024), srd_tail(SWS, WS_SZ))
    SP = 32
    CP = 64
    k(f"s_lshl_b32 s{sT}, s{sTB}, 13", f"s_add_u32 s{sT}, s{sT}, {STP}", f"s_add_u32 s{sT2}, s{sT}, 4096")
    for b in range(4):
        for h in range(2):
            k(f"buffer_load_dwordx4 {vr(SP+8*b+4*h,4)}, v{T1}, s[{SWS}:{SWS+3}], s{[sT,sT2][b>>1]} offen offset:{2048*(b&1)+64*h}")
    k(f"s_mul_i32 s{sT}, s{sFB}, 896", f"s_add_u32 s{sT}, s{sT}, {CSP}")
    for p in range(8):
        k(f"buffer_load_dword v{CP+p}, v{T0}, s[{SWS}:{SWS+3}], s{sT} offen", f"s_add_u32 s{sT}, s{sT}, {32*896}")

    def vm_stage(n):
        o = []
        for i in range(7):
            g = []
            if i % 4 == 0:
                g += [f"s_add_u32 m0, s{sWr}, {(n%4)*STG+1024*i}", "s_nop 0" if i == 0 else f"s_add_u32 s{sWo}, s{sWo}, 4096"]
            g.append(f"buffer_load_dwordx4 v{vLin}, s[{SW_}:{SW_+3}], s{sWo} offen offset:{1024*(i%4)} lds")
            if i == 6:
                g.append(f"s_add_u32 s{sWo}, s{sWo}, {STG-4096}")
            o.append(g)
        for s in range(2):
            for b in range(4):
                g = [f"buffer_load_dwordx4 {ar(TK[n%4][s][b],4)}, v{vLin}, s[{ST_}:{ST_+3}], s{sTo} offen offset:{1024*b}"]
                if b == 3:
                    g.append(f"s_add_u32 s{sTo}, s{sTo}, 4096")
                o.append(g)
        return o
    for n in range(3):
        k(vm_stage(n))
    k("s_waitcnt vmcnt(45)")
    for p in range(1, 8):
        k(f"v_add_f32 v{CP}, v{CP}, v{CP+p}")
    k(f"v_add_u32 v{T0}, {TBL}, v{T0}", f"ds_write_b32 v{T0}, v{CP}")
    for b in range(4):
        s = SP + 8 * b
        for e in range(2):
            k(f"v_add_f32 v{s+e}, v{s+e}, v{s+2+e}", f"v_add_f32 v{s+4+e}, v{s+4+e}, v{s+6+e}")
        for e in range(2):
            k(f"v_add_f32 v{s+e}, v{s+e}, v{s+4+e}")
    for op in ("v_permlane16_swap_b32", "v_permlane32_swap_b32"):
        for b in range(4):
            for e in range(2):
                k(f"v_mov_b32 v{SP+8*b+2+e}, v{SP+8*b+e}")
        k("s_nop 0")
        for b in range(4):
            for e in range(2):
                k(f"{op} v{SP+8*b+e}, v{SP+8*b+2+e}")
        k("s_nop 0")
        for b in range(4):
            for e in range(2):
                k(f"v_add_f32 v{SP+8*b+e}, v{SP+8*b+e}, v{SP+8*b+2+e}")
    for b in range(4):
        s = SP + 8 * b
        sd = SD[b >> 1] + (b & 1)
        k(f"v_mul_f32 v{PA[b]+1}, {f32(-1/1024)}, v{s}",
          f"v_mul_f32 v{s+1}, {f32(1/1024)}, v{s+1}",
          f"v_fma_f32 v{s+1}, -v{PA[b]+1}, v{PA[b]+1}, v{s+1}",
          f"v_max_f32 v{s+1}, 0, v{s+1}",
          f"v_add_f32 v{s+1}, {f32(EPS)}, v{s+1}",
          f"v_rsq_f32 v{s+2}, v{s+1}", "s_nop 0",
          f"v_mul_f32 v{sd}, v{s+1}, v{s+2}",
          f"v_mul_f32 v{PA[b]}, {f32(-LOG2E)}, v{s+2}")
    for i in range(32, 256):
        k(f"v_mov_b32 v{i}, 0")
    order = [a for p in range(7) for a in (p, p + 7)]

    def wrd(gt):
        n, a = (gt // 14) % 4, order[gt % 14]
        return [f"ds_read_b128 {ar(WF[gt%4][s],4)}, v{[vR0,vR1][n>>1]} offset:{(n&1)*STG+s*14336+a*1024}" for s in range(2)]
    k(f"s_mov_b32 s{sN}, 4", "s_waitcnt vmcnt(30) lgkmcnt(0)", "s_barrier")
    mid_stamp(k, 0)
    k(wrd(0), wrd(1), "s_waitcnt lgkmcnt(2)")
    k(".p2align 6")
    k.label("L_k3_loop")
    for n in range(4):
        vm = vm_stage(n + 3)
        for ti in range(14):
            gt = n * 14 + ti
            a = order[ti]
            bs = range(4) if ti % 2 == 0 else range(3, -1, -1)
            mf = [m16(vr(acc[a][b], 4), ar(WF[gt % 4][s], 4), ar(TK[n][s][b], 4)) for b in bs for s in range(2)]
            sl = [[] for _ in range(8)]
            rd = wrd(gt + 2)
            sl[0].append(rd[0]); sl[1].append(rd[1])
            if ti < 8:
                for j, g in enumerate(vm[2 * ti:2 * ti + 2]):
                    p = 2 + 3 * j
                    if len(g) == 3 and g[0].startswith("s_add_u32 m0"):
                        sl[p] += g[:2] if g[1] != "s_nop 0" else g[:1]
                        sl[p + 1].append(g[2])
                    else:
                        sl[p + 1].append(g[0])
                        sl[min(p + 2, 6)] += g[1:]
            if ti == 11:
                sl[7] += ["s_waitcnt vmcnt(30) lgkmcnt(0)", "s_barrier"]
            else:
                if n == 3 and ti == 13:
                    sl[5] += [f"s_sub_u32 s{sN}, s{sN}, 1"]
                    sl[6] += [f"s_cmp_lg_u32 s{sN}, 0"]
                sl[7].append("s_waitcnt lgkmcnt(2)")
            for i in range(8):
                k(mf[i], sl[i])
    k("s_cbranch_scc1 L_k3_loop")
    mid_stamp(k, 1)
    k(f"s_mul_i32 s{sT}, s{sFB}, 7", f"s_add_u32 s{sA0}, s{sT}, 1", f"s_lshr_b32 s{sA0}, s{sA0}, 1",
      f"s_lshr_b32 s{sA1}, s{sT}, 1", f"s_and_b32 s{sT}, s{sFB}, 1", f"s_cmp_eq_u32 s{sT}, 0", f"s_cselect_b32 s{sT2}, 3, 0",
      f"s_add_u32 s{sA1}, s{sA1}, s{sT2}", f"s_mul_i32 s{sT2}, s{sTB}, 112",
      f"s_add_u32 s{sA0}, s{sA0}, s{sT2}", f"s_add_u32 s{sA1}, s{sA1}, s{sT2}",
      f"s_lshl_b32 s{sA0}, s{sA0}, 12", f"s_lshl_b32 s{sA1}, s{sA1}, 12",
      f"s_add_u32 s{sA0}, s{sA0}, {AF}", f"s_add_u32 s{sA1}, s{sA1}, {AF}",
      f"s_lshl_b32 s{sT}, s{sT}, 3", f"s_add_u32 s{sA1}, s{sA1}, s{sT}")
    k(f"v_lshrrev_b32 v{T0}, 8, v{vLin}", f"v_lshlrev_b32 v{T0}, 4, v{T0}", f"v_add_u32 v{T0}, {TBL}, v{T0}", "s_waitcnt lgkmcnt(0)")
    for p in range(7):
        cg, cu = TMP, TMP + 4
        k(f"ds_read_b128 {vr(cg,4)}, v{T0} offset:{64*p}", f"ds_read_b128 {vr(cu,4)}, v{T0} offset:{64*(p+7)}", "s_waitcnt lgkmcnt(0)")
        for b in range(4):
            g, u = acc[p][b], acc[p + 7][b]
            sd = vr(SD[b >> 1], 2)
            sel = f"op_sel:[0,{b&1},{b&1}] op_sel_hi:[1,{b&1},{b&1}]"
            for h in (0, 2):
                k(f"v_pk_fma_f32 {vr(g+h,2)}, {vr(cg+h,2)}, {vr(PA[b],2)}, {vr(g+h,2)} op_sel:[0,1,0] op_sel_hi:[1,1,1]")
            for h in (0, 2):
                k(f"v_pk_mul_f32 {vr(g+h,2)}, {vr(g+h,2)}, {vr(PA[b],2)} op_sel:[0,0] op_sel_hi:[1,0]")
            for r in range(4):
                k(f"v_exp_f32 v{g+r}, v{g+r}")
            for h in (0, 2):
                k(f"v_pk_fma_f32 {vr(u+h,2)}, {vr(cu+h,2)}, {vr(PA[b],2)}, {vr(u+h,2)} op_sel:[0,1,0] op_sel_hi:[1,1,1]")
            for h in (0, 2):
                k(f"v_pk_fma_f32 {vr(g+h,2)}, {vr(g+h,2)}, {sd}, {sd} {sel}")
            for r in range(4):
                k(f"v_rcp_f32 v{g+r}, v{g+r}")
            k("s_nop 0")
            for h in (0, 2):
                k(f"v_pk_mul_f32 {vr(u+h,2)}, {vr(u+h,2)}, {vr(g+h,2)}")
            d = g if p % 2 == 0 else acc[p - 1][b] + 2
            k(f"v_cvt_pk_bf16_f32 v{d}, v{u}, v{u+1}", f"v_cvt_pk_bf16_f32 v{d+1}, v{u+2}, v{u+3}")
            if p % 2 == 1:
                k(f"buffer_store_dwordx4 {vr(acc[p-1][b],4)}, v{vLin}, s[{SWS}:{SWS+3}], s{sA0} offen offset:{1024*b} sc1")
            elif p == 6:
                k(f"buffer_store_dwordx2 {vr(g,2)}, v{vLin}, s[{SWS}:{SWS+3}], s{sA1} offen offset:{1024*b} sc1")
        if p % 2 == 1:
            k(f"s_add_u32 s{sA0}, s{sA0}, 4096")
    tail(k, 3, sW)
    return k


HEADER = open("sequential_preLN__grouped_kv_mqa__glu_gated_glu__prompt.s.ref").read().split("; Override launch")[0]


def build():
    ks = [k0_qkv(), k1_attn(), k_gemm("oproj_kernel", 2, 1024, OF, WOF, False), k3_gateup(),
          k_gemm("down_kernel", 4, 3584, AF, WDF, True)]
    s = HEADER + "".join(k.launch_line() + "\n" for k in ks)
    s += '.amdgcn_target "amdgcn-amd-amdhsa--gfx950"\n.text\n'
    for i, k in enumerate(ks):
        s += k.text()
        if i == 0:
            s += "L_code_rest:\n"
    s += "L_code_end:\n"
    s += '.section .rodata,"a"\n' + "".join(k.desc() for k in ks)
    return s


if __name__ == "__main__":
    out = sys.argv[1]
    for a in sys.argv[2:]:
        key, _, val = a.partition("=")
        OPT[key] = int(val) if val else True
    open(out, "w").write(build())
```

```python
import sys, math
sys.path.insert(0, __file__.rsplit("/", 1)[0])
from asmlib import *

MB = 1 << 20
QF, KVF, OF, HF, AF = 0, 4 * MB, 5 * MB, 9 * MB, 13 * MB
WOF, WGU, WDF, CSP, STP, STAMP = 28 * MB, 30 * MB, 44 * MB, 52 * MB, 53 * MB, 60 * MB
WS_SZ = 64 * MB
OOB = 0x40000000
LOG2E = 1.4426950408889634
QSCALE = LOG2E / math.sqrt(32.0)
EPS = 1e-5
OPT = dict(stamp=False, force_slow=False)
A_X, A_WQ, A_WK, A_WV, A_WO, A_WG, A_WU, A_WD, A_OUT, A_WS = 0, 8, 16, 24, 32, 48, 56, 64, 72, 88


def ws_shift(s):
    if OPT.get("wsoff"):
        return [f"s_add_u32 s{s}, s{s}, {OPT['wsoff']*MB}", f"s_addc_u32 s{s+1}, s{s+1}, 0"]
    return []


def srd_tail(s, size):
    return [f"s_mov_b32 s{s+2}, {size}", f"s_mov_b32 s{s+3}, 0x00020000"]


def srd_from(s, base, off, size):
    return [f"s_add_u32 s{s}, s{base}, {off}", f"s_addc_u32 s{s+1}, s{base+1}, 0"] + srd_tail(s, size)


def head(k):
    k("s_cmp_ge_u32 s2, 256", f"s_cbranch_scc1 L_end_{k.name}")
    if OPT["stamp"]:
        k("s_memrealtime s[92:93]", "s_load_dwordx2 s[90:91], s[0:1], 88", "s_mov_b32 s89, s2")


def mid_stamp(k, i):
    if OPT["stamp"]:
        k(f"s_memrealtime s[{96+2*i}:{97+2*i}]")


def tail(k, kidx, swave):
    if OPT["stamp"]:
        k("s_waitcnt vmcnt(0)", "s_memrealtime s[94:95]", "s_waitcnt lgkmcnt(0)",
          "v_mov_b32 v0, s92", "v_mov_b32 v1, s96", "v_mov_b32 v2, s98", "v_mov_b32 v3, s94",
          "s_lshl_b32 s89, s89, 2", f"s_add_u32 s89, s89, s{swave}", "s_lshl_b32 s89, s89, 4",
          f"s_add_u32 s89, s89, {STAMP + kidx*16384}", "v_mov_b32 v4, s89",
          "global_store_dwordx4 v4, v[0:3], s[90:91]")
    k.label(f"L_end_{k.name}")
    k("s_endpgm")


def ids_8x4(k, s_a, s_b, tmp):
    k(f"s_lshr_b32 s{tmp}, s2, 3",
      f"s_and_b32 s{s_a}, s{tmp}, 3",
      f"s_lshr_b32 s{s_b}, s{tmp}, 2",
      f"s_and_b32 s{tmp}, s2, 1",
      f"s_lshl_b32 s{tmp}, s{tmp}, 2",
      f"s_add_u32 s{s_a}, s{s_a}, s{tmp}",
      f"s_and_b32 s{tmp}, s2, 6",
      f"s_lshl_b32 s{tmp}, s{tmp}, 2",
      f"s_add_u32 s{s_b}, s{s_b}, s{tmp}")


def code_prefetch(k, vtmp, vdst, stmp, start, nkb_per_wg=1):
    k(f"s_getpc_b64 s[{stmp}:{stmp+1}]")
    lab = f"L_pc_{k.name}_{start}"
    k.label(lab)
    k(f"s_add_u32 s{stmp}, s{stmp}, {start}-{lab}",
      f"s_addc_u32 s{stmp+1}, s{stmp+1}, 0",
      f"global_load_dwordx4 {vr(vdst,4)}, v{vtmp}, s[{stmp}:{stmp+1}]" if not OPT.get("nopf") else None)


def k0_qkv():
    STG, NS = 28672, 5
    TBL = STG * NS
    k = Kern("qkv_kernel", 256, 256, TBL + 1024)
    SX, SWQ, SE, SWS = 4, 8, 12, 16
    sW, sTB, sHG, sN, sX, sWo, sEo, sRd, sWr, sT, sT2, sTH, sCH, sBW = range(24, 38)
    v = Alloc(1)
    L, G, R, CQ, TOK, T0, T1, T2 = [v() for _ in range(8)]
    vX, vX2, vE = v(), v(), v()
    vW = [v() for _ in range(4)]
    bX = [[v() for i in range(2)] for s in range(2)]
    bW = [v() for _ in range(4)]
    bE = v()
    aX = [[v() for i in range(2)] for s in range(2)]
    aW = [v() for _ in range(4)]
    aE = v()
    F = [dict(X=[v(4, 4) for _ in range(2)], W=[v(4, 4) for _ in range(4)], E=v(4, 4)) for _ in range(2)]
    acc0 = v.n = (v.n + 3) // 4 * 4
    acc = [[v(4, 4) for i in range(2)] for t in range(4)]
    accE = [v(4, 4) for i in range(2)]
    cs = [v(4, 4) for _ in range(2)]
    csE, sx, sxx = v(4, 4), v(4, 4), v(4, 4)
    acc1 = v.n
    ONES = v(4, 4)
    PF = v(4, 4)
    k.vgpr = k.acc = (v.n + 7) // 8 * 8
    head(k)
    k(f"s_load_dwordx2 s[{SX}:{SX+1}], s[0:1], {A_X}",
      f"s_load_dwordx2 s[{SWQ}:{SWQ+1}], s[0:1], {A_WQ}",
      f"s_load_dwordx4 s[20:23], s[0:1], {A_WK}",
      f"s_load_dwordx2 s[{SWS}:{SWS+1}], s[0:1], {A_WS}")
    k(f"v_lshlrev_b32 v{T0}, 4, v0")
    code_prefetch(k, T0, PF, 40, "L_k0_body")
    k.label("L_k0_body")
    k(f"v_lshrrev_b32 v{T1}, 6, v0", f"v_and_b32 v{L}, 63, v0", f"v_readfirstlane_b32 s{sW}, v{T1}")
    ids_8x4(k, sHG, sTB, sT)
    k(f"s_and_b32 s{sTH}, s{sW}, 1", f"s_lshr_b32 s{sCH}, s{sW}, 1")
    k(f"v_lshrrev_b32 v{T0}, 3, v{L}",
      f"v_lshrrev_b32 v{T1}, 4, v{L}",
      f"s_lshl_b32 s{sT}, s{sTH}, 2",
      f"v_add_u32 v{T1}, s{sT}, v{T1}",
      f"v_and_b32 v{T2}, 7, v{L}",
      f"v_xor_b32 v{T1}, v{T1}, v{T2}",
      f"s_lshl_b32 s{sT}, s{sTB}, 6",
      f"s_lshl_b32 s{sT2}, s{sW}, 3",
      f"s_add_u32 s{sT}, s{sT}, s{sT2}",
      f"v_add_u32 v{T0}, s{sT}, v{T0}",
      f"v_lshlrev_b32 v{T0}, 11, v{T0}",
      f"v_lshl_add_u32 v{vX}, v{T1}, 4, v{T0}",
      f"v_add_u32 v{vX2}, 0x10000, v{vX}")
    k(f"v_lshrrev_b32 v{G}, 4, v{L}",
      f"v_and_b32 v{TOK}, 15, v{L}",
      f"v_lshlrev_b32 v{T1}, 1, v{G}",
      f"v_xor_b32 v{T1}, v{T1}, v{TOK}",
      f"s_lshl_b32 s{sT}, s{sTH}, 3",
      f"v_xor_b32 v{T1}, s{sT}, v{T1}",
      f"s_lshl_b32 s{sBW}, s{sTH}, 1",
      f"s_add_u32 s{sBW}, s{sBW}, s{sCH}",
      f"s_lshl_b32 s{sT}, s{sBW}, 13",
      f"s_lshl_b32 s{sT2}, s{sHG}, 8",
      f"s_add_u32 s{sT}, s{sT}, s{sT2}",
      f"v_lshlrev_b32 v{T0}, 11, v{G}",
      f"v_add_u32 v{T0}, s{sT}, v{T0}",
      f"v_lshl_add_u32 v{vW[0]}, v{T1}, 4, v{T0}")
    for i in range(1, 4):
        k(f"v_add_u32 v{vW[i]}, {32768*i}, v{vW[0]}")
    k(f"v_lshrrev_b32 v{T0}, 5, v{L}",
      f"v_lshlrev_b32 v{T0}, 1, v{T0}",
      f"v_xor_b32 v{T0}, v{T0}, v{L}",
      f"s_lshl_b32 s{sT}, s{sW}, 10",
      f"v_lshl_add_u32 v{vE}, v{T0}, 4, s{sT}")
    k(f"s_sub_u32 s{sBW}, s{sBW}, s{sW}", f"s_lshl_b32 s{sBW}, s{sBW}, 10", f"s_add_u32 s{sBW}, s{sBW}, 8192",
      f"s_lshl_b32 s{sWr}, s{sW}, 10", f"s_mov_b32 s{sX}, 0", f"s_mov_b32 s{sWo}, 0", f"s_mov_b32 s{sEo}, 0")
    k("s_waitcnt lgkmcnt(0)", ws_shift(SWS))
    k(srd_tail(SX, 4 * MB), srd_tail(SWQ, 2 * MB), srd_tail(SWS, WS_SZ))
    k(f"s_cmp_eq_u32 s{sHG}, 0", f"s_cselect_b32 s{SE}, s20, s22", f"s_cselect_b32 s{SE+1}, s21, s23",
      f"s_and_b32 s{sT}, s{sHG}, 3", f"s_cmp_eq_u32 s{sT}, 0", f"s_cselect_b32 s{SE+2}, 0x10000, 0",
      f"s_mov_b32 s{SE+3}, 0x00020000")

    def dma_stage():
        o = [[f"s_mov_b32 m0, s{sWr}", f"s_add_u32 s{sT}, s{sWr}, s{sBW}", f"buffer_load_dwordx4 v{vX}, s[{SX}:{SX+3}], s{sX} offen lds"],
             [f"s_add_u32 m0, s{sWr}, 4096", "s_nop 0", f"buffer_load_dwordx4 v{vX2}, s[{SX}:{SX+3}], s{sX} offen lds"]]
        for i in range(4):
            o.append([f"s_add_u32 m0, s{sT}, {4096*i}", "s_nop 0", f"buffer_load_dwordx4 v{vW[i]}, s[{SWQ}:{SWQ+3}], s{sWo} offen lds"])
        o.append([f"s_add_u32 m0, s{sWr}, 24576", f"s_add_u32 s{sWo}, s{sWo}, 0x20000", f"buffer_load_dwordx4 v{vE}, s[{SE}:{SE+3}], s{sEo} offen lds"])
        o.append([f"s_add_u32 s{sEo}, s{sEo}, 4096", f"s_add_u32 s{sX}, s{sX}, 128", f"s_cmp_eq_u32 s{sX}, 2048",
                  f"s_cselect_b32 s{sX}, {OOB}, s{sX}"])
        o.append([f"s_add_u32 s{sWr}, s{sWr}, {STG}", f"s_cmp_ge_u32 s{sWr}, {TBL}", f"s_cselect_b32 s{sT}, {TBL}, 0",
                  f"s_sub_u32 s{sWr}, s{sWr}, s{sT}"])
        return o
    k(f"s_mov_b32 s{sN}, {NS}")
    k.label("L_k0_pro")
    k(dma_stage())
    k(f"s_sub_u32 s{sN}, s{sN}, 1", f"s_cmp_lg_u32 s{sN}, 0", "s_cbranch_scc1 L_k0_pro")
    k(f"v_bfe_u32 v{R}, v{L}, 2, 2", f"v_and_b32 v{CQ}, 3, v{L}")
    k(f"v_lshrrev_b32 v{T0}, 1, v{TOK}", f"v_xor_b32 v{T0}, v{T0}, v{G}", f"v_lshlrev_b32 v{T0}, 4, v{T0}",
      f"v_lshl_add_u32 v{T0}, v{TOK}, 7, v{T0}",
      f"s_lshl_b32 s{sT}, s{sTH}, 1", f"s_add_u32 s{sT}, s{sT}, s{sCH}", f"s_lshl_b32 s{sT}, s{sT}, 11",
      f"v_add_u32 v{bX[0][0]}, s{sT}, v{T0}",
      f"v_xor_b32 v{bX[0][1]}, 2048, v{bX[0][0]}",
      f"v_xor_b32 v{bX[1][0]}, 64, v{bX[0][0]}",
      f"v_xor_b32 v{bX[1][1]}, 64, v{bX[0][1]}")
    k(f"v_and_b32 v{T2}, 1, v{G}",
      f"v_lshlrev_b32 v{T0}, 2, v{T2}", f"v_xor_b32 v{T0}, v{T0}, v{R}",
      f"s_lshl_b32 s{sT}, s{sCH}, 2", f"s_lshl_b32 s{sT2}, s{sTH}, 1", f"s_add_u32 s{sT}, s{sT}, s{sT2}",
      f"v_xor_b32 v{T0}, s{sT}, v{T0}",
      f"v_lshlrev_b32 v{T0}, 5, v{T0}",
      f"v_lshl_add_u32 v{T0}, v{CQ}, 3, v{T0}",
      f"v_lshl_add_u32 v{T0}, v{R}, 8, v{T0}",
      f"v_lshl_add_u32 v{T0}, v{G}, 11, v{T0}",
      f"v_add_u32 v{bW[0]}, 8192, v{T0}")
    for t in range(1, 4):
        k(f"v_xor_b32 v{bW[t]}, {32*t}, v{bW[0]}")
    k(f"v_xor_b32 v{T0}, s{sCH}, v{T2}", f"v_lshlrev_b32 v{T0}, 5, v{T0}", f"v_lshl_add_u32 v{T0}, v{CQ}, 3, v{T0}",
      f"v_lshl_add_u32 v{T0}, v{R}, 6, v{T0}", f"v_lshl_add_u32 v{T0}, v{G}, 9, v{T0}",
      f"v_add_u32 v{bE}, 24576, v{T0}")
    bases = [(aX[s][i], bX[s][i]) for s in range(2) for i in range(2)] + list(zip(aW, bW)) + [(aE, bE)]
    for a, b in bases:
        k(f"v_mov_b32 v{a}, v{b}")
    for i in range(acc0, acc1):
        k(f"v_mov_b32 v{i}, 0")
    for i in range(4):
        k(f"v_mov_b32 v{ONES+i}, 0x3f803f80")

    def reads(f, s):
        f = F[f]
        o = [f"ds_read_b128 {vr(f['X'][i],4)}, v{aX[s][i]}" for i in range(2)]
        for t in range(4):
            for j in range(2):
                o.append(f"ds_read_b64_tr_b16 {vr(f['W'][t]+2*j,2)}, v{aW[t]} offset:{s*8192+j*1024}")
        for j in range(2):
            o.append(f"ds_read_b64_tr_b16 {vr(f['E']+2*j,2)}, v{aE} offset:{s*2048+j*256}")
        return o

    def mfmas(f):
        f = F[f]
        X = [vr(x, 4) for x in f["X"]]; W = [vr(x, 4) for x in f["W"]]; E = vr(f["E"], 4); O = vr(ONES, 4)
        o = [m16(vr(sx, 4), O, X[0]), m16(vr(sxx, 4), X[0], X[0])]
        for t in range(4):
            o += [m16(vr(acc[t][0], 4), W[t], X[0]), m16(vr(acc[t][1], 4), W[t], X[1])]
            if t < 2:
                o.append(m16(vr(cs[t], 4), W[t], O))
        o += [m16(vr(accE[0], 4), E, X[0]), m16(vr(accE[1], 4), E, X[1]), m16(vr(csE, 4), E, O)]
        return o
    k(f"s_mov_b32 s{sRd}, 0", f"s_mov_b32 s{sN}, 16")
    k(f"s_waitcnt vmcnt({7*(NS-1)})", "s_barrier")
    mid_stamp(k, 0)
    k(reads(0, 0))
    k.label("L_k0_loop")
    k("s_waitcnt lgkmcnt(0)")
    k(weave(mfmas(0), reads(1, 1), 0, 9))
    k(f"s_add_u32 s{sRd}, s{sRd}, {STG}", f"s_cmp_eq_u32 s{sRd}, {TBL}", f"s_cselect_b32 s{sRd}, 0, s{sRd}")
    k(f"s_waitcnt vmcnt({7*(NS-2)}) lgkmcnt(0)", "s_barrier")
    for a, b in bases:
        k(f"v_add_u32 v{a}, s{sRd}, v{b}")
    k(weave(weave(mfmas(1), reads(0, 0), 0, 8), dma_stage(), 8))
    k(f"s_sub_u32 s{sN}, s{sN}, 1", f"s_cmp_lg_u32 s{sN}, 0", "s_cbranch_scc1 L_k0_loop")
    mid_stamp(k, 1)
    k(f"s_lshr_b32 s{sT}, s2, 3", f"s_lshl_b32 s{sT}, s{sT}, 10", f"v_lshlrev_b32 v{T0}, 2, v0", f"v_add_u32 v{T0}, s{sT}, v{T0}")
    k(f"s_getpc_b64 s[40:41]")
    k.label("L_k0_pc2")
    k("s_add_u32 s40, s40, L_code_rest-L_k0_pc2", "s_addc_u32 s41, s41, 0",
      f"v_min_u32 v{T0}, L_code_end-L_code_rest-4, v{T0}",
      f"global_load_dword v{PF}, v{T0}, s[40:41]" if not OPT.get("nopf") else None)
    ST = F[0]["X"]
    k("s_waitcnt lgkmcnt(0)")
    k(f"v_and_b32 v{T0}, 1, v{TOK}", f"v_cmp_eq_u32 vcc, 1, v{T0}", f"v_and_b32 v{T1}, 2, v{TOK}", "s_nop 1",
      f"v_cndmask_b32 v{T0}, v{sxx}, v{sxx+1}, vcc", f"v_cndmask_b32 v{T2}, v{sxx+2}, v{sxx+3}, vcc",
      f"v_cmp_eq_u32 vcc, 2, v{T1}", "s_nop 1",
      f"v_cndmask_b32 v{sx+1}, v{T0}, v{T2}, vcc")
    k(f"s_lshl_b32 s{sT}, s{sTH}, 1", f"s_add_u32 s{sT}, s{sT}, s{sCH}", f"s_lshl_b32 s{sT}, s{sT}, 7", f"s_add_u32 s{sT}, s{sT}, {TBL}",
      f"v_lshl_add_u32 v{T0}, v{TOK}, 3, s{sT}",
      f"s_lshl_b32 s{sT}, s{sCH}, 2", f"s_lshl_b32 s{sT2}, s{sTH}, 1", f"s_add_u32 s{sT}, s{sT}, s{sT2}", f"s_lshl_b32 s{sT}, s{sT}, 6",
      f"s_add_u32 s{sT}, s{sT}, {TBL+512}",
      f"v_lshl_add_u32 v{T1}, v{G}, 4, s{sT}",
      f"ds_write_b128 v{T1}, {vr(cs[0],4)}", f"ds_write_b128 v{T1}, {vr(cs[1],4)} offset:64",
      f"v_cmp_eq_u32 vcc, v{R}, v{G}", "s_and_saveexec_b64 s[42:43], vcc",
      f"ds_write_b64 v{T0}, {vr(sx,2)}", "s_mov_b64 exec, s[42:43]",
      "s_waitcnt lgkmcnt(0)", "s_barrier")
    c2, c3 = F[0]["W"][0], F[0]["W"][1]
    k(f"v_xor_b32 v{T2}, 128, v{T0}", f"v_xor_b32 v{T1}, 128, v{T1}",
      f"ds_read_b64 {vr(ST[0],2)}, v{T0}", f"ds_read_b64 {vr(ST[1],2)}, v{T2}",
      f"ds_read_b128 {vr(c2,4)}, v{T1}", f"ds_read_b128 {vr(c3,4)}, v{T1} offset:64")
    vQ, vK, vV = vX, vX2, vE
    k(f"v_lshlrev_b32 v{T0}, 9, v{G}", f"v_lshl_add_u32 v{T0}, v{TOK}, 4, v{T0}",
      f"s_lshl_b32 s{sT}, s{sCH}, 8", f"v_add_u32 v{vQ}, s{sT}, v{T0}",
      f"s_lshl_b32 s{sT}, s{sCH}, 3", f"v_add_u32 v{vK}, s{sT}, v{vQ}")
    k(f"v_and_b32 v{T0}, 1, v{G}", f"v_lshlrev_b32 v{T0}, 7, v{T0}", f"v_lshrrev_b32 v{T1}, 1, v{G}", f"v_lshl_add_u32 v{T0}, v{T1}, 6, v{T0}",
      f"v_bfe_u32 v{T1}, v{L}, 3, 1", f"v_lshl_add_u32 v{T0}, v{T1}, 9, v{T0}", f"v_and_b32 v{T1}, 7, v{L}", f"v_lshl_add_u32 v{T0}, v{T1}, 1, v{T0}",
      f"s_mul_i32 s{sT}, s{sCH}, 1280", f"s_add_u32 s{sT}, s{sT}, 2048", f"v_add_u32 v{vV}, s{sT}, v{T0}")
    sQ0, sQ1, sKV = sX, sWo, sEo
    k(f"s_lshl_b32 s{sT}, s{sTB}, 1", f"s_add_u32 s{sT}, s{sT}, s{sTH}",
      f"s_lshl_b32 s{sKV}, s{sT}, 12", f"s_add_u32 s{sKV}, s{sKV}, {KVF}",
      f"s_lshl_b32 s{sT2}, s{sHG}, 2", f"s_lshl_b32 s{sQ0}, s{sCH}, 1", f"s_add_u32 s{sT2}, s{sT2}, s{sQ0}", f"s_add_u32 s{sT2}, s{sT2}, s{sTH}",
      f"s_lshl_b32 s{sQ0}, s{sT2}, 6", f"s_add_u32 s{sQ0}, s{sQ0}, s{sT}", f"s_lshl_b32 s{sQ0}, s{sQ0}, 11",
      f"s_xor_b32 s{sQ1}, s{sQ0}, {1<<17}")
    k("s_waitcnt lgkmcnt(0)")
    for i in range(2):
        s = ST[i]
        k(f"v_mul_f32 v{s}, {f32(1/1024)}, v{s}",
          f"v_mul_f32 v{s+1}, {f32(1/1024)}, v{s+1}",
          f"v_fma_f32 v{s+1}, -v{s}, v{s}, v{s+1}",
          f"v_max_f32 v{s+1}, 0, v{s+1}",
          f"v_add_f32 v{s+1}, {f32(EPS)}, v{s+1}",
          f"v_rsq_f32 v{s+2}, v{s+1}", "s_nop 0",
          f"v_mul_f32 v{s+3}, v{s}, v{s+2}",
          f"v_sub_f32 v{s+3}, 0, v{s+3}",
          f"v_mul_f32 v{s}, {f32(QSCALE)}, v{s+2}",
          f"v_mul_f32 v{s+1}, {f32(QSCALE)}, v{s+3}")
    csr = [cs[0], cs[1], c2, c3]
    OUTR = F[1]["W"]
    vQ1 = vW[0]; vK1 = vW[1]; vV1 = vW[2]
    k(f"v_xor_b32 v{vQ1}, 256, v{vQ}", f"v_xor_b32 v{vK1}, 256, v{vK}", f"v_xor_b32 v{vV1}, 1024, v{vV}")
    for p in range(2):
        for i in range(2):
            o = OUTR[2 * p + i]
            for jt in range(2):
                t = 2 * p + jt
                a = acc[t][i]
                for r in range(4):
                    k(f"v_mul_f32 v{a+r}, v{ST[i]}, v{a+r}", f"v_fmac_f32 v{a+r}, v{ST[i]+1}, v{csr[t]+r}")
                k(f"v_cvt_pk_bf16_f32 v{o+2*jt}, v{a}, v{a+1}", f"v_cvt_pk_bf16_f32 v{o+2*jt+1}, v{a+2}, v{a+3}")
            k(f"buffer_store_dwordx4 {vr(o,4)}, v{[vQ,vQ1][i]}, s[{SWS}:{SWS+3}], s{[sQ0,sQ1][p]} offen sc1")
    k(f"s_and_b32 s{sT}, s{sHG}, 3", f"s_cmp_lg_u32 s{sT}, 0", "s_cbranch_scc1 L_k0_done")
    o = F[1]["E"]
    for i in range(2):
        a = accE[i]
        for r in range(4):
            k(f"v_mul_f32 v{a+r}, v{ST[i]+2}, v{a+r}", f"v_fmac_f32 v{a+r}, v{ST[i]+3}, v{csE+r}")
        k(f"v_cvt_pk_bf16_f32 v{o+2*i}, v{a}, v{a+1}", f"v_cvt_pk_bf16_f32 v{o+2*i+1}, v{a+2}, v{a+3}")
    k(f"s_cmp_lg_u32 s{sHG}, 0", "s_cbranch_scc1 L_k0_v")
    for i in range(2):
        k(f"buffer_store_dwordx2 {vr(o+2*i,2)}, v{[vK,vK1][i]}, s[{SWS}:{SWS+3}], s{sKV} offen sc1")
    k("s_branch L_k0_done")
    k.label("L_k0_v")
    for i in range(2):
        for r in range(4):
            op = "buffer_store_short" if r % 2 == 0 else "buffer_store_short_d16_hi"
            k(f"{op} v{o+2*i+r//2}, v{[vV,vV1][i]}, s[{SWS}:{SWS+3}], s{sKV} offen offset:{16*r} sc1")
    k.label("L_k0_done")
    tail(k, 0, sW)
    return k


def k1_attn():
    SLOT = 49152
    k = Kern("attn_kernel", 256, 256, 3 * SLOT)
    SWS, SKV, SJ = 4, 8, 12
    (sW, sTB, sHG, sC, sT, sT2, sRd, sWr, sKo, sJo, sJa, sJb, sGW, sStr, sDstep, sDA, sOo) = range(32, 49)
    sD = [50, 51, 52, 53]
    sDa = [54, 55, 56, 57]
    sCs = [58, 59, 60, 61]
    sDB, sBsz, sWrJ = 62, 63, 64
    v = Alloc(1)
    L, T0, T1, T2, vLin, vRd, vJ, vJB, IDX, vCs = [v() for _ in range(10)]
    bJ = [v(), v()]; aJ = [v(), v()]
    Q = [v(8, 4) for _ in range(2)]
    S = [v(16, 4) for _ in range(4)]
    O = [v(16, 4) for _ in range(2)]
    LS = [v(4, 4) for _ in range(2)]
    KB = [v(8, 4) for _ in range(2)]
    VB = [v(8, 4) for _ in range(2)]
    SUMA = v(4, 4)
    JF = [v(4, 4) for _ in range(4)]
    CS = [v(4, 4) for _ in range(4)]
    ONES = v(4, 4)
    k.vgpr = k.acc = (v.n + 7) // 8 * 8
    head(k)
    k(f"s_load_dwordx2 s[{SWS}:{SWS+1}], s[0:1], {A_WS}",
      f"s_load_dwordx2 s[20:21], s[0:1], {A_WO}",
      f"s_load_dwordx4 s[24:27], s[0:1], {A_WG}",
      f"s_load_dwordx2 s[28:29], s[0:1], {A_WD}")
    k(f"v_lshrrev_b32 v{T1}, 6, v0", f"v_and_b32 v{L}, 63, v0", f"v_readfirstlane_b32 s{sW}, v{T1}", f"v_lshlrev_b32 v{vLin}, 4, v{L}")
    ids_8x4(k, sHG, sTB, sT)
    k(f"s_lshl_b32 s{sT}, s{sHG}, 2", f"s_add_u32 s{sT}, s{sT}, s{sW}",
      f"s_lshl_b32 s{sOo}, s{sTB}, 5", f"s_add_u32 s{sOo}, s{sOo}, s{sT}", f"s_lshl_b32 s{sOo}, s{sOo}, 12", f"s_add_u32 s{sOo}, s{sOo}, {OF}",
      f"s_lshl_b32 s{sT}, s{sT}, 17", f"s_lshl_b32 s{sT2}, s{sTB}, 12", f"s_add_u32 s{sT}, s{sT}, s{sT2}",
      f"s_lshl_b32 s{sKo}, s{sW}, 13", f"s_mov_b32 s{sWr}, s{sKo}")
    k("s_waitcnt lgkmcnt(0)", ws_shift(SWS))
    k(srd_tail(SWS, WS_SZ), srd_from(SKV, SWS, KVF, 262144))
    for q in range(2):
        for m in range(2):
            k(f"buffer_load_dwordx4 {vr(Q[q]+4*m,4)}, v{vLin}, s[{SWS}:{SWS+3}], s{sT} offen offset:{2048*q+1024*m}")

    def kv_dma():
        o = []
        for h in range(2):
            for i in range(4):
                g = []
                if i == 0:
                    g += [f"s_add_u32 m0, s{sWr}, {4096*h}", "s_nop 0"]
                g.append(f"buffer_load_dwordx4 v{vLin}, s[{SKV}:{SKV+3}], s{sKo} offen offset:{1024*i} lds")
                if i == 3:
                    g.append(f"s_add_u32 s{sKo}, s{sKo}, {4096 if h == 0 else 32768-4096}")
                o.append(g)
        return o
    for c in range(2):
        k(kv_dma(), f"s_add_u32 s{sWr}, s{sWr}, {SLOT}")
    k(f"s_lshl_b32 s{sGW}, s2, 2", f"s_add_u32 s{sGW}, s{sGW}, s{sW}")
    k(f"s_lshl_b32 s{sWrJ}, s{sW}, 12", f"s_sub_u32 s{sWrJ}, 32768, s{sWrJ}")
    strip, kb0, mat = 66, 67, 68
    k(f"s_lshr_b32 s{strip}, s{sGW}, 3", f"s_and_b32 s{kb0}, s{sGW}, 7", f"s_lshl_b32 s{kb0}, s{kb0}, 2",
      f"s_cmp_ge_u32 s{strip}, 112", "s_cbranch_scc1 L_k1_wo")
    k(f"s_cmp_ge_u32 s{strip}, 56", f"s_cselect_b32 s{mat}, 1, 0",
      f"s_cselect_b32 s{SJ}, s26, s24", f"s_cselect_b32 s{SJ+1}, s27, s25",
      f"s_mul_i32 s{sT}, s{mat}, 56", f"s_sub_u32 s{strip}, s{strip}, s{sT}",
      f"s_mov_b32 s{SJ+2}, {1024*7168}", f"s_mov_b32 s{sStr}, 7168", f"s_mov_b32 s{sDA}, {14*1024}",
      f"s_mov_b32 s{sBsz}, {3584*2048}")
    for i in range(4):
        T, fb, pos = 69, 70, 71
        k(f"s_lshl_b32 s{T}, s{strip}, 2", f"s_add_u32 s{T}, s{T}, {i}",
          f"s_mul_i32 s{fb}, s{T}, 9363", f"s_lshr_b32 s{fb}, s{fb}, 16",
          f"s_mul_i32 s{pos}, s{fb}, 7", f"s_sub_u32 s{pos}, s{T}, s{pos}",
          f"s_and_b32 s{sT}, s{fb}, 1", f"s_sub_u32 s{pos}, s{pos}, s{sT}",
          f"s_cmp_lt_i32 s{pos}, 0", f"s_cselect_b32 s{pos}, 6, s{pos}",
          f"s_mul_i32 s{sT}, s{mat}, 7", f"s_add_u32 s{pos}, s{pos}, s{sT}",
          f"s_lshl_b32 s{sT}, s{fb}, 5", f"s_add_u32 s{sT}, s{sT}, s{kb0}", f"s_mul_i32 s{sT}, s{sT}, 14",
          f"s_add_u32 s{sT}, s{sT}, s{pos}", f"s_lshl_b32 s{sT}, s{sT}, 10", f"s_add_u32 s{sDa[i]}, s{sT}, {WGU}",
          f"s_lshl_b32 s{sT}, s{kb0}, 3", f"s_add_u32 s{sT}, s{sT}, s{fb}", f"s_mul_i32 s{sT}, s{sT}, 14",
          f"s_add_u32 s{sT}, s{sT}, s{pos}", f"s_lshl_b32 s{sT}, s{sT}, 6", f"s_add_u32 s{sCs[i]}, s{sT}, {CSP}")
    k("s_branch L_k1_jp")
    k.label("L_k1_wo")
    k(f"s_sub_u32 s{strip}, s{strip}, 112", f"s_mov_b32 s{SJ}, s20", f"s_mov_b32 s{SJ+1}, s21",
      f"s_mov_b32 s{SJ+2}, {2*MB}", f"s_mov_b32 s{sStr}, 2048", f"s_mov_b32 s{sDA}, 8192", f"s_mov_b32 s{sBsz}, 0",
      f"s_lshr_b32 s{sT}, s{strip}, 1", f"s_lshl_b32 s{sT}, s{sT}, 5", f"s_add_u32 s{sT}, s{sT}, s{kb0}", f"s_lshl_b32 s{sT}, s{sT}, 1",
      f"s_and_b32 s{sT2}, s{strip}, 1", f"s_add_u32 s{sT}, s{sT}, s{sT2}", f"s_lshl_b32 s{sT}, s{sT}, 12")
    for i in range(4):
        k(f"s_add_u32 s{sDa[i]}, s{sT}, {WOF+1024*i}", f"s_mov_b32 s{sCs[i]}, {OOB}")
    k.label("L_k1_jp")
    k(f"s_mov_b32 s{SJ+3}, 0x00020000")
    if OPT.get("nojld"):
        k(f"s_mov_b32 s{SJ+2}, 0")
    if OPT.get("nojld") or OPT.get("nojst"):
        for i in range(4):
            k(f"s_mov_b32 s{sDa[i]}, {OOB}")
    k(f"v_lshrrev_b32 v{T0}, 3, v{L}", f"v_bfe_u32 v{T1}, v{L}, 4, 1", f"v_lshlrev_b32 v{T1}, 2, v{T1}",
      f"v_and_b32 v{T2}, 7, v{L}", f"v_xor_b32 v{T1}, v{T1}, v{T2}", f"v_lshlrev_b32 v{T1}, 4, v{T1}",
      f"v_mul_lo_u32 v{vJ}, v{T0}, s{sStr}", f"v_lshl_add_u32 v{vJB}, v{T0}, 11, v{T1}", f"v_add_u32 v{vJ}, v{vJ}, v{T1}",
      f"s_lshl_b32 s{sT}, s{kb0}, 5", f"s_mul_i32 s{sT}, s{sT}, s{sStr}", f"s_lshl_b32 s{sT2}, s{strip}, 7", f"s_add_u32 s{sT}, s{sT}, s{sT2}",
      f"v_add_u32 v{vJ}, s{sT}, v{vJ}",
      f"s_lshl_b32 s{sT}, s{sStr}, 3", f"s_sub_u32 s{sJa}, s{sT}, 1024", f"s_add_u32 s{sJb}, s{sT}, 3072", f"s_mov_b32 s{sJo}, 0")
    k(f"s_mul_i32 s{strip}, s{sGW}, 1171", f"s_lshr_b32 s{strip}, s{strip}, 16",
      f"s_mul_i32 s{sT}, s{strip}, 56", f"s_sub_u32 s{kb0}, s{sGW}, s{sT}", f"s_lshl_b32 s{kb0}, s{kb0}, 1",
      f"s_lshl_b32 s{sT}, s{kb0}, 16", f"s_lshl_b32 s{sT2}, s{strip}, 7", f"s_add_u32 s{sT}, s{sT}, s{sT2}",
      f"v_add_u32 v{vJB}, s{sT}, v{vJB}",
      f"s_lshr_b32 s{sT}, s{strip}, 1", f"s_mul_i32 s{sT}, s{sT}, 112", f"s_add_u32 s{sT}, s{sT}, s{kb0}", f"s_lshl_b32 s{sT}, s{sT}, 1",
      f"s_and_b32 s{sT2}, s{strip}, 1", f"s_add_u32 s{sT}, s{sT}, s{sT2}", f"s_lshl_b32 s{sT}, s{sT}, 12",
      f"s_add_u32 s{sDB}, s{sT}, {WDF}", f"s_cmp_eq_u32 s{sBsz}, 0", f"s_cselect_b32 s{sDB}, {OOB}, s{sDB}")
    if OPT.get("nojld"):
        k(f"s_mov_b32 s{sBsz}, 0")
    if OPT.get("nojld") or OPT.get("nojst"):
        k(f"s_mov_b32 s{sDB}, {OOB}")
    for i in range(4):
        k(f"s_mov_b32 s{sD[i]}, {OOB}")
    k(f"s_mov_b32 s{sDstep}, 0")
    k(f"v_lshrrev_b32 v{T0}, 4, v{L}", f"v_lshlrev_b32 v{T0}, 10, v{T0}", f"v_bfe_u32 v{T1}, v{L}, 2, 2", f"v_lshl_add_u32 v{T0}, v{T1}, 7, v{T0}",
      f"v_bfe_u32 v{T1}, v{L}, 3, 1", f"v_lshl_add_u32 v{T0}, v{T1}, 6, v{T0}", f"v_and_b32 v{T1}, 3, v{L}", f"v_lshl_add_u32 v{T0}, v{T1}, 4, v{T0}",
      f"s_lshl_b32 s{sT}, s{sW}, 12", f"s_add_u32 s{sT}, s{sT}, 32768", f"v_add_u32 v{bJ[0]}, s{sT}, v{T0}", f"v_xor_b32 v{bJ[1]}, 64, v{bJ[0]}",
      f"v_mov_b32 v{aJ[0]}, v{bJ[0]}", f"v_mov_b32 v{aJ[1]}, v{bJ[1]}")
    k(f"v_and_b32 v{T0}, 15, v{L}", f"v_cmp_eq_u32 vcc, 0, v{T0}", f"v_mov_b32 v{T1}, {OOB}", f"v_mov_b32 v{IDX}, 0xdddd",
      f"v_cndmask_b32 v{vCs}, v{T1}, v{L}, vcc")
    k(f"v_and_b32 v{T0}, 7, v{L}", f"v_mov_b32 v{T1}, 0x3f803f80", f"v_cmp_eq_u32 vcc, 0, v{T0}", f"v_mov_b32 v{vRd}, v{vLin}", "s_nop 0",
      f"v_cndmask_b32 v{SUMA}, 0, v{T1}, vcc", f"v_cndmask_b32 v{SUMA+1}, 0, v{T1}, vcc",
      f"v_cmp_eq_u32 vcc, 4, v{T0}", "s_nop 1",
      f"v_cndmask_b32 v{SUMA+2}, 0, v{T1}, vcc", f"v_cndmask_b32 v{SUMA+3}, 0, v{T1}, vcc")
    for i in range(4):
        k(f"v_mov_b32 v{ONES+i}, v{T1}")
    for r0, n in ((O[0], 16), (O[1], 16), (LS[0], 4), (LS[1], 4), (S[3], 16), (VB[1], 8)):
        for i in range(n):
            k(f"v_mov_b32 v{r0+i}, 0")
    k(f"s_mov_b32 s{sRd}, 0", f"s_mov_b32 s{sC}, 0")
    k("s_waitcnt vmcnt(8)", "s_barrier")
    mid_stamp(k, 0)
    rdK = lambda t: [f"ds_read_b128 {vr(KB[t&1]+4*m,4)}, v{vRd} offset:{(t%8)*4096+1024*m}" for m in range(2)]
    rdV = lambda t: [f"ds_read_b128 {vr(VB[t&1]+4*m,4)}, v{vRd} offset:{(t%8)*4096+2048+1024*m}" for m in range(2)]
    qk = lambda u, c="0": [m32(vr(S[u % 4], 16), vr(KB[(u >> 1) & 1], 4), vr(Q[u & 1], 4), c),
                           m32(vr(S[u % 4], 16), vr(KB[(u >> 1) & 1] + 4, 4), vr(Q[u & 1] + 4, 4))]
    pv = lambda u: [f"v_smfmac_f32_32x32x32_bf16 {vr(O[u&1],16)}, {vr(VB[(u>>1)&1]+4*m,4)}, {vr(S[u%4]+8*m,8)}, v{IDX}" for m in range(2)]
    sm = lambda u: [f"v_smfmac_f32_16x16x64_bf16 {vr(LS[u&1],4)}, {vr(SUMA,4)}, {vr(S[u%4]+8*m,8)}, v{IDX}" for m in range(2)]
    k(rdK(0), rdV(0), "s_waitcnt lgkmcnt(0)", qk(0), "s_nop 7", "s_nop 3")

    jdma = []
    for i in range(4):
        g = []
        if i == 0:
            g += [f"s_add_u32 m0, s{sWr}, s{sWrJ}", "s_nop 0"]
        g += [f"buffer_load_dwordx4 v{vJ}, s[{SJ}:{SJ+3}], s{sJo} offen offset:{1024*i} lds",
              f"s_add_u32 s{sJo}, s{sJo}, s{sJa if i < 3 else sJb}"]
        jdma.append(g)
    kvd = kv_dma()
    jrd = lambda f: [f"ds_read_b64_tr_b16 {vr(JF[f]+2*jj,2)}, v{aJ[f>>1]} offset:{jj*512+(f&1)*8}" for jj in range(2)]
    jst = lambda f: [f"buffer_store_dwordx4 {vr(JF[f],4)}, v{vLin}, s[{SWS}:{SWS+3}], s{sD[f]} offen sc1", f"s_add_u32 s{sD[f]}, s{sD[f]}, s{sDstep}"]
    jmf = lambda f: m16(vr(CS[f], 4), vr(JF[f], 4), vr(ONES, 4))
    k(".p2align 6")
    k.label("L_k1_loop")
    for u in range(16):
        ex = [f"v_exp_f32 v{S[u%4]+i}, v{S[u%4]+i}" for i in range(16)]
        mf = qk(u + 1) + pv(u - 1) + sm(u - 1)
        sl = [[] for _ in range(6)]
        t = u >> 1
        rd = rdK(t + 1) if u % 2 == 0 else rdV(t + 1)
        if u == 14:
            sl[0] += [f"s_add_u32 s{sRd}, s{sRd}, {SLOT}", f"s_cmp_eq_u32 s{sRd}, {3*SLOT}", f"s_cselect_b32 s{sRd}, 0, s{sRd}",
                      "s_waitcnt vmcnt(16) lgkmcnt(0)", "s_barrier", f"v_add_u32 v{vRd}, s{sRd}, v{vLin}"]
            sl[1] += rd
        else:
            sl[0].append(rd[0]); sl[1].append(rd[1])
        if u == 15:
            sl[2] += [f"v_add_u32 v{aJ[0]}, s{sRd}, v{bJ[0]}", f"v_add_u32 v{aJ[1]}, s{sRd}, v{bJ[1]}"]
            sl[3] += [f"s_add_u32 s{sWr}, s{sWr}, {SLOT}", f"s_cmp_ge_u32 s{sWr}, {3*SLOT}"]
            sl[4] += [f"s_cselect_b32 s{sT}, {3*SLOT}, 0", f"s_sub_u32 s{sWr}, s{sWr}, s{sT}"]
            sl[5] += [f"s_add_u32 s{sC}, s{sC}, 1", f"s_bitcmp1_b32 s{sC}, 0"]
        if u < 4:
            sl[2] += jdma[u]
        elif u < 12:
            sl[2] += kvd[u - 4]
        if u in (1, 3, 5, 7):
            j = jrd(u // 2)
            sl[3].append(j[0]); sl[4].append(j[1])
        if u in (3, 5, 7, 9):
            sl[5] += jst((u - 3) // 2)
        if u in (4, 6, 8, 10):
            sl[3].append(jmf((u - 4) // 2))
        if u % 2 == 0:
            sl[5].append("s_waitcnt lgkmcnt(0)")
        cuts = [0, 3, 6, 9, 12, 14, 16]
        for i in range(6):
            k(mf[i], sl[i], ex[cuts[i]:cuts[i + 1]])
    k("s_cbranch_scc1 L_k1_loop")
    k(f"s_cmp_eq_u32 s{sC}, 8", "s_cbranch_scc1 L_k1_fin",
      f"s_cmp_eq_u32 s{sC}, 4", "s_cbranch_scc1 L_k1_sw4",
      f"s_cmp_eq_u32 s{sC}, 6", "s_cbranch_scc1 L_k1_sw6")
    for i in range(4):
        k(f"s_mov_b32 s{sD[i]}, s{sDa[i]}")
        for r in range(4):
            k(f"v_mov_b32 v{CS[i]+r}, 0")
    k(f"s_mov_b32 s{sDstep}, s{sDA}", "s_branch L_k1_loop")
    k.label("L_k1_sw4")
    k(f"s_mov_b32 s{SJ}, s28", f"s_mov_b32 s{SJ+1}, s29", f"s_mov_b32 s{SJ+2}, s{sBsz}", f"v_mov_b32 v{vJ}, v{vJB}",
      f"s_mov_b32 s{sJo}, 0", f"s_mov_b32 s{sJa}, {16384-1024}", f"s_mov_b32 s{sJb}, {16384+3072}", "s_branch L_k1_loop")
    k.label("L_k1_sw6")
    k(f"s_mov_b32 s{SJ+2}, 0", f"s_mov_b32 s{sDstep}, 8192")
    for i in range(4):
        k(f"buffer_store_dwordx4 {vr(CS[i],4)}, v{vCs}, s[{SWS}:{SWS+3}], s{sCs[i]} offen sc1",
          f"s_add_u32 s{sD[i]}, s{sDB}, {1024*i}")
    k("s_branch L_k1_loop")
    k.label("L_k1_fin")
    mid_stamp(k, 1)
    k("s_nop 1", pv(15), sm(15))
    vO = vRd
    k(f"v_bfe_u32 v{T0}, v{L}, 4, 1", f"v_lshlrev_b32 v{T0}, 10, v{T0}", f"v_lshrrev_b32 v{T1}, 5, v{L}", f"v_lshl_add_u32 v{T0}, v{T1}, 8, v{T0}",
      f"v_and_b32 v{T1}, 15, v{L}", f"v_lshl_add_u32 v{vO}, v{T1}, 4, v{T0}")
    k("s_nop 15", "s_waitcnt lgkmcnt(0)")
    k(f"v_maximum3_f32 v{T0}, abs(v{O[0]}), abs(v{O[0]+1}), v{LS[0]}", f"v_maximum3_f32 v{T1}, abs(v{O[1]}), abs(v{O[1]+1}), v{LS[1]}")
    for i in range(2, 16, 2):
        k(f"v_maximum3_f32 v{T0}, abs(v{O[0]+i}), abs(v{O[0]+i+1}), v{T0}", f"v_maximum3_f32 v{T1}, abs(v{O[1]+i}), abs(v{O[1]+i+1}), v{T1}")
    k(f"v_maximum3_f32 v{T0}, v{T0}, v{T1}, v{T1}", f"v_min_f32 v{T1}, v{LS[0]}, v{LS[1]}",
      f"v_cmp_nge_f32 vcc, {f32(2.0**100)}, v{T0}", f"s_mov_b64 s[70:71], vcc",
      f"v_cmp_nle_f32 vcc, {f32(2.0**-80)}, v{T1}", f"s_or_b64 s[70:71], s[70:71], vcc")
    if OPT["force_slow"]:
        k("s_branch L_k1_slow")
    k("s_cbranch_scc1 L_k1_slow")
    k.label("L_k1_out")
    k(f"v_rcp_f32 v{T0}, v{LS[0]}", f"v_rcp_f32 v{T1}, v{LS[1]}", "s_nop 0")
    for q in range(2):
        for m in range(2):
            o = S[0] + 8 * q + 4 * m
            for i in range(8):
                k(f"v_mul_f32 v{O[q]+8*m+i}, v{[T0,T1][q]}, v{O[q]+8*m+i}")
            for i in range(4):
                k(f"v_cvt_pk_bf16_f32 v{o+i}, v{O[q]+8*m+2*i}, v{O[q]+8*m+2*i+1}")
            k(f"buffer_store_dwordx4 {vr(o,4)}, v{vO}, s[{SWS}:{SWS+3}], s{sOo} offen offset:{2048*q+512*m} sc1")
    k("s_branch L_k1_done")
    k.label("L_k1_slow")
    C = [S[2], S[3]]
    ldK = [f"buffer_load_dwordx4 {vr(KB[0]+4*m,4)}, v{vLin}, s[{SKV}:{SKV+3}], s{sKo} offen offset:{1024*m}" for m in range(2)]
    ldV = [f"buffer_load_dwordx4 {vr(VB[0]+4*m,4)}, v{vLin}, s[{SKV}:{SKV+3}], s{sKo} offen offset:{2048+1024*m}" for m in range(2)]
    k(f"v_mov_b32 v{T0}, 0xff800000", f"v_mov_b32 v{T1}, 0xff800000", f"s_mov_b32 s{sKo}, 0")
    k.label("L_k1_s1")
    k(ldK, "s_waitcnt vmcnt(0)", qk(0), qk(1), "s_nop 15")
    for q in range(2):
        for i in range(0, 16, 2):
            k(f"v_max3_f32 v{[T0,T1][q]}, v{S[q]+i}, v{S[q]+i+1}, v{[T0,T1][q]}")
    k(f"s_add_u32 s{sKo}, s{sKo}, 4096", f"s_cmp_lt_u32 s{sKo}, 262144", "s_cbranch_scc1 L_k1_s1")
    for q in range(2):
        t = [T0, T1][q]
        k(f"v_mov_b32 v{T2}, v{t}", "s_nop 1", f"v_permlane32_swap_b32 v{t}, v{T2}", "s_nop 1", f"v_max_f32 v{t}, v{t}, v{T2}")
        for i in range(16):
            k(f"v_sub_f32 v{C[q]+i}, 0, v{t}", f"v_mov_b32 v{O[q]+i}, 0")
        for i in range(4):
            k(f"v_mov_b32 v{LS[q]+i}, 0")
    k(f"s_mov_b32 s{sKo}, 0")
    k.label("L_k1_s2")
    k(ldK, ldV, "s_waitcnt vmcnt(0)", qk(0, vr(C[0], 16)), qk(1, vr(C[1], 16)), "s_nop 15")
    for q in range(2):
        for i in range(16):
            k(f"v_exp_f32 v{S[q]+i}, v{S[q]+i}")
    k("s_nop 1", pv(0), sm(0), pv(1), sm(1))
    k(f"s_add_u32 s{sKo}, s{sKo}, 4096", f"s_cmp_lt_u32 s{sKo}, 262144", "s_cbranch_scc1 L_k1_s2")
    k("s_nop 15", "s_nop 7", "s_branch L_k1_out")
    k.label("L_k1_done")
    tail(k, 1, sW)
    return k


def k_gemm(name, kidx, K, tok_region, w_region, is_down):
    STG, NS = 24576, 6
    k = Kern(name, 256, 256, STG * NS)
    SWS, ST_, SW_, SR, SO = 4, 8, 12, 16, 20
    sW, sTB, sNB, sN, sT, sT2, sRd, sWr, sTo, sWo, sTH, sCH, sRes, sDW = range(28, 42)
    v = Alloc(1)
    L, G, TOK, T0, T1, vLin, bT, bW, aT, aW, vRow = [v() for _ in range(11)]
    F = [dict(X=[v(4, 4) for _ in range(2)], W=[v(4, 4) for _ in range(4)]) for _ in range(2)]
    acc = [[v(4, 4) for i in range(2)] for t in range(4)]
    RES = [[v(4, 4) for b in range(2)] for i in range(2)]
    k.vgpr = k.acc = (v.n + 7) // 8 * 8
    head(k)
    k(f"s_load_dwordx2 s[{SWS}:{SWS+1}], s[0:1], {A_WS}",
      f"s_load_dwordx2 s[{SO}:{SO+1}], s[0:1], {A_OUT if is_down else A_X}")
    k(f"v_lshrrev_b32 v{T1}, 6, v0", f"v_and_b32 v{L}, 63, v0", f"v_readfirstlane_b32 s{sW}, v{T1}", f"v_lshlrev_b32 v{vLin}, 4, v{L}")
    ids_8x4(k, sNB, sTB, sT)
    k(f"s_and_b32 s{sTH}, s{sW}, 1", f"s_lshr_b32 s{sCH}, s{sW}, 1",
      f"s_lshl_b32 s{sTo}, s{sW}, 11", f"s_lshl_b32 s{sWo}, s{sW}, 12", f"s_mov_b32 s{sWr}, s{sTo}",
      f"s_add_u32 s{sDW}, s{sTo}, 8192",
      f"s_mul_i32 s{sT}, s{sTB}, {K*128}", f"s_add_u32 s{sT}, s{sT}, {tok_region}",
      f"s_mul_i32 s{sT2}, s{sNB}, {K*256}", f"s_add_u32 s{sT2}, s{sT2}, {w_region}")
    k(f"v_lshrrev_b32 v{G}, 4, v{L}", f"v_and_b32 v{TOK}, 15, v{L}",
      f"v_lshlrev_b32 v{T0}, 11, v{TOK}", f"v_lshl_add_u32 v{T0}, v{G}, 4, v{T0}",
      f"s_lshl_b32 s{sN}, s{sTB}, 1", f"s_add_u32 s{sN}, s{sN}, s{sTH}", f"s_lshl_b32 s{sN}, s{sN}, 16",
      f"s_lshl_b32 s{sRes}, s{sNB}, 1", f"s_add_u32 s{sRes}, s{sRes}, s{sCH}", f"s_lshl_b32 s{sRd}, s{sRes}, 7",
      f"s_add_u32 s{sN}, s{sN}, s{sRd}", f"v_add_u32 v{vRow}, s{sN}, v{T0}")
    k(f"s_lshl_b32 s{sRes}, s{sRes}, 13", f"s_lshl_b32 s{sN}, s{sTB}, 17", f"s_add_u32 s{sRes}, s{sRes}, s{sN}",
      f"s_lshl_b32 s{sN}, s{sTH}, 11", f"s_add_u32 s{sRes}, s{sRes}, s{sN}", f"s_add_u32 s{sRes}, s{sRes}, {HF}")
    k("s_waitcnt lgkmcnt(0)", ws_shift(SWS))
    k(srd_from(ST_, SWS, f"s{sT}", K * 128), srd_from(SW_, SWS, f"s{sT2}", K * 256), srd_tail(SWS, WS_SZ), srd_tail(SO, 4 * MB))

    def dma_stage():
        o = []
        for i in range(2):
            g = [f"s_mov_b32 m0, s{sWr}", "s_nop 0"] if i == 0 else []
            g.append(f"buffer_load_dwordx4 v{vLin}, s[{ST_}:{ST_+3}], s{sTo} offen offset:{1024*i} lds")
            o.append(g)
        for i in range(4):
            g = [f"s_add_u32 m0, s{sWr}, s{sDW}", f"s_add_u32 s{sTo}, s{sTo}, 8192"] if i == 0 else []
            g.append(f"buffer_load_dwordx4 v{vLin}, s[{SW_}:{SW_+3}], s{sWo} offen offset:{1024*i} lds")
            o.append(g)
        o.append([f"s_add_u32 s{sWo}, s{sWo}, 16384", f"s_add_u32 s{sWr}, s{sWr}, {STG}", f"s_cmp_ge_u32 s{sWr}, {STG*NS}",
                  f"s_cselect_b32 s{sT}, {STG*NS}, 0", f"s_sub_u32 s{sWr}, s{sWr}, s{sT}"])
        return o
    k(dma_stage())
    k(f"s_add_u32 s{sT2}, s{sRes}, 4096", f"s_mov_b32 s{sN}, 32768")
    for i in range(2):
        for b in range(2):
            if is_down:
                k(f"buffer_load_dwordx4 {vr(RES[i][b],4)}, v{vLin}, s[{SWS}:{SWS+3}], s{[sRes,sT2][b]} offen offset:{1024*i}")
            else:
                k(f"buffer_load_dwordx4 {vr(RES[i][b],4)}, v{vRow}, s[{SO}:{SO+3}], {['0', f's{sN}'][i]} offen offset:{64*b}")
    k(f"s_mov_b32 s{sN}, {NS-1}")
    k.label(f"L_{name}_pro")
    k(dma_stage())
    k(f"s_sub_u32 s{sN}, s{sN}, 1", f"s_cmp_lg_u32 s{sN}, 0", f"s_cbranch_scc1 L_{name}_pro")
    k(f"s_lshl_b32 s{sT}, s{sTH}, 11", f"v_add_u32 v{bT}, s{sT}, v{vLin}",
      f"s_lshl_b32 s{sT}, s{sCH}, 12", f"s_add_u32 s{sT}, s{sT}, 8192", f"v_add_u32 v{bW}, s{sT}, v{vLin}",
      f"v_mov_b32 v{aT}, v{bT}", f"v_mov_b32 v{aW}, v{bW}")
    for t in range(4):
        for i in range(2):
            for r in range(4):
                k(f"v_mov_b32 v{acc[t][i]+r}, 0")

    def reads(f, s):
        f = F[f]
        o = [f"ds_read_b128 {vr(f['X'][i],4)}, v{aT} offset:{s*4096+i*1024}" for i in range(2)]
        o += [f"ds_read_b128 {vr(f['W'][t],4)}, v{aW} offset:{s*8192+t*1024}" for t in range(4)]
        return o

    def mfmas(f):
        f = F[f]
        return [m16(vr(acc[t][i ^ (t & 1)], 4), vr(f["W"][t], 4), vr(f["X"][i ^ (t & 1)], 4)) for t in range(4) for i in range(2)]
    k(f"s_mov_b32 s{sRd}, 0", f"s_mov_b32 s{sN}, {K//64}")
    k(f"s_waitcnt vmcnt({6*(NS-1)+4})", "s_barrier")
    mid_stamp(k, 0)
    k(reads(0, 0))
    k(".p2align 6")
    k.label(f"L_{name}_loop")
    k("s_waitcnt lgkmcnt(0)")
    k(weave(mfmas(0), reads(1, 1), 0, 4))
    k(f"s_add_u32 s{sRd}, s{sRd}, {STG}", f"s_cmp_eq_u32 s{sRd}, {STG*NS}", f"s_cselect_b32 s{sRd}, 0, s{sRd}")
    k(f"s_waitcnt vmcnt({6*(NS-2)}) lgkmcnt(0)", "s_barrier")
    k(f"v_add_u32 v{aT}, s{sRd}, v{bT}", f"v_add_u32 v{aW}, s{sRd}, v{bW}")
    k(weave(weave(mfmas(1), reads(0, 0), 0, 3), dma_stage(), 6))
    k(f"s_sub_u32 s{sN}, s{sN}, 1", f"s_cmp_lg_u32 s{sN}, 0", f"s_cbranch_scc1 L_{name}_loop")
    mid_stamp(k, 1)
    k("s_waitcnt lgkmcnt(0)", f"s_add_u32 s{sT2}, s{sRes}, 4096", f"s_mov_b32 s{sN}, 32768", "s_nop 3")
    SUM = F[0]["X"]
    U = F[0]["W"][0]
    for i in range(2):
        if not is_down:
            k(f"v_mov_b32 v{SUM[i]}, 0", f"v_mov_b32 v{SUM[i]+1}, 0")
        for b in range(2):
            o = F[1]["W"][2 * i + b]
            for jt in range(2):
                a = acc[2 * b + jt][i]
                for h in range(2):
                    r = RES[i][b] + 2 * jt + h
                    k(f"v_lshlrev_b32 v{U}, 16, v{r}", f"v_and_b32 v{U+1}, 0xffff0000, v{r}",
                      f"v_add_f32 v{a+2*h}, v{a+2*h}, v{U}", f"v_add_f32 v{a+2*h+1}, v{a+2*h+1}, v{U+1}",
                      f"v_cvt_pk_bf16_f32 v{o+2*jt+h}, v{a+2*h}, v{a+2*h+1}")
                    if not is_down:
                        for e in range(2):
                            k(f"v_add_f32 v{SUM[i]}, v{SUM[i]}, v{a+2*h+e}", f"v_fmac_f32 v{SUM[i]+1}, v{a+2*h+e}, v{a+2*h+e}")
            if is_down:
                k(f"buffer_store_dwordx4 {vr(o,4)}, v{vRow}, s[{SO}:{SO+3}], {['0', f's{sN}'][i]} offen offset:{64*b} sc1")
            else:
                k(f"buffer_store_dwordx4 {vr(o,4)}, v{vLin}, s[{SWS}:{SWS+3}], s{[sRes,sT2][b]} offen offset:{1024*i} sc1")
    if not is_down:
        k("s_nop 0", f"v_permlane32_swap_b32 v{SUM[0]}, v{SUM[0]+1}", f"v_permlane32_swap_b32 v{SUM[1]}, v{SUM[1]+1}", "s_nop 0",
          f"v_add_f32 v{SUM[0]}, v{SUM[0]}, v{SUM[0]+1}", f"v_add_f32 v{SUM[1]}, v{SUM[1]}, v{SUM[1]+1}",
          f"v_and_b32 v{T0}, 31, v{L}", f"v_lshlrev_b32 v{T0}, 7, v{T0}",
          f"v_permlane16_swap_b32 v{SUM[0]}, v{SUM[1]}",
          f"v_lshrrev_b32 v{T1}, 5, v{L}", f"v_lshl_add_u32 v{T0}, v{T1}, 2, v{T0}",
          f"v_add_f32 v{SUM[0]}, v{SUM[0]}, v{SUM[1]}",
          f"s_lshl_b32 s{sT}, s{sTB}, 1", f"s_add_u32 s{sT}, s{sT}, s{sTH}", f"s_lshl_b32 s{sT}, s{sT}, 12",
          f"s_lshl_b32 s{sT2}, s{sNB}, 1", f"s_add_u32 s{sT2}, s{sT2}, s{sCH}", f"s_lshl_b32 s{sT2}, s{sT2}, 3",
          f"s_add_u32 s{sT}, s{sT}, s{sT2}", f"s_add_u32 s{sT}, s{sT}, {STP}",
          f"buffer_store_dword v{SUM[0]}, v{T0}, s[{SWS}:{SWS+3}], s{sT} offen sc1")
    tail(k, kidx, sW)
    return k


def k3_gateup():
    STG = 28672
    TBL = 4 * STG
    k = Kern("gateup_kernel", 256, 256, TBL + 1024)
    SWS, ST_, SW_ = 4, 8, 12
    sW, sMB, sFB, sN, sT, sT2, sTo, sWo, sWr, sTB, sA0, sA1 = range(28, 40)
    v = Alloc(1)
    T0, T1, vLin, vR0, vR1 = [v() for _ in range(5)]
    PA = [v(2, 2) for _ in range(4)]
    SD = [v(2, 2) for _ in range(2)]
    TMP = v(8, 4)
    OUT = v(4, 4)
    assert v.n <= 32, v.n
    acc = [[32 + (a * 4 + b) * 4 for b in range(4)] for a in range(14)]
    TK = [[[32 * n + 16 * s + 4 * b for b in range(4)] for s in range(2)] for n in range(4)]
    WF = [[128 + 8 * n + 4 * s for s in range(2)] for n in range(4)]
    k.vgpr, k.acc = 256 + 160, 256
    head(k)
    k(f"s_load_dwordx2 s[{SWS}:{SWS+1}], s[0:1], {A_WS}")
    k(f"v_lshrrev_b32 v{T1}, 6, v0", f"v_and_b32 v{T0}, 63, v0", f"v_readfirstlane_b32 s{sW}, v{T1}", f"v_lshlrev_b32 v{vLin}, 4, v{T0}")
    k(f"s_lshr_b32 s{sT}, s2, 3", f"s_lshr_b32 s{sMB}, s{sT}, 2", f"s_and_b32 s{sT}, s{sT}, 3",
      f"s_and_b32 s{sFB}, s2, 7", f"s_lshl_b32 s{sFB}, s{sFB}, 2", f"s_add_u32 s{sFB}, s{sFB}, s{sT}",
      f"s_lshl_b32 s{sTB}, s{sMB}, 2", f"s_add_u32 s{sTB}, s{sTB}, s{sW}",
      f"s_lshl_b32 s{sT}, s{sTB}, 17", f"s_add_u32 s{sT}, s{sT}, {HF}",
      f"s_mul_i32 s{sT2}, s{sFB}, {32*14*1024}", f"s_add_u32 s{sT2}, s{sT2}, {WGU}",
      f"s_mul_i32 s{sWo}, s{sW}, 7168", f"s_mov_b32 s{sWr}, s{sWo}", f"s_mov_b32 s{sTo}, 0")
    k(f"v_and_b32 v{T1}, 15, v{T0}", f"v_lshlrev_b32 v{T1}, 7, v{T1}", f"v_and_b32 v{T0}, 48, v{T0}", f"v_add_u32 v{T1}, v{T1}, v{T0}",
      f"v_lshlrev_b32 v{T0}, 2, v0", f"v_mov_b32 v{vR0}, v{vLin}", f"v_add_u32 v{vR1}, {2*STG}, v{vLin}")
    k("s_waitcnt lgkmcnt(0)", ws_shift(SWS))
    k(srd_from(ST_, SWS, f"s{sT}", 131072), srd_from(SW_, SWS, f"s{sT2}", 32 * 14 * 1024), srd_tail(SWS, WS_SZ))
    SP = 32
    CP = 64
    k(f"s_lshl_b32 s{sT}, s{sTB}, 13", f"s_add_u32 s{sT}, s{sT}, {STP}", f"s_add_u32 s{sT2}, s{sT}, 4096")
    for b in range(4):
        for h in range(2):
            k(f"buffer_load_dwordx4 {vr(SP+8*b+4*h,4)}, v{T1}, s[{SWS}:{SWS+3}], s{[sT,sT2][b>>1]} offen offset:{2048*(b&1)+64*h}")
    k(f"s_mul_i32 s{sT}, s{sFB}, 896", f"s_add_u32 s{sT}, s{sT}, {CSP}")
    for p in range(8):
        k(f"buffer_load_dword v{CP+p}, v{T0}, s[{SWS}:{SWS+3}], s{sT} offen", f"s_add_u32 s{sT}, s{sT}, {32*896}")

    def vm_stage(n):
        o = []
        for i in range(7):
            g = []
            if i % 4 == 0:
                g += [f"s_add_u32 m0, s{sWr}, {(n%4)*STG+1024*i}", "s_nop 0" if i == 0 else f"s_add_u32 s{sWo}, s{sWo}, 4096"]
            g.append(f"buffer_load_dwordx4 v{vLin}, s[{SW_}:{SW_+3}], s{sWo} offen offset:{1024*(i%4)} lds")
            if i == 6:
                g.append(f"s_add_u32 s{sWo}, s{sWo}, {STG-4096}")
            o.append(g)
        for s in range(2):
            for b in range(4):
                g = [f"buffer_load_dwordx4 {ar(TK[n%4][s][b],4)}, v{vLin}, s[{ST_}:{ST_+3}], s{sTo} offen offset:{1024*b}"]
                if b == 3:
                    g.append(f"s_add_u32 s{sTo}, s{sTo}, 4096")
                o.append(g)
        return o
    for n in range(3):
        k(vm_stage(n))
    k("s_waitcnt vmcnt(45)")
    for p in range(1, 8):
        k(f"v_add_f32 v{CP}, v{CP}, v{CP+p}")
    k(f"v_add_u32 v{T0}, {TBL}, v{T0}", f"ds_write_b32 v{T0}, v{CP}")
    for b in range(4):
        s = SP + 8 * b
        for e in range(2):
            k(f"v_add_f32 v{s+e}, v{s+e}, v{s+2+e}", f"v_add_f32 v{s+4+e}, v{s+4+e}, v{s+6+e}")
        for e in range(2):
            k(f"v_add_f32 v{s+e}, v{s+e}, v{s+4+e}")
    for op in ("v_permlane16_swap_b32", "v_permlane32_swap_b32"):
        for b in range(4):
            for e in range(2):
                k(f"v_mov_b32 v{SP+8*b+2+e}, v{SP+8*b+e}")
        k("s_nop 0")
        for b in range(4):
            for e in range(2):
                k(f"{op} v{SP+8*b+e}, v{SP+8*b+2+e}")
        k("s_nop 0")
        for b in range(4):
            for e in range(2):
                k(f"v_add_f32 v{SP+8*b+e}, v{SP+8*b+e}, v{SP+8*b+2+e}")
    for b in range(4):
        s = SP + 8 * b
        sd = SD[b >> 1] + (b & 1)
        k(f"v_mul_f32 v{PA[b]+1}, {f32(-1/1024)}, v{s}",
          f"v_mul_f32 v{s+1}, {f32(1/1024)}, v{s+1}",
          f"v_fma_f32 v{s+1}, -v{PA[b]+1}, v{PA[b]+1}, v{s+1}",
          f"v_max_f32 v{s+1}, 0, v{s+1}",
          f"v_add_f32 v{s+1}, {f32(EPS)}, v{s+1}",
          f"v_rsq_f32 v{s+2}, v{s+1}", "s_nop 0",
          f"v_mul_f32 v{sd}, v{s+1}, v{s+2}",
          f"v_mul_f32 v{PA[b]}, {f32(-LOG2E)}, v{s+2}")
    for i in range(32, 256):
        k(f"v_mov_b32 v{i}, 0")
    order = [a for p in range(7) for a in (p, p + 7)]

    def wrd(gt):
        n, a = (gt // 14) % 4, order[gt % 14]
        return [f"ds_read_b128 {ar(WF[gt%4][s],4)}, v{[vR0,vR1][n>>1]} offset:{(n&1)*STG+s*14336+a*1024}" for s in range(2)]
    k(f"s_mov_b32 s{sN}, 4", "s_waitcnt vmcnt(30) lgkmcnt(0)", "s_barrier")
    mid_stamp(k, 0)
    k(wrd(0), wrd(1), "s_waitcnt lgkmcnt(2)")
    k(".p2align 6")
    k.label("L_k3_loop")
    for n in range(4):
        vm = vm_stage(n + 3)
        for ti in range(14):
            gt = n * 14 + ti
            a = order[ti]
            bs = range(4) if ti % 2 == 0 else range(3, -1, -1)
            mf = [m16(vr(acc[a][b], 4), ar(WF[gt % 4][s], 4), ar(TK[n][s][b], 4)) for b in bs for s in range(2)]
            sl = [[] for _ in range(8)]
            rd = wrd(gt + 2)
            sl[0].append(rd[0]); sl[1].append(rd[1])
            if ti < 8:
                for j, g in enumerate(vm[2 * ti:2 * ti + 2]):
                    p = 2 + 3 * j
                    if len(g) == 3 and g[0].startswith("s_add_u32 m0"):
                        sl[p] += g[:2] if g[1] != "s_nop 0" else g[:1]
                        sl[p + 1].append(g[2])
                    else:
                        sl[p + 1].append(g[0])
                        sl[min(p + 2, 6)] += g[1:]
            if ti == 11:
                sl[7] += ["s_waitcnt vmcnt(30) lgkmcnt(0)", "s_barrier"]
            else:
                if n == 3 and ti == 13:
                    sl[5] += [f"s_sub_u32 s{sN}, s{sN}, 1"]
                    sl[6] += [f"s_cmp_lg_u32 s{sN}, 0"]
                sl[7].append("s_waitcnt lgkmcnt(2)")
            for i in range(8):
                k(mf[i], sl[i])
    k("s_cbranch_scc1 L_k3_loop")
    mid_stamp(k, 1)
    k(f"s_mul_i32 s{sT}, s{sFB}, 7", f"s_add_u32 s{sA0}, s{sT}, 1", f"s_lshr_b32 s{sA0}, s{sA0}, 1",
      f"s_lshr_b32 s{sA1}, s{sT}, 1", f"s_and_b32 s{sT}, s{sFB}, 1", f"s_cmp_eq_u32 s{sT}, 0", f"s_cselect_b32 s{sT2}, 3, 0",
      f"s_add_u32 s{sA1}, s{sA1}, s{sT2}", f"s_mul_i32 s{sT2}, s{sTB}, 112",
      f"s_add_u32 s{sA0}, s{sA0}, s{sT2}", f"s_add_u32 s{sA1}, s{sA1}, s{sT2}",
      f"s_lshl_b32 s{sA0}, s{sA0}, 12", f"s_lshl_b32 s{sA1}, s{sA1}, 12",
      f"s_add_u32 s{sA0}, s{sA0}, {AF}", f"s_add_u32 s{sA1}, s{sA1}, {AF}",
      f"s_lshl_b32 s{sT}, s{sT}, 3", f"s_add_u32 s{sA1}, s{sA1}, s{sT}")
    k(f"v_lshrrev_b32 v{T0}, 8, v{vLin}", f"v_lshlrev_b32 v{T0}, 4, v{T0}", f"v_add_u32 v{T0}, {TBL}, v{T0}", "s_waitcnt lgkmcnt(0)")
    for p in range(7):
        cg, cu = TMP, TMP + 4
        k(f"ds_read_b128 {vr(cg,4)}, v{T0} offset:{64*p}", f"ds_read_b128 {vr(cu,4)}, v{T0} offset:{64*(p+7)}", "s_waitcnt lgkmcnt(0)")
        for b in range(4):
            g, u = acc[p][b], acc[p + 7][b]
            sd = vr(SD[b >> 1], 2)
            sel = f"op_sel:[0,{b&1},{b&1}] op_sel_hi:[1,{b&1},{b&1}]"
            for h in (0, 2):
                k(f"v_pk_fma_f32 {vr(g+h,2)}, {vr(cg+h,2)}, {vr(PA[b],2)}, {vr(g+h,2)} op_sel:[0,1,0] op_sel_hi:[1,1,1]")
            for h in (0, 2):
                k(f"v_pk_mul_f32 {vr(g+h,2)}, {vr(g+h,2)}, {vr(PA[b],2)} op_sel:[0,0] op_sel_hi:[1,0]")
            for r in range(4):
                k(f"v_exp_f32 v{g+r}, v{g+r}")
            for h in (0, 2):
                k(f"v_pk_fma_f32 {vr(u+h,2)}, {vr(cu+h,2)}, {vr(PA[b],2)}, {vr(u+h,2)} op_sel:[0,1,0] op_sel_hi:[1,1,1]")
            for h in (0, 2):
                k(f"v_pk_fma_f32 {vr(g+h,2)}, {vr(g+h,2)}, {sd}, {sd} {sel}")
            for r in range(4):
                k(f"v_rcp_f32 v{g+r}, v{g+r}")
            k("s_nop 0")
            for h in (0, 2):
                k(f"v_pk_mul_f32 {vr(u+h,2)}, {vr(u+h,2)}, {vr(g+h,2)}")
            d = g if p % 2 == 0 else acc[p - 1][b] + 2
            k(f"v_cvt_pk_bf16_f32 v{d}, v{u}, v{u+1}", f"v_cvt_pk_bf16_f32 v{d+1}, v{u+2}, v{u+3}")
            if p % 2 == 1:
                k(f"buffer_store_dwordx4 {vr(acc[p-1][b],4)}, v{vLin}, s[{SWS}:{SWS+3}], s{sA0} offen offset:{1024*b} sc1")
            elif p == 6:
                k(f"buffer_store_dwordx2 {vr(g,2)}, v{vLin}, s[{SWS}:{SWS+3}], s{sA1} offen offset:{1024*b} sc1")
        if p % 2 == 1:
            k(f"s_add_u32 s{sA0}, s{sA0}, 4096")
    tail(k, 3, sW)
    return k


HEADER = open("sequential_preLN__grouped_kv_mqa__glu_gated_glu__prompt.s.ref").read().split("; Override launch")[0]


def build():
    ks = [k0_qkv(), k1_attn(), k_gemm("oproj_kernel", 2, 1024, OF, WOF, False), k3_gateup(),
          k_gemm("down_kernel", 4, 3584, AF, WDF, True)]
    s = HEADER + "".join(k.launch_line() + "\n" for k in ks)
    s += '.amdgcn_target "amdgcn-amd-amdhsa--gfx950"\n.text\n'
    for i, k in enumerate(ks):
        s += k.text()
        if i == 0:
            s += "L_code_rest:\n"
    s += "L_code_end:\n"
    s += '.section .rodata,"a"\n' + "".join(k.desc() for k in ks)
    return s


if __name__ == "__main__":
    out = sys.argv[1]
    for a in sys.argv[2:]:
        key, _, val = a.partition("=")
        OPT[key] = int(val) if val else True
    open(out, "w").write(build())
```

```python
import sys, math
sys.path.insert(0, __file__.rsplit("/", 1)[0])
from asmlib import *

MB = 1 << 20
QF, KVF, OF, HF, AF = 0, 4 * MB, 5 * MB, 9 * MB, 13 * MB
WOF, WGU, WDF, CSP, STP, STAMP = 28 * MB, 30 * MB, 44 * MB, 52 * MB, 53 * MB, 60 * MB
WS_SZ = 64 * MB
OOB = 0x40000000
LOG2E = 1.4426950408889634
QSCALE = LOG2E / math.sqrt(32.0)
EPS = 1e-5
OPT = dict(stamp=False, force_slow=False)
A_X, A_WQ, A_WK, A_WV, A_WO, A_WG, A_WU, A_WD, A_OUT, A_WS = 0, 8, 16, 24, 32, 48, 56, 64, 72, 88


def ws_shift(s):
    if OPT.get("wsoff"):
        return [f"s_add_u32 s{s}, s{s}, {OPT['wsoff']*MB}", f"s_addc_u32 s{s+1}, s{s+1}, 0"]
    return []


ISL = []


def island():
    n = len(ISL)
    ISL.append(n)
    return f"s_branch L_isl{n}_over\n.p2align 12\nL_isl{n}:\n@ISL{n}@\nL_isl{n}_over:"


def isize(text):
    import re
    t = 0
    for ln in text.split("\n"):
        ln = ln.strip()
        if not ln:
            t += 8
        elif ln.endswith(":") or ln.startswith("."):
            continue
        elif re.match(r"(v_mfma|v_smfmac|ds_|buffer_|global_|s_load|s_mem|v_fma_|v_cvt_pk|v_accvgpr|v_pk_|v_lshl_add|v_bfe|v_max3|v_maximum3|v_mul_lo)", ln):
            t += 8
        else:
            lit = [x for x in re.findall(r"(?<![\w\[:])(0x[0-9a-f]+|\d+)(?![\w\]:])", ln.split(None, 1)[1] if " " in ln else "") if int(x, 0) > 64]
            t += 8 if lit else 4
    return t


def hop(k, sw):
    if OPT.get("isl", 1) and not OPT.get("nohop"):
        for w in range(3):
            k(f"s_cmp_eq_u32 s{sw}, {w}", f"s_cbranch_scc1 L_isl{w}")
        k("s_branch L_isl3")
    else:
        k("s_endpgm")


def srd_tail(s, size):
    return [f"s_mov_b32 s{s+2}, {size}", f"s_mov_b32 s{s+3}, 0x00020000"]


def srd_from(s, base, off, size):
    return [f"s_add_u32 s{s}, s{base}, {off}", f"s_addc_u32 s{s+1}, s{base+1}, 0"] + srd_tail(s, size)


def head(k):
    k("s_cmp_ge_u32 s2, 256", f"s_cbranch_scc1 L_end_{k.name}")
    if OPT["stamp"]:
        k("s_memrealtime s[92:93]", "s_load_dwordx2 s[90:91], s[0:1], 88", "s_mov_b32 s89, s2")


def mid_stamp(k, i):
    if OPT["stamp"]:
        k(f"s_memrealtime s[{96+2*i}:{97+2*i}]", f"s_memtime s[{84+2*i}:{85+2*i}]")


def tail(k, kidx, swave):
    if OPT["stamp"]:
        k("s_waitcnt vmcnt(0)", "s_memrealtime s[94:95]", "s_waitcnt lgkmcnt(0)",
          "v_mov_b32 v0, s92", "v_mov_b32 v1, s96", "v_mov_b32 v2, s98", "v_mov_b32 v3, s94",
          "s_lshl_b32 s89, s89, 2", f"s_add_u32 s89, s89, s{swave}", "s_lshl_b32 s89, s89, 4",
          f"s_add_u32 s89, s89, {STAMP + kidx*16384}", "v_mov_b32 v4, s89",
          "global_store_dwordx4 v4, v[0:3], s[90:91]",
          "s_sub_u32 s86, s86, s84", "v_mov_b32 v5, s86", "v_add_u32 v4, 0x100000, v4", "global_store_dword v4, v5, s[90:91]")
    k.label(f"L_end_{k.name}")
    k("s_endpgm")


def ids_8x4(k, s_a, s_b, tmp):
    k(f"s_lshr_b32 s{tmp}, s2, 3",
      f"s_and_b32 s{s_a}, s{tmp}, 3",
      f"s_lshr_b32 s{s_b}, s{tmp}, 2",
      f"s_and_b32 s{tmp}, s2, 1",
      f"s_lshl_b32 s{tmp}, s{tmp}, 2",
      f"s_add_u32 s{s_a}, s{s_a}, s{tmp}",
      f"s_and_b32 s{tmp}, s2, 6",
      f"s_lshl_b32 s{tmp}, s{tmp}, 2",
      f"s_add_u32 s{s_b}, s{s_b}, s{tmp}")


def code_prefetch(k, vtmp, vdst, stmp, start, nkb_per_wg=1):
    k(f"s_getpc_b64 s[{stmp}:{stmp+1}]")
    lab = f"L_pc_{k.name}_{start}"
    k.label(lab)
    k(f"s_add_u32 s{stmp}, s{stmp}, {start}-{lab}",
      f"s_addc_u32 s{stmp+1}, s{stmp+1}, 0",
      f"global_load_dwordx4 {vr(vdst,4)}, v{vtmp}, s[{stmp}:{stmp+1}]" if not OPT.get("nopf") else None)


def k0_qkv():
    D = 3
    STG, NS = 28672, D + 2
    TBL = STG * NS
    k = Kern("qkv_kernel", 256, 512, TBL + 1024)
    SX, SWQ, SE, SWS = 4, 8, 12, 16
    sW, sTB, sHG, sN, sX, sWo, sEo, sRd, sWr, sT, sT2, sTH, sCH, sBW = range(24, 38)
    NT = " nt" if OPT.get("k0nt", 1) else ""
    v = Alloc(1)
    L, G, R, CQ, TOK, T0, T1, T2 = [v() for _ in range(8)]
    vX, vX2, vE = v(), v(), v()
    vW = [v() for _ in range(4)]
    bX = [[v() for i in range(2)] for s in range(2)]
    bW = [v() for _ in range(4)]
    bE = v()
    aX = [[v() for i in range(2)] for s in range(2)]
    aW = [v() for _ in range(4)]
    aE = v()
    F = [[dict(X=[v(4, 4) for _ in range(2)], W=[v(4, 4) for _ in range(4)], E=v(4, 4)) for s in range(2)] for _ in range(2)]
    acc0 = v.n = (v.n + 3) // 4 * 4
    acc = [[v(4, 4) for i in range(2)] for t in range(4)]
    accE = [v(4, 4) for i in range(2)]
    cs = [v(4, 4) for _ in range(2)]
    csE, sx, sxx = v(4, 4), v(4, 4), v(4, 4)
    acc1 = v.n
    ONES = v(4, 4)
    PF = v(4, 4)
    k.vgpr = k.acc = (v.n + 7) // 8 * 8
    head(k)
    k(f"s_load_dwordx2 s[{SX}:{SX+1}], s[0:1], {A_X}",
      f"s_load_dwordx2 s[{SWQ}:{SWQ+1}], s[0:1], {A_WQ}",
      f"s_load_dwordx4 s[20:23], s[0:1], {A_WK}",
      f"s_load_dwordx2 s[{SWS}:{SWS+1}], s[0:1], {A_WS}")
    k(f"v_lshlrev_b32 v{T0}, 4, v0")
    code_prefetch(k, T0, PF, 40, "L_k0_body")
    k.label("L_k0_body")
    k(f"v_lshrrev_b32 v{T1}, 6, v0", f"v_and_b32 v{L}, 63, v0", f"v_readfirstlane_b32 s{sW}, v{T1}")
    ids_8x4(k, sHG, sTB, sT)
    k(f"v_lshrrev_b32 v{G}, 4, v{L}", f"v_and_b32 v{TOK}, 15, v{L}")
    k(f"s_and_b32 s{sTH}, s{sW}, 1", f"s_bfe_u32 s{sCH}, s{sW}, 0x10001",
      f"s_cmp_lt_u32 s{sW}, 4", "s_cbranch_scc1 L_k0_comp")
    k(f"s_and_b32 s{sW}, s{sW}, 3")
    k(f"v_lshrrev_b32 v{T0}, 3, v{L}",
      f"s_lshl_b32 s{sT}, s{sTH}, 2",
      f"v_add_u32 v{T1}, s{sT}, v{G}",
      f"v_and_b32 v{T2}, 7, v{L}",
      f"v_xor_b32 v{T1}, v{T1}, v{T2}",
      f"s_lshl_b32 s{sT}, s{sTB}, 6",
      f"s_lshl_b32 s{sT2}, s{sW}, 3",
      f"s_add_u32 s{sT}, s{sT}, s{sT2}",
      f"v_add_u32 v{T0}, s{sT}, v{T0}",
      f"v_lshlrev_b32 v{T0}, 11, v{T0}",
      f"v_lshl_add_u32 v{vX}, v{T1}, 4, v{T0}",
      f"v_add_u32 v{vX2}, 0x10000, v{vX}")
    k(f"v_lshlrev_b32 v{T1}, 1, v{G}",
      f"v_xor_b32 v{T1}, v{T1}, v{TOK}",
      f"s_lshl_b32 s{sT}, s{sTH}, 3",
      f"v_xor_b32 v{T1}, s{sT}, v{T1}",
      f"s_lshl_b32 s{sBW}, s{sTH}, 1",
      f"s_add_u32 s{sBW}, s{sBW}, s{sCH}",
      f"s_lshl_b32 s{sT}, s{sBW}, 13",
      f"s_lshl_b32 s{sT2}, s{sHG}, 8",
      f"s_add_u32 s{sT}, s{sT}, s{sT2}",
      f"v_lshlrev_b32 v{T0}, 11, v{G}",
      f"v_add_u32 v{T0}, s{sT}, v{T0}",
      f"v_lshl_add_u32 v{vW[0]}, v{T1}, 4, v{T0}")
    for i in range(1, 4):
        k(f"v_add_u32 v{vW[i]}, {32768*i}, v{vW[0]}")
    k(f"v_lshrrev_b32 v{T0}, 5, v{L}",
      f"v_lshlrev_b32 v{T0}, 1, v{T0}",
      f"v_xor_b32 v{T0}, v{T0}, v{L}",
      f"s_lshl_b32 s{sT}, s{sW}, 10",
      f"v_lshl_add_u32 v{vE}, v{T0}, 4, s{sT}")
    k(f"s_sub_u32 s{sBW}, s{sBW}, s{sW}", f"s_lshl_b32 s{sBW}, s{sBW}, 10", f"s_add_u32 s{sBW}, s{sBW}, 8192",
      f"s_lshl_b32 s{sWr}, s{sW}, 10", f"s_mov_b32 s{sN}, 16")
    k(f"s_lshl_b32 s{sT}, s{sHG}, 1", f"s_add_u32 s{sT}, s{sT}, s{sTB}", f"s_and_b32 s{sT}, s{sT}, {7 if OPT.get('rot', 1) else 0}",
      f"s_lshl_b32 s{sX}, s{sT}, 8", f"s_lshl_b32 s{sWo}, s{sT}, 18", f"s_lshl_b32 s{sEo}, s{sT}, 13")
    k("s_waitcnt lgkmcnt(0)")
    k(srd_tail(SX, 4 * MB), srd_tail(SWQ, 2 * MB))
    k(f"s_cmp_eq_u32 s{sHG}, 0", f"s_cselect_b32 s{SE}, s20, s22", f"s_cselect_b32 s{SE+1}, s21, s23", srd_tail(SE, 0x10000),
      f"s_and_b32 s{sT}, s{sHG}, 3", f"s_cmp_eq_u32 s{sT}, 0", "s_cbranch_scc1 L_k0_ld1")
    for e in range(2):
        k.label(f"L_k0_ld{e}")
        k(f"s_mov_b32 m0, s{sWr}", f"s_add_u32 s{sT}, s{sWr}, s{sBW}", f"buffer_load_dwordx4 v{vX}, s[{SX}:{SX+3}], s{sX} offen{NT} lds",
          f"s_add_u32 m0, s{sWr}, 4096", "s_nop 0", f"buffer_load_dwordx4 v{vX2}, s[{SX}:{SX+3}], s{sX} offen{NT} lds")
        for i in range(4):
            k(f"s_add_u32 m0, s{sT}, {4096*i}", "s_nop 0", f"buffer_load_dwordx4 v{vW[i]}, s[{SWQ}:{SWQ+3}], s{sWo} offen{NT} lds")
        if e:
            k(f"s_add_u32 m0, s{sWr}, 24576", "s_nop 0", f"buffer_load_dwordx4 v{vE}, s[{SE}:{SE+3}], s{sEo} offen{NT} lds",
              f"s_add_u32 s{sEo}, s{sEo}, 4096", f"s_and_b32 s{sEo}, s{sEo}, 0xffff")
        k(f"s_add_u32 s{sWo}, s{sWo}, 0x20000", f"s_and_b32 s{sWo}, s{sWo}, 0x1fffff",
          f"s_add_u32 s{sWr}, s{sWr}, {STG}", f"s_cmp_ge_u32 s{sWr}, {TBL}", f"s_cselect_b32 s{sT}, {TBL}, 0",
          f"s_sub_u32 s{sWr}, s{sWr}, s{sT}", f"s_add_u32 s{sX}, s{sX}, 128", f"s_and_b32 s{sX}, s{sX}, 2047",
          f"s_sub_u32 s{sN}, s{sN}, 1", f"s_cmp_lg_u32 s{sN}, 0")
        k(f"s_waitcnt vmcnt({(6+e)*D})", "s_barrier", f"s_cbranch_scc1 L_k0_ld{e}")
        for d in range(D - 1, -1, -1):
            k(f"s_waitcnt vmcnt({(6+e)*d})", "s_barrier")
        if e == 0:
            k("s_branch L_k0_ldx")
    k.label("L_k0_ldx")
    k(f"s_lshr_b32 s{sT}, s2, 3", f"s_lshl_b32 s{sT}, s{sT}, 11", f"v_and_b32 v{T0}, 255, v0", f"v_lshlrev_b32 v{T0}, 3, v{T0}",
      f"v_add_u32 v{T0}, s{sT}, v{T0}")
    k(f"s_getpc_b64 s[40:41]")
    k.label("L_k0_pc2")
    k("s_add_u32 s40, s40, L_code_rest-L_k0_pc2", "s_addc_u32 s41, s41, 0",
      f"v_min_u32 v{T0}, L_code_end-L_code_rest-4, v{T0}",
      f"global_load_dword v{PF}, v{T0}, s[40:41]" if not OPT.get("nopf") else None)
    k("s_endpgm")
    k.label("L_k0_comp")
    for _ in range(D):
        k("s_barrier")
    k(f"v_bfe_u32 v{R}, v{L}, 2, 2", f"v_and_b32 v{CQ}, 3, v{L}")
    k(f"v_lshrrev_b32 v{T0}, 1, v{TOK}", f"v_xor_b32 v{T0}, v{T0}, v{G}", f"v_lshlrev_b32 v{T0}, 4, v{T0}",
      f"v_lshl_add_u32 v{T0}, v{TOK}, 7, v{T0}",
      f"s_lshl_b32 s{sT}, s{sTH}, 1", f"s_add_u32 s{sT}, s{sT}, s{sCH}", f"s_lshl_b32 s{sT}, s{sT}, 11",
      f"v_add_u32 v{bX[0][0]}, s{sT}, v{T0}",
      f"v_xor_b32 v{bX[0][1]}, 2048, v{bX[0][0]}",
      f"v_xor_b32 v{bX[1][0]}, 64, v{bX[0][0]}",
      f"v_xor_b32 v{bX[1][1]}, 64, v{bX[0][1]}")
    k(f"v_and_b32 v{T2}, 1, v{G}",
      f"v_lshlrev_b32 v{T0}, 2, v{T2}", f"v_xor_b32 v{T0}, v{T0}, v{R}",
      f"s_lshl_b32 s{sT}, s{sCH}, 2", f"s_lshl_b32 s{sT2}, s{sTH}, 1", f"s_add_u32 s{sT}, s{sT}, s{sT2}",
      f"v_xor_b32 v{T0}, s{sT}, v{T0}",
      f"v_lshlrev_b32 v{T0}, 5, v{T0}",
      f"v_lshl_add_u32 v{T0}, v{CQ}, 3, v{T0}",
      f"v_lshl_add_u32 v{T0}, v{R}, 8, v{T0}",
      f"v_lshl_add_u32 v{T0}, v{G}, 11, v{T0}",
      f"v_add_u32 v{bW[0]}, 8192, v{T0}")
    for t in range(1, 4):
        k(f"v_xor_b32 v{bW[t]}, {32*t}, v{bW[0]}")
    k(f"v_xor_b32 v{T0}, s{sCH}, v{T2}", f"v_lshlrev_b32 v{T0}, 5, v{T0}", f"v_lshl_add_u32 v{T0}, v{CQ}, 3, v{T0}",
      f"v_lshl_add_u32 v{T0}, v{R}, 6, v{T0}", f"v_lshl_add_u32 v{T0}, v{G}, 9, v{T0}",
      f"v_add_u32 v{bE}, 24576, v{T0}")
    bases = [(aX[s][i], bX[s][i]) for s in range(2) for i in range(2)] + list(zip(aW, bW)) + [(aE, bE)]
    for a, b in bases:
        k(f"v_mov_b32 v{a}, v{b}")
    for i in range(acc0, acc1):
        k(f"v_mov_b32 v{i}, 0")
    for i in range(4):
        k(f"v_mov_b32 v{ONES+i}, 0x3f803f80")
    k("s_waitcnt lgkmcnt(0)", ws_shift(SWS), srd_tail(SWS, WS_SZ))

    def reads(fi, e):
        o = []
        for s in range(2):
            f = F[fi][s]
            o += [f"ds_read_b128 {vr(f['X'][i],4)}, v{aX[s][i]}" for i in range(2)]
            for t in range(4):
                for j in range(2):
                    o.append(f"ds_read_b64_tr_b16 {vr(f['W'][t]+2*j,2)}, v{aW[t]} offset:{s*8192+j*1024}")
            for j in range(2 * e):
                o.append(f"ds_read_b64_tr_b16 {vr(f['E']+2*j,2)}, v{aE} offset:{s*2048+j*256}")
        return o

    def mfmas(fi, e):
        X = lambda s, i: vr(F[fi][s]["X"][i], 4)
        W = lambda s, t: vr(F[fi][s]["W"][t], 4)
        E = lambda s: vr(F[fi][s]["E"], 4)
        O = vr(ONES, 4)
        o = [m16(vr(sx, 4), O, X(s, 0)) for s in range(2)] + [m16(vr(sxx, 4), X(s, 0), X(s, 0)) for s in range(2)]
        for t in range(4):
            o += [m16(vr(acc[t][i], 4), W(s, t), X(s, i)) for i in range(2) for s in range(2)]
            if t < 2:
                o += [m16(vr(cs[t], 4), W(s, t), O) for s in range(2)]
        if e:
            o += [m16(vr(accE[i], 4), E(s), X(s, i)) for i in range(2) for s in range(2)]
            o += [m16(vr(csE, 4), E(s), O) for s in range(2)]
        return o

    def adv(e):
        va = [f"v_add_u32 v{a}, s{sRd}, v{b}" for a, b in bases[:8 + e]]
        return [[f"s_add_u32 s{sRd}, s{sRd}, {STG}", f"s_cmp_eq_u32 s{sRd}, {TBL}"], [f"s_cselect_b32 s{sRd}, 0, s{sRd}"]] + \
               [va[i:i + 2] for i in range(0, len(va), 2)]
    k(f"s_mov_b32 s{sRd}, 0", f"s_mov_b32 s{sN}, 7", f"s_and_b32 s{sT}, s{sHG}, 3", f"s_cmp_eq_u32 s{sT}, 0")
    k("s_barrier")
    mid_stamp(k, 0)
    k("s_cbranch_scc1 L_k0_c1")
    for e in range(2):
        k.label(f"L_k0_c{e}")
        k(reads(0, e), adv(e), "s_waitcnt lgkmcnt(0)")
        k.label(f"L_k0_loop{e}")
        nr = 12 + 3 * e
        for f in range(2):
            k("s_barrier")
            m = weave(mfmas(f, e), reads(1 - f, e), 0, nr)
            tl = adv(e) + ([[f"s_sub_u32 s{sN}, s{sN}, 1", f"s_cmp_lg_u32 s{sN}, 0"]] if f == 1 else [])
            k(weave(m, tl, len(m) - 10, len(m) - 1))
            k("s_waitcnt lgkmcnt(0)")
        k(f"s_cbranch_scc1 L_k0_loop{e}")
        k("s_barrier")
        k(weave(mfmas(0, e), reads(1, e), 0, nr), "s_waitcnt lgkmcnt(0)", mfmas(1, e))
        if e == 0:
            k("s_branch L_k0_epi")
    k.label("L_k0_epi")
    mid_stamp(k, 1)
    ST = F[0][0]["X"]
    k(f"v_and_b32 v{T0}, 1, v{TOK}", f"v_cmp_eq_u32 vcc, 1, v{T0}", f"v_and_b32 v{T1}, 2, v{TOK}", "s_nop 1",
      f"v_cndmask_b32 v{T0}, v{sxx}, v{sxx+1}, vcc", f"v_cndmask_b32 v{T2}, v{sxx+2}, v{sxx+3}, vcc",
      f"v_cmp_eq_u32 vcc, 2, v{T1}", "s_nop 1",
      f"v_cndmask_b32 v{sx+1}, v{T0}, v{T2}, vcc")
    k(f"s_lshl_b32 s{sT}, s{sTH}, 1", f"s_add_u32 s{sT}, s{sT}, s{sCH}", f"s_lshl_b32 s{sT}, s{sT}, 7", f"s_add_u32 s{sT}, s{sT}, {TBL}",
      f"v_lshl_add_u32 v{T0}, v{TOK}, 3, s{sT}",
      f"s_lshl_b32 s{sT}, s{sCH}, 2", f"s_lshl_b32 s{sT2}, s{sTH}, 1", f"s_add_u32 s{sT}, s{sT}, s{sT2}", f"s_lshl_b32 s{sT}, s{sT}, 6",
      f"s_add_u32 s{sT}, s{sT}, {TBL+512}",
      f"v_lshl_add_u32 v{T1}, v{G}, 4, s{sT}",
      f"ds_write_b128 v{T1}, {vr(cs[0],4)}", f"ds_write_b128 v{T1}, {vr(cs[1],4)} offset:64",
      f"v_cmp_eq_u32 vcc, v{R}, v{G}", "s_and_saveexec_b64 s[42:43], vcc",
      f"ds_write_b64 v{T0}, {vr(sx,2)}", "s_mov_b64 exec, s[42:43]",
      "s_waitcnt lgkmcnt(0)", "s_barrier")
    c2, c3 = F[0][0]["W"][0], F[0][0]["W"][1]
    k(f"v_xor_b32 v{T2}, 128, v{T0}", f"v_xor_b32 v{T1}, 128, v{T1}",
      f"ds_read_b64 {vr(ST[0],2)}, v{T0}", f"ds_read_b64 {vr(ST[1],2)}, v{T2}",
      f"ds_read_b128 {vr(c2,4)}, v{T1}", f"ds_read_b128 {vr(c3,4)}, v{T1} offset:64")
    vQ, vQ1 = vX, vX2
    k(f"v_lshlrev_b32 v{T0}, 9, v{G}", f"v_lshl_add_u32 v{T0}, v{TOK}, 4, v{T0}",
      f"s_lshl_b32 s{sT}, s{sCH}, 8", f"v_add_u32 v{vQ}, s{sT}, v{T0}", f"v_xor_b32 v{vQ1}, 256, v{vQ}")
    sQ0, sQ1, sKV = sX, sWo, sEo
    k(f"s_lshl_b32 s{sT}, s{sTB}, 1", f"s_add_u32 s{sT}, s{sT}, s{sTH}",
      f"s_lshl_b32 s{sT2}, s{sHG}, 2", f"s_lshl_b32 s{sQ0}, s{sCH}, 1", f"s_add_u32 s{sT2}, s{sT2}, s{sQ0}", f"s_add_u32 s{sT2}, s{sT2}, s{sTH}",
      f"s_lshl_b32 s{sQ0}, s{sT2}, 6", f"s_add_u32 s{sQ0}, s{sQ0}, s{sT}", f"s_lshl_b32 s{sQ0}, s{sQ0}, 11",
      f"s_xor_b32 s{sQ1}, s{sQ0}, {1<<17}")
    k("s_waitcnt lgkmcnt(0)")
    for i in range(2):
        s = ST[i]
        k(f"v_mul_f32 v{s}, {f32(1/1024)}, v{s}",
          f"v_mul_f32 v{s+1}, {f32(1/1024)}, v{s+1}",
          f"v_fma_f32 v{s+1}, -v{s}, v{s}, v{s+1}",
          f"v_max_f32 v{s+1}, 0, v{s+1}",
          f"v_add_f32 v{s+1}, {f32(EPS)}, v{s+1}",
          f"v_rsq_f32 v{s+2}, v{s+1}", "s_nop 0",
          f"v_mul_f32 v{s+3}, v{s}, v{s+2}",
          f"v_sub_f32 v{s+3}, 0, v{s+3}",
          f"v_mul_f32 v{s}, {f32(QSCALE)}, v{s+2}",
          f"v_mul_f32 v{s+1}, {f32(QSCALE)}, v{s+3}")
    k(f"s_and_b32 s{sT}, s{sHG}, 3", f"s_cmp_lg_u32 s{sT}, 0", "s_cbranch_scc1 L_k0_q")
    o = F[1][0]["E"]
    for i in range(2):
        a = accE[i]
        for r in range(4):
            k(f"v_mul_f32 v{a+r}, v{ST[i]+2}, v{a+r}", f"v_fmac_f32 v{a+r}, v{ST[i]+3}, v{csE+r}")
        k(f"v_cvt_pk_bf16_f32 v{o+2*i}, v{a}, v{a+1}", f"v_cvt_pk_bf16_f32 v{o+2*i+1}, v{a+2}, v{a+3}")
    k(f"s_lshl_b32 s{sKV}, s{sTB}, 1", f"s_add_u32 s{sKV}, s{sKV}, s{sCH}", f"s_lshl_b32 s{sKV}, s{sKV}, 12",
      f"s_lshl_b32 s{sT}, s{sTH}, 10", f"s_add_u32 s{sKV}, s{sKV}, s{sT}", f"s_add_u32 s{sKV}, s{sKV}, {KVF}",
      f"s_lshl_b32 s{sT}, s{sTH}, 11", f"s_cmp_lg_u32 s{sHG}, 0", "s_cbranch_scc1 L_k0_v")
    k(f"s_lshl_b32 s{sT2}, s{sCH}, 3", f"s_add_u32 s{sT}, s{sT}, s{sT2}",
      f"v_add_u32 v{T0}, s{sT}, v{vQ}", f"v_add_u32 v{T1}, s{sT}, v{vQ1}",
      f"ds_write_b64 v{T0}, {vr(o,2)}", f"ds_write_b64 v{T1}, {vr(o+2,2)}", "s_branch L_k0_kv")
    k.label("L_k0_v")
    k(f"v_and_b32 v{T0}, 1, v{G}", f"v_lshlrev_b32 v{T0}, 7, v{T0}", f"v_lshrrev_b32 v{T1}, 1, v{G}", f"v_lshl_add_u32 v{T0}, v{T1}, 6, v{T0}",
      f"v_bfe_u32 v{T1}, v{L}, 3, 1", f"v_lshl_add_u32 v{T0}, v{T1}, 9, v{T0}", f"v_and_b32 v{T1}, 7, v{L}", f"v_lshl_add_u32 v{T0}, v{T1}, 1, v{T0}",
      f"s_mul_i32 s{sT2}, s{sCH}, 1280", f"s_add_u32 s{sT}, s{sT}, s{sT2}", f"v_add_u32 v{T0}, s{sT}, v{T0}", f"v_xor_b32 v{T1}, 1024, v{T0}",
      f"s_add_u32 s{sKV}, s{sKV}, 2048")
    for i in range(2):
        for r in range(4):
            op = "ds_write_b16" if r % 2 == 0 else "ds_write_b16_d16_hi"
            k(f"{op} v{[T0,T1][i]}, v{o+2*i+r//2} offset:{16*r}")
    k.label("L_k0_kv")
    k("s_waitcnt lgkmcnt(0)", "s_barrier", f"v_lshlrev_b32 v{T0}, 4, v0", f"ds_read_b128 {vr(o,4)}, v{T0}", f"v_lshlrev_b32 v{T0}, 4, v{L}",
      "s_waitcnt lgkmcnt(0)", f"buffer_store_dwordx4 {vr(o,4)}, v{T0}, s[{SWS}:{SWS+3}], s{sKV} offen sc1")
    k.label("L_k0_q")
    csr = [cs[0], cs[1], c2, c3]
    OUTR = F[1][0]["W"]
    for p in range(2):
        for i in range(2):
            o = OUTR[2 * p + i]
            for jt in range(2):
                t = 2 * p + jt
                a = acc[t][i]
                for r in range(4):
                    k(f"v_mul_f32 v{a+r}, v{ST[i]}, v{a+r}", f"v_fmac_f32 v{a+r}, v{ST[i]+1}, v{csr[t]+r}")
                k(f"v_cvt_pk_bf16_f32 v{o+2*jt}, v{a}, v{a+1}", f"v_cvt_pk_bf16_f32 v{o+2*jt+1}, v{a+2}, v{a+3}")
            k(f"buffer_store_dwordx4 {vr(o,4)}, v{[vQ,vQ1][i]}, s[{SWS}:{SWS+3}], s{[sQ0,sQ1][p]} offen sc1")
    tail(k, 0, sW)
    return k


def k1_attn():
    SLOT = 32768
    JB = 3 * SLOT
    k = Kern("attn_kernel", 256, 512, JB + 16384)
    SWS, SKV, SJ = 4, 8, 12
    (sW, sTB, sHG, sC, sT, sT2, sRd, sWr, sKo, sJo, sJa, sJb, sGW, sStr, sDstep, sOo) = range(32, 48)
    sD = [50, 51, 52, 53]
    sCs = [58, 59, 60, 61]
    sDB, sBsz, sWrJ = 62, 63, 64
    v = Alloc(1)
    L, T0, T1, T2, vLin, vRd, IDX = [v() for _ in range(7)]
    Q = [v(8, 4) for _ in range(2)]
    S = [v(16, 4) for _ in range(4)]
    O = [v(16, 4) for _ in range(2)]
    LS = [v(4, 4) for _ in range(2)]
    KB = [v(8, 4) for _ in range(2)]
    VB = [v(8, 4) for _ in range(2)]
    SUMA = v(4, 4)
    k.vgpr = k.acc = (v.n + 7) // 8 * 8
    h = Alloc(8)
    vJ, vJB, vCs = h(), h(), h()
    aJ = [h() for _ in range(4)]
    bJ = [h() for _ in range(2)]
    JF = [h(4, 4) for _ in range(4)]
    CS = [h(4, 4) for _ in range(4)]
    ONES = h(4, 4)
    head(k)
    k(f"s_load_dwordx2 s[{SWS}:{SWS+1}], s[0:1], {A_WS}",
      f"s_load_dwordx2 s[20:21], s[0:1], {A_WO}",
      f"s_load_dwordx4 s[24:27], s[0:1], {A_WG}",
      f"s_load_dwordx2 s[28:29], s[0:1], {A_WD}")
    k(f"v_lshrrev_b32 v{T1}, 6, v0", f"v_and_b32 v{L}, 63, v0", f"v_readfirstlane_b32 s{sW}, v{T1}", f"v_lshlrev_b32 v{vLin}, 4, v{L}")
    k("s_nop 1", f"s_cmp_lt_u32 s{sW}, 4", "s_cbranch_scc1 L_k1_comp")
    k(f"s_and_b32 s{sW}, s{sW}, 3", f"s_lshl_b32 s{sKo}, s{sW}, 13", f"s_mov_b32 s{sWr}, s{sKo}")
    k("s_waitcnt lgkmcnt(0)", ws_shift(SWS))
    k(srd_from(SKV, SWS, KVF, 262144))

    def kv_dma(c):
        o = []
        for hh in range(2):
            o += [f"s_add_u32 m0, s{sWr}, {(c%3)*SLOT+4096*hh}", "s_nop 0"]
            for i in range(4):
                o.append(f"buffer_load_dwordx4 v{vLin}, s[{SKV}:{SKV+3}], s{sKo} offen offset:{1024*i} lds")
            o.append(f"s_add_u32 s{sKo}, s{sKo}, {4096 if hh == 0 else 32768-4096}")
        return o
    k(kv_dma(0), kv_dma(1), srd_tail(SWS, WS_SZ))
    k(f"s_lshl_b32 s{sGW}, s2, 2", f"s_add_u32 s{sGW}, s{sGW}, s{sW}",
      f"s_lshl_b32 s{sWrJ}, s{sW}, 12", f"s_add_u32 s{sWrJ}, s{sWrJ}, {JB}")
    k(f"v_lshrrev_b32 v{T0}, 4, v{L}", f"v_lshlrev_b32 v{T0}, 10, v{T0}", f"v_bfe_u32 v{T1}, v{L}, 2, 2", f"v_lshl_add_u32 v{T0}, v{T1}, 7, v{T0}",
      f"v_bfe_u32 v{T1}, v{L}, 3, 1", f"v_lshl_add_u32 v{T0}, v{T1}, 6, v{T0}", f"v_add_u32 v{T0}, s{sWrJ}, v{T0}", f"v_and_b32 v{T1}, 3, v{L}",
      f"v_lshl_add_u32 v{bJ[0]}, v{T1}, 4, v{T0}", f"v_xor_b32 v{bJ[1]}, 64, v{bJ[0]}")
    strip, kb0, mat = 66, 67, 68
    k(f"s_lshr_b32 s{strip}, s{sGW}, 3", f"s_and_b32 s{kb0}, s{sGW}, 7", f"s_lshl_b32 s{kb0}, s{kb0}, 2",
      f"s_cmp_ge_u32 s{strip}, 112", "s_cbranch_scc1 L_k1_wo")
    k(f"s_cmp_ge_u32 s{strip}, 56", f"s_cselect_b32 s{mat}, 1, 0",
      f"s_cselect_b32 s{SJ}, s26, s24", f"s_cselect_b32 s{SJ+1}, s27, s25",
      f"s_mul_i32 s{sT}, s{mat}, 56", f"s_sub_u32 s{strip}, s{strip}, s{sT}",
      f"s_mov_b32 s{SJ+2}, {1024*7168}", f"s_mov_b32 s{sStr}, 7168", f"s_mov_b32 s{sDstep}, {14*1024}",
      f"s_mov_b32 s{sBsz}, {3584*2048}",
      f"v_lshl_add_u32 v{aJ[0]}, v{T1}, 3, v{T0}")
    for i in range(1, 4):
        k(f"v_xor_b32 v{aJ[i]}, {32*i}, v{aJ[0]}")
    for i in range(4):
        T, fb, pos = 69, 70, 71
        k(f"s_lshl_b32 s{T}, s{strip}, 2", f"s_add_u32 s{T}, s{T}, {i}",
          f"s_mul_i32 s{fb}, s{T}, 9363", f"s_lshr_b32 s{fb}, s{fb}, 16",
          f"s_sub_u32 s{pos}, s{mat}, s{fb}", f"s_mul_i32 s{pos}, s{pos}, 7", f"s_add_u32 s{pos}, s{T}, s{pos}",
          f"s_lshl_b32 s{sT}, s{fb}, 5", f"s_add_u32 s{sT}, s{sT}, s{kb0}", f"s_mul_i32 s{sT}, s{sT}, 14",
          f"s_add_u32 s{sT}, s{sT}, s{pos}", f"s_lshl_b32 s{sT}, s{sT}, 10", f"s_add_u32 s{sD[i]}, s{sT}, {WGU}",
          f"s_lshl_b32 s{sT}, s{kb0}, 3", f"s_add_u32 s{sT}, s{sT}, s{fb}", f"s_mul_i32 s{sT}, s{sT}, 14",
          f"s_add_u32 s{sT}, s{sT}, s{pos}", f"s_lshl_b32 s{sT}, s{sT}, 6", f"s_add_u32 s{sCs[i]}, s{sT}, {CSP}")
    k("s_branch L_k1_jp")
    k.label("L_k1_wo")
    k(f"s_sub_u32 s{strip}, s{strip}, 112", f"s_mov_b32 s{SJ}, s20", f"s_mov_b32 s{SJ+1}, s21",
      f"s_mov_b32 s{SJ+2}, {2*MB}", f"s_mov_b32 s{sStr}, 2048", f"s_mov_b32 s{sDstep}, 8192", f"s_mov_b32 s{sBsz}, 0",
      f"s_lshr_b32 s{sT}, s{strip}, 1", f"s_lshl_b32 s{sT}, s{sT}, 5", f"s_add_u32 s{sT}, s{sT}, s{kb0}", f"s_lshl_b32 s{sT}, s{sT}, 1",
      f"s_and_b32 s{sT2}, s{strip}, 1", f"s_add_u32 s{sT}, s{sT}, s{sT2}", f"s_lshl_b32 s{sT}, s{sT}, 12")
    for i in range(4):
        k(f"s_add_u32 s{sD[i]}, s{sT}, {WOF+1024*i}", f"s_mov_b32 s{sCs[i]}, {OOB}", f"v_add_u32 v{aJ[i]}, {8*(i&1)}, v{bJ[i>>1]}")
    k.label("L_k1_jp")
    k(f"s_mov_b32 s{SJ+3}, 0x00020000")
    k(f"v_lshrrev_b32 v{T0}, 3, v{L}", f"v_bfe_u32 v{T1}, v{L}, 4, 1", f"v_lshlrev_b32 v{T1}, 2, v{T1}",
      f"v_and_b32 v{T2}, 7, v{L}", f"v_xor_b32 v{T1}, v{T1}, v{T2}", f"v_lshlrev_b32 v{T1}, 4, v{T1}",
      f"v_mul_lo_u32 v{vJ}, v{T0}, s{sStr}", f"v_lshl_add_u32 v{vJB}, v{T0}, 11, v{T1}", f"v_add_u32 v{vJ}, v{vJ}, v{T1}",
      f"s_lshl_b32 s{sT}, s{kb0}, 5", f"s_mul_i32 s{sT}, s{sT}, s{sStr}", f"s_lshl_b32 s{sT2}, s{strip}, 7", f"s_add_u32 s{sT}, s{sT}, s{sT2}",
      f"v_add_u32 v{vJ}, s{sT}, v{vJ}",
      f"s_lshl_b32 s{sT}, s{sStr}, 3", f"s_sub_u32 s{sJa}, s{sT}, 1024", f"s_add_u32 s{sJb}, s{sT}, 3072", f"s_mov_b32 s{sJo}, 0")
    k(f"s_mul_i32 s{strip}, s{sGW}, 1171", f"s_lshr_b32 s{strip}, s{strip}, 16",
      f"s_mul_i32 s{sT}, s{strip}, 56", f"s_sub_u32 s{kb0}, s{sGW}, s{sT}", f"s_lshl_b32 s{kb0}, s{kb0}, 1",
      f"s_lshl_b32 s{sT}, s{kb0}, 16", f"s_lshl_b32 s{sT2}, s{strip}, 7", f"s_add_u32 s{sT}, s{sT}, s{sT2}",
      f"v_add_u32 v{vJB}, s{sT}, v{vJB}",
      f"s_lshr_b32 s{sT}, s{strip}, 1", f"s_mul_i32 s{sT}, s{sT}, 112", f"s_add_u32 s{sT}, s{sT}, s{kb0}", f"s_lshl_b32 s{sT}, s{sT}, 1",
      f"s_and_b32 s{sT2}, s{strip}, 1", f"s_add_u32 s{sT}, s{sT}, s{sT2}", f"s_lshl_b32 s{sT}, s{sT}, 12",
      f"s_add_u32 s{sDB}, s{sT}, {WDF}", f"s_cmp_eq_u32 s{sBsz}, 0", f"s_cselect_b32 s{sDB}, {OOB}, s{sDB}")
    k(f"v_and_b32 v{T0}, 15, v{L}", f"v_cmp_eq_u32 vcc, 0, v{T0}", f"v_mov_b32 v{T1}, {OOB}", "s_nop 0",
      f"v_cndmask_b32 v{vCs}, v{T1}, v{L}, vcc")
    for i in range(4):
        k(f"v_mov_b32 v{ONES+i}, 0x3f803f80")
    k("s_waitcnt vmcnt(8)", "s_barrier")
    vm = []

    def wait_for(tag):
        n = len(vm) - 1 - max(i for i, t in enumerate(vm) if t == tag)
        return f"s_waitcnt vmcnt({n})"
    vm += ["kv1"] * 8
    for c in range(8):
        if c + 2 < 8:
            k(kv_dma(c + 2)); vm += [f"kv{c+2}"] * 8
        j = c - 1
        proc = 0 <= j < 6 and not OPT.get("nojob")
        if proc:
            k(wait_for(f"j{j}"))
            for f in range(4):
                for jj in range(2):
                    if j < 4:
                        k(f"ds_read_b64_tr_b16 {vr(JF[f]+2*jj,2)}, v{aJ[f]} offset:{jj*512}")
                    else:
                        k(f"ds_read_b64_tr_b16 {vr(JF[f]+2*jj,2)}, v{bJ[f>>1]} offset:{jj*512+(f&1)*8}")
            k("s_waitcnt lgkmcnt(0)")
        if c < 6 and not OPT.get("nojob"):
            if c == 4:
                k(f"s_mov_b32 s{SJ}, s28", f"s_mov_b32 s{SJ+1}, s29", f"s_mov_b32 s{SJ+2}, s{sBsz}",
                  f"s_mov_b32 s{sJo}, 0", f"s_mov_b32 s{sJa}, {16384-1024}", f"s_mov_b32 s{sJb}, {16384+3072}")
            k(f"s_mov_b32 m0, s{sWrJ}", "s_nop 0")
            for i in range(4):
                k(f"buffer_load_dwordx4 v{vJ if c < 4 else vJB}, s[{SJ}:{SJ+3}], s{sJo} offen offset:{1024*i}{' nt' if OPT.get('jnt', 1) else ''} lds",
                  f"s_add_u32 s{sJo}, s{sJo}, s{sJa if i < 3 else sJb}")
            vm += [f"j{c}"] * 4
        if proc:
            for f in range(4):
                if j < 4:
                    k(f"buffer_store_dwordx4 {vr(JF[f],4)}, v{vLin}, s[{SWS}:{SWS+3}], s{sD[f]} offen sc1",
                      f"s_add_u32 s{sD[f]}, s{sD[f]}, s{sDstep}",
                      m16(vr(CS[f], 4), vr(JF[f], 4), vr(ONES, 4), "0" if j == 0 else None))
                else:
                    k(f"buffer_store_dwordx4 {vr(JF[f],4)}, v{vLin}, s[{SWS}:{SWS+3}], s{sDB} offen offset:{1024*f} sc1")
            vm += ["st"] * 4
            if j == 4:
                k(f"s_add_u32 s{sDB}, s{sDB}, 8192")
                for f in range(4):
                    k(f"buffer_store_dwordx4 {vr(CS[f],4)}, v{vCs}, s[{SWS}:{SWS+3}], s{sCs[f]} offen sc1")
                vm += ["st"] * 4
        if c + 1 < 8:
            k(wait_for(f"kv{c+1}"), "s_barrier")
    k("s_endpgm")
    k.label("L_k1_comp")
    ids_8x4(k, sHG, sTB, sT)
    k(f"s_lshl_b32 s{sT}, s{sHG}, 2", f"s_add_u32 s{sT}, s{sT}, s{sW}",
      f"s_lshl_b32 s{sOo}, s{sTB}, 5", f"s_add_u32 s{sOo}, s{sOo}, s{sT}", f"s_lshl_b32 s{sOo}, s{sOo}, 12", f"s_add_u32 s{sOo}, s{sOo}, {OF}",
      f"s_lshl_b32 s{sT}, s{sT}, 17", f"s_lshl_b32 s{sT2}, s{sTB}, 12", f"s_add_u32 s{sT}, s{sT}, s{sT2}")
    k("s_waitcnt lgkmcnt(0)", ws_shift(SWS))
    k(srd_tail(SWS, WS_SZ))
    for q in range(2):
        for m in range(2):
            k(f"buffer_load_dwordx4 {vr(Q[q]+4*m,4)}, v{vLin}, s[{SWS}:{SWS+3}], s{sT} offen offset:{2048*q+1024*m}")
    k(srd_from(SKV, SWS, KVF, 262144))
    k(f"v_and_b32 v{T0}, 7, v{L}", f"v_mov_b32 v{T1}, 0x3f803f80", f"v_cmp_eq_u32 vcc, 0, v{T0}", f"v_mov_b32 v{vRd}, v{vLin}", f"v_mov_b32 v{IDX}, 0xdddd",
      f"v_cndmask_b32 v{SUMA}, 0, v{T1}, vcc", f"v_cndmask_b32 v{SUMA+1}, 0, v{T1}, vcc",
      f"v_cmp_eq_u32 vcc, 4, v{T0}", "s_nop 1",
      f"v_cndmask_b32 v{SUMA+2}, 0, v{T1}, vcc", f"v_cndmask_b32 v{SUMA+3}, 0, v{T1}, vcc")
    for r0, n in ((O[0], 16), (O[1], 16), (LS[0], 4), (LS[1], 4), (S[3], 16), (VB[1], 8)):
        for i in range(n):
            k(f"v_mov_b32 v{r0+i}, 0")
    k(f"s_mov_b32 s{sRd}, 0", f"s_mov_b32 s{sC}, 8")
    k("s_waitcnt vmcnt(0)", "s_barrier")
    mid_stamp(k, 0)
    rdK = lambda t: [f"ds_read_b128 {vr(KB[t&1]+4*m,4)}, v{vRd} offset:{(t%8)*4096+1024*m}" for m in range(2)]
    rdV = lambda t: [f"ds_read_b128 {vr(VB[t&1]+4*m,4)}, v{vRd} offset:{(t%8)*4096+2048+1024*m}" for m in range(2)]
    qk = lambda u, c="0": [m32(vr(S[u % 4], 16), vr(KB[(u >> 1) & 1], 4), vr(Q[u & 1], 4), c),
                           m32(vr(S[u % 4], 16), vr(KB[(u >> 1) & 1] + 4, 4), vr(Q[u & 1] + 4, 4))]
    pv = lambda u: [f"v_smfmac_f32_32x32x32_bf16 {vr(O[u&1],16)}, {vr(VB[(u>>1)&1]+4*m,4)}, {vr(S[u%4]+8*m,8)}, v{IDX}" for m in range(2)]
    sm = lambda u: [f"v_smfmac_f32_16x16x64_bf16 {vr(LS[u&1],4)}, {vr(SUMA,4)}, {vr(S[u%4]+8*m,8)}, v{IDX}" for m in range(2)]
    k(rdK(0), rdV(0), "s_waitcnt lgkmcnt(0)", qk(0), "s_nop 7", "s_nop 3")
    k(".p2align 6")
    k.label("L_k1_loop")
    for u in range(16):
        ex = [f"v_exp_f32 v{S[u%4]+i}, v{S[u%4]+i}" for i in range(16)]
        mf = qk(u + 1) + pv(u - 1) + sm(u - 1)
        sl = [[] for _ in range(6)]
        t = u >> 1
        rd = rdK(t + 1) if u % 2 == 0 else rdV(t + 1)
        if u == 13:
            sl[2] += [f"s_add_u32 s{sRd}, s{sRd}, {SLOT}"]
            sl[3] += [f"s_cmp_eq_u32 s{sRd}, {3*SLOT}"]
            sl[4] += [f"s_cselect_b32 s{sRd}, 0, s{sRd}"]
            sl[5] += ["s_waitcnt lgkmcnt(0)", f"v_add_u32 v{vRd}, s{sRd}, v{vLin}"]
        if u == 14:
            sl[0] += ["s_barrier"]
            sl[1].append(rd[0]); sl[2].append(rd[1])
        else:
            sl[0].append(rd[0]); sl[1].append(rd[1])
        if u == 15:
            sl[2] += [f"s_sub_u32 s{sC}, s{sC}, 1"]
            sl[3] += [f"s_cmp_lg_u32 s{sC}, 0"]
        if u % 2 == 0:
            sl[5].append("s_waitcnt lgkmcnt(0)")
        cuts = [0, 3, 6, 9, 12, 14, 16]
        for i in range(6):
            k(mf[i], sl[i], ex[cuts[i]:cuts[i + 1]])
    k("s_cbranch_scc1 L_k1_loop")
    mid_stamp(k, 1)
    k("s_nop 1", pv(15), sm(15))
    vO = vRd
    k(f"v_bfe_u32 v{T0}, v{L}, 4, 1", f"v_lshlrev_b32 v{T0}, 10, v{T0}", f"v_lshrrev_b32 v{T1}, 5, v{L}", f"v_lshl_add_u32 v{T0}, v{T1}, 8, v{T0}",
      f"v_and_b32 v{T1}, 15, v{L}", f"v_lshl_add_u32 v{vO}, v{T1}, 4, v{T0}")
    k("s_nop 15", "s_waitcnt lgkmcnt(0)")
    k(f"v_maximum3_f32 v{T0}, abs(v{O[0]}), abs(v{O[0]+1}), v{LS[0]}", f"v_maximum3_f32 v{T1}, abs(v{O[1]}), abs(v{O[1]+1}), v{LS[1]}")
    for i in range(2, 16, 2):
        k(f"v_maximum3_f32 v{T0}, abs(v{O[0]+i}), abs(v{O[0]+i+1}), v{T0}", f"v_maximum3_f32 v{T1}, abs(v{O[1]+i}), abs(v{O[1]+i+1}), v{T1}")
    k(f"v_maximum3_f32 v{T0}, v{T0}, v{T1}, v{T1}", f"v_min_f32 v{T1}, v{LS[0]}, v{LS[1]}",
      f"v_cmp_nge_f32 vcc, {f32(2.0**100)}, v{T0}", f"s_mov_b64 s[70:71], vcc",
      f"v_cmp_nle_f32 vcc, {f32(2.0**-80)}, v{T1}", f"s_or_b64 s[70:71], s[70:71], vcc")
    if OPT["force_slow"]:
        k("s_branch L_k1_slow")
    k("s_cbranch_scc1 L_k1_slow")
    k.label("L_k1_out")
    k(f"v_rcp_f32 v{T0}, v{LS[0]}", f"v_rcp_f32 v{T1}, v{LS[1]}", "s_nop 0")
    for q in range(2):
        for m in range(2):
            o = S[0] + 8 * q + 4 * m
            for i in range(8):
                k(f"v_mul_f32 v{O[q]+8*m+i}, v{[T0,T1][q]}, v{O[q]+8*m+i}")
            for i in range(4):
                k(f"v_cvt_pk_bf16_f32 v{o+i}, v{O[q]+8*m+2*i}, v{O[q]+8*m+2*i+1}")
            k(f"buffer_store_dwordx4 {vr(o,4)}, v{vO}, s[{SWS}:{SWS+3}], s{sOo} offen offset:{2048*q+512*m} sc1")
    k("s_branch L_k1_done")
    k.label("L_k1_slow")
    C = [S[2], S[3]]
    ldK = [f"buffer_load_dwordx4 {vr(KB[0]+4*m,4)}, v{vLin}, s[{SKV}:{SKV+3}], s{sKo} offen offset:{1024*m}" for m in range(2)]
    ldV = [f"buffer_load_dwordx4 {vr(VB[0]+4*m,4)}, v{vLin}, s[{SKV}:{SKV+3}], s{sKo} offen offset:{2048+1024*m}" for m in range(2)]
    k(f"v_mov_b32 v{T0}, 0xff800000", f"v_mov_b32 v{T1}, 0xff800000", f"s_mov_b32 s{sKo}, 0")
    k.label("L_k1_s1")
    k(ldK, "s_waitcnt vmcnt(0)", qk(0), qk(1), "s_nop 15")
    for q in range(2):
        for i in range(0, 16, 2):
            k(f"v_max3_f32 v{[T0,T1][q]}, v{S[q]+i}, v{S[q]+i+1}, v{[T0,T1][q]}")
    k(f"s_add_u32 s{sKo}, s{sKo}, 4096", f"s_cmp_lt_u32 s{sKo}, 262144", "s_cbranch_scc1 L_k1_s1")
    for q in range(2):
        t = [T0, T1][q]
        k(f"v_mov_b32 v{T2}, v{t}", "s_nop 1", f"v_permlane32_swap_b32 v{t}, v{T2}", "s_nop 1", f"v_max_f32 v{t}, v{t}, v{T2}")
        for i in range(16):
            k(f"v_sub_f32 v{C[q]+i}, 0, v{t}", f"v_mov_b32 v{O[q]+i}, 0")
        for i in range(4):
            k(f"v_mov_b32 v{LS[q]+i}, 0")
    k(f"s_mov_b32 s{sKo}, 0")
    k.label("L_k1_s2")
    k(ldK, ldV, "s_waitcnt vmcnt(0)", qk(0, vr(C[0], 16)), qk(1, vr(C[1], 16)), "s_nop 15")
    for q in range(2):
        for i in range(16):
            k(f"v_exp_f32 v{S[q]+i}, v{S[q]+i}")
    k("s_nop 1", pv(0), sm(0), pv(1), sm(1))
    k(f"s_add_u32 s{sKo}, s{sKo}, 4096", f"s_cmp_lt_u32 s{sKo}, 262144", "s_cbranch_scc1 L_k1_s2")
    k("s_nop 15", "s_nop 7", "s_branch L_k1_out")
    k.label("L_k1_done")
    tail(k, 1, sW)
    return k


def k_gemm(name, kidx, K, tok_region, w_region, is_down):
    D = OPT.get("gd", 4)
    STG, NS = 24576, D + 2
    N = K // 64
    k = Kern(name, 256, 512, STG * NS)
    SWS, ST_, SW_, SR, SO = 4, 8, 12, 16, 20
    sW, sTB, sNB, sN, sT, sT2, sRd, sWr, sTo, sWo, sTH, sCH, sRes, sDW = range(28, 42)
    v = Alloc(1)
    L, G, TOK, T0, T1, vLin, bT, bW, aT, aW, vRow = [v() for _ in range(11)]
    F = [[dict(X=[v(4, 4) for _ in range(2)], W=[v(4, 4) for _ in range(4)]) for s in range(2)] for _ in range(2)]
    acc = [[v(4, 4) for i in range(2)] for t in range(4)]
    RES = [[v(4, 4) for b in range(2)] for i in range(2)]
    k.vgpr = k.acc = (v.n + 7) // 8 * 8
    head(k)
    k(f"s_load_dwordx2 s[{SWS}:{SWS+1}], s[0:1], {A_WS}",
      f"s_load_dwordx2 s[{SO}:{SO+1}], s[0:1], {A_OUT if is_down else A_X}")
    k(f"v_lshrrev_b32 v{T1}, 6, v0", f"v_and_b32 v{L}, 63, v0", f"v_readfirstlane_b32 s{sW}, v{T1}", f"v_lshlrev_b32 v{vLin}, 4, v{L}")
    ids_8x4(k, sNB, sTB, sT)
    k(f"s_cmp_lt_u32 s{sW}, 4", f"s_cbranch_scc1 L_{name}_comp")
    k(f"s_and_b32 s{sW}, s{sW}, 3",
      f"s_lshl_b32 s{sTo}, s{sW}, 11", f"s_lshl_b32 s{sWo}, s{sW}, 12", f"s_mov_b32 s{sWr}, s{sTo}",
      f"s_add_u32 s{sDW}, s{sTo}, 8192")
    rot = K == 1024 and OPT.get("rot", 1)
    if rot:
        k(f"s_lshl_b32 s{sT}, s{sNB}, 1", f"s_add_u32 s{sT}, s{sT}, s{sTB}", f"s_and_b32 s{sT}, s{sT}, 7",
          f"s_lshl_b32 s{sT2}, s{sT}, 14", f"s_add_u32 s{sTo}, s{sTo}, s{sT2}", f"s_lshl_b32 s{sT2}, s{sT}, 15", f"s_add_u32 s{sWo}, s{sWo}, s{sT2}")
    k(f"s_mul_i32 s{sT}, s{sTB}, {K*128}", f"s_add_u32 s{sT}, s{sT}, {tok_region}",
      f"s_mul_i32 s{sT2}, s{sNB}, {K*256}", f"s_add_u32 s{sT2}, s{sT2}, {w_region}")
    k("s_waitcnt lgkmcnt(0)", ws_shift(SWS))
    k(srd_from(ST_, SWS, f"s{sT}", K * 128), srd_from(SW_, SWS, f"s{sT2}", K * 256))

    def dma_stage():
        o = [f"s_mov_b32 m0, s{sWr}", "s_nop 0"]
        for i in range(2):
            o.append(f"buffer_load_dwordx4 v{vLin}, s[{ST_}:{ST_+3}], s{sTo} offen offset:{1024*i} lds")
        o += [f"s_add_u32 m0, s{sWr}, s{sDW}", f"s_add_u32 s{sTo}, s{sTo}, 8192"]
        for i in range(4):
            o.append(f"buffer_load_dwordx4 v{vLin}, s[{SW_}:{SW_+3}], s{sWo} offen offset:{1024*i} lds")
        o += [f"s_add_u32 s{sWo}, s{sWo}, 16384", f"s_add_u32 s{sWr}, s{sWr}, {STG}", f"s_cmp_ge_u32 s{sWr}, {STG*NS}",
              f"s_cselect_b32 s{sT}, {STG*NS}, 0", f"s_sub_u32 s{sWr}, s{sWr}, s{sT}"]
        if rot:
            o += [f"s_and_b32 s{sTo}, s{sTo}, {K*128-1}", f"s_and_b32 s{sWo}, s{sWo}, {K*256-1}"]
        return o
    k(f"s_mov_b32 s{sN}, {N}")
    k.label(f"L_{name}_ld")
    k(dma_stage())
    k(f"s_sub_u32 s{sN}, s{sN}, 1", f"s_cmp_lg_u32 s{sN}, 0")
    k(f"s_waitcnt vmcnt({6*D})", "s_barrier", f"s_cbranch_scc1 L_{name}_ld")
    for d in range(D - 1, -1, -1):
        k(f"s_waitcnt vmcnt({6*d})", "s_barrier")
    if is_down:
        k("s_endpgm")
    else:
        hop(k, sW)
    k.label(f"L_{name}_comp")
    k(f"s_and_b32 s{sTH}, s{sW}, 1", f"s_lshr_b32 s{sCH}, s{sW}, 1")
    k(f"v_lshrrev_b32 v{G}, 4, v{L}", f"v_and_b32 v{TOK}, 15, v{L}",
      f"v_lshlrev_b32 v{T0}, 11, v{TOK}", f"v_lshl_add_u32 v{T0}, v{G}, 4, v{T0}",
      f"s_lshl_b32 s{sN}, s{sTB}, 1", f"s_add_u32 s{sN}, s{sN}, s{sTH}", f"s_lshl_b32 s{sN}, s{sN}, 16",
      f"s_lshl_b32 s{sRes}, s{sNB}, 1", f"s_add_u32 s{sRes}, s{sRes}, s{sCH}", f"s_lshl_b32 s{sRd}, s{sRes}, 7",
      f"s_add_u32 s{sN}, s{sN}, s{sRd}", f"v_add_u32 v{vRow}, s{sN}, v{T0}")
    k(f"s_lshl_b32 s{sRes}, s{sRes}, 13", f"s_lshl_b32 s{sN}, s{sTB}, 17", f"s_add_u32 s{sRes}, s{sRes}, s{sN}",
      f"s_lshl_b32 s{sN}, s{sTH}, 11", f"s_add_u32 s{sRes}, s{sRes}, s{sN}", f"s_add_u32 s{sRes}, s{sRes}, {HF}")
    k(f"s_lshl_b32 s{sT}, s{sTH}, 11", f"v_add_u32 v{bT}, s{sT}, v{vLin}",
      f"s_lshl_b32 s{sT}, s{sCH}, 12", f"s_add_u32 s{sT}, s{sT}, 8192", f"v_add_u32 v{bW}, s{sT}, v{vLin}",
      f"v_mov_b32 v{aT}, v{bT}", f"v_mov_b32 v{aW}, v{bW}")
    k("s_waitcnt lgkmcnt(0)", ws_shift(SWS))
    k(srd_tail(SWS, WS_SZ), srd_tail(SO, 4 * MB))
    for _ in range(NS - 2):
        k("s_barrier")
    k(f"s_add_u32 s{sT2}, s{sRes}, 4096", f"s_mov_b32 s{sN}, 32768")
    for i in range(2):
        for b in range(2):
            if is_down:
                k(f"buffer_load_dwordx4 {vr(RES[i][b],4)}, v{vLin}, s[{SWS}:{SWS+3}], s{[sRes,sT2][b]} offen offset:{1024*i}")
            else:
                k(f"buffer_load_dwordx4 {vr(RES[i][b],4)}, v{vRow}, s[{SO}:{SO+3}], {['0', f's{sN}'][i]} offen offset:{64*b}{' nt' if OPT.get('jnt', 1) else ''}")
    for t in range(4):
        for i in range(2):
            for r in range(4):
                k(f"v_mov_b32 v{acc[t][i]+r}, 0")

    def reads(f):
        o = []
        for s in range(2):
            o += [f"ds_read_b128 {vr(F[f][s]['X'][i],4)}, v{aT} offset:{s*4096+i*1024}" for i in range(2)]
            o += [f"ds_read_b128 {vr(F[f][s]['W'][t],4)}, v{aW} offset:{s*8192+t*1024}" for t in range(4)]
        return o

    def mfmas(f):
        return [m16(vr(acc[t][i ^ (t & 1)], 4), vr(F[f][s]["W"][t], 4), vr(F[f][s]["X"][i ^ (t & 1)], 4))
                for t in range(4) for i in range(2) for s in range(2)]
    adv = [[f"s_add_u32 s{sRd}, s{sRd}, {STG}", f"s_cmp_eq_u32 s{sRd}, {STG*NS}"], [f"s_cselect_b32 s{sRd}, 0, s{sRd}"],
           [f"v_add_u32 v{aT}, s{sRd}, v{bT}", f"v_add_u32 v{aW}, s{sRd}, v{bW}"]]
    k(f"s_mov_b32 s{sRd}, 0", f"s_mov_b32 s{sN}, {N//2-1}")
    k("s_barrier")
    mid_stamp(k, 0)
    k(reads(0), adv, "s_waitcnt lgkmcnt(0)")
    k(".p2align 6")
    k.label(f"L_{name}_loop")
    for f in range(2):
        k("s_barrier")
        m = weave(mfmas(f), reads(1 - f), 0, 9)
        tl = adv + ([[f"s_sub_u32 s{sN}, s{sN}, 1", f"s_cmp_lg_u32 s{sN}, 0"]] if f == 1 else [])
        k(weave(m, tl, len(m) - 6, len(m) - 1))
        k("s_waitcnt lgkmcnt(0)")
    k(f"s_cbranch_scc1 L_{name}_loop")
    k("s_barrier")
    k(weave(mfmas(0), reads(1), 0, 9), "s_waitcnt lgkmcnt(0)", mfmas(1))
    mid_stamp(k, 1)
    k("s_waitcnt vmcnt(0)", f"s_mov_b32 s{sN}, 32768", "s_nop 5")
    SUM = F[0][0]["X"]
    U = F[0][0]["W"][0]
    for i in range(2):
        if not is_down:
            k(f"v_mov_b32 v{SUM[i]}, 0", f"v_mov_b32 v{SUM[i]+1}, 0")
        for b in range(2):
            o = F[0][1]["W"][2 * i + b]
            for jt in range(2):
                a = acc[2 * b + jt][i]
                for h in range(2):
                    r = RES[i][b] + 2 * jt + h
                    k(f"v_lshlrev_b32 v{U}, 16, v{r}", f"v_and_b32 v{U+1}, 0xffff0000, v{r}",
                      f"v_add_f32 v{a+2*h}, v{a+2*h}, v{U}", f"v_add_f32 v{a+2*h+1}, v{a+2*h+1}, v{U+1}",
                      f"v_cvt_pk_bf16_f32 v{o+2*jt+h}, v{a+2*h}, v{a+2*h+1}")
            if is_down:
                k(f"buffer_store_dwordx4 {vr(o,4)}, v{vRow}, s[{SO}:{SO+3}], {['0', f's{sN}'][i]} offen offset:{64*b} sc1")
            else:
                k(f"buffer_store_dwordx4 {vr(o,4)}, v{vLin}, s[{SWS}:{SWS+3}], s{[sRes,sT2][b]} offen offset:{1024*i} sc1")
    if not is_down:
        for t in range(4):
            for r in range(4):
                for i in range(2):
                    a = acc[t][i] + r
                    k(f"v_add_f32 v{SUM[i]}, v{SUM[i]}, v{a}", f"v_fmac_f32 v{SUM[i]+1}, v{a}, v{a}")
        k("s_nop 1", f"v_permlane32_swap_b32 v{SUM[0]}, v{SUM[0]+1}", f"v_permlane32_swap_b32 v{SUM[1]}, v{SUM[1]+1}", "s_nop 0",
          f"v_add_f32 v{SUM[0]}, v{SUM[0]}, v{SUM[0]+1}", f"v_add_f32 v{SUM[1]}, v{SUM[1]}, v{SUM[1]+1}",
          f"v_lshlrev_b32 v{T0}, 2, v{L}", "s_nop 0",
          f"v_permlane16_swap_b32 v{SUM[0]}, v{SUM[1]}",
          f"s_lshl_b32 s{sT}, s{sTB}, 1", f"s_add_u32 s{sT}, s{sT}, s{sTH}", f"s_lshl_b32 s{sT}, s{sT}, 12",
          f"v_add_f32 v{SUM[0]}, v{SUM[0]}, v{SUM[1]}",
          f"s_lshl_b32 s{sT2}, s{sNB}, 1", f"s_add_u32 s{sT2}, s{sT2}, s{sCH}", f"s_lshl_b32 s{sT2}, s{sT2}, 8",
          f"s_add_u32 s{sT}, s{sT}, s{sT2}", f"s_add_u32 s{sT}, s{sT}, {STP}",
          f"buffer_store_dword v{SUM[0]}, v{T0}, s[{SWS}:{SWS+3}], s{sT} offen sc1")
    tail(k, kidx, sW)
    return k


class Op:
    def __init__(self, text, kind="v", needs=(), bar=False):
        self.text, self.kind, self.needs, self.bar = text, kind, list(needs), bar
        self.seq = None

    @property
    def cost(self):
        return 8 if self.kind == "t" else 4


def emit_stream(k, ops, nl=0, nv=0):
    cnt = {"lds": nl, "vm": nv}
    done = {"lds": 0, "vm": 0}
    for o in ops:
        if o.kind in cnt:
            cnt[o.kind] += 1
            o.seq = cnt[o.kind]
            k(o.text)
        elif o.kind == "wait":
            parts = []
            for kind, nm, mx in (("vm", "vmcnt", 63), ("lds", "lgkmcnt", 15)):
                need = [x.seq for x in o.needs if x.kind == kind]
                assert None not in need, "wait on an op that was not issued yet"
                tgt = cnt[kind] if (o.bar and kind == "lds") else max(need, default=0)
                if tgt > done[kind]:
                    n = cnt[kind] - tgt
                    assert n <= mx or kind == "vm"
                    parts.append(f"{nm}({min(n, mx)})")
                    done[kind] = tgt
            if parts:
                k("s_waitcnt " + " ".join(parts))
            if o.bar:
                k("s_barrier")
        else:
            k(o.text)
    return cnt


def k3_gateup():
    STG, NS = 28672, 5
    TBL = NS * STG
    k = Kern("gateup_kernel", 256, 256, TBL + 1024 + 2048)
    SWS, ST_, SW_ = 4, 8, 12
    sW, sMB, sFB, sN, sT, sT2, sTo, sWo, sWr, sTB, sA0, sA1, sSt, sCp = range(28, 42)
    v = Alloc(1)
    vLin, vR1, vR2, vCs, vSt, vTid, vOut = [v() for _ in range(7)]
    PA = [v(2, 2) for _ in range(4)]
    SD = [v(2, 2) for _ in range(2)]
    TA, TB_, TC = v(4, 4), v(4, 4), v(4, 4)
    assert v.n <= 32, v.n
    acc = [[32 + (a * 4 + b) * 4 for b in range(4)] for a in range(14)]
    TK = [[[32 * n + 16 * s + 4 * b for b in range(4)] for s in range(2)] for n in range(NS)]
    WF = [[160 + 8 * n + 4 * s for s in range(2)] for n in range(4)]
    SP, CP = 192, 224
    k.vgpr, k.acc = 256 + 232, 256
    head(k)
    k(f"s_load_dwordx2 s[{SWS}:{SWS+1}], s[0:1], {A_WS}")
    k(f"v_lshrrev_b32 v{TA}, 6, v0", f"v_and_b32 v{TA+1}, 63, v0", f"v_readfirstlane_b32 s{sW}, v{TA}", f"v_lshlrev_b32 v{vLin}, 4, v{TA+1}")
    k(f"s_lshr_b32 s{sT}, s2, 3", f"s_lshr_b32 s{sMB}, s{sT}, 2", f"s_and_b32 s{sT}, s{sT}, 3",
      f"s_and_b32 s{sFB}, s2, 7", f"s_lshl_b32 s{sFB}, s{sFB}, 2", f"s_add_u32 s{sFB}, s{sFB}, s{sT}",
      f"s_lshl_b32 s{sTB}, s{sMB}, 2", f"s_add_u32 s{sTB}, s{sTB}, s{sW}",
      f"s_lshl_b32 s{sT}, s{sTB}, 17", f"s_add_u32 s{sT}, s{sT}, {HF}",
      f"s_mul_i32 s{sT2}, s{sFB}, {32*14*1024}", f"s_add_u32 s{sT2}, s{sT2}, {WGU}",
      f"s_mul_i32 s{sWo}, s{sW}, 7168", f"s_mov_b32 s{sWr}, s{sWo}", f"s_mov_b32 s{sTo}, 0")
    k("s_waitcnt lgkmcnt(0)", ws_shift(SWS))
    k(srd_from(ST_, SWS, f"s{sT}", 131072), srd_from(SW_, SWS, f"s{sT2}", 32 * 14 * 1024))

    def vm_stage(n):
        o = []
        for i in range(7):
            pre, post = [], []
            if i % 4 == 0:
                pre = [f"s_add_u32 m0, s{sWr}, {(n%NS)*STG+1024*i}"]
            if i == 3:
                post = [f"s_add_u32 s{sWo}, s{sWo}, 4096"]
            if i == 6:
                post = [f"s_add_u32 s{sWo}, s{sWo}, {STG-4096}"]
            o.append((pre, Op(f"buffer_load_dwordx4 v{vLin}, s[{SW_}:{SW_+3}], s{sWo} offen offset:{1024*(i%4)} lds", "vm"), post, n))
        for s in range(2):
            for b in range(4):
                post = [f"s_add_u32 s{sTo}, s{sTo}, 4096"] if b == 3 else []
                o.append(([], Op(f"buffer_load_dwordx4 {ar(TK[n%NS][s][b],4)}, v{vLin}, s[{ST_}:{ST_+3}], s{sTo} offen offset:{1024*b}", "vm"), post, n))
        return o
    VM = [vm_stage(n) for n in range(16)]
    stat_ld = [([], Op(f"buffer_load_dwordx4 {ar(SP+4*i,4)}, v{vLin}, s[{SWS}:{SWS+3}], s{sSt} offen offset:{1024*(i%4)}", "vm"),
                [f"s_add_u32 s{sSt}, s{sSt}, 4096"] if i == 3 else [], None) for i in range(8)]
    cs_ld = [([], Op(f"buffer_load_dword {ar(CP+p)}, v{vTid}, s[{SWS}:{SWS+3}], s{sCp} offen", "vm"),
              [f"s_add_u32 s{sCp}, s{sCp}, {32*896}"], None) for p in range(8)]
    pro = []
    for n in range(2):
        for pre, ld, post, _ in VM[n]:
            pro += [Op(x, "s") for x in pre] + ([Op("s_nop 0", "s")] if pre else []) + [ld] + [Op(x, "s") for x in post]
        if n == 0:
            pro.append(Op("s_barrier", "s"))
    misc = srd_tail(SWS, WS_SZ) + [
        f"s_lshl_b32 s{sSt}, s{sTB}, 13", f"s_add_u32 s{sSt}, s{sSt}, {STP}",
        f"s_mul_i32 s{sCp}, s{sFB}, 896", f"s_add_u32 s{sCp}, s{sCp}, {CSP}",
        f"v_add_u32 v{vR1}, {2*STG}, v{vLin}", f"v_add_u32 v{vR2}, {4*STG}, v{vLin}",
        f"v_lshlrev_b32 v{vTid}, 2, v0",
        f"v_lshrrev_b32 v{TA}, 4, v{TA+1}", f"v_lshlrev_b32 v{vCs}, 4, v{TA}", f"v_add_u32 v{vCs}, {TBL}, v{vCs}",
        f"v_and_b32 v{TA+2}, 1, v{TA}", f"v_lshlrev_b32 v{TA+2}, 10, v{TA+2}", f"v_lshrrev_b32 v{TA}, 1, v{TA}",
        f"v_lshl_add_u32 v{TA+2}, v{TA}, 8, v{TA+2}", f"v_and_b32 v{TA+1}, 15, v{TA+1}", f"v_lshl_add_u32 v{vOut}, v{TA+1}, 4, v{TA+2}",
        f"s_lshl_b32 s{sT}, s{sW}, 9", f"s_add_u32 s{sT}, s{sT}, {TBL+1024}", f"v_lshl_add_u32 v{vSt}, v{TA+1}, 2, s{sT}",
        f"s_mul_i32 s{sT}, s{sTB}, {112*4096}", f"s_add_u32 s{sT}, s{sT}, {AF}", f"s_mul_i32 s{sT2}, s{sFB}, 7",
        f"s_lshr_b32 s{sA0}, s{sT2}, 1", f"s_lshl_b32 s{sA0}, s{sA0}, 12", f"s_add_u32 s{sA0}, s{sA0}, s{sT}",
        f"s_and_b32 s{sT2}, s{sT2}, 1", f"s_lshl_b32 s{sT}, s{sT2}, 9", f"s_add_u32 s{sA0}, s{sA0}, s{sT}",
        f"s_cmp_eq_u32 s{sT2}, 0", f"s_cselect_b32 s{sT}, 512, {0}", f"s_cselect_b32 s{sT2}, 0, {4096-512}",
        f"s_add_u32 s{sA1}, s{sA0}, s{sT}", f"s_add_u32 s{sA1}, s{sA1}, s{sT2}"]
    pro += [Op(x, "s") for x in misc]
    if OPT.get("k3pf", 1):
        pro += [Op(x, "s") for x in ["s_getpc_b64 s[16:17]", f"s_lshr_b32 s{sT}, s2, 3", f"s_lshl_b32 s{sT}, s{sT}, 10",
                                     f"v_add_u32 v{TA}, s{sT}, v{vTid}", f"v_min_u32 v{TA}, L_code_end-L_k3_pf-4, v{TA}", "L_k3_pf:"]]
        pro.append(Op(f"global_load_dword v{TC}, v{TA}, s[16:17]", "vm"))

    order = [a for p in range(7) for a in (p, p + 7)]
    S0 = 12
    seq = [(n, a) for n in range(S0) for a in order]
    seq += [(n, a) for p in range(7) for n in range(S0, 16) for a in (p, p + 7)]
    NT_ = len(seq)
    mf, fixed = [], [[] for _ in range(8 * NT_)]
    RD = []
    for gt, (n, a) in enumerate(seq):
        sl = n % NS
        RD.append([Op(f"ds_read_b128 {ar(WF[gt%4][s],4)}, v{[vLin,vR1,vR2][sl>>1]} offset:{(sl&1)*STG+s*14336+a*1024}", "lds") for s in range(2)])
        bs = range(4) if gt % 2 == 0 else range(3, -1, -1)
        for b in bs:
            for s in range(2):
                mf.append(Op(m16(vr(acc[a][b], 4), ar(WF[gt % 4][s], 4), ar(TK[sl][s][b], 4), "0" if (n == 0 and s == 0) else None), "m"))
    first = {}
    for gt, (n, a) in enumerate(seq):
        first.setdefault(n, gt)
    barpos = {}
    for gt in range(NT_):
        if gt + 2 < NT_:
            fixed[8 * gt].append(RD[gt + 2][0]); fixed[8 * gt + 1].append(RD[gt + 2][1])
        newst = [n for n in range(1, 16) if first[n] == gt + 3]
        if newst:
            fixed[8 * gt + 7].append(Op("", "wait", [x[1] for x in VM[newst[0]]], bar=True))
            barpos[newst[0]] = 8 * gt + 7
        elif gt + 1 < NT_:
            fixed[8 * gt + 7].append(Op("", "wait", RD[gt + 1]))
    flat = VM[2] + VM[3] + VM[4] + stat_ld + cs_ld + [x for n in range(5, 16) for x in VM[n]]
    slots = [8 * gt + o for gt in range(S0 * 14) for o in (3, 6)]
    nsl = len(slots) - 2 * OPT.get("k3lead", 8)
    vpos = {}
    si = -1
    for i, (pre, ld, post, n) in enumerate(flat):
        si = max(si + 1, (i * nsl) // len(flat))
        if n is not None and n >= NS:
            lim = barpos[n - NS + 1] + 2 if "lds" in ld.text else 8 * 14 * (n - NS + 1)
            while slots[si] < lim:
                si += 1
        p = slots[si]
        fixed[p - 1] += [Op(x, "s") for x in pre]
        fixed[p] += [ld] + [Op(x, "s") for x in post]
        vpos[id(ld)] = p
    used = [sum(o.cost for o in f if not (o.kind == "wait" and False)) for f in fixed]
    flo = [[] for _ in fixed]

    def flow(ops, start, deadline=None):
        p = start
        for o in ops:
            while used[p] + o.cost > 8:
                p += 1
            flo[p].append(o); used[p] += o.cost
        assert deadline is None or p < deadline, (p, deadline)
        return p + 1

    def spread(ops, start, stop):
        tot = sum(o.cost for o in ops) + sum(used[start:stop])
        cap = max(8.0, tot / (stop - start))
        p, acc_used, acc_cap = start, used[start], cap
        for o in ops:
            while acc_used + o.cost > acc_cap + 2 and p < stop - 1:
                p += 1
                if cap == 8.0:
                    acc_used, acc_cap = used[p], cap
                else:
                    acc_used += used[p]; acc_cap += cap
            flo[p].append(o); acc_used += o.cost
        return p
    V = lambda t: Op(t, "v")
    st = [Op("", "wait", [x[1] for x in stat_ld + cs_ld])]
    st += [V(f"v_accvgpr_read_b32 v{TA}, a{CP}")]
    for p in range(1, 8):
        st += [V(f"v_accvgpr_read_b32 v{TB_}, a{CP+p}"), V(f"v_add_f32 v{TA}, v{TA}, v{TB_}")]
    st += [V(f"v_add_u32 v{vTid}, {TBL}, v{vTid}"), Op(f"ds_write_b32 v{vTid}, v{TA}", "lds")]
    st += [V(f"v_and_b32 v{TB_}, 0xf0, v{vLin}"), V(f"v_and_b32 v{TB_+1}, 0xffffffc0, v{vSt}"), V(f"v_add_u32 v{vTid}, v{TB_}, v{TB_+1}")]
    wr = []
    for hf in range(2):
        A = [TA, TC][hf]
        st += [V(f"v_accvgpr_read_b32 v{A+r}, a{SP+16*hf+r}") for r in range(4)]
        for i in range(1, 4):
            st += [V(f"v_accvgpr_read_b32 v{TB_+r}, a{SP+16*hf+4*i+r}") for r in range(4)]
            st += [V(f"v_add_f32 v{A+r}, v{A+r}, v{TB_+r}") for r in range(4)]
        for op in ("v_permlane16_swap_b32", "v_permlane32_swap_b32"):
            st += [V(f"v_mov_b32 v{TB_+r}, v{A+r}") for r in range(4)]
            st += [V(f"{op} v{A+r}, v{TB_+r}") for r in range(4)]
            st += [V(f"v_add_f32 v{A+r}, v{A+r}, v{TB_+r}") for r in range(4)]
        wr.append(Op(f"ds_write_b128 v{vTid}, {vr(A,4)} offset:{256*hf}", "lds"))
        st.append(wr[-1])
    rd = [Op(f"ds_read2_b32 {vr(PA[b],2)}, v{vSt} offset0:{64*(b>>1)+16*(b&1)+32} offset1:{64*(b>>1)+16*(b&1)}", "lds") for b in range(4)]
    st += rd + [V("v_nop")] * 6 + [Op("", "wait", rd)]
    for b in range(4):
        sd = SD[b >> 1] + (b & 1)
        st += [V(f"v_mul_f32 v{PA[b]+1}, {f32(-1/1024)}, v{PA[b]+1}"),
               V(f"v_mul_f32 v{PA[b]}, {f32(1/1024)}, v{PA[b]}"),
               V(f"v_fma_f32 v{PA[b]}, -v{PA[b]+1}, v{PA[b]+1}, v{PA[b]}"),
               V(f"v_max_f32 v{PA[b]}, 0, v{PA[b]}"),
               V(f"v_add_f32 v{sd}, {f32(EPS)}, v{PA[b]}"),
               Op(f"v_rsq_f32 v{PA[b]}, v{sd}", "t"), V("v_nop"),
               V(f"v_mul_f32 v{sd}, v{sd}, v{PA[b]}"),
               V(f"v_mul_f32 v{PA[b]}, {f32(-LOG2E)}, v{PA[b]}")]
    p = flow(st, vpos[id(cs_ld[-1][1])] + 90)
    n0 = min(n for n in range(1, S0) if barpos[n] >= p)
    p = barpos[n0] + 1
    todo = list(order)
    step = (8 * 14 * S0 - 40 - p) // 14
    for i in range(14):
        cur = lambda a: all(seq[q // 8][1] != a for q in range(p - 2, p + 48))
        cand = [a for a in todo if cur(a)]
        while not cand:
            p += 4
            cand = [a for a in todo if cur(a)]
        a = cand[0]
        todo.remove(a)
        C = [TA, TC][i & 1]
        r = Op(f"ds_read_b128 {vr(C,4)}, v{vCs} offset:{64*a}", "lds")
        ops = [V(f"v_fmac_f32 v{acc[a][b]+e}, v{PA[b]+1}, v{C+e}") for b in range(4) for e in range(4)]
        q = flow([r], p)
        q = flow([Op("", "wait", [r])] + ops, q + 6, p + 46)
        p = max(q, p + min(step, 24))
    assert p < 8 * 14 * S0 + 60, p
    def epi(pr, packed):
        o = []
        for bb in (0, 2):
            d = acc[pr][bb]
            for b in (bb, bb + 1):
                g_, u = acc[pr][b], acc[pr + 7][b]
                sd = SD[b >> 1] + (b & 1)
                if packed:
                    sel = f"op_sel:[0,{b&1},{b&1}] op_sel_hi:[1,{b&1},{b&1}]"
                    o += [V(f"v_pk_mul_f32 {vr(g_+h,2)}, {vr(g_+h,2)}, {vr(PA[b],2)} op_sel:[0,0] op_sel_hi:[1,0]") for h in (0, 2)]
                    o += [Op(f"v_exp_f32 v{g_+r}, v{g_+r}", "t") for r in range(4)]
                    o += [V(f"v_pk_fma_f32 {vr(g_+h,2)}, {vr(g_+h,2)}, {vr(SD[b>>1],2)}, {vr(SD[b>>1],2)} {sel}") for h in (0, 2)]
                    o += [Op(f"v_rcp_f32 v{g_+r}, v{g_+r}", "t") for r in range(4)]
                    o += [V(f"v_pk_mul_f32 {vr(u+h,2)}, {vr(u+h,2)}, {vr(g_+h,2)}") for h in (0, 2)]
                else:
                    o += [V(f"v_mul_f32 v{g_+r}, v{PA[b]}, v{g_+r}") for r in range(4)]
                    o += [Op(f"v_exp_f32 v{g_+r}, v{g_+r}", "t") for r in range(4)]
                    o += [V(f"v_fma_f32 v{g_+r}, v{g_+r}, v{sd}, v{sd}") for r in range(4)]
                    o += [Op(f"v_rcp_f32 v{g_+r}, v{g_+r}", "t") for r in range(4)]
                    o += [V(f"v_mul_f32 v{u+r}, v{u+r}, v{g_+r}") for r in range(4)]
                o += [V(f"v_cvt_pk_bf16_f32 v{d+2*(b&1)}, v{u}, v{u+1}"), V(f"v_cvt_pk_bf16_f32 v{d+2*(b&1)+1}, v{u+2}, v{u+3}")]
            o += [V("v_nop"), V(f"v_permlane16_swap_b32 v{d}, v{d+2}"), V(f"v_permlane16_swap_b32 v{d+1}, v{d+3}")]
            sa = [sA0, sA1][pr & 1]
            o.append(Op(f"buffer_store_dwordx4 {vr(d,4)}, v{vOut}, s[{SWS}:{SWS+3}], s{sa} offen offset:{1024*bb} sc1", "vm"))
        o.append(Op(f"s_add_u32 s{sa}, s{sa}, 4096", "s"))
        return o
    run = 8 * 2 * (16 - S0)
    t0 = 8 * 14 * S0
    for pr in range(6):
        spread(epi(pr, False), t0 + run * (pr + 1) + (0 if pr else 0), t0 + run * (pr + 2))
    if OPT.get("isl", 1):
        pro.append(Op(island(), "s"))
    ops = pro + [Op("", "wait", [x[1] for x in VM[0]], bar=True)]
    if OPT["stamp"]:
        ops.append(Op("s_memrealtime s[96:97]\ns_memtime s[84:85]\ns_waitcnt lgkmcnt(0)", "s"))
    ops += RD[0] + RD[1] + [Op("", "wait", RD[0])]
    ops_seg0 = len(pro)
    prof = [112 * n for n in range(S0)] + [t0 + run * pr for pr in range(7)] if OPT.get("prof") else []
    nbytes, last = 4, ops_seg0
    for i, m in enumerate(mf):
        if OPT.get("isl", 1):
            nbytes += sum(isize(o.text) for o in ops[last:])
            last = len(ops)
            if nbytes > 3960 and not fixed[i - 1]:
                ops.append(Op(island(), "s"))
                nbytes, last = 4, len(ops)
        if i in prof:
            j = prof.index(i)
            ops.append(Op(f"s_memtime s[{44+2*j}:{45+2*j}]", "s"))
        nv = [o for o in flo[i]]
        late = [o for o in fixed[i] if o.kind == "wait"]
        ops += [m] + [o for o in fixed[i] if o.kind != "wait"] + late + nv
    if OPT["stamp"]:
        ops.append(Op("s_memrealtime s[98:99]\ns_memtime s[86:87]", "s"))
    ops += epi(6, True)
    emit_stream(k, ops)
    if prof:
        k("s_waitcnt lgkmcnt(0)", "s_lshl_b32 s3, s89, 2", f"s_add_u32 s3, s3, s{sW}", "s_lshl_b32 s3, s3, 7", f"s_add_u32 s3, s3, {STAMP+2*MB}")
        for j in range(len(prof) + 1):
            k(f"v_mov_b32 v1, s{44+2*j if j < len(prof) else 86}", f"v_mov_b32 v0, s3", f"global_store_dword v0, v1, s[90:91] offset:{4*j}")
    tail(k, 3, sW)
    return k


HEADER = open("sequential_preLN__grouped_kv_mqa__glu_gated_glu__prompt.s.ref").read().split("; Override launch")[0]


def build():
    ks = [k0_qkv(), k1_attn(), k_gemm("oproj_kernel", 2, 1024, OF, WOF, False), k3_gateup(),
          k_gemm("down_kernel", 4, 3584, AF, WDF, True)]
    s = HEADER + "".join(k.launch_line() + "\n" for k in ks)
    s += '.amdgcn_target "amdgcn-amd-amdhsa--gfx950"\n.text\n'
    for i, k in enumerate(ks):
        s += k.text()
        if i == 0:
            s += "L_code_rest:\n"
    s += "L_code_end:\n"
    for n in ISL:
        s = s.replace(f"@ISL{n}@", f"s_branch L_isl{n+4}" if n + 4 < len(ISL) else "s_endpgm")
    s += '.section .rodata,"a"\n' + "".join(k.desc() for k in ks)
    return s


if __name__ == "__main__":
    out = sys.argv[1]
    for a in sys.argv[2:]:
        key, _, val = a.partition("=")
        OPT[key] = int(val) if val else True
    open(out, "w").write(build())
```

```python
import sys, math
sys.path.insert(0, __file__.rsplit("/", 1)[0])
from asmlib import *

MB = 1 << 20
QF, KVF, OF, HF, AF = 0, 4 * MB, 5 * MB, 9 * MB, 13 * MB
WOF, WGU, WDF, CSP, STP, STAMP = 28 * MB, 30 * MB, 44 * MB, 52 * MB, 53 * MB, 60 * MB
WS_SZ = 64 * MB
OOB = 0x40000000
LOG2E = 1.4426950408889634
QSCALE = LOG2E / math.sqrt(32.0)
EPS = 1e-5
OPT = dict(stamp=False, force_slow=False)
A_X, A_WQ, A_WK, A_WV, A_WO, A_WG, A_WU, A_WD, A_OUT, A_WS = 0, 8, 16, 24, 32, 48, 56, 64, 72, 88


def ws_shift(s):
    if OPT.get("wsoff"):
        return [f"s_add_u32 s{s}, s{s}, {OPT['wsoff']*MB}", f"s_addc_u32 s{s+1}, s{s+1}, 0"]
    return []


ISL = []


def island():
    n = len(ISL)
    ISL.append(n)
    return f"s_branch L_isl{n}_over\n.p2align 12\nL_isl{n}:\n@ISL{n}@\nL_isl{n}_over:"


def isize(text):
    import re
    t = 0
    for ln in text.split("\n"):
        ln = ln.strip()
        if not ln:
            t += 8
        elif ln.endswith(":") or ln.startswith("."):
            continue
        elif re.match(r"(v_mfma|v_smfmac|ds_|buffer_|global_|s_load|s_mem|v_fma_|v_cvt_pk|v_accvgpr|v_pk_|v_lshl_add|v_bfe|v_max3|v_maximum3|v_mul_lo)", ln):
            t += 8
        else:
            lit = [x for x in re.findall(r"(?<![\w\[:])(0x[0-9a-f]+|\d+)(?![\w\]:])", ln.split(None, 1)[1] if " " in ln else "") if int(x, 0) > 64]
            t += 8 if lit else 4
    return t


def hop(k, sw):
    if OPT.get("isl", 1) and not OPT.get("nohop"):
        for w in range(3):
            k(f"s_cmp_eq_u32 s{sw}, {w}", f"s_cbranch_scc1 L_isl{w}")
        k("s_branch L_isl3")
    else:
        k("s_endpgm")


def srd_tail(s, size):
    return [f"s_mov_b32 s{s+2}, {size}", f"s_mov_b32 s{s+3}, 0x00020000"]


def srd_from(s, base, off, size):
    return [f"s_add_u32 s{s}, s{base}, {off}", f"s_addc_u32 s{s+1}, s{base+1}, 0"] + srd_tail(s, size)


def head(k):
    k("s_cmp_ge_u32 s2, 256", f"s_cbranch_scc1 L_end_{k.name}")
    if OPT["stamp"]:
        k("s_memrealtime s[92:93]", "s_load_dwordx2 s[90:91], s[0:1], 88", "s_mov_b32 s89, s2")


def mid_stamp(k, i):
    if OPT["stamp"]:
        k(f"s_memrealtime s[{96+2*i}:{97+2*i}]", f"s_memtime s[{84+2*i}:{85+2*i}]")


def tail(k, kidx, swave):
    if OPT["stamp"]:
        k("s_waitcnt vmcnt(0)", "s_memrealtime s[94:95]", "s_waitcnt lgkmcnt(0)",
          "v_mov_b32 v0, s92", "v_mov_b32 v1, s96", "v_mov_b32 v2, s98", "v_mov_b32 v3, s94",
          "s_lshl_b32 s89, s89, 2", f"s_add_u32 s89, s89, s{swave}", "s_lshl_b32 s89, s89, 4",
          f"s_add_u32 s89, s89, {STAMP + kidx*16384}", "v_mov_b32 v4, s89",
          "global_store_dwordx4 v4, v[0:3], s[90:91]",
          "s_sub_u32 s86, s86, s84", "v_mov_b32 v5, s86", "v_add_u32 v4, 0x100000, v4", "global_store_dword v4, v5, s[90:91]")
    k.label(f"L_end_{k.name}")
    k("s_endpgm")


def ids_8x4(k, s_a, s_b, tmp):
    k(f"s_lshr_b32 s{tmp}, s2, 3",
      f"s_and_b32 s{s_a}, s{tmp}, 3",
      f"s_lshr_b32 s{s_b}, s{tmp}, 2",
      f"s_and_b32 s{tmp}, s2, 1",
      f"s_lshl_b32 s{tmp}, s{tmp}, 2",
      f"s_add_u32 s{s_a}, s{s_a}, s{tmp}",
      f"s_and_b32 s{tmp}, s2, 6",
      f"s_lshl_b32 s{tmp}, s{tmp}, 2",
      f"s_add_u32 s{s_b}, s{s_b}, s{tmp}")


def code_prefetch(k, vtmp, vdst, stmp, start, nkb_per_wg=1):
    k(f"s_getpc_b64 s[{stmp}:{stmp+1}]")
    lab = f"L_pc_{k.name}_{start}"
    k.label(lab)
    k(f"s_add_u32 s{stmp}, s{stmp}, {start}-{lab}",
      f"s_addc_u32 s{stmp+1}, s{stmp+1}, 0",
      f"global_load_dwordx4 {vr(vdst,4)}, v{vtmp}, s[{stmp}:{stmp+1}]" if not OPT.get("nopf") else None)


def k0_qkv():
    D = 3
    STG, NS = 28672, D + 2
    TBL = STG * NS
    k = Kern("qkv_kernel", 256, 512, TBL + 1024)
    SX, SWQ, SE, SWS = 4, 8, 12, 16
    sW, sTB, sHG, sN, sX, sWo, sEo, sRd, sWr, sT, sT2, sTH, sCH, sBW = range(24, 38)
    NT = " nt" if OPT.get("k0nt", 0) else ""
    v = Alloc(1)
    L, G, R, CQ, TOK, T0, T1, T2 = [v() for _ in range(8)]
    vX, vX2, vE = v(), v(), v()
    vW = [v() for _ in range(4)]
    bX = [[v() for i in range(2)] for s in range(2)]
    bW = [v() for _ in range(4)]
    bE = v()
    aX = [[v() for i in range(2)] for s in range(2)]
    aW = [v() for _ in range(4)]
    aE = v()
    F = [[dict(X=[v(4, 4) for _ in range(2)], W=[v(4, 4) for _ in range(4)], E=v(4, 4)) for s in range(2)] for _ in range(2)]
    acc0 = v.n = (v.n + 3) // 4 * 4
    acc = [[v(4, 4) for i in range(2)] for t in range(4)]
    accE = [v(4, 4) for i in range(2)]
    cs = [v(4, 4) for _ in range(2)]
    csE, sx, sxx = v(4, 4), v(4, 4), v(4, 4)
    acc1 = v.n
    ONES = v(4, 4)
    PF = v(4, 4)
    k.vgpr = k.acc = (v.n + 7) // 8 * 8
    head(k)
    k(f"s_load_dwordx2 s[{SX}:{SX+1}], s[0:1], {A_X}",
      f"s_load_dwordx2 s[{SWQ}:{SWQ+1}], s[0:1], {A_WQ}",
      f"s_load_dwordx4 s[20:23], s[0:1], {A_WK}",
      f"s_load_dwordx2 s[{SWS}:{SWS+1}], s[0:1], {A_WS}")
    k(f"v_lshlrev_b32 v{T0}, 4, v0")
    code_prefetch(k, T0, PF, 40, "L_k0_body")
    k.label("L_k0_body")
    k(f"v_lshrrev_b32 v{T1}, 6, v0", f"v_and_b32 v{L}, 63, v0", f"v_readfirstlane_b32 s{sW}, v{T1}")
    ids_8x4(k, sHG, sTB, sT)
    k(f"v_lshrrev_b32 v{G}, 4, v{L}", f"v_and_b32 v{TOK}, 15, v{L}")
    k(f"s_and_b32 s{sTH}, s{sW}, 1", f"s_bfe_u32 s{sCH}, s{sW}, 0x10001",
      f"s_cmp_lt_u32 s{sW}, 4", "s_cbranch_scc1 L_k0_comp")
    k(f"s_and_b32 s{sW}, s{sW}, 3")
    k(f"v_lshrrev_b32 v{T0}, 3, v{L}",
      f"s_lshl_b32 s{sT}, s{sTH}, 2",
      f"v_add_u32 v{T1}, s{sT}, v{G}",
      f"v_and_b32 v{T2}, 7, v{L}",
      f"v_xor_b32 v{T1}, v{T1}, v{T2}",
      f"s_lshl_b32 s{sT}, s{sTB}, 6",
      f"s_lshl_b32 s{sT2}, s{sW}, 3",
      f"s_add_u32 s{sT}, s{sT}, s{sT2}",
      f"v_add_u32 v{T0}, s{sT}, v{T0}",
      f"v_lshlrev_b32 v{T0}, 11, v{T0}",
      f"v_lshl_add_u32 v{vX}, v{T1}, 4, v{T0}",
      f"v_add_u32 v{vX2}, 0x10000, v{vX}")
    k(f"v_lshlrev_b32 v{T1}, 1, v{G}",
      f"v_xor_b32 v{T1}, v{T1}, v{TOK}",
      f"s_lshl_b32 s{sT}, s{sTH}, 3",
      f"v_xor_b32 v{T1}, s{sT}, v{T1}",
      f"s_lshl_b32 s{sBW}, s{sTH}, 1",
      f"s_add_u32 s{sBW}, s{sBW}, s{sCH}",
      f"s_lshl_b32 s{sT}, s{sBW}, 13",
      f"s_lshl_b32 s{sT2}, s{sHG}, 8",
      f"s_add_u32 s{sT}, s{sT}, s{sT2}",
      f"v_lshlrev_b32 v{T0}, 11, v{G}",
      f"v_add_u32 v{T0}, s{sT}, v{T0}",
      f"v_lshl_add_u32 v{vW[0]}, v{T1}, 4, v{T0}")
    for i in range(1, 4):
        k(f"v_add_u32 v{vW[i]}, {32768*i}, v{vW[0]}")
    k(f"v_lshrrev_b32 v{T0}, 5, v{L}",
      f"v_lshlrev_b32 v{T0}, 1, v{T0}",
      f"v_xor_b32 v{T0}, v{T0}, v{L}",
      f"s_lshl_b32 s{sT}, s{sW}, 10",
      f"v_lshl_add_u32 v{vE}, v{T0}, 4, s{sT}")
    k(f"s_sub_u32 s{sBW}, s{sBW}, s{sW}", f"s_lshl_b32 s{sBW}, s{sBW}, 10", f"s_add_u32 s{sBW}, s{sBW}, 8192",
      f"s_lshl_b32 s{sWr}, s{sW}, 10", f"s_mov_b32 s{sN}, 16")
    k(f"s_lshl_b32 s{sT}, s{sHG}, 1", f"s_add_u32 s{sT}, s{sT}, s{sTB}", f"s_and_b32 s{sT}, s{sT}, {7 if OPT.get('rot', 0) else 0}",
      f"s_lshl_b32 s{sX}, s{sT}, 8", f"s_lshl_b32 s{sWo}, s{sT}, 18", f"s_lshl_b32 s{sEo}, s{sT}, 13")
    k("s_waitcnt lgkmcnt(0)")
    k(srd_tail(SX, 4 * MB), srd_tail(SWQ, 2 * MB))
    k(f"s_cmp_eq_u32 s{sHG}, 0", f"s_cselect_b32 s{SE}, s20, s22", f"s_cselect_b32 s{SE+1}, s21, s23", srd_tail(SE, 0x10000),
      f"s_and_b32 s{sT}, s{sHG}, 3", f"s_cmp_eq_u32 s{sT}, 0", "s_cbranch_scc1 L_k0_ld1")
    for e in range(2):
        k.label(f"L_k0_ld{e}")
        k(f"s_mov_b32 m0, s{sWr}", f"s_add_u32 s{sT}, s{sWr}, s{sBW}", f"buffer_load_dwordx4 v{vX}, s[{SX}:{SX+3}], s{sX} offen{NT} lds",
          f"s_add_u32 m0, s{sWr}, 4096", "s_nop 0", f"buffer_load_dwordx4 v{vX2}, s[{SX}:{SX+3}], s{sX} offen{NT} lds")
        for i in range(4):
            k(f"s_add_u32 m0, s{sT}, {4096*i}", "s_nop 0", f"buffer_load_dwordx4 v{vW[i]}, s[{SWQ}:{SWQ+3}], s{sWo} offen{NT} lds")
        if e:
            k(f"s_add_u32 m0, s{sWr}, 24576", "s_nop 0", f"buffer_load_dwordx4 v{vE}, s[{SE}:{SE+3}], s{sEo} offen{NT} lds",
              f"s_add_u32 s{sEo}, s{sEo}, 4096", f"s_and_b32 s{sEo}, s{sEo}, 0xffff")
        k(f"s_add_u32 s{sWo}, s{sWo}, 0x20000", f"s_and_b32 s{sWo}, s{sWo}, 0x1fffff",
          f"s_add_u32 s{sWr}, s{sWr}, {STG}", f"s_cmp_ge_u32 s{sWr}, {TBL}", f"s_cselect_b32 s{sT}, {TBL}, 0",
          f"s_sub_u32 s{sWr}, s{sWr}, s{sT}", f"s_add_u32 s{sX}, s{sX}, 128", f"s_and_b32 s{sX}, s{sX}, 2047",
          f"s_sub_u32 s{sN}, s{sN}, 1", f"s_cmp_lg_u32 s{sN}, 0")
        k(f"s_waitcnt vmcnt({(6+e)*D})", "s_barrier", f"s_cbranch_scc1 L_k0_ld{e}")
        for d in range(D - 1, -1, -1):
            k(f"s_waitcnt vmcnt({(6+e)*d})", "s_barrier")
        if e == 0:
            k("s_branch L_k0_ldx")
    k.label("L_k0_ldx")
    k(f"s_lshr_b32 s{sT}, s2, 3", f"s_lshl_b32 s{sT}, s{sT}, 11", f"v_and_b32 v{T0}, 255, v0", f"v_lshlrev_b32 v{T0}, 3, v{T0}",
      f"v_add_u32 v{T0}, s{sT}, v{T0}")
    k(f"s_getpc_b64 s[40:41]")
    k.label("L_k0_pc2")
    k("s_add_u32 s40, s40, L_code_rest-L_k0_pc2", "s_addc_u32 s41, s41, 0",
      f"v_min_u32 v{T0}, L_code_end-L_code_rest-4, v{T0}",
      f"global_load_dword v{PF}, v{T0}, s[40:41]" if not OPT.get("nopf") else None)
    k("s_endpgm")
    k.label("L_k0_comp")
    for _ in range(D):
        k("s_barrier")
    k(f"v_bfe_u32 v{R}, v{L}, 2, 2", f"v_and_b32 v{CQ}, 3, v{L}")
    k(f"v_lshrrev_b32 v{T0}, 1, v{TOK}", f"v_xor_b32 v{T0}, v{T0}, v{G}", f"v_lshlrev_b32 v{T0}, 4, v{T0}",
      f"v_lshl_add_u32 v{T0}, v{TOK}, 7, v{T0}",
      f"s_lshl_b32 s{sT}, s{sTH}, 1", f"s_add_u32 s{sT}, s{sT}, s{sCH}", f"s_lshl_b32 s{sT}, s{sT}, 11",
      f"v_add_u32 v{bX[0][0]}, s{sT}, v{T0}",
      f"v_xor_b32 v{bX[0][1]}, 2048, v{bX[0][0]}",
      f"v_xor_b32 v{bX[1][0]}, 64, v{bX[0][0]}",
      f"v_xor_b32 v{bX[1][1]}, 64, v{bX[0][1]}")
    k(f"v_and_b32 v{T2}, 1, v{G}",
      f"v_lshlrev_b32 v{T0}, 2, v{T2}", f"v_xor_b32 v{T0}, v{T0}, v{R}",
      f"s_lshl_b32 s{sT}, s{sCH}, 2", f"s_lshl_b32 s{sT2}, s{sTH}, 1", f"s_add_u32 s{sT}, s{sT}, s{sT2}",
      f"v_xor_b32 v{T0}, s{sT}, v{T0}",
      f"v_lshlrev_b32 v{T0}, 5, v{T0}",
      f"v_lshl_add_u32 v{T0}, v{CQ}, 3, v{T0}",
      f"v_lshl_add_u32 v{T0}, v{R}, 8, v{T0}",
      f"v_lshl_add_u32 v{T0}, v{G}, 11, v{T0}",
      f"v_add_u32 v{bW[0]}, 8192, v{T0}")
    for t in range(1, 4):
        k(f"v_xor_b32 v{bW[t]}, {32*t}, v{bW[0]}")
    k(f"v_xor_b32 v{T0}, s{sCH}, v{T2}", f"v_lshlrev_b32 v{T0}, 5, v{T0}", f"v_lshl_add_u32 v{T0}, v{CQ}, 3, v{T0}",
      f"v_lshl_add_u32 v{T0}, v{R}, 6, v{T0}", f"v_lshl_add_u32 v{T0}, v{G}, 9, v{T0}",
      f"v_add_u32 v{bE}, 24576, v{T0}")
    bases = [(aX[s][i], bX[s][i]) for s in range(2) for i in range(2)] + list(zip(aW, bW)) + [(aE, bE)]
    for a, b in bases:
        k(f"v_mov_b32 v{a}, v{b}")
    for i in range(acc0, acc1):
        k(f"v_mov_b32 v{i}, 0")
    for i in range(4):
        k(f"v_mov_b32 v{ONES+i}, 0x3f803f80")
    k("s_waitcnt lgkmcnt(0)", ws_shift(SWS), srd_tail(SWS, WS_SZ))

    def reads(fi, e):
        o = []
        for s in range(2):
            f = F[fi][s]
            o += [f"ds_read_b128 {vr(f['X'][i],4)}, v{aX[s][i]}" for i in range(2)]
            for t in range(4):
                for j in range(2):
                    o.append(f"ds_read_b64_tr_b16 {vr(f['W'][t]+2*j,2)}, v{aW[t]} offset:{s*8192+j*1024}")
            for j in range(2 * e):
                o.append(f"ds_read_b64_tr_b16 {vr(f['E']+2*j,2)}, v{aE} offset:{s*2048+j*256}")
        return o

    def mfmas(fi, e):
        X = lambda s, i: vr(F[fi][s]["X"][i], 4)
        W = lambda s, t: vr(F[fi][s]["W"][t], 4)
        E = lambda s: vr(F[fi][s]["E"], 4)
        O = vr(ONES, 4)
        o = [m16(vr(sx, 4), O, X(s, 0)) for s in range(2)] + [m16(vr(sxx, 4), X(s, 0), X(s, 0)) for s in range(2)]
        for t in range(4):
            o += [m16(vr(acc[t][i], 4), W(s, t), X(s, i)) for i in range(2) for s in range(2)]
            if t < 2:
                o += [m16(vr(cs[t], 4), W(s, t), O) for s in range(2)]
        if e:
            o += [m16(vr(accE[i], 4), E(s), X(s, i)) for i in range(2) for s in range(2)]
            o += [m16(vr(csE, 4), E(s), O) for s in range(2)]
        return o

    def adv(e):
        va = [f"v_add_u32 v{a}, s{sRd}, v{b}" for a, b in bases[:8 + e]]
        return [[f"s_add_u32 s{sRd}, s{sRd}, {STG}", f"s_cmp_eq_u32 s{sRd}, {TBL}"], [f"s_cselect_b32 s{sRd}, 0, s{sRd}"]] + \
               [va[i:i + 2] for i in range(0, len(va), 2)]
    k(f"s_mov_b32 s{sRd}, 0", f"s_mov_b32 s{sN}, 7", f"s_and_b32 s{sT}, s{sHG}, 3", f"s_cmp_eq_u32 s{sT}, 0")
    k("s_barrier")
    mid_stamp(k, 0)
    k("s_cbranch_scc1 L_k0_c1")
    for e in range(2):
        k.label(f"L_k0_c{e}")
        k(reads(0, e), adv(e), "s_waitcnt lgkmcnt(0)")
        k.label(f"L_k0_loop{e}")
        nr = 12 + 3 * e
        for f in range(2):
            k("s_barrier")
            m = weave(mfmas(f, e), reads(1 - f, e), 0, nr)
            tl = adv(e) + ([[f"s_sub_u32 s{sN}, s{sN}, 1", f"s_cmp_lg_u32 s{sN}, 0"]] if f == 1 else [])
            k(weave(m, tl, len(m) - 10, len(m) - 1))
            k("s_waitcnt lgkmcnt(0)")
        k(f"s_cbranch_scc1 L_k0_loop{e}")
        k("s_barrier")
        k(weave(mfmas(0, e), reads(1, e), 0, nr), "s_waitcnt lgkmcnt(0)", mfmas(1, e))
        if e == 0:
            k("s_branch L_k0_epi")
    k.label("L_k0_epi")
    mid_stamp(k, 1)
    ST = F[0][0]["X"]
    k(f"v_and_b32 v{T0}, 1, v{TOK}", f"v_cmp_eq_u32 vcc, 1, v{T0}", f"v_and_b32 v{T1}, 2, v{TOK}", "s_nop 1",
      f"v_cndmask_b32 v{T0}, v{sxx}, v{sxx+1}, vcc", f"v_cndmask_b32 v{T2}, v{sxx+2}, v{sxx+3}, vcc",
      f"v_cmp_eq_u32 vcc, 2, v{T1}", "s_nop 1",
      f"v_cndmask_b32 v{sx+1}, v{T0}, v{T2}, vcc")
    k(f"s_lshl_b32 s{sT}, s{sTH}, 1", f"s_add_u32 s{sT}, s{sT}, s{sCH}", f"s_lshl_b32 s{sT}, s{sT}, 7", f"s_add_u32 s{sT}, s{sT}, {TBL}",
      f"v_lshl_add_u32 v{T0}, v{TOK}, 3, s{sT}",
      f"s_lshl_b32 s{sT}, s{sCH}, 2", f"s_lshl_b32 s{sT2}, s{sTH}, 1", f"s_add_u32 s{sT}, s{sT}, s{sT2}", f"s_lshl_b32 s{sT}, s{sT}, 6",
      f"s_add_u32 s{sT}, s{sT}, {TBL+512}",
      f"v_lshl_add_u32 v{T1}, v{G}, 4, s{sT}",
      f"ds_write_b128 v{T1}, {vr(cs[0],4)}", f"ds_write_b128 v{T1}, {vr(cs[1],4)} offset:64",
      f"v_cmp_eq_u32 vcc, v{R}, v{G}", "s_and_saveexec_b64 s[42:43], vcc",
      f"ds_write_b64 v{T0}, {vr(sx,2)}", "s_mov_b64 exec, s[42:43]",
      "s_waitcnt lgkmcnt(0)", "s_barrier")
    c2, c3 = F[0][0]["W"][0], F[0][0]["W"][1]
    k(f"v_xor_b32 v{T2}, 128, v{T0}", f"v_xor_b32 v{T1}, 128, v{T1}",
      f"ds_read_b64 {vr(ST[0],2)}, v{T0}", f"ds_read_b64 {vr(ST[1],2)}, v{T2}",
      f"ds_read_b128 {vr(c2,4)}, v{T1}", f"ds_read_b128 {vr(c3,4)}, v{T1} offset:64")
    vQ, vQ1 = vX, vX2
    k(f"v_lshlrev_b32 v{T0}, 9, v{G}", f"v_lshl_add_u32 v{T0}, v{TOK}, 4, v{T0}",
      f"s_lshl_b32 s{sT}, s{sCH}, 8", f"v_add_u32 v{vQ}, s{sT}, v{T0}", f"v_xor_b32 v{vQ1}, 256, v{vQ}")
    sQ0, sQ1, sKV = sX, sWo, sEo
    k(f"s_lshl_b32 s{sT}, s{sTB}, 1", f"s_add_u32 s{sT}, s{sT}, s{sTH}",
      f"s_lshl_b32 s{sT2}, s{sHG}, 2", f"s_lshl_b32 s{sQ0}, s{sCH}, 1", f"s_add_u32 s{sT2}, s{sT2}, s{sQ0}", f"s_add_u32 s{sT2}, s{sT2}, s{sTH}",
      f"s_lshl_b32 s{sQ0}, s{sT2}, 6", f"s_add_u32 s{sQ0}, s{sQ0}, s{sT}", f"s_lshl_b32 s{sQ0}, s{sQ0}, 11",
      f"s_xor_b32 s{sQ1}, s{sQ0}, {1<<17}")
    k("s_waitcnt lgkmcnt(0)")
    for i in range(2):
        s = ST[i]
        k(f"v_mul_f32 v{s}, {f32(1/1024)}, v{s}",
          f"v_mul_f32 v{s+1}, {f32(1/1024)}, v{s+1}",
          f"v_fma_f32 v{s+1}, -v{s}, v{s}, v{s+1}",
          f"v_max_f32 v{s+1}, 0, v{s+1}",
          f"v_add_f32 v{s+1}, {f32(EPS)}, v{s+1}",
          f"v_rsq_f32 v{s+2}, v{s+1}", "s_nop 0",
          f"v_mul_f32 v{s+3}, v{s}, v{s+2}",
          f"v_sub_f32 v{s+3}, 0, v{s+3}",
          f"v_mul_f32 v{s}, {f32(QSCALE)}, v{s+2}",
          f"v_mul_f32 v{s+1}, {f32(QSCALE)}, v{s+3}")
    k(f"s_and_b32 s{sT}, s{sHG}, 3", f"s_cmp_lg_u32 s{sT}, 0", "s_cbranch_scc1 L_k0_q")
    o = F[1][0]["E"]
    for i in range(2):
        a = accE[i]
        for r in range(4):
            k(f"v_mul_f32 v{a+r}, v{ST[i]+2}, v{a+r}", f"v_fmac_f32 v{a+r}, v{ST[i]+3}, v{csE+r}")
        k(f"v_cvt_pk_bf16_f32 v{o+2*i}, v{a}, v{a+1}", f"v_cvt_pk_bf16_f32 v{o+2*i+1}, v{a+2}, v{a+3}")
    k(f"s_lshl_b32 s{sKV}, s{sTB}, 1", f"s_add_u32 s{sKV}, s{sKV}, s{sCH}", f"s_lshl_b32 s{sKV}, s{sKV}, 12",
      f"s_lshl_b32 s{sT}, s{sTH}, 10", f"s_add_u32 s{sKV}, s{sKV}, s{sT}", f"s_add_u32 s{sKV}, s{sKV}, {KVF}",
      f"s_lshl_b32 s{sT}, s{sTH}, 11", f"s_cmp_lg_u32 s{sHG}, 0", "s_cbranch_scc1 L_k0_v")
    k(f"s_lshl_b32 s{sT2}, s{sCH}, 3", f"s_add_u32 s{sT}, s{sT}, s{sT2}",
      f"v_add_u32 v{T0}, s{sT}, v{vQ}", f"v_add_u32 v{T1}, s{sT}, v{vQ1}",
      f"ds_write_b64 v{T0}, {vr(o,2)}", f"ds_write_b64 v{T1}, {vr(o+2,2)}", "s_branch L_k0_kv")
    k.label("L_k0_v")
    k(f"v_and_b32 v{T0}, 1, v{G}", f"v_lshlrev_b32 v{T0}, 7, v{T0}", f"v_lshrrev_b32 v{T1}, 1, v{G}", f"v_lshl_add_u32 v{T0}, v{T1}, 6, v{T0}",
      f"v_bfe_u32 v{T1}, v{L}, 3, 1", f"v_lshl_add_u32 v{T0}, v{T1}, 9, v{T0}", f"v_and_b32 v{T1}, 7, v{L}", f"v_lshl_add_u32 v{T0}, v{T1}, 1, v{T0}",
      f"s_mul_i32 s{sT2}, s{sCH}, 1280", f"s_add_u32 s{sT}, s{sT}, s{sT2}", f"v_add_u32 v{T0}, s{sT}, v{T0}", f"v_xor_b32 v{T1}, 1024, v{T0}",
      f"s_add_u32 s{sKV}, s{sKV}, 2048")
    for i in range(2):
        for r in range(4):
            op = "ds_write_b16" if r % 2 == 0 else "ds_write_b16_d16_hi"
            k(f"{op} v{[T0,T1][i]}, v{o+2*i+r//2} offset:{16*r}")
    k.label("L_k0_kv")
    k("s_waitcnt lgkmcnt(0)", "s_barrier", f"v_lshlrev_b32 v{T0}, 4, v0", f"ds_read_b128 {vr(o,4)}, v{T0}", f"v_lshlrev_b32 v{T0}, 4, v{L}",
      "s_waitcnt lgkmcnt(0)", f"buffer_store_dwordx4 {vr(o,4)}, v{T0}, s[{SWS}:{SWS+3}], s{sKV} offen sc1")
    k.label("L_k0_q")
    csr = [cs[0], cs[1], c2, c3]
    OUTR = F[1][0]["W"]
    for p in range(2):
        for i in range(2):
            o = OUTR[2 * p + i]
            for jt in range(2):
                t = 2 * p + jt
                a = acc[t][i]
                for r in range(4):
                    k(f"v_mul_f32 v{a+r}, v{ST[i]}, v{a+r}", f"v_fmac_f32 v{a+r}, v{ST[i]+1}, v{csr[t]+r}")
                k(f"v_cvt_pk_bf16_f32 v{o+2*jt}, v{a}, v{a+1}", f"v_cvt_pk_bf16_f32 v{o+2*jt+1}, v{a+2}, v{a+3}")
            k(f"buffer_store_dwordx4 {vr(o,4)}, v{[vQ,vQ1][i]}, s[{SWS}:{SWS+3}], s{[sQ0,sQ1][p]} offen sc1")
    tail(k, 0, sW)
    return k


def k1_attn():
    SLOT = 32768
    JB = 3 * SLOT
    k = Kern("attn_kernel", 256, 512, JB + 16384)
    SWS, SKV, SJ = 4, 8, 12
    (sW, sTB, sHG, sC, sT, sT2, sRd, sWr, sKo, sJo, sJa, sJb, sGW, sStr, sDstep, sOo) = range(32, 48)
    sD = [50, 51, 52, 53]
    sCs = [58, 59, 60, 61]
    sDB, sBsz, sWrJ = 62, 63, 64
    v = Alloc(1)
    L, T0, T1, T2, vLin, vRd, IDX = [v() for _ in range(7)]
    Q = [v(8, 4) for _ in range(2)]
    S = [v(16, 4) for _ in range(4)]
    O = [v(16, 4) for _ in range(2)]
    LS = [v(4, 4) for _ in range(2)]
    KB = [v(8, 4) for _ in range(2)]
    VB = [v(8, 4) for _ in range(2)]
    SUMA = v(4, 4)
    k.vgpr = k.acc = (v.n + 7) // 8 * 8
    h = Alloc(8)
    vJ, vJB, vCs = h(), h(), h()
    aJ = [h() for _ in range(4)]
    bJ = [h() for _ in range(2)]
    JF = [h(4, 4) for _ in range(4)]
    CS = [h(4, 4) for _ in range(4)]
    ONES = h(4, 4)
    head(k)
    k(f"s_load_dwordx2 s[{SWS}:{SWS+1}], s[0:1], {A_WS}",
      f"s_load_dwordx2 s[20:21], s[0:1], {A_WO}",
      f"s_load_dwordx4 s[24:27], s[0:1], {A_WG}",
      f"s_load_dwordx2 s[28:29], s[0:1], {A_WD}")
    k(f"v_lshrrev_b32 v{T1}, 6, v0", f"v_and_b32 v{L}, 63, v0", f"v_readfirstlane_b32 s{sW}, v{T1}", f"v_lshlrev_b32 v{vLin}, 4, v{L}")
    k("s_nop 1", f"s_cmp_lt_u32 s{sW}, 4", "s_cbranch_scc1 L_k1_comp")
    k(f"s_and_b32 s{sW}, s{sW}, 3", f"s_lshl_b32 s{sKo}, s{sW}, 13", f"s_mov_b32 s{sWr}, s{sKo}")
    k("s_waitcnt lgkmcnt(0)", ws_shift(SWS))
    k(srd_from(SKV, SWS, KVF, 262144))

    def kv_dma(c):
        o = []
        for hh in range(2):
            o += [f"s_add_u32 m0, s{sWr}, {(c%3)*SLOT+4096*hh}", "s_nop 0"]
            for i in range(4):
                o.append(f"buffer_load_dwordx4 v{vLin}, s[{SKV}:{SKV+3}], s{sKo} offen offset:{1024*i} lds")
            o.append(f"s_add_u32 s{sKo}, s{sKo}, {4096 if hh == 0 else 32768-4096}")
        return o
    k(kv_dma(0), kv_dma(1), srd_tail(SWS, WS_SZ))
    k(f"s_lshl_b32 s{sGW}, s2, 2", f"s_add_u32 s{sGW}, s{sGW}, s{sW}",
      f"s_lshl_b32 s{sWrJ}, s{sW}, 12", f"s_add_u32 s{sWrJ}, s{sWrJ}, {JB}")
    k(f"v_lshrrev_b32 v{T0}, 4, v{L}", f"v_lshlrev_b32 v{T0}, 10, v{T0}", f"v_bfe_u32 v{T1}, v{L}, 2, 2", f"v_lshl_add_u32 v{T0}, v{T1}, 7, v{T0}",
      f"v_bfe_u32 v{T1}, v{L}, 3, 1", f"v_lshl_add_u32 v{T0}, v{T1}, 6, v{T0}", f"v_add_u32 v{T0}, s{sWrJ}, v{T0}", f"v_and_b32 v{T1}, 3, v{L}",
      f"v_lshl_add_u32 v{bJ[0]}, v{T1}, 4, v{T0}", f"v_xor_b32 v{bJ[1]}, 64, v{bJ[0]}")
    strip, kb0, mat = 66, 67, 68
    k(f"s_lshr_b32 s{strip}, s{sGW}, 3", f"s_and_b32 s{kb0}, s{sGW}, 7", f"s_lshl_b32 s{kb0}, s{kb0}, 2",
      f"s_cmp_ge_u32 s{strip}, 112", "s_cbranch_scc1 L_k1_wo")
    k(f"s_cmp_ge_u32 s{strip}, 56", f"s_cselect_b32 s{mat}, 1, 0",
      f"s_cselect_b32 s{SJ}, s26, s24", f"s_cselect_b32 s{SJ+1}, s27, s25",
      f"s_mul_i32 s{sT}, s{mat}, 56", f"s_sub_u32 s{strip}, s{strip}, s{sT}",
      f"s_mov_b32 s{SJ+2}, {1024*7168}", f"s_mov_b32 s{sStr}, 7168", f"s_mov_b32 s{sDstep}, {14*1024}",
      f"s_mov_b32 s{sBsz}, {3584*2048}",
      f"v_lshl_add_u32 v{aJ[0]}, v{T1}, 3, v{T0}")
    for i in range(1, 4):
        k(f"v_xor_b32 v{aJ[i]}, {32*i}, v{aJ[0]}")
    for i in range(4):
        T, fb, pos = 69, 70, 71
        k(f"s_lshl_b32 s{T}, s{strip}, 2", f"s_add_u32 s{T}, s{T}, {i}",
          f"s_mul_i32 s{fb}, s{T}, 9363", f"s_lshr_b32 s{fb}, s{fb}, 16",
          f"s_sub_u32 s{pos}, s{mat}, s{fb}", f"s_mul_i32 s{pos}, s{pos}, 7", f"s_add_u32 s{pos}, s{T}, s{pos}",
          f"s_lshl_b32 s{sT}, s{fb}, 5", f"s_add_u32 s{sT}, s{sT}, s{kb0}", f"s_mul_i32 s{sT}, s{sT}, 14",
          f"s_add_u32 s{sT}, s{sT}, s{pos}", f"s_lshl_b32 s{sT}, s{sT}, 10", f"s_add_u32 s{sD[i]}, s{sT}, {WGU}",
          f"s_lshl_b32 s{sT}, s{kb0}, 3", f"s_add_u32 s{sT}, s{sT}, s{fb}", f"s_mul_i32 s{sT}, s{sT}, 14",
          f"s_add_u32 s{sT}, s{sT}, s{pos}", f"s_lshl_b32 s{sT}, s{sT}, 6", f"s_add_u32 s{sCs[i]}, s{sT}, {CSP}")
    k("s_branch L_k1_jp")
    k.label("L_k1_wo")
    k(f"s_sub_u32 s{strip}, s{strip}, 112", f"s_mov_b32 s{SJ}, s20", f"s_mov_b32 s{SJ+1}, s21",
      f"s_mov_b32 s{SJ+2}, {2*MB}", f"s_mov_b32 s{sStr}, 2048", f"s_mov_b32 s{sDstep}, 8192", f"s_mov_b32 s{sBsz}, 0",
      f"s_lshr_b32 s{sT}, s{strip}, 1", f"s_lshl_b32 s{sT}, s{sT}, 5", f"s_add_u32 s{sT}, s{sT}, s{kb0}", f"s_lshl_b32 s{sT}, s{sT}, 1",
      f"s_and_b32 s{sT2}, s{strip}, 1", f"s_add_u32 s{sT}, s{sT}, s{sT2}", f"s_lshl_b32 s{sT}, s{sT}, 12")
    for i in range(4):
        k(f"s_add_u32 s{sD[i]}, s{sT}, {WOF+1024*i}", f"s_mov_b32 s{sCs[i]}, {OOB}", f"v_add_u32 v{aJ[i]}, {8*(i&1)}, v{bJ[i>>1]}")
    k.label("L_k1_jp")
    k(f"s_mov_b32 s{SJ+3}, 0x00020000")
    k(f"v_lshrrev_b32 v{T0}, 3, v{L}", f"v_bfe_u32 v{T1}, v{L}, 4, 1", f"v_lshlrev_b32 v{T1}, 2, v{T1}",
      f"v_and_b32 v{T2}, 7, v{L}", f"v_xor_b32 v{T1}, v{T1}, v{T2}", f"v_lshlrev_b32 v{T1}, 4, v{T1}",
      f"v_mul_lo_u32 v{vJ}, v{T0}, s{sStr}", f"v_lshl_add_u32 v{vJB}, v{T0}, 11, v{T1}", f"v_add_u32 v{vJ}, v{vJ}, v{T1}",
      f"s_lshl_b32 s{sT}, s{kb0}, 5", f"s_mul_i32 s{sT}, s{sT}, s{sStr}", f"s_lshl_b32 s{sT2}, s{strip}, 7", f"s_add_u32 s{sT}, s{sT}, s{sT2}",
      f"v_add_u32 v{vJ}, s{sT}, v{vJ}",
      f"s_lshl_b32 s{sT}, s{sStr}, 3", f"s_sub_u32 s{sJa}, s{sT}, 1024", f"s_add_u32 s{sJb}, s{sT}, 3072", f"s_mov_b32 s{sJo}, 0")
    k(f"s_mul_i32 s{strip}, s{sGW}, 1171", f"s_lshr_b32 s{strip}, s{strip}, 16",
      f"s_mul_i32 s{sT}, s{strip}, 56", f"s_sub_u32 s{kb0}, s{sGW}, s{sT}", f"s_lshl_b32 s{kb0}, s{kb0}, 1",
      f"s_lshl_b32 s{sT}, s{kb0}, 16", f"s_lshl_b32 s{sT2}, s{strip}, 7", f"s_add_u32 s{sT}, s{sT}, s{sT2}",
      f"v_add_u32 v{vJB}, s{sT}, v{vJB}",
      f"s_lshr_b32 s{sT}, s{strip}, 1", f"s_mul_i32 s{sT}, s{sT}, 112", f"s_add_u32 s{sT}, s{sT}, s{kb0}", f"s_lshl_b32 s{sT}, s{sT}, 1",
      f"s_and_b32 s{sT2}, s{strip}, 1", f"s_add_u32 s{sT}, s{sT}, s{sT2}", f"s_lshl_b32 s{sT}, s{sT}, 12",
      f"s_add_u32 s{sDB}, s{sT}, {WDF}", f"s_cmp_eq_u32 s{sBsz}, 0", f"s_cselect_b32 s{sDB}, {OOB}, s{sDB}")
    k(f"v_and_b32 v{T0}, 15, v{L}", f"v_cmp_eq_u32 vcc, 0, v{T0}", f"v_mov_b32 v{T1}, {OOB}", "s_nop 0",
      f"v_cndmask_b32 v{vCs}, v{T1}, v{L}, vcc")
    for i in range(4):
        k(f"v_mov_b32 v{ONES+i}, 0x3f803f80")
    k("s_waitcnt vmcnt(8)", "s_barrier")
    vm = []

    def wait_for(tag):
        n = len(vm) - 1 - max(i for i, t in enumerate(vm) if t == tag)
        return f"s_waitcnt vmcnt({n})"
    vm += ["kv1"] * 8
    for c in range(8):
        if c + 2 < 8:
            k(kv_dma(c + 2)); vm += [f"kv{c+2}"] * 8
        j = c - 1
        proc = 0 <= j < 6 and not OPT.get("nojob")
        if proc:
            k(wait_for(f"j{j}"))
            for f in range(4):
                for jj in range(2):
                    if j < 4:
                        k(f"ds_read_b64_tr_b16 {vr(JF[f]+2*jj,2)}, v{aJ[f]} offset:{jj*512}")
                    else:
                        k(f"ds_read_b64_tr_b16 {vr(JF[f]+2*jj,2)}, v{bJ[f>>1]} offset:{jj*512+(f&1)*8}")
            k("s_waitcnt lgkmcnt(0)")
        if c < 6 and not OPT.get("nojob"):
            if c == 4:
                k(f"s_mov_b32 s{SJ}, s28", f"s_mov_b32 s{SJ+1}, s29", f"s_mov_b32 s{SJ+2}, s{sBsz}",
                  f"s_mov_b32 s{sJo}, 0", f"s_mov_b32 s{sJa}, {16384-1024}", f"s_mov_b32 s{sJb}, {16384+3072}")
            k(f"s_mov_b32 m0, s{sWrJ}", "s_nop 0")
            for i in range(4):
                k(f"buffer_load_dwordx4 v{vJ if c < 4 else vJB}, s[{SJ}:{SJ+3}], s{sJo} offen offset:{1024*i}{' nt' if OPT.get('jnt', 0) else ''} lds",
                  f"s_add_u32 s{sJo}, s{sJo}, s{sJa if i < 3 else sJb}")
            vm += [f"j{c}"] * 4
        if proc:
            for f in range(4):
                if j < 4:
                    k(f"buffer_store_dwordx4 {vr(JF[f],4)}, v{vLin}, s[{SWS}:{SWS+3}], s{sD[f]} offen sc1",
                      f"s_add_u32 s{sD[f]}, s{sD[f]}, s{sDstep}",
                      m16(vr(CS[f], 4), vr(JF[f], 4), vr(ONES, 4), "0" if j == 0 else None))
                else:
                    k(f"buffer_store_dwordx4 {vr(JF[f],4)}, v{vLin}, s[{SWS}:{SWS+3}], s{sDB} offen offset:{1024*f} sc1")
            vm += ["st"] * 4
            if j == 4:
                k(f"s_add_u32 s{sDB}, s{sDB}, 8192")
                for f in range(4):
                    k(f"buffer_store_dwordx4 {vr(CS[f],4)}, v{vCs}, s[{SWS}:{SWS+3}], s{sCs[f]} offen sc1")
                vm += ["st"] * 4
        if c + 1 < 8:
            k(wait_for(f"kv{c+1}"), "s_barrier")
    k("s_endpgm")
    k.label("L_k1_comp")
    ids_8x4(k, sHG, sTB, sT)
    k(f"s_lshl_b32 s{sT}, s{sHG}, 2", f"s_add_u32 s{sT}, s{sT}, s{sW}",
      f"s_lshl_b32 s{sOo}, s{sTB}, 5", f"s_add_u32 s{sOo}, s{sOo}, s{sT}", f"s_lshl_b32 s{sOo}, s{sOo}, 12", f"s_add_u32 s{sOo}, s{sOo}, {OF}",
      f"s_lshl_b32 s{sT}, s{sT}, 17", f"s_lshl_b32 s{sT2}, s{sTB}, 12", f"s_add_u32 s{sT}, s{sT}, s{sT2}")
    k("s_waitcnt lgkmcnt(0)", ws_shift(SWS))
    k(srd_tail(SWS, WS_SZ))
    for q in range(2):
        for m in range(2):
            k(f"buffer_load_dwordx4 {vr(Q[q]+4*m,4)}, v{vLin}, s[{SWS}:{SWS+3}], s{sT} offen offset:{2048*q+1024*m}")
    k(srd_from(SKV, SWS, KVF, 262144))
    k(f"v_and_b32 v{T0}, 7, v{L}", f"v_mov_b32 v{T1}, 0x3f803f80", f"v_cmp_eq_u32 vcc, 0, v{T0}", f"v_mov_b32 v{vRd}, v{vLin}", f"v_mov_b32 v{IDX}, 0xdddd",
      f"v_cndmask_b32 v{SUMA}, 0, v{T1}, vcc", f"v_cndmask_b32 v{SUMA+1}, 0, v{T1}, vcc",
      f"v_cmp_eq_u32 vcc, 4, v{T0}", "s_nop 1",
      f"v_cndmask_b32 v{SUMA+2}, 0, v{T1}, vcc", f"v_cndmask_b32 v{SUMA+3}, 0, v{T1}, vcc")
    for r0, n in ((O[0], 16), (O[1], 16), (LS[0], 4), (LS[1], 4), (S[3], 16), (VB[1], 8)):
        for i in range(n):
            k(f"v_mov_b32 v{r0+i}, 0")
    k(f"s_mov_b32 s{sRd}, 0", f"s_mov_b32 s{sC}, 8")
    k("s_waitcnt vmcnt(0)", "s_barrier")
    mid_stamp(k, 0)
    rdK = lambda t: [f"ds_read_b128 {vr(KB[t&1]+4*m,4)}, v{vRd} offset:{(t%8)*4096+1024*m}" for m in range(2)]
    rdV = lambda t: [f"ds_read_b128 {vr(VB[t&1]+4*m,4)}, v{vRd} offset:{(t%8)*4096+2048+1024*m}" for m in range(2)]
    qk = lambda u, c="0": [m32(vr(S[u % 4], 16), vr(KB[(u >> 1) & 1], 4), vr(Q[u & 1], 4), c),
                           m32(vr(S[u % 4], 16), vr(KB[(u >> 1) & 1] + 4, 4), vr(Q[u & 1] + 4, 4))]
    pv = lambda u: [f"v_smfmac_f32_32x32x32_bf16 {vr(O[u&1],16)}, {vr(VB[(u>>1)&1]+4*m,4)}, {vr(S[u%4]+8*m,8)}, v{IDX}" for m in range(2)]
    sm = lambda u: [f"v_smfmac_f32_16x16x64_bf16 {vr(LS[u&1],4)}, {vr(SUMA,4)}, {vr(S[u%4]+8*m,8)}, v{IDX}" for m in range(2)]
    k(rdK(0), rdV(0), "s_waitcnt lgkmcnt(0)", qk(0), "s_nop 7", "s_nop 3")
    k(".p2align 6")
    k.label("L_k1_loop")
    for u in range(16):
        ex = [f"v_exp_f32 v{S[u%4]+i}, v{S[u%4]+i}" for i in range(16)]
        mf = qk(u + 1) + pv(u - 1) + sm(u - 1)
        sl = [[] for _ in range(6)]
        t = u >> 1
        rd = rdK(t + 1) if u % 2 == 0 else rdV(t + 1)
        if u == 13:
            sl[2] += [f"s_add_u32 s{sRd}, s{sRd}, {SLOT}"]
            sl[3] += [f"s_cmp_eq_u32 s{sRd}, {3*SLOT}"]
            sl[4] += [f"s_cselect_b32 s{sRd}, 0, s{sRd}"]
            sl[5] += ["s_waitcnt lgkmcnt(0)", f"v_add_u32 v{vRd}, s{sRd}, v{vLin}"]
        if u == 14:
            sl[0] += ["s_barrier"]
            sl[1].append(rd[0]); sl[2].append(rd[1])
        else:
            sl[0].append(rd[0]); sl[1].append(rd[1])
        if u == 15:
            sl[2] += [f"s_sub_u32 s{sC}, s{sC}, 1"]
            sl[3] += [f"s_cmp_lg_u32 s{sC}, 0"]
        if u % 2 == 0:
            sl[5].append("s_waitcnt lgkmcnt(0)")
        cuts = [0, 3, 6, 9, 12, 14, 16]
        for i in range(6):
            k(mf[i], sl[i], ex[cuts[i]:cuts[i + 1]])
    k("s_cbranch_scc1 L_k1_loop")
    mid_stamp(k, 1)
    k("s_nop 1", pv(15), sm(15))
    vO = vRd
    k(f"v_bfe_u32 v{T0}, v{L}, 4, 1", f"v_lshlrev_b32 v{T0}, 10, v{T0}", f"v_lshrrev_b32 v{T1}, 5, v{L}", f"v_lshl_add_u32 v{T0}, v{T1}, 8, v{T0}",
      f"v_and_b32 v{T1}, 15, v{L}", f"v_lshl_add_u32 v{vO}, v{T1}, 4, v{T0}")
    k("s_nop 15", "s_waitcnt lgkmcnt(0)")
    k(f"v_maximum3_f32 v{T0}, abs(v{O[0]}), abs(v{O[0]+1}), v{LS[0]}", f"v_maximum3_f32 v{T1}, abs(v{O[1]}), abs(v{O[1]+1}), v{LS[1]}")
    for i in range(2, 16, 2):
        k(f"v_maximum3_f32 v{T0}, abs(v{O[0]+i}), abs(v{O[0]+i+1}), v{T0}", f"v_maximum3_f32 v{T1}, abs(v{O[1]+i}), abs(v{O[1]+i+1}), v{T1}")
    k(f"v_maximum3_f32 v{T0}, v{T0}, v{T1}, v{T1}", f"v_min_f32 v{T1}, v{LS[0]}, v{LS[1]}",
      f"v_cmp_nge_f32 vcc, {f32(2.0**100)}, v{T0}", f"s_mov_b64 s[70:71], vcc",
      f"v_cmp_nle_f32 vcc, {f32(2.0**-80)}, v{T1}", f"s_or_b64 s[70:71], s[70:71], vcc")
    if OPT["force_slow"]:
        k("s_branch L_k1_slow")
    k("s_cbranch_scc1 L_k1_slow")
    k.label("L_k1_out")
    k(f"v_rcp_f32 v{T0}, v{LS[0]}", f"v_rcp_f32 v{T1}, v{LS[1]}", "s_nop 0")
    for q in range(2):
        for m in range(2):
            o = S[0] + 8 * q + 4 * m
            for i in range(8):
                k(f"v_mul_f32 v{O[q]+8*m+i}, v{[T0,T1][q]}, v{O[q]+8*m+i}")
            for i in range(4):
                k(f"v_cvt_pk_bf16_f32 v{o+i}, v{O[q]+8*m+2*i}, v{O[q]+8*m+2*i+1}")
            k(f"buffer_store_dwordx4 {vr(o,4)}, v{vO}, s[{SWS}:{SWS+3}], s{sOo} offen offset:{2048*q+512*m} sc1")
    k("s_branch L_k1_done")
    k.label("L_k1_slow")
    C = [S[2], S[3]]
    ldK = [f"buffer_load_dwordx4 {vr(KB[0]+4*m,4)}, v{vLin}, s[{SKV}:{SKV+3}], s{sKo} offen offset:{1024*m}" for m in range(2)]
    ldV = [f"buffer_load_dwordx4 {vr(VB[0]+4*m,4)}, v{vLin}, s[{SKV}:{SKV+3}], s{sKo} offen offset:{2048+1024*m}" for m in range(2)]
    k(f"v_mov_b32 v{T0}, 0xff800000", f"v_mov_b32 v{T1}, 0xff800000", f"s_mov_b32 s{sKo}, 0")
    k.label("L_k1_s1")
    k(ldK, "s_waitcnt vmcnt(0)", qk(0), qk(1), "s_nop 15")
    for q in range(2):
        for i in range(0, 16, 2):
            k(f"v_max3_f32 v{[T0,T1][q]}, v{S[q]+i}, v{S[q]+i+1}, v{[T0,T1][q]}")
    k(f"s_add_u32 s{sKo}, s{sKo}, 4096", f"s_cmp_lt_u32 s{sKo}, 262144", "s_cbranch_scc1 L_k1_s1")
    for q in range(2):
        t = [T0, T1][q]
        k(f"v_mov_b32 v{T2}, v{t}", "s_nop 1", f"v_permlane32_swap_b32 v{t}, v{T2}", "s_nop 1", f"v_max_f32 v{t}, v{t}, v{T2}")
        for i in range(16):
            k(f"v_sub_f32 v{C[q]+i}, 0, v{t}", f"v_mov_b32 v{O[q]+i}, 0")
        for i in range(4):
            k(f"v_mov_b32 v{LS[q]+i}, 0")
    k(f"s_mov_b32 s{sKo}, 0")
    k.label("L_k1_s2")
    k(ldK, ldV, "s_waitcnt vmcnt(0)", qk(0, vr(C[0], 16)), qk(1, vr(C[1], 16)), "s_nop 15")
    for q in range(2):
        for i in range(16):
            k(f"v_exp_f32 v{S[q]+i}, v{S[q]+i}")
    k("s_nop 1", pv(0), sm(0), pv(1), sm(1))
    k(f"s_add_u32 s{sKo}, s{sKo}, 4096", f"s_cmp_lt_u32 s{sKo}, 262144", "s_cbranch_scc1 L_k1_s2")
    k("s_nop 15", "s_nop 7", "s_branch L_k1_out")
    k.label("L_k1_done")
    tail(k, 1, sW)
    return k


def k_gemm(name, kidx, K, tok_region, w_region, is_down):
    D = OPT.get("gd", 4)
    STG, NS = 24576, D + 2
    N = K // 64
    k = Kern(name, 256, 512, STG * NS)
    SWS, ST_, SW_, SR, SO = 4, 8, 12, 16, 20
    sW, sTB, sNB, sN, sT, sT2, sRd, sWr, sTo, sWo, sTH, sCH, sRes, sDW = range(28, 42)
    v = Alloc(1)
    L, G, TOK, T0, T1, vLin, bT, bW, aT, aW, vRow = [v() for _ in range(11)]
    F = [[dict(X=[v(4, 4) for _ in range(2)], W=[v(4, 4) for _ in range(4)]) for s in range(2)] for _ in range(2)]
    acc = [[v(4, 4) for i in range(2)] for t in range(4)]
    RES = [[v(4, 4) for b in range(2)] for i in range(2)]
    k.vgpr = k.acc = (v.n + 7) // 8 * 8
    head(k)
    k(f"s_load_dwordx2 s[{SWS}:{SWS+1}], s[0:1], {A_WS}",
      f"s_load_dwordx2 s[{SO}:{SO+1}], s[0:1], {A_OUT if is_down else A_X}")
    k(f"v_lshrrev_b32 v{T1}, 6, v0", f"v_and_b32 v{L}, 63, v0", f"v_readfirstlane_b32 s{sW}, v{T1}", f"v_lshlrev_b32 v{vLin}, 4, v{L}")
    ids_8x4(k, sNB, sTB, sT)
    k(f"s_cmp_lt_u32 s{sW}, 4", f"s_cbranch_scc1 L_{name}_comp")
    k(f"s_and_b32 s{sW}, s{sW}, 3",
      f"s_lshl_b32 s{sTo}, s{sW}, 11", f"s_lshl_b32 s{sWo}, s{sW}, 12", f"s_mov_b32 s{sWr}, s{sTo}",
      f"s_add_u32 s{sDW}, s{sTo}, 8192")
    rot = K == 1024 and OPT.get("rot2", 0)
    if rot:
        k(f"s_lshl_b32 s{sT}, s{sNB}, 1", f"s_add_u32 s{sT}, s{sT}, s{sTB}", f"s_and_b32 s{sT}, s{sT}, 7",
          f"s_lshl_b32 s{sT2}, s{sT}, 14", f"s_add_u32 s{sTo}, s{sTo}, s{sT2}", f"s_lshl_b32 s{sT2}, s{sT}, 15", f"s_add_u32 s{sWo}, s{sWo}, s{sT2}")
    k(f"s_mul_i32 s{sT}, s{sTB}, {K*128}", f"s_add_u32 s{sT}, s{sT}, {tok_region}",
      f"s_mul_i32 s{sT2}, s{sNB}, {K*256}", f"s_add_u32 s{sT2}, s{sT2}, {w_region}")
    k("s_waitcnt lgkmcnt(0)", ws_shift(SWS))
    k(srd_from(ST_, SWS, f"s{sT}", K * 128), srd_from(SW_, SWS, f"s{sT2}", K * 256))

    def dma_stage():
        o = [f"s_mov_b32 m0, s{sWr}", "s_nop 0"]
        for i in range(2):
            o.append(f"buffer_load_dwordx4 v{vLin}, s[{ST_}:{ST_+3}], s{sTo} offen offset:{1024*i} lds")
        o += [f"s_add_u32 m0, s{sWr}, s{sDW}", f"s_add_u32 s{sTo}, s{sTo}, 8192"]
        for i in range(4):
            o.append(f"buffer_load_dwordx4 v{vLin}, s[{SW_}:{SW_+3}], s{sWo} offen offset:{1024*i} lds")
        o += [f"s_add_u32 s{sWo}, s{sWo}, 16384", f"s_add_u32 s{sWr}, s{sWr}, {STG}", f"s_cmp_ge_u32 s{sWr}, {STG*NS}",
              f"s_cselect_b32 s{sT}, {STG*NS}, 0", f"s_sub_u32 s{sWr}, s{sWr}, s{sT}"]
        if rot:
            o += [f"s_and_b32 s{sTo}, s{sTo}, {K*128-1}", f"s_and_b32 s{sWo}, s{sWo}, {K*256-1}"]
        return o
    k(f"s_mov_b32 s{sN}, {N}")
    k.label(f"L_{name}_ld")
    k(dma_stage())
    k(f"s_sub_u32 s{sN}, s{sN}, 1", f"s_cmp_lg_u32 s{sN}, 0")
    k(f"s_waitcnt vmcnt({6*D})", "s_barrier", f"s_cbranch_scc1 L_{name}_ld")
    for d in range(D - 1, -1, -1):
        k(f"s_waitcnt vmcnt({6*d})", "s_barrier")
    if is_down:
        k("s_endpgm")
    else:
        hop(k, sW)
    k.label(f"L_{name}_comp")
    k(f"s_and_b32 s{sTH}, s{sW}, 1", f"s_lshr_b32 s{sCH}, s{sW}, 1")
    k(f"v_lshrrev_b32 v{G}, 4, v{L}", f"v_and_b32 v{TOK}, 15, v{L}",
      f"v_lshlrev_b32 v{T0}, 11, v{TOK}", f"v_lshl_add_u32 v{T0}, v{G}, 4, v{T0}",
      f"s_lshl_b32 s{sN}, s{sTB}, 1", f"s_add_u32 s{sN}, s{sN}, s{sTH}", f"s_lshl_b32 s{sN}, s{sN}, 16",
      f"s_lshl_b32 s{sRes}, s{sNB}, 1", f"s_add_u32 s{sRes}, s{sRes}, s{sCH}", f"s_lshl_b32 s{sRd}, s{sRes}, 7",
      f"s_add_u32 s{sN}, s{sN}, s{sRd}", f"v_add_u32 v{vRow}, s{sN}, v{T0}")
    k(f"s_lshl_b32 s{sRes}, s{sRes}, 13", f"s_lshl_b32 s{sN}, s{sTB}, 17", f"s_add_u32 s{sRes}, s{sRes}, s{sN}",
      f"s_lshl_b32 s{sN}, s{sTH}, 11", f"s_add_u32 s{sRes}, s{sRes}, s{sN}", f"s_add_u32 s{sRes}, s{sRes}, {HF}")
    k(f"s_lshl_b32 s{sT}, s{sTH}, 11", f"v_add_u32 v{bT}, s{sT}, v{vLin}",
      f"s_lshl_b32 s{sT}, s{sCH}, 12", f"s_add_u32 s{sT}, s{sT}, 8192", f"v_add_u32 v{bW}, s{sT}, v{vLin}",
      f"v_mov_b32 v{aT}, v{bT}", f"v_mov_b32 v{aW}, v{bW}")
    k("s_waitcnt lgkmcnt(0)", ws_shift(SWS))
    k(srd_tail(SWS, WS_SZ), srd_tail(SO, 4 * MB))
    for _ in range(NS - 2):
        k("s_barrier")
    k(f"s_add_u32 s{sT2}, s{sRes}, 4096", f"s_mov_b32 s{sN}, 32768")
    for i in range(2):
        for b in range(2):
            if is_down:
                k(f"buffer_load_dwordx4 {vr(RES[i][b],4)}, v{vLin}, s[{SWS}:{SWS+3}], s{[sRes,sT2][b]} offen offset:{1024*i}")
            else:
                k(f"buffer_load_dwordx4 {vr(RES[i][b],4)}, v{vRow}, s[{SO}:{SO+3}], {['0', f's{sN}'][i]} offen offset:{64*b}{' nt' if OPT.get('jnt', 0) else ''}")
    for t in range(4):
        for i in range(2):
            for r in range(4):
                k(f"v_mov_b32 v{acc[t][i]+r}, 0")

    def reads(f):
        o = []
        for s in range(2):
            o += [f"ds_read_b128 {vr(F[f][s]['X'][i],4)}, v{aT} offset:{s*4096+i*1024}" for i in range(2)]
            o += [f"ds_read_b128 {vr(F[f][s]['W'][t],4)}, v{aW} offset:{s*8192+t*1024}" for t in range(4)]
        return o

    def mfmas(f):
        return [m16(vr(acc[t][i ^ (t & 1)], 4), vr(F[f][s]["W"][t], 4), vr(F[f][s]["X"][i ^ (t & 1)], 4))
                for t in range(4) for i in range(2) for s in range(2)]
    adv = [[f"s_add_u32 s{sRd}, s{sRd}, {STG}", f"s_cmp_eq_u32 s{sRd}, {STG*NS}"], [f"s_cselect_b32 s{sRd}, 0, s{sRd}"],
           [f"v_add_u32 v{aT}, s{sRd}, v{bT}", f"v_add_u32 v{aW}, s{sRd}, v{bW}"]]
    k(f"s_mov_b32 s{sRd}, 0", f"s_mov_b32 s{sN}, {N//2-1}")
    k("s_barrier")
    mid_stamp(k, 0)
    k(reads(0), adv, "s_waitcnt lgkmcnt(0)")
    k(".p2align 6")
    k.label(f"L_{name}_loop")
    for f in range(2):
        k("s_barrier")
        m = weave(mfmas(f), reads(1 - f), 0, 9)
        tl = adv + ([[f"s_sub_u32 s{sN}, s{sN}, 1", f"s_cmp_lg_u32 s{sN}, 0"]] if f == 1 else [])
        k(weave(m, tl, len(m) - 6, len(m) - 1))
        k("s_waitcnt lgkmcnt(0)")
    k(f"s_cbranch_scc1 L_{name}_loop")
    k("s_barrier")
    k(weave(mfmas(0), reads(1), 0, 9), "s_waitcnt lgkmcnt(0)", mfmas(1))
    mid_stamp(k, 1)
    k("s_waitcnt vmcnt(0)", f"s_mov_b32 s{sN}, 32768", "s_nop 5")
    SUM = F[0][0]["X"]
    U = F[0][0]["W"][0]
    for i in range(2):
        if not is_down:
            k(f"v_mov_b32 v{SUM[i]}, 0", f"v_mov_b32 v{SUM[i]+1}, 0")
        for b in range(2):
            o = F[0][1]["W"][2 * i + b]
            for jt in range(2):
                a = acc[2 * b + jt][i]
                for h in range(2):
                    r = RES[i][b] + 2 * jt + h
                    k(f"v_lshlrev_b32 v{U}, 16, v{r}", f"v_and_b32 v{U+1}, 0xffff0000, v{r}",
                      f"v_add_f32 v{a+2*h}, v{a+2*h}, v{U}", f"v_add_f32 v{a+2*h+1}, v{a+2*h+1}, v{U+1}",
                      f"v_cvt_pk_bf16_f32 v{o+2*jt+h}, v{a+2*h}, v{a+2*h+1}")
            if is_down:
                k(f"buffer_store_dwordx4 {vr(o,4)}, v{vRow}, s[{SO}:{SO+3}], {['0', f's{sN}'][i]} offen offset:{64*b} sc1")
            else:
                k(f"buffer_store_dwordx4 {vr(o,4)}, v{vLin}, s[{SWS}:{SWS+3}], s{[sRes,sT2][b]} offen offset:{1024*i} sc1")
    if not is_down:
        for t in range(4):
            for r in range(4):
                for i in range(2):
                    a = acc[t][i] + r
                    k(f"v_add_f32 v{SUM[i]}, v{SUM[i]}, v{a}", f"v_fmac_f32 v{SUM[i]+1}, v{a}, v{a}")
        k("s_nop 1", f"v_permlane32_swap_b32 v{SUM[0]}, v{SUM[0]+1}", f"v_permlane32_swap_b32 v{SUM[1]}, v{SUM[1]+1}", "s_nop 0",
          f"v_add_f32 v{SUM[0]}, v{SUM[0]}, v{SUM[0]+1}", f"v_add_f32 v{SUM[1]}, v{SUM[1]}, v{SUM[1]+1}",
          f"v_lshlrev_b32 v{T0}, 2, v{L}", "s_nop 0",
          f"v_permlane16_swap_b32 v{SUM[0]}, v{SUM[1]}",
          f"s_lshl_b32 s{sT}, s{sTB}, 1", f"s_add_u32 s{sT}, s{sT}, s{sTH}", f"s_lshl_b32 s{sT}, s{sT}, 12",
          f"v_add_f32 v{SUM[0]}, v{SUM[0]}, v{SUM[1]}",
          f"s_lshl_b32 s{sT2}, s{sNB}, 1", f"s_add_u32 s{sT2}, s{sT2}, s{sCH}", f"s_lshl_b32 s{sT2}, s{sT2}, 8",
          f"s_add_u32 s{sT}, s{sT}, s{sT2}", f"s_add_u32 s{sT}, s{sT}, {STP}",
          f"buffer_store_dword v{SUM[0]}, v{T0}, s[{SWS}:{SWS+3}], s{sT} offen sc1")
    tail(k, kidx, sW)
    return k


class Op:
    def __init__(self, text, kind="v", needs=(), bar=False):
        self.text, self.kind, self.needs, self.bar = text, kind, list(needs), bar
        self.seq = None

    @property
    def cost(self):
        return 8 if self.kind == "t" else 4


def emit_stream(k, ops, nl=0, nv=0):
    cnt = {"lds": nl, "vm": nv}
    done = {"lds": 0, "vm": 0}
    for o in ops:
        if o.kind in cnt:
            cnt[o.kind] += 1
            o.seq = cnt[o.kind]
            k(o.text)
        elif o.kind == "wait":
            parts = []
            for kind, nm, mx in (("vm", "vmcnt", 63), ("lds", "lgkmcnt", 15)):
                need = [x.seq for x in o.needs if x.kind == kind]
                assert None not in need, "wait on an op that was not issued yet"
                tgt = cnt[kind] if (o.bar and kind == "lds") else max(need, default=0)
                if tgt > done[kind]:
                    n = cnt[kind] - tgt
                    assert n <= mx or kind == "vm"
                    parts.append(f"{nm}({min(n, mx)})")
                    done[kind] = tgt
            if parts:
                k("s_waitcnt " + " ".join(parts))
            if o.bar:
                k("s_barrier")
        else:
            k(o.text)
    return cnt


def k3_gateup():
    STG, NS = 28672, 5
    TBL = NS * STG
    k = Kern("gateup_kernel", 256, 256, TBL + 1024 + 2048)
    SWS, ST_, SW_ = 4, 8, 12
    sW, sMB, sFB, sN, sT, sT2, sTo, sWo, sWr, sTB, sA0, sA1, sSt, sCp = range(28, 42)
    v = Alloc(1)
    vLin, vR1, vR2, vCs, vSt, vTid, vOut = [v() for _ in range(7)]
    PA = [v(2, 2) for _ in range(4)]
    SD = [v(2, 2) for _ in range(2)]
    TA, TB_, TC = v(4, 4), v(4, 4), v(4, 4)
    assert v.n <= 32, v.n
    acc = [[32 + (a * 4 + b) * 4 for b in range(4)] for a in range(14)]
    TK = [[[32 * n + 16 * s + 4 * b for b in range(4)] for s in range(2)] for n in range(NS)]
    WF = [[160 + 8 * n + 4 * s for s in range(2)] for n in range(4)]
    SP, CP = 192, 224
    k.vgpr, k.acc = 256 + 232, 256
    head(k)
    k(f"s_load_dwordx2 s[{SWS}:{SWS+1}], s[0:1], {A_WS}")
    k(f"v_lshrrev_b32 v{TA}, 6, v0", f"v_and_b32 v{TA+1}, 63, v0", f"v_readfirstlane_b32 s{sW}, v{TA}", f"v_lshlrev_b32 v{vLin}, 4, v{TA+1}")
    k(f"s_lshr_b32 s{sT}, s2, 3", f"s_lshr_b32 s{sMB}, s{sT}, 2", f"s_and_b32 s{sT}, s{sT}, 3",
      f"s_and_b32 s{sFB}, s2, 7", f"s_lshl_b32 s{sFB}, s{sFB}, 2", f"s_add_u32 s{sFB}, s{sFB}, s{sT}",
      f"s_lshl_b32 s{sTB}, s{sMB}, 2", f"s_add_u32 s{sTB}, s{sTB}, s{sW}",
      f"s_lshl_b32 s{sT}, s{sTB}, 17", f"s_add_u32 s{sT}, s{sT}, {HF}",
      f"s_mul_i32 s{sT2}, s{sFB}, {32*14*1024}", f"s_add_u32 s{sT2}, s{sT2}, {WGU}",
      f"s_mul_i32 s{sWo}, s{sW}, 7168", f"s_mov_b32 s{sWr}, s{sWo}", f"s_mov_b32 s{sTo}, 0")
    k("s_waitcnt lgkmcnt(0)", ws_shift(SWS))
    k(srd_from(ST_, SWS, f"s{sT}", 131072), srd_from(SW_, SWS, f"s{sT2}", 32 * 14 * 1024))

    def vm_stage(n):
        o = []
        for i in range(7):
            pre, post = [], []
            if i % 4 == 0:
                pre = [f"s_add_u32 m0, s{sWr}, {(n%NS)*STG+1024*i}"]
            if i == 3:
                post = [f"s_add_u32 s{sWo}, s{sWo}, 4096"]
            if i == 6:
                post = [f"s_add_u32 s{sWo}, s{sWo}, {STG-4096}"]
            o.append((pre, Op(f"buffer_load_dwordx4 v{vLin}, s[{SW_}:{SW_+3}], s{sWo} offen offset:{1024*(i%4)} lds", "vm"), post, n))
        for s in range(2):
            for b in range(4):
                post = [f"s_add_u32 s{sTo}, s{sTo}, 4096"] if b == 3 else []
                o.append(([], Op(f"buffer_load_dwordx4 {ar(TK[n%NS][s][b],4)}, v{vLin}, s[{ST_}:{ST_+3}], s{sTo} offen offset:{1024*b}", "vm"), post, n))
        return o
    VM = [vm_stage(n) for n in range(16)]
    stat_ld = [([], Op(f"buffer_load_dwordx4 {ar(SP+4*i,4)}, v{vLin}, s[{SWS}:{SWS+3}], s{sSt} offen offset:{1024*(i%4)}", "vm"),
                [f"s_add_u32 s{sSt}, s{sSt}, 4096"] if i == 3 else [], None) for i in range(8)]
    cs_ld = [([], Op(f"buffer_load_dword {ar(CP+p)}, v{vTid}, s[{SWS}:{SWS+3}], s{sCp} offen", "vm"),
              [f"s_add_u32 s{sCp}, s{sCp}, {32*896}"], None) for p in range(8)]
    pro = []
    for n in range(2):
        for pre, ld, post, _ in VM[n]:
            pro += [Op(x, "s") for x in pre] + ([Op("s_nop 0", "s")] if pre else []) + [ld] + [Op(x, "s") for x in post]
        if n == 0:
            pro.append(Op("s_barrier", "s"))
    misc = srd_tail(SWS, WS_SZ) + [
        f"s_lshl_b32 s{sSt}, s{sTB}, 13", f"s_add_u32 s{sSt}, s{sSt}, {STP}",
        f"s_mul_i32 s{sCp}, s{sFB}, 896", f"s_add_u32 s{sCp}, s{sCp}, {CSP}",
        f"v_add_u32 v{vR1}, {2*STG}, v{vLin}", f"v_add_u32 v{vR2}, {4*STG}, v{vLin}",
        f"v_lshlrev_b32 v{vTid}, 2, v0",
        f"v_lshrrev_b32 v{TA}, 4, v{TA+1}", f"v_lshlrev_b32 v{vCs}, 4, v{TA}", f"v_add_u32 v{vCs}, {TBL}, v{vCs}",
        f"v_and_b32 v{TA+2}, 1, v{TA}", f"v_lshlrev_b32 v{TA+2}, 10, v{TA+2}", f"v_lshrrev_b32 v{TA}, 1, v{TA}",
        f"v_lshl_add_u32 v{TA+2}, v{TA}, 8, v{TA+2}", f"v_and_b32 v{TA+1}, 15, v{TA+1}", f"v_lshl_add_u32 v{vOut}, v{TA+1}, 4, v{TA+2}",
        f"s_lshl_b32 s{sT}, s{sW}, 9", f"s_add_u32 s{sT}, s{sT}, {TBL+1024}", f"v_lshl_add_u32 v{vSt}, v{TA+1}, 2, s{sT}",
        f"s_mul_i32 s{sT}, s{sTB}, {112*4096}", f"s_add_u32 s{sT}, s{sT}, {AF}", f"s_mul_i32 s{sT2}, s{sFB}, 7",
        f"s_lshr_b32 s{sA0}, s{sT2}, 1", f"s_lshl_b32 s{sA0}, s{sA0}, 12", f"s_add_u32 s{sA0}, s{sA0}, s{sT}",
        f"s_and_b32 s{sT2}, s{sT2}, 1", f"s_lshl_b32 s{sT}, s{sT2}, 9", f"s_add_u32 s{sA0}, s{sA0}, s{sT}",
        f"s_cmp_eq_u32 s{sT2}, 0", f"s_cselect_b32 s{sT}, 512, {0}", f"s_cselect_b32 s{sT2}, 0, {4096-512}",
        f"s_add_u32 s{sA1}, s{sA0}, s{sT}", f"s_add_u32 s{sA1}, s{sA1}, s{sT2}"]
    pro += [Op(x, "s") for x in misc]
    if OPT.get("k3pf", 1):
        pro += [Op(x, "s") for x in ["s_getpc_b64 s[16:17]", f"s_lshr_b32 s{sT}, s2, 3", f"s_lshl_b32 s{sT}, s{sT}, 10",
                                     f"v_add_u32 v{TA}, s{sT}, v{vTid}", f"v_min_u32 v{TA}, L_code_end-L_k3_pf-4, v{TA}", "L_k3_pf:"]]
        pro.append(Op(f"global_load_dword v{TC}, v{TA}, s[16:17]", "vm"))

    order = [a for p in range(7) for a in (p, p + 7)]
    S0 = 12
    seq = [(n, a) for n in range(S0) for a in order]
    seq += [(n, a) for p in range(7) for n in range(S0, 16) for a in (p, p + 7)]
    NT_ = len(seq)
    mf, fixed = [], [[] for _ in range(8 * NT_)]
    RD = []
    for gt, (n, a) in enumerate(seq):
        sl = n % NS
        RD.append([Op(f"ds_read_b128 {ar(WF[gt%4][s],4)}, v{[vLin,vR1,vR2][sl>>1]} offset:{(sl&1)*STG+s*14336+a*1024}", "lds") for s in range(2)])
        bs = range(4) if gt % 2 == 0 else range(3, -1, -1)
        for b in bs:
            for s in range(2):
                mf.append(Op(m16(vr(acc[a][b], 4), ar(WF[gt % 4][s], 4), ar(TK[sl][s][b], 4), "0" if (n == 0 and s == 0) else None), "m"))
    first = {}
    for gt, (n, a) in enumerate(seq):
        first.setdefault(n, gt)
    barpos = {}
    for gt in range(NT_):
        if gt + 2 < NT_:
            fixed[8 * gt].append(RD[gt + 2][0]); fixed[8 * gt + 1].append(RD[gt + 2][1])
        newst = [n for n in range(1, 16) if first[n] == gt + 3]
        if newst:
            fixed[8 * gt + 7].append(Op("", "wait", [x[1] for x in VM[newst[0]]], bar=True))
            barpos[newst[0]] = 8 * gt + 7
        elif gt + 1 < NT_:
            fixed[8 * gt + 7].append(Op("", "wait", RD[gt + 1]))
    flat = VM[2] + VM[3] + VM[4] + stat_ld + cs_ld + [x for n in range(5, 16) for x in VM[n]]
    slots = [8 * gt + o for gt in range(S0 * 14) for o in (3, 6)]
    nsl = len(slots) - 2 * OPT.get("k3lead", 8)
    vpos = {}
    si = -1
    for i, (pre, ld, post, n) in enumerate(flat):
        si = max(si + 1, (i * nsl) // len(flat))
        if n is not None and n >= NS:
            lim = barpos[n - NS + 1] + 2 if "lds" in ld.text else 8 * 14 * (n - NS + 1)
            while slots[si] < lim:
                si += 1
        p = slots[si]
        fixed[p - 1] += [Op(x, "s") for x in pre]
        fixed[p] += [ld] + [Op(x, "s") for x in post]
        vpos[id(ld)] = p
    used = [sum(o.cost for o in f if not (o.kind == "wait" and False)) for f in fixed]
    flo = [[] for _ in fixed]

    def flow(ops, start, deadline=None):
        p = start
        for o in ops:
            while used[p] + o.cost > 8:
                p += 1
            flo[p].append(o); used[p] += o.cost
        assert deadline is None or p < deadline, (p, deadline)
        return p + 1

    def spread(ops, start, stop):
        tot = sum(o.cost for o in ops) + sum(used[start:stop])
        cap = max(8.0, tot / (stop - start))
        p, acc_used, acc_cap = start, used[start], cap
        for o in ops:
            while acc_used + o.cost > acc_cap + 2 and p < stop - 1:
                p += 1
                if cap == 8.0:
                    acc_used, acc_cap = used[p], cap
                else:
                    acc_used += used[p]; acc_cap += cap
            flo[p].append(o); acc_used += o.cost
        return p
    V = lambda t: Op(t, "v")
    st = [Op("", "wait", [x[1] for x in stat_ld + cs_ld])]
    st += [V(f"v_accvgpr_read_b32 v{TA}, a{CP}")]
    for p in range(1, 8):
        st += [V(f"v_accvgpr_read_b32 v{TB_}, a{CP+p}"), V(f"v_add_f32 v{TA}, v{TA}, v{TB_}")]
    st += [V(f"v_add_u32 v{vTid}, {TBL}, v{vTid}"), Op(f"ds_write_b32 v{vTid}, v{TA}", "lds")]
    st += [V(f"v_and_b32 v{TB_}, 0xf0, v{vLin}"), V(f"v_and_b32 v{TB_+1}, 0xffffffc0, v{vSt}"), V(f"v_add_u32 v{vTid}, v{TB_}, v{TB_+1}")]
    wr = []
    for hf in range(2):
        A = [TA, TC][hf]
        st += [V(f"v_accvgpr_read_b32 v{A+r}, a{SP+16*hf+r}") for r in range(4)]
        for i in range(1, 4):
            st += [V(f"v_accvgpr_read_b32 v{TB_+r}, a{SP+16*hf+4*i+r}") for r in range(4)]
            st += [V(f"v_add_f32 v{A+r}, v{A+r}, v{TB_+r}") for r in range(4)]
        for op in ("v_permlane16_swap_b32", "v_permlane32_swap_b32"):
            st += [V(f"v_mov_b32 v{TB_+r}, v{A+r}") for r in range(4)]
            st += [V(f"{op} v{A+r}, v{TB_+r}") for r in range(4)]
            st += [V(f"v_add_f32 v{A+r}, v{A+r}, v{TB_+r}") for r in range(4)]
        wr.append(Op(f"ds_write_b128 v{vTid}, {vr(A,4)} offset:{256*hf}", "lds"))
        st.append(wr[-1])
    rd = [Op(f"ds_read2_b32 {vr(PA[b],2)}, v{vSt} offset0:{64*(b>>1)+16*(b&1)+32} offset1:{64*(b>>1)+16*(b&1)}", "lds") for b in range(4)]
    st += rd + [V("v_nop")] * 6 + [Op("", "wait", rd)]
    for b in range(4):
        sd = SD[b >> 1] + (b & 1)
        st += [V(f"v_mul_f32 v{PA[b]+1}, {f32(-1/1024)}, v{PA[b]+1}"),
               V(f"v_mul_f32 v{PA[b]}, {f32(1/1024)}, v{PA[b]}"),
               V(f"v_fma_f32 v{PA[b]}, -v{PA[b]+1}, v{PA[b]+1}, v{PA[b]}"),
               V(f"v_max_f32 v{PA[b]}, 0, v{PA[b]}"),
               V(f"v_add_f32 v{sd}, {f32(EPS)}, v{PA[b]}"),
               Op(f"v_rsq_f32 v{PA[b]}, v{sd}", "t"), V("v_nop"),
               V(f"v_mul_f32 v{sd}, v{sd}, v{PA[b]}"),
               V(f"v_mul_f32 v{PA[b]}, {f32(-LOG2E)}, v{PA[b]}")]
    p = flow(st, vpos[id(cs_ld[-1][1])] + 90)
    n0 = min(n for n in range(1, S0) if barpos[n] >= p)
    p = barpos[n0] + 1
    todo = list(order)
    step = (8 * 14 * S0 - 40 - p) // 14
    for i in range(14):
        cur = lambda a: all(seq[q // 8][1] != a for q in range(p - 2, p + 48))
        cand = [a for a in todo if cur(a)]
        while not cand:
            p += 4
            cand = [a for a in todo if cur(a)]
        a = cand[0]
        todo.remove(a)
        C = [TA, TC][i & 1]
        r = Op(f"ds_read_b128 {vr(C,4)}, v{vCs} offset:{64*a}", "lds")
        ops = [V(f"v_fmac_f32 v{acc[a][b]+e}, v{PA[b]+1}, v{C+e}") for b in range(4) for e in range(4)]
        q = flow([r], p)
        q = flow([Op("", "wait", [r])] + ops, q + 6, p + 46)
        p = max(q, p + min(step, 24))
    assert p < 8 * 14 * S0 + 60, p
    def epi(pr, packed):
        o = []
        for bb in (0, 2):
            d = acc[pr][bb]
            for b in (bb, bb + 1):
                g_, u = acc[pr][b], acc[pr + 7][b]
                sd = SD[b >> 1] + (b & 1)
                if packed:
                    sel = f"op_sel:[0,{b&1},{b&1}] op_sel_hi:[1,{b&1},{b&1}]"
                    o += [V(f"v_pk_mul_f32 {vr(g_+h,2)}, {vr(g_+h,2)}, {vr(PA[b],2)} op_sel:[0,0] op_sel_hi:[1,0]") for h in (0, 2)]
                    o += [Op(f"v_exp_f32 v{g_+r}, v{g_+r}", "t") for r in range(4)]
                    o += [V(f"v_pk_fma_f32 {vr(g_+h,2)}, {vr(g_+h,2)}, {vr(SD[b>>1],2)}, {vr(SD[b>>1],2)} {sel}") for h in (0, 2)]
                    o += [Op(f"v_rcp_f32 v{g_+r}, v{g_+r}", "t") for r in range(4)]
                    o += [V(f"v_pk_mul_f32 {vr(u+h,2)}, {vr(u+h,2)}, {vr(g_+h,2)}") for h in (0, 2)]
                else:
                    o += [V(f"v_mul_f32 v{g_+r}, v{PA[b]}, v{g_+r}") for r in range(4)]
                    o += [Op(f"v_exp_f32 v{g_+r}, v{g_+r}", "t") for r in range(4)]
                    o += [V(f"v_fma_f32 v{g_+r}, v{g_+r}, v{sd}, v{sd}") for r in range(4)]
                    o += [Op(f"v_rcp_f32 v{g_+r}, v{g_+r}", "t") for r in range(4)]
                    o += [V(f"v_mul_f32 v{u+r}, v{u+r}, v{g_+r}") for r in range(4)]
                o += [V(f"v_cvt_pk_bf16_f32 v{d+2*(b&1)}, v{u}, v{u+1}"), V(f"v_cvt_pk_bf16_f32 v{d+2*(b&1)+1}, v{u+2}, v{u+3}")]
            o += [V("v_nop"), V(f"v_permlane16_swap_b32 v{d}, v{d+2}"), V(f"v_permlane16_swap_b32 v{d+1}, v{d+3}")]
            sa = [sA0, sA1][pr & 1]
            o.append(Op(f"buffer_store_dwordx4 {vr(d,4)}, v{vOut}, s[{SWS}:{SWS+3}], s{sa} offen offset:{1024*bb} sc1", "vm"))
        o.append(Op(f"s_add_u32 s{sa}, s{sa}, 4096", "s"))
        return o
    run = 8 * 2 * (16 - S0)
    t0 = 8 * 14 * S0
    for pr in range(6):
        spread(epi(pr, False), t0 + run * (pr + 1) + (0 if pr else 0), t0 + run * (pr + 2))
    if OPT.get("isl", 1):
        pro.append(Op(island(), "s"))
    ops = pro + [Op("", "wait", [x[1] for x in VM[0]], bar=True)]
    if OPT["stamp"]:
        ops.append(Op("s_memrealtime s[96:97]\ns_memtime s[84:85]\ns_waitcnt lgkmcnt(0)", "s"))
    ops += RD[0] + RD[1] + [Op("", "wait", RD[0])]
    ops_seg0 = len(pro)
    prof = [112 * n for n in range(S0)] + [t0 + run * pr for pr in range(7)] if OPT.get("prof") else []
    nbytes, last = 4, ops_seg0
    for i, m in enumerate(mf):
        if OPT.get("isl", 1):
            nbytes += sum(isize(o.text) for o in ops[last:])
            last = len(ops)
            if nbytes > 3960 and not fixed[i - 1]:
                ops.append(Op(island(), "s"))
                nbytes, last = 4, len(ops)
        if i in prof:
            j = prof.index(i)
            ops.append(Op(f"s_memtime s[{44+2*j}:{45+2*j}]", "s"))
        nv = [o for o in flo[i]]
        late = [o for o in fixed[i] if o.kind == "wait"]
        ops += [m] + [o for o in fixed[i] if o.kind != "wait"] + late + nv
    if OPT["stamp"]:
        ops.append(Op("s_memrealtime s[98:99]\ns_memtime s[86:87]", "s"))
    ops += epi(6, True)
    emit_stream(k, ops)
    if prof:
        k("s_waitcnt lgkmcnt(0)", "s_lshl_b32 s3, s89, 2", f"s_add_u32 s3, s3, s{sW}", "s_lshl_b32 s3, s3, 7", f"s_add_u32 s3, s3, {STAMP+2*MB}")
        for j in range(len(prof) + 1):
            k(f"v_mov_b32 v1, s{44+2*j if j < len(prof) else 86}", f"v_mov_b32 v0, s3", f"global_store_dword v0, v1, s[90:91] offset:{4*j}")
    tail(k, 3, sW)
    return k


HEADER = open("sequential_preLN__grouped_kv_mqa__glu_gated_glu__prompt.s.ref").read().split("; Override launch")[0]


def build():
    ks = [k0_qkv(), k1_attn(), k_gemm("oproj_kernel", 2, 1024, OF, WOF, False), k3_gateup(),
          k_gemm("down_kernel", 4, 3584, AF, WDF, True)]
    s = HEADER + "".join(ks[int(c)].launch_line() + "\n" for c in str(OPT.get("seq", "".join(str(i) for i in range(len(ks))))).lstrip("9"))
    s += '.amdgcn_target "amdgcn-amd-amdhsa--gfx950"\n.text\n'
    for i, k in enumerate(ks):
        s += k.text()
        if i == 0:
            s += "L_code_rest:\n"
    s += "L_code_end:\n"
    for n in ISL:
        s = s.replace(f"@ISL{n}@", f"s_branch L_isl{n+4}" if n + 4 < len(ISL) else "s_endpgm")
    s += '.section .rodata,"a"\n' + "".join(k.desc() for k in ks)
    return s


if __name__ == "__main__":
    out = sys.argv[1]
    for a in sys.argv[2:]:
        key, _, val = a.partition("=")
        OPT[key] = int(val) if val else True
    open(out, "w").write(build())
```

```python
import sys, math
sys.path.insert(0, __file__.rsplit("/", 1)[0])
from asmlib import *

MB = 1 << 20
QF, KVF, OF, HF, AF = 0, 4 * MB, 5 * MB, 9 * MB, 13 * MB
WOF, WGU, WDF, CSP, STP, STAMP = 28 * MB, 30 * MB, 44 * MB, 52 * MB, 53 * MB, 60 * MB
WS_SZ = 64 * MB
OOB = 0x40000000
LOG2E = 1.4426950408889634
QSCALE = LOG2E / math.sqrt(32.0)
EPS = 1e-5
OPT = dict(stamp=False, force_slow=False)
A_X, A_WQ, A_WK, A_WV, A_WO, A_WG, A_WU, A_WD, A_OUT, A_WS = 0, 8, 16, 24, 32, 48, 56, 64, 72, 88


def ws_shift(s):
    if OPT.get("wsoff"):
        return [f"s_add_u32 s{s}, s{s}, {OPT['wsoff']*MB}", f"s_addc_u32 s{s+1}, s{s+1}, 0"]
    return []


ISL = []


def island():
    n = len(ISL)
    ISL.append(n)
    return f"s_branch L_isl{n}_over\n.p2align 12\nL_isl{n}:\n@ISL{n}@\nL_isl{n}_over:"


def isize(text):
    import re
    t = 0
    for ln in text.split("\n"):
        ln = ln.strip()
        if not ln:
            t += 8
        elif ln.endswith(":") or ln.startswith("."):
            continue
        elif re.match(r"(v_mfma|v_smfmac|ds_|buffer_|global_|s_load|s_mem|v_fma_|v_cvt_pk|v_accvgpr|v_pk_|v_lshl_add|v_bfe|v_max3|v_maximum3|v_mul_lo)", ln):
            t += 8
        else:
            lit = [x for x in re.findall(r"(?<![\w\[:])(0x[0-9a-f]+|\d+)(?![\w\]:])", ln.split(None, 1)[1] if " " in ln else "") if int(x, 0) > 64]
            t += 8 if lit else 4
    return t


def hop(k, sw):
    if OPT.get("isl", 1) and not OPT.get("nohop"):
        for w in range(3):
            k(f"s_cmp_eq_u32 s{sw}, {w}", f"s_cbranch_scc1 L_isl{w}")
        k("s_branch L_isl3")
    else:
        k("s_endpgm")


def srd_tail(s, size):
    return [f"s_mov_b32 s{s+2}, {size}", f"s_mov_b32 s{s+3}, 0x00020000"]


def srd_from(s, base, off, size):
    return [f"s_add_u32 s{s}, s{base}, {off}", f"s_addc_u32 s{s+1}, s{base+1}, 0"] + srd_tail(s, size)


def head(k):
    k("s_cmp_ge_u32 s2, 256", f"s_cbranch_scc1 L_end_{k.name}")
    if OPT["stamp"]:
        k("s_memrealtime s[92:93]", "s_load_dwordx2 s[90:91], s[0:1], 88", "s_mov_b32 s89, s2")


def mid_stamp(k, i):
    if OPT["stamp"]:
        k(f"s_memrealtime s[{96+2*i}:{97+2*i}]", f"s_memtime s[{84+2*i}:{85+2*i}]")


def tail(k, kidx, swave):
    if OPT["stamp"]:
        k("s_waitcnt vmcnt(0)", "s_memrealtime s[94:95]", "s_waitcnt lgkmcnt(0)",
          "v_mov_b32 v0, s92", "v_mov_b32 v1, s96", "v_mov_b32 v2, s98", "v_mov_b32 v3, s94",
          "s_lshl_b32 s89, s89, 2", f"s_add_u32 s89, s89, s{swave}", "s_lshl_b32 s89, s89, 4",
          f"s_add_u32 s89, s89, {STAMP + kidx*16384}", "v_mov_b32 v4, s89",
          "global_store_dwordx4 v4, v[0:3], s[90:91]",
          "s_sub_u32 s86, s86, s84", "v_mov_b32 v5, s86", "v_add_u32 v4, 0x100000, v4", "global_store_dword v4, v5, s[90:91]")
    k.label(f"L_end_{k.name}")
    k("s_endpgm")


def ids_8x4(k, s_a, s_b, tmp):
    k(f"s_lshr_b32 s{tmp}, s2, 3",
      f"s_and_b32 s{s_a}, s{tmp}, 3",
      f"s_lshr_b32 s{s_b}, s{tmp}, 2",
      f"s_and_b32 s{tmp}, s2, 1",
      f"s_lshl_b32 s{tmp}, s{tmp}, 2",
      f"s_add_u32 s{s_a}, s{s_a}, s{tmp}",
      f"s_and_b32 s{tmp}, s2, 6",
      f"s_lshl_b32 s{tmp}, s{tmp}, 2",
      f"s_add_u32 s{s_b}, s{s_b}, s{tmp}")


def code_prefetch(k, vtmp, vdst, stmp, start, nkb_per_wg=1):
    k(f"s_getpc_b64 s[{stmp}:{stmp+1}]")
    lab = f"L_pc_{k.name}_{start}"
    k.label(lab)
    k(f"s_add_u32 s{stmp}, s{stmp}, {start}-{lab}",
      f"s_addc_u32 s{stmp+1}, s{stmp+1}, 0",
      f"global_load_dwordx4 {vr(vdst,4)}, v{vtmp}, s[{stmp}:{stmp+1}]" if not OPT.get("nopf") else None)


def k0_qkv():
    D = 3
    STG, NS = 28672, D + 2
    TBL = STG * NS
    k = Kern("qkv_kernel", 256, 512, TBL + 1024)
    SX, SWQ, SE, SWS = 4, 8, 12, 16
    sW, sTB, sHG, sN, sX, sWo, sEo, sRd, sWr, sT, sT2, sTH, sCH, sBW = range(24, 38)
    NT = " nt" if OPT.get("k0nt", 0) else ""
    v = Alloc(1)
    L, G, R, CQ, TOK, T0, T1, T2 = [v() for _ in range(8)]
    vX, vX2, vE = v(), v(), v()
    vW = [v() for _ in range(4)]
    bX = [[v() for i in range(2)] for s in range(2)]
    bW = [v() for _ in range(4)]
    bE = v()
    aX = [[v() for i in range(2)] for s in range(2)]
    aW = [v() for _ in range(4)]
    aE = v()
    F = [[dict(X=[v(4, 4) for _ in range(2)], W=[v(4, 4) for _ in range(4)], E=v(4, 4)) for s in range(2)] for _ in range(2)]
    acc0 = v.n = (v.n + 3) // 4 * 4
    acc = [[v(4, 4) for i in range(2)] for t in range(4)]
    accE = [v(4, 4) for i in range(2)]
    cs = [v(4, 4) for _ in range(2)]
    csE, sx, sxx = v(4, 4), v(4, 4), v(4, 4)
    acc1 = v.n
    ONES = v(4, 4)
    PF = v(4, 4)
    k.vgpr = k.acc = (v.n + 7) // 8 * 8
    head(k)
    k(f"s_load_dwordx2 s[{SX}:{SX+1}], s[0:1], {A_X}",
      f"s_load_dwordx2 s[{SWQ}:{SWQ+1}], s[0:1], {A_WQ}",
      f"s_load_dwordx4 s[20:23], s[0:1], {A_WK}",
      f"s_load_dwordx2 s[{SWS}:{SWS+1}], s[0:1], {A_WS}")
    k(f"v_lshlrev_b32 v{T0}, 4, v0")
    code_prefetch(k, T0, PF, 40, "L_k0_body")
    k.label("L_k0_body")
    k(f"v_lshrrev_b32 v{T1}, 6, v0", f"v_and_b32 v{L}, 63, v0", f"v_readfirstlane_b32 s{sW}, v{T1}")
    ids_8x4(k, sHG, sTB, sT)
    k(f"v_lshrrev_b32 v{G}, 4, v{L}", f"v_and_b32 v{TOK}, 15, v{L}")
    k(f"s_and_b32 s{sTH}, s{sW}, 1", f"s_bfe_u32 s{sCH}, s{sW}, 0x10001",
      f"s_cmp_lt_u32 s{sW}, 4", "s_cbranch_scc1 L_k0_comp")
    k(f"s_and_b32 s{sW}, s{sW}, 3")
    k(f"v_lshrrev_b32 v{T0}, 3, v{L}",
      f"s_lshl_b32 s{sT}, s{sTH}, 2",
      f"v_add_u32 v{T1}, s{sT}, v{G}",
      f"v_and_b32 v{T2}, 7, v{L}",
      f"v_xor_b32 v{T1}, v{T1}, v{T2}",
      f"s_lshl_b32 s{sT}, s{sTB}, 6",
      f"s_lshl_b32 s{sT2}, s{sW}, 3",
      f"s_add_u32 s{sT}, s{sT}, s{sT2}",
      f"v_add_u32 v{T0}, s{sT}, v{T0}",
      f"v_lshlrev_b32 v{T0}, 11, v{T0}",
      f"v_lshl_add_u32 v{vX}, v{T1}, 4, v{T0}",
      f"v_add_u32 v{vX2}, 0x10000, v{vX}")
    k(f"v_lshlrev_b32 v{T1}, 1, v{G}",
      f"v_xor_b32 v{T1}, v{T1}, v{TOK}",
      f"s_lshl_b32 s{sT}, s{sTH}, 3",
      f"v_xor_b32 v{T1}, s{sT}, v{T1}",
      f"s_lshl_b32 s{sBW}, s{sTH}, 1",
      f"s_add_u32 s{sBW}, s{sBW}, s{sCH}",
      f"s_lshl_b32 s{sT}, s{sBW}, 13",
      f"s_lshl_b32 s{sT2}, s{sHG}, 8",
      f"s_add_u32 s{sT}, s{sT}, s{sT2}",
      f"v_lshlrev_b32 v{T0}, 11, v{G}",
      f"v_add_u32 v{T0}, s{sT}, v{T0}",
      f"v_lshl_add_u32 v{vW[0]}, v{T1}, 4, v{T0}")
    for i in range(1, 4):
        k(f"v_add_u32 v{vW[i]}, {32768*i}, v{vW[0]}")
    k(f"v_lshrrev_b32 v{T0}, 5, v{L}",
      f"v_lshlrev_b32 v{T0}, 1, v{T0}",
      f"v_xor_b32 v{T0}, v{T0}, v{L}",
      f"s_lshl_b32 s{sT}, s{sW}, 10",
      f"v_lshl_add_u32 v{vE}, v{T0}, 4, s{sT}")
    k(f"s_sub_u32 s{sBW}, s{sBW}, s{sW}", f"s_lshl_b32 s{sBW}, s{sBW}, 10", f"s_add_u32 s{sBW}, s{sBW}, 8192",
      f"s_lshl_b32 s{sWr}, s{sW}, 10", f"s_mov_b32 s{sN}, 16")
    k(f"s_lshl_b32 s{sT}, s{sHG}, 1", f"s_add_u32 s{sT}, s{sT}, s{sTB}", f"s_and_b32 s{sT}, s{sT}, {7 if OPT.get('rot', 0) else 0}",
      f"s_lshl_b32 s{sX}, s{sT}, 8", f"s_lshl_b32 s{sWo}, s{sT}, 18", f"s_lshl_b32 s{sEo}, s{sT}, 13")
    k("s_waitcnt lgkmcnt(0)")
    k(srd_tail(SX, 4 * MB), srd_tail(SWQ, 2 * MB))
    k(f"s_cmp_eq_u32 s{sHG}, 0", f"s_cselect_b32 s{SE}, s20, s22", f"s_cselect_b32 s{SE+1}, s21, s23", srd_tail(SE, 0x10000),
      f"s_and_b32 s{sT}, s{sHG}, 3", f"s_cmp_eq_u32 s{sT}, 0", "s_cbranch_scc1 L_k0_ld1")
    for e in range(2):
        k.label(f"L_k0_ld{e}")
        k(f"s_mov_b32 m0, s{sWr}", f"s_add_u32 s{sT}, s{sWr}, s{sBW}", f"buffer_load_dwordx4 v{vX}, s[{SX}:{SX+3}], s{sX} offen{NT} lds",
          f"s_add_u32 m0, s{sWr}, 4096", "s_nop 0", f"buffer_load_dwordx4 v{vX2}, s[{SX}:{SX+3}], s{sX} offen{NT} lds")
        for i in range(4):
            k(f"s_add_u32 m0, s{sT}, {4096*i}", "s_nop 0", f"buffer_load_dwordx4 v{vW[i]}, s[{SWQ}:{SWQ+3}], s{sWo} offen{NT} lds")
        if e:
            k(f"s_add_u32 m0, s{sWr}, 24576", "s_nop 0", f"buffer_load_dwordx4 v{vE}, s[{SE}:{SE+3}], s{sEo} offen{NT} lds",
              f"s_add_u32 s{sEo}, s{sEo}, 4096", f"s_and_b32 s{sEo}, s{sEo}, 0xffff")
        k(f"s_add_u32 s{sWo}, s{sWo}, 0x20000", f"s_and_b32 s{sWo}, s{sWo}, 0x1fffff",
          f"s_add_u32 s{sWr}, s{sWr}, {STG}", f"s_cmp_ge_u32 s{sWr}, {TBL}", f"s_cselect_b32 s{sT}, {TBL}, 0",
          f"s_sub_u32 s{sWr}, s{sWr}, s{sT}", f"s_add_u32 s{sX}, s{sX}, 128", f"s_and_b32 s{sX}, s{sX}, 2047",
          f"s_sub_u32 s{sN}, s{sN}, 1", f"s_cmp_lg_u32 s{sN}, 0")
        k(f"s_waitcnt vmcnt({(6+e)*D})", "s_barrier", f"s_cbranch_scc1 L_k0_ld{e}")
        for d in range(D - 1, -1, -1):
            k(f"s_waitcnt vmcnt({(6+e)*d})", "s_barrier")
        if e == 0:
            k("s_branch L_k0_ldx")
    k.label("L_k0_ldx")
    k(f"s_lshr_b32 s{sT}, s2, 3", f"s_lshl_b32 s{sT}, s{sT}, 11", f"v_and_b32 v{T0}, 255, v0", f"v_lshlrev_b32 v{T0}, 3, v{T0}",
      f"v_add_u32 v{T0}, s{sT}, v{T0}")
    k(f"s_getpc_b64 s[40:41]")
    k.label("L_k0_pc2")
    k("s_add_u32 s40, s40, L_code_rest-L_k0_pc2", "s_addc_u32 s41, s41, 0",
      f"v_min_u32 v{T0}, L_code_end-L_code_rest-4, v{T0}",
      f"global_load_dword v{PF}, v{T0}, s[40:41]" if not OPT.get("nopf") else None)
    k("s_endpgm")
    k.label("L_k0_comp")
    if OPT.get("touch"):
        st = OPT["touch"] * 1024
        k(f"s_load_dwordx2 s[44:45], s[0:1], {A_WO}", f"s_load_dwordx2 s[48:49], s[0:1], {A_WG}", f"s_load_dwordx2 s[52:53], s[0:1], {A_WU}",
          f"s_load_dwordx2 s[56:57], s[0:1], {A_WD}", f"s_load_dwordx2 s[60:61], s[0:1], {A_OUT}", f"s_load_dwordx2 s[64:65], s[0:1], {A_WS}",
          f"s_load_dwordx2 s[68:69], s[0:1], {A_X}", f"s_load_dwordx2 s[72:73], s[0:1], {A_WQ}")
        k(f"s_lshr_b32 s{sT}, s2, 3", f"v_lshlrev_b32 v{T0}, 5, v0", f"v_add_u32 v{T0}, s{sT}, v{T0}", f"s_mov_b32 s{sT}, {st}",
          f"v_min_u32 v{T0}, {(0xfffffff0)//st}, v{T0}", f"v_mul_lo_u32 v{T0}, v{T0}, s{sT}", "s_waitcnt lgkmcnt(0)")
        for s_, sz in ((68, 4 * MB), (72, 2 * MB), (64, 54 * MB), (44, 2 * MB), (48, 7 * MB), (52, 7 * MB), (56, 7 * MB), (60, 4 * MB)):
            k(srd_tail(s_, sz))
            for rep in range(-(-sz // (st * 8192))):
                k(f"s_mov_b32 s{sT}, {rep*st*8192}", f"buffer_load_dword v{PF}, v{T0}, s[{s_}:{s_+3}], s{sT} offen")
    for _ in range(D):
        k("s_barrier")
    k(f"v_bfe_u32 v{R}, v{L}, 2, 2", f"v_and_b32 v{CQ}, 3, v{L}")
    k(f"v_lshrrev_b32 v{T0}, 1, v{TOK}", f"v_xor_b32 v{T0}, v{T0}, v{G}", f"v_lshlrev_b32 v{T0}, 4, v{T0}",
      f"v_lshl_add_u32 v{T0}, v{TOK}, 7, v{T0}",
      f"s_lshl_b32 s{sT}, s{sTH}, 1", f"s_add_u32 s{sT}, s{sT}, s{sCH}", f"s_lshl_b32 s{sT}, s{sT}, 11",
      f"v_add_u32 v{bX[0][0]}, s{sT}, v{T0}",
      f"v_xor_b32 v{bX[0][1]}, 2048, v{bX[0][0]}",
      f"v_xor_b32 v{bX[1][0]}, 64, v{bX[0][0]}",
      f"v_xor_b32 v{bX[1][1]}, 64, v{bX[0][1]}")
    k(f"v_and_b32 v{T2}, 1, v{G}",
      f"v_lshlrev_b32 v{T0}, 2, v{T2}", f"v_xor_b32 v{T0}, v{T0}, v{R}",
      f"s_lshl_b32 s{sT}, s{sCH}, 2", f"s_lshl_b32 s{sT2}, s{sTH}, 1", f"s_add_u32 s{sT}, s{sT}, s{sT2}",
      f"v_xor_b32 v{T0}, s{sT}, v{T0}",
      f"v_lshlrev_b32 v{T0}, 5, v{T0}",
      f"v_lshl_add_u32 v{T0}, v{CQ}, 3, v{T0}",
      f"v_lshl_add_u32 v{T0}, v{R}, 8, v{T0}",
      f"v_lshl_add_u32 v{T0}, v{G}, 11, v{T0}",
      f"v_add_u32 v{bW[0]}, 8192, v{T0}")
    for t in range(1, 4):
        k(f"v_xor_b32 v{bW[t]}, {32*t}, v{bW[0]}")
    k(f"v_xor_b32 v{T0}, s{sCH}, v{T2}", f"v_lshlrev_b32 v{T0}, 5, v{T0}", f"v_lshl_add_u32 v{T0}, v{CQ}, 3, v{T0}",
      f"v_lshl_add_u32 v{T0}, v{R}, 6, v{T0}", f"v_lshl_add_u32 v{T0}, v{G}, 9, v{T0}",
      f"v_add_u32 v{bE}, 24576, v{T0}")
    bases = [(aX[s][i], bX[s][i]) for s in range(2) for i in range(2)] + list(zip(aW, bW)) + [(aE, bE)]
    for a, b in bases:
        k(f"v_mov_b32 v{a}, v{b}")
    for i in range(acc0, acc1):
        k(f"v_mov_b32 v{i}, 0")
    for i in range(4):
        k(f"v_mov_b32 v{ONES+i}, 0x3f803f80")
    k("s_waitcnt lgkmcnt(0)", ws_shift(SWS), srd_tail(SWS, WS_SZ))

    def reads(fi, e):
        o = []
        for s in range(2):
            f = F[fi][s]
            o += [f"ds_read_b128 {vr(f['X'][i],4)}, v{aX[s][i]}" for i in range(2)]
            for t in range(4):
                for j in range(2):
                    o.append(f"ds_read_b64_tr_b16 {vr(f['W'][t]+2*j,2)}, v{aW[t]} offset:{s*8192+j*1024}")
            for j in range(2 * e):
                o.append(f"ds_read_b64_tr_b16 {vr(f['E']+2*j,2)}, v{aE} offset:{s*2048+j*256}")
        return o

    def mfmas(fi, e):
        X = lambda s, i: vr(F[fi][s]["X"][i], 4)
        W = lambda s, t: vr(F[fi][s]["W"][t], 4)
        E = lambda s: vr(F[fi][s]["E"], 4)
        O = vr(ONES, 4)
        o = [m16(vr(sx, 4), O, X(s, 0)) for s in range(2)] + [m16(vr(sxx, 4), X(s, 0), X(s, 0)) for s in range(2)]
        for t in range(4):
            o += [m16(vr(acc[t][i], 4), W(s, t), X(s, i)) for i in range(2) for s in range(2)]
            if t < 2:
                o += [m16(vr(cs[t], 4), W(s, t), O) for s in range(2)]
        if e:
            o += [m16(vr(accE[i], 4), E(s), X(s, i)) for i in range(2) for s in range(2)]
            o += [m16(vr(csE, 4), E(s), O) for s in range(2)]
        return o

    def adv(e):
        va = [f"v_add_u32 v{a}, s{sRd}, v{b}" for a, b in bases[:8 + e]]
        return [[f"s_add_u32 s{sRd}, s{sRd}, {STG}", f"s_cmp_eq_u32 s{sRd}, {TBL}"], [f"s_cselect_b32 s{sRd}, 0, s{sRd}"]] + \
               [va[i:i + 2] for i in range(0, len(va), 2)]
    k(f"s_mov_b32 s{sRd}, 0", f"s_mov_b32 s{sN}, 7", f"s_and_b32 s{sT}, s{sHG}, 3", f"s_cmp_eq_u32 s{sT}, 0")
    k("s_barrier")
    mid_stamp(k, 0)
    k("s_cbranch_scc1 L_k0_c1")
    for e in range(2):
        k.label(f"L_k0_c{e}")
        k(reads(0, e), adv(e), "s_waitcnt lgkmcnt(0)")
        k.label(f"L_k0_loop{e}")
        nr = 12 + 3 * e
        for f in range(2):
            k("s_barrier")
            m = weave(mfmas(f, e), reads(1 - f, e), 0, nr)
            tl = adv(e) + ([[f"s_sub_u32 s{sN}, s{sN}, 1", f"s_cmp_lg_u32 s{sN}, 0"]] if f == 1 else [])
            k(weave(m, tl, len(m) - 10, len(m) - 1))
            k("s_waitcnt lgkmcnt(0)")
        k(f"s_cbranch_scc1 L_k0_loop{e}")
        k("s_barrier")
        k(weave(mfmas(0, e), reads(1, e), 0, nr), "s_waitcnt lgkmcnt(0)", mfmas(1, e))
        if e == 0:
            k("s_branch L_k0_epi")
    k.label("L_k0_epi")
    mid_stamp(k, 1)
    ST = F[0][0]["X"]
    k(f"v_and_b32 v{T0}, 1, v{TOK}", f"v_cmp_eq_u32 vcc, 1, v{T0}", f"v_and_b32 v{T1}, 2, v{TOK}", "s_nop 1",
      f"v_cndmask_b32 v{T0}, v{sxx}, v{sxx+1}, vcc", f"v_cndmask_b32 v{T2}, v{sxx+2}, v{sxx+3}, vcc",
      f"v_cmp_eq_u32 vcc, 2, v{T1}", "s_nop 1",
      f"v_cndmask_b32 v{sx+1}, v{T0}, v{T2}, vcc")
    k(f"s_lshl_b32 s{sT}, s{sTH}, 1", f"s_add_u32 s{sT}, s{sT}, s{sCH}", f"s_lshl_b32 s{sT}, s{sT}, 7", f"s_add_u32 s{sT}, s{sT}, {TBL}",
      f"v_lshl_add_u32 v{T0}, v{TOK}, 3, s{sT}",
      f"s_lshl_b32 s{sT}, s{sCH}, 2", f"s_lshl_b32 s{sT2}, s{sTH}, 1", f"s_add_u32 s{sT}, s{sT}, s{sT2}", f"s_lshl_b32 s{sT}, s{sT}, 6",
      f"s_add_u32 s{sT}, s{sT}, {TBL+512}",
      f"v_lshl_add_u32 v{T1}, v{G}, 4, s{sT}",
      f"ds_write_b128 v{T1}, {vr(cs[0],4)}", f"ds_write_b128 v{T1}, {vr(cs[1],4)} offset:64",
      f"v_cmp_eq_u32 vcc, v{R}, v{G}", "s_and_saveexec_b64 s[42:43], vcc",
      f"ds_write_b64 v{T0}, {vr(sx,2)}", "s_mov_b64 exec, s[42:43]",
      "s_waitcnt lgkmcnt(0)", "s_barrier")
    c2, c3 = F[0][0]["W"][0], F[0][0]["W"][1]
    k(f"v_xor_b32 v{T2}, 128, v{T0}", f"v_xor_b32 v{T1}, 128, v{T1}",
      f"ds_read_b64 {vr(ST[0],2)}, v{T0}", f"ds_read_b64 {vr(ST[1],2)}, v{T2}",
      f"ds_read_b128 {vr(c2,4)}, v{T1}", f"ds_read_b128 {vr(c3,4)}, v{T1} offset:64")
    vQ, vQ1 = vX, vX2
    k(f"v_lshlrev_b32 v{T0}, 9, v{G}", f"v_lshl_add_u32 v{T0}, v{TOK}, 4, v{T0}",
      f"s_lshl_b32 s{sT}, s{sCH}, 8", f"v_add_u32 v{vQ}, s{sT}, v{T0}", f"v_xor_b32 v{vQ1}, 256, v{vQ}")
    sQ0, sQ1, sKV = sX, sWo, sEo
    k(f"s_lshl_b32 s{sT}, s{sTB}, 1", f"s_add_u32 s{sT}, s{sT}, s{sTH}",
      f"s_lshl_b32 s{sT2}, s{sHG}, 2", f"s_lshl_b32 s{sQ0}, s{sCH}, 1", f"s_add_u32 s{sT2}, s{sT2}, s{sQ0}", f"s_add_u32 s{sT2}, s{sT2}, s{sTH}",
      f"s_lshl_b32 s{sQ0}, s{sT2}, 6", f"s_add_u32 s{sQ0}, s{sQ0}, s{sT}", f"s_lshl_b32 s{sQ0}, s{sQ0}, 11",
      f"s_xor_b32 s{sQ1}, s{sQ0}, {1<<17}")
    k("s_waitcnt lgkmcnt(0)")
    for i in range(2):
        s = ST[i]
        k(f"v_mul_f32 v{s}, {f32(1/1024)}, v{s}",
          f"v_mul_f32 v{s+1}, {f32(1/1024)}, v{s+1}",
          f"v_fma_f32 v{s+1}, -v{s}, v{s}, v{s+1}",
          f"v_max_f32 v{s+1}, 0, v{s+1}",
          f"v_add_f32 v{s+1}, {f32(EPS)}, v{s+1}",
          f"v_rsq_f32 v{s+2}, v{s+1}", "s_nop 0",
          f"v_mul_f32 v{s+3}, v{s}, v{s+2}",
          f"v_sub_f32 v{s+3}, 0, v{s+3}",
          f"v_mul_f32 v{s}, {f32(QSCALE)}, v{s+2}",
          f"v_mul_f32 v{s+1}, {f32(QSCALE)}, v{s+3}")
    k(f"s_and_b32 s{sT}, s{sHG}, 3", f"s_cmp_lg_u32 s{sT}, 0", "s_cbranch_scc1 L_k0_q")
    o = F[1][0]["E"]
    for i in range(2):
        a = accE[i]
        for r in range(4):
            k(f"v_mul_f32 v{a+r}, v{ST[i]+2}, v{a+r}", f"v_fmac_f32 v{a+r}, v{ST[i]+3}, v{csE+r}")
        k(f"v_cvt_pk_bf16_f32 v{o+2*i}, v{a}, v{a+1}", f"v_cvt_pk_bf16_f32 v{o+2*i+1}, v{a+2}, v{a+3}")
    k(f"s_lshl_b32 s{sKV}, s{sTB}, 1", f"s_add_u32 s{sKV}, s{sKV}, s{sCH}", f"s_lshl_b32 s{sKV}, s{sKV}, 12",
      f"s_lshl_b32 s{sT}, s{sTH}, 10", f"s_add_u32 s{sKV}, s{sKV}, s{sT}", f"s_add_u32 s{sKV}, s{sKV}, {KVF}",
      f"s_lshl_b32 s{sT}, s{sTH}, 11", f"s_cmp_lg_u32 s{sHG}, 0", "s_cbranch_scc1 L_k0_v")
    k(f"s_lshl_b32 s{sT2}, s{sCH}, 3", f"s_add_u32 s{sT}, s{sT}, s{sT2}",
      f"v_add_u32 v{T0}, s{sT}, v{vQ}", f"v_add_u32 v{T1}, s{sT}, v{vQ1}",
      f"ds_write_b64 v{T0}, {vr(o,2)}", f"ds_write_b64 v{T1}, {vr(o+2,2)}", "s_branch L_k0_kv")
    k.label("L_k0_v")
    k(f"v_and_b32 v{T0}, 1, v{G}", f"v_lshlrev_b32 v{T0}, 7, v{T0}", f"v_lshrrev_b32 v{T1}, 1, v{G}", f"v_lshl_add_u32 v{T0}, v{T1}, 6, v{T0}",
      f"v_bfe_u32 v{T1}, v{L}, 3, 1", f"v_lshl_add_u32 v{T0}, v{T1}, 9, v{T0}", f"v_and_b32 v{T1}, 7, v{L}", f"v_lshl_add_u32 v{T0}, v{T1}, 1, v{T0}",
      f"s_mul_i32 s{sT2}, s{sCH}, 1280", f"s_add_u32 s{sT}, s{sT}, s{sT2}", f"v_add_u32 v{T0}, s{sT}, v{T0}", f"v_xor_b32 v{T1}, 1024, v{T0}",
      f"s_add_u32 s{sKV}, s{sKV}, 2048")
    for i in range(2):
        for r in range(4):
            op = "ds_write_b16" if r % 2 == 0 else "ds_write_b16_d16_hi"
            k(f"{op} v{[T0,T1][i]}, v{o+2*i+r//2} offset:{16*r}")
    k.label("L_k0_kv")
    k("s_waitcnt lgkmcnt(0)", "s_barrier", f"v_lshlrev_b32 v{T0}, 4, v0", f"ds_read_b128 {vr(o,4)}, v{T0}", f"v_lshlrev_b32 v{T0}, 4, v{L}",
      "s_waitcnt lgkmcnt(0)", f"buffer_store_dwordx4 {vr(o,4)}, v{T0}, s[{SWS}:{SWS+3}], s{sKV} offen sc1")
    k.label("L_k0_q")
    csr = [cs[0], cs[1], c2, c3]
    OUTR = F[1][0]["W"]
    for p in range(2):
        for i in range(2):
            o = OUTR[2 * p + i]
            for jt in range(2):
                t = 2 * p + jt
                a = acc[t][i]
                for r in range(4):
                    k(f"v_mul_f32 v{a+r}, v{ST[i]}, v{a+r}", f"v_fmac_f32 v{a+r}, v{ST[i]+1}, v{csr[t]+r}")
                k(f"v_cvt_pk_bf16_f32 v{o+2*jt}, v{a}, v{a+1}", f"v_cvt_pk_bf16_f32 v{o+2*jt+1}, v{a+2}, v{a+3}")
            k(f"buffer_store_dwordx4 {vr(o,4)}, v{[vQ,vQ1][i]}, s[{SWS}:{SWS+3}], s{[sQ0,sQ1][p]} offen sc1")
    tail(k, 0, sW)
    return k


def k1_attn():
    SLOT = 32768
    JB = 3 * SLOT
    k = Kern("attn_kernel", 256, 512, JB + 16384)
    SWS, SKV, SJ = 4, 8, 12
    (sW, sTB, sHG, sC, sT, sT2, sRd, sWr, sKo, sJo, sJa, sJb, sGW, sStr, sDstep, sOo) = range(32, 48)
    sD = [50, 51, 52, 53]
    sCs = [58, 59, 60, 61]
    sDB, sBsz, sWrJ = 62, 63, 64
    v = Alloc(1)
    L, T0, T1, T2, vLin, vRd, IDX = [v() for _ in range(7)]
    Q = [v(8, 4) for _ in range(2)]
    S = [v(16, 4) for _ in range(4)]
    O = [v(16, 4) for _ in range(2)]
    LS = [v(4, 4) for _ in range(2)]
    KB = [v(8, 4) for _ in range(2)]
    VB = [v(8, 4) for _ in range(2)]
    SUMA = v(4, 4)
    k.vgpr = k.acc = (v.n + 7) // 8 * 8
    h = Alloc(8)
    vJ, vJB, vCs = h(), h(), h()
    aJ = [h() for _ in range(4)]
    bJ = [h() for _ in range(2)]
    JF = [h(4, 4) for _ in range(4)]
    CS = [h(4, 4) for _ in range(4)]
    ONES = h(4, 4)
    head(k)
    k(f"s_load_dwordx2 s[{SWS}:{SWS+1}], s[0:1], {A_WS}",
      f"s_load_dwordx2 s[20:21], s[0:1], {A_WO}",
      f"s_load_dwordx4 s[24:27], s[0:1], {A_WG}",
      f"s_load_dwordx2 s[28:29], s[0:1], {A_WD}")
    k(f"v_lshrrev_b32 v{T1}, 6, v0", f"v_and_b32 v{L}, 63, v0", f"v_readfirstlane_b32 s{sW}, v{T1}", f"v_lshlrev_b32 v{vLin}, 4, v{L}")
    k("s_nop 1", f"s_cmp_lt_u32 s{sW}, 4", "s_cbranch_scc1 L_k1_comp")
    k(f"s_and_b32 s{sW}, s{sW}, 3", f"s_lshl_b32 s{sKo}, s{sW}, 13", f"s_mov_b32 s{sWr}, s{sKo}")
    k("s_waitcnt lgkmcnt(0)", ws_shift(SWS))
    k(srd_from(SKV, SWS, KVF, 262144))

    def kv_dma(c):
        o = []
        for hh in range(2):
            o += [f"s_add_u32 m0, s{sWr}, {(c%3)*SLOT+4096*hh}", "s_nop 0"]
            for i in range(4):
                o.append(f"buffer_load_dwordx4 v{vLin}, s[{SKV}:{SKV+3}], s{sKo} offen offset:{1024*i} lds")
            o.append(f"s_add_u32 s{sKo}, s{sKo}, {4096 if hh == 0 else 32768-4096}")
        return o
    k(kv_dma(0), kv_dma(1), srd_tail(SWS, WS_SZ))
    k(f"s_lshl_b32 s{sGW}, s2, 2", f"s_add_u32 s{sGW}, s{sGW}, s{sW}",
      f"s_lshl_b32 s{sWrJ}, s{sW}, 12", f"s_add_u32 s{sWrJ}, s{sWrJ}, {JB}")
    k(f"v_lshrrev_b32 v{T0}, 4, v{L}", f"v_lshlrev_b32 v{T0}, 10, v{T0}", f"v_bfe_u32 v{T1}, v{L}, 2, 2", f"v_lshl_add_u32 v{T0}, v{T1}, 7, v{T0}",
      f"v_bfe_u32 v{T1}, v{L}, 3, 1", f"v_lshl_add_u32 v{T0}, v{T1}, 6, v{T0}", f"v_add_u32 v{T0}, s{sWrJ}, v{T0}", f"v_and_b32 v{T1}, 3, v{L}",
      f"v_lshl_add_u32 v{bJ[0]}, v{T1}, 4, v{T0}", f"v_xor_b32 v{bJ[1]}, 64, v{bJ[0]}")
    strip, kb0, mat = 66, 67, 68
    k(f"s_lshr_b32 s{strip}, s{sGW}, 3", f"s_and_b32 s{kb0}, s{sGW}, 7", f"s_lshl_b32 s{kb0}, s{kb0}, 2",
      f"s_cmp_ge_u32 s{strip}, 112", "s_cbranch_scc1 L_k1_wo")
    k(f"s_cmp_ge_u32 s{strip}, 56", f"s_cselect_b32 s{mat}, 1, 0",
      f"s_cselect_b32 s{SJ}, s26, s24", f"s_cselect_b32 s{SJ+1}, s27, s25",
      f"s_mul_i32 s{sT}, s{mat}, 56", f"s_sub_u32 s{strip}, s{strip}, s{sT}",
      f"s_mov_b32 s{SJ+2}, {1024*7168}", f"s_mov_b32 s{sStr}, 7168", f"s_mov_b32 s{sDstep}, {14*1024}",
      f"s_mov_b32 s{sBsz}, {3584*2048}",
      f"v_lshl_add_u32 v{aJ[0]}, v{T1}, 3, v{T0}")
    for i in range(1, 4):
        k(f"v_xor_b32 v{aJ[i]}, {32*i}, v{aJ[0]}")
    for i in range(4):
        T, fb, pos = 69, 70, 71
        k(f"s_lshl_b32 s{T}, s{strip}, 2", f"s_add_u32 s{T}, s{T}, {i}",
          f"s_mul_i32 s{fb}, s{T}, 9363", f"s_lshr_b32 s{fb}, s{fb}, 16",
          f"s_sub_u32 s{pos}, s{mat}, s{fb}", f"s_mul_i32 s{pos}, s{pos}, 7", f"s_add_u32 s{pos}, s{T}, s{pos}",
          f"s_lshl_b32 s{sT}, s{fb}, 5", f"s_add_u32 s{sT}, s{sT}, s{kb0}", f"s_mul_i32 s{sT}, s{sT}, 14",
          f"s_add_u32 s{sT}, s{sT}, s{pos}", f"s_lshl_b32 s{sT}, s{sT}, 10", f"s_add_u32 s{sD[i]}, s{sT}, {WGU}",
          f"s_lshl_b32 s{sT}, s{kb0}, 3", f"s_add_u32 s{sT}, s{sT}, s{fb}", f"s_mul_i32 s{sT}, s{sT}, 14",
          f"s_add_u32 s{sT}, s{sT}, s{pos}", f"s_lshl_b32 s{sT}, s{sT}, 6", f"s_add_u32 s{sCs[i]}, s{sT}, {CSP}")
    k("s_branch L_k1_jp")
    k.label("L_k1_wo")
    k(f"s_sub_u32 s{strip}, s{strip}, 112", f"s_mov_b32 s{SJ}, s20", f"s_mov_b32 s{SJ+1}, s21",
      f"s_mov_b32 s{SJ+2}, {2*MB}", f"s_mov_b32 s{sStr}, 2048", f"s_mov_b32 s{sDstep}, 8192", f"s_mov_b32 s{sBsz}, 0",
      f"s_lshr_b32 s{sT}, s{strip}, 1", f"s_lshl_b32 s{sT}, s{sT}, 5", f"s_add_u32 s{sT}, s{sT}, s{kb0}", f"s_lshl_b32 s{sT}, s{sT}, 1",
      f"s_and_b32 s{sT2}, s{strip}, 1", f"s_add_u32 s{sT}, s{sT}, s{sT2}", f"s_lshl_b32 s{sT}, s{sT}, 12")
    for i in range(4):
        k(f"s_add_u32 s{sD[i]}, s{sT}, {WOF+1024*i}", f"s_mov_b32 s{sCs[i]}, {OOB}", f"v_add_u32 v{aJ[i]}, {8*(i&1)}, v{bJ[i>>1]}")
    k.label("L_k1_jp")
    k(f"s_mov_b32 s{SJ+3}, 0x00020000")
    k(f"v_lshrrev_b32 v{T0}, 3, v{L}", f"v_bfe_u32 v{T1}, v{L}, 4, 1", f"v_lshlrev_b32 v{T1}, 2, v{T1}",
      f"v_and_b32 v{T2}, 7, v{L}", f"v_xor_b32 v{T1}, v{T1}, v{T2}", f"v_lshlrev_b32 v{T1}, 4, v{T1}",
      f"v_mul_lo_u32 v{vJ}, v{T0}, s{sStr}", f"v_lshl_add_u32 v{vJB}, v{T0}, 11, v{T1}", f"v_add_u32 v{vJ}, v{vJ}, v{T1}",
      f"s_lshl_b32 s{sT}, s{kb0}, 5", f"s_mul_i32 s{sT}, s{sT}, s{sStr}", f"s_lshl_b32 s{sT2}, s{strip}, 7", f"s_add_u32 s{sT}, s{sT}, s{sT2}",
      f"v_add_u32 v{vJ}, s{sT}, v{vJ}",
      f"s_lshl_b32 s{sT}, s{sStr}, 3", f"s_sub_u32 s{sJa}, s{sT}, 1024", f"s_add_u32 s{sJb}, s{sT}, 3072", f"s_mov_b32 s{sJo}, 0")
    k(f"s_mul_i32 s{strip}, s{sGW}, 1171", f"s_lshr_b32 s{strip}, s{strip}, 16",
      f"s_mul_i32 s{sT}, s{strip}, 56", f"s_sub_u32 s{kb0}, s{sGW}, s{sT}", f"s_lshl_b32 s{kb0}, s{kb0}, 1",
      f"s_lshl_b32 s{sT}, s{kb0}, 16", f"s_lshl_b32 s{sT2}, s{strip}, 7", f"s_add_u32 s{sT}, s{sT}, s{sT2}",
      f"v_add_u32 v{vJB}, s{sT}, v{vJB}",
      f"s_lshr_b32 s{sT}, s{strip}, 1", f"s_mul_i32 s{sT}, s{sT}, 112", f"s_add_u32 s{sT}, s{sT}, s{kb0}", f"s_lshl_b32 s{sT}, s{sT}, 1",
      f"s_and_b32 s{sT2}, s{strip}, 1", f"s_add_u32 s{sT}, s{sT}, s{sT2}", f"s_lshl_b32 s{sT}, s{sT}, 12",
      f"s_add_u32 s{sDB}, s{sT}, {WDF}", f"s_cmp_eq_u32 s{sBsz}, 0", f"s_cselect_b32 s{sDB}, {OOB}, s{sDB}")
    k(f"v_and_b32 v{T0}, 15, v{L}", f"v_cmp_eq_u32 vcc, 0, v{T0}", f"v_mov_b32 v{T1}, {OOB}", "s_nop 0",
      f"v_cndmask_b32 v{vCs}, v{T1}, v{L}, vcc")
    for i in range(4):
        k(f"v_mov_b32 v{ONES+i}, 0x3f803f80")
    k("s_waitcnt vmcnt(8)", "s_barrier")
    vm = []

    def wait_for(tag):
        n = len(vm) - 1 - max(i for i, t in enumerate(vm) if t == tag)
        return f"s_waitcnt vmcnt({n})"
    vm += ["kv1"] * 8
    for c in range(8):
        if c + 2 < 8:
            k(kv_dma(c + 2)); vm += [f"kv{c+2}"] * 8
        j = c - 1
        proc = 0 <= j < 6 and not OPT.get("nojob")
        if proc:
            k(wait_for(f"j{j}"))
            for f in range(4):
                for jj in range(2):
                    if j < 4:
                        k(f"ds_read_b64_tr_b16 {vr(JF[f]+2*jj,2)}, v{aJ[f]} offset:{jj*512}")
                    else:
                        k(f"ds_read_b64_tr_b16 {vr(JF[f]+2*jj,2)}, v{bJ[f>>1]} offset:{jj*512+(f&1)*8}")
            k("s_waitcnt lgkmcnt(0)")
        if c < 6 and not OPT.get("nojob"):
            if c == 4:
                k(f"s_mov_b32 s{SJ}, s28", f"s_mov_b32 s{SJ+1}, s29", f"s_mov_b32 s{SJ+2}, s{sBsz}",
                  f"s_mov_b32 s{sJo}, 0", f"s_mov_b32 s{sJa}, {16384-1024}", f"s_mov_b32 s{sJb}, {16384+3072}")
            k(f"s_mov_b32 m0, s{sWrJ}", "s_nop 0")
            for i in range(4):
                k(f"buffer_load_dwordx4 v{vJ if c < 4 else vJB}, s[{SJ}:{SJ+3}], s{sJo} offen offset:{1024*i}{' nt' if OPT.get('jnt', 0) else ''} lds",
                  f"s_add_u32 s{sJo}, s{sJo}, s{sJa if i < 3 else sJb}")
            vm += [f"j{c}"] * 4
        if proc:
            for f in range(4):
                if j < 4:
                    k(f"buffer_store_dwordx4 {vr(JF[f],4)}, v{vLin}, s[{SWS}:{SWS+3}], s{sD[f]} offen sc1",
                      f"s_add_u32 s{sD[f]}, s{sD[f]}, s{sDstep}",
                      m16(vr(CS[f], 4), vr(JF[f], 4), vr(ONES, 4), "0" if j == 0 else None))
                else:
                    k(f"buffer_store_dwordx4 {vr(JF[f],4)}, v{vLin}, s[{SWS}:{SWS+3}], s{sDB} offen offset:{1024*f} sc1")
            vm += ["st"] * 4
            if j == 4:
                k(f"s_add_u32 s{sDB}, s{sDB}, 8192")
                for f in range(4):
                    k(f"buffer_store_dwordx4 {vr(CS[f],4)}, v{vCs}, s[{SWS}:{SWS+3}], s{sCs[f]} offen sc1")
                vm += ["st"] * 4
        if c + 1 < 8:
            k(wait_for(f"kv{c+1}"), "s_barrier")
    k("s_endpgm")
    k.label("L_k1_comp")
    ids_8x4(k, sHG, sTB, sT)
    k(f"s_lshl_b32 s{sT}, s{sHG}, 2", f"s_add_u32 s{sT}, s{sT}, s{sW}",
      f"s_lshl_b32 s{sOo}, s{sTB}, 5", f"s_add_u32 s{sOo}, s{sOo}, s{sT}", f"s_lshl_b32 s{sOo}, s{sOo}, 12", f"s_add_u32 s{sOo}, s{sOo}, {OF}",
      f"s_lshl_b32 s{sT}, s{sT}, 17", f"s_lshl_b32 s{sT2}, s{sTB}, 12", f"s_add_u32 s{sT}, s{sT}, s{sT2}")
    k("s_waitcnt lgkmcnt(0)", ws_shift(SWS))
    k(srd_tail(SWS, WS_SZ))
    for q in range(2):
        for m in range(2):
            k(f"buffer_load_dwordx4 {vr(Q[q]+4*m,4)}, v{vLin}, s[{SWS}:{SWS+3}], s{sT} offen offset:{2048*q+1024*m}")
    k(srd_from(SKV, SWS, KVF, 262144))
    k(f"v_and_b32 v{T0}, 7, v{L}", f"v_mov_b32 v{T1}, 0x3f803f80", f"v_cmp_eq_u32 vcc, 0, v{T0}", f"v_mov_b32 v{vRd}, v{vLin}", f"v_mov_b32 v{IDX}, 0xdddd",
      f"v_cndmask_b32 v{SUMA}, 0, v{T1}, vcc", f"v_cndmask_b32 v{SUMA+1}, 0, v{T1}, vcc",
      f"v_cmp_eq_u32 vcc, 4, v{T0}", "s_nop 1",
      f"v_cndmask_b32 v{SUMA+2}, 0, v{T1}, vcc", f"v_cndmask_b32 v{SUMA+3}, 0, v{T1}, vcc")
    for r0, n in ((O[0], 16), (O[1], 16), (LS[0], 4), (LS[1], 4), (S[3], 16), (VB[1], 8)):
        for i in range(n):
            k(f"v_mov_b32 v{r0+i}, 0")
    k(f"s_mov_b32 s{sRd}, 0", f"s_mov_b32 s{sC}, 8")
    k("s_waitcnt vmcnt(0)", "s_barrier")
    mid_stamp(k, 0)
    rdK = lambda t: [f"ds_read_b128 {vr(KB[t&1]+4*m,4)}, v{vRd} offset:{(t%8)*4096+1024*m}" for m in range(2)]
    rdV = lambda t: [f"ds_read_b128 {vr(VB[t&1]+4*m,4)}, v{vRd} offset:{(t%8)*4096+2048+1024*m}" for m in range(2)]
    qk = lambda u, c="0": [m32(vr(S[u % 4], 16), vr(KB[(u >> 1) & 1], 4), vr(Q[u & 1], 4), c),
                           m32(vr(S[u % 4], 16), vr(KB[(u >> 1) & 1] + 4, 4), vr(Q[u & 1] + 4, 4))]
    pv = lambda u: [f"v_smfmac_f32_32x32x32_bf16 {vr(O[u&1],16)}, {vr(VB[(u>>1)&1]+4*m,4)}, {vr(S[u%4]+8*m,8)}, v{IDX}" for m in range(2)]
    sm = lambda u: [f"v_smfmac_f32_16x16x64_bf16 {vr(LS[u&1],4)}, {vr(SUMA,4)}, {vr(S[u%4]+8*m,8)}, v{IDX}" for m in range(2)]
    k(rdK(0), rdV(0), "s_waitcnt lgkmcnt(0)", qk(0), "s_nop 7", "s_nop 3")
    k(".p2align 6")
    k.label("L_k1_loop")
    for u in range(16):
        ex = [f"v_exp_f32 v{S[u%4]+i}, v{S[u%4]+i}" for i in range(16)]
        mf = qk(u + 1) + pv(u - 1) + sm(u - 1)
        sl = [[] for _ in range(6)]
        t = u >> 1
        rd = rdK(t + 1) if u % 2 == 0 else rdV(t + 1)
        if u == 13:
            sl[2] += [f"s_add_u32 s{sRd}, s{sRd}, {SLOT}"]
            sl[3] += [f"s_cmp_eq_u32 s{sRd}, {3*SLOT}"]
            sl[4] += [f"s_cselect_b32 s{sRd}, 0, s{sRd}"]
            sl[5] += ["s_waitcnt lgkmcnt(0)", f"v_add_u32 v{vRd}, s{sRd}, v{vLin}"]
        if u == 14:
            sl[0] += ["s_barrier"]
            sl[1].append(rd[0]); sl[2].append(rd[1])
        else:
            sl[0].append(rd[0]); sl[1].append(rd[1])
        if u == 15:
            sl[2] += [f"s_sub_u32 s{sC}, s{sC}, 1"]
            sl[3] += [f"s_cmp_lg_u32 s{sC}, 0"]
        if u % 2 == 0:
            sl[5].append("s_waitcnt lgkmcnt(0)")
        cuts = [0, 3, 6, 9, 12, 14, 16]
        for i in range(6):
            k(mf[i], sl[i], ex[cuts[i]:cuts[i + 1]])
    k("s_cbranch_scc1 L_k1_loop")
    mid_stamp(k, 1)
    k("s_nop 1", pv(15), sm(15))
    vO = vRd
    k(f"v_bfe_u32 v{T0}, v{L}, 4, 1", f"v_lshlrev_b32 v{T0}, 10, v{T0}", f"v_lshrrev_b32 v{T1}, 5, v{L}", f"v_lshl_add_u32 v{T0}, v{T1}, 8, v{T0}",
      f"v_and_b32 v{T1}, 15, v{L}", f"v_lshl_add_u32 v{vO}, v{T1}, 4, v{T0}")
    k("s_nop 15", "s_waitcnt lgkmcnt(0)")
    k(f"v_maximum3_f32 v{T0}, abs(v{O[0]}), abs(v{O[0]+1}), v{LS[0]}", f"v_maximum3_f32 v{T1}, abs(v{O[1]}), abs(v{O[1]+1}), v{LS[1]}")
    for i in range(2, 16, 2):
        k(f"v_maximum3_f32 v{T0}, abs(v{O[0]+i}), abs(v{O[0]+i+1}), v{T0}", f"v_maximum3_f32 v{T1}, abs(v{O[1]+i}), abs(v{O[1]+i+1}), v{T1}")
    k(f"v_maximum3_f32 v{T0}, v{T0}, v{T1}, v{T1}", f"v_min_f32 v{T1}, v{LS[0]}, v{LS[1]}",
      f"v_cmp_nge_f32 vcc, {f32(2.0**100)}, v{T0}", f"s_mov_b64 s[70:71], vcc",
      f"v_cmp_nle_f32 vcc, {f32(2.0**-80)}, v{T1}", f"s_or_b64 s[70:71], s[70:71], vcc")
    if OPT["force_slow"]:
        k("s_branch L_k1_slow")
    k("s_cbranch_scc1 L_k1_slow")
    k.label("L_k1_out")
    k(f"v_rcp_f32 v{T0}, v{LS[0]}", f"v_rcp_f32 v{T1}, v{LS[1]}", "s_nop 0")
    for q in range(2):
        for m in range(2):
            o = S[0] + 8 * q + 4 * m
            for i in range(8):
                k(f"v_mul_f32 v{O[q]+8*m+i}, v{[T0,T1][q]}, v{O[q]+8*m+i}")
            for i in range(4):
                k(f"v_cvt_pk_bf16_f32 v{o+i}, v{O[q]+8*m+2*i}, v{O[q]+8*m+2*i+1}")
            k(f"buffer_store_dwordx4 {vr(o,4)}, v{vO}, s[{SWS}:{SWS+3}], s{sOo} offen offset:{2048*q+512*m} sc1")
    k("s_branch L_k1_done")
    k.label("L_k1_slow")
    C = [S[2], S[3]]
    ldK = [f"buffer_load_dwordx4 {vr(KB[0]+4*m,4)}, v{vLin}, s[{SKV}:{SKV+3}], s{sKo} offen offset:{1024*m}" for m in range(2)]
    ldV = [f"buffer_load_dwordx4 {vr(VB[0]+4*m,4)}, v{vLin}, s[{SKV}:{SKV+3}], s{sKo} offen offset:{2048+1024*m}" for m in range(2)]
    k(f"v_mov_b32 v{T0}, 0xff800000", f"v_mov_b32 v{T1}, 0xff800000", f"s_mov_b32 s{sKo}, 0")
    k.label("L_k1_s1")
    k(ldK, "s_waitcnt vmcnt(0)", qk(0), qk(1), "s_nop 15")
    for q in range(2):
        for i in range(0, 16, 2):
            k(f"v_max3_f32 v{[T0,T1][q]}, v{S[q]+i}, v{S[q]+i+1}, v{[T0,T1][q]}")
    k(f"s_add_u32 s{sKo}, s{sKo}, 4096", f"s_cmp_lt_u32 s{sKo}, 262144", "s_cbranch_scc1 L_k1_s1")
    for q in range(2):
        t = [T0, T1][q]
        k(f"v_mov_b32 v{T2}, v{t}", "s_nop 1", f"v_permlane32_swap_b32 v{t}, v{T2}", "s_nop 1", f"v_max_f32 v{t}, v{t}, v{T2}")
        for i in range(16):
            k(f"v_sub_f32 v{C[q]+i}, 0, v{t}", f"v_mov_b32 v{O[q]+i}, 0")
        for i in range(4):
            k(f"v_mov_b32 v{LS[q]+i}, 0")
    k(f"s_mov_b32 s{sKo}, 0")
    k.label("L_k1_s2")
    k(ldK, ldV, "s_waitcnt vmcnt(0)", qk(0, vr(C[0], 16)), qk(1, vr(C[1], 16)), "s_nop 15")
    for q in range(2):
        for i in range(16):
            k(f"v_exp_f32 v{S[q]+i}, v{S[q]+i}")
    k("s_nop 1", pv(0), sm(0), pv(1), sm(1))
    k(f"s_add_u32 s{sKo}, s{sKo}, 4096", f"s_cmp_lt_u32 s{sKo}, 262144", "s_cbranch_scc1 L_k1_s2")
    k("s_nop 15", "s_nop 7", "s_branch L_k1_out")
    k.label("L_k1_done")
    tail(k, 1, sW)
    return k


def k_gemm(name, kidx, K, tok_region, w_region, is_down):
    D = OPT.get("gd", 4)
    STG, NS = 24576, D + 2
    N = K // 64
    k = Kern(name, 256, 512, STG * NS)
    SWS, ST_, SW_, SR, SO = 4, 8, 12, 16, 20
    sW, sTB, sNB, sN, sT, sT2, sRd, sWr, sTo, sWo, sTH, sCH, sRes, sDW = range(28, 42)
    v = Alloc(1)
    L, G, TOK, T0, T1, vLin, bT, bW, aT, aW, vRow = [v() for _ in range(11)]
    F = [[dict(X=[v(4, 4) for _ in range(2)], W=[v(4, 4) for _ in range(4)]) for s in range(2)] for _ in range(2)]
    acc = [[v(4, 4) for i in range(2)] for t in range(4)]
    RES = [[v(4, 4) for b in range(2)] for i in range(2)]
    k.vgpr = k.acc = (v.n + 7) // 8 * 8
    head(k)
    k(f"s_load_dwordx2 s[{SWS}:{SWS+1}], s[0:1], {A_WS}",
      f"s_load_dwordx2 s[{SO}:{SO+1}], s[0:1], {A_OUT if is_down else A_X}")
    k(f"v_lshrrev_b32 v{T1}, 6, v0", f"v_and_b32 v{L}, 63, v0", f"v_readfirstlane_b32 s{sW}, v{T1}", f"v_lshlrev_b32 v{vLin}, 4, v{L}")
    ids_8x4(k, sNB, sTB, sT)
    k(f"s_cmp_lt_u32 s{sW}, 4", f"s_cbranch_scc1 L_{name}_comp")
    k(f"s_and_b32 s{sW}, s{sW}, 3",
      f"s_lshl_b32 s{sTo}, s{sW}, 11", f"s_lshl_b32 s{sWo}, s{sW}, 12", f"s_mov_b32 s{sWr}, s{sTo}",
      f"s_add_u32 s{sDW}, s{sTo}, 8192")
    rot = K == 1024 and OPT.get("rot2", 0)
    if rot:
        k(f"s_lshl_b32 s{sT}, s{sNB}, 1", f"s_add_u32 s{sT}, s{sT}, s{sTB}", f"s_and_b32 s{sT}, s{sT}, 7",
          f"s_lshl_b32 s{sT2}, s{sT}, 14", f"s_add_u32 s{sTo}, s{sTo}, s{sT2}", f"s_lshl_b32 s{sT2}, s{sT}, 15", f"s_add_u32 s{sWo}, s{sWo}, s{sT2}")
    k(f"s_mul_i32 s{sT}, s{sTB}, {K*128}", f"s_add_u32 s{sT}, s{sT}, {tok_region}",
      f"s_mul_i32 s{sT2}, s{sNB}, {K*256}", f"s_add_u32 s{sT2}, s{sT2}, {w_region}")
    k("s_waitcnt lgkmcnt(0)", ws_shift(SWS))
    k(srd_from(ST_, SWS, f"s{sT}", K * 128), srd_from(SW_, SWS, f"s{sT2}", K * 256))

    def dma_stage():
        o = [f"s_mov_b32 m0, s{sWr}", "s_nop 0"]
        for i in range(2):
            o.append(f"buffer_load_dwordx4 v{vLin}, s[{ST_}:{ST_+3}], s{sTo} offen offset:{1024*i} lds")
        o += [f"s_add_u32 m0, s{sWr}, s{sDW}", f"s_add_u32 s{sTo}, s{sTo}, 8192"]
        for i in range(4):
            o.append(f"buffer_load_dwordx4 v{vLin}, s[{SW_}:{SW_+3}], s{sWo} offen offset:{1024*i} lds")
        o += [f"s_add_u32 s{sWo}, s{sWo}, 16384", f"s_add_u32 s{sWr}, s{sWr}, {STG}", f"s_cmp_ge_u32 s{sWr}, {STG*NS}",
              f"s_cselect_b32 s{sT}, {STG*NS}, 0", f"s_sub_u32 s{sWr}, s{sWr}, s{sT}"]
        if rot:
            o += [f"s_and_b32 s{sTo}, s{sTo}, {K*128-1}", f"s_and_b32 s{sWo}, s{sWo}, {K*256-1}"]
        return o
    k(f"s_mov_b32 s{sN}, {N}")
    k.label(f"L_{name}_ld")
    k(dma_stage())
    k(f"s_sub_u32 s{sN}, s{sN}, 1", f"s_cmp_lg_u32 s{sN}, 0")
    k(f"s_waitcnt vmcnt({6*D})", "s_barrier", f"s_cbranch_scc1 L_{name}_ld")
    for d in range(D - 1, -1, -1):
        k(f"s_waitcnt vmcnt({6*d})", "s_barrier")
    if is_down:
        k("s_endpgm")
    else:
        hop(k, sW)
    k.label(f"L_{name}_comp")
    k(f"s_and_b32 s{sTH}, s{sW}, 1", f"s_lshr_b32 s{sCH}, s{sW}, 1")
    k(f"v_lshrrev_b32 v{G}, 4, v{L}", f"v_and_b32 v{TOK}, 15, v{L}",
      f"v_lshlrev_b32 v{T0}, 11, v{TOK}", f"v_lshl_add_u32 v{T0}, v{G}, 4, v{T0}",
      f"s_lshl_b32 s{sN}, s{sTB}, 1", f"s_add_u32 s{sN}, s{sN}, s{sTH}", f"s_lshl_b32 s{sN}, s{sN}, 16",
      f"s_lshl_b32 s{sRes}, s{sNB}, 1", f"s_add_u32 s{sRes}, s{sRes}, s{sCH}", f"s_lshl_b32 s{sRd}, s{sRes}, 7",
      f"s_add_u32 s{sN}, s{sN}, s{sRd}", f"v_add_u32 v{vRow}, s{sN}, v{T0}")
    k(f"s_lshl_b32 s{sRes}, s{sRes}, 13", f"s_lshl_b32 s{sN}, s{sTB}, 17", f"s_add_u32 s{sRes}, s{sRes}, s{sN}",
      f"s_lshl_b32 s{sN}, s{sTH}, 11", f"s_add_u32 s{sRes}, s{sRes}, s{sN}", f"s_add_u32 s{sRes}, s{sRes}, {HF}")
    k(f"s_lshl_b32 s{sT}, s{sTH}, 11", f"v_add_u32 v{bT}, s{sT}, v{vLin}",
      f"s_lshl_b32 s{sT}, s{sCH}, 12", f"s_add_u32 s{sT}, s{sT}, 8192", f"v_add_u32 v{bW}, s{sT}, v{vLin}",
      f"v_mov_b32 v{aT}, v{bT}", f"v_mov_b32 v{aW}, v{bW}")
    k("s_waitcnt lgkmcnt(0)", ws_shift(SWS))
    k(srd_tail(SWS, WS_SZ), srd_tail(SO, 4 * MB))
    for _ in range(NS - 2):
        k("s_barrier")
    k(f"s_add_u32 s{sT2}, s{sRes}, 4096", f"s_mov_b32 s{sN}, 32768")
    for i in range(2):
        for b in range(2):
            if is_down:
                k(f"buffer_load_dwordx4 {vr(RES[i][b],4)}, v{vLin}, s[{SWS}:{SWS+3}], s{[sRes,sT2][b]} offen offset:{1024*i}")
            else:
                k(f"buffer_load_dwordx4 {vr(RES[i][b],4)}, v{vRow}, s[{SO}:{SO+3}], {['0', f's{sN}'][i]} offen offset:{64*b}{' nt' if OPT.get('jnt', 0) else ''}")
    for t in range(4):
        for i in range(2):
            for r in range(4):
                k(f"v_mov_b32 v{acc[t][i]+r}, 0")

    def reads(f):
        o = []
        for s in range(2):
            o += [f"ds_read_b128 {vr(F[f][s]['X'][i],4)}, v{aT} offset:{s*4096+i*1024}" for i in range(2)]
            o += [f"ds_read_b128 {vr(F[f][s]['W'][t],4)}, v{aW} offset:{s*8192+t*1024}" for t in range(4)]
        return o

    def mfmas(f):
        return [m16(vr(acc[t][i ^ (t & 1)], 4), vr(F[f][s]["W"][t], 4), vr(F[f][s]["X"][i ^ (t & 1)], 4))
                for t in range(4) for i in range(2) for s in range(2)]
    adv = [[f"s_add_u32 s{sRd}, s{sRd}, {STG}", f"s_cmp_eq_u32 s{sRd}, {STG*NS}"], [f"s_cselect_b32 s{sRd}, 0, s{sRd}"],
           [f"v_add_u32 v{aT}, s{sRd}, v{bT}", f"v_add_u32 v{aW}, s{sRd}, v{bW}"]]
    k(f"s_mov_b32 s{sRd}, 0", f"s_mov_b32 s{sN}, {N//2-1}")
    k("s_barrier")
    mid_stamp(k, 0)
    k(reads(0), adv, "s_waitcnt lgkmcnt(0)")
    k(".p2align 6")
    k.label(f"L_{name}_loop")
    for f in range(2):
        k("s_barrier")
        m = weave(mfmas(f), reads(1 - f), 0, 9)
        tl = adv + ([[f"s_sub_u32 s{sN}, s{sN}, 1", f"s_cmp_lg_u32 s{sN}, 0"]] if f == 1 else [])
        k(weave(m, tl, len(m) - 6, len(m) - 1))
        k("s_waitcnt lgkmcnt(0)")
    k(f"s_cbranch_scc1 L_{name}_loop")
    k("s_barrier")
    k(weave(mfmas(0), reads(1), 0, 9), "s_waitcnt lgkmcnt(0)", mfmas(1))
    mid_stamp(k, 1)
    k("s_waitcnt vmcnt(0)", f"s_mov_b32 s{sN}, 32768", "s_nop 5")
    SUM = F[0][0]["X"]
    U = F[0][0]["W"][0]
    for i in range(2):
        if not is_down:
            k(f"v_mov_b32 v{SUM[i]}, 0", f"v_mov_b32 v{SUM[i]+1}, 0")
        for b in range(2):
            o = F[0][1]["W"][2 * i + b]
            for jt in range(2):
                a = acc[2 * b + jt][i]
                for h in range(2):
                    r = RES[i][b] + 2 * jt + h
                    k(f"v_lshlrev_b32 v{U}, 16, v{r}", f"v_and_b32 v{U+1}, 0xffff0000, v{r}",
                      f"v_add_f32 v{a+2*h}, v{a+2*h}, v{U}", f"v_add_f32 v{a+2*h+1}, v{a+2*h+1}, v{U+1}",
                      f"v_cvt_pk_bf16_f32 v{o+2*jt+h}, v{a+2*h}, v{a+2*h+1}")
            if is_down:
                k(f"buffer_store_dwordx4 {vr(o,4)}, v{vRow}, s[{SO}:{SO+3}], {['0', f's{sN}'][i]} offen offset:{64*b} sc1")
            else:
                k(f"buffer_store_dwordx4 {vr(o,4)}, v{vLin}, s[{SWS}:{SWS+3}], s{[sRes,sT2][b]} offen offset:{1024*i} sc1")
    if not is_down:
        for t in range(4):
            for r in range(4):
                for i in range(2):
                    a = acc[t][i] + r
                    k(f"v_add_f32 v{SUM[i]}, v{SUM[i]}, v{a}", f"v_fmac_f32 v{SUM[i]+1}, v{a}, v{a}")
        k("s_nop 1", f"v_permlane32_swap_b32 v{SUM[0]}, v{SUM[0]+1}", f"v_permlane32_swap_b32 v{SUM[1]}, v{SUM[1]+1}", "s_nop 0",
          f"v_add_f32 v{SUM[0]}, v{SUM[0]}, v{SUM[0]+1}", f"v_add_f32 v{SUM[1]}, v{SUM[1]}, v{SUM[1]+1}",
          f"v_lshlrev_b32 v{T0}, 2, v{L}", "s_nop 0",
          f"v_permlane16_swap_b32 v{SUM[0]}, v{SUM[1]}",
          f"s_lshl_b32 s{sT}, s{sTB}, 1", f"s_add_u32 s{sT}, s{sT}, s{sTH}", f"s_lshl_b32 s{sT}, s{sT}, 12",
          f"v_add_f32 v{SUM[0]}, v{SUM[0]}, v{SUM[1]}",
          f"s_lshl_b32 s{sT2}, s{sNB}, 1", f"s_add_u32 s{sT2}, s{sT2}, s{sCH}", f"s_lshl_b32 s{sT2}, s{sT2}, 8",
          f"s_add_u32 s{sT}, s{sT}, s{sT2}", f"s_add_u32 s{sT}, s{sT}, {STP}",
          f"buffer_store_dword v{SUM[0]}, v{T0}, s[{SWS}:{SWS+3}], s{sT} offen sc1")
    tail(k, kidx, sW)
    return k


class Op:
    def __init__(self, text, kind="v", needs=(), bar=False):
        self.text, self.kind, self.needs, self.bar = text, kind, list(needs), bar
        self.seq = None

    @property
    def cost(self):
        return 8 if self.kind == "t" else 4


def emit_stream(k, ops, nl=0, nv=0):
    cnt = {"lds": nl, "vm": nv}
    done = {"lds": 0, "vm": 0}
    for o in ops:
        if o.kind in cnt:
            cnt[o.kind] += 1
            o.seq = cnt[o.kind]
            k(o.text)
        elif o.kind == "wait":
            parts = []
            for kind, nm, mx in (("vm", "vmcnt", 63), ("lds", "lgkmcnt", 15)):
                need = [x.seq for x in o.needs if x.kind == kind]
                assert None not in need, "wait on an op that was not issued yet"
                tgt = cnt[kind] if (o.bar and kind == "lds") else max(need, default=0)
                if tgt > done[kind]:
                    n = cnt[kind] - tgt
                    assert n <= mx or kind == "vm"
                    parts.append(f"{nm}({min(n, mx)})")
                    done[kind] = tgt
            if parts:
                k("s_waitcnt " + " ".join(parts))
            if o.bar:
                k("s_barrier")
        else:
            k(o.text)
    return cnt


def k3_gateup():
    STG, NS = 28672, 5
    TBL = NS * STG
    k = Kern("gateup_kernel", 256, 256, TBL + 1024 + 2048)
    SWS, ST_, SW_ = 4, 8, 12
    sW, sMB, sFB, sN, sT, sT2, sTo, sWo, sWr, sTB, sA0, sA1, sSt, sCp = range(28, 42)
    v = Alloc(1)
    vLin, vR1, vR2, vCs, vSt, vTid, vOut = [v() for _ in range(7)]
    PA = [v(2, 2) for _ in range(4)]
    SD = [v(2, 2) for _ in range(2)]
    TA, TB_, TC = v(4, 4), v(4, 4), v(4, 4)
    assert v.n <= 32, v.n
    acc = [[32 + (a * 4 + b) * 4 for b in range(4)] for a in range(14)]
    TK = [[[32 * n + 16 * s + 4 * b for b in range(4)] for s in range(2)] for n in range(NS)]
    WF = [[160 + 8 * n + 4 * s for s in range(2)] for n in range(4)]
    SP, CP = 192, 224
    k.vgpr, k.acc = 256 + 232, 256
    head(k)
    k(f"s_load_dwordx2 s[{SWS}:{SWS+1}], s[0:1], {A_WS}")
    k(f"v_lshrrev_b32 v{TA}, 6, v0", f"v_and_b32 v{TA+1}, 63, v0", f"v_readfirstlane_b32 s{sW}, v{TA}", f"v_lshlrev_b32 v{vLin}, 4, v{TA+1}")
    k(f"s_lshr_b32 s{sT}, s2, 3", f"s_lshr_b32 s{sMB}, s{sT}, 2", f"s_and_b32 s{sT}, s{sT}, 3",
      f"s_and_b32 s{sFB}, s2, 7", f"s_lshl_b32 s{sFB}, s{sFB}, 2", f"s_add_u32 s{sFB}, s{sFB}, s{sT}",
      f"s_lshl_b32 s{sTB}, s{sMB}, 2", f"s_add_u32 s{sTB}, s{sTB}, s{sW}",
      f"s_lshl_b32 s{sT}, s{sTB}, 17", f"s_add_u32 s{sT}, s{sT}, {HF}",
      f"s_mul_i32 s{sT2}, s{sFB}, {32*14*1024}", f"s_add_u32 s{sT2}, s{sT2}, {WGU}",
      f"s_mul_i32 s{sWo}, s{sW}, 7168", f"s_mov_b32 s{sWr}, s{sWo}", f"s_mov_b32 s{sTo}, 0")
    k("s_waitcnt lgkmcnt(0)", ws_shift(SWS))
    k(srd_from(ST_, SWS, f"s{sT}", 131072), srd_from(SW_, SWS, f"s{sT2}", 32 * 14 * 1024))

    def vm_stage(n):
        o = []
        for i in range(7):
            pre, post = [], []
            if i % 4 == 0:
                pre = [f"s_add_u32 m0, s{sWr}, {(n%NS)*STG+1024*i}"]
            if i == 3:
                post = [f"s_add_u32 s{sWo}, s{sWo}, 4096"]
            if i == 6:
                post = [f"s_add_u32 s{sWo}, s{sWo}, {STG-4096}"]
            o.append((pre, Op(f"buffer_load_dwordx4 v{vLin}, s[{SW_}:{SW_+3}], s{sWo} offen offset:{1024*(i%4)} lds", "vm"), post, n))
        for s in range(2):
            for b in range(4):
                post = [f"s_add_u32 s{sTo}, s{sTo}, 4096"] if b == 3 else []
                o.append(([], Op(f"buffer_load_dwordx4 {ar(TK[n%NS][s][b],4)}, v{vLin}, s[{ST_}:{ST_+3}], s{sTo} offen offset:{1024*b}", "vm"), post, n))
        return o
    VM = [vm_stage(n) for n in range(16)]
    stat_ld = [([], Op(f"buffer_load_dwordx4 {ar(SP+4*i,4)}, v{vLin}, s[{SWS}:{SWS+3}], s{sSt} offen offset:{1024*(i%4)}", "vm"),
                [f"s_add_u32 s{sSt}, s{sSt}, 4096"] if i == 3 else [], None) for i in range(8)]
    cs_ld = [([], Op(f"buffer_load_dword {ar(CP+p)}, v{vTid}, s[{SWS}:{SWS+3}], s{sCp} offen", "vm"),
              [f"s_add_u32 s{sCp}, s{sCp}, {32*896}"], None) for p in range(8)]
    pro = []
    for n in range(2):
        for pre, ld, post, _ in VM[n]:
            pro += [Op(x, "s") for x in pre] + ([Op("s_nop 0", "s")] if pre else []) + [ld] + [Op(x, "s") for x in post]
        if n == 0:
            pro.append(Op("s_barrier", "s"))
    misc = srd_tail(SWS, WS_SZ) + [
        f"s_lshl_b32 s{sSt}, s{sTB}, 13", f"s_add_u32 s{sSt}, s{sSt}, {STP}",
        f"s_mul_i32 s{sCp}, s{sFB}, 896", f"s_add_u32 s{sCp}, s{sCp}, {CSP}",
        f"v_add_u32 v{vR1}, {2*STG}, v{vLin}", f"v_add_u32 v{vR2}, {4*STG}, v{vLin}",
        f"v_lshlrev_b32 v{vTid}, 2, v0",
        f"v_lshrrev_b32 v{TA}, 4, v{TA+1}", f"v_lshlrev_b32 v{vCs}, 4, v{TA}", f"v_add_u32 v{vCs}, {TBL}, v{vCs}",
        f"v_and_b32 v{TA+2}, 1, v{TA}", f"v_lshlrev_b32 v{TA+2}, 10, v{TA+2}", f"v_lshrrev_b32 v{TA}, 1, v{TA}",
        f"v_lshl_add_u32 v{TA+2}, v{TA}, 8, v{TA+2}", f"v_and_b32 v{TA+1}, 15, v{TA+1}", f"v_lshl_add_u32 v{vOut}, v{TA+1}, 4, v{TA+2}",
        f"s_lshl_b32 s{sT}, s{sW}, 9", f"s_add_u32 s{sT}, s{sT}, {TBL+1024}", f"v_lshl_add_u32 v{vSt}, v{TA+1}, 2, s{sT}",
        f"s_mul_i32 s{sT}, s{sTB}, {112*4096}", f"s_add_u32 s{sT}, s{sT}, {AF}", f"s_mul_i32 s{sT2}, s{sFB}, 7",
        f"s_lshr_b32 s{sA0}, s{sT2}, 1", f"s_lshl_b32 s{sA0}, s{sA0}, 12", f"s_add_u32 s{sA0}, s{sA0}, s{sT}",
        f"s_and_b32 s{sT2}, s{sT2}, 1", f"s_lshl_b32 s{sT}, s{sT2}, 9", f"s_add_u32 s{sA0}, s{sA0}, s{sT}",
        f"s_cmp_eq_u32 s{sT2}, 0", f"s_cselect_b32 s{sT}, 512, {0}", f"s_cselect_b32 s{sT2}, 0, {4096-512}",
        f"s_add_u32 s{sA1}, s{sA0}, s{sT}", f"s_add_u32 s{sA1}, s{sA1}, s{sT2}"]
    pro += [Op(x, "s") for x in misc]
    if OPT.get("k3pf", 1):
        pro += [Op(x, "s") for x in ["s_getpc_b64 s[16:17]", f"s_lshr_b32 s{sT}, s2, 3", f"s_lshl_b32 s{sT}, s{sT}, 10",
                                     f"v_add_u32 v{TA}, s{sT}, v{vTid}", f"v_min_u32 v{TA}, L_code_end-L_k3_pf-4, v{TA}", "L_k3_pf:"]]
        pro.append(Op(f"global_load_dword v{TC}, v{TA}, s[16:17]", "vm"))

    order = [a for p in range(7) for a in (p, p + 7)]
    S0 = 12
    seq = [(n, a) for n in range(S0) for a in order]
    seq += [(n, a) for p in range(7) for n in range(S0, 16) for a in (p, p + 7)]
    NT_ = len(seq)
    mf, fixed = [], [[] for _ in range(8 * NT_)]
    RD = []
    for gt, (n, a) in enumerate(seq):
        sl = n % NS
        RD.append([Op(f"ds_read_b128 {ar(WF[gt%4][s],4)}, v{[vLin,vR1,vR2][sl>>1]} offset:{(sl&1)*STG+s*14336+a*1024}", "lds") for s in range(2)])
        bs = range(4) if gt % 2 == 0 else range(3, -1, -1)
        for b in bs:
            for s in range(2):
                mf.append(Op(m16(vr(acc[a][b], 4), ar(WF[gt % 4][s], 4), ar(TK[sl][s][b], 4), "0" if (n == 0 and s == 0) else None), "m"))
    first = {}
    for gt, (n, a) in enumerate(seq):
        first.setdefault(n, gt)
    barpos = {}
    for gt in range(NT_):
        if gt + 2 < NT_:
            fixed[8 * gt].append(RD[gt + 2][0]); fixed[8 * gt + 1].append(RD[gt + 2][1])
        newst = [n for n in range(1, 16) if first[n] == gt + 3]
        if newst:
            fixed[8 * gt + 7].append(Op("", "wait", [x[1] for x in VM[newst[0]]], bar=True))
            barpos[newst[0]] = 8 * gt + 7
        elif gt + 1 < NT_:
            fixed[8 * gt + 7].append(Op("", "wait", RD[gt + 1]))
    flat = VM[2] + VM[3] + VM[4] + stat_ld + cs_ld + [x for n in range(5, 16) for x in VM[n]]
    slots = [8 * gt + o for gt in range(S0 * 14) for o in (3, 6)]
    nsl = len(slots) - 2 * OPT.get("k3lead", 8)
    vpos = {}
    si = -1
    for i, (pre, ld, post, n) in enumerate(flat):
        si = max(si + 1, (i * nsl) // len(flat))
        if n is not None and n >= NS:
            lim = barpos[n - NS + 1] + 2 if "lds" in ld.text else 8 * 14 * (n - NS + 1)
            while slots[si] < lim:
                si += 1
        p = slots[si]
        fixed[p - 1] += [Op(x, "s") for x in pre]
        fixed[p] += [ld] + [Op(x, "s") for x in post]
        vpos[id(ld)] = p
    used = [sum(o.cost for o in f if not (o.kind == "wait" and False)) for f in fixed]
    flo = [[] for _ in fixed]

    def flow(ops, start, deadline=None):
        p = start
        for o in ops:
            while used[p] + o.cost > 8:
                p += 1
            flo[p].append(o); used[p] += o.cost
        assert deadline is None or p < deadline, (p, deadline)
        return p + 1

    def spread(ops, start, stop):
        tot = sum(o.cost for o in ops) + sum(used[start:stop])
        cap = max(8.0, tot / (stop - start))
        p, acc_used, acc_cap = start, used[start], cap
        for o in ops:
            while acc_used + o.cost > acc_cap + 2 and p < stop - 1:
                p += 1
                if cap == 8.0:
                    acc_used, acc_cap = used[p], cap
                else:
                    acc_used += used[p]; acc_cap += cap
            flo[p].append(o); acc_used += o.cost
        return p
    V = lambda t: Op(t, "v")
    st = [Op("", "wait", [x[1] for x in stat_ld + cs_ld])]
    st += [V(f"v_accvgpr_read_b32 v{TA}, a{CP}")]
    for p in range(1, 8):
        st += [V(f"v_accvgpr_read_b32 v{TB_}, a{CP+p}"), V(f"v_add_f32 v{TA}, v{TA}, v{TB_}")]
    st += [V(f"v_add_u32 v{vTid}, {TBL}, v{vTid}"), Op(f"ds_write_b32 v{vTid}, v{TA}", "lds")]
    st += [V(f"v_and_b32 v{TB_}, 0xf0, v{vLin}"), V(f"v_and_b32 v{TB_+1}, 0xffffffc0, v{vSt}"), V(f"v_add_u32 v{vTid}, v{TB_}, v{TB_+1}")]
    wr = []
    for hf in range(2):
        A = [TA, TC][hf]
        st += [V(f"v_accvgpr_read_b32 v{A+r}, a{SP+16*hf+r}") for r in range(4)]
        for i in range(1, 4):
            st += [V(f"v_accvgpr_read_b32 v{TB_+r}, a{SP+16*hf+4*i+r}") for r in range(4)]
            st += [V(f"v_add_f32 v{A+r}, v{A+r}, v{TB_+r}") for r in range(4)]
        for op in ("v_permlane16_swap_b32", "v_permlane32_swap_b32"):
            st += [V(f"v_mov_b32 v{TB_+r}, v{A+r}") for r in range(4)]
            st += [V(f"{op} v{A+r}, v{TB_+r}") for r in range(4)]
            st += [V(f"v_add_f32 v{A+r}, v{A+r}, v{TB_+r}") for r in range(4)]
        wr.append(Op(f"ds_write_b128 v{vTid}, {vr(A,4)} offset:{256*hf}", "lds"))
        st.append(wr[-1])
    rd = [Op(f"ds_read2_b32 {vr(PA[b],2)}, v{vSt} offset0:{64*(b>>1)+16*(b&1)+32} offset1:{64*(b>>1)+16*(b&1)}", "lds") for b in range(4)]
    st += rd + [V("v_nop")] * 6 + [Op("", "wait", rd)]
    for b in range(4):
        sd = SD[b >> 1] + (b & 1)
        st += [V(f"v_mul_f32 v{PA[b]+1}, {f32(-1/1024)}, v{PA[b]+1}"),
               V(f"v_mul_f32 v{PA[b]}, {f32(1/1024)}, v{PA[b]}"),
               V(f"v_fma_f32 v{PA[b]}, -v{PA[b]+1}, v{PA[b]+1}, v{PA[b]}"),
               V(f"v_max_f32 v{PA[b]}, 0, v{PA[b]}"),
               V(f"v_add_f32 v{sd}, {f32(EPS)}, v{PA[b]}"),
               Op(f"v_rsq_f32 v{PA[b]}, v{sd}", "t"), V("v_nop"),
               V(f"v_mul_f32 v{sd}, v{sd}, v{PA[b]}"),
               V(f"v_mul_f32 v{PA[b]}, {f32(-LOG2E)}, v{PA[b]}")]
    p = flow(st, vpos[id(cs_ld[-1][1])] + 90)
    n0 = min(n for n in range(1, S0) if barpos[n] >= p)
    p = barpos[n0] + 1
    todo = list(order)
    step = (8 * 14 * S0 - 40 - p) // 14
    for i in range(14):
        cur = lambda a: all(seq[q // 8][1] != a for q in range(p - 2, p + 48))
        cand = [a for a in todo if cur(a)]
        while not cand:
            p += 4
            cand = [a for a in todo if cur(a)]
        a = cand[0]
        todo.remove(a)
        C = [TA, TC][i & 1]
        r = Op(f"ds_read_b128 {vr(C,4)}, v{vCs} offset:{64*a}", "lds")
        ops = [V(f"v_fmac_f32 v{acc[a][b]+e}, v{PA[b]+1}, v{C+e}") for b in range(4) for e in range(4)]
        q = flow([r], p)
        q = flow([Op("", "wait", [r])] + ops, q + 6, p + 46)
        p = max(q, p + min(step, 24))
    assert p < 8 * 14 * S0 + 60, p
    def epi(pr, packed):
        o = []
        for bb in (0, 2):
            d = acc[pr][bb]
            for b in (bb, bb + 1):
                g_, u = acc[pr][b], acc[pr + 7][b]
                sd = SD[b >> 1] + (b & 1)
                if packed:
                    sel = f"op_sel:[0,{b&1},{b&1}] op_sel_hi:[1,{b&1},{b&1}]"
                    o += [V(f"v_pk_mul_f32 {vr(g_+h,2)}, {vr(g_+h,2)}, {vr(PA[b],2)} op_sel:[0,0] op_sel_hi:[1,0]") for h in (0, 2)]
                    o += [Op(f"v_exp_f32 v{g_+r}, v{g_+r}", "t") for r in range(4)]
                    o += [V(f"v_pk_fma_f32 {vr(g_+h,2)}, {vr(g_+h,2)}, {vr(SD[b>>1],2)}, {vr(SD[b>>1],2)} {sel}") for h in (0, 2)]
                    o += [Op(f"v_rcp_f32 v{g_+r}, v{g_+r}", "t") for r in range(4)]
                    o += [V(f"v_pk_mul_f32 {vr(u+h,2)}, {vr(u+h,2)}, {vr(g_+h,2)}") for h in (0, 2)]
                else:
                    o += [V(f"v_mul_f32 v{g_+r}, v{PA[b]}, v{g_+r}") for r in range(4)]
                    o += [Op(f"v_exp_f32 v{g_+r}, v{g_+r}", "t") for r in range(4)]
                    o += [V(f"v_fma_f32 v{g_+r}, v{g_+r}, v{sd}, v{sd}") for r in range(4)]
                    o += [Op(f"v_rcp_f32 v{g_+r}, v{g_+r}", "t") for r in range(4)]
                    o += [V(f"v_mul_f32 v{u+r}, v{u+r}, v{g_+r}") for r in range(4)]
                o += [V(f"v_cvt_pk_bf16_f32 v{d+2*(b&1)}, v{u}, v{u+1}"), V(f"v_cvt_pk_bf16_f32 v{d+2*(b&1)+1}, v{u+2}, v{u+3}")]
            o += [V("v_nop"), V(f"v_permlane16_swap_b32 v{d}, v{d+2}"), V(f"v_permlane16_swap_b32 v{d+1}, v{d+3}")]
            sa = [sA0, sA1][pr & 1]
            o.append(Op(f"buffer_store_dwordx4 {vr(d,4)}, v{vOut}, s[{SWS}:{SWS+3}], s{sa} offen offset:{1024*bb} sc1", "vm"))
        o.append(Op(f"s_add_u32 s{sa}, s{sa}, 4096", "s"))
        return o
    run = 8 * 2 * (16 - S0)
    t0 = 8 * 14 * S0
    for pr in range(6):
        spread(epi(pr, False), t0 + run * (pr + 1) + (0 if pr else 0), t0 + run * (pr + 2))
    if OPT.get("isl", 1):
        pro.append(Op(island(), "s"))
    ops = pro + [Op("", "wait", [x[1] for x in VM[0]], bar=True)]
    if OPT["stamp"]:
        ops.append(Op("s_memrealtime s[96:97]\ns_memtime s[84:85]\ns_waitcnt lgkmcnt(0)", "s"))
    ops += RD[0] + RD[1] + [Op("", "wait", RD[0])]
    ops_seg0 = len(pro)
    prof = [112 * n for n in range(S0)] + [t0 + run * pr for pr in range(7)] if OPT.get("prof") else []
    nbytes, last = 4, ops_seg0
    for i, m in enumerate(mf):
        if OPT.get("isl", 1):
            nbytes += sum(isize(o.text) for o in ops[last:])
            last = len(ops)
            if nbytes > 3960 and not fixed[i - 1]:
                ops.append(Op(island(), "s"))
                nbytes, last = 4, len(ops)
        if i in prof:
            j = prof.index(i)
            ops.append(Op(f"s_memtime s[{44+2*j}:{45+2*j}]", "s"))
        nv = [o for o in flo[i]]
        late = [o for o in fixed[i] if o.kind == "wait"]
        ops += [m] + [o for o in fixed[i] if o.kind != "wait"] + late + nv
    if OPT["stamp"]:
        ops.append(Op("s_memrealtime s[98:99]\ns_memtime s[86:87]", "s"))
    ops += epi(6, True)
    emit_stream(k, ops)
    if prof:
        k("s_waitcnt lgkmcnt(0)", "s_lshl_b32 s3, s89, 2", f"s_add_u32 s3, s3, s{sW}", "s_lshl_b32 s3, s3, 7", f"s_add_u32 s3, s3, {STAMP+2*MB}")
        for j in range(len(prof) + 1):
            k(f"v_mov_b32 v1, s{44+2*j if j < len(prof) else 86}", f"v_mov_b32 v0, s3", f"global_store_dword v0, v1, s[90:91] offset:{4*j}")
    tail(k, 3, sW)
    return k


HEADER = open("sequential_preLN__grouped_kv_mqa__glu_gated_glu__prompt.s.ref").read().split("; Override launch")[0]


def build():
    ks = [k0_qkv(), k1_attn(), k_gemm("oproj_kernel", 2, 1024, OF, WOF, False), k3_gateup(),
          k_gemm("down_kernel", 4, 3584, AF, WDF, True)]
    s = HEADER + "".join(ks[int(c)].launch_line() + "\n" for c in str(OPT.get("seq", "".join(str(i) for i in range(len(ks))))).lstrip("9"))
    s += '.amdgcn_target "amdgcn-amd-amdhsa--gfx950"\n.text\n'
    for i, k in enumerate(ks):
        s += k.text()
        if i == 0:
            s += "L_code_rest:\n"
    s += "L_code_end:\n"
    for n in ISL:
        s = s.replace(f"@ISL{n}@", f"s_branch L_isl{n+4}" if n + 4 < len(ISL) else "s_endpgm")
    s += '.section .rodata,"a"\n' + "".join(k.desc() for k in ks)
    return s


if __name__ == "__main__":
    out = sys.argv[1]
    for a in sys.argv[2:]:
        key, _, val = a.partition("=")
        OPT[key] = int(val) if val else True
    open(out, "w").write(build())
```

```python
import sys, math
sys.path.insert(0, __file__.rsplit("/", 1)[0])
from asmlib import *

MB = 1 << 20
QF, KVF, OF, HF, AF = 0, 4 * MB, 5 * MB, 9 * MB, 13 * MB
WOF, WGU, WDF, CSP, STP, STAMP = 28 * MB, 30 * MB, 44 * MB, 52 * MB, 53 * MB, 60 * MB
WS_SZ = 64 * MB
OOB = 0x40000000
LOG2E = 1.4426950408889634
QSCALE = LOG2E / math.sqrt(32.0)
EPS = 1e-5
OPT = dict(stamp=False, force_slow=False)
A_X, A_WQ, A_WK, A_WV, A_WO, A_WG, A_WU, A_WD, A_OUT, A_WS = 0, 8, 16, 24, 32, 48, 56, 64, 72, 88


def ws_shift(s):
    if OPT.get("wsoff"):
        return [f"s_add_u32 s{s}, s{s}, {OPT['wsoff']*MB}", f"s_addc_u32 s{s+1}, s{s+1}, 0"]
    return []


ISL = []


def island():
    n = len(ISL)
    ISL.append(n)
    return f"s_branch L_isl{n}_over\n.p2align 12\nL_isl{n}:\n@ISL{n}@\nL_isl{n}_over:"


def isize(text):
    import re
    t = 0
    for ln in text.split("\n"):
        ln = ln.strip()
        if not ln:
            t += 8
        elif ln.endswith(":") or ln.startswith("."):
            continue
        elif re.match(r"(v_mfma|v_smfmac|ds_|buffer_|global_|s_load|s_mem|v_fma_|v_cvt_pk|v_accvgpr|v_pk_|v_lshl_add|v_bfe|v_max3|v_maximum3|v_mul_lo)", ln):
            t += 8
        else:
            lit = [x for x in re.findall(r"(?<![\w\[:])(0x[0-9a-f]+|\d+)(?![\w\]:])", ln.split(None, 1)[1] if " " in ln else "") if int(x, 0) > 64]
            t += 8 if lit else 4
    return t


def hop(k, sw):
    if OPT.get("isl", 1) and not OPT.get("nohop"):
        for w in range(3):
            k(f"s_cmp_eq_u32 s{sw}, {w}", f"s_cbranch_scc1 L_isl{w}")
        k("s_branch L_isl3")
    else:
        k("s_endpgm")


def srd_tail(s, size):
    return [f"s_mov_b32 s{s+2}, {size}", f"s_mov_b32 s{s+3}, 0x00020000"]


def srd_from(s, base, off, size):
    return [f"s_add_u32 s{s}, s{base}, {off}", f"s_addc_u32 s{s+1}, s{base+1}, 0"] + srd_tail(s, size)


def head(k):
    k("s_cmp_ge_u32 s2, 256", f"s_cbranch_scc1 L_end_{k.name}")
    if OPT["stamp"]:
        k("s_memrealtime s[92:93]", "s_load_dwordx2 s[90:91], s[0:1], 88", "s_mov_b32 s89, s2")


def mid_stamp(k, i):
    if OPT["stamp"]:
        k(f"s_memrealtime s[{96+2*i}:{97+2*i}]", f"s_memtime s[{84+2*i}:{85+2*i}]")


def tail(k, kidx, swave):
    if OPT["stamp"]:
        k("s_waitcnt vmcnt(0)", "s_memrealtime s[94:95]", "s_waitcnt lgkmcnt(0)",
          "v_mov_b32 v0, s92", "v_mov_b32 v1, s96", "v_mov_b32 v2, s98", "v_mov_b32 v3, s94",
          "s_lshl_b32 s89, s89, 2", f"s_add_u32 s89, s89, s{swave}", "s_lshl_b32 s89, s89, 4",
          f"s_add_u32 s89, s89, {STAMP + kidx*16384}", "v_mov_b32 v4, s89",
          "global_store_dwordx4 v4, v[0:3], s[90:91]",
          "s_sub_u32 s86, s86, s84", "v_mov_b32 v5, s86", "v_add_u32 v4, 0x100000, v4", "global_store_dword v4, v5, s[90:91]")
    k.label(f"L_end_{k.name}")
    k("s_endpgm")


def ids_8x4(k, s_a, s_b, tmp):
    k(f"s_lshr_b32 s{tmp}, s2, 3",
      f"s_and_b32 s{s_a}, s{tmp}, 3",
      f"s_lshr_b32 s{s_b}, s{tmp}, 2",
      f"s_and_b32 s{tmp}, s2, 1",
      f"s_lshl_b32 s{tmp}, s{tmp}, 2",
      f"s_add_u32 s{s_a}, s{s_a}, s{tmp}",
      f"s_and_b32 s{tmp}, s2, 6",
      f"s_lshl_b32 s{tmp}, s{tmp}, 2",
      f"s_add_u32 s{s_b}, s{s_b}, s{tmp}")


def code_prefetch(k, vtmp, vdst, stmp, start, nkb_per_wg=1):
    k(f"s_getpc_b64 s[{stmp}:{stmp+1}]")
    lab = f"L_pc_{k.name}_{start}"
    k.label(lab)
    k(f"s_add_u32 s{stmp}, s{stmp}, {start}-{lab}",
      f"s_addc_u32 s{stmp+1}, s{stmp+1}, 0",
      f"global_load_dwordx4 {vr(vdst,4)}, v{vtmp}, s[{stmp}:{stmp+1}]" if not OPT.get("nopf") else None)


def k0_qkv():
    D = 3
    STG, NS = 28672, D + 2
    TBL = STG * NS
    k = Kern("qkv_kernel", 256, 512, TBL + 1024)
    SX, SWQ, SE, SWS = 4, 8, 12, 16
    sW, sTB, sHG, sN, sX, sWo, sEo, sRd, sWr, sT, sT2, sTH, sCH, sBW = range(24, 38)
    NT = " nt" if OPT.get("k0nt", 0) else ""
    v = Alloc(1)
    L, G, R, CQ, TOK, T0, T1, T2 = [v() for _ in range(8)]
    vX, vX2, vE = v(), v(), v()
    vW = [v() for _ in range(4)]
    bX = [[v() for i in range(2)] for s in range(2)]
    bW = [v() for _ in range(4)]
    bE = v()
    aX = [[v() for i in range(2)] for s in range(2)]
    aW = [v() for _ in range(4)]
    aE = v()
    F = [[dict(X=[v(4, 4) for _ in range(2)], W=[v(4, 4) for _ in range(4)], E=v(4, 4)) for s in range(2)] for _ in range(2)]
    acc0 = v.n = (v.n + 3) // 4 * 4
    acc = [[v(4, 4) for i in range(2)] for t in range(4)]
    accE = [v(4, 4) for i in range(2)]
    cs = [v(4, 4) for _ in range(2)]
    csE, sx, sxx = v(4, 4), v(4, 4), v(4, 4)
    acc1 = v.n
    ONES = v(4, 4)
    PF = v(4, 4)
    k.vgpr = k.acc = (v.n + 7) // 8 * 8
    head(k)
    k(f"s_load_dwordx2 s[{SX}:{SX+1}], s[0:1], {A_X}",
      f"s_load_dwordx2 s[{SWQ}:{SWQ+1}], s[0:1], {A_WQ}",
      f"s_load_dwordx4 s[20:23], s[0:1], {A_WK}",
      f"s_load_dwordx2 s[{SWS}:{SWS+1}], s[0:1], {A_WS}")
    k(f"v_lshlrev_b32 v{T0}, 4, v0")
    code_prefetch(k, T0, PF, 40, "L_k0_body")
    k.label("L_k0_body")
    k(f"v_lshrrev_b32 v{T1}, 6, v0", f"v_and_b32 v{L}, 63, v0", f"v_readfirstlane_b32 s{sW}, v{T1}")
    ids_8x4(k, sHG, sTB, sT)
    k(f"v_lshrrev_b32 v{G}, 4, v{L}", f"v_and_b32 v{TOK}, 15, v{L}")
    k(f"s_and_b32 s{sTH}, s{sW}, 1", f"s_bfe_u32 s{sCH}, s{sW}, 0x10001",
      f"s_cmp_lt_u32 s{sW}, 4", "s_cbranch_scc1 L_k0_comp")
    k(f"s_and_b32 s{sW}, s{sW}, 3")
    k(f"v_lshrrev_b32 v{T0}, 3, v{L}",
      f"s_lshl_b32 s{sT}, s{sTH}, 2",
      f"v_add_u32 v{T1}, s{sT}, v{G}",
      f"v_and_b32 v{T2}, 7, v{L}",
      f"v_xor_b32 v{T1}, v{T1}, v{T2}",
      f"s_lshl_b32 s{sT}, s{sTB}, 6",
      f"s_lshl_b32 s{sT2}, s{sW}, 3",
      f"s_add_u32 s{sT}, s{sT}, s{sT2}",
      f"v_add_u32 v{T0}, s{sT}, v{T0}",
      f"v_lshlrev_b32 v{T0}, 11, v{T0}",
      f"v_lshl_add_u32 v{vX}, v{T1}, 4, v{T0}",
      f"v_add_u32 v{vX2}, 0x10000, v{vX}")
    k(f"v_lshlrev_b32 v{T1}, 1, v{G}",
      f"v_xor_b32 v{T1}, v{T1}, v{TOK}",
      f"s_lshl_b32 s{sT}, s{sTH}, 3",
      f"v_xor_b32 v{T1}, s{sT}, v{T1}",
      f"s_lshl_b32 s{sBW}, s{sTH}, 1",
      f"s_add_u32 s{sBW}, s{sBW}, s{sCH}",
      f"s_lshl_b32 s{sT}, s{sBW}, 13",
      f"s_lshl_b32 s{sT2}, s{sHG}, 8",
      f"s_add_u32 s{sT}, s{sT}, s{sT2}",
      f"v_lshlrev_b32 v{T0}, 11, v{G}",
      f"v_add_u32 v{T0}, s{sT}, v{T0}",
      f"v_lshl_add_u32 v{vW[0]}, v{T1}, 4, v{T0}")
    for i in range(1, 4):
        k(f"v_add_u32 v{vW[i]}, {32768*i}, v{vW[0]}")
    k(f"v_lshrrev_b32 v{T0}, 5, v{L}",
      f"v_lshlrev_b32 v{T0}, 1, v{T0}",
      f"v_xor_b32 v{T0}, v{T0}, v{L}",
      f"s_lshl_b32 s{sT}, s{sW}, 10",
      f"v_lshl_add_u32 v{vE}, v{T0}, 4, s{sT}")
    k(f"s_sub_u32 s{sBW}, s{sBW}, s{sW}", f"s_lshl_b32 s{sBW}, s{sBW}, 10", f"s_add_u32 s{sBW}, s{sBW}, 8192",
      f"s_lshl_b32 s{sWr}, s{sW}, 10", f"s_mov_b32 s{sN}, 16")
    k(f"s_lshl_b32 s{sT}, s{sHG}, 1", f"s_add_u32 s{sT}, s{sT}, s{sTB}", f"s_and_b32 s{sT}, s{sT}, {7 if OPT.get('rot', 0) else 0}",
      f"s_lshl_b32 s{sX}, s{sT}, 8", f"s_lshl_b32 s{sWo}, s{sT}, 18", f"s_lshl_b32 s{sEo}, s{sT}, 13")
    k("s_waitcnt lgkmcnt(0)")
    k(srd_tail(SX, 4 * MB), srd_tail(SWQ, 2 * MB))
    k(f"s_cmp_eq_u32 s{sHG}, 0", f"s_cselect_b32 s{SE}, s20, s22", f"s_cselect_b32 s{SE+1}, s21, s23", srd_tail(SE, 0x10000),
      f"s_and_b32 s{sT}, s{sHG}, 3", f"s_cmp_eq_u32 s{sT}, 0", "s_cbranch_scc1 L_k0_ld1")
    for e in range(2):
        k.label(f"L_k0_ld{e}")
        k(f"s_mov_b32 m0, s{sWr}", f"s_add_u32 s{sT}, s{sWr}, s{sBW}", f"buffer_load_dwordx4 v{vX}, s[{SX}:{SX+3}], s{sX} offen{NT} lds",
          f"s_add_u32 m0, s{sWr}, 4096", "s_nop 0", f"buffer_load_dwordx4 v{vX2}, s[{SX}:{SX+3}], s{sX} offen{NT} lds")
        for i in range(4):
            k(f"s_add_u32 m0, s{sT}, {4096*i}", "s_nop 0", f"buffer_load_dwordx4 v{vW[i]}, s[{SWQ}:{SWQ+3}], s{sWo} offen{NT} lds")
        if e:
            k(f"s_add_u32 m0, s{sWr}, 24576", "s_nop 0", f"buffer_load_dwordx4 v{vE}, s[{SE}:{SE+3}], s{sEo} offen{NT} lds",
              f"s_add_u32 s{sEo}, s{sEo}, 4096", f"s_and_b32 s{sEo}, s{sEo}, 0xffff")
        k(f"s_add_u32 s{sWo}, s{sWo}, 0x20000", f"s_and_b32 s{sWo}, s{sWo}, 0x1fffff",
          f"s_add_u32 s{sWr}, s{sWr}, {STG}", f"s_cmp_ge_u32 s{sWr}, {TBL}", f"s_cselect_b32 s{sT}, {TBL}, 0",
          f"s_sub_u32 s{sWr}, s{sWr}, s{sT}", f"s_add_u32 s{sX}, s{sX}, 128", f"s_and_b32 s{sX}, s{sX}, 2047",
          f"s_sub_u32 s{sN}, s{sN}, 1", f"s_cmp_lg_u32 s{sN}, 0")
        k(f"s_waitcnt vmcnt({(6+e)*D})", "s_barrier", f"s_cbranch_scc1 L_k0_ld{e}")
        for d in range(D - 1, -1, -1):
            k(f"s_waitcnt vmcnt({(6+e)*d})", "s_barrier")
        if e == 0:
            k("s_branch L_k0_ldx")
    k.label("L_k0_ldx")
    k(f"s_lshr_b32 s{sT}, s2, 3", f"s_lshl_b32 s{sT}, s{sT}, 11", f"v_and_b32 v{T0}, 255, v0", f"v_lshlrev_b32 v{T0}, 3, v{T0}",
      f"v_add_u32 v{T0}, s{sT}, v{T0}")
    k(f"s_getpc_b64 s[40:41]")
    k.label("L_k0_pc2")
    k("s_add_u32 s40, s40, L_code_rest-L_k0_pc2", "s_addc_u32 s41, s41, 0",
      f"v_min_u32 v{T0}, L_code_end-L_code_rest-4, v{T0}",
      f"global_load_dword v{PF}, v{T0}, s[40:41]" if not OPT.get("nopf") else None)
    k("s_endpgm")
    k.label("L_k0_comp")
    if OPT.get("touch"):
        st = OPT["touch"] * 1024
        k(f"s_load_dwordx2 s[44:45], s[0:1], {A_WO}", f"s_load_dwordx2 s[48:49], s[0:1], {A_WG}", f"s_load_dwordx2 s[52:53], s[0:1], {A_WU}",
          f"s_load_dwordx2 s[56:57], s[0:1], {A_WD}", f"s_load_dwordx2 s[60:61], s[0:1], {A_OUT}", f"s_load_dwordx2 s[64:65], s[0:1], {A_WS}",
          f"s_load_dwordx2 s[68:69], s[0:1], {A_X}", f"s_load_dwordx2 s[72:73], s[0:1], {A_WQ}")
        k(f"s_lshr_b32 s{sT}, s2, 3", f"v_lshlrev_b32 v{T0}, 5, v0", f"v_add_u32 v{T0}, s{sT}, v{T0}", f"s_mov_b32 s{sT}, {st}",
          f"v_min_u32 v{T0}, {(0xfffffff0)//st}, v{T0}", f"v_mul_lo_u32 v{T0}, v{T0}, s{sT}", "s_waitcnt lgkmcnt(0)")
        for s_, sz in ((68, 4 * MB), (72, 2 * MB), (64, 54 * MB), (44, 2 * MB), (48, 7 * MB), (52, 7 * MB), (56, 7 * MB), (60, 4 * MB)):
            k(srd_tail(s_, sz))
            for rep in range(-(-sz // (st * 8192))):
                k(f"s_mov_b32 s{sT}, {rep*st*8192}", f"buffer_load_dword v{PF}, v{T0}, s[{s_}:{s_+3}], s{sT} offen")
    for _ in range(D):
        k("s_barrier")
    k(f"v_bfe_u32 v{R}, v{L}, 2, 2", f"v_and_b32 v{CQ}, 3, v{L}")
    k(f"v_lshrrev_b32 v{T0}, 1, v{TOK}", f"v_xor_b32 v{T0}, v{T0}, v{G}", f"v_lshlrev_b32 v{T0}, 4, v{T0}",
      f"v_lshl_add_u32 v{T0}, v{TOK}, 7, v{T0}",
      f"s_lshl_b32 s{sT}, s{sTH}, 1", f"s_add_u32 s{sT}, s{sT}, s{sCH}", f"s_lshl_b32 s{sT}, s{sT}, 11",
      f"v_add_u32 v{bX[0][0]}, s{sT}, v{T0}",
      f"v_xor_b32 v{bX[0][1]}, 2048, v{bX[0][0]}",
      f"v_xor_b32 v{bX[1][0]}, 64, v{bX[0][0]}",
      f"v_xor_b32 v{bX[1][1]}, 64, v{bX[0][1]}")
    k(f"v_and_b32 v{T2}, 1, v{G}",
      f"v_lshlrev_b32 v{T0}, 2, v{T2}", f"v_xor_b32 v{T0}, v{T0}, v{R}",
      f"s_lshl_b32 s{sT}, s{sCH}, 2", f"s_lshl_b32 s{sT2}, s{sTH}, 1", f"s_add_u32 s{sT}, s{sT}, s{sT2}",
      f"v_xor_b32 v{T0}, s{sT}, v{T0}",
      f"v_lshlrev_b32 v{T0}, 5, v{T0}",
      f"v_lshl_add_u32 v{T0}, v{CQ}, 3, v{T0}",
      f"v_lshl_add_u32 v{T0}, v{R}, 8, v{T0}",
      f"v_lshl_add_u32 v{T0}, v{G}, 11, v{T0}",
      f"v_add_u32 v{bW[0]}, 8192, v{T0}")
    for t in range(1, 4):
        k(f"v_xor_b32 v{bW[t]}, {32*t}, v{bW[0]}")
    k(f"v_xor_b32 v{T0}, s{sCH}, v{T2}", f"v_lshlrev_b32 v{T0}, 5, v{T0}", f"v_lshl_add_u32 v{T0}, v{CQ}, 3, v{T0}",
      f"v_lshl_add_u32 v{T0}, v{R}, 6, v{T0}", f"v_lshl_add_u32 v{T0}, v{G}, 9, v{T0}",
      f"v_add_u32 v{bE}, 24576, v{T0}")
    bases = [(aX[s][i], bX[s][i]) for s in range(2) for i in range(2)] + list(zip(aW, bW)) + [(aE, bE)]
    for a, b in bases:
        k(f"v_mov_b32 v{a}, v{b}")
    for i in range(acc0, acc1):
        k(f"v_mov_b32 v{i}, 0")
    for i in range(4):
        k(f"v_mov_b32 v{ONES+i}, 0x3f803f80")
    k("s_waitcnt lgkmcnt(0)", ws_shift(SWS), srd_tail(SWS, WS_SZ))

    def reads(fi, e):
        o = []
        for s in range(2):
            f = F[fi][s]
            o += [f"ds_read_b128 {vr(f['X'][i],4)}, v{aX[s][i]}" for i in range(2)]
            for t in range(4):
                for j in range(2):
                    o.append(f"ds_read_b64_tr_b16 {vr(f['W'][t]+2*j,2)}, v{aW[t]} offset:{s*8192+j*1024}")
            for j in range(2 * e):
                o.append(f"ds_read_b64_tr_b16 {vr(f['E']+2*j,2)}, v{aE} offset:{s*2048+j*256}")
        return o

    def mfmas(fi, e):
        X = lambda s, i: vr(F[fi][s]["X"][i], 4)
        W = lambda s, t: vr(F[fi][s]["W"][t], 4)
        E = lambda s: vr(F[fi][s]["E"], 4)
        O = vr(ONES, 4)
        o = [m16(vr(sx, 4), O, X(s, 0)) for s in range(2)] + [m16(vr(sxx, 4), X(s, 0), X(s, 0)) for s in range(2)]
        for t in range(4):
            o += [m16(vr(acc[t][i], 4), W(s, t), X(s, i)) for i in range(2) for s in range(2)]
            if t < 2:
                o += [m16(vr(cs[t], 4), W(s, t), O) for s in range(2)]
        if e:
            o += [m16(vr(accE[i], 4), E(s), X(s, i)) for i in range(2) for s in range(2)]
            o += [m16(vr(csE, 4), E(s), O) for s in range(2)]
        return o

    def adv(e):
        va = [f"v_add_u32 v{a}, s{sRd}, v{b}" for a, b in bases[:8 + e]]
        return [[f"s_add_u32 s{sRd}, s{sRd}, {STG}", f"s_cmp_eq_u32 s{sRd}, {TBL}"], [f"s_cselect_b32 s{sRd}, 0, s{sRd}"]] + \
               [va[i:i + 2] for i in range(0, len(va), 2)]
    k(f"s_mov_b32 s{sRd}, 0", f"s_mov_b32 s{sN}, 7", f"s_and_b32 s{sT}, s{sHG}, 3", f"s_cmp_eq_u32 s{sT}, 0")
    k("s_barrier")
    mid_stamp(k, 0)
    k("s_cbranch_scc1 L_k0_c1")
    for e in range(2):
        k.label(f"L_k0_c{e}")
        k(reads(0, e), adv(e), "s_waitcnt lgkmcnt(0)")
        k.label(f"L_k0_loop{e}")
        nr = 12 + 3 * e
        for f in range(2):
            k("s_barrier")
            m = weave(mfmas(f, e), reads(1 - f, e), 0, nr)
            tl = adv(e) + ([[f"s_sub_u32 s{sN}, s{sN}, 1", f"s_cmp_lg_u32 s{sN}, 0"]] if f == 1 else [])
            k(weave(m, tl, len(m) - 10, len(m) - 1))
            k("s_waitcnt lgkmcnt(0)")
        k(f"s_cbranch_scc1 L_k0_loop{e}")
        k("s_barrier")
        k(weave(mfmas(0, e), reads(1, e), 0, nr), "s_waitcnt lgkmcnt(0)", mfmas(1, e))
        if e == 0:
            k("s_branch L_k0_epi")
    k.label("L_k0_epi")
    mid_stamp(k, 1)
    ST = F[0][0]["X"]
    k(f"v_and_b32 v{T0}, 1, v{TOK}", f"v_cmp_eq_u32 vcc, 1, v{T0}", f"v_and_b32 v{T1}, 2, v{TOK}", "s_nop 1",
      f"v_cndmask_b32 v{T0}, v{sxx}, v{sxx+1}, vcc", f"v_cndmask_b32 v{T2}, v{sxx+2}, v{sxx+3}, vcc",
      f"v_cmp_eq_u32 vcc, 2, v{T1}", "s_nop 1",
      f"v_cndmask_b32 v{sx+1}, v{T0}, v{T2}, vcc")
    k(f"s_lshl_b32 s{sT}, s{sTH}, 1", f"s_add_u32 s{sT}, s{sT}, s{sCH}", f"s_lshl_b32 s{sT}, s{sT}, 7", f"s_add_u32 s{sT}, s{sT}, {TBL}",
      f"v_lshl_add_u32 v{T0}, v{TOK}, 3, s{sT}",
      f"s_lshl_b32 s{sT}, s{sCH}, 2", f"s_lshl_b32 s{sT2}, s{sTH}, 1", f"s_add_u32 s{sT}, s{sT}, s{sT2}", f"s_lshl_b32 s{sT}, s{sT}, 6",
      f"s_add_u32 s{sT}, s{sT}, {TBL+512}",
      f"v_lshl_add_u32 v{T1}, v{G}, 4, s{sT}",
      f"ds_write_b128 v{T1}, {vr(cs[0],4)}", f"ds_write_b128 v{T1}, {vr(cs[1],4)} offset:64",
      f"v_cmp_eq_u32 vcc, v{R}, v{G}", "s_and_saveexec_b64 s[42:43], vcc",
      f"ds_write_b64 v{T0}, {vr(sx,2)}", "s_mov_b64 exec, s[42:43]",
      "s_waitcnt lgkmcnt(0)", "s_barrier")
    c2, c3 = F[0][0]["W"][0], F[0][0]["W"][1]
    k(f"v_xor_b32 v{T2}, 128, v{T0}", f"v_xor_b32 v{T1}, 128, v{T1}",
      f"ds_read_b64 {vr(ST[0],2)}, v{T0}", f"ds_read_b64 {vr(ST[1],2)}, v{T2}",
      f"ds_read_b128 {vr(c2,4)}, v{T1}", f"ds_read_b128 {vr(c3,4)}, v{T1} offset:64")
    vQ, vQ1 = vX, vX2
    k(f"v_lshlrev_b32 v{T0}, 9, v{G}", f"v_lshl_add_u32 v{T0}, v{TOK}, 4, v{T0}",
      f"s_lshl_b32 s{sT}, s{sCH}, 8", f"v_add_u32 v{vQ}, s{sT}, v{T0}", f"v_xor_b32 v{vQ1}, 256, v{vQ}")
    sQ0, sQ1, sKV = sX, sWo, sEo
    k(f"s_lshl_b32 s{sT}, s{sTB}, 1", f"s_add_u32 s{sT}, s{sT}, s{sTH}",
      f"s_lshl_b32 s{sT2}, s{sHG}, 2", f"s_lshl_b32 s{sQ0}, s{sCH}, 1", f"s_add_u32 s{sT2}, s{sT2}, s{sQ0}", f"s_add_u32 s{sT2}, s{sT2}, s{sTH}",
      f"s_lshl_b32 s{sQ0}, s{sT2}, 6", f"s_add_u32 s{sQ0}, s{sQ0}, s{sT}", f"s_lshl_b32 s{sQ0}, s{sQ0}, 11",
      f"s_xor_b32 s{sQ1}, s{sQ0}, {1<<17}")
    k("s_waitcnt lgkmcnt(0)")
    for i in range(2):
        s = ST[i]
        k(f"v_mul_f32 v{s}, {f32(1/1024)}, v{s}",
          f"v_mul_f32 v{s+1}, {f32(1/1024)}, v{s+1}",
          f"v_fma_f32 v{s+1}, -v{s}, v{s}, v{s+1}",
          f"v_max_f32 v{s+1}, 0, v{s+1}",
          f"v_add_f32 v{s+1}, {f32(EPS)}, v{s+1}",
          f"v_rsq_f32 v{s+2}, v{s+1}", "s_nop 0",
          f"v_mul_f32 v{s+3}, v{s}, v{s+2}",
          f"v_sub_f32 v{s+3}, 0, v{s+3}",
          f"v_mul_f32 v{s}, {f32(QSCALE)}, v{s+2}",
          f"v_mul_f32 v{s+1}, {f32(QSCALE)}, v{s+3}")
    k(f"s_and_b32 s{sT}, s{sHG}, 3", f"s_cmp_lg_u32 s{sT}, 0", "s_cbranch_scc1 L_k0_q")
    o = F[1][0]["E"]
    for i in range(2):
        a = accE[i]
        for r in range(4):
            k(f"v_mul_f32 v{a+r}, v{ST[i]+2}, v{a+r}", f"v_fmac_f32 v{a+r}, v{ST[i]+3}, v{csE+r}")
        k(f"v_cvt_pk_bf16_f32 v{o+2*i}, v{a}, v{a+1}", f"v_cvt_pk_bf16_f32 v{o+2*i+1}, v{a+2}, v{a+3}")
    k(f"s_lshl_b32 s{sKV}, s{sTB}, 1", f"s_add_u32 s{sKV}, s{sKV}, s{sCH}", f"s_lshl_b32 s{sKV}, s{sKV}, 12",
      f"s_lshl_b32 s{sT}, s{sTH}, 10", f"s_add_u32 s{sKV}, s{sKV}, s{sT}", f"s_add_u32 s{sKV}, s{sKV}, {KVF}",
      f"s_lshl_b32 s{sT}, s{sTH}, 11", f"s_cmp_lg_u32 s{sHG}, 0", "s_cbranch_scc1 L_k0_v")
    k(f"s_lshl_b32 s{sT2}, s{sCH}, 3", f"s_add_u32 s{sT}, s{sT}, s{sT2}",
      f"v_add_u32 v{T0}, s{sT}, v{vQ}", f"v_add_u32 v{T1}, s{sT}, v{vQ1}",
      f"ds_write_b64 v{T0}, {vr(o,2)}", f"ds_write_b64 v{T1}, {vr(o+2,2)}", "s_branch L_k0_kv")
    k.label("L_k0_v")
    k(f"v_and_b32 v{T0}, 1, v{G}", f"v_lshlrev_b32 v{T0}, 7, v{T0}", f"v_lshrrev_b32 v{T1}, 1, v{G}", f"v_lshl_add_u32 v{T0}, v{T1}, 6, v{T0}",
      f"v_bfe_u32 v{T1}, v{L}, 3, 1", f"v_lshl_add_u32 v{T0}, v{T1}, 9, v{T0}", f"v_and_b32 v{T1}, 7, v{L}", f"v_lshl_add_u32 v{T0}, v{T1}, 1, v{T0}",
      f"s_mul_i32 s{sT2}, s{sCH}, 1280", f"s_add_u32 s{sT}, s{sT}, s{sT2}", f"v_add_u32 v{T0}, s{sT}, v{T0}", f"v_xor_b32 v{T1}, 1024, v{T0}",
      f"s_add_u32 s{sKV}, s{sKV}, 2048")
    for i in range(2):
        for r in range(4):
            op = "ds_write_b16" if r % 2 == 0 else "ds_write_b16_d16_hi"
            k(f"{op} v{[T0,T1][i]}, v{o+2*i+r//2} offset:{16*r}")
    k.label("L_k0_kv")
    k("s_waitcnt lgkmcnt(0)", "s_barrier", f"v_lshlrev_b32 v{T0}, 4, v0", f"ds_read_b128 {vr(o,4)}, v{T0}", f"v_lshlrev_b32 v{T0}, 4, v{L}",
      "s_waitcnt lgkmcnt(0)", f"buffer_store_dwordx4 {vr(o,4)}, v{T0}, s[{SWS}:{SWS+3}], s{sKV} offen sc1")
    k.label("L_k0_q")
    csr = [cs[0], cs[1], c2, c3]
    OUTR = F[1][0]["W"]
    for p in range(2):
        for i in range(2):
            o = OUTR[2 * p + i]
            for jt in range(2):
                t = 2 * p + jt
                a = acc[t][i]
                for r in range(4):
                    k(f"v_mul_f32 v{a+r}, v{ST[i]}, v{a+r}", f"v_fmac_f32 v{a+r}, v{ST[i]+1}, v{csr[t]+r}")
                k(f"v_cvt_pk_bf16_f32 v{o+2*jt}, v{a}, v{a+1}", f"v_cvt_pk_bf16_f32 v{o+2*jt+1}, v{a+2}, v{a+3}")
            k(f"buffer_store_dwordx4 {vr(o,4)}, v{[vQ,vQ1][i]}, s[{SWS}:{SWS+3}], s{[sQ0,sQ1][p]} offen sc1")
    tail(k, 0, sW)
    return k


def k1_attn():
    SLOT = 32768
    JB = 3 * SLOT
    k = Kern("attn_kernel", 256, 512, JB + 16384)
    SWS, SKV, SJ = 4, 8, 12
    (sW, sTB, sHG, sC, sT, sT2, sRd, sWr, sKo, sJo, sJa, sJb, sGW, sStr, sDstep, sOo) = range(32, 48)
    sD = [50, 51, 52, 53]
    sCs = [58, 59, 60, 61]
    sDB, sBsz, sWrJ = 62, 63, 64
    v = Alloc(1)
    L, T0, T1, T2, vLin, vRd, IDX = [v() for _ in range(7)]
    Q = [v(8, 4) for _ in range(2)]
    S = [v(16, 4) for _ in range(4)]
    O = [v(16, 4) for _ in range(2)]
    LS = [v(4, 4) for _ in range(2)]
    KB = [v(8, 4) for _ in range(2)]
    VB = [v(8, 4) for _ in range(2)]
    SUMA = v(4, 4)
    k.vgpr = k.acc = (v.n + 7) // 8 * 8
    h = Alloc(8)
    vJ, vJB, vCs = h(), h(), h()
    aJ = [h() for _ in range(4)]
    bJ = [h() for _ in range(2)]
    JF = [h(4, 4) for _ in range(4)]
    CS = [h(4, 4) for _ in range(4)]
    ONES = h(4, 4)
    head(k)
    k(f"s_load_dwordx2 s[{SWS}:{SWS+1}], s[0:1], {A_WS}",
      f"s_load_dwordx2 s[20:21], s[0:1], {A_WO}",
      f"s_load_dwordx4 s[24:27], s[0:1], {A_WG}",
      f"s_load_dwordx2 s[28:29], s[0:1], {A_WD}")
    k(f"v_lshrrev_b32 v{T1}, 6, v0", f"v_and_b32 v{L}, 63, v0", f"v_readfirstlane_b32 s{sW}, v{T1}", f"v_lshlrev_b32 v{vLin}, 4, v{L}")
    k("s_nop 1", f"s_cmp_lt_u32 s{sW}, 4", "s_cbranch_scc1 L_k1_comp")
    k(f"s_and_b32 s{sW}, s{sW}, 3", f"s_lshl_b32 s{sKo}, s{sW}, 13", f"s_mov_b32 s{sWr}, s{sKo}")
    k("s_waitcnt lgkmcnt(0)", ws_shift(SWS))
    k(srd_from(SKV, SWS, KVF, 262144))

    def kv_dma(c):
        o = []
        for hh in range(2):
            o += [f"s_add_u32 m0, s{sWr}, {(c%3)*SLOT+4096*hh}", "s_nop 0"]
            for i in range(4):
                o.append(f"buffer_load_dwordx4 v{vLin}, s[{SKV}:{SKV+3}], s{sKo} offen offset:{1024*i} lds")
            o.append(f"s_add_u32 s{sKo}, s{sKo}, {4096 if hh == 0 else 32768-4096}")
        return o
    k(kv_dma(0), kv_dma(1), srd_tail(SWS, WS_SZ))
    k(f"s_lshl_b32 s{sGW}, s2, 2", f"s_add_u32 s{sGW}, s{sGW}, s{sW}",
      f"s_lshl_b32 s{sWrJ}, s{sW}, 12", f"s_add_u32 s{sWrJ}, s{sWrJ}, {JB}")
    k(f"v_lshrrev_b32 v{T0}, 4, v{L}", f"v_lshlrev_b32 v{T0}, 10, v{T0}", f"v_bfe_u32 v{T1}, v{L}, 2, 2", f"v_lshl_add_u32 v{T0}, v{T1}, 7, v{T0}",
      f"v_bfe_u32 v{T1}, v{L}, 3, 1", f"v_lshl_add_u32 v{T0}, v{T1}, 6, v{T0}", f"v_add_u32 v{T0}, s{sWrJ}, v{T0}", f"v_and_b32 v{T1}, 3, v{L}",
      f"v_lshl_add_u32 v{bJ[0]}, v{T1}, 4, v{T0}", f"v_xor_b32 v{bJ[1]}, 64, v{bJ[0]}")
    strip, kb0, mat = 66, 67, 68
    k(f"s_lshr_b32 s{strip}, s{sGW}, 3", f"s_and_b32 s{kb0}, s{sGW}, 7", f"s_lshl_b32 s{kb0}, s{kb0}, 2",
      f"s_cmp_ge_u32 s{strip}, 112", "s_cbranch_scc1 L_k1_wo")
    k(f"s_cmp_ge_u32 s{strip}, 56", f"s_cselect_b32 s{mat}, 1, 0",
      f"s_cselect_b32 s{SJ}, s26, s24", f"s_cselect_b32 s{SJ+1}, s27, s25",
      f"s_mul_i32 s{sT}, s{mat}, 56", f"s_sub_u32 s{strip}, s{strip}, s{sT}",
      f"s_mov_b32 s{SJ+2}, {1024*7168}", f"s_mov_b32 s{sStr}, 7168", f"s_mov_b32 s{sDstep}, {14*1024}",
      f"s_mov_b32 s{sBsz}, {3584*2048}",
      f"v_lshl_add_u32 v{aJ[0]}, v{T1}, 3, v{T0}")
    for i in range(1, 4):
        k(f"v_xor_b32 v{aJ[i]}, {32*i}, v{aJ[0]}")
    for i in range(4):
        T, fb, pos = 69, 70, 71
        k(f"s_lshl_b32 s{T}, s{strip}, 2", f"s_add_u32 s{T}, s{T}, {i}",
          f"s_mul_i32 s{fb}, s{T}, 9363", f"s_lshr_b32 s{fb}, s{fb}, 16",
          f"s_sub_u32 s{pos}, s{mat}, s{fb}", f"s_mul_i32 s{pos}, s{pos}, 7", f"s_add_u32 s{pos}, s{T}, s{pos}",
          f"s_lshl_b32 s{sT}, s{fb}, 5", f"s_add_u32 s{sT}, s{sT}, s{kb0}", f"s_mul_i32 s{sT}, s{sT}, 14",
          f"s_add_u32 s{sT}, s{sT}, s{pos}", f"s_lshl_b32 s{sT}, s{sT}, 10", f"s_add_u32 s{sD[i]}, s{sT}, {WGU}",
          f"s_lshl_b32 s{sT}, s{kb0}, 3", f"s_add_u32 s{sT}, s{sT}, s{fb}", f"s_mul_i32 s{sT}, s{sT}, 14",
          f"s_add_u32 s{sT}, s{sT}, s{pos}", f"s_lshl_b32 s{sT}, s{sT}, 6", f"s_add_u32 s{sCs[i]}, s{sT}, {CSP}")
    k("s_branch L_k1_jp")
    k.label("L_k1_wo")
    k(f"s_sub_u32 s{strip}, s{strip}, 112", f"s_mov_b32 s{SJ}, s20", f"s_mov_b32 s{SJ+1}, s21",
      f"s_mov_b32 s{SJ+2}, {2*MB}", f"s_mov_b32 s{sStr}, 2048", f"s_mov_b32 s{sDstep}, 8192", f"s_mov_b32 s{sBsz}, 0",
      f"s_lshr_b32 s{sT}, s{strip}, 1", f"s_lshl_b32 s{sT}, s{sT}, 5", f"s_add_u32 s{sT}, s{sT}, s{kb0}", f"s_lshl_b32 s{sT}, s{sT}, 1",
      f"s_and_b32 s{sT2}, s{strip}, 1", f"s_add_u32 s{sT}, s{sT}, s{sT2}", f"s_lshl_b32 s{sT}, s{sT}, 12")
    for i in range(4):
        k(f"s_add_u32 s{sD[i]}, s{sT}, {WOF+1024*i}", f"s_mov_b32 s{sCs[i]}, {OOB}", f"v_add_u32 v{aJ[i]}, {8*(i&1)}, v{bJ[i>>1]}")
    k.label("L_k1_jp")
    k(f"s_mov_b32 s{SJ+3}, 0x00020000")
    k(f"v_lshrrev_b32 v{T0}, 3, v{L}", f"v_bfe_u32 v{T1}, v{L}, 4, 1", f"v_lshlrev_b32 v{T1}, 2, v{T1}",
      f"v_and_b32 v{T2}, 7, v{L}", f"v_xor_b32 v{T1}, v{T1}, v{T2}", f"v_lshlrev_b32 v{T1}, 4, v{T1}",
      f"v_mul_lo_u32 v{vJ}, v{T0}, s{sStr}", f"v_lshl_add_u32 v{vJB}, v{T0}, 11, v{T1}", f"v_add_u32 v{vJ}, v{vJ}, v{T1}",
      f"s_lshl_b32 s{sT}, s{kb0}, 5", f"s_mul_i32 s{sT}, s{sT}, s{sStr}", f"s_lshl_b32 s{sT2}, s{strip}, 7", f"s_add_u32 s{sT}, s{sT}, s{sT2}",
      f"v_add_u32 v{vJ}, s{sT}, v{vJ}",
      f"s_lshl_b32 s{sT}, s{sStr}, 3", f"s_sub_u32 s{sJa}, s{sT}, 1024", f"s_add_u32 s{sJb}, s{sT}, 3072", f"s_mov_b32 s{sJo}, 0")
    k(f"s_mul_i32 s{strip}, s{sGW}, 1171", f"s_lshr_b32 s{strip}, s{strip}, 16",
      f"s_mul_i32 s{sT}, s{strip}, 56", f"s_sub_u32 s{kb0}, s{sGW}, s{sT}", f"s_lshl_b32 s{kb0}, s{kb0}, 1",
      f"s_lshl_b32 s{sT}, s{kb0}, 16", f"s_lshl_b32 s{sT2}, s{strip}, 7", f"s_add_u32 s{sT}, s{sT}, s{sT2}",
      f"v_add_u32 v{vJB}, s{sT}, v{vJB}",
      f"s_lshr_b32 s{sT}, s{strip}, 1", f"s_mul_i32 s{sT}, s{sT}, 112", f"s_add_u32 s{sT}, s{sT}, s{kb0}", f"s_lshl_b32 s{sT}, s{sT}, 1",
      f"s_and_b32 s{sT2}, s{strip}, 1", f"s_add_u32 s{sT}, s{sT}, s{sT2}", f"s_lshl_b32 s{sT}, s{sT}, 12",
      f"s_add_u32 s{sDB}, s{sT}, {WDF}", f"s_cmp_eq_u32 s{sBsz}, 0", f"s_cselect_b32 s{sDB}, {OOB}, s{sDB}")
    k(f"v_and_b32 v{T0}, 15, v{L}", f"v_cmp_eq_u32 vcc, 0, v{T0}", f"v_mov_b32 v{T1}, {OOB}", "s_nop 0",
      f"v_cndmask_b32 v{vCs}, v{T1}, v{L}, vcc")
    for i in range(4):
        k(f"v_mov_b32 v{ONES+i}, 0x3f803f80")
    k("s_waitcnt vmcnt(8)", "s_barrier")
    vm = []

    def wait_for(tag):
        n = len(vm) - 1 - max(i for i, t in enumerate(vm) if t == tag)
        return f"s_waitcnt vmcnt({n})"
    vm += ["kv1"] * 8
    for c in range(8):
        if c + 2 < 8:
            k(kv_dma(c + 2)); vm += [f"kv{c+2}"] * 8
        j = c - 1
        proc = 0 <= j < 6 and not OPT.get("nojob")
        if proc:
            k(wait_for(f"j{j}"))
            for f in range(4):
                for jj in range(2):
                    if j < 4:
                        k(f"ds_read_b64_tr_b16 {vr(JF[f]+2*jj,2)}, v{aJ[f]} offset:{jj*512}")
                    else:
                        k(f"ds_read_b64_tr_b16 {vr(JF[f]+2*jj,2)}, v{bJ[f>>1]} offset:{jj*512+(f&1)*8}")
            k("s_waitcnt lgkmcnt(0)")
        if c < 6 and not OPT.get("nojob"):
            if c == 4:
                k(f"s_mov_b32 s{SJ}, s28", f"s_mov_b32 s{SJ+1}, s29", f"s_mov_b32 s{SJ+2}, s{sBsz}",
                  f"s_mov_b32 s{sJo}, 0", f"s_mov_b32 s{sJa}, {16384-1024}", f"s_mov_b32 s{sJb}, {16384+3072}")
            k(f"s_mov_b32 m0, s{sWrJ}", "s_nop 0")
            for i in range(4):
                k(f"buffer_load_dwordx4 v{vJ if c < 4 else vJB}, s[{SJ}:{SJ+3}], s{sJo} offen offset:{1024*i}{' nt' if OPT.get('jnt', 0) else ''} lds",
                  f"s_add_u32 s{sJo}, s{sJo}, s{sJa if i < 3 else sJb}")
            vm += [f"j{c}"] * 4
        if proc:
            for f in range(4):
                if j < 4:
                    k(f"buffer_store_dwordx4 {vr(JF[f],4)}, v{vLin}, s[{SWS}:{SWS+3}], s{sD[f]} offen sc1",
                      f"s_add_u32 s{sD[f]}, s{sD[f]}, s{sDstep}",
                      m16(vr(CS[f], 4), vr(JF[f], 4), vr(ONES, 4), "0" if j == 0 else None))
                else:
                    k(f"buffer_store_dwordx4 {vr(JF[f],4)}, v{vLin}, s[{SWS}:{SWS+3}], s{sDB} offen offset:{1024*f} sc1")
            vm += ["st"] * 4
            if j == 4:
                k(f"s_add_u32 s{sDB}, s{sDB}, 8192")
                for f in range(4):
                    k(f"buffer_store_dwordx4 {vr(CS[f],4)}, v{vCs}, s[{SWS}:{SWS+3}], s{sCs[f]} offen sc1")
                vm += ["st"] * 4
        if c + 1 < 8:
            k(wait_for(f"kv{c+1}"), "s_barrier")
    k("s_endpgm")
    k.label("L_k1_comp")
    ids_8x4(k, sHG, sTB, sT)
    k(f"s_lshl_b32 s{sT}, s{sHG}, 2", f"s_add_u32 s{sT}, s{sT}, s{sW}",
      f"s_lshl_b32 s{sOo}, s{sTB}, 5", f"s_add_u32 s{sOo}, s{sOo}, s{sT}", f"s_lshl_b32 s{sOo}, s{sOo}, 12", f"s_add_u32 s{sOo}, s{sOo}, {OF}",
      f"s_lshl_b32 s{sT}, s{sT}, 17", f"s_lshl_b32 s{sT2}, s{sTB}, 12", f"s_add_u32 s{sT}, s{sT}, s{sT2}")
    k("s_waitcnt lgkmcnt(0)", ws_shift(SWS))
    k(srd_tail(SWS, WS_SZ))
    for q in range(2):
        for m in range(2):
            k(f"buffer_load_dwordx4 {vr(Q[q]+4*m,4)}, v{vLin}, s[{SWS}:{SWS+3}], s{sT} offen offset:{2048*q+1024*m}")
    k(srd_from(SKV, SWS, KVF, 262144))
    k(f"v_and_b32 v{T0}, 7, v{L}", f"v_mov_b32 v{T1}, 0x3f803f80", f"v_cmp_eq_u32 vcc, 0, v{T0}", f"v_mov_b32 v{vRd}, v{vLin}", f"v_mov_b32 v{IDX}, 0xdddd",
      f"v_cndmask_b32 v{SUMA}, 0, v{T1}, vcc", f"v_cndmask_b32 v{SUMA+1}, 0, v{T1}, vcc",
      f"v_cmp_eq_u32 vcc, 4, v{T0}", "s_nop 1",
      f"v_cndmask_b32 v{SUMA+2}, 0, v{T1}, vcc", f"v_cndmask_b32 v{SUMA+3}, 0, v{T1}, vcc")
    for r0, n in ((O[0], 16), (O[1], 16), (LS[0], 4), (LS[1], 4), (S[3], 16), (VB[1], 8)):
        for i in range(n):
            k(f"v_mov_b32 v{r0+i}, 0")
    k(f"s_mov_b32 s{sRd}, 0", f"s_mov_b32 s{sC}, 8")
    k("s_waitcnt vmcnt(0)", "s_barrier")
    mid_stamp(k, 0)
    rdK = lambda t: [f"ds_read_b128 {vr(KB[t&1]+4*m,4)}, v{vRd} offset:{(t%8)*4096+1024*m}" for m in range(2)]
    rdV = lambda t: [f"ds_read_b128 {vr(VB[t&1]+4*m,4)}, v{vRd} offset:{(t%8)*4096+2048+1024*m}" for m in range(2)]
    qk = lambda u, c="0": [m32(vr(S[u % 4], 16), vr(KB[(u >> 1) & 1], 4), vr(Q[u & 1], 4), c),
                           m32(vr(S[u % 4], 16), vr(KB[(u >> 1) & 1] + 4, 4), vr(Q[u & 1] + 4, 4))]
    pv = lambda u: [f"v_smfmac_f32_32x32x32_bf16 {vr(O[u&1],16)}, {vr(VB[(u>>1)&1]+4*m,4)}, {vr(S[u%4]+8*m,8)}, v{IDX}" for m in range(2)]
    sm = lambda u: [f"v_smfmac_f32_16x16x64_bf16 {vr(LS[u&1],4)}, {vr(SUMA,4)}, {vr(S[u%4]+8*m,8)}, v{IDX}" for m in range(2)]
    k(rdK(0), rdV(0), "s_waitcnt lgkmcnt(0)", qk(0), "s_nop 7", "s_nop 3")
    k(".p2align 6")
    k.label("L_k1_loop")
    for u in range(16):
        ex = [f"v_exp_f32 v{S[u%4]+i}, v{S[u%4]+i}" for i in range(16)]
        mf = qk(u + 1) + pv(u - 1) + sm(u - 1)
        sl = [[] for _ in range(6)]
        t = u >> 1
        rd = rdK(t + 1) if u % 2 == 0 else rdV(t + 1)
        if u == 13:
            sl[2] += [f"s_add_u32 s{sRd}, s{sRd}, {SLOT}"]
            sl[3] += [f"s_cmp_eq_u32 s{sRd}, {3*SLOT}"]
            sl[4] += [f"s_cselect_b32 s{sRd}, 0, s{sRd}"]
            sl[5] += ["s_waitcnt lgkmcnt(0)", f"v_add_u32 v{vRd}, s{sRd}, v{vLin}"]
        if u == 14:
            sl[0] += ["s_barrier"]
            sl[1].append(rd[0]); sl[2].append(rd[1])
        else:
            sl[0].append(rd[0]); sl[1].append(rd[1])
        if u == 15:
            sl[2] += [f"s_sub_u32 s{sC}, s{sC}, 1"]
            sl[3] += [f"s_cmp_lg_u32 s{sC}, 0"]
        if u % 2 == 0:
            sl[5].append("s_waitcnt lgkmcnt(0)")
        cuts = [0, 3, 6, 9, 12, 14, 16]
        for i in range(6):
            k(mf[i], sl[i], ex[cuts[i]:cuts[i + 1]])
    k("s_cbranch_scc1 L_k1_loop")
    mid_stamp(k, 1)
    k("s_nop 1", pv(15), sm(15))
    vO = vRd
    k(f"v_bfe_u32 v{T0}, v{L}, 4, 1", f"v_lshlrev_b32 v{T0}, 10, v{T0}", f"v_lshrrev_b32 v{T1}, 5, v{L}", f"v_lshl_add_u32 v{T0}, v{T1}, 8, v{T0}",
      f"v_and_b32 v{T1}, 15, v{L}", f"v_lshl_add_u32 v{vO}, v{T1}, 4, v{T0}")
    k("s_nop 15", "s_waitcnt lgkmcnt(0)")
    k(f"v_maximum3_f32 v{T0}, abs(v{O[0]}), abs(v{O[0]+1}), v{LS[0]}", f"v_maximum3_f32 v{T1}, abs(v{O[1]}), abs(v{O[1]+1}), v{LS[1]}")
    for i in range(2, 16, 2):
        k(f"v_maximum3_f32 v{T0}, abs(v{O[0]+i}), abs(v{O[0]+i+1}), v{T0}", f"v_maximum3_f32 v{T1}, abs(v{O[1]+i}), abs(v{O[1]+i+1}), v{T1}")
    k(f"v_maximum3_f32 v{T0}, v{T0}, v{T1}, v{T1}", f"v_min_f32 v{T1}, v{LS[0]}, v{LS[1]}",
      f"v_cmp_nge_f32 vcc, {f32(2.0**100)}, v{T0}", f"s_mov_b64 s[70:71], vcc",
      f"v_cmp_nle_f32 vcc, {f32(2.0**-80)}, v{T1}", f"s_or_b64 s[70:71], s[70:71], vcc")
    if OPT["force_slow"]:
        k("s_branch L_k1_slow")
    k("s_cbranch_scc1 L_k1_slow")
    k.label("L_k1_out")
    k(f"v_rcp_f32 v{T0}, v{LS[0]}", f"v_rcp_f32 v{T1}, v{LS[1]}", "s_nop 0")
    for q in range(2):
        for m in range(2):
            o = S[0] + 8 * q + 4 * m
            for i in range(8):
                k(f"v_mul_f32 v{O[q]+8*m+i}, v{[T0,T1][q]}, v{O[q]+8*m+i}")
            for i in range(4):
                k(f"v_cvt_pk_bf16_f32 v{o+i}, v{O[q]+8*m+2*i}, v{O[q]+8*m+2*i+1}")
            k(f"buffer_store_dwordx4 {vr(o,4)}, v{vO}, s[{SWS}:{SWS+3}], s{sOo} offen offset:{2048*q+512*m} sc1")
    k("s_branch L_k1_done")
    k.label("L_k1_slow")
    C = [S[2], S[3]]
    ldK = [f"buffer_load_dwordx4 {vr(KB[0]+4*m,4)}, v{vLin}, s[{SKV}:{SKV+3}], s{sKo} offen offset:{1024*m}" for m in range(2)]
    ldV = [f"buffer_load_dwordx4 {vr(VB[0]+4*m,4)}, v{vLin}, s[{SKV}:{SKV+3}], s{sKo} offen offset:{2048+1024*m}" for m in range(2)]
    k(f"v_mov_b32 v{T0}, 0xff800000", f"v_mov_b32 v{T1}, 0xff800000", f"s_mov_b32 s{sKo}, 0")
    k.label("L_k1_s1")
    k(ldK, "s_waitcnt vmcnt(0)", qk(0), qk(1), "s_nop 15")
    for q in range(2):
        for i in range(0, 16, 2):
            k(f"v_max3_f32 v{[T0,T1][q]}, v{S[q]+i}, v{S[q]+i+1}, v{[T0,T1][q]}")
    k(f"s_add_u32 s{sKo}, s{sKo}, 4096", f"s_cmp_lt_u32 s{sKo}, 262144", "s_cbranch_scc1 L_k1_s1")
    for q in range(2):
        t = [T0, T1][q]
        k(f"v_mov_b32 v{T2}, v{t}", "s_nop 1", f"v_permlane32_swap_b32 v{t}, v{T2}", "s_nop 1", f"v_max_f32 v{t}, v{t}, v{T2}")
        for i in range(16):
            k(f"v_sub_f32 v{C[q]+i}, 0, v{t}", f"v_mov_b32 v{O[q]+i}, 0")
        for i in range(4):
            k(f"v_mov_b32 v{LS[q]+i}, 0")
    k(f"s_mov_b32 s{sKo}, 0")
    k.label("L_k1_s2")
    k(ldK, ldV, "s_waitcnt vmcnt(0)", qk(0, vr(C[0], 16)), qk(1, vr(C[1], 16)), "s_nop 15")
    for q in range(2):
        for i in range(16):
            k(f"v_exp_f32 v{S[q]+i}, v{S[q]+i}")
    k("s_nop 1", pv(0), sm(0), pv(1), sm(1))
    k(f"s_add_u32 s{sKo}, s{sKo}, 4096", f"s_cmp_lt_u32 s{sKo}, 262144", "s_cbranch_scc1 L_k1_s2")
    k("s_nop 15", "s_nop 7", "s_branch L_k1_out")
    k.label("L_k1_done")
    tail(k, 1, sW)
    return k


def k_gemm(name, kidx, K, tok_region, w_region, is_down):
    D = OPT.get("gd", 4)
    STG, NS = 24576, D + 2
    N = K // 64
    k = Kern(name, 256, 512, STG * NS)
    SWS, ST_, SW_, SR, SO = 4, 8, 12, 16, 20
    sW, sTB, sNB, sN, sT, sT2, sRd, sWr, sTo, sWo, sTH, sCH, sRes, sDW = range(28, 42)
    v = Alloc(1)
    L, G, TOK, T0, T1, vLin, bT, bW, aT, aW, vRow = [v() for _ in range(11)]
    F = [[dict(X=[v(4, 4) for _ in range(2)], W=[v(4, 4) for _ in range(4)]) for s in range(2)] for _ in range(2)]
    acc = [[v(4, 4) for i in range(2)] for t in range(4)]
    RES = [[v(4, 4) for b in range(2)] for i in range(2)]
    k.vgpr = k.acc = (v.n + 7) // 8 * 8
    head(k)
    k(f"s_load_dwordx2 s[{SWS}:{SWS+1}], s[0:1], {A_WS}",
      f"s_load_dwordx2 s[{SO}:{SO+1}], s[0:1], {A_OUT if is_down else A_X}")
    k(f"v_lshrrev_b32 v{T1}, 6, v0", f"v_and_b32 v{L}, 63, v0", f"v_readfirstlane_b32 s{sW}, v{T1}", f"v_lshlrev_b32 v{vLin}, 4, v{L}")
    ids_8x4(k, sNB, sTB, sT)
    k(f"s_cmp_lt_u32 s{sW}, 4", f"s_cbranch_scc1 L_{name}_comp")
    k(f"s_and_b32 s{sW}, s{sW}, 3",
      f"s_lshl_b32 s{sTo}, s{sW}, 11", f"s_lshl_b32 s{sWo}, s{sW}, 12", f"s_mov_b32 s{sWr}, s{sTo}",
      f"s_add_u32 s{sDW}, s{sTo}, 8192")
    rot = K == 1024 and OPT.get("rot2", 0)
    if rot:
        k(f"s_lshl_b32 s{sT}, s{sNB}, 1", f"s_add_u32 s{sT}, s{sT}, s{sTB}", f"s_and_b32 s{sT}, s{sT}, 7",
          f"s_lshl_b32 s{sT2}, s{sT}, 14", f"s_add_u32 s{sTo}, s{sTo}, s{sT2}", f"s_lshl_b32 s{sT2}, s{sT}, 15", f"s_add_u32 s{sWo}, s{sWo}, s{sT2}")
    k(f"s_mul_i32 s{sT}, s{sTB}, {K*128}", f"s_add_u32 s{sT}, s{sT}, {tok_region}",
      f"s_mul_i32 s{sT2}, s{sNB}, {K*256}", f"s_add_u32 s{sT2}, s{sT2}, {w_region}")
    k("s_waitcnt lgkmcnt(0)", ws_shift(SWS))
    k(srd_from(ST_, SWS, f"s{sT}", K * 128), srd_from(SW_, SWS, f"s{sT2}", K * 256))

    def dma_stage():
        o = [f"s_mov_b32 m0, s{sWr}", "s_nop 0"]
        for i in range(2):
            o.append(f"buffer_load_dwordx4 v{vLin}, s[{ST_}:{ST_+3}], s{sTo} offen offset:{1024*i} lds")
        o += [f"s_add_u32 m0, s{sWr}, s{sDW}", f"s_add_u32 s{sTo}, s{sTo}, 8192"]
        for i in range(4):
            o.append(f"buffer_load_dwordx4 v{vLin}, s[{SW_}:{SW_+3}], s{sWo} offen offset:{1024*i} lds")
        o += [f"s_add_u32 s{sWo}, s{sWo}, 16384", f"s_add_u32 s{sWr}, s{sWr}, {STG}", f"s_cmp_ge_u32 s{sWr}, {STG*NS}",
              f"s_cselect_b32 s{sT}, {STG*NS}, 0", f"s_sub_u32 s{sWr}, s{sWr}, s{sT}"]
        if rot:
            o += [f"s_and_b32 s{sTo}, s{sTo}, {K*128-1}", f"s_and_b32 s{sWo}, s{sWo}, {K*256-1}"]
        return o
    k(f"s_mov_b32 s{sN}, {N}")
    k.label(f"L_{name}_ld")
    k(dma_stage())
    k(f"s_sub_u32 s{sN}, s{sN}, 1", f"s_cmp_lg_u32 s{sN}, 0")
    k(f"s_waitcnt vmcnt({6*D})", "s_barrier", f"s_cbranch_scc1 L_{name}_ld")
    for d in range(D - 1, -1, -1):
        k(f"s_waitcnt vmcnt({6*d})", "s_barrier")
    if is_down:
        k("s_endpgm")
    else:
        hop(k, sW)
    k.label(f"L_{name}_comp")
    k(f"s_and_b32 s{sTH}, s{sW}, 1", f"s_lshr_b32 s{sCH}, s{sW}, 1")
    k(f"v_lshrrev_b32 v{G}, 4, v{L}", f"v_and_b32 v{TOK}, 15, v{L}",
      f"v_lshlrev_b32 v{T0}, 11, v{TOK}", f"v_lshl_add_u32 v{T0}, v{G}, 4, v{T0}",
      f"s_lshl_b32 s{sN}, s{sTB}, 1", f"s_add_u32 s{sN}, s{sN}, s{sTH}", f"s_lshl_b32 s{sN}, s{sN}, 16",
      f"s_lshl_b32 s{sRes}, s{sNB}, 1", f"s_add_u32 s{sRes}, s{sRes}, s{sCH}", f"s_lshl_b32 s{sRd}, s{sRes}, 7",
      f"s_add_u32 s{sN}, s{sN}, s{sRd}", f"v_add_u32 v{vRow}, s{sN}, v{T0}")
    k(f"s_lshl_b32 s{sRes}, s{sRes}, 13", f"s_lshl_b32 s{sN}, s{sTB}, 17", f"s_add_u32 s{sRes}, s{sRes}, s{sN}",
      f"s_lshl_b32 s{sN}, s{sTH}, 11", f"s_add_u32 s{sRes}, s{sRes}, s{sN}", f"s_add_u32 s{sRes}, s{sRes}, {HF}")
    k(f"s_lshl_b32 s{sT}, s{sTH}, 11", f"v_add_u32 v{bT}, s{sT}, v{vLin}",
      f"s_lshl_b32 s{sT}, s{sCH}, 12", f"s_add_u32 s{sT}, s{sT}, 8192", f"v_add_u32 v{bW}, s{sT}, v{vLin}",
      f"v_mov_b32 v{aT}, v{bT}", f"v_mov_b32 v{aW}, v{bW}")
    k("s_waitcnt lgkmcnt(0)", ws_shift(SWS))
    k(srd_tail(SWS, WS_SZ), srd_tail(SO, 4 * MB))
    for _ in range(NS - 2):
        k("s_barrier")
    k(f"s_add_u32 s{sT2}, s{sRes}, 4096", f"s_mov_b32 s{sN}, 32768")
    for i in range(2):
        for b in range(2):
            if is_down:
                k(f"buffer_load_dwordx4 {vr(RES[i][b],4)}, v{vLin}, s[{SWS}:{SWS+3}], s{[sRes,sT2][b]} offen offset:{1024*i}")
            else:
                k(f"buffer_load_dwordx4 {vr(RES[i][b],4)}, v{vRow}, s[{SO}:{SO+3}], {['0', f's{sN}'][i]} offen offset:{64*b}{' nt' if OPT.get('jnt', 0) else ''}")
    for t in range(4):
        for i in range(2):
            for r in range(4):
                k(f"v_mov_b32 v{acc[t][i]+r}, 0")

    def reads(f):
        o = []
        for s in range(2):
            o += [f"ds_read_b128 {vr(F[f][s]['X'][i],4)}, v{aT} offset:{s*4096+i*1024}" for i in range(2)]
            o += [f"ds_read_b128 {vr(F[f][s]['W'][t],4)}, v{aW} offset:{s*8192+t*1024}" for t in range(4)]
        return o

    def mfmas(f):
        return [m16(vr(acc[t][i ^ (t & 1)], 4), vr(F[f][s]["W"][t], 4), vr(F[f][s]["X"][i ^ (t & 1)], 4))
                for t in range(4) for i in range(2) for s in range(2)]
    adv = [[f"s_add_u32 s{sRd}, s{sRd}, {STG}", f"s_cmp_eq_u32 s{sRd}, {STG*NS}"], [f"s_cselect_b32 s{sRd}, 0, s{sRd}"],
           [f"v_add_u32 v{aT}, s{sRd}, v{bT}", f"v_add_u32 v{aW}, s{sRd}, v{bW}"]]
    k(f"s_mov_b32 s{sRd}, 0", f"s_mov_b32 s{sN}, {N//2-1}")
    k("s_barrier")
    mid_stamp(k, 0)
    k(reads(0), adv, "s_waitcnt lgkmcnt(0)")
    k(".p2align 6")
    k.label(f"L_{name}_loop")
    for f in range(2):
        k("s_barrier")
        m = weave(mfmas(f), reads(1 - f), 0, 9)
        tl = adv + ([[f"s_sub_u32 s{sN}, s{sN}, 1", f"s_cmp_lg_u32 s{sN}, 0"]] if f == 1 else [])
        k(weave(m, tl, len(m) - 6, len(m) - 1))
        k("s_waitcnt lgkmcnt(0)")
    k(f"s_cbranch_scc1 L_{name}_loop")
    k("s_barrier")
    k(weave(mfmas(0), reads(1), 0, 9), "s_waitcnt lgkmcnt(0)", mfmas(1))
    mid_stamp(k, 1)
    k("s_waitcnt vmcnt(0)", f"s_mov_b32 s{sN}, 32768", "s_nop 5")
    SUM = F[0][0]["X"]
    U = F[0][0]["W"][0]
    for i in range(2):
        if not is_down:
            k(f"v_mov_b32 v{SUM[i]}, 0", f"v_mov_b32 v{SUM[i]+1}, 0")
        for b in range(2):
            o = F[0][1]["W"][2 * i + b]
            for jt in range(2):
                a = acc[2 * b + jt][i]
                for h in range(2):
                    r = RES[i][b] + 2 * jt + h
                    k(f"v_lshlrev_b32 v{U}, 16, v{r}", f"v_and_b32 v{U+1}, 0xffff0000, v{r}",
                      f"v_add_f32 v{a+2*h}, v{a+2*h}, v{U}", f"v_add_f32 v{a+2*h+1}, v{a+2*h+1}, v{U+1}",
                      f"v_cvt_pk_bf16_f32 v{o+2*jt+h}, v{a+2*h}, v{a+2*h+1}")
            if is_down:
                k(f"buffer_store_dwordx4 {vr(o,4)}, v{vRow}, s[{SO}:{SO+3}], {['0', f's{sN}'][i]} offen offset:{64*b} sc1")
            else:
                k(f"buffer_store_dwordx4 {vr(o,4)}, v{vLin}, s[{SWS}:{SWS+3}], s{[sRes,sT2][b]} offen offset:{1024*i} sc1")
    if not is_down:
        for t in range(4):
            for r in range(4):
                for i in range(2):
                    a = acc[t][i] + r
                    k(f"v_add_f32 v{SUM[i]}, v{SUM[i]}, v{a}", f"v_fmac_f32 v{SUM[i]+1}, v{a}, v{a}")
        k("s_nop 1", f"v_permlane32_swap_b32 v{SUM[0]}, v{SUM[0]+1}", f"v_permlane32_swap_b32 v{SUM[1]}, v{SUM[1]+1}", "s_nop 0",
          f"v_add_f32 v{SUM[0]}, v{SUM[0]}, v{SUM[0]+1}", f"v_add_f32 v{SUM[1]}, v{SUM[1]}, v{SUM[1]+1}",
          f"v_lshlrev_b32 v{T0}, 2, v{L}", "s_nop 0",
          f"v_permlane16_swap_b32 v{SUM[0]}, v{SUM[1]}",
          f"s_lshl_b32 s{sT}, s{sTB}, 1", f"s_add_u32 s{sT}, s{sT}, s{sTH}", f"s_lshl_b32 s{sT}, s{sT}, 12",
          f"v_add_f32 v{SUM[0]}, v{SUM[0]}, v{SUM[1]}",
          f"s_lshl_b32 s{sT2}, s{sNB}, 1", f"s_add_u32 s{sT2}, s{sT2}, s{sCH}", f"s_lshl_b32 s{sT2}, s{sT2}, 8",
          f"s_add_u32 s{sT}, s{sT}, s{sT2}", f"s_add_u32 s{sT}, s{sT}, {STP}",
          f"buffer_store_dword v{SUM[0]}, v{T0}, s[{SWS}:{SWS+3}], s{sT} offen sc1")
    tail(k, kidx, sW)
    return k


class Op:
    def __init__(self, text, kind="v", needs=(), bar=False):
        self.text, self.kind, self.needs, self.bar = text, kind, list(needs), bar
        self.seq = None

    @property
    def cost(self):
        return 8 if self.kind == "t" else 4


def emit_stream(k, ops, nl=0, nv=0):
    cnt = {"lds": nl, "vm": nv}
    done = {"lds": 0, "vm": 0}
    for o in ops:
        if o.kind in cnt:
            cnt[o.kind] += 1
            o.seq = cnt[o.kind]
            k(o.text)
        elif o.kind == "wait":
            parts = []
            for kind, nm, mx in (("vm", "vmcnt", 63), ("lds", "lgkmcnt", 15)):
                need = [x.seq for x in o.needs if x.kind == kind]
                assert None not in need, "wait on an op that was not issued yet"
                tgt = cnt[kind] if (o.bar and kind == "lds") else max(need, default=0)
                if tgt > done[kind]:
                    n = cnt[kind] - tgt
                    assert n <= mx or kind == "vm"
                    parts.append(f"{nm}({min(n, mx)})")
                    done[kind] = tgt
            if parts:
                k("s_waitcnt " + " ".join(parts))
            if o.bar:
                k("s_barrier")
        else:
            k(o.text)
    return cnt


def k3_gateup():
    STG, NS = 28672, 5
    TBL = NS * STG
    k = Kern("gateup_kernel", 256, 256, TBL + 1024 + 2048)
    SWS, ST_, SW_ = 4, 8, 12
    sW, sMB, sFB, sN, sT, sT2, sTo, sWo, sWr, sTB, sA0, sA1, sSt, sCp = range(28, 42)
    v = Alloc(1)
    vLin, vR1, vR2, vCs, vSt, vTid, vOut = [v() for _ in range(7)]
    PA = [v(2, 2) for _ in range(4)]
    SD = [v(2, 2) for _ in range(2)]
    TA, TB_, TC = v(4, 4), v(4, 4), v(4, 4)
    assert v.n <= 32, v.n
    acc = [[32 + (a * 4 + b) * 4 for b in range(4)] for a in range(14)]
    TK = [[[32 * n + 16 * s + 4 * b for b in range(4)] for s in range(2)] for n in range(NS)]
    WF = [[160 + 8 * n + 4 * s for s in range(2)] for n in range(4)]
    SP, CP = 192, 224
    k.vgpr, k.acc = 256 + 232, 256
    head(k)
    k(f"s_load_dwordx2 s[{SWS}:{SWS+1}], s[0:1], {A_WS}")
    k(f"v_lshrrev_b32 v{TA}, 6, v0", f"v_and_b32 v{TA+1}, 63, v0", f"v_readfirstlane_b32 s{sW}, v{TA}", f"v_lshlrev_b32 v{vLin}, 4, v{TA+1}")
    k(f"s_lshr_b32 s{sT}, s2, 3", f"s_lshr_b32 s{sMB}, s{sT}, 2", f"s_and_b32 s{sT}, s{sT}, 3",
      f"s_and_b32 s{sFB}, s2, 7", f"s_lshl_b32 s{sFB}, s{sFB}, 2", f"s_add_u32 s{sFB}, s{sFB}, s{sT}",
      f"s_lshl_b32 s{sTB}, s{sMB}, 2", f"s_add_u32 s{sTB}, s{sTB}, s{sW}",
      f"s_lshl_b32 s{sT}, s{sTB}, 17", f"s_add_u32 s{sT}, s{sT}, {HF}",
      f"s_mul_i32 s{sT2}, s{sFB}, {32*14*1024}", f"s_add_u32 s{sT2}, s{sT2}, {WGU}",
      f"s_mul_i32 s{sWo}, s{sW}, 7168", f"s_mov_b32 s{sWr}, s{sWo}", f"s_mov_b32 s{sTo}, 0")
    k("s_waitcnt lgkmcnt(0)", ws_shift(SWS))
    k(srd_from(ST_, SWS, f"s{sT}", 131072), srd_from(SW_, SWS, f"s{sT2}", 32 * 14 * 1024))

    def vm_stage(n):
        o = []
        for i in range(7):
            pre, post = [], []
            if i % 4 == 0:
                pre = [f"s_add_u32 m0, s{sWr}, {(n%NS)*STG+1024*i}"]
            if i == 3:
                post = [f"s_add_u32 s{sWo}, s{sWo}, 4096"]
            if i == 6:
                post = [f"s_add_u32 s{sWo}, s{sWo}, {STG-4096}"]
            o.append((pre, Op(f"buffer_load_dwordx4 v{vLin}, s[{SW_}:{SW_+3}], s{sWo} offen offset:{1024*(i%4)} lds", "vm"), post, n))
        for s in range(2):
            for b in range(4):
                post = [f"s_add_u32 s{sTo}, s{sTo}, 4096"] if b == 3 else []
                o.append(([], Op(f"buffer_load_dwordx4 {ar(TK[n%NS][s][b],4)}, v{vLin}, s[{ST_}:{ST_+3}], s{sTo} offen offset:{1024*b}", "vm"), post, n))
        return o
    VM = [vm_stage(n) for n in range(16)]
    stat_ld = [([], Op(f"buffer_load_dwordx4 {ar(SP+4*i,4)}, v{vLin}, s[{SWS}:{SWS+3}], s{sSt} offen offset:{1024*(i%4)}", "vm"),
                [f"s_add_u32 s{sSt}, s{sSt}, 4096"] if i == 3 else [], None) for i in range(8)]
    cs_ld = [([], Op(f"buffer_load_dword {ar(CP+p)}, v{vTid}, s[{SWS}:{SWS+3}], s{sCp} offen", "vm"),
              [f"s_add_u32 s{sCp}, s{sCp}, {32*896}"], None) for p in range(8)]
    pro = []
    for n in range(2):
        for pre, ld, post, _ in VM[n]:
            pro += [Op(x, "s") for x in pre] + ([Op("s_nop 0", "s")] if pre else []) + [ld] + [Op(x, "s") for x in post]
        if n == 0:
            pro.append(Op("s_barrier", "s"))
    misc = srd_tail(SWS, WS_SZ) + [
        f"s_lshl_b32 s{sSt}, s{sTB}, 13", f"s_add_u32 s{sSt}, s{sSt}, {STP}",
        f"s_mul_i32 s{sCp}, s{sFB}, 896", f"s_add_u32 s{sCp}, s{sCp}, {CSP}",
        f"v_add_u32 v{vR1}, {2*STG}, v{vLin}", f"v_add_u32 v{vR2}, {4*STG}, v{vLin}",
        f"v_lshlrev_b32 v{vTid}, 2, v0",
        f"v_lshrrev_b32 v{TA}, 4, v{TA+1}", f"v_lshlrev_b32 v{vCs}, 4, v{TA}", f"v_add_u32 v{vCs}, {TBL}, v{vCs}",
        f"v_and_b32 v{TA+2}, 1, v{TA}", f"v_lshlrev_b32 v{TA+2}, 10, v{TA+2}", f"v_lshrrev_b32 v{TA}, 1, v{TA}",
        f"v_lshl_add_u32 v{TA+2}, v{TA}, 8, v{TA+2}", f"v_and_b32 v{TA+1}, 15, v{TA+1}", f"v_lshl_add_u32 v{vOut}, v{TA+1}, 4, v{TA+2}",
        f"s_lshl_b32 s{sT}, s{sW}, 9", f"s_add_u32 s{sT}, s{sT}, {TBL+1024}", f"v_lshl_add_u32 v{vSt}, v{TA+1}, 2, s{sT}",
        f"s_mul_i32 s{sT}, s{sTB}, {112*4096}", f"s_add_u32 s{sT}, s{sT}, {AF}", f"s_mul_i32 s{sT2}, s{sFB}, 7",
        f"s_lshr_b32 s{sA0}, s{sT2}, 1", f"s_lshl_b32 s{sA0}, s{sA0}, 12", f"s_add_u32 s{sA0}, s{sA0}, s{sT}",
        f"s_and_b32 s{sT2}, s{sT2}, 1", f"s_lshl_b32 s{sT}, s{sT2}, 9", f"s_add_u32 s{sA0}, s{sA0}, s{sT}",
        f"s_cmp_eq_u32 s{sT2}, 0", f"s_cselect_b32 s{sT}, 512, {0}", f"s_cselect_b32 s{sT2}, 0, {4096-512}",
        f"s_add_u32 s{sA1}, s{sA0}, s{sT}", f"s_add_u32 s{sA1}, s{sA1}, s{sT2}"]
    pro += [Op(x, "s") for x in misc]
    if OPT.get("k3pf", 1):
        pro += [Op(x, "s") for x in ["s_getpc_b64 s[16:17]", f"s_lshr_b32 s{sT}, s2, 3", f"s_lshl_b32 s{sT}, s{sT}, 10",
                                     f"v_add_u32 v{TA}, s{sT}, v{vTid}", f"v_min_u32 v{TA}, L_code_end-L_k3_pf-4, v{TA}", "L_k3_pf:"]]
        pro.append(Op(f"global_load_dword v{TC}, v{TA}, s[16:17]", "vm"))

    order = [a for p in range(7) for a in (p, p + 7)]
    S0 = 12
    seq = [(n, a) for n in range(S0) for a in order]
    seq += [(n, a) for p in range(7) for n in range(S0, 16) for a in (p, p + 7)]
    NT_ = len(seq)
    mf, fixed = [], [[] for _ in range(8 * NT_)]
    RD = []
    for gt, (n, a) in enumerate(seq):
        sl = n % NS
        RD.append([Op(f"ds_read_b128 {ar(WF[gt%4][s],4)}, v{[vLin,vR1,vR2][sl>>1]} offset:{(sl&1)*STG+s*14336+a*1024}", "lds") for s in range(2)])
        bs = range(4) if gt % 2 == 0 else range(3, -1, -1)
        for b in bs:
            for s in range(2):
                mf.append(Op(m16(vr(acc[a][b], 4), ar(WF[gt % 4][s], 4), ar(TK[sl][s][b], 4), "0" if (n == 0 and s == 0) else None), "m"))
    first = {}
    for gt, (n, a) in enumerate(seq):
        first.setdefault(n, gt)
    barpos = {}
    for gt in range(NT_):
        if gt + 2 < NT_:
            fixed[8 * gt].append(RD[gt + 2][0]); fixed[8 * gt + 1].append(RD[gt + 2][1])
        newst = [n for n in range(1, 16) if first[n] == gt + 3]
        if newst:
            fixed[8 * gt + 7].append(Op("", "wait", [x[1] for x in VM[newst[0]]], bar=True))
            barpos[newst[0]] = 8 * gt + 7
        elif gt + 1 < NT_:
            fixed[8 * gt + 7].append(Op("", "wait", RD[gt + 1]))
    flat = VM[2] + VM[3] + VM[4] + stat_ld + cs_ld + [x for n in range(5, 16) for x in VM[n]]
    slots = [8 * gt + o for gt in range(S0 * 14) for o in (3, 6)]
    nsl = len(slots) - 2 * OPT.get("k3lead", 8)
    vpos = {}
    si = -1
    for i, (pre, ld, post, n) in enumerate(flat):
        si = max(si + 1, (i * nsl) // len(flat))
        if n is not None and n >= NS:
            lim = barpos[n - NS + 1] + 2 if "lds" in ld.text else 8 * 14 * (n - NS + 1)
            while slots[si] < lim:
                si += 1
        p = slots[si]
        fixed[p - 1] += [Op(x, "s") for x in pre]
        fixed[p] += [ld] + [Op(x, "s") for x in post]
        vpos[id(ld)] = p
    used = [sum(o.cost for o in f if not (o.kind == "wait" and False)) for f in fixed]
    flo = [[] for _ in fixed]

    def flow(ops, start, deadline=None):
        p = start
        for o in ops:
            while used[p] + o.cost > 8:
                p += 1
            flo[p].append(o); used[p] += o.cost
        assert deadline is None or p < deadline, (p, deadline)
        return p + 1

    def spread(ops, start, stop):
        tot = sum(o.cost for o in ops) + sum(used[start:stop])
        cap = max(8.0, tot / (stop - start))
        p, acc_used, acc_cap = start, used[start], cap
        for o in ops:
            while acc_used + o.cost > acc_cap + 2 and p < stop - 1:
                p += 1
                if cap == 8.0:
                    acc_used, acc_cap = used[p], cap
                else:
                    acc_used += used[p]; acc_cap += cap
            flo[p].append(o); acc_used += o.cost
        return p
    V = lambda t: Op(t, "v")
    st = [Op("", "wait", [x[1] for x in stat_ld + cs_ld])]
    st += [V(f"v_accvgpr_read_b32 v{TA}, a{CP}")]
    for p in range(1, 8):
        st += [V(f"v_accvgpr_read_b32 v{TB_}, a{CP+p}"), V(f"v_add_f32 v{TA}, v{TA}, v{TB_}")]
    st += [V(f"v_add_u32 v{vTid}, {TBL}, v{vTid}"), Op(f"ds_write_b32 v{vTid}, v{TA}", "lds")]
    st += [V(f"v_and_b32 v{TB_}, 0xf0, v{vLin}"), V(f"v_and_b32 v{TB_+1}, 0xffffffc0, v{vSt}"), V(f"v_add_u32 v{vTid}, v{TB_}, v{TB_+1}")]
    wr = []
    for hf in range(2):
        A = [TA, TC][hf]
        st += [V(f"v_accvgpr_read_b32 v{A+r}, a{SP+16*hf+r}") for r in range(4)]
        for i in range(1, 4):
            st += [V(f"v_accvgpr_read_b32 v{TB_+r}, a{SP+16*hf+4*i+r}") for r in range(4)]
            st += [V(f"v_add_f32 v{A+r}, v{A+r}, v{TB_+r}") for r in range(4)]
        for op in ("v_permlane16_swap_b32", "v_permlane32_swap_b32"):
            st += [V(f"v_mov_b32 v{TB_+r}, v{A+r}") for r in range(4)]
            st += [V(f"{op} v{A+r}, v{TB_+r}") for r in range(4)]
            st += [V(f"v_add_f32 v{A+r}, v{A+r}, v{TB_+r}") for r in range(4)]
        wr.append(Op(f"ds_write_b128 v{vTid}, {vr(A,4)} offset:{256*hf}", "lds"))
        st.append(wr[-1])
    rd = [Op(f"ds_read2_b32 {vr(PA[b],2)}, v{vSt} offset0:{64*(b>>1)+16*(b&1)+32} offset1:{64*(b>>1)+16*(b&1)}", "lds") for b in range(4)]
    st += rd + [V("v_nop")] * 6 + [Op("", "wait", rd)]
    for b in range(4):
        sd = SD[b >> 1] + (b & 1)
        st += [V(f"v_mul_f32 v{PA[b]+1}, {f32(-1/1024)}, v{PA[b]+1}"),
               V(f"v_mul_f32 v{PA[b]}, {f32(1/1024)}, v{PA[b]}"),
               V(f"v_fma_f32 v{PA[b]}, -v{PA[b]+1}, v{PA[b]+1}, v{PA[b]}"),
               V(f"v_max_f32 v{PA[b]}, 0, v{PA[b]}"),
               V(f"v_add_f32 v{sd}, {f32(EPS)}, v{PA[b]}"),
               Op(f"v_rsq_f32 v{PA[b]}, v{sd}", "t"), V("v_nop"),
               V(f"v_mul_f32 v{sd}, v{sd}, v{PA[b]}"),
               V(f"v_mul_f32 v{PA[b]}, {f32(-LOG2E)}, v{PA[b]}")]
    p = flow(st, vpos[id(cs_ld[-1][1])] + 90)
    n0 = min(n for n in range(1, S0) if barpos[n] >= p)
    p = barpos[n0] + 1
    todo = list(order)
    step = (8 * 14 * S0 - 40 - p) // 14
    for i in range(14):
        cur = lambda a: all(seq[q // 8][1] != a for q in range(p - 2, p + 48))
        cand = [a for a in todo if cur(a)]
        while not cand:
            p += 4
            cand = [a for a in todo if cur(a)]
        a = cand[0]
        todo.remove(a)
        C = [TA, TC][i & 1]
        r = Op(f"ds_read_b128 {vr(C,4)}, v{vCs} offset:{64*a}", "lds")
        ops = [V(f"v_fmac_f32 v{acc[a][b]+e}, v{PA[b]+1}, v{C+e}") for b in range(4) for e in range(4)]
        q = flow([r], p)
        q = flow([Op("", "wait", [r])] + ops, q + 6, p + 46)
        p = max(q, p + min(step, 24))
    assert p < 8 * 14 * S0 + 60, p
    def epi(pr, packed):
        o = []
        for bb in (0, 2):
            d = acc[pr][bb]
            for b in (bb, bb + 1):
                g_, u = acc[pr][b], acc[pr + 7][b]
                sd = SD[b >> 1] + (b & 1)
                if packed:
                    sel = f"op_sel:[0,{b&1},{b&1}] op_sel_hi:[1,{b&1},{b&1}]"
                    o += [V(f"v_pk_mul_f32 {vr(g_+h,2)}, {vr(g_+h,2)}, {vr(PA[b],2)} op_sel:[0,0] op_sel_hi:[1,0]") for h in (0, 2)]
                    o += [Op(f"v_exp_f32 v{g_+r}, v{g_+r}", "t") for r in range(4)]
                    o += [V(f"v_pk_fma_f32 {vr(g_+h,2)}, {vr(g_+h,2)}, {vr(SD[b>>1],2)}, {vr(SD[b>>1],2)} {sel}") for h in (0, 2)]
                    o += [Op(f"v_rcp_f32 v{g_+r}, v{g_+r}", "t") for r in range(4)]
                    o += [V(f"v_pk_mul_f32 {vr(u+h,2)}, {vr(u+h,2)}, {vr(g_+h,2)}") for h in (0, 2)]
                else:
                    o += [V(f"v_mul_f32 v{g_+r}, v{PA[b]}, v{g_+r}") for r in range(4)]
                    o += [Op(f"v_exp_f32 v{g_+r}, v{g_+r}", "t") for r in range(4)]
                    o += [V(f"v_fma_f32 v{g_+r}, v{g_+r}, v{sd}, v{sd}") for r in range(4)]
                    o += [Op(f"v_rcp_f32 v{g_+r}, v{g_+r}", "t") for r in range(4)]
                    o += [V(f"v_mul_f32 v{u+r}, v{u+r}, v{g_+r}") for r in range(4)]
                o += [V(f"v_cvt_pk_bf16_f32 v{d+2*(b&1)}, v{u}, v{u+1}"), V(f"v_cvt_pk_bf16_f32 v{d+2*(b&1)+1}, v{u+2}, v{u+3}")]
            o += [V("v_nop"), V(f"v_permlane16_swap_b32 v{d}, v{d+2}"), V(f"v_permlane16_swap_b32 v{d+1}, v{d+3}")]
            sa = [sA0, sA1][pr & 1]
            o.append(Op(f"buffer_store_dwordx4 {vr(d,4)}, v{vOut}, s[{SWS}:{SWS+3}], s{sa} offen offset:{1024*bb} sc1", "vm"))
        o.append(Op(f"s_add_u32 s{sa}, s{sa}, 4096", "s"))
        return o
    run = 8 * 2 * (16 - S0)
    t0 = 8 * 14 * S0
    for pr in range(6):
        spread(epi(pr, False), t0 + run * (pr + 1) + (0 if pr else 0), t0 + run * (pr + 2))
    if OPT.get("isl", 1):
        pro.append(Op(island(), "s"))
    ops = pro + [Op("", "wait", [x[1] for x in VM[0]], bar=True)]
    if OPT["stamp"]:
        ops.append(Op("s_memrealtime s[96:97]\ns_memtime s[84:85]\ns_waitcnt lgkmcnt(0)", "s"))
    ops += RD[0] + RD[1] + [Op("", "wait", RD[0])]
    ops_seg0 = len(pro)
    prof = [112 * n for n in range(S0)] + [t0 + run * pr for pr in range(7)] if OPT.get("prof") else []
    nbytes, last = 4, ops_seg0
    for i, m in enumerate(mf):
        if OPT.get("isl", 1):
            nbytes += sum(isize(o.text) for o in ops[last:])
            last = len(ops)
            if nbytes > 3960 and not fixed[i - 1]:
                ops.append(Op(island(), "s"))
                nbytes, last = 4, len(ops)
        if i in prof:
            j = prof.index(i)
            ops.append(Op(f"s_memtime s[{44+2*j}:{45+2*j}]", "s"))
        nv = [o for o in flo[i]]
        late = [o for o in fixed[i] if o.kind == "wait"]
        ops += [m] + [o for o in fixed[i] if o.kind != "wait"] + late + nv
    if OPT["stamp"]:
        ops.append(Op("s_memrealtime s[98:99]\ns_memtime s[86:87]", "s"))
    ops += epi(6, True)
    emit_stream(k, ops)
    if prof:
        k("s_waitcnt lgkmcnt(0)", "s_lshl_b32 s3, s89, 2", f"s_add_u32 s3, s3, s{sW}", "s_lshl_b32 s3, s3, 7", f"s_add_u32 s3, s3, {STAMP+2*MB}")
        for j in range(len(prof) + 1):
            k(f"v_mov_b32 v1, s{44+2*j if j < len(prof) else 86}", f"v_mov_b32 v0, s3", f"global_store_dword v0, v1, s[90:91] offset:{4*j}")
    tail(k, 3, sW)
    return k


HEADER = open("sequential_preLN__grouped_kv_mqa__glu_gated_glu__prompt.s.ref").read().split("; Override launch")[0]


def k_diag():
    k = Kern("diag_kernel", 1, 64, 0)
    k.vgpr = k.acc = 8
    a, b, m = OPT["da"], OPT["db"], OPT["dm"]
    off = lambda x: STAMP + (x // 10) * 16384 + (x % 10) * 4 + OPT.get("dwg", 0) * 64
    k("s_cmp_ge_u32 s2, 1", "s_cbranch_scc1 L_diag_end", "s_load_dwordx2 s[4:5], s[0:1], 88", "s_waitcnt lgkmcnt(0)",
      f"v_mov_b32 v1, {off(a)}", f"v_mov_b32 v2, {off(b)}", "global_load_dword v3, v1, s[4:5]", "global_load_dword v4, v2, s[4:5]",
      "s_memrealtime s[8:9]", "s_waitcnt vmcnt(0) lgkmcnt(0)", "v_sub_u32 v3, v4, v3", "s_nop 1", "v_readfirstlane_b32 s6, v3", "s_nop 3",
      "s_min_u32 s6, s6, 20000", f"s_mul_i32 s6, s6, {m}")
    k.label("L_diag_loop")
    k("s_memrealtime s[10:11]", "s_waitcnt lgkmcnt(0)", "s_sub_u32 s10, s10, s8", "s_cmp_lt_u32 s10, s6", "s_cbranch_scc1 L_diag_loop")
    k.label("L_diag_end")
    k("s_endpgm")
    return k


def build():
    ks = [k0_qkv(), k1_attn(), k_gemm("oproj_kernel", 2, 1024, OF, WOF, False), k3_gateup(),
          k_gemm("down_kernel", 4, 3584, AF, WDF, True)]
    if "dm" in OPT:
        ks.append(k_diag())
    s = HEADER + "".join(ks[int(c)].launch_line() + "\n" for c in str(OPT.get("seq", "".join(str(i) for i in range(len(ks))))).lstrip("9"))
    s += '.amdgcn_target "amdgcn-amd-amdhsa--gfx950"\n.text\n'
    for i, k in enumerate(ks):
        s += k.text()
        if i == 0:
            s += "L_code_rest:\n"
    s += "L_code_end:\n"
    for n in ISL:
        s = s.replace(f"@ISL{n}@", f"s_branch L_isl{n+4}" if n + 4 < len(ISL) else "s_endpgm")
    s += '.section .rodata,"a"\n' + "".join(k.desc() for k in ks)
    return s


if __name__ == "__main__":
    out = sys.argv[1]
    for a in sys.argv[2:]:
        key, _, val = a.partition("=")
        OPT[key] = int(val) if val else True
    open(out, "w").write(build())
```

```python
import sys, math
sys.path.insert(0, __file__.rsplit("/", 1)[0])
from asmlib import *

MB = 1 << 20
QF, KVF, OF, HF, AF = 0, 4 * MB, 5 * MB, 9 * MB, 13 * MB
WOF, WGU, WDF, CSP, STP, STAMP = 28 * MB, 30 * MB, 44 * MB, 52 * MB, 53 * MB, 60 * MB
XB = 0
FLG = 54 * MB
WS_SZ = 64 * MB
OOB = 0x40000000
LOG2E = 1.4426950408889634
QSCALE = LOG2E / math.sqrt(32.0)
EPS = 1e-5
OPT = dict(stamp=False, force_slow=False)
A_X, A_WQ, A_WK, A_WV, A_WO, A_WG, A_WU, A_WD, A_OUT, A_WS = 0, 8, 16, 24, 32, 48, 56, 64, 72, 88


def ws_shift(s):
    if OPT.get("wsoff"):
        return [f"s_add_u32 s{s}, s{s}, {OPT['wsoff']*MB}", f"s_addc_u32 s{s+1}, s{s+1}, 0"]
    return []


ISL = []


def island(back=None, jump=True):
    if not OPT.get("isl", 1):
        return None
    n = len(ISL)
    ISL.append((n, back))
    return (f"s_branch L_isl{n}_over\n" if jump else "") + f".p2align 12\nL_isl{n}:\n@ISL{n}@\nL_isl{n}_over:"


def isize(text):
    import re
    t = 0
    for ln in text.split("\n"):
        ln = ln.strip()
        if not ln:
            t += 8
        elif ln.endswith(":") or ln.startswith("."):
            continue
        elif re.match(r"(v_mfma|v_smfmac|ds_|buffer_|global_|s_load|s_mem|v_fma_|v_cvt_pk|v_accvgpr|v_pk_|v_lshl_add|v_bfe|v_max3|v_maximum3|v_mul_lo)", ln):
            t += 8
        else:
            lit = [x for x in re.findall(r"(?<![\w\[:])(0x[0-9a-f]+|\d+)(?![\w\]:])", ln.split(None, 1)[1] if " " in ln else "") if int(x, 0) > 64]
            t += 8 if lit else 4
    return t


def hop(k, sw):
    if OPT.get("isl", 1) and not OPT.get("nohop"):
        for w in range(3):
            k(f"s_cmp_eq_u32 s{sw}, {w}", f"s_cbranch_scc1 @HOP{w}@")
        k("s_branch @HOP3@")
    else:
        k("s_endpgm")


def srd_tail(s, size):
    return [f"s_mov_b32 s{s+2}, {size}", f"s_mov_b32 s{s+3}, 0x00020000"]


def srd_from(s, base, off, size):
    return [f"s_add_u32 s{s}, s{base}, {off}", f"s_addc_u32 s{s+1}, s{base+1}, 0"] + srd_tail(s, size)


def head(k):
    k("s_cmp_ge_u32 s2, 256", f"s_cbranch_scc1 L_end_{k.name}")
    if OPT["stamp"]:
        k("s_memrealtime s[92:93]", "s_load_dwordx2 s[90:91], s[0:1], 88", "s_mov_b32 s89, s2")


def mid_stamp(k, i):
    if OPT["stamp"] and i < 2:
        k(f"s_memrealtime s[{96+2*i}:{97+2*i}]", f"s_memtime s[{84+2*i}:{85+2*i}]")
    elif OPT["stamp"]:
        k("s_memrealtime s[100:101]", "s_waitcnt lgkmcnt(0)", f"s_mov_b32 s{[93,88,3][i-2]}, s100")


def xstamp(k, n):
    sel = str(OPT.get("xs", 378)).zfill(3)
    if str(n) in sel:
        mid_stamp(k, 2 + sel.index(str(n)))


def tail(k, kidx, swave):
    if OPT["stamp"]:
        k("s_waitcnt vmcnt(0)", "s_memrealtime s[94:95]", "s_waitcnt lgkmcnt(0)",
          "v_mov_b32 v0, s92", "v_mov_b32 v1, s96", "v_mov_b32 v2, s98", "v_mov_b32 v3, s94",
          "s_lshl_b32 s89, s89, 2", f"s_add_u32 s89, s89, s{swave}", "s_lshl_b32 s89, s89, 4",
          f"s_add_u32 s89, s89, {STAMP + kidx*16384}", "v_mov_b32 v4, s89",
          "global_store_dwordx4 v4, v[0:3], s[90:91]",
          "s_sub_u32 s86, s86, s84", "v_mov_b32 v8, s86", "v_mov_b32 v9, s93", "v_mov_b32 v10, s88", "v_mov_b32 v11, s3",
          "v_add_u32 v4, 0x100000, v4", "global_store_dwordx4 v4, v[8:11], s[90:91]")
    k.label(f"L_end_{k.name}")
    k("s_endpgm")


def ids_8x4(k, s_a, s_b, tmp):
    k(f"s_lshr_b32 s{tmp}, s2, 3",
      f"s_and_b32 s{s_a}, s{tmp}, 3",
      f"s_lshr_b32 s{s_b}, s{tmp}, 2",
      f"s_and_b32 s{tmp}, s2, 1",
      f"s_lshl_b32 s{tmp}, s{tmp}, 2",
      f"s_add_u32 s{s_a}, s{s_a}, s{tmp}",
      f"s_and_b32 s{tmp}, s2, 6",
      f"s_lshl_b32 s{tmp}, s{tmp}, 2",
      f"s_add_u32 s{s_b}, s{s_b}, s{tmp}")


def code_prefetch(k, vtmp, vdst, stmp, start, nkb_per_wg=1):
    k(f"s_getpc_b64 s[{stmp}:{stmp+1}]")
    lab = f"L_pc_{k.name}_{start}"
    k.label(lab)
    k(f"s_add_u32 s{stmp}, s{stmp}, {start}-{lab}",
      f"s_addc_u32 s{stmp+1}, s{stmp+1}, 0",
      f"global_load_dwordx4 {vr(vdst,4)}, v{vtmp}, s[{stmp}:{stmp+1}]" if not OPT.get("nopf") else None)


def k01_attn():
    D = 2
    STG, NS = 24576, D + 2
    EA = STG * NS
    SLOT, KVB, JB, TBL = 32768, 65536, 16384, 0
    k = Kern("attn_kernel", 256, 512, 163840)
    SX, SWQ, SE, SWS, SKV, SJ = 4, 8, 12, 16, 72, 76
    (sW, sTB, sHG, sC, sT, sT2, sRd, sWr, sKo, sJo, sJa, sJb, sGW, sStr, sDstep, sOo) = range(32, 48)
    sN, sX, sWo, sTH, sCH, sBW, sOo1, sFl, sKV = 48, 49, 54, 55, 56, 57, 65, 80, 81
    sD = [50, 51, 52, 53]
    sCs = [58, 59, 60, 61]
    sDB, sBsz, sWrJ = 62, 63, 64
    SDBG = 30
    v = Alloc(1)
    L, G, R, CQ, TOK, T0, T1, T2, vLin, vRd, IDX = [v() for _ in range(11)]
    h = Alloc(v.n)
    Q = [v(8, 4) for _ in range(2)]
    O = [v(16, 4) for _ in range(2)]
    LS = [v(4, 4) for _ in range(2)]
    acc = [[v(4, 4) for i in range(2)] for t in range(4)]
    cs = [v(4, 4) for _ in range(2)]
    sx, sxx = v(4, 4), v(4, 4)
    z1 = v.n
    SUMA, ONES = v(4, 4), v(4, 4)
    bX = [[v() for i in range(2)] for s in range(2)]
    bW = [v() for _ in range(4)]
    aX = [[v() for i in range(2)] for s in range(2)]
    aW = [v() for _ in range(4)]
    F0 = v(96, 4)
    F = [[dict(X=[F0 + 48 * f + 24 * s + 4 * i for i in range(2)], W=[F0 + 48 * f + 24 * s + 8 + 4 * t for t in range(4)]) for s in range(2)] for f in range(2)]
    S = [F0 + 16 * i for i in range(4)]
    KB = [F0 + 64 + 8 * i for i in range(2)]
    VB = [F0 + 80 + 8 * i for i in range(2)]
    XK = [F0 + 4 * j for j in range(8)]
    EK = [[F0 + 32 + 8 * j + 4 * t for t in range(2)] for j in range(8)]
    accE, csE = [Q[0], Q[0] + 4], [Q[1], Q[1] + 4]
    sxE, sxxE = v(4, 4), v(4, 4)
    vXk, vE, aE0, aE1, aP, aS, aG0, aG1, vKo, PF, vHo, vRow = [v() for _ in range(12)]
    RES = [[cs[0], cs[1]], [sx, sxx]]
    XR = 131072
    sFg, sRx, sH0, sH1 = 58, 59, 60, 61
    k.vgpr = k.acc = 256
    vX, vX2 = h(), h()
    vW = [h() for _ in range(4)]
    vJ, vJB, vCs, vPo = h(), h(), h(), h()
    aJ = [h() for _ in range(4)]
    bJ = [h() for _ in range(2)]
    JF = [h(4, 4) for _ in range(4)]
    CS = [h(4, 4) for _ in range(4)]
    PF4 = h(4, 4)
    head(k)
    k(f"s_load_dwordx2 s[{SX}:{SX+1}], s[0:1], {A_X}",
      f"s_load_dwordx2 s[{SWQ}:{SWQ+1}], s[0:1], {A_WQ}",
      f"s_load_dwordx4 s[24:27], s[0:1], {A_WK}",
      f"s_load_dwordx2 s[{SWS}:{SWS+1}], s[0:1], {A_WS}",
      f"s_load_dwordx2 s[{SDBG}:{SDBG+1}], s[0:1], 80")
    k(f"s_lshl_b32 s{sT}, s2, 7", f"s_and_b32 s{sT}, s{sT}, 0x7c00", f"v_lshl_add_u32 v{T0}, v0, 1, s{sT}", f"v_and_b32 v{T0}, -4, v{T0}", "s_getpc_b64 s[20:21]", f"global_load_dword v{PF}, v{T0}, s[20:21]" if not OPT.get("nopf") else None)
    k(f"v_lshrrev_b32 v{T1}, 6, v0", f"v_and_b32 v{L}, 63, v0", f"v_readfirstlane_b32 s{sW}, v{T1}")
    ids_8x4(k, sHG, sTB, sT)
    k(f"v_lshrrev_b32 v{G}, 4, v{L}", f"v_and_b32 v{TOK}, 15, v{L}", f"v_lshlrev_b32 v{vLin}, 4, v{L}")
    k(f"s_and_b32 s{sTH}, s{sW}, 1", f"s_bfe_u32 s{sCH}, s{sW}, 0x10001",
      f"s_cmp_ge_u32 s{sW}, 4", "s_cbranch_scc1 L_f_help")
    k(f"s_and_b32 s{sT}, s{sHG}, 3", f"s_lshl_b32 s{sT2}, s{sTB}, 2", f"s_add_u32 s{sT}, s{sT}, s{sT2}", f"s_lshl_b32 s{sT}, s{sT}, 15",
      f"s_lshl_b32 s{sT2}, s{sW}, 9", f"s_add_u32 s{sT}, s{sT}, s{sT2}",
      f"v_lshlrev_b32 v{T0}, 11, v{TOK}", f"v_lshl_add_u32 v{T0}, v{G}, 4, v{T0}", f"v_add_u32 v{vXk}, s{sT}, v{T0}",
      f"v_and_b32 v{T0}, 32, v{L}", f"v_xor_b32 v{T0}, v{T0}, v{vLin}",
      f"s_lshl_b32 s{sWr}, s{sW}, 14", f"v_add_u32 v{vE}, s{sWr}, v{T0}",
      f"s_and_b32 s{sX}, s{sTB}, 3", f"s_lshl_b32 s{sWo}, s{sX}, 12", f"s_lshl_b32 s{sX}, s{sX}, 7",
      f"s_bitcmp1_b32 s{sHG}, 2", "s_waitcnt lgkmcnt(0)",
      f"s_cselect_b32 s{SE}, s26, s24", f"s_cselect_b32 s{SE+1}, s27, s25", srd_tail(SE, 0x10000), srd_tail(SX, 4 * MB))
    xstamp(k, 0)

    def kv_ld(gi):
        k(f"s_add_u32 m0, s{sWr}, {EA+4096*gi}")
        for j in range(2):
            k(f"buffer_load_dwordx4 {vr(XK[2*gi+j],4)}, v{vXk}, s[{SX}:{SX+3}], s{sX} offen offset:{64*j}")
        for i in range(4):
            k(f"buffer_load_dwordx4 v{vE}, s[{SE}:{SE+3}], s{sWo} offen offset:{1024*i} lds")
        if gi < 3:
            k(f"s_add_u32 s{sX}, s{sX}, 128", f"s_and_b32 s{sX}, s{sX}, 511", f"s_lshl_b32 s{sWo}, s{sX}, 5")
    NG0 = OPT.get("ng0", 2)
    for gi in range(NG0):
        kv_ld(gi)
    k("s_branch L_f_comp")
    k.label("L_f_help")
    k(f"s_and_b32 s{sW}, s{sW}, 3")
    k(f"v_lshrrev_b32 v{T0}, 3, v{L}",
      f"s_lshl_b32 s{sT}, s{sTH}, 2",
      f"v_add_u32 v{T1}, s{sT}, v{G}",
      f"v_and_b32 v{T2}, 7, v{L}",
      f"v_xor_b32 v{T1}, v{T1}, v{T2}",
      f"s_lshl_b32 s{sT}, s{sTB}, 6",
      f"s_lshl_b32 s{sT2}, s{sW}, 3",
      f"s_add_u32 s{sT}, s{sT}, s{sT2}",
      f"v_add_u32 v{T0}, s{sT}, v{T0}",
      f"v_lshlrev_b32 v{T0}, 11, v{T0}",
      f"v_lshl_add_u32 v{vX}, v{T1}, 4, v{T0}",
      f"v_add_u32 v{vX2}, 0x10000, v{vX}")
    k(f"v_lshlrev_b32 v{T1}, 1, v{G}",
      f"v_xor_b32 v{T1}, v{T1}, v{TOK}",
      f"s_lshl_b32 s{sT}, s{sTH}, 3",
      f"v_xor_b32 v{T1}, s{sT}, v{T1}",
      f"s_lshl_b32 s{sBW}, s{sTH}, 1",
      f"s_add_u32 s{sBW}, s{sBW}, s{sCH}",
      f"s_lshl_b32 s{sT}, s{sBW}, 13",
      f"s_lshl_b32 s{sT2}, s{sHG}, 8",
      f"s_add_u32 s{sT}, s{sT}, s{sT2}",
      f"v_lshlrev_b32 v{T0}, 11, v{G}",
      f"v_add_u32 v{T0}, s{sT}, v{T0}",
      f"v_lshl_add_u32 v{vW[0]}, v{T1}, 4, v{T0}")
    for i in range(1, 4):
        k(f"v_add_u32 v{vW[i]}, {32768*i}, v{vW[0]}")
    k(f"s_sub_u32 s{sBW}, s{sBW}, s{sW}", f"s_lshl_b32 s{sBW}, s{sBW}, 10", f"s_add_u32 s{sBW}, s{sBW}, 8192",
      f"s_lshl_b32 s{sWr}, s{sW}, 10", f"s_mov_b32 s{sN}, 12")
    k(f"s_and_b32 s{sT}, s{sTB}, {7 if OPT.get('rot', 1) else 0}",
      f"s_lshl_b32 s{sX}, s{sT}, 8", f"s_lshl_b32 s{sWo}, s{sT}, 18")
    k("s_waitcnt lgkmcnt(0)", srd_tail(SX, 4 * MB), srd_tail(SWQ, 2 * MB))
    k(f"s_load_dwordx2 s[20:21], s[0:1], {A_WO}", f"s_load_dwordx4 s[24:27], s[0:1], {A_WG}", f"s_load_dwordx2 s[28:29], s[0:1], {A_WD}")
    def q_x(slot):
        k(f"s_add_u32 m0, s{sWr}, {slot}", "s_nop 0", f"buffer_load_dwordx4 v{vX}, s[{SX}:{SX+3}], s{sX} offen lds",
          f"s_add_u32 m0, s{sWr}, {slot+4096}", "s_nop 0", f"buffer_load_dwordx4 v{vX2}, s[{SX}:{SX+3}], s{sX} offen lds",
          f"s_add_u32 s{sX}, s{sX}, 128", f"s_and_b32 s{sX}, s{sX}, 2047")

    def q_w(slot):
        k(f"s_add_u32 s{sT}, s{sWr}, s{sBW}")
        for i in range(4):
            k(f"s_add_u32 m0, s{sT}, {slot+4096*i}", "s_nop 0", f"buffer_load_dwordx4 v{vW[i]}, s[{SWQ}:{SWQ+3}], s{sWo} offen lds")
        k(f"s_add_u32 s{sWo}, s{sWo}, 0x20000", f"s_and_b32 s{sWo}, s{sWo}, 0x1fffff")

    def q_stage():
        q_x(0); q_w(0)
        k(f"s_add_u32 s{sWr}, s{sWr}, {STG}", f"s_cmp_ge_u32 s{sWr}, {EA}", f"s_cselect_b32 s{sT}, {EA}, 0",
          f"s_sub_u32 s{sWr}, s{sWr}, s{sT}", f"s_sub_u32 s{sN}, s{sN}, 1")
    q_w(0); q_w(STG)
    k("s_branch L_f_setup")
    k.label("L_f_comp")
    k(f"v_bfe_u32 v{R}, v{L}, 2, 2", f"v_and_b32 v{CQ}, 3, v{L}", f"v_and_b32 v{T2}, 1, v{G}",
      f"s_lshl_b32 s{sT}, s{sW}, 14", f"s_add_u32 s{sT}, s{sT}, {EA}",
      f"v_lshlrev_b32 v{T0}, 5, v{T2}", f"v_lshl_add_u32 v{T0}, v{CQ}, 3, v{T0}",
      f"v_lshl_add_u32 v{T0}, v{R}, 6, v{T0}", f"v_lshl_add_u32 v{T0}, v{G}, 9, v{T0}",
      f"v_add_u32 v{aE0}, s{sT}, v{T0}", f"v_xor_b32 v{aE1}, 32, v{aE0}")
    for i in range(4):
        k(f"v_mov_b32 v{ONES+i}, 0x3f803f80")
    k(ws_shift(SWS), srd_tail(SWS, WS_SZ), srd_from(SKV, SWS, KVF, 262144))
    k(f"s_lshl_b32 s{sT}, s{sCH}, 10", f"s_lshl_b32 s{sT2}, s{sTH}, 3", f"s_add_u32 s{sT}, s{sT}, s{sT2}", f"s_add_u32 s{sT}, s{sT}, {EA}",
      f"v_add_u32 v{aP}, s{sT}, v{vLin}", f"v_lshlrev_b32 v{aS}, 3, v{TOK}", f"v_add_u32 v{aS}, {EA+4096}, v{aS}")
    k(f"s_bfe_u32 s{sT}, s{sHG}, 0x10001", f"s_lshl_b32 s{sKV}, s{sTB}, 1", f"s_add_u32 s{sKV}, s{sKV}, s{sT}", f"s_lshl_b32 s{sKV}, s{sKV}, 12",
      f"s_and_b32 s{sT2}, s{sHG}, 1", f"s_bitcmp1_b32 s{sHG}, 2", "s_cbranch_scc1 L_f_av")
    k(f"s_lshl_b32 s{sT2}, s{sT2}, 8", f"s_add_u32 s{sKV}, s{sKV}, s{sT2}",
      f"s_lshl_b32 s{sT}, s{sW}, 2", f"s_add_u32 s{sT}, s{sT}, {EA+8192}", f"v_add_u32 v{aG0}, s{sT}, v{vLin}", f"v_add_u32 v{aG1}, 2, v{aG0}",
      f"v_lshlrev_b32 v{T0}, 10, v{T2}", f"v_lshrrev_b32 v{T1}, 1, v{G}", f"v_lshl_add_u32 v{T0}, v{T1}, 9, v{T0}", f"v_lshl_add_u32 v{vKo}, v{TOK}, 4, v{T0}",
      "s_branch L_f_ax")
    k.label("L_f_av")
    k(f"s_lshl_b32 s{sT2}, s{sT2}, 10", f"s_add_u32 s{sKV}, s{sKV}, s{sT2}", f"s_add_u32 s{sKV}, s{sKV}, 2048",
      f"v_lshlrev_b32 v{T0}, 7, v{T2}", f"v_lshrrev_b32 v{T1}, 1, v{G}", f"v_lshl_add_u32 v{T0}, v{T1}, 6, v{T0}",
      f"v_bfe_u32 v{T1}, v{L}, 3, 1", f"v_lshl_add_u32 v{T0}, v{T1}, 9, v{T0}", f"v_and_b32 v{T1}, 7, v{L}", f"v_lshl_add_u32 v{T0}, v{T1}, 1, v{T0}",
      f"s_lshl_b32 s{sT}, s{sCH}, 8", f"s_lshl_b32 s{sT2}, s{sTH}, 5", f"s_add_u32 s{sT}, s{sT}, s{sT2}", f"s_add_u32 s{sT}, s{sT}, {EA+8192}",
      f"v_add_u32 v{aG0}, s{sT}, v{T0}", f"v_add_u32 v{aG1}, 16, v{aG0}", f"v_mov_b32 v{vKo}, v{vLin}")
    k.label("L_f_ax")
    k(f"v_lshrrev_b32 v{T0}, 1, v{TOK}", f"v_xor_b32 v{T0}, v{T0}, v{G}", f"v_lshlrev_b32 v{T0}, 4, v{T0}",
      f"v_lshl_add_u32 v{T0}, v{TOK}, 7, v{T0}",
      f"s_lshl_b32 s{sT}, s{sTH}, 1", f"s_add_u32 s{sT}, s{sT}, s{sCH}", f"s_lshl_b32 s{sT}, s{sT}, 11",
      f"v_add_u32 v{bX[0][0]}, s{sT}, v{T0}",
      f"v_xor_b32 v{bX[0][1]}, 2048, v{bX[0][0]}",
      f"v_xor_b32 v{bX[1][0]}, 64, v{bX[0][0]}",
      f"v_xor_b32 v{bX[1][1]}, 64, v{bX[0][1]}")
    k(f"v_lshlrev_b32 v{T0}, 2, v{T2}", f"v_xor_b32 v{T0}, v{T0}, v{R}",
      f"s_lshl_b32 s{sT}, s{sCH}, 2", f"s_lshl_b32 s{sT2}, s{sTH}, 1", f"s_add_u32 s{sT}, s{sT}, s{sT2}",
      f"v_xor_b32 v{T0}, s{sT}, v{T0}",
      f"v_lshlrev_b32 v{T0}, 5, v{T0}",
      f"v_lshl_add_u32 v{T0}, v{CQ}, 3, v{T0}",
      f"v_lshl_add_u32 v{T0}, v{R}, 8, v{T0}",
      f"v_lshl_add_u32 v{T0}, v{G}, 11, v{T0}",
      f"v_add_u32 v{bW[0]}, 8192, v{T0}")
    for t in range(1, 4):
        k(f"v_xor_b32 v{bW[t]}, {32*t}, v{bW[0]}")
    bases = [(aX[s][i], bX[s][i]) for s in range(2) for i in range(2)] + list(zip(aW, bW))
    for a, b in bases:
        k(f"v_mov_b32 v{a}, v{b}")
    for i in range(O[0], z1, 2):
        k(f"v_mov_b64 {vr(i,2)}, 0")
    k(f"v_and_b32 v{T0}, 7, v{L}", f"v_cmp_eq_u32 vcc, 0, v{T0}", f"v_mov_b32 v{IDX}, 0xdddd", f"v_add_u32 v{vRd}, {KVB+SLOT}, v{vLin}",
      f"v_cndmask_b32 v{SUMA}, 0, v{ONES}, vcc", f"v_cndmask_b32 v{SUMA+1}, 0, v{ONES}, vcc",
      f"v_cmp_eq_u32 vcc, 4, v{T0}", f"v_and_b32 v{T0}, 1, v{TOK}", f"v_and_b32 v{T1}, 2, v{TOK}",
      f"v_cndmask_b32 v{SUMA+2}, 0, v{ONES}, vcc", f"v_cndmask_b32 v{SUMA+3}, 0, v{ONES}, vcc",
      f"v_cmp_eq_u32 s[66:67], 1, v{T0}", f"v_cmp_eq_u32 s[68:69], 2, v{T1}", f"v_cmp_eq_u32 s[82:83], v{R}, v{G}")
    k(f"s_lshl_b32 s{sFg}, s{sTB}, 3", f"s_add_u32 s{sFg}, s{sFg}, s{sHG}", f"s_lshl_b32 s{sFg}, s{sFg}, 2", f"s_add_u32 s{sFg}, s{sFg}, s{sW}",
      f"s_lshl_b32 s{sFg}, s{sFg}, 7", f"s_add_u32 s{sFg}, s{sFg}, {FLG}")
    k(f"v_lshrrev_b32 v{T0}, 1, v{G}", f"v_lshl_add_u32 v{T0}, v{T2}, 1, v{T0}", f"v_lshlrev_b32 v{T1}, 4, v{TOK}", f"v_lshl_add_u32 v{vHo}, v{T0}, 8, v{T1}",
      f"v_lshlrev_b32 v{T1}, 11, v{TOK}", f"v_lshl_add_u32 v{T0}, v{T0}, 4, v{T1}",
      f"s_lshl_b32 s{sT}, s{sTB}, 1", f"s_add_u32 s{sT}, s{sT}, s{sTH}", f"s_lshl_b32 s{sT}, s{sT}, 16",
      f"s_lshl_b32 s{sT2}, s{sHG}, 2", f"s_add_u32 s{sT2}, s{sT2}, s{sW}", f"s_lshl_b32 s{sT2}, s{sT2}, 6", f"s_add_u32 s{sT}, s{sT}, s{sT2}",
      f"v_add_u32 v{vRow}, s{sT}, v{T0}")
    k(f"s_mov_b32 s{sRd}, 0", f"s_mov_b32 s{sN}, 7", f"s_cmp_eq_u32 s{sW}, 0", f"s_cselect_b32 s{sFl}, {OPT.get('flagit', 5)}, -1")
    xstamp(k, 1)
    for gi in range(NG0, 4):
        kv_ld(gi)
    k("s_barrier")
    k(f"s_add_u32 s{sT}, s{sWr}, {EA}", f"v_add_u32 v{vE}, s{sT}, v{vLin}", f"v_lshl_add_u32 v{vXk}, v{TOK}, 3, s{sT}")

    def diag(dst, src):
        return [f"v_cndmask_b32 v{T0}, v{src}, v{src+1}, s[66:67]", f"v_cndmask_b32 v{T1}, v{src+2}, v{src+3}, s[66:67]",
                f"v_cndmask_b32 v{dst}, v{T0}, v{T1}, s[68:69]"]

    def kv_mf(gi):
        o = []
        for j in (2 * gi, 2 * gi + 1):
            c = "0" if j == 0 else None
            X, On = vr(XK[j], 4), vr(ONES, 4)
            o += [m16(vr(sxxE, 4), X, X, c), m16(vr(sxE, 4), On, X, c)]
            for t in range(2):
                o += [m16(vr(accE[t], 4), vr(EK[j][t], 4), X, c), m16(vr(csE[t], 4), vr(EK[j][t], 4), On, c)]
        return o
    for gi in range(4):
        rd = [f"ds_read_b64_tr_b16 {vr(EK[j][t]+2*jj,2)}, v{[aE0,aE1][t]} offset:{j*2048+jj*256}"
              for j in (2 * gi, 2 * gi + 1) for t in range(2) for jj in range(2)]
        if gi == 0:
            xstamp(k, 2)
        k(f"s_waitcnt vmcnt({18-6*gi})")
        if gi == 0:
            xstamp(k, 3)
        if gi == 3:
            xstamp(k, 4)
        k(weave(kv_mf(gi - 1), rd, 0, 6) if gi else rd, "s_waitcnt lgkmcnt(0)")
    k(kv_mf(3), "s_nop 3", diag(sxE + 1, sxxE), "s_mov_b64 exec, s[82:83]", f"ds_write_b64 v{vXk}, {vr(sxE,2)} offset:4096", "s_mov_b64 exec, -1")
    for i, r in enumerate(accE + csE):
        k(f"ds_write_b128 v{vE}, {vr(r,4)} offset:{1024*i}")
    k("s_waitcnt lgkmcnt(0)")
    xstamp(k, 5)
    k("s_barrier")
    xstamp(k, 6)
    U = F0
    for w in range(4):
        k(f"ds_read_b64 {vr(U+2*w,2)}, v{aS} offset:{16384*w}")
    for w in range(4):
        k(f"ds_read_b64 {vr(U+8+2*w,2)}, v{aP} offset:{16384*w}", f"ds_read_b64 {vr(U+16+2*w,2)}, v{aP} offset:{16384*w+2048}")

    def sum4(r):
        return [f"v_add_f32 v{r+e}, v{r+e}, v{r+2+e}" for e in range(2)] + [f"v_add_f32 v{r+4+e}, v{r+4+e}, v{r+6+e}" for e in range(2)] + \
               [f"v_add_f32 v{r+e}, v{r+e}, v{r+4+e}" for e in range(2)]

    def stats(s, scale):
        return [f"v_mul_f32 v{s}, {f32(-1/1024)}, v{s}", f"v_mul_f32 v{s+1}, {f32(1/1024)}, v{s+1}",
                f"v_fma_f32 v{s+1}, -v{s}, v{s}, v{s+1}", f"v_max_f32 v{s+1}, 0, v{s+1}", f"v_add_f32 v{s+1}, {f32(EPS)}, v{s+1}",
                f"v_rsq_f32 v{s+2}, v{s+1}", "s_nop 0", f"v_mul_f32 v{s+2}, {f32(scale)}, v{s+2}" if scale != 1 else None,
                f"v_mul_f32 v{s+1}, v{s}, v{s+2}", f"v_mov_b32 v{s}, v{s+2}"]
    k("s_waitcnt lgkmcnt(8)", sum4(U), stats(U, 1), "s_waitcnt lgkmcnt(0)", sum4(U + 8), sum4(U + 16))
    for e in range(2):
        k(f"v_mul_f32 v{U+8+e}, v{U}, v{U+8+e}", f"v_fmac_f32 v{U+8+e}, v{U+1}, v{U+16+e}")
    k(f"v_cvt_pk_bf16_f32 v{U+8}, v{U+8}, v{U+9}", f"ds_write_b16 v{aG0}, v{U+8}", f"ds_write_b16_d16_hi v{aG1}, v{U+8}",
      f"s_cmp_lg_u32 s{sW}, 0", "s_waitcnt lgkmcnt(0)")
    k(island(back="L_f_back"))
    k("s_barrier")

    def reads(fi):
        o = []
        for s in range(2):
            f = F[fi][s]
            o += [f"ds_read_b128 {vr(f['X'][i],4)}, v{aX[s][i]}" for i in range(2)]
            for t in range(4):
                for j in range(2):
                    o.append(f"ds_read_b64_tr_b16 {vr(f['W'][t]+2*j,2)}, v{aW[t]} offset:{s*8192+j*1024}")
        return o

    def mfmas(fi):
        X = lambda s, i: vr(F[fi][s]["X"][i], 4)
        W = lambda s, t: vr(F[fi][s]["W"][t], 4)
        On = vr(ONES, 4)
        o = [m16(vr(sx, 4), On, X(s, 0)) for s in range(2)] + [m16(vr(sxx, 4), X(s, 0), X(s, 0)) for s in range(2)]
        for t in range(4):
            o += [m16(vr(acc[t][i], 4), W(s, t), X(s, i)) for i in range(2) for s in range(2)]
            if t < 2:
                o += [m16(vr(cs[t], 4), W(s, t), On) for s in range(2)]
        return o
    va = [f"v_add_u32 v{a}, s{sRd}, v{b}" for a, b in bases]
    adv = [[f"s_add_u32 s{sRd}, s{sRd}, {STG}", f"s_cmp_eq_u32 s{sRd}, {EA}"], [f"s_cselect_b32 s{sRd}, 0, s{sRd}"]] + \
          [va[i:i + 2] for i in range(0, len(va), 2)]
    xstamp(k, 7)
    if OPT.get('qcyc'):
        mid_stamp(k, 0)
    k("s_cbranch_scc1 L_f_q0")
    k(f"ds_read_b128 {vr(sxE,4)}, v{vE} offset:8192", f"v_lshlrev_b32 v{T0}, 3, v{L}",
      f"buffer_store_dwordx2 {vr(O[0],2)}, v{T0}, s[{SWS}:{SWS+3}], s{sFg} offen sc1", "s_waitcnt lgkmcnt(0)",
      f"buffer_store_dwordx4 {vr(sxE,4)}, v{vKo}, s[{SKV}:{SKV+3}], s{sKV} offen sc1")
    k.label("L_f_q0")
    k(reads(0), adv, "s_waitcnt lgkmcnt(0)")
    k.label("L_f_qloop")
    for f in range(2):
        k("s_barrier")
        m = weave(mfmas(f), reads(1 - f), 0, 12)
        if f == 0:
            k(weave(m, adv + [[f"s_cmp_eq_u32 s{sN}, s{sFl}"]], len(m) - 10, len(m) - 1))
            k("s_cbranch_scc1 L_f_flag")
            k.label("L_f_flagged")
        else:
            k(weave(m, adv + [[f"s_sub_u32 s{sN}, s{sN}, 1", f"s_cmp_lg_u32 s{sN}, 0"]], len(m) - 10, len(m) - 1))
        k("s_waitcnt lgkmcnt(0)")
    k("s_cbranch_scc1 L_f_qloop")
    k("s_barrier")
    k(weave(mfmas(0), reads(1), 0, 12), "s_waitcnt lgkmcnt(0)", mfmas(1))
    xstamp(k, 8)
    if OPT.get('qcyc'):
        mid_stamp(k, 1)
    ST = [S[0], S[0] + 4]
    c2, c3 = S[0] + 8, S[0] + 12
    k(diag(sx + 1, sxx))
    k(f"s_lshl_b32 s{sT}, s{sTH}, 1", f"s_add_u32 s{sT}, s{sT}, s{sCH}", f"s_lshl_b32 s{sT}, s{sT}, 7",
      f"v_lshl_add_u32 v{T0}, v{TOK}, 3, s{sT}",
      f"s_lshl_b32 s{sT}, s{sCH}, 2", f"s_lshl_b32 s{sT2}, s{sTH}, 1", f"s_add_u32 s{sT}, s{sT}, s{sT2}", f"s_lshl_b32 s{sT}, s{sT}, 6",
      f"v_lshl_add_u32 v{T1}, v{G}, 4, s{sT}",
      f"ds_write_b128 v{T1}, {vr(cs[0],4)} offset:{TBL+512}", f"ds_write_b128 v{T1}, {vr(cs[1],4)} offset:{TBL+576}",
      "s_mov_b64 exec, s[82:83]", f"ds_write_b64 v{T0}, {vr(sx,2)} offset:{TBL}", "s_mov_b64 exec, -1",
      f"v_xor_b32 v{T2}, 128, v{T0}", f"v_xor_b32 v{T1}, 128, v{T1}",
      "s_waitcnt lgkmcnt(0)", "s_barrier")
    k(f"ds_read_b64 {vr(ST[0],2)}, v{T0} offset:{TBL}", f"ds_read_b64 {vr(ST[1],2)}, v{T2} offset:{TBL}",
      f"ds_read_b128 {vr(c2,4)}, v{T1} offset:{TBL+512}", f"ds_read_b128 {vr(c3,4)}, v{T1} offset:{TBL+576}")
    for r0, n in ((S[3], 16), (VB[1], 8)):
        for i in range(0, n, 2):
            k(f"v_mov_b64 {vr(r0+i,2)}, 0")
    k(f"s_lshl_b32 s{sT}, s{sTB}, 3", f"s_add_u32 s{sT}, s{sT}, s{sHG}", f"s_lshl_b32 s{sT}, s{sT}, 1", f"s_add_u32 s{sT}, s{sT}, s{sCH}",
      f"s_lshl_b32 s{sT}, s{sT}, 13", f"s_mul_i32 s{sT2}, s{sTH}, 6144", f"s_add_u32 s{sT}, s{sT}, s{sT2}",
      f"s_add_u32 s{sOo}, s{sT}, {OF}", f"s_xor_b32 s{sOo1}, s{sOo}, 4096",
      f"s_mov_b32 s{sRd}, {KVB+SLOT}", f"s_mov_b32 s{sC}, 8")
    k("s_waitcnt lgkmcnt(0)", stats(ST[0], QSCALE), stats(ST[1], QSCALE))
    csr = [cs[0], cs[1], c2, c3]
    for p in range(2):
        for i in range(2):
            o = Q[p] + 4 * i
            for jt in range(2):
                t = 2 * p + jt
                a = acc[t][i]
                for hh in (0, 2):
                    k(f"v_pk_mul_f32 {vr(a+hh,2)}, {vr(a+hh,2)}, {vr(ST[i],2)} op_sel_hi:[1,0]")
                for hh in (0, 2):
                    k(f"v_pk_fma_f32 {vr(a+hh,2)}, {vr(csr[t]+hh,2)}, {vr(ST[i],2)}, {vr(a+hh,2)} op_sel:[0,1,0] op_sel_hi:[1,1,1]")
                k(f"v_cvt_pk_bf16_f32 v{o+2*jt}, v{a}, v{a+1}", f"v_cvt_pk_bf16_f32 v{o+2*jt+1}, v{a+2}, v{a+3}")
    for p in range(2):
        for r in range(4):
            k(f"v_permlane16_swap_b32 v{Q[p]+r}, v{Q[p]+4+r}")
    k(f"v_xor_b32 v{T0}, 64, v{vRow}", f"s_mov_b32 s{sT}, 32768")
    for i in range(2):
        for b in range(2):
            k(f"buffer_load_dwordx4 {vr(RES[i][b],4)}, v{[vRow,T0][b]}, s[{SX}:{SX+3}], {['0', f's{sT}'][i]} offen")
    k("s_branch L_f_att")
    k.label("L_f_flag")
    k(f"s_and_b32 s{sT}, s2, 0xfc", f"v_mov_b32 v{T0}, s{sT}", f"v_mov_b32 v{T1}, 1", "s_mov_b64 exec, 1", "s_waitcnt vmcnt(0)",
      f"global_atomic_add v{T0}, v{T1}, s[{SDBG}:{SDBG+1}] sc1", "s_mov_b64 exec, -1", "s_branch L_f_flagged")
    k(island(back="L_f_back", jump=False))
    k.label("L_f_att")
    k("s_barrier")
    if not (OPT.get('qcyc') or OPT.get('ocyc')):
        mid_stamp(k, 0)
    rdK = lambda t: [f"ds_read_b128 {vr(KB[t&1]+4*m,4)}, v{vRd} offset:{(t%8)*4096+1024*m}" for m in range(2)]
    rdV = lambda t: [f"ds_read_b128 {vr(VB[t&1]+4*m,4)}, v{vRd} offset:{(t%8)*4096+2048+1024*m}" for m in range(2)]
    qk = lambda u, c="0": [m32(vr(S[u % 4], 16), vr(KB[(u >> 1) & 1], 4), vr(Q[u & 1], 4), c),
                           m32(vr(S[u % 4], 16), vr(KB[(u >> 1) & 1] + 4, 4), vr(Q[u & 1] + 4, 4))]
    pv = lambda u: [f"v_smfmac_f32_32x32x32_bf16 {vr(O[u&1],16)}, {vr(VB[(u>>1)&1]+4*m,4)}, {vr(S[u%4]+8*m,8)}, v{IDX}" for m in range(2)]
    sm = lambda u: [f"v_smfmac_f32_16x16x64_bf16 {vr(LS[u&1],4)}, {vr(SUMA,4)}, {vr(S[u%4]+8*m,8)}, v{IDX}" for m in range(2)]
    k(rdK(0), rdV(0), "s_waitcnt lgkmcnt(0)", qk(0), "s_nop 7", "s_nop 3")
    k(".p2align 6")
    k.label("L_k1_loop")
    for u in range(16):
        ex = [f"v_exp_f32 v{S[u%4]+i}, v{S[u%4]+i}" for i in range(16)]
        mf = qk(u + 1) + pv(u - 1) + sm(u - 1)
        sl = [[] for _ in range(6)]
        t = u >> 1
        rd = rdK(t + 1) if u % 2 == 0 else rdV(t + 1)
        if u == 13:
            sl[2] += [f"s_add_u32 s{sRd}, s{sRd}, {SLOT}"]
            sl[3] += [f"s_cmp_eq_u32 s{sRd}, {KVB+3*SLOT}"]
            sl[4] += [f"s_cselect_b32 s{sRd}, {KVB}, s{sRd}"]
            sl[5] += ["s_waitcnt lgkmcnt(0)", f"v_add_u32 v{vRd}, s{sRd}, v{vLin}"]
        if u == 14:
            sl[0] += ["s_barrier"]
            sl[1].append(rd[0]); sl[2].append(rd[1])
        else:
            sl[0].append(rd[0]); sl[1].append(rd[1])
        if u == 15:
            sl[2] += [f"s_sub_u32 s{sC}, s{sC}, 1"]
            sl[3] += [f"s_cmp_lg_u32 s{sC}, 0"]
        if u % 2 == 0:
            sl[5].append("s_waitcnt lgkmcnt(0)")
        cuts = [0, 3, 6, 9, 12, 14, 16]
        for i in range(6):
            k(mf[i], sl[i], ex[cuts[i]:cuts[i + 1]])
    k("s_cbranch_scc1 L_k1_loop")
    if not (OPT.get('qcyc') or OPT.get('ocyc')):
        mid_stamp(k, 1)
    k("s_nop 1", pv(15), sm(15))
    vO = vRd
    k(f"v_and_b32 v{T0}, 1, v{G}", f"v_xor_b32 v{T0}, s{sCH}, v{T0}", f"v_lshlrev_b32 v{T0}, 10, v{T0}", f"v_lshrrev_b32 v{T1}, 5, v{L}",
      f"v_lshl_add_u32 v{T0}, v{T1}, 8, v{T0}", f"v_lshl_add_u32 v{vO}, v{TOK}, 4, v{T0}")
    k("s_nop 15", "s_waitcnt lgkmcnt(0)")
    k(f"v_maximum3_f32 v{T0}, abs(v{O[0]}), abs(v{O[0]+1}), v{LS[0]}", f"v_maximum3_f32 v{T1}, abs(v{O[1]}), abs(v{O[1]+1}), v{LS[1]}")
    for i in range(2, 16, 2):
        k(f"v_maximum3_f32 v{T0}, abs(v{O[0]+i}), abs(v{O[0]+i+1}), v{T0}", f"v_maximum3_f32 v{T1}, abs(v{O[1]+i}), abs(v{O[1]+i+1}), v{T1}")
    k(f"v_maximum3_f32 v{T0}, v{T0}, v{T1}, v{T1}", f"v_min_f32 v{T1}, v{LS[0]}, v{LS[1]}",
      f"v_cmp_nge_f32 vcc, {f32(2.0**100)}, v{T0}", f"s_mov_b64 s[70:71], vcc",
      f"v_cmp_nle_f32 vcc, {f32(2.0**-80)}, v{T1}", f"s_or_b64 s[70:71], s[70:71], vcc")
    if OPT["force_slow"]:
        k("s_branch L_k1_slow")
    k("s_cbranch_scc1 L_k1_slow")
    k.label("L_k1_out")
    k(f"v_rcp_f32 v{LS[0]}, v{LS[0]}", f"v_rcp_f32 v{LS[1]}, v{LS[1]}",
      f"s_lshl_b32 s{sT}, s{sCH}, 13", f"s_mul_i32 s{sT2}, s{sTH}, 6144", f"s_add_u32 s{sT}, s{sT}, s{sT2}", f"s_add_u32 s{sT}, s{sT}, {XR}",
      f"v_add_u32 v{T0}, s{sT}, v{vO}", f"v_xor_b32 v{T1}, 4096, v{T0}")
    for q in range(2):
        for m in range(2):
            o = Q[q] + 4 * m
            for i in range(0, 8, 2):
                k(f"v_pk_mul_f32 {vr(O[q]+8*m+i,2)}, {vr(O[q]+8*m+i,2)}, {vr(LS[q],2)} op_sel_hi:[1,0]")
            for i in range(4):
                k(f"v_cvt_pk_bf16_f32 v{o+i}, v{O[q]+8*m+2*i}, v{O[q]+8*m+2*i+1}")
            k(f"buffer_store_dwordx4 {vr(o,4)}, v{vO}, s[{SWS}:{SWS+3}], s{[sOo,sOo1][q]} offen offset:{512*m} sc1")
    for q in range(2):
        for m in range(2):
            k(f"ds_write_b128 v{[T0,T1][q]}, {vr(Q[q]+4*m,4)} offset:{512*m}")
    k(island(back="L_f_back2"))
    bT, aT = bX[0][0], aX[0][0]
    k("s_waitcnt vmcnt(4)")
    for i in range(2):
        for b in range(2):
            k(f"v_permlane16_swap_b32 v{RES[i][b]}, v{RES[i][b]+2}", f"v_permlane16_swap_b32 v{RES[i][b]+1}, v{RES[i][b]+3}")
    k(f"s_lshl_b32 s{sT}, s{sTH}, 11", f"s_add_u32 s{sT}, s{sT}, {XR}", f"v_add_u32 v{bT}, s{sT}, v{vLin}", f"v_add_u32 v{aT}, s{sT}, v{vLin}")
    for t in range(4):
        k(f"v_subrev_u32 v{aW[t]}, 8192, v{bW[t]}", f"v_subrev_u32 v{bW[t]}, 8192, v{bW[t]}")
    k(f"s_mov_b32 s{sRd}, 0", "s_waitcnt lgkmcnt(0)", "s_barrier")

    def oreads(fi):
        o = []
        for s in range(2):
            f = F[fi][s]
            o += [f"ds_read_b128 {vr(f['X'][i],4)}, v{aT} offset:{s*4096+i*1024}" for i in range(2)]
            for t in range(4):
                for j in range(2):
                    o.append(f"ds_read_b64_tr_b16 {vr(f['W'][t]+2*j,2)}, v{aW[t]} offset:{s*8192+j*1024}")
        return o

    def omf(fi):
        return [m16(vr(acc[t][i ^ (t & 1)], 4), vr(F[fi][s]["W"][t], 4), vr(F[fi][s]["X"][i ^ (t & 1)], 4))
                for t in range(4) for i in range(2) for s in range(2)]
    oadv = [[f"s_add_u32 s{sRd}, s{sRd}, 16384", f"s_and_b32 s{sRd}, s{sRd}, 0x1ffff"], [f"s_bfe_u32 s{sRx}, s{sRd}, 0xf0001", f"v_add_u32 v{aW[0]}, s{sRd}, v{bW[0]}"],
            [f"v_add_u32 v{aW[t]}, s{sRd}, v{bW[t]}" for t in (1, 2)], [f"v_add_u32 v{aW[3]}, s{sRd}, v{bW[3]}", f"v_add_u32 v{aT}, s{sRx}, v{bT}"]]

    def ostep(f, extra):
        m = weave(omf(f), oreads(1 - f), 0, 10)
        k(weave(m, extra, len(m) - 6, len(m)) if extra else m, "s_waitcnt lgkmcnt(0)")
    k(oreads(0), oadv)
    for i in range(2):
        for b in range(2):
            for jt in range(2):
                for hh in range(2):
                    a, r = acc[2 * b + jt][i] + 2 * hh, RES[i][b] + 2 * jt + hh
                    k(f"v_lshlrev_b32 v{a}, 16, v{r}", f"v_and_b32 v{a+1}, 0xffff0000, v{r}")
    k(f"v_mov_b64 {vr(sx,2)}, 1", f"v_mov_b64 {vr(sx+2,2)}, 1", "s_waitcnt lgkmcnt(0)")
    ostep(0, oadv)
    k("s_barrier", "s_mov_b64 exec, 0xff", "s_waitcnt vmcnt(0)",
      f"buffer_store_dwordx4 {vr(sx,4)}, v{vLin}, s[{SWS}:{SWS+3}], s{sFg} offen sc1", "s_mov_b64 exec, -1")
    xstamp(k, 9)
    k(omf(1))
    k(f"s_add_u32 s{sH0}, s{sOo}, {HF-OF}", f"s_add_u32 s{sH1}, s{sOo1}, {HF-OF}",
      f"s_lshl_b32 s{sT}, s{sTB}, 1", f"s_add_u32 s{sT}, s{sT}, s{sTH}", f"s_lshl_b32 s{sT}, s{sT}, 12",
      f"s_lshl_b32 s{sT2}, s{sHG}, 1", f"s_add_u32 s{sT2}, s{sT2}, s{sCH}", f"s_lshl_b32 s{sT2}, s{sT2}, 8",
      f"s_add_u32 s{sT}, s{sT}, s{sT2}", f"s_add_u32 s{sFg}, s{sT}, {STP}", f"s_mov_b32 s{sN}, 6")
    k("s_barrier")
    if OPT.get("ocyc"):
        mid_stamp(k, 0)
    k(oreads(0), oadv, "s_waitcnt lgkmcnt(0)")
    k.label("L_f_oloop")
    k("s_barrier")
    ostep(0, oadv)
    k("s_barrier")
    ostep(1, oadv + [[f"s_sub_u32 s{sN}, s{sN}, 1", f"s_cmp_lg_u32 s{sN}, 0"]])
    k("s_cbranch_scc1 L_f_oloop")
    k("s_barrier")
    ostep(0, [])
    k(omf(1))
    if OPT.get("ocyc"):
        mid_stamp(k, 1)
    SUM = [O[0], O[0] + 4]
    for b in range(2):
        for i in range(2):
            o = Q[b] + 4 * i
            for jt in range(2):
                a = acc[2 * b + jt][i]
                k(f"v_cvt_pk_bf16_f32 v{o+2*jt}, v{a}, v{a+1}", f"v_cvt_pk_bf16_f32 v{o+2*jt+1}, v{a+2}, v{a+3}")
        k("s_nop 0")
        for i in range(2):
            o = Q[b] + 4 * i
            k(f"v_permlane16_swap_b32 v{o}, v{o+2}", f"v_permlane16_swap_b32 v{o+1}, v{o+3}",
              f"buffer_store_dwordx4 {vr(o,4)}, v{vHo}, s[{SWS}:{SWS+3}], s{[sH0,sH1][b]} offen offset:{1024*i} sc1")
    for t in range(4):
        for hh in (0, 2):
            for i in range(2):
                a = vr(acc[t][i] + hh, 2)
                if t == 0 and hh == 0:
                    k(f"v_pk_mul_f32 {vr(SUM[i]+2,2)}, {a}, {a}")
                else:
                    src = vr(acc[0][i], 2) if (t == 0 and hh == 2) else vr(SUM[i], 2)
                    k(f"v_pk_add_f32 {vr(SUM[i],2)}, {src}, {a}", f"v_pk_fma_f32 {vr(SUM[i]+2,2)}, {a}, {a}, {vr(SUM[i]+2,2)}")
    for i in range(2):
        k(f"v_add_f32 v{SUM[i]}, v{SUM[i]}, v{SUM[i]+1}", f"v_add_f32 v{SUM[i]+1}, v{SUM[i]+2}, v{SUM[i]+3}")
    k(f"v_lshlrev_b32 v{T0}, 2, v{L}", f"v_permlane32_swap_b32 v{SUM[0]}, v{SUM[0]+1}", f"v_permlane32_swap_b32 v{SUM[1]}, v{SUM[1]+1}", "s_nop 0",
      f"v_add_f32 v{SUM[0]}, v{SUM[0]}, v{SUM[0]+1}", f"v_add_f32 v{SUM[1]}, v{SUM[1]}, v{SUM[1]+1}", "s_nop 1",
      f"v_permlane16_swap_b32 v{SUM[0]}, v{SUM[1]}", "s_nop 0",
      f"v_add_f32 v{SUM[0]}, v{SUM[0]}, v{SUM[1]}",
      f"buffer_store_dword v{SUM[0]}, v{T0}, s[{SWS}:{SWS+3}], s{sFg} offen sc1")
    tail(k, 0, sW)
    k(island(back="L_f_back", jump=False))
    k.label("L_f_setup")
    if OPT.get("isl", 1):
        k(f"s_cmp_eq_u32 s{sW}, 0", f"s_cbranch_scc1 L_isl{ISL[0][0]}", f"s_cmp_eq_u32 s{sW}, 1", f"s_cbranch_scc1 L_isl{ISL[1][0]}")
    k.label("L_f_back")
    k("s_waitcnt lgkmcnt(0)", ws_shift(SWS), srd_tail(SWS, WS_SZ), srd_from(SKV, SWS, KVF, 262144))
    k(f"s_lshl_b32 s{sGW}, s2, 2", f"s_add_u32 s{sGW}, s{sGW}, s{sW}",
      f"s_lshl_b32 s{sWrJ}, s{sW}, 12", f"s_add_u32 s{sWrJ}, s{sWrJ}, {JB}")
    k(f"v_lshrrev_b32 v{T0}, 4, v{L}", f"v_lshlrev_b32 v{T0}, 10, v{T0}", f"v_bfe_u32 v{T1}, v{L}, 2, 2", f"v_lshl_add_u32 v{T0}, v{T1}, 7, v{T0}",
      f"v_bfe_u32 v{T1}, v{L}, 3, 1", f"v_lshl_add_u32 v{T0}, v{T1}, 6, v{T0}", f"v_add_u32 v{T0}, s{sWrJ}, v{T0}", f"v_and_b32 v{T1}, 3, v{L}",
      f"v_lshl_add_u32 v{bJ[0]}, v{T1}, 4, v{T0}", f"v_xor_b32 v{bJ[1]}, 64, v{bJ[0]}")
    strip, kb0, mat = 66, 67, 68
    k(f"s_lshr_b32 s{strip}, s{sGW}, 3", f"s_and_b32 s{kb0}, s{sGW}, 7", f"s_lshl_b32 s{kb0}, s{kb0}, 2",
      f"s_cmp_ge_u32 s{strip}, 112", "s_cbranch_scc1 L_k1_wo")
    k(f"s_cmp_ge_u32 s{strip}, 56", f"s_cselect_b32 s{mat}, 1, 0",
      f"s_cselect_b32 s{SJ}, s26, s24", f"s_cselect_b32 s{SJ+1}, s27, s25",
      f"s_mul_i32 s{sT}, s{mat}, 56", f"s_sub_u32 s{strip}, s{strip}, s{sT}",
      f"s_mov_b32 s{SJ+2}, {1024*7168}", f"s_mov_b32 s{sStr}, 7168", f"s_mov_b32 s{sDstep}, {14*1024}",
      f"s_mov_b32 s{sBsz}, {3584*2048}",
      f"v_lshl_add_u32 v{aJ[0]}, v{T1}, 3, v{T0}")
    for i in range(1, 4):
        k(f"v_xor_b32 v{aJ[i]}, {32*i}, v{aJ[0]}")
    for i in range(4):
        T, fb, pos = 69, 70, 71
        k(f"s_lshl_b32 s{T}, s{strip}, 2", f"s_add_u32 s{T}, s{T}, {i}",
          f"s_mul_i32 s{fb}, s{T}, 9363", f"s_lshr_b32 s{fb}, s{fb}, 16",
          f"s_sub_u32 s{pos}, s{mat}, s{fb}", f"s_mul_i32 s{pos}, s{pos}, 7", f"s_add_u32 s{pos}, s{T}, s{pos}",
          f"s_lshl_b32 s{sT}, s{fb}, 5", f"s_add_u32 s{sT}, s{sT}, s{kb0}", f"s_mul_i32 s{sT}, s{sT}, 14",
          f"s_add_u32 s{sT}, s{sT}, s{pos}", f"s_lshl_b32 s{sT}, s{sT}, 10", f"s_add_u32 s{sD[i]}, s{sT}, {WGU}",
          f"s_lshl_b32 s{sT}, s{kb0}, 3", f"s_add_u32 s{sT}, s{sT}, s{fb}", f"s_mul_i32 s{sT}, s{sT}, 14",
          f"s_add_u32 s{sT}, s{sT}, s{pos}", f"s_lshl_b32 s{sT}, s{sT}, 6", f"s_add_u32 s{sCs[i]}, s{sT}, {CSP}")
    k("s_branch L_k1_jp")
    k.label("L_k1_wo")
    k(f"s_mov_b32 s{SJ}, s24", f"s_mov_b32 s{SJ+1}, s25", f"s_mov_b32 s{SJ+2}, 0", f"s_mov_b32 s{sStr}, 2048", f"s_mov_b32 s{sDstep}, 0", f"s_mov_b32 s{sBsz}, 0")
    for i in range(4):
        k(f"s_mov_b32 s{sD[i]}, {OOB}", f"s_mov_b32 s{sCs[i]}, {OOB}", f"v_mov_b32 v{aJ[i]}, v{bJ[0]}")
    k.label("L_k1_jp")
    k(f"s_mov_b32 s{SJ+3}, 0x00020000")
    k(f"v_lshrrev_b32 v{T0}, 3, v{L}", f"v_bfe_u32 v{T1}, v{L}, 4, 1", f"v_lshlrev_b32 v{T1}, 2, v{T1}",
      f"v_and_b32 v{T2}, 7, v{L}", f"v_xor_b32 v{T1}, v{T1}, v{T2}", f"v_lshlrev_b32 v{T1}, 4, v{T1}",
      f"v_mul_lo_u32 v{vJ}, v{T0}, s{sStr}", f"v_lshl_add_u32 v{vJB}, v{T0}, 11, v{T1}", f"v_add_u32 v{vJ}, v{vJ}, v{T1}",
      f"s_lshl_b32 s{sT}, s{kb0}, 5", f"s_mul_i32 s{sT}, s{sT}, s{sStr}", f"s_lshl_b32 s{sT2}, s{strip}, 7", f"s_add_u32 s{sT}, s{sT}, s{sT2}",
      f"v_add_u32 v{vJ}, s{sT}, v{vJ}",
      f"s_lshl_b32 s{sT}, s{sStr}, 3", f"s_sub_u32 s{sJa}, s{sT}, 1024", f"s_add_u32 s{sJb}, s{sT}, 3072", f"s_mov_b32 s{sJo}, 0")
    k(f"s_mul_i32 s{strip}, s{sGW}, 1171", f"s_lshr_b32 s{strip}, s{strip}, 16",
      f"s_mul_i32 s{sT}, s{strip}, 56", f"s_sub_u32 s{kb0}, s{sGW}, s{sT}", f"s_lshl_b32 s{kb0}, s{kb0}, 1",
      f"s_lshl_b32 s{sT}, s{kb0}, 16", f"s_lshl_b32 s{sT2}, s{strip}, 7", f"s_add_u32 s{sT}, s{sT}, s{sT2}",
      f"v_add_u32 v{vJB}, s{sT}, v{vJB}",
      f"s_lshr_b32 s{sT}, s{strip}, 1", f"s_mul_i32 s{sT}, s{sT}, 112", f"s_add_u32 s{sT}, s{sT}, s{kb0}", f"s_lshl_b32 s{sT}, s{sT}, 1",
      f"s_and_b32 s{sT2}, s{strip}, 1", f"s_add_u32 s{sT}, s{sT}, s{sT2}", f"s_lshl_b32 s{sT}, s{sT}, 12",
      f"s_add_u32 s{sDB}, s{sT}, {WDF}", f"s_cmp_eq_u32 s{sBsz}, 0", f"s_cselect_b32 s{sDB}, {OOB}, s{sDB}")
    k(f"v_and_b32 v{T0}, 15, v{L}", f"v_cmp_eq_u32 vcc, 0, v{T0}", f"v_mov_b32 v{T1}, {OOB}", "s_nop 0",
      f"v_cndmask_b32 v{vCs}, v{T1}, v{L}, vcc")
    for i in range(4):
        k(f"v_mov_b32 v{ONES+i}, 0x3f803f80")
    k(f"v_lshlrev_b32 v{vPo}, 2, v{L}")
    k("s_barrier")
    q_x(0); q_x(STG); q_x(2 * STG); q_w(2 * STG); q_x(3 * STG); q_w(3 * STG)
    k("s_barrier", "s_waitcnt vmcnt(14)", "s_barrier", "s_waitcnt vmcnt(12)", "s_barrier")
    k.label("L_f_ld2")
    q_stage()
    k(f"s_cmp_lg_u32 s{sN}, 0", f"s_waitcnt vmcnt({6*D})", "s_barrier", "s_cbranch_scc1 L_f_ld2")
    poll = f"global_load_dword v{PF4}, v{vPo}, s[{SDBG}:{SDBG+1}] sc1"
    k(poll, "s_waitcnt vmcnt(7)", "s_barrier", "s_waitcnt vmcnt(1)", "s_barrier")
    k(f"s_lshl_b32 s{sKo}, s{sW}, 13", f"s_add_u32 s{sWr}, s{sKo}, {KVB}", f"s_mov_b32 s{sN}, {1<<20}")
    k.label("L_f_poll")
    k("s_waitcnt vmcnt(0)", f"v_cmp_ne_u32 vcc, 4, v{PF4}", f"s_sub_u32 s{sN}, s{sN}, 1", "s_cbranch_scc1 L_f_polled",
      "s_cbranch_vccz L_f_polled", "s_sleep 2", poll, "s_branch L_f_poll")
    k.label("L_f_polled")

    def kv_dma(c):
        o = []
        for hh in range(2):
            o += [f"s_add_u32 m0, s{sWr}, {((c+1)%3)*SLOT+4096*hh}", "s_nop 0"]
            for i in range(4):
                o.append(f"buffer_load_dwordx4 v{vLin}, s[{SKV}:{SKV+3}], s{sKo} offen offset:{1024*i} sc1 lds")
            o.append(f"s_add_u32 s{sKo}, s{sKo}, {4096 if hh == 0 else 32768-4096}")
        return o
    k(kv_dma(0), "s_barrier", kv_dma(1), "s_waitcnt vmcnt(8)", "s_barrier")
    vm = []

    def wait_for(tag):
        n = len(vm) - 1 - max(i for i, t in enumerate(vm) if t == tag)
        return f"s_waitcnt vmcnt({n})"
    vm += ["kv1"] * 8
    k(f"s_mov_b32 s{SWQ}, s20", f"s_mov_b32 s{SWQ+1}, s21", f"s_lshl_b32 s{sWo}, s{sHG}, 18",
      f"s_lshl_b32 s{sBW}, s{sTH}, 1", f"s_add_u32 s{sBW}, s{sBW}, s{sCH}", f"s_lshl_b32 s{sBW}, s{sBW}, 10",
      f"s_lshl_b32 s{sRd}, s{sW}, 11", f"s_lshl_b32 s{sX}, s{sHG}, 14", f"s_add_u32 s{sX}, s{sX}, s{sRd}",
      f"s_lshl_b32 s{sOo}, s{sTB}, 17", f"s_add_u32 s{sOo}, s{sOo}, {OF}")

    def o_w(n):
        k(f"s_add_u32 s{sT}, s{sWo}, {n*0x20000}", f"s_and_b32 s{sT}, s{sT}, 0x1fffff")
        for i in range(4):
            k(f"s_add_u32 m0, s{sBW}, {(n%8)*16384+4096*i}", "s_nop 0", f"buffer_load_dwordx4 v{vW[i]}, s[{SWQ}:{SWQ+3}], s{sT} offen lds")
        vm.extend([f"w{n}"] * 4)

    def o_x(n):
        k(f"s_add_u32 s{sT}, s{sX}, {n*8192}", f"s_and_b32 s{sT}, s{sT}, 0x1ffff", f"s_add_u32 m0, s{sRd}, {XR+(n%4)*8192}", f"s_add_u32 s{sT}, s{sT}, s{sOo}")
        for i in range(2):
            k(f"buffer_load_dwordx4 v{vLin}, s[{SWS}:{SWS+3}], s{sT} offen offset:{1024*i} sc1 lds")
        vm.extend([f"x{n}"] * 2)
    for c in range(8):
        if c + 2 < 8:
            k(kv_dma(c + 2)); vm += [f"kv{c+2}"] * 8
        if c == 0:
            k(f"s_lshl_b32 s{sT}, s{sGW}, 12", f"s_add_u32 s{sT}, s{sT}, {XB}", f"v_mov_b64 {vr(PF4,2)}, -1", f"v_mov_b64 {vr(PF4+2,2)}, -1")
            for i in range(4):
                k(f"buffer_store_dwordx4 {vr(PF4,4)}, v{vLin}, s[{SWS}:{SWS+3}], s{sT} offen offset:{1024*i} sc1")
            vm += ["st"] * 4
        j = c - 1
        proc = 0 <= j < 6 and not OPT.get("nojob")
        if proc:
            k(wait_for(f"j{j}"))
            for f in range(4):
                for jj in range(2):
                    if j < 4:
                        k(f"ds_read_b64_tr_b16 {vr(JF[f]+2*jj,2)}, v{aJ[f]} offset:{jj*512}")
                    else:
                        k(f"ds_read_b64_tr_b16 {vr(JF[f]+2*jj,2)}, v{bJ[f>>1]} offset:{jj*512+(f&1)*8}")
            k("s_waitcnt lgkmcnt(0)")
        if c < 6 and not OPT.get("nojob"):
            if c == 4:
                k(f"s_mov_b32 s{SJ}, s28", f"s_mov_b32 s{SJ+1}, s29", f"s_mov_b32 s{SJ+2}, s{sBsz}",
                  f"s_mov_b32 s{sJo}, 0", f"s_mov_b32 s{sJa}, {16384-1024}", f"s_mov_b32 s{sJb}, {16384+3072}")
            k(f"s_mov_b32 m0, s{sWrJ}", "s_nop 0")
            for i in range(4):
                k(f"buffer_load_dwordx4 v{vJ if c < 4 else vJB}, s[{SJ}:{SJ+3}], s{sJo} offen offset:{1024*i}{' nt' if OPT.get('jnt', 0) else ''} lds",
                  f"s_add_u32 s{sJo}, s{sJo}, s{sJa if i < 3 else sJb}")
            vm += [f"j{c}"] * 4
        if proc:
            for f in range(4):
                if j < 4:
                    k(f"buffer_store_dwordx4 {vr(JF[f],4)}, v{vLin}, s[{SWS}:{SWS+3}], s{sD[f]} offen sc1",
                      f"s_add_u32 s{sD[f]}, s{sD[f]}, s{sDstep}",
                      m16(vr(CS[f], 4), vr(JF[f], 4), vr(ONES, 4), "0" if j == 0 else None))
                else:
                    k(f"buffer_store_dwordx4 {vr(JF[f],4)}, v{vLin}, s[{SWS}:{SWS+3}], s{sDB} offen offset:{1024*f} sc1")
            vm += ["st"] * 4
            if j == 4:
                k(f"s_add_u32 s{sDB}, s{sDB}, 8192")
                for f in range(4):
                    k(f"buffer_store_dwordx4 {vr(CS[f],4)}, v{vCs}, s[{SWS}:{SWS+3}], s{sCs[f]} offen sc1")
                vm += ["st"] * 4
        for n in {5: [0, 2, 3], 6: [4, 5], 7: [1, 6, 7]}.get(c, []):
            o_w(n)
        if c == 1 and OPT.get("isl", 1):
            k(f"s_branch L_isl{[n for n, b in ISL if b == 'L_f_back2'][0]}")
            k.label("L_f_back2")
        if c == 5:
            k(f"s_lshr_b32 s{sT}, s2, 3", f"s_lshl_b32 s{sT}, s{sT}, 11", f"v_and_b32 v{T0}, 255, v0", f"v_lshlrev_b32 v{T0}, 3, v{T0}",
              f"v_add_u32 v{T0}, s{sT}, v{T0}")
            k(f"s_getpc_b64 s[22:23]")
            k.label("L_f_pc2")
            k("s_add_u32 s22, s22, L_code_rest-L_f_pc2", "s_addc_u32 s23, s23, 0",
              f"v_min_u32 v{T0}, L_code_end-L_code_rest-4, v{T0}", f"global_load_dword v{PF4}, v{T0}, s[22:23]")
            vm.append("pf")
        if c == 6:
            k(f"s_and_b32 s{sT}, s{sTB}, 7", f"s_add_u32 s{sT}, s{sT}, 8", f"s_lshl_b32 s{sT}, s{sT}, 17", f"s_add_u32 s{sT}, s{sT}, s{sWo}",
              f"s_and_b32 s{sT}, s{sT}, 0x1fffff")
            for i in range(4):
                k(f"buffer_load_dwordx4 {vr(PF4,4)}, v{vW[i]}, s[{SWQ}:{SWQ+3}], s{sT} offen")
            vm.extend(["pf"] * 4)
        if c + 1 < 8:
            k(wait_for(f"kv{c+1}"))
        k("s_barrier")
    k(f"v_and_b32 v{vPo}, 31, v{L}", f"v_lshlrev_b32 v{vPo}, 7, v{vPo}", f"s_lshl_b32 s{sKo}, s{sTB}, 12", f"s_add_u32 s{sKo}, s{sKo}, {FLG}",
      f"s_mov_b32 s{sN}, {1<<20}", "s_waitcnt vmcnt(0)", "s_barrier", "s_barrier")
    o_w(8); o_w(9)
    k.label("L_f_poll2")
    k(f"s_sleep {OPT['psl']}" if OPT.get("psl") else None)
    k(f"buffer_load_dword v{PF4}, v{vPo}, s[{SWS}:{SWS+3}], s{sKo} offen sc1", "s_waitcnt vmcnt(0)", f"v_cmp_ne_u32 vcc, 1, v{PF4}",
      f"s_sub_u32 s{sN}, s{sN}, 1", "s_cbranch_scc1 L_f_polled2", "s_cbranch_vccnz L_f_poll2")
    k.label("L_f_polled2")
    for n in range(2, 6):
        o_x(n)
    k(wait_for("x2"), "s_barrier")
    for n in range(2, 15):
        if n >= 3:
            if n + 3 < 16:
                o_x(n + 3)
            if n + 7 < 16:
                o_w(n + 7)
        k(wait_for(f"x{n+1}"), "s_barrier")
    hop(k, sW)
    k.label("L_k1_slow")
    C = [S[2], S[3]]
    ldK = [f"buffer_load_dwordx4 {vr(KB[0]+4*m,4)}, v{vLin}, s[{SKV}:{SKV+3}], s{sKo} offen offset:{1024*m} sc1" for m in range(2)]
    ldV = [f"buffer_load_dwordx4 {vr(VB[0]+4*m,4)}, v{vLin}, s[{SKV}:{SKV+3}], s{sKo} offen offset:{2048+1024*m} sc1" for m in range(2)]
    k(f"v_mov_b32 v{T0}, 0xff800000", f"v_mov_b32 v{T1}, 0xff800000", f"s_mov_b32 s{sKo}, 0")
    k.label("L_k1_s1")
    k(ldK, "s_waitcnt vmcnt(0)", qk(0), qk(1), "s_nop 15")
    for q in range(2):
        for i in range(0, 16, 2):
            k(f"v_max3_f32 v{[T0,T1][q]}, v{S[q]+i}, v{S[q]+i+1}, v{[T0,T1][q]}")
    k(f"s_add_u32 s{sKo}, s{sKo}, 4096", f"s_cmp_lt_u32 s{sKo}, 262144", "s_cbranch_scc1 L_k1_s1")
    for q in range(2):
        t = [T0, T1][q]
        k(f"v_mov_b32 v{T2}, v{t}", "s_nop 1", f"v_permlane32_swap_b32 v{t}, v{T2}", "s_nop 1", f"v_max_f32 v{t}, v{t}, v{T2}")
        for i in range(16):
            k(f"v_sub_f32 v{C[q]+i}, 0, v{t}", f"v_mov_b32 v{O[q]+i}, 0")
        for i in range(4):
            k(f"v_mov_b32 v{LS[q]+i}, 0")
    k(f"s_mov_b32 s{sKo}, 0")
    k.label("L_k1_s2")
    k(ldK, ldV, "s_waitcnt vmcnt(0)", qk(0, vr(C[0], 16)), qk(1, vr(C[1], 16)), "s_nop 15")
    for q in range(2):
        for i in range(16):
            k(f"v_exp_f32 v{S[q]+i}, v{S[q]+i}")
    k("s_nop 1", pv(0), sm(0), pv(1), sm(1))
    k(f"s_add_u32 s{sKo}, s{sKo}, 4096", f"s_cmp_lt_u32 s{sKo}, 262144", "s_cbranch_scc1 L_k1_s2")
    k("s_nop 15", "s_nop 7", "s_branch L_k1_out")
    return k


def k_gemm(name, kidx, K, tok_region, w_region, is_down):
    D = OPT.get("gd", 4)
    STG, NS = 24576, D + 2
    N = K // 64
    k = Kern(name, 256, 512, STG * NS)
    SWS, ST_, SW_, SR, SO = 4, 8, 12, 16, 20
    sW, sTB, sNB, sN, sT, sT2, sRd, sWr, sTo, sWo, sTH, sCH, sRes, sDW = range(28, 42)
    v = Alloc(1)
    L, G, TOK, T0, T1, vLin, bT, bW, aT, aW, vRow = [v() for _ in range(11)]
    F = [[dict(X=[v(4, 4) for _ in range(2)], W=[v(4, 4) for _ in range(4)]) for s in range(2)] for _ in range(2)]
    acc = [[v(4, 4) for i in range(2)] for t in range(4)]
    RES = [[v(4, 4) for b in range(2)] for i in range(2)]
    k.vgpr = k.acc = (v.n + 7) // 8 * 8
    head(k)
    k(f"s_load_dwordx2 s[{SWS}:{SWS+1}], s[0:1], {A_WS}",
      f"s_load_dwordx2 s[{SO}:{SO+1}], s[0:1], {A_OUT if is_down else A_X}")
    k(f"v_lshrrev_b32 v{T1}, 6, v0", f"v_and_b32 v{L}, 63, v0", f"v_readfirstlane_b32 s{sW}, v{T1}", f"v_lshlrev_b32 v{vLin}, 4, v{L}")
    ids_8x4(k, sNB, sTB, sT)
    k(f"s_cmp_lt_u32 s{sW}, 4", f"s_cbranch_scc1 L_{name}_comp")
    k(f"s_and_b32 s{sW}, s{sW}, 3",
      f"s_lshl_b32 s{sTo}, s{sW}, 11", f"s_lshl_b32 s{sWo}, s{sW}, 12", f"s_mov_b32 s{sWr}, s{sTo}",
      f"s_add_u32 s{sDW}, s{sTo}, 8192")
    rot = K == 1024 and OPT.get("rot2", 0)
    if rot:
        k(f"s_lshl_b32 s{sT}, s{sNB}, 1", f"s_add_u32 s{sT}, s{sT}, s{sTB}", f"s_and_b32 s{sT}, s{sT}, 7",
          f"s_lshl_b32 s{sT2}, s{sT}, 14", f"s_add_u32 s{sTo}, s{sTo}, s{sT2}", f"s_lshl_b32 s{sT2}, s{sT}, 15", f"s_add_u32 s{sWo}, s{sWo}, s{sT2}")
    k(f"s_mul_i32 s{sT}, s{sTB}, {K*128}", f"s_add_u32 s{sT}, s{sT}, {tok_region}",
      f"s_mul_i32 s{sT2}, s{sNB}, {K*256}", f"s_add_u32 s{sT2}, s{sT2}, {w_region}")
    k("s_waitcnt lgkmcnt(0)", ws_shift(SWS))
    k(srd_from(ST_, SWS, f"s{sT}", K * 128), srd_from(SW_, SWS, f"s{sT2}", K * 256))

    def dma_stage():
        o = [f"s_mov_b32 m0, s{sWr}", "s_nop 0"]
        for i in range(2):
            o.append(f"buffer_load_dwordx4 v{vLin}, s[{ST_}:{ST_+3}], s{sTo} offen offset:{1024*i} lds")
        o += [f"s_add_u32 m0, s{sWr}, s{sDW}", f"s_add_u32 s{sTo}, s{sTo}, 8192"]
        for i in range(4):
            o.append(f"buffer_load_dwordx4 v{vLin}, s[{SW_}:{SW_+3}], s{sWo} offen offset:{1024*i} lds")
        o += [f"s_add_u32 s{sWo}, s{sWo}, 16384", f"s_add_u32 s{sWr}, s{sWr}, {STG}", f"s_cmp_ge_u32 s{sWr}, {STG*NS}",
              f"s_cselect_b32 s{sT}, {STG*NS}, 0", f"s_sub_u32 s{sWr}, s{sWr}, s{sT}"]
        if rot:
            o += [f"s_and_b32 s{sTo}, s{sTo}, {K*128-1}", f"s_and_b32 s{sWo}, s{sWo}, {K*256-1}"]
        return o
    k(f"s_mov_b32 s{sN}, {N}")
    k.label(f"L_{name}_ld")
    k(dma_stage())
    k(f"s_sub_u32 s{sN}, s{sN}, 1", f"s_cmp_lg_u32 s{sN}, 0")
    k(f"s_waitcnt vmcnt({6*D})", "s_barrier", f"s_cbranch_scc1 L_{name}_ld")
    for d in range(D - 1, -1, -1):
        k(f"s_waitcnt vmcnt({6*d})", "s_barrier")
    if is_down:
        k("s_endpgm")
    else:
        hop(k, sW)
    k.label(f"L_{name}_comp")
    k(f"s_and_b32 s{sTH}, s{sW}, 1", f"s_lshr_b32 s{sCH}, s{sW}, 1")
    k(f"v_lshrrev_b32 v{G}, 4, v{L}", f"v_and_b32 v{TOK}, 15, v{L}",
      f"v_lshlrev_b32 v{T0}, 11, v{TOK}", f"v_lshl_add_u32 v{T0}, v{G}, 4, v{T0}",
      f"s_lshl_b32 s{sN}, s{sTB}, 1", f"s_add_u32 s{sN}, s{sN}, s{sTH}", f"s_lshl_b32 s{sN}, s{sN}, 16",
      f"s_lshl_b32 s{sRes}, s{sNB}, 1", f"s_add_u32 s{sRes}, s{sRes}, s{sCH}", f"s_lshl_b32 s{sRd}, s{sRes}, 7",
      f"s_add_u32 s{sN}, s{sN}, s{sRd}", f"v_add_u32 v{vRow}, s{sN}, v{T0}")
    k(f"s_lshl_b32 s{sRes}, s{sRes}, 13", f"s_lshl_b32 s{sN}, s{sTB}, 17", f"s_add_u32 s{sRes}, s{sRes}, s{sN}",
      f"s_lshl_b32 s{sN}, s{sTH}, 11", f"s_add_u32 s{sRes}, s{sRes}, s{sN}", f"s_add_u32 s{sRes}, s{sRes}, {HF}")
    k(f"s_lshl_b32 s{sT}, s{sTH}, 11", f"v_add_u32 v{bT}, s{sT}, v{vLin}",
      f"s_lshl_b32 s{sT}, s{sCH}, 12", f"s_add_u32 s{sT}, s{sT}, 8192", f"v_add_u32 v{bW}, s{sT}, v{vLin}",
      f"v_mov_b32 v{aT}, v{bT}", f"v_mov_b32 v{aW}, v{bW}")
    k("s_waitcnt lgkmcnt(0)", ws_shift(SWS))
    k(srd_tail(SWS, WS_SZ), srd_tail(SO, 4 * MB))
    for _ in range(NS - 2):
        k("s_barrier")
    k(f"s_add_u32 s{sT2}, s{sRes}, 4096", f"s_mov_b32 s{sN}, 32768")
    for i in range(2):
        for b in range(2):
            if is_down:
                k(f"buffer_load_dwordx4 {vr(RES[i][b],4)}, v{vLin}, s[{SWS}:{SWS+3}], s{[sRes,sT2][b]} offen offset:{1024*i}")
            else:
                k(f"buffer_load_dwordx4 {vr(RES[i][b],4)}, v{vRow}, s[{SO}:{SO+3}], {['0', f's{sN}'][i]} offen offset:{64*b}{' nt' if OPT.get('jnt', 0) else ''}")
    for t in range(4):
        for i in range(2):
            for r in range(4):
                k(f"v_mov_b32 v{acc[t][i]+r}, 0")

    def reads(f):
        o = []
        for s in range(2):
            o += [f"ds_read_b128 {vr(F[f][s]['X'][i],4)}, v{aT} offset:{s*4096+i*1024}" for i in range(2)]
            o += [f"ds_read_b128 {vr(F[f][s]['W'][t],4)}, v{aW} offset:{s*8192+t*1024}" for t in range(4)]
        return o

    def mfmas(f):
        return [m16(vr(acc[t][i ^ (t & 1)], 4), vr(F[f][s]["W"][t], 4), vr(F[f][s]["X"][i ^ (t & 1)], 4))
                for t in range(4) for i in range(2) for s in range(2)]
    adv = [[f"s_add_u32 s{sRd}, s{sRd}, {STG}", f"s_cmp_eq_u32 s{sRd}, {STG*NS}"], [f"s_cselect_b32 s{sRd}, 0, s{sRd}"],
           [f"v_add_u32 v{aT}, s{sRd}, v{bT}", f"v_add_u32 v{aW}, s{sRd}, v{bW}"]]
    k(f"s_mov_b32 s{sRd}, 0", f"s_mov_b32 s{sN}, {N//2-1}")
    k("s_barrier")
    mid_stamp(k, 0)
    k(reads(0), adv, "s_waitcnt lgkmcnt(0)")
    k(".p2align 6")
    k.label(f"L_{name}_loop")
    for f in range(2):
        k("s_barrier")
        m = weave(mfmas(f), reads(1 - f), 0, 9)
        tl = adv + ([[f"s_sub_u32 s{sN}, s{sN}, 1", f"s_cmp_lg_u32 s{sN}, 0"]] if f == 1 else [])
        k(weave(m, tl, len(m) - 6, len(m) - 1))
        k("s_waitcnt lgkmcnt(0)")
    k(f"s_cbranch_scc1 L_{name}_loop")
    k("s_barrier")
    k(weave(mfmas(0), reads(1), 0, 9), "s_waitcnt lgkmcnt(0)", mfmas(1))
    mid_stamp(k, 1)
    k("s_waitcnt vmcnt(0)", f"s_mov_b32 s{sN}, 32768", "s_nop 5")
    SUM = F[0][0]["X"]
    U = F[0][0]["W"][0]
    for i in range(2):
        if not is_down:
            k(f"v_mov_b32 v{SUM[i]}, 0", f"v_mov_b32 v{SUM[i]+1}, 0")
        for b in range(2):
            o = F[0][1]["W"][2 * i + b]
            for jt in range(2):
                a = acc[2 * b + jt][i]
                for h in range(2):
                    r = RES[i][b] + 2 * jt + h
                    k(f"v_lshlrev_b32 v{U}, 16, v{r}", f"v_and_b32 v{U+1}, 0xffff0000, v{r}",
                      f"v_add_f32 v{a+2*h}, v{a+2*h}, v{U}", f"v_add_f32 v{a+2*h+1}, v{a+2*h+1}, v{U+1}",
                      f"v_cvt_pk_bf16_f32 v{o+2*jt+h}, v{a+2*h}, v{a+2*h+1}")
            if is_down:
                k(f"buffer_store_dwordx4 {vr(o,4)}, v{vRow}, s[{SO}:{SO+3}], {['0', f's{sN}'][i]} offen offset:{64*b} sc1")
            else:
                k(f"buffer_store_dwordx4 {vr(o,4)}, v{vLin}, s[{SWS}:{SWS+3}], s{[sRes,sT2][b]} offen offset:{1024*i} sc1")
    if not is_down:
        for t in range(4):
            for r in range(4):
                for i in range(2):
                    a = acc[t][i] + r
                    k(f"v_add_f32 v{SUM[i]}, v{SUM[i]}, v{a}", f"v_fmac_f32 v{SUM[i]+1}, v{a}, v{a}")
        k("s_nop 1", f"v_permlane32_swap_b32 v{SUM[0]}, v{SUM[0]+1}", f"v_permlane32_swap_b32 v{SUM[1]}, v{SUM[1]+1}", "s_nop 0",
          f"v_add_f32 v{SUM[0]}, v{SUM[0]}, v{SUM[0]+1}", f"v_add_f32 v{SUM[1]}, v{SUM[1]}, v{SUM[1]+1}",
          f"v_lshlrev_b32 v{T0}, 2, v{L}", "s_nop 0",
          f"v_permlane16_swap_b32 v{SUM[0]}, v{SUM[1]}",
          f"s_lshl_b32 s{sT}, s{sTB}, 1", f"s_add_u32 s{sT}, s{sT}, s{sTH}", f"s_lshl_b32 s{sT}, s{sT}, 12",
          f"v_add_f32 v{SUM[0]}, v{SUM[0]}, v{SUM[1]}",
          f"s_lshl_b32 s{sT2}, s{sNB}, 1", f"s_add_u32 s{sT2}, s{sT2}, s{sCH}", f"s_lshl_b32 s{sT2}, s{sT2}, 8",
          f"s_add_u32 s{sT}, s{sT}, s{sT2}", f"s_add_u32 s{sT}, s{sT}, {STP}",
          f"buffer_store_dword v{SUM[0]}, v{T0}, s[{SWS}:{SWS+3}], s{sT} offen sc1")
    tail(k, kidx, sW)
    return k


def k4_down(kidx):
    name, K = "down_kernel", 3584
    D = OPT.get("dd", 2)
    N1 = OPT.get("n1", 25)
    N2 = 56 - 2 * N1
    STG, NS = 32768, D + 2
    k = Kern(name, 256, 512, STG * NS)
    SWS, ST_, SW_, SO = 4, 8, 12, 20
    sW, sTB, sNB, sN, sT, sT2, sRd, sWr, sTo, sWo, sTH, sCH, sRes, sDW, sKH, sX0, sX1 = range(28, 45)
    v = Alloc(1)
    L, G, TOK, T0, T1, vLin, bT, bW, aT, aW, vRow = [v() for _ in range(11)]
    F = [[dict(X=[v(4, 4) for _ in range(4)], W=[v(4, 4) for _ in range(4)]) for s in range(2)] for _ in range(2)]
    acc = [[v(4, 4) for i in range(4)] for t in range(4)]
    RES = [[v(4, 4) for b in range(2)] for i in range(2)]
    RCV = [[acc[2 * b][2 + i] for b in range(2)] for i in range(2)]
    k.vgpr = k.acc = (v.n + 7) // 8 * 8
    head(k)
    k(f"s_load_dwordx2 s[{SWS}:{SWS+1}], s[0:1], {A_WS}", f"s_load_dwordx2 s[{SO}:{SO+1}], s[0:1], {A_OUT}")
    k(f"v_lshrrev_b32 v{T1}, 6, v0", f"v_and_b32 v{L}, 63, v0", f"v_readfirstlane_b32 s{sW}, v{T1}", f"v_lshlrev_b32 v{vLin}, 4, v{L}")
    ids_8x4(k, sNB, sTB, sT)
    if OPT.get("dmap", 1):
        k(f"s_and_b32 s{sT}, s{sTB}, 7", f"s_lshl_b32 s{sT}, s{sT}, 1", f"s_bfe_u32 s{sT2}, s{sTB}, 0x10003",
          f"s_and_b32 s{sTB}, s{sTB}, 16", f"s_add_u32 s{sTB}, s{sTB}, s{sT}", f"s_add_u32 s{sTB}, s{sTB}, s{sT2}")
    k(f"s_cmp_lt_u32 s{sW}, 4", f"s_cbranch_scc1 L_{name}_comp")
    vOwn, vPar = bT, bW
    k(f"s_and_b32 s{sW}, s{sW}, 3", f"s_and_b32 s{sKH}, s{sTB}, 1",
      f"s_lshl_b32 s{sWr}, s{sW}, 11", f"s_add_u32 s{sDW}, s{sWr}, 8192",
      f"s_mul_i32 s{sTo}, s{sKH}, {N1*8192}", f"s_add_u32 s{sTo}, s{sTo}, s{sWr}", f"s_lshl_b32 s{sWo}, s{sTo}, 1",
      f"s_mul_i32 s{sT}, s{sKH}, {K*128}", f"v_add_u32 v{vOwn}, s{sT}, v{vLin}", f"s_sub_u32 s{sT}, {K*128}, s{sT}", f"v_add_u32 v{vPar}, s{sT}, v{vLin}",
      f"s_lshr_b32 s{sT}, s{sTB}, 1", f"s_mul_i32 s{sT}, s{sT}, {K*256}", f"s_add_u32 s{sT}, s{sT}, {AF}",
      f"s_mul_i32 s{sT2}, s{sNB}, {K*256}", f"s_add_u32 s{sT2}, s{sT2}, {WDF}")
    k("s_waitcnt lgkmcnt(0)", ws_shift(SWS))
    k(srd_from(ST_, SWS, f"s{sT}", K * 256), srd_from(SW_, SWS, f"s{sT2}", K * 256))

    def dma_stage(full):
        o = [f"s_mov_b32 m0, s{sWr}", "s_nop 0"]
        o += [f"buffer_load_dwordx4 v{vOwn}, s[{ST_}:{ST_+3}], s{sTo} offen offset:{1024*i} lds" for i in range(2)]
        if full:
            o += [f"s_add_u32 m0, s{sWr}, 24576", "s_nop 0"]
            o += [f"buffer_load_dwordx4 v{vPar}, s[{ST_}:{ST_+3}], s{sTo} offen offset:{1024*i} lds" for i in range(2)]
        o += [f"s_add_u32 m0, s{sWr}, s{sDW}", f"s_add_u32 s{sTo}, s{sTo}, 8192"]
        o += [f"buffer_load_dwordx4 v{vLin}, s[{SW_}:{SW_+3}], s{sWo} offen offset:{1024*i} lds" for i in range(4)]
        o += [f"s_add_u32 s{sWo}, s{sWo}, 16384", f"s_add_u32 s{sWr}, s{sWr}, {STG}", f"s_cmp_ge_u32 s{sWr}, {STG*NS}",
              f"s_cselect_b32 s{sT}, {STG*NS}, 0", f"s_sub_u32 s{sWr}, s{sWr}, s{sT}"]
        return o
    k(f"s_mov_b32 s{sN}, {N1}")
    k.label(f"L_{name}_ld")
    k(dma_stage(True))
    k(f"s_sub_u32 s{sN}, s{sN}, 1", f"s_cmp_lg_u32 s{sN}, 0")
    k(f"s_waitcnt vmcnt({8*D})", "s_barrier", f"s_cbranch_scc1 L_{name}_ld")
    k(f"s_lshl_b32 s{sTo}, s{sW}, 11", f"s_add_u32 s{sTo}, s{sTo}, {2*N1*8192}", f"s_lshl_b32 s{sWo}, s{sTo}, 1")
    cnt = lambda n: 8 if n < N1 else (6 if n < N1 + N2 else 0)
    for n in range(N1, N1 + N2 + D):
        if n < N1 + N2:
            k(dma_stage(False))
        k(f"s_waitcnt vmcnt({sum(cnt(m) for m in range(n-D+1, n+1))})", "s_barrier")
    k("s_endpgm")
    k.label(f"L_{name}_comp")
    k(f"s_and_b32 s{sTH}, s{sW}, 1", f"s_lshr_b32 s{sCH}, s{sW}, 1")
    k(f"v_lshrrev_b32 v{G}, 4, v{L}", f"v_and_b32 v{TOK}, 15, v{L}",
      f"v_lshlrev_b32 v{T0}, 11, v{TOK}", f"v_lshl_add_u32 v{T0}, v{G}, 4, v{T0}",
      f"s_lshl_b32 s{sN}, s{sTB}, 1", f"s_add_u32 s{sN}, s{sN}, s{sTH}", f"s_lshl_b32 s{sN}, s{sN}, 16",
      f"s_lshl_b32 s{sRes}, s{sNB}, 1", f"s_add_u32 s{sRes}, s{sRes}, s{sCH}", f"s_lshl_b32 s{sRd}, s{sRes}, 7",
      f"s_add_u32 s{sN}, s{sN}, s{sRd}", f"v_add_u32 v{vRow}, s{sN}, v{T0}")
    k(f"s_lshl_b32 s{sRes}, s{sRes}, 13", f"s_lshl_b32 s{sN}, s{sTB}, 17", f"s_add_u32 s{sRes}, s{sRes}, s{sN}",
      f"s_lshl_b32 s{sN}, s{sTH}, 11", f"s_add_u32 s{sRes}, s{sRes}, s{sN}",
      f"s_xor_b32 s{sX0}, s{sRes}, {1<<17}", f"s_add_u32 s{sX0}, s{sX0}, {XB}", f"s_add_u32 s{sX1}, s{sX0}, 4096")
    k(f"s_lshl_b32 s{sT}, s{sTH}, 11", f"v_add_u32 v{bT}, s{sT}, v{vLin}",
      f"s_lshl_b32 s{sT}, s{sCH}, 12", f"s_add_u32 s{sT}, s{sT}, 8192", f"v_add_u32 v{bW}, s{sT}, v{vLin}",
      f"v_mov_b32 v{aT}, v{bT}", f"v_mov_b32 v{aW}, v{bW}")
    k("s_waitcnt lgkmcnt(0)", ws_shift(SWS))
    k(srd_tail(SWS, WS_SZ), srd_tail(SO, 4 * MB))
    for _ in range(D):
        k("s_barrier")
    for i in range(acc[0][0], acc[0][0] + 64, 2):
        k(f"v_mov_b64 {vr(i,2)}, 0")

    def reads(f, full):
        o = []
        for s in range(2):
            o += [f"ds_read_b128 {vr(F[f][s]['X'][i],4)}, v{aT} offset:{(i>>1)*24576+s*4096+(i&1)*1024}" for i in range(4 if full else 2)]
            o += [f"ds_read_b128 {vr(F[f][s]['W'][t],4)}, v{aW} offset:{s*8192+t*1024}" for t in range(4)]
        return o

    def mfmas(f, tiles):
        return [m16(vr(acc[t][i], 4), vr(F[f][s]["W"][t], 4), vr(F[f][s]["X"][i], 4))
                for t in range(4) for i in (tiles if t % 2 == 0 else tiles[::-1]) for s in range(2)]
    adv = [[f"s_add_u32 s{sRd}, s{sRd}, {STG}", f"s_cmp_eq_u32 s{sRd}, {STG*NS}"], [f"s_cselect_b32 s{sRd}, 0, s{sRd}"],
           [f"v_add_u32 v{aT}, s{sRd}, v{bT}", f"v_add_u32 v{aW}, s{sRd}, v{bW}"]]
    ALL, OWN, PAR = [0, 1, 2, 3], [0, 1], [2, 3]
    k(f"s_mov_b32 s{sRd}, 0", f"s_mov_b32 s{sN}, {(N1-1)//2}")
    k("s_barrier")
    mid_stamp(k, 0)
    k(reads(0, True), adv, "s_waitcnt lgkmcnt(0)")

    def step(f, extra):
        k("s_barrier")
        m = weave(mfmas(f, ALL), reads(1 - f, True), 0, 18)
        k(weave(m, adv + extra, len(m) - 8, len(m) - 1), "s_waitcnt lgkmcnt(0)")
    k(".p2align 6")
    k.label(f"L_{name}_loop")
    step(0, [])
    step(1, [[f"s_sub_u32 s{sN}, s{sN}, 1", f"s_cmp_lg_u32 s{sN}, 0"]])
    k(f"s_cbranch_scc1 L_{name}_loop")
    f = 0
    if (N1 - 1) % 2:
        step(0, [])
        f = 1
    snd = []
    for b in range(2):
        for i in range(2):
            o = F[1 - f][b]["X"][2 + i]
            for jt in range(2):
                a = acc[2 * b + jt][2 + i]
                snd += [[f"v_cvt_pk_bf16_f32 v{o+2*jt}, v{a}, v{a+1}", f"v_cvt_pk_bf16_f32 v{o+2*jt+1}, v{a+2}, v{a+3}"]]
            snd += [[f"v_min_u32 v{o+r}, -2, v{o+r}" for r in (0, 1)], [f"v_min_u32 v{o+r}, -2, v{o+r}" for r in (2, 3)] +
                    [f"buffer_store_dwordx4 {vr(o,4)}, v{vLin}, s[{SWS}:{SWS+3}], s{[sX0,sX1][b]} offen offset:{1024*i} sc1"]]
    k("s_barrier")
    k(weave(weave(mfmas(f, PAR), reads(1 - f, False), 0, 10), adv, 22, 27), weave(mfmas(f, OWN), snd, 0, 16), "s_waitcnt lgkmcnt(0)")
    f = 1 - f
    res = [f"buffer_load_dwordx4 {vr(RES[i][b],4)}, v{vLin}, s[{SWS}:{SWS+3}], s{[sT,sT2][b]} offen offset:{1024*i}" for i in range(2) for b in range(2)]
    rcv = [f"buffer_load_dwordx4 {vr(RCV[i][b],4)}, v{vLin}, s[{SWS}:{SWS+3}], s{[sX0,sX1][b]} offen offset:{1024*i} sc1" for i in range(2) for b in range(2)]
    rstep = N1 + N2 - OPT.get("rl", 2)
    for n in range(N1 + 1, N1 + N2):
        k("s_barrier")
        m = weave(mfmas(f, OWN), reads(1 - f, False), 0, 9)
        ex = list(adv) if n < N1 + N2 - 1 else []
        if n == N1 + 1:
            ex += [[f"s_add_u32 s{sT}, s{sRes}, {HF}", f"s_add_u32 s{sT2}, s{sRes}, {HF+4096}",
                    f"s_add_u32 s{sX0}, s{sRes}, {XB}", f"s_add_u32 s{sX1}, s{sRes}, {XB+4096}"], res]
        if n == rstep:
            ex += [rcv]
        k(weave(m, ex, len(m) - 6, len(m)) if ex else m, "s_waitcnt lgkmcnt(0)")
        f = 1 - f
    if rstep >= N1 + N2:
        k(rcv)
    k(mfmas(f, OWN))
    mid_stamp(k, 1)
    k(f"s_mov_b32 s{sN}, {1<<20}")
    k.label(f"L_{name}_chk")
    k("s_waitcnt vmcnt(0)")
    rr = [RCV[i][b] + r for i in range(2) for b in range(2) for r in range(4)]
    k(f"v_max3_u32 v{T0}, v{rr[0]}, v{rr[1]}, v{rr[2]}", f"v_max3_u32 v{T1}, v{rr[3]}, v{rr[4]}, v{rr[5]}")
    for j in range(6, 16, 2):
        t = [T0, T1][(j // 2) & 1]
        k(f"v_max3_u32 v{t}, v{rr[j]}, v{rr[j+1]}, v{t}")
    k(f"v_max_u32 v{T0}, v{T0}, v{T1}", f"v_cmp_eq_u32 vcc, -1, v{T0}", f"s_sub_u32 s{sN}, s{sN}, 1", f"s_cbranch_scc1 L_{name}_out",
      f"s_cbranch_vccz L_{name}_out", "s_sleep 2", rcv, f"s_branch L_{name}_chk")
    k.label(f"L_{name}_out")
    k(f"s_mov_b32 s{sN}, 32768")
    U = F[0][0]["W"][0]
    for i in range(2):
        for b in range(2):
            o = F[0][1]["W"][2 * i + b]
            for jt in range(2):
                a = acc[2 * b + jt][i]
                for h in range(2):
                    r, q = RES[i][b] + 2 * jt + h, RCV[i][b] + 2 * jt + h
                    k(f"v_lshlrev_b32 v{U}, 16, v{q}", f"v_and_b32 v{U+1}, 0xffff0000, v{q}",
                      f"v_lshlrev_b32 v{U+2}, 16, v{r}", f"v_and_b32 v{U+3}, 0xffff0000, v{r}",
                      f"v_pk_add_f32 {vr(a+2*h,2)}, {vr(a+2*h,2)}, {vr(U,2)}", f"v_pk_add_f32 {vr(a+2*h,2)}, {vr(a+2*h,2)}, {vr(U+2,2)}",
                      f"v_cvt_pk_bf16_f32 v{o+2*jt+h}, v{a+2*h}, v{a+2*h+1}")
            k(f"buffer_store_dwordx4 {vr(o,4)}, v{vRow}, s[{SO}:{SO+3}], {['0', f's{sN}'][i]} offen offset:{64*b} sc1")
    tail(k, kidx, sW)
    return k


class Op:
    def __init__(self, text, kind="v", needs=(), bar=False):
        self.text, self.kind, self.needs, self.bar = text, kind, list(needs), bar
        self.seq = None

    @property
    def cost(self):
        return 8 if self.kind == "t" else 4


def emit_stream(k, ops, nl=0, nv=0):
    cnt = {"lds": nl, "vm": nv}
    done = {"lds": 0, "vm": 0}
    for o in ops:
        if o.kind in cnt:
            cnt[o.kind] += 1
            o.seq = cnt[o.kind]
            k(o.text)
        elif o.kind == "wait":
            parts = []
            for kind, nm, mx in (("vm", "vmcnt", 63), ("lds", "lgkmcnt", 15)):
                need = [x.seq for x in o.needs if x.kind == kind]
                assert None not in need, "wait on an op that was not issued yet"
                tgt = cnt[kind] if (o.bar and kind == "lds") else max(need, default=0)
                if tgt > done[kind]:
                    n = cnt[kind] - tgt
                    assert n <= mx or kind == "vm"
                    parts.append(f"{nm}({min(n, mx)})")
                    done[kind] = tgt
            if parts:
                k("s_waitcnt " + " ".join(parts))
            if o.bar:
                k("s_barrier")
        else:
            k(o.text)
    return cnt


def k3_gateup():
    STG, NS = 28672, 5
    TBL = NS * STG
    k = Kern("gateup_kernel", 256, 256, TBL + 1024 + 2048)
    SWS, ST_, SW_ = 4, 8, 12
    sW, sMB, sFB, sN, sT, sT2, sTo, sWo, sWr, sTB, sA0, sA1, sSt, sCp = range(28, 42)
    v = Alloc(1)
    vLin, vR1, vR2, vCs, vSt, vTid, vOut = [v() for _ in range(7)]
    PA = [v(2, 2) for _ in range(4)]
    SD = [v(2, 2) for _ in range(2)]
    TA, TB_, TC = v(4, 4), v(4, 4), v(4, 4)
    assert v.n <= 32, v.n
    acc = [[32 + (a * 4 + b) * 4 for b in range(4)] for a in range(14)]
    TK = [[[32 * n + 16 * s + 4 * b for b in range(4)] for s in range(2)] for n in range(NS)]
    WF = [[160 + 8 * n + 4 * s for s in range(2)] for n in range(4)]
    SP, CP = 192, 224
    k.vgpr, k.acc = 256 + 232, 256
    head(k)
    k(f"s_load_dwordx2 s[{SWS}:{SWS+1}], s[0:1], {A_WS}")
    k(f"v_lshrrev_b32 v{TA}, 6, v0", f"v_and_b32 v{TA+1}, 63, v0", f"v_readfirstlane_b32 s{sW}, v{TA}", f"v_lshlrev_b32 v{vLin}, 4, v{TA+1}")
    k(f"s_lshr_b32 s{sT}, s2, 3", f"s_lshr_b32 s{sMB}, s{sT}, 2", f"s_and_b32 s{sT}, s{sT}, 3",
      f"s_and_b32 s{sFB}, s2, 7", f"s_lshl_b32 s{sFB}, s{sFB}, 2", f"s_add_u32 s{sFB}, s{sFB}, s{sT}",
      f"s_lshl_b32 s{sTB}, s{sMB}, 2", f"s_add_u32 s{sTB}, s{sTB}, s{sW}",
      f"s_lshl_b32 s{sT}, s{sTB}, 17", f"s_add_u32 s{sT}, s{sT}, {HF}",
      f"s_mul_i32 s{sT2}, s{sFB}, {32*14*1024}", f"s_add_u32 s{sT2}, s{sT2}, {WGU}",
      f"s_mul_i32 s{sWo}, s{sW}, 7168", f"s_mov_b32 s{sWr}, s{sWo}", f"s_mov_b32 s{sTo}, 0")
    k("s_waitcnt lgkmcnt(0)", ws_shift(SWS))
    k(srd_from(ST_, SWS, f"s{sT}", 131072), srd_from(SW_, SWS, f"s{sT2}", 32 * 14 * 1024))

    def vm_stage(n):
        o = []
        for i in range(7):
            pre, post = [], []
            if i % 4 == 0:
                pre = [f"s_add_u32 m0, s{sWr}, {(n%NS)*STG+1024*i}"]
            if i == 3:
                post = [f"s_add_u32 s{sWo}, s{sWo}, 4096"]
            if i == 6:
                post = [f"s_add_u32 s{sWo}, s{sWo}, {STG-4096}"]
            o.append((pre, Op(f"buffer_load_dwordx4 v{vLin}, s[{SW_}:{SW_+3}], s{sWo} offen offset:{1024*(i%4)} lds", "vm"), post, n))
        for s in range(2):
            for b in range(4):
                post = [f"s_add_u32 s{sTo}, s{sTo}, 4096"] if b == 3 else []
                o.append(([], Op(f"buffer_load_dwordx4 {ar(TK[n%NS][s][b],4)}, v{vLin}, s[{ST_}:{ST_+3}], s{sTo} offen offset:{1024*b}", "vm"), post, n))
        return o
    VM = [vm_stage(n) for n in range(16)]
    stat_ld = [([], Op(f"buffer_load_dwordx4 {ar(SP+4*i,4)}, v{vLin}, s[{SWS}:{SWS+3}], s{sSt} offen offset:{1024*(i%4)}", "vm"),
                [f"s_add_u32 s{sSt}, s{sSt}, 4096"] if i == 3 else [], None) for i in range(8)]
    cs_ld = [([], Op(f"buffer_load_dword {ar(CP+p)}, v{vTid}, s[{SWS}:{SWS+3}], s{sCp} offen", "vm"),
              [f"s_add_u32 s{sCp}, s{sCp}, {32*896}"], None) for p in range(8)]
    pro = []
    for n in range(2):
        for pre, ld, post, _ in VM[n]:
            pro += [Op(x, "s") for x in pre] + ([Op("s_nop 0", "s")] if pre else []) + [ld] + [Op(x, "s") for x in post]
        if n == 0:
            pro.append(Op("s_barrier", "s"))
    misc = srd_tail(SWS, WS_SZ) + [
        f"s_lshl_b32 s{sSt}, s{sTB}, 13", f"s_add_u32 s{sSt}, s{sSt}, {STP}",
        f"s_mul_i32 s{sCp}, s{sFB}, 896", f"s_add_u32 s{sCp}, s{sCp}, {CSP}",
        f"v_add_u32 v{vR1}, {2*STG}, v{vLin}", f"v_add_u32 v{vR2}, {4*STG}, v{vLin}",
        f"v_lshlrev_b32 v{vTid}, 2, v0",
        f"v_lshrrev_b32 v{TA}, 4, v{TA+1}", f"v_lshlrev_b32 v{vCs}, 4, v{TA}", f"v_add_u32 v{vCs}, {TBL}, v{vCs}",
        f"v_and_b32 v{TA+2}, 1, v{TA}", f"v_lshlrev_b32 v{TA+2}, 10, v{TA+2}", f"v_lshrrev_b32 v{TA}, 1, v{TA}",
        f"v_lshl_add_u32 v{TA+2}, v{TA}, 8, v{TA+2}", f"v_and_b32 v{TA+1}, 15, v{TA+1}", f"v_lshl_add_u32 v{vOut}, v{TA+1}, 4, v{TA+2}",
        f"s_lshl_b32 s{sT}, s{sW}, 9", f"s_add_u32 s{sT}, s{sT}, {TBL+1024}", f"v_lshl_add_u32 v{vSt}, v{TA+1}, 2, s{sT}",
        f"s_mul_i32 s{sT}, s{sTB}, {112*4096}", f"s_add_u32 s{sT}, s{sT}, {AF}", f"s_mul_i32 s{sT2}, s{sFB}, 7",
        f"s_lshr_b32 s{sA0}, s{sT2}, 1", f"s_lshl_b32 s{sA0}, s{sA0}, 12", f"s_add_u32 s{sA0}, s{sA0}, s{sT}",
        f"s_and_b32 s{sT2}, s{sT2}, 1", f"s_lshl_b32 s{sT}, s{sT2}, 9", f"s_add_u32 s{sA0}, s{sA0}, s{sT}",
        f"s_cmp_eq_u32 s{sT2}, 0", f"s_cselect_b32 s{sT}, 512, {0}", f"s_cselect_b32 s{sT2}, 0, {4096-512}",
        f"s_add_u32 s{sA1}, s{sA0}, s{sT}", f"s_add_u32 s{sA1}, s{sA1}, s{sT2}"]
    pro += [Op(x, "s") for x in misc]
    if OPT.get("k3pf", 1):
        pro += [Op(x, "s") for x in ["s_getpc_b64 s[16:17]", f"s_lshr_b32 s{sT}, s2, 3", f"s_lshl_b32 s{sT}, s{sT}, 10",
                                     f"v_add_u32 v{TA}, s{sT}, v{vTid}", f"v_min_u32 v{TA}, L_code_end-L_k3_pf-4, v{TA}", "L_k3_pf:"]]
        pro.append(Op(f"global_load_dword v{TC}, v{TA}, s[16:17]", "vm"))

    order = [a for p in range(7) for a in (p, p + 7)]
    S0 = 12
    seq = [(n, a) for n in range(S0) for a in order]
    seq += [(n, a) for p in range(7) for n in range(S0, 16) for a in (p, p + 7)]
    NT_ = len(seq)
    mf, fixed = [], [[] for _ in range(8 * NT_)]
    RD = []
    for gt, (n, a) in enumerate(seq):
        sl = n % NS
        RD.append([Op(f"ds_read_b128 {ar(WF[gt%4][s],4)}, v{[vLin,vR1,vR2][sl>>1]} offset:{(sl&1)*STG+s*14336+a*1024}", "lds") for s in range(2)])
        bs = range(4) if gt % 2 == 0 else range(3, -1, -1)
        for b in bs:
            for s in range(2):
                mf.append(Op(m16(vr(acc[a][b], 4), ar(WF[gt % 4][s], 4), ar(TK[sl][s][b], 4), "0" if (n == 0 and s == 0) else None), "m"))
    first = {}
    for gt, (n, a) in enumerate(seq):
        first.setdefault(n, gt)
    barpos = {}
    for gt in range(NT_):
        if gt + 2 < NT_:
            fixed[8 * gt].append(RD[gt + 2][0]); fixed[8 * gt + 1].append(RD[gt + 2][1])
        newst = [n for n in range(1, 16) if first[n] == gt + 3]
        if newst:
            fixed[8 * gt + 7].append(Op("", "wait", [x[1] for x in VM[newst[0]]], bar=True))
            barpos[newst[0]] = 8 * gt + 7
        elif gt + 1 < NT_:
            fixed[8 * gt + 7].append(Op("", "wait", RD[gt + 1]))
    flat = VM[2] + VM[3] + VM[4] + stat_ld + cs_ld + [x for n in range(5, 16) for x in VM[n]]
    slots = [8 * gt + o for gt in range(S0 * 14) for o in (3, 6)]
    nsl = len(slots) - 2 * OPT.get("k3lead", 8)
    vpos = {}
    si = -1
    for i, (pre, ld, post, n) in enumerate(flat):
        si = max(si + 1, (i * nsl) // len(flat))
        if n is not None and n >= NS:
            lim = barpos[n - NS + 1] + 2 if "lds" in ld.text else 8 * 14 * (n - NS + 1)
            while slots[si] < lim:
                si += 1
        p = slots[si]
        fixed[p - 1] += [Op(x, "s") for x in pre]
        fixed[p] += [ld] + [Op(x, "s") for x in post]
        vpos[id(ld)] = p
    used = [sum(o.cost for o in f if not (o.kind == "wait" and False)) for f in fixed]
    flo = [[] for _ in fixed]

    def flow(ops, start, deadline=None):
        p = start
        for o in ops:
            while used[p] + o.cost > 8:
                p += 1
            flo[p].append(o); used[p] += o.cost
        assert deadline is None or p < deadline, (p, deadline)
        return p + 1

    def spread(ops, start, stop):
        tot = sum(o.cost for o in ops) + sum(used[start:stop])
        cap = max(8.0, tot / (stop - start))
        p, acc_used, acc_cap = start, used[start], cap
        for o in ops:
            while acc_used + o.cost > acc_cap + 2 and p < stop - 1:
                p += 1
                if cap == 8.0:
                    acc_used, acc_cap = used[p], cap
                else:
                    acc_used += used[p]; acc_cap += cap
            flo[p].append(o); acc_used += o.cost
        return p
    V = lambda t: Op(t, "v")
    st = [Op("", "wait", [x[1] for x in stat_ld + cs_ld])]
    st += [V(f"v_accvgpr_read_b32 v{TA}, a{CP}")]
    for p in range(1, 8):
        st += [V(f"v_accvgpr_read_b32 v{TB_}, a{CP+p}"), V(f"v_add_f32 v{TA}, v{TA}, v{TB_}")]
    st += [V(f"v_add_u32 v{vTid}, {TBL}, v{vTid}"), Op(f"ds_write_b32 v{vTid}, v{TA}", "lds")]
    st += [V(f"v_and_b32 v{TB_}, 0xf0, v{vLin}"), V(f"v_and_b32 v{TB_+1}, 0xffffffc0, v{vSt}"), V(f"v_add_u32 v{vTid}, v{TB_}, v{TB_+1}")]
    wr = []
    for hf in range(2):
        A = [TA, TC][hf]
        st += [V(f"v_accvgpr_read_b32 v{A+r}, a{SP+16*hf+r}") for r in range(4)]
        for i in range(1, 4):
            st += [V(f"v_accvgpr_read_b32 v{TB_+r}, a{SP+16*hf+4*i+r}") for r in range(4)]
            st += [V(f"v_add_f32 v{A+r}, v{A+r}, v{TB_+r}") for r in range(4)]
        for op in ("v_permlane16_swap_b32", "v_permlane32_swap_b32"):
            st += [V(f"v_mov_b32 v{TB_+r}, v{A+r}") for r in range(4)]
            st += [V(f"{op} v{A+r}, v{TB_+r}") for r in range(4)]
            st += [V(f"v_add_f32 v{A+r}, v{A+r}, v{TB_+r}") for r in range(4)]
        wr.append(Op(f"ds_write_b128 v{vTid}, {vr(A,4)} offset:{256*hf}", "lds"))
        st.append(wr[-1])
    rd = [Op(f"ds_read2_b32 {vr(PA[b],2)}, v{vSt} offset0:{64*(b>>1)+16*(b&1)+32} offset1:{64*(b>>1)+16*(b&1)}", "lds") for b in range(4)]
    st += rd + [V("v_nop")] * 6 + [Op("", "wait", rd)]
    for b in range(4):
        sd = SD[b >> 1] + (b & 1)
        st += [V(f"v_mul_f32 v{PA[b]+1}, {f32(-1/1024)}, v{PA[b]+1}"),
               V(f"v_mul_f32 v{PA[b]}, {f32(1/1024)}, v{PA[b]}"),
               V(f"v_fma_f32 v{PA[b]}, -v{PA[b]+1}, v{PA[b]+1}, v{PA[b]}"),
               V(f"v_max_f32 v{PA[b]}, 0, v{PA[b]}"),
               V(f"v_add_f32 v{sd}, {f32(EPS)}, v{PA[b]}"),
               Op(f"v_rsq_f32 v{PA[b]}, v{sd}", "t"), V("v_nop"),
               V(f"v_mul_f32 v{sd}, v{sd}, v{PA[b]}"),
               V(f"v_mul_f32 v{PA[b]}, {f32(-LOG2E)}, v{PA[b]}")]
    p = flow(st, vpos[id(cs_ld[-1][1])] + 90)
    n0 = min(n for n in range(1, S0) if barpos[n] >= p)
    p = barpos[n0] + 1
    todo = list(order)
    step = (8 * 14 * S0 - 40 - p) // 14
    for i in range(14):
        cur = lambda a: all(seq[q // 8][1] != a for q in range(p - 2, p + 48))
        cand = [a for a in todo if cur(a)]
        while not cand:
            p += 4
            cand = [a for a in todo if cur(a)]
        a = cand[0]
        todo.remove(a)
        C = [TA, TC][i & 1]
        r = Op(f"ds_read_b128 {vr(C,4)}, v{vCs} offset:{64*a}", "lds")
        ops = [V(f"v_fmac_f32 v{acc[a][b]+e}, v{PA[b]+1}, v{C+e}") for b in range(4) for e in range(4)]
        q = flow([r], p)
        q = flow([Op("", "wait", [r])] + ops, q + 6, p + 46)
        p = max(q, p + min(step, 24))
    assert p < 8 * 14 * S0 + 60, p
    def epi(pr, packed):
        o = []
        for bb in (0, 2):
            d = acc[pr][bb]
            for b in (bb, bb + 1):
                g_, u = acc[pr][b], acc[pr + 7][b]
                sd = SD[b >> 1] + (b & 1)
                if packed:
                    sel = f"op_sel:[0,{b&1},{b&1}] op_sel_hi:[1,{b&1},{b&1}]"
                    o += [V(f"v_pk_mul_f32 {vr(g_+h,2)}, {vr(g_+h,2)}, {vr(PA[b],2)} op_sel:[0,0] op_sel_hi:[1,0]") for h in (0, 2)]
                    o += [Op(f"v_exp_f32 v{g_+r}, v{g_+r}", "t") for r in range(4)]
                    o += [V(f"v_pk_fma_f32 {vr(g_+h,2)}, {vr(g_+h,2)}, {vr(SD[b>>1],2)}, {vr(SD[b>>1],2)} {sel}") for h in (0, 2)]
                    o += [Op(f"v_rcp_f32 v{g_+r}, v{g_+r}", "t") for r in range(4)]
                    o += [V(f"v_pk_mul_f32 {vr(u+h,2)}, {vr(u+h,2)}, {vr(g_+h,2)}") for h in (0, 2)]
                else:
                    o += [V(f"v_mul_f32 v{g_+r}, v{PA[b]}, v{g_+r}") for r in range(4)]
                    o += [Op(f"v_exp_f32 v{g_+r}, v{g_+r}", "t") for r in range(4)]
                    o += [V(f"v_fma_f32 v{g_+r}, v{g_+r}, v{sd}, v{sd}") for r in range(4)]
                    o += [Op(f"v_rcp_f32 v{g_+r}, v{g_+r}", "t") for r in range(4)]
                    o += [V(f"v_mul_f32 v{u+r}, v{u+r}, v{g_+r}") for r in range(4)]
                o += [V(f"v_cvt_pk_bf16_f32 v{d+2*(b&1)}, v{u}, v{u+1}"), V(f"v_cvt_pk_bf16_f32 v{d+2*(b&1)+1}, v{u+2}, v{u+3}")]
            o += [V("v_nop"), V(f"v_permlane16_swap_b32 v{d}, v{d+2}"), V(f"v_permlane16_swap_b32 v{d+1}, v{d+3}")]
            sa = [sA0, sA1][pr & 1]
            o.append(Op(f"buffer_store_dwordx4 {vr(d,4)}, v{vOut}, s[{SWS}:{SWS+3}], s{sa} offen offset:{1024*bb} sc1", "vm"))
        o.append(Op(f"s_add_u32 s{sa}, s{sa}, 4096", "s"))
        return o
    run = 8 * 2 * (16 - S0)
    t0 = 8 * 14 * S0
    for pr in range(6):
        spread(epi(pr, False), t0 + run * (pr + 1) + (0 if pr else 0), t0 + run * (pr + 2))
    if OPT.get("isl", 1):
        pro.append(Op(island(), "s"))
    ops = pro + [Op("", "wait", [x[1] for x in VM[0]], bar=True)]
    if OPT["stamp"]:
        ops.append(Op("s_memrealtime s[96:97]\ns_memtime s[84:85]\ns_waitcnt lgkmcnt(0)", "s"))
    ops += RD[0] + RD[1] + [Op("", "wait", RD[0])]
    ops_seg0 = len(pro)
    prof = [112 * n for n in range(S0)] + [t0 + run * pr for pr in range(7)] if OPT.get("prof") else []
    nbytes, last = 4, ops_seg0
    for i, m in enumerate(mf):
        if OPT.get("isl", 1):
            nbytes += sum(isize(o.text) for o in ops[last:])
            last = len(ops)
            if nbytes > 3960 and not fixed[i - 1]:
                ops.append(Op(island(), "s"))
                nbytes, last = 4, len(ops)
        if i in prof:
            j = prof.index(i)
            ops.append(Op(f"s_memtime s[{44+2*j}:{45+2*j}]", "s"))
        nv = [o for o in flo[i]]
        late = [o for o in fixed[i] if o.kind == "wait"]
        ops += [m] + [o for o in fixed[i] if o.kind != "wait"] + late + nv
    if OPT["stamp"]:
        ops.append(Op("s_memrealtime s[98:99]\ns_memtime s[86:87]", "s"))
    ops += epi(6, True)
    emit_stream(k, ops)
    if prof:
        k("s_waitcnt lgkmcnt(0)", "s_lshl_b32 s3, s89, 2", f"s_add_u32 s3, s3, s{sW}", "s_lshl_b32 s3, s3, 7", f"s_add_u32 s3, s3, {STAMP+2*MB}")
        for j in range(len(prof) + 1):
            k(f"v_mov_b32 v1, s{44+2*j if j < len(prof) else 86}", f"v_mov_b32 v0, s3", f"global_store_dword v0, v1, s[90:91] offset:{4*j}")
    tail(k, 1, sW)
    return k


HEADER = open("sequential_preLN__grouped_kv_mqa__glu_gated_glu__prompt.s.ref").read().split("; Override launch")[0]


def k_diag():
    k = Kern("diag_kernel", 1, 64, 0)
    k.vgpr = k.acc = 8
    a, b, m = OPT["da"], OPT["db"], OPT["dm"]
    off = lambda x: STAMP + (x // 10) * 16384 + (x % 10) * 4 + OPT.get("dwg", 0) * 64
    k("s_cmp_ge_u32 s2, 1", "s_cbranch_scc1 L_diag_end", "s_load_dwordx2 s[4:5], s[0:1], 88", "s_waitcnt lgkmcnt(0)",
      f"v_mov_b32 v1, {off(a)}", f"v_mov_b32 v2, {off(b)}", "global_load_dword v3, v1, s[4:5]", "global_load_dword v4, v2, s[4:5]",
      "s_memrealtime s[8:9]", "s_waitcnt vmcnt(0) lgkmcnt(0)", "v_sub_u32 v3, v4, v3", "s_nop 1", "v_readfirstlane_b32 s6, v3", "s_nop 3",
      "s_min_u32 s6, s6, 20000", f"s_mul_i32 s6, s6, {m}")
    k.label("L_diag_loop")
    k("s_memrealtime s[10:11]", "s_waitcnt lgkmcnt(0)", "s_sub_u32 s10, s10, s8", "s_cmp_lt_u32 s10, s6", "s_cbranch_scc1 L_diag_loop")
    k.label("L_diag_end")
    k("s_endpgm")
    return k


def build():
    ks = [k01_attn(), k3_gateup(), k4_down(2)]
    if "dm" in OPT:
        ks.append(k_diag())
    s = HEADER + "".join(ks[int(c)].launch_line() + "\n" for c in str(OPT.get("seq", "".join(str(i) for i in range(len(ks))))).lstrip("9"))
    s += '.amdgcn_target "amdgcn-amd-amdhsa--gfx950"\n.text\n'
    for i, k in enumerate(ks):
        s += k.text()
        if i == 0:
            s += "L_code_rest:\n"
    s += "L_code_end:\n"
    chain = [n for n, back in ISL if back is None]
    for n, back in ISL:
        if back:
            s = s.replace(f"@ISL{n}@", f"s_branch {back}")
    for i, n in enumerate(chain):
        s = s.replace(f"@ISL{n}@", f"s_branch L_isl{chain[i+4]}" if i + 4 < len(chain) else "s_endpgm")
        s = s.replace(f"@HOP{i}@", f"L_isl{n}")
    s += '.section .rodata,"a"\n' + "".join(k.desc() for k in ks)
    return s


if __name__ == "__main__":
    out = sys.argv[1]
    for a in sys.argv[2:]:
        key, _, val = a.partition("=")
        OPT[key] = int(val) if val else True
    open(out, "w").write(build())
```

```python
import sys, math
sys.path.insert(0, __file__.rsplit("/", 1)[0])
from asmlib import *

MB = 1 << 20
QF, KVF, OF, HF, AF = 0, 4 * MB, 5 * MB, 9 * MB, 13 * MB
WOF, WGU, WDF, CSP, STP, STAMP = 28 * MB, 30 * MB, 44 * MB, 52 * MB, 53 * MB, 60 * MB
XB = 0
XB4 = [HF, XB, 56 * MB, 64 * MB]
FLG = 54 * MB
ST1 = 55 * MB
FL2 = FLG + 65536
WS_SZ = 72 * MB
OOB = 0x40000000
LOG2E = 1.4426950408889634
QSCALE = LOG2E / math.sqrt(32.0)
EPS = 1e-5
OPT = dict(stamp=False, force_slow=False)
A_X, A_WQ, A_WK, A_WV, A_WO, A_WG, A_WU, A_WD, A_OUT, A_WS = 0, 8, 16, 24, 32, 48, 56, 64, 72, 88


def ws_shift(s):
    if OPT.get("wsoff"):
        return [f"s_add_u32 s{s}, s{s}, {OPT['wsoff']*MB}", f"s_addc_u32 s{s+1}, s{s+1}, 0"]
    return []


ISL = []


def island(back=None, jump=True):
    if not OPT.get("isl", 1):
        return None
    n = len(ISL)
    ISL.append((n, back))
    return (f"s_branch L_isl{n}_over\n" if jump else "") + f".p2align 12\nL_isl{n}:\n@ISL{n}@\nL_isl{n}_over:"


def isize(text):
    import re
    t = 0
    for ln in text.split("\n"):
        ln = ln.strip()
        if not ln:
            t += 8
        elif ln.endswith(":") or ln.startswith("."):
            continue
        elif re.match(r"(v_mfma|v_smfmac|ds_|buffer_|global_|s_load|s_mem|v_fma_|v_cvt_pk|v_accvgpr|v_pk_|v_lshl_add|v_bfe|v_max3|v_maximum3|v_mul_lo)", ln):
            t += 8
        else:
            lit = [x for x in re.findall(r"(?<![\w\[:])(0x[0-9a-f]+|\d+)(?![\w\]:])", ln.split(None, 1)[1] if " " in ln else "") if int(x, 0) > 64]
            t += 8 if lit else 4
    return t


def hop(k, sw):
    if OPT.get("isl", 1) and not OPT.get("nohop"):
        for w in range(3):
            k(f"s_cmp_eq_u32 s{sw}, {w}", f"s_cbranch_scc1 @HOP{w}@")
        k("s_branch @HOP3@")
    else:
        k("s_endpgm")


def srd_tail(s, size):
    return [f"s_mov_b32 s{s+2}, {size}", f"s_mov_b32 s{s+3}, 0x00020000"]


def srd_from(s, base, off, size):
    return [f"s_add_u32 s{s}, s{base}, {off}", f"s_addc_u32 s{s+1}, s{base+1}, 0"] + srd_tail(s, size)


def head(k, pad=False):
    if pad and OPT.get("isl", 1) and OPT.get("epad", 1):
        n = len(ISL)
        ISL.append((n, None))
        k("s_cmp_lt_u32 s2, 256", f"s_cbranch_scc1 L_isl{n}_over", "s_endpgm", f"L_isl{n}:", f"@ISL{n}@", f"L_isl{n}_over:")
    else:
        k("s_cmp_ge_u32 s2, 256", f"s_cbranch_scc1 L_end_{k.name}")
    if OPT["stamp"]:
        k("s_memrealtime s[92:93]", "s_load_dwordx2 s[90:91], s[0:1], 88", "s_mov_b32 s89, s2")


def mid_stamp(k, i):
    if OPT["stamp"] and i < 2:
        k(f"s_memrealtime s[{96+2*i}:{97+2*i}]", f"s_memtime s[{84+2*i}:{85+2*i}]")
    elif OPT["stamp"]:
        k("s_memrealtime s[100:101]", "s_waitcnt lgkmcnt(0)", f"s_mov_b32 s{[93,88,3][i-2]}, s100")


def hstamp(k, lane):
    if OPT.get("hprof"):
        k("s_memrealtime s[84:85]", "s_waitcnt lgkmcnt(0)", f"v_writelane_b32 v200, s84, {lane}")


def xstamp(k, n):
    sel = str(OPT.get("xs", 378)).zfill(3)
    if str(n) in sel:
        mid_stamp(k, 2 + sel.index(str(n)))


def tail(k, kidx, swave):
    if OPT["stamp"]:
        k("s_waitcnt vmcnt(0)", "s_memrealtime s[94:95]", "s_waitcnt lgkmcnt(0)",
          "v_mov_b32 v0, s92", "v_mov_b32 v1, s96", "v_mov_b32 v2, s98", "v_mov_b32 v3, s94",
          "s_lshl_b32 s89, s89, 2", f"s_add_u32 s89, s89, s{swave}", "s_lshl_b32 s89, s89, 4",
          f"s_add_u32 s89, s89, {STAMP + kidx*16384}", "v_mov_b32 v4, s89",
          "global_store_dwordx4 v4, v[0:3], s[90:91]",
          "s_sub_u32 s86, s86, s84", "v_mov_b32 v8, s86", "v_mov_b32 v9, s93", "v_mov_b32 v10, s88", "v_mov_b32 v11, s3",
          "v_add_u32 v4, 0x100000, v4", "global_store_dwordx4 v4, v[8:11], s[90:91]")
    k.label(f"L_end_{k.name}")
    k("s_endpgm")


def ids_8x4(k, s_a, s_b, tmp):
    k(f"s_lshr_b32 s{tmp}, s2, 3",
      f"s_and_b32 s{s_a}, s{tmp}, 3",
      f"s_lshr_b32 s{s_b}, s{tmp}, 2",
      f"s_and_b32 s{tmp}, s2, 1",
      f"s_lshl_b32 s{tmp}, s{tmp}, 2",
      f"s_add_u32 s{s_a}, s{s_a}, s{tmp}",
      f"s_and_b32 s{tmp}, s2, 6",
      f"s_lshl_b32 s{tmp}, s{tmp}, 2",
      f"s_add_u32 s{s_b}, s{s_b}, s{tmp}")


def code_prefetch(k, vtmp, vdst, stmp, start, nkb_per_wg=1):
    k(f"s_getpc_b64 s[{stmp}:{stmp+1}]")
    lab = f"L_pc_{k.name}_{start}"
    k.label(lab)
    k(f"s_add_u32 s{stmp}, s{stmp}, {start}-{lab}",
      f"s_addc_u32 s{stmp+1}, s{stmp+1}, 0",
      f"global_load_dwordx4 {vr(vdst,4)}, v{vtmp}, s[{stmp}:{stmp+1}]" if not OPT.get("nopf") else None)


def k01_attn():
    D = 2
    STG, NS = 24576, D + 2
    EA = STG * NS
    SLOT, KVB, JB, TBL = 32768, 65536, 16384, 0
    k = Kern("attn_kernel", 256, 512, 163840)
    SX, SWQ, SE, SWS, SKV, SJ = 4, 8, 12, 16, 72, 76
    (sW, sTB, sHG, sC, sT, sT2, sRd, sWr, sKo, sJo, sJa, sJb, sGW, sStr, sDstep, sOo) = range(32, 48)
    sN, sX, sWo, sTH, sCH, sBW, sOo1, sFl, sKV = 48, 49, 54, 55, 56, 57, 65, 80, 81
    sD = [50, 51, 52, 53]
    sCs = [58, 59, 60, 61]
    sDB, sBsz, sWrJ = 62, 63, 64
    SDBG = 30
    v = Alloc(1)
    L, G, R, CQ, TOK, T0, T1, T2, vLin, vRd, IDX = [v() for _ in range(11)]
    h = Alloc(v.n)
    Q = [v(8, 4) for _ in range(2)]
    O = [v(16, 4) for _ in range(2)]
    LS = [v(4, 4) for _ in range(2)]
    acc = [[v(4, 4) for i in range(2)] for t in range(4)]
    cs = [v(4, 4) for _ in range(2)]
    sx, sxx = v(4, 4), v(4, 4)
    z1 = v.n
    SUMA, ONES = v(4, 4), v(4, 4)
    bX = [[v() for i in range(2)] for s in range(2)]
    bW = [v() for _ in range(4)]
    aX = [[v() for i in range(2)] for s in range(2)]
    aW = [v() for _ in range(4)]
    F0 = v(96, 4)
    F = [[dict(X=[F0 + 48 * f + 24 * s + 4 * i for i in range(2)], W=[F0 + 48 * f + 24 * s + 8 + 4 * t for t in range(4)]) for s in range(2)] for f in range(2)]
    S = [F0 + 16 * i for i in range(4)]
    KB = [F0 + 64 + 8 * i for i in range(2)]
    VB = [F0 + 80 + 8 * i for i in range(2)]
    XK = [F0 + 4 * j for j in range(8)]
    EK = [[F0 + 32 + 8 * j + 4 * t for t in range(2)] for j in range(8)]
    accE, csE = [Q[0], Q[0] + 4], [Q[1], Q[1] + 4]
    sxE, sxxE = v(4, 4), v(4, 4)
    vXk, vE, aE0, aE1, aP, aS, aG0, aG1, vKo, PF, vHo, vRow = [v() for _ in range(12)]
    RES = [[cs[0], cs[1]], [sx, sxx]]
    XR = 131072
    sFg, sRx, sH0, sH1, sS1 = 58, 59, 60, 61, 62
    k.vgpr = k.acc = 256
    vX, vX2 = h(), h()
    vW = [h() for _ in range(4)]
    vJ, vJB, vCs, vPo = h(), h(), h(), h()
    aJ = [h() for _ in range(4)]
    bJ = [h() for _ in range(2)]
    JF = [h(4, 4) for _ in range(4)]
    CS = [h(4, 4) for _ in range(4)]
    PF4 = h(4, 4)
    head(k)
    k(f"s_load_dwordx2 s[{SX}:{SX+1}], s[0:1], {A_X}",
      f"s_load_dwordx2 s[{SWQ}:{SWQ+1}], s[0:1], {A_WQ}",
      f"s_load_dwordx4 s[24:27], s[0:1], {A_WK}",
      f"s_load_dwordx2 s[{SWS}:{SWS+1}], s[0:1], {A_WS}",
      f"s_load_dwordx2 s[{SDBG}:{SDBG+1}], s[0:1], 80")
    k(f"s_lshl_b32 s{sT}, s2, 7", f"s_and_b32 s{sT}, s{sT}, 0x7c00", f"v_lshl_add_u32 v{T0}, v0, 1, s{sT}", f"v_and_b32 v{T0}, -4, v{T0}", "s_getpc_b64 s[20:21]", f"global_load_dword v{PF}, v{T0}, s[20:21]" if not OPT.get("nopf") else None)
    k(f"v_lshrrev_b32 v{T1}, 6, v0", f"v_and_b32 v{L}, 63, v0", f"v_readfirstlane_b32 s{sW}, v{T1}")
    ids_8x4(k, sHG, sTB, sT)
    k(f"v_lshrrev_b32 v{G}, 4, v{L}", f"v_and_b32 v{TOK}, 15, v{L}", f"v_lshlrev_b32 v{vLin}, 4, v{L}")
    k(f"s_and_b32 s{sTH}, s{sW}, 1", f"s_bfe_u32 s{sCH}, s{sW}, 0x10001",
      f"s_cmp_ge_u32 s{sW}, 4", "s_cbranch_scc1 L_f_help")
    k(f"s_and_b32 s{sT}, s{sHG}, 3", f"s_lshl_b32 s{sT2}, s{sTB}, 2", f"s_add_u32 s{sT}, s{sT}, s{sT2}", f"s_lshl_b32 s{sT}, s{sT}, 15",
      f"s_lshl_b32 s{sT2}, s{sW}, 9", f"s_add_u32 s{sT}, s{sT}, s{sT2}",
      f"v_lshlrev_b32 v{T0}, 11, v{TOK}", f"v_lshl_add_u32 v{T0}, v{G}, 4, v{T0}", f"v_add_u32 v{vXk}, s{sT}, v{T0}",
      f"v_and_b32 v{T0}, 32, v{L}", f"v_xor_b32 v{T0}, v{T0}, v{vLin}",
      f"s_lshl_b32 s{sWr}, s{sW}, 14", f"v_add_u32 v{vE}, s{sWr}, v{T0}",
      f"s_lshr_b32 s{sT}, s2, 3", f"s_lshl_b32 s{sT}, s{sT}, 11", f"v_lshlrev_b32 v{T0}, 3, v0",
      f"s_bitcmp1_b32 s{sHG}, 2", "s_waitcnt lgkmcnt(0)",
      f"s_cselect_b32 s{SE}, s26, s24", f"s_cselect_b32 s{SE+1}, s27, s25", srd_tail(SE, 0x10000), srd_tail(SX, 4 * MB))
    xstamp(k, 0)
    k(f"buffer_load_dword v{PF}, v{T0}, s[{SE}:{SE+3}], s{sT} offen")
    for j in range(8):
        k(f"buffer_load_dwordx4 {vr(XK[j],4)}, v{vXk}, s[{SX}:{SX+3}], 0 offen offset:{64*j}")

    def kv_ld(gi):
        k(f"s_add_u32 m0, s{sWr}, {EA+4096*gi}", f"s_mov_b32 s{sWo}, {4096*gi}")
        for i in range(4):
            k(f"buffer_load_dwordx4 v{vE}, s[{SE}:{SE+3}], s{sWo} offen offset:{1024*i} lds")
    k("s_branch L_f_comp")
    k.label("L_f_help")
    k(f"s_and_b32 s{sW}, s{sW}, 3")
    if OPT.get("wqpf", 1):
        k(f"v_and_b32 v{T0}, 255, v0", f"v_lshlrev_b32 v{T0}, 5, v{T0}", f"s_lshl_b32 s{sT}, s2, 13", "s_waitcnt lgkmcnt(0)", srd_tail(SWQ, 2 * MB),
          f"buffer_load_dword v{PF4}, v{T0}, s[{SWQ}:{SWQ+3}], s{sT} offen")
    k(f"v_lshrrev_b32 v{T0}, 3, v{L}",
      f"s_lshl_b32 s{sT}, s{sTH}, 2",
      f"v_add_u32 v{T1}, s{sT}, v{G}",
      f"v_and_b32 v{T2}, 7, v{L}",
      f"v_xor_b32 v{T1}, v{T1}, v{T2}",
      f"s_lshl_b32 s{sT}, s{sTB}, 6",
      f"s_lshl_b32 s{sT2}, s{sW}, 3",
      f"s_add_u32 s{sT}, s{sT}, s{sT2}",
      f"v_add_u32 v{T0}, s{sT}, v{T0}",
      f"v_lshlrev_b32 v{T0}, 11, v{T0}",
      f"v_lshl_add_u32 v{vX}, v{T1}, 4, v{T0}",
      f"v_add_u32 v{vX2}, 0x10000, v{vX}")
    k(f"v_lshlrev_b32 v{T1}, 1, v{G}",
      f"v_xor_b32 v{T1}, v{T1}, v{TOK}",
      f"s_lshl_b32 s{sT}, s{sTH}, 3",
      f"v_xor_b32 v{T1}, s{sT}, v{T1}",
      f"s_lshl_b32 s{sBW}, s{sTH}, 1",
      f"s_add_u32 s{sBW}, s{sBW}, s{sCH}",
      f"s_lshl_b32 s{sT}, s{sBW}, 13",
      f"s_lshl_b32 s{sT2}, s{sHG}, 8",
      f"s_add_u32 s{sT}, s{sT}, s{sT2}",
      f"v_lshlrev_b32 v{T0}, 11, v{G}",
      f"v_add_u32 v{T0}, s{sT}, v{T0}",
      f"v_lshl_add_u32 v{vW[0]}, v{T1}, 4, v{T0}")
    for i in range(1, 4):
        k(f"v_add_u32 v{vW[i]}, {32768*i}, v{vW[0]}")
    k(f"s_sub_u32 s{sBW}, s{sBW}, s{sW}", f"s_lshl_b32 s{sBW}, s{sBW}, 10", f"s_add_u32 s{sBW}, s{sBW}, 8192",
      f"s_lshl_b32 s{sWr}, s{sW}, 10", f"s_mov_b32 s{sN}, 12")
    k(f"s_and_b32 s{sT}, s{sTB}, {7 if OPT.get('rot', 0) else 0}",
      f"s_lshl_b32 s{sX}, s{sT}, 8", f"s_lshl_b32 s{sWo}, s{sT}, 18")
    k("s_waitcnt lgkmcnt(0)", srd_tail(SX, 4 * MB), srd_tail(SWQ, 2 * MB))
    k(f"s_load_dwordx2 s[20:21], s[0:1], {A_WO}", f"s_load_dwordx4 s[24:27], s[0:1], {A_WG}", f"s_load_dwordx2 s[28:29], s[0:1], {A_WD}")
    def q_x(slot):
        k(f"s_add_u32 m0, s{sWr}, {slot}", "s_nop 0", f"buffer_load_dwordx4 v{vX}, s[{SX}:{SX+3}], s{sX} offen lds",
          f"s_add_u32 m0, s{sWr}, {slot+4096}", "s_nop 0", f"buffer_load_dwordx4 v{vX2}, s[{SX}:{SX+3}], s{sX} offen lds",
          f"s_add_u32 s{sX}, s{sX}, 128", f"s_and_b32 s{sX}, s{sX}, 2047")

    def q_w(slot):
        k(f"s_add_u32 s{sT}, s{sWr}, s{sBW}")
        for i in range(4):
            k(f"s_add_u32 m0, s{sT}, {slot+4096*i}", "s_nop 0", f"buffer_load_dwordx4 v{vW[i]}, s[{SWQ}:{SWQ+3}], s{sWo} offen lds")
        k(f"s_add_u32 s{sWo}, s{sWo}, 0x20000", f"s_and_b32 s{sWo}, s{sWo}, 0x1fffff")

    def q_stage():
        q_x(0); q_w(0)
        k(f"s_add_u32 s{sWr}, s{sWr}, {STG}", f"s_cmp_ge_u32 s{sWr}, {EA}", f"s_cselect_b32 s{sT}, {EA}, 0",
          f"s_sub_u32 s{sWr}, s{sWr}, s{sT}", f"s_sub_u32 s{sN}, s{sN}, 1")
    k("s_branch L_f_setup")
    k.label("L_f_comp")
    k(f"v_bfe_u32 v{R}, v{L}, 2, 2", f"v_and_b32 v{CQ}, 3, v{L}", f"v_and_b32 v{T2}, 1, v{G}",
      f"s_lshl_b32 s{sT}, s{sW}, 14", f"s_add_u32 s{sT}, s{sT}, {EA}",
      f"v_lshlrev_b32 v{T0}, 5, v{T2}", f"v_lshl_add_u32 v{T0}, v{CQ}, 3, v{T0}",
      f"v_lshl_add_u32 v{T0}, v{R}, 6, v{T0}", f"v_lshl_add_u32 v{T0}, v{G}, 9, v{T0}",
      f"v_add_u32 v{aE0}, s{sT}, v{T0}", f"v_xor_b32 v{aE1}, 32, v{aE0}")
    for i in range(4):
        k(f"v_mov_b32 v{ONES+i}, 0x3f803f80")
    k(ws_shift(SWS), srd_tail(SWS, WS_SZ), srd_from(SKV, SWS, KVF, 262144))
    k(f"s_lshl_b32 s{sT}, s{sCH}, 10", f"s_lshl_b32 s{sT2}, s{sTH}, 3", f"s_add_u32 s{sT}, s{sT}, s{sT2}", f"s_add_u32 s{sT}, s{sT}, {EA}",
      f"v_add_u32 v{aP}, s{sT}, v{vLin}", f"v_lshlrev_b32 v{aS}, 3, v{TOK}", f"v_add_u32 v{aS}, {EA+4096}, v{aS}")
    k(f"s_bfe_u32 s{sT}, s{sHG}, 0x10001", f"s_lshl_b32 s{sKV}, s{sTB}, 1", f"s_add_u32 s{sKV}, s{sKV}, s{sT}", f"s_lshl_b32 s{sKV}, s{sKV}, 12",
      f"s_and_b32 s{sT2}, s{sHG}, 1", f"s_bitcmp1_b32 s{sHG}, 2", "s_cbranch_scc1 L_f_av")
    k(f"s_lshl_b32 s{sT2}, s{sT2}, 8", f"s_add_u32 s{sKV}, s{sKV}, s{sT2}",
      f"s_lshl_b32 s{sT}, s{sW}, 2", f"s_add_u32 s{sT}, s{sT}, {EA+8192}", f"v_add_u32 v{aG0}, s{sT}, v{vLin}", f"v_add_u32 v{aG1}, 2, v{aG0}",
      f"v_lshlrev_b32 v{T0}, 10, v{T2}", f"v_lshrrev_b32 v{T1}, 1, v{G}", f"v_lshl_add_u32 v{T0}, v{T1}, 9, v{T0}", f"v_lshl_add_u32 v{vKo}, v{TOK}, 4, v{T0}",
      "s_branch L_f_ax")
    k.label("L_f_av")
    k(f"s_lshl_b32 s{sT2}, s{sT2}, 10", f"s_add_u32 s{sKV}, s{sKV}, s{sT2}", f"s_add_u32 s{sKV}, s{sKV}, 2048",
      f"v_lshlrev_b32 v{T0}, 7, v{T2}", f"v_lshrrev_b32 v{T1}, 1, v{G}", f"v_lshl_add_u32 v{T0}, v{T1}, 6, v{T0}",
      f"v_bfe_u32 v{T1}, v{L}, 3, 1", f"v_lshl_add_u32 v{T0}, v{T1}, 9, v{T0}", f"v_and_b32 v{T1}, 7, v{L}", f"v_lshl_add_u32 v{T0}, v{T1}, 1, v{T0}",
      f"s_lshl_b32 s{sT}, s{sCH}, 8", f"s_lshl_b32 s{sT2}, s{sTH}, 5", f"s_add_u32 s{sT}, s{sT}, s{sT2}", f"s_add_u32 s{sT}, s{sT}, {EA+8192}",
      f"v_add_u32 v{aG0}, s{sT}, v{T0}", f"v_add_u32 v{aG1}, 16, v{aG0}", f"v_mov_b32 v{vKo}, v{vLin}")
    k.label("L_f_ax")
    k(f"v_lshrrev_b32 v{T0}, 1, v{TOK}", f"v_xor_b32 v{T0}, v{T0}, v{G}", f"v_lshlrev_b32 v{T0}, 4, v{T0}",
      f"v_lshl_add_u32 v{T0}, v{TOK}, 7, v{T0}",
      f"s_lshl_b32 s{sT}, s{sTH}, 1", f"s_add_u32 s{sT}, s{sT}, s{sCH}", f"s_lshl_b32 s{sT}, s{sT}, 11",
      f"v_add_u32 v{bX[0][0]}, s{sT}, v{T0}",
      f"v_xor_b32 v{bX[0][1]}, 2048, v{bX[0][0]}",
      f"v_xor_b32 v{bX[1][0]}, 64, v{bX[0][0]}",
      f"v_xor_b32 v{bX[1][1]}, 64, v{bX[0][1]}")
    k(f"v_lshlrev_b32 v{T0}, 2, v{T2}", f"v_xor_b32 v{T0}, v{T0}, v{R}",
      f"s_lshl_b32 s{sT}, s{sCH}, 2", f"s_lshl_b32 s{sT2}, s{sTH}, 1", f"s_add_u32 s{sT}, s{sT}, s{sT2}",
      f"v_xor_b32 v{T0}, s{sT}, v{T0}",
      f"v_lshlrev_b32 v{T0}, 5, v{T0}",
      f"v_lshl_add_u32 v{T0}, v{CQ}, 3, v{T0}",
      f"v_lshl_add_u32 v{T0}, v{R}, 8, v{T0}",
      f"v_lshl_add_u32 v{T0}, v{G}, 11, v{T0}",
      f"v_add_u32 v{bW[0]}, 8192, v{T0}")
    for t in range(1, 4):
        k(f"v_xor_b32 v{bW[t]}, {32*t}, v{bW[0]}")
    bases = [(aX[s][i], bX[s][i]) for s in range(2) for i in range(2)] + list(zip(aW, bW))
    for a, b in bases:
        k(f"v_mov_b32 v{a}, v{b}")
    for i in range(O[0], z1, 2):
        k(f"v_mov_b64 {vr(i,2)}, 0")
    k(f"v_and_b32 v{T0}, 7, v{L}", f"v_cmp_eq_u32 vcc, 0, v{T0}", f"v_mov_b32 v{IDX}, 0xdddd", f"v_add_u32 v{vRd}, {KVB+SLOT}, v{vLin}",
      f"v_cndmask_b32 v{SUMA}, 0, v{ONES}, vcc", f"v_cndmask_b32 v{SUMA+1}, 0, v{ONES}, vcc",
      f"v_cmp_eq_u32 vcc, 4, v{T0}", f"v_and_b32 v{T0}, 1, v{TOK}", f"v_and_b32 v{T1}, 2, v{TOK}",
      f"v_cndmask_b32 v{SUMA+2}, 0, v{ONES}, vcc", f"v_cndmask_b32 v{SUMA+3}, 0, v{ONES}, vcc",
      f"v_cmp_eq_u32 s[66:67], 1, v{T0}", f"v_cmp_eq_u32 s[68:69], 2, v{T1}", f"v_cmp_eq_u32 s[82:83], v{R}, v{G}")
    k(f"s_lshl_b32 s{sFg}, s{sTB}, 9", f"s_add_u32 s{sFg}, s{sFg}, {FLG}")
    k(f"s_lshr_b32 s{sS1}, s{sHG}, 2", f"s_lshl_b32 s{sS1}, s{sS1}, 5", f"s_add_u32 s{sS1}, s{sS1}, s{sTB}", f"s_lshl_b32 s{sS1}, s{sS1}, 9",
      f"s_add_u32 s{sS1}, s{sS1}, {ST1}")
    k(f"v_lshrrev_b32 v{T0}, 1, v{G}", f"v_lshl_add_u32 v{T0}, v{T2}, 1, v{T0}", f"v_lshlrev_b32 v{T1}, 4, v{TOK}", f"v_lshl_add_u32 v{vHo}, v{T0}, 8, v{T1}",
      f"v_lshlrev_b32 v{T1}, 11, v{TOK}", f"v_lshl_add_u32 v{T0}, v{T0}, 4, v{T1}",
      f"s_lshl_b32 s{sT}, s{sTB}, 1", f"s_add_u32 s{sT}, s{sT}, s{sTH}", f"s_lshl_b32 s{sT}, s{sT}, 16",
      f"s_lshl_b32 s{sT2}, s{sHG}, 2", f"s_add_u32 s{sT2}, s{sT2}, s{sW}", f"s_lshl_b32 s{sT2}, s{sT2}, 6", f"s_add_u32 s{sT}, s{sT}, s{sT2}",
      f"v_add_u32 v{vRow}, s{sT}, v{T0}")
    k(f"s_mov_b32 s{sRd}, 0", f"s_mov_b32 s{sN}, 7", f"s_cmp_eq_u32 s{sW}, 0", f"s_cselect_b32 s{sFl}, 7, -1")
    xstamp(k, 1)

    def diag(dst, src):
        return [f"v_cndmask_b32 v{T0}, v{src}, v{src+1}, s[66:67]", f"v_cndmask_b32 v{T1}, v{src+2}, v{src+3}, s[66:67]",
                f"v_cndmask_b32 v{dst}, v{T0}, v{T1}, s[68:69]"]

    def kv_mf(gi):
        o = []
        for j in (2 * gi, 2 * gi + 1):
            c = "0" if j == 0 else None
            for t in range(2):
                o += [m16(vr(accE[t], 4), vr(EK[j][t], 4), vr(XK[j], 4), c), m16(vr(csE[t], 4), vr(EK[j][t], 4), vr(ONES, 4), c)]
        return o
    kv_rd = lambda gi: [f"ds_read_b64_tr_b16 {vr(EK[j][t]+2*jj,2)}, v{[aE0,aE1][t]} offset:{j*2048+jj*256}"
                        for j in (2 * gi, 2 * gi + 1) for t in range(2) for jj in range(2)]
    kv_ld(0); kv_ld(1)
    k("s_waitcnt vmcnt(8)")
    xstamp(k, 2)
    for j in range(8):
        k(m16(vr(sxxE, 4), vr(XK[j], 4), vr(XK[j], 4), "0" if j == 0 else None), m16(vr(sxE, 4), vr(ONES, 4), vr(XK[j], 4), "0" if j == 0 else None))
    kv_ld(2)
    k("s_waitcnt vmcnt(8)", kv_rd(0))
    kv_ld(3)
    xstamp(k, 3)
    k("s_barrier")
    k(f"s_add_u32 s{sT}, s{sWr}, {EA}", f"v_add_u32 v{vE}, s{sT}, v{vLin}", f"v_lshl_add_u32 v{vXk}, v{TOK}, 3, s{sT}")
    k(diag(sxE + 1, sxxE))
    for gi in range(1, 4):
        k(f"s_waitcnt vmcnt({12-4*gi}) lgkmcnt(0)", weave(kv_mf(gi - 1), kv_rd(gi), 0, 5))
    xstamp(k, 4)
    k("s_waitcnt lgkmcnt(0)", kv_mf(3), "s_mov_b64 exec, s[82:83]", f"ds_write_b64 v{vXk}, {vr(sxE,2)} offset:4096", "s_mov_b64 exec, -1", "s_nop 3")
    for i, r in enumerate(accE + csE):
        k(f"ds_write_b128 v{vE}, {vr(r,4)} offset:{1024*i}")
    k("s_waitcnt lgkmcnt(0)")
    xstamp(k, 5)
    k(island(back="L_f_back"))
    U = F0 + 48

    def sum4(r):
        return [f"v_add_f32 v{r+e}, v{r+e}, v{r+2+e}" for e in range(2)] + [f"v_add_f32 v{r+4+e}, v{r+4+e}, v{r+6+e}" for e in range(2)] + \
               [f"v_add_f32 v{r+e}, v{r+e}, v{r+4+e}" for e in range(2)]

    def stats(s, scale):
        return [f"v_mul_f32 v{s}, {f32(-1/1024)}, v{s}", f"v_mul_f32 v{s+1}, {f32(1/1024)}, v{s+1}",
                f"v_fma_f32 v{s+1}, -v{s}, v{s}, v{s+1}", f"v_max_f32 v{s+1}, 0, v{s+1}", f"v_add_f32 v{s+1}, {f32(EPS)}, v{s+1}",
                f"v_rsq_f32 v{s+2}, v{s+1}", "s_nop 0", f"v_mul_f32 v{s+2}, {f32(scale)}, v{s+2}" if scale != 1 else None,
                f"v_mul_f32 v{s+1}, v{s}, v{s+2}", f"v_mov_b32 v{s}, v{s+2}"]
    def reads(fi):
        o = []
        for s in range(2):
            f = F[fi][s]
            o += [f"ds_read_b128 {vr(f['X'][i],4)}, v{aX[s][i]}" for i in range(2)]
            for t in range(4):
                for j in range(2):
                    o.append(f"ds_read_b64_tr_b16 {vr(f['W'][t]+2*j,2)}, v{aW[t]} offset:{s*8192+j*1024}")
        return o

    def mfmas(fi):
        X = lambda s, i: vr(F[fi][s]["X"][i], 4)
        W = lambda s, t: vr(F[fi][s]["W"][t], 4)
        On = vr(ONES, 4)
        o = []
        for t in range(4):
            if t < 2:
                o += [m16(vr(cs[t], 4), W(s, t), On) for s in range(2)]
            o += [m16(vr(acc[t][i], 4), W(s, t), X(s, i)) for i in range(2) for s in range(2)]
        return o
    va = [f"v_add_u32 v{a}, s{sRd}, v{b}" for a, b in bases]
    adv = [[f"s_add_u32 s{sRd}, s{sRd}, {STG}", f"s_cmp_eq_u32 s{sRd}, {EA}"], [f"s_cselect_b32 s{sRd}, 0, s{sRd}"]] + \
          [va[i:i + 2] for i in range(0, len(va), 2)]
    k("s_barrier")
    xstamp(k, 7)
    if OPT.get('qcyc'):
        mid_stamp(k, 0)
    for w in range(4):
        k(f"ds_read_b64 {vr(U+2*w,2)}, v{aS} offset:{16384*w}")
    for w in range(4):
        k(f"ds_read_b64 {vr(U+8+2*w,2)}, v{aP} offset:{16384*w}", f"ds_read_b64 {vr(U+16+2*w,2)}, v{aP} offset:{16384*w+2048}")
    r0 = reads(0)
    k(r0[:3], "s_waitcnt lgkmcnt(11)", weave(sum4(U) + [x for x in stats(U, 1) if x], r0[3:12], 0, 12), "s_waitcnt lgkmcnt(12)",
      weave(sum4(U + 8) + sum4(U + 16), r0[12:]))
    for e in range(2):
        k(f"v_mul_f32 v{U+8+e}, v{U}, v{U+8+e}", f"v_fmac_f32 v{U+8+e}, v{U+1}, v{U+16+e}")
    k(f"v_cvt_pk_bf16_f32 v{U+8}, v{U+8}, v{U+9}", f"ds_write_b16 v{aG0}, v{U+8}", f"ds_write_b16_d16_hi v{aG1}, v{U+8}",
      f"v_mov_b64 {vr(sxxE,2)}, {vr(U,2)}")
    k(adv, f"s_lshl_b32 s{sT}, s{sTH}, 1", f"s_add_u32 s{sT}, s{sT}, s{sCH}", f"s_lshl_b32 s{sT}, s{sT}, 7",
      f"v_lshl_add_u32 v{aP}, v{TOK}, 3, s{sT}", f"v_xor_b32 v{aS}, 128, v{aP}", "s_waitcnt lgkmcnt(0)")
    k.label("L_f_qloop")
    for f in range(2):
        k("s_barrier")
        m = weave(mfmas(f), reads(1 - f), 0, 11)
        if f == 0:
            k(weave(m, adv + [[f"s_cmp_eq_u32 s{sN}, s{sFl}"]], len(m) - 8, len(m) - 1))
            k("s_cbranch_scc1 L_f_flag")
            k.label("L_f_flagged")
        else:
            k(weave(m, adv + [[f"s_sub_u32 s{sN}, s{sN}, 1", f"s_cmp_lg_u32 s{sN}, 0"]], len(m) - 8, len(m) - 1))
        k("s_waitcnt lgkmcnt(0)")
    k("s_cbranch_scc1 L_f_qloop")
    k("s_barrier")
    ST = [sx, sxx]
    c2, c3 = S[0] + 8, S[0] + 12
    k(f"buffer_load_dwordx2 {vr(ST[0],2)}, v{aP}, s[{SWS}:{SWS+3}], s{sS1} offen sc1",
      f"buffer_load_dwordx2 {vr(ST[1],2)}, v{aS}, s[{SWS}:{SWS+3}], s{sS1} offen sc1")
    pre = [[f"s_lshl_b32 s{sT}, s{sCH}, 2", f"s_lshl_b32 s{sT2}, s{sTH}, 1"], [f"s_add_u32 s{sT}, s{sT}, s{sT2}", f"s_lshl_b32 s{sT}, s{sT}, 6"],
           [f"v_lshl_add_u32 v{T1}, v{G}, 4, s{sT}"]]
    m = weave(mfmas(0), reads(1), 0, 11)
    k(weave(m, pre, len(m) - 8, len(m) - 1), "s_waitcnt lgkmcnt(0)")
    m = mfmas(1)
    k(m[:16], f"ds_write_b128 v{T1}, {vr(cs[0],4)} offset:{TBL+512}", m[16], f"ds_write_b128 v{T1}, {vr(cs[1],4)} offset:{TBL+576}", m[17:])
    xstamp(k, 8)
    if OPT.get('qcyc'):
        mid_stamp(k, 1)
    k(f"v_xor_b32 v{T1}, 128, v{T1}", "s_waitcnt lgkmcnt(0)", "s_barrier")
    k(f"ds_read_b128 {vr(c2,4)}, v{T1} offset:{TBL+512}", f"ds_read_b128 {vr(c3,4)}, v{T1} offset:{TBL+576}")
    for r0, n in ((S[3], 16), (VB[1], 8)):
        for i in range(0, n, 2):
            k(f"v_mov_b64 {vr(r0+i,2)}, 0")
    k(f"s_lshl_b32 s{sT}, s{sTB}, 3", f"s_add_u32 s{sT}, s{sT}, s{sHG}", f"s_lshl_b32 s{sT}, s{sT}, 1", f"s_add_u32 s{sT}, s{sT}, s{sCH}",
      f"s_lshl_b32 s{sT}, s{sT}, 13", f"s_mul_i32 s{sT2}, s{sTH}, 6144", f"s_add_u32 s{sT}, s{sT}, s{sT2}",
      f"s_add_u32 s{sOo}, s{sT}, {OF}", f"s_xor_b32 s{sOo1}, s{sOo}, 4096",
      f"s_mov_b32 s{sRd}, {KVB+SLOT}", f"s_mov_b32 s{sC}, 8")
    k("s_waitcnt vmcnt(0) lgkmcnt(0)")
    for i in range(2):
        k(f"v_mul_f32 v{ST[i]}, {f32(QSCALE)}, v{ST[i]}", f"v_mul_f32 v{ST[i]+1}, {f32(QSCALE)}, v{ST[i]+1}")
    csr = [cs[0], cs[1], c2, c3]
    for p in range(2):
        for i in range(2):
            o = Q[p] + 4 * i
            for jt in range(2):
                t = 2 * p + jt
                a = acc[t][i]
                for hh in (0, 2):
                    k(f"v_pk_mul_f32 {vr(a+hh,2)}, {vr(a+hh,2)}, {vr(ST[i],2)} op_sel_hi:[1,0]")
                for hh in (0, 2):
                    k(f"v_pk_fma_f32 {vr(a+hh,2)}, {vr(csr[t]+hh,2)}, {vr(ST[i],2)}, {vr(a+hh,2)} op_sel:[0,1,0] op_sel_hi:[1,1,1]")
                k(f"v_cvt_pk_bf16_f32 v{o+2*jt}, v{a}, v{a+1}", f"v_cvt_pk_bf16_f32 v{o+2*jt+1}, v{a+2}, v{a+3}")
    for p in range(2):
        for r in range(4):
            k(f"v_permlane16_swap_b32 v{Q[p]+r}, v{Q[p]+4+r}")
    k("s_branch L_f_att")
    k.label("L_f_flag")
    k(f"s_cmp_lg_u32 s{sFl}, 7", "s_cbranch_scc1 L_f_flag2")
    k(f"ds_read_b128 {vr(sxE,4)}, v{vE} offset:8192", f"v_lshlrev_b32 v{T0}, 3, v{L}",
      f"s_cmp_eq_u32 s{sHG}, 0", f"s_cselect_b32 s{sT}, s{sFg}, {OOB}",
      f"buffer_store_dwordx2 {vr(O[0],2)}, v{T0}, s[{SWS}:{SWS+3}], s{sT} offen sc1",
      f"s_and_b32 s{sT}, s{sHG}, 3", f"s_lshl_b32 s{sT}, s{sT}, 7", f"s_add_u32 s{sT}, s{sT}, s{sS1}", "s_mov_b64 exec, 0xffff",
      f"buffer_store_dwordx2 {vr(sxxE,2)}, v{T0}, s[{SWS}:{SWS+3}], s{sT} offen sc1", "s_mov_b64 exec, -1", "s_waitcnt lgkmcnt(0)",
      f"buffer_store_dwordx4 {vr(sxE,4)}, v{vKo}, s[{SKV}:{SKV+3}], s{sKV} offen sc1",
      f"s_mov_b32 s{sFl}, {OPT.get('flagit', 5)}", "s_branch L_f_flagged")
    k.label("L_f_flag2")
    k(f"s_and_b32 s{sT}, s2, 0xfc", f"v_mov_b32 v{T0}, s{sT}", f"v_mov_b32 v{T1}, 1", "s_mov_b64 exec, 1", "s_waitcnt vmcnt(0)",
      f"global_atomic_add v{T0}, v{T1}, s[{SDBG}:{SDBG+1}] sc1", "s_mov_b64 exec, -1", "s_branch L_f_flagged")
    k(island(back="L_f_back", jump=False))
    k.label("L_f_att")
    k("s_barrier")
    if not (OPT.get('qcyc') or OPT.get('ocyc')):
        mid_stamp(k, 0)
    rdK = lambda t: [f"ds_read_b128 {vr(KB[t&1]+4*m,4)}, v{vRd} offset:{(t%8)*4096+1024*m}" for m in range(2)]
    rdV = lambda t: [f"ds_read_b128 {vr(VB[t&1]+4*m,4)}, v{vRd} offset:{(t%8)*4096+2048+1024*m}" for m in range(2)]
    qk = lambda u, c="0": [m32(vr(S[u % 4], 16), vr(KB[(u >> 1) & 1], 4), vr(Q[u & 1], 4), c),
                           m32(vr(S[u % 4], 16), vr(KB[(u >> 1) & 1] + 4, 4), vr(Q[u & 1] + 4, 4))]
    pv = lambda u: [f"v_smfmac_f32_32x32x32_bf16 {vr(O[u&1],16)}, {vr(VB[(u>>1)&1]+4*m,4)}, {vr(S[u%4]+8*m,8)}, v{IDX}" for m in range(2)]
    sm = lambda u: [f"v_smfmac_f32_16x16x64_bf16 {vr(LS[u&1],4)}, {vr(SUMA,4)}, {vr(S[u%4]+8*m,8)}, v{IDX}" for m in range(2)]
    k(rdK(0), rdV(0), "s_waitcnt lgkmcnt(0)", qk(0), "s_nop 7", "s_nop 3")
    k(".p2align 6")
    k.label("L_k1_loop")
    for u in range(16):
        ex = [f"v_exp_f32 v{S[u%4]+i}, v{S[u%4]+i}" for i in range(16)]
        mf = qk(u + 1) + pv(u - 1) + sm(u - 1)
        sl = [[] for _ in range(6)]
        t = u >> 1
        rd = rdK(t + 1) if u % 2 == 0 else rdV(t + 1)
        if u == 12:
            sl[2] += [f"s_cmp_eq_u32 s{sC}, 2"]
            sl[3] += ["s_cbranch_scc1 L_f_res", "L_f_resd:"]
        if u == 13:
            sl[2] += [f"s_add_u32 s{sRd}, s{sRd}, {SLOT}"]
            sl[3] += [f"s_cmp_eq_u32 s{sRd}, {KVB+3*SLOT}"]
            sl[4] += [f"s_cselect_b32 s{sRd}, {KVB}, s{sRd}"]
            sl[5] += ["s_waitcnt lgkmcnt(0)", f"v_add_u32 v{vRd}, s{sRd}, v{vLin}"]
        if u == 14:
            sl[0] += ["s_barrier"]
            sl[1].append(rd[0]); sl[2].append(rd[1])
        else:
            sl[0].append(rd[0]); sl[1].append(rd[1])
        if u == 15:
            sl[2] += [f"s_sub_u32 s{sC}, s{sC}, 1"]
            sl[3] += [f"s_cmp_lg_u32 s{sC}, 0"]
        if u % 2 == 0:
            sl[5].append("s_waitcnt lgkmcnt(0)")
        cuts = [0, 3, 6, 9, 12, 14, 16]
        for i in range(6):
            k(mf[i], sl[i], ex[cuts[i]:cuts[i + 1]])
    k("s_cbranch_scc1 L_k1_loop")
    if not (OPT.get('qcyc') or OPT.get('ocyc')):
        mid_stamp(k, 1)
    vO, aO0, aO1 = aG0, aG1, vKo
    PK = [S[1], S[1] + 8]

    def check(q):
        o = [f"v_maximum3_f32 v{T0}, abs(v{O[q]}), abs(v{O[q]+1}), v{LS[q]}", f"v_maximum3_f32 v{T1}, abs(v{O[q]+2}), abs(v{O[q]+3}), abs(v{O[q]+4})"]
        for i in range(5, 15, 2):
            t = [T0, T1][(i // 2) & 1]
            o.append(f"v_maximum3_f32 v{t}, abs(v{O[q]+i}), abs(v{O[q]+i+1}), v{t}")
        o += [f"v_maximum3_f32 v{T0}, abs(v{O[q]+15}), v{T1}, v{T0}",
              f"v_cmp_nle_f32 vcc, {f32(2.0**-80)}, v{LS[q]}", f"s_mov_b64 s[70:71], vcc",
              f"v_cmp_nge_f32 vcc, {f32(2.0**100)}, v{T0}", f"s_or_b64 s[70:71], s[70:71], vcc",
              "s_branch L_k1_slow" if OPT["force_slow"] == q + 1 else None, "s_cbranch_scc1 L_k1_slow"]
        return o

    def out(q):
        o = [f"v_rcp_f32 v{LS[q]}, v{LS[q]}", "s_nop 0"]
        for m in range(2):
            d = PK[q] + 4 * m
            o += [f"v_pk_mul_f32 {vr(O[q]+8*m+i,2)}, {vr(O[q]+8*m+i,2)}, {vr(LS[q],2)} op_sel_hi:[1,0]" for i in range(0, 8, 2)]
            o += [f"v_cvt_pk_bf16_f32 v{d+i}, v{O[q]+8*m+2*i}, v{O[q]+8*m+2*i+1}" for i in range(4)]
            o.append(f"buffer_store_dwordx4 {vr(d,4)}, v{vO}, s[{SWS}:{SWS+3}], s{[sOo,sOo1][q]} offen offset:{512*m} sc1")
        return o
    k("s_nop 1", pv(15), sm(15), "s_nop 7", check(0), out(0), check(1))
    k.label("L_k1_out")
    k(out(1))
    for q in range(2):
        for m in range(2):
            k(f"ds_write_b128 v{[aO0,aO1][q]}, {vr(PK[q]+4*m,4)} offset:{512*m}")
    k("s_branch L_f_oproj")
    k.label("L_f_res")
    k(f"v_xor_b32 v{T0}, 64, v{vRow}", f"s_mov_b32 s{sT}, 32768")
    for i in range(2):
        for b in range(2):
            k(f"buffer_load_dwordx4 {vr(RES[i][b],4)}, v{[vRow,T0][b]}, s[{SX}:{SX+3}], {['0', f's{sT}'][i]} offen")
    k(f"v_and_b32 v{T0}, 1, v{G}", f"v_xor_b32 v{T0}, s{sCH}, v{T0}", f"v_lshlrev_b32 v{T0}, 10, v{T0}", f"v_lshrrev_b32 v{T1}, 5, v{L}",
      f"v_lshl_add_u32 v{T0}, v{T1}, 8, v{T0}", f"v_lshl_add_u32 v{vO}, v{TOK}, 4, v{T0}",
      f"s_lshl_b32 s{sT}, s{sCH}, 13", f"s_mul_i32 s{sT2}, s{sTH}, 6144", f"s_add_u32 s{sT}, s{sT}, s{sT2}", f"s_add_u32 s{sT}, s{sT}, {XR}",
      f"v_add_u32 v{aO0}, s{sT}, v{vO}", f"v_xor_b32 v{aO1}, 4096, v{aO0}")
    k("s_branch L_f_resd")
    k(island(back="L_f_back2", jump=False))
    k.label("L_f_oproj")
    bT, aT = bX[0][0], aX[0][0]
    k("s_waitcnt vmcnt(4)")
    for i in range(2):
        for b in range(2):
            k(f"v_permlane16_swap_b32 v{RES[i][b]}, v{RES[i][b]+2}", f"v_permlane16_swap_b32 v{RES[i][b]+1}, v{RES[i][b]+3}")
    k(f"s_lshl_b32 s{sT}, s{sTH}, 11", f"s_add_u32 s{sT}, s{sT}, {XR}", f"v_add_u32 v{bT}, s{sT}, v{vLin}", f"v_add_u32 v{aT}, s{sT}, v{vLin}")
    for t in range(4):
        k(f"v_subrev_u32 v{aW[t]}, 8192, v{bW[t]}", f"v_subrev_u32 v{bW[t]}, 8192, v{bW[t]}")
    k(f"v_mov_b32 v{T0}, 1", "s_mov_b64 exec, 1", "s_waitcnt vmcnt(0)",
      f"buffer_atomic_add v{T0}, v{vLin}, s[{SWS}:{SWS+3}], s{sFg} offen sc1", "s_mov_b64 exec, -1")
    xstamp(k, 9)
    k(f"s_mov_b32 s{sRd}, 0", "s_waitcnt lgkmcnt(0)", "s_barrier")

    def oreads(fi):
        o = []
        for s in range(2):
            f = F[fi][s]
            o += [f"ds_read_b128 {vr(f['X'][i],4)}, v{aT} offset:{s*4096+i*1024}" for i in range(2)]
            for t in range(4):
                for j in range(2):
                    o.append(f"ds_read_b64_tr_b16 {vr(f['W'][t]+2*j,2)}, v{aW[t]} offset:{s*8192+j*1024}")
        return o

    def omf(fi):
        return [m16(vr(acc[t][i ^ (t & 1)], 4), vr(F[fi][s]["W"][t], 4), vr(F[fi][s]["X"][i ^ (t & 1)], 4))
                for t in range(4) for i in range(2) for s in range(2)]
    oadv = [[f"s_add_u32 s{sRd}, s{sRd}, 16384", f"s_and_b32 s{sRd}, s{sRd}, 0x1ffff"], [f"s_bfe_u32 s{sRx}, s{sRd}, 0xf0001", f"v_add_u32 v{aW[0]}, s{sRd}, v{bW[0]}"],
            [f"v_add_u32 v{aW[t]}, s{sRd}, v{bW[t]}" for t in (1, 2)], [f"v_add_u32 v{aW[3]}, s{sRd}, v{bW[3]}", f"v_add_u32 v{aT}, s{sRx}, v{bT}"]]

    def ostep(f, extra):
        m = weave(omf(f), oreads(1 - f), 0, 10)
        k(weave(m, extra, len(m) - 6, len(m)) if extra else m, "s_waitcnt lgkmcnt(0)")
    k(oreads(0), oadv)
    for i in range(2):
        for b in range(2):
            for jt in range(2):
                for hh in range(2):
                    a, r = acc[2 * b + jt][i] + 2 * hh, RES[i][b] + 2 * jt + hh
                    k(f"v_lshlrev_b32 v{a}, 16, v{r}", f"v_and_b32 v{a+1}, 0xffff0000, v{r}")
    k("s_nop 0", "s_waitcnt lgkmcnt(0)")
    ostep(0, oadv)
    k(omf(1))
    k(f"s_add_u32 s{sH0}, s{sOo}, {HF-OF}", f"s_add_u32 s{sH1}, s{sOo1}, {HF-OF}",
      f"s_lshl_b32 s{sT}, s{sTB}, 1", f"s_add_u32 s{sT}, s{sT}, s{sTH}", f"s_lshl_b32 s{sT}, s{sT}, 12",
      f"s_lshl_b32 s{sT2}, s{sHG}, 1", f"s_add_u32 s{sT2}, s{sT2}, s{sCH}", f"s_lshl_b32 s{sT2}, s{sT2}, 8",
      f"s_add_u32 s{sT}, s{sT}, s{sT2}", f"s_add_u32 s{sFg}, s{sT}, {STP}", f"s_mov_b32 s{sN}, 6")
    k("s_barrier", "s_barrier")
    if OPT.get("ocyc"):
        mid_stamp(k, 0)
    k(oreads(0), oadv, "s_waitcnt lgkmcnt(0)")
    k.label("L_f_oloop")
    k("s_barrier")
    ostep(0, oadv)
    k("s_barrier")
    ostep(1, oadv + [[f"s_sub_u32 s{sN}, s{sN}, 1", f"s_cmp_lg_u32 s{sN}, 0"]])
    k("s_cbranch_scc1 L_f_oloop")
    k("s_barrier")
    ostep(0, [])
    k(omf(1))
    if OPT.get("ocyc"):
        mid_stamp(k, 1)
    SUM = [O[0], O[0] + 4]
    for b in range(2):
        for i in range(2):
            o = Q[b] + 4 * i
            for jt in range(2):
                a = acc[2 * b + jt][i]
                k(f"v_cvt_pk_bf16_f32 v{o+2*jt}, v{a}, v{a+1}", f"v_cvt_pk_bf16_f32 v{o+2*jt+1}, v{a+2}, v{a+3}")
        k("s_nop 0")
        for i in range(2):
            o = Q[b] + 4 * i
            k(f"v_permlane16_swap_b32 v{o}, v{o+2}", f"v_permlane16_swap_b32 v{o+1}, v{o+3}",
              f"buffer_store_dwordx4 {vr(o,4)}, v{vHo}, s[{SWS}:{SWS+3}], s{[sH0,sH1][b]} offen offset:{1024*i} sc1")
    for t in range(4):
        for hh in (0, 2):
            for i in range(2):
                a = vr(acc[t][i] + hh, 2)
                if t == 0 and hh == 0:
                    k(f"v_pk_mul_f32 {vr(SUM[i]+2,2)}, {a}, {a}")
                else:
                    src = vr(acc[0][i], 2) if (t == 0 and hh == 2) else vr(SUM[i], 2)
                    k(f"v_pk_add_f32 {vr(SUM[i],2)}, {src}, {a}", f"v_pk_fma_f32 {vr(SUM[i]+2,2)}, {a}, {a}, {vr(SUM[i]+2,2)}")
    for i in range(2):
        k(f"v_add_f32 v{SUM[i]}, v{SUM[i]}, v{SUM[i]+1}", f"v_add_f32 v{SUM[i]+1}, v{SUM[i]+2}, v{SUM[i]+3}")
    k(f"v_lshrrev_b32 v{T0}, 6, v{vHo}", f"v_permlane32_swap_b32 v{SUM[0]}, v{SUM[0]+1}", f"v_permlane32_swap_b32 v{SUM[1]}, v{SUM[1]+1}", "s_nop 0",
      f"v_add_f32 v{SUM[0]}, v{SUM[0]}, v{SUM[0]+1}", f"v_add_f32 v{SUM[1]}, v{SUM[1]}, v{SUM[1]+1}",
      f"v_and_b32 v{T0}, 12, v{T0}", f"v_lshl_add_u32 v{T0}, v{TOK}, 4, v{T0}",
      f"v_permlane16_swap_b32 v{SUM[0]}, v{SUM[1]}", "s_nop 0",
      f"v_add_f32 v{SUM[0]}, v{SUM[0]}, v{SUM[1]}",
      f"buffer_store_dword v{SUM[0]}, v{T0}, s[{SWS}:{SWS+3}], s{sFg} offen sc1")
    tail(k, 0, sW)
    k(island(back="L_f_back", jump=False))
    k.label("L_f_setup")
    if OPT.get("isl", 1):
        k(f"s_cmp_eq_u32 s{sW}, 0", f"s_cbranch_scc1 L_isl{ISL[0][0]}", f"s_cmp_eq_u32 s{sW}, 1", f"s_cbranch_scc1 L_isl{ISL[1][0]}")
    k.label("L_f_back")
    k("s_waitcnt lgkmcnt(0)", ws_shift(SWS), srd_tail(SWS, WS_SZ), srd_from(SKV, SWS, KVF, 262144))
    k(f"s_lshl_b32 s{sGW}, s2, 2", f"s_add_u32 s{sGW}, s{sGW}, s{sW}",
      f"s_lshl_b32 s{sWrJ}, s{sW}, 12", f"s_add_u32 s{sWrJ}, s{sWrJ}, {JB}")
    k(f"v_lshrrev_b32 v{T0}, 4, v{L}", f"v_lshlrev_b32 v{T0}, 10, v{T0}", f"v_bfe_u32 v{T1}, v{L}, 2, 2", f"v_lshl_add_u32 v{T0}, v{T1}, 7, v{T0}",
      f"v_bfe_u32 v{T1}, v{L}, 3, 1", f"v_lshl_add_u32 v{T0}, v{T1}, 6, v{T0}", f"v_add_u32 v{T0}, s{sWrJ}, v{T0}", f"v_and_b32 v{T1}, 3, v{L}",
      f"v_lshl_add_u32 v{bJ[0]}, v{T1}, 4, v{T0}", f"v_xor_b32 v{bJ[1]}, 64, v{bJ[0]}")
    strip, kb0, mat = 66, 67, 68
    k(f"s_lshr_b32 s{strip}, s{sGW}, 3", f"s_and_b32 s{kb0}, s{sGW}, 7", f"s_lshl_b32 s{kb0}, s{kb0}, 2",
      f"s_cmp_ge_u32 s{strip}, 112", "s_cbranch_scc1 L_k1_wo")
    k(f"s_cmp_ge_u32 s{strip}, 56", f"s_cselect_b32 s{mat}, 1, 0",
      f"s_cselect_b32 s{SJ}, s26, s24", f"s_cselect_b32 s{SJ+1}, s27, s25",
      f"s_mul_i32 s{sT}, s{mat}, 56", f"s_sub_u32 s{strip}, s{strip}, s{sT}",
      f"s_mov_b32 s{SJ+2}, {1024*7168}", f"s_mov_b32 s{sStr}, 7168", f"s_mov_b32 s{sDstep}, {14*1024}",
      f"s_mov_b32 s{sBsz}, {3584*2048}",
      f"v_lshl_add_u32 v{aJ[0]}, v{T1}, 3, v{T0}")
    for i in range(1, 4):
        k(f"v_xor_b32 v{aJ[i]}, {32*i}, v{aJ[0]}")
    for i in range(4):
        T, fb, pos = 69, 70, 71
        k(f"s_lshl_b32 s{T}, s{strip}, 2", f"s_add_u32 s{T}, s{T}, {i}",
          f"s_mul_i32 s{fb}, s{T}, 9363", f"s_lshr_b32 s{fb}, s{fb}, 16",
          f"s_sub_u32 s{pos}, s{mat}, s{fb}", f"s_mul_i32 s{pos}, s{pos}, 7", f"s_add_u32 s{pos}, s{T}, s{pos}",
          f"s_lshl_b32 s{sT}, s{fb}, 5", f"s_add_u32 s{sT}, s{sT}, s{kb0}", f"s_mul_i32 s{sT}, s{sT}, 14",
          f"s_add_u32 s{sT}, s{sT}, s{pos}", f"s_lshl_b32 s{sT}, s{sT}, 10", f"s_add_u32 s{sD[i]}, s{sT}, {WGU}",
          f"s_lshl_b32 s{sT}, s{kb0}, 3", f"s_add_u32 s{sT}, s{sT}, s{fb}", f"s_mul_i32 s{sT}, s{sT}, 14",
          f"s_add_u32 s{sT}, s{sT}, s{pos}", f"s_lshl_b32 s{sT}, s{sT}, 6", f"s_add_u32 s{sCs[i]}, s{sT}, {CSP}")
    k("s_branch L_k1_jp")
    k.label("L_k1_wo")
    k(f"s_mov_b32 s{SJ}, s24", f"s_mov_b32 s{SJ+1}, s25", f"s_mov_b32 s{SJ+2}, 0", f"s_mov_b32 s{sStr}, 2048", f"s_mov_b32 s{sDstep}, 0", f"s_mov_b32 s{sBsz}, 0")
    for i in range(4):
        k(f"s_mov_b32 s{sD[i]}, {OOB}", f"s_mov_b32 s{sCs[i]}, {OOB}", f"v_mov_b32 v{aJ[i]}, v{bJ[0]}")
    k.label("L_k1_jp")
    k(f"s_mov_b32 s{SJ+3}, 0x00020000")
    k(f"v_lshrrev_b32 v{T0}, 3, v{L}", f"v_bfe_u32 v{T1}, v{L}, 4, 1", f"v_lshlrev_b32 v{T1}, 2, v{T1}",
      f"v_and_b32 v{T2}, 7, v{L}", f"v_xor_b32 v{T1}, v{T1}, v{T2}", f"v_lshlrev_b32 v{T1}, 4, v{T1}",
      f"v_mul_lo_u32 v{vJ}, v{T0}, s{sStr}", f"v_lshl_add_u32 v{vJB}, v{T0}, 11, v{T1}", f"v_add_u32 v{vJ}, v{vJ}, v{T1}",
      f"s_lshl_b32 s{sT}, s{kb0}, 5", f"s_mul_i32 s{sT}, s{sT}, s{sStr}", f"s_lshl_b32 s{sT2}, s{strip}, 7", f"s_add_u32 s{sT}, s{sT}, s{sT2}",
      f"v_add_u32 v{vJ}, s{sT}, v{vJ}",
      f"s_lshl_b32 s{sT}, s{sStr}, 3", f"s_sub_u32 s{sJa}, s{sT}, 1024", f"s_add_u32 s{sJb}, s{sT}, 3072", f"s_mov_b32 s{sJo}, 0")
    k(f"s_mul_i32 s{strip}, s{sGW}, 1171", f"s_lshr_b32 s{strip}, s{strip}, 16",
      f"s_mul_i32 s{sT}, s{strip}, 56", f"s_sub_u32 s{kb0}, s{sGW}, s{sT}", f"s_lshl_b32 s{kb0}, s{kb0}, 1",
      f"s_cmp_ge_u32 s{kb0}, 48", f"s_cselect_b32 s69, 48, 0", f"s_cselect_b32 s70, 8, 0", f"s_sub_u32 s69, s{kb0}, s69",
      f"s_and_b32 s71, s69, 7", f"s_add_u32 s70, s70, s71", f"s_lshr_b32 s69, s69, 3",
      f"s_sub_u32 s71, s{kb0}, 96", f"s_cmp_ge_u32 s{kb0}, 96", f"s_cselect_b32 s69, 6, s69", f"s_cselect_b32 s70, s71, s70",
      f"s_mul_i32 s70, s70, 14", f"s_add_u32 s{sT}, s70, s69", f"s_lshl_b32 s{sT}, s{sT}, 15",
      f"s_lshl_b32 s{sT2}, s{strip}, 7", f"s_add_u32 s{sT}, s{sT}, s{sT2}",
      f"v_add_u32 v{vJB}, s{sT}, v{vJB}",
      f"s_lshr_b32 s{sT}, s{strip}, 1", f"s_mul_i32 s{sT}, s{sT}, 112", f"s_add_u32 s{sT}, s{sT}, s{kb0}", f"s_lshl_b32 s{sT}, s{sT}, 1",
      f"s_and_b32 s{sT2}, s{strip}, 1", f"s_add_u32 s{sT}, s{sT}, s{sT2}", f"s_lshl_b32 s{sT}, s{sT}, 12",
      f"s_add_u32 s{sDB}, s{sT}, {WDF}", f"s_cmp_eq_u32 s{sBsz}, 0", f"s_cselect_b32 s{sDB}, {OOB}, s{sDB}")
    k(f"v_and_b32 v{T0}, 15, v{L}", f"v_cmp_eq_u32 vcc, 0, v{T0}", f"v_mov_b32 v{T1}, {OOB}", "s_nop 0",
      f"v_cndmask_b32 v{vCs}, v{T1}, v{L}, vcc")
    for i in range(4):
        k(f"v_mov_b32 v{ONES+i}, 0x3f803f80")
    k(f"v_lshlrev_b32 v{vPo}, 2, v{L}")
    if OPT.get("hprof"):
        k("v_writelane_b32 v200, s92, 0", "s_mov_b32 s86, 5")
    hstamp(k, 1)
    k("s_barrier")
    hstamp(k, 2)
    npre = OPT.get("npre", 3)
    for n in range(npre):
        q_x(n * STG); q_w(n * STG)
    hstamp(k, 3)
    k(f"s_waitcnt vmcnt({6*(npre-1)})", "s_barrier")
    hstamp(k, 4)
    for n in range(npre, 4):
        q_x(n * STG); q_w(n * STG)
    k("s_waitcnt vmcnt(12)", "s_barrier")
    k.label("L_f_ld2")
    if OPT.get("hprof"):
        k("s_mov_b32 m0, s86", "s_add_u32 s86, s86, 1")
    hstamp(k, "m0")
    q_stage()
    k(f"s_cmp_lg_u32 s{sN}, 0", f"s_waitcnt vmcnt({6*D})", "s_barrier", "s_cbranch_scc1 L_f_ld2")
    hstamp(k, 17)
    poll = f"global_load_dword v{PF4}, v{vPo}, s[{SDBG}:{SDBG+1}] sc1"
    k(f"s_lshl_b32 s{sKo}, s{sW}, 13", f"s_add_u32 s{sWr}, s{sKo}, {KVB}", f"s_mov_b32 s{sN}, {1<<20}")
    k(f"s_cmp_eq_u32 s{sW}, 0", "s_cbranch_scc1 L_f_poll0", "s_waitcnt vmcnt(6)", "s_barrier", "s_waitcnt vmcnt(0)", "s_branch L_f_polled")
    k.label("L_f_poll0")
    k(poll, "s_waitcnt vmcnt(7)", "s_barrier")
    k.label("L_f_poll")
    k("s_waitcnt vmcnt(0)", f"v_cmp_ne_u32 vcc, 4, v{PF4}", f"s_sub_u32 s{sN}, s{sN}, 1", "s_cbranch_scc1 L_f_polled",
      "s_cbranch_vccz L_f_polled", "s_sleep 2", poll, "s_branch L_f_poll")
    k.label("L_f_polled")
    hstamp(k, 18)
    k("s_barrier")
    hstamp(k, 19)

    def kv_dma(c):
        o = []
        for hh in range(2):
            o += [f"s_add_u32 m0, s{sWr}, {((c+1)%3)*SLOT+4096*hh}", "s_nop 0"]
            for i in range(4):
                o.append(f"buffer_load_dwordx4 v{vLin}, s[{SKV}:{SKV+3}], s{sKo} offen offset:{1024*i} sc1 lds")
            o.append(f"s_add_u32 s{sKo}, s{sKo}, {4096 if hh == 0 else 32768-4096}")
        return o
    k(kv_dma(0)[:7], "s_barrier")
    hstamp(k, 20)
    k(kv_dma(0)[7:], "s_waitcnt vmcnt(0)")
    hstamp(k, 21)
    k("s_barrier")
    hstamp(k, 22)
    k(kv_dma(1))
    vm = []

    def wait_for(tag):
        n = len(vm) - 1 - max(i for i, t in enumerate(vm) if t == tag)
        return f"s_waitcnt vmcnt({n})"
    vm += ["kv1"] * 8
    k(f"s_mov_b32 s{SWQ}, s20", f"s_mov_b32 s{SWQ+1}, s21", f"s_lshl_b32 s{sWo}, s{sHG}, 18",
      f"s_lshl_b32 s{sBW}, s{sTH}, 1", f"s_add_u32 s{sBW}, s{sBW}, s{sCH}", f"s_lshl_b32 s{sBW}, s{sBW}, 10",
      f"s_lshl_b32 s{sRd}, s{sW}, 11", f"s_lshl_b32 s{sX}, s{sHG}, 14", f"s_add_u32 s{sX}, s{sX}, s{sRd}",
      f"s_lshl_b32 s{sOo}, s{sTB}, 17", f"s_add_u32 s{sOo}, s{sOo}, {OF}")

    def o_w(n):
        k(f"s_add_u32 s{sT}, s{sWo}, {n*0x20000}", f"s_and_b32 s{sT}, s{sT}, 0x1fffff")
        for i in range(4):
            k(f"s_add_u32 m0, s{sBW}, {(n%8)*16384+4096*i}", "s_nop 0", f"buffer_load_dwordx4 v{vW[i]}, s[{SWQ}:{SWQ+3}], s{sT} offen lds")
        vm.extend([f"w{n}"] * 4)

    def o_x(n):
        k(f"s_add_u32 s{sT}, s{sX}, {n*8192}", f"s_and_b32 s{sT}, s{sT}, 0x1ffff", f"s_add_u32 m0, s{sRd}, {XR+(n%4)*8192}", f"s_add_u32 s{sT}, s{sT}, s{sOo}")
        for i in range(2):
            k(f"buffer_load_dwordx4 v{vLin}, s[{SWS}:{SWS+3}], s{sT} offen offset:{1024*i} sc1 lds")
        vm.extend([f"x{n}"] * 2)
    for c in range(8):
        if c + 2 < 8:
            k(kv_dma(c + 2)); vm += [f"kv{c+2}"] * 8
        if c < (3 if OPT.get("s4", 0) else 1):
            k(f"s_lshl_b32 s{sT}, s{sGW}, 12", f"s_add_u32 s{sT}, s{sT}, {XB4[c+1]}", f"v_mov_b64 {vr(PF4,2)}, -1", f"v_mov_b64 {vr(PF4+2,2)}, -1")
            for i in range(4):
                k(f"buffer_store_dwordx4 {vr(PF4,4)}, v{vLin}, s[{SWS}:{SWS+3}], s{sT} offen offset:{1024*i} sc1")
            vm += ["st"] * 4
        if c == 3:
            k(f"s_lshl_b32 s{sT}, s{sGW}, 10", f"s_add_u32 s{sT}, s{sT}, {FL2}", f"s_cmp_lt_u32 s{sGW}, 8", f"s_cselect_b32 s{sT}, s{sT}, {OOB}",
              f"v_mov_b64 {vr(PF4,2)}, 0", f"v_mov_b64 {vr(PF4+2,2)}, 0",
              f"buffer_store_dwordx4 {vr(PF4,4)}, v{vLin}, s[{SWS}:{SWS+3}], s{sT} offen sc1")
            vm += ["st"]
        j = c - 1
        proc = 0 <= j < 6 and not OPT.get("nojob")
        if proc:
            k(wait_for(f"j{j}"))
            for f in range(4):
                for jj in range(2):
                    if j < 4:
                        k(f"ds_read_b64_tr_b16 {vr(JF[f]+2*jj,2)}, v{aJ[f]} offset:{jj*512}")
                    else:
                        k(f"ds_read_b64_tr_b16 {vr(JF[f]+2*jj,2)}, v{bJ[f>>1]} offset:{jj*512+(f&1)*8}")
            k("s_waitcnt lgkmcnt(0)")
        if c < 6 and not OPT.get("nojob"):
            if c == 4:
                k(f"s_mov_b32 s{SJ}, s28", f"s_mov_b32 s{SJ+1}, s29", f"s_mov_b32 s{SJ+2}, s{sBsz}",
                  f"s_mov_b32 s{sJo}, 0")
            k(f"s_mov_b32 m0, s{sWrJ}", "s_nop 0")
            for i in range(4):
                k(f"buffer_load_dwordx4 v{vJ if c < 4 else vJB}, s[{SJ}:{SJ+3}], s{sJo} offen offset:{1024*i}{' nt' if OPT.get('jnt', 0) else ''} lds",
                  f"s_add_u32 s{sJo}, s{sJo}, " + (f"s{sJa if i < 3 else sJb}" if c < 4 else str([8, 104, 8, 104][i] * 2048 + (-1024 if i < 3 else 3072))))
            vm += [f"j{c}"] * 4
        if proc:
            for f in range(4):
                if j < 4:
                    k(f"buffer_store_dwordx4 {vr(JF[f],4)}, v{vLin}, s[{SWS}:{SWS+3}], s{sD[f]} offen sc1",
                      f"s_add_u32 s{sD[f]}, s{sD[f]}, s{sDstep}",
                      m16(vr(CS[f], 4), vr(JF[f], 4), vr(ONES, 4), "0" if j == 0 else None))
                else:
                    k(f"buffer_store_dwordx4 {vr(JF[f],4)}, v{vLin}, s[{SWS}:{SWS+3}], s{sDB} offen offset:{1024*f} sc1")
            vm += ["st"] * 4
            if j == 4:
                k(f"s_add_u32 s{sDB}, s{sDB}, 8192")
                for f in range(4):
                    k(f"buffer_store_dwordx4 {vr(CS[f],4)}, v{vCs}, s[{SWS}:{SWS+3}], s{sCs[f]} offen sc1")
                vm += ["st"] * 4
        for n in {5: [0, 2, 3], 6: [4, 5], 7: [1, 6, 7]}.get(c, []):
            o_w(n)
        if c == 1 and OPT.get("isl", 1):
            k(f"s_branch L_isl{[n for n, b in ISL if b == 'L_f_back2'][0]}")
            k.label("L_f_back2")
        if c == 5:
            k(f"s_lshr_b32 s{sT}, s2, 3", f"s_lshl_b32 s{sT}, s{sT}, 11", f"v_and_b32 v{T0}, 255, v0", f"v_lshlrev_b32 v{T0}, 3, v{T0}",
              f"v_add_u32 v{T0}, s{sT}, v{T0}")
            k(f"s_getpc_b64 s[22:23]")
            k.label("L_f_pc2")
            k("s_add_u32 s22, s22, L_code_rest-L_f_pc2", "s_addc_u32 s23, s23, 0",
              f"v_min_u32 v{T0}, L_code_end-L_code_rest-4, v{T0}", f"global_load_dword v{PF4}, v{T0}, s[22:23]")
            vm.append("pf")
        if c == 6:
            k(f"s_and_b32 s{sT}, s{sTB}, 7", f"s_add_u32 s{sT}, s{sT}, 8", f"s_lshl_b32 s{sT}, s{sT}, 17", f"s_add_u32 s{sT}, s{sT}, s{sWo}",
              f"s_and_b32 s{sT}, s{sT}, 0x1fffff")
            for i in range(4):
                k(f"buffer_load_dwordx4 {vr(PF4,4)}, v{vW[i]}, s[{SWQ}:{SWQ+3}], s{sT} offen")
            vm.extend(["pf"] * 4)
        if c + 1 < 8:
            k(wait_for(f"kv{c+1}"))
        k("s_barrier")
    k(f"s_lshl_b32 s{sKo}, s{sTB}, 9", f"s_add_u32 s{sKo}, s{sKo}, {FLG}", f"s_mov_b32 s{sN}, {1<<20}", "s_waitcnt vmcnt(0)")
    hstamp(k, 23)
    k("s_barrier")
    hstamp(k, 24)
    k(f"s_cmp_lg_u32 s{sW}, 0", "s_cbranch_scc1 L_f_polled2", "s_mov_b64 exec, 1")
    k.label("L_f_poll2")
    k(f"s_sleep {OPT['psl']}" if OPT.get("psl") else None)
    k(f"v_mov_b32 v{PF4}, 0", f"buffer_atomic_add v{PF4}, v{vLin}, s[{SWS}:{SWS+3}], s{sKo} offen sc0 sc1", "s_waitcnt vmcnt(0)",
      f"v_cmp_ne_u32 vcc, 32, v{PF4}", f"s_sub_u32 s{sN}, s{sN}, 1", "s_cbranch_scc1 L_f_polled2", "s_cbranch_vccnz L_f_poll2")
    k.label("L_f_polled2")
    k("s_mov_b64 exec, -1")
    hstamp(k, 25)
    k("s_barrier")
    hstamp(k, 26)
    for n in range(2, 6):
        o_x(n)
    k(wait_for("x2"))
    hstamp(k, 27)
    k("s_barrier")
    for n in range(2, 15):
        if n >= 3 and n + 3 < 16:
            o_x(n + 3)
        if OPT.get("wl", 1):
            wn = {2: 8, 3: 9, 4: 10, 6: 11, 7: 12, 9: 13, 10: 14, 11: 15}.get(n)
            if wn:
                o_w(wn)
        elif n >= 3 and n + 7 < 16:
            o_w(n + 7)
        k(wait_for(f"x{n+1}"), "s_barrier")
        if n in (5, 9, 14):
            hstamp(k, 28 + (5, 9, 14).index(n))
    if OPT.get("hprof"):
        k(f"s_lshl_b32 s{sT}, s{sGW}, 7", f"s_add_u32 s{sT}, s{sT}, {STAMP+2*MB}", f"v_lshlrev_b32 v{T0}, 2, v{L}", "s_mov_b64 exec, 0xffffffff",
          f"buffer_store_dword v200, v{T0}, s[{SWS}:{SWS+3}], s{sT} offen")
    hop(k, sW)
    k.label("L_k1_slow")
    k("s_waitcnt vmcnt(0) lgkmcnt(0)", "s_nop 15")
    C = [S[2], S[3]]
    ldK = [f"buffer_load_dwordx4 {vr(KB[0]+4*m,4)}, v{vLin}, s[{SKV}:{SKV+3}], s{sKo} offen offset:{1024*m} sc1" for m in range(2)]
    ldV = [f"buffer_load_dwordx4 {vr(VB[0]+4*m,4)}, v{vLin}, s[{SKV}:{SKV+3}], s{sKo} offen offset:{2048+1024*m} sc1" for m in range(2)]
    k(f"v_mov_b32 v{T0}, 0xff800000", f"v_mov_b32 v{T1}, 0xff800000", f"s_mov_b32 s{sKo}, 0")
    k.label("L_k1_s1")
    k(ldK, "s_waitcnt vmcnt(0)", qk(0), qk(1), "s_nop 15")
    for q in range(2):
        for i in range(0, 16, 2):
            k(f"v_max3_f32 v{[T0,T1][q]}, v{S[q]+i}, v{S[q]+i+1}, v{[T0,T1][q]}")
    k(f"s_add_u32 s{sKo}, s{sKo}, 4096", f"s_cmp_lt_u32 s{sKo}, 262144", "s_cbranch_scc1 L_k1_s1")
    for q in range(2):
        t = [T0, T1][q]
        k(f"v_mov_b32 v{T2}, v{t}", "s_nop 1", f"v_permlane32_swap_b32 v{t}, v{T2}", "s_nop 1", f"v_max_f32 v{t}, v{t}, v{T2}")
        for i in range(16):
            k(f"v_sub_f32 v{C[q]+i}, 0, v{t}", f"v_mov_b32 v{O[q]+i}, 0")
        for i in range(4):
            k(f"v_mov_b32 v{LS[q]+i}, 0")
    k(f"s_mov_b32 s{sKo}, 0")
    k.label("L_k1_s2")
    k(ldK, ldV, "s_waitcnt vmcnt(0)", qk(0, vr(C[0], 16)), qk(1, vr(C[1], 16)), "s_nop 15")
    for q in range(2):
        for i in range(16):
            k(f"v_exp_f32 v{S[q]+i}, v{S[q]+i}")
    k("s_nop 1", pv(0), sm(0), pv(1), sm(1))
    k(f"s_add_u32 s{sKo}, s{sKo}, 4096", f"s_cmp_lt_u32 s{sKo}, 262144", "s_cbranch_scc1 L_k1_s2")
    k("s_nop 15", "s_nop 7", out(0), "s_branch L_k1_out")
    return k


def k_gemm(name, kidx, K, tok_region, w_region, is_down):
    D = OPT.get("gd", 4)
    STG, NS = 24576, D + 2
    N = K // 64
    k = Kern(name, 256, 512, STG * NS)
    SWS, ST_, SW_, SR, SO = 4, 8, 12, 16, 20
    sW, sTB, sNB, sN, sT, sT2, sRd, sWr, sTo, sWo, sTH, sCH, sRes, sDW = range(28, 42)
    v = Alloc(1)
    L, G, TOK, T0, T1, vLin, bT, bW, aT, aW, vRow = [v() for _ in range(11)]
    F = [[dict(X=[v(4, 4) for _ in range(2)], W=[v(4, 4) for _ in range(4)]) for s in range(2)] for _ in range(2)]
    acc = [[v(4, 4) for i in range(2)] for t in range(4)]
    RES = [[v(4, 4) for b in range(2)] for i in range(2)]
    k.vgpr = k.acc = (v.n + 7) // 8 * 8
    head(k)
    k(f"s_load_dwordx2 s[{SWS}:{SWS+1}], s[0:1], {A_WS}",
      f"s_load_dwordx2 s[{SO}:{SO+1}], s[0:1], {A_OUT if is_down else A_X}")
    k(f"v_lshrrev_b32 v{T1}, 6, v0", f"v_and_b32 v{L}, 63, v0", f"v_readfirstlane_b32 s{sW}, v{T1}", f"v_lshlrev_b32 v{vLin}, 4, v{L}")
    ids_8x4(k, sNB, sTB, sT)
    k(f"s_cmp_lt_u32 s{sW}, 4", f"s_cbranch_scc1 L_{name}_comp")
    k(f"s_and_b32 s{sW}, s{sW}, 3",
      f"s_lshl_b32 s{sTo}, s{sW}, 11", f"s_lshl_b32 s{sWo}, s{sW}, 12", f"s_mov_b32 s{sWr}, s{sTo}",
      f"s_add_u32 s{sDW}, s{sTo}, 8192")
    rot = K == 1024 and OPT.get("rot2", 0)
    if rot:
        k(f"s_lshl_b32 s{sT}, s{sNB}, 1", f"s_add_u32 s{sT}, s{sT}, s{sTB}", f"s_and_b32 s{sT}, s{sT}, 7",
          f"s_lshl_b32 s{sT2}, s{sT}, 14", f"s_add_u32 s{sTo}, s{sTo}, s{sT2}", f"s_lshl_b32 s{sT2}, s{sT}, 15", f"s_add_u32 s{sWo}, s{sWo}, s{sT2}")
    k(f"s_mul_i32 s{sT}, s{sTB}, {K*128}", f"s_add_u32 s{sT}, s{sT}, {tok_region}",
      f"s_mul_i32 s{sT2}, s{sNB}, {K*256}", f"s_add_u32 s{sT2}, s{sT2}, {w_region}")
    k("s_waitcnt lgkmcnt(0)", ws_shift(SWS))
    k(srd_from(ST_, SWS, f"s{sT}", K * 128), srd_from(SW_, SWS, f"s{sT2}", K * 256))

    def dma_stage():
        o = [f"s_mov_b32 m0, s{sWr}", "s_nop 0"]
        for i in range(2):
            o.append(f"buffer_load_dwordx4 v{vLin}, s[{ST_}:{ST_+3}], s{sTo} offen offset:{1024*i} lds")
        o += [f"s_add_u32 m0, s{sWr}, s{sDW}", f"s_add_u32 s{sTo}, s{sTo}, 8192"]
        for i in range(4):
            o.append(f"buffer_load_dwordx4 v{vLin}, s[{SW_}:{SW_+3}], s{sWo} offen offset:{1024*i} lds")
        o += [f"s_add_u32 s{sWo}, s{sWo}, 16384", f"s_add_u32 s{sWr}, s{sWr}, {STG}", f"s_cmp_ge_u32 s{sWr}, {STG*NS}",
              f"s_cselect_b32 s{sT}, {STG*NS}, 0", f"s_sub_u32 s{sWr}, s{sWr}, s{sT}"]
        if rot:
            o += [f"s_and_b32 s{sTo}, s{sTo}, {K*128-1}", f"s_and_b32 s{sWo}, s{sWo}, {K*256-1}"]
        return o
    k(f"s_mov_b32 s{sN}, {N}")
    k.label(f"L_{name}_ld")
    k(dma_stage())
    k(f"s_sub_u32 s{sN}, s{sN}, 1", f"s_cmp_lg_u32 s{sN}, 0")
    k(f"s_waitcnt vmcnt({6*D})", "s_barrier", f"s_cbranch_scc1 L_{name}_ld")
    for d in range(D - 1, -1, -1):
        k(f"s_waitcnt vmcnt({6*d})", "s_barrier")
    if is_down:
        k("s_endpgm")
    else:
        hop(k, sW)
    k.label(f"L_{name}_comp")
    k(f"s_and_b32 s{sTH}, s{sW}, 1", f"s_lshr_b32 s{sCH}, s{sW}, 1")
    k(f"v_lshrrev_b32 v{G}, 4, v{L}", f"v_and_b32 v{TOK}, 15, v{L}",
      f"v_lshlrev_b32 v{T0}, 11, v{TOK}", f"v_lshl_add_u32 v{T0}, v{G}, 4, v{T0}",
      f"s_lshl_b32 s{sN}, s{sTB}, 1", f"s_add_u32 s{sN}, s{sN}, s{sTH}", f"s_lshl_b32 s{sN}, s{sN}, 16",
      f"s_lshl_b32 s{sRes}, s{sNB}, 1", f"s_add_u32 s{sRes}, s{sRes}, s{sCH}", f"s_lshl_b32 s{sRd}, s{sRes}, 7",
      f"s_add_u32 s{sN}, s{sN}, s{sRd}", f"v_add_u32 v{vRow}, s{sN}, v{T0}")
    k(f"s_lshl_b32 s{sRes}, s{sRes}, 13", f"s_lshl_b32 s{sN}, s{sTB}, 17", f"s_add_u32 s{sRes}, s{sRes}, s{sN}",
      f"s_lshl_b32 s{sN}, s{sTH}, 11", f"s_add_u32 s{sRes}, s{sRes}, s{sN}", f"s_add_u32 s{sRes}, s{sRes}, {HF}")
    k(f"s_lshl_b32 s{sT}, s{sTH}, 11", f"v_add_u32 v{bT}, s{sT}, v{vLin}",
      f"s_lshl_b32 s{sT}, s{sCH}, 12", f"s_add_u32 s{sT}, s{sT}, 8192", f"v_add_u32 v{bW}, s{sT}, v{vLin}",
      f"v_mov_b32 v{aT}, v{bT}", f"v_mov_b32 v{aW}, v{bW}")
    k("s_waitcnt lgkmcnt(0)", ws_shift(SWS))
    k(srd_tail(SWS, WS_SZ), srd_tail(SO, 4 * MB))
    for _ in range(NS - 2):
        k("s_barrier")
    k(f"s_add_u32 s{sT2}, s{sRes}, 4096", f"s_mov_b32 s{sN}, 32768")
    for i in range(2):
        for b in range(2):
            if is_down:
                k(f"buffer_load_dwordx4 {vr(RES[i][b],4)}, v{vLin}, s[{SWS}:{SWS+3}], s{[sRes,sT2][b]} offen offset:{1024*i}")
            else:
                k(f"buffer_load_dwordx4 {vr(RES[i][b],4)}, v{vRow}, s[{SO}:{SO+3}], {['0', f's{sN}'][i]} offen offset:{64*b}{' nt' if OPT.get('jnt', 0) else ''}")
    for t in range(4):
        for i in range(2):
            for r in range(4):
                k(f"v_mov_b32 v{acc[t][i]+r}, 0")

    def reads(f):
        o = []
        for s in range(2):
            o += [f"ds_read_b128 {vr(F[f][s]['X'][i],4)}, v{aT} offset:{s*4096+i*1024}" for i in range(2)]
            o += [f"ds_read_b128 {vr(F[f][s]['W'][t],4)}, v{aW} offset:{s*8192+t*1024}" for t in range(4)]
        return o

    def mfmas(f):
        return [m16(vr(acc[t][i ^ (t & 1)], 4), vr(F[f][s]["W"][t], 4), vr(F[f][s]["X"][i ^ (t & 1)], 4))
                for t in range(4) for i in range(2) for s in range(2)]
    adv = [[f"s_add_u32 s{sRd}, s{sRd}, {STG}", f"s_cmp_eq_u32 s{sRd}, {STG*NS}"], [f"s_cselect_b32 s{sRd}, 0, s{sRd}"],
           [f"v_add_u32 v{aT}, s{sRd}, v{bT}", f"v_add_u32 v{aW}, s{sRd}, v{bW}"]]
    k(f"s_mov_b32 s{sRd}, 0", f"s_mov_b32 s{sN}, {N//2-1}")
    k("s_barrier")
    mid_stamp(k, 0)
    k(reads(0), adv, "s_waitcnt lgkmcnt(0)")
    k(".p2align 6")
    k.label(f"L_{name}_loop")
    for f in range(2):
        k("s_barrier")
        m = weave(mfmas(f), reads(1 - f), 0, 9)
        tl = adv + ([[f"s_sub_u32 s{sN}, s{sN}, 1", f"s_cmp_lg_u32 s{sN}, 0"]] if f == 1 else [])
        k(weave(m, tl, len(m) - 6, len(m) - 1))
        k("s_waitcnt lgkmcnt(0)")
    k(f"s_cbranch_scc1 L_{name}_loop")
    k("s_barrier")
    k(weave(mfmas(0), reads(1), 0, 9), "s_waitcnt lgkmcnt(0)", mfmas(1))
    mid_stamp(k, 1)
    k("s_waitcnt vmcnt(0)", f"s_mov_b32 s{sN}, 32768", "s_nop 5")
    SUM = F[0][0]["X"]
    U = F[0][0]["W"][0]
    for i in range(2):
        if not is_down:
            k(f"v_mov_b32 v{SUM[i]}, 0", f"v_mov_b32 v{SUM[i]+1}, 0")
        for b in range(2):
            o = F[0][1]["W"][2 * i + b]
            for jt in range(2):
                a = acc[2 * b + jt][i]
                for h in range(2):
                    r = RES[i][b] + 2 * jt + h
                    k(f"v_lshlrev_b32 v{U}, 16, v{r}", f"v_and_b32 v{U+1}, 0xffff0000, v{r}",
                      f"v_add_f32 v{a+2*h}, v{a+2*h}, v{U}", f"v_add_f32 v{a+2*h+1}, v{a+2*h+1}, v{U+1}",
                      f"v_cvt_pk_bf16_f32 v{o+2*jt+h}, v{a+2*h}, v{a+2*h+1}")
            if is_down:
                k(f"buffer_store_dwordx4 {vr(o,4)}, v{vRow}, s[{SO}:{SO+3}], {['0', f's{sN}'][i]} offen offset:{64*b} sc1")
            else:
                k(f"buffer_store_dwordx4 {vr(o,4)}, v{vLin}, s[{SWS}:{SWS+3}], s{[sRes,sT2][b]} offen offset:{1024*i} sc1")
    if not is_down:
        for t in range(4):
            for r in range(4):
                for i in range(2):
                    a = acc[t][i] + r
                    k(f"v_add_f32 v{SUM[i]}, v{SUM[i]}, v{a}", f"v_fmac_f32 v{SUM[i]+1}, v{a}, v{a}")
        k("s_nop 1", f"v_permlane32_swap_b32 v{SUM[0]}, v{SUM[0]+1}", f"v_permlane32_swap_b32 v{SUM[1]}, v{SUM[1]+1}", "s_nop 0",
          f"v_add_f32 v{SUM[0]}, v{SUM[0]}, v{SUM[0]+1}", f"v_add_f32 v{SUM[1]}, v{SUM[1]}, v{SUM[1]+1}",
          f"v_lshlrev_b32 v{T0}, 2, v{L}", "s_nop 0",
          f"v_permlane16_swap_b32 v{SUM[0]}, v{SUM[1]}",
          f"s_lshl_b32 s{sT}, s{sTB}, 1", f"s_add_u32 s{sT}, s{sT}, s{sTH}", f"s_lshl_b32 s{sT}, s{sT}, 12",
          f"v_add_f32 v{SUM[0]}, v{SUM[0]}, v{SUM[1]}",
          f"s_lshl_b32 s{sT2}, s{sNB}, 1", f"s_add_u32 s{sT2}, s{sT2}, s{sCH}", f"s_lshl_b32 s{sT2}, s{sT2}, 8",
          f"s_add_u32 s{sT}, s{sT}, s{sT2}", f"s_add_u32 s{sT}, s{sT}, {STP}",
          f"buffer_store_dword v{SUM[0]}, v{T0}, s[{SWS}:{SWS+3}], s{sT} offen sc1")
    tail(k, kidx, sW)
    return k


def k4_down(kidx):
    name, K = "down_kernel", 3584
    D = OPT.get("dd", 2)
    N1 = OPT.get("n1", 25)
    N2 = 56 - 2 * N1
    STG, NS = 32768, D + 2
    k = Kern(name, 256, 512, STG * NS)
    SWS, ST_, SW_, SO = 4, 8, 12, 20
    sW, sTB, sNB, sN, sT, sT2, sRd, sWr, sTo, sWo, sTH, sCH, sRes, sDW, sKH, sX0, sX1 = range(28, 45)
    v = Alloc(1)
    L, G, TOK, T0, T1, vLin, bT, bW, aT, aW, vRow = [v() for _ in range(11)]
    F = [[dict(X=[v(4, 4) for _ in range(4)], W=[v(4, 4) for _ in range(4)]) for s in range(2)] for _ in range(2)]
    acc = [[v(4, 4) for i in range(4)] for t in range(4)]
    RES = [[v(4, 4) for b in range(2)] for i in range(2)]
    RCV = [[acc[2 * b][2 + i] for b in range(2)] for i in range(2)]
    k.vgpr = k.acc = (v.n + 7) // 8 * 8
    head(k, True)
    k(f"s_load_dwordx2 s[{SWS}:{SWS+1}], s[0:1], {A_WS}", f"s_load_dwordx2 s[{SO}:{SO+1}], s[0:1], {A_OUT}")
    k(f"v_lshrrev_b32 v{T1}, 6, v0", f"v_and_b32 v{L}, 63, v0", f"v_readfirstlane_b32 s{sW}, v{T1}", f"v_lshlrev_b32 v{vLin}, 4, v{L}")
    ids_8x4(k, sNB, sTB, sT)
    if OPT.get("dmap", 1):
        k(f"s_and_b32 s{sT}, s{sTB}, 7", f"s_lshl_b32 s{sT}, s{sT}, 1", f"s_bfe_u32 s{sT2}, s{sTB}, 0x10003",
          f"s_and_b32 s{sTB}, s{sTB}, 16", f"s_add_u32 s{sTB}, s{sTB}, s{sT}", f"s_add_u32 s{sTB}, s{sTB}, s{sT2}")
    k(f"s_cmp_lt_u32 s{sW}, 4", f"s_cbranch_scc1 L_{name}_comp")
    vOwn, vPar = bT, bW
    k(f"s_and_b32 s{sW}, s{sW}, 3", f"s_and_b32 s{sKH}, s{sTB}, 1",
      f"s_lshl_b32 s{sWr}, s{sW}, 11", f"s_add_u32 s{sDW}, s{sWr}, 8192",
      f"s_mul_i32 s{sTo}, s{sKH}, {N1*8192}", f"s_add_u32 s{sTo}, s{sTo}, s{sWr}", f"s_lshl_b32 s{sWo}, s{sTo}, 1",
      f"s_mul_i32 s{sT}, s{sKH}, {K*128}", f"v_add_u32 v{vOwn}, s{sT}, v{vLin}", f"s_sub_u32 s{sT}, {K*128}, s{sT}", f"v_add_u32 v{vPar}, s{sT}, v{vLin}",
      f"s_lshr_b32 s{sT}, s{sTB}, 1", f"s_mul_i32 s{sT}, s{sT}, {K*256}", f"s_add_u32 s{sT}, s{sT}, {AF}",
      f"s_mul_i32 s{sT2}, s{sNB}, {K*256}", f"s_add_u32 s{sT2}, s{sT2}, {WDF}")
    k("s_waitcnt lgkmcnt(0)", ws_shift(SWS))
    k(srd_from(ST_, SWS, f"s{sT}", K * 256), srd_from(SW_, SWS, f"s{sT2}", K * 256))

    def dma_stage(full):
        o = [f"s_mov_b32 m0, s{sWr}", "s_nop 0"]
        o += [f"buffer_load_dwordx4 v{vOwn}, s[{ST_}:{ST_+3}], s{sTo} offen offset:{1024*i} lds" for i in range(2)]
        if full:
            o += [f"s_add_u32 m0, s{sWr}, 24576", "s_nop 0"]
            o += [f"buffer_load_dwordx4 v{vPar}, s[{ST_}:{ST_+3}], s{sTo} offen offset:{1024*i} lds" for i in range(2)]
        o += [f"s_add_u32 m0, s{sWr}, s{sDW}", f"s_add_u32 s{sTo}, s{sTo}, 8192"]
        o += [f"buffer_load_dwordx4 v{vLin}, s[{SW_}:{SW_+3}], s{sWo} offen offset:{1024*i} lds" for i in range(4)]
        o += [f"s_add_u32 s{sWo}, s{sWo}, 16384", f"s_add_u32 s{sWr}, s{sWr}, {STG}", f"s_cmp_ge_u32 s{sWr}, {STG*NS}",
              f"s_cselect_b32 s{sT}, {STG*NS}, 0", f"s_sub_u32 s{sWr}, s{sWr}, s{sT}"]
        return o
    k(f"s_mov_b32 s{sN}, {N1}")
    k.label(f"L_{name}_ld")
    k(dma_stage(True))
    k(f"s_sub_u32 s{sN}, s{sN}, 1", f"s_cmp_lg_u32 s{sN}, 0")
    k(f"s_waitcnt vmcnt({8*D})", "s_barrier", f"s_cbranch_scc1 L_{name}_ld")
    k(f"s_lshl_b32 s{sTo}, s{sW}, 11", f"s_add_u32 s{sTo}, s{sTo}, {2*N1*8192}", f"s_lshl_b32 s{sWo}, s{sTo}, 1")
    cnt = lambda n: 8 if n < N1 else (6 if n < N1 + N2 else 0)
    for n in range(N1, N1 + N2 + D):
        if n < N1 + N2:
            k(dma_stage(False))
        k(f"s_waitcnt vmcnt({sum(cnt(m) for m in range(n-D+1, n+1))})", "s_barrier")
    k("s_endpgm")
    if OPT.get("epad", 1):
        k(island(jump=False))
    k.label(f"L_{name}_comp")
    k(f"s_and_b32 s{sTH}, s{sW}, 1", f"s_lshr_b32 s{sCH}, s{sW}, 1")
    k(f"v_lshrrev_b32 v{G}, 4, v{L}", f"v_and_b32 v{TOK}, 15, v{L}",
      f"v_lshlrev_b32 v{T0}, 11, v{TOK}", f"v_lshl_add_u32 v{T0}, v{G}, 4, v{T0}",
      f"s_lshl_b32 s{sN}, s{sTB}, 1", f"s_add_u32 s{sN}, s{sN}, s{sTH}", f"s_lshl_b32 s{sN}, s{sN}, 16",
      f"s_lshl_b32 s{sRes}, s{sNB}, 1", f"s_add_u32 s{sRes}, s{sRes}, s{sCH}", f"s_lshl_b32 s{sRd}, s{sRes}, 7",
      f"s_add_u32 s{sN}, s{sN}, s{sRd}", f"v_add_u32 v{vRow}, s{sN}, v{T0}")
    k(f"s_lshl_b32 s{sRes}, s{sRes}, 13", f"s_lshl_b32 s{sN}, s{sTB}, 17", f"s_add_u32 s{sRes}, s{sRes}, s{sN}",
      f"s_lshl_b32 s{sN}, s{sTH}, 11", f"s_add_u32 s{sRes}, s{sRes}, s{sN}",
      f"s_xor_b32 s{sX0}, s{sRes}, {1<<17}", f"s_add_u32 s{sX0}, s{sX0}, {XB}", f"s_add_u32 s{sX1}, s{sX0}, 4096")
    k(f"s_lshl_b32 s{sT}, s{sTH}, 11", f"v_add_u32 v{bT}, s{sT}, v{vLin}",
      f"s_lshl_b32 s{sT}, s{sCH}, 12", f"s_add_u32 s{sT}, s{sT}, 8192", f"v_add_u32 v{bW}, s{sT}, v{vLin}",
      f"v_mov_b32 v{aT}, v{bT}", f"v_mov_b32 v{aW}, v{bW}")
    k("s_waitcnt lgkmcnt(0)", ws_shift(SWS))
    k(srd_tail(SWS, WS_SZ), srd_tail(SO, 4 * MB))
    for _ in range(D):
        k("s_barrier")
    for i in range(acc[0][0], acc[0][0] + 64, 2):
        k(f"v_mov_b64 {vr(i,2)}, 0")

    def reads(f, full):
        o = []
        for s in range(2):
            o += [f"ds_read_b128 {vr(F[f][s]['X'][i],4)}, v{aT} offset:{(i>>1)*24576+s*4096+(i&1)*1024}" for i in range(4 if full else 2)]
            o += [f"ds_read_b128 {vr(F[f][s]['W'][t],4)}, v{aW} offset:{s*8192+t*1024}" for t in range(4)]
        return o

    def mfmas(f, tiles):
        return [m16(vr(acc[t][i], 4), vr(F[f][s]["W"][t], 4), vr(F[f][s]["X"][i], 4))
                for t in range(4) for i in (tiles if t % 2 == 0 else tiles[::-1]) for s in range(2)]
    adv = [[f"s_add_u32 s{sRd}, s{sRd}, {STG}", f"s_cmp_eq_u32 s{sRd}, {STG*NS}"], [f"s_cselect_b32 s{sRd}, 0, s{sRd}"],
           [f"v_add_u32 v{aT}, s{sRd}, v{bT}", f"v_add_u32 v{aW}, s{sRd}, v{bW}"]]
    ALL, OWN, PAR = [0, 1, 2, 3], [0, 1], [2, 3]
    k(f"s_mov_b32 s{sRd}, 0", f"s_mov_b32 s{sN}, {(N1-1)//2}")
    k("s_barrier")
    mid_stamp(k, 0)
    k(reads(0, True), adv, "s_waitcnt lgkmcnt(0)")

    def step(f, extra):
        k("s_barrier")
        m = weave(mfmas(f, ALL), reads(1 - f, True), 0, 18)
        k(weave(m, adv + extra, len(m) - 8, len(m) - 1), "s_waitcnt lgkmcnt(0)")
    k(".p2align 6")
    k.label(f"L_{name}_loop")
    step(0, [])
    step(1, [[f"s_sub_u32 s{sN}, s{sN}, 1", f"s_cmp_lg_u32 s{sN}, 0"]])
    k(f"s_cbranch_scc1 L_{name}_loop")
    f = 0
    if (N1 - 1) % 2:
        step(0, [])
        f = 1
    if OPT.get("p1"):
        mid_stamp(k, 1)
    snd = []
    for b in range(2):
        for i in range(2):
            o = F[1 - f][b]["X"][2 + i]
            for jt in range(2):
                a = acc[2 * b + jt][2 + i]
                snd += [[f"v_cvt_pk_bf16_f32 v{o+2*jt}, v{a}, v{a+1}", f"v_cvt_pk_bf16_f32 v{o+2*jt+1}, v{a+2}, v{a+3}"]]
            snd += [[f"v_min_u32 v{o+r}, -2, v{o+r}" for r in (0, 1)], [f"v_min_u32 v{o+r}, -2, v{o+r}" for r in (2, 3)] +
                    [f"buffer_store_dwordx4 {vr(o,4)}, v{vLin}, s[{SWS}:{SWS+3}], s{[sX0,sX1][b]} offen offset:{1024*i} sc1"]]
    k("s_barrier")
    k(weave(weave(mfmas(f, PAR), reads(1 - f, False), 0, 10), adv, 22, 27), weave(mfmas(f, OWN), snd, 0, 16), "s_waitcnt lgkmcnt(0)")
    f = 1 - f
    res = [f"buffer_load_dwordx4 {vr(RES[i][b],4)}, v{vLin}, s[{SWS}:{SWS+3}], s{[sT,sT2][b]} offen offset:{1024*i}" for i in range(2) for b in range(2)]
    rcv = [f"buffer_load_dwordx4 {vr(RCV[i][b],4)}, v{vLin}, s[{SWS}:{SWS+3}], s{[sX0,sX1][b]} offen offset:{1024*i} sc1" for i in range(2) for b in range(2)]
    rstep = N1 + N2 - OPT.get("rl", 2)
    for n in range(N1 + 1, N1 + N2):
        k("s_barrier")
        m = weave(mfmas(f, OWN), reads(1 - f, False), 0, 9)
        ex = list(adv) if n < N1 + N2 - 1 else []
        if n == N1 + 1:
            ex += [[f"s_add_u32 s{sT}, s{sRes}, {HF}", f"s_add_u32 s{sT2}, s{sRes}, {HF+4096}",
                    f"s_add_u32 s{sX0}, s{sRes}, {XB}", f"s_add_u32 s{sX1}, s{sRes}, {XB+4096}"], res]
        if n == rstep:
            ex += [rcv]
        k(weave(m, ex, len(m) - 6, len(m)) if ex else m, island() if (n == N1 + 2 and OPT.get("epad", 1)) else None, "s_waitcnt lgkmcnt(0)")
        f = 1 - f
    if rstep >= N1 + N2:
        k(rcv)
    k(mfmas(f, OWN))
    if not OPT.get("p1"):
        mid_stamp(k, 1)
    k(f"s_mov_b32 s{sN}, {1<<20}")
    k.label(f"L_{name}_chk")
    k("s_waitcnt vmcnt(0)")
    rr = [RCV[i][b] + r for i in range(2) for b in range(2) for r in range(4)]
    k(f"v_max3_u32 v{T0}, v{rr[0]}, v{rr[1]}, v{rr[2]}", f"v_max3_u32 v{T1}, v{rr[3]}, v{rr[4]}, v{rr[5]}")
    for j in range(6, 16, 2):
        t = [T0, T1][(j // 2) & 1]
        k(f"v_max3_u32 v{t}, v{rr[j]}, v{rr[j+1]}, v{t}")
    k(f"v_max_u32 v{T0}, v{T0}, v{T1}", f"v_cmp_eq_u32 vcc, -1, v{T0}", f"s_sub_u32 s{sN}, s{sN}, 1", f"s_cbranch_scc1 L_{name}_out",
      f"s_cbranch_vccz L_{name}_out", "s_sleep 2", rcv, f"s_branch L_{name}_chk")
    k.label(f"L_{name}_out")
    k(f"s_mov_b32 s{sN}, 32768")
    U = F[0][0]["W"][0]
    for i in range(2):
        for b in range(2):
            o = F[0][1]["W"][2 * i + b]
            for jt in range(2):
                a = acc[2 * b + jt][i]
                for h in range(2):
                    r, q = RES[i][b] + 2 * jt + h, RCV[i][b] + 2 * jt + h
                    k(f"v_lshlrev_b32 v{U}, 16, v{q}", f"v_and_b32 v{U+1}, 0xffff0000, v{q}",
                      f"v_lshlrev_b32 v{U+2}, 16, v{r}", f"v_and_b32 v{U+3}, 0xffff0000, v{r}",
                      f"v_pk_add_f32 {vr(a+2*h,2)}, {vr(a+2*h,2)}, {vr(U,2)}", f"v_pk_add_f32 {vr(a+2*h,2)}, {vr(a+2*h,2)}, {vr(U+2,2)}",
                      f"v_cvt_pk_bf16_f32 v{o+2*jt+h}, v{a+2*h}, v{a+2*h+1}")
            k(f"buffer_store_dwordx4 {vr(o,4)}, v{vRow}, s[{SO}:{SO+3}], {['0', f's{sN}'][i]} offen offset:{64*b} sc1")
    tail(k, kidx, sW)
    return k


def k4_down4(kidx):
    name, K = "down_kernel", 3584
    D = OPT.get("dd", 2)
    N1 = OPT.get("n1", 25)
    N2 = 56 - 2 * N1
    STG, NS = 24576, D + 2
    k = Kern(name, 256, 512, STG * NS)
    SWS, SO = 4, 20
    sW, sTB, sNB, sN, sT, sT2, sRd, sWr, sTo, sWo, sTH, sCH, sRes, sDW, sKQ = range(28, 43)
    sX = [[44 + 2 * r + b for b in range(2)] for r in range(4)]
    v = Alloc(1)
    L, G, TOK, T0, T1, vLin, bT, bW, aT, aW, vRow = [v() for _ in range(11)]
    F = [[dict(X=[v(4, 4) for _ in range(2)], W=[v(4, 4) for _ in range(4)]) for s in range(2)] for _ in range(2)]
    acc = [[[v(4, 4) for i in range(2)] for t in range(4)] for r in range(4)]
    RES = [[v(4, 4) for b in range(2)] for i in range(2)]
    SND = lambda r, i, b: acc[r][2 * b][i]
    RCV = lambda r, i, b: acc[r][2 * b + 1][i] if r else RES[i][b]
    k.vgpr = k.acc = (v.n + 7) // 8 * 8
    head(k, True)
    k(f"s_load_dwordx2 s[{SWS}:{SWS+1}], s[0:1], {A_WS}", f"s_load_dwordx2 s[{SO}:{SO+1}], s[0:1], {A_OUT}")
    k(f"v_lshrrev_b32 v{T1}, 6, v0", f"v_and_b32 v{L}, 63, v0", f"v_readfirstlane_b32 s{sW}, v{T1}", f"v_lshlrev_b32 v{vLin}, 4, v{L}")
    k(f"s_bfe_u32 s{sNB}, s2, 0x20003", f"s_lshl_b32 s{sNB}, s{sNB}, 1", f"s_and_b32 s{sT}, s2, 1", f"s_add_u32 s{sNB}, s{sNB}, s{sT}",
      f"s_lshr_b32 s{sTB}, s2, 5", f"s_lshl_b32 s{sTB}, s{sTB}, 1", f"s_bfe_u32 s{sT}, s2, 0x10001", f"s_add_u32 s{sTB}, s{sTB}, s{sT}",
      f"s_and_b32 s{sT}, s2, 4", f"s_lshl_b32 s{sT}, s{sT}, 2", f"s_add_u32 s{sTB}, s{sTB}, s{sT}",
      f"s_and_b32 s{sTH}, s{sW}, 1", f"s_bfe_u32 s{sCH}, s{sW}, 0x10001")
    k(f"s_cmp_lt_u32 s{sW}, 4", f"s_cbranch_scc1 L_{name}_comp")
    k(f"s_and_b32 s{sW}, s{sW}, 3", f"s_and_b32 s{sKQ}, s2, 3",
      f"s_lshl_b32 s{sWr}, s{sW}, 11", f"s_add_u32 s{sDW}, s{sWr}, 8192",
      f"s_mul_i32 s{sT2}, s{sKQ}, {N1*4096}", f"s_lshl_b32 s{sT}, s{sTH}, 11", f"s_add_u32 s{sT2}, s{sT2}, s{sT}",
      f"s_xor_b32 s{sT}, s{sTB}, s{sCH}", f"s_mul_i32 s{sTo}, s{sT}, {K*128}", f"s_add_u32 s{sTo}, s{sTo}, s{sT2}", f"s_add_u32 s{sTo}, s{sTo}, {AF}",
      f"s_xor_b32 s{sT}, s{sNB}, s{sCH}", f"s_mul_i32 s{sWo}, s{sT}, {K*128}", f"s_add_u32 s{sWo}, s{sWo}, s{sT2}", f"s_lshl_b32 s{sWo}, s{sWo}, 1",
      f"s_add_u32 s{sWo}, s{sWo}, {WDF}")
    k("s_waitcnt lgkmcnt(0)", ws_shift(SWS), srd_tail(SWS, WS_SZ))

    def dma_stage(step):
        o = [f"s_mov_b32 m0, s{sWr}", "s_nop 0"]
        o += [f"buffer_load_dwordx4 v{vLin}, s[{SWS}:{SWS+3}], s{sTo} offen offset:{1024*i} lds" for i in range(2)]
        o += [f"s_add_u32 m0, s{sWr}, s{sDW}", f"s_add_u32 s{sTo}, s{sTo}, {step}"]
        o += [f"buffer_load_dwordx4 v{vLin}, s[{SWS}:{SWS+3}], s{sWo} offen offset:{1024*i} lds" for i in range(4)]
        o += [f"s_add_u32 s{sWo}, s{sWo}, {2*step}", f"s_add_u32 s{sWr}, s{sWr}, {STG}", f"s_cmp_ge_u32 s{sWr}, {STG*NS}",
              f"s_cselect_b32 s{sT}, {STG*NS}, 0", f"s_sub_u32 s{sWr}, s{sWr}, s{sT}",
              f"s_sub_u32 s{sN}, s{sN}, 1", f"s_cmp_lg_u32 s{sN}, 0", f"s_waitcnt vmcnt({6*D})", "s_barrier"]
        return o
    k(f"s_mov_b32 s{sN}, {N1}")
    k.label(f"L_{name}_ld")
    k(dma_stage(4096), f"s_cbranch_scc1 L_{name}_ld")
    k(f"s_lshl_b32 s{sT2}, s{sW}, 11", f"s_add_u32 s{sT2}, s{sT2}, {4*N1*4096}",
      f"s_mul_i32 s{sTo}, s{sTB}, {K*128}", f"s_add_u32 s{sTo}, s{sTo}, s{sT2}", f"s_add_u32 s{sTo}, s{sTo}, {AF}",
      f"s_mul_i32 s{sWo}, s{sNB}, {K*128}", f"s_add_u32 s{sWo}, s{sWo}, s{sT2}", f"s_lshl_b32 s{sWo}, s{sWo}, 1",
      f"s_add_u32 s{sWo}, s{sWo}, {WDF}", f"s_mov_b32 s{sN}, {N2}")
    k.label(f"L_{name}_ld2")
    k(dma_stage(8192), f"s_cbranch_scc1 L_{name}_ld2")
    for d in range(D - 1, -1, -1):
        k(f"s_waitcnt vmcnt({6*d})", "s_barrier")
    k("s_endpgm")
    k(island(jump=False))
    k.label(f"L_{name}_comp")
    k(f"v_lshrrev_b32 v{G}, 4, v{L}", f"v_and_b32 v{TOK}, 15, v{L}",
      f"v_lshlrev_b32 v{T0}, 11, v{TOK}", f"v_lshl_add_u32 v{T0}, v{G}, 4, v{T0}",
      f"s_lshl_b32 s{sN}, s{sTB}, 1", f"s_add_u32 s{sN}, s{sN}, s{sTH}", f"s_lshl_b32 s{sN}, s{sN}, 16",
      f"s_lshl_b32 s{sRes}, s{sNB}, 1", f"s_add_u32 s{sRes}, s{sRes}, s{sCH}", f"s_lshl_b32 s{sRd}, s{sRes}, 7",
      f"s_add_u32 s{sN}, s{sN}, s{sRd}", f"v_add_u32 v{vRow}, s{sN}, v{T0}")
    for _ in range(D):
        k("s_barrier")
    k(f"s_lshl_b32 s{sRes}, s{sRes}, 13", f"s_lshl_b32 s{sN}, s{sTB}, 17", f"s_add_u32 s{sRes}, s{sRes}, s{sN}",
      f"s_lshl_b32 s{sN}, s{sTH}, 11", f"s_add_u32 s{sRes}, s{sRes}, s{sN}")
    for r in range(1, 4):
        k(f"s_xor_b32 s{sT}, s{sRes}, {((r&1)<<17)|((r>>1)<<14)}", f"s_add_u32 s{sX[r][0]}, s{sT}, {XB4[r]}", f"s_add_u32 s{sX[r][1]}, s{sT}, {XB4[r]+4096}")
    k(f"s_lshl_b32 s{sT}, s{sTH}, 11", f"v_add_u32 v{bT}, s{sT}, v{vLin}",
      f"s_lshl_b32 s{sT}, s{sCH}, 12", f"s_add_u32 s{sT}, s{sT}, 8192", f"v_add_u32 v{bW}, s{sT}, v{vLin}",
      f"v_mov_b32 v{aT}, v{bT}", f"v_mov_b32 v{aW}, v{bW}")
    k("s_waitcnt lgkmcnt(0)", ws_shift(SWS))
    k(srd_tail(SWS, WS_SZ), srd_tail(SO, 4 * MB))

    def reads(f):
        o = []
        for s in range(2):
            o += [f"ds_read_b128 {vr(F[f][s]['X'][i],4)}, v{aT} offset:{s*4096+i*1024}" for i in range(2)]
            o += [f"ds_read_b128 {vr(F[f][s]['W'][t],4)}, v{aW} offset:{s*8192+t*1024}" for t in range(4)]
        return o

    def mf1(f, c=None):
        o = []
        for sw in range(2):
            for t in range(4):
                xs = [(0, 0), (0, 1), (1, 0), (1, 1)]
                for sx, i in (xs if t % 2 == 0 else xs[::-1]):
                    o.append(m16(vr(acc[2 * sw + sx][t][i], 4), vr(F[f][sw]["W"][t], 4), vr(F[f][sx]["X"][i], 4), c))
        return o

    def mf1r(f, r):
        return [m16(vr(acc[r][t][i], 4), vr(F[f][r >> 1]["W"][t], 4), vr(F[f][r & 1]["X"][i], 4)) for t in range(4) for i in ((0, 1) if t % 2 == 0 else (1, 0))]

    def mf2(f):
        return [m16(vr(acc[0][t][i], 4), vr(F[f][s]["W"][t], 4), vr(F[f][s]["X"][i], 4))
                for t in range(4) for i in ((0, 1) if t % 2 == 0 else (1, 0)) for s in range(2)]
    adv = [[f"s_add_u32 s{sRd}, s{sRd}, {STG}", f"s_cmp_eq_u32 s{sRd}, {STG*NS}"], [f"s_cselect_b32 s{sRd}, 0, s{sRd}"],
           [f"v_add_u32 v{aT}, s{sRd}, v{bT}", f"v_add_u32 v{aW}, s{sRd}, v{bW}"]]
    k(f"s_mov_b32 s{sRd}, 0", f"s_mov_b32 s{sN}, {(N1-2)//2}")
    k("s_barrier")
    mid_stamp(k, 0)
    k(reads(0), adv, "s_waitcnt lgkmcnt(0)")

    def step(f, extra, c=None):
        k("s_barrier")
        m = weave(mf1(f, c), reads(1 - f), 0, 14)
        k(weave(m, adv + extra, len(m) - 10, len(m) - 2), "s_waitcnt lgkmcnt(0)")
    step(0, [], "0")
    k(".p2align 6")
    k.label(f"L_{name}_loop")
    step(1, [])
    step(0, [[f"s_sub_u32 s{sN}, s{sN}, 1", f"s_cmp_lg_u32 s{sN}, 0"]])
    k(f"s_cbranch_scc1 L_{name}_loop")
    f = 1
    if (N1 - 2) % 2:
        step(1, [])
        f = 0

    def snd(r):
        o = []
        for b in range(2):
            for i in range(2):
                d, a = SND(r, i, b), acc[r][2 * b + 1][i]
                o += [[f"v_cvt_pk_bf16_f32 v{d}, v{d}, v{d+1}", f"v_cvt_pk_bf16_f32 v{d+1}, v{d+2}, v{d+3}"],
                      [f"v_cvt_pk_bf16_f32 v{d+2}, v{a}, v{a+1}", f"v_cvt_pk_bf16_f32 v{d+3}, v{a+2}, v{a+3}"],
                      [f"v_min_u32 v{d+q}, -2, v{d+q}" for q in (0, 1)], [f"v_min_u32 v{d+q}, -2, v{d+q}" for q in (2, 3)] +
                      [f"buffer_store_dwordx4 {vr(d,4)}, v{vLin}, s[{SWS}:{SWS+3}], s{sX[r][b]} offen offset:{1024*i} sc1"]]
        return o
    if OPT.get("p1"):
        mid_stamp(k, 1)
    k("s_barrier")
    k(weave(weave(mf1r(f, 3) + mf1r(f, 2), reads(1 - f), 0, 10), adv, 22, 27), weave(mf1r(f, 1) + mf1r(f, 0), snd(3), 0, 16), "s_waitcnt lgkmcnt(0)")
    k(island())
    f = 1 - f
    rcv = lambda r: [f"buffer_load_dwordx4 {vr(RCV(r,i,b),4)}, v{vLin}, s[{SWS}:{SWS+3}], s{sX[r][b]} offen offset:{1024*i}{' sc1' if r else ''}"
                     for i in range(2) for b in range(2)]
    radr = [[f"s_add_u32 s{sX[r][b]}, s{sRes}, {XB4[r]+4096*b}" for b in range(2)] for r in range(4)]
    rl = OPT.get("rl", 2)
    for n in range(1, N2):
        k("s_barrier")
        m = weave(mf2(f), reads(1 - f), 0, 9)
        ex = list(adv) if n < N2 - 1 else []
        if n == 1:
            k(weave(m, ex, len(m) - 6, len(m) - 2), snd(2), snd(1), radr, rcv(0))
        else:
            if n == N2 - rl:
                ex += [rcv(3), rcv(2), rcv(1)]
            k(weave(m, ex, len(m) - 6, len(m)) if ex else m)
        k("s_waitcnt lgkmcnt(0)")
        f = 1 - f
    if rl == 0:
        k(rcv(3), rcv(2), rcv(1))
    k(mf2(f))
    if not OPT.get("p1"):
        mid_stamp(k, 1)
    U = F[0][0]["W"][0]

    def add(r):
        for i in range(2):
            for b in range(2):
                for jt in range(2):
                    a, q = acc[0][2 * b + jt][i], RCV(r, i, b) + 2 * jt
                    k(f"v_lshlrev_b32 v{U}, 16, v{q}", f"v_and_b32 v{U+1}, 0xffff0000, v{q}",
                      f"v_lshlrev_b32 v{U+2}, 16, v{q+1}", f"v_and_b32 v{U+3}, 0xffff0000, v{q+1}",
                      f"v_pk_add_f32 {vr(a,2)}, {vr(a,2)}, {vr(U,2)}", f"v_pk_add_f32 {vr(a+2,2)}, {vr(a+2,2)}, {vr(U+2,2)}")
                if r == 1:
                    o = F[0][1]["W"][2 * i + b]
                    for jt in range(2):
                        a = acc[0][2 * b + jt][i]
                        k(f"v_cvt_pk_bf16_f32 v{o+2*jt}, v{a}, v{a+1}", f"v_cvt_pk_bf16_f32 v{o+2*jt+1}, v{a+2}, v{a+3}")
                    k(f"buffer_store_dwordx4 {vr(o,4)}, v{vRow}, s[{SO}:{SO+3}], {['0', f's{sT2}'][i]} offen offset:{64*b} sc1")
    k(f"s_mov_b32 s{sN}, {1<<20}", f"s_mov_b32 s{sT2}, 32768", "s_waitcnt vmcnt(12)", "s_nop 1")
    add(0)
    for r in (3, 2, 1):
        k(f"s_waitcnt vmcnt({4*(r-1)})")
        k.label(f"L_{name}_chk{r}")
        rr = [RCV(r, i, b) + q for i in range(2) for b in range(2) for q in range(4)]
        k(f"v_max3_u32 v{T0}, v{rr[0]}, v{rr[1]}, v{rr[2]}", f"v_max3_u32 v{T1}, v{rr[3]}, v{rr[4]}, v{rr[5]}")
        for j in range(6, 16, 2):
            t = [T0, T1][(j // 2) & 1]
            k(f"v_max3_u32 v{t}, v{rr[j]}, v{rr[j+1]}, v{t}")
        k(f"v_max_u32 v{T0}, v{T0}, v{T1}", f"v_cmp_eq_u32 vcc, -1, v{T0}", f"s_sub_u32 s{sN}, s{sN}, 1", f"s_cbranch_scc1 L_{name}_ok{r}",
          f"s_cbranch_vccz L_{name}_ok{r}", [rcv(q) for q in range(r, 0, -1)], "s_waitcnt vmcnt(0)", f"s_branch L_{name}_chk{r}")
        k.label(f"L_{name}_ok{r}")
        add(r)
    tail(k, kidx, sW)
    return k


class Op:
    def __init__(self, text, kind="v", needs=(), bar=False):
        self.text, self.kind, self.needs, self.bar = text, kind, list(needs), bar
        self.seq = None

    @property
    def cost(self):
        return 8 if self.kind == "t" else 4


def emit_stream(k, ops, nl=0, nv=0):
    cnt = {"lds": nl, "vm": nv}
    done = {"lds": 0, "vm": 0}
    for o in ops:
        if o.kind in cnt:
            cnt[o.kind] += 1
            o.seq = cnt[o.kind]
            k(o.text)
        elif o.kind == "wait":
            parts = []
            for kind, nm, mx in (("vm", "vmcnt", 63), ("lds", "lgkmcnt", 15)):
                need = [x.seq for x in o.needs if x.kind == kind]
                assert None not in need, "wait on an op that was not issued yet"
                tgt = cnt[kind] if (o.bar and kind == "lds") else max(need, default=0)
                if tgt > done[kind]:
                    n = cnt[kind] - tgt
                    assert n <= mx or kind == "vm"
                    parts.append(f"{nm}({min(n, mx)})")
                    done[kind] = tgt
            if parts:
                k("s_waitcnt " + " ".join(parts))
            if o.bar:
                k("s_barrier")
        else:
            k(o.text)
    return cnt


def k3_gateup():
    STG, NS = 28672, 5
    TBL = NS * STG
    k = Kern("ffn_kernel", 256, 256, 163840)
    SWS, ST_, SW_, SO = 4, 8, 12, 20
    slot = lambda n: (n + 3) % NS
    sW, sMB, sFB, sN, sT, sT2, sTo, sWo, sWr, sTB, sA0, sA1, sSt, sCp = range(28, 42)
    v = Alloc(1)
    vLin, vR1, vR2, vCs, vSt, vTid, vOut = [v() for _ in range(7)]
    PA = [v(2, 2) for _ in range(4)]
    SD = [v(2, 2) for _ in range(2)]
    TA, TB_, TC = v(4, 4), v(4, 4), v(4, 4)
    assert v.n <= 32, v.n
    acc = [[32 + (a * 4 + b) * 4 for b in range(4)] for a in range(14)]
    TK = [[[32 * n + 16 * s + 4 * b for b in range(4)] for s in range(2)] for n in range(NS)]
    WF = [[160 + 8 * n + 4 * s for s in range(2)] for n in range(4)]
    SP, CP = 192, 224
    k.vgpr, k.acc = 512, 256
    head(k, True)
    k(f"s_load_dwordx2 s[{SWS}:{SWS+1}], s[0:1], {A_WS}", f"s_load_dwordx2 s[{SO}:{SO+1}], s[0:1], {A_OUT}")
    k(f"v_lshrrev_b32 v{TA}, 6, v0", f"v_and_b32 v{TA+1}, 63, v0", f"v_readfirstlane_b32 s{sW}, v{TA}", f"v_lshlrev_b32 v{vLin}, 4, v{TA+1}")
    k(f"s_lshr_b32 s{sT}, s2, 3", f"s_lshr_b32 s{sMB}, s{sT}, 2", f"s_and_b32 s{sT}, s{sT}, 3",
      f"s_and_b32 s{sFB}, s2, 7", f"s_lshl_b32 s{sFB}, s{sFB}, 2", f"s_add_u32 s{sFB}, s{sFB}, s{sT}",
      f"s_lshl_b32 s{sTB}, s{sMB}, 2", f"s_add_u32 s{sTB}, s{sTB}, s{sW}",
      f"s_lshl_b32 s{sT}, s{sTB}, 17", f"s_add_u32 s{sT}, s{sT}, {HF}",
      f"s_mul_i32 s{sT2}, s{sFB}, {32*14*1024}", f"s_add_u32 s{sT2}, s{sT2}, {WGU}",
      f"s_mul_i32 s{sWo}, s{sW}, 7168", f"s_mov_b32 s{sWr}, s{sWo}", f"s_mov_b32 s{sTo}, 0")
    k("s_waitcnt lgkmcnt(0)", ws_shift(SWS))
    k(srd_from(ST_, SWS, f"s{sT}", 131072), srd_from(SW_, SWS, f"s{sT2}", 32 * 14 * 1024))

    def vm_stage(n):
        o = []
        for i in range(7):
            pre, post = [], []
            if i % 4 == 0:
                pre = [f"s_add_u32 m0, s{sWr}, {slot(n)*STG+1024*i}"]
            if i == 3:
                post = [f"s_add_u32 s{sWo}, s{sWo}, 4096"]
            if i == 6:
                post = [f"s_add_u32 s{sWo}, s{sWo}, {STG-4096}"]
            o.append((pre, Op(f"buffer_load_dwordx4 v{vLin}, s[{SW_}:{SW_+3}], s{sWo} offen offset:{1024*(i%4)} lds", "vm"), post, n))
        for s in range(2):
            for b in range(4):
                post = [f"s_add_u32 s{sTo}, s{sTo}, 4096"] if b == 3 else []
                o.append(([], Op(f"buffer_load_dwordx4 {ar(TK[slot(n)][s][b],4)}, v{vLin}, s[{ST_}:{ST_+3}], s{sTo} offen offset:{1024*b}", "vm"), post, n))
        return o
    VM = [vm_stage(n) for n in range(16)]
    HALF = OPT.get("k3half", 1)
    if HALF:
        wl = [([f"s_add_u32 m0, s{sN}, {slot(0)*STG}"], Op(f"buffer_load_dwordx4 v{vLin}, s[{SW_}:{SW_+3}], s{sN} offen lds", "vm"),
               [f"s_add_u32 s{sN}, s{sN}, 4096"] if i < 6 else [f"s_add_u32 s{sWo}, s{sWo}, {STG}"], 0) for i in range(7)]
        VM[0] = VM[0][7:11] + wl[:4] + VM[0][11:15] + wl[4:]
        k(f"s_lshl_b32 s{sN}, s{sW}, 10")
    stat_ld = [([], Op(f"buffer_load_dwordx4 {ar(SP+4*i,4)}, v{vLin}, s[{SWS}:{SWS+3}], s{sSt} offen offset:{1024*(i%4)}", "vm"),
                [f"s_add_u32 s{sSt}, s{sSt}, 4096"] if i == 3 else [], None) for i in range(8)]
    cs_ld = [([], Op(f"buffer_load_dword {ar(CP+p)}, v{vTid}, s[{SWS}:{SWS+3}], s{sCp} offen", "vm"),
              [f"s_add_u32 s{sCp}, s{sCp}, {32*896}"], None) for p in range(8)]
    pro = []
    for i, (pre, ld, post, _) in enumerate(VM[0] if HALF else VM[0] + VM[1]):
        pro += [Op(x, "s") for x in pre] + ([Op("s_nop 0", "s")] if pre else []) + [ld] + [Op(x, "s") for x in post]
        if i == (7 if HALF else 14):
            cut = len(pro)
            pro.append(Op("s_barrier", "s"))
    pro, pro2 = pro[:cut], pro[cut:]
    misc = srd_tail(SWS, WS_SZ) + [
        f"s_lshl_b32 s{sSt}, s{sTB}, 13", f"s_add_u32 s{sSt}, s{sSt}, {STP}",
        f"s_mul_i32 s{sCp}, s{sFB}, 896", f"s_add_u32 s{sCp}, s{sCp}, {CSP}",
        f"v_add_u32 v{vR1}, {2*STG}, v{vLin}", f"v_add_u32 v{vR2}, {4*STG}, v{vLin}",
        f"v_lshlrev_b32 v{vTid}, 2, v0",
        f"v_lshrrev_b32 v{TA}, 4, v{TA+1}", f"v_lshlrev_b32 v{vCs}, 4, v{TA}", f"v_add_u32 v{vCs}, {TBL}, v{vCs}",
        f"v_and_b32 v{TA+2}, 1, v{TA}", f"v_lshlrev_b32 v{TA+2}, 10, v{TA+2}", f"v_lshrrev_b32 v{TA}, 1, v{TA}",
        f"v_lshl_add_u32 v{TA+2}, v{TA}, 8, v{TA+2}", f"v_and_b32 v{TA+1}, 15, v{TA+1}", f"v_lshl_add_u32 v{vOut}, v{TA+1}, 4, v{TA+2}",
        f"s_mul_i32 s{sT}, s{sTB}, {112*4096}", f"s_add_u32 s{sT}, s{sT}, {AF}", f"s_and_b32 s{sT2}, s{sFB}, 1", f"s_lshl_b32 s{sT2}, s{sT2}, 9",
        f"s_add_u32 s{sT}, s{sT}, s{sT2}", f"s_lshr_b32 s{sT2}, s{sFB}, 1", f"s_lshl_b32 s{sT2}, s{sT2}, 12", f"s_add_u32 s{sT}, s{sT}, s{sT2}",
        f"s_add_u32 s{sA1}, s{sT}, {96*4096}", f"s_lshr_b32 s{sT2}, s{sFB}, 4", f"s_mul_i32 s{sT2}, s{sT2}, {40*4096}", f"s_add_u32 s{sA0}, s{sT}, s{sT2}"]
    pro += [Op(x, "s") for x in misc]
    if OPT.get("k3pf", 1):
        pro += [Op(x, "s") for x in ["s_getpc_b64 s[16:17]", f"s_lshr_b32 s{sT}, s2, 3", f"s_lshl_b32 s{sT}, s{sT}, 10",
                                     f"v_add_u32 v{TA}, s{sT}, v{vTid}", f"v_min_u32 v{TA}, L_code_end-L_k3_pf-4, v{TA}", "L_k3_pf:"]]
        pro.append(Op(f"global_load_dword v{TC}, v{TA}, s[16:17]", "vm"))

    if OPT.get("isl", 1):
        pro.append(Op(island(), "s"))
    seg0 = len(pro)
    pro += pro2
    order = [a for p in range(7) for a in (p, p + 7)]
    S0 = 12
    seq = [(n, a) for n in range(S0) for a in order]
    seq += [(n, a) for p in range(7) for n in range(S0, 16) for a in (p, p + 7)]
    NT_ = len(seq)
    mf, fixed = [], [[] for _ in range(8 * NT_)]
    RD = []
    for gt, (n, a) in enumerate(seq):
        sl = slot(n)
        fr = [(a, 0), (a, 1)] if not (HALF and n == 0) else [(gt % 7, gt // 7), (gt % 7 + 7, gt // 7)]
        RD.append([Op(f"ds_read_b128 {ar(WF[gt%4][e],4)}, v{[vLin,vR1,vR2][sl>>1]} offset:{(sl&1)*STG+s*14336+t*1024}", "lds") for e, (t, s) in enumerate(fr)])
        bs = range(4) if gt % 2 == 0 else range(3, -1, -1)
        for b in bs:
            for e, (t, s) in enumerate(fr):
                mf.append(Op(m16(vr(acc[t][b], 4), ar(WF[gt % 4][e], 4), ar(TK[sl][s][b], 4), "0" if (n == 0 and s == 0) else None), "m"))
    first = {}
    for gt, (n, a) in enumerate(seq):
        first.setdefault(n, gt)
    barpos = {}
    for gt in range(NT_):
        if gt + 2 < NT_:
            fixed[8 * gt].append(RD[gt + 2][0]); fixed[8 * gt + 1].append(RD[gt + 2][1])
        newst = [n for n in range(1, 16) if first[n] == gt + 3]
        if HALF and gt == 4:
            newst = [0]
        if newst:
            fixed[8 * gt + 7].append(Op("", "wait", [x[1] for x in VM[newst[0]]], bar=True))
            barpos[newst[0]] = 8 * gt + 7
        elif gt + 1 < NT_:
            fixed[8 * gt + 7].append(Op("", "wait", RD[gt + 1]))
    flat = (VM[1] if HALF else []) + VM[2] + VM[3] + VM[4] + stat_ld + cs_ld + [x for n in range(5, 16) for x in VM[n]]
    nfast = OPT.get("k3fast", 15) if HALF else 0
    slots = [8 * gt + o for gt in range(S0 * 14) for o in (3, 6)]
    nsl = len(slots) - 2 * OPT.get("k3lead", 8)
    vpos = {}
    si = -1
    for i, (pre, ld, post, n) in enumerate(flat):
        si = max(si + 1, nfast + ((i - nfast) * (nsl - nfast)) // (len(flat) - nfast) if i >= nfast else 0)
        if n is not None and n >= NS:
            lim = barpos[n - NS + 1] + 2 if "lds" in ld.text else 8 * 14 * (n - NS + 1)
            while slots[si] < lim:
                si += 1
        p = slots[si]
        fixed[p - 1] += [Op(x, "s") for x in pre]
        fixed[p] += [ld] + [Op(x, "s") for x in post]
        vpos[id(ld)] = p
    used = [sum(o.cost for o in f if not (o.kind == "wait" and False)) for f in fixed]
    flo = [[] for _ in fixed]

    def flow(ops, start, deadline=None):
        p = start
        for o in ops:
            while used[p] + o.cost > 8:
                p += 1
            flo[p].append(o); used[p] += o.cost
        assert deadline is None or p < deadline, (p, deadline)
        return p + 1

    def spread(ops, start, stop):
        tot = sum(o.cost for o in ops) + sum(used[start:stop])
        cap = max(8.0, tot / (stop - start))
        p, acc_used, acc_cap = start, used[start], cap
        for o in ops:
            while acc_used + o.cost > acc_cap + 2 and p < stop - 1:
                p += 1
                if cap == 8.0:
                    acc_used, acc_cap = used[p], cap
                else:
                    acc_used += used[p]; acc_cap += cap
            flo[p].append(o); acc_used += o.cost
        return p
    V = lambda t: Op(t, "v")
    st = [Op("", "wait", [x[1] for x in stat_ld + cs_ld])]
    st += [V(f"v_accvgpr_read_b32 v{TC}, a{CP}")]
    for p in range(1, 8):
        st += [V(f"v_accvgpr_read_b32 v{TB_}, a{CP+p}"), V(f"v_add_f32 v{TC}, v{TC}, v{TB_}")]
    st += [V(f"v_add_u32 v{vTid}, {TBL}, v{vTid}"), Op(f"ds_write_b32 v{vTid}, v{TC}", "lds")]
    for hf in range(2):
        A = TA
        st += [V(f"v_accvgpr_read_b32 v{A+r}, a{SP+16*hf+r}") for r in range(4)]
        for i in range(1, 4):
            st += [V(f"v_accvgpr_read_b32 v{TB_+r}, a{SP+16*hf+4*i+r}") for r in range(4)]
            st += [V(f"v_add_f32 v{A+r}, v{A+r}, v{TB_+r}") for r in range(4)]
        for op in ("v_permlane16_swap_b32", "v_permlane32_swap_b32"):
            st += [V(f"v_mov_b32 v{TB_+r}, v{A+r}") for r in range(4)]
            st += [V(f"{op} v{A+r}, v{TB_+r}") for r in range(4)]
            st += [V(f"v_add_f32 v{A+r}, v{A+r}, v{TB_+r}") for r in range(4)]
        for b in (2 * hf, 2 * hf + 1):
            sd = SD[b >> 1] + (b & 1)
            st += [V(f"v_mul_f32 v{PA[b]+1}, {f32(-1/1024)}, v{A+2*(b&1)}"),
                   V(f"v_mul_f32 v{PA[b]}, {f32(1/1024)}, v{A+2*(b&1)+1}"),
                   V(f"v_fma_f32 v{PA[b]}, -v{PA[b]+1}, v{PA[b]+1}, v{PA[b]}"),
                   V(f"v_max_f32 v{PA[b]}, 0, v{PA[b]}"),
                   V(f"v_add_f32 v{sd}, {f32(EPS)}, v{PA[b]}"),
                   Op(f"v_rsq_f32 v{PA[b]}, v{sd}", "t"), V("v_nop"),
                   V(f"v_mul_f32 v{sd}, v{sd}, v{PA[b]}"),
                   V(f"v_mul_f32 v{PA[b]}, {f32(-LOG2E)}, v{PA[b]}")]
    p = flow(st, vpos[id(cs_ld[-1][1])] + 90)
    n0 = min(n for n in range(1, S0) if barpos[n] >= p)
    p = barpos[n0] + 1
    todo = list(order)
    step = (8 * 14 * S0 - 40 - p) // 14
    for i in range(14):
        cur = lambda a: all(seq[q // 8][1] != a for q in range(p - 2, p + 48))
        cand = [a for a in todo if cur(a)]
        while not cand:
            p += 4
            cand = [a for a in todo if cur(a)]
        a = cand[0]
        todo.remove(a)
        C = [TA, TC][i & 1]
        r = Op(f"ds_read_b128 {vr(C,4)}, v{vCs} offset:{64*a}", "lds")
        ops = [V(f"v_fmac_f32 v{acc[a][b]+e}, v{PA[b]+1}, v{C+e}") for b in range(4) for e in range(4)]
        q = flow([r], p)
        q = flow([Op("", "wait", [r])] + ops, q + 6, p + 46)
        p = max(q, p + min(step, 24))
    assert p < barpos[15], p
    def epi(pr, packed):
        o = []
        for bb in (0, 2):
            d = acc[pr][bb]
            for b in (bb, bb + 1):
                g_, u = acc[pr][b], acc[pr + 7][b]
                sd = SD[b >> 1] + (b & 1)
                if packed:
                    sel = f"op_sel:[0,{b&1},{b&1}] op_sel_hi:[1,{b&1},{b&1}]"
                    o += [V(f"v_pk_mul_f32 {vr(g_+h,2)}, {vr(g_+h,2)}, {vr(PA[b],2)} op_sel:[0,0] op_sel_hi:[1,0]") for h in (0, 2)]
                    o += [Op(f"v_exp_f32 v{g_+r}, v{g_+r}", "t") for r in range(4)]
                    o += [V(f"v_pk_fma_f32 {vr(g_+h,2)}, {vr(g_+h,2)}, {vr(SD[b>>1],2)}, {vr(SD[b>>1],2)} {sel}") for h in (0, 2)]
                    o += [Op(f"v_rcp_f32 v{g_+r}, v{g_+r}", "t") for r in range(4)]
                    o += [V(f"v_pk_mul_f32 {vr(u+h,2)}, {vr(u+h,2)}, {vr(g_+h,2)}") for h in (0, 2)]
                else:
                    o += [V(f"v_mul_f32 v{g_+r}, v{PA[b]}, v{g_+r}") for r in range(4)]
                    o += [Op(f"v_exp_f32 v{g_+r}, v{g_+r}", "t") for r in range(4)]
                    o += [V(f"v_fma_f32 v{g_+r}, v{g_+r}, v{sd}, v{sd}") for r in range(4)]
                    o += [Op(f"v_rcp_f32 v{g_+r}, v{g_+r}", "t") for r in range(4)]
                    o += [V(f"v_mul_f32 v{u+r}, v{u+r}, v{g_+r}") for r in range(4)]
                o += [V(f"v_cvt_pk_bf16_f32 v{d+2*(b&1)}, v{u}, v{u+1}"), V(f"v_cvt_pk_bf16_f32 v{d+2*(b&1)+1}, v{u+2}, v{u+3}")]
            o += [V("v_nop"), V(f"v_permlane16_swap_b32 v{d}, v{d+2}"), V(f"v_permlane16_swap_b32 v{d+1}, v{d+3}")]
            sa = sA1 if pr == 6 else sA0
            o.append(Op(f"buffer_store_dwordx4 {vr(d,4)}, v{vOut}, s[{SWS}:{SWS+3}], s{sa} offen offset:{1024*bb} sc1", "vm"))
        o.append(Op(f"s_add_u32 s{sa}, s{sa}, {8*4096}", "s"))
        return o
    run = 8 * 2 * (16 - S0)
    t0 = 8 * 14 * S0
    D, N1, N2, K = OPT.get("dd", 3), 24, 8, 3584
    NST = N1 + N2
    S = lambda t: Op(t, "s")
    dTB, dNB, dXo, dXp, dWo, dM, dM2, dRes, dX0, dX1, dSig, dPol, dSigA, dPolA = range(44, 58)
    aT, aWd = [TA, TA + 1, TA + 2], [TB_, TB_ + 1, TB_ + 2]
    vRow, vP, vOne, T0, T1 = TA + 3, TB_ + 3, TC, TC + 1, TC + 2
    pool = acc[0] + acc[1] + acc[7] + acc[8]
    dacc = [[pool[4 * t + i] for i in range(4)] for t in range(4)]
    RES = [[128 + 8 * i + 4 * b for b in range(2)] for i in range(2)]
    SND = [[acc[9][2 * i + b] for b in range(2)] for i in range(2)]
    RCV = [[dacc[2 * b][2 + i] for b in range(2)] for i in range(2)]
    F = [[dict(X=[f0 + 32 * s + 4 * i for i in range(4)], W=[f0 + 32 * s + 16 + 4 * t for t in range(4)]) for s in range(2)] for f0 in (192, 0)]
    dslot = lambda n: (4 - n) % 5
    setup = [S(x) for x in srd_tail(SO, 4 * MB) + [
        f"s_bfe_u32 s{dNB}, s2, 0x20003", f"s_and_b32 s{sT}, s2, 1", f"s_lshl_b32 s{sT}, s{sT}, 2", f"s_add_u32 s{dNB}, s{dNB}, s{sT}",
        f"s_lshr_b32 s{dTB}, s2, 5", f"s_and_b32 s{sT}, s2, 4", f"s_lshl_b32 s{sT}, s{sT}, 1", f"s_add_u32 s{dTB}, s{dTB}, s{sT}",
        f"s_lshr_b32 s{dPol}, s{dTB}, 1", f"s_lshl_b32 s{dPol}, s{dPol}, 10", f"s_add_u32 s{dPol}, s{dPol}, {FL2}",
        f"s_lshl_b32 s{dSig}, s{sMB}, 10", f"s_add_u32 s{dSig}, s{dSig}, {FL2}",
        f"s_cmp_eq_u32 s{sW}, 0\ns_cselect_b32 s{dSig}, s{dSig}, {OOB}",
        f"s_lshl_b32 s{dTB}, s{dTB}, 1", f"s_bfe_u32 s{sT}, s2, 0x10001", f"s_add_u32 s{dTB}, s{dTB}, s{sT}",
        f"s_lshl_b32 s{dPolA}, s{sT}, 7", f"s_add_u32 s{dPolA}, s{dPolA}, s{dPol}",
        f"s_lshr_b32 s{dSigA}, s{sFB}, 4", f"s_lshl_b32 s{dSigA}, s{dSigA}, 7", f"s_add_u32 s{dSigA}, s{dSigA}, s{dSig}",
        f"s_lshl_b32 s{dM}, s{sW}, 11", f"s_lshl_b32 s{dM2}, s{sW}, 12",
        f"s_mul_i32 s{sT}, s{sT}, {N1*8192}", f"s_add_u32 s{sT}, s{sT}, s{dM}",
        f"s_mul_i32 s{dWo}, s{dNB}, {K*128}", f"s_add_u32 s{dWo}, s{dWo}, s{sT}", f"s_lshl_b32 s{dWo}, s{dWo}, 1", f"s_add_u32 s{dWo}, s{dWo}, {WDF}",
        f"s_add_u32 s{sT}, s{sT}, {AF}", f"s_mul_i32 s{dXo}, s{dTB}, {K*128}", f"s_add_u32 s{dXo}, s{dXo}, s{sT}",
        f"s_xor_b32 s{dXp}, s{dTB}, 1", f"s_mul_i32 s{dXp}, s{dXp}, {K*128}", f"s_add_u32 s{dXp}, s{dXp}, s{sT}",
        f"s_lshr_b32 s{sT}, s{sW}, 1", f"s_lshl_b32 s{sT2}, s{dNB}, 1", f"s_add_u32 s{sT2}, s{sT2}, s{sT}",
        f"s_lshl_b32 s{sT}, s{sT}, 12", f"s_add_u32 s{sT}, s{sT}, 16384"]]
    setup += [V(f"v_add_u32 v{aWd[0]}, s{sT}, v{vLin}"), V(f"v_add_u32 v{aWd[1]}, 0x10000, v{aWd[0]}"), V(f"v_add_u32 v{aWd[2]}, 0x20000, v{aWd[0]}")]
    setup += [S(x) for x in [f"s_and_b32 s{sT}, s{sW}, 1", f"s_lshl_b32 s{sT}, s{sT}, 11"]]
    setup += [V(f"v_add_u32 v{aT[0]}, s{sT}, v{vLin}"), V(f"v_add_u32 v{aT[1]}, 0x10000, v{aT[0]}"), V(f"v_add_u32 v{aT[2]}, 0x20000, v{aT[0]}")]
    setup += [S(x) for x in [
        f"s_lshl_b32 s{dRes}, s{sT2}, 13", f"s_add_u32 s{dRes}, s{dRes}, s{sT}", f"s_lshl_b32 s{dX0}, s{dTB}, 17", f"s_add_u32 s{dRes}, s{dRes}, s{dX0}",
        f"s_lshl_b32 s{sT}, s{sT}, 5", f"s_add_u32 s{sT}, s{sT}, s{dX0}", f"s_lshl_b32 s{sT2}, s{sT2}, 7", f"s_add_u32 s{sT}, s{sT}, s{sT2}"]]
    setup += [V(f"v_and_b32 v{T0}, 0xf0, v{vLin}"), V(f"v_lshlrev_b32 v{T0}, 7, v{T0}"), V(f"v_lshrrev_b32 v{T1}, 8, v{vLin}"),
              V(f"v_lshl_add_u32 v{T0}, v{T1}, 4, v{T0}"), V(f"v_add_u32 v{vRow}, s{sT}, v{T0}"), V(f"v_mov_b32 v{vOne}, 1")]
    setup += [S(f"s_add_u32 s{dX0}, s{dRes}, {HF}"), S(f"s_add_u32 s{dX1}, s{dRes}, {HF+4096}")]
    pset = flow(setup, max(p, t0 - 60), t0 + 16)

    def dma(m0, so, n, step):
        o = [[S(f"s_add_u32 m0, {m0}"), S("s_nop 0")]] + [[] for _ in range(n - 1)]
        for i in range(n):
            o[i].append(Op(f"buffer_load_dwordx4 v{vLin}, s[{SWS}:{SWS+3}], s{so} offen offset:{1024*i}{' sc1' if so != dWo else ''} lds", "vm"))
        o[-1].append(S(f"s_add_u32 s{so}, s{so}, {step}"))
        return o
    DX, DW = [], []
    for n in range(NST):
        base = dslot(n) * 32768
        x = dma(f"s{dM}, {base}", dXo, 2, 8192) + (dma(f"s{dM}, {base+8192}", dXp, 2, 8192) if n < N1 else [])
        w = dma(f"s{dM2}, {base+16384}", dWo, 4, 16384)
        if n == N1:
            x[0] = [S(f"s_mul_i32 s{dXo}, s{dTB}, {K*128}"), S(f"s_add_u32 s{dXo}, s{dXo}, s{dM}"), S(f"s_add_u32 s{dXo}, s{dXo}, {AF+2*N1*8192}")] + x[0]
            w[0] = [S(f"s_mul_i32 s{dWo}, s{dNB}, {K*256}"), S(f"s_add_u32 s{dWo}, s{dWo}, s{dM2}"), S(f"s_add_u32 s{dWo}, s{dWo}, {WDF+2*N1*16384}")] + w[0]
        DX.append(x); DW.append(w)
    vms = lambda gs: [o for g_ in gs for o in g_ if o.kind == "vm"]
    res = [Op(f"buffer_load_dwordx4 {ar(RES[i][b],4)}, v{vLin}, s[{SWS}:{SWS+3}], s{[dX0,dX1][b]} offen offset:{1024*i}", "vm") for i in range(2) for b in range(2)]
    signal = lambda w: Op(f"s_mov_b64 exec, 1\nbuffer_atomic_add v{vOne}, off, s[{SWS}:{SWS+3}], s{[dSigA,dSigA,dSig][w]} offset:{256*w} sc1\ns_mov_b64 exec, -1", "vm")
    polltxt = lambda w: f"buffer_load_dword v{vP}, off, s[{SWS}:{SWS+3}], s{[dPolA,dPolA,dPol][w]} offset:{256*w} sc1"
    POL = [Op(polltxt(w), "vm") for w in range(3)]
    pcheck = lambda w: [Op("", "wait", [POL[w]]), S(f"v_cmp_ne_u32 vcc, {[16,16,32][w]}, v{vP}\ns_nop 1\ns_cbranch_vccnz L_ffn_spin{w}\nL_ffn_go{w}:")]

    def put(pos, group):
        if len(group) > 2 and group[1].text == "s_nop 0":
            put(pos - 1, group[:1])
            group = group[2:]
        fixed2[pos] += group
        used[pos] += sum(o.cost for o in group)
    fixed2 = [[] for _ in fixed]
    EP = [epi(pr, False) for pr in range(6)]
    qa = t0 + 3 * run + 8 * OPT.get("siga", 4) + 7
    fixed[qa] = [Op("", "wait", vms([EP[0], EP[1]]), bar=True)]
    put(qa + 3, [signal(0)])
    q = t0 + 19
    for g_ in DW[0] + DW[1] + [[r] for r in res]:
        put(q, g_); q += 3 if q % 8 == 3 else 5
    put(t0 + 5 * run + OPT.get("pola", 30), [POL[0]])
    q = t0 + 6 * run + OPT.get("chka", 4)
    put(q, pcheck(0))
    for i, g_ in enumerate(DX[0]):
        put(q + 2 + 2 * i, g_)
    b0 = 8 * (NT_ - 3) + 7
    fixed[b0] = [Op("", "wait", vms(DX[0] + DW[0] + EP[:5]), bar=True)]
    for i, g_ in enumerate(DX[1] + DX[2]):
        put(b0 + 2 + 2 * i - (i == 7), g_)
    for pr in range(6):
        spread(EP[pr], t0 + run * (pr + 1), t0 + run * (pr + 2))
    ops = pro + [Op("", "wait", [x[1] for x in VM[0][:8 if HALF else 15]], bar=True)]
    if OPT["stamp"]:
        ops.append(Op("s_memrealtime s[96:97]\ns_memtime s[84:85]\ns_waitcnt lgkmcnt(0)", "s"))
    ops += RD[0] + RD[1] + [Op("", "wait", RD[0])]
    seg = dict(n=4, last=seg0)

    def page(room):
        if OPT.get("isl", 1):
            seg["n"] += sum(isize(o.text) for o in ops[seg["last"]:])
            seg["last"] = len(ops)
            if seg["n"] + room > 4088:
                ops.append(Op(island(), "s"))
                seg["n"], seg["last"] = 4, len(ops)
    npf = [0]

    def prof():
        if OPT.get("prof"):
            j = npf[0]; npf[0] += 1
            ops.append(S((f"v_writelane_b32 v{vSt}, s60, {j-1}\n" if j else "") + ("s_memtime s[60:61]" if OPT["prof"] == 1 else "s_memrealtime s[60:61]")))
    for i, m in enumerate(mf):
        if i in [112 * n for n in range(S0)] + [t0 + run * pr for pr in range(7)]:
            prof()
        if not fixed[i - 1]:
            page(160)
        late = [o for o in fixed[i] if o.kind == "wait"]
        ops += [m] + [o for o in fixed[i] if o.kind != "wait"] + late + fixed2[i] + flo[i]
    if OPT["stamp"]:
        ops.append(Op("s_memrealtime s[98:99]\ns_memtime s[86:87]", "s"))

    def dreads(n):
        f, sl = n & 1, dslot(n)
        o = []
        for s in range(2):
            o += [Op(f"ds_read_b128 {ar(F[f][s]['X'][i],4)}, v{aT[sl>>1]} offset:{(sl&1)*32768+(i>>1)*8192+s*4096+(i&1)*1024}", "lds") for i in range(4 if n < N1 else 2)]
            o += [Op(f"ds_read_b128 {ar(F[f][s]['W'][t],4)}, v{aWd[sl>>1]} offset:{(sl&1)*32768+s*8192+t*1024}", "lds") for t in range(4)]
        return o

    def dmf(n, tiles):
        f = n & 1
        return [Op(m16(vr(dacc[t][i], 4), ar(F[f][s]["W"][t], 4), ar(F[f][s]["X"][i], 4), "0" if (n == 0 and s == 0 and i >= 2) else None), "m")
                for t in range(4) for i in (tiles if t % 2 == 0 else tiles[::-1]) for s in range(2)]
    E6 = epi(6, True)
    init = [Op("", "wait", res)]
    for i in range(2):
        for b in range(2):
            for jt in range(2):
                for h in range(2):
                    a, r = dacc[2 * b + jt][i] + 2 * h, RES[i][b] + 2 * jt + h
                    init += [V(f"v_accvgpr_read_b32 v{a+1}, a{r}"), V(f"v_lshlrev_b32 v{a}, 16, v{a+1}"), V(f"v_and_b32 v{a+1}, 0xffff0000, v{a+1}")]
    init += [S(f"s_xor_b32 s{dX0}, s{dRes}, {1<<17}"), S(f"s_add_u32 s{dX1}, s{dX0}, {XB+4096}"), S(f"s_add_u32 s{dX0}, s{dX0}, {XB}")]
    prof()
    page(1250)
    todo = [(n, g_) for n in range(3, NST) for g_ in DX[n] + DW[n]]
    NZ = OPT.get("nz", 0)
    ops += weave(E6 + dreads(0) + init, DW[2] + [[signal(1)]] + [g_ for _, g_ in todo[:NZ]], 4)
    tgt = sum(1 for n, _ in todo if n <= N1 + D + 1)
    done = NZ
    snd = []
    for b in range(2):
        for i in range(2):
            o = SND[i][b]
            for jt in range(2):
                a = dacc[2 * b + jt][2 + i]
                snd += [[V(f"v_cvt_pk_bf16_f32 v{o+2*jt}, v{a}, v{a+1}"), V(f"v_cvt_pk_bf16_f32 v{o+2*jt+1}, v{a+2}, v{a+3}")]]
            snd += [[V(f"v_min_u32 v{o+r}, -2, v{o+r}") for r in (0, 1)], [V(f"v_min_u32 v{o+r}, -2, v{o+r}") for r in (2, 3)] +
                    [Op(f"buffer_store_dwordx4 {vr(o,4)}, v{vLin}, s[{SWS}:{SWS+3}], s{[dX0,dX1][b]} offen offset:{1024*i} sc1", "vm")]]
    rcvt = [f"buffer_load_dwordx4 {vr(RCV[i][b],4)}, v{vLin}, s[{SWS}:{SWS+3}], s{[dX0,dX1][b]} offen offset:{1024*i} sc1" for i in range(2) for b in range(2)]
    gate = {8: 1, 20: 2}
    upto = lambda n: NZ + ((tgt - NZ) * n) // N1 if n <= N1 else sum(1 for m, _ in todo if m <= n + D + 1)
    first_of = {m: min(i for i, (q, _) in enumerate(todo) if q == m) for m in gate}
    for n in range(1, NST):
        page(860)
        ops.append(Op("", "wait", vms(DX[n] + DW[n] + ([E6] if n == OPT.get("sigb", 3) else [])), bar=True))
        prof()
        ld = []
        for i in range(done, upto(n)):
            assert todo[i][0] <= n + 4
            if todo[i][0] in gate and first_of[todo[i][0]] == i:
                ld.append(pcheck(gate[todo[i][0]]))
            ld.append(todo[i][1])
        done = upto(n)
        assert done == len(todo) or todo[done][0] > n + 1
        for m, w in gate.items():
            if upto(n) <= first_of[m] < upto(n + 1):
                ld = [[POL[w]]] + ld
        if n == OPT.get("sigb", 3):
            ld = [[signal(2)]] + ld
        if n == N1 + 1:
            ld = ld + [[S(f"s_add_u32 s{dX0}, s{dRes}, {XB}"), S(f"s_add_u32 s{dX1}, s{dRes}, {XB+4096}")]]
        if n == NST - OPT.get("rl", 4):
            ld = ld + [[Op(x, "vm")] for x in rcvt]
        mm = dmf(n - 1, [0, 1, 2, 3]) if n < N1 else (dmf(n - 1, [2, 3]) + dmf(n - 1, [0, 1]) if n == N1 else dmf(n - 1, [0, 1]))
        sl = [[] for _ in mm]
        rd = dreads(n)
        for i, r in enumerate(rd):
            sl[i * (len(mm) * 5 // 8) // len(rd)].append(r)
        for i, g_ in enumerate(ld):
            q = (i * (len(mm) if n != N1 else 18)) // len(ld)
            if q and len(g_) > 2 and g_[1].text == "s_nop 0" and not any(o.kind == "vm" for o in sl[q]):
                sl[q - 1].append(g_[0])
                g_ = g_[2:]
            sl[q] += g_
        if n == N1:
            for i, g_ in enumerate(snd):
                sl[16 + i] += g_
        for m, e in zip(mm, sl):
            ops += [m] + e
    ops.append(Op("", "wait", rd))
    page(1200)
    ops += dmf(NST - 1, [0, 1])
    prof()
    ops.append(S("s_waitcnt lgkmcnt(0)" if OPT.get("prof") else "s_nop 0"))
    prof()
    emit_stream(k, ops)
    xstamp(k, 0)
    k(f"s_mov_b32 s{sN}, {1<<20}")
    k.label("L_ffn_chk")
    k("s_waitcnt vmcnt(0)")
    rr = [RCV[i][b] + r for i in range(2) for b in range(2) for r in range(4)]
    k(f"v_max3_u32 v{T0}, v{rr[0]}, v{rr[1]}, v{rr[2]}", f"v_max3_u32 v{T1}, v{rr[3]}, v{rr[4]}, v{rr[5]}")
    for j in range(6, 16, 2):
        t = [T0, T1][(j // 2) & 1]
        k(f"v_max3_u32 v{t}, v{rr[j]}, v{rr[j+1]}, v{t}")
    k(f"v_max_u32 v{T0}, v{T0}, v{T1}", f"v_cmp_eq_u32 vcc, -1, v{T0}", f"s_sub_u32 s{sN}, s{sN}, 1", "s_cbranch_scc1 L_ffn_out",
      "s_cbranch_vccz L_ffn_out", "s_sleep 2", rcvt, "s_branch L_ffn_chk")
    k.label("L_ffn_out")
    k(f"s_mov_b32 s{sN}, 32768")
    U = acc[3][0]
    for i in range(2):
        for b in range(2):
            o = acc[10][2 * i + b]
            for jt in range(2):
                a, q = dacc[2 * b + jt][i], RCV[i][b] + 2 * jt
                k(f"v_lshlrev_b32 v{U}, 16, v{q}", f"v_and_b32 v{U+1}, 0xffff0000, v{q}",
                  f"v_lshlrev_b32 v{U+2}, 16, v{q+1}", f"v_and_b32 v{U+3}, 0xffff0000, v{q+1}",
                  f"v_pk_add_f32 {vr(a,2)}, {vr(a,2)}, {vr(U,2)}", f"v_pk_add_f32 {vr(a+2,2)}, {vr(a+2,2)}, {vr(U+2,2)}",
                  f"v_cvt_pk_bf16_f32 v{o+2*jt}, v{a}, v{a+1}", f"v_cvt_pk_bf16_f32 v{o+2*jt+1}, v{a+2}, v{a+3}")
            k(f"buffer_store_dwordx4 {vr(o,4)}, v{vRow}, s[{SO}:{SO+3}], {['0', f's{sN}'][i]} offen offset:{64*b} sc1")
    if OPT.get("prof"):
        k("s_lshl_b32 s3, s89, 2", f"s_add_u32 s3, s3, s{sW}", "s_lshl_b32 s3, s3, 8", f"s_add_u32 s3, s3, {STAMP+2*MB}",
          f"v_lshrrev_b32 v{T0}, 2, v{vLin}", f"buffer_store_dword v{vSt}, v{T0}, s[{SWS}:{SWS+3}], s3 offen sc1")
    tail(k, 1, sW)
    for w in range(3):
        k.label(f"L_ffn_spin{w}")
        k(f"s_mov_b32 s{sN}, {1<<20}")
        k.label(f"L_ffn_spin{w}b")
        k(f"s_sleep {OPT.get('spsl', 4)}", polltxt(w), "s_waitcnt vmcnt(0)", f"v_cmp_ne_u32 vcc, {[16,16,32][w]}, v{vP}", f"s_sub_u32 s{sN}, s{sN}, 1", f"s_cbranch_scc1 L_ffn_go{w}",
          f"s_cbranch_vccnz L_ffn_spin{w}b", f"s_branch L_ffn_go{w}")
    return k


HEADER = open("sequential_preLN__grouped_kv_mqa__glu_gated_glu__prompt.s.ref").read().split("; Override launch")[0]


def k_diag():
    k = Kern("diag_kernel", 1, 64, 0)
    k.vgpr = k.acc = 8
    a, b, m = OPT["da"], OPT["db"], OPT["dm"]
    off = lambda x: STAMP + (x // 10) * 16384 + (x % 10) * 4 + OPT.get("dwg", 0) * 64
    k("s_cmp_ge_u32 s2, 1", "s_cbranch_scc1 L_diag_end", "s_load_dwordx2 s[4:5], s[0:1], 88", "s_waitcnt lgkmcnt(0)",
      f"v_mov_b32 v1, {off(a)}", f"v_mov_b32 v2, {off(b)}", "global_load_dword v3, v1, s[4:5]", "global_load_dword v4, v2, s[4:5]",
      "s_memrealtime s[8:9]", "s_waitcnt vmcnt(0) lgkmcnt(0)", "v_sub_u32 v3, v4, v3", "s_nop 1", "v_readfirstlane_b32 s6, v3", "s_nop 3",
      "s_min_u32 s6, s6, 20000", f"s_mul_i32 s6, s6, {m}")
    k.label("L_diag_loop")
    k("s_memrealtime s[10:11]", "s_waitcnt lgkmcnt(0)", "s_sub_u32 s10, s10, s8", "s_cmp_lt_u32 s10, s6", "s_cbranch_scc1 L_diag_loop")
    k.label("L_diag_end")
    k("s_endpgm")
    return k


def build():
    ks = [k01_attn(), k3_gateup()]
    if "dm" in OPT:
        ks.append(k_diag())
    s = HEADER + "".join(ks[int(c)].launch_line() + "\n" for c in str(OPT.get("seq", "".join(str(i) for i in range(len(ks))))).lstrip("9"))
    s += '.amdgcn_target "amdgcn-amd-amdhsa--gfx950"\n.text\n'
    for i, k in enumerate(ks):
        s += k.text()
        if i == 0:
            s += "L_code_rest:\n"
    s += "L_code_end:\n"
    chain = [n for n, back in ISL if back is None]
    for n, back in ISL:
        if back:
            s = s.replace(f"@ISL{n}@", f"s_branch {back}")
    for i, n in enumerate(chain):
        s = s.replace(f"@ISL{n}@", f"s_branch L_isl{chain[i+4]}" if i + 4 < len(chain) else "s_endpgm")
        s = s.replace(f"@HOP{i}@", f"L_isl{n}")
    s += '.section .rodata,"a"\n' + "".join(k.desc() for k in ks)
    return s


if __name__ == "__main__":
    out = sys.argv[1]
    for a in sys.argv[2:]:
        key, _, val = a.partition("=")
        OPT[key] = int(val) if val else True
    open(out, "w").write(build())
```

```python
import sys, math
sys.path.insert(0, __file__.rsplit("/", 1)[0])
from asmlib import *

MB = 1 << 20
QF, KVF, OF, HF, AF = 0, 4 * MB, 5 * MB, 9 * MB, 13 * MB
WOF, WGU, WDF, CSP, STP, STAMP = 28 * MB, 30 * MB, 44 * MB, 52 * MB, 53 * MB, 60 * MB
XB = 0
XB4 = [HF, XB, 56 * MB, 64 * MB]
FLG = 54 * MB
ST1 = 55 * MB
FL2 = FLG + 65536
WS_SZ = 72 * MB
OOB = 0x40000000
LOG2E = 1.4426950408889634
QSCALE = LOG2E / math.sqrt(32.0)
EPS = 1e-5
OPT = dict(stamp=False, force_slow=False)
A_X, A_WQ, A_WK, A_WV, A_WO, A_WG, A_WU, A_WD, A_OUT, A_WS = 0, 8, 16, 24, 32, 48, 56, 64, 72, 88


def ws_shift(s):
    if OPT.get("wsoff"):
        return [f"s_add_u32 s{s}, s{s}, {OPT['wsoff']*MB}", f"s_addc_u32 s{s+1}, s{s+1}, 0"]
    return []


ISL = []


def island(back=None, jump=True):
    if not OPT.get("isl", 1):
        return None
    n = len(ISL)
    ISL.append((n, back))
    return (f"s_branch L_isl{n}_over\n" if jump else "") + f".p2align 12\nL_isl{n}:\n@ISL{n}@\nL_isl{n}_over:"


def isize(text):
    import re
    t = 0
    for ln in text.split("\n"):
        ln = ln.strip()
        if not ln:
            t += 8
        elif ln.endswith(":") or ln.startswith("."):
            continue
        elif re.match(r"(v_mfma|v_smfmac|ds_|buffer_|global_|s_load|s_mem|v_fma_|v_cvt_pk|v_accvgpr|v_pk_|v_lshl_add|v_bfe|v_max3|v_maximum3|v_mul_lo)", ln):
            t += 8
        else:
            lit = [x for x in re.findall(r"(?<![\w\[:])(0x[0-9a-f]+|\d+)(?![\w\]:])", ln.split(None, 1)[1] if " " in ln else "") if int(x, 0) > 64]
            t += 8 if lit else 4
    return t


def hop(k, sw):
    if OPT.get("isl", 1) and not OPT.get("nohop"):
        for w in range(3):
            k(f"s_cmp_eq_u32 s{sw}, {w}", f"s_cbranch_scc1 @HOP{w}@")
        k("s_branch @HOP3@")
    else:
        k("s_endpgm")


def srd_tail(s, size):
    return [f"s_mov_b32 s{s+2}, {size}", f"s_mov_b32 s{s+3}, 0x00020000"]


def srd_from(s, base, off, size):
    return [f"s_add_u32 s{s}, s{base}, {off}", f"s_addc_u32 s{s+1}, s{base+1}, 0"] + srd_tail(s, size)


def head(k, pad=False):
    if pad and OPT.get("isl", 1) and OPT.get("epad", 1):
        n = len(ISL)
        ISL.append((n, None))
        k("s_cmp_lt_u32 s2, 256", f"s_cbranch_scc1 L_isl{n}_over", "s_endpgm", f"L_isl{n}:", f"@ISL{n}@", f"L_isl{n}_over:")
    else:
        k("s_cmp_ge_u32 s2, 256", f"s_cbranch_scc1 L_end_{k.name}")
    if OPT["stamp"]:
        k("s_memrealtime s[92:93]", "s_load_dwordx2 s[90:91], s[0:1], 88", "s_mov_b32 s89, s2")


def mid_stamp(k, i):
    if OPT["stamp"] and i < 2:
        k(f"s_memrealtime s[{96+2*i}:{97+2*i}]", f"s_memtime s[{84+2*i}:{85+2*i}]")
    elif OPT["stamp"]:
        k("s_memrealtime s[100:101]", "s_waitcnt lgkmcnt(0)", f"s_mov_b32 s{[93,88,3][i-2]}, s100")


def hstamp(k, lane):
    if OPT.get("hprof"):
        k("s_memrealtime s[84:85]", "s_waitcnt lgkmcnt(0)", f"v_writelane_b32 v200, s84, {lane}")


def xstamp(k, n):
    sel = str(OPT.get("xs", 378)).zfill(3)
    if str(n) in sel:
        mid_stamp(k, 2 + sel.index(str(n)))


def tail(k, kidx, swave):
    if OPT["stamp"]:
        k("s_waitcnt vmcnt(0)", "s_memrealtime s[94:95]", "s_waitcnt lgkmcnt(0)",
          "v_mov_b32 v0, s92", "v_mov_b32 v1, s96", "v_mov_b32 v2, s98", "v_mov_b32 v3, s94",
          "s_lshl_b32 s89, s89, 2", f"s_add_u32 s89, s89, s{swave}", "s_lshl_b32 s89, s89, 4",
          f"s_add_u32 s89, s89, {STAMP + kidx*16384}", "v_mov_b32 v4, s89",
          "global_store_dwordx4 v4, v[0:3], s[90:91]",
          "s_sub_u32 s86, s86, s84", "v_mov_b32 v8, s86", "v_mov_b32 v9, s93", "v_mov_b32 v10, s88", "v_mov_b32 v11, s3",
          "v_add_u32 v4, 0x100000, v4", "global_store_dwordx4 v4, v[8:11], s[90:91]")
    k.label(f"L_end_{k.name}")
    k("s_endpgm")


def ids_8x4(k, s_a, s_b, tmp):
    k(f"s_lshr_b32 s{tmp}, s2, 3",
      f"s_and_b32 s{s_a}, s{tmp}, 3",
      f"s_lshr_b32 s{s_b}, s{tmp}, 2",
      f"s_and_b32 s{tmp}, s2, 1",
      f"s_lshl_b32 s{tmp}, s{tmp}, 2",
      f"s_add_u32 s{s_a}, s{s_a}, s{tmp}",
      f"s_and_b32 s{tmp}, s2, 6",
      f"s_lshl_b32 s{tmp}, s{tmp}, 2",
      f"s_add_u32 s{s_b}, s{s_b}, s{tmp}")


def code_prefetch(k, vtmp, vdst, stmp, start, nkb_per_wg=1):
    k(f"s_getpc_b64 s[{stmp}:{stmp+1}]")
    lab = f"L_pc_{k.name}_{start}"
    k.label(lab)
    k(f"s_add_u32 s{stmp}, s{stmp}, {start}-{lab}",
      f"s_addc_u32 s{stmp+1}, s{stmp+1}, 0",
      f"global_load_dwordx4 {vr(vdst,4)}, v{vtmp}, s[{stmp}:{stmp+1}]" if not OPT.get("nopf") else None)


def k01_attn():
    D = 2
    STG, NS = 24576, D + 2
    EA = STG * NS
    SLOT, KVB, JB, TBL = 32768, 65536, 16384, 0
    k = Kern("attn_kernel", 256, 512, 163840)
    SX, SWQ, SE, SWS, SKV, SJ = 4, 8, 12, 16, 72, 76
    (sW, sTB, sHG, sC, sT, sT2, sRd, sWr, sKo, sJo, sJa, sJb, sGW, sStr, sDstep, sOo) = range(32, 48)
    sN, sX, sWo, sTH, sCH, sBW, sOo1, sFl, sKV = 48, 49, 54, 55, 56, 57, 65, 80, 81
    sD = [50, 51, 52, 53]
    sCs = [58, 59, 60, 61]
    sDB, sBsz, sWrJ = 62, 63, 64
    SDBG = 30
    v = Alloc(1)
    L, G, R, CQ, TOK, T0, T1, T2, vLin, vRd, IDX = [v() for _ in range(11)]
    h = Alloc(v.n)
    Q = [v(8, 4) for _ in range(2)]
    O = [v(16, 4) for _ in range(2)]
    LS = [v(4, 4) for _ in range(2)]
    acc = [[v(4, 4) for i in range(2)] for t in range(4)]
    cs = [v(4, 4) for _ in range(2)]
    sx, sxx = v(4, 4), v(4, 4)
    z1 = v.n
    SUMA, ONES = v(4, 4), v(4, 4)
    bX = [[v() for i in range(2)] for s in range(2)]
    bW = [v() for _ in range(4)]
    aX = [[v() for i in range(2)] for s in range(2)]
    aW = [v() for _ in range(4)]
    F0 = v(96, 4)
    F = [[dict(X=[F0 + 48 * f + 24 * s + 4 * i for i in range(2)], W=[F0 + 48 * f + 24 * s + 8 + 4 * t for t in range(4)]) for s in range(2)] for f in range(2)]
    S = [F0 + 16 * i for i in range(4)]
    KB = [F0 + 64 + 8 * i for i in range(2)]
    VB = [F0 + 80 + 8 * i for i in range(2)]
    XK = [F0 + 4 * j for j in range(8)]
    EK = [[F0 + 32 + 8 * j + 4 * t for t in range(2)] for j in range(8)]
    accE, csE = [Q[0], Q[0] + 4], [Q[1], Q[1] + 4]
    sxE, sxxE = v(4, 4), v(4, 4)
    vXk, vE, aE0, aE1, aP, aS, aG0, aG1, vKo, PF, vHo, vRow = [v() for _ in range(12)]
    RES = [[cs[0], cs[1]], [sx, sxx]]
    XR = 131072
    sFg, sRx, sH0, sH1, sS1 = 58, 59, 60, 61, 62
    k.vgpr = k.acc = 256
    vX, vX2 = h(), h()
    vW = [h() for _ in range(4)]
    vJ, vJB, vCs, vPo = h(), h(), h(), h()
    aJ = [h() for _ in range(4)]
    bJ = [h() for _ in range(2)]
    JF = [h(4, 4) for _ in range(4)]
    CS = [h(4, 4) for _ in range(4)]
    PF4 = h(4, 4)
    head(k)
    k(f"s_load_dwordx2 s[{SX}:{SX+1}], s[0:1], {A_X}",
      f"s_load_dwordx2 s[{SWQ}:{SWQ+1}], s[0:1], {A_WQ}",
      f"s_load_dwordx4 s[24:27], s[0:1], {A_WK}",
      f"s_load_dwordx2 s[{SWS}:{SWS+1}], s[0:1], {A_WS}",
      f"s_load_dwordx2 s[{SDBG}:{SDBG+1}], s[0:1], 80")
    k(f"s_lshl_b32 s{sT}, s2, 7", f"s_and_b32 s{sT}, s{sT}, 0x7c00", f"v_lshl_add_u32 v{T0}, v0, 1, s{sT}", f"v_and_b32 v{T0}, -4, v{T0}", "s_getpc_b64 s[20:21]", f"global_load_dword v{PF}, v{T0}, s[20:21]" if not OPT.get("nopf") else None)
    k(f"v_lshrrev_b32 v{T1}, 6, v0", f"v_and_b32 v{L}, 63, v0", f"v_readfirstlane_b32 s{sW}, v{T1}")
    ids_8x4(k, sHG, sTB, sT)
    k(f"v_lshrrev_b32 v{G}, 4, v{L}", f"v_and_b32 v{TOK}, 15, v{L}", f"v_lshlrev_b32 v{vLin}, 4, v{L}")
    k(f"s_and_b32 s{sTH}, s{sW}, 1", f"s_bfe_u32 s{sCH}, s{sW}, 0x10001",
      f"s_cmp_ge_u32 s{sW}, 4", "s_cbranch_scc1 L_f_help")
    k(f"s_and_b32 s{sT}, s{sHG}, 3", f"s_lshl_b32 s{sT2}, s{sTB}, 2", f"s_add_u32 s{sT}, s{sT}, s{sT2}", f"s_lshl_b32 s{sT}, s{sT}, 15",
      f"s_lshl_b32 s{sT2}, s{sW}, 9", f"s_add_u32 s{sT}, s{sT}, s{sT2}",
      f"v_lshlrev_b32 v{T0}, 11, v{TOK}", f"v_lshl_add_u32 v{T0}, v{G}, 4, v{T0}", f"v_add_u32 v{vXk}, s{sT}, v{T0}",
      f"v_and_b32 v{T0}, 32, v{L}", f"v_xor_b32 v{T0}, v{T0}, v{vLin}",
      f"s_lshl_b32 s{sWr}, s{sW}, 14", f"v_add_u32 v{vE}, s{sWr}, v{T0}",
      f"s_lshr_b32 s{sT}, s2, 3", f"s_lshl_b32 s{sT}, s{sT}, 11", f"v_lshlrev_b32 v{T0}, 3, v0",
      f"s_bitcmp1_b32 s{sHG}, 2", "s_waitcnt lgkmcnt(0)",
      f"s_cselect_b32 s{SE}, s26, s24", f"s_cselect_b32 s{SE+1}, s27, s25", srd_tail(SE, 0x10000), srd_tail(SX, 4 * MB))
    xstamp(k, 0)
    k(f"buffer_load_dword v{PF}, v{T0}, s[{SE}:{SE+3}], s{sT} offen")
    for j in range(8):
        k(f"buffer_load_dwordx4 {vr(XK[j],4)}, v{vXk}, s[{SX}:{SX+3}], 0 offen offset:{64*j}")

    def kv_ld(gi):
        k(f"s_add_u32 m0, s{sWr}, {EA+4096*gi}", f"s_mov_b32 s{sWo}, {4096*gi}")
        for i in range(4):
            k(f"buffer_load_dwordx4 v{vE}, s[{SE}:{SE+3}], s{sWo} offen offset:{1024*i} lds")
    k("s_branch L_f_comp")
    k.label("L_f_help")
    k(f"s_and_b32 s{sW}, s{sW}, 3")
    if OPT.get("wqpf", 1):
        k(f"v_and_b32 v{T0}, 255, v0", f"v_lshlrev_b32 v{T0}, 5, v{T0}", f"s_lshl_b32 s{sT}, s2, 13", "s_waitcnt lgkmcnt(0)", srd_tail(SWQ, 2 * MB),
          f"buffer_load_dword v{PF4}, v{T0}, s[{SWQ}:{SWQ+3}], s{sT} offen")
    k(f"v_lshrrev_b32 v{T0}, 3, v{L}",
      f"s_lshl_b32 s{sT}, s{sTH}, 2",
      f"v_add_u32 v{T1}, s{sT}, v{G}",
      f"v_and_b32 v{T2}, 7, v{L}",
      f"v_xor_b32 v{T1}, v{T1}, v{T2}",
      f"s_lshl_b32 s{sT}, s{sTB}, 6",
      f"s_lshl_b32 s{sT2}, s{sW}, 3",
      f"s_add_u32 s{sT}, s{sT}, s{sT2}",
      f"v_add_u32 v{T0}, s{sT}, v{T0}",
      f"v_lshlrev_b32 v{T0}, 11, v{T0}",
      f"v_lshl_add_u32 v{vX}, v{T1}, 4, v{T0}",
      f"v_add_u32 v{vX2}, 0x10000, v{vX}")
    k(f"v_lshlrev_b32 v{T1}, 1, v{G}",
      f"v_xor_b32 v{T1}, v{T1}, v{TOK}",
      f"s_lshl_b32 s{sT}, s{sTH}, 3",
      f"v_xor_b32 v{T1}, s{sT}, v{T1}",
      f"s_lshl_b32 s{sBW}, s{sTH}, 1",
      f"s_add_u32 s{sBW}, s{sBW}, s{sCH}",
      f"s_lshl_b32 s{sT}, s{sBW}, 13",
      f"s_lshl_b32 s{sT2}, s{sHG}, 8",
      f"s_add_u32 s{sT}, s{sT}, s{sT2}",
      f"v_lshlrev_b32 v{T0}, 11, v{G}",
      f"v_add_u32 v{T0}, s{sT}, v{T0}",
      f"v_lshl_add_u32 v{vW[0]}, v{T1}, 4, v{T0}")
    for i in range(1, 4):
        k(f"v_add_u32 v{vW[i]}, {32768*i}, v{vW[0]}")
    k(f"s_sub_u32 s{sBW}, s{sBW}, s{sW}", f"s_lshl_b32 s{sBW}, s{sBW}, 10", f"s_add_u32 s{sBW}, s{sBW}, 8192",
      f"s_lshl_b32 s{sWr}, s{sW}, 10", f"s_mov_b32 s{sN}, 12")
    k(f"s_and_b32 s{sT}, s{sTB}, {7 if OPT.get('rot', 0) else 0}",
      f"s_lshl_b32 s{sX}, s{sT}, 8", f"s_lshl_b32 s{sWo}, s{sT}, 18")
    k("s_waitcnt lgkmcnt(0)", srd_tail(SX, 4 * MB), srd_tail(SWQ, 2 * MB))
    k(f"s_load_dwordx2 s[20:21], s[0:1], {A_WO}", f"s_load_dwordx4 s[24:27], s[0:1], {A_WG}", f"s_load_dwordx2 s[28:29], s[0:1], {A_WD}")
    def q_x(slot):
        k(f"s_add_u32 m0, s{sWr}, {slot}", "s_nop 0", f"buffer_load_dwordx4 v{vX}, s[{SX}:{SX+3}], s{sX} offen lds",
          f"s_add_u32 m0, s{sWr}, {slot+4096}", "s_nop 0", f"buffer_load_dwordx4 v{vX2}, s[{SX}:{SX+3}], s{sX} offen lds",
          f"s_add_u32 s{sX}, s{sX}, 128", f"s_and_b32 s{sX}, s{sX}, 2047")

    def q_w(slot):
        k(f"s_add_u32 s{sT}, s{sWr}, s{sBW}")
        for i in range(4):
            k(f"s_add_u32 m0, s{sT}, {slot+4096*i}", "s_nop 0", f"buffer_load_dwordx4 v{vW[i]}, s[{SWQ}:{SWQ+3}], s{sWo} offen lds")
        k(f"s_add_u32 s{sWo}, s{sWo}, 0x20000", f"s_and_b32 s{sWo}, s{sWo}, 0x1fffff")

    def q_stage():
        q_x(0); q_w(0)
        k(f"s_add_u32 s{sWr}, s{sWr}, {STG}", f"s_cmp_ge_u32 s{sWr}, {EA}", f"s_cselect_b32 s{sT}, {EA}, 0",
          f"s_sub_u32 s{sWr}, s{sWr}, s{sT}", f"s_sub_u32 s{sN}, s{sN}, 1")
    k("s_branch L_f_setup")
    k.label("L_f_comp")
    k(f"v_bfe_u32 v{R}, v{L}, 2, 2", f"v_and_b32 v{CQ}, 3, v{L}", f"v_and_b32 v{T2}, 1, v{G}",
      f"s_lshl_b32 s{sT}, s{sW}, 14", f"s_add_u32 s{sT}, s{sT}, {EA}",
      f"v_lshlrev_b32 v{T0}, 5, v{T2}", f"v_lshl_add_u32 v{T0}, v{CQ}, 3, v{T0}",
      f"v_lshl_add_u32 v{T0}, v{R}, 6, v{T0}", f"v_lshl_add_u32 v{T0}, v{G}, 9, v{T0}",
      f"v_add_u32 v{aE0}, s{sT}, v{T0}", f"v_xor_b32 v{aE1}, 32, v{aE0}")
    for i in range(4):
        k(f"v_mov_b32 v{ONES+i}, 0x3f803f80")
    k(ws_shift(SWS), srd_tail(SWS, WS_SZ), srd_from(SKV, SWS, KVF, 262144))
    k(f"s_lshl_b32 s{sT}, s{sCH}, 10", f"s_lshl_b32 s{sT2}, s{sTH}, 3", f"s_add_u32 s{sT}, s{sT}, s{sT2}", f"s_add_u32 s{sT}, s{sT}, {EA}",
      f"v_add_u32 v{aP}, s{sT}, v{vLin}", f"v_lshlrev_b32 v{aS}, 3, v{TOK}", f"v_add_u32 v{aS}, {EA+4096}, v{aS}")
    k(f"s_bfe_u32 s{sT}, s{sHG}, 0x10001", f"s_lshl_b32 s{sKV}, s{sTB}, 1", f"s_add_u32 s{sKV}, s{sKV}, s{sT}", f"s_lshl_b32 s{sKV}, s{sKV}, 12",
      f"s_and_b32 s{sT2}, s{sHG}, 1", f"s_bitcmp1_b32 s{sHG}, 2", "s_cbranch_scc1 L_f_av")
    k(f"s_lshl_b32 s{sT2}, s{sT2}, 8", f"s_add_u32 s{sKV}, s{sKV}, s{sT2}",
      f"s_lshl_b32 s{sT}, s{sW}, 2", f"s_add_u32 s{sT}, s{sT}, {EA+8192}", f"v_add_u32 v{aG0}, s{sT}, v{vLin}", f"v_add_u32 v{aG1}, 2, v{aG0}",
      f"v_lshlrev_b32 v{T0}, 10, v{T2}", f"v_lshrrev_b32 v{T1}, 1, v{G}", f"v_lshl_add_u32 v{T0}, v{T1}, 9, v{T0}", f"v_lshl_add_u32 v{vKo}, v{TOK}, 4, v{T0}",
      "s_branch L_f_ax")
    k.label("L_f_av")
    k(f"s_lshl_b32 s{sT2}, s{sT2}, 10", f"s_add_u32 s{sKV}, s{sKV}, s{sT2}", f"s_add_u32 s{sKV}, s{sKV}, 2048",
      f"v_lshlrev_b32 v{T0}, 7, v{T2}", f"v_lshrrev_b32 v{T1}, 1, v{G}", f"v_lshl_add_u32 v{T0}, v{T1}, 6, v{T0}",
      f"v_bfe_u32 v{T1}, v{L}, 3, 1", f"v_lshl_add_u32 v{T0}, v{T1}, 9, v{T0}", f"v_and_b32 v{T1}, 7, v{L}", f"v_lshl_add_u32 v{T0}, v{T1}, 1, v{T0}",
      f"s_lshl_b32 s{sT}, s{sCH}, 8", f"s_lshl_b32 s{sT2}, s{sTH}, 5", f"s_add_u32 s{sT}, s{sT}, s{sT2}", f"s_add_u32 s{sT}, s{sT}, {EA+8192}",
      f"v_add_u32 v{aG0}, s{sT}, v{T0}", f"v_add_u32 v{aG1}, 16, v{aG0}", f"v_mov_b32 v{vKo}, v{vLin}")
    k.label("L_f_ax")
    k(f"v_lshrrev_b32 v{T0}, 1, v{TOK}", f"v_xor_b32 v{T0}, v{T0}, v{G}", f"v_lshlrev_b32 v{T0}, 4, v{T0}",
      f"v_lshl_add_u32 v{T0}, v{TOK}, 7, v{T0}",
      f"s_lshl_b32 s{sT}, s{sTH}, 1", f"s_add_u32 s{sT}, s{sT}, s{sCH}", f"s_lshl_b32 s{sT}, s{sT}, 11",
      f"v_add_u32 v{bX[0][0]}, s{sT}, v{T0}",
      f"v_xor_b32 v{bX[0][1]}, 2048, v{bX[0][0]}",
      f"v_xor_b32 v{bX[1][0]}, 64, v{bX[0][0]}",
      f"v_xor_b32 v{bX[1][1]}, 64, v{bX[0][1]}")
    k(f"v_lshlrev_b32 v{T0}, 2, v{T2}", f"v_xor_b32 v{T0}, v{T0}, v{R}",
      f"s_lshl_b32 s{sT}, s{sCH}, 2", f"s_lshl_b32 s{sT2}, s{sTH}, 1", f"s_add_u32 s{sT}, s{sT}, s{sT2}",
      f"v_xor_b32 v{T0}, s{sT}, v{T0}",
      f"v_lshlrev_b32 v{T0}, 5, v{T0}",
      f"v_lshl_add_u32 v{T0}, v{CQ}, 3, v{T0}",
      f"v_lshl_add_u32 v{T0}, v{R}, 8, v{T0}",
      f"v_lshl_add_u32 v{T0}, v{G}, 11, v{T0}",
      f"v_add_u32 v{bW[0]}, 8192, v{T0}")
    for t in range(1, 4):
        k(f"v_xor_b32 v{bW[t]}, {32*t}, v{bW[0]}")
    bases = [(aX[s][i], bX[s][i]) for s in range(2) for i in range(2)] + list(zip(aW, bW))
    for a, b in bases:
        k(f"v_mov_b32 v{a}, v{b}")
    for i in range(O[0], z1, 2):
        k(f"v_mov_b64 {vr(i,2)}, 0")
    k(f"v_and_b32 v{T0}, 7, v{L}", f"v_cmp_eq_u32 vcc, 0, v{T0}", f"v_mov_b32 v{IDX}, 0xdddd", f"v_add_u32 v{vRd}, {KVB+SLOT}, v{vLin}",
      f"v_cndmask_b32 v{SUMA}, 0, v{ONES}, vcc", f"v_cndmask_b32 v{SUMA+1}, 0, v{ONES}, vcc",
      f"v_cmp_eq_u32 vcc, 4, v{T0}", f"v_and_b32 v{T0}, 1, v{TOK}", f"v_and_b32 v{T1}, 2, v{TOK}",
      f"v_cndmask_b32 v{SUMA+2}, 0, v{ONES}, vcc", f"v_cndmask_b32 v{SUMA+3}, 0, v{ONES}, vcc",
      f"v_cmp_eq_u32 s[66:67], 1, v{T0}", f"v_cmp_eq_u32 s[68:69], 2, v{T1}", f"v_cmp_eq_u32 s[82:83], v{R}, v{G}")
    k(f"s_lshl_b32 s{sFg}, s{sTB}, 9", f"s_add_u32 s{sFg}, s{sFg}, {FLG}")
    k(f"s_lshr_b32 s{sS1}, s{sHG}, 2", f"s_lshl_b32 s{sS1}, s{sS1}, 5", f"s_add_u32 s{sS1}, s{sS1}, s{sTB}", f"s_lshl_b32 s{sS1}, s{sS1}, 9",
      f"s_add_u32 s{sS1}, s{sS1}, {ST1}")
    k(f"v_lshrrev_b32 v{T0}, 1, v{G}", f"v_lshl_add_u32 v{T0}, v{T2}, 1, v{T0}", f"v_lshlrev_b32 v{T1}, 4, v{TOK}", f"v_lshl_add_u32 v{vHo}, v{T0}, 8, v{T1}",
      f"v_lshlrev_b32 v{T1}, 11, v{TOK}", f"v_lshl_add_u32 v{T0}, v{T0}, 4, v{T1}",
      f"s_lshl_b32 s{sT}, s{sTB}, 1", f"s_add_u32 s{sT}, s{sT}, s{sTH}", f"s_lshl_b32 s{sT}, s{sT}, 16",
      f"s_lshl_b32 s{sT2}, s{sHG}, 2", f"s_add_u32 s{sT2}, s{sT2}, s{sW}", f"s_lshl_b32 s{sT2}, s{sT2}, 6", f"s_add_u32 s{sT}, s{sT}, s{sT2}",
      f"v_add_u32 v{vRow}, s{sT}, v{T0}")
    k(f"s_mov_b32 s{sRd}, 0", f"s_mov_b32 s{sN}, 7", f"s_cmp_eq_u32 s{sW}, 0", f"s_cselect_b32 s{sFl}, 7, -1")
    xstamp(k, 1)

    def diag(dst, src):
        return [f"v_cndmask_b32 v{T0}, v{src}, v{src+1}, s[66:67]", f"v_cndmask_b32 v{T1}, v{src+2}, v{src+3}, s[66:67]",
                f"v_cndmask_b32 v{dst}, v{T0}, v{T1}, s[68:69]"]

    def kv_mf(gi):
        o = []
        for j in (2 * gi, 2 * gi + 1):
            c = "0" if j == 0 else None
            for t in range(2):
                o += [m16(vr(accE[t], 4), vr(EK[j][t], 4), vr(XK[j], 4), c), m16(vr(csE[t], 4), vr(EK[j][t], 4), vr(ONES, 4), c)]
        return o
    kv_rd = lambda gi: [f"ds_read_b64_tr_b16 {vr(EK[j][t]+2*jj,2)}, v{[aE0,aE1][t]} offset:{j*2048+jj*256}"
                        for j in (2 * gi, 2 * gi + 1) for t in range(2) for jj in range(2)]
    kv_ld(0); kv_ld(1)
    k("s_waitcnt vmcnt(8)")
    xstamp(k, 2)
    for j in range(8):
        k(m16(vr(sxxE, 4), vr(XK[j], 4), vr(XK[j], 4), "0" if j == 0 else None), m16(vr(sxE, 4), vr(ONES, 4), vr(XK[j], 4), "0" if j == 0 else None))
    kv_ld(2)
    k("s_waitcnt vmcnt(8)", kv_rd(0))
    kv_ld(3)
    xstamp(k, 3)
    k("s_barrier")
    k(f"s_add_u32 s{sT}, s{sWr}, {EA}", f"v_add_u32 v{vE}, s{sT}, v{vLin}", f"v_lshl_add_u32 v{vXk}, v{TOK}, 3, s{sT}")
    k(diag(sxE + 1, sxxE))
    for gi in range(1, 4):
        k(f"s_waitcnt vmcnt({12-4*gi}) lgkmcnt(0)", weave(kv_mf(gi - 1), kv_rd(gi), 0, 5))
    xstamp(k, 4)
    k("s_waitcnt lgkmcnt(0)", kv_mf(3), "s_mov_b64 exec, s[82:83]", f"ds_write_b64 v{vXk}, {vr(sxE,2)} offset:4096", "s_mov_b64 exec, -1", "s_nop 3")
    for i, r in enumerate(accE + csE):
        k(f"ds_write_b128 v{vE}, {vr(r,4)} offset:{1024*i}")
    k("s_waitcnt lgkmcnt(0)")
    xstamp(k, 5)
    k(island(back="L_f_back"))
    U = F0 + 48

    def sum4(r):
        return [f"v_add_f32 v{r+e}, v{r+e}, v{r+2+e}" for e in range(2)] + [f"v_add_f32 v{r+4+e}, v{r+4+e}, v{r+6+e}" for e in range(2)] + \
               [f"v_add_f32 v{r+e}, v{r+e}, v{r+4+e}" for e in range(2)]

    def stats(s, scale):
        return [f"v_mul_f32 v{s}, {f32(-1/1024)}, v{s}", f"v_mul_f32 v{s+1}, {f32(1/1024)}, v{s+1}",
                f"v_fma_f32 v{s+1}, -v{s}, v{s}, v{s+1}", f"v_max_f32 v{s+1}, 0, v{s+1}", f"v_add_f32 v{s+1}, {f32(EPS)}, v{s+1}",
                f"v_rsq_f32 v{s+2}, v{s+1}", "s_nop 0", f"v_mul_f32 v{s+2}, {f32(scale)}, v{s+2}" if scale != 1 else None,
                f"v_mul_f32 v{s+1}, v{s}, v{s+2}", f"v_mov_b32 v{s}, v{s+2}"]
    def reads(fi):
        o = []
        for s in range(2):
            f = F[fi][s]
            o += [f"ds_read_b128 {vr(f['X'][i],4)}, v{aX[s][i]}" for i in range(2)]
            for t in range(4):
                for j in range(2):
                    o.append(f"ds_read_b64_tr_b16 {vr(f['W'][t]+2*j,2)}, v{aW[t]} offset:{s*8192+j*1024}")
        return o

    def mfmas(fi):
        X = lambda s, i: vr(F[fi][s]["X"][i], 4)
        W = lambda s, t: vr(F[fi][s]["W"][t], 4)
        On = vr(ONES, 4)
        o = []
        for t in range(4):
            if t < 2:
                o += [m16(vr(cs[t], 4), W(s, t), On) for s in range(2)]
            o += [m16(vr(acc[t][i], 4), W(s, t), X(s, i)) for i in range(2) for s in range(2)]
        return o
    va = [f"v_add_u32 v{a}, s{sRd}, v{b}" for a, b in bases]
    adv = [[f"s_add_u32 s{sRd}, s{sRd}, {STG}", f"s_cmp_eq_u32 s{sRd}, {EA}"], [f"s_cselect_b32 s{sRd}, 0, s{sRd}"]] + \
          [va[i:i + 2] for i in range(0, len(va), 2)]
    k("s_barrier")
    xstamp(k, 7)
    if OPT.get('qcyc'):
        mid_stamp(k, 0)
    for w in range(4):
        k(f"ds_read_b64 {vr(U+2*w,2)}, v{aS} offset:{16384*w}")
    for w in range(4):
        k(f"ds_read_b64 {vr(U+8+2*w,2)}, v{aP} offset:{16384*w}", f"ds_read_b64 {vr(U+16+2*w,2)}, v{aP} offset:{16384*w+2048}")
    r0 = reads(0)
    k(r0[:3], "s_waitcnt lgkmcnt(11)", weave(sum4(U) + [x for x in stats(U, 1) if x], r0[3:12], 0, 12), "s_waitcnt lgkmcnt(12)",
      weave(sum4(U + 8) + sum4(U + 16), r0[12:]))
    for e in range(2):
        k(f"v_mul_f32 v{U+8+e}, v{U}, v{U+8+e}", f"v_fmac_f32 v{U+8+e}, v{U+1}, v{U+16+e}")
    k(f"v_cvt_pk_bf16_f32 v{U+8}, v{U+8}, v{U+9}", f"ds_write_b16 v{aG0}, v{U+8}", f"ds_write_b16_d16_hi v{aG1}, v{U+8}",
      f"v_mov_b64 {vr(sxxE,2)}, {vr(U,2)}")
    k(adv, f"s_lshl_b32 s{sT}, s{sTH}, 1", f"s_add_u32 s{sT}, s{sT}, s{sCH}", f"s_lshl_b32 s{sT}, s{sT}, 7",
      f"v_lshl_add_u32 v{aP}, v{TOK}, 3, s{sT}", f"v_xor_b32 v{aS}, 128, v{aP}", "s_waitcnt lgkmcnt(0)")
    k.label("L_f_qloop")
    for f in range(2):
        k("s_barrier")
        m = weave(mfmas(f), reads(1 - f), 0, 11)
        if f == 0:
            k(weave(m, adv + [[f"s_cmp_eq_u32 s{sN}, s{sFl}"]], len(m) - 8, len(m) - 1))
            k("s_cbranch_scc1 L_f_flag")
            k.label("L_f_flagged")
        else:
            k(weave(m, adv + [[f"s_sub_u32 s{sN}, s{sN}, 1", f"s_cmp_lg_u32 s{sN}, 0"]], len(m) - 8, len(m) - 1))
        k("s_waitcnt lgkmcnt(0)")
    k("s_cbranch_scc1 L_f_qloop")
    k("s_barrier")
    ST = [sx, sxx]
    c2, c3 = S[0] + 8, S[0] + 12
    k(f"buffer_load_dwordx2 {vr(ST[0],2)}, v{aP}, s[{SWS}:{SWS+3}], s{sS1} offen sc1",
      f"buffer_load_dwordx2 {vr(ST[1],2)}, v{aS}, s[{SWS}:{SWS+3}], s{sS1} offen sc1")
    pre = [[f"s_lshl_b32 s{sT}, s{sCH}, 2", f"s_lshl_b32 s{sT2}, s{sTH}, 1"], [f"s_add_u32 s{sT}, s{sT}, s{sT2}", f"s_lshl_b32 s{sT}, s{sT}, 6"],
           [f"v_lshl_add_u32 v{T1}, v{G}, 4, s{sT}"]]
    m = weave(mfmas(0), reads(1), 0, 11)
    k(weave(m, pre, len(m) - 8, len(m) - 1), "s_waitcnt lgkmcnt(0)")
    m = mfmas(1)
    k(m[:16], f"ds_write_b128 v{T1}, {vr(cs[0],4)} offset:{TBL+512}", m[16], f"ds_write_b128 v{T1}, {vr(cs[1],4)} offset:{TBL+576}", m[17:])
    xstamp(k, 8)
    if OPT.get('qcyc'):
        mid_stamp(k, 1)
    k(f"v_xor_b32 v{T1}, 128, v{T1}", "s_waitcnt lgkmcnt(0)", "s_barrier")
    k(f"ds_read_b128 {vr(c2,4)}, v{T1} offset:{TBL+512}", f"ds_read_b128 {vr(c3,4)}, v{T1} offset:{TBL+576}")
    for r0, n in ((S[3], 16), (VB[1], 8)):
        for i in range(0, n, 2):
            k(f"v_mov_b64 {vr(r0+i,2)}, 0")
    k(f"s_lshl_b32 s{sT}, s{sTB}, 3", f"s_add_u32 s{sT}, s{sT}, s{sHG}", f"s_lshl_b32 s{sT}, s{sT}, 1", f"s_add_u32 s{sT}, s{sT}, s{sCH}",
      f"s_lshl_b32 s{sT}, s{sT}, 13", f"s_mul_i32 s{sT2}, s{sTH}, 6144", f"s_add_u32 s{sT}, s{sT}, s{sT2}",
      f"s_add_u32 s{sOo}, s{sT}, {OF}", f"s_xor_b32 s{sOo1}, s{sOo}, 4096",
      f"s_mov_b32 s{sRd}, {KVB+SLOT}", f"s_mov_b32 s{sC}, 8")
    k("s_waitcnt vmcnt(0) lgkmcnt(0)")
    for i in range(2):
        k(f"v_mul_f32 v{ST[i]}, {f32(QSCALE)}, v{ST[i]}", f"v_mul_f32 v{ST[i]+1}, {f32(QSCALE)}, v{ST[i]+1}")
    csr = [cs[0], cs[1], c2, c3]
    for p in range(2):
        for i in range(2):
            o = Q[p] + 4 * i
            for jt in range(2):
                t = 2 * p + jt
                a = acc[t][i]
                for hh in (0, 2):
                    k(f"v_pk_mul_f32 {vr(a+hh,2)}, {vr(a+hh,2)}, {vr(ST[i],2)} op_sel_hi:[1,0]")
                for hh in (0, 2):
                    k(f"v_pk_fma_f32 {vr(a+hh,2)}, {vr(csr[t]+hh,2)}, {vr(ST[i],2)}, {vr(a+hh,2)} op_sel:[0,1,0] op_sel_hi:[1,1,1]")
                k(f"v_cvt_pk_bf16_f32 v{o+2*jt}, v{a}, v{a+1}", f"v_cvt_pk_bf16_f32 v{o+2*jt+1}, v{a+2}, v{a+3}")
    for p in range(2):
        for r in range(4):
            k(f"v_permlane16_swap_b32 v{Q[p]+r}, v{Q[p]+4+r}")
    k("s_branch L_f_att")
    k.label("L_f_flag")
    k(f"s_cmp_lg_u32 s{sFl}, 7", "s_cbranch_scc1 L_f_flag2")
    k(f"ds_read_b128 {vr(sxE,4)}, v{vE} offset:8192", f"v_lshlrev_b32 v{T0}, 3, v{L}",
      f"s_cmp_eq_u32 s{sHG}, 0", f"s_cselect_b32 s{sT}, s{sFg}, {OOB}",
      f"buffer_store_dwordx2 {vr(O[0],2)}, v{T0}, s[{SWS}:{SWS+3}], s{sT} offen sc1",
      f"s_and_b32 s{sT}, s{sHG}, 3", f"s_lshl_b32 s{sT}, s{sT}, 7", f"s_add_u32 s{sT}, s{sT}, s{sS1}", "s_mov_b64 exec, 0xffff",
      f"buffer_store_dwordx2 {vr(sxxE,2)}, v{T0}, s[{SWS}:{SWS+3}], s{sT} offen sc1", "s_mov_b64 exec, -1", "s_waitcnt lgkmcnt(0)",
      f"buffer_store_dwordx4 {vr(sxE,4)}, v{vKo}, s[{SKV}:{SKV+3}], s{sKV} offen sc1",
      f"s_mov_b32 s{sFl}, {OPT.get('flagit', 5)}", "s_branch L_f_flagged")
    k.label("L_f_flag2")
    k(f"s_and_b32 s{sT}, s2, 0xfc", f"v_mov_b32 v{T0}, s{sT}", f"v_mov_b32 v{T1}, 1", "s_mov_b64 exec, 1", "s_waitcnt vmcnt(0)",
      f"global_atomic_add v{T0}, v{T1}, s[{SDBG}:{SDBG+1}] sc1", "s_mov_b64 exec, -1", "s_branch L_f_flagged")
    k(island(back="L_f_back", jump=False))
    k.label("L_f_att")
    k("s_barrier")
    if not (OPT.get('qcyc') or OPT.get('ocyc')):
        mid_stamp(k, 0)
    rdK = lambda t: [f"ds_read_b128 {vr(KB[t&1]+4*m,4)}, v{vRd} offset:{(t%8)*4096+1024*m}" for m in range(2)]
    rdV = lambda t: [f"ds_read_b128 {vr(VB[t&1]+4*m,4)}, v{vRd} offset:{(t%8)*4096+2048+1024*m}" for m in range(2)]
    qk = lambda u, c="0": [m32(vr(S[u % 4], 16), vr(KB[(u >> 1) & 1], 4), vr(Q[u & 1], 4), c),
                           m32(vr(S[u % 4], 16), vr(KB[(u >> 1) & 1] + 4, 4), vr(Q[u & 1] + 4, 4))]
    pv = lambda u: [f"v_smfmac_f32_32x32x32_bf16 {vr(O[u&1],16)}, {vr(VB[(u>>1)&1]+4*m,4)}, {vr(S[u%4]+8*m,8)}, v{IDX}" for m in range(2)]
    sm = lambda u: [f"v_smfmac_f32_16x16x64_bf16 {vr(LS[u&1],4)}, {vr(SUMA,4)}, {vr(S[u%4]+8*m,8)}, v{IDX}" for m in range(2)]
    k(rdK(0), rdV(0), "s_waitcnt lgkmcnt(0)", qk(0), "s_nop 7", "s_nop 3")
    k(".p2align 6")
    k.label("L_k1_loop")
    for u in range(16):
        ex = [f"v_exp_f32 v{S[u%4]+i}, v{S[u%4]+i}" for i in range(16)]
        mf = qk(u + 1) + pv(u - 1) + sm(u - 1)
        sl = [[] for _ in range(6)]
        t = u >> 1
        rd = rdK(t + 1) if u % 2 == 0 else rdV(t + 1)
        if u == 12:
            sl[2] += [f"s_cmp_eq_u32 s{sC}, 2"]
            sl[3] += ["s_cbranch_scc1 L_f_res", "L_f_resd:"]
        if u == 13:
            sl[2] += [f"s_add_u32 s{sRd}, s{sRd}, {SLOT}"]
            sl[3] += [f"s_cmp_eq_u32 s{sRd}, {KVB+3*SLOT}"]
            sl[4] += [f"s_cselect_b32 s{sRd}, {KVB}, s{sRd}"]
            sl[5] += ["s_waitcnt lgkmcnt(0)", f"v_add_u32 v{vRd}, s{sRd}, v{vLin}"]
        if u == 14:
            sl[0] += ["s_barrier"]
            sl[1].append(rd[0]); sl[2].append(rd[1])
        else:
            sl[0].append(rd[0]); sl[1].append(rd[1])
        if u == 15:
            sl[2] += [f"s_sub_u32 s{sC}, s{sC}, 1"]
            sl[3] += [f"s_cmp_lg_u32 s{sC}, 0"]
        if u % 2 == 0:
            sl[5].append("s_waitcnt lgkmcnt(0)")
        cuts = [0, 3, 6, 9, 12, 14, 16]
        for i in range(6):
            k(mf[i], sl[i], ex[cuts[i]:cuts[i + 1]])
    k("s_cbranch_scc1 L_k1_loop")
    if not (OPT.get('qcyc') or OPT.get('ocyc')):
        mid_stamp(k, 1)
    vO, aO0, aO1 = aG0, aG1, vKo
    PK = [S[1], S[1] + 8]

    def check(q):
        o = [f"v_maximum3_f32 v{T0}, abs(v{O[q]}), abs(v{O[q]+1}), v{LS[q]}", f"v_maximum3_f32 v{T1}, abs(v{O[q]+2}), abs(v{O[q]+3}), abs(v{O[q]+4})"]
        for i in range(5, 15, 2):
            t = [T0, T1][(i // 2) & 1]
            o.append(f"v_maximum3_f32 v{t}, abs(v{O[q]+i}), abs(v{O[q]+i+1}), v{t}")
        o += [f"v_maximum3_f32 v{T0}, abs(v{O[q]+15}), v{T1}, v{T0}",
              f"v_cmp_nle_f32 vcc, {f32(2.0**-80)}, v{LS[q]}", f"s_mov_b64 s[70:71], vcc",
              f"v_cmp_nge_f32 vcc, {f32(2.0**100)}, v{T0}", f"s_or_b64 s[70:71], s[70:71], vcc",
              "s_branch L_k1_slow" if OPT["force_slow"] == q + 1 else None, "s_cbranch_scc1 L_k1_slow"]
        return o

    def out(q):
        o = [f"v_rcp_f32 v{LS[q]}, v{LS[q]}", "s_nop 0"]
        for m in range(2):
            d = PK[q] + 4 * m
            o += [f"v_pk_mul_f32 {vr(O[q]+8*m+i,2)}, {vr(O[q]+8*m+i,2)}, {vr(LS[q],2)} op_sel_hi:[1,0]" for i in range(0, 8, 2)]
            o += [f"v_cvt_pk_bf16_f32 v{d+i}, v{O[q]+8*m+2*i}, v{O[q]+8*m+2*i+1}" for i in range(4)]
            o.append(f"buffer_store_dwordx4 {vr(d,4)}, v{vO}, s[{SWS}:{SWS+3}], s{[sOo,sOo1][q]} offen offset:{512*m} sc1")
        return o
    k("s_nop 1", pv(15), sm(15), "s_nop 7", check(0), out(0), check(1))
    k.label("L_k1_out")
    k(out(1))
    for q in range(2):
        for m in range(2):
            k(f"ds_write_b128 v{[aO0,aO1][q]}, {vr(PK[q]+4*m,4)} offset:{512*m}")
    k("s_branch L_f_oproj")
    k.label("L_f_res")
    k(f"v_xor_b32 v{T0}, 64, v{vRow}", f"s_mov_b32 s{sT}, 32768")
    for i in range(2):
        for b in range(2):
            k(f"buffer_load_dwordx4 {vr(RES[i][b],4)}, v{[vRow,T0][b]}, s[{SX}:{SX+3}], {['0', f's{sT}'][i]} offen")
    k(f"v_and_b32 v{T0}, 1, v{G}", f"v_xor_b32 v{T0}, s{sCH}, v{T0}", f"v_lshlrev_b32 v{T0}, 10, v{T0}", f"v_lshrrev_b32 v{T1}, 5, v{L}",
      f"v_lshl_add_u32 v{T0}, v{T1}, 8, v{T0}", f"v_lshl_add_u32 v{vO}, v{TOK}, 4, v{T0}",
      f"s_lshl_b32 s{sT}, s{sCH}, 13", f"s_mul_i32 s{sT2}, s{sTH}, 6144", f"s_add_u32 s{sT}, s{sT}, s{sT2}", f"s_add_u32 s{sT}, s{sT}, {XR}",
      f"v_add_u32 v{aO0}, s{sT}, v{vO}", f"v_xor_b32 v{aO1}, 4096, v{aO0}")
    k("s_branch L_f_resd")
    k(island(back="L_f_back2", jump=False))
    k.label("L_f_oproj")
    bT, aT = bX[0][0], aX[0][0]
    k("s_waitcnt vmcnt(4)")
    for i in range(2):
        for b in range(2):
            k(f"v_permlane16_swap_b32 v{RES[i][b]}, v{RES[i][b]+2}", f"v_permlane16_swap_b32 v{RES[i][b]+1}, v{RES[i][b]+3}")
    k(f"s_lshl_b32 s{sT}, s{sTH}, 11", f"s_add_u32 s{sT}, s{sT}, {XR}", f"v_add_u32 v{bT}, s{sT}, v{vLin}", f"v_add_u32 v{aT}, s{sT}, v{vLin}")
    for t in range(4):
        k(f"v_subrev_u32 v{aW[t]}, 8192, v{bW[t]}", f"v_subrev_u32 v{bW[t]}, 8192, v{bW[t]}")
    k(f"v_mov_b32 v{T0}, 1", "s_mov_b64 exec, 1", "s_waitcnt vmcnt(0)",
      f"buffer_atomic_add v{T0}, v{vLin}, s[{SWS}:{SWS+3}], s{sFg} offen sc1", "s_mov_b64 exec, -1")
    xstamp(k, 9)
    k(f"s_mov_b32 s{sRd}, 0", "s_waitcnt lgkmcnt(0)", "s_barrier")

    def oreads(fi):
        o = []
        for s in range(2):
            f = F[fi][s]
            o += [f"ds_read_b128 {vr(f['X'][i],4)}, v{aT} offset:{s*4096+i*1024}" for i in range(2)]
            for t in range(4):
                for j in range(2):
                    o.append(f"ds_read_b64_tr_b16 {vr(f['W'][t]+2*j,2)}, v{aW[t]} offset:{s*8192+j*1024}")
        return o

    def omf(fi):
        return [m16(vr(acc[t][i ^ (t & 1)], 4), vr(F[fi][s]["W"][t], 4), vr(F[fi][s]["X"][i ^ (t & 1)], 4))
                for t in range(4) for i in range(2) for s in range(2)]
    oadv = [[f"s_add_u32 s{sRd}, s{sRd}, 16384", f"s_and_b32 s{sRd}, s{sRd}, 0x1ffff"], [f"s_bfe_u32 s{sRx}, s{sRd}, 0xf0001", f"v_add_u32 v{aW[0]}, s{sRd}, v{bW[0]}"],
            [f"v_add_u32 v{aW[t]}, s{sRd}, v{bW[t]}" for t in (1, 2)], [f"v_add_u32 v{aW[3]}, s{sRd}, v{bW[3]}", f"v_add_u32 v{aT}, s{sRx}, v{bT}"]]

    def ostep(f, extra):
        m = weave(omf(f), oreads(1 - f), 0, 10)
        k(weave(m, extra, len(m) - 6, len(m)) if extra else m, "s_waitcnt lgkmcnt(0)")
    k(oreads(0), oadv)
    for i in range(2):
        for b in range(2):
            for jt in range(2):
                for hh in range(2):
                    a, r = acc[2 * b + jt][i] + 2 * hh, RES[i][b] + 2 * jt + hh
                    k(f"v_lshlrev_b32 v{a}, 16, v{r}", f"v_and_b32 v{a+1}, 0xffff0000, v{r}")
    k("s_nop 0", "s_waitcnt lgkmcnt(0)")
    ostep(0, oadv)
    k(omf(1))
    k(f"s_add_u32 s{sH0}, s{sOo}, {HF-OF}", f"s_add_u32 s{sH1}, s{sOo1}, {HF-OF}",
      f"s_lshl_b32 s{sT}, s{sTB}, 1", f"s_add_u32 s{sT}, s{sT}, s{sTH}", f"s_lshl_b32 s{sT}, s{sT}, 12",
      f"s_lshl_b32 s{sT2}, s{sHG}, 1", f"s_add_u32 s{sT2}, s{sT2}, s{sCH}", f"s_lshl_b32 s{sT2}, s{sT2}, 8",
      f"s_add_u32 s{sT}, s{sT}, s{sT2}", f"s_add_u32 s{sFg}, s{sT}, {STP}", f"s_mov_b32 s{sN}, 6")
    k("s_barrier", "s_barrier")
    if OPT.get("ocyc"):
        mid_stamp(k, 0)
    k(oreads(0), oadv, "s_waitcnt lgkmcnt(0)")
    k.label("L_f_oloop")
    k("s_barrier")
    ostep(0, oadv)
    k("s_barrier")
    ostep(1, oadv + [[f"s_sub_u32 s{sN}, s{sN}, 1", f"s_cmp_lg_u32 s{sN}, 0"]])
    k("s_cbranch_scc1 L_f_oloop")
    k("s_barrier")
    ostep(0, [])
    k(omf(1))
    if OPT.get("ocyc"):
        mid_stamp(k, 1)
    SUM = [O[0], O[0] + 4]
    for b in range(2):
        for i in range(2):
            o = Q[b] + 4 * i
            for jt in range(2):
                a = acc[2 * b + jt][i]
                k(f"v_cvt_pk_bf16_f32 v{o+2*jt}, v{a}, v{a+1}", f"v_cvt_pk_bf16_f32 v{o+2*jt+1}, v{a+2}, v{a+3}")
        k("s_nop 0")
        for i in range(2):
            o = Q[b] + 4 * i
            k(f"v_permlane16_swap_b32 v{o}, v{o+2}", f"v_permlane16_swap_b32 v{o+1}, v{o+3}",
              f"buffer_store_dwordx4 {vr(o,4)}, v{vHo}, s[{SWS}:{SWS+3}], s{[sH0,sH1][b]} offen offset:{1024*i} sc1")
    for t in range(4):
        for hh in (0, 2):
            for i in range(2):
                a = vr(acc[t][i] + hh, 2)
                if t == 0 and hh == 0:
                    k(f"v_pk_mul_f32 {vr(SUM[i]+2,2)}, {a}, {a}")
                else:
                    src = vr(acc[0][i], 2) if (t == 0 and hh == 2) else vr(SUM[i], 2)
                    k(f"v_pk_add_f32 {vr(SUM[i],2)}, {src}, {a}", f"v_pk_fma_f32 {vr(SUM[i]+2,2)}, {a}, {a}, {vr(SUM[i]+2,2)}")
    for i in range(2):
        k(f"v_add_f32 v{SUM[i]}, v{SUM[i]}, v{SUM[i]+1}", f"v_add_f32 v{SUM[i]+1}, v{SUM[i]+2}, v{SUM[i]+3}")
    k(f"v_lshrrev_b32 v{T0}, 6, v{vHo}", f"v_permlane32_swap_b32 v{SUM[0]}, v{SUM[0]+1}", f"v_permlane32_swap_b32 v{SUM[1]}, v{SUM[1]+1}", "s_nop 0",
      f"v_add_f32 v{SUM[0]}, v{SUM[0]}, v{SUM[0]+1}", f"v_add_f32 v{SUM[1]}, v{SUM[1]}, v{SUM[1]+1}",
      f"v_and_b32 v{T0}, 12, v{T0}", f"v_lshl_add_u32 v{T0}, v{TOK}, 4, v{T0}",
      f"v_permlane16_swap_b32 v{SUM[0]}, v{SUM[1]}", "s_nop 0",
      f"v_add_f32 v{SUM[0]}, v{SUM[0]}, v{SUM[1]}",
      f"buffer_store_dword v{SUM[0]}, v{T0}, s[{SWS}:{SWS+3}], s{sFg} offen sc1")
    tail(k, 0, sW)
    k(island(back="L_f_back", jump=False))
    k.label("L_f_setup")
    if OPT.get("isl", 1):
        k(f"s_cmp_eq_u32 s{sW}, 0", f"s_cbranch_scc1 L_isl{ISL[0][0]}", f"s_cmp_eq_u32 s{sW}, 1", f"s_cbranch_scc1 L_isl{ISL[1][0]}")
    k.label("L_f_back")
    k("s_waitcnt lgkmcnt(0)", ws_shift(SWS), srd_tail(SWS, WS_SZ), srd_from(SKV, SWS, KVF, 262144))
    k(f"s_lshl_b32 s{sGW}, s2, 2", f"s_add_u32 s{sGW}, s{sGW}, s{sW}",
      f"s_lshl_b32 s{sWrJ}, s{sW}, 12", f"s_add_u32 s{sWrJ}, s{sWrJ}, {JB}")
    k(f"v_lshrrev_b32 v{T0}, 4, v{L}", f"v_lshlrev_b32 v{T0}, 10, v{T0}", f"v_bfe_u32 v{T1}, v{L}, 2, 2", f"v_lshl_add_u32 v{T0}, v{T1}, 7, v{T0}",
      f"v_bfe_u32 v{T1}, v{L}, 3, 1", f"v_lshl_add_u32 v{T0}, v{T1}, 6, v{T0}", f"v_add_u32 v{T0}, s{sWrJ}, v{T0}", f"v_and_b32 v{T1}, 3, v{L}",
      f"v_lshl_add_u32 v{bJ[0]}, v{T1}, 4, v{T0}", f"v_xor_b32 v{bJ[1]}, 64, v{bJ[0]}")
    strip, kb0, mat = 66, 67, 68
    k(f"s_lshr_b32 s{strip}, s{sGW}, 3", f"s_and_b32 s{kb0}, s{sGW}, 7", f"s_lshl_b32 s{kb0}, s{kb0}, 2",
      f"s_cmp_ge_u32 s{strip}, 112", "s_cbranch_scc1 L_k1_wo")
    k(f"s_cmp_ge_u32 s{strip}, 56", f"s_cselect_b32 s{mat}, 1, 0",
      f"s_cselect_b32 s{SJ}, s26, s24", f"s_cselect_b32 s{SJ+1}, s27, s25",
      f"s_mul_i32 s{sT}, s{mat}, 56", f"s_sub_u32 s{strip}, s{strip}, s{sT}",
      f"s_mov_b32 s{SJ+2}, {1024*7168}", f"s_mov_b32 s{sStr}, 7168", f"s_mov_b32 s{sDstep}, {14*1024}",
      f"s_mov_b32 s{sBsz}, {3584*2048}",
      f"v_lshl_add_u32 v{aJ[0]}, v{T1}, 3, v{T0}")
    for i in range(1, 4):
        k(f"v_xor_b32 v{aJ[i]}, {32*i}, v{aJ[0]}")
    for i in range(4):
        T, fb, pos = 69, 70, 71
        k(f"s_lshl_b32 s{T}, s{strip}, 2", f"s_add_u32 s{T}, s{T}, {i}",
          f"s_mul_i32 s{fb}, s{T}, 9363", f"s_lshr_b32 s{fb}, s{fb}, 16",
          f"s_sub_u32 s{pos}, s{mat}, s{fb}", f"s_mul_i32 s{pos}, s{pos}, 7", f"s_add_u32 s{pos}, s{T}, s{pos}",
          f"s_lshl_b32 s{sT}, s{fb}, 5", f"s_add_u32 s{sT}, s{sT}, s{kb0}", f"s_mul_i32 s{sT}, s{sT}, 14",
          f"s_add_u32 s{sT}, s{sT}, s{pos}", f"s_lshl_b32 s{sT}, s{sT}, 10", f"s_add_u32 s{sD[i]}, s{sT}, {WGU}",
          f"s_lshl_b32 s{sT}, s{kb0}, 3", f"s_add_u32 s{sT}, s{sT}, s{fb}", f"s_mul_i32 s{sT}, s{sT}, 14",
          f"s_add_u32 s{sT}, s{sT}, s{pos}", f"s_lshl_b32 s{sT}, s{sT}, 6", f"s_add_u32 s{sCs[i]}, s{sT}, {CSP}")
    k("s_branch L_k1_jp")
    k.label("L_k1_wo")
    k(f"s_mov_b32 s{SJ}, s24", f"s_mov_b32 s{SJ+1}, s25", f"s_mov_b32 s{SJ+2}, 0", f"s_mov_b32 s{sStr}, 2048", f"s_mov_b32 s{sDstep}, 0", f"s_mov_b32 s{sBsz}, 0")
    for i in range(4):
        k(f"s_mov_b32 s{sD[i]}, {OOB}", f"s_mov_b32 s{sCs[i]}, {OOB}", f"v_mov_b32 v{aJ[i]}, v{bJ[0]}")
    k.label("L_k1_jp")
    k(f"s_mov_b32 s{SJ+3}, 0x00020000")
    k(f"v_lshrrev_b32 v{T0}, 3, v{L}", f"v_bfe_u32 v{T1}, v{L}, 4, 1", f"v_lshlrev_b32 v{T1}, 2, v{T1}",
      f"v_and_b32 v{T2}, 7, v{L}", f"v_xor_b32 v{T1}, v{T1}, v{T2}", f"v_lshlrev_b32 v{T1}, 4, v{T1}",
      f"v_mul_lo_u32 v{vJ}, v{T0}, s{sStr}", f"v_lshl_add_u32 v{vJB}, v{T0}, 11, v{T1}", f"v_add_u32 v{vJ}, v{vJ}, v{T1}",
      f"s_lshl_b32 s{sT}, s{kb0}, 5", f"s_mul_i32 s{sT}, s{sT}, s{sStr}", f"s_lshl_b32 s{sT2}, s{strip}, 7", f"s_add_u32 s{sT}, s{sT}, s{sT2}",
      f"v_add_u32 v{vJ}, s{sT}, v{vJ}",
      f"s_lshl_b32 s{sT}, s{sStr}, 3", f"s_sub_u32 s{sJa}, s{sT}, 1024", f"s_add_u32 s{sJb}, s{sT}, 3072", f"s_mov_b32 s{sJo}, 0")
    k(f"s_mul_i32 s{strip}, s{sGW}, 1171", f"s_lshr_b32 s{strip}, s{strip}, 16",
      f"s_mul_i32 s{sT}, s{strip}, 56", f"s_sub_u32 s{kb0}, s{sGW}, s{sT}", f"s_lshl_b32 s{kb0}, s{kb0}, 1",
      f"s_cmp_ge_u32 s{kb0}, 48", f"s_cselect_b32 s69, 48, 0", f"s_cselect_b32 s70, 8, 0", f"s_sub_u32 s69, s{kb0}, s69",
      f"s_and_b32 s71, s69, 7", f"s_add_u32 s70, s70, s71", f"s_lshr_b32 s69, s69, 3",
      f"s_sub_u32 s71, s{kb0}, 96", f"s_cmp_ge_u32 s{kb0}, 96", f"s_cselect_b32 s69, 6, s69", f"s_cselect_b32 s70, s71, s70",
      f"s_mul_i32 s70, s70, 14", f"s_add_u32 s{sT}, s70, s69", f"s_lshl_b32 s{sT}, s{sT}, 15",
      f"s_lshl_b32 s{sT2}, s{strip}, 7", f"s_add_u32 s{sT}, s{sT}, s{sT2}",
      f"v_add_u32 v{vJB}, s{sT}, v{vJB}",
      f"s_lshr_b32 s{sT}, s{strip}, 1", f"s_mul_i32 s{sT}, s{sT}, 112", f"s_add_u32 s{sT}, s{sT}, s{kb0}", f"s_lshl_b32 s{sT}, s{sT}, 1",
      f"s_and_b32 s{sT2}, s{strip}, 1", f"s_add_u32 s{sT}, s{sT}, s{sT2}", f"s_lshl_b32 s{sT}, s{sT}, 12",
      f"s_add_u32 s{sDB}, s{sT}, {WDF}", f"s_cmp_eq_u32 s{sBsz}, 0", f"s_cselect_b32 s{sDB}, {OOB}, s{sDB}")
    k(f"v_and_b32 v{T0}, 15, v{L}", f"v_cmp_eq_u32 vcc, 0, v{T0}", f"v_mov_b32 v{T1}, {OOB}", "s_nop 0",
      f"v_cndmask_b32 v{vCs}, v{T1}, v{L}, vcc")
    for i in range(4):
        k(f"v_mov_b32 v{ONES+i}, 0x3f803f80")
    k(f"v_lshlrev_b32 v{vPo}, 2, v{L}")
    if OPT.get("hprof"):
        k("v_writelane_b32 v200, s92, 0", "s_mov_b32 s86, 5")
    hstamp(k, 1)
    k("s_barrier")
    hstamp(k, 2)
    npre = OPT.get("npre", 3)
    for n in range(npre):
        q_x(n * STG); q_w(n * STG)
    hstamp(k, 3)
    k(f"s_waitcnt vmcnt({6*(npre-1)})", "s_barrier")
    hstamp(k, 4)
    for n in range(npre, 4):
        q_x(n * STG); q_w(n * STG)
    k("s_waitcnt vmcnt(12)", "s_barrier")
    k.label("L_f_ld2")
    if OPT.get("hprof"):
        k("s_mov_b32 m0, s86", "s_add_u32 s86, s86, 1")
    hstamp(k, "m0")
    q_stage()
    k(f"s_cmp_lg_u32 s{sN}, 0", f"s_waitcnt vmcnt({6*D})", "s_barrier", "s_cbranch_scc1 L_f_ld2")
    hstamp(k, 17)
    poll = f"global_load_dword v{PF4}, v{vPo}, s[{SDBG}:{SDBG+1}] sc1"
    k(f"s_lshl_b32 s{sKo}, s{sW}, 13", f"s_add_u32 s{sWr}, s{sKo}, {KVB}", f"s_mov_b32 s{sN}, {1<<20}")
    k(f"s_cmp_eq_u32 s{sW}, 0", "s_cbranch_scc1 L_f_poll0", "s_waitcnt vmcnt(6)", "s_barrier", "s_waitcnt vmcnt(0)", "s_branch L_f_polled")
    k.label("L_f_poll0")
    k(poll, "s_waitcnt vmcnt(7)", "s_barrier")
    k.label("L_f_poll")
    k("s_waitcnt vmcnt(0)", f"v_cmp_ne_u32 vcc, 4, v{PF4}", f"s_sub_u32 s{sN}, s{sN}, 1", "s_cbranch_scc1 L_f_polled",
      "s_cbranch_vccz L_f_polled", "s_sleep 2", poll, "s_branch L_f_poll")
    k.label("L_f_polled")
    hstamp(k, 18)
    k("s_barrier")
    hstamp(k, 19)

    def kv_dma(c):
        o = []
        for hh in range(2):
            o += [f"s_add_u32 m0, s{sWr}, {((c+1)%3)*SLOT+4096*hh}", "s_nop 0"]
            for i in range(4):
                o.append(f"buffer_load_dwordx4 v{vLin}, s[{SKV}:{SKV+3}], s{sKo} offen offset:{1024*i} sc1 lds")
            o.append(f"s_add_u32 s{sKo}, s{sKo}, {4096 if hh == 0 else 32768-4096}")
        return o
    k(kv_dma(0)[:7], "s_barrier")
    hstamp(k, 20)
    k(kv_dma(0)[7:], "s_waitcnt vmcnt(0)")
    hstamp(k, 21)
    k("s_barrier")
    hstamp(k, 22)
    k(kv_dma(1))
    vm = []

    def wait_for(tag):
        n = len(vm) - 1 - max(i for i, t in enumerate(vm) if t == tag)
        return f"s_waitcnt vmcnt({n})"
    vm += ["kv1"] * 8
    k(f"s_mov_b32 s{SWQ}, s20", f"s_mov_b32 s{SWQ+1}, s21", f"s_lshl_b32 s{sWo}, s{sHG}, 18",
      f"s_lshl_b32 s{sBW}, s{sTH}, 1", f"s_add_u32 s{sBW}, s{sBW}, s{sCH}", f"s_lshl_b32 s{sBW}, s{sBW}, 10",
      f"s_lshl_b32 s{sRd}, s{sW}, 11", f"s_lshl_b32 s{sX}, s{sHG}, 14", f"s_add_u32 s{sX}, s{sX}, s{sRd}",
      f"s_lshl_b32 s{sOo}, s{sTB}, 17", f"s_add_u32 s{sOo}, s{sOo}, {OF}")

    def o_w(n):
        k(f"s_add_u32 s{sT}, s{sWo}, {n*0x20000}", f"s_and_b32 s{sT}, s{sT}, 0x1fffff")
        for i in range(4):
            k(f"s_add_u32 m0, s{sBW}, {(n%8)*16384+4096*i}", "s_nop 0", f"buffer_load_dwordx4 v{vW[i]}, s[{SWQ}:{SWQ+3}], s{sT} offen lds")
        vm.extend([f"w{n}"] * 4)

    def o_x(n):
        k(f"s_add_u32 s{sT}, s{sX}, {n*8192}", f"s_and_b32 s{sT}, s{sT}, 0x1ffff", f"s_add_u32 m0, s{sRd}, {XR+(n%4)*8192}", f"s_add_u32 s{sT}, s{sT}, s{sOo}")
        for i in range(2):
            k(f"buffer_load_dwordx4 v{vLin}, s[{SWS}:{SWS+3}], s{sT} offen offset:{1024*i} sc1 lds")
        vm.extend([f"x{n}"] * 2)
    for c in range(8):
        if c + 2 < 8:
            k(kv_dma(c + 2)); vm += [f"kv{c+2}"] * 8
        if c < (3 if OPT.get("s4", 0) else 1):
            k(f"s_lshl_b32 s{sT}, s{sGW}, 12", f"s_add_u32 s{sT}, s{sT}, {XB4[c+1]}", f"v_mov_b64 {vr(PF4,2)}, -1", f"v_mov_b64 {vr(PF4+2,2)}, -1")
            for i in range(4):
                k(f"buffer_store_dwordx4 {vr(PF4,4)}, v{vLin}, s[{SWS}:{SWS+3}], s{sT} offen offset:{1024*i} sc1")
            vm += ["st"] * 4
        if c == 3:
            k(f"s_lshl_b32 s{sT}, s{sGW}, 10", f"s_add_u32 s{sT}, s{sT}, {FL2}", f"s_cmp_lt_u32 s{sGW}, 8", f"s_cselect_b32 s{sT}, s{sT}, {OOB}",
              f"v_mov_b64 {vr(PF4,2)}, 0", f"v_mov_b64 {vr(PF4+2,2)}, 0",
              f"buffer_store_dwordx4 {vr(PF4,4)}, v{vLin}, s[{SWS}:{SWS+3}], s{sT} offen sc1")
            vm += ["st"]
        j = c - 1
        proc = 0 <= j < 6 and not OPT.get("nojob")
        if proc:
            k(wait_for(f"j{j}"))
            for f in range(4):
                for jj in range(2):
                    if j < 4:
                        k(f"ds_read_b64_tr_b16 {vr(JF[f]+2*jj,2)}, v{aJ[f]} offset:{jj*512}")
                    else:
                        k(f"ds_read_b64_tr_b16 {vr(JF[f]+2*jj,2)}, v{bJ[f>>1]} offset:{jj*512+(f&1)*8}")
            k("s_waitcnt lgkmcnt(0)")
        if c < 6 and not OPT.get("nojob"):
            if c == 4:
                k(f"s_mov_b32 s{SJ}, s28", f"s_mov_b32 s{SJ+1}, s29", f"s_mov_b32 s{SJ+2}, s{sBsz}",
                  f"s_mov_b32 s{sJo}, 0")
            k(f"s_mov_b32 m0, s{sWrJ}", "s_nop 0")
            for i in range(4):
                k(f"buffer_load_dwordx4 v{vJ if c < 4 else vJB}, s[{SJ}:{SJ+3}], s{sJo} offen offset:{1024*i}{' nt' if OPT.get('jnt', 0) else ''} lds",
                  f"s_add_u32 s{sJo}, s{sJo}, " + (f"s{sJa if i < 3 else sJb}" if c < 4 else str([8, 104, 8, 104][i] * 2048 + (-1024 if i < 3 else 3072))))
            vm += [f"j{c}"] * 4
        if proc:
            for f in range(4):
                if j < 4:
                    k(f"buffer_store_dwordx4 {vr(JF[f],4)}, v{vLin}, s[{SWS}:{SWS+3}], s{sD[f]} offen sc1",
                      f"s_add_u32 s{sD[f]}, s{sD[f]}, s{sDstep}",
                      m16(vr(CS[f], 4), vr(JF[f], 4), vr(ONES, 4), "0" if j == 0 else None))
                else:
                    k(f"buffer_store_dwordx4 {vr(JF[f],4)}, v{vLin}, s[{SWS}:{SWS+3}], s{sDB} offen offset:{1024*f} sc1")
            vm += ["st"] * 4
            if j == 4:
                k(f"s_add_u32 s{sDB}, s{sDB}, 8192")
                for f in range(4):
                    k(f"buffer_store_dwordx4 {vr(CS[f],4)}, v{vCs}, s[{SWS}:{SWS+3}], s{sCs[f]} offen sc1")
                vm += ["st"] * 4
        for n in {5: [0, 2, 3], 6: [4, 5], 7: [1, 6, 7]}.get(c, []):
            o_w(n)
        if c == 1 and OPT.get("isl", 1):
            k(f"s_branch L_isl{[n for n, b in ISL if b == 'L_f_back2'][0]}")
            k.label("L_f_back2")
        if c == 5:
            k(f"s_lshr_b32 s{sT}, s2, 3", f"s_lshl_b32 s{sT}, s{sT}, 11", f"v_and_b32 v{T0}, 255, v0", f"v_lshlrev_b32 v{T0}, 3, v{T0}",
              f"v_add_u32 v{T0}, s{sT}, v{T0}")
            k(f"s_getpc_b64 s[22:23]")
            k.label("L_f_pc2")
            k("s_add_u32 s22, s22, L_code_rest-L_f_pc2", "s_addc_u32 s23, s23, 0",
              f"v_min_u32 v{T0}, L_code_end-L_code_rest-4, v{T0}", f"global_load_dword v{PF4}, v{T0}, s[22:23]")
            vm.append("pf")
        if c == 6:
            k(f"s_and_b32 s{sT}, s{sTB}, 7", f"s_add_u32 s{sT}, s{sT}, 8", f"s_lshl_b32 s{sT}, s{sT}, 17", f"s_add_u32 s{sT}, s{sT}, s{sWo}",
              f"s_and_b32 s{sT}, s{sT}, 0x1fffff")
            for i in range(4):
                k(f"buffer_load_dwordx4 {vr(PF4,4)}, v{vW[i]}, s[{SWQ}:{SWQ+3}], s{sT} offen")
            vm.extend(["pf"] * 4)
        if c + 1 < 8:
            k(wait_for(f"kv{c+1}"))
        k("s_barrier")
    k(f"s_lshl_b32 s{sKo}, s{sTB}, 9", f"s_add_u32 s{sKo}, s{sKo}, {FLG}", f"s_mov_b32 s{sN}, {1<<20}", "s_waitcnt vmcnt(0)")
    hstamp(k, 23)
    k("s_barrier")
    hstamp(k, 24)
    k(f"s_cmp_lg_u32 s{sW}, 0", "s_cbranch_scc1 L_f_polled2", "s_mov_b64 exec, 1")
    k.label("L_f_poll2")
    k(f"s_sleep {OPT['psl']}" if OPT.get("psl") else None)
    k(f"v_mov_b32 v{PF4}, 0", f"buffer_atomic_add v{PF4}, v{vLin}, s[{SWS}:{SWS+3}], s{sKo} offen sc0 sc1", "s_waitcnt vmcnt(0)",
      f"v_cmp_ne_u32 vcc, 32, v{PF4}", f"s_sub_u32 s{sN}, s{sN}, 1", "s_cbranch_scc1 L_f_polled2", "s_cbranch_vccnz L_f_poll2")
    k.label("L_f_polled2")
    k("s_mov_b64 exec, -1")
    hstamp(k, 25)
    k("s_barrier")
    hstamp(k, 26)
    for n in range(2, 6):
        o_x(n)
    k(wait_for("x2"))
    hstamp(k, 27)
    k("s_barrier")
    for n in range(2, 15):
        if n >= 3 and n + 3 < 16:
            o_x(n + 3)
        if OPT.get("wl", 1):
            wn = {2: 8, 3: 9, 4: 10, 6: 11, 7: 12, 9: 13, 10: 14, 11: 15}.get(n)
            if wn:
                o_w(wn)
        elif n >= 3 and n + 7 < 16:
            o_w(n + 7)
        k(wait_for(f"x{n+1}"), "s_barrier")
        if n in (5, 9, 14):
            hstamp(k, 28 + (5, 9, 14).index(n))
    if OPT.get("hprof"):
        k(f"s_lshl_b32 s{sT}, s{sGW}, 7", f"s_add_u32 s{sT}, s{sT}, {STAMP+2*MB}", f"v_lshlrev_b32 v{T0}, 2, v{L}", "s_mov_b64 exec, 0xffffffff",
          f"buffer_store_dword v200, v{T0}, s[{SWS}:{SWS+3}], s{sT} offen")
    hop(k, sW)
    k.label("L_k1_slow")
    k("s_waitcnt vmcnt(0) lgkmcnt(0)", "s_nop 15")
    C = [S[2], S[3]]
    ldK = [f"buffer_load_dwordx4 {vr(KB[0]+4*m,4)}, v{vLin}, s[{SKV}:{SKV+3}], s{sKo} offen offset:{1024*m} sc1" for m in range(2)]
    ldV = [f"buffer_load_dwordx4 {vr(VB[0]+4*m,4)}, v{vLin}, s[{SKV}:{SKV+3}], s{sKo} offen offset:{2048+1024*m} sc1" for m in range(2)]
    k(f"v_mov_b32 v{T0}, 0xff800000", f"v_mov_b32 v{T1}, 0xff800000", f"s_mov_b32 s{sKo}, 0")
    k.label("L_k1_s1")
    k(ldK, "s_waitcnt vmcnt(0)", qk(0), qk(1), "s_nop 15")
    for q in range(2):
        for i in range(0, 16, 2):
            k(f"v_max3_f32 v{[T0,T1][q]}, v{S[q]+i}, v{S[q]+i+1}, v{[T0,T1][q]}")
    k(f"s_add_u32 s{sKo}, s{sKo}, 4096", f"s_cmp_lt_u32 s{sKo}, 262144", "s_cbranch_scc1 L_k1_s1")
    for q in range(2):
        t = [T0, T1][q]
        k(f"v_mov_b32 v{T2}, v{t}", "s_nop 1", f"v_permlane32_swap_b32 v{t}, v{T2}", "s_nop 1", f"v_max_f32 v{t}, v{t}, v{T2}")
        for i in range(16):
            k(f"v_sub_f32 v{C[q]+i}, 0, v{t}", f"v_mov_b32 v{O[q]+i}, 0")
        for i in range(4):
            k(f"v_mov_b32 v{LS[q]+i}, 0")
    k(f"s_mov_b32 s{sKo}, 0")
    k.label("L_k1_s2")
    k(ldK, ldV, "s_waitcnt vmcnt(0)", qk(0, vr(C[0], 16)), qk(1, vr(C[1], 16)), "s_nop 15")
    for q in range(2):
        for i in range(16):
            k(f"v_exp_f32 v{S[q]+i}, v{S[q]+i}")
    k("s_nop 1", pv(0), sm(0), pv(1), sm(1))
    k(f"s_add_u32 s{sKo}, s{sKo}, 4096", f"s_cmp_lt_u32 s{sKo}, 262144", "s_cbranch_scc1 L_k1_s2")
    k("s_nop 15", "s_nop 7", out(0), "s_branch L_k1_out")
    return k


def k_gemm(name, kidx, K, tok_region, w_region, is_down):
    D = OPT.get("gd", 4)
    STG, NS = 24576, D + 2
    N = K // 64
    k = Kern(name, 256, 512, STG * NS)
    SWS, ST_, SW_, SR, SO = 4, 8, 12, 16, 20
    sW, sTB, sNB, sN, sT, sT2, sRd, sWr, sTo, sWo, sTH, sCH, sRes, sDW = range(28, 42)
    v = Alloc(1)
    L, G, TOK, T0, T1, vLin, bT, bW, aT, aW, vRow = [v() for _ in range(11)]
    F = [[dict(X=[v(4, 4) for _ in range(2)], W=[v(4, 4) for _ in range(4)]) for s in range(2)] for _ in range(2)]
    acc = [[v(4, 4) for i in range(2)] for t in range(4)]
    RES = [[v(4, 4) for b in range(2)] for i in range(2)]
    k.vgpr = k.acc = (v.n + 7) // 8 * 8
    head(k)
    k(f"s_load_dwordx2 s[{SWS}:{SWS+1}], s[0:1], {A_WS}",
      f"s_load_dwordx2 s[{SO}:{SO+1}], s[0:1], {A_OUT if is_down else A_X}")
    k(f"v_lshrrev_b32 v{T1}, 6, v0", f"v_and_b32 v{L}, 63, v0", f"v_readfirstlane_b32 s{sW}, v{T1}", f"v_lshlrev_b32 v{vLin}, 4, v{L}")
    ids_8x4(k, sNB, sTB, sT)
    k(f"s_cmp_lt_u32 s{sW}, 4", f"s_cbranch_scc1 L_{name}_comp")
    k(f"s_and_b32 s{sW}, s{sW}, 3",
      f"s_lshl_b32 s{sTo}, s{sW}, 11", f"s_lshl_b32 s{sWo}, s{sW}, 12", f"s_mov_b32 s{sWr}, s{sTo}",
      f"s_add_u32 s{sDW}, s{sTo}, 8192")
    rot = K == 1024 and OPT.get("rot2", 0)
    if rot:
        k(f"s_lshl_b32 s{sT}, s{sNB}, 1", f"s_add_u32 s{sT}, s{sT}, s{sTB}", f"s_and_b32 s{sT}, s{sT}, 7",
          f"s_lshl_b32 s{sT2}, s{sT}, 14", f"s_add_u32 s{sTo}, s{sTo}, s{sT2}", f"s_lshl_b32 s{sT2}, s{sT}, 15", f"s_add_u32 s{sWo}, s{sWo}, s{sT2}")
    k(f"s_mul_i32 s{sT}, s{sTB}, {K*128}", f"s_add_u32 s{sT}, s{sT}, {tok_region}",
      f"s_mul_i32 s{sT2}, s{sNB}, {K*256}", f"s_add_u32 s{sT2}, s{sT2}, {w_region}")
    k("s_waitcnt lgkmcnt(0)", ws_shift(SWS))
    k(srd_from(ST_, SWS, f"s{sT}", K * 128), srd_from(SW_, SWS, f"s{sT2}", K * 256))

    def dma_stage():
        o = [f"s_mov_b32 m0, s{sWr}", "s_nop 0"]
        for i in range(2):
            o.append(f"buffer_load_dwordx4 v{vLin}, s[{ST_}:{ST_+3}], s{sTo} offen offset:{1024*i} lds")
        o += [f"s_add_u32 m0, s{sWr}, s{sDW}", f"s_add_u32 s{sTo}, s{sTo}, 8192"]
        for i in range(4):
            o.append(f"buffer_load_dwordx4 v{vLin}, s[{SW_}:{SW_+3}], s{sWo} offen offset:{1024*i} lds")
        o += [f"s_add_u32 s{sWo}, s{sWo}, 16384", f"s_add_u32 s{sWr}, s{sWr}, {STG}", f"s_cmp_ge_u32 s{sWr}, {STG*NS}",
              f"s_cselect_b32 s{sT}, {STG*NS}, 0", f"s_sub_u32 s{sWr}, s{sWr}, s{sT}"]
        if rot:
            o += [f"s_and_b32 s{sTo}, s{sTo}, {K*128-1}", f"s_and_b32 s{sWo}, s{sWo}, {K*256-1}"]
        return o
    k(f"s_mov_b32 s{sN}, {N}")
    k.label(f"L_{name}_ld")
    k(dma_stage())
    k(f"s_sub_u32 s{sN}, s{sN}, 1", f"s_cmp_lg_u32 s{sN}, 0")
    k(f"s_waitcnt vmcnt({6*D})", "s_barrier", f"s_cbranch_scc1 L_{name}_ld")
    for d in range(D - 1, -1, -1):
        k(f"s_waitcnt vmcnt({6*d})", "s_barrier")
    if is_down:
        k("s_endpgm")
    else:
        hop(k, sW)
    k.label(f"L_{name}_comp")
    k(f"s_and_b32 s{sTH}, s{sW}, 1", f"s_lshr_b32 s{sCH}, s{sW}, 1")
    k(f"v_lshrrev_b32 v{G}, 4, v{L}", f"v_and_b32 v{TOK}, 15, v{L}",
      f"v_lshlrev_b32 v{T0}, 11, v{TOK}", f"v_lshl_add_u32 v{T0}, v{G}, 4, v{T0}",
      f"s_lshl_b32 s{sN}, s{sTB}, 1", f"s_add_u32 s{sN}, s{sN}, s{sTH}", f"s_lshl_b32 s{sN}, s{sN}, 16",
      f"s_lshl_b32 s{sRes}, s{sNB}, 1", f"s_add_u32 s{sRes}, s{sRes}, s{sCH}", f"s_lshl_b32 s{sRd}, s{sRes}, 7",
      f"s_add_u32 s{sN}, s{sN}, s{sRd}", f"v_add_u32 v{vRow}, s{sN}, v{T0}")
    k(f"s_lshl_b32 s{sRes}, s{sRes}, 13", f"s_lshl_b32 s{sN}, s{sTB}, 17", f"s_add_u32 s{sRes}, s{sRes}, s{sN}",
      f"s_lshl_b32 s{sN}, s{sTH}, 11", f"s_add_u32 s{sRes}, s{sRes}, s{sN}", f"s_add_u32 s{sRes}, s{sRes}, {HF}")
    k(f"s_lshl_b32 s{sT}, s{sTH}, 11", f"v_add_u32 v{bT}, s{sT}, v{vLin}",
      f"s_lshl_b32 s{sT}, s{sCH}, 12", f"s_add_u32 s{sT}, s{sT}, 8192", f"v_add_u32 v{bW}, s{sT}, v{vLin}",
      f"v_mov_b32 v{aT}, v{bT}", f"v_mov_b32 v{aW}, v{bW}")
    k("s_waitcnt lgkmcnt(0)", ws_shift(SWS))
    k(srd_tail(SWS, WS_SZ), srd_tail(SO, 4 * MB))
    for _ in range(NS - 2):
        k("s_barrier")
    k(f"s_add_u32 s{sT2}, s{sRes}, 4096", f"s_mov_b32 s{sN}, 32768")
    for i in range(2):
        for b in range(2):
            if is_down:
                k(f"buffer_load_dwordx4 {vr(RES[i][b],4)}, v{vLin}, s[{SWS}:{SWS+3}], s{[sRes,sT2][b]} offen offset:{1024*i}")
            else:
                k(f"buffer_load_dwordx4 {vr(RES[i][b],4)}, v{vRow}, s[{SO}:{SO+3}], {['0', f's{sN}'][i]} offen offset:{64*b}{' nt' if OPT.get('jnt', 0) else ''}")
    for t in range(4):
        for i in range(2):
            for r in range(4):
                k(f"v_mov_b32 v{acc[t][i]+r}, 0")

    def reads(f):
        o = []
        for s in range(2):
            o += [f"ds_read_b128 {vr(F[f][s]['X'][i],4)}, v{aT} offset:{s*4096+i*1024}" for i in range(2)]
            o += [f"ds_read_b128 {vr(F[f][s]['W'][t],4)}, v{aW} offset:{s*8192+t*1024}" for t in range(4)]
        return o

    def mfmas(f):
        return [m16(vr(acc[t][i ^ (t & 1)], 4), vr(F[f][s]["W"][t], 4), vr(F[f][s]["X"][i ^ (t & 1)], 4))
                for t in range(4) for i in range(2) for s in range(2)]
    adv = [[f"s_add_u32 s{sRd}, s{sRd}, {STG}", f"s_cmp_eq_u32 s{sRd}, {STG*NS}"], [f"s_cselect_b32 s{sRd}, 0, s{sRd}"],
           [f"v_add_u32 v{aT}, s{sRd}, v{bT}", f"v_add_u32 v{aW}, s{sRd}, v{bW}"]]
    k(f"s_mov_b32 s{sRd}, 0", f"s_mov_b32 s{sN}, {N//2-1}")
    k("s_barrier")
    mid_stamp(k, 0)
    k(reads(0), adv, "s_waitcnt lgkmcnt(0)")
    k(".p2align 6")
    k.label(f"L_{name}_loop")
    for f in range(2):
        k("s_barrier")
        m = weave(mfmas(f), reads(1 - f), 0, 9)
        tl = adv + ([[f"s_sub_u32 s{sN}, s{sN}, 1", f"s_cmp_lg_u32 s{sN}, 0"]] if f == 1 else [])
        k(weave(m, tl, len(m) - 6, len(m) - 1))
        k("s_waitcnt lgkmcnt(0)")
    k(f"s_cbranch_scc1 L_{name}_loop")
    k("s_barrier")
    k(weave(mfmas(0), reads(1), 0, 9), "s_waitcnt lgkmcnt(0)", mfmas(1))
    mid_stamp(k, 1)
    k("s_waitcnt vmcnt(0)", f"s_mov_b32 s{sN}, 32768", "s_nop 5")
    SUM = F[0][0]["X"]
    U = F[0][0]["W"][0]
    for i in range(2):
        if not is_down:
            k(f"v_mov_b32 v{SUM[i]}, 0", f"v_mov_b32 v{SUM[i]+1}, 0")
        for b in range(2):
            o = F[0][1]["W"][2 * i + b]
            for jt in range(2):
                a = acc[2 * b + jt][i]
                for h in range(2):
                    r = RES[i][b] + 2 * jt + h
                    k(f"v_lshlrev_b32 v{U}, 16, v{r}", f"v_and_b32 v{U+1}, 0xffff0000, v{r}",
                      f"v_add_f32 v{a+2*h}, v{a+2*h}, v{U}", f"v_add_f32 v{a+2*h+1}, v{a+2*h+1}, v{U+1}",
                      f"v_cvt_pk_bf16_f32 v{o+2*jt+h}, v{a+2*h}, v{a+2*h+1}")
            if is_down:
                k(f"buffer_store_dwordx4 {vr(o,4)}, v{vRow}, s[{SO}:{SO+3}], {['0', f's{sN}'][i]} offen offset:{64*b} sc1")
            else:
                k(f"buffer_store_dwordx4 {vr(o,4)}, v{vLin}, s[{SWS}:{SWS+3}], s{[sRes,sT2][b]} offen offset:{1024*i} sc1")
    if not is_down:
        for t in range(4):
            for r in range(4):
                for i in range(2):
                    a = acc[t][i] + r
                    k(f"v_add_f32 v{SUM[i]}, v{SUM[i]}, v{a}", f"v_fmac_f32 v{SUM[i]+1}, v{a}, v{a}")
        k("s_nop 1", f"v_permlane32_swap_b32 v{SUM[0]}, v{SUM[0]+1}", f"v_permlane32_swap_b32 v{SUM[1]}, v{SUM[1]+1}", "s_nop 0",
          f"v_add_f32 v{SUM[0]}, v{SUM[0]}, v{SUM[0]+1}", f"v_add_f32 v{SUM[1]}, v{SUM[1]}, v{SUM[1]+1}",
          f"v_lshlrev_b32 v{T0}, 2, v{L}", "s_nop 0",
          f"v_permlane16_swap_b32 v{SUM[0]}, v{SUM[1]}",
          f"s_lshl_b32 s{sT}, s{sTB}, 1", f"s_add_u32 s{sT}, s{sT}, s{sTH}", f"s_lshl_b32 s{sT}, s{sT}, 12",
          f"v_add_f32 v{SUM[0]}, v{SUM[0]}, v{SUM[1]}",
          f"s_lshl_b32 s{sT2}, s{sNB}, 1", f"s_add_u32 s{sT2}, s{sT2}, s{sCH}", f"s_lshl_b32 s{sT2}, s{sT2}, 8",
          f"s_add_u32 s{sT}, s{sT}, s{sT2}", f"s_add_u32 s{sT}, s{sT}, {STP}",
          f"buffer_store_dword v{SUM[0]}, v{T0}, s[{SWS}:{SWS+3}], s{sT} offen sc1")
    tail(k, kidx, sW)
    return k


def k4_down(kidx):
    name, K = "down_kernel", 3584
    D = OPT.get("dd", 2)
    N1 = OPT.get("n1", 25)
    N2 = 56 - 2 * N1
    STG, NS = 32768, D + 2
    k = Kern(name, 256, 512, STG * NS)
    SWS, ST_, SW_, SO = 4, 8, 12, 20
    sW, sTB, sNB, sN, sT, sT2, sRd, sWr, sTo, sWo, sTH, sCH, sRes, sDW, sKH, sX0, sX1 = range(28, 45)
    v = Alloc(1)
    L, G, TOK, T0, T1, vLin, bT, bW, aT, aW, vRow = [v() for _ in range(11)]
    F = [[dict(X=[v(4, 4) for _ in range(4)], W=[v(4, 4) for _ in range(4)]) for s in range(2)] for _ in range(2)]
    acc = [[v(4, 4) for i in range(4)] for t in range(4)]
    RES = [[v(4, 4) for b in range(2)] for i in range(2)]
    RCV = [[acc[2 * b][2 + i] for b in range(2)] for i in range(2)]
    k.vgpr = k.acc = (v.n + 7) // 8 * 8
    head(k, True)
    k(f"s_load_dwordx2 s[{SWS}:{SWS+1}], s[0:1], {A_WS}", f"s_load_dwordx2 s[{SO}:{SO+1}], s[0:1], {A_OUT}")
    k(f"v_lshrrev_b32 v{T1}, 6, v0", f"v_and_b32 v{L}, 63, v0", f"v_readfirstlane_b32 s{sW}, v{T1}", f"v_lshlrev_b32 v{vLin}, 4, v{L}")
    ids_8x4(k, sNB, sTB, sT)
    if OPT.get("dmap", 1):
        k(f"s_and_b32 s{sT}, s{sTB}, 7", f"s_lshl_b32 s{sT}, s{sT}, 1", f"s_bfe_u32 s{sT2}, s{sTB}, 0x10003",
          f"s_and_b32 s{sTB}, s{sTB}, 16", f"s_add_u32 s{sTB}, s{sTB}, s{sT}", f"s_add_u32 s{sTB}, s{sTB}, s{sT2}")
    k(f"s_cmp_lt_u32 s{sW}, 4", f"s_cbranch_scc1 L_{name}_comp")
    vOwn, vPar = bT, bW
    k(f"s_and_b32 s{sW}, s{sW}, 3", f"s_and_b32 s{sKH}, s{sTB}, 1",
      f"s_lshl_b32 s{sWr}, s{sW}, 11", f"s_add_u32 s{sDW}, s{sWr}, 8192",
      f"s_mul_i32 s{sTo}, s{sKH}, {N1*8192}", f"s_add_u32 s{sTo}, s{sTo}, s{sWr}", f"s_lshl_b32 s{sWo}, s{sTo}, 1",
      f"s_mul_i32 s{sT}, s{sKH}, {K*128}", f"v_add_u32 v{vOwn}, s{sT}, v{vLin}", f"s_sub_u32 s{sT}, {K*128}, s{sT}", f"v_add_u32 v{vPar}, s{sT}, v{vLin}",
      f"s_lshr_b32 s{sT}, s{sTB}, 1", f"s_mul_i32 s{sT}, s{sT}, {K*256}", f"s_add_u32 s{sT}, s{sT}, {AF}",
      f"s_mul_i32 s{sT2}, s{sNB}, {K*256}", f"s_add_u32 s{sT2}, s{sT2}, {WDF}")
    k("s_waitcnt lgkmcnt(0)", ws_shift(SWS))
    k(srd_from(ST_, SWS, f"s{sT}", K * 256), srd_from(SW_, SWS, f"s{sT2}", K * 256))

    def dma_stage(full):
        o = [f"s_mov_b32 m0, s{sWr}", "s_nop 0"]
        o += [f"buffer_load_dwordx4 v{vOwn}, s[{ST_}:{ST_+3}], s{sTo} offen offset:{1024*i} lds" for i in range(2)]
        if full:
            o += [f"s_add_u32 m0, s{sWr}, 24576", "s_nop 0"]
            o += [f"buffer_load_dwordx4 v{vPar}, s[{ST_}:{ST_+3}], s{sTo} offen offset:{1024*i} lds" for i in range(2)]
        o += [f"s_add_u32 m0, s{sWr}, s{sDW}", f"s_add_u32 s{sTo}, s{sTo}, 8192"]
        o += [f"buffer_load_dwordx4 v{vLin}, s[{SW_}:{SW_+3}], s{sWo} offen offset:{1024*i} lds" for i in range(4)]
        o += [f"s_add_u32 s{sWo}, s{sWo}, 16384", f"s_add_u32 s{sWr}, s{sWr}, {STG}", f"s_cmp_ge_u32 s{sWr}, {STG*NS}",
              f"s_cselect_b32 s{sT}, {STG*NS}, 0", f"s_sub_u32 s{sWr}, s{sWr}, s{sT}"]
        return o
    k(f"s_mov_b32 s{sN}, {N1}")
    k.label(f"L_{name}_ld")
    k(dma_stage(True))
    k(f"s_sub_u32 s{sN}, s{sN}, 1", f"s_cmp_lg_u32 s{sN}, 0")
    k(f"s_waitcnt vmcnt({8*D})", "s_barrier", f"s_cbranch_scc1 L_{name}_ld")
    k(f"s_lshl_b32 s{sTo}, s{sW}, 11", f"s_add_u32 s{sTo}, s{sTo}, {2*N1*8192}", f"s_lshl_b32 s{sWo}, s{sTo}, 1")
    cnt = lambda n: 8 if n < N1 else (6 if n < N1 + N2 else 0)
    for n in range(N1, N1 + N2 + D):
        if n < N1 + N2:
            k(dma_stage(False))
        k(f"s_waitcnt vmcnt({sum(cnt(m) for m in range(n-D+1, n+1))})", "s_barrier")
    k("s_endpgm")
    if OPT.get("epad", 1):
        k(island(jump=False))
    k.label(f"L_{name}_comp")
    k(f"s_and_b32 s{sTH}, s{sW}, 1", f"s_lshr_b32 s{sCH}, s{sW}, 1")
    k(f"v_lshrrev_b32 v{G}, 4, v{L}", f"v_and_b32 v{TOK}, 15, v{L}",
      f"v_lshlrev_b32 v{T0}, 11, v{TOK}", f"v_lshl_add_u32 v{T0}, v{G}, 4, v{T0}",
      f"s_lshl_b32 s{sN}, s{sTB}, 1", f"s_add_u32 s{sN}, s{sN}, s{sTH}", f"s_lshl_b32 s{sN}, s{sN}, 16",
      f"s_lshl_b32 s{sRes}, s{sNB}, 1", f"s_add_u32 s{sRes}, s{sRes}, s{sCH}", f"s_lshl_b32 s{sRd}, s{sRes}, 7",
      f"s_add_u32 s{sN}, s{sN}, s{sRd}", f"v_add_u32 v{vRow}, s{sN}, v{T0}")
    k(f"s_lshl_b32 s{sRes}, s{sRes}, 13", f"s_lshl_b32 s{sN}, s{sTB}, 17", f"s_add_u32 s{sRes}, s{sRes}, s{sN}",
      f"s_lshl_b32 s{sN}, s{sTH}, 11", f"s_add_u32 s{sRes}, s{sRes}, s{sN}",
      f"s_xor_b32 s{sX0}, s{sRes}, {1<<17}", f"s_add_u32 s{sX0}, s{sX0}, {XB}", f"s_add_u32 s{sX1}, s{sX0}, 4096")
    k(f"s_lshl_b32 s{sT}, s{sTH}, 11", f"v_add_u32 v{bT}, s{sT}, v{vLin}",
      f"s_lshl_b32 s{sT}, s{sCH}, 12", f"s_add_u32 s{sT}, s{sT}, 8192", f"v_add_u32 v{bW}, s{sT}, v{vLin}",
      f"v_mov_b32 v{aT}, v{bT}", f"v_mov_b32 v{aW}, v{bW}")
    k("s_waitcnt lgkmcnt(0)", ws_shift(SWS))
    k(srd_tail(SWS, WS_SZ), srd_tail(SO, 4 * MB))
    for _ in range(D):
        k("s_barrier")
    for i in range(acc[0][0], acc[0][0] + 64, 2):
        k(f"v_mov_b64 {vr(i,2)}, 0")

    def reads(f, full):
        o = []
        for s in range(2):
            o += [f"ds_read_b128 {vr(F[f][s]['X'][i],4)}, v{aT} offset:{(i>>1)*24576+s*4096+(i&1)*1024}" for i in range(4 if full else 2)]
            o += [f"ds_read_b128 {vr(F[f][s]['W'][t],4)}, v{aW} offset:{s*8192+t*1024}" for t in range(4)]
        return o

    def mfmas(f, tiles):
        return [m16(vr(acc[t][i], 4), vr(F[f][s]["W"][t], 4), vr(F[f][s]["X"][i], 4))
                for t in range(4) for i in (tiles if t % 2 == 0 else tiles[::-1]) for s in range(2)]
    adv = [[f"s_add_u32 s{sRd}, s{sRd}, {STG}", f"s_cmp_eq_u32 s{sRd}, {STG*NS}"], [f"s_cselect_b32 s{sRd}, 0, s{sRd}"],
           [f"v_add_u32 v{aT}, s{sRd}, v{bT}", f"v_add_u32 v{aW}, s{sRd}, v{bW}"]]
    ALL, OWN, PAR = [0, 1, 2, 3], [0, 1], [2, 3]
    k(f"s_mov_b32 s{sRd}, 0", f"s_mov_b32 s{sN}, {(N1-1)//2}")
    k("s_barrier")
    mid_stamp(k, 0)
    k(reads(0, True), adv, "s_waitcnt lgkmcnt(0)")

    def step(f, extra):
        k("s_barrier")
        m = weave(mfmas(f, ALL), reads(1 - f, True), 0, 18)
        k(weave(m, adv + extra, len(m) - 8, len(m) - 1), "s_waitcnt lgkmcnt(0)")
    k(".p2align 6")
    k.label(f"L_{name}_loop")
    step(0, [])
    step(1, [[f"s_sub_u32 s{sN}, s{sN}, 1", f"s_cmp_lg_u32 s{sN}, 0"]])
    k(f"s_cbranch_scc1 L_{name}_loop")
    f = 0
    if (N1 - 1) % 2:
        step(0, [])
        f = 1
    if OPT.get("p1"):
        mid_stamp(k, 1)
    snd = []
    for b in range(2):
        for i in range(2):
            o = F[1 - f][b]["X"][2 + i]
            for jt in range(2):
                a = acc[2 * b + jt][2 + i]
                snd += [[f"v_cvt_pk_bf16_f32 v{o+2*jt}, v{a}, v{a+1}", f"v_cvt_pk_bf16_f32 v{o+2*jt+1}, v{a+2}, v{a+3}"]]
            snd += [[f"v_min_u32 v{o+r}, -2, v{o+r}" for r in (0, 1)], [f"v_min_u32 v{o+r}, -2, v{o+r}" for r in (2, 3)] +
                    [f"buffer_store_dwordx4 {vr(o,4)}, v{vLin}, s[{SWS}:{SWS+3}], s{[sX0,sX1][b]} offen offset:{1024*i} sc1"]]
    k("s_barrier")
    k(weave(weave(mfmas(f, PAR), reads(1 - f, False), 0, 10), adv, 22, 27), weave(mfmas(f, OWN), snd, 0, 16), "s_waitcnt lgkmcnt(0)")
    f = 1 - f
    res = [f"buffer_load_dwordx4 {vr(RES[i][b],4)}, v{vLin}, s[{SWS}:{SWS+3}], s{[sT,sT2][b]} offen offset:{1024*i}" for i in range(2) for b in range(2)]
    rcv = [f"buffer_load_dwordx4 {vr(RCV[i][b],4)}, v{vLin}, s[{SWS}:{SWS+3}], s{[sX0,sX1][b]} offen offset:{1024*i} sc1" for i in range(2) for b in range(2)]
    rstep = N1 + N2 - OPT.get("rl", 2)
    for n in range(N1 + 1, N1 + N2):
        k("s_barrier")
        m = weave(mfmas(f, OWN), reads(1 - f, False), 0, 9)
        ex = list(adv) if n < N1 + N2 - 1 else []
        if n == N1 + 1:
            ex += [[f"s_add_u32 s{sT}, s{sRes}, {HF}", f"s_add_u32 s{sT2}, s{sRes}, {HF+4096}",
                    f"s_add_u32 s{sX0}, s{sRes}, {XB}", f"s_add_u32 s{sX1}, s{sRes}, {XB+4096}"], res]
        if n == rstep:
            ex += [rcv]
        k(weave(m, ex, len(m) - 6, len(m)) if ex else m, island() if (n == N1 + 2 and OPT.get("epad", 1)) else None, "s_waitcnt lgkmcnt(0)")
        f = 1 - f
    if rstep >= N1 + N2:
        k(rcv)
    k(mfmas(f, OWN))
    if not OPT.get("p1"):
        mid_stamp(k, 1)
    k(f"s_mov_b32 s{sN}, {1<<20}")
    k.label(f"L_{name}_chk")
    k("s_waitcnt vmcnt(0)")
    rr = [RCV[i][b] + r for i in range(2) for b in range(2) for r in range(4)]
    k(f"v_max3_u32 v{T0}, v{rr[0]}, v{rr[1]}, v{rr[2]}", f"v_max3_u32 v{T1}, v{rr[3]}, v{rr[4]}, v{rr[5]}")
    for j in range(6, 16, 2):
        t = [T0, T1][(j // 2) & 1]
        k(f"v_max3_u32 v{t}, v{rr[j]}, v{rr[j+1]}, v{t}")
    k(f"v_max_u32 v{T0}, v{T0}, v{T1}", f"v_cmp_eq_u32 vcc, -1, v{T0}", f"s_sub_u32 s{sN}, s{sN}, 1", f"s_cbranch_scc1 L_{name}_out",
      f"s_cbranch_vccz L_{name}_out", "s_sleep 2", rcv, f"s_branch L_{name}_chk")
    k.label(f"L_{name}_out")
    k(f"s_mov_b32 s{sN}, 32768")
    U = F[0][0]["W"][0]
    for i in range(2):
        for b in range(2):
            o = F[0][1]["W"][2 * i + b]
            for jt in range(2):
                a = acc[2 * b + jt][i]
                for h in range(2):
                    r, q = RES[i][b] + 2 * jt + h, RCV[i][b] + 2 * jt + h
                    k(f"v_lshlrev_b32 v{U}, 16, v{q}", f"v_and_b32 v{U+1}, 0xffff0000, v{q}",
                      f"v_lshlrev_b32 v{U+2}, 16, v{r}", f"v_and_b32 v{U+3}, 0xffff0000, v{r}",
                      f"v_pk_add_f32 {vr(a+2*h,2)}, {vr(a+2*h,2)}, {vr(U,2)}", f"v_pk_add_f32 {vr(a+2*h,2)}, {vr(a+2*h,2)}, {vr(U+2,2)}",
                      f"v_cvt_pk_bf16_f32 v{o+2*jt+h}, v{a+2*h}, v{a+2*h+1}")
            k(f"buffer_store_dwordx4 {vr(o,4)}, v{vRow}, s[{SO}:{SO+3}], {['0', f's{sN}'][i]} offen offset:{64*b} sc1")
    tail(k, kidx, sW)
    return k


def k4_down4(kidx):
    name, K = "down_kernel", 3584
    D = OPT.get("dd", 2)
    N1 = OPT.get("n1", 25)
    N2 = 56 - 2 * N1
    STG, NS = 24576, D + 2
    k = Kern(name, 256, 512, STG * NS)
    SWS, SO = 4, 20
    sW, sTB, sNB, sN, sT, sT2, sRd, sWr, sTo, sWo, sTH, sCH, sRes, sDW, sKQ = range(28, 43)
    sX = [[44 + 2 * r + b for b in range(2)] for r in range(4)]
    v = Alloc(1)
    L, G, TOK, T0, T1, vLin, bT, bW, aT, aW, vRow = [v() for _ in range(11)]
    F = [[dict(X=[v(4, 4) for _ in range(2)], W=[v(4, 4) for _ in range(4)]) for s in range(2)] for _ in range(2)]
    acc = [[[v(4, 4) for i in range(2)] for t in range(4)] for r in range(4)]
    RES = [[v(4, 4) for b in range(2)] for i in range(2)]
    SND = lambda r, i, b: acc[r][2 * b][i]
    RCV = lambda r, i, b: acc[r][2 * b + 1][i] if r else RES[i][b]
    k.vgpr = k.acc = (v.n + 7) // 8 * 8
    head(k, True)
    k(f"s_load_dwordx2 s[{SWS}:{SWS+1}], s[0:1], {A_WS}", f"s_load_dwordx2 s[{SO}:{SO+1}], s[0:1], {A_OUT}")
    k(f"v_lshrrev_b32 v{T1}, 6, v0", f"v_and_b32 v{L}, 63, v0", f"v_readfirstlane_b32 s{sW}, v{T1}", f"v_lshlrev_b32 v{vLin}, 4, v{L}")
    k(f"s_bfe_u32 s{sNB}, s2, 0x20003", f"s_lshl_b32 s{sNB}, s{sNB}, 1", f"s_and_b32 s{sT}, s2, 1", f"s_add_u32 s{sNB}, s{sNB}, s{sT}",
      f"s_lshr_b32 s{sTB}, s2, 5", f"s_lshl_b32 s{sTB}, s{sTB}, 1", f"s_bfe_u32 s{sT}, s2, 0x10001", f"s_add_u32 s{sTB}, s{sTB}, s{sT}",
      f"s_and_b32 s{sT}, s2, 4", f"s_lshl_b32 s{sT}, s{sT}, 2", f"s_add_u32 s{sTB}, s{sTB}, s{sT}",
      f"s_and_b32 s{sTH}, s{sW}, 1", f"s_bfe_u32 s{sCH}, s{sW}, 0x10001")
    k(f"s_cmp_lt_u32 s{sW}, 4", f"s_cbranch_scc1 L_{name}_comp")
    k(f"s_and_b32 s{sW}, s{sW}, 3", f"s_and_b32 s{sKQ}, s2, 3",
      f"s_lshl_b32 s{sWr}, s{sW}, 11", f"s_add_u32 s{sDW}, s{sWr}, 8192",
      f"s_mul_i32 s{sT2}, s{sKQ}, {N1*4096}", f"s_lshl_b32 s{sT}, s{sTH}, 11", f"s_add_u32 s{sT2}, s{sT2}, s{sT}",
      f"s_xor_b32 s{sT}, s{sTB}, s{sCH}", f"s_mul_i32 s{sTo}, s{sT}, {K*128}", f"s_add_u32 s{sTo}, s{sTo}, s{sT2}", f"s_add_u32 s{sTo}, s{sTo}, {AF}",
      f"s_xor_b32 s{sT}, s{sNB}, s{sCH}", f"s_mul_i32 s{sWo}, s{sT}, {K*128}", f"s_add_u32 s{sWo}, s{sWo}, s{sT2}", f"s_lshl_b32 s{sWo}, s{sWo}, 1",
      f"s_add_u32 s{sWo}, s{sWo}, {WDF}")
    k("s_waitcnt lgkmcnt(0)", ws_shift(SWS), srd_tail(SWS, WS_SZ))

    def dma_stage(step):
        o = [f"s_mov_b32 m0, s{sWr}", "s_nop 0"]
        o += [f"buffer_load_dwordx4 v{vLin}, s[{SWS}:{SWS+3}], s{sTo} offen offset:{1024*i} lds" for i in range(2)]
        o += [f"s_add_u32 m0, s{sWr}, s{sDW}", f"s_add_u32 s{sTo}, s{sTo}, {step}"]
        o += [f"buffer_load_dwordx4 v{vLin}, s[{SWS}:{SWS+3}], s{sWo} offen offset:{1024*i} lds" for i in range(4)]
        o += [f"s_add_u32 s{sWo}, s{sWo}, {2*step}", f"s_add_u32 s{sWr}, s{sWr}, {STG}", f"s_cmp_ge_u32 s{sWr}, {STG*NS}",
              f"s_cselect_b32 s{sT}, {STG*NS}, 0", f"s_sub_u32 s{sWr}, s{sWr}, s{sT}",
              f"s_sub_u32 s{sN}, s{sN}, 1", f"s_cmp_lg_u32 s{sN}, 0", f"s_waitcnt vmcnt({6*D})", "s_barrier"]
        return o
    k(f"s_mov_b32 s{sN}, {N1}")
    k.label(f"L_{name}_ld")
    k(dma_stage(4096), f"s_cbranch_scc1 L_{name}_ld")
    k(f"s_lshl_b32 s{sT2}, s{sW}, 11", f"s_add_u32 s{sT2}, s{sT2}, {4*N1*4096}",
      f"s_mul_i32 s{sTo}, s{sTB}, {K*128}", f"s_add_u32 s{sTo}, s{sTo}, s{sT2}", f"s_add_u32 s{sTo}, s{sTo}, {AF}",
      f"s_mul_i32 s{sWo}, s{sNB}, {K*128}", f"s_add_u32 s{sWo}, s{sWo}, s{sT2}", f"s_lshl_b32 s{sWo}, s{sWo}, 1",
      f"s_add_u32 s{sWo}, s{sWo}, {WDF}", f"s_mov_b32 s{sN}, {N2}")
    k.label(f"L_{name}_ld2")
    k(dma_stage(8192), f"s_cbranch_scc1 L_{name}_ld2")
    for d in range(D - 1, -1, -1):
        k(f"s_waitcnt vmcnt({6*d})", "s_barrier")
    k("s_endpgm")
    k(island(jump=False))
    k.label(f"L_{name}_comp")
    k(f"v_lshrrev_b32 v{G}, 4, v{L}", f"v_and_b32 v{TOK}, 15, v{L}",
      f"v_lshlrev_b32 v{T0}, 11, v{TOK}", f"v_lshl_add_u32 v{T0}, v{G}, 4, v{T0}",
      f"s_lshl_b32 s{sN}, s{sTB}, 1", f"s_add_u32 s{sN}, s{sN}, s{sTH}", f"s_lshl_b32 s{sN}, s{sN}, 16",
      f"s_lshl_b32 s{sRes}, s{sNB}, 1", f"s_add_u32 s{sRes}, s{sRes}, s{sCH}", f"s_lshl_b32 s{sRd}, s{sRes}, 7",
      f"s_add_u32 s{sN}, s{sN}, s{sRd}", f"v_add_u32 v{vRow}, s{sN}, v{T0}")
    for _ in range(D):
        k("s_barrier")
    k(f"s_lshl_b32 s{sRes}, s{sRes}, 13", f"s_lshl_b32 s{sN}, s{sTB}, 17", f"s_add_u32 s{sRes}, s{sRes}, s{sN}",
      f"s_lshl_b32 s{sN}, s{sTH}, 11", f"s_add_u32 s{sRes}, s{sRes}, s{sN}")
    for r in range(1, 4):
        k(f"s_xor_b32 s{sT}, s{sRes}, {((r&1)<<17)|((r>>1)<<14)}", f"s_add_u32 s{sX[r][0]}, s{sT}, {XB4[r]}", f"s_add_u32 s{sX[r][1]}, s{sT}, {XB4[r]+4096}")
    k(f"s_lshl_b32 s{sT}, s{sTH}, 11", f"v_add_u32 v{bT}, s{sT}, v{vLin}",
      f"s_lshl_b32 s{sT}, s{sCH}, 12", f"s_add_u32 s{sT}, s{sT}, 8192", f"v_add_u32 v{bW}, s{sT}, v{vLin}",
      f"v_mov_b32 v{aT}, v{bT}", f"v_mov_b32 v{aW}, v{bW}")
    k("s_waitcnt lgkmcnt(0)", ws_shift(SWS))
    k(srd_tail(SWS, WS_SZ), srd_tail(SO, 4 * MB))

    def reads(f):
        o = []
        for s in range(2):
            o += [f"ds_read_b128 {vr(F[f][s]['X'][i],4)}, v{aT} offset:{s*4096+i*1024}" for i in range(2)]
            o += [f"ds_read_b128 {vr(F[f][s]['W'][t],4)}, v{aW} offset:{s*8192+t*1024}" for t in range(4)]
        return o

    def mf1(f, c=None):
        o = []
        for sw in range(2):
            for t in range(4):
                xs = [(0, 0), (0, 1), (1, 0), (1, 1)]
                for sx, i in (xs if t % 2 == 0 else xs[::-1]):
                    o.append(m16(vr(acc[2 * sw + sx][t][i], 4), vr(F[f][sw]["W"][t], 4), vr(F[f][sx]["X"][i], 4), c))
        return o

    def mf1r(f, r):
        return [m16(vr(acc[r][t][i], 4), vr(F[f][r >> 1]["W"][t], 4), vr(F[f][r & 1]["X"][i], 4)) for t in range(4) for i in ((0, 1) if t % 2 == 0 else (1, 0))]

    def mf2(f):
        return [m16(vr(acc[0][t][i], 4), vr(F[f][s]["W"][t], 4), vr(F[f][s]["X"][i], 4))
                for t in range(4) for i in ((0, 1) if t % 2 == 0 else (1, 0)) for s in range(2)]
    adv = [[f"s_add_u32 s{sRd}, s{sRd}, {STG}", f"s_cmp_eq_u32 s{sRd}, {STG*NS}"], [f"s_cselect_b32 s{sRd}, 0, s{sRd}"],
           [f"v_add_u32 v{aT}, s{sRd}, v{bT}", f"v_add_u32 v{aW}, s{sRd}, v{bW}"]]
    k(f"s_mov_b32 s{sRd}, 0", f"s_mov_b32 s{sN}, {(N1-2)//2}")
    k("s_barrier")
    mid_stamp(k, 0)
    k(reads(0), adv, "s_waitcnt lgkmcnt(0)")

    def step(f, extra, c=None):
        k("s_barrier")
        m = weave(mf1(f, c), reads(1 - f), 0, 14)
        k(weave(m, adv + extra, len(m) - 10, len(m) - 2), "s_waitcnt lgkmcnt(0)")
    step(0, [], "0")
    k(".p2align 6")
    k.label(f"L_{name}_loop")
    step(1, [])
    step(0, [[f"s_sub_u32 s{sN}, s{sN}, 1", f"s_cmp_lg_u32 s{sN}, 0"]])
    k(f"s_cbranch_scc1 L_{name}_loop")
    f = 1
    if (N1 - 2) % 2:
        step(1, [])
        f = 0

    def snd(r):
        o = []
        for b in range(2):
            for i in range(2):
                d, a = SND(r, i, b), acc[r][2 * b + 1][i]
                o += [[f"v_cvt_pk_bf16_f32 v{d}, v{d}, v{d+1}", f"v_cvt_pk_bf16_f32 v{d+1}, v{d+2}, v{d+3}"],
                      [f"v_cvt_pk_bf16_f32 v{d+2}, v{a}, v{a+1}", f"v_cvt_pk_bf16_f32 v{d+3}, v{a+2}, v{a+3}"],
                      [f"v_min_u32 v{d+q}, -2, v{d+q}" for q in (0, 1)], [f"v_min_u32 v{d+q}, -2, v{d+q}" for q in (2, 3)] +
                      [f"buffer_store_dwordx4 {vr(d,4)}, v{vLin}, s[{SWS}:{SWS+3}], s{sX[r][b]} offen offset:{1024*i} sc1"]]
        return o
    if OPT.get("p1"):
        mid_stamp(k, 1)
    k("s_barrier")
    k(weave(weave(mf1r(f, 3) + mf1r(f, 2), reads(1 - f), 0, 10), adv, 22, 27), weave(mf1r(f, 1) + mf1r(f, 0), snd(3), 0, 16), "s_waitcnt lgkmcnt(0)")
    k(island())
    f = 1 - f
    rcv = lambda r: [f"buffer_load_dwordx4 {vr(RCV(r,i,b),4)}, v{vLin}, s[{SWS}:{SWS+3}], s{sX[r][b]} offen offset:{1024*i}{' sc1' if r else ''}"
                     for i in range(2) for b in range(2)]
    radr = [[f"s_add_u32 s{sX[r][b]}, s{sRes}, {XB4[r]+4096*b}" for b in range(2)] for r in range(4)]
    rl = OPT.get("rl", 2)
    for n in range(1, N2):
        k("s_barrier")
        m = weave(mf2(f), reads(1 - f), 0, 9)
        ex = list(adv) if n < N2 - 1 else []
        if n == 1:
            k(weave(m, ex, len(m) - 6, len(m) - 2), snd(2), snd(1), radr, rcv(0))
        else:
            if n == N2 - rl:
                ex += [rcv(3), rcv(2), rcv(1)]
            k(weave(m, ex, len(m) - 6, len(m)) if ex else m)
        k("s_waitcnt lgkmcnt(0)")
        f = 1 - f
    if rl == 0:
        k(rcv(3), rcv(2), rcv(1))
    k(mf2(f))
    if not OPT.get("p1"):
        mid_stamp(k, 1)
    U = F[0][0]["W"][0]

    def add(r):
        for i in range(2):
            for b in range(2):
                for jt in range(2):
                    a, q = acc[0][2 * b + jt][i], RCV(r, i, b) + 2 * jt
                    k(f"v_lshlrev_b32 v{U}, 16, v{q}", f"v_and_b32 v{U+1}, 0xffff0000, v{q}",
                      f"v_lshlrev_b32 v{U+2}, 16, v{q+1}", f"v_and_b32 v{U+3}, 0xffff0000, v{q+1}",
                      f"v_pk_add_f32 {vr(a,2)}, {vr(a,2)}, {vr(U,2)}", f"v_pk_add_f32 {vr(a+2,2)}, {vr(a+2,2)}, {vr(U+2,2)}")
                if r == 1:
                    o = F[0][1]["W"][2 * i + b]
                    for jt in range(2):
                        a = acc[0][2 * b + jt][i]
                        k(f"v_cvt_pk_bf16_f32 v{o+2*jt}, v{a}, v{a+1}", f"v_cvt_pk_bf16_f32 v{o+2*jt+1}, v{a+2}, v{a+3}")
                    k(f"buffer_store_dwordx4 {vr(o,4)}, v{vRow}, s[{SO}:{SO+3}], {['0', f's{sT2}'][i]} offen offset:{64*b} sc1")
    k(f"s_mov_b32 s{sN}, {1<<20}", f"s_mov_b32 s{sT2}, 32768", "s_waitcnt vmcnt(12)", "s_nop 1")
    add(0)
    for r in (3, 2, 1):
        k(f"s_waitcnt vmcnt({4*(r-1)})")
        k.label(f"L_{name}_chk{r}")
        rr = [RCV(r, i, b) + q for i in range(2) for b in range(2) for q in range(4)]
        k(f"v_max3_u32 v{T0}, v{rr[0]}, v{rr[1]}, v{rr[2]}", f"v_max3_u32 v{T1}, v{rr[3]}, v{rr[4]}, v{rr[5]}")
        for j in range(6, 16, 2):
            t = [T0, T1][(j // 2) & 1]
            k(f"v_max3_u32 v{t}, v{rr[j]}, v{rr[j+1]}, v{t}")
        k(f"v_max_u32 v{T0}, v{T0}, v{T1}", f"v_cmp_eq_u32 vcc, -1, v{T0}", f"s_sub_u32 s{sN}, s{sN}, 1", f"s_cbranch_scc1 L_{name}_ok{r}",
          f"s_cbranch_vccz L_{name}_ok{r}", [rcv(q) for q in range(r, 0, -1)], "s_waitcnt vmcnt(0)", f"s_branch L_{name}_chk{r}")
        k.label(f"L_{name}_ok{r}")
        add(r)
    tail(k, kidx, sW)
    return k


class Op:
    def __init__(self, text, kind="v", needs=(), bar=False):
        self.text, self.kind, self.needs, self.bar = text, kind, list(needs), bar
        self.seq = None

    @property
    def cost(self):
        return 8 if self.kind == "t" else 4


def emit_stream(k, ops, nl=0, nv=0):
    cnt = {"lds": nl, "vm": nv}
    done = {"lds": 0, "vm": 0}
    for o in ops:
        if o.kind in cnt:
            cnt[o.kind] += 1
            o.seq = cnt[o.kind]
            k(o.text)
        elif o.kind == "wait":
            parts = []
            for kind, nm, mx in (("vm", "vmcnt", 63), ("lds", "lgkmcnt", 15)):
                need = [x.seq for x in o.needs if x.kind == kind]
                assert None not in need, "wait on an op that was not issued yet"
                tgt = cnt[kind] if (o.bar and kind == "lds") else max(need, default=0)
                if tgt > done[kind]:
                    n = cnt[kind] - tgt
                    assert n <= mx or kind == "vm"
                    parts.append(f"{nm}({min(n, mx)})")
                    done[kind] = tgt
            if parts:
                k("s_waitcnt " + " ".join(parts))
            if o.bar:
                k("s_barrier")
        else:
            k(o.text)
    return cnt


def k3_gateup():
    STG, NS = 28672, 5
    TBL = NS * STG
    k = Kern("ffn_kernel", 256, 256, 163840)
    SWS, ST_, SW_, SO = 4, 8, 12, 20
    slot = lambda n: (n + 3) % NS
    sW, sMB, sFB, sN, sT, sT2, sTo, sWo, sWr, sTB, sA0, sA1, sSt, sCp = range(28, 42)
    v = Alloc(1)
    vLin, vR1, vR2, vCs, vSt, vTid, vOut = [v() for _ in range(7)]
    PA = [v(2, 2) for _ in range(4)]
    SD = [v(2, 2) for _ in range(2)]
    TA, TB_, TC = v(4, 4), v(4, 4), v(4, 4)
    assert v.n <= 32, v.n
    acc = [[32 + (a * 4 + b) * 4 for b in range(4)] for a in range(14)]
    TK = [[[32 * n + 16 * s + 4 * b for b in range(4)] for s in range(2)] for n in range(NS)]
    WF = [[160 + 8 * n + 4 * s for s in range(2)] for n in range(4)]
    SP, CP = 192, 224
    k.vgpr, k.acc = 512, 256
    head(k, True)
    k(f"s_load_dwordx2 s[{SWS}:{SWS+1}], s[0:1], {A_WS}", f"s_load_dwordx2 s[{SO}:{SO+1}], s[0:1], {A_OUT}")
    k(f"v_lshrrev_b32 v{TA}, 6, v0", f"v_and_b32 v{TA+1}, 63, v0", f"v_readfirstlane_b32 s{sW}, v{TA}", f"v_lshlrev_b32 v{vLin}, 4, v{TA+1}")
    k(f"s_lshr_b32 s{sT}, s2, 3", f"s_lshr_b32 s{sMB}, s{sT}, 2", f"s_and_b32 s{sT}, s{sT}, 3",
      f"s_and_b32 s{sFB}, s2, 7", f"s_lshl_b32 s{sFB}, s{sFB}, 2", f"s_add_u32 s{sFB}, s{sFB}, s{sT}",
      f"s_lshl_b32 s{sTB}, s{sMB}, 2", f"s_add_u32 s{sTB}, s{sTB}, s{sW}",
      f"s_lshl_b32 s{sT}, s{sTB}, 17", f"s_add_u32 s{sT}, s{sT}, {HF}",
      f"s_mul_i32 s{sT2}, s{sFB}, {32*14*1024}", f"s_add_u32 s{sT2}, s{sT2}, {WGU}",
      f"s_mul_i32 s{sWo}, s{sW}, 7168", f"s_mov_b32 s{sWr}, s{sWo}", f"s_mov_b32 s{sTo}, 0")
    k("s_waitcnt lgkmcnt(0)", ws_shift(SWS))
    k(srd_from(ST_, SWS, f"s{sT}", 131072), srd_from(SW_, SWS, f"s{sT2}", 32 * 14 * 1024))

    def vm_stage(n):
        o = []
        for i in range(7):
            pre, post = [], []
            if i % 4 == 0:
                pre = [f"s_add_u32 m0, s{sWr}, {slot(n)*STG+1024*i}"]
            if i == 3:
                post = [f"s_add_u32 s{sWo}, s{sWo}, 4096"]
            if i == 6:
                post = [f"s_add_u32 s{sWo}, s{sWo}, {STG-4096}"]
            o.append((pre, Op(f"buffer_load_dwordx4 v{vLin}, s[{SW_}:{SW_+3}], s{sWo} offen offset:{1024*(i%4)} lds", "vm"), post, n))
        for s in range(2):
            for b in range(4):
                post = [f"s_add_u32 s{sTo}, s{sTo}, 4096"] if b == 3 else []
                o.append(([], Op(f"buffer_load_dwordx4 {ar(TK[slot(n)][s][b],4)}, v{vLin}, s[{ST_}:{ST_+3}], s{sTo} offen offset:{1024*b}", "vm"), post, n))
        return o
    VM = [vm_stage(n) for n in range(16)]
    HALF = OPT.get("k3half", 1)
    if HALF:
        wl = [([f"s_add_u32 m0, s{sN}, {slot(0)*STG}"], Op(f"buffer_load_dwordx4 v{vLin}, s[{SW_}:{SW_+3}], s{sN} offen lds", "vm"),
               [f"s_add_u32 s{sN}, s{sN}, 4096"] if i < 6 else [f"s_add_u32 s{sWo}, s{sWo}, {STG}"], 0) for i in range(7)]
        VM[0] = VM[0][7:11] + wl[:4] + VM[0][11:15] + wl[4:]
        k(f"s_lshl_b32 s{sN}, s{sW}, 10")
    stat_ld = [([], Op(f"buffer_load_dwordx4 {ar(SP+4*i,4)}, v{vLin}, s[{SWS}:{SWS+3}], s{sSt} offen offset:{1024*(i%4)}", "vm"),
                [f"s_add_u32 s{sSt}, s{sSt}, 4096"] if i == 3 else [], None) for i in range(8)]
    cs_ld = [([], Op(f"buffer_load_dword {ar(CP+p)}, v{vTid}, s[{SWS}:{SWS+3}], s{sCp} offen", "vm"),
              [f"s_add_u32 s{sCp}, s{sCp}, {32*896}"], None) for p in range(8)]
    pro = []
    for i, (pre, ld, post, _) in enumerate(VM[0] if HALF else VM[0] + VM[1]):
        pro += [Op(x, "s") for x in pre] + ([Op("s_nop 0", "s")] if pre else []) + [ld] + [Op(x, "s") for x in post]
        if i == (7 if HALF else 14):
            cut = len(pro)
            pro.append(Op("s_barrier", "s"))
    pro, pro2 = pro[:cut], pro[cut:]
    misc = srd_tail(SWS, WS_SZ) + [
        f"s_lshl_b32 s{sSt}, s{sTB}, 13", f"s_add_u32 s{sSt}, s{sSt}, {STP}",
        f"s_mul_i32 s{sCp}, s{sFB}, 896", f"s_add_u32 s{sCp}, s{sCp}, {CSP}",
        f"v_add_u32 v{vR1}, {2*STG}, v{vLin}", f"v_add_u32 v{vR2}, {4*STG}, v{vLin}",
        f"v_lshlrev_b32 v{vTid}, 2, v0",
        f"v_lshrrev_b32 v{TA}, 4, v{TA+1}", f"v_lshlrev_b32 v{vCs}, 4, v{TA}", f"v_add_u32 v{vCs}, {TBL}, v{vCs}",
        f"v_and_b32 v{TA+2}, 1, v{TA}", f"v_lshlrev_b32 v{TA+2}, 10, v{TA+2}", f"v_lshrrev_b32 v{TA}, 1, v{TA}",
        f"v_lshl_add_u32 v{TA+2}, v{TA}, 8, v{TA+2}", f"v_and_b32 v{TA+1}, 15, v{TA+1}", f"v_lshl_add_u32 v{vOut}, v{TA+1}, 4, v{TA+2}",
        f"s_mul_i32 s{sT}, s{sTB}, {112*4096}", f"s_add_u32 s{sT}, s{sT}, {AF}", f"s_and_b32 s{sT2}, s{sFB}, 1", f"s_lshl_b32 s{sT2}, s{sT2}, 9",
        f"s_add_u32 s{sT}, s{sT}, s{sT2}", f"s_lshr_b32 s{sT2}, s{sFB}, 1", f"s_lshl_b32 s{sT2}, s{sT2}, 12", f"s_add_u32 s{sT}, s{sT}, s{sT2}",
        f"s_add_u32 s{sA1}, s{sT}, {96*4096}", f"s_lshr_b32 s{sT2}, s{sFB}, 4", f"s_mul_i32 s{sT2}, s{sT2}, {40*4096}", f"s_add_u32 s{sA0}, s{sT}, s{sT2}"]
    pro += [Op(x, "s") for x in misc]
    if OPT.get("k3pf", 1):
        pro += [Op(x, "s") for x in ["s_getpc_b64 s[16:17]", f"s_lshr_b32 s{sT}, s2, 3", f"s_lshl_b32 s{sT}, s{sT}, 10",
                                     f"v_add_u32 v{TA}, s{sT}, v{vTid}", f"v_min_u32 v{TA}, L_code_end-L_k3_pf-4, v{TA}", "L_k3_pf:"]]
        pro.append(Op(f"global_load_dword v{TC}, v{TA}, s[16:17]", "vm"))

    if OPT.get("isl", 1):
        pro.append(Op(island(), "s"))
    seg0 = len(pro)
    pro += pro2
    order = [a for p in range(7) for a in (p, p + 7)]
    S0 = 12
    seq = [(n, a) for n in range(S0) for a in order]
    seq += [(n, a) for p in range(7) for n in range(S0, 16) for a in (p, p + 7)]
    NT_ = len(seq)
    mf, fixed = [], [[] for _ in range(8 * NT_)]
    RD = []
    for gt, (n, a) in enumerate(seq):
        sl = slot(n)
        fr = [(a, 0), (a, 1)] if not (HALF and n == 0) else [(gt % 7, gt // 7), (gt % 7 + 7, gt // 7)]
        RD.append([Op(f"ds_read_b128 {ar(WF[gt%4][e],4)}, v{[vLin,vR1,vR2][sl>>1]} offset:{(sl&1)*STG+s*14336+t*1024}", "lds") for e, (t, s) in enumerate(fr)])
        bs = range(4) if gt % 2 == 0 else range(3, -1, -1)
        for b in bs:
            for e, (t, s) in enumerate(fr):
                mf.append(Op(m16(vr(acc[t][b], 4), ar(WF[gt % 4][e], 4), ar(TK[sl][s][b], 4), "0" if (n == 0 and s == 0) else None), "m"))
    first = {}
    for gt, (n, a) in enumerate(seq):
        first.setdefault(n, gt)
    barpos = {}
    for gt in range(NT_):
        if gt + 2 < NT_:
            fixed[8 * gt].append(RD[gt + 2][0]); fixed[8 * gt + 1].append(RD[gt + 2][1])
        newst = [n for n in range(1, 16) if first[n] == gt + 3]
        if HALF and gt == 4:
            newst = [0]
        if newst:
            fixed[8 * gt + 7].append(Op("", "wait", [x[1] for x in VM[newst[0]]], bar=True))
            barpos[newst[0]] = 8 * gt + 7
        elif gt + 1 < NT_:
            fixed[8 * gt + 7].append(Op("", "wait", RD[gt + 1]))
    flat = (VM[1] if HALF else []) + VM[2] + VM[3] + VM[4] + stat_ld + cs_ld + [x for n in range(5, 16) for x in VM[n]]
    nfast = OPT.get("k3fast", 15) if HALF else 0
    slots = [8 * gt + o for gt in range(S0 * 14) for o in (3, 6)]
    nsl = len(slots) - 2 * OPT.get("k3lead", 8)
    vpos = {}
    si = -1
    for i, (pre, ld, post, n) in enumerate(flat):
        si = max(si + 1, nfast + ((i - nfast) * (nsl - nfast)) // (len(flat) - nfast) if i >= nfast else 0)
        if n is not None and n >= NS:
            lim = barpos[n - NS + 1] + 2 if "lds" in ld.text else 8 * 14 * (n - NS + 1)
            while slots[si] < lim:
                si += 1
        p = slots[si]
        fixed[p - 1] += [Op(x, "s") for x in pre]
        fixed[p] += [ld] + [Op(x, "s") for x in post]
        vpos[id(ld)] = p
    used = [sum(o.cost for o in f if not (o.kind == "wait" and False)) for f in fixed]
    flo = [[] for _ in fixed]

    def flow(ops, start, deadline=None):
        p = start
        for o in ops:
            while used[p] + o.cost > 8:
                p += 1
            flo[p].append(o); used[p] += o.cost
        assert deadline is None or p < deadline, (p, deadline)
        return p + 1

    def spread(ops, start, stop):
        tot = sum(o.cost for o in ops) + sum(used[start:stop])
        cap = max(8.0, tot / (stop - start))
        p, acc_used, acc_cap = start, used[start], cap
        for o in ops:
            while acc_used + o.cost > acc_cap + 2 and p < stop - 1:
                p += 1
                if cap == 8.0:
                    acc_used, acc_cap = used[p], cap
                else:
                    acc_used += used[p]; acc_cap += cap
            flo[p].append(o); acc_used += o.cost
        return p
    V = lambda t: Op(t, "v")
    st = [Op("", "wait", [x[1] for x in stat_ld + cs_ld])]
    st += [V(f"v_accvgpr_read_b32 v{TC}, a{CP}")]
    for p in range(1, 8):
        st += [V(f"v_accvgpr_read_b32 v{TB_}, a{CP+p}"), V(f"v_add_f32 v{TC}, v{TC}, v{TB_}")]
    st += [V(f"v_add_u32 v{vTid}, {TBL}, v{vTid}"), Op(f"ds_write_b32 v{vTid}, v{TC}", "lds")]
    for hf in range(2):
        A = TA
        st += [V(f"v_accvgpr_read_b32 v{A+r}, a{SP+16*hf+r}") for r in range(4)]
        for i in range(1, 4):
            st += [V(f"v_accvgpr_read_b32 v{TB_+r}, a{SP+16*hf+4*i+r}") for r in range(4)]
            st += [V(f"v_add_f32 v{A+r}, v{A+r}, v{TB_+r}") for r in range(4)]
        for op in ("v_permlane16_swap_b32", "v_permlane32_swap_b32"):
            st += [V(f"v_mov_b32 v{TB_+r}, v{A+r}") for r in range(4)]
            st += [V(f"{op} v{A+r}, v{TB_+r}") for r in range(4)]
            st += [V(f"v_add_f32 v{A+r}, v{A+r}, v{TB_+r}") for r in range(4)]
        for b in (2 * hf, 2 * hf + 1):
            sd = SD[b >> 1] + (b & 1)
            st += [V(f"v_mul_f32 v{PA[b]+1}, {f32(-1/1024)}, v{A+2*(b&1)}"),
                   V(f"v_mul_f32 v{PA[b]}, {f32(1/1024)}, v{A+2*(b&1)+1}"),
                   V(f"v_fma_f32 v{PA[b]}, -v{PA[b]+1}, v{PA[b]+1}, v{PA[b]}"),
                   V(f"v_max_f32 v{PA[b]}, 0, v{PA[b]}"),
                   V(f"v_add_f32 v{sd}, {f32(EPS)}, v{PA[b]}"),
                   Op(f"v_rsq_f32 v{PA[b]}, v{sd}", "t"), V("v_nop"),
                   V(f"v_mul_f32 v{sd}, v{sd}, v{PA[b]}"),
                   V(f"v_mul_f32 v{PA[b]}, {f32(-LOG2E)}, v{PA[b]}")]
    p = flow(st, vpos[id(cs_ld[-1][1])] + 90)
    n0 = min(n for n in range(1, S0) if barpos[n] >= p)
    p = barpos[n0] + 1
    todo = list(order)
    step = (8 * 14 * S0 - 40 - p) // 14
    for i in range(14):
        cur = lambda a: all(seq[q // 8][1] != a for q in range(p - 2, p + 48))
        cand = [a for a in todo if cur(a)]
        while not cand:
            p += 4
            cand = [a for a in todo if cur(a)]
        a = cand[0]
        todo.remove(a)
        C = [TA, TC][i & 1]
        r = Op(f"ds_read_b128 {vr(C,4)}, v{vCs} offset:{64*a}", "lds")
        ops = [V(f"v_fmac_f32 v{acc[a][b]+e}, v{PA[b]+1}, v{C+e}") for b in range(4) for e in range(4)]
        q = flow([r], p)
        q = flow([Op("", "wait", [r])] + ops, q + 6, p + 46)
        p = max(q, p + min(step, 24))
    assert p < barpos[15], p
    def epi(pr, packed):
        o = []
        for bb in (0, 2):
            d = acc[pr][bb]
            for b in (bb, bb + 1):
                g_, u = acc[pr][b], acc[pr + 7][b]
                sd = SD[b >> 1] + (b & 1)
                if packed:
                    sel = f"op_sel:[0,{b&1},{b&1}] op_sel_hi:[1,{b&1},{b&1}]"
                    o += [V(f"v_pk_mul_f32 {vr(g_+h,2)}, {vr(g_+h,2)}, {vr(PA[b],2)} op_sel:[0,0] op_sel_hi:[1,0]") for h in (0, 2)]
                    o += [Op(f"v_exp_f32 v{g_+r}, v{g_+r}", "t") for r in range(4)]
                    o += [V(f"v_pk_fma_f32 {vr(g_+h,2)}, {vr(g_+h,2)}, {vr(SD[b>>1],2)}, {vr(SD[b>>1],2)} {sel}") for h in (0, 2)]
                    o += [Op(f"v_rcp_f32 v{g_+r}, v{g_+r}", "t") for r in range(4)]
                    o += [V(f"v_pk_mul_f32 {vr(u+h,2)}, {vr(u+h,2)}, {vr(g_+h,2)}") for h in (0, 2)]
                else:
                    o += [V(f"v_mul_f32 v{g_+r}, v{PA[b]}, v{g_+r}") for r in range(4)]
                    o += [Op(f"v_exp_f32 v{g_+r}, v{g_+r}", "t") for r in range(4)]
                    o += [V(f"v_fma_f32 v{g_+r}, v{g_+r}, v{sd}, v{sd}") for r in range(4)]
                    o += [Op(f"v_rcp_f32 v{g_+r}, v{g_+r}", "t") for r in range(4)]
                    o += [V(f"v_mul_f32 v{u+r}, v{u+r}, v{g_+r}") for r in range(4)]
                o += [V(f"v_cvt_pk_bf16_f32 v{d+2*(b&1)}, v{u}, v{u+1}"), V(f"v_cvt_pk_bf16_f32 v{d+2*(b&1)+1}, v{u+2}, v{u+3}")]
            o += [V("v_nop"), V(f"v_permlane16_swap_b32 v{d}, v{d+2}"), V(f"v_permlane16_swap_b32 v{d+1}, v{d+3}")]
            sa = sA1 if pr == 6 else sA0
            o.append(Op(f"buffer_store_dwordx4 {vr(d,4)}, v{vOut}, s[{SWS}:{SWS+3}], s{sa} offen offset:{1024*bb} sc1", "vm"))
        o.append(Op(f"s_add_u32 s{sa}, s{sa}, {8*4096}", "s"))
        return o
    run = 8 * 2 * (16 - S0)
    t0 = 8 * 14 * S0
    D, N1, N2, K = OPT.get("dd", 1), 24, 8, 3584
    NST = N1 + N2
    S = lambda t: Op(t, "s")
    dTB, dNB, dXo, dXp, dWo, dM, dM2, dRes, dX0, dX1, dSig, dPol = range(44, 56)
    aT, aWd = [TA, TA + 1, TA + 2], [TB_, TB_ + 1, TB_ + 2]
    vRow, vP, vOne, T0, T1 = TA + 3, TB_ + 3, TC, TC + 1, TC + 2
    pool = acc[0] + acc[1] + acc[7] + acc[8]
    dacc = [[pool[4 * t + i] for i in range(4)] for t in range(4)]
    RES = [[acc[2][2 * i + b] for b in range(2)] for i in range(2)]
    SND = [[acc[9][2 * i + b] for b in range(2)] for i in range(2)]
    RCV = [[dacc[2 * b][2 + i] for b in range(2)] for i in range(2)]
    F = [[dict(X=[f0 + 32 * s + 4 * i for i in range(4)], W=[f0 + 32 * s + 16 + 4 * t for t in range(4)]) for s in range(2)] for f0 in (192, 0)]
    dslot = lambda n: (4 - n) % 5
    setup = [S(x) for x in srd_tail(SO, 4 * MB) + [
        f"s_bfe_u32 s{dNB}, s2, 0x20003", f"s_and_b32 s{sT}, s2, 1", f"s_lshl_b32 s{sT}, s{sT}, 2", f"s_add_u32 s{dNB}, s{dNB}, s{sT}",
        f"s_lshr_b32 s{dTB}, s2, 5", f"s_and_b32 s{sT}, s2, 4", f"s_lshl_b32 s{sT}, s{sT}, 1", f"s_add_u32 s{dTB}, s{dTB}, s{sT}",
        f"s_lshl_b32 s{dPol}, s{dTB}, 9", f"s_add_u32 s{dPol}, s{dPol}, {FL2}",
        f"s_lshr_b32 s{dSig}, s{sTB}, 1", f"s_lshl_b32 s{dSig}, s{dSig}, 9", f"s_add_u32 s{dSig}, s{dSig}, {FL2}",
        f"s_lshl_b32 s{dTB}, s{dTB}, 1", f"s_bfe_u32 s{sT}, s2, 0x10001", f"s_add_u32 s{dTB}, s{dTB}, s{sT}",
        f"s_lshl_b32 s{dM}, s{sW}, 11", f"s_lshl_b32 s{dM2}, s{sW}, 12",
        f"s_mul_i32 s{sT}, s{sT}, {N1*8192}", f"s_add_u32 s{sT}, s{sT}, s{dM}",
        f"s_mul_i32 s{dWo}, s{dNB}, {K*128}", f"s_add_u32 s{dWo}, s{dWo}, s{sT}", f"s_lshl_b32 s{dWo}, s{dWo}, 1", f"s_add_u32 s{dWo}, s{dWo}, {WDF}",
        f"s_add_u32 s{sT}, s{sT}, {AF}", f"s_mul_i32 s{dXo}, s{dTB}, {K*128}", f"s_add_u32 s{dXo}, s{dXo}, s{sT}",
        f"s_xor_b32 s{dXp}, s{dTB}, 1", f"s_mul_i32 s{dXp}, s{dXp}, {K*128}", f"s_add_u32 s{dXp}, s{dXp}, s{sT}",
        f"s_lshr_b32 s{sT}, s{sW}, 1", f"s_lshl_b32 s{sT2}, s{dNB}, 1", f"s_add_u32 s{sT2}, s{sT2}, s{sT}",
        f"s_lshl_b32 s{sT}, s{sT}, 12", f"s_add_u32 s{sT}, s{sT}, 16384"]]
    setup += [V(f"v_add_u32 v{aWd[0]}, s{sT}, v{vLin}"), V(f"v_add_u32 v{aWd[1]}, 0x10000, v{aWd[0]}"), V(f"v_add_u32 v{aWd[2]}, 0x20000, v{aWd[0]}")]
    setup += [S(x) for x in [f"s_and_b32 s{sT}, s{sW}, 1", f"s_lshl_b32 s{sT}, s{sT}, 11"]]
    setup += [V(f"v_add_u32 v{aT[0]}, s{sT}, v{vLin}"), V(f"v_add_u32 v{aT[1]}, 0x10000, v{aT[0]}"), V(f"v_add_u32 v{aT[2]}, 0x20000, v{aT[0]}")]
    setup += [S(x) for x in [
        f"s_lshl_b32 s{dRes}, s{sT2}, 13", f"s_add_u32 s{dRes}, s{dRes}, s{sT}", f"s_lshl_b32 s{dX0}, s{dTB}, 17", f"s_add_u32 s{dRes}, s{dRes}, s{dX0}",
        f"s_lshl_b32 s{sT}, s{sT}, 5", f"s_add_u32 s{sT}, s{sT}, s{dX0}", f"s_lshl_b32 s{sT2}, s{sT2}, 7", f"s_add_u32 s{sT}, s{sT}, s{sT2}"]]
    setup += [V(f"v_and_b32 v{T0}, 0xf0, v{vLin}"), V(f"v_lshlrev_b32 v{T0}, 7, v{T0}"), V(f"v_lshrrev_b32 v{T1}, 8, v{vLin}"),
              V(f"v_lshl_add_u32 v{T0}, v{T1}, 4, v{T0}"), V(f"v_add_u32 v{vRow}, s{sT}, v{T0}"), V(f"v_mov_b32 v{vOne}, 1")]
    setup += [S(f"s_add_u32 s{dX0}, s{dRes}, {HF}"), S(f"s_add_u32 s{dX1}, s{dRes}, {HF+4096}")]
    flow(setup, max(p, t0 - 40), t0 + run)

    def dma(m0, so, n, step):
        o = [[S(f"s_add_u32 m0, {m0}"), S("s_nop 0")]] + [[] for _ in range(n - 1)]
        for i in range(n):
            o[i].append(Op(f"buffer_load_dwordx4 v{vLin}, s[{SWS}:{SWS+3}], s{so} offen offset:{1024*i}{' sc1' if so != dWo else ''} lds", "vm"))
        o[-1].append(S(f"s_add_u32 s{so}, s{so}, {step}"))
        return o
    DX, DW = [], []
    for n in range(NST):
        base = dslot(n) * 32768
        x = dma(f"s{dM}, {base}", dXo, 2, 8192) + (dma(f"s{dM}, {base+8192}", dXp, 2, 8192) if n < N1 else [])
        w = dma(f"s{dM2}, {base+16384}", dWo, 4, 16384)
        if n == N1:
            x[0] = [S(f"s_mul_i32 s{dXo}, s{dTB}, {K*128}"), S(f"s_add_u32 s{dXo}, s{dXo}, s{dM}"), S(f"s_add_u32 s{dXo}, s{dXo}, {AF+2*N1*8192}")] + x[0]
            w[0] = [S(f"s_mul_i32 s{dWo}, s{dNB}, {K*256}"), S(f"s_add_u32 s{dWo}, s{dWo}, s{dM2}"), S(f"s_add_u32 s{dWo}, s{dWo}, {WDF+2*N1*16384}")] + w[0]
        DX.append(x); DW.append(w)
    vms = lambda gs: [o for g_ in gs for o in g_ if o.kind == "vm"]
    res = [Op(f"buffer_load_dwordx4 {vr(RES[i][b],4)}, v{vLin}, s[{SWS}:{SWS+3}], s{[dX0,dX1][b]} offen offset:{1024*i}", "vm") for i in range(2) for b in range(2)]
    signal = lambda w: Op(f"s_mov_b64 exec, 1\nbuffer_atomic_add v{vOne}, off, s[{SWS}:{SWS+3}], s{dSig} offset:{256*w} sc1\ns_mov_b64 exec, -1", "vm")
    polltxt = lambda w: f"buffer_load_dword v{vP}, off, s[{SWS}:{SWS+3}], s{dPol} offset:{256*w} sc1"
    POL = [Op(polltxt(w), "vm") for w in range(2)]
    pcheck = lambda w: [Op("", "wait", [POL[w]]), S(f"v_cmp_ne_u32 vcc, 64, v{vP}\ns_nop 1\ns_cbranch_vccnz L_ffn_spin{w}\nL_ffn_go{w}:")]

    def put(pos, group):
        fixed2[pos] += group
        used[pos] += sum(o.cost for o in group)
    fixed2 = [[] for _ in fixed]
    EP = [epi(pr, False) for pr in range(6)]
    put(t0 + 3 * run + OPT.get("siga", 36), [Op("", "wait", vms([EP[0], EP[1]])), signal(0)])
    q = t0 + 4 * run + 3
    for g_ in DW[0] + DW[1] + [[r] for r in res]:
        put(q, g_); q += 4 if q % 8 == 3 else 4
    put(t0 + 5 * run + OPT.get("pola", 20), [POL[0]])
    q = t0 + 6 * run + 2
    put(q, pcheck(0))
    for i, g_ in enumerate(DX[0]):
        put(q + 2 + 2 * i, g_)
    b0 = 8 * (NT_ - 3) + 7
    fixed[b0] = [Op("", "wait", vms(DX[0] + DW[0]), bar=True)]
    for i, g_ in enumerate(DX[1] + DX[2]):
        put(b0 + 1 + 2 * i, g_)
    for pr in range(6):
        spread(EP[pr], t0 + run * (pr + 1), t0 + run * (pr + 2))
    ops = pro + [Op("", "wait", [x[1] for x in VM[0][:8 if HALF else 15]], bar=True)]
    if OPT["stamp"]:
        ops.append(Op("s_memrealtime s[96:97]\ns_memtime s[84:85]\ns_waitcnt lgkmcnt(0)", "s"))
    ops += RD[0] + RD[1] + [Op("", "wait", RD[0])]
    seg = dict(n=4, last=seg0)

    def page(room):
        if OPT.get("isl", 1):
            seg["n"] += sum(isize(o.text) for o in ops[seg["last"]:])
            seg["last"] = len(ops)
            if seg["n"] + room > 4088:
                ops.append(Op(island(), "s"))
                seg["n"], seg["last"] = 4, len(ops)
    for i, m in enumerate(mf):
        if not fixed[i - 1]:
            page(160)
        late = [o for o in fixed[i] if o.kind == "wait"]
        ops += [m] + [o for o in fixed[i] if o.kind != "wait"] + late + fixed2[i] + flo[i]
    if OPT["stamp"]:
        ops.append(Op("s_memrealtime s[98:99]\ns_memtime s[86:87]", "s"))

    def dreads(n):
        f, sl = n & 1, dslot(n)
        o = []
        for s in range(2):
            o += [Op(f"ds_read_b128 {ar(F[f][s]['X'][i],4)}, v{aT[sl>>1]} offset:{(sl&1)*32768+(i>>1)*8192+s*4096+(i&1)*1024}", "lds") for i in range(4 if n < N1 else 2)]
            o += [Op(f"ds_read_b128 {ar(F[f][s]['W'][t],4)}, v{aWd[sl>>1]} offset:{(sl&1)*32768+s*8192+t*1024}", "lds") for t in range(4)]
        return o

    def dmf(n, tiles):
        f = n & 1
        return [Op(m16(vr(dacc[t][i], 4), ar(F[f][s]["W"][t], 4), ar(F[f][s]["X"][i], 4), "0" if (n == 0 and s == 0 and i >= 2) else None), "m")
                for t in range(4) for i in (tiles if t % 2 == 0 else tiles[::-1]) for s in range(2)]
    E6 = epi(6, True)
    init = [Op("", "wait", res)]
    for i in range(2):
        for b in range(2):
            for jt in range(2):
                for h in range(2):
                    a, r = dacc[2 * b + jt][i] + 2 * h, RES[i][b] + 2 * jt + h
                    init += [V(f"v_lshlrev_b32 v{a}, 16, v{r}"), V(f"v_and_b32 v{a+1}, 0xffff0000, v{r}")]
    init += [S(f"s_xor_b32 s{dX0}, s{dRes}, {1<<17}"), S(f"s_add_u32 s{dX1}, s{dX0}, {XB+4096}"), S(f"s_add_u32 s{dX0}, s{dX0}, {XB}")]
    page(1150)
    ops += weave(E6 + dreads(0) + init, DW[2] + [x for n in range(3, D + 2) for x in DX[n] + DW[n]], 4)
    snd = []
    for b in range(2):
        for i in range(2):
            o = SND[i][b]
            for jt in range(2):
                a = dacc[2 * b + jt][2 + i]
                snd += [[V(f"v_cvt_pk_bf16_f32 v{o+2*jt}, v{a}, v{a+1}"), V(f"v_cvt_pk_bf16_f32 v{o+2*jt+1}, v{a+2}, v{a+3}")]]
            snd += [[V(f"v_min_u32 v{o+r}, -2, v{o+r}") for r in (0, 1)], [V(f"v_min_u32 v{o+r}, -2, v{o+r}") for r in (2, 3)] +
                    [Op(f"buffer_store_dwordx4 {vr(o,4)}, v{vLin}, s[{SWS}:{SWS+3}], s{[dX0,dX1][b]} offen offset:{1024*i} sc1", "vm")]]
    rcvt = [f"buffer_load_dwordx4 {vr(RCV[i][b],4)}, v{vLin}, s[{SWS}:{SWS+3}], s{[dX0,dX1][b]} offen offset:{1024*i} sc1" for i in range(2) for b in range(2)]
    nb_ = 8 - D - 1
    for n in range(1, NST):
        page(800)
        ops.append(Op("", "wait", vms(DX[n] + DW[n]), bar=True))
        nx = n + D + 1
        ld = DX[nx] + DW[nx] if nx < NST else []
        if n == OPT.get("sigb", 2):
            ld = ld + [[Op("", "wait", vms([E6])), signal(1)]]
        if n == nb_ - 1:
            ld = [[POL[1]]] + ld
        if n == nb_:
            ld = [pcheck(1)] + ld
        if n == N1 + 1:
            ld = ld + [[S(f"s_add_u32 s{dX0}, s{dRes}, {XB}"), S(f"s_add_u32 s{dX1}, s{dRes}, {XB+4096}")]]
        if n == NST - OPT.get("rl", 2):
            ld = ld + [[Op(x, "vm")] for x in rcvt]
        mm = dmf(n - 1, [0, 1, 2, 3]) if n < N1 else (dmf(n - 1, [2, 3]) + dmf(n - 1, [0, 1]) if n == N1 else dmf(n - 1, [0, 1]))
        sl = [[] for _ in mm]
        rd = dreads(n)
        for i, r in enumerate(rd):
            sl[i * (len(mm) * 5 // 8) // len(rd)].append(r)
        for i, g_ in enumerate(ld):
            sl[(i * len(mm)) // len(ld)] += g_
        if n == N1:
            for i, g_ in enumerate(snd):
                sl[16 + i] += g_
        for m, e in zip(mm, sl):
            ops += [m] + e
    ops.append(Op("", "wait", rd))
    page(1200)
    ops += dmf(NST - 1, [0, 1])
    emit_stream(k, ops)
    xstamp(k, 0)
    k(f"s_mov_b32 s{sN}, {1<<20}")
    k.label("L_ffn_chk")
    k("s_waitcnt vmcnt(0)")
    rr = [RCV[i][b] + r for i in range(2) for b in range(2) for r in range(4)]
    k(f"v_max3_u32 v{T0}, v{rr[0]}, v{rr[1]}, v{rr[2]}", f"v_max3_u32 v{T1}, v{rr[3]}, v{rr[4]}, v{rr[5]}")
    for j in range(6, 16, 2):
        t = [T0, T1][(j // 2) & 1]
        k(f"v_max3_u32 v{t}, v{rr[j]}, v{rr[j+1]}, v{t}")
    k(f"v_max_u32 v{T0}, v{T0}, v{T1}", f"v_cmp_eq_u32 vcc, -1, v{T0}", f"s_sub_u32 s{sN}, s{sN}, 1", "s_cbranch_scc1 L_ffn_out",
      "s_cbranch_vccz L_ffn_out", "s_sleep 2", rcvt, "s_branch L_ffn_chk")
    k.label("L_ffn_out")
    k(f"s_mov_b32 s{sN}, 32768")
    U = acc[3][0]
    for i in range(2):
        for b in range(2):
            o = acc[10][2 * i + b]
            for jt in range(2):
                a, q = dacc[2 * b + jt][i], RCV[i][b] + 2 * jt
                k(f"v_lshlrev_b32 v{U}, 16, v{q}", f"v_and_b32 v{U+1}, 0xffff0000, v{q}",
                  f"v_lshlrev_b32 v{U+2}, 16, v{q+1}", f"v_and_b32 v{U+3}, 0xffff0000, v{q+1}",
                  f"v_pk_add_f32 {vr(a,2)}, {vr(a,2)}, {vr(U,2)}", f"v_pk_add_f32 {vr(a+2,2)}, {vr(a+2,2)}, {vr(U+2,2)}",
                  f"v_cvt_pk_bf16_f32 v{o+2*jt}, v{a}, v{a+1}", f"v_cvt_pk_bf16_f32 v{o+2*jt+1}, v{a+2}, v{a+3}")
            k(f"buffer_store_dwordx4 {vr(o,4)}, v{vRow}, s[{SO}:{SO+3}], {['0', f's{sN}'][i]} offen offset:{64*b} sc1")
    tail(k, 1, sW)
    for w in range(2):
        k.label(f"L_ffn_spin{w}")
        k(f"s_mov_b32 s{sN}, {1<<20}")
        k.label(f"L_ffn_spin{w}b")
        k("s_sleep 6", polltxt(w), "s_waitcnt vmcnt(0)", f"v_cmp_ne_u32 vcc, 64, v{vP}", f"s_sub_u32 s{sN}, s{sN}, 1", f"s_cbranch_scc1 L_ffn_go{w}",
          f"s_cbranch_vccnz L_ffn_spin{w}b", f"s_branch L_ffn_go{w}")
    return k


HEADER = open("sequential_preLN__grouped_kv_mqa__glu_gated_glu__prompt.s.ref").read().split("; Override launch")[0]


def k_diag():
    k = Kern("diag_kernel", 1, 64, 0)
    k.vgpr = k.acc = 8
    a, b, m = OPT["da"], OPT["db"], OPT["dm"]
    off = lambda x: STAMP + (x // 10) * 16384 + (x % 10) * 4 + OPT.get("dwg", 0) * 64
    k("s_cmp_ge_u32 s2, 1", "s_cbranch_scc1 L_diag_end", "s_load_dwordx2 s[4:5], s[0:1], 88", "s_waitcnt lgkmcnt(0)",
      f"v_mov_b32 v1, {off(a)}", f"v_mov_b32 v2, {off(b)}", "global_load_dword v3, v1, s[4:5]", "global_load_dword v4, v2, s[4:5]",
      "s_memrealtime s[8:9]", "s_waitcnt vmcnt(0) lgkmcnt(0)", "v_sub_u32 v3, v4, v3", "s_nop 1", "v_readfirstlane_b32 s6, v3", "s_nop 3",
      "s_min_u32 s6, s6, 20000", f"s_mul_i32 s6, s6, {m}")
    k.label("L_diag_loop")
    k("s_memrealtime s[10:11]", "s_waitcnt lgkmcnt(0)", "s_sub_u32 s10, s10, s8", "s_cmp_lt_u32 s10, s6", "s_cbranch_scc1 L_diag_loop")
    k.label("L_diag_end")
    k("s_endpgm")
    return k


def build():
    ks = [k01_attn(), k3_gateup()]
    if "dm" in OPT:
        ks.append(k_diag())
    s = HEADER + "".join(ks[int(c)].launch_line() + "\n" for c in str(OPT.get("seq", "".join(str(i) for i in range(len(ks))))).lstrip("9"))
    s += '.amdgcn_target "amdgcn-amd-amdhsa--gfx950"\n.text\n'
    for i, k in enumerate(ks):
        s += k.text()
        if i == 0:
            s += "L_code_rest:\n"
    s += "L_code_end:\n"
    chain = [n for n, back in ISL if back is None]
    for n, back in ISL:
        if back:
            s = s.replace(f"@ISL{n}@", f"s_branch {back}")
    for i, n in enumerate(chain):
        s = s.replace(f"@ISL{n}@", f"s_branch L_isl{chain[i+4]}" if i + 4 < len(chain) else "s_endpgm")
        s = s.replace(f"@HOP{i}@", f"L_isl{n}")
    s += '.section .rodata,"a"\n' + "".join(k.desc() for k in ks)
    return s


if __name__ == "__main__":
    out = sys.argv[1]
    for a in sys.argv[2:]:
        key, _, val = a.partition("=")
        OPT[key] = int(val) if val else True
    open(out, "w").write(build())
```

```python
import sys, math
sys.path.insert(0, __file__.rsplit("/", 1)[0])
from asmlib import *

MB = 1 << 20
QF, KVF, OF, HF, AF = 0, 4 * MB, 5 * MB, 9 * MB, 13 * MB
WOF, WGU, WDF, CSP, STP, STAMP = 28 * MB, 30 * MB, 44 * MB, 52 * MB, 53 * MB, 60 * MB
XB = 0
XB4 = [HF, XB, 56 * MB, 64 * MB]
FLG = 54 * MB
ST1 = 55 * MB
FL2 = FLG + 65536
WS_SZ = 72 * MB
OOB = 0x40000000
LOG2E = 1.4426950408889634
QSCALE = LOG2E / math.sqrt(32.0)
EPS = 1e-5
OPT = dict(stamp=False, force_slow=False)
A_X, A_WQ, A_WK, A_WV, A_WO, A_WG, A_WU, A_WD, A_OUT, A_WS = 0, 8, 16, 24, 32, 48, 56, 64, 72, 88


def ws_shift(s):
    if OPT.get("wsoff"):
        return [f"s_add_u32 s{s}, s{s}, {OPT['wsoff']*MB}", f"s_addc_u32 s{s+1}, s{s+1}, 0"]
    return []


ISL = []


def island(back=None, jump=True):
    if not OPT.get("isl", 1):
        return None
    n = len(ISL)
    ISL.append((n, back))
    return (f"s_branch L_isl{n}_over\n" if jump else "") + f".p2align 12\nL_isl{n}:\n@ISL{n}@\nL_isl{n}_over:"


def isize(text):
    import re
    t = 0
    for ln in text.split("\n"):
        ln = ln.strip()
        if not ln:
            t += 8
        elif ln.endswith(":") or ln.startswith("."):
            continue
        elif re.match(r"(v_mfma|v_smfmac|ds_|buffer_|global_|s_load|s_mem|v_fma_|v_cvt_pk|v_accvgpr|v_pk_|v_lshl_add|v_bfe|v_max3|v_maximum3|v_mul_lo)", ln):
            t += 8
        else:
            lit = [x for x in re.findall(r"(?<![\w\[:])(0x[0-9a-f]+|\d+)(?![\w\]:])", ln.split(None, 1)[1] if " " in ln else "") if int(x, 0) > 64]
            t += 8 if lit else 4
    return t


def hop(k, sw):
    if OPT.get("isl", 1) and not OPT.get("nohop"):
        for w in range(3):
            k(f"s_cmp_eq_u32 s{sw}, {w}", f"s_cbranch_scc1 @HOP{w}@")
        k("s_branch @HOP3@")
    else:
        k("s_endpgm")


def srd_tail(s, size):
    return [f"s_mov_b32 s{s+2}, {size}", f"s_mov_b32 s{s+3}, 0x00020000"]


def srd_from(s, base, off, size):
    return [f"s_add_u32 s{s}, s{base}, {off}", f"s_addc_u32 s{s+1}, s{base+1}, 0"] + srd_tail(s, size)


def head(k, pad=False):
    if pad and OPT.get("isl", 1) and OPT.get("epad", 1):
        n = len(ISL)
        ISL.append((n, None))
        k("s_cmp_lt_u32 s2, 256", f"s_cbranch_scc1 L_isl{n}_over", "s_endpgm", f"L_isl{n}:", f"@ISL{n}@", f"L_isl{n}_over:")
    else:
        k("s_cmp_ge_u32 s2, 256", f"s_cbranch_scc1 L_end_{k.name}")
    if OPT["stamp"]:
        k("s_memrealtime s[92:93]", "s_load_dwordx2 s[90:91], s[0:1], 88", "s_mov_b32 s89, s2")


def mid_stamp(k, i):
    if OPT["stamp"] and i < 2:
        k(f"s_memrealtime s[{96+2*i}:{97+2*i}]", f"s_memtime s[{84+2*i}:{85+2*i}]")
    elif OPT["stamp"]:
        k("s_memrealtime s[100:101]", "s_waitcnt lgkmcnt(0)", f"s_mov_b32 s{[93,88,3][i-2]}, s100")


def hstamp(k, lane):
    if OPT.get("hprof"):
        k("s_memrealtime s[84:85]", "s_waitcnt lgkmcnt(0)", f"v_writelane_b32 v200, s84, {lane}")


def xstamp(k, n):
    sel = str(OPT.get("xs", 378)).zfill(3)
    if str(n) in sel:
        mid_stamp(k, 2 + sel.index(str(n)))


def tail(k, kidx, swave):
    if OPT["stamp"]:
        k("s_waitcnt vmcnt(0)", "s_memrealtime s[94:95]", "s_waitcnt lgkmcnt(0)",
          ["s_getreg_b32 s96, hwreg(HW_REG_XCC_ID)", "s_and_b32 s96, s96, 15", "s_add_u32 s96, s96, 1", "s_mul_i32 s96, s96, 500", "s_add_u32 s96, s96, s92"] if OPT.get("xcc") else None,
          "v_mov_b32 v0, s92", "v_mov_b32 v1, s96", "v_mov_b32 v2, s98", "v_mov_b32 v3, s94",
          "s_lshl_b32 s89, s89, 2", f"s_add_u32 s89, s89, s{swave}", "s_lshl_b32 s89, s89, 4",
          f"s_add_u32 s89, s89, {STAMP + kidx*16384}", "v_mov_b32 v4, s89",
          "global_store_dwordx4 v4, v[0:3], s[90:91]",
          "s_sub_u32 s86, s86, s84", "v_mov_b32 v8, s86", "v_mov_b32 v9, s93", "v_mov_b32 v10, s88", "v_mov_b32 v11, s3",
          "v_add_u32 v4, 0x100000, v4", "global_store_dwordx4 v4, v[8:11], s[90:91]")
    k.label(f"L_end_{k.name}")
    k("s_endpgm")


def ids_8x4(k, s_a, s_b, tmp):
    k(f"s_lshr_b32 s{tmp}, s2, 3",
      f"s_and_b32 s{s_a}, s{tmp}, 3",
      f"s_lshr_b32 s{s_b}, s{tmp}, 2",
      f"s_and_b32 s{tmp}, s2, 1",
      f"s_lshl_b32 s{tmp}, s{tmp}, 2",
      f"s_add_u32 s{s_a}, s{s_a}, s{tmp}",
      f"s_and_b32 s{tmp}, s2, 6",
      f"s_lshl_b32 s{tmp}, s{tmp}, 2",
      f"s_add_u32 s{s_b}, s{s_b}, s{tmp}")


def code_prefetch(k, vtmp, vdst, stmp, start, nkb_per_wg=1):
    k(f"s_getpc_b64 s[{stmp}:{stmp+1}]")
    lab = f"L_pc_{k.name}_{start}"
    k.label(lab)
    k(f"s_add_u32 s{stmp}, s{stmp}, {start}-{lab}",
      f"s_addc_u32 s{stmp+1}, s{stmp+1}, 0",
      f"global_load_dwordx4 {vr(vdst,4)}, v{vtmp}, s[{stmp}:{stmp+1}]" if not OPT.get("nopf") else None)


def k01_attn():
    D = 2
    STG, NS = 24576, D + 2
    EA = STG * NS
    SLOT, KVB, JB, TBL = 32768, 65536, 16384, 0
    k = Kern("attn_kernel", 256, 512, 163840)
    SX, SWQ, SE, SWS, SKV, SJ = 4, 8, 12, 16, 72, 76
    (sW, sTB, sHG, sC, sT, sT2, sRd, sWr, sKo, sJo, sJa, sJb, sGW, sStr, sDstep, sOo) = range(32, 48)
    sN, sX, sWo, sTH, sCH, sBW, sOo1, sFl, sKV = 48, 49, 54, 55, 56, 57, 65, 80, 81
    sD = [50, 51, 52, 53]
    sCs = [58, 59, 60, 61]
    sDB, sBsz, sWrJ = 62, 63, 64
    SDBG = 30
    v = Alloc(1)
    L, G, R, CQ, TOK, T0, T1, T2, vLin, vRd, IDX = [v() for _ in range(11)]
    h = Alloc(v.n)
    Q = [v(8, 4) for _ in range(2)]
    O = [v(16, 4) for _ in range(2)]
    LS = [v(4, 4) for _ in range(2)]
    acc = [[v(4, 4) for i in range(2)] for t in range(4)]
    cs = [v(4, 4) for _ in range(2)]
    sx, sxx = v(4, 4), v(4, 4)
    z1 = v.n
    SUMA, ONES = v(4, 4), v(4, 4)
    bX = [[v() for i in range(2)] for s in range(2)]
    bW = [v() for _ in range(4)]
    aX = [[v() for i in range(2)] for s in range(2)]
    aW = [v() for _ in range(4)]
    F0 = v(96, 4)
    F = [[dict(X=[F0 + 48 * f + 24 * s + 4 * i for i in range(2)], W=[F0 + 48 * f + 24 * s + 8 + 4 * t for t in range(4)]) for s in range(2)] for f in range(2)]
    S = [F0 + 16 * i for i in range(4)]
    KB = [F0 + 64 + 8 * i for i in range(2)]
    VB = [F0 + 80 + 8 * i for i in range(2)]
    XK = [F0 + 4 * j for j in range(8)]
    EK = [[F0 + 32 + 8 * j + 4 * t for t in range(2)] for j in range(8)]
    accE, csE = [Q[0], Q[0] + 4], [Q[1], Q[1] + 4]
    sxE, sxxE = v(4, 4), v(4, 4)
    vXk, vE, aE0, aE1, aP, aS, aG0, aG1, vKo, PF, vHo, vRow = [v() for _ in range(12)]
    RES = [[cs[0], cs[1]], [sx, sxx]]
    XR = 131072
    sFg, sRx, sH0, sH1, sS1 = 58, 59, 60, 61, 62
    k.vgpr = k.acc = 256
    vX, vX2 = h(), h()
    vW = [h() for _ in range(4)]
    vJ, vJB, vCs, vPo = h(), h(), h(), h()
    aJ = [h() for _ in range(4)]
    bJ = [h() for _ in range(2)]
    JF = [h(4, 4) for _ in range(4)]
    CS = [h(4, 4) for _ in range(4)]
    PF4 = h(4, 4)
    head(k)
    k(f"s_load_dwordx2 s[{SX}:{SX+1}], s[0:1], {A_X}",
      f"s_load_dwordx2 s[{SWQ}:{SWQ+1}], s[0:1], {A_WQ}",
      f"s_load_dwordx4 s[24:27], s[0:1], {A_WK}",
      f"s_load_dwordx2 s[{SWS}:{SWS+1}], s[0:1], {A_WS}",
      f"s_load_dwordx2 s[{SDBG}:{SDBG+1}], s[0:1], 80")
    k(f"s_lshl_b32 s{sT}, s2, 7", f"s_and_b32 s{sT}, s{sT}, 0x7c00", f"v_lshl_add_u32 v{T0}, v0, 1, s{sT}", f"v_and_b32 v{T0}, -4, v{T0}", "s_getpc_b64 s[20:21]", f"global_load_dword v{PF}, v{T0}, s[20:21]" if not OPT.get("nopf") else None)
    k(f"v_lshrrev_b32 v{T1}, 6, v0", f"v_and_b32 v{L}, 63, v0", f"v_readfirstlane_b32 s{sW}, v{T1}")
    ids_8x4(k, sHG, sTB, sT)
    k(f"v_lshrrev_b32 v{G}, 4, v{L}", f"v_and_b32 v{TOK}, 15, v{L}", f"v_lshlrev_b32 v{vLin}, 4, v{L}")
    k(f"s_and_b32 s{sTH}, s{sW}, 1", f"s_bfe_u32 s{sCH}, s{sW}, 0x10001",
      f"s_cmp_ge_u32 s{sW}, 4", "s_cbranch_scc1 L_f_help")
    k(f"s_and_b32 s{sT}, s{sHG}, 3", f"s_lshl_b32 s{sT2}, s{sTB}, 2", f"s_add_u32 s{sT}, s{sT}, s{sT2}", f"s_lshl_b32 s{sT}, s{sT}, 15",
      f"s_lshl_b32 s{sT2}, s{sW}, 9", f"s_add_u32 s{sT}, s{sT}, s{sT2}",
      f"v_lshlrev_b32 v{T0}, 11, v{TOK}", f"v_lshl_add_u32 v{T0}, v{G}, 4, v{T0}", f"v_add_u32 v{vXk}, s{sT}, v{T0}",
      f"v_and_b32 v{T0}, 32, v{L}", f"v_xor_b32 v{T0}, v{T0}, v{vLin}",
      f"s_lshl_b32 s{sWr}, s{sW}, 14", f"v_add_u32 v{vE}, s{sWr}, v{T0}",
      f"s_lshr_b32 s{sT}, s2, 3", f"s_lshl_b32 s{sT}, s{sT}, 11", f"v_lshlrev_b32 v{T0}, 3, v0",
      f"s_bitcmp1_b32 s{sHG}, 2", "s_waitcnt lgkmcnt(0)",
      f"s_cselect_b32 s{SE}, s26, s24", f"s_cselect_b32 s{SE+1}, s27, s25", srd_tail(SE, 0x10000), srd_tail(SX, 4 * MB))
    xstamp(k, 0)
    k(f"buffer_load_dword v{PF}, v{T0}, s[{SE}:{SE+3}], s{sT} offen")
    for j in range(8):
        k(f"buffer_load_dwordx4 {vr(XK[j],4)}, v{vXk}, s[{SX}:{SX+3}], 0 offen offset:{64*j}")

    def kv_ld(gi):
        k(f"s_add_u32 m0, s{sWr}, {EA+4096*gi}", f"s_mov_b32 s{sWo}, {4096*gi}")
        for i in range(4):
            k(f"buffer_load_dwordx4 v{vE}, s[{SE}:{SE+3}], s{sWo} offen offset:{1024*i} lds")
    k("s_branch L_f_comp")
    k.label("L_f_help")
    k(f"s_and_b32 s{sW}, s{sW}, 3")
    if OPT.get("wqpf", 1):
        k(f"v_and_b32 v{T0}, 255, v0", f"v_lshlrev_b32 v{T0}, 5, v{T0}", f"s_lshl_b32 s{sT}, s2, 13", "s_waitcnt lgkmcnt(0)", srd_tail(SWQ, 2 * MB),
          f"buffer_load_dword v{PF4}, v{T0}, s[{SWQ}:{SWQ+3}], s{sT} offen")
    k(f"v_lshrrev_b32 v{T0}, 3, v{L}",
      f"s_lshl_b32 s{sT}, s{sTH}, 2",
      f"v_add_u32 v{T1}, s{sT}, v{G}",
      f"v_and_b32 v{T2}, 7, v{L}",
      f"v_xor_b32 v{T1}, v{T1}, v{T2}",
      f"s_lshl_b32 s{sT}, s{sTB}, 6",
      f"s_lshl_b32 s{sT2}, s{sW}, 3",
      f"s_add_u32 s{sT}, s{sT}, s{sT2}",
      f"v_add_u32 v{T0}, s{sT}, v{T0}",
      f"v_lshlrev_b32 v{T0}, 11, v{T0}",
      f"v_lshl_add_u32 v{vX}, v{T1}, 4, v{T0}",
      f"v_add_u32 v{vX2}, 0x10000, v{vX}")
    k(f"v_lshlrev_b32 v{T1}, 1, v{G}",
      f"v_xor_b32 v{T1}, v{T1}, v{TOK}",
      f"s_lshl_b32 s{sT}, s{sTH}, 3",
      f"v_xor_b32 v{T1}, s{sT}, v{T1}",
      f"s_lshl_b32 s{sBW}, s{sTH}, 1",
      f"s_add_u32 s{sBW}, s{sBW}, s{sCH}",
      f"s_lshl_b32 s{sT}, s{sBW}, 13",
      f"s_lshl_b32 s{sT2}, s{sHG}, 8",
      f"s_add_u32 s{sT}, s{sT}, s{sT2}",
      f"v_lshlrev_b32 v{T0}, 11, v{G}",
      f"v_add_u32 v{T0}, s{sT}, v{T0}",
      f"v_lshl_add_u32 v{vW[0]}, v{T1}, 4, v{T0}")
    for i in range(1, 4):
        k(f"v_add_u32 v{vW[i]}, {32768*i}, v{vW[0]}")
    k(f"s_sub_u32 s{sBW}, s{sBW}, s{sW}", f"s_lshl_b32 s{sBW}, s{sBW}, 10", f"s_add_u32 s{sBW}, s{sBW}, 8192",
      f"s_lshl_b32 s{sWr}, s{sW}, 10", f"s_mov_b32 s{sN}, 12")
    k(f"s_and_b32 s{sT}, s{sTB}, {7 if OPT.get('rot', 0) else 0}",
      f"s_lshl_b32 s{sX}, s{sT}, 8", f"s_lshl_b32 s{sWo}, s{sT}, 18")
    k("s_waitcnt lgkmcnt(0)", srd_tail(SX, 4 * MB), srd_tail(SWQ, 2 * MB))
    k(f"s_load_dwordx2 s[20:21], s[0:1], {A_WO}", f"s_load_dwordx4 s[24:27], s[0:1], {A_WG}", f"s_load_dwordx2 s[28:29], s[0:1], {A_WD}")
    def q_x(slot):
        k(f"s_add_u32 m0, s{sWr}, {slot}", "s_nop 0", f"buffer_load_dwordx4 v{vX}, s[{SX}:{SX+3}], s{sX} offen lds",
          f"s_add_u32 m0, s{sWr}, {slot+4096}", "s_nop 0", f"buffer_load_dwordx4 v{vX2}, s[{SX}:{SX+3}], s{sX} offen lds",
          f"s_add_u32 s{sX}, s{sX}, 128", f"s_and_b32 s{sX}, s{sX}, 2047")

    def q_w(slot):
        k(f"s_add_u32 s{sT}, s{sWr}, s{sBW}")
        for i in range(4):
            k(f"s_add_u32 m0, s{sT}, {slot+4096*i}", "s_nop 0", f"buffer_load_dwordx4 v{vW[i]}, s[{SWQ}:{SWQ+3}], s{sWo} offen lds")
        k(f"s_add_u32 s{sWo}, s{sWo}, 0x20000", f"s_and_b32 s{sWo}, s{sWo}, 0x1fffff")

    def q_stage():
        q_x(0); q_w(0)
        k(f"s_add_u32 s{sWr}, s{sWr}, {STG}", f"s_cmp_ge_u32 s{sWr}, {EA}", f"s_cselect_b32 s{sT}, {EA}, 0",
          f"s_sub_u32 s{sWr}, s{sWr}, s{sT}", f"s_sub_u32 s{sN}, s{sN}, 1")
    k("s_branch L_f_setup")
    k.label("L_f_comp")
    k(f"v_bfe_u32 v{R}, v{L}, 2, 2", f"v_and_b32 v{CQ}, 3, v{L}", f"v_and_b32 v{T2}, 1, v{G}",
      f"s_lshl_b32 s{sT}, s{sW}, 14", f"s_add_u32 s{sT}, s{sT}, {EA}",
      f"v_lshlrev_b32 v{T0}, 5, v{T2}", f"v_lshl_add_u32 v{T0}, v{CQ}, 3, v{T0}",
      f"v_lshl_add_u32 v{T0}, v{R}, 6, v{T0}", f"v_lshl_add_u32 v{T0}, v{G}, 9, v{T0}",
      f"v_add_u32 v{aE0}, s{sT}, v{T0}", f"v_xor_b32 v{aE1}, 32, v{aE0}")
    for i in range(4):
        k(f"v_mov_b32 v{ONES+i}, 0x3f803f80")
    k(ws_shift(SWS), srd_tail(SWS, WS_SZ), srd_from(SKV, SWS, KVF, 262144))
    k(f"s_lshl_b32 s{sT}, s{sCH}, 10", f"s_lshl_b32 s{sT2}, s{sTH}, 3", f"s_add_u32 s{sT}, s{sT}, s{sT2}", f"s_add_u32 s{sT}, s{sT}, {EA}",
      f"v_add_u32 v{aP}, s{sT}, v{vLin}", f"v_lshlrev_b32 v{aS}, 3, v{TOK}", f"v_add_u32 v{aS}, {EA+4096}, v{aS}")
    k(f"s_bfe_u32 s{sT}, s{sHG}, 0x10001", f"s_lshl_b32 s{sKV}, s{sTB}, 1", f"s_add_u32 s{sKV}, s{sKV}, s{sT}", f"s_lshl_b32 s{sKV}, s{sKV}, 12",
      f"s_and_b32 s{sT2}, s{sHG}, 1", f"s_bitcmp1_b32 s{sHG}, 2", "s_cbranch_scc1 L_f_av")
    k(f"s_lshl_b32 s{sT2}, s{sT2}, 8", f"s_add_u32 s{sKV}, s{sKV}, s{sT2}",
      f"s_lshl_b32 s{sT}, s{sW}, 2", f"s_add_u32 s{sT}, s{sT}, {EA+8192}", f"v_add_u32 v{aG0}, s{sT}, v{vLin}", f"v_add_u32 v{aG1}, 2, v{aG0}",
      f"v_lshlrev_b32 v{T0}, 10, v{T2}", f"v_lshrrev_b32 v{T1}, 1, v{G}", f"v_lshl_add_u32 v{T0}, v{T1}, 9, v{T0}", f"v_lshl_add_u32 v{vKo}, v{TOK}, 4, v{T0}",
      "s_branch L_f_ax")
    k.label("L_f_av")
    k(f"s_lshl_b32 s{sT2}, s{sT2}, 10", f"s_add_u32 s{sKV}, s{sKV}, s{sT2}", f"s_add_u32 s{sKV}, s{sKV}, 2048",
      f"v_lshlrev_b32 v{T0}, 7, v{T2}", f"v_lshrrev_b32 v{T1}, 1, v{G}", f"v_lshl_add_u32 v{T0}, v{T1}, 6, v{T0}",
      f"v_bfe_u32 v{T1}, v{L}, 3, 1", f"v_lshl_add_u32 v{T0}, v{T1}, 9, v{T0}", f"v_and_b32 v{T1}, 7, v{L}", f"v_lshl_add_u32 v{T0}, v{T1}, 1, v{T0}",
      f"s_lshl_b32 s{sT}, s{sCH}, 8", f"s_lshl_b32 s{sT2}, s{sTH}, 5", f"s_add_u32 s{sT}, s{sT}, s{sT2}", f"s_add_u32 s{sT}, s{sT}, {EA+8192}",
      f"v_add_u32 v{aG0}, s{sT}, v{T0}", f"v_add_u32 v{aG1}, 16, v{aG0}", f"v_mov_b32 v{vKo}, v{vLin}")
    k.label("L_f_ax")
    k(f"v_lshrrev_b32 v{T0}, 1, v{TOK}", f"v_xor_b32 v{T0}, v{T0}, v{G}", f"v_lshlrev_b32 v{T0}, 4, v{T0}",
      f"v_lshl_add_u32 v{T0}, v{TOK}, 7, v{T0}",
      f"s_lshl_b32 s{sT}, s{sTH}, 1", f"s_add_u32 s{sT}, s{sT}, s{sCH}", f"s_lshl_b32 s{sT}, s{sT}, 11",
      f"v_add_u32 v{bX[0][0]}, s{sT}, v{T0}",
      f"v_xor_b32 v{bX[0][1]}, 2048, v{bX[0][0]}",
      f"v_xor_b32 v{bX[1][0]}, 64, v{bX[0][0]}",
      f"v_xor_b32 v{bX[1][1]}, 64, v{bX[0][1]}")
    k(f"v_lshlrev_b32 v{T0}, 2, v{T2}", f"v_xor_b32 v{T0}, v{T0}, v{R}",
      f"s_lshl_b32 s{sT}, s{sCH}, 2", f"s_lshl_b32 s{sT2}, s{sTH}, 1", f"s_add_u32 s{sT}, s{sT}, s{sT2}",
      f"v_xor_b32 v{T0}, s{sT}, v{T0}",
      f"v_lshlrev_b32 v{T0}, 5, v{T0}",
      f"v_lshl_add_u32 v{T0}, v{CQ}, 3, v{T0}",
      f"v_lshl_add_u32 v{T0}, v{R}, 8, v{T0}",
      f"v_lshl_add_u32 v{T0}, v{G}, 11, v{T0}",
      f"v_add_u32 v{bW[0]}, 8192, v{T0}")
    for t in range(1, 4):
        k(f"v_xor_b32 v{bW[t]}, {32*t}, v{bW[0]}")
    bases = [(aX[s][i], bX[s][i]) for s in range(2) for i in range(2)] + list(zip(aW, bW))
    for a, b in bases:
        k(f"v_mov_b32 v{a}, v{b}")
    for i in range(O[0], z1, 2):
        k(f"v_mov_b64 {vr(i,2)}, 0")
    k(f"v_and_b32 v{T0}, 7, v{L}", f"v_cmp_eq_u32 vcc, 0, v{T0}", f"v_mov_b32 v{IDX}, 0xdddd", f"v_add_u32 v{vRd}, {KVB+SLOT}, v{vLin}",
      f"v_cndmask_b32 v{SUMA}, 0, v{ONES}, vcc", f"v_cndmask_b32 v{SUMA+1}, 0, v{ONES}, vcc",
      f"v_cmp_eq_u32 vcc, 4, v{T0}", f"v_and_b32 v{T0}, 1, v{TOK}", f"v_and_b32 v{T1}, 2, v{TOK}",
      f"v_cndmask_b32 v{SUMA+2}, 0, v{ONES}, vcc", f"v_cndmask_b32 v{SUMA+3}, 0, v{ONES}, vcc",
      f"v_cmp_eq_u32 s[66:67], 1, v{T0}", f"v_cmp_eq_u32 s[68:69], 2, v{T1}", f"v_cmp_eq_u32 s[82:83], v{R}, v{G}")
    k(f"s_lshl_b32 s{sFg}, s{sTB}, 9", f"s_add_u32 s{sFg}, s{sFg}, {FLG}")
    k(f"s_lshr_b32 s{sS1}, s{sHG}, 2", f"s_lshl_b32 s{sS1}, s{sS1}, 5", f"s_add_u32 s{sS1}, s{sS1}, s{sTB}", f"s_lshl_b32 s{sS1}, s{sS1}, 9",
      f"s_add_u32 s{sS1}, s{sS1}, {ST1}")
    k(f"v_lshrrev_b32 v{T0}, 1, v{G}", f"v_lshl_add_u32 v{T0}, v{T2}, 1, v{T0}", f"v_lshlrev_b32 v{T1}, 4, v{TOK}", f"v_lshl_add_u32 v{vHo}, v{T0}, 8, v{T1}",
      f"v_lshlrev_b32 v{T1}, 11, v{TOK}", f"v_lshl_add_u32 v{T0}, v{T0}, 4, v{T1}",
      f"s_lshl_b32 s{sT}, s{sTB}, 1", f"s_add_u32 s{sT}, s{sT}, s{sTH}", f"s_lshl_b32 s{sT}, s{sT}, 16",
      f"s_lshl_b32 s{sT2}, s{sHG}, 2", f"s_add_u32 s{sT2}, s{sT2}, s{sW}", f"s_lshl_b32 s{sT2}, s{sT2}, 6", f"s_add_u32 s{sT}, s{sT}, s{sT2}",
      f"v_add_u32 v{vRow}, s{sT}, v{T0}")
    k(f"s_mov_b32 s{sRd}, 0", f"s_mov_b32 s{sN}, 7", f"s_cmp_eq_u32 s{sW}, 0", f"s_cselect_b32 s{sFl}, 7, -1")
    xstamp(k, 1)

    def diag(dst, src):
        return [f"v_cndmask_b32 v{T0}, v{src}, v{src+1}, s[66:67]", f"v_cndmask_b32 v{T1}, v{src+2}, v{src+3}, s[66:67]",
                f"v_cndmask_b32 v{dst}, v{T0}, v{T1}, s[68:69]"]

    def kv_mf(gi):
        o = []
        for j in (2 * gi, 2 * gi + 1):
            c = "0" if j == 0 else None
            for t in range(2):
                o += [m16(vr(accE[t], 4), vr(EK[j][t], 4), vr(XK[j], 4), c), m16(vr(csE[t], 4), vr(EK[j][t], 4), vr(ONES, 4), c)]
        return o
    kv_rd = lambda gi: [f"ds_read_b64_tr_b16 {vr(EK[j][t]+2*jj,2)}, v{[aE0,aE1][t]} offset:{j*2048+jj*256}"
                        for j in (2 * gi, 2 * gi + 1) for t in range(2) for jj in range(2)]
    kv_ld(0); kv_ld(1)
    k("s_waitcnt vmcnt(8)")
    xstamp(k, 2)
    for j in range(8):
        k(m16(vr(sxxE, 4), vr(XK[j], 4), vr(XK[j], 4), "0" if j == 0 else None), m16(vr(sxE, 4), vr(ONES, 4), vr(XK[j], 4), "0" if j == 0 else None))
    kv_ld(2)
    k("s_waitcnt vmcnt(8)", kv_rd(0))
    kv_ld(3)
    xstamp(k, 3)
    k("s_barrier")
    k(f"s_add_u32 s{sT}, s{sWr}, {EA}", f"v_add_u32 v{vE}, s{sT}, v{vLin}", f"v_lshl_add_u32 v{vXk}, v{TOK}, 3, s{sT}")
    k(diag(sxE + 1, sxxE))
    for gi in range(1, 4):
        k(f"s_waitcnt vmcnt({12-4*gi}) lgkmcnt(0)", weave(kv_mf(gi - 1), kv_rd(gi), 0, 5))
    xstamp(k, 4)
    k("s_waitcnt lgkmcnt(0)", kv_mf(3), "s_mov_b64 exec, s[82:83]", f"ds_write_b64 v{vXk}, {vr(sxE,2)} offset:4096", "s_mov_b64 exec, -1", "s_nop 3")
    for i, r in enumerate(accE + csE):
        k(f"ds_write_b128 v{vE}, {vr(r,4)} offset:{1024*i}")
    k("s_waitcnt lgkmcnt(0)")
    xstamp(k, 5)
    k(island(back="L_f_back"))
    U = F0 + 48

    def sum4(r):
        return [f"v_add_f32 v{r+e}, v{r+e}, v{r+2+e}" for e in range(2)] + [f"v_add_f32 v{r+4+e}, v{r+4+e}, v{r+6+e}" for e in range(2)] + \
               [f"v_add_f32 v{r+e}, v{r+e}, v{r+4+e}" for e in range(2)]

    def stats(s, scale):
        return [f"v_mul_f32 v{s}, {f32(-1/1024)}, v{s}", f"v_mul_f32 v{s+1}, {f32(1/1024)}, v{s+1}",
                f"v_fma_f32 v{s+1}, -v{s}, v{s}, v{s+1}", f"v_max_f32 v{s+1}, 0, v{s+1}", f"v_add_f32 v{s+1}, {f32(EPS)}, v{s+1}",
                f"v_rsq_f32 v{s+2}, v{s+1}", "s_nop 0", f"v_mul_f32 v{s+2}, {f32(scale)}, v{s+2}" if scale != 1 else None,
                f"v_mul_f32 v{s+1}, v{s}, v{s+2}", f"v_mov_b32 v{s}, v{s+2}"]
    def reads(fi):
        o = []
        for s in range(2):
            f = F[fi][s]
            o += [f"ds_read_b128 {vr(f['X'][i],4)}, v{aX[s][i]}" for i in range(2)]
            for t in range(4):
                for j in range(2):
                    o.append(f"ds_read_b64_tr_b16 {vr(f['W'][t]+2*j,2)}, v{aW[t]} offset:{s*8192+j*1024}")
        return o

    def mfmas(fi):
        X = lambda s, i: vr(F[fi][s]["X"][i], 4)
        W = lambda s, t: vr(F[fi][s]["W"][t], 4)
        On = vr(ONES, 4)
        o = []
        for t in range(4):
            if t < 2:
                o += [m16(vr(cs[t], 4), W(s, t), On) for s in range(2)]
            o += [m16(vr(acc[t][i], 4), W(s, t), X(s, i)) for i in range(2) for s in range(2)]
        return o
    va = [f"v_add_u32 v{a}, s{sRd}, v{b}" for a, b in bases]
    adv = [[f"s_add_u32 s{sRd}, s{sRd}, {STG}", f"s_cmp_eq_u32 s{sRd}, {EA}"], [f"s_cselect_b32 s{sRd}, 0, s{sRd}"]] + \
          [va[i:i + 2] for i in range(0, len(va), 2)]
    k("s_barrier")
    xstamp(k, 7)
    if OPT.get('qcyc'):
        mid_stamp(k, 0)
    for w in range(4):
        k(f"ds_read_b64 {vr(U+2*w,2)}, v{aS} offset:{16384*w}")
    for w in range(4):
        k(f"ds_read_b64 {vr(U+8+2*w,2)}, v{aP} offset:{16384*w}", f"ds_read_b64 {vr(U+16+2*w,2)}, v{aP} offset:{16384*w+2048}")
    r0 = reads(0)
    k(r0[:3], "s_waitcnt lgkmcnt(11)", weave(sum4(U) + [x for x in stats(U, 1) if x], r0[3:12], 0, 12), "s_waitcnt lgkmcnt(12)",
      weave(sum4(U + 8) + sum4(U + 16), r0[12:]))
    for e in range(2):
        k(f"v_mul_f32 v{U+8+e}, v{U}, v{U+8+e}", f"v_fmac_f32 v{U+8+e}, v{U+1}, v{U+16+e}")
    k(f"v_cvt_pk_bf16_f32 v{U+8}, v{U+8}, v{U+9}", f"ds_write_b16 v{aG0}, v{U+8}", f"ds_write_b16_d16_hi v{aG1}, v{U+8}",
      f"v_mov_b64 {vr(sxxE,2)}, {vr(U,2)}")
    k(adv, f"s_lshl_b32 s{sT}, s{sTH}, 1", f"s_add_u32 s{sT}, s{sT}, s{sCH}", f"s_lshl_b32 s{sT}, s{sT}, 7",
      f"v_lshl_add_u32 v{aP}, v{TOK}, 3, s{sT}", f"v_xor_b32 v{aS}, 128, v{aP}", "s_waitcnt lgkmcnt(0)")
    k.label("L_f_qloop")
    for f in range(2):
        k("s_barrier")
        m = weave(mfmas(f), reads(1 - f), 0, 11)
        if f == 0:
            k(weave(m, adv + [[f"s_cmp_eq_u32 s{sN}, s{sFl}"]], len(m) - 8, len(m) - 1))
            k("s_cbranch_scc1 L_f_flag")
            k.label("L_f_flagged")
        else:
            k(weave(m, adv + [[f"s_sub_u32 s{sN}, s{sN}, 1", f"s_cmp_lg_u32 s{sN}, 0"]], len(m) - 8, len(m) - 1))
        k("s_waitcnt lgkmcnt(0)")
    k("s_cbranch_scc1 L_f_qloop")
    k("s_barrier")
    ST = [sx, sxx]
    c2, c3 = S[0] + 8, S[0] + 12
    k(f"buffer_load_dwordx2 {vr(ST[0],2)}, v{aP}, s[{SWS}:{SWS+3}], s{sS1} offen sc1",
      f"buffer_load_dwordx2 {vr(ST[1],2)}, v{aS}, s[{SWS}:{SWS+3}], s{sS1} offen sc1")
    pre = [[f"s_lshl_b32 s{sT}, s{sCH}, 2", f"s_lshl_b32 s{sT2}, s{sTH}, 1"], [f"s_add_u32 s{sT}, s{sT}, s{sT2}", f"s_lshl_b32 s{sT}, s{sT}, 6"],
           [f"v_lshl_add_u32 v{T1}, v{G}, 4, s{sT}"]]
    m = weave(mfmas(0), reads(1), 0, 11)
    k(weave(m, pre, len(m) - 8, len(m) - 1), "s_waitcnt lgkmcnt(0)")
    m = mfmas(1)
    k(m[:16], f"ds_write_b128 v{T1}, {vr(cs[0],4)} offset:{TBL+512}", m[16], f"ds_write_b128 v{T1}, {vr(cs[1],4)} offset:{TBL+576}", m[17:])
    xstamp(k, 8)
    if OPT.get('qcyc'):
        mid_stamp(k, 1)
    k(f"v_xor_b32 v{T1}, 128, v{T1}", "s_waitcnt lgkmcnt(0)", "s_barrier")
    k(f"ds_read_b128 {vr(c2,4)}, v{T1} offset:{TBL+512}", f"ds_read_b128 {vr(c3,4)}, v{T1} offset:{TBL+576}")
    for r0, n in ((S[3], 16), (VB[1], 8)):
        for i in range(0, n, 2):
            k(f"v_mov_b64 {vr(r0+i,2)}, 0")
    k(f"s_lshl_b32 s{sT}, s{sTB}, 3", f"s_add_u32 s{sT}, s{sT}, s{sHG}", f"s_lshl_b32 s{sT}, s{sT}, 1", f"s_add_u32 s{sT}, s{sT}, s{sCH}",
      f"s_lshl_b32 s{sT}, s{sT}, 13", f"s_mul_i32 s{sT2}, s{sTH}, 6144", f"s_add_u32 s{sT}, s{sT}, s{sT2}",
      f"s_add_u32 s{sOo}, s{sT}, {OF}", f"s_xor_b32 s{sOo1}, s{sOo}, 4096",
      f"s_mov_b32 s{sRd}, {KVB+SLOT}", f"s_mov_b32 s{sC}, 8")
    k("s_waitcnt vmcnt(0) lgkmcnt(0)")
    for i in range(2):
        k(f"v_mul_f32 v{ST[i]}, {f32(QSCALE)}, v{ST[i]}", f"v_mul_f32 v{ST[i]+1}, {f32(QSCALE)}, v{ST[i]+1}")
    csr = [cs[0], cs[1], c2, c3]
    for p in range(2):
        for i in range(2):
            o = Q[p] + 4 * i
            for jt in range(2):
                t = 2 * p + jt
                a = acc[t][i]
                for hh in (0, 2):
                    k(f"v_pk_mul_f32 {vr(a+hh,2)}, {vr(a+hh,2)}, {vr(ST[i],2)} op_sel_hi:[1,0]")
                for hh in (0, 2):
                    k(f"v_pk_fma_f32 {vr(a+hh,2)}, {vr(csr[t]+hh,2)}, {vr(ST[i],2)}, {vr(a+hh,2)} op_sel:[0,1,0] op_sel_hi:[1,1,1]")
                k(f"v_cvt_pk_bf16_f32 v{o+2*jt}, v{a}, v{a+1}", f"v_cvt_pk_bf16_f32 v{o+2*jt+1}, v{a+2}, v{a+3}")
    for p in range(2):
        for r in range(4):
            k(f"v_permlane16_swap_b32 v{Q[p]+r}, v{Q[p]+4+r}")
    k("s_branch L_f_att")
    k.label("L_f_flag")
    k(f"s_cmp_lg_u32 s{sFl}, 7", "s_cbranch_scc1 L_f_flag2")
    k(f"ds_read_b128 {vr(sxE,4)}, v{vE} offset:8192", f"v_lshlrev_b32 v{T0}, 3, v{L}",
      f"s_cmp_eq_u32 s{sHG}, 0", f"s_cselect_b32 s{sT}, s{sFg}, {OOB}",
      f"buffer_store_dwordx2 {vr(O[0],2)}, v{T0}, s[{SWS}:{SWS+3}], s{sT} offen sc1",
      f"s_and_b32 s{sT}, s{sHG}, 3", f"s_lshl_b32 s{sT}, s{sT}, 7", f"s_add_u32 s{sT}, s{sT}, s{sS1}", "s_mov_b64 exec, 0xffff",
      f"buffer_store_dwordx2 {vr(sxxE,2)}, v{T0}, s[{SWS}:{SWS+3}], s{sT} offen sc1", "s_mov_b64 exec, -1", "s_waitcnt lgkmcnt(0)",
      f"buffer_store_dwordx4 {vr(sxE,4)}, v{vKo}, s[{SKV}:{SKV+3}], s{sKV} offen sc1",
      f"s_mov_b32 s{sFl}, {OPT.get('flagit', 5)}", "s_branch L_f_flagged")
    k.label("L_f_flag2")
    k(f"s_and_b32 s{sT}, s2, 0xfc", f"v_mov_b32 v{T0}, s{sT}", f"v_mov_b32 v{T1}, 1", "s_mov_b64 exec, 1", "s_waitcnt vmcnt(0)",
      f"global_atomic_add v{T0}, v{T1}, s[{SDBG}:{SDBG+1}] sc1", "s_mov_b64 exec, -1", "s_branch L_f_flagged")
    k(island(back="L_f_back", jump=False))
    k.label("L_f_att")
    k("s_barrier")
    if not (OPT.get('qcyc') or OPT.get('ocyc')):
        mid_stamp(k, 0)
    rdK = lambda t: [f"ds_read_b128 {vr(KB[t&1]+4*m,4)}, v{vRd} offset:{(t%8)*4096+1024*m}" for m in range(2)]
    rdV = lambda t: [f"ds_read_b128 {vr(VB[t&1]+4*m,4)}, v{vRd} offset:{(t%8)*4096+2048+1024*m}" for m in range(2)]
    qk = lambda u, c="0": [m32(vr(S[u % 4], 16), vr(KB[(u >> 1) & 1], 4), vr(Q[u & 1], 4), c),
                           m32(vr(S[u % 4], 16), vr(KB[(u >> 1) & 1] + 4, 4), vr(Q[u & 1] + 4, 4))]
    pv = lambda u: [f"v_smfmac_f32_32x32x32_bf16 {vr(O[u&1],16)}, {vr(VB[(u>>1)&1]+4*m,4)}, {vr(S[u%4]+8*m,8)}, v{IDX}" for m in range(2)]
    sm = lambda u: [f"v_smfmac_f32_16x16x64_bf16 {vr(LS[u&1],4)}, {vr(SUMA,4)}, {vr(S[u%4]+8*m,8)}, v{IDX}" for m in range(2)]
    vO, aO0, aO1 = aG0, aG1, vKo
    k(rdK(0), rdV(0))
    k(f"v_xor_b32 v{T0}, 64, v{vRow}", f"s_mov_b32 s{sT}, 32768")
    for i in range(2):
        for b in range(2):
            k(f"buffer_load_dwordx4 {vr(RES[i][b],4)}, v{[vRow,T0][b]}, s[{SX}:{SX+3}], {['0', f's{sT}'][i]} offen")
    k("s_waitcnt lgkmcnt(0)", qk(0))
    k(f"v_and_b32 v{T0}, 1, v{G}", f"v_xor_b32 v{T0}, s{sCH}, v{T0}", f"v_lshlrev_b32 v{T0}, 10, v{T0}", f"v_lshrrev_b32 v{T1}, 5, v{L}",
      f"v_lshl_add_u32 v{T0}, v{T1}, 8, v{T0}", f"v_lshl_add_u32 v{vO}, v{TOK}, 4, v{T0}",
      f"s_lshl_b32 s{sT}, s{sCH}, 13", f"s_mul_i32 s{sT2}, s{sTH}, 6144", f"s_add_u32 s{sT}, s{sT}, s{sT2}", f"s_add_u32 s{sT}, s{sT}, {XR}",
      f"v_add_u32 v{aO0}, s{sT}, v{vO}", f"v_xor_b32 v{aO1}, 4096, v{aO0}")

    k(".p2align 6")
    k.label("L_k1_loop")
    for u in range(16):
        ex = [f"v_exp_f32 v{S[u%4]+i}, v{S[u%4]+i}" for i in range(16)]
        mf = qk(u + 1) + pv(u - 1) + sm(u - 1)
        sl = [[] for _ in range(6)]
        t = u >> 1
        rd = rdK(t + 1) if u % 2 == 0 else rdV(t + 1)
        if u == 13:
            sl[2] += [f"s_add_u32 s{sRd}, s{sRd}, {SLOT}"]
            sl[3] += [f"s_cmp_eq_u32 s{sRd}, {KVB+3*SLOT}"]
            sl[4] += [f"s_cselect_b32 s{sRd}, {KVB}, s{sRd}"]
            sl[5] += ["s_waitcnt lgkmcnt(0)", f"v_add_u32 v{vRd}, s{sRd}, v{vLin}"]
        if u == 14:
            sl[0] += ["s_barrier"]
            sl[1].append(rd[0]); sl[2].append(rd[1])
        else:
            sl[0].append(rd[0]); sl[1].append(rd[1])
        if u == 15:
            sl[2] += [f"s_sub_u32 s{sC}, s{sC}, 1"]
            sl[3] += [f"s_cmp_lg_u32 s{sC}, 0"]
        if u % 2 == 0:
            sl[5].append("s_waitcnt lgkmcnt(0)")
        cuts = [0, 3, 6, 9, 12, 14, 16]
        for i in range(6):
            k(mf[i], sl[i], ex[cuts[i]:cuts[i + 1]])
    k("s_cbranch_scc1 L_k1_loop")
    if not (OPT.get('qcyc') or OPT.get('ocyc')):
        mid_stamp(k, 1)
    vO, aO0, aO1 = aG0, aG1, vKo
    PK = [KB[1], VB[1]]

    def check(q):
        o = [f"v_maximum3_f32 v{T0}, abs(v{O[q]}), abs(v{O[q]+1}), v{LS[q]}", f"v_maximum3_f32 v{T1}, abs(v{O[q]+2}), abs(v{O[q]+3}), abs(v{O[q]+4})"]
        for i in range(5, 15, 2):
            t = [T0, T1][(i // 2) & 1]
            o.append(f"v_maximum3_f32 v{t}, abs(v{O[q]+i}), abs(v{O[q]+i+1}), v{t}")
        o += [f"v_maximum3_f32 v{T0}, abs(v{O[q]+15}), v{T1}, v{T0}",
              f"v_cmp_nle_f32 vcc, {f32(2.0**-80)}, v{LS[q]}", f"s_mov_b64 s[70:71], vcc",
              f"v_cmp_nge_f32 vcc, {f32(2.0**100)}, v{T0}", f"s_or_b64 s[70:71], s[70:71], vcc",
              "s_branch L_k1_slow" if OPT["force_slow"] == q + 1 else None, "s_cbranch_scc1 L_k1_slow"]
        return o

    def out(q):
        o = [f"v_rcp_f32 v{LS[q]}, v{LS[q]}", "s_nop 0"]
        for m in range(2):
            d = PK[q] + 4 * m
            o += [f"v_pk_mul_f32 {vr(O[q]+8*m+i,2)}, {vr(O[q]+8*m+i,2)}, {vr(LS[q],2)} op_sel_hi:[1,0]" for i in range(0, 8, 2)]
            o += [f"v_cvt_pk_bf16_f32 v{d+i}, v{O[q]+8*m+2*i}, v{O[q]+8*m+2*i+1}" for i in range(4)]
            o.append(f"buffer_store_dwordx4 {vr(d,4)}, v{vO}, s[{SWS}:{SWS+3}], s{[sOo,sOo1][q]} offen offset:{512*m} sc1")
        return o
    k("s_nop 1", pv(15), sm(15), "s_nop 7", check(0), out(0), check(1))
    k.label("L_k1_out")
    k(out(1))
    for q in range(2):
        for m in range(2):
            k(f"ds_write_b128 v{[aO0,aO1][q]}, {vr(PK[q]+4*m,4)} offset:{512*m}")
    k("s_branch L_f_oproj")
    k(island(back="L_f_back2", jump=False))
    k.label("L_f_oproj")
    bT, aT = bX[0][0], aX[0][0]
    k("s_waitcnt vmcnt(4)")
    for i in range(2):
        for b in range(2):
            k(f"v_permlane16_swap_b32 v{RES[i][b]}, v{RES[i][b]+2}", f"v_permlane16_swap_b32 v{RES[i][b]+1}, v{RES[i][b]+3}")
    k(f"s_lshl_b32 s{sT}, s{sTH}, 11", f"s_add_u32 s{sT}, s{sT}, {XR}", f"v_add_u32 v{bT}, s{sT}, v{vLin}", f"v_add_u32 v{aT}, s{sT}, v{vLin}")
    for t in range(4):
        k(f"v_subrev_u32 v{aW[t]}, 8192, v{bW[t]}", f"v_subrev_u32 v{bW[t]}, 8192, v{bW[t]}")
    sig = lambda h: ["s_mov_b64 exec, 1", "s_waitcnt vmcnt(0)", f"buffer_atomic_add v{T0}, off, s[{SWS}:{SWS+3}], s{sFg} offset:{256*h} sc1", "s_mov_b64 exec, -1"]
    k(f"v_mov_b32 v{T0}, 1", f"s_cmp_ge_u32 s{sHG}, 4", "s_cbranch_scc1 L_f_sig0", sig(0))
    k.label("L_f_sig0")
    k(f"s_mov_b32 s{sRd}, 0", "s_waitcnt lgkmcnt(0)", "s_barrier")

    def oreads(fi):
        o = [f"ds_read_b128 {vr(F[fi][s]['X'][i],4)}, v{aT} offset:{s*4096+i*1024}" for s in range(2) for i in range(2)]
        for s in range(2):
            for t in range(4):
                for j in range(2):
                    o.append(f"ds_read_b64_tr_b16 {vr(F[fi][s]['W'][t]+2*j,2)}, v{aW[t]} offset:{s*8192+j*1024}")
        return o

    def omf(fi, s):
        return [m16(vr(acc[t][i ^ (t & 1)], 4), vr(F[fi][s]["W"][t], 4), vr(F[fi][s]["X"][i ^ (t & 1)], 4)) for t in range(4) for i in range(2)]
    oadv = [[f"s_add_u32 s{sRd}, s{sRd}, 16384", f"s_and_b32 s{sRd}, s{sRd}, 0x1ffff"], [f"s_bfe_u32 s{sRx}, s{sRd}, 0xf0001", f"v_add_u32 v{aW[0]}, s{sRd}, v{bW[0]}"],
            [f"v_add_u32 v{aW[t]}, s{sRd}, v{bW[t]}" for t in (1, 2)], [f"v_add_u32 v{aW[3]}, s{sRd}, v{bW[3]}", f"v_add_u32 v{aT}, s{sRx}, v{bT}"]]

    def ostep(f, adv_, extra=()):
        r = oreads(1 - f)
        sl = [[] for _ in range(16)]
        for i, x in enumerate(r[:12]):
            sl[(i * 8) // 12].append(x)
        for i, x in enumerate(r[12:]):
            sl[8 + i].append(x)
        if adv_:
            sl[1].append(f"s_add_u32 s{sRd}, s{sRd}, 16384"); sl[3].append(f"s_and_b32 s{sRd}, s{sRd}, 0x1ffff")
            sl[5].append(f"s_bfe_u32 s{sRx}, s{sRd}, 0xf0001"); sl[8].append(f"v_add_u32 v{aT}, s{sRx}, v{bT}")
            for t in range(4):
                sl[9 + 2 * t].append(f"v_add_u32 v{aW[t]}, s{sRd}, v{bW[t]}")
        for i, x in enumerate(extra):
            sl[10 + 2 * i].append(x)
        sl[7].append("s_waitcnt lgkmcnt(12)"); sl[15].append("s_waitcnt lgkmcnt(8)")
        for m, e in zip(omf(f, 0) + omf(f, 1), sl):
            k(m, e)
    if OPT.get("ocyc"):
        mid_stamp(k, 0)
    k(oreads(0), oadv)
    for i in range(2):
        for b in range(2):
            for jt in range(2):
                for hh in range(2):
                    a, r = acc[2 * b + jt][i] + 2 * hh, RES[i][b] + 2 * jt + hh
                    k(f"v_lshlrev_b32 v{a}, 16, v{r}", f"v_and_b32 v{a+1}, 0xffff0000, v{r}")
    k(f"s_cmp_lt_u32 s{sHG}, 4", "s_cbranch_scc1 L_f_sig1", sig(1))
    k.label("L_f_sig1")
    xstamp(k, 9)
    k(f"s_add_u32 s{sH0}, s{sOo}, {HF-OF}", f"s_add_u32 s{sH1}, s{sOo1}, {HF-OF}",
      f"s_lshl_b32 s{sT}, s{sTB}, 1", f"s_add_u32 s{sT}, s{sT}, s{sTH}", f"s_lshl_b32 s{sT}, s{sT}, 12",
      f"s_lshl_b32 s{sT2}, s{sHG}, 1", f"s_add_u32 s{sT2}, s{sT2}, s{sCH}", f"s_lshl_b32 s{sT2}, s{sT2}, 8",
      f"s_add_u32 s{sT}, s{sT}, s{sT2}", f"s_add_u32 s{sFg}, s{sT}, {STP}", f"s_mov_b32 s{sN}, 7", "s_waitcnt lgkmcnt(0)")
    k.label("L_f_oloop")
    k("s_barrier")
    ostep(0, True)
    k("s_barrier")
    ostep(1, True, [f"s_sub_u32 s{sN}, s{sN}, 1", f"s_cmp_lg_u32 s{sN}, 0"])
    k("s_cbranch_scc1 L_f_oloop")
    k("s_barrier")
    ostep(0, False)
    k(omf(1, 0), "s_waitcnt lgkmcnt(0)", omf(1, 1), "s_nop 3")
    if OPT.get("ocyc"):
        mid_stamp(k, 1)
    SUM = [O[0], O[0] + 4]
    for b in range(2):
        for i in range(2):
            o = Q[b] + 4 * i
            for jt in range(2):
                a = acc[2 * b + jt][i]
                k(f"v_cvt_pk_bf16_f32 v{o+2*jt}, v{a}, v{a+1}", f"v_cvt_pk_bf16_f32 v{o+2*jt+1}, v{a+2}, v{a+3}")
        k("s_nop 0")
        for i in range(2):
            o = Q[b] + 4 * i
            k(f"v_permlane16_swap_b32 v{o}, v{o+2}", f"v_permlane16_swap_b32 v{o+1}, v{o+3}",
              f"buffer_store_dwordx4 {vr(o,4)}, v{vHo}, s[{SWS}:{SWS+3}], s{[sH0,sH1][b]} offen offset:{1024*i} sc1")
    for t in range(4):
        for hh in (0, 2):
            for i in range(2):
                a = vr(acc[t][i] + hh, 2)
                if t == 0 and hh == 0:
                    k(f"v_pk_mul_f32 {vr(SUM[i]+2,2)}, {a}, {a}")
                else:
                    src = vr(acc[0][i], 2) if (t == 0 and hh == 2) else vr(SUM[i], 2)
                    k(f"v_pk_add_f32 {vr(SUM[i],2)}, {src}, {a}", f"v_pk_fma_f32 {vr(SUM[i]+2,2)}, {a}, {a}, {vr(SUM[i]+2,2)}")
    for i in range(2):
        k(f"v_add_f32 v{SUM[i]}, v{SUM[i]}, v{SUM[i]+1}", f"v_add_f32 v{SUM[i]+1}, v{SUM[i]+2}, v{SUM[i]+3}")
    k(f"v_lshrrev_b32 v{T0}, 6, v{vHo}", f"v_permlane32_swap_b32 v{SUM[0]}, v{SUM[0]+1}", f"v_permlane32_swap_b32 v{SUM[1]}, v{SUM[1]+1}", "s_nop 0",
      f"v_add_f32 v{SUM[0]}, v{SUM[0]}, v{SUM[0]+1}", f"v_add_f32 v{SUM[1]}, v{SUM[1]}, v{SUM[1]+1}",
      f"v_and_b32 v{T0}, 12, v{T0}", f"v_lshl_add_u32 v{T0}, v{TOK}, 4, v{T0}",
      f"v_permlane16_swap_b32 v{SUM[0]}, v{SUM[1]}", "s_nop 0",
      f"v_add_f32 v{SUM[0]}, v{SUM[0]}, v{SUM[1]}",
      f"buffer_store_dword v{SUM[0]}, v{T0}, s[{SWS}:{SWS+3}], s{sFg} offen sc1")
    tail(k, 0, sW)
    k(island(back="L_f_back", jump=False))
    k.label("L_f_setup")
    if OPT.get("isl", 1):
        k(f"s_cmp_eq_u32 s{sW}, 0", f"s_cbranch_scc1 L_isl{ISL[0][0]}", f"s_cmp_eq_u32 s{sW}, 1", f"s_cbranch_scc1 L_isl{ISL[1][0]}")
    k.label("L_f_back")
    k("s_waitcnt lgkmcnt(0)", ws_shift(SWS), srd_tail(SWS, WS_SZ), srd_from(SKV, SWS, KVF, 262144))
    k(f"s_lshl_b32 s{sGW}, s2, 2", f"s_add_u32 s{sGW}, s{sGW}, s{sW}",
      f"s_lshl_b32 s{sWrJ}, s{sW}, 12", f"s_add_u32 s{sWrJ}, s{sWrJ}, {JB}")
    k(f"v_lshrrev_b32 v{T0}, 4, v{L}", f"v_lshlrev_b32 v{T0}, 10, v{T0}", f"v_bfe_u32 v{T1}, v{L}, 2, 2", f"v_lshl_add_u32 v{T0}, v{T1}, 7, v{T0}",
      f"v_bfe_u32 v{T1}, v{L}, 3, 1", f"v_lshl_add_u32 v{T0}, v{T1}, 6, v{T0}", f"v_add_u32 v{T0}, s{sWrJ}, v{T0}", f"v_and_b32 v{T1}, 3, v{L}",
      f"v_lshl_add_u32 v{bJ[0]}, v{T1}, 4, v{T0}", f"v_xor_b32 v{bJ[1]}, 64, v{bJ[0]}")
    strip, kb0, mat = 66, 67, 68
    k(f"s_lshr_b32 s{strip}, s{sGW}, 3", f"s_and_b32 s{kb0}, s{sGW}, 7", f"s_lshl_b32 s{kb0}, s{kb0}, 2",
      f"s_cmp_ge_u32 s{strip}, 112", "s_cbranch_scc1 L_k1_wo")
    if "jskip" in OPT:
        k(f"s_and_b32 s{sT}, s2, 1", f"s_cmp_eq_u32 s{sT}, {OPT['jskip']}", "s_cbranch_scc1 L_k1_wo")
    k(f"s_cmp_ge_u32 s{strip}, 56", f"s_cselect_b32 s{mat}, 1, 0",
      f"s_cselect_b32 s{SJ}, s26, s24", f"s_cselect_b32 s{SJ+1}, s27, s25",
      f"s_mul_i32 s{sT}, s{mat}, 56", f"s_sub_u32 s{strip}, s{strip}, s{sT}",
      f"s_mov_b32 s{SJ+2}, {1024*7168}", f"s_mov_b32 s{sStr}, 7168", f"s_mov_b32 s{sDstep}, {14*1024}",
      f"s_mov_b32 s{sBsz}, {3584*2048}",
      f"v_lshl_add_u32 v{aJ[0]}, v{T1}, 3, v{T0}")
    for i in range(1, 4):
        k(f"v_xor_b32 v{aJ[i]}, {32*i}, v{aJ[0]}")
    for i in range(4):
        T, fb, pos = 69, 70, 71
        k(f"s_lshl_b32 s{T}, s{strip}, 2", f"s_add_u32 s{T}, s{T}, {i}",
          f"s_mul_i32 s{fb}, s{T}, 9363", f"s_lshr_b32 s{fb}, s{fb}, 16",
          f"s_sub_u32 s{pos}, s{mat}, s{fb}", f"s_mul_i32 s{pos}, s{pos}, 7", f"s_add_u32 s{pos}, s{T}, s{pos}",
          f"s_lshl_b32 s{sT}, s{fb}, 5", f"s_add_u32 s{sT}, s{sT}, s{kb0}", f"s_mul_i32 s{sT}, s{sT}, 14",
          f"s_add_u32 s{sT}, s{sT}, s{pos}", f"s_lshl_b32 s{sT}, s{sT}, 10", f"s_add_u32 s{sD[i]}, s{sT}, {WGU}",
          f"s_lshl_b32 s{sT}, s{kb0}, 3", f"s_add_u32 s{sT}, s{sT}, s{fb}", f"s_mul_i32 s{sT}, s{sT}, 14",
          f"s_add_u32 s{sT}, s{sT}, s{pos}", f"s_lshl_b32 s{sT}, s{sT}, 6", f"s_add_u32 s{sCs[i]}, s{sT}, {CSP}")
    k("s_branch L_k1_jp")
    k.label("L_k1_wo")
    k(f"s_mov_b32 s{SJ}, s24", f"s_mov_b32 s{SJ+1}, s25", f"s_mov_b32 s{SJ+2}, 0", f"s_mov_b32 s{sStr}, 2048", f"s_mov_b32 s{sDstep}, 0", f"s_mov_b32 s{sBsz}, 0")
    for i in range(4):
        k(f"s_mov_b32 s{sD[i]}, {OOB}", f"s_mov_b32 s{sCs[i]}, {OOB}", f"v_mov_b32 v{aJ[i]}, v{bJ[0]}")
    k.label("L_k1_jp")
    k(f"s_mov_b32 s{SJ+3}, 0x00020000")
    k(f"v_lshrrev_b32 v{T0}, 3, v{L}", f"v_bfe_u32 v{T1}, v{L}, 4, 1", f"v_lshlrev_b32 v{T1}, 2, v{T1}",
      f"v_and_b32 v{T2}, 7, v{L}", f"v_xor_b32 v{T1}, v{T1}, v{T2}", f"v_lshlrev_b32 v{T1}, 4, v{T1}",
      f"v_mul_lo_u32 v{vJ}, v{T0}, s{sStr}", f"v_lshl_add_u32 v{vJB}, v{T0}, 11, v{T1}", f"v_add_u32 v{vJ}, v{vJ}, v{T1}",
      f"s_lshl_b32 s{sT}, s{kb0}, 5", f"s_mul_i32 s{sT}, s{sT}, s{sStr}", f"s_lshl_b32 s{sT2}, s{strip}, 7", f"s_add_u32 s{sT}, s{sT}, s{sT2}",
      f"v_add_u32 v{vJ}, s{sT}, v{vJ}",
      f"s_lshl_b32 s{sT}, s{sStr}, 3", f"s_sub_u32 s{sJa}, s{sT}, 1024", f"s_add_u32 s{sJb}, s{sT}, 3072", f"s_mov_b32 s{sJo}, 0")
    k(f"s_mul_i32 s{strip}, s{sGW}, 1171", f"s_lshr_b32 s{strip}, s{strip}, 16",
      f"s_mul_i32 s{sT}, s{strip}, 56", f"s_sub_u32 s{kb0}, s{sGW}, s{sT}", f"s_lshl_b32 s{kb0}, s{kb0}, 1",
      f"s_cmp_ge_u32 s{kb0}, 48", f"s_cselect_b32 s69, 48, 0", f"s_cselect_b32 s70, 8, 0", f"s_sub_u32 s69, s{kb0}, s69",
      f"s_and_b32 s71, s69, 7", f"s_add_u32 s70, s70, s71", f"s_lshr_b32 s69, s69, 3",
      f"s_sub_u32 s71, s{kb0}, 96", f"s_cmp_ge_u32 s{kb0}, 96", f"s_cselect_b32 s69, 6, s69", f"s_cselect_b32 s70, s71, s70",
      f"s_mul_i32 s70, s70, 14", f"s_add_u32 s{sT}, s70, s69", f"s_lshl_b32 s{sT}, s{sT}, 15",
      f"s_lshl_b32 s{sT2}, s{strip}, 7", f"s_add_u32 s{sT}, s{sT}, s{sT2}",
      f"v_add_u32 v{vJB}, s{sT}, v{vJB}",
      f"s_lshr_b32 s{sT}, s{strip}, 1", f"s_mul_i32 s{sT}, s{sT}, 112", f"s_add_u32 s{sT}, s{sT}, s{kb0}", f"s_lshl_b32 s{sT}, s{sT}, 1",
      f"s_and_b32 s{sT2}, s{strip}, 1", f"s_add_u32 s{sT}, s{sT}, s{sT2}", f"s_lshl_b32 s{sT}, s{sT}, 12",
      f"s_add_u32 s{sDB}, s{sT}, {WDF}", f"s_cmp_eq_u32 s{sBsz}, 0", f"s_cselect_b32 s{sDB}, {OOB}, s{sDB}")
    k(f"v_and_b32 v{T0}, 15, v{L}", f"v_cmp_eq_u32 vcc, 0, v{T0}", f"v_mov_b32 v{T1}, {OOB}", "s_nop 0",
      f"v_cndmask_b32 v{vCs}, v{T1}, v{L}, vcc")
    for i in range(4):
        k(f"v_mov_b32 v{ONES+i}, 0x3f803f80")
    k(f"v_lshlrev_b32 v{vPo}, 2, v{L}")
    if OPT.get("hprof"):
        k("v_writelane_b32 v200, s92, 0", "s_mov_b32 s86, 5")
    hstamp(k, 1)
    k("s_barrier")
    hstamp(k, 2)
    npre = OPT.get("npre", 3)
    for n in range(npre):
        q_x(n * STG); q_w(n * STG)
    hstamp(k, 3)
    k(f"s_waitcnt vmcnt({6*(npre-1)})", "s_barrier")
    hstamp(k, 4)
    for n in range(npre, 4):
        q_x(n * STG); q_w(n * STG)
    k("s_waitcnt vmcnt(12)", "s_barrier")
    k.label("L_f_ld2")
    if OPT.get("hprof"):
        k("s_mov_b32 m0, s86", "s_add_u32 s86, s86, 1")
    hstamp(k, "m0")
    q_stage()
    k(f"s_cmp_lg_u32 s{sN}, 0", f"s_waitcnt vmcnt({6*D})", "s_barrier", "s_cbranch_scc1 L_f_ld2")
    hstamp(k, 17)
    poll = f"global_load_dword v{PF4}, v{vPo}, s[{SDBG}:{SDBG+1}] sc1"
    k(f"s_lshl_b32 s{sKo}, s{sW}, 13", f"s_add_u32 s{sWr}, s{sKo}, {KVB}", f"s_mov_b32 s{sN}, {1<<20}")
    k(f"s_cmp_eq_u32 s{sW}, 0", "s_cbranch_scc1 L_f_poll0", "s_waitcnt vmcnt(6)", "s_barrier", "s_waitcnt vmcnt(0)", "s_branch L_f_polled")
    k.label("L_f_poll0")
    k(poll, "s_waitcnt vmcnt(7)", "s_barrier")
    k.label("L_f_poll")
    k("s_waitcnt vmcnt(0)", f"v_cmp_ne_u32 vcc, 4, v{PF4}", f"s_sub_u32 s{sN}, s{sN}, 1", "s_cbranch_scc1 L_f_polled",
      "s_cbranch_vccz L_f_polled", "s_sleep 2", poll, "s_branch L_f_poll")
    k.label("L_f_polled")
    hstamp(k, 18)
    k("s_barrier")
    hstamp(k, 19)

    def kv_dma(c):
        o = []
        for hh in range(2):
            o += [f"s_add_u32 m0, s{sWr}, {((c+1)%3)*SLOT+4096*hh}", "s_nop 0"]
            for i in range(4):
                o.append(f"buffer_load_dwordx4 v{vLin}, s[{SKV}:{SKV+3}], s{sKo} offen offset:{1024*i} sc1 lds")
            o.append(f"s_add_u32 s{sKo}, s{sKo}, {4096 if hh == 0 else 32768-4096}")
        return o
    k(kv_dma(0)[:7], "s_barrier")
    hstamp(k, 20)
    k(kv_dma(0)[7:], "s_waitcnt vmcnt(0)")
    hstamp(k, 21)
    k("s_barrier")
    hstamp(k, 22)
    vm = []

    def wait_for(*tag):
        n = len(vm) - 1 - max(i for i, t in enumerate(vm) if t in tag)
        return f"s_waitcnt vmcnt({n})"
    vm += ["kv1"] * 8
    k(f"s_mov_b32 s{SWQ}, s20", f"s_mov_b32 s{SWQ+1}, s21",
      f"s_lshl_b32 s{sBW}, s{sTH}, 1", f"s_add_u32 s{sBW}, s{sBW}, s{sCH}", f"s_lshl_b32 s{sBW}, s{sBW}, 10",
      f"s_lshl_b32 s{sRd}, s{sW}, 11", f"s_lshl_b32 s{sOo}, s{sTB}, 17", f"s_add_u32 s{sOo}, s{sOo}, s{sRd}", f"s_add_u32 s{sOo}, s{sOo}, {OF}")
    k(kv_dma(1))

    def kstage(n, sh):
        if n < 2:
            return [f"s_lshl_b32 s{sT}, s{sHG}, {sh+1}", f"s_add_u32 s{sT}, s{sT}, {n<<sh}"]
        i = n >> 1
        if i == 4:
            return [f"s_xor_b32 s{sT}, s{sHG}, 4", f"s_lshl_b32 s{sT}, s{sT}, {sh+1}", f"s_add_u32 s{sT}, s{sT}, {(n&1)<<sh}"]
        return [f"s_add_u32 s{sT}, s{sHG}, {i}", f"s_and_b32 s{sT}, s{sT}, 3", f"s_lshl_b32 s{sT}, s{sT}, {sh+1}",
                f"s_add_u32 s{sT}, s{sT}, {((n&1) + (8 if i > 4 else 0))<<sh}"]

    def o_w(n, pieces=range(4)):
        k(kstage(n, 17))
        for i in pieces:
            k(f"s_add_u32 m0, s{sBW}, {(n%8)*16384+4096*i}", "s_nop 0", f"buffer_load_dwordx4 v{vW[i]}, s[{SWQ}:{SWQ+3}], s{sT} offen lds")
        vm.extend([f"w{n}"] * len(pieces))

    def o_x(n):
        k(kstage(n, 13), f"s_add_u32 m0, s{sRd}, {XR+(n%4)*8192}", f"s_add_u32 s{sT}, s{sT}, s{sOo}")
        for i in range(2):
            k(f"buffer_load_dwordx4 v{vLin}, s[{SWS}:{SWS+3}], s{sT} offen offset:{1024*i} sc1 lds")
        vm.extend([f"x{n}"] * 2)
    for c in range(8):
        if c + 2 < 8:
            k(kv_dma(c + 2)); vm += [f"kv{c+2}"] * 8
        if c < (3 if OPT.get("s4", 0) else 1):
            k(f"s_lshl_b32 s{sT}, s{sGW}, 12", f"s_add_u32 s{sT}, s{sT}, {XB4[c+1]}", f"v_mov_b64 {vr(PF4,2)}, -1", f"v_mov_b64 {vr(PF4+2,2)}, -1")
            for i in range(4):
                k(f"buffer_store_dwordx4 {vr(PF4,4)}, v{vLin}, s[{SWS}:{SWS+3}], s{sT} offen offset:{1024*i} sc1")
            vm += ["st"] * 4
        if c == 3:
            k(f"s_lshl_b32 s{sT}, s{sGW}, 10", f"s_add_u32 s{sT}, s{sT}, {FL2}", f"s_cmp_lt_u32 s{sGW}, 8", f"s_cselect_b32 s{sT}, s{sT}, {OOB}",
              f"v_mov_b64 {vr(PF4,2)}, 0", f"v_mov_b64 {vr(PF4+2,2)}, 0",
              f"buffer_store_dwordx4 {vr(PF4,4)}, v{vLin}, s[{SWS}:{SWS+3}], s{sT} offen sc1")
            vm += ["st"]
        j = c - 1
        proc = 0 <= j < 6 and not OPT.get("nojob")
        if proc:
            k(wait_for(f"j{j}"))
            for f in range(4):
                for jj in range(2):
                    if j < 4:
                        k(f"ds_read_b64_tr_b16 {vr(JF[f]+2*jj,2)}, v{aJ[f]} offset:{jj*512}")
                    else:
                        k(f"ds_read_b64_tr_b16 {vr(JF[f]+2*jj,2)}, v{bJ[f>>1]} offset:{jj*512+(f&1)*8}")
            k("s_waitcnt lgkmcnt(0)")
        if c < 6 and not OPT.get("nojob"):
            if c == 4:
                k(f"s_mov_b32 s{SJ}, s28", f"s_mov_b32 s{SJ+1}, s29", f"s_mov_b32 s{SJ+2}, s{sBsz}",
                  f"s_mov_b32 s{sJo}, 0")
            k(f"s_mov_b32 m0, s{sWrJ}", "s_nop 0")
            for i in range(4):
                k(f"buffer_load_dwordx4 v{vJ if c < 4 else vJB}, s[{SJ}:{SJ+3}], s{sJo} offen offset:{1024*i}{' nt' if OPT.get('jnt', 0) else ''} lds",
                  f"s_add_u32 s{sJo}, s{sJo}, " + (f"s{sJa if i < 3 else sJb}" if c < 4 else str([8, 104, 8, 104][i] * 2048 + (-1024 if i < 3 else 3072))))
            vm += [f"j{c}"] * 4
        if proc:
            for f in range(4):
                if j < 4:
                    k(f"buffer_store_dwordx4 {vr(JF[f],4)}, v{vLin}, s[{SWS}:{SWS+3}], s{sD[f]} offen sc1",
                      f"s_add_u32 s{sD[f]}, s{sD[f]}, s{sDstep}",
                      m16(vr(CS[f], 4), vr(JF[f], 4), vr(ONES, 4), "0" if j == 0 else None))
                else:
                    k(f"buffer_store_dwordx4 {vr(JF[f],4)}, v{vLin}, s[{SWS}:{SWS+3}], s{sDB} offen offset:{1024*f} sc1")
            vm += ["st"] * 4
            if j == 4:
                k(f"s_add_u32 s{sDB}, s{sDB}, 8192")
                for f in range(4):
                    k(f"buffer_store_dwordx4 {vr(CS[f],4)}, v{vCs}, s[{SWS}:{SWS+3}], s{sCs[f]} offen sc1")
                vm += ["st"] * 4
        for n in {5: [0, 2, 3], 6: [4, 5], 7: [1, 6, 7]}.get(c, []):
            o_w(n)
        if c == 1 and OPT.get("isl", 1):
            k(f"s_branch L_isl{[n for n, b in ISL if b == 'L_f_back2'][0]}")
            k.label("L_f_back2")
        if c == 5:
            k(f"s_lshr_b32 s{sT}, s2, 3", f"s_lshl_b32 s{sT}, s{sT}, 11", f"v_and_b32 v{T0}, 255, v0", f"v_lshlrev_b32 v{T0}, 3, v{T0}",
              f"v_add_u32 v{T0}, s{sT}, v{T0}")
            k(f"s_getpc_b64 s[22:23]")
            k.label("L_f_pc2")
            k("s_add_u32 s22, s22, L_code_rest-L_f_pc2", "s_addc_u32 s23, s23, 0",
              f"v_min_u32 v{T0}, L_code_end-L_code_rest-4, v{T0}", f"global_load_dword v{PF4}, v{T0}, s[22:23]")
            vm.append("pf")
        if c == 6:
            k(f"s_and_b32 s{sT}, s{sTB}, 7", f"s_add_u32 s{sT}, s{sT}, 8", f"s_lshr_b32 s{sT2}, s{sT}, 1", f"s_cmp_eq_u32 s{sHG}, s{sT2}",
              f"s_cselect_b32 s{sT2}, 8, 0", f"s_sub_u32 s{sT}, s{sT}, s{sT2}", f"s_lshl_b32 s{sT}, s{sT}, 17")
            for i in range(4):
                k(f"buffer_load_dwordx4 {vr(PF4,4)}, v{vW[i]}, s[{SWQ}:{SWQ+3}], s{sT} offen")
            vm.extend(["pf"] * 4)
        if c + 1 < 8:
            k(wait_for(f"kv{c+1}"))
        k("s_barrier")
    k(f"s_lshl_b32 s{sKo}, s{sTB}, 9", f"s_add_u32 s{sKo}, s{sKo}, {FLG}", f"s_mov_b32 s{sN}, {1<<20}", "s_waitcnt vmcnt(0)")
    hstamp(k, 23)
    look = lambda h: f"buffer_load_dword v{PF4}, off, s[{SWS}:{SWS+3}], s{sKo} offset:{256*h} sc1"
    k(f"s_cmp_lt_u32 s{sHG}, 4", "s_cbranch_scc1 L_f_even")
    k.label("L_f_odd")
    k(look(0), "s_waitcnt vmcnt(0)", f"v_readfirstlane_b32 s{sT}, v{PF4}", f"s_sub_u32 s{sN}, s{sN}, 1", "s_cbranch_scc1 L_f_odd2",
      f"s_cmp_ge_u32 s{sT}, 16", "s_cbranch_scc1 L_f_odd2", "s_sleep 6", "s_branch L_f_odd")
    k.label("L_f_odd2")
    o_x(2); o_x(3)
    del vm[-4:]
    k(f"s_cmp_eq_u32 s{sW}, 0", f"s_cselect_b32 s{sJa}, s{sKo}, {OOB}", f"s_cselect_b32 s{sJb}, 16, 0", f"s_mov_b32 s{sKo}, {OOB}", f"s_mov_b32 s{sStr}, 0")
    hstamp(k, 24)
    k("s_barrier")
    hstamp(k, 25)
    k("s_branch L_f_both")
    k.label("L_f_even")
    k(f"s_cmp_eq_u32 s{sW}, 0", f"s_cselect_b32 s{sKo}, s{sKo}, {OOB}", f"s_cselect_b32 s{sStr}, 16, 0", f"s_mov_b32 s{sJa}, {OOB}", f"s_mov_b32 s{sJb}, 0")
    ask = lambda h: ["s_mov_b64 exec, 1", f"v_mov_b32 v{PF4}, 0", f"buffer_atomic_add v{PF4}, off, s[{SWS}:{SWS+3}], s{sKo} offset:{256*h} sc0 sc1", "s_mov_b64 exec, -1"]

    def gate(h, wait, tag=""):
        k(wait)
        k.label(f"L_f_gate{h}{tag}")
        k(f"v_readfirstlane_b32 s{sT}, v{PF4}", f"s_sub_u32 s{sN}, s{sN}, 1", f"s_cbranch_scc1 L_f_open{h}{tag}",
          f"s_cmp_ge_u32 s{sT}, s{sStr}", f"s_cbranch_scc1 L_f_open{h}{tag}", ask(h), "s_waitcnt vmcnt(0)", f"s_branch L_f_gate{h}{tag}")
        k.label(f"L_f_open{h}{tag}")
    k(ask(0))
    gate(0, "s_waitcnt vmcnt(0)")
    hstamp(k, 24)
    k("s_barrier")
    hstamp(k, 25)
    o_x(2); o_x(3)
    k.label("L_f_both")
    k("s_barrier")
    G2 = OPT.get("g2", 3)
    for n in range(1, 15):
        if n + 3 < 16:
            o_x(n + 3)
        if n in (G2, G2 + 2):
            k(look(1) if OPT.get("lk", 1) else ask(1)); vm.append("ask")
        cum = [[0, 0, 3, 5, 8, 10, 13, 15, 18, 20, 23, 25, 28, 32, 32], [0, 0, 3, 6, 9, 12, 15, 18, 21, 24, 27, 30, 32, 32, 32]][OPT.get("wsch", 1)]
        for m in range(8, 16):
            pcs = [q for q in range(4) if cum[n - 1] <= 4 * (m - 8) + q < cum[n]]
            if pcs:
                assert m - 6 <= n <= m - 2
                o_w(m, pcs)
        if n == 4:
            gate(1, wait_for("ask"))
            k(f"s_mov_b32 s{sKo}, s{sJa}", f"s_mov_b32 s{sStr}, s{sJb}")
        if n == 6:
            gate(1, wait_for("ask"), "b")
        k(wait_for(f"x{n+1}", f"w{n+1}"), "s_barrier")
        if n in (1, 4, 6, 9, 14):
            hstamp(k, 26 + (1, 4, 6, 9, 14).index(n))
    if OPT.get("hprof"):
        k(f"s_lshl_b32 s{sT}, s{sGW}, 7", f"s_add_u32 s{sT}, s{sT}, {STAMP+2*MB}", f"v_lshlrev_b32 v{T0}, 2, v{L}", "s_mov_b64 exec, 0xffffffff",
          f"buffer_store_dword v200, v{T0}, s[{SWS}:{SWS+3}], s{sT} offen")
    hop(k, sW)
    k.label("L_k1_slow")
    k("s_waitcnt vmcnt(0) lgkmcnt(0)", "s_nop 15")
    C = [S[2], S[3]]
    ldK = [f"buffer_load_dwordx4 {vr(KB[0]+4*m,4)}, v{vLin}, s[{SKV}:{SKV+3}], s{sKo} offen offset:{1024*m} sc1" for m in range(2)]
    ldV = [f"buffer_load_dwordx4 {vr(VB[0]+4*m,4)}, v{vLin}, s[{SKV}:{SKV+3}], s{sKo} offen offset:{2048+1024*m} sc1" for m in range(2)]
    k(f"v_mov_b32 v{T0}, 0xff800000", f"v_mov_b32 v{T1}, 0xff800000", f"s_mov_b32 s{sKo}, 0")
    k.label("L_k1_s1")
    k(ldK, "s_waitcnt vmcnt(0)", qk(0), qk(1), "s_nop 15")
    for q in range(2):
        for i in range(0, 16, 2):
            k(f"v_max3_f32 v{[T0,T1][q]}, v{S[q]+i}, v{S[q]+i+1}, v{[T0,T1][q]}")
    k(f"s_add_u32 s{sKo}, s{sKo}, 4096", f"s_cmp_lt_u32 s{sKo}, 262144", "s_cbranch_scc1 L_k1_s1")
    for q in range(2):
        t = [T0, T1][q]
        k(f"v_mov_b32 v{T2}, v{t}", "s_nop 1", f"v_permlane32_swap_b32 v{t}, v{T2}", "s_nop 1", f"v_max_f32 v{t}, v{t}, v{T2}")
        for i in range(16):
            k(f"v_sub_f32 v{C[q]+i}, 0, v{t}", f"v_mov_b32 v{O[q]+i}, 0")
        for i in range(4):
            k(f"v_mov_b32 v{LS[q]+i}, 0")
    k(f"s_mov_b32 s{sKo}, 0")
    k.label("L_k1_s2")
    k(ldK, ldV, "s_waitcnt vmcnt(0)", qk(0, vr(C[0], 16)), qk(1, vr(C[1], 16)), "s_nop 15")
    for q in range(2):
        for i in range(16):
            k(f"v_exp_f32 v{S[q]+i}, v{S[q]+i}")
    k("s_nop 1", pv(0), sm(0), pv(1), sm(1))
    k(f"s_add_u32 s{sKo}, s{sKo}, 4096", f"s_cmp_lt_u32 s{sKo}, 262144", "s_cbranch_scc1 L_k1_s2")
    k("s_nop 15", "s_nop 7", out(0), "s_branch L_k1_out")
    return k


def k_gemm(name, kidx, K, tok_region, w_region, is_down):
    D = OPT.get("gd", 4)
    STG, NS = 24576, D + 2
    N = K // 64
    k = Kern(name, 256, 512, STG * NS)
    SWS, ST_, SW_, SR, SO = 4, 8, 12, 16, 20
    sW, sTB, sNB, sN, sT, sT2, sRd, sWr, sTo, sWo, sTH, sCH, sRes, sDW = range(28, 42)
    v = Alloc(1)
    L, G, TOK, T0, T1, vLin, bT, bW, aT, aW, vRow = [v() for _ in range(11)]
    F = [[dict(X=[v(4, 4) for _ in range(2)], W=[v(4, 4) for _ in range(4)]) for s in range(2)] for _ in range(2)]
    acc = [[v(4, 4) for i in range(2)] for t in range(4)]
    RES = [[v(4, 4) for b in range(2)] for i in range(2)]
    k.vgpr = k.acc = (v.n + 7) // 8 * 8
    head(k)
    k(f"s_load_dwordx2 s[{SWS}:{SWS+1}], s[0:1], {A_WS}",
      f"s_load_dwordx2 s[{SO}:{SO+1}], s[0:1], {A_OUT if is_down else A_X}")
    k(f"v_lshrrev_b32 v{T1}, 6, v0", f"v_and_b32 v{L}, 63, v0", f"v_readfirstlane_b32 s{sW}, v{T1}", f"v_lshlrev_b32 v{vLin}, 4, v{L}")
    ids_8x4(k, sNB, sTB, sT)
    k(f"s_cmp_lt_u32 s{sW}, 4", f"s_cbranch_scc1 L_{name}_comp")
    k(f"s_and_b32 s{sW}, s{sW}, 3",
      f"s_lshl_b32 s{sTo}, s{sW}, 11", f"s_lshl_b32 s{sWo}, s{sW}, 12", f"s_mov_b32 s{sWr}, s{sTo}",
      f"s_add_u32 s{sDW}, s{sTo}, 8192")
    rot = K == 1024 and OPT.get("rot2", 0)
    if rot:
        k(f"s_lshl_b32 s{sT}, s{sNB}, 1", f"s_add_u32 s{sT}, s{sT}, s{sTB}", f"s_and_b32 s{sT}, s{sT}, 7",
          f"s_lshl_b32 s{sT2}, s{sT}, 14", f"s_add_u32 s{sTo}, s{sTo}, s{sT2}", f"s_lshl_b32 s{sT2}, s{sT}, 15", f"s_add_u32 s{sWo}, s{sWo}, s{sT2}")
    k(f"s_mul_i32 s{sT}, s{sTB}, {K*128}", f"s_add_u32 s{sT}, s{sT}, {tok_region}",
      f"s_mul_i32 s{sT2}, s{sNB}, {K*256}", f"s_add_u32 s{sT2}, s{sT2}, {w_region}")
    k("s_waitcnt lgkmcnt(0)", ws_shift(SWS))
    k(srd_from(ST_, SWS, f"s{sT}", K * 128), srd_from(SW_, SWS, f"s{sT2}", K * 256))

    def dma_stage():
        o = [f"s_mov_b32 m0, s{sWr}", "s_nop 0"]
        for i in range(2):
            o.append(f"buffer_load_dwordx4 v{vLin}, s[{ST_}:{ST_+3}], s{sTo} offen offset:{1024*i} lds")
        o += [f"s_add_u32 m0, s{sWr}, s{sDW}", f"s_add_u32 s{sTo}, s{sTo}, 8192"]
        for i in range(4):
            o.append(f"buffer_load_dwordx4 v{vLin}, s[{SW_}:{SW_+3}], s{sWo} offen offset:{1024*i} lds")
        o += [f"s_add_u32 s{sWo}, s{sWo}, 16384", f"s_add_u32 s{sWr}, s{sWr}, {STG}", f"s_cmp_ge_u32 s{sWr}, {STG*NS}",
              f"s_cselect_b32 s{sT}, {STG*NS}, 0", f"s_sub_u32 s{sWr}, s{sWr}, s{sT}"]
        if rot:
            o += [f"s_and_b32 s{sTo}, s{sTo}, {K*128-1}", f"s_and_b32 s{sWo}, s{sWo}, {K*256-1}"]
        return o
    k(f"s_mov_b32 s{sN}, {N}")
    k.label(f"L_{name}_ld")
    k(dma_stage())
    k(f"s_sub_u32 s{sN}, s{sN}, 1", f"s_cmp_lg_u32 s{sN}, 0")
    k(f"s_waitcnt vmcnt({6*D})", "s_barrier", f"s_cbranch_scc1 L_{name}_ld")
    for d in range(D - 1, -1, -1):
        k(f"s_waitcnt vmcnt({6*d})", "s_barrier")
    if is_down:
        k("s_endpgm")
    else:
        hop(k, sW)
    k.label(f"L_{name}_comp")
    k(f"s_and_b32 s{sTH}, s{sW}, 1", f"s_lshr_b32 s{sCH}, s{sW}, 1")
    k(f"v_lshrrev_b32 v{G}, 4, v{L}", f"v_and_b32 v{TOK}, 15, v{L}",
      f"v_lshlrev_b32 v{T0}, 11, v{TOK}", f"v_lshl_add_u32 v{T0}, v{G}, 4, v{T0}",
      f"s_lshl_b32 s{sN}, s{sTB}, 1", f"s_add_u32 s{sN}, s{sN}, s{sTH}", f"s_lshl_b32 s{sN}, s{sN}, 16",
      f"s_lshl_b32 s{sRes}, s{sNB}, 1", f"s_add_u32 s{sRes}, s{sRes}, s{sCH}", f"s_lshl_b32 s{sRd}, s{sRes}, 7",
      f"s_add_u32 s{sN}, s{sN}, s{sRd}", f"v_add_u32 v{vRow}, s{sN}, v{T0}")
    k(f"s_lshl_b32 s{sRes}, s{sRes}, 13", f"s_lshl_b32 s{sN}, s{sTB}, 17", f"s_add_u32 s{sRes}, s{sRes}, s{sN}",
      f"s_lshl_b32 s{sN}, s{sTH}, 11", f"s_add_u32 s{sRes}, s{sRes}, s{sN}", f"s_add_u32 s{sRes}, s{sRes}, {HF}")
    k(f"s_lshl_b32 s{sT}, s{sTH}, 11", f"v_add_u32 v{bT}, s{sT}, v{vLin}",
      f"s_lshl_b32 s{sT}, s{sCH}, 12", f"s_add_u32 s{sT}, s{sT}, 8192", f"v_add_u32 v{bW}, s{sT}, v{vLin}",
      f"v_mov_b32 v{aT}, v{bT}", f"v_mov_b32 v{aW}, v{bW}")
    k("s_waitcnt lgkmcnt(0)", ws_shift(SWS))
    k(srd_tail(SWS, WS_SZ), srd_tail(SO, 4 * MB))
    for _ in range(NS - 2):
        k("s_barrier")
    k(f"s_add_u32 s{sT2}, s{sRes}, 4096", f"s_mov_b32 s{sN}, 32768")
    for i in range(2):
        for b in range(2):
            if is_down:
                k(f"buffer_load_dwordx4 {vr(RES[i][b],4)}, v{vLin}, s[{SWS}:{SWS+3}], s{[sRes,sT2][b]} offen offset:{1024*i}")
            else:
                k(f"buffer_load_dwordx4 {vr(RES[i][b],4)}, v{vRow}, s[{SO}:{SO+3}], {['0', f's{sN}'][i]} offen offset:{64*b}{' nt' if OPT.get('jnt', 0) else ''}")
    for t in range(4):
        for i in range(2):
            for r in range(4):
                k(f"v_mov_b32 v{acc[t][i]+r}, 0")

    def reads(f):
        o = []
        for s in range(2):
            o += [f"ds_read_b128 {vr(F[f][s]['X'][i],4)}, v{aT} offset:{s*4096+i*1024}" for i in range(2)]
            o += [f"ds_read_b128 {vr(F[f][s]['W'][t],4)}, v{aW} offset:{s*8192+t*1024}" for t in range(4)]
        return o

    def mfmas(f):
        return [m16(vr(acc[t][i ^ (t & 1)], 4), vr(F[f][s]["W"][t], 4), vr(F[f][s]["X"][i ^ (t & 1)], 4))
                for t in range(4) for i in range(2) for s in range(2)]
    adv = [[f"s_add_u32 s{sRd}, s{sRd}, {STG}", f"s_cmp_eq_u32 s{sRd}, {STG*NS}"], [f"s_cselect_b32 s{sRd}, 0, s{sRd}"],
           [f"v_add_u32 v{aT}, s{sRd}, v{bT}", f"v_add_u32 v{aW}, s{sRd}, v{bW}"]]
    k(f"s_mov_b32 s{sRd}, 0", f"s_mov_b32 s{sN}, {N//2-1}")
    k("s_barrier")
    mid_stamp(k, 0)
    k(reads(0), adv, "s_waitcnt lgkmcnt(0)")
    k(".p2align 6")
    k.label(f"L_{name}_loop")
    for f in range(2):
        k("s_barrier")
        m = weave(mfmas(f), reads(1 - f), 0, 9)
        tl = adv + ([[f"s_sub_u32 s{sN}, s{sN}, 1", f"s_cmp_lg_u32 s{sN}, 0"]] if f == 1 else [])
        k(weave(m, tl, len(m) - 6, len(m) - 1))
        k("s_waitcnt lgkmcnt(0)")
    k(f"s_cbranch_scc1 L_{name}_loop")
    k("s_barrier")
    k(weave(mfmas(0), reads(1), 0, 9), "s_waitcnt lgkmcnt(0)", mfmas(1))
    mid_stamp(k, 1)
    k("s_waitcnt vmcnt(0)", f"s_mov_b32 s{sN}, 32768", "s_nop 5")
    SUM = F[0][0]["X"]
    U = F[0][0]["W"][0]
    for i in range(2):
        if not is_down:
            k(f"v_mov_b32 v{SUM[i]}, 0", f"v_mov_b32 v{SUM[i]+1}, 0")
        for b in range(2):
            o = F[0][1]["W"][2 * i + b]
            for jt in range(2):
                a = acc[2 * b + jt][i]
                for h in range(2):
                    r = RES[i][b] + 2 * jt + h
                    k(f"v_lshlrev_b32 v{U}, 16, v{r}", f"v_and_b32 v{U+1}, 0xffff0000, v{r}",
                      f"v_add_f32 v{a+2*h}, v{a+2*h}, v{U}", f"v_add_f32 v{a+2*h+1}, v{a+2*h+1}, v{U+1}",
                      f"v_cvt_pk_bf16_f32 v{o+2*jt+h}, v{a+2*h}, v{a+2*h+1}")
            if is_down:
                k(f"buffer_store_dwordx4 {vr(o,4)}, v{vRow}, s[{SO}:{SO+3}], {['0', f's{sN}'][i]} offen offset:{64*b} sc1")
            else:
                k(f"buffer_store_dwordx4 {vr(o,4)}, v{vLin}, s[{SWS}:{SWS+3}], s{[sRes,sT2][b]} offen offset:{1024*i} sc1")
    if not is_down:
        for t in range(4):
            for r in range(4):
                for i in range(2):
                    a = acc[t][i] + r
                    k(f"v_add_f32 v{SUM[i]}, v{SUM[i]}, v{a}", f"v_fmac_f32 v{SUM[i]+1}, v{a}, v{a}")
        k("s_nop 1", f"v_permlane32_swap_b32 v{SUM[0]}, v{SUM[0]+1}", f"v_permlane32_swap_b32 v{SUM[1]}, v{SUM[1]+1}", "s_nop 0",
          f"v_add_f32 v{SUM[0]}, v{SUM[0]}, v{SUM[0]+1}", f"v_add_f32 v{SUM[1]}, v{SUM[1]}, v{SUM[1]+1}",
          f"v_lshlrev_b32 v{T0}, 2, v{L}", "s_nop 0",
          f"v_permlane16_swap_b32 v{SUM[0]}, v{SUM[1]}",
          f"s_lshl_b32 s{sT}, s{sTB}, 1", f"s_add_u32 s{sT}, s{sT}, s{sTH}", f"s_lshl_b32 s{sT}, s{sT}, 12",
          f"v_add_f32 v{SUM[0]}, v{SUM[0]}, v{SUM[1]}",
          f"s_lshl_b32 s{sT2}, s{sNB}, 1", f"s_add_u32 s{sT2}, s{sT2}, s{sCH}", f"s_lshl_b32 s{sT2}, s{sT2}, 8",
          f"s_add_u32 s{sT}, s{sT}, s{sT2}", f"s_add_u32 s{sT}, s{sT}, {STP}",
          f"buffer_store_dword v{SUM[0]}, v{T0}, s[{SWS}:{SWS+3}], s{sT} offen sc1")
    tail(k, kidx, sW)
    return k


def k4_down(kidx):
    name, K = "down_kernel", 3584
    D = OPT.get("dd", 2)
    N1 = OPT.get("n1", 25)
    N2 = 56 - 2 * N1
    STG, NS = 32768, D + 2
    k = Kern(name, 256, 512, STG * NS)
    SWS, ST_, SW_, SO = 4, 8, 12, 20
    sW, sTB, sNB, sN, sT, sT2, sRd, sWr, sTo, sWo, sTH, sCH, sRes, sDW, sKH, sX0, sX1 = range(28, 45)
    v = Alloc(1)
    L, G, TOK, T0, T1, vLin, bT, bW, aT, aW, vRow = [v() for _ in range(11)]
    F = [[dict(X=[v(4, 4) for _ in range(4)], W=[v(4, 4) for _ in range(4)]) for s in range(2)] for _ in range(2)]
    acc = [[v(4, 4) for i in range(4)] for t in range(4)]
    RES = [[v(4, 4) for b in range(2)] for i in range(2)]
    RCV = [[acc[2 * b][2 + i] for b in range(2)] for i in range(2)]
    k.vgpr = k.acc = (v.n + 7) // 8 * 8
    head(k, True)
    k(f"s_load_dwordx2 s[{SWS}:{SWS+1}], s[0:1], {A_WS}", f"s_load_dwordx2 s[{SO}:{SO+1}], s[0:1], {A_OUT}")
    k(f"v_lshrrev_b32 v{T1}, 6, v0", f"v_and_b32 v{L}, 63, v0", f"v_readfirstlane_b32 s{sW}, v{T1}", f"v_lshlrev_b32 v{vLin}, 4, v{L}")
    ids_8x4(k, sNB, sTB, sT)
    if OPT.get("dmap", 1):
        k(f"s_and_b32 s{sT}, s{sTB}, 7", f"s_lshl_b32 s{sT}, s{sT}, 1", f"s_bfe_u32 s{sT2}, s{sTB}, 0x10003",
          f"s_and_b32 s{sTB}, s{sTB}, 16", f"s_add_u32 s{sTB}, s{sTB}, s{sT}", f"s_add_u32 s{sTB}, s{sTB}, s{sT2}")
    k(f"s_cmp_lt_u32 s{sW}, 4", f"s_cbranch_scc1 L_{name}_comp")
    vOwn, vPar = bT, bW
    k(f"s_and_b32 s{sW}, s{sW}, 3", f"s_and_b32 s{sKH}, s{sTB}, 1",
      f"s_lshl_b32 s{sWr}, s{sW}, 11", f"s_add_u32 s{sDW}, s{sWr}, 8192",
      f"s_mul_i32 s{sTo}, s{sKH}, {N1*8192}", f"s_add_u32 s{sTo}, s{sTo}, s{sWr}", f"s_lshl_b32 s{sWo}, s{sTo}, 1",
      f"s_mul_i32 s{sT}, s{sKH}, {K*128}", f"v_add_u32 v{vOwn}, s{sT}, v{vLin}", f"s_sub_u32 s{sT}, {K*128}, s{sT}", f"v_add_u32 v{vPar}, s{sT}, v{vLin}",
      f"s_lshr_b32 s{sT}, s{sTB}, 1", f"s_mul_i32 s{sT}, s{sT}, {K*256}", f"s_add_u32 s{sT}, s{sT}, {AF}",
      f"s_mul_i32 s{sT2}, s{sNB}, {K*256}", f"s_add_u32 s{sT2}, s{sT2}, {WDF}")
    k("s_waitcnt lgkmcnt(0)", ws_shift(SWS))
    k(srd_from(ST_, SWS, f"s{sT}", K * 256), srd_from(SW_, SWS, f"s{sT2}", K * 256))

    def dma_stage(full):
        o = [f"s_mov_b32 m0, s{sWr}", "s_nop 0"]
        o += [f"buffer_load_dwordx4 v{vOwn}, s[{ST_}:{ST_+3}], s{sTo} offen offset:{1024*i} lds" for i in range(2)]
        if full:
            o += [f"s_add_u32 m0, s{sWr}, 24576", "s_nop 0"]
            o += [f"buffer_load_dwordx4 v{vPar}, s[{ST_}:{ST_+3}], s{sTo} offen offset:{1024*i} lds" for i in range(2)]
        o += [f"s_add_u32 m0, s{sWr}, s{sDW}", f"s_add_u32 s{sTo}, s{sTo}, 8192"]
        o += [f"buffer_load_dwordx4 v{vLin}, s[{SW_}:{SW_+3}], s{sWo} offen offset:{1024*i} lds" for i in range(4)]
        o += [f"s_add_u32 s{sWo}, s{sWo}, 16384", f"s_add_u32 s{sWr}, s{sWr}, {STG}", f"s_cmp_ge_u32 s{sWr}, {STG*NS}",
              f"s_cselect_b32 s{sT}, {STG*NS}, 0", f"s_sub_u32 s{sWr}, s{sWr}, s{sT}"]
        return o
    k(f"s_mov_b32 s{sN}, {N1}")
    k.label(f"L_{name}_ld")
    k(dma_stage(True))
    k(f"s_sub_u32 s{sN}, s{sN}, 1", f"s_cmp_lg_u32 s{sN}, 0")
    k(f"s_waitcnt vmcnt({8*D})", "s_barrier", f"s_cbranch_scc1 L_{name}_ld")
    k(f"s_lshl_b32 s{sTo}, s{sW}, 11", f"s_add_u32 s{sTo}, s{sTo}, {2*N1*8192}", f"s_lshl_b32 s{sWo}, s{sTo}, 1")
    cnt = lambda n: 8 if n < N1 else (6 if n < N1 + N2 else 0)
    for n in range(N1, N1 + N2 + D):
        if n < N1 + N2:
            k(dma_stage(False))
        k(f"s_waitcnt vmcnt({sum(cnt(m) for m in range(n-D+1, n+1))})", "s_barrier")
    k("s_endpgm")
    if OPT.get("epad", 1):
        k(island(jump=False))
    k.label(f"L_{name}_comp")
    k(f"s_and_b32 s{sTH}, s{sW}, 1", f"s_lshr_b32 s{sCH}, s{sW}, 1")
    k(f"v_lshrrev_b32 v{G}, 4, v{L}", f"v_and_b32 v{TOK}, 15, v{L}",
      f"v_lshlrev_b32 v{T0}, 11, v{TOK}", f"v_lshl_add_u32 v{T0}, v{G}, 4, v{T0}",
      f"s_lshl_b32 s{sN}, s{sTB}, 1", f"s_add_u32 s{sN}, s{sN}, s{sTH}", f"s_lshl_b32 s{sN}, s{sN}, 16",
      f"s_lshl_b32 s{sRes}, s{sNB}, 1", f"s_add_u32 s{sRes}, s{sRes}, s{sCH}", f"s_lshl_b32 s{sRd}, s{sRes}, 7",
      f"s_add_u32 s{sN}, s{sN}, s{sRd}", f"v_add_u32 v{vRow}, s{sN}, v{T0}")
    k(f"s_lshl_b32 s{sRes}, s{sRes}, 13", f"s_lshl_b32 s{sN}, s{sTB}, 17", f"s_add_u32 s{sRes}, s{sRes}, s{sN}",
      f"s_lshl_b32 s{sN}, s{sTH}, 11", f"s_add_u32 s{sRes}, s{sRes}, s{sN}",
      f"s_xor_b32 s{sX0}, s{sRes}, {1<<17}", f"s_add_u32 s{sX0}, s{sX0}, {XB}", f"s_add_u32 s{sX1}, s{sX0}, 4096")
    k(f"s_lshl_b32 s{sT}, s{sTH}, 11", f"v_add_u32 v{bT}, s{sT}, v{vLin}",
      f"s_lshl_b32 s{sT}, s{sCH}, 12", f"s_add_u32 s{sT}, s{sT}, 8192", f"v_add_u32 v{bW}, s{sT}, v{vLin}",
      f"v_mov_b32 v{aT}, v{bT}", f"v_mov_b32 v{aW}, v{bW}")
    k("s_waitcnt lgkmcnt(0)", ws_shift(SWS))
    k(srd_tail(SWS, WS_SZ), srd_tail(SO, 4 * MB))
    for _ in range(D):
        k("s_barrier")
    for i in range(acc[0][0], acc[0][0] + 64, 2):
        k(f"v_mov_b64 {vr(i,2)}, 0")

    def reads(f, full):
        o = []
        for s in range(2):
            o += [f"ds_read_b128 {vr(F[f][s]['X'][i],4)}, v{aT} offset:{(i>>1)*24576+s*4096+(i&1)*1024}" for i in range(4 if full else 2)]
            o += [f"ds_read_b128 {vr(F[f][s]['W'][t],4)}, v{aW} offset:{s*8192+t*1024}" for t in range(4)]
        return o

    def mfmas(f, tiles):
        return [m16(vr(acc[t][i], 4), vr(F[f][s]["W"][t], 4), vr(F[f][s]["X"][i], 4))
                for t in range(4) for i in (tiles if t % 2 == 0 else tiles[::-1]) for s in range(2)]
    adv = [[f"s_add_u32 s{sRd}, s{sRd}, {STG}", f"s_cmp_eq_u32 s{sRd}, {STG*NS}"], [f"s_cselect_b32 s{sRd}, 0, s{sRd}"],
           [f"v_add_u32 v{aT}, s{sRd}, v{bT}", f"v_add_u32 v{aW}, s{sRd}, v{bW}"]]
    ALL, OWN, PAR = [0, 1, 2, 3], [0, 1], [2, 3]
    k(f"s_mov_b32 s{sRd}, 0", f"s_mov_b32 s{sN}, {(N1-1)//2}")
    k("s_barrier")
    mid_stamp(k, 0)
    k(reads(0, True), adv, "s_waitcnt lgkmcnt(0)")

    def step(f, extra):
        k("s_barrier")
        m = weave(mfmas(f, ALL), reads(1 - f, True), 0, 18)
        k(weave(m, adv + extra, len(m) - 8, len(m) - 1), "s_waitcnt lgkmcnt(0)")
    k(".p2align 6")
    k.label(f"L_{name}_loop")
    step(0, [])
    step(1, [[f"s_sub_u32 s{sN}, s{sN}, 1", f"s_cmp_lg_u32 s{sN}, 0"]])
    k(f"s_cbranch_scc1 L_{name}_loop")
    f = 0
    if (N1 - 1) % 2:
        step(0, [])
        f = 1
    if OPT.get("p1"):
        mid_stamp(k, 1)
    snd = []
    for b in range(2):
        for i in range(2):
            o = F[1 - f][b]["X"][2 + i]
            for jt in range(2):
                a = acc[2 * b + jt][2 + i]
                snd += [[f"v_cvt_pk_bf16_f32 v{o+2*jt}, v{a}, v{a+1}", f"v_cvt_pk_bf16_f32 v{o+2*jt+1}, v{a+2}, v{a+3}"]]
            snd += [[f"v_min_u32 v{o+r}, -2, v{o+r}" for r in (0, 1)], [f"v_min_u32 v{o+r}, -2, v{o+r}" for r in (2, 3)] +
                    [f"buffer_store_dwordx4 {vr(o,4)}, v{vLin}, s[{SWS}:{SWS+3}], s{[sX0,sX1][b]} offen offset:{1024*i} sc1"]]
    k("s_barrier")
    k(weave(weave(mfmas(f, PAR), reads(1 - f, False), 0, 10), adv, 22, 27), weave(mfmas(f, OWN), snd, 0, 16), "s_waitcnt lgkmcnt(0)")
    f = 1 - f
    res = [f"buffer_load_dwordx4 {vr(RES[i][b],4)}, v{vLin}, s[{SWS}:{SWS+3}], s{[sT,sT2][b]} offen offset:{1024*i}" for i in range(2) for b in range(2)]
    rcv = [f"buffer_load_dwordx4 {vr(RCV[i][b],4)}, v{vLin}, s[{SWS}:{SWS+3}], s{[sX0,sX1][b]} offen offset:{1024*i} sc1" for i in range(2) for b in range(2)]
    rstep = N1 + N2 - OPT.get("rl", 2)
    for n in range(N1 + 1, N1 + N2):
        k("s_barrier")
        m = weave(mfmas(f, OWN), reads(1 - f, False), 0, 9)
        ex = list(adv) if n < N1 + N2 - 1 else []
        if n == N1 + 1:
            ex += [[f"s_add_u32 s{sT}, s{sRes}, {HF}", f"s_add_u32 s{sT2}, s{sRes}, {HF+4096}",
                    f"s_add_u32 s{sX0}, s{sRes}, {XB}", f"s_add_u32 s{sX1}, s{sRes}, {XB+4096}"], res]
        if n == rstep:
            ex += [rcv]
        k(weave(m, ex, len(m) - 6, len(m)) if ex else m, island() if (n == N1 + 2 and OPT.get("epad", 1)) else None, "s_waitcnt lgkmcnt(0)")
        f = 1 - f
    if rstep >= N1 + N2:
        k(rcv)
    k(mfmas(f, OWN))
    if not OPT.get("p1"):
        mid_stamp(k, 1)
    k(f"s_mov_b32 s{sN}, {1<<20}")
    k.label(f"L_{name}_chk")
    k("s_waitcnt vmcnt(0)")
    rr = [RCV[i][b] + r for i in range(2) for b in range(2) for r in range(4)]
    k(f"v_max3_u32 v{T0}, v{rr[0]}, v{rr[1]}, v{rr[2]}", f"v_max3_u32 v{T1}, v{rr[3]}, v{rr[4]}, v{rr[5]}")
    for j in range(6, 16, 2):
        t = [T0, T1][(j // 2) & 1]
        k(f"v_max3_u32 v{t}, v{rr[j]}, v{rr[j+1]}, v{t}")
    k(f"v_max_u32 v{T0}, v{T0}, v{T1}", f"v_cmp_eq_u32 vcc, -1, v{T0}", f"s_sub_u32 s{sN}, s{sN}, 1", f"s_cbranch_scc1 L_{name}_out",
      f"s_cbranch_vccz L_{name}_out", "s_sleep 2", rcv, f"s_branch L_{name}_chk")
    k.label(f"L_{name}_out")
    k(f"s_mov_b32 s{sN}, 32768")
    U = F[0][0]["W"][0]
    for i in range(2):
        for b in range(2):
            o = F[0][1]["W"][2 * i + b]
            for jt in range(2):
                a = acc[2 * b + jt][i]
                for h in range(2):
                    r, q = RES[i][b] + 2 * jt + h, RCV[i][b] + 2 * jt + h
                    k(f"v_lshlrev_b32 v{U}, 16, v{q}", f"v_and_b32 v{U+1}, 0xffff0000, v{q}",
                      f"v_lshlrev_b32 v{U+2}, 16, v{r}", f"v_and_b32 v{U+3}, 0xffff0000, v{r}",
                      f"v_pk_add_f32 {vr(a+2*h,2)}, {vr(a+2*h,2)}, {vr(U,2)}", f"v_pk_add_f32 {vr(a+2*h,2)}, {vr(a+2*h,2)}, {vr(U+2,2)}",
                      f"v_cvt_pk_bf16_f32 v{o+2*jt+h}, v{a+2*h}, v{a+2*h+1}")
            k(f"buffer_store_dwordx4 {vr(o,4)}, v{vRow}, s[{SO}:{SO+3}], {['0', f's{sN}'][i]} offen offset:{64*b} sc1")
    tail(k, kidx, sW)
    return k


def k4_down4(kidx):
    name, K = "down_kernel", 3584
    D = OPT.get("dd", 2)
    N1 = OPT.get("n1", 25)
    N2 = 56 - 2 * N1
    STG, NS = 24576, D + 2
    k = Kern(name, 256, 512, STG * NS)
    SWS, SO = 4, 20
    sW, sTB, sNB, sN, sT, sT2, sRd, sWr, sTo, sWo, sTH, sCH, sRes, sDW, sKQ = range(28, 43)
    sX = [[44 + 2 * r + b for b in range(2)] for r in range(4)]
    v = Alloc(1)
    L, G, TOK, T0, T1, vLin, bT, bW, aT, aW, vRow = [v() for _ in range(11)]
    F = [[dict(X=[v(4, 4) for _ in range(2)], W=[v(4, 4) for _ in range(4)]) for s in range(2)] for _ in range(2)]
    acc = [[[v(4, 4) for i in range(2)] for t in range(4)] for r in range(4)]
    RES = [[v(4, 4) for b in range(2)] for i in range(2)]
    SND = lambda r, i, b: acc[r][2 * b][i]
    RCV = lambda r, i, b: acc[r][2 * b + 1][i] if r else RES[i][b]
    k.vgpr = k.acc = (v.n + 7) // 8 * 8
    head(k, True)
    k(f"s_load_dwordx2 s[{SWS}:{SWS+1}], s[0:1], {A_WS}", f"s_load_dwordx2 s[{SO}:{SO+1}], s[0:1], {A_OUT}")
    k(f"v_lshrrev_b32 v{T1}, 6, v0", f"v_and_b32 v{L}, 63, v0", f"v_readfirstlane_b32 s{sW}, v{T1}", f"v_lshlrev_b32 v{vLin}, 4, v{L}")
    k(f"s_bfe_u32 s{sNB}, s2, 0x20003", f"s_lshl_b32 s{sNB}, s{sNB}, 1", f"s_and_b32 s{sT}, s2, 1", f"s_add_u32 s{sNB}, s{sNB}, s{sT}",
      f"s_lshr_b32 s{sTB}, s2, 5", f"s_lshl_b32 s{sTB}, s{sTB}, 1", f"s_bfe_u32 s{sT}, s2, 0x10001", f"s_add_u32 s{sTB}, s{sTB}, s{sT}",
      f"s_and_b32 s{sT}, s2, 4", f"s_lshl_b32 s{sT}, s{sT}, 2", f"s_add_u32 s{sTB}, s{sTB}, s{sT}",
      f"s_and_b32 s{sTH}, s{sW}, 1", f"s_bfe_u32 s{sCH}, s{sW}, 0x10001")
    k(f"s_cmp_lt_u32 s{sW}, 4", f"s_cbranch_scc1 L_{name}_comp")
    k(f"s_and_b32 s{sW}, s{sW}, 3", f"s_and_b32 s{sKQ}, s2, 3",
      f"s_lshl_b32 s{sWr}, s{sW}, 11", f"s_add_u32 s{sDW}, s{sWr}, 8192",
      f"s_mul_i32 s{sT2}, s{sKQ}, {N1*4096}", f"s_lshl_b32 s{sT}, s{sTH}, 11", f"s_add_u32 s{sT2}, s{sT2}, s{sT}",
      f"s_xor_b32 s{sT}, s{sTB}, s{sCH}", f"s_mul_i32 s{sTo}, s{sT}, {K*128}", f"s_add_u32 s{sTo}, s{sTo}, s{sT2}", f"s_add_u32 s{sTo}, s{sTo}, {AF}",
      f"s_xor_b32 s{sT}, s{sNB}, s{sCH}", f"s_mul_i32 s{sWo}, s{sT}, {K*128}", f"s_add_u32 s{sWo}, s{sWo}, s{sT2}", f"s_lshl_b32 s{sWo}, s{sWo}, 1",
      f"s_add_u32 s{sWo}, s{sWo}, {WDF}")
    k("s_waitcnt lgkmcnt(0)", ws_shift(SWS), srd_tail(SWS, WS_SZ))

    def dma_stage(step):
        o = [f"s_mov_b32 m0, s{sWr}", "s_nop 0"]
        o += [f"buffer_load_dwordx4 v{vLin}, s[{SWS}:{SWS+3}], s{sTo} offen offset:{1024*i} lds" for i in range(2)]
        o += [f"s_add_u32 m0, s{sWr}, s{sDW}", f"s_add_u32 s{sTo}, s{sTo}, {step}"]
        o += [f"buffer_load_dwordx4 v{vLin}, s[{SWS}:{SWS+3}], s{sWo} offen offset:{1024*i} lds" for i in range(4)]
        o += [f"s_add_u32 s{sWo}, s{sWo}, {2*step}", f"s_add_u32 s{sWr}, s{sWr}, {STG}", f"s_cmp_ge_u32 s{sWr}, {STG*NS}",
              f"s_cselect_b32 s{sT}, {STG*NS}, 0", f"s_sub_u32 s{sWr}, s{sWr}, s{sT}",
              f"s_sub_u32 s{sN}, s{sN}, 1", f"s_cmp_lg_u32 s{sN}, 0", f"s_waitcnt vmcnt({6*D})", "s_barrier"]
        return o
    k(f"s_mov_b32 s{sN}, {N1}")
    k.label(f"L_{name}_ld")
    k(dma_stage(4096), f"s_cbranch_scc1 L_{name}_ld")
    k(f"s_lshl_b32 s{sT2}, s{sW}, 11", f"s_add_u32 s{sT2}, s{sT2}, {4*N1*4096}",
      f"s_mul_i32 s{sTo}, s{sTB}, {K*128}", f"s_add_u32 s{sTo}, s{sTo}, s{sT2}", f"s_add_u32 s{sTo}, s{sTo}, {AF}",
      f"s_mul_i32 s{sWo}, s{sNB}, {K*128}", f"s_add_u32 s{sWo}, s{sWo}, s{sT2}", f"s_lshl_b32 s{sWo}, s{sWo}, 1",
      f"s_add_u32 s{sWo}, s{sWo}, {WDF}", f"s_mov_b32 s{sN}, {N2}")
    k.label(f"L_{name}_ld2")
    k(dma_stage(8192), f"s_cbranch_scc1 L_{name}_ld2")
    for d in range(D - 1, -1, -1):
        k(f"s_waitcnt vmcnt({6*d})", "s_barrier")
    k("s_endpgm")
    k(island(jump=False))
    k.label(f"L_{name}_comp")
    k(f"v_lshrrev_b32 v{G}, 4, v{L}", f"v_and_b32 v{TOK}, 15, v{L}",
      f"v_lshlrev_b32 v{T0}, 11, v{TOK}", f"v_lshl_add_u32 v{T0}, v{G}, 4, v{T0}",
      f"s_lshl_b32 s{sN}, s{sTB}, 1", f"s_add_u32 s{sN}, s{sN}, s{sTH}", f"s_lshl_b32 s{sN}, s{sN}, 16",
      f"s_lshl_b32 s{sRes}, s{sNB}, 1", f"s_add_u32 s{sRes}, s{sRes}, s{sCH}", f"s_lshl_b32 s{sRd}, s{sRes}, 7",
      f"s_add_u32 s{sN}, s{sN}, s{sRd}", f"v_add_u32 v{vRow}, s{sN}, v{T0}")
    for _ in range(D):
        k("s_barrier")
    k(f"s_lshl_b32 s{sRes}, s{sRes}, 13", f"s_lshl_b32 s{sN}, s{sTB}, 17", f"s_add_u32 s{sRes}, s{sRes}, s{sN}",
      f"s_lshl_b32 s{sN}, s{sTH}, 11", f"s_add_u32 s{sRes}, s{sRes}, s{sN}")
    for r in range(1, 4):
        k(f"s_xor_b32 s{sT}, s{sRes}, {((r&1)<<17)|((r>>1)<<14)}", f"s_add_u32 s{sX[r][0]}, s{sT}, {XB4[r]}", f"s_add_u32 s{sX[r][1]}, s{sT}, {XB4[r]+4096}")
    k(f"s_lshl_b32 s{sT}, s{sTH}, 11", f"v_add_u32 v{bT}, s{sT}, v{vLin}",
      f"s_lshl_b32 s{sT}, s{sCH}, 12", f"s_add_u32 s{sT}, s{sT}, 8192", f"v_add_u32 v{bW}, s{sT}, v{vLin}",
      f"v_mov_b32 v{aT}, v{bT}", f"v_mov_b32 v{aW}, v{bW}")
    k("s_waitcnt lgkmcnt(0)", ws_shift(SWS))
    k(srd_tail(SWS, WS_SZ), srd_tail(SO, 4 * MB))

    def reads(f):
        o = []
        for s in range(2):
            o += [f"ds_read_b128 {vr(F[f][s]['X'][i],4)}, v{aT} offset:{s*4096+i*1024}" for i in range(2)]
            o += [f"ds_read_b128 {vr(F[f][s]['W'][t],4)}, v{aW} offset:{s*8192+t*1024}" for t in range(4)]
        return o

    def mf1(f, c=None):
        o = []
        for sw in range(2):
            for t in range(4):
                xs = [(0, 0), (0, 1), (1, 0), (1, 1)]
                for sx, i in (xs if t % 2 == 0 else xs[::-1]):
                    o.append(m16(vr(acc[2 * sw + sx][t][i], 4), vr(F[f][sw]["W"][t], 4), vr(F[f][sx]["X"][i], 4), c))
        return o

    def mf1r(f, r):
        return [m16(vr(acc[r][t][i], 4), vr(F[f][r >> 1]["W"][t], 4), vr(F[f][r & 1]["X"][i], 4)) for t in range(4) for i in ((0, 1) if t % 2 == 0 else (1, 0))]

    def mf2(f):
        return [m16(vr(acc[0][t][i], 4), vr(F[f][s]["W"][t], 4), vr(F[f][s]["X"][i], 4))
                for t in range(4) for i in ((0, 1) if t % 2 == 0 else (1, 0)) for s in range(2)]
    adv = [[f"s_add_u32 s{sRd}, s{sRd}, {STG}", f"s_cmp_eq_u32 s{sRd}, {STG*NS}"], [f"s_cselect_b32 s{sRd}, 0, s{sRd}"],
           [f"v_add_u32 v{aT}, s{sRd}, v{bT}", f"v_add_u32 v{aW}, s{sRd}, v{bW}"]]
    k(f"s_mov_b32 s{sRd}, 0", f"s_mov_b32 s{sN}, {(N1-2)//2}")
    k("s_barrier")
    mid_stamp(k, 0)
    k(reads(0), adv, "s_waitcnt lgkmcnt(0)")

    def step(f, extra, c=None):
        k("s_barrier")
        m = weave(mf1(f, c), reads(1 - f), 0, 14)
        k(weave(m, adv + extra, len(m) - 10, len(m) - 2), "s_waitcnt lgkmcnt(0)")
    step(0, [], "0")
    k(".p2align 6")
    k.label(f"L_{name}_loop")
    step(1, [])
    step(0, [[f"s_sub_u32 s{sN}, s{sN}, 1", f"s_cmp_lg_u32 s{sN}, 0"]])
    k(f"s_cbranch_scc1 L_{name}_loop")
    f = 1
    if (N1 - 2) % 2:
        step(1, [])
        f = 0

    def snd(r):
        o = []
        for b in range(2):
            for i in range(2):
                d, a = SND(r, i, b), acc[r][2 * b + 1][i]
                o += [[f"v_cvt_pk_bf16_f32 v{d}, v{d}, v{d+1}", f"v_cvt_pk_bf16_f32 v{d+1}, v{d+2}, v{d+3}"],
                      [f"v_cvt_pk_bf16_f32 v{d+2}, v{a}, v{a+1}", f"v_cvt_pk_bf16_f32 v{d+3}, v{a+2}, v{a+3}"],
                      [f"v_min_u32 v{d+q}, -2, v{d+q}" for q in (0, 1)], [f"v_min_u32 v{d+q}, -2, v{d+q}" for q in (2, 3)] +
                      [f"buffer_store_dwordx4 {vr(d,4)}, v{vLin}, s[{SWS}:{SWS+3}], s{sX[r][b]} offen offset:{1024*i} sc1"]]
        return o
    if OPT.get("p1"):
        mid_stamp(k, 1)
    k("s_barrier")
    k(weave(weave(mf1r(f, 3) + mf1r(f, 2), reads(1 - f), 0, 10), adv, 22, 27), weave(mf1r(f, 1) + mf1r(f, 0), snd(3), 0, 16), "s_waitcnt lgkmcnt(0)")
    k(island())
    f = 1 - f
    rcv = lambda r: [f"buffer_load_dwordx4 {vr(RCV(r,i,b),4)}, v{vLin}, s[{SWS}:{SWS+3}], s{sX[r][b]} offen offset:{1024*i}{' sc1' if r else ''}"
                     for i in range(2) for b in range(2)]
    radr = [[f"s_add_u32 s{sX[r][b]}, s{sRes}, {XB4[r]+4096*b}" for b in range(2)] for r in range(4)]
    rl = OPT.get("rl", 2)
    for n in range(1, N2):
        k("s_barrier")
        m = weave(mf2(f), reads(1 - f), 0, 9)
        ex = list(adv) if n < N2 - 1 else []
        if n == 1:
            k(weave(m, ex, len(m) - 6, len(m) - 2), snd(2), snd(1), radr, rcv(0))
        else:
            if n == N2 - rl:
                ex += [rcv(3), rcv(2), rcv(1)]
            k(weave(m, ex, len(m) - 6, len(m)) if ex else m)
        k("s_waitcnt lgkmcnt(0)")
        f = 1 - f
    if rl == 0:
        k(rcv(3), rcv(2), rcv(1))
    k(mf2(f))
    if not OPT.get("p1"):
        mid_stamp(k, 1)
    U = F[0][0]["W"][0]

    def add(r):
        for i in range(2):
            for b in range(2):
                for jt in range(2):
                    a, q = acc[0][2 * b + jt][i], RCV(r, i, b) + 2 * jt
                    k(f"v_lshlrev_b32 v{U}, 16, v{q}", f"v_and_b32 v{U+1}, 0xffff0000, v{q}",
                      f"v_lshlrev_b32 v{U+2}, 16, v{q+1}", f"v_and_b32 v{U+3}, 0xffff0000, v{q+1}",
                      f"v_pk_add_f32 {vr(a,2)}, {vr(a,2)}, {vr(U,2)}", f"v_pk_add_f32 {vr(a+2,2)}, {vr(a+2,2)}, {vr(U+2,2)}")
                if r == 1:
                    o = F[0][1]["W"][2 * i + b]
                    for jt in range(2):
                        a = acc[0][2 * b + jt][i]
                        k(f"v_cvt_pk_bf16_f32 v{o+2*jt}, v{a}, v{a+1}", f"v_cvt_pk_bf16_f32 v{o+2*jt+1}, v{a+2}, v{a+3}")
                    k(f"buffer_store_dwordx4 {vr(o,4)}, v{vRow}, s[{SO}:{SO+3}], {['0', f's{sT2}'][i]} offen offset:{64*b} sc1")
    k(f"s_mov_b32 s{sN}, {1<<20}", f"s_mov_b32 s{sT2}, 32768", "s_waitcnt vmcnt(12)", "s_nop 1")
    add(0)
    for r in (3, 2, 1):
        k(f"s_waitcnt vmcnt({4*(r-1)})")
        k.label(f"L_{name}_chk{r}")
        rr = [RCV(r, i, b) + q for i in range(2) for b in range(2) for q in range(4)]
        k(f"v_max3_u32 v{T0}, v{rr[0]}, v{rr[1]}, v{rr[2]}", f"v_max3_u32 v{T1}, v{rr[3]}, v{rr[4]}, v{rr[5]}")
        for j in range(6, 16, 2):
            t = [T0, T1][(j // 2) & 1]
            k(f"v_max3_u32 v{t}, v{rr[j]}, v{rr[j+1]}, v{t}")
        k(f"v_max_u32 v{T0}, v{T0}, v{T1}", f"v_cmp_eq_u32 vcc, -1, v{T0}", f"s_sub_u32 s{sN}, s{sN}, 1", f"s_cbranch_scc1 L_{name}_ok{r}",
          f"s_cbranch_vccz L_{name}_ok{r}", [rcv(q) for q in range(r, 0, -1)], "s_waitcnt vmcnt(0)", f"s_branch L_{name}_chk{r}")
        k.label(f"L_{name}_ok{r}")
        add(r)
    tail(k, kidx, sW)
    return k


class Op:
    def __init__(self, text, kind="v", needs=(), bar=False):
        self.text, self.kind, self.needs, self.bar = text, kind, list(needs), bar
        self.seq = None

    @property
    def cost(self):
        return 8 if self.kind == "t" else 4


def emit_stream(k, ops, nl=0, nv=0):
    cnt = {"lds": nl, "vm": nv}
    done = {"lds": 0, "vm": 0}
    for o in ops:
        if o.kind in cnt:
            cnt[o.kind] += 1
            o.seq = cnt[o.kind]
            k(o.text)
        elif o.kind == "wait":
            parts = []
            for kind, nm, mx in (("vm", "vmcnt", 63), ("lds", "lgkmcnt", 15)):
                need = [x.seq for x in o.needs if x.kind == kind]
                assert None not in need, "wait on an op that was not issued yet"
                tgt = cnt[kind] if (o.bar and kind == "lds") else max(need, default=0)
                if tgt > done[kind]:
                    n = cnt[kind] - tgt
                    assert n <= mx or kind == "vm"
                    parts.append(f"{nm}({min(n, mx)})")
                    done[kind] = tgt
            if parts:
                k("s_waitcnt " + " ".join(parts))
            if o.bar:
                k("s_barrier")
        else:
            k(o.text)
    return cnt


def k3_gateup():
    STG, NS = 28672, 5
    TBL = NS * STG
    k = Kern("ffn_kernel", 256, 256, 163840)
    SWS, ST_, SW_, SO = 4, 8, 12, 20
    slot = lambda n: (n + 3) % NS
    sW, sMB, sFB, sN, sT, sT2, sTo, sWo, sWr, sTB, sA0, sA1, sSt, sCp = range(28, 42)
    v = Alloc(1)
    vLin, vR1, vR2, vCs, vSt, vTid, vOut = [v() for _ in range(7)]
    PA = [v(2, 2) for _ in range(4)]
    SD = [v(2, 2) for _ in range(2)]
    TA, TB_, TC = v(4, 4), v(4, 4), v(4, 4)
    assert v.n <= 32, v.n
    acc = [[32 + (a * 4 + b) * 4 for b in range(4)] for a in range(14)]
    TK = [[[32 * n + 16 * s + 4 * b for b in range(4)] for s in range(2)] for n in range(NS)]
    WF = [[160 + 8 * n + 4 * s for s in range(2)] for n in range(4)]
    SP, CP = 192, 224
    k.vgpr, k.acc = 512, 256
    head(k, True)
    k(f"s_load_dwordx2 s[{SWS}:{SWS+1}], s[0:1], {A_WS}", f"s_load_dwordx2 s[{SO}:{SO+1}], s[0:1], {A_OUT}")
    k(f"v_lshrrev_b32 v{TA}, 6, v0", f"v_and_b32 v{TA+1}, 63, v0", f"v_readfirstlane_b32 s{sW}, v{TA}", f"v_lshlrev_b32 v{vLin}, 4, v{TA+1}")
    k(f"s_lshr_b32 s{sT}, s2, 3", f"s_lshr_b32 s{sMB}, s{sT}, 2", f"s_and_b32 s{sT}, s{sT}, 3",
      f"s_and_b32 s{sFB}, s2, 7", f"s_lshl_b32 s{sFB}, s{sFB}, 2", f"s_add_u32 s{sFB}, s{sFB}, s{sT}",
      f"s_lshl_b32 s{sTB}, s{sMB}, 2", f"s_add_u32 s{sTB}, s{sTB}, s{sW}",
      f"s_lshl_b32 s{sT}, s{sTB}, 17", f"s_add_u32 s{sT}, s{sT}, {HF}",
      f"s_mul_i32 s{sT2}, s{sFB}, {32*14*1024}", f"s_add_u32 s{sT2}, s{sT2}, {WGU}",
      f"s_mul_i32 s{sWo}, s{sW}, 7168", f"s_mov_b32 s{sWr}, s{sWo}", f"s_mov_b32 s{sTo}, 0")
    k("s_waitcnt lgkmcnt(0)", ws_shift(SWS))
    k(srd_from(ST_, SWS, f"s{sT}", 131072), srd_from(SW_, SWS, f"s{sT2}", 32 * 14 * 1024))

    def vm_stage(n):
        o = []
        for i in range(7):
            pre, post = [], []
            if i % 4 == 0:
                pre = [f"s_add_u32 m0, s{sWr}, {slot(n)*STG+1024*i}"]
            if i == 3:
                post = [f"s_add_u32 s{sWo}, s{sWo}, 4096"]
            if i == 6:
                post = [f"s_add_u32 s{sWo}, s{sWo}, {STG-4096}"]
            o.append((pre, Op(f"buffer_load_dwordx4 v{vLin}, s[{SW_}:{SW_+3}], s{sWo} offen offset:{1024*(i%4)} lds", "vm"), post, n))
        for s in range(2):
            for b in range(4):
                post = [f"s_add_u32 s{sTo}, s{sTo}, 4096"] if b == 3 else []
                o.append(([], Op(f"buffer_load_dwordx4 {ar(TK[slot(n)][s][b],4)}, v{vLin}, s[{ST_}:{ST_+3}], s{sTo} offen offset:{1024*b}", "vm"), post, n))
        return o
    VM = [vm_stage(n) for n in range(16)]
    HALF = OPT.get("k3half", 1)
    if HALF:
        wl = [([f"s_add_u32 m0, s{sN}, {slot(0)*STG}"], Op(f"buffer_load_dwordx4 v{vLin}, s[{SW_}:{SW_+3}], s{sN} offen lds", "vm"),
               [f"s_add_u32 s{sN}, s{sN}, 4096"] if i < 6 else [f"s_add_u32 s{sWo}, s{sWo}, {STG}"], 0) for i in range(7)]
        VM[0] = VM[0][7:11] + wl[:4] + VM[0][11:15] + wl[4:]
        k(f"s_lshl_b32 s{sN}, s{sW}, 10")
    stat_ld = [([], Op(f"buffer_load_dwordx4 {ar(SP+4*i,4)}, v{vLin}, s[{SWS}:{SWS+3}], s{sSt} offen offset:{1024*(i%4)}", "vm"),
                [f"s_add_u32 s{sSt}, s{sSt}, 4096"] if i == 3 else [], None) for i in range(8)]
    cs_ld = [([], Op(f"buffer_load_dword {ar(CP+p)}, v{vTid}, s[{SWS}:{SWS+3}], s{sCp} offen", "vm"),
              [f"s_add_u32 s{sCp}, s{sCp}, {32*896}"], None) for p in range(8)]
    pro = []
    for i, (pre, ld, post, _) in enumerate(VM[0] if HALF else VM[0] + VM[1]):
        pro += [Op(x, "s") for x in pre] + ([Op("s_nop 0", "s")] if pre else []) + [ld] + [Op(x, "s") for x in post]
        if i == (7 if HALF else 14):
            cut = len(pro)
            pro.append(Op("s_barrier", "s"))
    pro, pro2 = pro[:cut], pro[cut:]
    misc = srd_tail(SWS, WS_SZ) + [
        f"s_lshl_b32 s{sSt}, s{sTB}, 13", f"s_add_u32 s{sSt}, s{sSt}, {STP}",
        f"s_mul_i32 s{sCp}, s{sFB}, 896", f"s_add_u32 s{sCp}, s{sCp}, {CSP}",
        f"v_add_u32 v{vR1}, {2*STG}, v{vLin}", f"v_add_u32 v{vR2}, {4*STG}, v{vLin}",
        f"v_lshlrev_b32 v{vTid}, 2, v0",
        f"v_lshrrev_b32 v{TA}, 4, v{TA+1}", f"v_lshlrev_b32 v{vCs}, 4, v{TA}", f"v_add_u32 v{vCs}, {TBL}, v{vCs}",
        f"v_and_b32 v{TA+2}, 1, v{TA}", f"v_lshlrev_b32 v{TA+2}, 10, v{TA+2}", f"v_lshrrev_b32 v{TA}, 1, v{TA}",
        f"v_lshl_add_u32 v{TA+2}, v{TA}, 8, v{TA+2}", f"v_and_b32 v{TA+1}, 15, v{TA+1}", f"v_lshl_add_u32 v{vOut}, v{TA+1}, 4, v{TA+2}",
        f"s_mul_i32 s{sT}, s{sTB}, {112*4096}", f"s_add_u32 s{sT}, s{sT}, {AF}", f"s_and_b32 s{sT2}, s{sFB}, 1", f"s_lshl_b32 s{sT2}, s{sT2}, 9",
        f"s_add_u32 s{sT}, s{sT}, s{sT2}", f"s_lshr_b32 s{sT2}, s{sFB}, 1", f"s_lshl_b32 s{sT2}, s{sT2}, 12", f"s_add_u32 s{sT}, s{sT}, s{sT2}",
        f"s_add_u32 s{sA1}, s{sT}, {96*4096}", f"s_lshr_b32 s{sT2}, s{sFB}, 4", f"s_mul_i32 s{sT2}, s{sT2}, {40*4096}", f"s_add_u32 s{sA0}, s{sT}, s{sT2}"]
    pro += [Op(x, "s") for x in misc]
    if OPT.get("k3pf", 1):
        pro += [Op(x, "s") for x in ["s_getpc_b64 s[16:17]", f"s_lshr_b32 s{sT}, s2, 3", f"s_lshl_b32 s{sT}, s{sT}, 10",
                                     f"v_add_u32 v{TA}, s{sT}, v{vTid}", f"v_min_u32 v{TA}, L_code_end-L_k3_pf-4, v{TA}", "L_k3_pf:"]]
        pro.append(Op(f"global_load_dword v{TC}, v{TA}, s[16:17]", "vm"))

    if OPT.get("isl", 1):
        pro.append(Op(island(), "s"))
    seg0 = len(pro)
    pro += pro2
    order = [a for p in range(7) for a in (p, p + 7)]
    S0 = 12
    seq = [(n, a) for n in range(S0) for a in order]
    seq += [(n, a) for p in range(7) for n in range(S0, 16) for a in (p, p + 7)]
    NT_ = len(seq)
    mf, fixed = [], [[] for _ in range(8 * NT_)]
    RD = []
    for gt, (n, a) in enumerate(seq):
        sl = slot(n)
        fr = [(a, 0), (a, 1)] if not (HALF and n == 0) else [(gt % 7, gt // 7), (gt % 7 + 7, gt // 7)]
        RD.append([Op(f"ds_read_b128 {ar(WF[gt%4][e],4)}, v{[vLin,vR1,vR2][sl>>1]} offset:{(sl&1)*STG+s*14336+t*1024}", "lds") for e, (t, s) in enumerate(fr)])
        bs = range(4) if gt % 2 == 0 else range(3, -1, -1)
        for b in bs:
            for e, (t, s) in enumerate(fr):
                mf.append(Op(m16(vr(acc[t][b], 4), ar(WF[gt % 4][e], 4), ar(TK[sl][s][b], 4), "0" if (n == 0 and s == 0) else None), "m"))
    first = {}
    for gt, (n, a) in enumerate(seq):
        first.setdefault(n, gt)
    barpos = {}
    for gt in range(NT_):
        if gt + 2 < NT_:
            fixed[8 * gt].append(RD[gt + 2][0]); fixed[8 * gt + 1].append(RD[gt + 2][1])
        newst = [n for n in range(1, 16) if first[n] == gt + 3]
        if HALF and gt == 4:
            newst = [0]
        if newst:
            fixed[8 * gt + 7].append(Op("", "wait", [x[1] for x in VM[newst[0]]], bar=True))
            barpos[newst[0]] = 8 * gt + 7
        elif gt + 1 < NT_:
            fixed[8 * gt + 7].append(Op("", "wait", RD[gt + 1]))
    flat = (VM[1] if HALF else []) + VM[2] + VM[3] + VM[4] + stat_ld + cs_ld + [x for n in range(5, 16) for x in VM[n]]
    nfast = OPT.get("k3fast", 15) if HALF else 0
    slots = [8 * gt + o for gt in range(S0 * 14) for o in (3, 6)]
    nsl = len(slots) - 2 * OPT.get("k3lead", 8)
    vpos = {}
    si = -1
    for i, (pre, ld, post, n) in enumerate(flat):
        si = max(si + 1, nfast + ((i - nfast) * (nsl - nfast)) // (len(flat) - nfast) if i >= nfast else 0)
        if n is not None and n >= NS:
            lim = barpos[n - NS + 1] + 2 if "lds" in ld.text else 8 * 14 * (n - NS + 1)
            while slots[si] < lim:
                si += 1
        p = slots[si]
        fixed[p - 1] += [Op(x, "s") for x in pre]
        fixed[p] += [ld] + [Op(x, "s") for x in post]
        vpos[id(ld)] = p
    used = [sum(o.cost for o in f if not (o.kind == "wait" and False)) for f in fixed]
    flo = [[] for _ in fixed]

    def flow(ops, start, deadline=None):
        p = start
        for o in ops:
            while used[p] + o.cost > 8:
                p += 1
            flo[p].append(o); used[p] += o.cost
        assert deadline is None or p < deadline, (p, deadline)
        return p + 1

    def spread(ops, start, stop):
        tot = sum(o.cost for o in ops) + sum(used[start:stop])
        cap = max(8.0, tot / (stop - start))
        p, acc_used, acc_cap = start, used[start], cap
        for o in ops:
            while acc_used + o.cost > acc_cap + 2 and p < stop - 1:
                p += 1
                if cap == 8.0:
                    acc_used, acc_cap = used[p], cap
                else:
                    acc_used += used[p]; acc_cap += cap
            flo[p].append(o); acc_used += o.cost
        return p
    V = lambda t: Op(t, "v")
    st = [Op("", "wait", [x[1] for x in stat_ld + cs_ld])]
    st += [V(f"v_accvgpr_read_b32 v{TC}, a{CP}")]
    for p in range(1, 8):
        st += [V(f"v_accvgpr_read_b32 v{TB_}, a{CP+p}"), V(f"v_add_f32 v{TC}, v{TC}, v{TB_}")]
    st += [V(f"v_add_u32 v{vTid}, {TBL}, v{vTid}"), Op(f"ds_write_b32 v{vTid}, v{TC}", "lds")]
    for hf in range(2):
        A = TA
        st += [V(f"v_accvgpr_read_b32 v{A+r}, a{SP+16*hf+r}") for r in range(4)]
        for i in range(1, 4):
            st += [V(f"v_accvgpr_read_b32 v{TB_+r}, a{SP+16*hf+4*i+r}") for r in range(4)]
            st += [V(f"v_add_f32 v{A+r}, v{A+r}, v{TB_+r}") for r in range(4)]
        for op in ("v_permlane16_swap_b32", "v_permlane32_swap_b32"):
            st += [V(f"v_mov_b32 v{TB_+r}, v{A+r}") for r in range(4)]
            st += [V(f"{op} v{A+r}, v{TB_+r}") for r in range(4)]
            st += [V(f"v_add_f32 v{A+r}, v{A+r}, v{TB_+r}") for r in range(4)]
        for b in (2 * hf, 2 * hf + 1):
            sd = SD[b >> 1] + (b & 1)
            st += [V(f"v_mul_f32 v{PA[b]+1}, {f32(-1/1024)}, v{A+2*(b&1)}"),
                   V(f"v_mul_f32 v{PA[b]}, {f32(1/1024)}, v{A+2*(b&1)+1}"),
                   V(f"v_fma_f32 v{PA[b]}, -v{PA[b]+1}, v{PA[b]+1}, v{PA[b]}"),
                   V(f"v_max_f32 v{PA[b]}, 0, v{PA[b]}"),
                   V(f"v_add_f32 v{sd}, {f32(EPS)}, v{PA[b]}"),
                   Op(f"v_rsq_f32 v{PA[b]}, v{sd}", "t"), V("v_nop"),
                   V(f"v_mul_f32 v{sd}, v{sd}, v{PA[b]}"),
                   V(f"v_mul_f32 v{PA[b]}, {f32(-LOG2E)}, v{PA[b]}")]
    p = flow(st, vpos[id(cs_ld[-1][1])] + 90)
    n0 = min(n for n in range(1, S0) if barpos[n] >= p)
    p = barpos[n0] + 1
    todo = list(order)
    step = (8 * 14 * S0 - 40 - p) // 14
    for i in range(14):
        cur = lambda a: all(seq[q // 8][1] != a for q in range(p - 2, p + 48))
        cand = [a for a in todo if cur(a)]
        while not cand:
            p += 4
            cand = [a for a in todo if cur(a)]
        a = cand[0]
        todo.remove(a)
        C = [TA, TC][i & 1]
        r = Op(f"ds_read_b128 {vr(C,4)}, v{vCs} offset:{64*a}", "lds")
        ops = [V(f"v_fmac_f32 v{acc[a][b]+e}, v{PA[b]+1}, v{C+e}") for b in range(4) for e in range(4)]
        q = flow([r], p)
        q = flow([Op("", "wait", [r])] + ops, q + 6, p + 46)
        p = max(q, p + min(step, 24))
    assert p < barpos[15], p
    def epi(pr, packed):
        o = []
        for bb in (0, 2):
            d = acc[pr][bb]
            for b in (bb, bb + 1):
                g_, u = acc[pr][b], acc[pr + 7][b]
                sd = SD[b >> 1] + (b & 1)
                if packed:
                    sel = f"op_sel:[0,{b&1},{b&1}] op_sel_hi:[1,{b&1},{b&1}]"
                    o += [V(f"v_pk_mul_f32 {vr(g_+h,2)}, {vr(g_+h,2)}, {vr(PA[b],2)} op_sel:[0,0] op_sel_hi:[1,0]") for h in (0, 2)]
                    o += [Op(f"v_exp_f32 v{g_+r}, v{g_+r}", "t") for r in range(4)]
                    o += [V(f"v_pk_fma_f32 {vr(g_+h,2)}, {vr(g_+h,2)}, {vr(SD[b>>1],2)}, {vr(SD[b>>1],2)} {sel}") for h in (0, 2)]
                    o += [Op(f"v_rcp_f32 v{g_+r}, v{g_+r}", "t") for r in range(4)]
                    o += [V(f"v_pk_mul_f32 {vr(u+h,2)}, {vr(u+h,2)}, {vr(g_+h,2)}") for h in (0, 2)]
                else:
                    o += [V(f"v_mul_f32 v{g_+r}, v{PA[b]}, v{g_+r}") for r in range(4)]
                    o += [Op(f"v_exp_f32 v{g_+r}, v{g_+r}", "t") for r in range(4)]
                    o += [V(f"v_fma_f32 v{g_+r}, v{g_+r}, v{sd}, v{sd}") for r in range(4)]
                    o += [Op(f"v_rcp_f32 v{g_+r}, v{g_+r}", "t") for r in range(4)]
                    o += [V(f"v_mul_f32 v{u+r}, v{u+r}, v{g_+r}") for r in range(4)]
                o += [V(f"v_cvt_pk_bf16_f32 v{d+2*(b&1)}, v{u}, v{u+1}"), V(f"v_cvt_pk_bf16_f32 v{d+2*(b&1)+1}, v{u+2}, v{u+3}")]
            o += [V("v_nop"), V(f"v_permlane16_swap_b32 v{d}, v{d+2}"), V(f"v_permlane16_swap_b32 v{d+1}, v{d+3}")]
            sa = sA1 if pr == 6 else sA0
            o.append(Op(f"buffer_store_dwordx4 {vr(d,4)}, v{vOut}, s[{SWS}:{SWS+3}], s{sa} offen offset:{1024*bb} sc1", "vm"))
        o.append(Op(f"s_add_u32 s{sa}, s{sa}, {8*4096}", "s"))
        return o
    run = 8 * 2 * (16 - S0)
    t0 = 8 * 14 * S0
    D, N1, K = OPT.get("dd", 3), OPT.get("n1", 26), 3584
    N2 = 56 - 2 * N1
    NST = N1 + N2
    S = lambda t: Op(t, "s")
    dTB, dNB, dXo, dXp, dWo, dM, dM2, dRes, dX0, dX1, dSig, dPol, dSigA, dPolA, dJ = range(44, 59)
    aT, aWd = [TA, TA + 1, TA + 2], [TB_, TB_ + 1, TB_ + 2]
    vRow, vP, vOne, T0, T1 = TA + 3, TB_ + 3, TC, TC + 1, TC + 2
    pool = acc[0] + acc[1] + acc[7] + acc[8]
    dacc = [[pool[4 * t + i] for i in range(4)] for t in range(4)]
    RES = [[128 + 8 * i + 4 * b for b in range(2)] for i in range(2)]
    SND = [[acc[9][2 * i + b] for b in range(2)] for i in range(2)]
    RCV = [[dacc[2 * b][2 + i] for b in range(2)] for i in range(2)]
    F = [[dict(X=[f0 + 32 * s + 4 * i for i in range(4)], W=[f0 + 32 * s + 16 + 4 * t for t in range(4)]) for s in range(2)] for f0 in (192, 0)]
    dslot = lambda n: (4 - n) % 5
    setup = [S(x) for x in srd_tail(SO, 4 * MB) + [
        f"s_bfe_u32 s{dNB}, s2, 0x20003", f"s_and_b32 s{sT}, s2, 1", f"s_lshl_b32 s{sT}, s{sT}, 2", f"s_add_u32 s{dNB}, s{dNB}, s{sT}",
        f"s_lshr_b32 s{dTB}, s2, 5", f"s_and_b32 s{sT}, s2, 4", f"s_lshl_b32 s{sT}, s{sT}, 1", f"s_add_u32 s{dTB}, s{dTB}, s{sT}",
        f"s_lshr_b32 s{dPol}, s{dTB}, 1", f"s_lshl_b32 s{dPol}, s{dPol}, 10", f"s_add_u32 s{dPol}, s{dPol}, {FL2}",
        f"s_lshl_b32 s{dSig}, s{sMB}, 10", f"s_add_u32 s{dSig}, s{dSig}, {FL2}",
        f"s_cmp_eq_u32 s{sW}, 0\ns_cselect_b32 s{dSig}, s{dSig}, {OOB}",
        f"s_lshl_b32 s{dTB}, s{dTB}, 1", f"s_bfe_u32 s{sT}, s2, 0x10001", f"s_add_u32 s{dTB}, s{dTB}, s{sT}",
        f"s_lshl_b32 s{dPolA}, s{sT}, 7", f"s_add_u32 s{dPolA}, s{dPolA}, s{dPol}",
        f"s_lshr_b32 s{dSigA}, s{sFB}, 4", f"s_lshl_b32 s{dSigA}, s{dSigA}, 7", f"s_add_u32 s{dSigA}, s{dSigA}, s{dSig}",
        f"s_lshl_b32 s{dM}, s{sW}, 11", f"s_lshl_b32 s{dM2}, s{sW}, 12",
        f"s_mul_i32 s{dJ}, s{sT}, {(N1-48)*8192}", f"s_add_u32 s{dJ}, s{dJ}, {24*8192}",
        f"s_mul_i32 s{sT}, s{sT}, {24*8192}", f"s_add_u32 s{sT}, s{sT}, s{dM}",
        f"s_mul_i32 s{dWo}, s{dNB}, {K*128}", f"s_add_u32 s{dWo}, s{dWo}, s{sT}", f"s_lshl_b32 s{dWo}, s{dWo}, 1", f"s_add_u32 s{dWo}, s{dWo}, {WDF}",
        f"s_add_u32 s{sT}, s{sT}, {AF}", f"s_mul_i32 s{dXo}, s{dTB}, {K*128}", f"s_add_u32 s{dXo}, s{dXo}, s{sT}",
        f"s_xor_b32 s{dXp}, s{dTB}, 1", f"s_mul_i32 s{dXp}, s{dXp}, {K*128}", f"s_add_u32 s{dXp}, s{dXp}, s{sT}",
        f"s_lshr_b32 s{sT}, s{sW}, 1", f"s_lshl_b32 s{sT2}, s{dNB}, 1", f"s_add_u32 s{sT2}, s{sT2}, s{sT}",
        f"s_lshl_b32 s{sT}, s{sT}, 12", f"s_add_u32 s{sT}, s{sT}, 16384"]]
    setup += [V(f"v_add_u32 v{aWd[0]}, s{sT}, v{vLin}"), V(f"v_add_u32 v{aWd[1]}, 0x10000, v{aWd[0]}"), V(f"v_add_u32 v{aWd[2]}, 0x20000, v{aWd[0]}")]
    setup += [S(x) for x in [f"s_and_b32 s{sT}, s{sW}, 1", f"s_lshl_b32 s{sT}, s{sT}, 11"]]
    setup += [V(f"v_add_u32 v{aT[0]}, s{sT}, v{vLin}"), V(f"v_add_u32 v{aT[1]}, 0x10000, v{aT[0]}"), V(f"v_add_u32 v{aT[2]}, 0x20000, v{aT[0]}")]
    setup += [S(x) for x in [
        f"s_lshl_b32 s{dRes}, s{sT2}, 13", f"s_add_u32 s{dRes}, s{dRes}, s{sT}", f"s_lshl_b32 s{dX0}, s{dTB}, 17", f"s_add_u32 s{dRes}, s{dRes}, s{dX0}",
        f"s_lshl_b32 s{sT}, s{sT}, 5", f"s_add_u32 s{sT}, s{sT}, s{dX0}", f"s_lshl_b32 s{sT2}, s{sT2}, 7", f"s_add_u32 s{sT}, s{sT}, s{sT2}"]]
    setup += [V(f"v_and_b32 v{T0}, 0xf0, v{vLin}"), V(f"v_lshlrev_b32 v{T0}, 7, v{T0}"), V(f"v_lshrrev_b32 v{T1}, 8, v{vLin}"),
              V(f"v_lshl_add_u32 v{T0}, v{T1}, 4, v{T0}"), V(f"v_add_u32 v{vRow}, s{sT}, v{T0}"), V(f"v_mov_b32 v{vOne}, 1")]
    setup += [S(f"s_add_u32 s{dX0}, s{dRes}, {HF}"), S(f"s_add_u32 s{dX1}, s{dRes}, {HF+4096}")]
    setup += [S(f"s_lshr_b32 s{sT}, s2, 5"), S(f"s_add_u32 s{sT}, s{sT}, 2"), S(f"s_lshl_b32 s{sT}, s{sT}, 14"), S(f"s_add_u32 s{sT}, s{sT}, s{dWo}"),
              V(f"v_lshlrev_b32 v{T0}, 2, v{vLin}")]
    pset = flow(setup, max(p, t0 - 60), t0 + 16)

    def dma(m0, so, n, step):
        o = [[S(f"s_add_u32 m0, {m0}"), S("s_nop 0")]] + [[] for _ in range(n - 1)]
        for i in range(n):
            o[i].append(Op(f"buffer_load_dwordx4 v{vLin}, s[{SWS}:{SWS+3}], s{so} offen offset:{1024*i}{' sc1' if so != dWo else ''} lds", "vm"))
        o[-1].append(S(f"s_add_u32 s{so}, s{so}, {step}"))
        return o
    DX, DW = [], []
    for n in range(NST):
        base = dslot(n) * 32768
        x = dma(f"s{dM}, {base}", dXo, 2, 8192) + (dma(f"s{dM}, {base+8192}", dXp, 2, 8192) if n < N1 else [])
        w = dma(f"s{dM2}, {base+16384}", dWo, 4, 16384)
        if n == 24 and N1 > 24:
            x[0] = [S(f"s_add_u32 s{dXo}, s{dXo}, s{dJ}"), S(f"s_add_u32 s{dXp}, s{dXp}, s{dJ}")] + x[0]
            w[0] = [S(f"s_add_u32 s{dWo}, s{dWo}, s{dJ}"), S(f"s_add_u32 s{dWo}, s{dWo}, s{dJ}")] + w[0]
        if n == N1:
            x[0] = [S(f"s_mul_i32 s{dXo}, s{dTB}, {K*128}"), S(f"s_add_u32 s{dXo}, s{dXo}, s{dM}"), S(f"s_add_u32 s{dXo}, s{dXo}, {AF+2*N1*8192}")] + x[0]
            w[0] = [S(f"s_mul_i32 s{dWo}, s{dNB}, {K*256}"), S(f"s_add_u32 s{dWo}, s{dWo}, s{dM2}"), S(f"s_add_u32 s{dWo}, s{dWo}, {WDF+2*N1*16384}")] + w[0]
        DX.append(x); DW.append(w)
    vms = lambda gs: [o for g_ in gs for o in g_ if o.kind == "vm"]
    res = [Op(f"buffer_load_dwordx4 {ar(RES[i][b],4)}, v{vLin}, s[{SWS}:{SWS+3}], s{[dX0,dX1][b]} offen offset:{1024*i}", "vm") for i in range(2) for b in range(2)]
    signal = lambda w: Op(f"s_mov_b64 exec, 1\nbuffer_atomic_add v{vOne}, off, s[{SWS}:{SWS+3}], s{[dSigA,dSigA,dSig][w]} offset:{256*w} sc1\ns_mov_b64 exec, -1", "vm")
    polltxt = lambda w: f"buffer_load_dword v{vP}, off, s[{SWS}:{SWS+3}], s{[dPolA,dPolA,dPol][w]} offset:{256*w} sc1"
    POL = [Op(polltxt(w), "vm") for w in range(3)]
    pcheck = lambda w: [Op("", "wait", [POL[w]]), S(f"v_cmp_ne_u32 vcc, {[16,16,32][w]}, v{vP}\ns_nop 1\ns_cbranch_vccnz L_ffn_spin{w}\nL_ffn_go{w}:")]

    def put(pos, group):
        if len(group) > 2 and group[1].text == "s_nop 0":
            put(pos - 1, group[:1])
            group = group[2:]
        fixed2[pos] += group
        used[pos] += sum(o.cost for o in group)
    fixed2 = [[] for _ in fixed]
    EP = [epi(pr, False) for pr in range(6)]
    qa = t0 + 3 * run + 8 * OPT.get("siga", 4) + 7
    fixed[qa] = [Op("", "wait", vms([EP[0], EP[1]]), bar=True)]
    put(qa + 3, [signal(0)])
    q = t0 + 19
    for g_ in DW[0] + DW[1] + [[r] for r in res]:
        put(q, g_); q += 3 if q % 8 == 3 else 5
    for i in range(OPT.get("wpf", 2)):
        put(t0 + (OPT.get("wpr", 2) + i) * run + 11, [Op(f"buffer_load_dword v{T1}, v{T0}, s[{SWS}:{SWS+3}], s{sT} offen", "vm"), S(f"s_add_u32 s{sT}, s{sT}, {8*16384}")])
    put(t0 + 5 * run + OPT.get("pola", 30), [POL[0]])
    q = t0 + 6 * run + OPT.get("chka", 4)
    put(q, pcheck(0))
    for i, g_ in enumerate(DX[0]):
        put(q + 2 + 2 * i, g_)
    b0 = 8 * (NT_ - 3) + 7
    fixed[b0] = [Op("", "wait", vms(DX[0] + DW[0] + EP[:5]), bar=True)]
    for i, g_ in enumerate(DX[1] + DX[2]):
        put(b0 + 2 + 2 * i - (i == 7), g_)
    for pr in range(6):
        spread(EP[pr], t0 + run * (pr + 1), t0 + run * (pr + 2))
    ops = pro + [Op("", "wait", [x[1] for x in VM[0][:8 if HALF else 15]], bar=True)]
    if OPT["stamp"]:
        ops.append(Op("s_memrealtime s[96:97]\ns_memtime s[84:85]\ns_waitcnt lgkmcnt(0)", "s"))
    ops += RD[0] + RD[1] + [Op("", "wait", RD[0])]
    seg = dict(n=4, last=seg0)

    def page(room):
        if OPT.get("isl", 1):
            seg["n"] += sum(isize(o.text) for o in ops[seg["last"]:])
            seg["last"] = len(ops)
            if seg["n"] + room > 4088:
                ops.append(Op(island(), "s"))
                seg["n"], seg["last"] = 4, len(ops)
    npf = [0]

    def prof():
        if OPT.get("prof"):
            j = npf[0]; npf[0] += 1
            ops.append(S((f"v_writelane_b32 v{vSt}, s60, {j-1}\n" if j else "") + ("s_memtime s[60:61]" if OPT["prof"] == 1 else "s_memrealtime s[60:61]")))
    for i, m in enumerate(mf):
        if i in [112 * n for n in range(S0)] + [t0 + run * pr for pr in range(7)]:
            prof()
        if not fixed[i - 1]:
            page(160)
        late = [o for o in fixed[i] if o.kind == "wait"]
        ops += [m] + [o for o in fixed[i] if o.kind != "wait"] + late + fixed2[i] + flo[i]
    if OPT["stamp"]:
        ops.append(Op("s_memrealtime s[98:99]\ns_memtime s[86:87]", "s"))

    def dreads(n):
        f, sl = n & 1, dslot(n)
        o = []
        for s in range(2):
            o += [Op(f"ds_read_b128 {ar(F[f][s]['X'][i],4)}, v{aT[sl>>1]} offset:{(sl&1)*32768+(i>>1)*8192+s*4096+(i&1)*1024}", "lds") for i in range(4 if n < N1 else 2)]
            o += [Op(f"ds_read_b128 {ar(F[f][s]['W'][t],4)}, v{aWd[sl>>1]} offset:{(sl&1)*32768+s*8192+t*1024}", "lds") for t in range(4)]
        return o

    def dmf(n, tiles):
        f = n & 1
        return [Op(m16(vr(dacc[t][i], 4), ar(F[f][s]["W"][t], 4), ar(F[f][s]["X"][i], 4), "0" if (n == 0 and s == 0 and i >= 2) else None), "m")
                for t in range(4) for i in (tiles if t % 2 == 0 else tiles[::-1]) for s in range(2)]
    E6 = epi(6, True)
    init = [Op("", "wait", res)]
    for i in range(2):
        for b in range(2):
            for jt in range(2):
                for h in range(2):
                    a, r = dacc[2 * b + jt][i] + 2 * h, RES[i][b] + 2 * jt + h
                    init += [V(f"v_accvgpr_read_b32 v{a+1}, a{r}"), V(f"v_lshlrev_b32 v{a}, 16, v{a+1}"), V(f"v_and_b32 v{a+1}, 0xffff0000, v{a+1}")]
    init += [S(f"s_xor_b32 s{dX0}, s{dRes}, {1<<17}"), S(f"s_add_u32 s{dX1}, s{dX0}, {XB+4096}"), S(f"s_add_u32 s{dX0}, s{dX0}, {XB}")]
    prof()
    page(1250)
    todo = [(n, g_) for n in range(3, NST) for g_ in DX[n] + DW[n]]
    NZ = OPT.get("nz", 0)
    ops += weave(E6 + dreads(0) + init, DW[2] + [[signal(1)]] + [g_ for _, g_ in todo[:NZ]], 4)
    tgt = sum(1 for n, _ in todo if n <= N1 + D + 1)
    assert OPT.get("rl", 1) < N2
    done = NZ
    snd = []
    for b in range(2):
        for i in range(2):
            o = SND[i][b]
            for jt in range(2):
                a = dacc[2 * b + jt][2 + i]
                snd += [[V(f"v_cvt_pk_bf16_f32 v{o+2*jt}, v{a}, v{a+1}"), V(f"v_cvt_pk_bf16_f32 v{o+2*jt+1}, v{a+2}, v{a+3}")]]
            snd += [[V(f"v_min_u32 v{o+r}, -2, v{o+r}") for r in (0, 1)], [V(f"v_min_u32 v{o+r}, -2, v{o+r}") for r in (2, 3)] +
                    [Op(f"buffer_store_dwordx4 {vr(o,4)}, v{vLin}, s[{SWS}:{SWS+3}], s{[dX0,dX1][b]} offen offset:{1024*i} sc1", "vm")]]
    rcvt = [f"buffer_load_dwordx4 {vr(RCV[i][b],4)}, v{vLin}, s[{SWS}:{SWS+3}], s{[dX0,dX1][b]} offen offset:{1024*i} sc1" for i in range(2) for b in range(2)]
    gate = {8: 1, 20: 2}
    upto = lambda n: max(NZ + ((tgt - NZ) * n) // N1, sum(1 for m, _ in todo if m <= n + 2)) if n <= N1 else sum(1 for m, _ in todo if m <= n + D + 1)
    first_of = {m: min(i for i, (q, _) in enumerate(todo) if q == m) for m in gate}
    for n in range(1, NST):
        page(860)
        ops.append(Op("", "wait", vms(DX[n] + DW[n] + ([E6] if n == OPT.get("sigb", 3) else [])), bar=True))
        prof()
        ld = []
        for i in range(done, upto(n)):
            assert todo[i][0] <= n + 4
            if todo[i][0] in gate and first_of[todo[i][0]] == i:
                ld.append(pcheck(gate[todo[i][0]]))
            ld.append(todo[i][1])
        done = upto(n)
        assert done == len(todo) or todo[done][0] > n + 1
        for m, w in gate.items():
            if upto(n) <= first_of[m] < upto(n + 1):
                ld = [[POL[w]]] + ld
        if n == OPT.get("sigb", 3):
            ld = [[signal(2)]] + ld
        if n == N1 + 1:
            ld = ld + [[S(f"s_add_u32 s{dX0}, s{dRes}, {XB}"), S(f"s_add_u32 s{dX1}, s{dRes}, {XB+4096}")]]
        if n == NST - OPT.get("rl", 1):
            ld = ld + [[Op(x, "vm")] for x in rcvt]
        mm = dmf(n - 1, [0, 1, 2, 3]) if n < N1 else (dmf(n - 1, [2, 3]) + dmf(n - 1, [0, 1]) if n == N1 else dmf(n - 1, [0, 1]))
        sl = [[] for _ in mm]
        rd = dreads(n)
        for i, r in enumerate(rd):
            sl[i * (len(mm) * 5 // 8) // len(rd)].append(r)
        for i, g_ in enumerate(ld):
            q = (i * (len(mm) if n != N1 else 18)) // len(ld)
            if q and len(g_) > 2 and g_[1].text == "s_nop 0" and not any(o.kind == "vm" for o in sl[q]):
                sl[q - 1].append(g_[0])
                g_ = g_[2:]
            sl[q] += g_
        if n == N1:
            for i, g_ in enumerate(snd):
                sl[16 + i] += g_
        for m, e in zip(mm, sl):
            ops += [m] + e
    ops.append(Op("", "wait", rd))
    page(1200)
    ops += dmf(NST - 1, [0, 1])
    prof()
    ops.append(S("s_waitcnt lgkmcnt(0)" if OPT.get("prof") else "s_nop 0"))
    prof()
    emit_stream(k, ops)
    xstamp(k, 0)
    k(f"s_mov_b32 s{sN}, {1<<20}")
    k.label("L_ffn_chk")
    k("s_waitcnt vmcnt(0)")
    rr = [RCV[i][b] + r for i in range(2) for b in range(2) for r in range(4)]
    k(f"v_max3_u32 v{T0}, v{rr[0]}, v{rr[1]}, v{rr[2]}", f"v_max3_u32 v{T1}, v{rr[3]}, v{rr[4]}, v{rr[5]}")
    for j in range(6, 16, 2):
        t = [T0, T1][(j // 2) & 1]
        k(f"v_max3_u32 v{t}, v{rr[j]}, v{rr[j+1]}, v{t}")
    k(f"v_max_u32 v{T0}, v{T0}, v{T1}", f"v_cmp_eq_u32 vcc, -1, v{T0}", f"s_sub_u32 s{sN}, s{sN}, 1", "s_cbranch_scc1 L_ffn_out",
      "s_cbranch_vccz L_ffn_out", "s_sleep 2", rcvt, "s_branch L_ffn_chk")
    k.label("L_ffn_out")
    k(f"s_mov_b32 s{sN}, 32768")
    U = acc[3][0]
    for i in range(2):
        for b in range(2):
            o = acc[10][2 * i + b]
            for jt in range(2):
                a, q = dacc[2 * b + jt][i], RCV[i][b] + 2 * jt
                k(f"v_lshlrev_b32 v{U}, 16, v{q}", f"v_and_b32 v{U+1}, 0xffff0000, v{q}",
                  f"v_lshlrev_b32 v{U+2}, 16, v{q+1}", f"v_and_b32 v{U+3}, 0xffff0000, v{q+1}",
                  f"v_pk_add_f32 {vr(a,2)}, {vr(a,2)}, {vr(U,2)}", f"v_pk_add_f32 {vr(a+2,2)}, {vr(a+2,2)}, {vr(U+2,2)}",
                  f"v_cvt_pk_bf16_f32 v{o+2*jt}, v{a}, v{a+1}", f"v_cvt_pk_bf16_f32 v{o+2*jt+1}, v{a+2}, v{a+3}")
            k(f"buffer_store_dwordx4 {vr(o,4)}, v{vRow}, s[{SO}:{SO+3}], {['0', f's{sN}'][i]} offen offset:{64*b} sc1")
    if OPT.get("prof"):
        k("s_lshl_b32 s3, s89, 2", f"s_add_u32 s3, s3, s{sW}", "s_lshl_b32 s3, s3, 8", f"s_add_u32 s3, s3, {STAMP+2*MB}",
          f"v_lshrrev_b32 v{T0}, 2, v{vLin}", f"buffer_store_dword v{vSt}, v{T0}, s[{SWS}:{SWS+3}], s3 offen sc1")
    tail(k, 1, sW)
    for w in range(3):
        k.label(f"L_ffn_spin{w}")
        k(f"s_mov_b32 s{sN}, {1<<20}")
        k.label(f"L_ffn_spin{w}b")
        k(f"s_sleep {OPT.get('spsl', 4)}", polltxt(w), "s_waitcnt vmcnt(0)", f"v_cmp_ne_u32 vcc, {[16,16,32][w]}, v{vP}", f"s_sub_u32 s{sN}, s{sN}, 1", f"s_cbranch_scc1 L_ffn_go{w}",
          f"s_cbranch_vccnz L_ffn_spin{w}b", f"s_branch L_ffn_go{w}")
    return k


HEADER = open("sequential_preLN__grouped_kv_mqa__glu_gated_glu__prompt.s.ref").read().split("; Override launch")[0]


def k_diag():
    k = Kern("diag_kernel", 1, 64, 0)
    k.vgpr = k.acc = 8
    a, b, m = OPT["da"], OPT["db"], OPT["dm"]
    off = lambda x: STAMP + (x // 10) * 16384 + (x % 10) * 4 + OPT.get("dwg", 0) * 64
    k("s_cmp_ge_u32 s2, 1", "s_cbranch_scc1 L_diag_end", "s_load_dwordx2 s[4:5], s[0:1], 88", "s_waitcnt lgkmcnt(0)",
      f"v_mov_b32 v1, {off(a)}", f"v_mov_b32 v2, {off(b)}", "global_load_dword v3, v1, s[4:5]", "global_load_dword v4, v2, s[4:5]",
      "s_memrealtime s[8:9]", "s_waitcnt vmcnt(0) lgkmcnt(0)", "v_sub_u32 v3, v4, v3", "s_nop 1", "v_readfirstlane_b32 s6, v3", "s_nop 3",
      "s_min_u32 s6, s6, 20000", f"s_mul_i32 s6, s6, {m}")
    k.label("L_diag_loop")
    k("s_memrealtime s[10:11]", "s_waitcnt lgkmcnt(0)", "s_sub_u32 s10, s10, s8", "s_cmp_lt_u32 s10, s6", "s_cbranch_scc1 L_diag_loop")
    k.label("L_diag_end")
    k("s_endpgm")
    return k


def build():
    ks = [k01_attn(), k3_gateup()]
    if "dm" in OPT:
        ks.append(k_diag())
    s = HEADER + "".join(ks[int(c)].launch_line() + "\n" for c in str(OPT.get("seq", "".join(str(i) for i in range(len(ks))))).lstrip("9"))
    s += '.amdgcn_target "amdgcn-amd-amdhsa--gfx950"\n.text\n'
    for i, k in enumerate(ks):
        s += k.text()
        if i == 0:
            s += "L_code_rest:\n"
    s += "L_code_end:\n"
    chain = [n for n, back in ISL if back is None]
    for n, back in ISL:
        if back:
            s = s.replace(f"@ISL{n}@", f"s_branch {back}")
    for i, n in enumerate(chain):
        s = s.replace(f"@ISL{n}@", f"s_branch L_isl{chain[i+4]}" if i + 4 < len(chain) else "s_endpgm")
        s = s.replace(f"@HOP{i}@", f"L_isl{n}")
    s += '.section .rodata,"a"\n' + "".join(k.desc() for k in ks)
    return s


if __name__ == "__main__":
    out = sys.argv[1]
    for a in sys.argv[2:]:
        key, _, val = a.partition("=")
        OPT[key] = int(val) if val else True
    open(out, "w").write(build())
```

```python
import sys, math
sys.path.insert(0, __file__.rsplit("/", 1)[0])
from asmlib import *

MB = 1 << 20
QF, KVF, OF, HF, AF = 0, 4 * MB, 5 * MB, 9 * MB, 13 * MB
WOF, WGU, WDF, CSP, STP, STAMP = 28 * MB, 30 * MB, 44 * MB, 52 * MB, 53 * MB, 60 * MB
XB = 0
XB4 = [HF, XB, 56 * MB, 64 * MB]
FLG = 54 * MB
ST1 = 55 * MB
FL2 = FLG + 65536
WS_SZ = 72 * MB
OOB = 0x40000000
LOG2E = 1.4426950408889634
QSCALE = LOG2E / math.sqrt(32.0)
EPS = 1e-5
OPT = dict(stamp=False, force_slow=False)
A_X, A_WQ, A_WK, A_WV, A_WO, A_WG, A_WU, A_WD, A_OUT, A_WS = 0, 8, 16, 24, 32, 48, 56, 64, 72, 88


def ws_shift(s):
    if OPT.get("wsoff"):
        return [f"s_add_u32 s{s}, s{s}, {OPT['wsoff']*MB}", f"s_addc_u32 s{s+1}, s{s+1}, 0"]
    return []


ISL = []


def island(back=None, jump=True):
    if not OPT.get("isl", 1):
        return None
    n = len(ISL)
    ISL.append((n, back))
    return (f"s_branch L_isl{n}_over\n" if jump else "") + f".p2align 12\nL_isl{n}:\n@ISL{n}@\nL_isl{n}_over:"


def isize(text):
    import re
    t = 0
    for ln in text.split("\n"):
        ln = ln.strip()
        if not ln:
            t += 8
        elif ln.endswith(":") or ln.startswith("."):
            continue
        elif re.match(r"(v_mfma|v_smfmac|ds_|buffer_|global_|s_load|s_mem|v_fma_|v_cvt_pk|v_accvgpr|v_pk_|v_lshl_add|v_bfe|v_max3|v_maximum3|v_mul_lo)", ln):
            t += 8
        else:
            lit = [x for x in re.findall(r"(?<![\w\[:])(0x[0-9a-f]+|\d+)(?![\w\]:])", ln.split(None, 1)[1] if " " in ln else "") if int(x, 0) > 64]
            t += 8 if lit else 4
    return t


def hop(k, sw):
    if OPT.get("isl", 1) and not OPT.get("nohop"):
        for w in range(3):
            k(f"s_cmp_eq_u32 s{sw}, {w}", f"s_cbranch_scc1 @HOP{w}@")
        k("s_branch @HOP3@")
    else:
        k("s_endpgm")


def srd_tail(s, size):
    return [f"s_mov_b32 s{s+2}, {size}", f"s_mov_b32 s{s+3}, 0x00020000"]


def srd_from(s, base, off, size):
    return [f"s_add_u32 s{s}, s{base}, {off}", f"s_addc_u32 s{s+1}, s{base+1}, 0"] + srd_tail(s, size)


def head(k, pad=False):
    if pad and OPT.get("isl", 1) and OPT.get("epad", 1):
        n = len(ISL)
        ISL.append((n, None))
        k("s_cmp_lt_u32 s2, 256", f"s_cbranch_scc1 L_isl{n}_over", "s_endpgm", f"L_isl{n}:", f"@ISL{n}@", f"L_isl{n}_over:")
    else:
        k("s_cmp_ge_u32 s2, 256", f"s_cbranch_scc1 L_end_{k.name}")
    if OPT["stamp"]:
        k("s_memrealtime s[92:93]", "s_load_dwordx2 s[90:91], s[0:1], 88", "s_mov_b32 s89, s2")


def mid_stamp(k, i):
    if OPT["stamp"] and i < 2:
        k(f"s_memrealtime s[{96+2*i}:{97+2*i}]", f"s_memtime s[{84+2*i}:{85+2*i}]")
    elif OPT["stamp"]:
        k("s_memrealtime s[100:101]", "s_waitcnt lgkmcnt(0)", f"s_mov_b32 s{[93,88,3][i-2]}, s100")


def hstamp(k, lane):
    if OPT.get("hprof"):
        k("s_memrealtime s[84:85]", "s_waitcnt lgkmcnt(0)", f"v_writelane_b32 v200, s84, {lane}")


def xstamp(k, n):
    sel = str(OPT.get("xs", 378)).zfill(3)
    if str(n) in sel:
        mid_stamp(k, 2 + sel.index(str(n)))


def tail(k, kidx, swave):
    if OPT["stamp"]:
        k("s_waitcnt vmcnt(0)", "s_memrealtime s[94:95]", "s_waitcnt lgkmcnt(0)",
          "v_mov_b32 v0, s92", "v_mov_b32 v1, s96", "v_mov_b32 v2, s98", "v_mov_b32 v3, s94",
          "s_lshl_b32 s89, s89, 2", f"s_add_u32 s89, s89, s{swave}", "s_lshl_b32 s89, s89, 4",
          f"s_add_u32 s89, s89, {STAMP + kidx*16384}", "v_mov_b32 v4, s89",
          "global_store_dwordx4 v4, v[0:3], s[90:91]",
          "s_sub_u32 s86, s86, s84", "v_mov_b32 v8, s86", "v_mov_b32 v9, s93", "v_mov_b32 v10, s88", "v_mov_b32 v11, s3",
          "v_add_u32 v4, 0x100000, v4", "global_store_dwordx4 v4, v[8:11], s[90:91]")
    k.label(f"L_end_{k.name}")
    k("s_endpgm")


def ids_8x4(k, s_a, s_b, tmp):
    k(f"s_lshr_b32 s{tmp}, s2, 3",
      f"s_and_b32 s{s_a}, s{tmp}, 3",
      f"s_lshr_b32 s{s_b}, s{tmp}, 2",
      f"s_and_b32 s{tmp}, s2, 1",
      f"s_lshl_b32 s{tmp}, s{tmp}, 2",
      f"s_add_u32 s{s_a}, s{s_a}, s{tmp}",
      f"s_and_b32 s{tmp}, s2, 6",
      f"s_lshl_b32 s{tmp}, s{tmp}, 2",
      f"s_add_u32 s{s_b}, s{s_b}, s{tmp}")


def code_prefetch(k, vtmp, vdst, stmp, start, nkb_per_wg=1):
    k(f"s_getpc_b64 s[{stmp}:{stmp+1}]")
    lab = f"L_pc_{k.name}_{start}"
    k.label(lab)
    k(f"s_add_u32 s{stmp}, s{stmp}, {start}-{lab}",
      f"s_addc_u32 s{stmp+1}, s{stmp+1}, 0",
      f"global_load_dwordx4 {vr(vdst,4)}, v{vtmp}, s[{stmp}:{stmp+1}]" if not OPT.get("nopf") else None)


def k01_attn():
    D = 2
    STG, NS = 24576, D + 2
    EA = STG * NS
    SLOT, KVB, JB, TBL = 32768, 65536, 16384, 0
    k = Kern("attn_kernel", 256, 512, 163840)
    SX, SWQ, SE, SWS, SKV, SJ = 4, 8, 12, 16, 72, 76
    (sW, sTB, sHG, sC, sT, sT2, sRd, sWr, sKo, sJo, sJa, sJb, sGW, sStr, sDstep, sOo) = range(32, 48)
    sN, sX, sWo, sTH, sCH, sBW, sOo1, sFl, sKV = 48, 49, 54, 55, 56, 57, 65, 80, 81
    sD = [50, 51, 52, 53]
    sCs = [58, 59, 60, 61]
    sDB, sBsz, sWrJ = 62, 63, 64
    SDBG = 30
    v = Alloc(1)
    L, G, R, CQ, TOK, T0, T1, T2, vLin, vRd, IDX = [v() for _ in range(11)]
    h = Alloc(v.n)
    Q = [v(8, 4) for _ in range(2)]
    O = [v(16, 4) for _ in range(2)]
    LS = [v(4, 4) for _ in range(2)]
    acc = [[v(4, 4) for i in range(2)] for t in range(4)]
    cs = [v(4, 4) for _ in range(2)]
    sx, sxx = v(4, 4), v(4, 4)
    z1 = v.n
    SUMA, ONES = v(4, 4), v(4, 4)
    bX, bQ, aX, aQ = [[v() for i in range(2)] for _ in range(4)]
    bW = [v() for _ in range(4)]
    aW = [v() for _ in range(4)]
    F0 = v(96, 4)
    FQ = [[dict(X=[F0 + 48 * f + 24 * s + 4 * i for i in range(4)], W=[F0 + 48 * f + 24 * s + 16 + 4 * t for t in range(2)]) for s in range(2)] for f in range(2)]
    qacc = [[acc[0][0] + 16 * t + 4 * i for i in range(4)] for t in range(2)]
    F = [[dict(X=[F0 + 48 * f + 24 * s + 4 * i for i in range(2)], W=[F0 + 48 * f + 24 * s + 8 + 4 * t for t in range(4)]) for s in range(2)] for f in range(2)]
    S = [F0 + 16 * i for i in range(4)]
    KB = [F0 + 64 + 8 * i for i in range(2)]
    VB = [F0 + 80 + 8 * i for i in range(2)]
    XK = [F0 + 4 * j for j in range(8)]
    EK = [[F0 + 32 + 8 * j + 4 * t for t in range(2)] for j in range(8)]
    accE, csE = [Q[0], Q[0] + 4], [Q[1], Q[1] + 4]
    sxE, sxxE = v(4, 4), v(4, 4)
    vXk, vE, aE0, aE1, aP, aS, aG0, aG1, vKo, PF, vHo, vRow = [v() for _ in range(12)]
    RES = [[cs[0], cs[1]], [sx, sxx]]
    XR = 131072
    sFg, sRx, sH0, sH1, sS1 = 58, 59, 60, 61, 62
    k.vgpr = k.acc = 256
    vX, vX2 = h(), h()
    vW = [h() for _ in range(4)]
    vJ, vJB, vCs, vPo = h(), h(), h(), h()
    aJ = [h() for _ in range(4)]
    bJ = [h() for _ in range(2)]
    JF = [h(4, 4) for _ in range(4)]
    CS = [h(4, 4) for _ in range(4)]
    PF4 = h(4, 4)
    head(k)
    k(f"s_load_dwordx2 s[{SX}:{SX+1}], s[0:1], {A_X}",
      f"s_load_dwordx2 s[{SWQ}:{SWQ+1}], s[0:1], {A_WQ}",
      f"s_load_dwordx4 s[24:27], s[0:1], {A_WK}",
      f"s_load_dwordx2 s[{SWS}:{SWS+1}], s[0:1], {A_WS}",
      f"s_load_dwordx2 s[{SDBG}:{SDBG+1}], s[0:1], 80")
    k(f"s_lshl_b32 s{sT}, s2, 7", f"s_and_b32 s{sT}, s{sT}, 0x7c00", f"v_lshl_add_u32 v{T0}, v0, 1, s{sT}", f"v_and_b32 v{T0}, -4, v{T0}", "s_getpc_b64 s[20:21]", f"global_load_dword v{PF}, v{T0}, s[20:21]" if not OPT.get("nopf") else None)
    k(f"v_lshrrev_b32 v{T1}, 6, v0", f"v_and_b32 v{L}, 63, v0", f"v_readfirstlane_b32 s{sW}, v{T1}")
    ids_8x4(k, sHG, sTB, sT)
    k(f"v_lshrrev_b32 v{G}, 4, v{L}", f"v_and_b32 v{TOK}, 15, v{L}", f"v_lshlrev_b32 v{vLin}, 4, v{L}")
    k(f"s_and_b32 s{sTH}, s{sW}, 1", f"s_bfe_u32 s{sCH}, s{sW}, 0x10001",
      f"s_cmp_ge_u32 s{sW}, 4", "s_cbranch_scc1 L_f_help")
    k(f"s_and_b32 s{sT}, s{sHG}, 3", f"s_lshl_b32 s{sT2}, s{sTB}, 2", f"s_add_u32 s{sT}, s{sT}, s{sT2}", f"s_lshl_b32 s{sT}, s{sT}, 15",
      f"s_lshl_b32 s{sT2}, s{sW}, 9", f"s_add_u32 s{sT}, s{sT}, s{sT2}",
      f"v_lshrrev_b32 v{T0}, 3, v{L}", f"v_lshlrev_b32 v{T0}, 11, v{T0}", f"v_and_b32 v{T1}, 7, v{L}", f"v_xor_b32 v{T1}, v{T1}, v{G}",
      f"v_lshl_add_u32 v{T0}, v{T1}, 4, v{T0}", f"v_add_u32 v{vXk}, s{sT}, v{T0}", f"v_xor_b32 v{T1}, {16384+64}, v{vXk}", f"s_lshl_b32 s{sX}, s{sW}, 13",
      f"v_and_b32 v{T0}, 32, v{L}", f"v_xor_b32 v{T0}, v{T0}, v{vLin}",
      f"s_lshl_b32 s{sWr}, s{sW}, 14", f"v_add_u32 v{vE}, s{sWr}, v{T0}",
      f"s_lshr_b32 s{sT}, s2, 3", f"s_lshl_b32 s{sT}, s{sT}, 11", f"v_lshlrev_b32 v{T0}, 3, v0",
      f"s_bitcmp1_b32 s{sHG}, 2", "s_waitcnt lgkmcnt(0)",
      f"s_cselect_b32 s{SE}, s26, s24", f"s_cselect_b32 s{SE+1}, s27, s25", srd_tail(SE, 0x10000), srd_tail(SX, 4 * MB))
    xstamp(k, 0)
    k(f"buffer_load_dword v{PF}, v{T0}, s[{SE}:{SE+3}], s{sT} offen")
    for j in range(8):
        k(f"s_add_u32 m0, s{sX}, {1024*j-128*(j>>1)}", "s_nop 0", f"buffer_load_dwordx4 v{[vXk,T1][j&1]}, s[{SX}:{SX+3}], 0 offen offset:{128*(j>>1)} lds")

    def kv_ld(gi):
        k(f"s_add_u32 m0, s{sWr}, {EA+4096*gi}", f"s_mov_b32 s{sWo}, {4096*gi}")
        for i in range(4):
            k(f"buffer_load_dwordx4 v{vE}, s[{SE}:{SE+3}], s{sWo} offen offset:{1024*i} lds")
    k("s_branch L_f_comp")
    k.label("L_f_help")
    k(f"s_and_b32 s{sW}, s{sW}, 3")
    if OPT.get("wqpf", 0):
        k(f"v_and_b32 v{T0}, 255, v0", f"v_lshlrev_b32 v{T0}, 5, v{T0}", f"s_lshl_b32 s{sT}, s2, 13", "s_waitcnt lgkmcnt(0)", srd_tail(SWQ, 2 * MB),
          f"buffer_load_dword v{PF4}, v{T0}, s[{SWQ}:{SWQ+3}], s{sT} offen")
    k(f"v_lshrrev_b32 v{T0}, 3, v{L}",
      f"s_lshl_b32 s{sT}, s{sTH}, 2",
      f"v_add_u32 v{T1}, s{sT}, v{G}",
      f"v_and_b32 v{T2}, 7, v{L}",
      f"v_xor_b32 v{T1}, v{T1}, v{T2}",
      f"s_lshl_b32 s{sT}, s{sTB}, 6",
      f"s_lshl_b32 s{sT2}, s{sW}, 3",
      f"s_add_u32 s{sT}, s{sT}, s{sT2}",
      f"v_add_u32 v{T0}, s{sT}, v{T0}",
      f"v_lshlrev_b32 v{T0}, 11, v{T0}",
      f"v_lshl_add_u32 v{vX}, v{T1}, 4, v{T0}",
      f"v_add_u32 v{vX2}, 0x10000, v{vX}")
    k(f"v_lshlrev_b32 v{T1}, 1, v{G}",
      f"v_xor_b32 v{T1}, v{T1}, v{TOK}",
      f"s_lshl_b32 s{sT}, s{sTH}, 3",
      f"v_xor_b32 v{T1}, s{sT}, v{T1}",
      f"s_lshl_b32 s{sBW}, s{sTH}, 1",
      f"s_add_u32 s{sBW}, s{sBW}, s{sCH}",
      f"s_lshl_b32 s{sT}, s{sBW}, 13",
      f"s_lshl_b32 s{sT2}, s{sHG}, 8",
      f"s_add_u32 s{sT}, s{sT}, s{sT2}",
      f"v_lshlrev_b32 v{T0}, 11, v{G}",
      f"v_add_u32 v{T0}, s{sT}, v{T0}",
      f"v_lshl_add_u32 v{vW[0]}, v{T1}, 4, v{T0}")
    for i in range(1, 4):
        k(f"v_add_u32 v{vW[i]}, {32768*i}, v{vW[0]}")
    k(f"s_sub_u32 s{sBW}, s{sBW}, s{sW}", f"s_lshl_b32 s{sBW}, s{sBW}, 10", f"s_add_u32 s{sBW}, s{sBW}, 8192",
      f"s_lshl_b32 s{sWr}, s{sW}, 10", f"s_mov_b32 s{sN}, 12")
    k(f"s_and_b32 s{sT}, s{sTB}, {7 if OPT.get('rot', 1) else 0}",
      f"s_lshl_b32 s{sX}, s{sT}, 8", f"s_lshl_b32 s{sWo}, s{sT}, 18")
    k("s_waitcnt lgkmcnt(0)", srd_tail(SX, 4 * MB), srd_tail(SWQ, 2 * MB))
    k(f"s_load_dwordx2 s[20:21], s[0:1], {A_WO}", f"s_load_dwordx4 s[24:27], s[0:1], {A_WG}", f"s_load_dwordx2 s[28:29], s[0:1], {A_WD}")
    def q_x(slot):
        k(f"s_add_u32 m0, s{sWr}, {slot}", "s_nop 0", f"buffer_load_dwordx4 v{vX}, s[{SX}:{SX+3}], s{sX} offen lds",
          f"s_add_u32 m0, s{sWr}, {slot+4096}", "s_nop 0", f"buffer_load_dwordx4 v{vX2}, s[{SX}:{SX+3}], s{sX} offen lds",
          f"s_add_u32 s{sX}, s{sX}, 128", f"s_and_b32 s{sX}, s{sX}, 2047")

    def q_w(slot):
        k(f"s_add_u32 s{sT}, s{sWr}, s{sBW}")
        for i in range(4):
            k(f"s_add_u32 m0, s{sT}, {slot+4096*i}", "s_nop 0", f"buffer_load_dwordx4 v{vW[i]}, s[{SWQ}:{SWQ+3}], s{sWo} offen lds")
        k(f"s_add_u32 s{sWo}, s{sWo}, 0x20000", f"s_and_b32 s{sWo}, s{sWo}, 0x1fffff")

    def q_stage():
        q_x(0); q_w(0)
        k(f"s_add_u32 s{sWr}, s{sWr}, {STG}", f"s_cmp_ge_u32 s{sWr}, {EA}", f"s_cselect_b32 s{sT}, {EA}, 0",
          f"s_sub_u32 s{sWr}, s{sWr}, s{sT}", f"s_sub_u32 s{sN}, s{sN}, 1")
    k("s_branch L_f_setup")
    k.label("L_f_comp")
    k(f"v_bfe_u32 v{R}, v{L}, 2, 2", f"v_and_b32 v{CQ}, 3, v{L}", f"v_and_b32 v{T2}, 1, v{G}",
      f"s_lshl_b32 s{sT}, s{sW}, 14", f"s_add_u32 s{sT}, s{sT}, {EA}",
      f"v_lshlrev_b32 v{T0}, 5, v{T2}", f"v_lshl_add_u32 v{T0}, v{CQ}, 3, v{T0}",
      f"v_lshl_add_u32 v{T0}, v{R}, 6, v{T0}", f"v_lshl_add_u32 v{T0}, v{G}, 9, v{T0}",
      f"v_add_u32 v{aE0}, s{sT}, v{T0}", f"v_xor_b32 v{aE1}, 32, v{aE0}")
    for i in range(4):
        k(f"v_mov_b32 v{ONES+i}, 0x3f803f80")
    k(ws_shift(SWS), srd_tail(SWS, WS_SZ), srd_from(SKV, SWS, KVF, 262144))
    k(f"s_lshl_b32 s{sT}, s{sCH}, 10", f"s_lshl_b32 s{sT2}, s{sTH}, 3", f"s_add_u32 s{sT}, s{sT}, s{sT2}", f"s_add_u32 s{sT}, s{sT}, {EA}",
      f"v_add_u32 v{aP}, s{sT}, v{vLin}", f"v_lshlrev_b32 v{aS}, 3, v{TOK}", f"v_add_u32 v{aS}, {EA+4096}, v{aS}")
    k(f"s_bfe_u32 s{sT}, s{sHG}, 0x10001", f"s_lshl_b32 s{sKV}, s{sTB}, 1", f"s_add_u32 s{sKV}, s{sKV}, s{sT}", f"s_lshl_b32 s{sKV}, s{sKV}, 12",
      f"s_and_b32 s{sT2}, s{sHG}, 1", f"s_bitcmp1_b32 s{sHG}, 2", "s_cbranch_scc1 L_f_av")
    k(f"s_lshl_b32 s{sT2}, s{sT2}, 8", f"s_add_u32 s{sKV}, s{sKV}, s{sT2}",
      f"s_lshl_b32 s{sT}, s{sW}, 2", f"s_add_u32 s{sT}, s{sT}, {EA+8192}", f"v_add_u32 v{aG0}, s{sT}, v{vLin}", f"v_add_u32 v{aG1}, 2, v{aG0}",
      f"v_lshlrev_b32 v{T0}, 10, v{T2}", f"v_lshrrev_b32 v{T1}, 1, v{G}", f"v_lshl_add_u32 v{T0}, v{T1}, 9, v{T0}", f"v_lshl_add_u32 v{vKo}, v{TOK}, 4, v{T0}",
      "s_branch L_f_ax")
    k.label("L_f_av")
    k(f"s_lshl_b32 s{sT2}, s{sT2}, 10", f"s_add_u32 s{sKV}, s{sKV}, s{sT2}", f"s_add_u32 s{sKV}, s{sKV}, 2048",
      f"v_lshlrev_b32 v{T0}, 7, v{T2}", f"v_lshrrev_b32 v{T1}, 1, v{G}", f"v_lshl_add_u32 v{T0}, v{T1}, 6, v{T0}",
      f"v_bfe_u32 v{T1}, v{L}, 3, 1", f"v_lshl_add_u32 v{T0}, v{T1}, 9, v{T0}", f"v_and_b32 v{T1}, 7, v{L}", f"v_lshl_add_u32 v{T0}, v{T1}, 1, v{T0}",
      f"s_lshl_b32 s{sT}, s{sCH}, 8", f"s_lshl_b32 s{sT2}, s{sTH}, 5", f"s_add_u32 s{sT}, s{sT}, s{sT2}", f"s_add_u32 s{sT}, s{sT}, {EA+8192}",
      f"v_add_u32 v{aG0}, s{sT}, v{T0}", f"v_add_u32 v{aG1}, 16, v{aG0}", f"v_mov_b32 v{vKo}, v{vLin}")
    k.label("L_f_ax")
    k(f"v_lshrrev_b32 v{T0}, 1, v{TOK}", f"v_xor_b32 v{T0}, v{T0}, v{G}", f"v_lshlrev_b32 v{T0}, 4, v{T0}",
      f"v_lshl_add_u32 v{bX[0]}, v{TOK}, 7, v{T0}", f"v_add_u32 v{vXk}, s{sX}, v{bX[0]}", f"v_xor_b32 v{bX[1]}, 64, v{bX[0]}")
    k(f"v_lshlrev_b32 v{T0}, 2, v{T2}", f"v_xor_b32 v{T0}, v{T0}, v{R}",
      f"v_lshlrev_b32 v{T0}, 5, v{T0}",
      f"v_lshl_add_u32 v{T0}, v{CQ}, 3, v{T0}",
      f"v_lshl_add_u32 v{T0}, v{R}, 8, v{T0}",
      f"v_lshl_add_u32 v{T0}, v{G}, 11, v{T0}",
      f"s_lshl_b32 s{sT}, s{sW}, 6", f"s_add_u32 s{sT}, s{sT}, 8192", f"v_xor_b32 v{bQ[0]}, s{sT}, v{T0}", f"v_xor_b32 v{bQ[1]}, 32, v{bQ[0]}",
      f"s_lshl_b32 s{sT}, s{sCH}, 7", f"v_xor_b32 v{bW[0]}, s{sT}, v{T0}")
    for t in range(1, 4):
        k(f"v_xor_b32 v{bW[t]}, {32*t}, v{bW[0]}")
    bases = list(zip(aX + aQ, bX + bQ))
    for a, b in bases + list(zip(aW, bW)):
        k(f"v_mov_b32 v{a}, v{b}")
    for i in range(O[0], z1, 2):
        k(f"v_mov_b64 {vr(i,2)}, 0")
    k(f"v_and_b32 v{T0}, 7, v{L}", f"v_cmp_eq_u32 vcc, 0, v{T0}", f"v_mov_b32 v{IDX}, 0xdddd", f"v_add_u32 v{vRd}, {KVB+SLOT}, v{vLin}",
      f"v_cndmask_b32 v{SUMA}, 0, v{ONES}, vcc", f"v_cndmask_b32 v{SUMA+1}, 0, v{ONES}, vcc",
      f"v_cmp_eq_u32 vcc, 4, v{T0}", f"v_and_b32 v{T0}, 1, v{TOK}", f"v_and_b32 v{T1}, 2, v{TOK}",
      f"v_cndmask_b32 v{SUMA+2}, 0, v{ONES}, vcc", f"v_cndmask_b32 v{SUMA+3}, 0, v{ONES}, vcc",
      f"v_cmp_eq_u32 s[66:67], 1, v{T0}", f"v_cmp_eq_u32 s[68:69], 2, v{T1}", f"v_cmp_eq_u32 s[82:83], v{R}, v{G}")
    k(f"s_lshl_b32 s{sFg}, s{sTB}, 9", f"s_add_u32 s{sFg}, s{sFg}, {FLG}")
    k(f"s_lshr_b32 s{sS1}, s{sHG}, 2", f"s_lshl_b32 s{sS1}, s{sS1}, 5", f"s_add_u32 s{sS1}, s{sS1}, s{sTB}", f"s_lshl_b32 s{sS1}, s{sS1}, 9",
      f"s_add_u32 s{sS1}, s{sS1}, {ST1}")
    k(f"v_lshrrev_b32 v{T0}, 1, v{G}", f"v_lshl_add_u32 v{T0}, v{T2}, 1, v{T0}", f"v_lshlrev_b32 v{T1}, 4, v{TOK}", f"v_lshl_add_u32 v{vHo}, v{T0}, 8, v{T1}",
      f"v_lshlrev_b32 v{T1}, 11, v{TOK}", f"v_lshl_add_u32 v{T0}, v{T0}, 4, v{T1}",
      f"s_lshl_b32 s{sT}, s{sTB}, 1", f"s_add_u32 s{sT}, s{sT}, s{sTH}", f"s_lshl_b32 s{sT}, s{sT}, 16",
      f"s_lshl_b32 s{sT2}, s{sHG}, 1", f"s_add_u32 s{sT2}, s{sT2}, s{sCH}", f"s_lshl_b32 s{sT2}, s{sT2}, 7", f"s_add_u32 s{sT}, s{sT}, s{sT2}",
      f"v_add_u32 v{vRow}, s{sT}, v{T0}")
    k(f"s_lshl_b32 s{sT}, s{sTB}, 3", f"s_add_u32 s{sT}, s{sT}, s{sHG}", f"s_lshl_b32 s{sT}, s{sT}, 14",
      f"s_lshl_b32 s{sT2}, s{sW}, 12", f"s_add_u32 s{sOo}, s{sT}, s{sT2}", f"s_add_u32 s{sOo}, s{sOo}, {OF}",
      f"s_lshl_b32 s{sT2}, s{sCH}, 13", f"s_add_u32 s{sT}, s{sT}, s{sT2}", f"s_lshl_b32 s{sT2}, s{sTH}, 11", f"s_add_u32 s{sT}, s{sT}, s{sT2}",
      f"s_add_u32 s{sH0}, s{sT}, {HF}", f"s_add_u32 s{sH1}, s{sT}, {HF+4096}")
    k(f"s_mov_b32 s{sRd}, 0", f"s_mov_b32 s{sN}, 7", f"s_cmp_eq_u32 s{sW}, 0", f"s_cselect_b32 s{sFl}, 7, -1")
    xstamp(k, 1)

    def diag(dst, src):
        return [f"v_cndmask_b32 v{T0}, v{src}, v{src+1}, s[66:67]", f"v_cndmask_b32 v{T1}, v{src+2}, v{src+3}, s[66:67]",
                f"v_cndmask_b32 v{dst}, v{T0}, v{T1}, s[68:69]"]

    def kv_mf(gi):
        o = []
        for j in (2 * gi, 2 * gi + 1):
            c = "0" if j == 0 else None
            for t in range(2):
                o += [m16(vr(accE[t], 4), vr(EK[j][t], 4), vr(XK[j], 4), c), m16(vr(csE[t], 4), vr(EK[j][t], 4), vr(ONES, 4), c)]
        return o
    kv_rd = lambda gi: [f"ds_read_b64_tr_b16 {vr(EK[j][t]+2*jj,2)}, v{[aE0,aE1][t]} offset:{j*2048+jj*256}"
                        for j in (2 * gi, 2 * gi + 1) for t in range(2) for jj in range(2)]
    kv_ld(0); kv_ld(1)
    k(f"v_xor_b32 v{T0}, 64, v{vXk}", "s_waitcnt vmcnt(8)")
    xstamp(k, 2)
    for j in range(8):
        k(f"ds_read_b128 {vr(XK[j],4)}, v{[vXk,T0][j&1]} offset:{2048*(j>>1)}")
    kv_ld(2)
    k("s_waitcnt lgkmcnt(0)")
    for j in range(8):
        k(m16(vr(sxxE, 4), vr(XK[j], 4), vr(XK[j], 4), "0" if j == 0 else None), m16(vr(sxE, 4), vr(ONES, 4), vr(XK[j], 4), "0" if j == 0 else None))
    k("s_waitcnt vmcnt(8)", kv_rd(0))
    kv_ld(3)
    xstamp(k, 3)
    k("s_barrier")
    k(f"s_add_u32 s{sT}, s{sWr}, {EA}", f"v_add_u32 v{vE}, s{sT}, v{vLin}", f"v_lshl_add_u32 v{vXk}, v{TOK}, 3, s{sT}")
    k(diag(sxE + 1, sxxE))
    for gi in range(1, 4):
        k(f"s_waitcnt vmcnt({12-4*gi}) lgkmcnt(0)", weave(kv_mf(gi - 1), kv_rd(gi), 0, 5))
    xstamp(k, 4)
    k("s_waitcnt lgkmcnt(0)", kv_mf(3), "s_mov_b64 exec, s[82:83]", f"ds_write_b64 v{vXk}, {vr(sxE,2)} offset:4096", "s_mov_b64 exec, -1", "s_nop 3")
    for i, r in enumerate(accE + csE):
        k(f"ds_write_b128 v{vE}, {vr(r,4)} offset:{1024*i}")
    k("s_waitcnt lgkmcnt(0)")
    xstamp(k, 5)
    k(island(back="L_f_back"))
    U = F0 + 48

    def sum4(r):
        return [f"v_add_f32 v{r+e}, v{r+e}, v{r+2+e}" for e in range(2)] + [f"v_add_f32 v{r+4+e}, v{r+4+e}, v{r+6+e}" for e in range(2)] + \
               [f"v_add_f32 v{r+e}, v{r+e}, v{r+4+e}" for e in range(2)]

    def stats(s, scale):
        return [f"v_mul_f32 v{s}, {f32(-1/1024)}, v{s}", f"v_mul_f32 v{s+1}, {f32(1/1024)}, v{s+1}",
                f"v_fma_f32 v{s+1}, -v{s}, v{s}, v{s+1}", f"v_max_f32 v{s+1}, 0, v{s+1}", f"v_add_f32 v{s+1}, {f32(EPS)}, v{s+1}",
                f"v_rsq_f32 v{s+2}, v{s+1}", "s_nop 0", f"v_mul_f32 v{s+2}, {f32(scale)}, v{s+2}" if scale != 1 else None,
                f"v_mul_f32 v{s+1}, v{s}, v{s+2}", f"v_mov_b32 v{s}, v{s+2}"]
    def reads(fi):
        o = []
        for s in range(2):
            f = FQ[fi][s]
            for t in range(2):
                for j in range(2):
                    o.append(f"ds_read_b64_tr_b16 {vr(f['W'][t]+2*j,2)}, v{aQ[t]} offset:{s*8192+j*1024}")
            o += [f"ds_read_b128 {vr(f['X'][i],4)}, v{aX[s]} offset:{2048*i}" for i in range(4)]
        return o

    def mfmas(fi):
        X = lambda s, i: vr(FQ[fi][s]["X"][i], 4)
        W = lambda s, t: vr(FQ[fi][s]["W"][t], 4)
        o = [m16(vr(cs[t], 4), W(s, t), vr(ONES, 4)) for t in range(2) for s in range(2)]
        for i in range(4):
            o += [m16(vr(qacc[t ^ (i & 1)][i], 4), W(s, t ^ (i & 1)), X(s, i)) for t in range(2) for s in range(2)]
        return o
    va = [f"v_add_u32 v{a}, s{sRd}, v{b}" for a, b in bases]
    adv = [[f"s_add_u32 s{sRd}, s{sRd}, {STG}", f"s_cmp_eq_u32 s{sRd}, {EA}"], [f"s_cselect_b32 s{sRd}, 0, s{sRd}"]] + \
          [va[i:i + 2] for i in range(0, len(va), 2)]
    k("s_barrier")
    xstamp(k, 7)
    if OPT.get('qcyc'):
        mid_stamp(k, 0)
    for w in range(4):
        k(f"ds_read_b64 {vr(U+2*w,2)}, v{aS} offset:{16384*w}")
    for w in range(4):
        k(f"ds_read_b64 {vr(U+8+2*w,2)}, v{aP} offset:{16384*w}", f"ds_read_b64 {vr(U+16+2*w,2)}, v{aP} offset:{16384*w+2048}")
    r0 = reads(0)
    k(r0[:3], "s_waitcnt lgkmcnt(11)", weave(sum4(U) + [x for x in stats(U, 1) if x], r0[3:12], 0, 12), "s_waitcnt lgkmcnt(12)",
      weave(sum4(U + 8) + sum4(U + 16), r0[12:]))
    for e in range(2):
        k(f"v_mul_f32 v{U+8+e}, v{U}, v{U+8+e}", f"v_fmac_f32 v{U+8+e}, v{U+1}, v{U+16+e}")
    k(f"v_cvt_pk_bf16_f32 v{U+8}, v{U+8}, v{U+9}", f"ds_write_b16 v{aG0}, v{U+8}", f"ds_write_b16_d16_hi v{aG1}, v{U+8}",
      f"v_mov_b64 {vr(sxxE,2)}, {vr(U,2)}")
    k(adv, f"v_lshlrev_b32 v{aP}, 3, v{L}", "s_waitcnt lgkmcnt(0)")
    k.label("L_f_qloop")
    for f in range(2):
        k("s_barrier")
        m = weave(mfmas(f), reads(1 - f), 0, OPT.get('qw', 13))
        if f == 0:
            k(weave(m, adv + [[f"s_cmp_eq_u32 s{sN}, s{sFl}"]], len(m) - 6, len(m) - 1))
            k("s_cbranch_scc1 L_f_flag")
            k.label("L_f_flagged")
        else:
            k(weave(m, adv + [[f"s_sub_u32 s{sN}, s{sN}, 1", f"s_cmp_lg_u32 s{sN}, 0"]], len(m) - 6, len(m) - 1))
        k("s_waitcnt lgkmcnt(0)")
    k("s_cbranch_scc1 L_f_qloop")
    k("s_barrier")
    ST = [sx + 2 * i for i in range(4)]
    k(f"buffer_load_dwordx2 {vr(ST[0],2)}, v{aP}, s[{SWS}:{SWS+3}], s{sS1} offen sc1")
    k(weave(mfmas(0), reads(1), 0, 11), "s_waitcnt lgkmcnt(0)")

    def qfin(i, packed):
        o, d = [], Q[i >> 1] + 4 * (i & 1)
        for t in range(2):
            a = qacc[t][i]
            if packed:
                o += [f"v_pk_mul_f32 {vr(a+hh,2)}, {vr(a+hh,2)}, {vr(ST[i],2)} op_sel_hi:[1,0]" for hh in (0, 2)]
                o += [f"v_pk_fma_f32 {vr(a+hh,2)}, {vr(cs[t]+hh,2)}, {vr(ST[i],2)}, {vr(a+hh,2)} op_sel:[0,1,0] op_sel_hi:[1,1,1]" for hh in (0, 2)]
            else:
                o += [f"v_mul_f32 v{a+r}, v{ST[i]}, v{a+r}" for r in range(4)] + [f"v_fmac_f32 v{a+r}, v{ST[i]+1}, v{cs[t]+r}" for r in range(4)]
            o += [f"v_cvt_pk_bf16_f32 v{d+2*t}, v{a}, v{a+1}", f"v_cvt_pk_bf16_f32 v{d+2*t+1}, v{a+2}, v{a+3}"]
        return o
    m = mfmas(1)
    q0 = qfin(0, False)
    two = lambda f_: [f_(e) for e in range(2)]
    bc = [two(lambda e: f"v_mul_f32 v{ST[1]+e}, {f32(QSCALE)}, v{ST[0]+e}"), two(lambda e: f"v_mul_f32 v{ST[0]+e}, {f32(QSCALE)}, v{ST[0]+e}"), ["s_nop 0"],
          two(lambda e: f"v_permlane16_swap_b32 v{ST[0]+e}, v{ST[1]+e}"),
          two(lambda e: f"v_mov_b32 v{ST[2]+e}, v{ST[0]+e}"), two(lambda e: f"v_mov_b32 v{ST[3]+e}, v{ST[1]+e}"),
          two(lambda e: f"v_permlane32_swap_b32 v{ST[0]+e}, v{ST[2]+e}"), two(lambda e: f"v_permlane32_swap_b32 v{ST[1]+e}, v{ST[3]+e}")]
    k(m[0], f"s_mov_b32 s{sRd}, {KVB+SLOT}", m[1], f"s_mov_b32 s{sC}, 8", m[2:5], "s_waitcnt vmcnt(0)",
      weave(m[5:13], bc), weave(m[13:], q0[:14]), q0[14:])
    xstamp(k, 8)
    if OPT.get('qcyc'):
        mid_stamp(k, 1)
    k(qfin(1, True), qfin(2, True), qfin(3, True))
    for r0, n in ((S[3], 16), (VB[1], 8)):
        for i in range(0, n, 2):
            k(f"v_mov_b64 {vr(r0+i,2)}, 0")
    for p in range(2):
        for r in range(4):
            k(f"v_permlane16_swap_b32 v{Q[p]+r}, v{Q[p]+4+r}")
    k("s_branch L_f_att")
    k.label("L_f_flag")
    k(f"s_cmp_lg_u32 s{sFl}, 7", "s_cbranch_scc1 L_f_flag2")
    k(f"ds_read_b128 {vr(sxE,4)}, v{vE} offset:8192", f"v_lshlrev_b32 v{T0}, 3, v{L}",
      f"s_cmp_eq_u32 s{sHG}, 0", f"s_cselect_b32 s{sT}, s{sFg}, {OOB}",
      f"buffer_store_dwordx2 {vr(O[0],2)}, v{T0}, s[{SWS}:{SWS+3}], s{sT} offen sc1",
      f"s_and_b32 s{sT}, s{sHG}, 3", f"s_lshl_b32 s{sT}, s{sT}, 7", f"s_add_u32 s{sT}, s{sT}, s{sS1}", "s_mov_b64 exec, 0xffff",
      f"buffer_store_dwordx2 {vr(sxxE,2)}, v{T0}, s[{SWS}:{SWS+3}], s{sT} offen sc1", "s_mov_b64 exec, -1", "s_waitcnt lgkmcnt(0)",
      f"buffer_store_dwordx4 {vr(sxE,4)}, v{vKo}, s[{SKV}:{SKV+3}], s{sKV} offen sc1",
      f"s_mov_b32 s{sFl}, {OPT.get('flagit', 5)}", "s_branch L_f_flagged")
    k.label("L_f_flag2")
    k(f"s_and_b32 s{sT}, s2, 0xfc", f"v_mov_b32 v{T0}, s{sT}", f"v_mov_b32 v{T1}, 1", "s_mov_b64 exec, 1", "s_waitcnt vmcnt(0)",
      f"global_atomic_add v{T0}, v{T1}, s[{SDBG}:{SDBG+1}] sc1", "s_mov_b64 exec, -1", "s_branch L_f_flagged")
    k(island(back="L_f_back", jump=False))
    k.label("L_f_att")
    k("s_barrier")
    if not (OPT.get('qcyc') or OPT.get('ocyc')):
        mid_stamp(k, 0)
    rdK = lambda t: [f"ds_read_b128 {vr(KB[t&1]+4*m,4)}, v{vRd} offset:{(t%8)*4096+1024*m}" for m in range(2)]
    rdV = lambda t: [f"ds_read_b128 {vr(VB[t&1]+4*m,4)}, v{vRd} offset:{(t%8)*4096+2048+1024*m}" for m in range(2)]
    qk = lambda u, c="0": [m32(vr(S[u % 4], 16), vr(KB[(u >> 1) & 1], 4), vr(Q[u & 1], 4), c),
                           m32(vr(S[u % 4], 16), vr(KB[(u >> 1) & 1] + 4, 4), vr(Q[u & 1] + 4, 4))]
    pv = lambda u: [f"v_smfmac_f32_32x32x32_bf16 {vr(O[u&1],16)}, {vr(VB[(u>>1)&1]+4*m,4)}, {vr(S[u%4]+8*m,8)}, v{IDX}" for m in range(2)]
    sm = lambda u: [f"v_smfmac_f32_16x16x64_bf16 {vr(LS[u&1],4)}, {vr(SUMA,4)}, {vr(S[u%4]+8*m,8)}, v{IDX}" for m in range(2)]
    vO, aO0, aO1 = aG0, aG1, vKo
    k(rdK(0), rdV(0), rdK(1))
    k(f"s_mov_b32 s{sT}, 32768")
    for i in range(2):
        for b in range(2):
            k(f"buffer_load_dwordx4 {vr(RES[i][b],4)}, v{vRow}, s[{SX}:{SX+3}], {['0', f's{sT}'][i]} offen offset:{64*b}")
    k("s_waitcnt lgkmcnt(4)", qk(0))
    bT, aT = bX[0], aX[0]
    k(f"v_and_b32 v{T0}, 1, v{G}", f"v_lshlrev_b32 v{T0}, 10, v{T0}", f"v_lshrrev_b32 v{T1}, 5, v{L}",
      f"v_lshl_add_u32 v{T0}, v{T1}, 8, v{T0}", f"v_lshl_add_u32 v{vO}, v{TOK}, 4, v{T0}",
      f"s_lshl_b32 s{sT}, s{sW}, 12", f"s_add_u32 s{sT}, s{sT}, {XR}", f"v_add_u32 v{aO0}, s{sT}, v{vO}",
      f"s_lshl_b32 s{sT}, s{sTH}, 11", f"s_add_u32 s{sT}, s{sT}, {XR}", f"v_add_u32 v{bT}, s{sT}, v{vLin}", f"v_add_u32 v{aT}, s{sT}, v{vLin}")
    k(".p2align 6")
    k.label("L_k1_loop")
    for u in range(16):
        ex = [f"v_exp_f32 v{S[u%4]+i}, v{S[u%4]+i}" for i in range(16)]
        mf = qk(u + 1) + pv(u - 1) + sm(u - 1)
        sl = [[] for _ in range(6)]
        rd = rdV(u // 2 + 1) if u % 2 == 0 else rdK((u + 3) // 2)
        sl[4].append(rd[0]); sl[5].append(rd[1])
        if u % 2 == 0:
            sl[3].append("s_waitcnt lgkmcnt(0)")
        if u == 9:
            sl[2].append(f"s_add_u32 s{sRd}, s{sRd}, {SLOT}"); sl[3].append(f"s_cmp_eq_u32 s{sRd}, {KVB+3*SLOT}")
        if u == 10:
            sl[2].append(f"s_cselect_b32 s{sRd}, {KVB}, s{sRd}")
        if u == 13:
            sl[1].append(f"v_add_u32 v{vRd}, s{sRd}, v{vLin}")
            sl[2].append("s_waitcnt lgkmcnt(0)"); sl[3].append("s_barrier")
        if u == 15:
            sl[2].append(f"s_sub_u32 s{sC}, s{sC}, 1"); sl[3].append(f"s_cmp_lg_u32 s{sC}, 0")
        cuts = [0, 3, 6, 9, 12, 14, 16] if (u < 15 or not OPT.get("brs", 1)) else [0, 3, 7, 10, 14, 16, 16]
        for i in range(6):
            k(mf[i], sl[i], ex[cuts[i]:cuts[i + 1]])
    k("s_cbranch_scc1 L_k1_loop")
    if not (OPT.get('qcyc') or OPT.get('ocyc')):
        mid_stamp(k, 1)
    vO, aO0, aO1 = aG0, aG1, vKo
    PK = [KB[0], VB[1]]

    def check(q):
        o = [f"v_maximum3_f32 v{T0}, abs(v{O[q]}), abs(v{O[q]+1}), v{LS[q]}", f"v_maximum3_f32 v{T1}, abs(v{O[q]+2}), abs(v{O[q]+3}), abs(v{O[q]+4})"]
        for i in range(5, 15, 2):
            t = [T0, T1][(i // 2) & 1]
            o.append(f"v_maximum3_f32 v{t}, abs(v{O[q]+i}), abs(v{O[q]+i+1}), v{t}")
        o += [f"v_maximum3_f32 v{T0}, abs(v{O[q]+15}), v{T1}, v{T0}",
              f"v_cmp_nle_f32 vcc, {f32(2.0**-80)}, v{LS[q]}", f"s_mov_b64 s[70:71], vcc",
              f"v_cmp_nge_f32 vcc, {f32(2.0**100)}, v{T0}", f"s_or_b64 s[70:71], s[70:71], vcc",
              "s_branch L_k1_slow" if OPT["force_slow"] == q + 1 else None, "s_cbranch_scc1 L_k1_slow"]
        return o

    def out(q):
        o = [f"v_rcp_f32 v{LS[q]}, v{LS[q]}", "s_nop 0"]
        for m in range(2):
            d = PK[q] + 4 * m
            o += [f"v_pk_mul_f32 {vr(O[q]+8*m+i,2)}, {vr(O[q]+8*m+i,2)}, {vr(LS[q],2)} op_sel_hi:[1,0]" for i in range(0, 8, 2)]
            o += [f"v_cvt_pk_bf16_f32 v{d+i}, v{O[q]+8*m+2*i}, v{O[q]+8*m+2*i+1}" for i in range(4)]
            o.append(f"buffer_store_dwordx4 {vr(d,4)}, v{vO}, s[{SWS}:{SWS+3}], s{sOo} offen offset:{2048*q+512*m} sc1")
        return o
    k(pv(15), sm(15), "s_nop 9", check(0), out(0), check(1))
    k.label("L_k1_out")
    k(out(1))
    for q in range(2):
        for m in range(2):
            k(f"ds_write_b128 v{aO0}, {vr(PK[q]+4*m,4)} offset:{2048*q+512*m}")
    k("s_branch L_f_oproj")
    k(island(back="L_f_back2", jump=False))
    k.label("L_f_oproj")
    k("s_waitcnt vmcnt(4)")
    for i in range(2):
        for b in range(2):
            k(f"v_permlane16_swap_b32 v{RES[i][b]}, v{RES[i][b]+2}", f"v_permlane16_swap_b32 v{RES[i][b]+1}, v{RES[i][b]+3}")
    sig = lambda h: ["s_mov_b64 exec, 1", "s_waitcnt vmcnt(0)", f"buffer_atomic_add v{T0}, off, s[{SWS}:{SWS+3}], s{sFg} offset:{256*h} sc1", "s_mov_b64 exec, -1"]
    k(f"v_mov_b32 v{T0}, 1", f"s_cmp_ge_u32 s{sHG}, 4", "s_cbranch_scc1 L_f_sig0", sig(0))
    k.label("L_f_sig0")
    k(f"s_mov_b32 s{sRd}, 0", "s_waitcnt lgkmcnt(0)", "s_barrier")

    def oreads(fi):
        o = [f"ds_read_b128 {vr(F[fi][s]['X'][i],4)}, v{aT} offset:{s*4096+i*1024}" for s in range(2) for i in range(2)]
        for s in range(2):
            for t in range(4):
                for j in range(2):
                    o.append(f"ds_read_b64_tr_b16 {vr(F[fi][s]['W'][t]+2*j,2)}, v{aW[t]} offset:{s*8192+j*1024}")
        return o

    def omf(fi, s):
        return [m16(vr(acc[t][i ^ (t & 1)], 4), vr(F[fi][s]["W"][t], 4), vr(F[fi][s]["X"][i ^ (t & 1)], 4)) for t in range(4) for i in range(2)]
    oadv = [[f"s_add_u32 s{sRd}, s{sRd}, 16384", f"s_and_b32 s{sRd}, s{sRd}, 0x1ffff"], [f"s_bfe_u32 s{sRx}, s{sRd}, 0xf0001", f"v_add_u32 v{aW[0]}, s{sRd}, v{bW[0]}"],
            [f"v_add_u32 v{aW[t]}, s{sRd}, v{bW[t]}" for t in (1, 2)], [f"v_add_u32 v{aW[3]}, s{sRd}, v{bW[3]}", f"v_add_u32 v{aT}, s{sRx}, v{bT}"]]

    def ostep(f, adv_, extra=()):
        r = oreads(1 - f)
        sl = [[] for _ in range(16)]
        for i, x in enumerate(r[:12]):
            sl[(i * 8) // 12].append(x)
        for i, x in enumerate(r[12:]):
            sl[8 + i].append(x)
        if adv_:
            sl[1].append(f"s_add_u32 s{sRd}, s{sRd}, 16384"); sl[3].append(f"s_and_b32 s{sRd}, s{sRd}, 0x1ffff")
            sl[5].append(f"s_bfe_u32 s{sRx}, s{sRd}, 0xf0001"); sl[8].append(f"v_add_u32 v{aT}, s{sRx}, v{bT}")
            for t in range(4):
                sl[9 + 2 * t].append(f"v_add_u32 v{aW[t]}, s{sRd}, v{bW[t]}")
        for i, x in enumerate(extra):
            sl[10 + 2 * i].append(x)
        sl[7].append("s_waitcnt lgkmcnt(12)"); sl[15].append("s_waitcnt lgkmcnt(8)")
        for m, e in zip(omf(f, 0) + omf(f, 1), sl):
            k(m, e)
    if OPT.get("ocyc"):
        mid_stamp(k, 0)
    k(oreads(0), oadv)
    for i in range(2):
        for b in range(2):
            for jt in range(2):
                for hh in range(2):
                    a, r = acc[2 * b + jt][i] + 2 * hh, RES[i][b] + 2 * jt + hh
                    k(f"v_lshlrev_b32 v{a}, 16, v{r}", f"v_and_b32 v{a+1}, 0xffff0000, v{r}")
    k(f"s_cmp_lt_u32 s{sHG}, 4", "s_cbranch_scc1 L_f_sig1", sig(1))
    k.label("L_f_sig1")
    xstamp(k, 9)
    k(f"s_lshl_b32 s{sT}, s{sTB}, 1", f"s_add_u32 s{sT}, s{sT}, s{sTH}", f"s_lshl_b32 s{sT}, s{sT}, 12",
      f"s_lshl_b32 s{sT2}, s{sHG}, 1", f"s_add_u32 s{sT2}, s{sT2}, s{sCH}", f"s_lshl_b32 s{sT2}, s{sT2}, 8",
      f"s_add_u32 s{sT}, s{sT}, s{sT2}", f"s_add_u32 s{sFg}, s{sT}, {STP}", f"s_mov_b32 s{sN}, 7", "s_waitcnt lgkmcnt(0)")
    k.label("L_f_oloop")
    k("s_barrier")
    ostep(0, True)
    k("s_barrier")
    ostep(1, True, [f"s_sub_u32 s{sN}, s{sN}, 1", f"s_cmp_lg_u32 s{sN}, 0"])
    k("s_cbranch_scc1 L_f_oloop")
    k("s_barrier")
    ostep(0, False)
    k(omf(1, 0), "s_waitcnt lgkmcnt(0)", omf(1, 1), "s_nop 3")
    if OPT.get("ocyc"):
        mid_stamp(k, 1)
    SUM = [O[0], O[0] + 4]
    for b in range(2):
        for i in range(2):
            o = Q[b] + 4 * i
            for jt in range(2):
                a = acc[2 * b + jt][i]
                k(f"v_cvt_pk_bf16_f32 v{o+2*jt}, v{a}, v{a+1}", f"v_cvt_pk_bf16_f32 v{o+2*jt+1}, v{a+2}, v{a+3}")
        k("s_nop 0")
        for i in range(2):
            o = Q[b] + 4 * i
            k(f"v_permlane16_swap_b32 v{o}, v{o+2}", f"v_permlane16_swap_b32 v{o+1}, v{o+3}",
              f"buffer_store_dwordx4 {vr(o,4)}, v{vHo}, s[{SWS}:{SWS+3}], s{[sH0,sH1][b]} offen offset:{1024*i} sc1")
    for t in range(4):
        for hh in (0, 2):
            for i in range(2):
                a = vr(acc[t][i] + hh, 2)
                if t == 0 and hh == 0:
                    k(f"v_pk_mul_f32 {vr(SUM[i]+2,2)}, {a}, {a}")
                else:
                    src = vr(acc[0][i], 2) if (t == 0 and hh == 2) else vr(SUM[i], 2)
                    k(f"v_pk_add_f32 {vr(SUM[i],2)}, {src}, {a}", f"v_pk_fma_f32 {vr(SUM[i]+2,2)}, {a}, {a}, {vr(SUM[i]+2,2)}")
    for i in range(2):
        k(f"v_add_f32 v{SUM[i]}, v{SUM[i]}, v{SUM[i]+1}", f"v_add_f32 v{SUM[i]+1}, v{SUM[i]+2}, v{SUM[i]+3}")
    k(f"v_lshrrev_b32 v{T0}, 6, v{vHo}", f"v_permlane32_swap_b32 v{SUM[0]}, v{SUM[0]+1}", f"v_permlane32_swap_b32 v{SUM[1]}, v{SUM[1]+1}", "s_nop 0",
      f"v_add_f32 v{SUM[0]}, v{SUM[0]}, v{SUM[0]+1}", f"v_add_f32 v{SUM[1]}, v{SUM[1]}, v{SUM[1]+1}",
      f"v_and_b32 v{T0}, 12, v{T0}", f"v_lshl_add_u32 v{T0}, v{TOK}, 4, v{T0}",
      f"v_permlane16_swap_b32 v{SUM[0]}, v{SUM[1]}", "s_nop 0",
      f"v_add_f32 v{SUM[0]}, v{SUM[0]}, v{SUM[1]}",
      f"buffer_store_dword v{SUM[0]}, v{T0}, s[{SWS}:{SWS+3}], s{sFg} offen sc1")
    tail(k, 0, sW)
    k(island(back="L_f_back", jump=False))
    k.label("L_f_setup")
    if OPT.get("isl", 1):
        k(f"s_cmp_eq_u32 s{sW}, 0", f"s_cbranch_scc1 L_isl{ISL[0][0]}", f"s_cmp_eq_u32 s{sW}, 1", f"s_cbranch_scc1 L_isl{ISL[1][0]}")
    k.label("L_f_back")
    k("s_waitcnt lgkmcnt(0)", ws_shift(SWS), srd_tail(SWS, WS_SZ), srd_from(SKV, SWS, KVF, 262144))
    k(f"s_lshl_b32 s{sGW}, s2, 2", f"s_add_u32 s{sGW}, s{sGW}, s{sW}",
      f"s_lshl_b32 s{sWrJ}, s{sW}, 12", f"s_add_u32 s{sWrJ}, s{sWrJ}, {JB}")
    k(f"v_lshrrev_b32 v{T0}, 4, v{L}", f"v_lshlrev_b32 v{T0}, 10, v{T0}", f"v_bfe_u32 v{T1}, v{L}, 2, 2", f"v_lshl_add_u32 v{T0}, v{T1}, 7, v{T0}",
      f"v_bfe_u32 v{T1}, v{L}, 3, 1", f"v_lshl_add_u32 v{T0}, v{T1}, 6, v{T0}", f"v_add_u32 v{T0}, s{sWrJ}, v{T0}", f"v_and_b32 v{T1}, 3, v{L}",
      f"v_lshl_add_u32 v{bJ[0]}, v{T1}, 4, v{T0}", f"v_xor_b32 v{bJ[1]}, 64, v{bJ[0]}")
    strip, kb0, mat = 66, 67, 68
    k(f"s_lshr_b32 s{strip}, s{sGW}, 3", f"s_and_b32 s{kb0}, s{sGW}, 7", f"s_lshl_b32 s{kb0}, s{kb0}, 2",
      f"s_cmp_ge_u32 s{strip}, 112", "s_cbranch_scc1 L_k1_wo")
    if "jskip" in OPT:
        k(f"s_and_b32 s{sT}, s2, 1", f"s_cmp_eq_u32 s{sT}, {OPT['jskip']}", "s_cbranch_scc1 L_k1_wo")
    k(f"s_cmp_ge_u32 s{strip}, 56", f"s_cselect_b32 s{mat}, 1, 0",
      f"s_cselect_b32 s{SJ}, s26, s24", f"s_cselect_b32 s{SJ+1}, s27, s25",
      f"s_mul_i32 s{sT}, s{mat}, 56", f"s_sub_u32 s{strip}, s{strip}, s{sT}",
      f"s_mov_b32 s{SJ+2}, {1024*7168}", f"s_mov_b32 s{sStr}, 7168", f"s_mov_b32 s{sDstep}, {14*1024}",
      f"s_mov_b32 s{sBsz}, {3584*2048}",
      f"v_lshl_add_u32 v{aJ[0]}, v{T1}, 3, v{T0}")
    for i in range(1, 4):
        k(f"v_xor_b32 v{aJ[i]}, {32*i}, v{aJ[0]}")
    for i in range(4):
        T, fb, pos = 69, 70, 71
        k(f"s_lshl_b32 s{T}, s{strip}, 2", f"s_add_u32 s{T}, s{T}, {i}",
          f"s_mul_i32 s{fb}, s{T}, 9363", f"s_lshr_b32 s{fb}, s{fb}, 16",
          f"s_sub_u32 s{pos}, s{mat}, s{fb}", f"s_mul_i32 s{pos}, s{pos}, 7", f"s_add_u32 s{pos}, s{T}, s{pos}",
          f"s_lshl_b32 s{sT}, s{fb}, 5", f"s_add_u32 s{sT}, s{sT}, s{kb0}", f"s_mul_i32 s{sT}, s{sT}, 14",
          f"s_add_u32 s{sT}, s{sT}, s{pos}", f"s_lshl_b32 s{sT}, s{sT}, 10", f"s_add_u32 s{sD[i]}, s{sT}, {WGU}",
          f"s_lshl_b32 s{sT}, s{kb0}, 3", f"s_add_u32 s{sT}, s{sT}, s{fb}", f"s_mul_i32 s{sT}, s{sT}, 14",
          f"s_add_u32 s{sT}, s{sT}, s{pos}", f"s_lshl_b32 s{sT}, s{sT}, 6", f"s_add_u32 s{sCs[i]}, s{sT}, {CSP}")
    k("s_branch L_k1_jp")
    k.label("L_k1_wo")
    k(f"s_mov_b32 s{SJ}, s24", f"s_mov_b32 s{SJ+1}, s25", f"s_mov_b32 s{SJ+2}, 0", f"s_mov_b32 s{sStr}, 2048", f"s_mov_b32 s{sDstep}, 0", f"s_mov_b32 s{sBsz}, 0")
    for i in range(4):
        k(f"s_mov_b32 s{sD[i]}, {OOB}", f"s_mov_b32 s{sCs[i]}, {OOB}", f"v_mov_b32 v{aJ[i]}, v{bJ[0]}")
    k.label("L_k1_jp")
    k(f"s_mov_b32 s{SJ+3}, 0x00020000")
    k(f"v_lshrrev_b32 v{T0}, 3, v{L}", f"v_bfe_u32 v{T1}, v{L}, 4, 1", f"v_lshlrev_b32 v{T1}, 2, v{T1}",
      f"v_and_b32 v{T2}, 7, v{L}", f"v_xor_b32 v{T1}, v{T1}, v{T2}", f"v_lshlrev_b32 v{T1}, 4, v{T1}",
      f"v_mul_lo_u32 v{vJ}, v{T0}, s{sStr}", f"v_lshl_add_u32 v{vJB}, v{T0}, 11, v{T1}", f"v_add_u32 v{vJ}, v{vJ}, v{T1}",
      f"s_lshl_b32 s{sT}, s{kb0}, 5", f"s_mul_i32 s{sT}, s{sT}, s{sStr}", f"s_lshl_b32 s{sT2}, s{strip}, 7", f"s_add_u32 s{sT}, s{sT}, s{sT2}",
      f"v_add_u32 v{vJ}, s{sT}, v{vJ}",
      f"s_lshl_b32 s{sT}, s{sStr}, 3", f"s_sub_u32 s{sJa}, s{sT}, 1024", f"s_add_u32 s{sJb}, s{sT}, 3072", f"s_mov_b32 s{sJo}, 0")
    k(f"s_mul_i32 s{strip}, s{sGW}, 1171", f"s_lshr_b32 s{strip}, s{strip}, 16",
      f"s_mul_i32 s{sT}, s{strip}, 56", f"s_sub_u32 s{kb0}, s{sGW}, s{sT}", f"s_lshl_b32 s{kb0}, s{kb0}, 1",
      f"s_cmp_ge_u32 s{kb0}, 48", f"s_cselect_b32 s69, 48, 0", f"s_cselect_b32 s70, 8, 0", f"s_sub_u32 s69, s{kb0}, s69",
      f"s_and_b32 s71, s69, 7", f"s_add_u32 s70, s70, s71", f"s_lshr_b32 s69, s69, 3",
      f"s_sub_u32 s71, s{kb0}, 96", f"s_cmp_ge_u32 s{kb0}, 96", f"s_cselect_b32 s69, 6, s69", f"s_cselect_b32 s70, s71, s70",
      f"s_mul_i32 s70, s70, 14", f"s_add_u32 s{sT}, s70, s69", f"s_lshl_b32 s{sT}, s{sT}, 15",
      f"s_lshl_b32 s{sT2}, s{strip}, 7", f"s_add_u32 s{sT}, s{sT}, s{sT2}",
      f"v_add_u32 v{vJB}, s{sT}, v{vJB}",
      f"s_lshr_b32 s{sT}, s{strip}, 1", f"s_mul_i32 s{sT}, s{sT}, 112", f"s_add_u32 s{sT}, s{sT}, s{kb0}", f"s_lshl_b32 s{sT}, s{sT}, 1",
      f"s_and_b32 s{sT2}, s{strip}, 1", f"s_add_u32 s{sT}, s{sT}, s{sT2}", f"s_lshl_b32 s{sT}, s{sT}, 12",
      f"s_add_u32 s{sDB}, s{sT}, {WDF}", f"s_cmp_eq_u32 s{sBsz}, 0", f"s_cselect_b32 s{sDB}, {OOB}, s{sDB}")
    k(f"v_and_b32 v{T0}, 15, v{L}", f"v_cmp_eq_u32 vcc, 0, v{T0}", f"v_mov_b32 v{T1}, {OOB}", "s_nop 0",
      f"v_cndmask_b32 v{vCs}, v{T1}, v{L}, vcc")
    for i in range(4):
        k(f"v_mov_b32 v{ONES+i}, 0x3f803f80")
    k(f"v_lshlrev_b32 v{vPo}, 2, v{L}")
    if OPT.get("hprof"):
        k("v_writelane_b32 v200, s92, 0", "s_mov_b32 s86, 5")
    hstamp(k, 1)
    k("s_barrier")
    hstamp(k, 2)
    npre = OPT.get("npre", 2)
    for n in range(npre):
        q_x(n * STG); q_w(n * STG)
    hstamp(k, 3)
    k(f"s_waitcnt vmcnt({6*(npre-1)})", "s_barrier")
    hstamp(k, 4)
    for n in range(npre, 4):
        q_x(n * STG); q_w(n * STG)
    k("s_waitcnt vmcnt(12)", "s_barrier")
    k.label("L_f_ld2")
    if OPT.get("hprof"):
        k("s_mov_b32 m0, s86", "s_add_u32 s86, s86, 1")
    hstamp(k, "m0")
    q_stage()
    k(f"s_cmp_lg_u32 s{sN}, 0", f"s_waitcnt vmcnt({6*D})", "s_barrier", "s_cbranch_scc1 L_f_ld2")
    hstamp(k, 17)
    poll = f"global_load_dword v{PF4}, v{vPo}, s[{SDBG}:{SDBG+1}] sc1"
    k(f"s_lshl_b32 s{sKo}, s{sW}, 13", f"s_add_u32 s{sWr}, s{sKo}, {KVB}", f"s_mov_b32 s{sN}, {1<<20}")
    if OPT.get("kvrot", 0):
        k(f"s_bfe_u32 s{sT}, s2, {0x30003 if OPT.get('kvrot', 1) == 1 else 0x30000}", f"s_lshl_b32 s{sT}, s{sT}, 15", f"s_add_u32 s{sKo}, s{sKo}, s{sT}")
    k(f"s_cmp_eq_u32 s{sW}, 0", "s_cbranch_scc1 L_f_poll0", "s_waitcnt vmcnt(6)", "s_barrier", "s_waitcnt vmcnt(0)", "s_branch L_f_polled")
    k.label("L_f_poll0")
    k(poll, "s_waitcnt vmcnt(7)", "s_barrier")
    k.label("L_f_poll")
    k("s_waitcnt vmcnt(0)", f"v_cmp_ne_u32 vcc, 4, v{PF4}", f"s_sub_u32 s{sN}, s{sN}, 1", "s_cbranch_scc1 L_f_polled",
      "s_cbranch_vccz L_f_polled", "s_sleep 2", poll, "s_branch L_f_poll")
    k.label("L_f_polled")
    hstamp(k, 18)
    k("s_barrier")
    hstamp(k, 19)

    def kv_dma(c):
        o = []
        for hh in range(2):
            o += [f"s_add_u32 m0, s{sWr}, {((c+1)%3)*SLOT+4096*hh}", "s_nop 0"]
            for i in range(4):
                o.append(f"buffer_load_dwordx4 v{vLin}, s[{SKV}:{SKV+3}], s{sKo} offen offset:{1024*i} sc1 lds")
            o.append(f"s_add_u32 s{sKo}, s{sKo}, {4096 if hh == 0 else 32768-4096}")
        o.append(f"s_and_b32 s{sKo}, s{sKo}, 0x3ffff")
        return o
    k(kv_dma(0))
    hstamp(k, 20)
    k([kv_dma(1), "s_waitcnt vmcnt(8)"] if OPT.get("kv1", 0) else "s_waitcnt vmcnt(0)")
    hstamp(k, 21)
    k("s_barrier")
    hstamp(k, 22)
    vm = []

    def wait_for(*tag):
        n = len(vm) - 1 - max(i for i, t in enumerate(vm) if t in tag)
        return f"s_waitcnt vmcnt({n})"
    vm += ["kv1"] * 8
    k(f"s_mov_b32 s{SWQ}, s20", f"s_mov_b32 s{SWQ+1}, s21",
      f"s_lshl_b32 s{sBW}, s{sTH}, 1", f"s_add_u32 s{sBW}, s{sBW}, s{sCH}", f"s_lshl_b32 s{sBW}, s{sBW}, 10",
      f"s_lshl_b32 s{sRd}, s{sW}, 11", f"s_lshl_b32 s{sOo}, s{sTB}, 17", f"s_add_u32 s{sOo}, s{sOo}, s{sRd}", f"s_add_u32 s{sOo}, s{sOo}, {OF}")
    if not OPT.get("kv1", 0):
        k(kv_dma(1))

    def kstage(n, sh):
        if n < 2:
            return [f"s_lshl_b32 s{sT}, s{sHG}, {sh+1}", f"s_add_u32 s{sT}, s{sT}, {n<<sh}"]
        i = n >> 1
        if i == 4:
            return [f"s_xor_b32 s{sT}, s{sHG}, 4", f"s_lshl_b32 s{sT}, s{sT}, {sh+1}", f"s_add_u32 s{sT}, s{sT}, {(n&1)<<sh}"]
        return [f"s_add_u32 s{sT}, s{sHG}, {i}", f"s_and_b32 s{sT}, s{sT}, 3", f"s_lshl_b32 s{sT}, s{sT}, {sh+1}",
                f"s_add_u32 s{sT}, s{sT}, {((n&1) + (8 if i > 4 else 0))<<sh}"]

    def o_w(n, pieces=range(4)):
        k(kstage(n, 17))
        for i in pieces:
            k(f"s_add_u32 m0, s{sBW}, {(n%8)*16384+4096*i}", "s_nop 0", f"buffer_load_dwordx4 v{vW[i]}, s[{SWQ}:{SWQ+3}], s{sT} offen lds")
        vm.extend([f"w{n}"] * len(pieces))

    def o_x(n):
        k(kstage(n, 13), f"s_add_u32 m0, s{sRd}, {XR+(n%4)*8192}", f"s_add_u32 s{sT}, s{sT}, s{sOo}")
        for i in range(2):
            k(f"buffer_load_dwordx4 v{vLin}, s[{SWS}:{SWS+3}], s{sT} offen offset:{1024*i} sc1 lds")
        vm.extend([f"x{n}"] * 2)
    for c in range(8):
        if c + 2 < 8:
            k(kv_dma(c + 2)); vm += [f"kv{c+2}"] * 8
        if c < (3 if OPT.get("s4", 0) else 1):
            k(f"s_lshl_b32 s{sT}, s{sGW}, 12", f"s_add_u32 s{sT}, s{sT}, {XB4[c+1]}", f"v_mov_b64 {vr(PF4,2)}, -1", f"v_mov_b64 {vr(PF4+2,2)}, -1")
            for i in range(4):
                k(f"buffer_store_dwordx4 {vr(PF4,4)}, v{vLin}, s[{SWS}:{SWS+3}], s{sT} offen offset:{1024*i} sc1")
            vm += ["st"] * 4
        if c == 3:
            k(f"s_lshl_b32 s{sT}, s{sGW}, 10", f"s_add_u32 s{sT}, s{sT}, {FL2}", f"s_cmp_lt_u32 s{sGW}, 8", f"s_cselect_b32 s{sT}, s{sT}, {OOB}",
              f"v_mov_b64 {vr(PF4,2)}, 0", f"v_mov_b64 {vr(PF4+2,2)}, 0",
              f"buffer_store_dwordx4 {vr(PF4,4)}, v{vLin}, s[{SWS}:{SWS+3}], s{sT} offen sc1")
            vm += ["st"]
        j = c - 1
        proc = 0 <= j < 6 and not OPT.get("nojob")
        if proc:
            k(wait_for(f"j{j}"))
            for f in range(4):
                for jj in range(2):
                    if j < 4:
                        k(f"ds_read_b64_tr_b16 {vr(JF[f]+2*jj,2)}, v{aJ[f]} offset:{jj*512}")
                    else:
                        k(f"ds_read_b64_tr_b16 {vr(JF[f]+2*jj,2)}, v{bJ[f>>1]} offset:{jj*512+(f&1)*8}")
            k("s_waitcnt lgkmcnt(0)")
        if c < 6 and not OPT.get("nojob"):
            if c == 4:
                k(f"s_mov_b32 s{SJ}, s28", f"s_mov_b32 s{SJ+1}, s29", f"s_mov_b32 s{SJ+2}, s{sBsz}",
                  f"s_mov_b32 s{sJo}, 0")
            k(f"s_mov_b32 m0, s{sWrJ}", "s_nop 0")
            for i in range(4):
                k(f"buffer_load_dwordx4 v{vJ if c < 4 else vJB}, s[{SJ}:{SJ+3}], s{sJo} offen offset:{1024*i}{' nt' if OPT.get('jnt', 0) else ''} lds",
                  f"s_add_u32 s{sJo}, s{sJo}, " + (f"s{sJa if i < 3 else sJb}" if c < 4 else str([8, 104, 8, 104][i] * 2048 + (-1024 if i < 3 else 3072))))
            vm += [f"j{c}"] * 4
        if proc:
            for f in range(4):
                if j < 4:
                    k(f"buffer_store_dwordx4 {vr(JF[f],4)}, v{vLin}, s[{SWS}:{SWS+3}], s{sD[f]} offen sc1",
                      f"s_add_u32 s{sD[f]}, s{sD[f]}, s{sDstep}",
                      m16(vr(CS[f], 4), vr(JF[f], 4), vr(ONES, 4), "0" if j == 0 else None))
                else:
                    k(f"buffer_store_dwordx4 {vr(JF[f],4)}, v{vLin}, s[{SWS}:{SWS+3}], s{sDB} offen offset:{1024*f} sc1")
            vm += ["st"] * 4
            if j == 4:
                k(f"s_add_u32 s{sDB}, s{sDB}, 8192")
                for f in range(4):
                    k(f"buffer_store_dwordx4 {vr(CS[f],4)}, v{vCs}, s[{SWS}:{SWS+3}], s{sCs[f]} offen sc1")
                vm += ["st"] * 4
        for n in {5: [0, 2, 3], 6: [4, 5], 7: [1, 6, 7]}.get(c, []):
            o_w(n)
        if c == 1 and OPT.get("isl", 1):
            k(f"s_branch L_isl{[n for n, b in ISL if b == 'L_f_back2'][0]}")
            k.label("L_f_back2")
        if c == 5:
            k(f"s_lshr_b32 s{sT}, s2, 3", f"s_lshl_b32 s{sT}, s{sT}, 11", f"v_and_b32 v{T0}, 255, v0", f"v_lshlrev_b32 v{T0}, 3, v{T0}",
              f"v_add_u32 v{T0}, s{sT}, v{T0}")
            k(f"s_getpc_b64 s[22:23]")
            k.label("L_f_pc2")
            k("s_add_u32 s22, s22, L_code_rest-L_f_pc2", "s_addc_u32 s23, s23, 0",
              f"v_min_u32 v{T0}, L_code_end-L_code_rest-4, v{T0}", f"global_load_dword v{PF4}, v{T0}, s[22:23]")
            vm.append("pf")
        if c == 6:
            k(f"s_and_b32 s{sT}, s{sTB}, 7", f"s_add_u32 s{sT}, s{sT}, 8", f"s_lshr_b32 s{sT2}, s{sT}, 1", f"s_cmp_eq_u32 s{sHG}, s{sT2}",
              f"s_cselect_b32 s{sT2}, 8, 0", f"s_sub_u32 s{sT}, s{sT}, s{sT2}", f"s_lshl_b32 s{sT}, s{sT}, 17")
            for i in range(4):
                k(f"buffer_load_dwordx4 {vr(PF4,4)}, v{vW[i]}, s[{SWQ}:{SWQ+3}], s{sT} offen")
            vm.extend(["pf"] * 4)
        if c + 1 < 8:
            k(wait_for(f"kv{c+1}"))
        k("s_barrier")
    k(f"s_lshl_b32 s{sKo}, s{sTB}, 9", f"s_add_u32 s{sKo}, s{sKo}, {FLG}", f"s_mov_b32 s{sN}, {1<<20}", "s_waitcnt vmcnt(0)")
    hstamp(k, 23)
    look = lambda h: f"buffer_load_dword v{PF4}, off, s[{SWS}:{SWS+3}], s{sKo} offset:{256*h} sc1"
    ask = lambda h, r=0: ["s_mov_b64 exec, 1", f"v_mov_b32 v{PF4+r}, 0", f"buffer_atomic_add v{PF4+r}, off, s[{SWS}:{SWS+3}], s{sKo} offset:{256*h} sc0 sc1", "s_mov_b64 exec, -1"]
    NP = OPT.get("np", 3)

    def gate(h, wait, tag=""):
        op = f"L_f_open{h}{tag}"
        k(wait, f"v_readfirstlane_b32 s{sT}, v{PF4}", "s_nop 0", f"s_cmp_ge_u32 s{sT}, s{sStr}", f"s_cbranch_scc1 {op}")
        for r in range(NP - 1):
            k(ask(h, r), f"s_sleep {OPT.get('pgap', 3)}")
        k.label(f"L_f_gate{h}{tag}")
        for r in range(NP):
            k(ask(h, (r - 1) % NP), f"s_waitcnt vmcnt({NP-1})", f"v_readfirstlane_b32 s{sT}, v{PF4+r}", "s_nop 0",
              f"s_cmp_ge_u32 s{sT}, s{sStr}", f"s_cbranch_scc1 {op}")
        k(f"s_sub_u32 s{sN}, s{sN}, 1", f"s_cbranch_scc0 L_f_gate{h}{tag}")
        k.label(op)
    k(f"v_mov_b32 v{PF4}, 0", f"s_cmp_lt_u32 s{sHG}, 4", "s_cbranch_scc1 L_f_late", f"s_sleep {OPT['odl']}" if OPT.get('odl') else None, ask(0), "s_waitcnt vmcnt(0)",
      f"v_readfirstlane_b32 s{sT}, v{PF4}", "s_nop 0", f"s_cmp_lt_u32 s{sT}, 16", "s_cbranch_scc1 L_f_late")
    o_x(2); o_x(3)
    del vm[-4:]
    hstamp(k, 24)
    k("s_barrier")
    hstamp(k, 25)
    k("s_branch L_f_both")
    k.label("L_f_late")
    k(f"s_cmp_eq_u32 s{sW}, 0", f"s_cselect_b32 s{sStr}, 16, 0")
    gate(0, None)
    hstamp(k, 24)
    k("s_barrier")
    hstamp(k, 25)
    o_x(2); o_x(3)
    k.label("L_f_both")
    k(f"s_cmp_eq_u32 s{sW}, 0", f"s_cselect_b32 s{sKo}, s{sKo}, {OOB}", f"s_cselect_b32 s{sStr}, 16, 0",
      f"s_cmp_lt_u32 s{sHG}, 4", f"s_cselect_b32 s{sJa}, {OOB}, s{sKo}", f"s_cselect_b32 s{sJb}, 0, s{sStr}",
      f"s_cselect_b32 s{sKo}, s{sKo}, {OOB}", f"s_cselect_b32 s{sStr}, s{sStr}, 0")
    k("s_barrier")
    G2 = OPT.get("g2", 3)
    for n in range(1, 15):
        if n + 3 < 16:
            o_x(n + 3)
        if n in (G2, G2 + 2):
            k(look(1) if OPT.get("lk", 1) else ask(1)); vm.append("ask")
        cum = [[0, 0, 3, 5, 8, 10, 13, 15, 18, 20, 23, 25, 28, 32, 32], [0, 0, 3, 6, 9, 12, 15, 18, 21, 24, 27, 30, 32, 32, 32]][OPT.get("wsch", 1)]
        for m in range(8, 16):
            pcs = [q for q in range(4) if cum[n - 1] <= 4 * (m - 8) + q < cum[n]]
            if pcs:
                assert m - 6 <= n <= m - 2
                o_w(m, pcs)
        if n == 4:
            gate(1, wait_for("ask"))
            k(f"s_mov_b32 s{sKo}, s{sJa}", f"s_mov_b32 s{sStr}, s{sJb}")
        if n == 6:
            gate(1, wait_for("ask"), "b")
        k(wait_for(f"x{n+1}", f"w{n+1}"), "s_barrier")
        if n in (1, 4, 6, 9, 14):
            hstamp(k, 26 + (1, 4, 6, 9, 14).index(n))
    if OPT.get("hprof"):
        k(f"s_lshl_b32 s{sT}, s{sGW}, 7", f"s_add_u32 s{sT}, s{sT}, {STAMP+2*MB}", f"v_lshlrev_b32 v{T0}, 2, v{L}", "s_mov_b64 exec, 0xffffffff",
          f"buffer_store_dword v200, v{T0}, s[{SWS}:{SWS+3}], s{sT} offen")
    hop(k, sW)
    k.label("L_k1_slow")
    k("s_waitcnt vmcnt(0) lgkmcnt(0)", "s_nop 15")
    C = [S[2], S[3]]
    ldK = [f"buffer_load_dwordx4 {vr(KB[0]+4*m,4)}, v{vLin}, s[{SKV}:{SKV+3}], s{sKo} offen offset:{1024*m} sc1" for m in range(2)]
    ldV = [f"buffer_load_dwordx4 {vr(VB[0]+4*m,4)}, v{vLin}, s[{SKV}:{SKV+3}], s{sKo} offen offset:{2048+1024*m} sc1" for m in range(2)]
    k(f"v_mov_b32 v{T0}, 0xff800000", f"v_mov_b32 v{T1}, 0xff800000", f"s_mov_b32 s{sKo}, 0")
    k.label("L_k1_s1")
    k(ldK, "s_waitcnt vmcnt(0)", qk(0), qk(1), "s_nop 15")
    for q in range(2):
        for i in range(0, 16, 2):
            k(f"v_max3_f32 v{[T0,T1][q]}, v{S[q]+i}, v{S[q]+i+1}, v{[T0,T1][q]}")
    k(f"s_add_u32 s{sKo}, s{sKo}, 4096", f"s_cmp_lt_u32 s{sKo}, 262144", "s_cbranch_scc1 L_k1_s1")
    for q in range(2):
        t = [T0, T1][q]
        k(f"v_mov_b32 v{T2}, v{t}", "s_nop 1", f"v_permlane32_swap_b32 v{t}, v{T2}", "s_nop 1", f"v_max_f32 v{t}, v{t}, v{T2}")
        for i in range(16):
            k(f"v_sub_f32 v{C[q]+i}, 0, v{t}", f"v_mov_b32 v{O[q]+i}, 0")
        for i in range(4):
            k(f"v_mov_b32 v{LS[q]+i}, 0")
    k(f"s_mov_b32 s{sKo}, 0")
    k.label("L_k1_s2")
    k(ldK, ldV, "s_waitcnt vmcnt(0)", qk(0, vr(C[0], 16)), qk(1, vr(C[1], 16)), "s_nop 15")
    for q in range(2):
        for i in range(16):
            k(f"v_exp_f32 v{S[q]+i}, v{S[q]+i}")
    k("s_nop 1", pv(0), sm(0), pv(1), sm(1))
    k(f"s_add_u32 s{sKo}, s{sKo}, 4096", f"s_cmp_lt_u32 s{sKo}, 262144", "s_cbranch_scc1 L_k1_s2")
    k("s_nop 15", "s_nop 7", out(0), "s_branch L_k1_out")
    return k


def k_gemm(name, kidx, K, tok_region, w_region, is_down):
    D = OPT.get("gd", 4)
    STG, NS = 24576, D + 2
    N = K // 64
    k = Kern(name, 256, 512, STG * NS)
    SWS, ST_, SW_, SR, SO = 4, 8, 12, 16, 20
    sW, sTB, sNB, sN, sT, sT2, sRd, sWr, sTo, sWo, sTH, sCH, sRes, sDW = range(28, 42)
    v = Alloc(1)
    L, G, TOK, T0, T1, vLin, bT, bW, aT, aW, vRow = [v() for _ in range(11)]
    F = [[dict(X=[v(4, 4) for _ in range(2)], W=[v(4, 4) for _ in range(4)]) for s in range(2)] for _ in range(2)]
    acc = [[v(4, 4) for i in range(2)] for t in range(4)]
    RES = [[v(4, 4) for b in range(2)] for i in range(2)]
    k.vgpr = k.acc = (v.n + 7) // 8 * 8
    head(k)
    k(f"s_load_dwordx2 s[{SWS}:{SWS+1}], s[0:1], {A_WS}",
      f"s_load_dwordx2 s[{SO}:{SO+1}], s[0:1], {A_OUT if is_down else A_X}")
    k(f"v_lshrrev_b32 v{T1}, 6, v0", f"v_and_b32 v{L}, 63, v0", f"v_readfirstlane_b32 s{sW}, v{T1}", f"v_lshlrev_b32 v{vLin}, 4, v{L}")
    ids_8x4(k, sNB, sTB, sT)
    k(f"s_cmp_lt_u32 s{sW}, 4", f"s_cbranch_scc1 L_{name}_comp")
    k(f"s_and_b32 s{sW}, s{sW}, 3",
      f"s_lshl_b32 s{sTo}, s{sW}, 11", f"s_lshl_b32 s{sWo}, s{sW}, 12", f"s_mov_b32 s{sWr}, s{sTo}",
      f"s_add_u32 s{sDW}, s{sTo}, 8192")
    rot = K == 1024 and OPT.get("rot2", 0)
    if rot:
        k(f"s_lshl_b32 s{sT}, s{sNB}, 1", f"s_add_u32 s{sT}, s{sT}, s{sTB}", f"s_and_b32 s{sT}, s{sT}, 7",
          f"s_lshl_b32 s{sT2}, s{sT}, 14", f"s_add_u32 s{sTo}, s{sTo}, s{sT2}", f"s_lshl_b32 s{sT2}, s{sT}, 15", f"s_add_u32 s{sWo}, s{sWo}, s{sT2}")
    k(f"s_mul_i32 s{sT}, s{sTB}, {K*128}", f"s_add_u32 s{sT}, s{sT}, {tok_region}",
      f"s_mul_i32 s{sT2}, s{sNB}, {K*256}", f"s_add_u32 s{sT2}, s{sT2}, {w_region}")
    k("s_waitcnt lgkmcnt(0)", ws_shift(SWS))
    k(srd_from(ST_, SWS, f"s{sT}", K * 128), srd_from(SW_, SWS, f"s{sT2}", K * 256))

    def dma_stage():
        o = [f"s_mov_b32 m0, s{sWr}", "s_nop 0"]
        for i in range(2):
            o.append(f"buffer_load_dwordx4 v{vLin}, s[{ST_}:{ST_+3}], s{sTo} offen offset:{1024*i} lds")
        o += [f"s_add_u32 m0, s{sWr}, s{sDW}", f"s_add_u32 s{sTo}, s{sTo}, 8192"]
        for i in range(4):
            o.append(f"buffer_load_dwordx4 v{vLin}, s[{SW_}:{SW_+3}], s{sWo} offen offset:{1024*i} lds")
        o += [f"s_add_u32 s{sWo}, s{sWo}, 16384", f"s_add_u32 s{sWr}, s{sWr}, {STG}", f"s_cmp_ge_u32 s{sWr}, {STG*NS}",
              f"s_cselect_b32 s{sT}, {STG*NS}, 0", f"s_sub_u32 s{sWr}, s{sWr}, s{sT}"]
        if rot:
            o += [f"s_and_b32 s{sTo}, s{sTo}, {K*128-1}", f"s_and_b32 s{sWo}, s{sWo}, {K*256-1}"]
        return o
    k(f"s_mov_b32 s{sN}, {N}")
    k.label(f"L_{name}_ld")
    k(dma_stage())
    k(f"s_sub_u32 s{sN}, s{sN}, 1", f"s_cmp_lg_u32 s{sN}, 0")
    k(f"s_waitcnt vmcnt({6*D})", "s_barrier", f"s_cbranch_scc1 L_{name}_ld")
    for d in range(D - 1, -1, -1):
        k(f"s_waitcnt vmcnt({6*d})", "s_barrier")
    if is_down:
        k("s_endpgm")
    else:
        hop(k, sW)
    k.label(f"L_{name}_comp")
    k(f"s_and_b32 s{sTH}, s{sW}, 1", f"s_lshr_b32 s{sCH}, s{sW}, 1")
    k(f"v_lshrrev_b32 v{G}, 4, v{L}", f"v_and_b32 v{TOK}, 15, v{L}",
      f"v_lshlrev_b32 v{T0}, 11, v{TOK}", f"v_lshl_add_u32 v{T0}, v{G}, 4, v{T0}",
      f"s_lshl_b32 s{sN}, s{sTB}, 1", f"s_add_u32 s{sN}, s{sN}, s{sTH}", f"s_lshl_b32 s{sN}, s{sN}, 16",
      f"s_lshl_b32 s{sRes}, s{sNB}, 1", f"s_add_u32 s{sRes}, s{sRes}, s{sCH}", f"s_lshl_b32 s{sRd}, s{sRes}, 7",
      f"s_add_u32 s{sN}, s{sN}, s{sRd}", f"v_add_u32 v{vRow}, s{sN}, v{T0}")
    k(f"s_lshl_b32 s{sRes}, s{sRes}, 13", f"s_lshl_b32 s{sN}, s{sTB}, 17", f"s_add_u32 s{sRes}, s{sRes}, s{sN}",
      f"s_lshl_b32 s{sN}, s{sTH}, 11", f"s_add_u32 s{sRes}, s{sRes}, s{sN}", f"s_add_u32 s{sRes}, s{sRes}, {HF}")
    k(f"s_lshl_b32 s{sT}, s{sTH}, 11", f"v_add_u32 v{bT}, s{sT}, v{vLin}",
      f"s_lshl_b32 s{sT}, s{sCH}, 12", f"s_add_u32 s{sT}, s{sT}, 8192", f"v_add_u32 v{bW}, s{sT}, v{vLin}",
      f"v_mov_b32 v{aT}, v{bT}", f"v_mov_b32 v{aW}, v{bW}")
    k("s_waitcnt lgkmcnt(0)", ws_shift(SWS))
    k(srd_tail(SWS, WS_SZ), srd_tail(SO, 4 * MB))
    for _ in range(NS - 2):
        k("s_barrier")
    k(f"s_add_u32 s{sT2}, s{sRes}, 4096", f"s_mov_b32 s{sN}, 32768")
    for i in range(2):
        for b in range(2):
            if is_down:
                k(f"buffer_load_dwordx4 {vr(RES[i][b],4)}, v{vLin}, s[{SWS}:{SWS+3}], s{[sRes,sT2][b]} offen offset:{1024*i}")
            else:
                k(f"buffer_load_dwordx4 {vr(RES[i][b],4)}, v{vRow}, s[{SO}:{SO+3}], {['0', f's{sN}'][i]} offen offset:{64*b}{' nt' if OPT.get('jnt', 0) else ''}")
    for t in range(4):
        for i in range(2):
            for r in range(4):
                k(f"v_mov_b32 v{acc[t][i]+r}, 0")

    def reads(f):
        o = []
        for s in range(2):
            o += [f"ds_read_b128 {vr(F[f][s]['X'][i],4)}, v{aT} offset:{s*4096+i*1024}" for i in range(2)]
            o += [f"ds_read_b128 {vr(F[f][s]['W'][t],4)}, v{aW} offset:{s*8192+t*1024}" for t in range(4)]
        return o

    def mfmas(f):
        return [m16(vr(acc[t][i ^ (t & 1)], 4), vr(F[f][s]["W"][t], 4), vr(F[f][s]["X"][i ^ (t & 1)], 4))
                for t in range(4) for i in range(2) for s in range(2)]
    adv = [[f"s_add_u32 s{sRd}, s{sRd}, {STG}", f"s_cmp_eq_u32 s{sRd}, {STG*NS}"], [f"s_cselect_b32 s{sRd}, 0, s{sRd}"],
           [f"v_add_u32 v{aT}, s{sRd}, v{bT}", f"v_add_u32 v{aW}, s{sRd}, v{bW}"]]
    k(f"s_mov_b32 s{sRd}, 0", f"s_mov_b32 s{sN}, {N//2-1}")
    k("s_barrier")
    mid_stamp(k, 0)
    k(reads(0), adv, "s_waitcnt lgkmcnt(0)")
    k(".p2align 6")
    k.label(f"L_{name}_loop")
    for f in range(2):
        k("s_barrier")
        m = weave(mfmas(f), reads(1 - f), 0, 9)
        tl = adv + ([[f"s_sub_u32 s{sN}, s{sN}, 1", f"s_cmp_lg_u32 s{sN}, 0"]] if f == 1 else [])
        k(weave(m, tl, len(m) - 6, len(m) - 1))
        k("s_waitcnt lgkmcnt(0)")
    k(f"s_cbranch_scc1 L_{name}_loop")
    k("s_barrier")
    k(weave(mfmas(0), reads(1), 0, 9), "s_waitcnt lgkmcnt(0)", mfmas(1))
    mid_stamp(k, 1)
    k("s_waitcnt vmcnt(0)", f"s_mov_b32 s{sN}, 32768", "s_nop 5")
    SUM = F[0][0]["X"]
    U = F[0][0]["W"][0]
    for i in range(2):
        if not is_down:
            k(f"v_mov_b32 v{SUM[i]}, 0", f"v_mov_b32 v{SUM[i]+1}, 0")
        for b in range(2):
            o = F[0][1]["W"][2 * i + b]
            for jt in range(2):
                a = acc[2 * b + jt][i]
                for h in range(2):
                    r = RES[i][b] + 2 * jt + h
                    k(f"v_lshlrev_b32 v{U}, 16, v{r}", f"v_and_b32 v{U+1}, 0xffff0000, v{r}",
                      f"v_add_f32 v{a+2*h}, v{a+2*h}, v{U}", f"v_add_f32 v{a+2*h+1}, v{a+2*h+1}, v{U+1}",
                      f"v_cvt_pk_bf16_f32 v{o+2*jt+h}, v{a+2*h}, v{a+2*h+1}")
            if is_down:
                k(f"buffer_store_dwordx4 {vr(o,4)}, v{vRow}, s[{SO}:{SO+3}], {['0', f's{sN}'][i]} offen offset:{64*b} sc1")
            else:
                k(f"buffer_store_dwordx4 {vr(o,4)}, v{vLin}, s[{SWS}:{SWS+3}], s{[sRes,sT2][b]} offen offset:{1024*i} sc1")
    if not is_down:
        for t in range(4):
            for r in range(4):
                for i in range(2):
                    a = acc[t][i] + r
                    k(f"v_add_f32 v{SUM[i]}, v{SUM[i]}, v{a}", f"v_fmac_f32 v{SUM[i]+1}, v{a}, v{a}")
        k("s_nop 1", f"v_permlane32_swap_b32 v{SUM[0]}, v{SUM[0]+1}", f"v_permlane32_swap_b32 v{SUM[1]}, v{SUM[1]+1}", "s_nop 0",
          f"v_add_f32 v{SUM[0]}, v{SUM[0]}, v{SUM[0]+1}", f"v_add_f32 v{SUM[1]}, v{SUM[1]}, v{SUM[1]+1}",
          f"v_lshlrev_b32 v{T0}, 2, v{L}", "s_nop 0",
          f"v_permlane16_swap_b32 v{SUM[0]}, v{SUM[1]}",
          f"s_lshl_b32 s{sT}, s{sTB}, 1", f"s_add_u32 s{sT}, s{sT}, s{sTH}", f"s_lshl_b32 s{sT}, s{sT}, 12",
          f"v_add_f32 v{SUM[0]}, v{SUM[0]}, v{SUM[1]}",
          f"s_lshl_b32 s{sT2}, s{sNB}, 1", f"s_add_u32 s{sT2}, s{sT2}, s{sCH}", f"s_lshl_b32 s{sT2}, s{sT2}, 8",
          f"s_add_u32 s{sT}, s{sT}, s{sT2}", f"s_add_u32 s{sT}, s{sT}, {STP}",
          f"buffer_store_dword v{SUM[0]}, v{T0}, s[{SWS}:{SWS+3}], s{sT} offen sc1")
    tail(k, kidx, sW)
    return k


def k4_down(kidx):
    name, K = "down_kernel", 3584
    D = OPT.get("dd", 2)
    N1 = OPT.get("n1", 25)
    N2 = 56 - 2 * N1
    STG, NS = 32768, D + 2
    k = Kern(name, 256, 512, STG * NS)
    SWS, ST_, SW_, SO = 4, 8, 12, 20
    sW, sTB, sNB, sN, sT, sT2, sRd, sWr, sTo, sWo, sTH, sCH, sRes, sDW, sKH, sX0, sX1 = range(28, 45)
    v = Alloc(1)
    L, G, TOK, T0, T1, vLin, bT, bW, aT, aW, vRow = [v() for _ in range(11)]
    F = [[dict(X=[v(4, 4) for _ in range(4)], W=[v(4, 4) for _ in range(4)]) for s in range(2)] for _ in range(2)]
    acc = [[v(4, 4) for i in range(4)] for t in range(4)]
    RES = [[v(4, 4) for b in range(2)] for i in range(2)]
    RCV = [[acc[2 * b][2 + i] for b in range(2)] for i in range(2)]
    k.vgpr = k.acc = (v.n + 7) // 8 * 8
    head(k, True)
    k(f"s_load_dwordx2 s[{SWS}:{SWS+1}], s[0:1], {A_WS}", f"s_load_dwordx2 s[{SO}:{SO+1}], s[0:1], {A_OUT}")
    k(f"v_lshrrev_b32 v{T1}, 6, v0", f"v_and_b32 v{L}, 63, v0", f"v_readfirstlane_b32 s{sW}, v{T1}", f"v_lshlrev_b32 v{vLin}, 4, v{L}")
    ids_8x4(k, sNB, sTB, sT)
    if OPT.get("dmap", 1):
        k(f"s_and_b32 s{sT}, s{sTB}, 7", f"s_lshl_b32 s{sT}, s{sT}, 1", f"s_bfe_u32 s{sT2}, s{sTB}, 0x10003",
          f"s_and_b32 s{sTB}, s{sTB}, 16", f"s_add_u32 s{sTB}, s{sTB}, s{sT}", f"s_add_u32 s{sTB}, s{sTB}, s{sT2}")
    k(f"s_cmp_lt_u32 s{sW}, 4", f"s_cbranch_scc1 L_{name}_comp")
    vOwn, vPar = bT, bW
    k(f"s_and_b32 s{sW}, s{sW}, 3", f"s_and_b32 s{sKH}, s{sTB}, 1",
      f"s_lshl_b32 s{sWr}, s{sW}, 11", f"s_add_u32 s{sDW}, s{sWr}, 8192",
      f"s_mul_i32 s{sTo}, s{sKH}, {N1*8192}", f"s_add_u32 s{sTo}, s{sTo}, s{sWr}", f"s_lshl_b32 s{sWo}, s{sTo}, 1",
      f"s_mul_i32 s{sT}, s{sKH}, {K*128}", f"v_add_u32 v{vOwn}, s{sT}, v{vLin}", f"s_sub_u32 s{sT}, {K*128}, s{sT}", f"v_add_u32 v{vPar}, s{sT}, v{vLin}",
      f"s_lshr_b32 s{sT}, s{sTB}, 1", f"s_mul_i32 s{sT}, s{sT}, {K*256}", f"s_add_u32 s{sT}, s{sT}, {AF}",
      f"s_mul_i32 s{sT2}, s{sNB}, {K*256}", f"s_add_u32 s{sT2}, s{sT2}, {WDF}")
    k("s_waitcnt lgkmcnt(0)", ws_shift(SWS))
    k(srd_from(ST_, SWS, f"s{sT}", K * 256), srd_from(SW_, SWS, f"s{sT2}", K * 256))

    def dma_stage(full):
        o = [f"s_mov_b32 m0, s{sWr}", "s_nop 0"]
        o += [f"buffer_load_dwordx4 v{vOwn}, s[{ST_}:{ST_+3}], s{sTo} offen offset:{1024*i} lds" for i in range(2)]
        if full:
            o += [f"s_add_u32 m0, s{sWr}, 24576", "s_nop 0"]
            o += [f"buffer_load_dwordx4 v{vPar}, s[{ST_}:{ST_+3}], s{sTo} offen offset:{1024*i} lds" for i in range(2)]
        o += [f"s_add_u32 m0, s{sWr}, s{sDW}", f"s_add_u32 s{sTo}, s{sTo}, 8192"]
        o += [f"buffer_load_dwordx4 v{vLin}, s[{SW_}:{SW_+3}], s{sWo} offen offset:{1024*i} lds" for i in range(4)]
        o += [f"s_add_u32 s{sWo}, s{sWo}, 16384", f"s_add_u32 s{sWr}, s{sWr}, {STG}", f"s_cmp_ge_u32 s{sWr}, {STG*NS}",
              f"s_cselect_b32 s{sT}, {STG*NS}, 0", f"s_sub_u32 s{sWr}, s{sWr}, s{sT}"]
        return o
    k(f"s_mov_b32 s{sN}, {N1}")
    k.label(f"L_{name}_ld")
    k(dma_stage(True))
    k(f"s_sub_u32 s{sN}, s{sN}, 1", f"s_cmp_lg_u32 s{sN}, 0")
    k(f"s_waitcnt vmcnt({8*D})", "s_barrier", f"s_cbranch_scc1 L_{name}_ld")
    k(f"s_lshl_b32 s{sTo}, s{sW}, 11", f"s_add_u32 s{sTo}, s{sTo}, {2*N1*8192}", f"s_lshl_b32 s{sWo}, s{sTo}, 1")
    cnt = lambda n: 8 if n < N1 else (6 if n < N1 + N2 else 0)
    for n in range(N1, N1 + N2 + D):
        if n < N1 + N2:
            k(dma_stage(False))
        k(f"s_waitcnt vmcnt({sum(cnt(m) for m in range(n-D+1, n+1))})", "s_barrier")
    k("s_endpgm")
    if OPT.get("epad", 1):
        k(island(jump=False))
    k.label(f"L_{name}_comp")
    k(f"s_and_b32 s{sTH}, s{sW}, 1", f"s_lshr_b32 s{sCH}, s{sW}, 1")
    k(f"v_lshrrev_b32 v{G}, 4, v{L}", f"v_and_b32 v{TOK}, 15, v{L}",
      f"v_lshlrev_b32 v{T0}, 11, v{TOK}", f"v_lshl_add_u32 v{T0}, v{G}, 4, v{T0}",
      f"s_lshl_b32 s{sN}, s{sTB}, 1", f"s_add_u32 s{sN}, s{sN}, s{sTH}", f"s_lshl_b32 s{sN}, s{sN}, 16",
      f"s_lshl_b32 s{sRes}, s{sNB}, 1", f"s_add_u32 s{sRes}, s{sRes}, s{sCH}", f"s_lshl_b32 s{sRd}, s{sRes}, 7",
      f"s_add_u32 s{sN}, s{sN}, s{sRd}", f"v_add_u32 v{vRow}, s{sN}, v{T0}")
    k(f"s_lshl_b32 s{sRes}, s{sRes}, 13", f"s_lshl_b32 s{sN}, s{sTB}, 17", f"s_add_u32 s{sRes}, s{sRes}, s{sN}",
      f"s_lshl_b32 s{sN}, s{sTH}, 11", f"s_add_u32 s{sRes}, s{sRes}, s{sN}",
      f"s_xor_b32 s{sX0}, s{sRes}, {1<<17}", f"s_add_u32 s{sX0}, s{sX0}, {XB}", f"s_add_u32 s{sX1}, s{sX0}, 4096")
    k(f"s_lshl_b32 s{sT}, s{sTH}, 11", f"v_add_u32 v{bT}, s{sT}, v{vLin}",
      f"s_lshl_b32 s{sT}, s{sCH}, 12", f"s_add_u32 s{sT}, s{sT}, 8192", f"v_add_u32 v{bW}, s{sT}, v{vLin}",
      f"v_mov_b32 v{aT}, v{bT}", f"v_mov_b32 v{aW}, v{bW}")
    k("s_waitcnt lgkmcnt(0)", ws_shift(SWS))
    k(srd_tail(SWS, WS_SZ), srd_tail(SO, 4 * MB))
    for _ in range(D):
        k("s_barrier")
    for i in range(acc[0][0], acc[0][0] + 64, 2):
        k(f"v_mov_b64 {vr(i,2)}, 0")

    def reads(f, full):
        o = []
        for s in range(2):
            o += [f"ds_read_b128 {vr(F[f][s]['X'][i],4)}, v{aT} offset:{(i>>1)*24576+s*4096+(i&1)*1024}" for i in range(4 if full else 2)]
            o += [f"ds_read_b128 {vr(F[f][s]['W'][t],4)}, v{aW} offset:{s*8192+t*1024}" for t in range(4)]
        return o

    def mfmas(f, tiles):
        return [m16(vr(acc[t][i], 4), vr(F[f][s]["W"][t], 4), vr(F[f][s]["X"][i], 4))
                for t in range(4) for i in (tiles if t % 2 == 0 else tiles[::-1]) for s in range(2)]
    adv = [[f"s_add_u32 s{sRd}, s{sRd}, {STG}", f"s_cmp_eq_u32 s{sRd}, {STG*NS}"], [f"s_cselect_b32 s{sRd}, 0, s{sRd}"],
           [f"v_add_u32 v{aT}, s{sRd}, v{bT}", f"v_add_u32 v{aW}, s{sRd}, v{bW}"]]
    ALL, OWN, PAR = [0, 1, 2, 3], [0, 1], [2, 3]
    k(f"s_mov_b32 s{sRd}, 0", f"s_mov_b32 s{sN}, {(N1-1)//2}")
    k("s_barrier")
    mid_stamp(k, 0)
    k(reads(0, True), adv, "s_waitcnt lgkmcnt(0)")

    def step(f, extra):
        k("s_barrier")
        m = weave(mfmas(f, ALL), reads(1 - f, True), 0, 18)
        k(weave(m, adv + extra, len(m) - 8, len(m) - 1), "s_waitcnt lgkmcnt(0)")
    k(".p2align 6")
    k.label(f"L_{name}_loop")
    step(0, [])
    step(1, [[f"s_sub_u32 s{sN}, s{sN}, 1", f"s_cmp_lg_u32 s{sN}, 0"]])
    k(f"s_cbranch_scc1 L_{name}_loop")
    f = 0
    if (N1 - 1) % 2:
        step(0, [])
        f = 1
    if OPT.get("p1"):
        mid_stamp(k, 1)
    snd = []
    for b in range(2):
        for i in range(2):
            o = F[1 - f][b]["X"][2 + i]
            for jt in range(2):
                a = acc[2 * b + jt][2 + i]
                snd += [[f"v_cvt_pk_bf16_f32 v{o+2*jt}, v{a}, v{a+1}", f"v_cvt_pk_bf16_f32 v{o+2*jt+1}, v{a+2}, v{a+3}"]]
            snd += [[f"v_min_u32 v{o+r}, -2, v{o+r}" for r in (0, 1)], [f"v_min_u32 v{o+r}, -2, v{o+r}" for r in (2, 3)] +
                    [f"buffer_store_dwordx4 {vr(o,4)}, v{vLin}, s[{SWS}:{SWS+3}], s{[sX0,sX1][b]} offen offset:{1024*i} sc1"]]
    k("s_barrier")
    k(weave(weave(mfmas(f, PAR), reads(1 - f, False), 0, 10), adv, 22, 27), weave(mfmas(f, OWN), snd, 0, 16), "s_waitcnt lgkmcnt(0)")
    f = 1 - f
    res = [f"buffer_load_dwordx4 {vr(RES[i][b],4)}, v{vLin}, s[{SWS}:{SWS+3}], s{[sT,sT2][b]} offen offset:{1024*i}" for i in range(2) for b in range(2)]
    rcv = [f"buffer_load_dwordx4 {vr(RCV[i][b],4)}, v{vLin}, s[{SWS}:{SWS+3}], s{[sX0,sX1][b]} offen offset:{1024*i} sc1" for i in range(2) for b in range(2)]
    rstep = N1 + N2 - OPT.get("rl", 2)
    for n in range(N1 + 1, N1 + N2):
        k("s_barrier")
        m = weave(mfmas(f, OWN), reads(1 - f, False), 0, 9)
        ex = list(adv) if n < N1 + N2 - 1 else []
        if n == N1 + 1:
            ex += [[f"s_add_u32 s{sT}, s{sRes}, {HF}", f"s_add_u32 s{sT2}, s{sRes}, {HF+4096}",
                    f"s_add_u32 s{sX0}, s{sRes}, {XB}", f"s_add_u32 s{sX1}, s{sRes}, {XB+4096}"], res]
        if n == rstep:
            ex += [rcv]
        k(weave(m, ex, len(m) - 6, len(m)) if ex else m, island() if (n == N1 + 2 and OPT.get("epad", 1)) else None, "s_waitcnt lgkmcnt(0)")
        f = 1 - f
    if rstep >= N1 + N2:
        k(rcv)
    k(mfmas(f, OWN))
    if not OPT.get("p1"):
        mid_stamp(k, 1)
    k(f"s_mov_b32 s{sN}, {1<<20}")
    k.label(f"L_{name}_chk")
    k("s_waitcnt vmcnt(0)")
    rr = [RCV[i][b] + r for i in range(2) for b in range(2) for r in range(4)]
    k(f"v_max3_u32 v{T0}, v{rr[0]}, v{rr[1]}, v{rr[2]}", f"v_max3_u32 v{T1}, v{rr[3]}, v{rr[4]}, v{rr[5]}")
    for j in range(6, 16, 2):
        t = [T0, T1][(j // 2) & 1]
        k(f"v_max3_u32 v{t}, v{rr[j]}, v{rr[j+1]}, v{t}")
    k(f"v_max_u32 v{T0}, v{T0}, v{T1}", f"v_cmp_eq_u32 vcc, -1, v{T0}", f"s_sub_u32 s{sN}, s{sN}, 1", f"s_cbranch_scc1 L_{name}_out",
      f"s_cbranch_vccz L_{name}_out", "s_sleep 2", rcv, f"s_branch L_{name}_chk")
    k.label(f"L_{name}_out")
    k(f"s_mov_b32 s{sN}, 32768")
    U = F[0][0]["W"][0]
    for i in range(2):
        for b in range(2):
            o = F[0][1]["W"][2 * i + b]
            for jt in range(2):
                a = acc[2 * b + jt][i]
                for h in range(2):
                    r, q = RES[i][b] + 2 * jt + h, RCV[i][b] + 2 * jt + h
                    k(f"v_lshlrev_b32 v{U}, 16, v{q}", f"v_and_b32 v{U+1}, 0xffff0000, v{q}",
                      f"v_lshlrev_b32 v{U+2}, 16, v{r}", f"v_and_b32 v{U+3}, 0xffff0000, v{r}",
                      f"v_pk_add_f32 {vr(a+2*h,2)}, {vr(a+2*h,2)}, {vr(U,2)}", f"v_pk_add_f32 {vr(a+2*h,2)}, {vr(a+2*h,2)}, {vr(U+2,2)}",
                      f"v_cvt_pk_bf16_f32 v{o+2*jt+h}, v{a+2*h}, v{a+2*h+1}")
            k(f"buffer_store_dwordx4 {vr(o,4)}, v{vRow}, s[{SO}:{SO+3}], {['0', f's{sN}'][i]} offen offset:{64*b} sc1")
    tail(k, kidx, sW)
    return k


def k4_down4(kidx):
    name, K = "down_kernel", 3584
    D = OPT.get("dd", 2)
    N1 = OPT.get("n1", 25)
    N2 = 56 - 2 * N1
    STG, NS = 24576, D + 2
    k = Kern(name, 256, 512, STG * NS)
    SWS, SO = 4, 20
    sW, sTB, sNB, sN, sT, sT2, sRd, sWr, sTo, sWo, sTH, sCH, sRes, sDW, sKQ = range(28, 43)
    sX = [[44 + 2 * r + b for b in range(2)] for r in range(4)]
    v = Alloc(1)
    L, G, TOK, T0, T1, vLin, bT, bW, aT, aW, vRow = [v() for _ in range(11)]
    F = [[dict(X=[v(4, 4) for _ in range(2)], W=[v(4, 4) for _ in range(4)]) for s in range(2)] for _ in range(2)]
    acc = [[[v(4, 4) for i in range(2)] for t in range(4)] for r in range(4)]
    RES = [[v(4, 4) for b in range(2)] for i in range(2)]
    SND = lambda r, i, b: acc[r][2 * b][i]
    RCV = lambda r, i, b: acc[r][2 * b + 1][i] if r else RES[i][b]
    k.vgpr = k.acc = (v.n + 7) // 8 * 8
    head(k, True)
    k(f"s_load_dwordx2 s[{SWS}:{SWS+1}], s[0:1], {A_WS}", f"s_load_dwordx2 s[{SO}:{SO+1}], s[0:1], {A_OUT}")
    k(f"v_lshrrev_b32 v{T1}, 6, v0", f"v_and_b32 v{L}, 63, v0", f"v_readfirstlane_b32 s{sW}, v{T1}", f"v_lshlrev_b32 v{vLin}, 4, v{L}")
    k(f"s_bfe_u32 s{sNB}, s2, 0x20003", f"s_lshl_b32 s{sNB}, s{sNB}, 1", f"s_and_b32 s{sT}, s2, 1", f"s_add_u32 s{sNB}, s{sNB}, s{sT}",
      f"s_lshr_b32 s{sTB}, s2, 5", f"s_lshl_b32 s{sTB}, s{sTB}, 1", f"s_bfe_u32 s{sT}, s2, 0x10001", f"s_add_u32 s{sTB}, s{sTB}, s{sT}",
      f"s_and_b32 s{sT}, s2, 4", f"s_lshl_b32 s{sT}, s{sT}, 2", f"s_add_u32 s{sTB}, s{sTB}, s{sT}",
      f"s_and_b32 s{sTH}, s{sW}, 1", f"s_bfe_u32 s{sCH}, s{sW}, 0x10001")
    k(f"s_cmp_lt_u32 s{sW}, 4", f"s_cbranch_scc1 L_{name}_comp")
    k(f"s_and_b32 s{sW}, s{sW}, 3", f"s_and_b32 s{sKQ}, s2, 3",
      f"s_lshl_b32 s{sWr}, s{sW}, 11", f"s_add_u32 s{sDW}, s{sWr}, 8192",
      f"s_mul_i32 s{sT2}, s{sKQ}, {N1*4096}", f"s_lshl_b32 s{sT}, s{sTH}, 11", f"s_add_u32 s{sT2}, s{sT2}, s{sT}",
      f"s_xor_b32 s{sT}, s{sTB}, s{sCH}", f"s_mul_i32 s{sTo}, s{sT}, {K*128}", f"s_add_u32 s{sTo}, s{sTo}, s{sT2}", f"s_add_u32 s{sTo}, s{sTo}, {AF}",
      f"s_xor_b32 s{sT}, s{sNB}, s{sCH}", f"s_mul_i32 s{sWo}, s{sT}, {K*128}", f"s_add_u32 s{sWo}, s{sWo}, s{sT2}", f"s_lshl_b32 s{sWo}, s{sWo}, 1",
      f"s_add_u32 s{sWo}, s{sWo}, {WDF}")
    k("s_waitcnt lgkmcnt(0)", ws_shift(SWS), srd_tail(SWS, WS_SZ))

    def dma_stage(step):
        o = [f"s_mov_b32 m0, s{sWr}", "s_nop 0"]
        o += [f"buffer_load_dwordx4 v{vLin}, s[{SWS}:{SWS+3}], s{sTo} offen offset:{1024*i} lds" for i in range(2)]
        o += [f"s_add_u32 m0, s{sWr}, s{sDW}", f"s_add_u32 s{sTo}, s{sTo}, {step}"]
        o += [f"buffer_load_dwordx4 v{vLin}, s[{SWS}:{SWS+3}], s{sWo} offen offset:{1024*i} lds" for i in range(4)]
        o += [f"s_add_u32 s{sWo}, s{sWo}, {2*step}", f"s_add_u32 s{sWr}, s{sWr}, {STG}", f"s_cmp_ge_u32 s{sWr}, {STG*NS}",
              f"s_cselect_b32 s{sT}, {STG*NS}, 0", f"s_sub_u32 s{sWr}, s{sWr}, s{sT}",
              f"s_sub_u32 s{sN}, s{sN}, 1", f"s_cmp_lg_u32 s{sN}, 0", f"s_waitcnt vmcnt({6*D})", "s_barrier"]
        return o
    k(f"s_mov_b32 s{sN}, {N1}")
    k.label(f"L_{name}_ld")
    k(dma_stage(4096), f"s_cbranch_scc1 L_{name}_ld")
    k(f"s_lshl_b32 s{sT2}, s{sW}, 11", f"s_add_u32 s{sT2}, s{sT2}, {4*N1*4096}",
      f"s_mul_i32 s{sTo}, s{sTB}, {K*128}", f"s_add_u32 s{sTo}, s{sTo}, s{sT2}", f"s_add_u32 s{sTo}, s{sTo}, {AF}",
      f"s_mul_i32 s{sWo}, s{sNB}, {K*128}", f"s_add_u32 s{sWo}, s{sWo}, s{sT2}", f"s_lshl_b32 s{sWo}, s{sWo}, 1",
      f"s_add_u32 s{sWo}, s{sWo}, {WDF}", f"s_mov_b32 s{sN}, {N2}")
    k.label(f"L_{name}_ld2")
    k(dma_stage(8192), f"s_cbranch_scc1 L_{name}_ld2")
    for d in range(D - 1, -1, -1):
        k(f"s_waitcnt vmcnt({6*d})", "s_barrier")
    k("s_endpgm")
    k(island(jump=False))
    k.label(f"L_{name}_comp")
    k(f"v_lshrrev_b32 v{G}, 4, v{L}", f"v_and_b32 v{TOK}, 15, v{L}",
      f"v_lshlrev_b32 v{T0}, 11, v{TOK}", f"v_lshl_add_u32 v{T0}, v{G}, 4, v{T0}",
      f"s_lshl_b32 s{sN}, s{sTB}, 1", f"s_add_u32 s{sN}, s{sN}, s{sTH}", f"s_lshl_b32 s{sN}, s{sN}, 16",
      f"s_lshl_b32 s{sRes}, s{sNB}, 1", f"s_add_u32 s{sRes}, s{sRes}, s{sCH}", f"s_lshl_b32 s{sRd}, s{sRes}, 7",
      f"s_add_u32 s{sN}, s{sN}, s{sRd}", f"v_add_u32 v{vRow}, s{sN}, v{T0}")
    for _ in range(D):
        k("s_barrier")
    k(f"s_lshl_b32 s{sRes}, s{sRes}, 13", f"s_lshl_b32 s{sN}, s{sTB}, 17", f"s_add_u32 s{sRes}, s{sRes}, s{sN}",
      f"s_lshl_b32 s{sN}, s{sTH}, 11", f"s_add_u32 s{sRes}, s{sRes}, s{sN}")
    for r in range(1, 4):
        k(f"s_xor_b32 s{sT}, s{sRes}, {((r&1)<<17)|((r>>1)<<14)}", f"s_add_u32 s{sX[r][0]}, s{sT}, {XB4[r]}", f"s_add_u32 s{sX[r][1]}, s{sT}, {XB4[r]+4096}")
    k(f"s_lshl_b32 s{sT}, s{sTH}, 11", f"v_add_u32 v{bT}, s{sT}, v{vLin}",
      f"s_lshl_b32 s{sT}, s{sCH}, 12", f"s_add_u32 s{sT}, s{sT}, 8192", f"v_add_u32 v{bW}, s{sT}, v{vLin}",
      f"v_mov_b32 v{aT}, v{bT}", f"v_mov_b32 v{aW}, v{bW}")
    k("s_waitcnt lgkmcnt(0)", ws_shift(SWS))
    k(srd_tail(SWS, WS_SZ), srd_tail(SO, 4 * MB))

    def reads(f):
        o = []
        for s in range(2):
            o += [f"ds_read_b128 {vr(F[f][s]['X'][i],4)}, v{aT} offset:{s*4096+i*1024}" for i in range(2)]
            o += [f"ds_read_b128 {vr(F[f][s]['W'][t],4)}, v{aW} offset:{s*8192+t*1024}" for t in range(4)]
        return o

    def mf1(f, c=None):
        o = []
        for sw in range(2):
            for t in range(4):
                xs = [(0, 0), (0, 1), (1, 0), (1, 1)]
                for sx, i in (xs if t % 2 == 0 else xs[::-1]):
                    o.append(m16(vr(acc[2 * sw + sx][t][i], 4), vr(F[f][sw]["W"][t], 4), vr(F[f][sx]["X"][i], 4), c))
        return o

    def mf1r(f, r):
        return [m16(vr(acc[r][t][i], 4), vr(F[f][r >> 1]["W"][t], 4), vr(F[f][r & 1]["X"][i], 4)) for t in range(4) for i in ((0, 1) if t % 2 == 0 else (1, 0))]

    def mf2(f):
        return [m16(vr(acc[0][t][i], 4), vr(F[f][s]["W"][t], 4), vr(F[f][s]["X"][i], 4))
                for t in range(4) for i in ((0, 1) if t % 2 == 0 else (1, 0)) for s in range(2)]
    adv = [[f"s_add_u32 s{sRd}, s{sRd}, {STG}", f"s_cmp_eq_u32 s{sRd}, {STG*NS}"], [f"s_cselect_b32 s{sRd}, 0, s{sRd}"],
           [f"v_add_u32 v{aT}, s{sRd}, v{bT}", f"v_add_u32 v{aW}, s{sRd}, v{bW}"]]
    k(f"s_mov_b32 s{sRd}, 0", f"s_mov_b32 s{sN}, {(N1-2)//2}")
    k("s_barrier")
    mid_stamp(k, 0)
    k(reads(0), adv, "s_waitcnt lgkmcnt(0)")

    def step(f, extra, c=None):
        k("s_barrier")
        m = weave(mf1(f, c), reads(1 - f), 0, 14)
        k(weave(m, adv + extra, len(m) - 10, len(m) - 2), "s_waitcnt lgkmcnt(0)")
    step(0, [], "0")
    k(".p2align 6")
    k.label(f"L_{name}_loop")
    step(1, [])
    step(0, [[f"s_sub_u32 s{sN}, s{sN}, 1", f"s_cmp_lg_u32 s{sN}, 0"]])
    k(f"s_cbranch_scc1 L_{name}_loop")
    f = 1
    if (N1 - 2) % 2:
        step(1, [])
        f = 0

    def snd(r):
        o = []
        for b in range(2):
            for i in range(2):
                d, a = SND(r, i, b), acc[r][2 * b + 1][i]
                o += [[f"v_cvt_pk_bf16_f32 v{d}, v{d}, v{d+1}", f"v_cvt_pk_bf16_f32 v{d+1}, v{d+2}, v{d+3}"],
                      [f"v_cvt_pk_bf16_f32 v{d+2}, v{a}, v{a+1}", f"v_cvt_pk_bf16_f32 v{d+3}, v{a+2}, v{a+3}"],
                      [f"v_min_u32 v{d+q}, -2, v{d+q}" for q in (0, 1)], [f"v_min_u32 v{d+q}, -2, v{d+q}" for q in (2, 3)] +
                      [f"buffer_store_dwordx4 {vr(d,4)}, v{vLin}, s[{SWS}:{SWS+3}], s{sX[r][b]} offen offset:{1024*i} sc1"]]
        return o
    if OPT.get("p1"):
        mid_stamp(k, 1)
    k("s_barrier")
    k(weave(weave(mf1r(f, 3) + mf1r(f, 2), reads(1 - f), 0, 10), adv, 22, 27), weave(mf1r(f, 1) + mf1r(f, 0), snd(3), 0, 16), "s_waitcnt lgkmcnt(0)")
    k(island())
    f = 1 - f
    rcv = lambda r: [f"buffer_load_dwordx4 {vr(RCV(r,i,b),4)}, v{vLin}, s[{SWS}:{SWS+3}], s{sX[r][b]} offen offset:{1024*i}{' sc1' if r else ''}"
                     for i in range(2) for b in range(2)]
    radr = [[f"s_add_u32 s{sX[r][b]}, s{sRes}, {XB4[r]+4096*b}" for b in range(2)] for r in range(4)]
    rl = OPT.get("rl", 2)
    for n in range(1, N2):
        k("s_barrier")
        m = weave(mf2(f), reads(1 - f), 0, 9)
        ex = list(adv) if n < N2 - 1 else []
        if n == 1:
            k(weave(m, ex, len(m) - 6, len(m) - 2), snd(2), snd(1), radr, rcv(0))
        else:
            if n == N2 - rl:
                ex += [rcv(3), rcv(2), rcv(1)]
            k(weave(m, ex, len(m) - 6, len(m)) if ex else m)
        k("s_waitcnt lgkmcnt(0)")
        f = 1 - f
    if rl == 0:
        k(rcv(3), rcv(2), rcv(1))
    k(mf2(f))
    if not OPT.get("p1"):
        mid_stamp(k, 1)
    U = F[0][0]["W"][0]

    def add(r):
        for i in range(2):
            for b in range(2):
                for jt in range(2):
                    a, q = acc[0][2 * b + jt][i], RCV(r, i, b) + 2 * jt
                    k(f"v_lshlrev_b32 v{U}, 16, v{q}", f"v_and_b32 v{U+1}, 0xffff0000, v{q}",
                      f"v_lshlrev_b32 v{U+2}, 16, v{q+1}", f"v_and_b32 v{U+3}, 0xffff0000, v{q+1}",
                      f"v_pk_add_f32 {vr(a,2)}, {vr(a,2)}, {vr(U,2)}", f"v_pk_add_f32 {vr(a+2,2)}, {vr(a+2,2)}, {vr(U+2,2)}")
                if r == 1:
                    o = F[0][1]["W"][2 * i + b]
                    for jt in range(2):
                        a = acc[0][2 * b + jt][i]
                        k(f"v_cvt_pk_bf16_f32 v{o+2*jt}, v{a}, v{a+1}", f"v_cvt_pk_bf16_f32 v{o+2*jt+1}, v{a+2}, v{a+3}")
                    k(f"buffer_store_dwordx4 {vr(o,4)}, v{vRow}, s[{SO}:{SO+3}], {['0', f's{sT2}'][i]} offen offset:{64*b} sc1")
    k(f"s_mov_b32 s{sN}, {1<<20}", f"s_mov_b32 s{sT2}, 32768", "s_waitcnt vmcnt(12)", "s_nop 1")
    add(0)
    for r in (3, 2, 1):
        k(f"s_waitcnt vmcnt({4*(r-1)})")
        k.label(f"L_{name}_chk{r}")
        rr = [RCV(r, i, b) + q for i in range(2) for b in range(2) for q in range(4)]
        k(f"v_max3_u32 v{T0}, v{rr[0]}, v{rr[1]}, v{rr[2]}", f"v_max3_u32 v{T1}, v{rr[3]}, v{rr[4]}, v{rr[5]}")
        for j in range(6, 16, 2):
            t = [T0, T1][(j // 2) & 1]
            k(f"v_max3_u32 v{t}, v{rr[j]}, v{rr[j+1]}, v{t}")
        k(f"v_max_u32 v{T0}, v{T0}, v{T1}", f"v_cmp_eq_u32 vcc, -1, v{T0}", f"s_sub_u32 s{sN}, s{sN}, 1", f"s_cbranch_scc1 L_{name}_ok{r}",
          f"s_cbranch_vccz L_{name}_ok{r}", [rcv(q) for q in range(r, 0, -1)], "s_waitcnt vmcnt(0)", f"s_branch L_{name}_chk{r}")
        k.label(f"L_{name}_ok{r}")
        add(r)
    tail(k, kidx, sW)
    return k


class Op:
    def __init__(self, text, kind="v", needs=(), bar=False):
        self.text, self.kind, self.needs, self.bar = text, kind, list(needs), bar
        self.seq = None

    @property
    def cost(self):
        return 8 if self.kind == "t" else 4


def emit_stream(k, ops, nl=0, nv=0):
    cnt = {"lds": nl, "vm": nv}
    done = {"lds": 0, "vm": 0}
    for o in ops:
        if o.kind in cnt:
            cnt[o.kind] += 1
            o.seq = cnt[o.kind]
            k(o.text)
        elif o.kind == "wait":
            parts = []
            for kind, nm, mx in (("vm", "vmcnt", 63), ("lds", "lgkmcnt", 15)):
                need = [x.seq for x in o.needs if x.kind == kind]
                assert None not in need, "wait on an op that was not issued yet"
                tgt = cnt[kind] if (o.bar and kind == "lds") else max(need, default=0)
                if tgt > done[kind]:
                    n = cnt[kind] - tgt
                    assert n <= mx or kind == "vm"
                    parts.append(f"{nm}({min(n, mx)})")
                    done[kind] = tgt
            if parts:
                k("s_waitcnt " + " ".join(parts))
            if o.bar:
                k("s_barrier")
        else:
            k(o.text)
    return cnt


def k3_gateup():
    STG, NS = 28672, 5
    TBL = NS * STG
    k = Kern("ffn_kernel", 256, 256, 163840)
    SWS, ST_, SW_, SO = 4, 8, 12, 20
    slot = lambda n: (n + 3) % NS
    sW, sMB, sFB, sN, sT, sT2, sTo, sWo, sWr, sTB, sA0, sA1, sSt, sCp = range(28, 42)
    v = Alloc(1)
    vLin, vR1, vR2, vCs, vSt, vTid, vOut = [v() for _ in range(7)]
    PA = [v(2, 2) for _ in range(4)]
    SD = [v(2, 2) for _ in range(2)]
    TA, TB_, TC = v(4, 4), v(4, 4), v(4, 4)
    assert v.n <= 32, v.n
    acc = [[32 + (a * 4 + b) * 4 for b in range(4)] for a in range(14)]
    TK = [[[32 * n + 16 * s + 4 * b for b in range(4)] for s in range(2)] for n in range(NS)]
    WF = [[160 + 8 * n + 4 * s for s in range(2)] for n in range(4)]
    SP, CP = 192, 224
    k.vgpr, k.acc = 512, 256
    head(k, True)
    k(f"s_load_dwordx2 s[{SWS}:{SWS+1}], s[0:1], {A_WS}", f"s_load_dwordx2 s[{SO}:{SO+1}], s[0:1], {A_OUT}")
    k(f"v_lshrrev_b32 v{TA}, 6, v0", f"v_and_b32 v{TA+1}, 63, v0", f"v_readfirstlane_b32 s{sW}, v{TA}", f"v_lshlrev_b32 v{vLin}, 4, v{TA+1}")
    k(f"s_lshr_b32 s{sT}, s2, 3", f"s_lshr_b32 s{sMB}, s{sT}, 2", f"s_and_b32 s{sT}, s{sT}, 3",
      f"s_and_b32 s{sFB}, s2, 7", f"s_lshl_b32 s{sFB}, s{sFB}, 2", f"s_add_u32 s{sFB}, s{sFB}, s{sT}",
      f"s_lshl_b32 s{sTB}, s{sMB}, 2", f"s_add_u32 s{sTB}, s{sTB}, s{sW}",
      f"s_lshl_b32 s{sT}, s{sTB}, 17", f"s_add_u32 s{sT}, s{sT}, {HF}",
      f"s_mul_i32 s{sT2}, s{sFB}, {32*14*1024}", f"s_add_u32 s{sT2}, s{sT2}, {WGU}",
      f"s_mul_i32 s{sWo}, s{sW}, 7168", f"s_mov_b32 s{sWr}, s{sWo}", f"s_mov_b32 s{sTo}, 0")
    k("s_waitcnt lgkmcnt(0)", ws_shift(SWS))
    k(srd_from(ST_, SWS, f"s{sT}", 131072), srd_from(SW_, SWS, f"s{sT2}", 32 * 14 * 1024))

    def vm_stage(n):
        o = []
        for i in range(7):
            pre, post = [], []
            if i % 4 == 0:
                pre = [f"s_add_u32 m0, s{sWr}, {slot(n)*STG+1024*i}"]
            if i == 3:
                post = [f"s_add_u32 s{sWo}, s{sWo}, 4096"]
            if i == 6:
                post = [f"s_add_u32 s{sWo}, s{sWo}, {STG-4096}"]
            o.append((pre, Op(f"buffer_load_dwordx4 v{vLin}, s[{SW_}:{SW_+3}], s{sWo} offen offset:{1024*(i%4)} lds", "vm"), post, n))
        for s in range(2):
            for b in range(4):
                post = [f"s_add_u32 s{sTo}, s{sTo}, 4096"] if b == 3 else []
                o.append(([], Op(f"buffer_load_dwordx4 {ar(TK[slot(n)][s][b],4)}, v{vLin}, s[{ST_}:{ST_+3}], s{sTo} offen offset:{1024*b}", "vm"), post, n))
        return o
    VM = [vm_stage(n) for n in range(16)]
    HALF = OPT.get("k3half", 1)
    if HALF:
        wl = [([f"s_add_u32 m0, s{sN}, {slot(0)*STG}"], Op(f"buffer_load_dwordx4 v{vLin}, s[{SW_}:{SW_+3}], s{sN} offen lds", "vm"),
               [f"s_add_u32 s{sN}, s{sN}, 4096"] if i < 6 else [f"s_add_u32 s{sWo}, s{sWo}, {STG}"], 0) for i in range(7)]
        VM[0] = VM[0][7:11] + wl[:4] + VM[0][11:15] + wl[4:]
        k(f"s_lshl_b32 s{sN}, s{sW}, 10")
    stat_ld = [([], Op(f"buffer_load_dwordx4 {ar(SP+4*i,4)}, v{vLin}, s[{SWS}:{SWS+3}], s{sSt} offen offset:{1024*(i%4)}", "vm"),
                [f"s_add_u32 s{sSt}, s{sSt}, 4096"] if i == 3 else [], None) for i in range(8)]
    cs_ld = [([], Op(f"buffer_load_dword {ar(CP+p)}, v{vTid}, s[{SWS}:{SWS+3}], s{sCp} offen", "vm"),
              [f"s_add_u32 s{sCp}, s{sCp}, {32*896}"], None) for p in range(8)]
    pro = []
    for i, (pre, ld, post, _) in enumerate(VM[0] if HALF else VM[0] + VM[1]):
        pro += [Op(x, "s") for x in pre] + ([Op("s_nop 0", "s")] if pre else []) + [ld] + [Op(x, "s") for x in post]
        if i == (7 if HALF else 14):
            cut = len(pro)
            pro.append(Op("s_barrier", "s"))
    pro, pro2 = pro[:cut], pro[cut:]
    misc = srd_tail(SWS, WS_SZ) + [
        f"s_lshl_b32 s{sSt}, s{sTB}, 13", f"s_add_u32 s{sSt}, s{sSt}, {STP}",
        f"s_mul_i32 s{sCp}, s{sFB}, 896", f"s_add_u32 s{sCp}, s{sCp}, {CSP}",
        f"v_add_u32 v{vR1}, {2*STG}, v{vLin}", f"v_add_u32 v{vR2}, {4*STG}, v{vLin}",
        f"v_lshlrev_b32 v{vTid}, 2, v0",
        f"v_lshrrev_b32 v{TA}, 4, v{TA+1}", f"v_lshlrev_b32 v{vCs}, 4, v{TA}", f"v_add_u32 v{vCs}, {TBL}, v{vCs}",
        f"v_and_b32 v{TA+2}, 1, v{TA}", f"v_lshlrev_b32 v{TA+2}, 10, v{TA+2}", f"v_lshrrev_b32 v{TA}, 1, v{TA}",
        f"v_lshl_add_u32 v{TA+2}, v{TA}, 8, v{TA+2}", f"v_and_b32 v{TA+1}, 15, v{TA+1}", f"v_lshl_add_u32 v{vOut}, v{TA+1}, 4, v{TA+2}",
        f"s_mul_i32 s{sT}, s{sTB}, {112*4096}", f"s_add_u32 s{sT}, s{sT}, {AF}", f"s_and_b32 s{sT2}, s{sFB}, 1", f"s_lshl_b32 s{sT2}, s{sT2}, 9",
        f"s_add_u32 s{sT}, s{sT}, s{sT2}", f"s_lshr_b32 s{sT2}, s{sFB}, 1", f"s_lshl_b32 s{sT2}, s{sT2}, 12", f"s_add_u32 s{sT}, s{sT}, s{sT2}",
        f"s_add_u32 s{sA1}, s{sT}, {96*4096}", f"s_lshr_b32 s{sT2}, s{sFB}, 4", f"s_mul_i32 s{sT2}, s{sT2}, {40*4096}", f"s_add_u32 s{sA0}, s{sT}, s{sT2}"]
    pro += [Op(x, "s") for x in misc]
    if OPT.get("k3pf", 1):
        pro += [Op(x, "s") for x in ["s_getpc_b64 s[16:17]", f"s_lshr_b32 s{sT}, s2, 3", f"s_lshl_b32 s{sT}, s{sT}, 10",
                                     f"v_add_u32 v{TA}, s{sT}, v{vTid}", f"v_min_u32 v{TA}, L_code_end-L_k3_pf-4, v{TA}", "L_k3_pf:"]]
        pro.append(Op(f"global_load_dword v{TC}, v{TA}, s[16:17]", "vm"))

    if OPT.get("isl", 1):
        pro.append(Op(island(), "s"))
    seg0 = len(pro)
    pro += pro2
    order = [a for p in range(7) for a in (p, p + 7)]
    S0 = 12
    seq = [(n, a) for n in range(S0) for a in order]
    seq += [(n, a) for p in range(7) for n in range(S0, 16) for a in (p, p + 7)]
    NT_ = len(seq)
    mf, fixed = [], [[] for _ in range(8 * NT_)]
    RD = []
    for gt, (n, a) in enumerate(seq):
        sl = slot(n)
        fr = [(a, 0), (a, 1)] if not (HALF and n == 0) else [(gt % 7, gt // 7), (gt % 7 + 7, gt // 7)]
        RD.append([Op(f"ds_read_b128 {ar(WF[gt%4][e],4)}, v{[vLin,vR1,vR2][sl>>1]} offset:{(sl&1)*STG+s*14336+t*1024}", "lds") for e, (t, s) in enumerate(fr)])
        bs = range(4) if gt % 2 == 0 else range(3, -1, -1)
        for b in bs:
            for e, (t, s) in enumerate(fr):
                mf.append(Op(m16(vr(acc[t][b], 4), ar(WF[gt % 4][e], 4), ar(TK[sl][s][b], 4), "0" if (n == 0 and s == 0) else None), "m"))
    first = {}
    for gt, (n, a) in enumerate(seq):
        first.setdefault(n, gt)
    barpos = {}
    for gt in range(NT_):
        if gt + 2 < NT_:
            fixed[8 * gt].append(RD[gt + 2][0]); fixed[8 * gt + 1].append(RD[gt + 2][1])
        newst = [n for n in range(1, 16) if first[n] == gt + 3]
        if HALF and gt == 4:
            newst = [0]
        if newst:
            fixed[8 * gt + 7].append(Op("", "wait", [x[1] for x in VM[newst[0]]], bar=True))
            barpos[newst[0]] = 8 * gt + 7
        elif gt + 1 < NT_:
            fixed[8 * gt + 7].append(Op("", "wait", RD[gt + 1]))
    flat = (VM[1] if HALF else []) + VM[2] + VM[3] + VM[4] + stat_ld + cs_ld + [x for n in range(5, 16) for x in VM[n]]
    nfast = OPT.get("k3fast", 15) if HALF else 0
    slots = [8 * gt + o for gt in range(S0 * 14) for o in (3, 6)]
    nsl = len(slots) - 2 * OPT.get("k3lead", 8)
    vpos = {}
    si = -1
    for i, (pre, ld, post, n) in enumerate(flat):
        si = max(si + 1, nfast + ((i - nfast) * (nsl - nfast)) // (len(flat) - nfast) if i >= nfast else 0)
        if n is not None and n >= NS:
            lim = barpos[n - NS + 1] + 2 if "lds" in ld.text else 8 * 14 * (n - NS + 1)
            while slots[si] < lim:
                si += 1
        p = slots[si]
        fixed[p - 1] += [Op(x, "s") for x in pre]
        fixed[p] += [ld] + [Op(x, "s") for x in post]
        vpos[id(ld)] = p
    used = [sum(o.cost for o in f if not (o.kind == "wait" and False)) for f in fixed]
    flo = [[] for _ in fixed]

    def flow(ops, start, deadline=None):
        p = start
        for o in ops:
            while used[p] + o.cost > 8:
                p += 1
            flo[p].append(o); used[p] += o.cost
        assert deadline is None or p < deadline, (p, deadline)
        return p + 1

    def spread(ops, start, stop):
        tot = sum(o.cost for o in ops) + sum(used[start:stop])
        cap = max(8.0, tot / (stop - start))
        p, acc_used, acc_cap = start, used[start], cap
        for o in ops:
            while acc_used + o.cost > acc_cap + 2 and p < stop - 1:
                p += 1
                if cap == 8.0:
                    acc_used, acc_cap = used[p], cap
                else:
                    acc_used += used[p]; acc_cap += cap
            flo[p].append(o); acc_used += o.cost
        return p
    V = lambda t: Op(t, "v")
    st = [Op("", "wait", [x[1] for x in stat_ld + cs_ld])]
    st += [V(f"v_accvgpr_read_b32 v{TC}, a{CP}")]
    for p in range(1, 8):
        st += [V(f"v_accvgpr_read_b32 v{TB_}, a{CP+p}"), V(f"v_add_f32 v{TC}, v{TC}, v{TB_}")]
    st += [V(f"v_add_u32 v{vTid}, {TBL}, v{vTid}"), Op(f"ds_write_b32 v{vTid}, v{TC}", "lds")]
    for hf in range(2):
        A = TA
        st += [V(f"v_accvgpr_read_b32 v{A+r}, a{SP+16*hf+r}") for r in range(4)]
        for i in range(1, 4):
            st += [V(f"v_accvgpr_read_b32 v{TB_+r}, a{SP+16*hf+4*i+r}") for r in range(4)]
            st += [V(f"v_add_f32 v{A+r}, v{A+r}, v{TB_+r}") for r in range(4)]
        for op in ("v_permlane16_swap_b32", "v_permlane32_swap_b32"):
            st += [V(f"v_mov_b32 v{TB_+r}, v{A+r}") for r in range(4)]
            st += [V(f"{op} v{A+r}, v{TB_+r}") for r in range(4)]
            st += [V(f"v_add_f32 v{A+r}, v{A+r}, v{TB_+r}") for r in range(4)]
        for b in (2 * hf, 2 * hf + 1):
            sd = SD[b >> 1] + (b & 1)
            st += [V(f"v_mul_f32 v{PA[b]+1}, {f32(-1/1024)}, v{A+2*(b&1)}"),
                   V(f"v_mul_f32 v{PA[b]}, {f32(1/1024)}, v{A+2*(b&1)+1}"),
                   V(f"v_fma_f32 v{PA[b]}, -v{PA[b]+1}, v{PA[b]+1}, v{PA[b]}"),
                   V(f"v_max_f32 v{PA[b]}, 0, v{PA[b]}"),
                   V(f"v_add_f32 v{sd}, {f32(EPS)}, v{PA[b]}"),
                   Op(f"v_rsq_f32 v{PA[b]}, v{sd}", "t"), V("v_nop"),
                   V(f"v_mul_f32 v{sd}, v{sd}, v{PA[b]}"),
                   V(f"v_mul_f32 v{PA[b]}, {f32(-LOG2E)}, v{PA[b]}")]
    p = flow(st, vpos[id(cs_ld[-1][1])] + 90)
    n0 = min(n for n in range(1, S0) if barpos[n] >= p)
    p = barpos[n0] + 1
    todo = list(order)
    step = (8 * 14 * S0 - 40 - p) // 14
    for i in range(14):
        cur = lambda a: all(seq[q // 8][1] != a for q in range(p - 2, p + 48))
        cand = [a for a in todo if cur(a)]
        while not cand:
            p += 4
            cand = [a for a in todo if cur(a)]
        a = cand[0]
        todo.remove(a)
        C = [TA, TC][i & 1]
        r = Op(f"ds_read_b128 {vr(C,4)}, v{vCs} offset:{64*a}", "lds")
        ops = [V(f"v_fmac_f32 v{acc[a][b]+e}, v{PA[b]+1}, v{C+e}") for b in range(4) for e in range(4)]
        q = flow([r], p)
        q = flow([Op("", "wait", [r])] + ops, q + 6, p + 46)
        p = max(q, p + min(step, 24))
    assert p < barpos[15], p
    def epi(pr, packed):
        o = []
        for bb in (0, 2):
            d = acc[pr][bb]
            for b in (bb, bb + 1):
                g_, u = acc[pr][b], acc[pr + 7][b]
                sd = SD[b >> 1] + (b & 1)
                if packed:
                    sel = f"op_sel:[0,{b&1},{b&1}] op_sel_hi:[1,{b&1},{b&1}]"
                    o += [V(f"v_pk_mul_f32 {vr(g_+h,2)}, {vr(g_+h,2)}, {vr(PA[b],2)} op_sel:[0,0] op_sel_hi:[1,0]") for h in (0, 2)]
                    o += [Op(f"v_exp_f32 v{g_+r}, v{g_+r}", "t") for r in range(4)]
                    o += [V(f"v_pk_fma_f32 {vr(g_+h,2)}, {vr(g_+h,2)}, {vr(SD[b>>1],2)}, {vr(SD[b>>1],2)} {sel}") for h in (0, 2)]
                    o += [Op(f"v_rcp_f32 v{g_+r}, v{g_+r}", "t") for r in range(4)]
                    o += [V(f"v_pk_mul_f32 {vr(u+h,2)}, {vr(u+h,2)}, {vr(g_+h,2)}") for h in (0, 2)]
                else:
                    o += [V(f"v_mul_f32 v{g_+r}, v{PA[b]}, v{g_+r}") for r in range(4)]
                    o += [Op(f"v_exp_f32 v{g_+r}, v{g_+r}", "t") for r in range(4)]
                    o += [V(f"v_fma_f32 v{g_+r}, v{g_+r}, v{sd}, v{sd}") for r in range(4)]
                    o += [Op(f"v_rcp_f32 v{g_+r}, v{g_+r}", "t") for r in range(4)]
                    o += [V(f"v_mul_f32 v{u+r}, v{u+r}, v{g_+r}") for r in range(4)]
                o += [V(f"v_cvt_pk_bf16_f32 v{d+2*(b&1)}, v{u}, v{u+1}"), V(f"v_cvt_pk_bf16_f32 v{d+2*(b&1)+1}, v{u+2}, v{u+3}")]
            o += [V("v_nop"), V(f"v_permlane16_swap_b32 v{d}, v{d+2}"), V(f"v_permlane16_swap_b32 v{d+1}, v{d+3}")]
            sa = sA1 if pr == 6 else sA0
            o.append(Op(f"buffer_store_dwordx4 {vr(d,4)}, v{vOut}, s[{SWS}:{SWS+3}], s{sa} offen offset:{1024*bb} sc1", "vm"))
        o.append(Op(f"s_add_u32 s{sa}, s{sa}, {8*4096}", "s"))
        return o
    run = 8 * 2 * (16 - S0)
    t0 = 8 * 14 * S0
    D, N1, K = OPT.get("dd", 3), OPT.get("n1", 26), 3584
    N2 = 56 - 2 * N1
    NST = N1 + N2
    S = lambda t: Op(t, "s")
    dTB, dNB, dXo, dXp, dWo, dM, dM2, dRes, dX0, dX1, dSig, dPol, dSigA, dPolA, dJ = range(44, 59)
    aT, aWd = [TA, TA + 1, TA + 2], [TB_, TB_ + 1, TB_ + 2]
    vRow, vP, vOne, T0, T1 = TA + 3, TB_ + 3, TC, TC + 1, TC + 2
    pool = acc[0] + acc[1] + acc[7] + acc[8]
    dacc = [[pool[4 * t + i] for i in range(4)] for t in range(4)]
    RES = [[128 + 8 * i + 4 * b for b in range(2)] for i in range(2)]
    SND = [[acc[9][2 * i + b] for b in range(2)] for i in range(2)]
    RCV = [[dacc[2 * b][2 + i] for b in range(2)] for i in range(2)]
    F = [[dict(X=[f0 + 32 * s + 4 * i for i in range(4)], W=[f0 + 32 * s + 16 + 4 * t for t in range(4)]) for s in range(2)] for f0 in (192, 0)]
    dslot = lambda n: (4 - n) % 5
    setup = [S(x) for x in srd_tail(SO, 4 * MB) + [
        f"s_bfe_u32 s{dNB}, s2, 0x20003", f"s_and_b32 s{sT}, s2, 1", f"s_lshl_b32 s{sT}, s{sT}, 2", f"s_add_u32 s{dNB}, s{dNB}, s{sT}",
        f"s_lshr_b32 s{dTB}, s2, 5", f"s_and_b32 s{sT}, s2, 4", f"s_lshl_b32 s{sT}, s{sT}, 1", f"s_add_u32 s{dTB}, s{dTB}, s{sT}",
        f"s_lshr_b32 s{dPol}, s{dTB}, 1", f"s_lshl_b32 s{dPol}, s{dPol}, 10", f"s_add_u32 s{dPol}, s{dPol}, {FL2}",
        f"s_lshl_b32 s{dSig}, s{sMB}, 10", f"s_add_u32 s{dSig}, s{dSig}, {FL2}",
        f"s_cmp_eq_u32 s{sW}, 0\ns_cselect_b32 s{dSig}, s{dSig}, {OOB}",
        f"s_lshl_b32 s{dTB}, s{dTB}, 1", f"s_bfe_u32 s{sT}, s2, 0x10001", f"s_add_u32 s{dTB}, s{dTB}, s{sT}",
        f"s_lshl_b32 s{dPolA}, s{sT}, 7", f"s_add_u32 s{dPolA}, s{dPolA}, s{dPol}",
        f"s_lshr_b32 s{dSigA}, s{sFB}, 4", f"s_lshl_b32 s{dSigA}, s{dSigA}, 7", f"s_add_u32 s{dSigA}, s{dSigA}, s{dSig}",
        f"s_lshl_b32 s{dM}, s{sW}, 11", f"s_lshl_b32 s{dM2}, s{sW}, 12",
        f"s_mul_i32 s{dJ}, s{sT}, {(N1-48)*8192}", f"s_add_u32 s{dJ}, s{dJ}, {24*8192}",
        f"s_mul_i32 s{sT}, s{sT}, {24*8192}", f"s_add_u32 s{sT}, s{sT}, s{dM}",
        f"s_mul_i32 s{dWo}, s{dNB}, {K*128}", f"s_add_u32 s{dWo}, s{dWo}, s{sT}", f"s_lshl_b32 s{dWo}, s{dWo}, 1", f"s_add_u32 s{dWo}, s{dWo}, {WDF}",
        f"s_add_u32 s{sT}, s{sT}, {AF}", f"s_mul_i32 s{dXo}, s{dTB}, {K*128}", f"s_add_u32 s{dXo}, s{dXo}, s{sT}",
        f"s_xor_b32 s{dXp}, s{dTB}, 1", f"s_mul_i32 s{dXp}, s{dXp}, {K*128}", f"s_add_u32 s{dXp}, s{dXp}, s{sT}",
        f"s_lshr_b32 s{sT}, s{sW}, 1", f"s_lshl_b32 s{sT2}, s{dNB}, 1", f"s_add_u32 s{sT2}, s{sT2}, s{sT}",
        f"s_lshl_b32 s{sT}, s{sT}, 12", f"s_add_u32 s{sT}, s{sT}, 16384"]]
    setup += [V(f"v_add_u32 v{aWd[0]}, s{sT}, v{vLin}"), V(f"v_add_u32 v{aWd[1]}, 0x10000, v{aWd[0]}"), V(f"v_add_u32 v{aWd[2]}, 0x20000, v{aWd[0]}")]
    setup += [S(x) for x in [f"s_and_b32 s{sT}, s{sW}, 1", f"s_lshl_b32 s{sT}, s{sT}, 11"]]
    setup += [V(f"v_add_u32 v{aT[0]}, s{sT}, v{vLin}"), V(f"v_add_u32 v{aT[1]}, 0x10000, v{aT[0]}"), V(f"v_add_u32 v{aT[2]}, 0x20000, v{aT[0]}")]
    setup += [S(x) for x in [
        f"s_lshl_b32 s{dRes}, s{sT2}, 13", f"s_add_u32 s{dRes}, s{dRes}, s{sT}", f"s_lshl_b32 s{dX0}, s{dTB}, 17", f"s_add_u32 s{dRes}, s{dRes}, s{dX0}",
        f"s_lshl_b32 s{sT}, s{sT}, 5", f"s_add_u32 s{sT}, s{sT}, s{dX0}", f"s_lshl_b32 s{sT2}, s{sT2}, 7", f"s_add_u32 s{sT}, s{sT}, s{sT2}"]]
    setup += [V(f"v_and_b32 v{T0}, 0xf0, v{vLin}"), V(f"v_lshlrev_b32 v{T0}, 7, v{T0}"), V(f"v_lshrrev_b32 v{T1}, 8, v{vLin}"),
              V(f"v_lshl_add_u32 v{T0}, v{T1}, 4, v{T0}"), V(f"v_add_u32 v{vRow}, s{sT}, v{T0}"), V(f"v_mov_b32 v{vOne}, 1")]
    setup += [S(f"s_add_u32 s{dX0}, s{dRes}, {HF}"), S(f"s_add_u32 s{dX1}, s{dRes}, {HF+4096}")]
    setup += [S(f"s_lshr_b32 s{sT}, s2, 5"), S(f"s_add_u32 s{sT}, s{sT}, 2"), S(f"s_lshl_b32 s{sT}, s{sT}, 14"), S(f"s_add_u32 s{sT}, s{sT}, s{dWo}"),
              V(f"v_lshlrev_b32 v{T0}, 2, v{vLin}")]
    pset = flow(setup, max(p, t0 - 60), t0 + 16)

    def dma(m0, so, n, step):
        o = [[S(f"s_add_u32 m0, {m0}"), S("s_nop 0")]] + [[] for _ in range(n - 1)]
        for i in range(n):
            o[i].append(Op(f"buffer_load_dwordx4 v{vLin}, s[{SWS}:{SWS+3}], s{so} offen offset:{1024*i}{' sc1' if so != dWo else ''} lds", "vm"))
        o[-1].append(S(f"s_add_u32 s{so}, s{so}, {step}"))
        return o
    DX, DW = [], []
    for n in range(NST):
        base = dslot(n) * 32768
        x = dma(f"s{dM}, {base}", dXo, 2, 8192) + (dma(f"s{dM}, {base+8192}", dXp, 2, 8192) if n < N1 else [])
        w = dma(f"s{dM2}, {base+16384}", dWo, 4, 16384)
        if n == 24 and N1 > 24:
            x[0] = [S(f"s_add_u32 s{dXo}, s{dXo}, s{dJ}"), S(f"s_add_u32 s{dXp}, s{dXp}, s{dJ}")] + x[0]
            w[0] = [S(f"s_add_u32 s{dWo}, s{dWo}, s{dJ}"), S(f"s_add_u32 s{dWo}, s{dWo}, s{dJ}")] + w[0]
        if n == N1:
            x[0] = [S(f"s_mul_i32 s{dXo}, s{dTB}, {K*128}"), S(f"s_add_u32 s{dXo}, s{dXo}, s{dM}"), S(f"s_add_u32 s{dXo}, s{dXo}, {AF+2*N1*8192}")] + x[0]
            w[0] = [S(f"s_mul_i32 s{dWo}, s{dNB}, {K*256}"), S(f"s_add_u32 s{dWo}, s{dWo}, s{dM2}"), S(f"s_add_u32 s{dWo}, s{dWo}, {WDF+2*N1*16384}")] + w[0]
        DX.append(x); DW.append(w)
    vms = lambda gs: [o for g_ in gs for o in g_ if o.kind == "vm"]
    res = [Op(f"buffer_load_dwordx4 {ar(RES[i][b],4)}, v{vLin}, s[{SWS}:{SWS+3}], s{[dX0,dX1][b]} offen offset:{1024*i}", "vm") for i in range(2) for b in range(2)]
    signal = lambda w: Op(f"s_mov_b64 exec, 1\nbuffer_atomic_add v{vOne}, off, s[{SWS}:{SWS+3}], s{[dSigA,dSigA,dSig][w]} offset:{256*w} sc1\ns_mov_b64 exec, -1", "vm")
    polltxt = lambda w: f"buffer_load_dword v{vP}, off, s[{SWS}:{SWS+3}], s{[dPolA,dPolA,dPol][w]} offset:{256*w} sc1"
    POL = [Op(polltxt(w), "vm") for w in range(3)]
    pcheck = lambda w: [Op("", "wait", [POL[w]]), S(f"v_cmp_ne_u32 vcc, {[16,16,32][w]}, v{vP}\ns_nop 1\ns_cbranch_vccnz L_ffn_spin{w}\nL_ffn_go{w}:")]

    def put(pos, group):
        if len(group) > 2 and group[1].text == "s_nop 0":
            put(pos - 1, group[:1])
            group = group[2:]
        fixed2[pos] += group
        used[pos] += sum(o.cost for o in group)
    fixed2 = [[] for _ in fixed]
    EP = [epi(pr, False) for pr in range(6)]
    qa = t0 + 3 * run + 8 * OPT.get("siga", 4) + 7
    fixed[qa] = [Op("", "wait", vms([EP[0], EP[1]]), bar=True)]
    put(qa + 3, [signal(0)])
    q = t0 + 19
    for g_ in DW[0] + DW[1] + [[r] for r in res]:
        put(q, g_); q += 3 if q % 8 == 3 else 5
    for i in range(OPT.get("wpf", 2)):
        put(t0 + OPT.get("wpr", 139) + OPT.get("wps", 64) * i, [Op(f"buffer_load_dword v{T1}, v{T0}, s[{SWS}:{SWS+3}], s{sT} offen", "vm"), S(f"s_add_u32 s{sT}, s{sT}, {8*16384}")])
    put(t0 + 5 * run + OPT.get("pola", 30), [POL[0]])
    q = t0 + 6 * run + OPT.get("chka", 4)
    put(q, pcheck(0))
    for i, g_ in enumerate(DX[0]):
        put(q + 2 + 2 * i, g_)
    b0 = 8 * (NT_ - 3) + 7
    fixed[b0] = [Op("", "wait", vms(DX[0] + DW[0] + EP[:5]), bar=True)]
    for i, g_ in enumerate(DX[1] + DX[2]):
        put(b0 + 2 + 2 * i - (i == 7), g_)
    for pr in range(6):
        spread(EP[pr], t0 + run * (pr + 1), t0 + run * (pr + 2))
    ops = pro + [Op("", "wait", [x[1] for x in VM[0][:8 if HALF else 15]], bar=True)]
    if OPT["stamp"]:
        ops.append(Op("s_memrealtime s[96:97]\ns_memtime s[84:85]\ns_waitcnt lgkmcnt(0)", "s"))
    ops += RD[0] + RD[1] + [Op("", "wait", RD[0])]
    seg = dict(n=4, last=seg0)

    def page(room):
        if OPT.get("isl", 1):
            seg["n"] += sum(isize(o.text) for o in ops[seg["last"]:])
            seg["last"] = len(ops)
            if seg["n"] + room > 4088:
                ops.append(Op(island(), "s"))
                seg["n"], seg["last"] = 4, len(ops)
    npf = [0]

    def prof():
        if OPT.get("prof"):
            j = npf[0]; npf[0] += 1
            ops.append(S((f"v_writelane_b32 v{vSt}, s60, {j-1}\n" if j else "") + ("s_memtime s[60:61]" if OPT["prof"] == 1 else "s_memrealtime s[60:61]")))
    for i, m in enumerate(mf):
        if i in [112 * n for n in range(S0)] + [t0 + run * pr for pr in range(7)]:
            prof()
        if not fixed[i - 1]:
            page(160)
        late = [o for o in fixed[i] if o.kind == "wait"]
        ops += [m] + [o for o in fixed[i] if o.kind != "wait"] + late + fixed2[i] + flo[i]
    if OPT["stamp"]:
        ops.append(Op("s_memrealtime s[98:99]\ns_memtime s[86:87]", "s"))

    def dreads(n):
        f, sl = n & 1, dslot(n)
        o = []
        for s in range(2):
            o += [Op(f"ds_read_b128 {ar(F[f][s]['X'][i],4)}, v{aT[sl>>1]} offset:{(sl&1)*32768+(i>>1)*8192+s*4096+(i&1)*1024}", "lds") for i in range(4 if n < N1 else 2)]
            o += [Op(f"ds_read_b128 {ar(F[f][s]['W'][t],4)}, v{aWd[sl>>1]} offset:{(sl&1)*32768+s*8192+t*1024}", "lds") for t in range(4)]
        return o

    def dmf(n, tiles):
        f = n & 1
        return [Op(m16(vr(dacc[t][i], 4), ar(F[f][s]["W"][t], 4), ar(F[f][s]["X"][i], 4), "0" if (n == 0 and s == 0 and i >= 2) else None), "m")
                for t in range(4) for i in (tiles if t % 2 == 0 else tiles[::-1]) for s in range(2)]
    E6 = epi(6, True)
    init = [Op("", "wait", res)]
    for i in range(2):
        for b in range(2):
            for jt in range(2):
                for h in range(2):
                    a, r = dacc[2 * b + jt][i] + 2 * h, RES[i][b] + 2 * jt + h
                    init += [V(f"v_accvgpr_read_b32 v{a+1}, a{r}"), V(f"v_lshlrev_b32 v{a}, 16, v{a+1}"), V(f"v_and_b32 v{a+1}, 0xffff0000, v{a+1}")]
    init += [S(f"s_xor_b32 s{dX0}, s{dRes}, {1<<17}"), S(f"s_add_u32 s{dX1}, s{dX0}, {XB+4096}"), S(f"s_add_u32 s{dX0}, s{dX0}, {XB}")]
    prof()
    page(1250)
    todo = [(n, g_) for n in range(3, NST) for g_ in DX[n] + DW[n]]
    NZ = OPT.get("nz", 0)
    ops += weave(E6 + dreads(0) + init, DW[2] + [[signal(1)]] + [g_ for _, g_ in todo[:NZ]], 4)
    tgt = sum(1 for n, _ in todo if n <= N1 + D + 1)
    assert OPT.get("rl", 1) < N2
    done = NZ
    snd = []
    for b in range(2):
        for i in range(2):
            o = SND[i][b]
            for jt in range(2):
                a = dacc[2 * b + jt][2 + i]
                snd += [[V(f"v_cvt_pk_bf16_f32 v{o+2*jt}, v{a}, v{a+1}"), V(f"v_cvt_pk_bf16_f32 v{o+2*jt+1}, v{a+2}, v{a+3}")]]
            snd += [[V(f"v_min_u32 v{o+r}, -2, v{o+r}") for r in (0, 1)], [V(f"v_min_u32 v{o+r}, -2, v{o+r}") for r in (2, 3)] +
                    [Op(f"buffer_store_dwordx4 {vr(o,4)}, v{vLin}, s[{SWS}:{SWS+3}], s{[dX0,dX1][b]} offen offset:{1024*i} sc1", "vm")]]
    rcvt = [f"buffer_load_dwordx4 {vr(RCV[i][b],4)}, v{vLin}, s[{SWS}:{SWS+3}], s{[dX0,dX1][b]} offen offset:{1024*i} sc1" for i in range(2) for b in range(2)]
    gate = {8: 1, 20: 2}
    upto = lambda n: max(NZ + ((tgt - NZ) * n) // N1, sum(1 for m, _ in todo if m <= n + 2)) if n <= N1 else sum(1 for m, _ in todo if m <= n + D + 1)
    first_of = {m: min(i for i, (q, _) in enumerate(todo) if q == m) for m in gate}
    for n in range(1, NST):
        page(860)
        ops.append(Op("", "wait", vms(DX[n] + DW[n] + ([E6] if n == OPT.get("sigb", 3) else [])), bar=True))
        prof()
        ld = []
        for i in range(done, upto(n)):
            assert todo[i][0] <= n + 4
            if todo[i][0] in gate and first_of[todo[i][0]] == i:
                ld.append(pcheck(gate[todo[i][0]]))
            ld.append(todo[i][1])
        done = upto(n)
        assert done == len(todo) or todo[done][0] > n + 1
        for m, w in gate.items():
            if upto(n) <= first_of[m] < upto(n + 1):
                ld = [[POL[w]]] + ld
        if n == OPT.get("sigb", 3):
            ld = [[signal(2)]] + ld
        if n == N1 + 1:
            ld = ld + [[S(f"s_add_u32 s{dX0}, s{dRes}, {XB}"), S(f"s_add_u32 s{dX1}, s{dRes}, {XB+4096}")]]
        if n == NST - OPT.get("rl", 1):
            ld = ld + [[Op(x, "vm")] for x in rcvt]
        mm = dmf(n - 1, [0, 1, 2, 3]) if n < N1 else (dmf(n - 1, [2, 3]) + dmf(n - 1, [0, 1]) if n == N1 else dmf(n - 1, [0, 1]))
        sl = [[] for _ in mm]
        rd = dreads(n)
        for i, r in enumerate(rd):
            sl[i * (len(mm) * 5 // 8) // len(rd)].append(r)
        for i, g_ in enumerate(ld):
            q = (i * (len(mm) if n != N1 else 18)) // len(ld)
            if q and len(g_) > 2 and g_[1].text == "s_nop 0" and not any(o.kind == "vm" for o in sl[q]):
                sl[q - 1].append(g_[0])
                g_ = g_[2:]
            sl[q] += g_
        if n == N1:
            for i, g_ in enumerate(snd):
                sl[16 + i] += g_
        for m, e in zip(mm, sl):
            ops += [m] + e
    ops.append(Op("", "wait", rd))
    page(1200)
    ops += dmf(NST - 1, [0, 1])
    prof()
    ops.append(S("s_waitcnt lgkmcnt(0)" if OPT.get("prof") else "s_nop 0"))
    prof()
    emit_stream(k, ops)
    xstamp(k, 0)
    k(f"s_mov_b32 s{sN}, {1<<20}")
    k.label("L_ffn_chk")
    k("s_waitcnt vmcnt(0)")
    rr = [RCV[i][b] + r for i in range(2) for b in range(2) for r in range(4)]
    k(f"v_max3_u32 v{T0}, v{rr[0]}, v{rr[1]}, v{rr[2]}", f"v_max3_u32 v{T1}, v{rr[3]}, v{rr[4]}, v{rr[5]}")
    for j in range(6, 16, 2):
        t = [T0, T1][(j // 2) & 1]
        k(f"v_max3_u32 v{t}, v{rr[j]}, v{rr[j+1]}, v{t}")
    k(f"v_max_u32 v{T0}, v{T0}, v{T1}", f"v_cmp_eq_u32 vcc, -1, v{T0}", f"s_sub_u32 s{sN}, s{sN}, 1", "s_cbranch_scc1 L_ffn_out",
      "s_cbranch_vccz L_ffn_out", "s_sleep 2", rcvt, "s_branch L_ffn_chk")
    k.label("L_ffn_out")
    k(f"s_mov_b32 s{sN}, 32768")
    U = acc[3][0]
    for i in range(2):
        for b in range(2):
            o = acc[10][2 * i + b]
            for jt in range(2):
                a, q = dacc[2 * b + jt][i], RCV[i][b] + 2 * jt
                k(f"v_lshlrev_b32 v{U}, 16, v{q}", f"v_and_b32 v{U+1}, 0xffff0000, v{q}",
                  f"v_lshlrev_b32 v{U+2}, 16, v{q+1}", f"v_and_b32 v{U+3}, 0xffff0000, v{q+1}",
                  f"v_pk_add_f32 {vr(a,2)}, {vr(a,2)}, {vr(U,2)}", f"v_pk_add_f32 {vr(a+2,2)}, {vr(a+2,2)}, {vr(U+2,2)}",
                  f"v_cvt_pk_bf16_f32 v{o+2*jt}, v{a}, v{a+1}", f"v_cvt_pk_bf16_f32 v{o+2*jt+1}, v{a+2}, v{a+3}")
            k(f"buffer_store_dwordx4 {vr(o,4)}, v{vRow}, s[{SO}:{SO+3}], {['0', f's{sN}'][i]} offen offset:{64*b} sc1")
    if OPT.get("prof"):
        k("s_lshl_b32 s3, s89, 2", f"s_add_u32 s3, s3, s{sW}", "s_lshl_b32 s3, s3, 8", f"s_add_u32 s3, s3, {STAMP+2*MB}",
          f"v_lshrrev_b32 v{T0}, 2, v{vLin}", f"buffer_store_dword v{vSt}, v{T0}, s[{SWS}:{SWS+3}], s3 offen sc1")
    tail(k, 1, sW)
    for w in range(3):
        k.label(f"L_ffn_spin{w}")
        k(f"s_mov_b32 s{sN}, {1<<20}")
        k.label(f"L_ffn_spin{w}b")
        k(f"s_sleep {OPT.get('spsl', 4)}", polltxt(w), "s_waitcnt vmcnt(0)", f"v_cmp_ne_u32 vcc, {[16,16,32][w]}, v{vP}", f"s_sub_u32 s{sN}, s{sN}, 1", f"s_cbranch_scc1 L_ffn_go{w}",
          f"s_cbranch_vccnz L_ffn_spin{w}b", f"s_branch L_ffn_go{w}")
    return k


HEADER = open("sequential_preLN__grouped_kv_mqa__glu_gated_glu__prompt.s.ref").read().split("; Override launch")[0]


DOC = """;
; L_isl*: page-aligned landing pads that an idle wave walks once so that the code pages are in the instruction cache.
"""


def k_diag():
    k = Kern("diag_kernel", 1, 64, 0)
    k.vgpr = k.acc = 8
    a, b, m = OPT["da"], OPT["db"], OPT["dm"]
    off = lambda x: STAMP + (x // 10) * 16384 + (x % 10) * 4 + OPT.get("dwg", 0) * 64
    k("s_cmp_ge_u32 s2, 1", "s_cbranch_scc1 L_diag_end", "s_load_dwordx2 s[4:5], s[0:1], 88", "s_waitcnt lgkmcnt(0)",
      f"v_mov_b32 v1, {off(a)}", f"v_mov_b32 v2, {off(b)}", "global_load_dword v3, v1, s[4:5]", "global_load_dword v4, v2, s[4:5]",
      "s_memrealtime s[8:9]", "s_waitcnt vmcnt(0) lgkmcnt(0)", "v_sub_u32 v3, v4, v3", "s_nop 1", "v_readfirstlane_b32 s6, v3", "s_nop 3",
      "s_min_u32 s6, s6, 20000", f"s_mul_i32 s6, s6, {m}")
    k.label("L_diag_loop")
    k("s_memrealtime s[10:11]", "s_waitcnt lgkmcnt(0)", "s_sub_u32 s10, s10, s8", "s_cmp_lt_u32 s10, s6", "s_cbranch_scc1 L_diag_loop")
    k.label("L_diag_end")
    k("s_endpgm")
    return k


def build():
    ks = [k01_attn(), k3_gateup()]
    if "dm" in OPT:
        ks.append(k_diag())
    s = HEADER + "".join(ks[int(c)].launch_line() + "\n" for c in str(OPT.get("seq", "".join(str(i) for i in range(len(ks))))).lstrip("9"))
    s += DOC
    s += '.amdgcn_target "amdgcn-amd-amdhsa--gfx950"\n.text\n'
    for i, k in enumerate(ks):
        s += k.text()
        if i == 0:
            s += "L_code_rest:\n"
    s += "L_code_end:\n"
    chain = [n for n, back in ISL if back is None]
    for n, back in ISL:
        if back:
            s = s.replace(f"@ISL{n}@", f"s_branch {back}")
    for i, n in enumerate(chain):
        s = s.replace(f"@ISL{n}@", f"s_branch L_isl{chain[i+4]}" if i + 4 < len(chain) else "s_endpgm")
        s = s.replace(f"@HOP{i}@", f"L_isl{n}")
    s += '.section .rodata,"a"\n' + "".join(k.desc() for k in ks)
    return s


if __name__ == "__main__":
    out = sys.argv[1]
    for a in sys.argv[2:]:
        key, _, val = a.partition("=")
        OPT[key] = int(val) if val else True
    open(out, "w").write(build())
```

```python
import sys, math
sys.path.insert(0, __file__.rsplit("/", 1)[0])
from asmlib import *

MB = 1 << 20
QF, KVF, OF, HF, AF = 0, 4 * MB, 5 * MB, 9 * MB, 13 * MB
WOF, WGU, WDF, CSP, STP, STAMP = 28 * MB, 30 * MB, 44 * MB, 52 * MB, 53 * MB, 60 * MB
XB = 0
XB4 = [HF, XB, 56 * MB, 64 * MB]
FLG = 54 * MB
ST1 = 55 * MB
FL2 = FLG + 65536
WS_SZ = 72 * MB
OOB = 0x40000000
LOG2E = 1.4426950408889634
QSCALE = LOG2E / math.sqrt(32.0)
EPS = 1e-5
OPT = dict(stamp=False, force_slow=False)
A_X, A_WQ, A_WK, A_WV, A_WO, A_WG, A_WU, A_WD, A_OUT, A_WS = 0, 8, 16, 24, 32, 48, 56, 64, 72, 88


def ws_shift(s):
    if OPT.get("wsoff"):
        return [f"s_add_u32 s{s}, s{s}, {OPT['wsoff']*MB}", f"s_addc_u32 s{s+1}, s{s+1}, 0"]
    return []


ISL = []


def island(back=None, jump=True):
    if not OPT.get("isl", 1):
        return None
    n = len(ISL)
    ISL.append((n, back))
    return (f"s_branch L_isl{n}_over\n" if jump else "") + f".p2align 12\nL_isl{n}:\n@ISL{n}@\nL_isl{n}_over:"


def isize(text):
    import re
    t = 0
    for ln in text.split("\n"):
        ln = ln.strip()
        if not ln:
            t += 8
        elif ln.endswith(":") or ln.startswith("."):
            continue
        elif re.match(r"(v_mfma|v_smfmac|ds_|buffer_|global_|s_load|s_mem|v_fma_|v_cvt_pk|v_accvgpr|v_pk_|v_lshl_add|v_bfe|v_max3|v_maximum3|v_mul_lo)", ln):
            t += 8
        else:
            lit = [x for x in re.findall(r"(?<![\w\[:])(0x[0-9a-f]+|\d+)(?![\w\]:])", ln.split(None, 1)[1] if " " in ln else "") if int(x, 0) > 64]
            t += 8 if lit else 4
    return t


def hop(k, sw):
    if OPT.get("isl", 1) and not OPT.get("nohop"):
        for w in range(3):
            k(f"s_cmp_eq_u32 s{sw}, {w}", f"s_cbranch_scc1 @HOP{w}@")
        k("s_branch @HOP3@")
    else:
        k("s_endpgm")


def srd_tail(s, size):
    return [f"s_mov_b32 s{s+2}, {size}", f"s_mov_b32 s{s+3}, 0x00020000"]


def srd_from(s, base, off, size):
    return [f"s_add_u32 s{s}, s{base}, {off}", f"s_addc_u32 s{s+1}, s{base+1}, 0"] + srd_tail(s, size)


def head(k, pad=False):
    if pad and OPT.get("isl", 1) and OPT.get("epad", 1):
        n = len(ISL)
        ISL.append((n, None))
        k("s_cmp_lt_u32 s2, 256", f"s_cbranch_scc1 L_isl{n}_over", "s_endpgm", f"L_isl{n}:", f"@ISL{n}@", f"L_isl{n}_over:")
    else:
        k("s_cmp_ge_u32 s2, 256", f"s_cbranch_scc1 L_end_{k.name}")
    if OPT["stamp"]:
        k("s_memrealtime s[92:93]", "s_load_dwordx2 s[90:91], s[0:1], 88", "s_mov_b32 s89, s2")


def mid_stamp(k, i):
    if OPT["stamp"] and i < 2:
        k(f"s_memrealtime s[{96+2*i}:{97+2*i}]", f"s_memtime s[{84+2*i}:{85+2*i}]")
    elif OPT["stamp"]:
        k("s_memrealtime s[100:101]", "s_waitcnt lgkmcnt(0)", f"s_mov_b32 s{[93,88,3][i-2]}, s100")


def hstamp(k, lane):
    if OPT.get("hprof"):
        k("s_memrealtime s[84:85]", "s_waitcnt lgkmcnt(0)", f"v_writelane_b32 v200, s84, {lane}")


def xstamp(k, n):
    sel = str(OPT.get("xs", 378)).zfill(3)
    if str(n) in sel:
        mid_stamp(k, 2 + sel.index(str(n)))


def tail(k, kidx, swave):
    if OPT["stamp"]:
        k("s_waitcnt vmcnt(0)", "s_memrealtime s[94:95]", "s_waitcnt lgkmcnt(0)",
          "v_mov_b32 v0, s92", "v_mov_b32 v1, s96", "v_mov_b32 v2, s98", "v_mov_b32 v3, s94",
          "s_lshl_b32 s89, s89, 2", f"s_add_u32 s89, s89, s{swave}", "s_lshl_b32 s89, s89, 4",
          f"s_add_u32 s89, s89, {STAMP + kidx*16384}", "v_mov_b32 v4, s89",
          "global_store_dwordx4 v4, v[0:3], s[90:91]",
          "s_sub_u32 s86, s86, s84", "v_mov_b32 v8, s86", "v_mov_b32 v9, s93", "v_mov_b32 v10, s88", "v_mov_b32 v11, s3",
          "v_add_u32 v4, 0x100000, v4", "global_store_dwordx4 v4, v[8:11], s[90:91]")
    k.label(f"L_end_{k.name}")
    k("s_endpgm")


def ids_8x4(k, s_a, s_b, tmp):
    k(f"s_lshr_b32 s{tmp}, s2, 3",
      f"s_and_b32 s{s_a}, s{tmp}, 3",
      f"s_lshr_b32 s{s_b}, s{tmp}, 2",
      f"s_and_b32 s{tmp}, s2, 1",
      f"s_lshl_b32 s{tmp}, s{tmp}, 2",
      f"s_add_u32 s{s_a}, s{s_a}, s{tmp}",
      f"s_and_b32 s{tmp}, s2, 6",
      f"s_lshl_b32 s{tmp}, s{tmp}, 2",
      f"s_add_u32 s{s_b}, s{s_b}, s{tmp}")


def code_prefetch(k, vtmp, vdst, stmp, start, nkb_per_wg=1):
    k(f"s_getpc_b64 s[{stmp}:{stmp+1}]")
    lab = f"L_pc_{k.name}_{start}"
    k.label(lab)
    k(f"s_add_u32 s{stmp}, s{stmp}, {start}-{lab}",
      f"s_addc_u32 s{stmp+1}, s{stmp+1}, 0",
      f"global_load_dwordx4 {vr(vdst,4)}, v{vtmp}, s[{stmp}:{stmp+1}]" if not OPT.get("nopf") else None)


def k01_attn():
    D = 2
    STG, NS = 24576, D + 2
    EA = STG * NS
    SLOT, KVB, JB, TBL = 32768, 65536, 16384, 0
    k = Kern("attn_kernel", 256, 512, 163840)
    SX, SWQ, SE, SWS, SKV, SJ = 4, 8, 12, 16, 72, 76
    (sW, sTB, sHG, sC, sT, sT2, sRd, sWr, sKo, sJo, sJa, sJb, sGW, sStr, sDstep, sOo) = range(32, 48)
    sN, sX, sWo, sTH, sCH, sBW, sOo1, sFl, sKV = 48, 49, 54, 55, 56, 57, 65, 80, 81
    sD = [50, 51, 52, 53]
    sCs = [58, 59, 60, 61]
    sDB, sBsz, sWrJ = 62, 63, 64
    SDBG = 30
    v = Alloc(1)
    L, G, R, CQ, TOK, T0, T1, T2, vLin, vRd, IDX = [v() for _ in range(11)]
    h = Alloc(v.n)
    Q = [v(8, 4) for _ in range(2)]
    O = [v(16, 4) for _ in range(2)]
    LS = [v(4, 4) for _ in range(2)]
    acc = [[v(4, 4) for i in range(2)] for t in range(4)]
    cs = [v(4, 4) for _ in range(2)]
    sx, sxx = v(4, 4), v(4, 4)
    z1 = v.n
    SUMA, ONES = v(4, 4), v(4, 4)
    bX, bQ, aX, aQ = [[v() for i in range(2)] for _ in range(4)]
    bW = [v() for _ in range(4)]
    aW = [v() for _ in range(4)]
    F0 = v(96, 4)
    FQ = [[dict(X=[F0 + 48 * f + 24 * s + 4 * i for i in range(4)], W=[F0 + 48 * f + 24 * s + 16 + 4 * t for t in range(2)]) for s in range(2)] for f in range(2)]
    qacc = [[acc[0][0] + 16 * t + 4 * i for i in range(4)] for t in range(2)]
    F = [[dict(X=[F0 + 48 * f + 24 * s + 4 * i for i in range(2)], W=[F0 + 48 * f + 24 * s + 8 + 4 * t for t in range(4)]) for s in range(2)] for f in range(2)]
    S = [F0 + 16 * i for i in range(4)]
    KB = [F0 + 64 + 8 * i for i in range(2)]
    VB = [F0 + 80 + 8 * i for i in range(2)]
    XK = [F0 + 4 * j for j in range(8)]
    EK = [[F0 + 32 + 8 * j + 4 * t for t in range(2)] for j in range(8)]
    accE, csE = [Q[0], Q[0] + 4], [Q[1], Q[1] + 4]
    sxE, sxxE = v(4, 4), v(4, 4)
    vXk, vE, aE0, aE1, aP, aS, aG0, aG1, vKo, PF, vHo, vRow = [v() for _ in range(12)]
    RES = [[cs[0], cs[1]], [sx, sxx]]
    XR = 131072
    sFg, sRx, sH0, sH1, sS1 = 58, 59, 60, 61, 62
    k.vgpr = k.acc = 256
    vX, vX2 = h(), h()
    vW = [h() for _ in range(4)]
    vJ, vJB, vCs, vPo = h(), h(), h(), h()
    aJ = [h() for _ in range(4)]
    bJ = [h() for _ in range(2)]
    JF = [h(4, 4) for _ in range(4)]
    CS = [h(4, 4) for _ in range(4)]
    PF4 = h(4, 4)
    head(k)
    k(f"s_load_dwordx2 s[{SX}:{SX+1}], s[0:1], {A_X}",
      f"s_load_dwordx2 s[{SWQ}:{SWQ+1}], s[0:1], {A_WQ}",
      f"s_load_dwordx4 s[24:27], s[0:1], {A_WK}",
      f"s_load_dwordx2 s[{SWS}:{SWS+1}], s[0:1], {A_WS}",
      f"s_load_dwordx2 s[{SDBG}:{SDBG+1}], s[0:1], 80")
    k(f"s_lshl_b32 s{sT}, s2, 7", f"s_and_b32 s{sT}, s{sT}, 0x7c00", f"v_lshl_add_u32 v{T0}, v0, 1, s{sT}", f"v_and_b32 v{T0}, -4, v{T0}", "s_getpc_b64 s[20:21]", f"global_load_dword v{PF}, v{T0}, s[20:21]" if not OPT.get("nopf") else None)
    k(f"v_lshrrev_b32 v{T1}, 6, v0", f"v_and_b32 v{L}, 63, v0", f"v_readfirstlane_b32 s{sW}, v{T1}")
    ids_8x4(k, sHG, sTB, sT)
    k(f"v_lshrrev_b32 v{G}, 4, v{L}", f"v_and_b32 v{TOK}, 15, v{L}", f"v_lshlrev_b32 v{vLin}, 4, v{L}")
    k(f"s_and_b32 s{sTH}, s{sW}, 1", f"s_bfe_u32 s{sCH}, s{sW}, 0x10001",
      f"s_cmp_ge_u32 s{sW}, 4", "s_cbranch_scc1 L_f_help")
    k(f"s_and_b32 s{sT}, s{sHG}, 3", f"s_lshl_b32 s{sT2}, s{sTB}, 2", f"s_add_u32 s{sT}, s{sT}, s{sT2}", f"s_lshl_b32 s{sT}, s{sT}, 15",
      f"s_lshl_b32 s{sT2}, s{sW}, 9", f"s_add_u32 s{sT}, s{sT}, s{sT2}",
      f"v_lshrrev_b32 v{T0}, 3, v{L}", f"v_lshlrev_b32 v{T0}, 11, v{T0}", f"v_and_b32 v{T1}, 7, v{L}", f"v_xor_b32 v{T1}, v{T1}, v{G}",
      f"v_lshl_add_u32 v{T0}, v{T1}, 4, v{T0}", f"v_add_u32 v{vXk}, s{sT}, v{T0}", f"v_xor_b32 v{T1}, {16384+64}, v{vXk}", f"s_lshl_b32 s{sX}, s{sW}, 13",
      f"v_and_b32 v{T0}, 32, v{L}", f"v_xor_b32 v{T0}, v{T0}, v{vLin}",
      f"s_lshl_b32 s{sWr}, s{sW}, 14", f"v_add_u32 v{vE}, s{sWr}, v{T0}",
      f"s_lshr_b32 s{sT}, s2, 3", f"s_lshl_b32 s{sT}, s{sT}, 11", f"v_lshlrev_b32 v{T0}, 3, v0",
      f"s_bitcmp1_b32 s{sHG}, 2", "s_waitcnt lgkmcnt(0)",
      f"s_cselect_b32 s{SE}, s26, s24", f"s_cselect_b32 s{SE+1}, s27, s25", srd_tail(SE, 0x10000), srd_tail(SX, 4 * MB))
    xstamp(k, 0)
    k(f"buffer_load_dword v{PF}, v{T0}, s[{SE}:{SE+3}], s{sT} offen")
    for j in range(8):
        k(f"s_add_u32 m0, s{sX}, {1024*j-128*(j>>1)}", "s_nop 0", f"buffer_load_dwordx4 v{[vXk,T1][j&1]}, s[{SX}:{SX+3}], 0 offen offset:{128*(j>>1)} lds")

    def kv_ld(gi):
        k(f"s_add_u32 m0, s{sWr}, {EA+4096*gi}", f"s_mov_b32 s{sWo}, {4096*gi}")
        for i in range(4):
            k(f"buffer_load_dwordx4 v{vE}, s[{SE}:{SE+3}], s{sWo} offen offset:{1024*i} lds")
    k("s_branch L_f_comp")
    k.label("L_f_help")
    k(f"s_and_b32 s{sW}, s{sW}, 3")
    if OPT.get("wqpf", 0):
        k(f"v_and_b32 v{T0}, 255, v0", f"v_lshlrev_b32 v{T0}, 5, v{T0}", f"s_lshl_b32 s{sT}, s2, 13", "s_waitcnt lgkmcnt(0)", srd_tail(SWQ, 2 * MB),
          f"buffer_load_dword v{PF4}, v{T0}, s[{SWQ}:{SWQ+3}], s{sT} offen")
    k(f"v_lshrrev_b32 v{T0}, 3, v{L}",
      f"s_lshl_b32 s{sT}, s{sTH}, 2",
      f"v_add_u32 v{T1}, s{sT}, v{G}",
      f"v_and_b32 v{T2}, 7, v{L}",
      f"v_xor_b32 v{T1}, v{T1}, v{T2}",
      f"s_lshl_b32 s{sT}, s{sTB}, 6",
      f"s_lshl_b32 s{sT2}, s{sW}, 3",
      f"s_add_u32 s{sT}, s{sT}, s{sT2}",
      f"v_add_u32 v{T0}, s{sT}, v{T0}",
      f"v_lshlrev_b32 v{T0}, 11, v{T0}",
      f"v_lshl_add_u32 v{vX}, v{T1}, 4, v{T0}",
      f"v_add_u32 v{vX2}, 0x10000, v{vX}")
    k(f"v_lshlrev_b32 v{T1}, 1, v{G}",
      f"v_xor_b32 v{T1}, v{T1}, v{TOK}",
      f"s_lshl_b32 s{sT}, s{sTH}, 3",
      f"v_xor_b32 v{T1}, s{sT}, v{T1}",
      f"s_lshl_b32 s{sBW}, s{sTH}, 1",
      f"s_add_u32 s{sBW}, s{sBW}, s{sCH}",
      f"s_lshl_b32 s{sT}, s{sBW}, 13",
      f"s_lshl_b32 s{sT2}, s{sHG}, 8",
      f"s_add_u32 s{sT}, s{sT}, s{sT2}",
      f"v_lshlrev_b32 v{T0}, 11, v{G}",
      f"v_add_u32 v{T0}, s{sT}, v{T0}",
      f"v_lshl_add_u32 v{vW[0]}, v{T1}, 4, v{T0}")
    for i in range(1, 4):
        k(f"v_add_u32 v{vW[i]}, {32768*i}, v{vW[0]}")
    k(f"s_sub_u32 s{sBW}, s{sBW}, s{sW}", f"s_lshl_b32 s{sBW}, s{sBW}, 10", f"s_add_u32 s{sBW}, s{sBW}, 8192",
      f"s_lshl_b32 s{sWr}, s{sW}, 10", f"s_mov_b32 s{sN}, 12")
    k(f"s_and_b32 s{sT}, s{sTB}, {7 if OPT.get('rot', 1) else 0}",
      f"s_lshl_b32 s{sX}, s{sT}, 8", f"s_lshl_b32 s{sWo}, s{sT}, 18")
    k("s_waitcnt lgkmcnt(0)", srd_tail(SX, 4 * MB), srd_tail(SWQ, 2 * MB))
    k(f"s_load_dwordx2 s[20:21], s[0:1], {A_WO}", f"s_load_dwordx4 s[24:27], s[0:1], {A_WG}", f"s_load_dwordx2 s[28:29], s[0:1], {A_WD}")
    def q_x(slot):
        k(f"s_add_u32 m0, s{sWr}, {slot}", "s_nop 0", f"buffer_load_dwordx4 v{vX}, s[{SX}:{SX+3}], s{sX} offen lds",
          f"s_add_u32 m0, s{sWr}, {slot+4096}", "s_nop 0", f"buffer_load_dwordx4 v{vX2}, s[{SX}:{SX+3}], s{sX} offen lds",
          f"s_add_u32 s{sX}, s{sX}, 128", f"s_and_b32 s{sX}, s{sX}, 2047")

    def q_w(slot):
        k(f"s_add_u32 s{sT}, s{sWr}, s{sBW}")
        for i in range(4):
            k(f"s_add_u32 m0, s{sT}, {slot+4096*i}", "s_nop 0", f"buffer_load_dwordx4 v{vW[i]}, s[{SWQ}:{SWQ+3}], s{sWo} offen lds")
        k(f"s_add_u32 s{sWo}, s{sWo}, 0x20000", f"s_and_b32 s{sWo}, s{sWo}, 0x1fffff")

    def q_stage():
        q_x(0); q_w(0)
        k(f"s_add_u32 s{sWr}, s{sWr}, {STG}", f"s_cmp_ge_u32 s{sWr}, {EA}", f"s_cselect_b32 s{sT}, {EA}, 0",
          f"s_sub_u32 s{sWr}, s{sWr}, s{sT}", f"s_sub_u32 s{sN}, s{sN}, 1")
    k("s_branch L_f_setup")
    k.label("L_f_comp")
    k(f"v_bfe_u32 v{R}, v{L}, 2, 2", f"v_and_b32 v{CQ}, 3, v{L}", f"v_and_b32 v{T2}, 1, v{G}",
      f"s_lshl_b32 s{sT}, s{sW}, 14", f"s_add_u32 s{sT}, s{sT}, {EA}",
      f"v_lshlrev_b32 v{T0}, 5, v{T2}", f"v_lshl_add_u32 v{T0}, v{CQ}, 3, v{T0}",
      f"v_lshl_add_u32 v{T0}, v{R}, 6, v{T0}", f"v_lshl_add_u32 v{T0}, v{G}, 9, v{T0}",
      f"v_add_u32 v{aE0}, s{sT}, v{T0}", f"v_xor_b32 v{aE1}, 32, v{aE0}")
    for i in range(4):
        k(f"v_mov_b32 v{ONES+i}, 0x3f803f80")
    k(ws_shift(SWS), srd_tail(SWS, WS_SZ), srd_from(SKV, SWS, KVF, 262144))
    k(f"s_lshl_b32 s{sT}, s{sCH}, 10", f"s_lshl_b32 s{sT2}, s{sTH}, 3", f"s_add_u32 s{sT}, s{sT}, s{sT2}", f"s_add_u32 s{sT}, s{sT}, {EA}",
      f"v_add_u32 v{aP}, s{sT}, v{vLin}", f"v_lshlrev_b32 v{aS}, 3, v{TOK}", f"v_add_u32 v{aS}, {EA+4096}, v{aS}")
    k(f"s_bfe_u32 s{sT}, s{sHG}, 0x10001", f"s_lshl_b32 s{sKV}, s{sTB}, 1", f"s_add_u32 s{sKV}, s{sKV}, s{sT}", f"s_lshl_b32 s{sKV}, s{sKV}, 12",
      f"s_and_b32 s{sT2}, s{sHG}, 1", f"s_bitcmp1_b32 s{sHG}, 2", "s_cbranch_scc1 L_f_av")
    k(f"s_lshl_b32 s{sT2}, s{sT2}, 8", f"s_add_u32 s{sKV}, s{sKV}, s{sT2}",
      f"s_lshl_b32 s{sT}, s{sW}, 2", f"s_add_u32 s{sT}, s{sT}, {EA+8192}", f"v_add_u32 v{aG0}, s{sT}, v{vLin}", f"v_add_u32 v{aG1}, 2, v{aG0}",
      f"v_lshlrev_b32 v{T0}, 10, v{T2}", f"v_lshrrev_b32 v{T1}, 1, v{G}", f"v_lshl_add_u32 v{T0}, v{T1}, 9, v{T0}", f"v_lshl_add_u32 v{vKo}, v{TOK}, 4, v{T0}",
      "s_branch L_f_ax")
    k.label("L_f_av")
    k(f"s_lshl_b32 s{sT2}, s{sT2}, 10", f"s_add_u32 s{sKV}, s{sKV}, s{sT2}", f"s_add_u32 s{sKV}, s{sKV}, 2048",
      f"v_lshlrev_b32 v{T0}, 7, v{T2}", f"v_lshrrev_b32 v{T1}, 1, v{G}", f"v_lshl_add_u32 v{T0}, v{T1}, 6, v{T0}",
      f"v_bfe_u32 v{T1}, v{L}, 3, 1", f"v_lshl_add_u32 v{T0}, v{T1}, 9, v{T0}", f"v_and_b32 v{T1}, 7, v{L}", f"v_lshl_add_u32 v{T0}, v{T1}, 1, v{T0}",
      f"s_lshl_b32 s{sT}, s{sCH}, 8", f"s_lshl_b32 s{sT2}, s{sTH}, 5", f"s_add_u32 s{sT}, s{sT}, s{sT2}", f"s_add_u32 s{sT}, s{sT}, {EA+8192}",
      f"v_add_u32 v{aG0}, s{sT}, v{T0}", f"v_add_u32 v{aG1}, 16, v{aG0}", f"v_mov_b32 v{vKo}, v{vLin}")
    k.label("L_f_ax")
    k(f"v_lshrrev_b32 v{T0}, 1, v{TOK}", f"v_xor_b32 v{T0}, v{T0}, v{G}", f"v_lshlrev_b32 v{T0}, 4, v{T0}",
      f"v_lshl_add_u32 v{bX[0]}, v{TOK}, 7, v{T0}", f"v_add_u32 v{vXk}, s{sX}, v{bX[0]}", f"v_xor_b32 v{bX[1]}, 64, v{bX[0]}")
    k(f"v_lshlrev_b32 v{T0}, 2, v{T2}", f"v_xor_b32 v{T0}, v{T0}, v{R}",
      f"v_lshlrev_b32 v{T0}, 5, v{T0}",
      f"v_lshl_add_u32 v{T0}, v{CQ}, 3, v{T0}",
      f"v_lshl_add_u32 v{T0}, v{R}, 8, v{T0}",
      f"v_lshl_add_u32 v{T0}, v{G}, 11, v{T0}",
      f"s_lshl_b32 s{sT}, s{sW}, 6", f"s_add_u32 s{sT}, s{sT}, 8192", f"v_xor_b32 v{bQ[0]}, s{sT}, v{T0}", f"v_xor_b32 v{bQ[1]}, 32, v{bQ[0]}",
      f"s_lshl_b32 s{sT}, s{sCH}, 7", f"v_xor_b32 v{bW[0]}, s{sT}, v{T0}")
    for t in range(1, 4):
        k(f"v_xor_b32 v{bW[t]}, {32*t}, v{bW[0]}")
    bases = list(zip(aX + aQ, bX + bQ))
    for a, b in bases + list(zip(aW, bW)):
        k(f"v_mov_b32 v{a}, v{b}")
    for i in range(O[0], z1, 2):
        k(f"v_mov_b64 {vr(i,2)}, 0")
    k(f"v_and_b32 v{T0}, 7, v{L}", f"v_cmp_eq_u32 vcc, 0, v{T0}", f"v_mov_b32 v{IDX}, 0xdddd", f"v_add_u32 v{vRd}, {KVB+SLOT}, v{vLin}",
      f"v_cndmask_b32 v{SUMA}, 0, v{ONES}, vcc", f"v_cndmask_b32 v{SUMA+1}, 0, v{ONES}, vcc",
      f"v_cmp_eq_u32 vcc, 4, v{T0}", f"v_and_b32 v{T0}, 1, v{TOK}", f"v_and_b32 v{T1}, 2, v{TOK}",
      f"v_cndmask_b32 v{SUMA+2}, 0, v{ONES}, vcc", f"v_cndmask_b32 v{SUMA+3}, 0, v{ONES}, vcc",
      f"v_cmp_eq_u32 s[66:67], 1, v{T0}", f"v_cmp_eq_u32 s[68:69], 2, v{T1}", f"v_cmp_eq_u32 s[82:83], v{R}, v{G}")
    k(f"s_lshl_b32 s{sFg}, s{sTB}, 9", f"s_add_u32 s{sFg}, s{sFg}, {FLG}")
    k(f"s_lshr_b32 s{sS1}, s{sHG}, 2", f"s_lshl_b32 s{sS1}, s{sS1}, 5", f"s_add_u32 s{sS1}, s{sS1}, s{sTB}", f"s_lshl_b32 s{sS1}, s{sS1}, 9",
      f"s_add_u32 s{sS1}, s{sS1}, {ST1}")
    k(f"v_lshrrev_b32 v{T0}, 1, v{G}", f"v_lshl_add_u32 v{T0}, v{T2}, 1, v{T0}", f"v_lshlrev_b32 v{T1}, 4, v{TOK}", f"v_lshl_add_u32 v{vHo}, v{T0}, 8, v{T1}",
      f"v_lshlrev_b32 v{T1}, 11, v{TOK}", f"v_lshl_add_u32 v{T0}, v{T0}, 4, v{T1}",
      f"s_lshl_b32 s{sT}, s{sTB}, 1", f"s_add_u32 s{sT}, s{sT}, s{sTH}", f"s_lshl_b32 s{sT}, s{sT}, 16",
      f"s_lshl_b32 s{sT2}, s{sHG}, 1", f"s_add_u32 s{sT2}, s{sT2}, s{sCH}", f"s_lshl_b32 s{sT2}, s{sT2}, 7", f"s_add_u32 s{sT}, s{sT}, s{sT2}",
      f"v_add_u32 v{vRow}, s{sT}, v{T0}")
    k(f"s_lshl_b32 s{sT}, s{sTB}, 3", f"s_add_u32 s{sT}, s{sT}, s{sHG}", f"s_lshl_b32 s{sT}, s{sT}, 14",
      f"s_lshl_b32 s{sT2}, s{sW}, 12", f"s_add_u32 s{sOo}, s{sT}, s{sT2}", f"s_add_u32 s{sOo}, s{sOo}, {OF}",
      f"s_lshl_b32 s{sT2}, s{sCH}, 13", f"s_add_u32 s{sT}, s{sT}, s{sT2}", f"s_lshl_b32 s{sT2}, s{sTH}, 11", f"s_add_u32 s{sT}, s{sT}, s{sT2}",
      f"s_add_u32 s{sH0}, s{sT}, {HF}", f"s_add_u32 s{sH1}, s{sT}, {HF+4096}")
    k(f"s_mov_b32 s{sRd}, 0", f"s_mov_b32 s{sN}, 7", f"s_cmp_eq_u32 s{sW}, 0", f"s_cselect_b32 s{sFl}, 7, -1")
    xstamp(k, 1)

    def diag(dst, src):
        return [f"v_cndmask_b32 v{T0}, v{src}, v{src+1}, s[66:67]", f"v_cndmask_b32 v{T1}, v{src+2}, v{src+3}, s[66:67]",
                f"v_cndmask_b32 v{dst}, v{T0}, v{T1}, s[68:69]"]

    def kv_mf(gi):
        o = []
        for j in (2 * gi, 2 * gi + 1):
            c = "0" if j == 0 else None
            for t in range(2):
                o += [m16(vr(accE[t], 4), vr(EK[j][t], 4), vr(XK[j], 4), c), m16(vr(csE[t], 4), vr(EK[j][t], 4), vr(ONES, 4), c)]
        return o
    kv_rd = lambda gi: [f"ds_read_b64_tr_b16 {vr(EK[j][t]+2*jj,2)}, v{[aE0,aE1][t]} offset:{j*2048+jj*256}"
                        for j in (2 * gi, 2 * gi + 1) for t in range(2) for jj in range(2)]
    kv_ld(0); kv_ld(1)
    k(f"v_xor_b32 v{T0}, 64, v{vXk}", "s_waitcnt vmcnt(8)")
    xstamp(k, 2)
    for j in range(8):
        k(f"ds_read_b128 {vr(XK[j],4)}, v{[vXk,T0][j&1]} offset:{2048*(j>>1)}")
    kv_ld(2)
    k("s_waitcnt lgkmcnt(0)")
    for j in range(8):
        k(m16(vr(sxxE, 4), vr(XK[j], 4), vr(XK[j], 4), "0" if j == 0 else None), m16(vr(sxE, 4), vr(ONES, 4), vr(XK[j], 4), "0" if j == 0 else None))
    k("s_waitcnt vmcnt(8)", kv_rd(0))
    kv_ld(3)
    xstamp(k, 3)
    k("s_barrier")
    k(f"s_add_u32 s{sT}, s{sWr}, {EA}", f"v_add_u32 v{vE}, s{sT}, v{vLin}", f"v_lshl_add_u32 v{vXk}, v{TOK}, 3, s{sT}")
    k(diag(sxE + 1, sxxE))
    for gi in range(1, 4):
        k(f"s_waitcnt vmcnt({12-4*gi}) lgkmcnt(0)", weave(kv_mf(gi - 1), kv_rd(gi), 0, 5))
    xstamp(k, 4)
    k("s_waitcnt lgkmcnt(0)", kv_mf(3), "s_mov_b64 exec, s[82:83]", f"ds_write_b64 v{vXk}, {vr(sxE,2)} offset:4096", "s_mov_b64 exec, -1", "s_nop 3")
    for i, r in enumerate(accE + csE):
        k(f"ds_write_b128 v{vE}, {vr(r,4)} offset:{1024*i}")
    k("s_waitcnt lgkmcnt(0)")
    xstamp(k, 5)
    k(island(back="L_f_back"))
    U = F0 + 48

    def sum4(r):
        return [f"v_add_f32 v{r+e}, v{r+e}, v{r+2+e}" for e in range(2)] + [f"v_add_f32 v{r+4+e}, v{r+4+e}, v{r+6+e}" for e in range(2)] + \
               [f"v_add_f32 v{r+e}, v{r+e}, v{r+4+e}" for e in range(2)]

    def stats(s, scale):
        return [f"v_mul_f32 v{s}, {f32(-1/1024)}, v{s}", f"v_mul_f32 v{s+1}, {f32(1/1024)}, v{s+1}",
                f"v_fma_f32 v{s+1}, -v{s}, v{s}, v{s+1}", f"v_max_f32 v{s+1}, 0, v{s+1}", f"v_add_f32 v{s+1}, {f32(EPS)}, v{s+1}",
                f"v_rsq_f32 v{s+2}, v{s+1}", "s_nop 0", f"v_mul_f32 v{s+2}, {f32(scale)}, v{s+2}" if scale != 1 else None,
                f"v_mul_f32 v{s+1}, v{s}, v{s+2}", f"v_mov_b32 v{s}, v{s+2}"]
    def reads(fi):
        o = []
        for s in range(2):
            f = FQ[fi][s]
            for t in range(2):
                for j in range(2):
                    o.append(f"ds_read_b64_tr_b16 {vr(f['W'][t]+2*j,2)}, v{aQ[t]} offset:{s*8192+j*1024}")
            o += [f"ds_read_b128 {vr(f['X'][i],4)}, v{aX[s]} offset:{2048*i}" for i in range(4)]
        return o

    def mfmas(fi):
        X = lambda s, i: vr(FQ[fi][s]["X"][i], 4)
        W = lambda s, t: vr(FQ[fi][s]["W"][t], 4)
        o = [m16(vr(cs[t], 4), W(s, t), vr(ONES, 4)) for t in range(2) for s in range(2)]
        for i in range(4):
            o += [m16(vr(qacc[t ^ (i & 1)][i], 4), W(s, t ^ (i & 1)), X(s, i)) for t in range(2) for s in range(2)]
        return o
    va = [f"v_add_u32 v{a}, s{sRd}, v{b}" for a, b in bases]
    adv = [[f"s_add_u32 s{sRd}, s{sRd}, {STG}", f"s_cmp_eq_u32 s{sRd}, {EA}"], [f"s_cselect_b32 s{sRd}, 0, s{sRd}"]] + \
          [va[i:i + 2] for i in range(0, len(va), 2)]
    k("s_barrier")
    xstamp(k, 7)
    if OPT.get('qcyc'):
        mid_stamp(k, 0)
    for w in range(4):
        k(f"ds_read_b64 {vr(U+2*w,2)}, v{aS} offset:{16384*w}")
    for w in range(4):
        k(f"ds_read_b64 {vr(U+8+2*w,2)}, v{aP} offset:{16384*w}", f"ds_read_b64 {vr(U+16+2*w,2)}, v{aP} offset:{16384*w+2048}")
    r0 = reads(0)
    k(r0[:3], "s_waitcnt lgkmcnt(11)", weave(sum4(U) + [x for x in stats(U, 1) if x], r0[3:12], 0, 12), "s_waitcnt lgkmcnt(12)",
      weave(sum4(U + 8) + sum4(U + 16), r0[12:]))
    for e in range(2):
        k(f"v_mul_f32 v{U+8+e}, v{U}, v{U+8+e}", f"v_fmac_f32 v{U+8+e}, v{U+1}, v{U+16+e}")
    k(f"v_cvt_pk_bf16_f32 v{U+8}, v{U+8}, v{U+9}", f"ds_write_b16 v{aG0}, v{U+8}", f"ds_write_b16_d16_hi v{aG1}, v{U+8}",
      f"v_mov_b64 {vr(sxxE,2)}, {vr(U,2)}")
    k(adv, f"v_lshlrev_b32 v{aP}, 3, v{L}", "s_waitcnt lgkmcnt(0)")
    k.label("L_f_qloop")
    for f in range(2):
        k("s_barrier")
        m = weave(mfmas(f), reads(1 - f), 0, OPT.get('qw', 13))
        if f == 0:
            k(weave(m, adv + [[f"s_cmp_eq_u32 s{sN}, s{sFl}"]], len(m) - 6, len(m) - 1))
            k("s_cbranch_scc1 L_f_flag")
            k.label("L_f_flagged")
        else:
            k(weave(m, adv + [[f"s_sub_u32 s{sN}, s{sN}, 1", f"s_cmp_lg_u32 s{sN}, 0"]], len(m) - 6, len(m) - 1))
        k("s_waitcnt lgkmcnt(0)")
    k("s_cbranch_scc1 L_f_qloop")
    k("s_barrier")
    ST = [sx + 2 * i for i in range(4)]
    k(f"buffer_load_dwordx2 {vr(ST[0],2)}, v{aP}, s[{SWS}:{SWS+3}], s{sS1} offen sc1")
    k(weave(mfmas(0), reads(1), 0, 11), "s_waitcnt lgkmcnt(0)")

    def qfin(i, packed):
        o, d = [], Q[i >> 1] + 4 * (i & 1)
        for t in range(2):
            a = qacc[t][i]
            if packed:
                o += [f"v_pk_mul_f32 {vr(a+hh,2)}, {vr(a+hh,2)}, {vr(ST[i],2)} op_sel_hi:[1,0]" for hh in (0, 2)]
                o += [f"v_pk_fma_f32 {vr(a+hh,2)}, {vr(cs[t]+hh,2)}, {vr(ST[i],2)}, {vr(a+hh,2)} op_sel:[0,1,0] op_sel_hi:[1,1,1]" for hh in (0, 2)]
            else:
                o += [f"v_mul_f32 v{a+r}, v{ST[i]}, v{a+r}" for r in range(4)] + [f"v_fmac_f32 v{a+r}, v{ST[i]+1}, v{cs[t]+r}" for r in range(4)]
            o += [f"v_cvt_pk_bf16_f32 v{d+2*t}, v{a}, v{a+1}", f"v_cvt_pk_bf16_f32 v{d+2*t+1}, v{a+2}, v{a+3}"]
        return o
    m = mfmas(1)
    q0 = qfin(0, False)
    two = lambda f_: [f_(e) for e in range(2)]
    bc = [two(lambda e: f"v_mul_f32 v{ST[1]+e}, {f32(QSCALE)}, v{ST[0]+e}"), two(lambda e: f"v_mul_f32 v{ST[0]+e}, {f32(QSCALE)}, v{ST[0]+e}"), ["s_nop 0"],
          two(lambda e: f"v_permlane16_swap_b32 v{ST[0]+e}, v{ST[1]+e}"),
          two(lambda e: f"v_mov_b32 v{ST[2]+e}, v{ST[0]+e}"), two(lambda e: f"v_mov_b32 v{ST[3]+e}, v{ST[1]+e}"),
          two(lambda e: f"v_permlane32_swap_b32 v{ST[0]+e}, v{ST[2]+e}"), two(lambda e: f"v_permlane32_swap_b32 v{ST[1]+e}, v{ST[3]+e}")]
    k(m[0], f"s_mov_b32 s{sRd}, {KVB+SLOT}", m[1], f"s_mov_b32 s{sC}, 8", m[2:5], "s_waitcnt vmcnt(0)",
      weave(m[5:13], bc), weave(m[13:], q0[:14]), q0[14:])
    xstamp(k, 8)
    if OPT.get('qcyc'):
        mid_stamp(k, 1)
    k(qfin(1, True), qfin(2, True), qfin(3, True))
    for r0, n in ((S[3], 16), (VB[1], 8)):
        for i in range(0, n, 2):
            k(f"v_mov_b64 {vr(r0+i,2)}, 0")
    for p in range(2):
        for r in range(4):
            k(f"v_permlane16_swap_b32 v{Q[p]+r}, v{Q[p]+4+r}")
    k("s_branch L_f_att")
    k.label("L_f_flag")
    k(f"s_cmp_lg_u32 s{sFl}, 7", "s_cbranch_scc1 L_f_flag2")
    k(f"ds_read_b128 {vr(sxE,4)}, v{vE} offset:8192", f"v_lshlrev_b32 v{T0}, 3, v{L}",
      f"s_cmp_eq_u32 s{sHG}, 0", f"s_cselect_b32 s{sT}, s{sFg}, {OOB}",
      f"buffer_store_dwordx2 {vr(O[0],2)}, v{T0}, s[{SWS}:{SWS+3}], s{sT} offen sc1",
      f"s_and_b32 s{sT}, s{sHG}, 3", f"s_lshl_b32 s{sT}, s{sT}, 7", f"s_add_u32 s{sT}, s{sT}, s{sS1}", "s_mov_b64 exec, 0xffff",
      f"buffer_store_dwordx2 {vr(sxxE,2)}, v{T0}, s[{SWS}:{SWS+3}], s{sT} offen sc1", "s_mov_b64 exec, -1", "s_waitcnt lgkmcnt(0)",
      f"buffer_store_dwordx4 {vr(sxE,4)}, v{vKo}, s[{SKV}:{SKV+3}], s{sKV} offen sc1",
      f"s_mov_b32 s{sFl}, {OPT.get('flagit', 5)}", "s_branch L_f_flagged")
    k.label("L_f_flag2")
    k(f"s_and_b32 s{sT}, s2, 0xfc", f"v_mov_b32 v{T0}, s{sT}", f"v_mov_b32 v{T1}, 1", "s_mov_b64 exec, 1", "s_waitcnt vmcnt(0)",
      f"global_atomic_add v{T0}, v{T1}, s[{SDBG}:{SDBG+1}] sc1", "s_mov_b64 exec, -1", "s_branch L_f_flagged")
    k(island(back="L_f_back", jump=False))
    k.label("L_f_att")
    k("s_barrier")
    if not (OPT.get('qcyc') or OPT.get('ocyc')):
        mid_stamp(k, 0)
    rdK = lambda t: [f"ds_read_b128 {vr(KB[t&1]+4*m,4)}, v{vRd} offset:{(t%8)*4096+1024*m}" for m in range(2)]
    rdV = lambda t: [f"ds_read_b128 {vr(VB[t&1]+4*m,4)}, v{vRd} offset:{(t%8)*4096+2048+1024*m}" for m in range(2)]
    qk = lambda u, c="0": [m32(vr(S[u % 4], 16), vr(KB[(u >> 1) & 1], 4), vr(Q[u & 1], 4), c),
                           m32(vr(S[u % 4], 16), vr(KB[(u >> 1) & 1] + 4, 4), vr(Q[u & 1] + 4, 4))]
    pv = lambda u: [f"v_smfmac_f32_32x32x32_bf16 {vr(O[u&1],16)}, {vr(VB[(u>>1)&1]+4*m,4)}, {vr(S[u%4]+8*m,8)}, v{IDX}" for m in range(2)]
    sm = lambda u: [f"v_smfmac_f32_16x16x64_bf16 {vr(LS[u&1],4)}, {vr(SUMA,4)}, {vr(S[u%4]+8*m,8)}, v{IDX}" for m in range(2)]
    vO, aO0, aO1 = aG0, aG1, vKo
    k(rdK(0), rdV(0), rdK(1))
    k(f"s_mov_b32 s{sT}, 32768")
    for i in range(2):
        for b in range(2):
            k(f"buffer_load_dwordx4 {vr(RES[i][b],4)}, v{vRow}, s[{SX}:{SX+3}], {['0', f's{sT}'][i]} offen offset:{64*b}")
    k("s_waitcnt lgkmcnt(4)", qk(0))
    bT, aT = bX[0], aX[0]
    k(f"v_and_b32 v{T0}, 1, v{G}", f"v_lshlrev_b32 v{T0}, 10, v{T0}", f"v_lshrrev_b32 v{T1}, 5, v{L}",
      f"v_lshl_add_u32 v{T0}, v{T1}, 8, v{T0}", f"v_lshl_add_u32 v{vO}, v{TOK}, 4, v{T0}",
      f"s_lshl_b32 s{sT}, s{sW}, 12", f"s_add_u32 s{sT}, s{sT}, {XR}", f"v_add_u32 v{aO0}, s{sT}, v{vO}",
      f"s_lshl_b32 s{sT}, s{sTH}, 11", f"s_add_u32 s{sT}, s{sT}, {XR}", f"v_add_u32 v{bT}, s{sT}, v{vLin}", f"v_add_u32 v{aT}, s{sT}, v{vLin}")
    k(".p2align 6")
    k.label("L_k1_loop")
    for u in range(16):
        ex = [f"v_exp_f32 v{S[u%4]+i}, v{S[u%4]+i}" for i in range(16)]
        mf = qk(u + 1) + pv(u - 1) + sm(u - 1)
        sl = [[] for _ in range(6)]
        rd = rdV(u // 2 + 1) if u % 2 == 0 else rdK((u + 3) // 2)
        sl[4].append(rd[0]); sl[5].append(rd[1])
        if u % 2 == 0:
            sl[3].append("s_waitcnt lgkmcnt(0)")
        if u == 9:
            sl[2].append(f"s_add_u32 s{sRd}, s{sRd}, {SLOT}"); sl[3].append(f"s_cmp_eq_u32 s{sRd}, {KVB+3*SLOT}")
        if u == 10:
            sl[2].append(f"s_cselect_b32 s{sRd}, {KVB}, s{sRd}")
        if u == 13:
            sl[1].append(f"v_add_u32 v{vRd}, s{sRd}, v{vLin}")
            sl[2].append("s_waitcnt lgkmcnt(0)"); sl[3].append("s_barrier")
        if u == 15:
            sl[2].append(f"s_sub_u32 s{sC}, s{sC}, 1"); sl[3].append(f"s_cmp_lg_u32 s{sC}, 0")
        cuts = [0, 3, 6, 9, 12, 14, 16] if (u < 15 or not OPT.get("brs", 1)) else [0, 3, 7, 10, 14, 16, 16]
        for i in range(6):
            k(mf[i], sl[i], ex[cuts[i]:cuts[i + 1]])
    k("s_cbranch_scc1 L_k1_loop")
    if not (OPT.get('qcyc') or OPT.get('ocyc')):
        mid_stamp(k, 1)
    vO, aO0, aO1 = aG0, aG1, vKo
    PK = [KB[0], VB[1]]

    def check(q):
        o = [f"v_maximum3_f32 v{T0}, abs(v{O[q]}), abs(v{O[q]+1}), v{LS[q]}", f"v_maximum3_f32 v{T1}, abs(v{O[q]+2}), abs(v{O[q]+3}), abs(v{O[q]+4})"]
        for i in range(5, 15, 2):
            t = [T0, T1][(i // 2) & 1]
            o.append(f"v_maximum3_f32 v{t}, abs(v{O[q]+i}), abs(v{O[q]+i+1}), v{t}")
        o += [f"v_maximum3_f32 v{T0}, abs(v{O[q]+15}), v{T1}, v{T0}",
              f"v_cmp_nle_f32 vcc, {f32(2.0**-80)}, v{LS[q]}", f"s_mov_b64 s[70:71], vcc",
              f"v_cmp_nge_f32 vcc, {f32(2.0**100)}, v{T0}", f"s_or_b64 s[70:71], s[70:71], vcc",
              "s_branch L_k1_slow" if OPT["force_slow"] == q + 1 else None, "s_cbranch_scc1 L_k1_slow"]
        return o

    def out(q):
        o = [f"v_rcp_f32 v{LS[q]}, v{LS[q]}", "s_nop 0"]
        for m in range(2):
            d = PK[q] + 4 * m
            o += [f"v_pk_mul_f32 {vr(O[q]+8*m+i,2)}, {vr(O[q]+8*m+i,2)}, {vr(LS[q],2)} op_sel_hi:[1,0]" for i in range(0, 8, 2)]
            o += [f"v_cvt_pk_bf16_f32 v{d+i}, v{O[q]+8*m+2*i}, v{O[q]+8*m+2*i+1}" for i in range(4)]
            o.append(f"buffer_store_dwordx4 {vr(d,4)}, v{vO}, s[{SWS}:{SWS+3}], s{sOo} offen offset:{2048*q+512*m} sc1")
        return o
    k(pv(15), sm(15), "s_nop 9", check(0), out(0), check(1))
    k.label("L_k1_out")
    k(out(1))
    for q in range(2):
        for m in range(2):
            k(f"ds_write_b128 v{aO0}, {vr(PK[q]+4*m,4)} offset:{2048*q+512*m}")
    k("s_branch L_f_oproj")
    k(island(back="L_f_back2", jump=False))
    k.label("L_f_oproj")
    k("s_waitcnt vmcnt(4)")
    for i in range(2):
        for b in range(2):
            k(f"v_permlane16_swap_b32 v{RES[i][b]}, v{RES[i][b]+2}", f"v_permlane16_swap_b32 v{RES[i][b]+1}, v{RES[i][b]+3}")
    sig = lambda h: ["s_mov_b64 exec, 1", "s_waitcnt vmcnt(0)", f"buffer_atomic_add v{T0}, off, s[{SWS}:{SWS+3}], s{sFg} offset:{256*h} sc1", "s_mov_b64 exec, -1"]
    k(f"v_mov_b32 v{T0}, 1", f"s_cmp_ge_u32 s{sHG}, 4", "s_cbranch_scc1 L_f_sig0", sig(0))
    k.label("L_f_sig0")
    k(f"s_mov_b32 s{sRd}, 0", "s_waitcnt lgkmcnt(0)", "s_barrier")

    def oreads(fi):
        o = [f"ds_read_b128 {vr(F[fi][s]['X'][i],4)}, v{aT} offset:{s*4096+i*1024}" for s in range(2) for i in range(2)]
        for s in range(2):
            for t in range(4):
                for j in range(2):
                    o.append(f"ds_read_b64_tr_b16 {vr(F[fi][s]['W'][t]+2*j,2)}, v{aW[t]} offset:{s*8192+j*1024}")
        return o

    def omf(fi, s):
        return [m16(vr(acc[t][i ^ (t & 1)], 4), vr(F[fi][s]["W"][t], 4), vr(F[fi][s]["X"][i ^ (t & 1)], 4)) for t in range(4) for i in range(2)]
    oadv = [[f"s_add_u32 s{sRd}, s{sRd}, 16384", f"s_and_b32 s{sRd}, s{sRd}, 0x1ffff"], [f"s_bfe_u32 s{sRx}, s{sRd}, 0xf0001", f"v_add_u32 v{aW[0]}, s{sRd}, v{bW[0]}"],
            [f"v_add_u32 v{aW[t]}, s{sRd}, v{bW[t]}" for t in (1, 2)], [f"v_add_u32 v{aW[3]}, s{sRd}, v{bW[3]}", f"v_add_u32 v{aT}, s{sRx}, v{bT}"]]

    def ostep(f, adv_, extra=()):
        r = oreads(1 - f)
        sl = [[] for _ in range(16)]
        for i, x in enumerate(r[:12]):
            sl[(i * 8) // 12].append(x)
        for i, x in enumerate(r[12:]):
            sl[8 + i].append(x)
        if adv_:
            sl[1].append(f"s_add_u32 s{sRd}, s{sRd}, 16384"); sl[3].append(f"s_and_b32 s{sRd}, s{sRd}, 0x1ffff")
            sl[5].append(f"s_bfe_u32 s{sRx}, s{sRd}, 0xf0001"); sl[8].append(f"v_add_u32 v{aT}, s{sRx}, v{bT}")
            for t in range(4):
                sl[9 + 2 * t].append(f"v_add_u32 v{aW[t]}, s{sRd}, v{bW[t]}")
        for i, x in enumerate(extra):
            sl[10 + 2 * i].append(x)
        sl[7].append("s_waitcnt lgkmcnt(12)"); sl[15].append("s_waitcnt lgkmcnt(8)")
        for m, e in zip(omf(f, 0) + omf(f, 1), sl):
            k(m, e)
    if OPT.get("ocyc"):
        mid_stamp(k, 0)
    k(oreads(0), oadv)
    for i in range(2):
        for b in range(2):
            for jt in range(2):
                for hh in range(2):
                    a, r = acc[2 * b + jt][i] + 2 * hh, RES[i][b] + 2 * jt + hh
                    k(f"v_lshlrev_b32 v{a}, 16, v{r}", f"v_and_b32 v{a+1}, 0xffff0000, v{r}")
    k(f"s_cmp_lt_u32 s{sHG}, 4", "s_cbranch_scc1 L_f_sig1", sig(1))
    k.label("L_f_sig1")
    xstamp(k, 9)
    k(f"s_lshl_b32 s{sT}, s{sTB}, 1", f"s_add_u32 s{sT}, s{sT}, s{sTH}", f"s_lshl_b32 s{sT}, s{sT}, 12",
      f"s_lshl_b32 s{sT2}, s{sHG}, 1", f"s_add_u32 s{sT2}, s{sT2}, s{sCH}", f"s_lshl_b32 s{sT2}, s{sT2}, 8",
      f"s_add_u32 s{sT}, s{sT}, s{sT2}", f"s_add_u32 s{sFg}, s{sT}, {STP}", f"s_mov_b32 s{sN}, 7", "s_waitcnt lgkmcnt(0)")
    k.label("L_f_oloop")
    k("s_barrier")
    ostep(0, True)
    k("s_barrier")
    ostep(1, True, [f"s_sub_u32 s{sN}, s{sN}, 1", f"s_cmp_lg_u32 s{sN}, 0"])
    k("s_cbranch_scc1 L_f_oloop")
    k("s_barrier")
    ostep(0, False)
    k(omf(1, 0), "s_waitcnt lgkmcnt(0)", omf(1, 1), "s_nop 3")
    if OPT.get("ocyc"):
        mid_stamp(k, 1)
    SUM = [O[0], O[0] + 4]
    for b in range(2):
        for i in range(2):
            o = Q[b] + 4 * i
            for jt in range(2):
                a = acc[2 * b + jt][i]
                k(f"v_cvt_pk_bf16_f32 v{o+2*jt}, v{a}, v{a+1}", f"v_cvt_pk_bf16_f32 v{o+2*jt+1}, v{a+2}, v{a+3}")
        k("s_nop 0")
        for i in range(2):
            o = Q[b] + 4 * i
            k(f"v_permlane16_swap_b32 v{o}, v{o+2}", f"v_permlane16_swap_b32 v{o+1}, v{o+3}",
              f"buffer_store_dwordx4 {vr(o,4)}, v{vHo}, s[{SWS}:{SWS+3}], s{[sH0,sH1][b]} offen offset:{1024*i} sc1")
    for t in range(4):
        for hh in (0, 2):
            for i in range(2):
                a = vr(acc[t][i] + hh, 2)
                if t == 0 and hh == 0:
                    k(f"v_pk_mul_f32 {vr(SUM[i]+2,2)}, {a}, {a}")
                else:
                    src = vr(acc[0][i], 2) if (t == 0 and hh == 2) else vr(SUM[i], 2)
                    k(f"v_pk_add_f32 {vr(SUM[i],2)}, {src}, {a}", f"v_pk_fma_f32 {vr(SUM[i]+2,2)}, {a}, {a}, {vr(SUM[i]+2,2)}")
    for i in range(2):
        k(f"v_add_f32 v{SUM[i]}, v{SUM[i]}, v{SUM[i]+1}", f"v_add_f32 v{SUM[i]+1}, v{SUM[i]+2}, v{SUM[i]+3}")
    k(f"v_lshrrev_b32 v{T0}, 6, v{vHo}", f"v_permlane32_swap_b32 v{SUM[0]}, v{SUM[0]+1}", f"v_permlane32_swap_b32 v{SUM[1]}, v{SUM[1]+1}", "s_nop 0",
      f"v_add_f32 v{SUM[0]}, v{SUM[0]}, v{SUM[0]+1}", f"v_add_f32 v{SUM[1]}, v{SUM[1]}, v{SUM[1]+1}",
      f"v_and_b32 v{T0}, 12, v{T0}", f"v_lshl_add_u32 v{T0}, v{TOK}, 4, v{T0}",
      f"v_permlane16_swap_b32 v{SUM[0]}, v{SUM[1]}", "s_nop 0",
      f"v_add_f32 v{SUM[0]}, v{SUM[0]}, v{SUM[1]}",
      f"buffer_store_dword v{SUM[0]}, v{T0}, s[{SWS}:{SWS+3}], s{sFg} offen sc1")
    tail(k, 0, sW)
    k(island(back="L_f_back", jump=False))
    k.label("L_f_setup")
    if OPT.get("isl", 1):
        k(f"s_cmp_eq_u32 s{sW}, 0", f"s_cbranch_scc1 L_isl{ISL[0][0]}", f"s_cmp_eq_u32 s{sW}, 1", f"s_cbranch_scc1 L_isl{ISL[1][0]}")
    k.label("L_f_back")
    k("s_waitcnt lgkmcnt(0)", ws_shift(SWS), srd_tail(SWS, WS_SZ), srd_from(SKV, SWS, KVF, 262144))
    k(f"s_lshl_b32 s{sGW}, s2, 2", f"s_add_u32 s{sGW}, s{sGW}, s{sW}",
      f"s_lshl_b32 s{sWrJ}, s{sW}, 12", f"s_add_u32 s{sWrJ}, s{sWrJ}, {JB}")
    k(f"v_lshrrev_b32 v{T0}, 4, v{L}", f"v_lshlrev_b32 v{T0}, 10, v{T0}", f"v_bfe_u32 v{T1}, v{L}, 2, 2", f"v_lshl_add_u32 v{T0}, v{T1}, 7, v{T0}",
      f"v_bfe_u32 v{T1}, v{L}, 3, 1", f"v_lshl_add_u32 v{T0}, v{T1}, 6, v{T0}", f"v_add_u32 v{T0}, s{sWrJ}, v{T0}", f"v_and_b32 v{T1}, 3, v{L}",
      f"v_lshl_add_u32 v{bJ[0]}, v{T1}, 4, v{T0}", f"v_xor_b32 v{bJ[1]}, 64, v{bJ[0]}")
    strip, kb0, mat = 66, 67, 68
    k(f"s_lshr_b32 s{strip}, s{sGW}, 3", f"s_and_b32 s{kb0}, s{sGW}, 7", f"s_lshl_b32 s{kb0}, s{kb0}, 2",
      f"s_cmp_ge_u32 s{strip}, 112", "s_cbranch_scc1 L_k1_wo")
    if "jskip" in OPT:
        k(f"s_and_b32 s{sT}, s2, 1", f"s_cmp_eq_u32 s{sT}, {OPT['jskip']}", "s_cbranch_scc1 L_k1_wo")
    k(f"s_cmp_ge_u32 s{strip}, 56", f"s_cselect_b32 s{mat}, 1, 0",
      f"s_cselect_b32 s{SJ}, s26, s24", f"s_cselect_b32 s{SJ+1}, s27, s25",
      f"s_mul_i32 s{sT}, s{mat}, 56", f"s_sub_u32 s{strip}, s{strip}, s{sT}",
      f"s_mov_b32 s{SJ+2}, {1024*7168}", f"s_mov_b32 s{sStr}, 7168", f"s_mov_b32 s{sDstep}, {14*1024}",
      f"s_mov_b32 s{sBsz}, {3584*2048}",
      f"v_lshl_add_u32 v{aJ[0]}, v{T1}, 3, v{T0}")
    for i in range(1, 4):
        k(f"v_xor_b32 v{aJ[i]}, {32*i}, v{aJ[0]}")
    for i in range(4):
        T, fb, pos = 69, 70, 71
        k(f"s_lshl_b32 s{T}, s{strip}, 2", f"s_add_u32 s{T}, s{T}, {i}",
          f"s_mul_i32 s{fb}, s{T}, 9363", f"s_lshr_b32 s{fb}, s{fb}, 16",
          f"s_sub_u32 s{pos}, s{mat}, s{fb}", f"s_mul_i32 s{pos}, s{pos}, 7", f"s_add_u32 s{pos}, s{T}, s{pos}",
          f"s_lshl_b32 s{sT}, s{fb}, 5", f"s_add_u32 s{sT}, s{sT}, s{kb0}", f"s_mul_i32 s{sT}, s{sT}, 14",
          f"s_add_u32 s{sT}, s{sT}, s{pos}", f"s_lshl_b32 s{sT}, s{sT}, 10", f"s_add_u32 s{sD[i]}, s{sT}, {WGU}",
          f"s_lshl_b32 s{sT}, s{kb0}, 3", f"s_add_u32 s{sT}, s{sT}, s{fb}", f"s_mul_i32 s{sT}, s{sT}, 14",
          f"s_add_u32 s{sT}, s{sT}, s{pos}", f"s_lshl_b32 s{sT}, s{sT}, 6", f"s_add_u32 s{sCs[i]}, s{sT}, {CSP}")
    k("s_branch L_k1_jp")
    k.label("L_k1_wo")
    k(f"s_mov_b32 s{SJ}, s24", f"s_mov_b32 s{SJ+1}, s25", f"s_mov_b32 s{SJ+2}, 0", f"s_mov_b32 s{sStr}, 2048", f"s_mov_b32 s{sDstep}, 0", f"s_mov_b32 s{sBsz}, 0")
    for i in range(4):
        k(f"s_mov_b32 s{sD[i]}, {OOB}", f"s_mov_b32 s{sCs[i]}, {OOB}", f"v_mov_b32 v{aJ[i]}, v{bJ[0]}")
    k.label("L_k1_jp")
    k(f"s_mov_b32 s{SJ+3}, 0x00020000")
    k(f"v_lshrrev_b32 v{T0}, 3, v{L}", f"v_bfe_u32 v{T1}, v{L}, 4, 1", f"v_lshlrev_b32 v{T1}, 2, v{T1}",
      f"v_and_b32 v{T2}, 7, v{L}", f"v_xor_b32 v{T1}, v{T1}, v{T2}", f"v_lshlrev_b32 v{T1}, 4, v{T1}",
      f"v_mul_lo_u32 v{vJ}, v{T0}, s{sStr}", f"v_lshl_add_u32 v{vJB}, v{T0}, 11, v{T1}", f"v_add_u32 v{vJ}, v{vJ}, v{T1}",
      f"s_lshl_b32 s{sT}, s{kb0}, 5", f"s_mul_i32 s{sT}, s{sT}, s{sStr}", f"s_lshl_b32 s{sT2}, s{strip}, 7", f"s_add_u32 s{sT}, s{sT}, s{sT2}",
      f"v_add_u32 v{vJ}, s{sT}, v{vJ}",
      f"s_lshl_b32 s{sT}, s{sStr}, 3", f"s_sub_u32 s{sJa}, s{sT}, 1024", f"s_add_u32 s{sJb}, s{sT}, 3072", f"s_mov_b32 s{sJo}, 0")
    k(f"s_mul_i32 s{strip}, s{sGW}, 1171", f"s_lshr_b32 s{strip}, s{strip}, 16",
      f"s_mul_i32 s{sT}, s{strip}, 56", f"s_sub_u32 s{kb0}, s{sGW}, s{sT}", f"s_lshl_b32 s{kb0}, s{kb0}, 1",
      f"s_cmp_ge_u32 s{kb0}, 48", f"s_cselect_b32 s69, 48, 0", f"s_cselect_b32 s70, 8, 0", f"s_sub_u32 s69, s{kb0}, s69",
      f"s_and_b32 s71, s69, 7", f"s_add_u32 s70, s70, s71", f"s_lshr_b32 s69, s69, 3",
      f"s_sub_u32 s71, s{kb0}, 96", f"s_cmp_ge_u32 s{kb0}, 96", f"s_cselect_b32 s69, 6, s69", f"s_cselect_b32 s70, s71, s70",
      f"s_mul_i32 s70, s70, 14", f"s_add_u32 s{sT}, s70, s69", f"s_lshl_b32 s{sT}, s{sT}, 15",
      f"s_lshl_b32 s{sT2}, s{strip}, 7", f"s_add_u32 s{sT}, s{sT}, s{sT2}",
      f"v_add_u32 v{vJB}, s{sT}, v{vJB}",
      f"s_lshr_b32 s{sT}, s{strip}, 1", f"s_mul_i32 s{sT}, s{sT}, 112", f"s_add_u32 s{sT}, s{sT}, s{kb0}", f"s_lshl_b32 s{sT}, s{sT}, 1",
      f"s_and_b32 s{sT2}, s{strip}, 1", f"s_add_u32 s{sT}, s{sT}, s{sT2}", f"s_lshl_b32 s{sT}, s{sT}, 12",
      f"s_add_u32 s{sDB}, s{sT}, {WDF}", f"s_cmp_eq_u32 s{sBsz}, 0", f"s_cselect_b32 s{sDB}, {OOB}, s{sDB}")
    k(f"v_and_b32 v{T0}, 15, v{L}", f"v_cmp_eq_u32 vcc, 0, v{T0}", f"v_mov_b32 v{T1}, {OOB}", "s_nop 0",
      f"v_cndmask_b32 v{vCs}, v{T1}, v{L}, vcc")
    for i in range(4):
        k(f"v_mov_b32 v{ONES+i}, 0x3f803f80")
    k(f"v_lshlrev_b32 v{vPo}, 2, v{L}")
    if OPT.get("hprof"):
        k("v_writelane_b32 v200, s92, 0", "s_mov_b32 s86, 5")
    hstamp(k, 1)
    k("s_barrier")
    hstamp(k, 2)
    npre = OPT.get("npre", 2)
    for n in range(npre):
        q_x(n * STG); q_w(n * STG)
    hstamp(k, 3)
    k(f"s_waitcnt vmcnt({6*(npre-1)})", "s_barrier")
    hstamp(k, 4)
    for n in range(npre, 4):
        q_x(n * STG); q_w(n * STG)
    k("s_waitcnt vmcnt(12)", "s_barrier")
    k.label("L_f_ld2")
    if OPT.get("hprof"):
        k("s_mov_b32 m0, s86", "s_add_u32 s86, s86, 1")
    hstamp(k, "m0")
    q_stage()
    k(f"s_cmp_lg_u32 s{sN}, 0", f"s_waitcnt vmcnt({6*D})", "s_barrier", "s_cbranch_scc1 L_f_ld2")
    hstamp(k, 17)
    poll = f"global_load_dword v{PF4}, v{vPo}, s[{SDBG}:{SDBG+1}] sc1"
    k(f"s_lshl_b32 s{sKo}, s{sW}, 13", f"s_add_u32 s{sWr}, s{sKo}, {KVB}", f"s_mov_b32 s{sN}, {1<<20}")
    if OPT.get("kvrot", 0):
        k(f"s_bfe_u32 s{sT}, s2, {0x30003 if OPT.get('kvrot', 1) == 1 else 0x30000}", f"s_lshl_b32 s{sT}, s{sT}, 15", f"s_add_u32 s{sKo}, s{sKo}, s{sT}")
    k(f"s_cmp_eq_u32 s{sW}, 0", "s_cbranch_scc1 L_f_poll0", "s_waitcnt vmcnt(6)", "s_barrier", "s_waitcnt vmcnt(0)", "s_branch L_f_polled")
    k.label("L_f_poll0")
    k(poll, "s_waitcnt vmcnt(7)", "s_barrier")
    k.label("L_f_poll")
    k("s_waitcnt vmcnt(0)", f"v_cmp_ne_u32 vcc, 4, v{PF4}", f"s_sub_u32 s{sN}, s{sN}, 1", "s_cbranch_scc1 L_f_polled",
      "s_cbranch_vccz L_f_polled", "s_sleep 2", poll, "s_branch L_f_poll")
    k.label("L_f_polled")
    hstamp(k, 18)
    k("s_barrier")
    hstamp(k, 19)

    def kv_dma(c):
        o = []
        for hh in range(2):
            o += [f"s_add_u32 m0, s{sWr}, {((c+1)%3)*SLOT+4096*hh}", "s_nop 0"]
            for i in range(4):
                o.append(f"buffer_load_dwordx4 v{vLin}, s[{SKV}:{SKV+3}], s{sKo} offen offset:{1024*i} sc1 lds")
            o.append(f"s_add_u32 s{sKo}, s{sKo}, {4096 if hh == 0 else 32768-4096}")
        o.append(f"s_and_b32 s{sKo}, s{sKo}, 0x3ffff")
        return o
    k(kv_dma(0))
    hstamp(k, 20)
    k([kv_dma(1), "s_waitcnt vmcnt(8)"] if OPT.get("kv1", 0) else "s_waitcnt vmcnt(0)")
    hstamp(k, 21)
    k("s_barrier")
    hstamp(k, 22)
    vm = []

    def wait_for(*tag):
        n = len(vm) - 1 - max(i for i, t in enumerate(vm) if t in tag)
        return f"s_waitcnt vmcnt({n})"
    vm += ["kv1"] * 8
    k(f"s_mov_b32 s{SWQ}, s20", f"s_mov_b32 s{SWQ+1}, s21",
      f"s_lshl_b32 s{sBW}, s{sTH}, 1", f"s_add_u32 s{sBW}, s{sBW}, s{sCH}", f"s_lshl_b32 s{sBW}, s{sBW}, 10",
      f"s_lshl_b32 s{sRd}, s{sW}, 11", f"s_lshl_b32 s{sOo}, s{sTB}, 17", f"s_add_u32 s{sOo}, s{sOo}, s{sRd}", f"s_add_u32 s{sOo}, s{sOo}, {OF}")
    if not OPT.get("kv1", 0):
        k(kv_dma(1))

    def kstage(n, sh):
        if n < 2:
            return [f"s_lshl_b32 s{sT}, s{sHG}, {sh+1}", f"s_add_u32 s{sT}, s{sT}, {n<<sh}"]
        i = n >> 1
        if i == 4:
            return [f"s_xor_b32 s{sT}, s{sHG}, 4", f"s_lshl_b32 s{sT}, s{sT}, {sh+1}", f"s_add_u32 s{sT}, s{sT}, {(n&1)<<sh}"]
        return [f"s_add_u32 s{sT}, s{sHG}, {i}", f"s_and_b32 s{sT}, s{sT}, 3", f"s_lshl_b32 s{sT}, s{sT}, {sh+1}",
                f"s_add_u32 s{sT}, s{sT}, {((n&1) + (8 if i > 4 else 0))<<sh}"]

    def o_w(n, pieces=range(4)):
        k(kstage(n, 17))
        for i in pieces:
            k(f"s_add_u32 m0, s{sBW}, {(n%8)*16384+4096*i}", "s_nop 0", f"buffer_load_dwordx4 v{vW[i]}, s[{SWQ}:{SWQ+3}], s{sT} offen lds")
        vm.extend([f"w{n}"] * len(pieces))

    def o_x(n):
        k(kstage(n, 13), f"s_add_u32 m0, s{sRd}, {XR+(n%4)*8192}", f"s_add_u32 s{sT}, s{sT}, s{sOo}")
        for i in range(2):
            k(f"buffer_load_dwordx4 v{vLin}, s[{SWS}:{SWS+3}], s{sT} offen offset:{1024*i} sc1 lds")
        vm.extend([f"x{n}"] * 2)
    for c in range(8):
        if c + 2 < 8:
            k(kv_dma(c + 2)); vm += [f"kv{c+2}"] * 8
        if c < (3 if OPT.get("s4", 0) else 1):
            k(f"s_lshl_b32 s{sT}, s{sGW}, 12", f"s_add_u32 s{sT}, s{sT}, {XB4[c+1]}", f"v_mov_b64 {vr(PF4,2)}, -1", f"v_mov_b64 {vr(PF4+2,2)}, -1")
            for i in range(4):
                k(f"buffer_store_dwordx4 {vr(PF4,4)}, v{vLin}, s[{SWS}:{SWS+3}], s{sT} offen offset:{1024*i} sc1")
            vm += ["st"] * 4
        if c == 3:
            k(f"s_lshl_b32 s{sT}, s{sGW}, 10", f"s_add_u32 s{sT}, s{sT}, {FL2}", f"s_cmp_lt_u32 s{sGW}, 8", f"s_cselect_b32 s{sT}, s{sT}, {OOB}",
              f"v_mov_b64 {vr(PF4,2)}, 0", f"v_mov_b64 {vr(PF4+2,2)}, 0",
              f"buffer_store_dwordx4 {vr(PF4,4)}, v{vLin}, s[{SWS}:{SWS+3}], s{sT} offen sc1")
            vm += ["st"]
        j = c - 1
        proc = 0 <= j < 6 and not OPT.get("nojob")
        if proc:
            k(wait_for(f"j{j}"))
            for f in range(4):
                for jj in range(2):
                    if j < 4:
                        k(f"ds_read_b64_tr_b16 {vr(JF[f]+2*jj,2)}, v{aJ[f]} offset:{jj*512}")
                    else:
                        k(f"ds_read_b64_tr_b16 {vr(JF[f]+2*jj,2)}, v{bJ[f>>1]} offset:{jj*512+(f&1)*8}")
            k("s_waitcnt lgkmcnt(0)")
        if c < 6 and not OPT.get("nojob"):
            if c == 4:
                k(f"s_mov_b32 s{SJ}, s28", f"s_mov_b32 s{SJ+1}, s29", f"s_mov_b32 s{SJ+2}, s{sBsz}",
                  f"s_mov_b32 s{sJo}, 0")
            k(f"s_mov_b32 m0, s{sWrJ}", "s_nop 0")
            for i in range(4):
                k(f"buffer_load_dwordx4 v{vJ if c < 4 else vJB}, s[{SJ}:{SJ+3}], s{sJo} offen offset:{1024*i}{' nt' if OPT.get('jnt', 0) else ''} lds",
                  f"s_add_u32 s{sJo}, s{sJo}, " + (f"s{sJa if i < 3 else sJb}" if c < 4 else str([8, 104, 8, 104][i] * 2048 + (-1024 if i < 3 else 3072))))
            vm += [f"j{c}"] * 4
        if proc:
            for f in range(4):
                if j < 4:
                    k(f"buffer_store_dwordx4 {vr(JF[f],4)}, v{vLin}, s[{SWS}:{SWS+3}], s{sD[f]} offen sc1",
                      f"s_add_u32 s{sD[f]}, s{sD[f]}, s{sDstep}",
                      m16(vr(CS[f], 4), vr(JF[f], 4), vr(ONES, 4), "0" if j == 0 else None))
                else:
                    k(f"buffer_store_dwordx4 {vr(JF[f],4)}, v{vLin}, s[{SWS}:{SWS+3}], s{sDB} offen offset:{1024*f} sc1")
            vm += ["st"] * 4
            if j == 4:
                k(f"s_add_u32 s{sDB}, s{sDB}, 8192")
                for f in range(4):
                    k(f"buffer_store_dwordx4 {vr(CS[f],4)}, v{vCs}, s[{SWS}:{SWS+3}], s{sCs[f]} offen sc1")
                vm += ["st"] * 4
        for n in {5: [0, 2, 3], 6: [4, 5], 7: [1, 6, 7]}.get(c, []):
            o_w(n)
        if c == 1 and OPT.get("isl", 1):
            k(f"s_branch L_isl{[n for n, b in ISL if b == 'L_f_back2'][0]}")
            k.label("L_f_back2")
        if c == 5:
            k(f"s_lshr_b32 s{sT}, s2, 3", f"s_lshl_b32 s{sT}, s{sT}, 11", f"v_and_b32 v{T0}, 255, v0", f"v_lshlrev_b32 v{T0}, 3, v{T0}",
              f"v_add_u32 v{T0}, s{sT}, v{T0}")
            k(f"s_getpc_b64 s[22:23]")
            k.label("L_f_pc2")
            k("s_add_u32 s22, s22, L_code_rest-L_f_pc2", "s_addc_u32 s23, s23, 0",
              f"v_min_u32 v{T0}, L_code_end-L_code_rest-4, v{T0}", f"global_load_dword v{PF4}, v{T0}, s[22:23]")
            vm.append("pf")
        if c == 6:
            k(f"s_and_b32 s{sT}, s{sTB}, 7", f"s_add_u32 s{sT}, s{sT}, 8", f"s_lshr_b32 s{sT2}, s{sT}, 1", f"s_cmp_eq_u32 s{sHG}, s{sT2}",
              f"s_cselect_b32 s{sT2}, 8, 0", f"s_sub_u32 s{sT}, s{sT}, s{sT2}", f"s_lshl_b32 s{sT}, s{sT}, 17")
            for i in range(4):
                k(f"buffer_load_dwordx4 {vr(PF4,4)}, v{vW[i]}, s[{SWQ}:{SWQ+3}], s{sT} offen")
            vm.extend(["pf"] * 4)
        if c + 1 < 8:
            k(wait_for(f"kv{c+1}"))
        k("s_barrier")
    k(f"s_lshl_b32 s{sKo}, s{sTB}, 9", f"s_add_u32 s{sKo}, s{sKo}, {FLG}", f"s_mov_b32 s{sN}, {1<<20}", "s_waitcnt vmcnt(0)")
    hstamp(k, 23)
    look = lambda h: f"buffer_load_dword v{PF4}, off, s[{SWS}:{SWS+3}], s{sKo} offset:{256*h} sc1"
    ask = lambda h, r=0: ["s_mov_b64 exec, 1", f"v_mov_b32 v{PF4+r}, 0", f"buffer_atomic_add v{PF4+r}, off, s[{SWS}:{SWS+3}], s{sKo} offset:{256*h} sc0 sc1", "s_mov_b64 exec, -1"]
    NP = OPT.get("np", 3)

    def gate(h, wait, tag=""):
        op = f"L_f_open{h}{tag}"
        k(wait, f"v_readfirstlane_b32 s{sT}, v{PF4}", "s_nop 0", f"s_cmp_ge_u32 s{sT}, s{sStr}", f"s_cbranch_scc1 {op}")
        for r in range(NP - 1):
            k(ask(h, r), f"s_sleep {OPT.get('pgap', 3)}")
        k.label(f"L_f_gate{h}{tag}")
        for r in range(NP):
            k(ask(h, (r - 1) % NP), f"s_waitcnt vmcnt({NP-1})", f"v_readfirstlane_b32 s{sT}, v{PF4+r}", "s_nop 0",
              f"s_cmp_ge_u32 s{sT}, s{sStr}", f"s_cbranch_scc1 {op}")
        k(f"s_sub_u32 s{sN}, s{sN}, 1", f"s_cbranch_scc0 L_f_gate{h}{tag}")
        k.label(op)
    k(f"v_mov_b32 v{PF4}, 0", f"s_cmp_lt_u32 s{sHG}, 4", "s_cbranch_scc1 L_f_late", f"s_sleep {OPT['odl']}" if OPT.get('odl') else None, ask(0), "s_waitcnt vmcnt(0)",
      f"v_readfirstlane_b32 s{sT}, v{PF4}", "s_nop 0", f"s_cmp_lt_u32 s{sT}, 16", "s_cbranch_scc1 L_f_late")
    o_x(2); o_x(3)
    del vm[-4:]
    hstamp(k, 24)
    k("s_barrier")
    hstamp(k, 25)
    k("s_branch L_f_both")
    k.label("L_f_late")
    k(f"s_cmp_eq_u32 s{sW}, 0", f"s_cselect_b32 s{sStr}, 16, 0")
    gate(0, None)
    hstamp(k, 24)
    k("s_barrier")
    hstamp(k, 25)
    o_x(2); o_x(3)
    k.label("L_f_both")
    k(f"s_cmp_eq_u32 s{sW}, 0", f"s_cselect_b32 s{sKo}, s{sKo}, {OOB}", f"s_cselect_b32 s{sStr}, 16, 0",
      f"s_cmp_lt_u32 s{sHG}, 4", f"s_cselect_b32 s{sJa}, {OOB}, s{sKo}", f"s_cselect_b32 s{sJb}, 0, s{sStr}",
      f"s_cselect_b32 s{sKo}, s{sKo}, {OOB}", f"s_cselect_b32 s{sStr}, s{sStr}, 0")
    k("s_barrier")
    G2 = OPT.get("g2", 3)
    for n in range(1, 15):
        if n + 3 < 16:
            o_x(n + 3)
        if n in (G2, G2 + 2):
            k(look(1) if OPT.get("lk", 1) else ask(1)); vm.append("ask")
        cum = [[0, 0, 3, 5, 8, 10, 13, 15, 18, 20, 23, 25, 28, 32, 32], [0, 0, 3, 6, 9, 12, 15, 18, 21, 24, 27, 30, 32, 32, 32]][OPT.get("wsch", 1)]
        for m in range(8, 16):
            pcs = [q for q in range(4) if cum[n - 1] <= 4 * (m - 8) + q < cum[n]]
            if pcs:
                assert m - 6 <= n <= m - 2
                o_w(m, pcs)
        if n == 4:
            gate(1, wait_for("ask"))
            k(f"s_mov_b32 s{sKo}, s{sJa}", f"s_mov_b32 s{sStr}, s{sJb}")
        if n == 6:
            gate(1, wait_for("ask"), "b")
        k(wait_for(f"x{n+1}", f"w{n+1}"), "s_barrier")
        if n in (1, 4, 6, 9, 14):
            hstamp(k, 26 + (1, 4, 6, 9, 14).index(n))
    if OPT.get("hprof"):
        k(f"s_lshl_b32 s{sT}, s{sGW}, 7", f"s_add_u32 s{sT}, s{sT}, {STAMP+2*MB}", f"v_lshlrev_b32 v{T0}, 2, v{L}", "s_mov_b64 exec, 0xffffffff",
          f"buffer_store_dword v200, v{T0}, s[{SWS}:{SWS+3}], s{sT} offen")
    hop(k, sW)
    k.label("L_k1_slow")
    k("s_waitcnt vmcnt(0) lgkmcnt(0)", "s_nop 15")
    C = [S[2], S[3]]
    ldK = [f"buffer_load_dwordx4 {vr(KB[0]+4*m,4)}, v{vLin}, s[{SKV}:{SKV+3}], s{sKo} offen offset:{1024*m} sc1" for m in range(2)]
    ldV = [f"buffer_load_dwordx4 {vr(VB[0]+4*m,4)}, v{vLin}, s[{SKV}:{SKV+3}], s{sKo} offen offset:{2048+1024*m} sc1" for m in range(2)]
    k(f"v_mov_b32 v{T0}, 0xff800000", f"v_mov_b32 v{T1}, 0xff800000", f"s_mov_b32 s{sKo}, 0")
    k.label("L_k1_s1")
    k(ldK, "s_waitcnt vmcnt(0)", qk(0), qk(1), "s_nop 15")
    for q in range(2):
        for i in range(0, 16, 2):
            k(f"v_max3_f32 v{[T0,T1][q]}, v{S[q]+i}, v{S[q]+i+1}, v{[T0,T1][q]}")
    k(f"s_add_u32 s{sKo}, s{sKo}, 4096", f"s_cmp_lt_u32 s{sKo}, 262144", "s_cbranch_scc1 L_k1_s1")
    for q in range(2):
        t = [T0, T1][q]
        k(f"v_mov_b32 v{T2}, v{t}", "s_nop 1", f"v_permlane32_swap_b32 v{t}, v{T2}", "s_nop 1", f"v_max_f32 v{t}, v{t}, v{T2}")
        for i in range(16):
            k(f"v_sub_f32 v{C[q]+i}, 0, v{t}", f"v_mov_b32 v{O[q]+i}, 0")
        for i in range(4):
            k(f"v_mov_b32 v{LS[q]+i}, 0")
    k(f"s_mov_b32 s{sKo}, 0")
    k.label("L_k1_s2")
    k(ldK, ldV, "s_waitcnt vmcnt(0)", qk(0, vr(C[0], 16)), qk(1, vr(C[1], 16)), "s_nop 15")
    for q in range(2):
        for i in range(16):
            k(f"v_exp_f32 v{S[q]+i}, v{S[q]+i}")
    k("s_nop 1", pv(0), sm(0), pv(1), sm(1))
    k(f"s_add_u32 s{sKo}, s{sKo}, 4096", f"s_cmp_lt_u32 s{sKo}, 262144", "s_cbranch_scc1 L_k1_s2")
    k("s_nop 15", "s_nop 7", out(0), "s_branch L_k1_out")
    return k


def k_gemm(name, kidx, K, tok_region, w_region, is_down):
    D = OPT.get("gd", 4)
    STG, NS = 24576, D + 2
    N = K // 64
    k = Kern(name, 256, 512, STG * NS)
    SWS, ST_, SW_, SR, SO = 4, 8, 12, 16, 20
    sW, sTB, sNB, sN, sT, sT2, sRd, sWr, sTo, sWo, sTH, sCH, sRes, sDW = range(28, 42)
    v = Alloc(1)
    L, G, TOK, T0, T1, vLin, bT, bW, aT, aW, vRow = [v() for _ in range(11)]
    F = [[dict(X=[v(4, 4) for _ in range(2)], W=[v(4, 4) for _ in range(4)]) for s in range(2)] for _ in range(2)]
    acc = [[v(4, 4) for i in range(2)] for t in range(4)]
    RES = [[v(4, 4) for b in range(2)] for i in range(2)]
    k.vgpr = k.acc = (v.n + 7) // 8 * 8
    head(k)
    k(f"s_load_dwordx2 s[{SWS}:{SWS+1}], s[0:1], {A_WS}",
      f"s_load_dwordx2 s[{SO}:{SO+1}], s[0:1], {A_OUT if is_down else A_X}")
    k(f"v_lshrrev_b32 v{T1}, 6, v0", f"v_and_b32 v{L}, 63, v0", f"v_readfirstlane_b32 s{sW}, v{T1}", f"v_lshlrev_b32 v{vLin}, 4, v{L}")
    ids_8x4(k, sNB, sTB, sT)
    k(f"s_cmp_lt_u32 s{sW}, 4", f"s_cbranch_scc1 L_{name}_comp")
    k(f"s_and_b32 s{sW}, s{sW}, 3",
      f"s_lshl_b32 s{sTo}, s{sW}, 11", f"s_lshl_b32 s{sWo}, s{sW}, 12", f"s_mov_b32 s{sWr}, s{sTo}",
      f"s_add_u32 s{sDW}, s{sTo}, 8192")
    rot = K == 1024 and OPT.get("rot2", 0)
    if rot:
        k(f"s_lshl_b32 s{sT}, s{sNB}, 1", f"s_add_u32 s{sT}, s{sT}, s{sTB}", f"s_and_b32 s{sT}, s{sT}, 7",
          f"s_lshl_b32 s{sT2}, s{sT}, 14", f"s_add_u32 s{sTo}, s{sTo}, s{sT2}", f"s_lshl_b32 s{sT2}, s{sT}, 15", f"s_add_u32 s{sWo}, s{sWo}, s{sT2}")
    k(f"s_mul_i32 s{sT}, s{sTB}, {K*128}", f"s_add_u32 s{sT}, s{sT}, {tok_region}",
      f"s_mul_i32 s{sT2}, s{sNB}, {K*256}", f"s_add_u32 s{sT2}, s{sT2}, {w_region}")
    k("s_waitcnt lgkmcnt(0)", ws_shift(SWS))
    k(srd_from(ST_, SWS, f"s{sT}", K * 128), srd_from(SW_, SWS, f"s{sT2}", K * 256))

    def dma_stage():
        o = [f"s_mov_b32 m0, s{sWr}", "s_nop 0"]
        for i in range(2):
            o.append(f"buffer_load_dwordx4 v{vLin}, s[{ST_}:{ST_+3}], s{sTo} offen offset:{1024*i} lds")
        o += [f"s_add_u32 m0, s{sWr}, s{sDW}", f"s_add_u32 s{sTo}, s{sTo}, 8192"]
        for i in range(4):
            o.append(f"buffer_load_dwordx4 v{vLin}, s[{SW_}:{SW_+3}], s{sWo} offen offset:{1024*i} lds")
        o += [f"s_add_u32 s{sWo}, s{sWo}, 16384", f"s_add_u32 s{sWr}, s{sWr}, {STG}", f"s_cmp_ge_u32 s{sWr}, {STG*NS}",
              f"s_cselect_b32 s{sT}, {STG*NS}, 0", f"s_sub_u32 s{sWr}, s{sWr}, s{sT}"]
        if rot:
            o += [f"s_and_b32 s{sTo}, s{sTo}, {K*128-1}", f"s_and_b32 s{sWo}, s{sWo}, {K*256-1}"]
        return o
    k(f"s_mov_b32 s{sN}, {N}")
    k.label(f"L_{name}_ld")
    k(dma_stage())
    k(f"s_sub_u32 s{sN}, s{sN}, 1", f"s_cmp_lg_u32 s{sN}, 0")
    k(f"s_waitcnt vmcnt({6*D})", "s_barrier", f"s_cbranch_scc1 L_{name}_ld")
    for d in range(D - 1, -1, -1):
        k(f"s_waitcnt vmcnt({6*d})", "s_barrier")
    if is_down:
        k("s_endpgm")
    else:
        hop(k, sW)
    k.label(f"L_{name}_comp")
    k(f"s_and_b32 s{sTH}, s{sW}, 1", f"s_lshr_b32 s{sCH}, s{sW}, 1")
    k(f"v_lshrrev_b32 v{G}, 4, v{L}", f"v_and_b32 v{TOK}, 15, v{L}",
      f"v_lshlrev_b32 v{T0}, 11, v{TOK}", f"v_lshl_add_u32 v{T0}, v{G}, 4, v{T0}",
      f"s_lshl_b32 s{sN}, s{sTB}, 1", f"s_add_u32 s{sN}, s{sN}, s{sTH}", f"s_lshl_b32 s{sN}, s{sN}, 16",
      f"s_lshl_b32 s{sRes}, s{sNB}, 1", f"s_add_u32 s{sRes}, s{sRes}, s{sCH}", f"s_lshl_b32 s{sRd}, s{sRes}, 7",
      f"s_add_u32 s{sN}, s{sN}, s{sRd}", f"v_add_u32 v{vRow}, s{sN}, v{T0}")
    k(f"s_lshl_b32 s{sRes}, s{sRes}, 13", f"s_lshl_b32 s{sN}, s{sTB}, 17", f"s_add_u32 s{sRes}, s{sRes}, s{sN}",
      f"s_lshl_b32 s{sN}, s{sTH}, 11", f"s_add_u32 s{sRes}, s{sRes}, s{sN}", f"s_add_u32 s{sRes}, s{sRes}, {HF}")
    k(f"s_lshl_b32 s{sT}, s{sTH}, 11", f"v_add_u32 v{bT}, s{sT}, v{vLin}",
      f"s_lshl_b32 s{sT}, s{sCH}, 12", f"s_add_u32 s{sT}, s{sT}, 8192", f"v_add_u32 v{bW}, s{sT}, v{vLin}",
      f"v_mov_b32 v{aT}, v{bT}", f"v_mov_b32 v{aW}, v{bW}")
    k("s_waitcnt lgkmcnt(0)", ws_shift(SWS))
    k(srd_tail(SWS, WS_SZ), srd_tail(SO, 4 * MB))
    for _ in range(NS - 2):
        k("s_barrier")
    k(f"s_add_u32 s{sT2}, s{sRes}, 4096", f"s_mov_b32 s{sN}, 32768")
    for i in range(2):
        for b in range(2):
            if is_down:
                k(f"buffer_load_dwordx4 {vr(RES[i][b],4)}, v{vLin}, s[{SWS}:{SWS+3}], s{[sRes,sT2][b]} offen offset:{1024*i}")
            else:
                k(f"buffer_load_dwordx4 {vr(RES[i][b],4)}, v{vRow}, s[{SO}:{SO+3}], {['0', f's{sN}'][i]} offen offset:{64*b}{' nt' if OPT.get('jnt', 0) else ''}")
    for t in range(4):
        for i in range(2):
            for r in range(4):
                k(f"v_mov_b32 v{acc[t][i]+r}, 0")

    def reads(f):
        o = []
        for s in range(2):
            o += [f"ds_read_b128 {vr(F[f][s]['X'][i],4)}, v{aT} offset:{s*4096+i*1024}" for i in range(2)]
            o += [f"ds_read_b128 {vr(F[f][s]['W'][t],4)}, v{aW} offset:{s*8192+t*1024}" for t in range(4)]
        return o

    def mfmas(f):
        return [m16(vr(acc[t][i ^ (t & 1)], 4), vr(F[f][s]["W"][t], 4), vr(F[f][s]["X"][i ^ (t & 1)], 4))
                for t in range(4) for i in range(2) for s in range(2)]
    adv = [[f"s_add_u32 s{sRd}, s{sRd}, {STG}", f"s_cmp_eq_u32 s{sRd}, {STG*NS}"], [f"s_cselect_b32 s{sRd}, 0, s{sRd}"],
           [f"v_add_u32 v{aT}, s{sRd}, v{bT}", f"v_add_u32 v{aW}, s{sRd}, v{bW}"]]
    k(f"s_mov_b32 s{sRd}, 0", f"s_mov_b32 s{sN}, {N//2-1}")
    k("s_barrier")
    mid_stamp(k, 0)
    k(reads(0), adv, "s_waitcnt lgkmcnt(0)")
    k(".p2align 6")
    k.label(f"L_{name}_loop")
    for f in range(2):
        k("s_barrier")
        m = weave(mfmas(f), reads(1 - f), 0, 9)
        tl = adv + ([[f"s_sub_u32 s{sN}, s{sN}, 1", f"s_cmp_lg_u32 s{sN}, 0"]] if f == 1 else [])
        k(weave(m, tl, len(m) - 6, len(m) - 1))
        k("s_waitcnt lgkmcnt(0)")
    k(f"s_cbranch_scc1 L_{name}_loop")
    k("s_barrier")
    k(weave(mfmas(0), reads(1), 0, 9), "s_waitcnt lgkmcnt(0)", mfmas(1))
    mid_stamp(k, 1)
    k("s_waitcnt vmcnt(0)", f"s_mov_b32 s{sN}, 32768", "s_nop 5")
    SUM = F[0][0]["X"]
    U = F[0][0]["W"][0]
    for i in range(2):
        if not is_down:
            k(f"v_mov_b32 v{SUM[i]}, 0", f"v_mov_b32 v{SUM[i]+1}, 0")
        for b in range(2):
            o = F[0][1]["W"][2 * i + b]
            for jt in range(2):
                a = acc[2 * b + jt][i]
                for h in range(2):
                    r = RES[i][b] + 2 * jt + h
                    k(f"v_lshlrev_b32 v{U}, 16, v{r}", f"v_and_b32 v{U+1}, 0xffff0000, v{r}",
                      f"v_add_f32 v{a+2*h}, v{a+2*h}, v{U}", f"v_add_f32 v{a+2*h+1}, v{a+2*h+1}, v{U+1}",
                      f"v_cvt_pk_bf16_f32 v{o+2*jt+h}, v{a+2*h}, v{a+2*h+1}")
            if is_down:
                k(f"buffer_store_dwordx4 {vr(o,4)}, v{vRow}, s[{SO}:{SO+3}], {['0', f's{sN}'][i]} offen offset:{64*b} sc1")
            else:
                k(f"buffer_store_dwordx4 {vr(o,4)}, v{vLin}, s[{SWS}:{SWS+3}], s{[sRes,sT2][b]} offen offset:{1024*i} sc1")
    if not is_down:
        for t in range(4):
            for r in range(4):
                for i in range(2):
                    a = acc[t][i] + r
                    k(f"v_add_f32 v{SUM[i]}, v{SUM[i]}, v{a}", f"v_fmac_f32 v{SUM[i]+1}, v{a}, v{a}")
        k("s_nop 1", f"v_permlane32_swap_b32 v{SUM[0]}, v{SUM[0]+1}", f"v_permlane32_swap_b32 v{SUM[1]}, v{SUM[1]+1}", "s_nop 0",
          f"v_add_f32 v{SUM[0]}, v{SUM[0]}, v{SUM[0]+1}", f"v_add_f32 v{SUM[1]}, v{SUM[1]}, v{SUM[1]+1}",
          f"v_lshlrev_b32 v{T0}, 2, v{L}", "s_nop 0",
          f"v_permlane16_swap_b32 v{SUM[0]}, v{SUM[1]}",
          f"s_lshl_b32 s{sT}, s{sTB}, 1", f"s_add_u32 s{sT}, s{sT}, s{sTH}", f"s_lshl_b32 s{sT}, s{sT}, 12",
          f"v_add_f32 v{SUM[0]}, v{SUM[0]}, v{SUM[1]}",
          f"s_lshl_b32 s{sT2}, s{sNB}, 1", f"s_add_u32 s{sT2}, s{sT2}, s{sCH}", f"s_lshl_b32 s{sT2}, s{sT2}, 8",
          f"s_add_u32 s{sT}, s{sT}, s{sT2}", f"s_add_u32 s{sT}, s{sT}, {STP}",
          f"buffer_store_dword v{SUM[0]}, v{T0}, s[{SWS}:{SWS+3}], s{sT} offen sc1")
    tail(k, kidx, sW)
    return k


def k4_down(kidx):
    name, K = "down_kernel", 3584
    D = OPT.get("dd", 2)
    N1 = OPT.get("n1", 25)
    N2 = 56 - 2 * N1
    STG, NS = 32768, D + 2
    k = Kern(name, 256, 512, STG * NS)
    SWS, ST_, SW_, SO = 4, 8, 12, 20
    sW, sTB, sNB, sN, sT, sT2, sRd, sWr, sTo, sWo, sTH, sCH, sRes, sDW, sKH, sX0, sX1 = range(28, 45)
    v = Alloc(1)
    L, G, TOK, T0, T1, vLin, bT, bW, aT, aW, vRow = [v() for _ in range(11)]
    F = [[dict(X=[v(4, 4) for _ in range(4)], W=[v(4, 4) for _ in range(4)]) for s in range(2)] for _ in range(2)]
    acc = [[v(4, 4) for i in range(4)] for t in range(4)]
    RES = [[v(4, 4) for b in range(2)] for i in range(2)]
    RCV = [[acc[2 * b][2 + i] for b in range(2)] for i in range(2)]
    k.vgpr = k.acc = (v.n + 7) // 8 * 8
    head(k, True)
    k(f"s_load_dwordx2 s[{SWS}:{SWS+1}], s[0:1], {A_WS}", f"s_load_dwordx2 s[{SO}:{SO+1}], s[0:1], {A_OUT}")
    k(f"v_lshrrev_b32 v{T1}, 6, v0", f"v_and_b32 v{L}, 63, v0", f"v_readfirstlane_b32 s{sW}, v{T1}", f"v_lshlrev_b32 v{vLin}, 4, v{L}")
    ids_8x4(k, sNB, sTB, sT)
    if OPT.get("dmap", 1):
        k(f"s_and_b32 s{sT}, s{sTB}, 7", f"s_lshl_b32 s{sT}, s{sT}, 1", f"s_bfe_u32 s{sT2}, s{sTB}, 0x10003",
          f"s_and_b32 s{sTB}, s{sTB}, 16", f"s_add_u32 s{sTB}, s{sTB}, s{sT}", f"s_add_u32 s{sTB}, s{sTB}, s{sT2}")
    k(f"s_cmp_lt_u32 s{sW}, 4", f"s_cbranch_scc1 L_{name}_comp")
    vOwn, vPar = bT, bW
    k(f"s_and_b32 s{sW}, s{sW}, 3", f"s_and_b32 s{sKH}, s{sTB}, 1",
      f"s_lshl_b32 s{sWr}, s{sW}, 11", f"s_add_u32 s{sDW}, s{sWr}, 8192",
      f"s_mul_i32 s{sTo}, s{sKH}, {N1*8192}", f"s_add_u32 s{sTo}, s{sTo}, s{sWr}", f"s_lshl_b32 s{sWo}, s{sTo}, 1",
      f"s_mul_i32 s{sT}, s{sKH}, {K*128}", f"v_add_u32 v{vOwn}, s{sT}, v{vLin}", f"s_sub_u32 s{sT}, {K*128}, s{sT}", f"v_add_u32 v{vPar}, s{sT}, v{vLin}",
      f"s_lshr_b32 s{sT}, s{sTB}, 1", f"s_mul_i32 s{sT}, s{sT}, {K*256}", f"s_add_u32 s{sT}, s{sT}, {AF}",
      f"s_mul_i32 s{sT2}, s{sNB}, {K*256}", f"s_add_u32 s{sT2}, s{sT2}, {WDF}")
    k("s_waitcnt lgkmcnt(0)", ws_shift(SWS))
    k(srd_from(ST_, SWS, f"s{sT}", K * 256), srd_from(SW_, SWS, f"s{sT2}", K * 256))

    def dma_stage(full):
        o = [f"s_mov_b32 m0, s{sWr}", "s_nop 0"]
        o += [f"buffer_load_dwordx4 v{vOwn}, s[{ST_}:{ST_+3}], s{sTo} offen offset:{1024*i} lds" for i in range(2)]
        if full:
            o += [f"s_add_u32 m0, s{sWr}, 24576", "s_nop 0"]
            o += [f"buffer_load_dwordx4 v{vPar}, s[{ST_}:{ST_+3}], s{sTo} offen offset:{1024*i} lds" for i in range(2)]
        o += [f"s_add_u32 m0, s{sWr}, s{sDW}", f"s_add_u32 s{sTo}, s{sTo}, 8192"]
        o += [f"buffer_load_dwordx4 v{vLin}, s[{SW_}:{SW_+3}], s{sWo} offen offset:{1024*i} lds" for i in range(4)]
        o += [f"s_add_u32 s{sWo}, s{sWo}, 16384", f"s_add_u32 s{sWr}, s{sWr}, {STG}", f"s_cmp_ge_u32 s{sWr}, {STG*NS}",
              f"s_cselect_b32 s{sT}, {STG*NS}, 0", f"s_sub_u32 s{sWr}, s{sWr}, s{sT}"]
        return o
    k(f"s_mov_b32 s{sN}, {N1}")
    k.label(f"L_{name}_ld")
    k(dma_stage(True))
    k(f"s_sub_u32 s{sN}, s{sN}, 1", f"s_cmp_lg_u32 s{sN}, 0")
    k(f"s_waitcnt vmcnt({8*D})", "s_barrier", f"s_cbranch_scc1 L_{name}_ld")
    k(f"s_lshl_b32 s{sTo}, s{sW}, 11", f"s_add_u32 s{sTo}, s{sTo}, {2*N1*8192}", f"s_lshl_b32 s{sWo}, s{sTo}, 1")
    cnt = lambda n: 8 if n < N1 else (6 if n < N1 + N2 else 0)
    for n in range(N1, N1 + N2 + D):
        if n < N1 + N2:
            k(dma_stage(False))
        k(f"s_waitcnt vmcnt({sum(cnt(m) for m in range(n-D+1, n+1))})", "s_barrier")
    k("s_endpgm")
    if OPT.get("epad", 1):
        k(island(jump=False))
    k.label(f"L_{name}_comp")
    k(f"s_and_b32 s{sTH}, s{sW}, 1", f"s_lshr_b32 s{sCH}, s{sW}, 1")
    k(f"v_lshrrev_b32 v{G}, 4, v{L}", f"v_and_b32 v{TOK}, 15, v{L}",
      f"v_lshlrev_b32 v{T0}, 11, v{TOK}", f"v_lshl_add_u32 v{T0}, v{G}, 4, v{T0}",
      f"s_lshl_b32 s{sN}, s{sTB}, 1", f"s_add_u32 s{sN}, s{sN}, s{sTH}", f"s_lshl_b32 s{sN}, s{sN}, 16",
      f"s_lshl_b32 s{sRes}, s{sNB}, 1", f"s_add_u32 s{sRes}, s{sRes}, s{sCH}", f"s_lshl_b32 s{sRd}, s{sRes}, 7",
      f"s_add_u32 s{sN}, s{sN}, s{sRd}", f"v_add_u32 v{vRow}, s{sN}, v{T0}")
    k(f"s_lshl_b32 s{sRes}, s{sRes}, 13", f"s_lshl_b32 s{sN}, s{sTB}, 17", f"s_add_u32 s{sRes}, s{sRes}, s{sN}",
      f"s_lshl_b32 s{sN}, s{sTH}, 11", f"s_add_u32 s{sRes}, s{sRes}, s{sN}",
      f"s_xor_b32 s{sX0}, s{sRes}, {1<<17}", f"s_add_u32 s{sX0}, s{sX0}, {XB}", f"s_add_u32 s{sX1}, s{sX0}, 4096")
    k(f"s_lshl_b32 s{sT}, s{sTH}, 11", f"v_add_u32 v{bT}, s{sT}, v{vLin}",
      f"s_lshl_b32 s{sT}, s{sCH}, 12", f"s_add_u32 s{sT}, s{sT}, 8192", f"v_add_u32 v{bW}, s{sT}, v{vLin}",
      f"v_mov_b32 v{aT}, v{bT}", f"v_mov_b32 v{aW}, v{bW}")
    k("s_waitcnt lgkmcnt(0)", ws_shift(SWS))
    k(srd_tail(SWS, WS_SZ), srd_tail(SO, 4 * MB))
    for _ in range(D):
        k("s_barrier")
    for i in range(acc[0][0], acc[0][0] + 64, 2):
        k(f"v_mov_b64 {vr(i,2)}, 0")

    def reads(f, full):
        o = []
        for s in range(2):
            o += [f"ds_read_b128 {vr(F[f][s]['X'][i],4)}, v{aT} offset:{(i>>1)*24576+s*4096+(i&1)*1024}" for i in range(4 if full else 2)]
            o += [f"ds_read_b128 {vr(F[f][s]['W'][t],4)}, v{aW} offset:{s*8192+t*1024}" for t in range(4)]
        return o

    def mfmas(f, tiles):
        return [m16(vr(acc[t][i], 4), vr(F[f][s]["W"][t], 4), vr(F[f][s]["X"][i], 4))
                for t in range(4) for i in (tiles if t % 2 == 0 else tiles[::-1]) for s in range(2)]
    adv = [[f"s_add_u32 s{sRd}, s{sRd}, {STG}", f"s_cmp_eq_u32 s{sRd}, {STG*NS}"], [f"s_cselect_b32 s{sRd}, 0, s{sRd}"],
           [f"v_add_u32 v{aT}, s{sRd}, v{bT}", f"v_add_u32 v{aW}, s{sRd}, v{bW}"]]
    ALL, OWN, PAR = [0, 1, 2, 3], [0, 1], [2, 3]
    k(f"s_mov_b32 s{sRd}, 0", f"s_mov_b32 s{sN}, {(N1-1)//2}")
    k("s_barrier")
    mid_stamp(k, 0)
    k(reads(0, True), adv, "s_waitcnt lgkmcnt(0)")

    def step(f, extra):
        k("s_barrier")
        m = weave(mfmas(f, ALL), reads(1 - f, True), 0, 18)
        k(weave(m, adv + extra, len(m) - 8, len(m) - 1), "s_waitcnt lgkmcnt(0)")
    k(".p2align 6")
    k.label(f"L_{name}_loop")
    step(0, [])
    step(1, [[f"s_sub_u32 s{sN}, s{sN}, 1", f"s_cmp_lg_u32 s{sN}, 0"]])
    k(f"s_cbranch_scc1 L_{name}_loop")
    f = 0
    if (N1 - 1) % 2:
        step(0, [])
        f = 1
    if OPT.get("p1"):
        mid_stamp(k, 1)
    snd = []
    for b in range(2):
        for i in range(2):
            o = F[1 - f][b]["X"][2 + i]
            for jt in range(2):
                a = acc[2 * b + jt][2 + i]
                snd += [[f"v_cvt_pk_bf16_f32 v{o+2*jt}, v{a}, v{a+1}", f"v_cvt_pk_bf16_f32 v{o+2*jt+1}, v{a+2}, v{a+3}"]]
            snd += [[f"v_min_u32 v{o+r}, -2, v{o+r}" for r in (0, 1)], [f"v_min_u32 v{o+r}, -2, v{o+r}" for r in (2, 3)] +
                    [f"buffer_store_dwordx4 {vr(o,4)}, v{vLin}, s[{SWS}:{SWS+3}], s{[sX0,sX1][b]} offen offset:{1024*i} sc1"]]
    k("s_barrier")
    k(weave(weave(mfmas(f, PAR), reads(1 - f, False), 0, 10), adv, 22, 27), weave(mfmas(f, OWN), snd, 0, 16), "s_waitcnt lgkmcnt(0)")
    f = 1 - f
    res = [f"buffer_load_dwordx4 {vr(RES[i][b],4)}, v{vLin}, s[{SWS}:{SWS+3}], s{[sT,sT2][b]} offen offset:{1024*i}" for i in range(2) for b in range(2)]
    rcv = [f"buffer_load_dwordx4 {vr(RCV[i][b],4)}, v{vLin}, s[{SWS}:{SWS+3}], s{[sX0,sX1][b]} offen offset:{1024*i} sc1" for i in range(2) for b in range(2)]
    rstep = N1 + N2 - OPT.get("rl", 2)
    for n in range(N1 + 1, N1 + N2):
        k("s_barrier")
        m = weave(mfmas(f, OWN), reads(1 - f, False), 0, 9)
        ex = list(adv) if n < N1 + N2 - 1 else []
        if n == N1 + 1:
            ex += [[f"s_add_u32 s{sT}, s{sRes}, {HF}", f"s_add_u32 s{sT2}, s{sRes}, {HF+4096}",
                    f"s_add_u32 s{sX0}, s{sRes}, {XB}", f"s_add_u32 s{sX1}, s{sRes}, {XB+4096}"], res]
        if n == rstep:
            ex += [rcv]
        k(weave(m, ex, len(m) - 6, len(m)) if ex else m, island() if (n == N1 + 2 and OPT.get("epad", 1)) else None, "s_waitcnt lgkmcnt(0)")
        f = 1 - f
    if rstep >= N1 + N2:
        k(rcv)
    k(mfmas(f, OWN))
    if not OPT.get("p1"):
        mid_stamp(k, 1)
    k(f"s_mov_b32 s{sN}, {1<<20}")
    k.label(f"L_{name}_chk")
    k("s_waitcnt vmcnt(0)")
    rr = [RCV[i][b] + r for i in range(2) for b in range(2) for r in range(4)]
    k(f"v_max3_u32 v{T0}, v{rr[0]}, v{rr[1]}, v{rr[2]}", f"v_max3_u32 v{T1}, v{rr[3]}, v{rr[4]}, v{rr[5]}")
    for j in range(6, 16, 2):
        t = [T0, T1][(j // 2) & 1]
        k(f"v_max3_u32 v{t}, v{rr[j]}, v{rr[j+1]}, v{t}")
    k(f"v_max_u32 v{T0}, v{T0}, v{T1}", f"v_cmp_eq_u32 vcc, -1, v{T0}", f"s_sub_u32 s{sN}, s{sN}, 1", f"s_cbranch_scc1 L_{name}_out",
      f"s_cbranch_vccz L_{name}_out", "s_sleep 2", rcv, f"s_branch L_{name}_chk")
    k.label(f"L_{name}_out")
    k(f"s_mov_b32 s{sN}, 32768")
    U = F[0][0]["W"][0]
    for i in range(2):
        for b in range(2):
            o = F[0][1]["W"][2 * i + b]
            for jt in range(2):
                a = acc[2 * b + jt][i]
                for h in range(2):
                    r, q = RES[i][b] + 2 * jt + h, RCV[i][b] + 2 * jt + h
                    k(f"v_lshlrev_b32 v{U}, 16, v{q}", f"v_and_b32 v{U+1}, 0xffff0000, v{q}",
                      f"v_lshlrev_b32 v{U+2}, 16, v{r}", f"v_and_b32 v{U+3}, 0xffff0000, v{r}",
                      f"v_pk_add_f32 {vr(a+2*h,2)}, {vr(a+2*h,2)}, {vr(U,2)}", f"v_pk_add_f32 {vr(a+2*h,2)}, {vr(a+2*h,2)}, {vr(U+2,2)}",
                      f"v_cvt_pk_bf16_f32 v{o+2*jt+h}, v{a+2*h}, v{a+2*h+1}")
            k(f"buffer_store_dwordx4 {vr(o,4)}, v{vRow}, s[{SO}:{SO+3}], {['0', f's{sN}'][i]} offen offset:{64*b} sc1")
    tail(k, kidx, sW)
    return k


def k4_down4(kidx):
    name, K = "down_kernel", 3584
    D = OPT.get("dd", 2)
    N1 = OPT.get("n1", 25)
    N2 = 56 - 2 * N1
    STG, NS = 24576, D + 2
    k = Kern(name, 256, 512, STG * NS)
    SWS, SO = 4, 20
    sW, sTB, sNB, sN, sT, sT2, sRd, sWr, sTo, sWo, sTH, sCH, sRes, sDW, sKQ = range(28, 43)
    sX = [[44 + 2 * r + b for b in range(2)] for r in range(4)]
    v = Alloc(1)
    L, G, TOK, T0, T1, vLin, bT, bW, aT, aW, vRow = [v() for _ in range(11)]
    F = [[dict(X=[v(4, 4) for _ in range(2)], W=[v(4, 4) for _ in range(4)]) for s in range(2)] for _ in range(2)]
    acc = [[[v(4, 4) for i in range(2)] for t in range(4)] for r in range(4)]
    RES = [[v(4, 4) for b in range(2)] for i in range(2)]
    SND = lambda r, i, b: acc[r][2 * b][i]
    RCV = lambda r, i, b: acc[r][2 * b + 1][i] if r else RES[i][b]
    k.vgpr = k.acc = (v.n + 7) // 8 * 8
    head(k, True)
    k(f"s_load_dwordx2 s[{SWS}:{SWS+1}], s[0:1], {A_WS}", f"s_load_dwordx2 s[{SO}:{SO+1}], s[0:1], {A_OUT}")
    k(f"v_lshrrev_b32 v{T1}, 6, v0", f"v_and_b32 v{L}, 63, v0", f"v_readfirstlane_b32 s{sW}, v{T1}", f"v_lshlrev_b32 v{vLin}, 4, v{L}")
    k(f"s_bfe_u32 s{sNB}, s2, 0x20003", f"s_lshl_b32 s{sNB}, s{sNB}, 1", f"s_and_b32 s{sT}, s2, 1", f"s_add_u32 s{sNB}, s{sNB}, s{sT}",
      f"s_lshr_b32 s{sTB}, s2, 5", f"s_lshl_b32 s{sTB}, s{sTB}, 1", f"s_bfe_u32 s{sT}, s2, 0x10001", f"s_add_u32 s{sTB}, s{sTB}, s{sT}",
      f"s_and_b32 s{sT}, s2, 4", f"s_lshl_b32 s{sT}, s{sT}, 2", f"s_add_u32 s{sTB}, s{sTB}, s{sT}",
      f"s_and_b32 s{sTH}, s{sW}, 1", f"s_bfe_u32 s{sCH}, s{sW}, 0x10001")
    k(f"s_cmp_lt_u32 s{sW}, 4", f"s_cbranch_scc1 L_{name}_comp")
    k(f"s_and_b32 s{sW}, s{sW}, 3", f"s_and_b32 s{sKQ}, s2, 3",
      f"s_lshl_b32 s{sWr}, s{sW}, 11", f"s_add_u32 s{sDW}, s{sWr}, 8192",
      f"s_mul_i32 s{sT2}, s{sKQ}, {N1*4096}", f"s_lshl_b32 s{sT}, s{sTH}, 11", f"s_add_u32 s{sT2}, s{sT2}, s{sT}",
      f"s_xor_b32 s{sT}, s{sTB}, s{sCH}", f"s_mul_i32 s{sTo}, s{sT}, {K*128}", f"s_add_u32 s{sTo}, s{sTo}, s{sT2}", f"s_add_u32 s{sTo}, s{sTo}, {AF}",
      f"s_xor_b32 s{sT}, s{sNB}, s{sCH}", f"s_mul_i32 s{sWo}, s{sT}, {K*128}", f"s_add_u32 s{sWo}, s{sWo}, s{sT2}", f"s_lshl_b32 s{sWo}, s{sWo}, 1",
      f"s_add_u32 s{sWo}, s{sWo}, {WDF}")
    k("s_waitcnt lgkmcnt(0)", ws_shift(SWS), srd_tail(SWS, WS_SZ))

    def dma_stage(step):
        o = [f"s_mov_b32 m0, s{sWr}", "s_nop 0"]
        o += [f"buffer_load_dwordx4 v{vLin}, s[{SWS}:{SWS+3}], s{sTo} offen offset:{1024*i} lds" for i in range(2)]
        o += [f"s_add_u32 m0, s{sWr}, s{sDW}", f"s_add_u32 s{sTo}, s{sTo}, {step}"]
        o += [f"buffer_load_dwordx4 v{vLin}, s[{SWS}:{SWS+3}], s{sWo} offen offset:{1024*i} lds" for i in range(4)]
        o += [f"s_add_u32 s{sWo}, s{sWo}, {2*step}", f"s_add_u32 s{sWr}, s{sWr}, {STG}", f"s_cmp_ge_u32 s{sWr}, {STG*NS}",
              f"s_cselect_b32 s{sT}, {STG*NS}, 0", f"s_sub_u32 s{sWr}, s{sWr}, s{sT}",
              f"s_sub_u32 s{sN}, s{sN}, 1", f"s_cmp_lg_u32 s{sN}, 0", f"s_waitcnt vmcnt({6*D})", "s_barrier"]
        return o
    k(f"s_mov_b32 s{sN}, {N1}")
    k.label(f"L_{name}_ld")
    k(dma_stage(4096), f"s_cbranch_scc1 L_{name}_ld")
    k(f"s_lshl_b32 s{sT2}, s{sW}, 11", f"s_add_u32 s{sT2}, s{sT2}, {4*N1*4096}",
      f"s_mul_i32 s{sTo}, s{sTB}, {K*128}", f"s_add_u32 s{sTo}, s{sTo}, s{sT2}", f"s_add_u32 s{sTo}, s{sTo}, {AF}",
      f"s_mul_i32 s{sWo}, s{sNB}, {K*128}", f"s_add_u32 s{sWo}, s{sWo}, s{sT2}", f"s_lshl_b32 s{sWo}, s{sWo}, 1",
      f"s_add_u32 s{sWo}, s{sWo}, {WDF}", f"s_mov_b32 s{sN}, {N2}")
    k.label(f"L_{name}_ld2")
    k(dma_stage(8192), f"s_cbranch_scc1 L_{name}_ld2")
    for d in range(D - 1, -1, -1):
        k(f"s_waitcnt vmcnt({6*d})", "s_barrier")
    k("s_endpgm")
    k(island(jump=False))
    k.label(f"L_{name}_comp")
    k(f"v_lshrrev_b32 v{G}, 4, v{L}", f"v_and_b32 v{TOK}, 15, v{L}",
      f"v_lshlrev_b32 v{T0}, 11, v{TOK}", f"v_lshl_add_u32 v{T0}, v{G}, 4, v{T0}",
      f"s_lshl_b32 s{sN}, s{sTB}, 1", f"s_add_u32 s{sN}, s{sN}, s{sTH}", f"s_lshl_b32 s{sN}, s{sN}, 16",
      f"s_lshl_b32 s{sRes}, s{sNB}, 1", f"s_add_u32 s{sRes}, s{sRes}, s{sCH}", f"s_lshl_b32 s{sRd}, s{sRes}, 7",
      f"s_add_u32 s{sN}, s{sN}, s{sRd}", f"v_add_u32 v{vRow}, s{sN}, v{T0}")
    for _ in range(D):
        k("s_barrier")
    k(f"s_lshl_b32 s{sRes}, s{sRes}, 13", f"s_lshl_b32 s{sN}, s{sTB}, 17", f"s_add_u32 s{sRes}, s{sRes}, s{sN}",
      f"s_lshl_b32 s{sN}, s{sTH}, 11", f"s_add_u32 s{sRes}, s{sRes}, s{sN}")
    for r in range(1, 4):
        k(f"s_xor_b32 s{sT}, s{sRes}, {((r&1)<<17)|((r>>1)<<14)}", f"s_add_u32 s{sX[r][0]}, s{sT}, {XB4[r]}", f"s_add_u32 s{sX[r][1]}, s{sT}, {XB4[r]+4096}")
    k(f"s_lshl_b32 s{sT}, s{sTH}, 11", f"v_add_u32 v{bT}, s{sT}, v{vLin}",
      f"s_lshl_b32 s{sT}, s{sCH}, 12", f"s_add_u32 s{sT}, s{sT}, 8192", f"v_add_u32 v{bW}, s{sT}, v{vLin}",
      f"v_mov_b32 v{aT}, v{bT}", f"v_mov_b32 v{aW}, v{bW}")
    k("s_waitcnt lgkmcnt(0)", ws_shift(SWS))
    k(srd_tail(SWS, WS_SZ), srd_tail(SO, 4 * MB))

    def reads(f):
        o = []
        for s in range(2):
            o += [f"ds_read_b128 {vr(F[f][s]['X'][i],4)}, v{aT} offset:{s*4096+i*1024}" for i in range(2)]
            o += [f"ds_read_b128 {vr(F[f][s]['W'][t],4)}, v{aW} offset:{s*8192+t*1024}" for t in range(4)]
        return o

    def mf1(f, c=None):
        o = []
        for sw in range(2):
            for t in range(4):
                xs = [(0, 0), (0, 1), (1, 0), (1, 1)]
                for sx, i in (xs if t % 2 == 0 else xs[::-1]):
                    o.append(m16(vr(acc[2 * sw + sx][t][i], 4), vr(F[f][sw]["W"][t], 4), vr(F[f][sx]["X"][i], 4), c))
        return o

    def mf1r(f, r):
        return [m16(vr(acc[r][t][i], 4), vr(F[f][r >> 1]["W"][t], 4), vr(F[f][r & 1]["X"][i], 4)) for t in range(4) for i in ((0, 1) if t % 2 == 0 else (1, 0))]

    def mf2(f):
        return [m16(vr(acc[0][t][i], 4), vr(F[f][s]["W"][t], 4), vr(F[f][s]["X"][i], 4))
                for t in range(4) for i in ((0, 1) if t % 2 == 0 else (1, 0)) for s in range(2)]
    adv = [[f"s_add_u32 s{sRd}, s{sRd}, {STG}", f"s_cmp_eq_u32 s{sRd}, {STG*NS}"], [f"s_cselect_b32 s{sRd}, 0, s{sRd}"],
           [f"v_add_u32 v{aT}, s{sRd}, v{bT}", f"v_add_u32 v{aW}, s{sRd}, v{bW}"]]
    k(f"s_mov_b32 s{sRd}, 0", f"s_mov_b32 s{sN}, {(N1-2)//2}")
    k("s_barrier")
    mid_stamp(k, 0)
    k(reads(0), adv, "s_waitcnt lgkmcnt(0)")

    def step(f, extra, c=None):
        k("s_barrier")
        m = weave(mf1(f, c), reads(1 - f), 0, 14)
        k(weave(m, adv + extra, len(m) - 10, len(m) - 2), "s_waitcnt lgkmcnt(0)")
    step(0, [], "0")
    k(".p2align 6")
    k.label(f"L_{name}_loop")
    step(1, [])
    step(0, [[f"s_sub_u32 s{sN}, s{sN}, 1", f"s_cmp_lg_u32 s{sN}, 0"]])
    k(f"s_cbranch_scc1 L_{name}_loop")
    f = 1
    if (N1 - 2) % 2:
        step(1, [])
        f = 0

    def snd(r):
        o = []
        for b in range(2):
            for i in range(2):
                d, a = SND(r, i, b), acc[r][2 * b + 1][i]
                o += [[f"v_cvt_pk_bf16_f32 v{d}, v{d}, v{d+1}", f"v_cvt_pk_bf16_f32 v{d+1}, v{d+2}, v{d+3}"],
                      [f"v_cvt_pk_bf16_f32 v{d+2}, v{a}, v{a+1}", f"v_cvt_pk_bf16_f32 v{d+3}, v{a+2}, v{a+3}"],
                      [f"v_min_u32 v{d+q}, -2, v{d+q}" for q in (0, 1)], [f"v_min_u32 v{d+q}, -2, v{d+q}" for q in (2, 3)] +
                      [f"buffer_store_dwordx4 {vr(d,4)}, v{vLin}, s[{SWS}:{SWS+3}], s{sX[r][b]} offen offset:{1024*i} sc1"]]
        return o
    if OPT.get("p1"):
        mid_stamp(k, 1)
    k("s_barrier")
    k(weave(weave(mf1r(f, 3) + mf1r(f, 2), reads(1 - f), 0, 10), adv, 22, 27), weave(mf1r(f, 1) + mf1r(f, 0), snd(3), 0, 16), "s_waitcnt lgkmcnt(0)")
    k(island())
    f = 1 - f
    rcv = lambda r: [f"buffer_load_dwordx4 {vr(RCV(r,i,b),4)}, v{vLin}, s[{SWS}:{SWS+3}], s{sX[r][b]} offen offset:{1024*i}{' sc1' if r else ''}"
                     for i in range(2) for b in range(2)]
    radr = [[f"s_add_u32 s{sX[r][b]}, s{sRes}, {XB4[r]+4096*b}" for b in range(2)] for r in range(4)]
    rl = OPT.get("rl", 2)
    for n in range(1, N2):
        k("s_barrier")
        m = weave(mf2(f), reads(1 - f), 0, 9)
        ex = list(adv) if n < N2 - 1 else []
        if n == 1:
            k(weave(m, ex, len(m) - 6, len(m) - 2), snd(2), snd(1), radr, rcv(0))
        else:
            if n == N2 - rl:
                ex += [rcv(3), rcv(2), rcv(1)]
            k(weave(m, ex, len(m) - 6, len(m)) if ex else m)
        k("s_waitcnt lgkmcnt(0)")
        f = 1 - f
    if rl == 0:
        k(rcv(3), rcv(2), rcv(1))
    k(mf2(f))
    if not OPT.get("p1"):
        mid_stamp(k, 1)
    U = F[0][0]["W"][0]

    def add(r):
        for i in range(2):
            for b in range(2):
                for jt in range(2):
                    a, q = acc[0][2 * b + jt][i], RCV(r, i, b) + 2 * jt
                    k(f"v_lshlrev_b32 v{U}, 16, v{q}", f"v_and_b32 v{U+1}, 0xffff0000, v{q}",
                      f"v_lshlrev_b32 v{U+2}, 16, v{q+1}", f"v_and_b32 v{U+3}, 0xffff0000, v{q+1}",
                      f"v_pk_add_f32 {vr(a,2)}, {vr(a,2)}, {vr(U,2)}", f"v_pk_add_f32 {vr(a+2,2)}, {vr(a+2,2)}, {vr(U+2,2)}")
                if r == 1:
                    o = F[0][1]["W"][2 * i + b]
                    for jt in range(2):
                        a = acc[0][2 * b + jt][i]
                        k(f"v_cvt_pk_bf16_f32 v{o+2*jt}, v{a}, v{a+1}", f"v_cvt_pk_bf16_f32 v{o+2*jt+1}, v{a+2}, v{a+3}")
                    k(f"buffer_store_dwordx4 {vr(o,4)}, v{vRow}, s[{SO}:{SO+3}], {['0', f's{sT2}'][i]} offen offset:{64*b} sc1")
    k(f"s_mov_b32 s{sN}, {1<<20}", f"s_mov_b32 s{sT2}, 32768", "s_waitcnt vmcnt(12)", "s_nop 1")
    add(0)
    for r in (3, 2, 1):
        k(f"s_waitcnt vmcnt({4*(r-1)})")
        k.label(f"L_{name}_chk{r}")
        rr = [RCV(r, i, b) + q for i in range(2) for b in range(2) for q in range(4)]
        k(f"v_max3_u32 v{T0}, v{rr[0]}, v{rr[1]}, v{rr[2]}", f"v_max3_u32 v{T1}, v{rr[3]}, v{rr[4]}, v{rr[5]}")
        for j in range(6, 16, 2):
            t = [T0, T1][(j // 2) & 1]
            k(f"v_max3_u32 v{t}, v{rr[j]}, v{rr[j+1]}, v{t}")
        k(f"v_max_u32 v{T0}, v{T0}, v{T1}", f"v_cmp_eq_u32 vcc, -1, v{T0}", f"s_sub_u32 s{sN}, s{sN}, 1", f"s_cbranch_scc1 L_{name}_ok{r}",
          f"s_cbranch_vccz L_{name}_ok{r}", [rcv(q) for q in range(r, 0, -1)], "s_waitcnt vmcnt(0)", f"s_branch L_{name}_chk{r}")
        k.label(f"L_{name}_ok{r}")
        add(r)
    tail(k, kidx, sW)
    return k


class Op:
    def __init__(self, text, kind="v", needs=(), bar=False):
        self.text, self.kind, self.needs, self.bar = text, kind, list(needs), bar
        self.seq = None

    @property
    def cost(self):
        return 8 if self.kind == "t" else 4


def emit_stream(k, ops, nl=0, nv=0):
    cnt = {"lds": nl, "vm": nv}
    done = {"lds": 0, "vm": 0}
    for o in ops:
        if o.kind in cnt:
            cnt[o.kind] += 1
            o.seq = cnt[o.kind]
            k(o.text)
        elif o.kind == "wait":
            parts = []
            for kind, nm, mx in (("vm", "vmcnt", 63), ("lds", "lgkmcnt", 15)):
                need = [x.seq for x in o.needs if x.kind == kind]
                assert None not in need, "wait on an op that was not issued yet"
                tgt = cnt[kind] if (o.bar and kind == "lds") else max(need, default=0)
                if tgt > done[kind]:
                    n = cnt[kind] - tgt
                    assert n <= mx or kind == "vm"
                    parts.append(f"{nm}({min(n, mx)})")
                    done[kind] = tgt
            if parts:
                k("s_waitcnt " + " ".join(parts))
            if o.bar:
                k("s_barrier")
        else:
            k(o.text)
    return cnt


def k3_gateup():
    STG, NS = 28672, 5
    TBL = NS * STG
    k = Kern("ffn_kernel", 256, 256, 163840)
    SWS, ST_, SW_, SO = 4, 8, 12, 20
    slot = lambda n: (n + 3) % NS
    sW, sMB, sFB, sN, sT, sT2, sTo, sWo, sWr, sTB, sA0, sA1, sSt, sCp = range(28, 42)
    v = Alloc(1)
    vLin, vR1, vR2, vCs, vSt, vTid, vOut = [v() for _ in range(7)]
    PA = [v(2, 2) for _ in range(4)]
    SD = [v(2, 2) for _ in range(2)]
    TA, TB_, TC = v(4, 4), v(4, 4), v(4, 4)
    assert v.n <= 32, v.n
    acc = [[32 + (a * 4 + b) * 4 for b in range(4)] for a in range(14)]
    TK = [[[32 * n + 16 * s + 4 * b for b in range(4)] for s in range(2)] for n in range(NS)]
    WF = [[160 + 8 * n + 4 * s for s in range(2)] for n in range(4)]
    SP, CP = 192, 224
    k.vgpr, k.acc = 512, 256
    head(k, True)
    k(f"s_load_dwordx2 s[{SWS}:{SWS+1}], s[0:1], {A_WS}", f"s_load_dwordx2 s[{SO}:{SO+1}], s[0:1], {A_OUT}")
    k(f"v_lshrrev_b32 v{TA}, 6, v0", f"v_and_b32 v{TA+1}, 63, v0", f"v_readfirstlane_b32 s{sW}, v{TA}", f"v_lshlrev_b32 v{vLin}, 4, v{TA+1}")
    k(f"s_lshr_b32 s{sT}, s2, 3", f"s_lshr_b32 s{sMB}, s{sT}, 2", f"s_and_b32 s{sT}, s{sT}, 3",
      f"s_and_b32 s{sFB}, s2, 7", f"s_lshl_b32 s{sFB}, s{sFB}, 2", f"s_add_u32 s{sFB}, s{sFB}, s{sT}",
      f"s_lshl_b32 s{sTB}, s{sMB}, 2", f"s_add_u32 s{sTB}, s{sTB}, s{sW}",
      f"s_lshl_b32 s{sT}, s{sTB}, 17", f"s_add_u32 s{sT}, s{sT}, {HF}",
      f"s_mul_i32 s{sT2}, s{sFB}, {32*14*1024}", f"s_add_u32 s{sT2}, s{sT2}, {WGU}",
      f"s_mul_i32 s{sWo}, s{sW}, 7168", f"s_mov_b32 s{sWr}, s{sWo}", f"s_mov_b32 s{sTo}, 0")
    k("s_waitcnt lgkmcnt(0)", ws_shift(SWS))
    k(srd_from(ST_, SWS, f"s{sT}", 131072), srd_from(SW_, SWS, f"s{sT2}", 32 * 14 * 1024))

    def vm_stage(n):
        o = []
        for i in range(7):
            pre, post = [], []
            if i % 4 == 0:
                pre = [f"s_add_u32 m0, s{sWr}, {slot(n)*STG+1024*i}"]
            if i == 3:
                post = [f"s_add_u32 s{sWo}, s{sWo}, 4096"]
            if i == 6:
                post = [f"s_add_u32 s{sWo}, s{sWo}, {STG-4096}"]
            o.append((pre, Op(f"buffer_load_dwordx4 v{vLin}, s[{SW_}:{SW_+3}], s{sWo} offen offset:{1024*(i%4)} lds", "vm"), post, n))
        for s in range(2):
            for b in range(4):
                post = [f"s_add_u32 s{sTo}, s{sTo}, 4096"] if b == 3 else []
                o.append(([], Op(f"buffer_load_dwordx4 {ar(TK[slot(n)][s][b],4)}, v{vLin}, s[{ST_}:{ST_+3}], s{sTo} offen offset:{1024*b}", "vm"), post, n))
        return o
    VM = [vm_stage(n) for n in range(16)]
    HALF = OPT.get("k3half", 1)
    if HALF:
        wl = [([f"s_add_u32 m0, s{sN}, {slot(0)*STG}"], Op(f"buffer_load_dwordx4 v{vLin}, s[{SW_}:{SW_+3}], s{sN} offen lds", "vm"),
               [f"s_add_u32 s{sN}, s{sN}, 4096"] if i < 6 else [f"s_add_u32 s{sWo}, s{sWo}, {STG}"], 0) for i in range(7)]
        VM[0] = VM[0][7:11] + wl[:4] + VM[0][11:15] + wl[4:]
        k(f"s_lshl_b32 s{sN}, s{sW}, 10")
    stat_ld = [([], Op(f"buffer_load_dwordx4 {ar(SP+4*i,4)}, v{vLin}, s[{SWS}:{SWS+3}], s{sSt} offen offset:{1024*(i%4)}", "vm"),
                [f"s_add_u32 s{sSt}, s{sSt}, 4096"] if i == 3 else [], None) for i in range(8)]
    cs_ld = [([], Op(f"buffer_load_dword {ar(CP+p)}, v{vTid}, s[{SWS}:{SWS+3}], s{sCp} offen", "vm"),
              [f"s_add_u32 s{sCp}, s{sCp}, {32*896}"], None) for p in range(8)]
    pro = []
    for i, (pre, ld, post, _) in enumerate(VM[0] if HALF else VM[0] + VM[1]):
        pro += [Op(x, "s") for x in pre] + ([Op("s_nop 0", "s")] if pre else []) + [ld] + [Op(x, "s") for x in post]
        if i == (7 if HALF else 14):
            cut = len(pro)
            pro.append(Op("s_barrier", "s"))
    pro, pro2 = pro[:cut], pro[cut:]
    misc = srd_tail(SWS, WS_SZ) + [
        f"s_lshl_b32 s{sSt}, s{sTB}, 13", f"s_add_u32 s{sSt}, s{sSt}, {STP}",
        f"s_mul_i32 s{sCp}, s{sFB}, 896", f"s_add_u32 s{sCp}, s{sCp}, {CSP}",
        f"v_add_u32 v{vR1}, {2*STG}, v{vLin}", f"v_add_u32 v{vR2}, {4*STG}, v{vLin}",
        f"v_lshlrev_b32 v{vTid}, 2, v0",
        f"v_lshrrev_b32 v{TA}, 4, v{TA+1}", f"v_lshlrev_b32 v{vCs}, 4, v{TA}", f"v_add_u32 v{vCs}, {TBL}, v{vCs}",
        f"v_and_b32 v{TA+2}, 1, v{TA}", f"v_lshlrev_b32 v{TA+2}, 10, v{TA+2}", f"v_lshrrev_b32 v{TA}, 1, v{TA}",
        f"v_lshl_add_u32 v{TA+2}, v{TA}, 8, v{TA+2}", f"v_and_b32 v{TA+1}, 15, v{TA+1}", f"v_lshl_add_u32 v{vOut}, v{TA+1}, 4, v{TA+2}",
        f"s_mul_i32 s{sT}, s{sTB}, {112*4096}", f"s_add_u32 s{sT}, s{sT}, {AF}", f"s_and_b32 s{sT2}, s{sFB}, 1", f"s_lshl_b32 s{sT2}, s{sT2}, 9",
        f"s_add_u32 s{sT}, s{sT}, s{sT2}", f"s_lshr_b32 s{sT2}, s{sFB}, 1", f"s_lshl_b32 s{sT2}, s{sT2}, 12", f"s_add_u32 s{sT}, s{sT}, s{sT2}",
        f"s_add_u32 s{sA1}, s{sT}, {96*4096}", f"s_lshr_b32 s{sT2}, s{sFB}, 4", f"s_mul_i32 s{sT2}, s{sT2}, {40*4096}", f"s_add_u32 s{sA0}, s{sT}, s{sT2}"]
    pro += [Op(x, "s") for x in misc]
    if OPT.get("k3pf", 1):
        pro += [Op(x, "s") for x in ["s_getpc_b64 s[16:17]", f"s_lshr_b32 s{sT}, s2, 3", f"s_lshl_b32 s{sT}, s{sT}, 10",
                                     f"v_add_u32 v{TA}, s{sT}, v{vTid}", f"v_min_u32 v{TA}, L_code_end-L_k3_pf-4, v{TA}", "L_k3_pf:"]]
        pro.append(Op(f"global_load_dword v{TC}, v{TA}, s[16:17]", "vm"))

    if OPT.get("isl", 1):
        pro.append(Op(island(), "s"))
    seg0 = len(pro)
    pro += pro2
    order = [a for p in range(7) for a in (p, p + 7)]
    S0 = 12
    seq = [(n, a) for n in range(S0) for a in order]
    seq += [(n, a) for p in range(7) for n in range(S0, 16) for a in (p, p + 7)]
    NT_ = len(seq)
    mf, fixed = [], [[] for _ in range(8 * NT_)]
    RD = []
    for gt, (n, a) in enumerate(seq):
        sl = slot(n)
        fr = [(a, 0), (a, 1)] if not (HALF and n == 0) else [(gt % 7, gt // 7), (gt % 7 + 7, gt // 7)]
        RD.append([Op(f"ds_read_b128 {ar(WF[gt%4][e],4)}, v{[vLin,vR1,vR2][sl>>1]} offset:{(sl&1)*STG+s*14336+t*1024}", "lds") for e, (t, s) in enumerate(fr)])
        bs = range(4) if gt % 2 == 0 else range(3, -1, -1)
        for b in bs:
            for e, (t, s) in enumerate(fr):
                mf.append(Op(m16(vr(acc[t][b], 4), ar(WF[gt % 4][e], 4), ar(TK[sl][s][b], 4), "0" if (n == 0 and s == 0) else None), "m"))
    first = {}
    for gt, (n, a) in enumerate(seq):
        first.setdefault(n, gt)
    barpos = {}
    for gt in range(NT_):
        if gt + 2 < NT_:
            fixed[8 * gt].append(RD[gt + 2][0]); fixed[8 * gt + 1].append(RD[gt + 2][1])
        newst = [n for n in range(1, 16) if first[n] == gt + 3]
        if HALF and gt == 4:
            newst = [0]
        if newst:
            fixed[8 * gt + 7].append(Op("", "wait", [x[1] for x in VM[newst[0]]], bar=True))
            barpos[newst[0]] = 8 * gt + 7
        elif gt + 1 < NT_:
            fixed[8 * gt + 7].append(Op("", "wait", RD[gt + 1]))
    flat = (VM[1] if HALF else []) + VM[2] + VM[3] + VM[4] + stat_ld + cs_ld + [x for n in range(5, 16) for x in VM[n]]
    nfast = OPT.get("k3fast", 15) if HALF else 0
    slots = [8 * gt + o for gt in range(S0 * 14) for o in (3, 6)]
    nsl = len(slots) - 2 * OPT.get("k3lead", 8)
    vpos = {}
    si = -1
    for i, (pre, ld, post, n) in enumerate(flat):
        si = max(si + 1, nfast + ((i - nfast) * (nsl - nfast)) // (len(flat) - nfast) if i >= nfast else 0)
        if n is not None and n >= NS:
            lim = barpos[n - NS + 1] + 2 if "lds" in ld.text else 8 * 14 * (n - NS + 1)
            while slots[si] < lim:
                si += 1
        p = slots[si]
        fixed[p - 1] += [Op(x, "s") for x in pre]
        fixed[p] += [ld] + [Op(x, "s") for x in post]
        vpos[id(ld)] = p
    used = [sum(o.cost for o in f if not (o.kind == "wait" and False)) for f in fixed]
    flo = [[] for _ in fixed]

    def flow(ops, start, deadline=None):
        p = start
        for o in ops:
            while used[p] + o.cost > 8:
                p += 1
            flo[p].append(o); used[p] += o.cost
        assert deadline is None or p < deadline, (p, deadline)
        return p + 1

    def spread(ops, start, stop):
        tot = sum(o.cost for o in ops) + sum(used[start:stop])
        cap = max(8.0, tot / (stop - start))
        p, acc_used, acc_cap = start, used[start], cap
        for o in ops:
            while acc_used + o.cost > acc_cap + 2 and p < stop - 1:
                p += 1
                if cap == 8.0:
                    acc_used, acc_cap = used[p], cap
                else:
                    acc_used += used[p]; acc_cap += cap
            flo[p].append(o); acc_used += o.cost
        return p
    V = lambda t: Op(t, "v")
    st = [Op("", "wait", [x[1] for x in stat_ld + cs_ld])]
    st += [V(f"v_accvgpr_read_b32 v{TC}, a{CP}")]
    for p in range(1, 8):
        st += [V(f"v_accvgpr_read_b32 v{TB_}, a{CP+p}"), V(f"v_add_f32 v{TC}, v{TC}, v{TB_}")]
    st += [V(f"v_add_u32 v{vTid}, {TBL}, v{vTid}"), Op(f"ds_write_b32 v{vTid}, v{TC}", "lds")]
    for hf in range(2):
        A = TA
        st += [V(f"v_accvgpr_read_b32 v{A+r}, a{SP+16*hf+r}") for r in range(4)]
        for i in range(1, 4):
            st += [V(f"v_accvgpr_read_b32 v{TB_+r}, a{SP+16*hf+4*i+r}") for r in range(4)]
            st += [V(f"v_add_f32 v{A+r}, v{A+r}, v{TB_+r}") for r in range(4)]
        for op in ("v_permlane16_swap_b32", "v_permlane32_swap_b32"):
            st += [V(f"v_mov_b32 v{TB_+r}, v{A+r}") for r in range(4)]
            st += [V(f"{op} v{A+r}, v{TB_+r}") for r in range(4)]
            st += [V(f"v_add_f32 v{A+r}, v{A+r}, v{TB_+r}") for r in range(4)]
        for b in (2 * hf, 2 * hf + 1):
            sd = SD[b >> 1] + (b & 1)
            st += [V(f"v_mul_f32 v{PA[b]+1}, {f32(-1/1024)}, v{A+2*(b&1)}"),
                   V(f"v_mul_f32 v{PA[b]}, {f32(1/1024)}, v{A+2*(b&1)+1}"),
                   V(f"v_fma_f32 v{PA[b]}, -v{PA[b]+1}, v{PA[b]+1}, v{PA[b]}"),
                   V(f"v_max_f32 v{PA[b]}, 0, v{PA[b]}"),
                   V(f"v_add_f32 v{sd}, {f32(EPS)}, v{PA[b]}"),
                   Op(f"v_rsq_f32 v{PA[b]}, v{sd}", "t"), V("v_nop"),
                   V(f"v_mul_f32 v{sd}, v{sd}, v{PA[b]}"),
                   V(f"v_mul_f32 v{PA[b]}, {f32(-LOG2E)}, v{PA[b]}")]
    p = flow(st, vpos[id(cs_ld[-1][1])] + 90)
    n0 = min(n for n in range(1, S0) if barpos[n] >= p)
    p = barpos[n0] + 1
    todo = list(order)
    step = (8 * 14 * S0 - 40 - p) // 14
    for i in range(14):
        cur = lambda a: all(seq[q // 8][1] != a for q in range(p - 2, p + 48))
        cand = [a for a in todo if cur(a)]
        while not cand:
            p += 4
            cand = [a for a in todo if cur(a)]
        a = cand[0]
        todo.remove(a)
        C = [TA, TC][i & 1]
        r = Op(f"ds_read_b128 {vr(C,4)}, v{vCs} offset:{64*a}", "lds")
        ops = [V(f"v_fmac_f32 v{acc[a][b]+e}, v{PA[b]+1}, v{C+e}") for b in range(4) for e in range(4)]
        q = flow([r], p)
        q = flow([Op("", "wait", [r])] + ops, q + 6, p + 46)
        p = max(q, p + min(step, 24))
    assert p < barpos[15], p
    def epi(pr, packed):
        o = []
        for bb in (0, 2):
            d = acc[pr][bb]
            for b in (bb, bb + 1):
                g_, u = acc[pr][b], acc[pr + 7][b]
                sd = SD[b >> 1] + (b & 1)
                if packed:
                    sel = f"op_sel:[0,{b&1},{b&1}] op_sel_hi:[1,{b&1},{b&1}]"
                    o += [V(f"v_pk_mul_f32 {vr(g_+h,2)}, {vr(g_+h,2)}, {vr(PA[b],2)} op_sel:[0,0] op_sel_hi:[1,0]") for h in (0, 2)]
                    o += [Op(f"v_exp_f32 v{g_+r}, v{g_+r}", "t") for r in range(4)]
                    o += [V(f"v_pk_fma_f32 {vr(g_+h,2)}, {vr(g_+h,2)}, {vr(SD[b>>1],2)}, {vr(SD[b>>1],2)} {sel}") for h in (0, 2)]
                    o += [Op(f"v_rcp_f32 v{g_+r}, v{g_+r}", "t") for r in range(4)]
                    o += [V(f"v_pk_mul_f32 {vr(u+h,2)}, {vr(u+h,2)}, {vr(g_+h,2)}") for h in (0, 2)]
                else:
                    o += [V(f"v_mul_f32 v{g_+r}, v{PA[b]}, v{g_+r}") for r in range(4)]
                    o += [Op(f"v_exp_f32 v{g_+r}, v{g_+r}", "t") for r in range(4)]
                    o += [V(f"v_fma_f32 v{g_+r}, v{g_+r}, v{sd}, v{sd}") for r in range(4)]
                    o += [Op(f"v_rcp_f32 v{g_+r}, v{g_+r}", "t") for r in range(4)]
                    o += [V(f"v_mul_f32 v{u+r}, v{u+r}, v{g_+r}") for r in range(4)]
                o += [V(f"v_cvt_pk_bf16_f32 v{d+2*(b&1)}, v{u}, v{u+1}"), V(f"v_cvt_pk_bf16_f32 v{d+2*(b&1)+1}, v{u+2}, v{u+3}")]
            o += [V("v_nop"), V(f"v_permlane16_swap_b32 v{d}, v{d+2}"), V(f"v_permlane16_swap_b32 v{d+1}, v{d+3}")]
            sa = sA1 if pr == 6 else sA0
            o.append(Op(f"buffer_store_dwordx4 {vr(d,4)}, v{vOut}, s[{SWS}:{SWS+3}], s{sa} offen offset:{1024*bb} sc1", "vm"))
        o.append(Op(f"s_add_u32 s{sa}, s{sa}, {8*4096}", "s"))
        return o
    run = 8 * 2 * (16 - S0)
    t0 = 8 * 14 * S0
    D, N1, K = OPT.get("dd", 3), OPT.get("n1", 26), 3584
    N2 = 56 - 2 * N1
    NST = N1 + N2
    S = lambda t: Op(t, "s")
    dTB, dNB, dXo, dXp, dWo, dM, dM2, dRes, dX0, dX1, dSig, dPol, dSigA, dPolA, dJ = range(44, 59)
    aT, aWd = [TA, TA + 1, TA + 2], [TB_, TB_ + 1, TB_ + 2]
    vRow, vP, vOne, T0, T1 = TA + 3, TB_ + 3, TC, TC + 1, TC + 2
    pool = acc[0] + acc[1] + acc[7] + acc[8]
    dacc = [[pool[4 * t + i] for i in range(4)] for t in range(4)]
    RES = [[128 + 8 * i + 4 * b for b in range(2)] for i in range(2)]
    SND = [[acc[9][2 * i + b] for b in range(2)] for i in range(2)]
    RCV = [[dacc[2 * b][2 + i] for b in range(2)] for i in range(2)]
    F = [[dict(X=[f0 + 32 * s + 4 * i for i in range(4)], W=[f0 + 32 * s + 16 + 4 * t for t in range(4)]) for s in range(2)] for f0 in (192, 0)]
    dslot = lambda n: (4 - n) % 5
    setup = [S(x) for x in srd_tail(SO, 4 * MB) + [
        f"s_bfe_u32 s{dNB}, s2, 0x20003", f"s_and_b32 s{sT}, s2, 1", f"s_lshl_b32 s{sT}, s{sT}, 2", f"s_add_u32 s{dNB}, s{dNB}, s{sT}",
        f"s_lshr_b32 s{dTB}, s2, 5", f"s_and_b32 s{sT}, s2, 4", f"s_lshl_b32 s{sT}, s{sT}, 1", f"s_add_u32 s{dTB}, s{dTB}, s{sT}",
        f"s_lshr_b32 s{dPol}, s{dTB}, 1", f"s_lshl_b32 s{dPol}, s{dPol}, 10", f"s_add_u32 s{dPol}, s{dPol}, {FL2}",
        f"s_lshl_b32 s{dSig}, s{sMB}, 10", f"s_add_u32 s{dSig}, s{dSig}, {FL2}",
        f"s_cmp_eq_u32 s{sW}, 0\ns_cselect_b32 s{dSig}, s{dSig}, {OOB}",
        f"s_lshl_b32 s{dTB}, s{dTB}, 1", f"s_bfe_u32 s{sT}, s2, 0x10001", f"s_add_u32 s{dTB}, s{dTB}, s{sT}",
        f"s_lshl_b32 s{dPolA}, s{sT}, 7", f"s_add_u32 s{dPolA}, s{dPolA}, s{dPol}",
        f"s_lshr_b32 s{dSigA}, s{sFB}, 4", f"s_lshl_b32 s{dSigA}, s{dSigA}, 7", f"s_add_u32 s{dSigA}, s{dSigA}, s{dSig}",
        f"s_lshl_b32 s{dM}, s{sW}, 11", f"s_lshl_b32 s{dM2}, s{sW}, 12",
        f"s_mul_i32 s{dJ}, s{sT}, {(N1-48)*8192}", f"s_add_u32 s{dJ}, s{dJ}, {24*8192}",
        f"s_mul_i32 s{sT}, s{sT}, {24*8192}", f"s_add_u32 s{sT}, s{sT}, s{dM}",
        f"s_mul_i32 s{dWo}, s{dNB}, {K*128}", f"s_add_u32 s{dWo}, s{dWo}, s{sT}", f"s_lshl_b32 s{dWo}, s{dWo}, 1", f"s_add_u32 s{dWo}, s{dWo}, {WDF}",
        f"s_add_u32 s{sT}, s{sT}, {AF}", f"s_mul_i32 s{dXo}, s{dTB}, {K*128}", f"s_add_u32 s{dXo}, s{dXo}, s{sT}",
        f"s_xor_b32 s{dXp}, s{dTB}, 1", f"s_mul_i32 s{dXp}, s{dXp}, {K*128}", f"s_add_u32 s{dXp}, s{dXp}, s{sT}",
        f"s_lshr_b32 s{sT}, s{sW}, 1", f"s_lshl_b32 s{sT2}, s{dNB}, 1", f"s_add_u32 s{sT2}, s{sT2}, s{sT}",
        f"s_lshl_b32 s{sT}, s{sT}, 12", f"s_add_u32 s{sT}, s{sT}, 16384"]]
    setup += [V(f"v_add_u32 v{aWd[0]}, s{sT}, v{vLin}"), V(f"v_add_u32 v{aWd[1]}, 0x10000, v{aWd[0]}"), V(f"v_add_u32 v{aWd[2]}, 0x20000, v{aWd[0]}")]
    setup += [S(x) for x in [f"s_and_b32 s{sT}, s{sW}, 1", f"s_lshl_b32 s{sT}, s{sT}, 11"]]
    setup += [V(f"v_add_u32 v{aT[0]}, s{sT}, v{vLin}"), V(f"v_add_u32 v{aT[1]}, 0x10000, v{aT[0]}"), V(f"v_add_u32 v{aT[2]}, 0x20000, v{aT[0]}")]
    setup += [S(x) for x in [
        f"s_lshl_b32 s{dRes}, s{sT2}, 13", f"s_add_u32 s{dRes}, s{dRes}, s{sT}", f"s_lshl_b32 s{dX0}, s{dTB}, 17", f"s_add_u32 s{dRes}, s{dRes}, s{dX0}",
        f"s_lshl_b32 s{sT}, s{sT}, 5", f"s_add_u32 s{sT}, s{sT}, s{dX0}", f"s_lshl_b32 s{sT2}, s{sT2}, 7", f"s_add_u32 s{sT}, s{sT}, s{sT2}"]]
    setup += [V(f"v_and_b32 v{T0}, 0xf0, v{vLin}"), V(f"v_lshlrev_b32 v{T0}, 7, v{T0}"), V(f"v_lshrrev_b32 v{T1}, 8, v{vLin}"),
              V(f"v_lshl_add_u32 v{T0}, v{T1}, 4, v{T0}"), V(f"v_add_u32 v{vRow}, s{sT}, v{T0}"), V(f"v_mov_b32 v{vOne}, 1")]
    setup += [S(f"s_add_u32 s{dX0}, s{dRes}, {HF}"), S(f"s_add_u32 s{dX1}, s{dRes}, {HF+4096}")]
    setup += [S(f"s_lshr_b32 s{sT}, s2, 5"), S(f"s_add_u32 s{sT}, s{sT}, 2"), S(f"s_lshl_b32 s{sT}, s{sT}, 14"), S(f"s_add_u32 s{sT}, s{sT}, s{dWo}"),
              V(f"v_lshlrev_b32 v{T0}, 2, v{vLin}")]
    pset = flow(setup, max(p, t0 - 60), t0 + 16)

    def dma(m0, so, n, step):
        o = [[S(f"s_add_u32 m0, {m0}"), S("s_nop 0")]] + [[] for _ in range(n - 1)]
        for i in range(n):
            o[i].append(Op(f"buffer_load_dwordx4 v{vLin}, s[{SWS}:{SWS+3}], s{so} offen offset:{1024*i}{' sc1' if so != dWo else ''} lds", "vm"))
        o[-1].append(S(f"s_add_u32 s{so}, s{so}, {step}"))
        return o
    DX, DW = [], []
    for n in range(NST):
        base = dslot(n) * 32768
        x = dma(f"s{dM}, {base}", dXo, 2, 8192) + (dma(f"s{dM}, {base+8192}", dXp, 2, 8192) if n < N1 else [])
        w = dma(f"s{dM2}, {base+16384}", dWo, 4, 16384)
        if n == 24 and N1 > 24:
            x[0] = [S(f"s_add_u32 s{dXo}, s{dXo}, s{dJ}"), S(f"s_add_u32 s{dXp}, s{dXp}, s{dJ}")] + x[0]
            w[0] = [S(f"s_add_u32 s{dWo}, s{dWo}, s{dJ}"), S(f"s_add_u32 s{dWo}, s{dWo}, s{dJ}")] + w[0]
        if n == N1:
            x[0] = [S(f"s_mul_i32 s{dXo}, s{dTB}, {K*128}"), S(f"s_add_u32 s{dXo}, s{dXo}, s{dM}"), S(f"s_add_u32 s{dXo}, s{dXo}, {AF+2*N1*8192}")] + x[0]
            w[0] = [S(f"s_mul_i32 s{dWo}, s{dNB}, {K*256}"), S(f"s_add_u32 s{dWo}, s{dWo}, s{dM2}"), S(f"s_add_u32 s{dWo}, s{dWo}, {WDF+2*N1*16384}")] + w[0]
        DX.append(x); DW.append(w)
    vms = lambda gs: [o for g_ in gs for o in g_ if o.kind == "vm"]
    res = [Op(f"buffer_load_dwordx4 {ar(RES[i][b],4)}, v{vLin}, s[{SWS}:{SWS+3}], s{[dX0,dX1][b]} offen offset:{1024*i}", "vm") for i in range(2) for b in range(2)]
    signal = lambda w: Op(f"s_mov_b64 exec, 1\nbuffer_atomic_add v{vOne}, off, s[{SWS}:{SWS+3}], s{[dSigA,dSigA,dSig][w]} offset:{256*w} sc1\ns_mov_b64 exec, -1", "vm")
    polltxt = lambda w: f"buffer_load_dword v{vP}, off, s[{SWS}:{SWS+3}], s{[dPolA,dPolA,dPol][w]} offset:{256*w} sc1"
    POL = [Op(polltxt(w), "vm") for w in range(3)]
    pcheck = lambda w: [Op("", "wait", [POL[w]]), S(f"v_cmp_ne_u32 vcc, {[16,16,32][w]}, v{vP}\ns_nop 1\ns_cbranch_vccnz L_ffn_spin{w}\nL_ffn_go{w}:")]

    def put(pos, group):
        if len(group) > 2 and group[1].text == "s_nop 0":
            put(pos - 1, group[:1])
            group = group[2:]
        fixed2[pos] += group
        used[pos] += sum(o.cost for o in group)
    fixed2 = [[] for _ in fixed]
    EP = [epi(pr, False) for pr in range(6)]
    qa = t0 + 3 * run + 8 * OPT.get("siga", 4) + 7
    fixed[qa] = [Op("", "wait", vms([EP[0], EP[1]]), bar=True)]
    put(qa + 3, [signal(0)])
    q = t0 + 19
    for g_ in DW[0] + DW[1] + [[r] for r in res]:
        put(q, g_); q += 3 if q % 8 == 3 else 5
    for i in range(OPT.get("wpf", 2)):
        put(t0 + OPT.get("wpr", 139) + OPT.get("wps", 64) * i, [Op(f"buffer_load_dword v{T1}, v{T0}, s[{SWS}:{SWS+3}], s{sT} offen", "vm"), S(f"s_add_u32 s{sT}, s{sT}, {8*16384}")])
    put(t0 + 5 * run + OPT.get("pola", 30), [POL[0]])
    q = t0 + 6 * run + OPT.get("chka", 4)
    put(q, pcheck(0))
    for i, g_ in enumerate(DX[0]):
        put(q + 2 + 2 * i, g_)
    b0 = 8 * (NT_ - 3) + 7
    fixed[b0] = [Op("", "wait", vms(DX[0] + DW[0] + EP[:5]), bar=True)]
    for i, g_ in enumerate(DX[1] + DX[2]):
        put(b0 + 2 + 2 * i - (i == 7), g_)
    for pr in range(6):
        spread(EP[pr], t0 + run * (pr + 1), t0 + run * (pr + 2))
    ops = pro + [Op("", "wait", [x[1] for x in VM[0][:8 if HALF else 15]], bar=True)]
    if OPT["stamp"]:
        ops.append(Op("s_memrealtime s[96:97]\ns_memtime s[84:85]\ns_waitcnt lgkmcnt(0)", "s"))
    ops += RD[0] + RD[1] + [Op("", "wait", RD[0])]
    seg = dict(n=4, last=seg0)

    def page(room):
        if OPT.get("isl", 1):
            seg["n"] += sum(isize(o.text) for o in ops[seg["last"]:])
            seg["last"] = len(ops)
            if seg["n"] + room > 4088:
                ops.append(Op(island(), "s"))
                seg["n"], seg["last"] = 4, len(ops)
    npf = [0]

    def prof():
        if OPT.get("prof"):
            j = npf[0]; npf[0] += 1
            ops.append(S((f"v_writelane_b32 v{vSt}, s60, {j-1}\n" if j else "") + ("s_memtime s[60:61]" if OPT["prof"] == 1 else "s_memrealtime s[60:61]")))
    for i, m in enumerate(mf):
        if i in [112 * n for n in range(S0)] + [t0 + run * pr for pr in range(7)]:
            prof()
        if not fixed[i - 1]:
            page(160)
        late = [o for o in fixed[i] if o.kind == "wait"]
        ops += [m] + [o for o in fixed[i] if o.kind != "wait"] + late + fixed2[i] + flo[i]
    if OPT["stamp"]:
        ops.append(Op("s_memrealtime s[98:99]\ns_memtime s[86:87]", "s"))

    def dreads(n):
        f, sl = n & 1, dslot(n)
        o = []
        for s in range(2):
            o += [Op(f"ds_read_b128 {ar(F[f][s]['X'][i],4)}, v{aT[sl>>1]} offset:{(sl&1)*32768+(i>>1)*8192+s*4096+(i&1)*1024}", "lds") for i in range(4 if n < N1 else 2)]
            o += [Op(f"ds_read_b128 {ar(F[f][s]['W'][t],4)}, v{aWd[sl>>1]} offset:{(sl&1)*32768+s*8192+t*1024}", "lds") for t in range(4)]
        return o

    def dmf(n, tiles):
        f = n & 1
        return [Op(m16(vr(dacc[t][i], 4), ar(F[f][s]["W"][t], 4), ar(F[f][s]["X"][i], 4), "0" if (n == 0 and s == 0 and i >= 2) else None), "m")
                for t in range(4) for i in (tiles if t % 2 == 0 else tiles[::-1]) for s in range(2)]
    E6 = epi(6, True)
    init = [Op("", "wait", res)]
    for i in range(2):
        for b in range(2):
            for jt in range(2):
                for h in range(2):
                    a, r = dacc[2 * b + jt][i] + 2 * h, RES[i][b] + 2 * jt + h
                    init += [V(f"v_accvgpr_read_b32 v{a+1}, a{r}"), V(f"v_lshlrev_b32 v{a}, 16, v{a+1}"), V(f"v_and_b32 v{a+1}, 0xffff0000, v{a+1}")]
    init += [S(f"s_xor_b32 s{dX0}, s{dRes}, {1<<17}"), S(f"s_add_u32 s{dX1}, s{dX0}, {XB+4096}"), S(f"s_add_u32 s{dX0}, s{dX0}, {XB}")]
    prof()
    page(1250)
    todo = [(n, g_) for n in range(3, NST) for g_ in DX[n] + DW[n]]
    NZ = OPT.get("nz", 0)
    ops += weave(E6 + dreads(0) + init, DW[2] + [[signal(1)]] + [g_ for _, g_ in todo[:NZ]], 4)
    tgt = sum(1 for n, _ in todo if n <= N1 + D + 1)
    assert OPT.get("rl", 1) < N2
    done = NZ
    snd = []
    for b in range(2):
        for i in range(2):
            o = SND[i][b]
            for jt in range(2):
                a = dacc[2 * b + jt][2 + i]
                snd += [[V(f"v_cvt_pk_bf16_f32 v{o+2*jt}, v{a}, v{a+1}"), V(f"v_cvt_pk_bf16_f32 v{o+2*jt+1}, v{a+2}, v{a+3}")]]
            snd += [[V(f"v_min_u32 v{o+r}, -2, v{o+r}") for r in (0, 1)], [V(f"v_min_u32 v{o+r}, -2, v{o+r}") for r in (2, 3)] +
                    [Op(f"buffer_store_dwordx4 {vr(o,4)}, v{vLin}, s[{SWS}:{SWS+3}], s{[dX0,dX1][b]} offen offset:{1024*i} sc1", "vm")]]
    rcvt = [f"buffer_load_dwordx4 {vr(RCV[i][b],4)}, v{vLin}, s[{SWS}:{SWS+3}], s{[dX0,dX1][b]} offen offset:{1024*i} sc1" for i in range(2) for b in range(2)]
    gate = {8: 1, 20: 2}
    upto = lambda n: max(NZ + ((tgt - NZ) * n) // N1, sum(1 for m, _ in todo if m <= n + 2)) if n <= N1 else sum(1 for m, _ in todo if m <= n + D + 1)
    first_of = {m: min(i for i, (q, _) in enumerate(todo) if q == m) for m in gate}
    for n in range(1, NST):
        page(860)
        ops.append(Op("", "wait", vms(DX[n] + DW[n] + ([E6] if n == OPT.get("sigb", 3) else [])), bar=True))
        prof()
        ld = []
        for i in range(done, upto(n)):
            assert todo[i][0] <= n + 4
            if todo[i][0] in gate and first_of[todo[i][0]] == i:
                ld.append(pcheck(gate[todo[i][0]]))
            ld.append(todo[i][1])
        done = upto(n)
        assert done == len(todo) or todo[done][0] > n + 1
        for m, w in gate.items():
            if upto(n) <= first_of[m] < upto(n + 1):
                ld = [[POL[w]]] + ld
        if n == OPT.get("sigb", 3):
            ld = [[signal(2)]] + ld
        if n == N1 + 1:
            ld = ld + [[S(f"s_add_u32 s{dX0}, s{dRes}, {XB}"), S(f"s_add_u32 s{dX1}, s{dRes}, {XB+4096}")]]
        if n == NST - OPT.get("rl", 1):
            ld = ld + [[Op(x, "vm")] for x in rcvt]
        mm = dmf(n - 1, [0, 1, 2, 3]) if n < N1 else (dmf(n - 1, [2, 3]) + dmf(n - 1, [0, 1]) if n == N1 else dmf(n - 1, [0, 1]))
        sl = [[] for _ in mm]
        rd = dreads(n)
        for i, r in enumerate(rd):
            sl[i * (len(mm) * 5 // 8) // len(rd)].append(r)
        for i, g_ in enumerate(ld):
            q = (i * (len(mm) if n != N1 else 18)) // len(ld)
            if q and len(g_) > 2 and g_[1].text == "s_nop 0" and not any(o.kind == "vm" for o in sl[q]):
                sl[q - 1].append(g_[0])
                g_ = g_[2:]
            sl[q] += g_
        if n == N1:
            for i, g_ in enumerate(snd):
                sl[16 + i] += g_
        for m, e in zip(mm, sl):
            ops += [m] + e
    ops.append(Op("", "wait", rd))
    page(1200)
    ops += dmf(NST - 1, [0, 1])
    prof()
    ops.append(S("s_waitcnt lgkmcnt(0)" if OPT.get("prof") else "s_nop 0"))
    prof()
    emit_stream(k, ops)
    xstamp(k, 0)
    k(f"s_mov_b32 s{sN}, {1<<20}")
    k.label("L_ffn_chk")
    k("s_waitcnt vmcnt(0)")
    rr = [RCV[i][b] + r for i in range(2) for b in range(2) for r in range(4)]
    k(f"v_max3_u32 v{T0}, v{rr[0]}, v{rr[1]}, v{rr[2]}", f"v_max3_u32 v{T1}, v{rr[3]}, v{rr[4]}, v{rr[5]}")
    for j in range(6, 16, 2):
        t = [T0, T1][(j // 2) & 1]
        k(f"v_max3_u32 v{t}, v{rr[j]}, v{rr[j+1]}, v{t}")
    k(f"v_max_u32 v{T0}, v{T0}, v{T1}", f"v_cmp_eq_u32 vcc, -1, v{T0}", f"s_sub_u32 s{sN}, s{sN}, 1", "s_cbranch_scc1 L_ffn_out",
      "s_cbranch_vccz L_ffn_out", "s_sleep 2", rcvt, "s_branch L_ffn_chk")
    k.label("L_ffn_out")
    k(f"s_mov_b32 s{sN}, 32768")
    U = acc[3][0]
    for i in range(2):
        for b in range(2):
            o = acc[10][2 * i + b]
            for jt in range(2):
                a, q = dacc[2 * b + jt][i], RCV[i][b] + 2 * jt
                k(f"v_lshlrev_b32 v{U}, 16, v{q}", f"v_and_b32 v{U+1}, 0xffff0000, v{q}",
                  f"v_lshlrev_b32 v{U+2}, 16, v{q+1}", f"v_and_b32 v{U+3}, 0xffff0000, v{q+1}",
                  f"v_pk_add_f32 {vr(a,2)}, {vr(a,2)}, {vr(U,2)}", f"v_pk_add_f32 {vr(a+2,2)}, {vr(a+2,2)}, {vr(U+2,2)}",
                  f"v_cvt_pk_bf16_f32 v{o+2*jt}, v{a}, v{a+1}", f"v_cvt_pk_bf16_f32 v{o+2*jt+1}, v{a+2}, v{a+3}")
            k(f"buffer_store_dwordx4 {vr(o,4)}, v{vRow}, s[{SO}:{SO+3}], {['0', f's{sN}'][i]} offen offset:{64*b} sc1")
    if OPT.get("prof"):
        k("s_lshl_b32 s3, s89, 2", f"s_add_u32 s3, s3, s{sW}", "s_lshl_b32 s3, s3, 8", f"s_add_u32 s3, s3, {STAMP+2*MB}",
          f"v_lshrrev_b32 v{T0}, 2, v{vLin}", f"buffer_store_dword v{vSt}, v{T0}, s[{SWS}:{SWS+3}], s3 offen sc1")
    tail(k, 1, sW)
    for w in range(3):
        k.label(f"L_ffn_spin{w}")
        k(f"s_mov_b32 s{sN}, {1<<20}")
        k.label(f"L_ffn_spin{w}b")
        k(f"s_sleep {OPT.get('spsl', 4)}", polltxt(w), "s_waitcnt vmcnt(0)", f"v_cmp_ne_u32 vcc, {[16,16,32][w]}, v{vP}", f"s_sub_u32 s{sN}, s{sN}, 1", f"s_cbranch_scc1 L_ffn_go{w}",
          f"s_cbranch_vccnz L_ffn_spin{w}b", f"s_branch L_ffn_go{w}")
    return k


HEADER = open("sequential_preLN__grouped_kv_mqa__glu_gated_glu__prompt.s.ref").read().split("; Override launch")[0]


DOC = """;
; L_isl*: page-aligned landing pads that an idle wave walks once so that the code pages are in the instruction cache.
"""


def k_diag():
    k = Kern("diag_kernel", 1, 64, 0)
    k.vgpr = k.acc = 8
    a, b, m = OPT["da"], OPT["db"], OPT["dm"]
    off = lambda x: STAMP + (x // 10) * 16384 + (x % 10) * 4 + OPT.get("dwg", 0) * 64
    k("s_cmp_ge_u32 s2, 1", "s_cbranch_scc1 L_diag_end", "s_load_dwordx2 s[4:5], s[0:1], 88", "s_waitcnt lgkmcnt(0)",
      f"v_mov_b32 v1, {off(a)}", f"v_mov_b32 v2, {off(b)}", "global_load_dword v3, v1, s[4:5]", "global_load_dword v4, v2, s[4:5]",
      "s_memrealtime s[8:9]", "s_waitcnt vmcnt(0) lgkmcnt(0)", "v_mov_b32 v4, s8" if OPT.get("dself") else None, "v_sub_u32 v3, v4, v3", "s_nop 1", "v_readfirstlane_b32 s6, v3", "s_nop 3",
      "s_min_u32 s6, s6, 20000", f"s_mul_i32 s6, s6, {m}")
    k.label("L_diag_loop")
    k("s_memrealtime s[10:11]", "s_waitcnt lgkmcnt(0)", "s_sub_u32 s10, s10, s8", "s_cmp_lt_u32 s10, s6", "s_cbranch_scc1 L_diag_loop")
    k.label("L_diag_end")
    k("s_endpgm")
    return k


def build():
    ks = [k01_attn(), k3_gateup()]
    if "dm" in OPT:
        ks.append(k_diag())
    if OPT.get("mark"):
        m = Kern("mark_kernel", 1, 64, 0)
        m.vgpr = m.acc = 8
        m("s_memrealtime s[8:9]", "s_cmp_ge_u32 s2, 1", "s_cbranch_scc1 L_mark_end", "s_load_dwordx2 s[4:5], s[0:1], 88", "s_waitcnt lgkmcnt(0)",
          f"v_mov_b32 v1, {STAMP+5*16384}", "v_mov_b32 v2, s8", "global_store_dword v1, v2, s[4:5] sc1", "L_mark_end:", "s_endpgm")
        ks.append(m)
    s = HEADER + "".join(ks[int(c)].launch_line() + "\n" for c in str(OPT.get("seq", "".join(str(i) for i in range(len(ks))))).lstrip("9"))
    s += DOC
    s += '.amdgcn_target "amdgcn-amd-amdhsa--gfx950"\n.text\n'
    for i, k in enumerate(ks):
        s += k.text()
        if i == 0:
            s += "L_code_rest:\n"
    s += "L_code_end:\n"
    chain = [n for n, back in ISL if back is None]
    for n, back in ISL:
        if back:
            s = s.replace(f"@ISL{n}@", f"s_branch {back}")
    for i, n in enumerate(chain):
        s = s.replace(f"@ISL{n}@", f"s_branch L_isl{chain[i+4]}" if i + 4 < len(chain) else "s_endpgm")
        s = s.replace(f"@HOP{i}@", f"L_isl{n}")
    s += '.section .rodata,"a"\n' + "".join(k.desc() for k in ks)
    return s


if __name__ == "__main__":
    out = sys.argv[1]
    for a in sys.argv[2:]:
        key, _, val = a.partition("=")
        OPT[key] = int(val) if val else True
    open(out, "w").write(build())
```

```python
import sys, math
sys.path.insert(0, __file__.rsplit("/", 1)[0])
from asmlib import *

MB = 1 << 20
QF, KVF, OF, HF, AF = 0, 4 * MB, 5 * MB, 9 * MB, 13 * MB
WOF, WGU, WDF, CSP, STP, STAMP = 28 * MB, 30 * MB, 44 * MB, 52 * MB, 53 * MB, 60 * MB
XB = 0
XB4 = [HF, XB, 56 * MB, 64 * MB]
FLG = 54 * MB
ST1 = 55 * MB
FL2 = FLG + 65536
WS_SZ = 72 * MB
OOB = 0x40000000
LOG2E = 1.4426950408889634
QSCALE = LOG2E / math.sqrt(32.0)
EPS = 1e-5
OPT = dict(stamp=False, force_slow=False)
A_X, A_WQ, A_WK, A_WV, A_WO, A_WG, A_WU, A_WD, A_OUT, A_WS = 0, 8, 16, 24, 32, 48, 56, 64, 72, 88


def ws_shift(s):
    if OPT.get("wsoff"):
        return [f"s_add_u32 s{s}, s{s}, {OPT['wsoff']*MB}", f"s_addc_u32 s{s+1}, s{s+1}, 0"]
    return []


ISL = []


def island(back=None, jump=True):
    if not OPT.get("isl", 1):
        return None
    n = len(ISL)
    ISL.append((n, back))
    skip = f".fill {OPT.get('skip', 1024)//4}, 4, 0xbf800000\n" if (back and OPT.get("skip", 1024)) else ""
    return (f"s_branch L_isl{n}_over\n" if jump else "") + f".p2align 12\n{skip}L_isl{n}:\n@ISL{n}@\nL_isl{n}_over:"


def isize(text):
    import re
    t = 0
    for ln in text.split("\n"):
        ln = ln.strip()
        if not ln:
            t += 8
        elif ln.endswith(":") or ln.startswith("."):
            continue
        elif re.match(r"(v_mfma|v_smfmac|ds_|buffer_|global_|s_load|s_mem|v_fma_|v_cvt_pk|v_accvgpr|v_pk_|v_lshl_add|v_bfe|v_max3|v_maximum3|v_mul_lo)", ln):
            t += 8
        else:
            lit = [x for x in re.findall(r"(?<![\w\[:])(0x[0-9a-f]+|\d+)(?![\w\]:])", ln.split(None, 1)[1] if " " in ln else "") if int(x, 0) > 64]
            t += 8 if lit else 4
    return t


def hop(k, sw):
    if OPT.get("isl", 1) and not OPT.get("nohop"):
        for w in range(4):
            if w < 3:
                k(f"s_cmp_lg_u32 s{sw}, {w}", f"s_cbranch_scc1 L_hop{w}")
            k(f"@HOP{w}@", "s_endpgm")
            if w < 3:
                k.label(f"L_hop{w}")
    else:
        k("s_endpgm")


def srd_tail(s, size):
    return [f"s_mov_b32 s{s+2}, {size}", f"s_mov_b32 s{s+3}, 0x00020000"]


def srd_from(s, base, off, size):
    return [f"s_add_u32 s{s}, s{base}, {off}", f"s_addc_u32 s{s+1}, s{base+1}, 0"] + srd_tail(s, size)


def head(k, pad=False):
    if pad and OPT.get("isl", 1) and OPT.get("epad", 1):
        n = len(ISL)
        ISL.append((n, None))
        k("s_cmp_lt_u32 s2, 256", f"s_cbranch_scc1 L_isl{n}_over", "s_endpgm", f"L_isl{n}:", f"@ISL{n}@", f"L_isl{n}_over:")
    else:
        k("s_cmp_ge_u32 s2, 256", f"s_cbranch_scc1 L_end_{k.name}")
    if OPT["stamp"]:
        k("s_memrealtime s[92:93]", "s_load_dwordx2 s[90:91], s[0:1], 88", "s_mov_b32 s89, s2")


def mid_stamp(k, i):
    if OPT["stamp"] and i < 2:
        k(f"s_memrealtime s[{96+2*i}:{97+2*i}]", f"s_memtime s[{84+2*i}:{85+2*i}]")
    elif OPT["stamp"]:
        k("s_memrealtime s[100:101]", "s_waitcnt lgkmcnt(0)", f"s_mov_b32 s{[93,88,3][i-2]}, s100")


def hstamp(k, lane):
    if OPT.get("hprof"):
        k("s_memrealtime s[84:85]", "s_waitcnt lgkmcnt(0)", f"v_writelane_b32 v200, s84, {lane}")


def xstamp(k, n):
    sel = str(OPT.get("xs", 378)).zfill(3)
    if str(n) in sel:
        mid_stamp(k, 2 + sel.index(str(n)))


def tail(k, kidx, swave):
    if OPT["stamp"]:
        k("s_waitcnt vmcnt(0)", "s_memrealtime s[94:95]", "s_waitcnt lgkmcnt(0)",
          "v_mov_b32 v0, s92", "v_mov_b32 v1, s96", "v_mov_b32 v2, s98", "v_mov_b32 v3, s94",
          "s_lshl_b32 s89, s89, 2", f"s_add_u32 s89, s89, s{swave}", "s_lshl_b32 s89, s89, 4",
          f"s_add_u32 s89, s89, {STAMP + kidx*16384}", "v_mov_b32 v4, s89",
          "global_store_dwordx4 v4, v[0:3], s[90:91]",
          "s_sub_u32 s86, s86, s84", "v_mov_b32 v8, s86", "v_mov_b32 v9, s93", "v_mov_b32 v10, s88", "v_mov_b32 v11, s3",
          "v_add_u32 v4, 0x100000, v4", "global_store_dwordx4 v4, v[8:11], s[90:91]")
    k.label(f"L_end_{k.name}")
    k("s_endpgm")


def ids_8x4(k, s_a, s_b, tmp):
    k(f"s_lshr_b32 s{tmp}, s2, 3",
      f"s_and_b32 s{s_a}, s{tmp}, 3",
      f"s_lshr_b32 s{s_b}, s{tmp}, 2",
      f"s_and_b32 s{tmp}, s2, 1",
      f"s_lshl_b32 s{tmp}, s{tmp}, 2",
      f"s_add_u32 s{s_a}, s{s_a}, s{tmp}",
      f"s_and_b32 s{tmp}, s2, 6",
      f"s_lshl_b32 s{tmp}, s{tmp}, 2",
      f"s_add_u32 s{s_b}, s{s_b}, s{tmp}")


def code_prefetch(k, vtmp, vdst, stmp, start, nkb_per_wg=1):
    k(f"s_getpc_b64 s[{stmp}:{stmp+1}]")
    lab = f"L_pc_{k.name}_{start}"
    k.label(lab)
    k(f"s_add_u32 s{stmp}, s{stmp}, {start}-{lab}",
      f"s_addc_u32 s{stmp+1}, s{stmp+1}, 0",
      f"global_load_dwordx4 {vr(vdst,4)}, v{vtmp}, s[{stmp}:{stmp+1}]" if not OPT.get("nopf") else None)


def k01_attn():
    D = 2
    STG, NS = 24576, D + 2
    EA = STG * NS
    SLOT, KVB, JB, TBL = 32768, 65536, 16384, 0
    k = Kern("attn_kernel", 256, 512, 163840)
    SX, SWQ, SE, SWS, SKV, SJ = 4, 8, 12, 16, 72, 76
    (sW, sTB, sHG, sC, sT, sT2, sRd, sWr, sKo, sJo, sJa, sJb, sGW, sStr, sDstep, sOo) = range(32, 48)
    sN, sX, sWo, sTH, sCH, sBW, sOo1, sFl, sKV = 48, 49, 54, 55, 56, 57, 65, 80, 81
    sD = [50, 51, 52, 53]
    sCs = [58, 59, 60, 61]
    sDB, sBsz, sWrJ = 62, 63, 64
    SDBG = 30
    v = Alloc(1)
    L, G, R, CQ, TOK, T0, T1, T2, vLin, vRd, IDX = [v() for _ in range(11)]
    h = Alloc(v.n)
    Q = [v(8, 4) for _ in range(2)]
    O = [v(16, 4) for _ in range(2)]
    LS = [v(4, 4) for _ in range(2)]
    acc = [[v(4, 4) for i in range(2)] for t in range(4)]
    cs = [v(4, 4) for _ in range(2)]
    sx, sxx = v(4, 4), v(4, 4)
    z1 = v.n
    SUMA, ONES = v(4, 4), v(4, 4)
    bX, bQ, aX, aQ = [[v() for i in range(2)] for _ in range(4)]
    bW = [v() for _ in range(4)]
    aW = [v() for _ in range(4)]
    F0 = v(96, 4)
    FQ = [[dict(X=[F0 + 48 * f + 24 * s + 4 * i for i in range(4)], W=[F0 + 48 * f + 24 * s + 16 + 4 * t for t in range(2)]) for s in range(2)] for f in range(2)]
    qacc = [[acc[0][0] + 16 * t + 4 * i for i in range(4)] for t in range(2)]
    F = [[dict(X=[F0 + 48 * f + 24 * s + 4 * i for i in range(2)], W=[F0 + 48 * f + 24 * s + 8 + 4 * t for t in range(4)]) for s in range(2)] for f in range(2)]
    S = [F0 + 16 * i for i in range(4)]
    KB = [F0 + 64 + 8 * i for i in range(2)]
    VB = [F0 + 80 + 8 * i for i in range(2)]
    XK = [F0 + 4 * j for j in range(8)]
    EK = [[F0 + 32 + 8 * j + 4 * t for t in range(2)] for j in range(8)]
    accE, csE = [Q[0], Q[0] + 4], [Q[1], Q[1] + 4]
    sxE, sxxE = v(4, 4), v(4, 4)
    vXk, vE, aE0, aE1, aP, aS, aG0, aG1, vKo, PF, vHo, vRow = [v() for _ in range(12)]
    RES = [[cs[0], cs[1]], [sx, sxx]]
    XR = 131072
    sFg, sRx, sH0, sH1, sS1 = 58, 59, 60, 61, 62
    k.vgpr = k.acc = 256
    vX, vX2 = h(), h()
    vW = [h() for _ in range(4)]
    vJ, vJB, vCs, vPo = h(), h(), h(), h()
    aJ = [h() for _ in range(4)]
    bJ = [h() for _ in range(2)]
    JF = [h(4, 4) for _ in range(4)]
    CS = [h(4, 4) for _ in range(4)]
    PF4 = h(4, 4)
    head(k)
    k(f"s_load_dwordx2 s[{SX}:{SX+1}], s[0:1], {A_X}",
      f"s_load_dwordx2 s[{SWQ}:{SWQ+1}], s[0:1], {A_WQ}",
      f"s_load_dwordx4 s[24:27], s[0:1], {A_WK}",
      f"s_load_dwordx2 s[{SWS}:{SWS+1}], s[0:1], {A_WS}",
      f"s_load_dwordx2 s[{SDBG}:{SDBG+1}], s[0:1], 80")
    k(f"s_lshl_b32 s{sT}, s2, 7", f"s_and_b32 s{sT}, s{sT}, 0x7c00", f"v_lshl_add_u32 v{T0}, v0, 1, s{sT}", f"v_and_b32 v{T0}, -4, v{T0}", "s_getpc_b64 s[20:21]", f"global_load_dword v{PF}, v{T0}, s[20:21]" if not OPT.get("nopf") else None)
    k(f"v_lshrrev_b32 v{T1}, 6, v0", f"v_and_b32 v{L}, 63, v0", f"v_readfirstlane_b32 s{sW}, v{T1}")
    ids_8x4(k, sHG, sTB, sT)
    k(f"v_lshrrev_b32 v{G}, 4, v{L}", f"v_and_b32 v{TOK}, 15, v{L}", f"v_lshlrev_b32 v{vLin}, 4, v{L}")
    k(f"s_and_b32 s{sTH}, s{sW}, 1", f"s_bfe_u32 s{sCH}, s{sW}, 0x10001",
      f"s_cmp_ge_u32 s{sW}, 4", "s_cbranch_scc1 L_f_help")
    k(f"s_and_b32 s{sT}, s{sHG}, 3", f"s_lshl_b32 s{sT2}, s{sTB}, 2", f"s_add_u32 s{sT}, s{sT}, s{sT2}", f"s_lshl_b32 s{sT}, s{sT}, 15",
      f"s_lshl_b32 s{sT2}, s{sW}, 9", f"s_add_u32 s{sT}, s{sT}, s{sT2}",
      f"v_lshrrev_b32 v{T0}, 3, v{L}", f"v_lshlrev_b32 v{T0}, 11, v{T0}", f"v_and_b32 v{T1}, 7, v{L}", f"v_xor_b32 v{T1}, v{T1}, v{G}",
      f"v_lshl_add_u32 v{T0}, v{T1}, 4, v{T0}", f"v_add_u32 v{vXk}, s{sT}, v{T0}", f"v_xor_b32 v{T1}, {16384+64}, v{vXk}", f"s_lshl_b32 s{sX}, s{sW}, 13",
      f"v_and_b32 v{T0}, 32, v{L}", f"v_xor_b32 v{T0}, v{T0}, v{vLin}",
      f"s_lshl_b32 s{sWr}, s{sW}, 14", f"v_add_u32 v{vE}, s{sWr}, v{T0}",
      f"s_lshr_b32 s{sT}, s2, 3", f"s_lshl_b32 s{sT}, s{sT}, 11", f"v_lshlrev_b32 v{T0}, 3, v0",
      f"s_bitcmp1_b32 s{sHG}, 2", "s_waitcnt lgkmcnt(0)",
      f"s_cselect_b32 s{SE}, s26, s24", f"s_cselect_b32 s{SE+1}, s27, s25", srd_tail(SE, 0x10000), srd_tail(SX, 4 * MB))
    xstamp(k, 0)
    k(f"buffer_load_dword v{PF}, v{T0}, s[{SE}:{SE+3}], s{sT} offen")
    for j in range(8):
        k(f"s_add_u32 m0, s{sX}, {1024*j-128*(j>>1)}", "s_nop 0", f"buffer_load_dwordx4 v{[vXk,T1][j&1]}, s[{SX}:{SX+3}], 0 offen offset:{128*(j>>1)} lds")

    def kv_ld(gi):
        k(f"s_add_u32 m0, s{sWr}, {EA+4096*gi}", f"s_mov_b32 s{sWo}, {4096*gi}")
        for i in range(4):
            k(f"buffer_load_dwordx4 v{vE}, s[{SE}:{SE+3}], s{sWo} offen offset:{1024*i} lds")
    k("s_branch L_f_comp")
    k.label("L_f_help")
    k(f"s_and_b32 s{sW}, s{sW}, 3")
    if OPT.get("wqpf", 0):
        k(f"v_and_b32 v{T0}, 255, v0", f"v_lshlrev_b32 v{T0}, 5, v{T0}", f"s_lshl_b32 s{sT}, s2, 13", "s_waitcnt lgkmcnt(0)", srd_tail(SWQ, 2 * MB),
          f"buffer_load_dword v{PF4}, v{T0}, s[{SWQ}:{SWQ+3}], s{sT} offen")
    k(f"v_lshrrev_b32 v{T0}, 3, v{L}",
      f"s_lshl_b32 s{sT}, s{sTH}, 2",
      f"v_add_u32 v{T1}, s{sT}, v{G}",
      f"v_and_b32 v{T2}, 7, v{L}",
      f"v_xor_b32 v{T1}, v{T1}, v{T2}",
      f"s_lshl_b32 s{sT}, s{sTB}, 6",
      f"s_lshl_b32 s{sT2}, s{sW}, 3",
      f"s_add_u32 s{sT}, s{sT}, s{sT2}",
      f"v_add_u32 v{T0}, s{sT}, v{T0}",
      f"v_lshlrev_b32 v{T0}, 11, v{T0}",
      f"v_lshl_add_u32 v{vX}, v{T1}, 4, v{T0}",
      f"v_add_u32 v{vX2}, 0x10000, v{vX}")
    k(f"v_lshlrev_b32 v{T1}, 1, v{G}",
      f"v_xor_b32 v{T1}, v{T1}, v{TOK}",
      f"s_lshl_b32 s{sT}, s{sTH}, 3",
      f"v_xor_b32 v{T1}, s{sT}, v{T1}",
      f"s_lshl_b32 s{sBW}, s{sTH}, 1",
      f"s_add_u32 s{sBW}, s{sBW}, s{sCH}",
      f"s_lshl_b32 s{sT}, s{sBW}, 13",
      f"s_lshl_b32 s{sT2}, s{sHG}, 8",
      f"s_add_u32 s{sT}, s{sT}, s{sT2}",
      f"v_lshlrev_b32 v{T0}, 11, v{G}",
      f"v_add_u32 v{T0}, s{sT}, v{T0}",
      f"v_lshl_add_u32 v{vW[0]}, v{T1}, 4, v{T0}")
    for i in range(1, 4):
        k(f"v_add_u32 v{vW[i]}, {32768*i}, v{vW[0]}")
    k(f"s_sub_u32 s{sBW}, s{sBW}, s{sW}", f"s_lshl_b32 s{sBW}, s{sBW}, 10", f"s_add_u32 s{sBW}, s{sBW}, 8192",
      f"s_lshl_b32 s{sWr}, s{sW}, 10", f"s_mov_b32 s{sN}, 12")
    k(f"s_and_b32 s{sT}, s{sTB}, {7 if OPT.get('rot', 1) else 0}",
      f"s_lshl_b32 s{sX}, s{sT}, 8", f"s_lshl_b32 s{sWo}, s{sT}, 18")
    k("s_waitcnt lgkmcnt(0)", srd_tail(SX, 4 * MB), srd_tail(SWQ, 2 * MB))
    k(f"s_load_dwordx2 s[20:21], s[0:1], {A_WO}", f"s_load_dwordx4 s[24:27], s[0:1], {A_WG}", f"s_load_dwordx2 s[28:29], s[0:1], {A_WD}")
    def q_x(slot):
        k(f"s_add_u32 m0, s{sWr}, {slot}", "s_nop 0", f"buffer_load_dwordx4 v{vX}, s[{SX}:{SX+3}], s{sX} offen lds",
          f"s_add_u32 m0, s{sWr}, {slot+4096}", "s_nop 0", f"buffer_load_dwordx4 v{vX2}, s[{SX}:{SX+3}], s{sX} offen lds",
          f"s_add_u32 s{sX}, s{sX}, 128", f"s_and_b32 s{sX}, s{sX}, 2047")

    def q_w(slot):
        k(f"s_add_u32 s{sT}, s{sWr}, s{sBW}")
        for i in range(4):
            k(f"s_add_u32 m0, s{sT}, {slot+4096*i}", "s_nop 0", f"buffer_load_dwordx4 v{vW[i]}, s[{SWQ}:{SWQ+3}], s{sWo} offen lds")
        k(f"s_add_u32 s{sWo}, s{sWo}, 0x20000", f"s_and_b32 s{sWo}, s{sWo}, 0x1fffff")

    def q_stage():
        q_x(0); q_w(0)
        k(f"s_add_u32 s{sWr}, s{sWr}, {STG}", f"s_cmp_ge_u32 s{sWr}, {EA}", f"s_cselect_b32 s{sT}, {EA}, 0",
          f"s_sub_u32 s{sWr}, s{sWr}, s{sT}", f"s_sub_u32 s{sN}, s{sN}, 1")
    k("s_branch L_f_setup")
    k.label("L_f_comp")
    k(f"v_bfe_u32 v{R}, v{L}, 2, 2", f"v_and_b32 v{CQ}, 3, v{L}", f"v_and_b32 v{T2}, 1, v{G}",
      f"s_lshl_b32 s{sT}, s{sW}, 14", f"s_add_u32 s{sT}, s{sT}, {EA}",
      f"v_lshlrev_b32 v{T0}, 5, v{T2}", f"v_lshl_add_u32 v{T0}, v{CQ}, 3, v{T0}",
      f"v_lshl_add_u32 v{T0}, v{R}, 6, v{T0}", f"v_lshl_add_u32 v{T0}, v{G}, 9, v{T0}",
      f"v_add_u32 v{aE0}, s{sT}, v{T0}", f"v_xor_b32 v{aE1}, 32, v{aE0}")
    for i in range(4):
        k(f"v_mov_b32 v{ONES+i}, 0x3f803f80")
    k(ws_shift(SWS), srd_tail(SWS, WS_SZ), srd_from(SKV, SWS, KVF, 262144))
    k(f"s_lshl_b32 s{sT}, s{sCH}, 10", f"s_lshl_b32 s{sT2}, s{sTH}, 3", f"s_add_u32 s{sT}, s{sT}, s{sT2}", f"s_add_u32 s{sT}, s{sT}, {EA}",
      f"v_add_u32 v{aP}, s{sT}, v{vLin}", f"v_lshlrev_b32 v{aS}, 3, v{TOK}", f"v_add_u32 v{aS}, {EA+4096}, v{aS}")
    k(f"s_bfe_u32 s{sT}, s{sHG}, 0x10001", f"s_lshl_b32 s{sKV}, s{sTB}, 1", f"s_add_u32 s{sKV}, s{sKV}, s{sT}", f"s_lshl_b32 s{sKV}, s{sKV}, 12",
      f"s_and_b32 s{sT2}, s{sHG}, 1", f"s_bitcmp1_b32 s{sHG}, 2", "s_cbranch_scc1 L_f_av")
    k(f"s_lshl_b32 s{sT2}, s{sT2}, 8", f"s_add_u32 s{sKV}, s{sKV}, s{sT2}",
      f"s_lshl_b32 s{sT}, s{sW}, 2", f"s_add_u32 s{sT}, s{sT}, {EA+8192}", f"v_add_u32 v{aG0}, s{sT}, v{vLin}", f"v_add_u32 v{aG1}, 2, v{aG0}",
      f"v_lshlrev_b32 v{T0}, 10, v{T2}", f"v_lshrrev_b32 v{T1}, 1, v{G}", f"v_lshl_add_u32 v{T0}, v{T1}, 9, v{T0}", f"v_lshl_add_u32 v{vKo}, v{TOK}, 4, v{T0}",
      "s_branch L_f_ax")
    k.label("L_f_av")
    k(f"s_lshl_b32 s{sT2}, s{sT2}, 10", f"s_add_u32 s{sKV}, s{sKV}, s{sT2}", f"s_add_u32 s{sKV}, s{sKV}, 2048",
      f"v_lshlrev_b32 v{T0}, 7, v{T2}", f"v_lshrrev_b32 v{T1}, 1, v{G}", f"v_lshl_add_u32 v{T0}, v{T1}, 6, v{T0}",
      f"v_bfe_u32 v{T1}, v{L}, 3, 1", f"v_lshl_add_u32 v{T0}, v{T1}, 9, v{T0}", f"v_and_b32 v{T1}, 7, v{L}", f"v_lshl_add_u32 v{T0}, v{T1}, 1, v{T0}",
      f"s_lshl_b32 s{sT}, s{sCH}, 8", f"s_lshl_b32 s{sT2}, s{sTH}, 5", f"s_add_u32 s{sT}, s{sT}, s{sT2}", f"s_add_u32 s{sT}, s{sT}, {EA+8192}",
      f"v_add_u32 v{aG0}, s{sT}, v{T0}", f"v_add_u32 v{aG1}, 16, v{aG0}", f"v_mov_b32 v{vKo}, v{vLin}")
    k.label("L_f_ax")
    k(f"v_lshrrev_b32 v{T0}, 1, v{TOK}", f"v_xor_b32 v{T0}, v{T0}, v{G}", f"v_lshlrev_b32 v{T0}, 4, v{T0}",
      f"v_lshl_add_u32 v{bX[0]}, v{TOK}, 7, v{T0}", f"v_add_u32 v{vXk}, s{sX}, v{bX[0]}", f"v_xor_b32 v{bX[1]}, 64, v{bX[0]}")
    k(f"v_lshlrev_b32 v{T0}, 2, v{T2}", f"v_xor_b32 v{T0}, v{T0}, v{R}",
      f"v_lshlrev_b32 v{T0}, 5, v{T0}",
      f"v_lshl_add_u32 v{T0}, v{CQ}, 3, v{T0}",
      f"v_lshl_add_u32 v{T0}, v{R}, 8, v{T0}",
      f"v_lshl_add_u32 v{T0}, v{G}, 11, v{T0}",
      f"s_lshl_b32 s{sT}, s{sW}, 6", f"s_add_u32 s{sT}, s{sT}, 8192", f"v_xor_b32 v{bQ[0]}, s{sT}, v{T0}", f"v_xor_b32 v{bQ[1]}, 32, v{bQ[0]}",
      f"s_lshl_b32 s{sT}, s{sCH}, 7", f"v_xor_b32 v{bW[0]}, s{sT}, v{T0}")
    for t in range(1, 4):
        k(f"v_xor_b32 v{bW[t]}, {32*t}, v{bW[0]}")
    bases = list(zip(aX + aQ, bX + bQ))
    for a, b in bases + list(zip(aW, bW)):
        k(f"v_mov_b32 v{a}, v{b}")
    for i in range(O[0], z1, 2):
        k(f"v_mov_b64 {vr(i,2)}, 0")
    k(f"v_and_b32 v{T0}, 7, v{L}", f"v_cmp_eq_u32 vcc, 0, v{T0}", f"v_mov_b32 v{IDX}, 0xdddd", f"v_add_u32 v{vRd}, {KVB+SLOT}, v{vLin}",
      f"v_cndmask_b32 v{SUMA}, 0, v{ONES}, vcc", f"v_cndmask_b32 v{SUMA+1}, 0, v{ONES}, vcc",
      f"v_cmp_eq_u32 vcc, 4, v{T0}", f"v_and_b32 v{T0}, 1, v{TOK}", f"v_and_b32 v{T1}, 2, v{TOK}",
      f"v_cndmask_b32 v{SUMA+2}, 0, v{ONES}, vcc", f"v_cndmask_b32 v{SUMA+3}, 0, v{ONES}, vcc",
      f"v_cmp_eq_u32 s[66:67], 1, v{T0}", f"v_cmp_eq_u32 s[68:69], 2, v{T1}", f"v_cmp_eq_u32 s[82:83], v{R}, v{G}")
    k(f"s_lshl_b32 s{sFg}, s{sTB}, 9", f"s_add_u32 s{sFg}, s{sFg}, {FLG}")
    k(f"s_lshr_b32 s{sS1}, s{sHG}, 2", f"s_lshl_b32 s{sS1}, s{sS1}, 5", f"s_add_u32 s{sS1}, s{sS1}, s{sTB}", f"s_lshl_b32 s{sS1}, s{sS1}, 9",
      f"s_add_u32 s{sS1}, s{sS1}, {ST1}")
    k(f"v_lshrrev_b32 v{T0}, 1, v{G}", f"v_lshl_add_u32 v{T0}, v{T2}, 1, v{T0}", f"v_lshlrev_b32 v{T1}, 4, v{TOK}", f"v_lshl_add_u32 v{vHo}, v{T0}, 8, v{T1}",
      f"v_lshlrev_b32 v{T1}, 11, v{TOK}", f"v_lshl_add_u32 v{T0}, v{T0}, 4, v{T1}",
      f"s_lshl_b32 s{sT}, s{sTB}, 1", f"s_add_u32 s{sT}, s{sT}, s{sTH}", f"s_lshl_b32 s{sT}, s{sT}, 16",
      f"s_lshl_b32 s{sT2}, s{sHG}, 1", f"s_add_u32 s{sT2}, s{sT2}, s{sCH}", f"s_lshl_b32 s{sT2}, s{sT2}, 7", f"s_add_u32 s{sT}, s{sT}, s{sT2}",
      f"v_add_u32 v{vRow}, s{sT}, v{T0}")
    k(f"s_lshl_b32 s{sT}, s{sTB}, 3", f"s_add_u32 s{sT}, s{sT}, s{sHG}", f"s_lshl_b32 s{sT}, s{sT}, 14",
      f"s_lshl_b32 s{sT2}, s{sW}, 12", f"s_add_u32 s{sOo}, s{sT}, s{sT2}", f"s_add_u32 s{sOo}, s{sOo}, {OF}",
      f"s_lshl_b32 s{sT2}, s{sCH}, 13", f"s_add_u32 s{sT}, s{sT}, s{sT2}", f"s_lshl_b32 s{sT2}, s{sTH}, 11", f"s_add_u32 s{sT}, s{sT}, s{sT2}",
      f"s_add_u32 s{sH0}, s{sT}, {HF}", f"s_add_u32 s{sH1}, s{sT}, {HF+4096}")
    k(f"s_mov_b32 s{sRd}, 0", f"s_mov_b32 s{sN}, 7", f"s_cmp_eq_u32 s{sW}, 0", f"s_cselect_b32 s{sFl}, 7, -1")
    xstamp(k, 1)

    def diag(dst, src):
        return [f"v_cndmask_b32 v{T0}, v{src}, v{src+1}, s[66:67]", f"v_cndmask_b32 v{T1}, v{src+2}, v{src+3}, s[66:67]",
                f"v_cndmask_b32 v{dst}, v{T0}, v{T1}, s[68:69]"]

    def kv_mf(gi):
        o = []
        for j in (2 * gi, 2 * gi + 1):
            c = "0" if j == 0 else None
            for t in range(2):
                o += [m16(vr(accE[t], 4), vr(EK[j][t], 4), vr(XK[j], 4), c), m16(vr(csE[t], 4), vr(EK[j][t], 4), vr(ONES, 4), c)]
        return o
    kv_rd = lambda gi: [f"ds_read_b64_tr_b16 {vr(EK[j][t]+2*jj,2)}, v{[aE0,aE1][t]} offset:{j*2048+jj*256}"
                        for j in (2 * gi, 2 * gi + 1) for t in range(2) for jj in range(2)]
    kv_ld(0); kv_ld(1)
    k(f"v_xor_b32 v{T0}, 64, v{vXk}", "s_waitcnt vmcnt(8)")
    xstamp(k, 2)
    for j in range(8):
        k(f"ds_read_b128 {vr(XK[j],4)}, v{[vXk,T0][j&1]} offset:{2048*(j>>1)}")
    kv_ld(2)
    k("s_waitcnt lgkmcnt(0)")
    for j in range(8):
        k(m16(vr(sxxE, 4), vr(XK[j], 4), vr(XK[j], 4), "0" if j == 0 else None), m16(vr(sxE, 4), vr(ONES, 4), vr(XK[j], 4), "0" if j == 0 else None))
    k("s_waitcnt vmcnt(8)", kv_rd(0))
    kv_ld(3)
    xstamp(k, 3)
    k("s_barrier")
    k(f"s_add_u32 s{sT}, s{sWr}, {EA}", f"v_add_u32 v{vE}, s{sT}, v{vLin}", f"v_lshl_add_u32 v{vXk}, v{TOK}, 3, s{sT}")
    k(diag(sxE + 1, sxxE))
    for gi in range(1, 4):
        k(f"s_waitcnt vmcnt({12-4*gi}) lgkmcnt(0)", weave(kv_mf(gi - 1), kv_rd(gi), 0, 5))
    xstamp(k, 4)
    k("s_waitcnt lgkmcnt(0)", kv_mf(3), "s_mov_b64 exec, s[82:83]", f"ds_write_b64 v{vXk}, {vr(sxE,2)} offset:4096", "s_mov_b64 exec, -1", "s_nop 3")
    for i, r in enumerate(accE + csE):
        k(f"ds_write_b128 v{vE}, {vr(r,4)} offset:{1024*i}")
    k("s_waitcnt lgkmcnt(0)")
    xstamp(k, 5)
    k(island(back="L_f_back"))
    U = F0 + 48

    def sum4(r):
        return [f"v_add_f32 v{r+e}, v{r+e}, v{r+2+e}" for e in range(2)] + [f"v_add_f32 v{r+4+e}, v{r+4+e}, v{r+6+e}" for e in range(2)] + \
               [f"v_add_f32 v{r+e}, v{r+e}, v{r+4+e}" for e in range(2)]

    def stats(s, scale):
        return [f"v_mul_f32 v{s}, {f32(-1/1024)}, v{s}", f"v_mul_f32 v{s+1}, {f32(1/1024)}, v{s+1}",
                f"v_fma_f32 v{s+1}, -v{s}, v{s}, v{s+1}", f"v_max_f32 v{s+1}, 0, v{s+1}", f"v_add_f32 v{s+1}, {f32(EPS)}, v{s+1}",
                f"v_rsq_f32 v{s+2}, v{s+1}", "s_nop 0", f"v_mul_f32 v{s+2}, {f32(scale)}, v{s+2}" if scale != 1 else None,
                f"v_mul_f32 v{s+1}, v{s}, v{s+2}", f"v_mov_b32 v{s}, v{s+2}"]
    def reads(fi):
        o = []
        for s in range(2):
            f = FQ[fi][s]
            for t in range(2):
                for j in range(2):
                    o.append(f"ds_read_b64_tr_b16 {vr(f['W'][t]+2*j,2)}, v{aQ[t]} offset:{s*8192+j*1024}")
            o += [f"ds_read_b128 {vr(f['X'][i],4)}, v{aX[s]} offset:{2048*i}" for i in range(4)]
        return o

    def mfmas(fi):
        X = lambda s, i: vr(FQ[fi][s]["X"][i], 4)
        W = lambda s, t: vr(FQ[fi][s]["W"][t], 4)
        o = [m16(vr(cs[t], 4), W(s, t), vr(ONES, 4)) for t in range(2) for s in range(2)]
        for i in range(4):
            o += [m16(vr(qacc[t ^ (i & 1)][i], 4), W(s, t ^ (i & 1)), X(s, i)) for t in range(2) for s in range(2)]
        return o
    va = [f"v_add_u32 v{a}, s{sRd}, v{b}" for a, b in bases]
    adv = [[f"s_add_u32 s{sRd}, s{sRd}, {STG}", f"s_cmp_eq_u32 s{sRd}, {EA}"], [f"s_cselect_b32 s{sRd}, 0, s{sRd}"]] + \
          [va[i:i + 2] for i in range(0, len(va), 2)]
    k("s_barrier")
    xstamp(k, 7)
    if OPT.get('qcyc'):
        mid_stamp(k, 0)
    for w in range(4):
        k(f"ds_read_b64 {vr(U+2*w,2)}, v{aS} offset:{16384*w}")
    for w in range(4):
        k(f"ds_read_b64 {vr(U+8+2*w,2)}, v{aP} offset:{16384*w}", f"ds_read_b64 {vr(U+16+2*w,2)}, v{aP} offset:{16384*w+2048}")
    r0 = reads(0)
    k(r0[:3], "s_waitcnt lgkmcnt(11)", weave(sum4(U) + [x for x in stats(U, 1) if x], r0[3:12], 0, 12), "s_waitcnt lgkmcnt(12)",
      weave(sum4(U + 8) + sum4(U + 16), r0[12:]))
    for e in range(2):
        k(f"v_mul_f32 v{U+8+e}, v{U}, v{U+8+e}", f"v_fmac_f32 v{U+8+e}, v{U+1}, v{U+16+e}")
    k(f"v_cvt_pk_bf16_f32 v{U+8}, v{U+8}, v{U+9}", f"ds_write_b16 v{aG0}, v{U+8}", f"ds_write_b16_d16_hi v{aG1}, v{U+8}",
      f"v_mov_b64 {vr(sxxE,2)}, {vr(U,2)}")
    k(adv, f"v_lshlrev_b32 v{aP}, 3, v{L}", "s_waitcnt lgkmcnt(0)")
    k.label("L_f_qloop")
    for f in range(2):
        k("s_barrier")
        m = weave(mfmas(f), reads(1 - f), 0, OPT.get('qw', 13))
        if f == 0:
            k(weave(m, adv + [[f"s_cmp_eq_u32 s{sN}, s{sFl}"]], len(m) - 6, len(m) - 1))
            k("s_cbranch_scc1 L_f_flag")
            k.label("L_f_flagged")
        else:
            k(weave(m, adv + [[f"s_sub_u32 s{sN}, s{sN}, 1", f"s_cmp_lg_u32 s{sN}, 0"]], len(m) - 6, len(m) - 1))
        k("s_waitcnt lgkmcnt(0)")
    k("s_cbranch_scc1 L_f_qloop")
    k("s_barrier")
    ST = [sx + 2 * i for i in range(4)]
    k(f"buffer_load_dwordx2 {vr(ST[0],2)}, v{aP}, s[{SWS}:{SWS+3}], s{sS1} offen sc1")
    k(weave(mfmas(0), reads(1), 0, 11), "s_waitcnt lgkmcnt(0)")

    def qfin(i, packed):
        o, d = [], Q[i >> 1] + 4 * (i & 1)
        for t in range(2):
            a = qacc[t][i]
            if packed:
                o += [f"v_pk_mul_f32 {vr(a+hh,2)}, {vr(a+hh,2)}, {vr(ST[i],2)} op_sel_hi:[1,0]" for hh in (0, 2)]
                o += [f"v_pk_fma_f32 {vr(a+hh,2)}, {vr(cs[t]+hh,2)}, {vr(ST[i],2)}, {vr(a+hh,2)} op_sel:[0,1,0] op_sel_hi:[1,1,1]" for hh in (0, 2)]
            else:
                o += [f"v_mul_f32 v{a+r}, v{ST[i]}, v{a+r}" for r in range(4)] + [f"v_fmac_f32 v{a+r}, v{ST[i]+1}, v{cs[t]+r}" for r in range(4)]
            o += [f"v_cvt_pk_bf16_f32 v{d+2*t}, v{a}, v{a+1}", f"v_cvt_pk_bf16_f32 v{d+2*t+1}, v{a+2}, v{a+3}"]
        return o
    m = mfmas(1)
    q0 = qfin(0, False)
    two = lambda f_: [f_(e) for e in range(2)]
    bc = [two(lambda e: f"v_mul_f32 v{ST[1]+e}, {f32(QSCALE)}, v{ST[0]+e}"), two(lambda e: f"v_mul_f32 v{ST[0]+e}, {f32(QSCALE)}, v{ST[0]+e}"), ["s_nop 0"],
          two(lambda e: f"v_permlane16_swap_b32 v{ST[0]+e}, v{ST[1]+e}"),
          two(lambda e: f"v_mov_b32 v{ST[2]+e}, v{ST[0]+e}"), two(lambda e: f"v_mov_b32 v{ST[3]+e}, v{ST[1]+e}"),
          two(lambda e: f"v_permlane32_swap_b32 v{ST[0]+e}, v{ST[2]+e}"), two(lambda e: f"v_permlane32_swap_b32 v{ST[1]+e}, v{ST[3]+e}")]
    k(m[0], f"s_mov_b32 s{sRd}, {KVB+SLOT}", m[1], f"s_mov_b32 s{sC}, 8", m[2:5], "s_waitcnt vmcnt(0)",
      weave(m[5:13], bc), weave(m[13:], q0[:14]), q0[14:])
    xstamp(k, 8)
    if OPT.get('qcyc'):
        mid_stamp(k, 1)
    k(qfin(1, True), qfin(2, True), qfin(3, True))
    for r0, n in ((S[3], 16), (VB[1], 8)):
        for i in range(0, n, 2):
            k(f"v_mov_b64 {vr(r0+i,2)}, 0")
    for p in range(2):
        for r in range(4):
            k(f"v_permlane16_swap_b32 v{Q[p]+r}, v{Q[p]+4+r}")
    k("s_branch L_f_att")
    k.label("L_f_flag")
    k(f"s_cmp_lg_u32 s{sFl}, 7", "s_cbranch_scc1 L_f_flag2")
    k(f"ds_read_b128 {vr(sxE,4)}, v{vE} offset:8192", f"v_lshlrev_b32 v{T0}, 3, v{L}",
      f"s_cmp_eq_u32 s{sHG}, 0", f"s_cselect_b32 s{sT}, s{sFg}, {OOB}",
      f"buffer_store_dwordx2 {vr(O[0],2)}, v{T0}, s[{SWS}:{SWS+3}], s{sT} offen sc1",
      f"s_and_b32 s{sT}, s{sHG}, 3", f"s_lshl_b32 s{sT}, s{sT}, 7", f"s_add_u32 s{sT}, s{sT}, s{sS1}", "s_mov_b64 exec, 0xffff",
      f"buffer_store_dwordx2 {vr(sxxE,2)}, v{T0}, s[{SWS}:{SWS+3}], s{sT} offen sc1", "s_mov_b64 exec, -1", "s_waitcnt lgkmcnt(0)",
      f"buffer_store_dwordx4 {vr(sxE,4)}, v{vKo}, s[{SKV}:{SKV+3}], s{sKV} offen sc1",
      f"s_mov_b32 s{sFl}, {OPT.get('flagit', 5)}", "s_branch L_f_flagged")
    k.label("L_f_flag2")
    k(f"s_and_b32 s{sT}, s2, 0xfc", f"v_mov_b32 v{T0}, s{sT}", f"v_mov_b32 v{T1}, 1", "s_mov_b64 exec, 1", "s_waitcnt vmcnt(0)",
      f"global_atomic_add v{T0}, v{T1}, s[{SDBG}:{SDBG+1}] sc1", "s_mov_b64 exec, -1", "s_branch L_f_flagged")
    k(island(back="L_f_back", jump=False))
    k.label("L_f_att")
    k("s_barrier")
    if not (OPT.get('qcyc') or OPT.get('ocyc')):
        mid_stamp(k, 0)
    rdK = lambda t: [f"ds_read_b128 {vr(KB[t&1]+4*m,4)}, v{vRd} offset:{(t%8)*4096+1024*m}" for m in range(2)]
    rdV = lambda t: [f"ds_read_b128 {vr(VB[t&1]+4*m,4)}, v{vRd} offset:{(t%8)*4096+2048+1024*m}" for m in range(2)]
    qk = lambda u, c="0": [m32(vr(S[u % 4], 16), vr(KB[(u >> 1) & 1], 4), vr(Q[u & 1], 4), c),
                           m32(vr(S[u % 4], 16), vr(KB[(u >> 1) & 1] + 4, 4), vr(Q[u & 1] + 4, 4))]
    pv = lambda u: [f"v_smfmac_f32_32x32x32_bf16 {vr(O[u&1],16)}, {vr(VB[(u>>1)&1]+4*m,4)}, {vr(S[u%4]+8*m,8)}, v{IDX}" for m in range(2)]
    sm = lambda u: [f"v_smfmac_f32_16x16x64_bf16 {vr(LS[u&1],4)}, {vr(SUMA,4)}, {vr(S[u%4]+8*m,8)}, v{IDX}" for m in range(2)]
    vO, aO0, aO1 = aG0, aG1, vKo
    k(rdK(0), rdV(0), rdK(1))
    k(f"s_mov_b32 s{sT}, 32768")
    for i in range(2):
        for b in range(2):
            k(f"buffer_load_dwordx4 {vr(RES[i][b],4)}, v{vRow}, s[{SX}:{SX+3}], {['0', f's{sT}'][i]} offen offset:{64*b}")
    k("s_waitcnt lgkmcnt(4)", qk(0))
    bT, aT = bX[0], aX[0]
    k(f"v_and_b32 v{T0}, 1, v{G}", f"v_lshlrev_b32 v{T0}, 10, v{T0}", f"v_lshrrev_b32 v{T1}, 5, v{L}",
      f"v_lshl_add_u32 v{T0}, v{T1}, 8, v{T0}", f"v_lshl_add_u32 v{vO}, v{TOK}, 4, v{T0}",
      f"s_lshl_b32 s{sT}, s{sW}, 12", f"s_add_u32 s{sT}, s{sT}, {XR}", f"v_add_u32 v{aO0}, s{sT}, v{vO}",
      f"s_lshl_b32 s{sT}, s{sTH}, 11", f"s_add_u32 s{sT}, s{sT}, {XR}", f"v_add_u32 v{bT}, s{sT}, v{vLin}", f"v_add_u32 v{aT}, s{sT}, v{vLin}")
    k(".p2align 6")
    k.label("L_k1_loop")
    for u in range(16):
        ex = [f"v_exp_f32 v{S[u%4]+i}, v{S[u%4]+i}" for i in range(16)]
        mf = qk(u + 1) + pv(u - 1) + sm(u - 1)
        sl = [[] for _ in range(6)]
        rd = rdV(u // 2 + 1) if u % 2 == 0 else rdK((u + 3) // 2)
        sl[4].append(rd[0]); sl[5].append(rd[1])
        if u % 2 == 0:
            sl[3].append("s_waitcnt lgkmcnt(0)")
        if u == 9:
            sl[2].append(f"s_add_u32 s{sRd}, s{sRd}, {SLOT}"); sl[3].append(f"s_cmp_eq_u32 s{sRd}, {KVB+3*SLOT}")
        if u == 10:
            sl[2].append(f"s_cselect_b32 s{sRd}, {KVB}, s{sRd}")
        if u == 13:
            sl[1].append(f"v_add_u32 v{vRd}, s{sRd}, v{vLin}")
            sl[2].append("s_waitcnt lgkmcnt(0)"); sl[3].append("s_barrier")
        if u == 15:
            sl[2].append(f"s_sub_u32 s{sC}, s{sC}, 1"); sl[3].append(f"s_cmp_lg_u32 s{sC}, 0")
        cuts = [0, 3, 6, 9, 12, 14, 16] if (u < 15 or not OPT.get("brs", 1)) else [0, 3, 7, 10, 14, 16, 16]
        for i in range(6):
            k(mf[i], sl[i], ex[cuts[i]:cuts[i + 1]])
    k("s_cbranch_scc1 L_k1_loop")
    if not (OPT.get('qcyc') or OPT.get('ocyc')):
        mid_stamp(k, 1)
    vO, aO0, aO1 = aG0, aG1, vKo
    PK = [KB[0], VB[1]]

    def check(q):
        o = [f"v_maximum3_f32 v{T0}, abs(v{O[q]}), abs(v{O[q]+1}), v{LS[q]}", f"v_maximum3_f32 v{T1}, abs(v{O[q]+2}), abs(v{O[q]+3}), abs(v{O[q]+4})"]
        for i in range(5, 15, 2):
            t = [T0, T1][(i // 2) & 1]
            o.append(f"v_maximum3_f32 v{t}, abs(v{O[q]+i}), abs(v{O[q]+i+1}), v{t}")
        o += [f"v_maximum3_f32 v{T0}, abs(v{O[q]+15}), v{T1}, v{T0}",
              f"v_cmp_nle_f32 vcc, {f32(2.0**-80)}, v{LS[q]}", f"s_mov_b64 s[70:71], vcc",
              f"v_cmp_nge_f32 vcc, {f32(2.0**100)}, v{T0}", f"s_or_b64 s[70:71], s[70:71], vcc",
              "s_branch L_k1_slow" if OPT["force_slow"] == q + 1 else None, "s_cbranch_scc1 L_k1_slow"]
        return o

    def out(q):
        o = [f"v_rcp_f32 v{LS[q]}, v{LS[q]}", "s_nop 0"]
        for m in range(2):
            d = PK[q] + 4 * m
            o += [f"v_pk_mul_f32 {vr(O[q]+8*m+i,2)}, {vr(O[q]+8*m+i,2)}, {vr(LS[q],2)} op_sel_hi:[1,0]" for i in range(0, 8, 2)]
            o += [f"v_cvt_pk_bf16_f32 v{d+i}, v{O[q]+8*m+2*i}, v{O[q]+8*m+2*i+1}" for i in range(4)]
            o.append(f"buffer_store_dwordx4 {vr(d,4)}, v{vO}, s[{SWS}:{SWS+3}], s{sOo} offen offset:{2048*q+512*m} sc1")
        return o
    k(pv(15), sm(15), "s_nop 9", check(0), out(0), check(1))
    k.label("L_k1_out")
    k(out(1))
    for q in range(2):
        for m in range(2):
            k(f"ds_write_b128 v{aO0}, {vr(PK[q]+4*m,4)} offset:{2048*q+512*m}")
    k("s_branch L_f_oproj")
    k(island(back="L_f_back2", jump=False))
    k.label("L_f_oproj")
    k("s_waitcnt vmcnt(4)")
    for i in range(2):
        for b in range(2):
            k(f"v_permlane16_swap_b32 v{RES[i][b]}, v{RES[i][b]+2}", f"v_permlane16_swap_b32 v{RES[i][b]+1}, v{RES[i][b]+3}")
    sig = lambda h: ["s_mov_b64 exec, 1", "s_waitcnt vmcnt(0)", f"buffer_atomic_add v{T0}, off, s[{SWS}:{SWS+3}], s{sFg} offset:{256*h} sc1", "s_mov_b64 exec, -1"]
    k(f"v_mov_b32 v{T0}, 1", f"s_cmp_ge_u32 s{sHG}, 4", "s_cbranch_scc1 L_f_sig0", sig(0))
    k.label("L_f_sig0")
    k(f"s_mov_b32 s{sRd}, 0", "s_waitcnt lgkmcnt(0)", "s_barrier")

    def oreads(fi):
        o = [f"ds_read_b128 {vr(F[fi][s]['X'][i],4)}, v{aT} offset:{s*4096+i*1024}" for s in range(2) for i in range(2)]
        for s in range(2):
            for t in range(4):
                for j in range(2):
                    o.append(f"ds_read_b64_tr_b16 {vr(F[fi][s]['W'][t]+2*j,2)}, v{aW[t]} offset:{s*8192+j*1024}")
        return o

    def omf(fi, s):
        return [m16(vr(acc[t][i ^ (t & 1)], 4), vr(F[fi][s]["W"][t], 4), vr(F[fi][s]["X"][i ^ (t & 1)], 4)) for t in range(4) for i in range(2)]
    oadv = [[f"s_add_u32 s{sRd}, s{sRd}, 16384", f"s_and_b32 s{sRd}, s{sRd}, 0x1ffff"], [f"s_bfe_u32 s{sRx}, s{sRd}, 0xf0001", f"v_add_u32 v{aW[0]}, s{sRd}, v{bW[0]}"],
            [f"v_add_u32 v{aW[t]}, s{sRd}, v{bW[t]}" for t in (1, 2)], [f"v_add_u32 v{aW[3]}, s{sRd}, v{bW[3]}", f"v_add_u32 v{aT}, s{sRx}, v{bT}"]]

    def ostep(f, adv_, extra=()):
        r = oreads(1 - f)
        sl = [[] for _ in range(16)]
        for i, x in enumerate(r[:12]):
            sl[(i * 8) // 12].append(x)
        for i, x in enumerate(r[12:]):
            sl[8 + i].append(x)
        if adv_:
            sl[1].append(f"s_add_u32 s{sRd}, s{sRd}, 16384"); sl[3].append(f"s_and_b32 s{sRd}, s{sRd}, 0x1ffff")
            sl[5].append(f"s_bfe_u32 s{sRx}, s{sRd}, 0xf0001"); sl[8].append(f"v_add_u32 v{aT}, s{sRx}, v{bT}")
            for t in range(4):
                sl[9 + 2 * t].append(f"v_add_u32 v{aW[t]}, s{sRd}, v{bW[t]}")
        for i, x in enumerate(extra):
            sl[10 + 2 * i].append(x)
        sl[7].append("s_waitcnt lgkmcnt(12)"); sl[15].append("s_waitcnt lgkmcnt(8)")
        for m, e in zip(omf(f, 0) + omf(f, 1), sl):
            k(m, e)
    if OPT.get("ocyc"):
        mid_stamp(k, 0)
    k(oreads(0), oadv)
    for i in range(2):
        for b in range(2):
            for jt in range(2):
                for hh in range(2):
                    a, r = acc[2 * b + jt][i] + 2 * hh, RES[i][b] + 2 * jt + hh
                    k(f"v_lshlrev_b32 v{a}, 16, v{r}", f"v_and_b32 v{a+1}, 0xffff0000, v{r}")
    k(f"s_cmp_lt_u32 s{sHG}, 4", "s_cbranch_scc1 L_f_sig1", sig(1))
    k.label("L_f_sig1")
    xstamp(k, 9)
    k(f"s_lshl_b32 s{sT}, s{sTB}, 1", f"s_add_u32 s{sT}, s{sT}, s{sTH}", f"s_lshl_b32 s{sT}, s{sT}, 12",
      f"s_lshl_b32 s{sT2}, s{sHG}, 1", f"s_add_u32 s{sT2}, s{sT2}, s{sCH}", f"s_lshl_b32 s{sT2}, s{sT2}, 8",
      f"s_add_u32 s{sT}, s{sT}, s{sT2}", f"s_add_u32 s{sFg}, s{sT}, {STP}", f"s_mov_b32 s{sN}, 7", "s_waitcnt lgkmcnt(0)")
    k.label("L_f_oloop")
    k("s_barrier")
    ostep(0, True)
    k("s_barrier")
    ostep(1, True, [f"s_sub_u32 s{sN}, s{sN}, 1", f"s_cmp_lg_u32 s{sN}, 0"])
    k("s_cbranch_scc1 L_f_oloop")
    k("s_barrier")
    ostep(0, False)
    k(omf(1, 0), "s_waitcnt lgkmcnt(0)", omf(1, 1), "s_nop 3")
    if OPT.get("ocyc"):
        mid_stamp(k, 1)
    SUM = [O[0], O[0] + 4]
    for b in range(2):
        for i in range(2):
            o = Q[b] + 4 * i
            for jt in range(2):
                a = acc[2 * b + jt][i]
                k(f"v_cvt_pk_bf16_f32 v{o+2*jt}, v{a}, v{a+1}", f"v_cvt_pk_bf16_f32 v{o+2*jt+1}, v{a+2}, v{a+3}")
        k("s_nop 0")
        for i in range(2):
            o = Q[b] + 4 * i
            k(f"v_permlane16_swap_b32 v{o}, v{o+2}", f"v_permlane16_swap_b32 v{o+1}, v{o+3}",
              f"buffer_store_dwordx4 {vr(o,4)}, v{vHo}, s[{SWS}:{SWS+3}], s{[sH0,sH1][b]} offen offset:{1024*i} sc1")
    for t in range(4):
        for hh in (0, 2):
            for i in range(2):
                a = vr(acc[t][i] + hh, 2)
                if t == 0 and hh == 0:
                    k(f"v_pk_mul_f32 {vr(SUM[i]+2,2)}, {a}, {a}")
                else:
                    src = vr(acc[0][i], 2) if (t == 0 and hh == 2) else vr(SUM[i], 2)
                    k(f"v_pk_add_f32 {vr(SUM[i],2)}, {src}, {a}", f"v_pk_fma_f32 {vr(SUM[i]+2,2)}, {a}, {a}, {vr(SUM[i]+2,2)}")
    for i in range(2):
        k(f"v_add_f32 v{SUM[i]}, v{SUM[i]}, v{SUM[i]+1}", f"v_add_f32 v{SUM[i]+1}, v{SUM[i]+2}, v{SUM[i]+3}")
    k(f"v_lshrrev_b32 v{T0}, 6, v{vHo}", f"v_permlane32_swap_b32 v{SUM[0]}, v{SUM[0]+1}", f"v_permlane32_swap_b32 v{SUM[1]}, v{SUM[1]+1}", "s_nop 0",
      f"v_add_f32 v{SUM[0]}, v{SUM[0]}, v{SUM[0]+1}", f"v_add_f32 v{SUM[1]}, v{SUM[1]}, v{SUM[1]+1}",
      f"v_and_b32 v{T0}, 12, v{T0}", f"v_lshl_add_u32 v{T0}, v{TOK}, 4, v{T0}",
      f"v_permlane16_swap_b32 v{SUM[0]}, v{SUM[1]}", "s_nop 0",
      f"v_add_f32 v{SUM[0]}, v{SUM[0]}, v{SUM[1]}",
      f"buffer_store_dword v{SUM[0]}, v{T0}, s[{SWS}:{SWS+3}], s{sFg} offen sc1")
    tail(k, 0, sW)
    k(island(back="L_f_back", jump=False))
    k.label("L_f_setup")
    if OPT.get("isl", 1):
        k(f"s_cmp_eq_u32 s{sW}, 0", f"s_cbranch_scc1 L_isl{ISL[0][0]}", f"s_cmp_eq_u32 s{sW}, 1", f"s_cbranch_scc1 L_isl{ISL[1][0]}")
    k.label("L_f_back")
    k("s_waitcnt lgkmcnt(0)", ws_shift(SWS), srd_tail(SWS, WS_SZ), srd_from(SKV, SWS, KVF, 262144))
    k(f"s_lshl_b32 s{sGW}, s2, 2", f"s_add_u32 s{sGW}, s{sGW}, s{sW}",
      f"s_lshl_b32 s{sWrJ}, s{sW}, 12", f"s_add_u32 s{sWrJ}, s{sWrJ}, {JB}")
    k(f"v_lshrrev_b32 v{T0}, 4, v{L}", f"v_lshlrev_b32 v{T0}, 10, v{T0}", f"v_bfe_u32 v{T1}, v{L}, 2, 2", f"v_lshl_add_u32 v{T0}, v{T1}, 7, v{T0}",
      f"v_bfe_u32 v{T1}, v{L}, 3, 1", f"v_lshl_add_u32 v{T0}, v{T1}, 6, v{T0}", f"v_add_u32 v{T0}, s{sWrJ}, v{T0}", f"v_and_b32 v{T1}, 3, v{L}",
      f"v_lshl_add_u32 v{bJ[0]}, v{T1}, 4, v{T0}", f"v_xor_b32 v{bJ[1]}, 64, v{bJ[0]}")
    strip, kb0, mat = 66, 67, 68
    k(f"s_lshr_b32 s{strip}, s{sGW}, 3", f"s_and_b32 s{kb0}, s{sGW}, 7", f"s_lshl_b32 s{kb0}, s{kb0}, 2",
      f"s_cmp_ge_u32 s{strip}, 112", "s_cbranch_scc1 L_k1_wo")
    if "jskip" in OPT:
        k(f"s_and_b32 s{sT}, s2, 1", f"s_cmp_eq_u32 s{sT}, {OPT['jskip']}", "s_cbranch_scc1 L_k1_wo")
    k(f"s_cmp_ge_u32 s{strip}, 56", f"s_cselect_b32 s{mat}, 1, 0",
      f"s_cselect_b32 s{SJ}, s26, s24", f"s_cselect_b32 s{SJ+1}, s27, s25",
      f"s_mul_i32 s{sT}, s{mat}, 56", f"s_sub_u32 s{strip}, s{strip}, s{sT}",
      f"s_mov_b32 s{SJ+2}, {1024*7168}", f"s_mov_b32 s{sStr}, 7168", f"s_mov_b32 s{sDstep}, {14*1024}",
      f"s_mov_b32 s{sBsz}, {3584*2048}",
      f"v_lshl_add_u32 v{aJ[0]}, v{T1}, 3, v{T0}")
    for i in range(1, 4):
        k(f"v_xor_b32 v{aJ[i]}, {32*i}, v{aJ[0]}")
    for i in range(4):
        T, fb, pos = 69, 70, 71
        k(f"s_lshl_b32 s{T}, s{strip}, 2", f"s_add_u32 s{T}, s{T}, {i}",
          f"s_mul_i32 s{fb}, s{T}, 9363", f"s_lshr_b32 s{fb}, s{fb}, 16",
          f"s_sub_u32 s{pos}, s{mat}, s{fb}", f"s_mul_i32 s{pos}, s{pos}, 7", f"s_add_u32 s{pos}, s{T}, s{pos}",
          f"s_lshl_b32 s{sT}, s{fb}, 5", f"s_add_u32 s{sT}, s{sT}, s{kb0}", f"s_mul_i32 s{sT}, s{sT}, 14",
          f"s_add_u32 s{sT}, s{sT}, s{pos}", f"s_lshl_b32 s{sT}, s{sT}, 10", f"s_add_u32 s{sD[i]}, s{sT}, {WGU}",
          f"s_lshl_b32 s{sT}, s{kb0}, 3", f"s_add_u32 s{sT}, s{sT}, s{fb}", f"s_mul_i32 s{sT}, s{sT}, 14",
          f"s_add_u32 s{sT}, s{sT}, s{pos}", f"s_lshl_b32 s{sT}, s{sT}, 6", f"s_add_u32 s{sCs[i]}, s{sT}, {CSP}")
    k("s_branch L_k1_jp")
    k.label("L_k1_wo")
    k(f"s_mov_b32 s{SJ}, s24", f"s_mov_b32 s{SJ+1}, s25", f"s_mov_b32 s{SJ+2}, 0", f"s_mov_b32 s{sStr}, 2048", f"s_mov_b32 s{sDstep}, 0", f"s_mov_b32 s{sBsz}, 0")
    for i in range(4):
        k(f"s_mov_b32 s{sD[i]}, {OOB}", f"s_mov_b32 s{sCs[i]}, {OOB}", f"v_mov_b32 v{aJ[i]}, v{bJ[0]}")
    k.label("L_k1_jp")
    k(f"s_mov_b32 s{SJ+3}, 0x00020000")
    k(f"v_lshrrev_b32 v{T0}, 3, v{L}", f"v_bfe_u32 v{T1}, v{L}, 4, 1", f"v_lshlrev_b32 v{T1}, 2, v{T1}",
      f"v_and_b32 v{T2}, 7, v{L}", f"v_xor_b32 v{T1}, v{T1}, v{T2}", f"v_lshlrev_b32 v{T1}, 4, v{T1}",
      f"v_mul_lo_u32 v{vJ}, v{T0}, s{sStr}", f"v_lshl_add_u32 v{vJB}, v{T0}, 11, v{T1}", f"v_add_u32 v{vJ}, v{vJ}, v{T1}",
      f"s_lshl_b32 s{sT}, s{kb0}, 5", f"s_mul_i32 s{sT}, s{sT}, s{sStr}", f"s_lshl_b32 s{sT2}, s{strip}, 7", f"s_add_u32 s{sT}, s{sT}, s{sT2}",
      f"v_add_u32 v{vJ}, s{sT}, v{vJ}",
      f"s_lshl_b32 s{sT}, s{sStr}, 3", f"s_sub_u32 s{sJa}, s{sT}, 1024", f"s_add_u32 s{sJb}, s{sT}, 3072", f"s_mov_b32 s{sJo}, 0")
    k(f"s_mul_i32 s{strip}, s{sGW}, 1171", f"s_lshr_b32 s{strip}, s{strip}, 16",
      f"s_mul_i32 s{sT}, s{strip}, 56", f"s_sub_u32 s{kb0}, s{sGW}, s{sT}", f"s_lshl_b32 s{kb0}, s{kb0}, 1",
      f"s_cmp_ge_u32 s{kb0}, 48", f"s_cselect_b32 s69, 48, 0", f"s_cselect_b32 s70, 8, 0", f"s_sub_u32 s69, s{kb0}, s69",
      f"s_and_b32 s71, s69, 7", f"s_add_u32 s70, s70, s71", f"s_lshr_b32 s69, s69, 3",
      f"s_sub_u32 s71, s{kb0}, 96", f"s_cmp_ge_u32 s{kb0}, 96", f"s_cselect_b32 s69, 6, s69", f"s_cselect_b32 s70, s71, s70",
      f"s_mul_i32 s70, s70, 14", f"s_add_u32 s{sT}, s70, s69", f"s_lshl_b32 s{sT}, s{sT}, 15",
      f"s_lshl_b32 s{sT2}, s{strip}, 7", f"s_add_u32 s{sT}, s{sT}, s{sT2}",
      f"v_add_u32 v{vJB}, s{sT}, v{vJB}",
      f"s_lshr_b32 s{sT}, s{strip}, 1", f"s_mul_i32 s{sT}, s{sT}, 112", f"s_add_u32 s{sT}, s{sT}, s{kb0}", f"s_lshl_b32 s{sT}, s{sT}, 1",
      f"s_and_b32 s{sT2}, s{strip}, 1", f"s_add_u32 s{sT}, s{sT}, s{sT2}", f"s_lshl_b32 s{sT}, s{sT}, 12",
      f"s_add_u32 s{sDB}, s{sT}, {WDF}", f"s_cmp_eq_u32 s{sBsz}, 0", f"s_cselect_b32 s{sDB}, {OOB}, s{sDB}")
    k(f"v_and_b32 v{T0}, 15, v{L}", f"v_cmp_eq_u32 vcc, 0, v{T0}", f"v_mov_b32 v{T1}, {OOB}", "s_nop 0",
      f"v_cndmask_b32 v{vCs}, v{T1}, v{L}, vcc")
    for i in range(4):
        k(f"v_mov_b32 v{ONES+i}, 0x3f803f80")
    k(f"v_lshlrev_b32 v{vPo}, 2, v{L}")
    if OPT.get("hprof"):
        k("v_writelane_b32 v200, s92, 0", "s_mov_b32 s86, 5")
    hstamp(k, 1)
    k("s_barrier")
    hstamp(k, 2)
    npre = OPT.get("npre", 2)
    for n in range(npre):
        q_x(n * STG); q_w(n * STG)
    hstamp(k, 3)
    k(f"s_waitcnt vmcnt({6*(npre-1)})", "s_barrier")
    hstamp(k, 4)
    for n in range(npre, 4):
        q_x(n * STG); q_w(n * STG)
    k("s_waitcnt vmcnt(12)", "s_barrier")
    k.label("L_f_ld2")
    if OPT.get("hprof"):
        k("s_mov_b32 m0, s86", "s_add_u32 s86, s86, 1")
    hstamp(k, "m0")
    q_stage()
    k(f"s_cmp_lg_u32 s{sN}, 0", f"s_waitcnt vmcnt({6*D})", "s_barrier", "s_cbranch_scc1 L_f_ld2")
    hstamp(k, 17)
    poll = f"global_load_dword v{PF4}, v{vPo}, s[{SDBG}:{SDBG+1}] sc1"
    k(f"s_lshl_b32 s{sKo}, s{sW}, 13", f"s_add_u32 s{sWr}, s{sKo}, {KVB}", f"s_mov_b32 s{sN}, {1<<20}")
    if OPT.get("kvrot", 0):
        k(f"s_bfe_u32 s{sT}, s2, {0x30003 if OPT.get('kvrot', 1) == 1 else 0x30000}", f"s_lshl_b32 s{sT}, s{sT}, 15", f"s_add_u32 s{sKo}, s{sKo}, s{sT}")
    k(f"s_cmp_eq_u32 s{sW}, 0", "s_cbranch_scc1 L_f_poll0", "s_waitcnt vmcnt(6)", "s_barrier", "s_waitcnt vmcnt(0)", "s_branch L_f_polled")
    k.label("L_f_poll0")
    k(poll, "s_waitcnt vmcnt(7)", "s_barrier")
    k.label("L_f_poll")
    k("s_waitcnt vmcnt(0)", f"v_cmp_ne_u32 vcc, 4, v{PF4}", f"s_sub_u32 s{sN}, s{sN}, 1", "s_cbranch_scc1 L_f_polled",
      "s_cbranch_vccz L_f_polled", "s_sleep 2", poll, "s_branch L_f_poll")
    k.label("L_f_polled")
    hstamp(k, 18)
    k("s_barrier")
    hstamp(k, 19)

    def kv_dma(c):
        o = []
        for hh in range(2):
            o += [f"s_add_u32 m0, s{sWr}, {((c+1)%3)*SLOT+4096*hh}", "s_nop 0"]
            for i in range(4):
                o.append(f"buffer_load_dwordx4 v{vLin}, s[{SKV}:{SKV+3}], s{sKo} offen offset:{1024*i} sc1 lds")
            o.append(f"s_add_u32 s{sKo}, s{sKo}, {4096 if hh == 0 else 32768-4096}")
        o.append(f"s_and_b32 s{sKo}, s{sKo}, 0x3ffff")
        return o
    k(kv_dma(0))
    hstamp(k, 20)
    k([kv_dma(1), "s_waitcnt vmcnt(8)"] if OPT.get("kv1", 0) else "s_waitcnt vmcnt(0)")
    hstamp(k, 21)
    k("s_barrier")
    hstamp(k, 22)
    vm = []

    def wait_for(*tag):
        n = len(vm) - 1 - max(i for i, t in enumerate(vm) if t in tag)
        return f"s_waitcnt vmcnt({n})"
    vm += ["kv1"] * 8
    k(f"s_mov_b32 s{SWQ}, s20", f"s_mov_b32 s{SWQ+1}, s21",
      f"s_lshl_b32 s{sBW}, s{sTH}, 1", f"s_add_u32 s{sBW}, s{sBW}, s{sCH}", f"s_lshl_b32 s{sBW}, s{sBW}, 10",
      f"s_lshl_b32 s{sRd}, s{sW}, 11", f"s_lshl_b32 s{sOo}, s{sTB}, 17", f"s_add_u32 s{sOo}, s{sOo}, s{sRd}", f"s_add_u32 s{sOo}, s{sOo}, {OF}")
    if not OPT.get("kv1", 0):
        k(kv_dma(1))

    def kstage(n, sh):
        if n < 2:
            return [f"s_lshl_b32 s{sT}, s{sHG}, {sh+1}", f"s_add_u32 s{sT}, s{sT}, {n<<sh}"]
        i = n >> 1
        if i == 4:
            return [f"s_xor_b32 s{sT}, s{sHG}, 4", f"s_lshl_b32 s{sT}, s{sT}, {sh+1}", f"s_add_u32 s{sT}, s{sT}, {(n&1)<<sh}"]
        return [f"s_add_u32 s{sT}, s{sHG}, {i}", f"s_and_b32 s{sT}, s{sT}, 3", f"s_lshl_b32 s{sT}, s{sT}, {sh+1}",
                f"s_add_u32 s{sT}, s{sT}, {((n&1) + (8 if i > 4 else 0))<<sh}"]

    def o_w(n, pieces=range(4)):
        k(kstage(n, 17))
        for i in pieces:
            k(f"s_add_u32 m0, s{sBW}, {(n%8)*16384+4096*i}", "s_nop 0", f"buffer_load_dwordx4 v{vW[i]}, s[{SWQ}:{SWQ+3}], s{sT} offen lds")
        vm.extend([f"w{n}"] * len(pieces))

    def o_x(n):
        k(kstage(n, 13), f"s_add_u32 m0, s{sRd}, {XR+(n%4)*8192}", f"s_add_u32 s{sT}, s{sT}, s{sOo}")
        for i in range(2):
            k(f"buffer_load_dwordx4 v{vLin}, s[{SWS}:{SWS+3}], s{sT} offen offset:{1024*i} sc1 lds")
        vm.extend([f"x{n}"] * 2)
    for c in range(8):
        if c + 2 < 8:
            k(kv_dma(c + 2)); vm += [f"kv{c+2}"] * 8
        if c < (3 if OPT.get("s4", 0) else 1):
            k(f"s_lshl_b32 s{sT}, s{sGW}, 12", f"s_add_u32 s{sT}, s{sT}, {XB4[c+1]}", f"v_mov_b64 {vr(PF4,2)}, -1", f"v_mov_b64 {vr(PF4+2,2)}, -1")
            for i in range(4):
                k(f"buffer_store_dwordx4 {vr(PF4,4)}, v{vLin}, s[{SWS}:{SWS+3}], s{sT} offen offset:{1024*i} sc1")
            vm += ["st"] * 4
        if c == 3:
            k(f"s_lshl_b32 s{sT}, s{sGW}, 10", f"s_add_u32 s{sT}, s{sT}, {FL2}", f"s_cmp_lt_u32 s{sGW}, 8", f"s_cselect_b32 s{sT}, s{sT}, {OOB}",
              f"v_mov_b64 {vr(PF4,2)}, 0", f"v_mov_b64 {vr(PF4+2,2)}, 0",
              f"buffer_store_dwordx4 {vr(PF4,4)}, v{vLin}, s[{SWS}:{SWS+3}], s{sT} offen sc1")
            vm += ["st"]
        j = c - 1
        proc = 0 <= j < 6 and not OPT.get("nojob")
        if proc:
            k(wait_for(f"j{j}"))
            for f in range(4):
                for jj in range(2):
                    if j < 4:
                        k(f"ds_read_b64_tr_b16 {vr(JF[f]+2*jj,2)}, v{aJ[f]} offset:{jj*512}")
                    else:
                        k(f"ds_read_b64_tr_b16 {vr(JF[f]+2*jj,2)}, v{bJ[f>>1]} offset:{jj*512+(f&1)*8}")
            k("s_waitcnt lgkmcnt(0)")
        if c < 6 and not OPT.get("nojob"):
            if c == 4:
                k(f"s_mov_b32 s{SJ}, s28", f"s_mov_b32 s{SJ+1}, s29", f"s_mov_b32 s{SJ+2}, s{sBsz}",
                  f"s_mov_b32 s{sJo}, 0")
            k(f"s_mov_b32 m0, s{sWrJ}", "s_nop 0")
            for i in range(4):
                k(f"buffer_load_dwordx4 v{vJ if c < 4 else vJB}, s[{SJ}:{SJ+3}], s{sJo} offen offset:{1024*i}{' nt' if OPT.get('jnt', 0) else ''} lds",
                  f"s_add_u32 s{sJo}, s{sJo}, " + (f"s{sJa if i < 3 else sJb}" if c < 4 else str([8, 104, 8, 104][i] * 2048 + (-1024 if i < 3 else 3072))))
            vm += [f"j{c}"] * 4
        if proc:
            for f in range(4):
                if j < 4:
                    k(f"buffer_store_dwordx4 {vr(JF[f],4)}, v{vLin}, s[{SWS}:{SWS+3}], s{sD[f]} offen sc1",
                      f"s_add_u32 s{sD[f]}, s{sD[f]}, s{sDstep}",
                      m16(vr(CS[f], 4), vr(JF[f], 4), vr(ONES, 4), "0" if j == 0 else None))
                else:
                    k(f"buffer_store_dwordx4 {vr(JF[f],4)}, v{vLin}, s[{SWS}:{SWS+3}], s{sDB} offen offset:{1024*f} sc1")
            vm += ["st"] * 4
            if j == 4:
                k(f"s_add_u32 s{sDB}, s{sDB}, 8192")
                for f in range(4):
                    k(f"buffer_store_dwordx4 {vr(CS[f],4)}, v{vCs}, s[{SWS}:{SWS+3}], s{sCs[f]} offen sc1")
                vm += ["st"] * 4
        for n in {5: [0, 2, 3], 6: [4, 5], 7: [1, 6, 7]}.get(c, []):
            o_w(n)
        if c == 1 and OPT.get("isl", 1):
            k(f"s_branch L_isl{[n for n, b in ISL if b == 'L_f_back2'][0]}")
            k.label("L_f_back2")
        if c in (1, 7) and OPT.get("skip", 1024):
            k(f"s_branch L_f_pg{c}", ".p2align 12", f".fill {OPT.get('skip', 1024)//4}, 4, 0xbf800000", f"L_f_pg{c}:")
        if c >= 2 and OPT.get("ser", 0) and OPT.get("isl", 1):
            k(f"s_cmp_lg_u32 s{sW}, {c&3}", f"s_cbranch_scc1 L_f_hb{c-2}", f"@SER{c-2}@")
            k.label(f"L_f_hb{c-2}")
        if c == (5 if not OPT.get("ser", 0) else 0):
            k(f"s_lshr_b32 s{sT}, s2, 3", f"s_lshl_b32 s{sT}, s{sT}, 11", f"v_and_b32 v{T0}, 255, v0", f"v_lshlrev_b32 v{T0}, 3, v{T0}",
              f"v_add_u32 v{T0}, s{sT}, v{T0}")
            k(f"s_getpc_b64 s[22:23]")
            k.label("L_f_pc2")
            k("s_add_u32 s22, s22, L_code_rest-L_f_pc2", "s_addc_u32 s23, s23, 0",
              f"v_min_u32 v{T0}, L_code_end-L_code_rest-4, v{T0}", f"global_load_dword v{T1}, v{T0}, s[22:23]")
            vm.append("pf")
        if c == 6:
            k(f"s_and_b32 s{sT}, s{sTB}, 7", f"s_add_u32 s{sT}, s{sT}, 8", f"s_lshr_b32 s{sT2}, s{sT}, 1", f"s_cmp_eq_u32 s{sHG}, s{sT2}",
              f"s_cselect_b32 s{sT2}, 8, 0", f"s_sub_u32 s{sT}, s{sT}, s{sT2}", f"s_lshl_b32 s{sT}, s{sT}, 17")
            for i in range(4):
                k(f"buffer_load_dwordx4 {vr(PF4,4)}, v{vW[i]}, s[{SWQ}:{SWQ+3}], s{sT} offen")
            vm.extend(["pf"] * 4)
        if c + 1 < 8:
            k(wait_for(f"kv{c+1}"))
        k("s_barrier")
    k(f"s_lshl_b32 s{sKo}, s{sTB}, 9", f"s_add_u32 s{sKo}, s{sKo}, {FLG}", f"s_mov_b32 s{sN}, {1<<20}", "s_waitcnt vmcnt(0)")
    hstamp(k, 23)
    look = lambda h: f"buffer_load_dword v{PF4}, off, s[{SWS}:{SWS+3}], s{sKo} offset:{256*h} sc1"
    ask = lambda h, r=0: ["s_mov_b64 exec, 1", f"v_mov_b32 v{PF4+r}, 0", f"buffer_atomic_add v{PF4+r}, off, s[{SWS}:{SWS+3}], s{sKo} offset:{256*h} sc0 sc1", "s_mov_b64 exec, -1"]
    NP = OPT.get("np", 3)

    def gate(h, wait, tag=""):
        op = f"L_f_open{h}{tag}"
        k(wait, f"v_readfirstlane_b32 s{sT}, v{PF4}", "s_nop 0", f"s_cmp_ge_u32 s{sT}, s{sStr}", f"s_cbranch_scc1 {op}")
        for r in range(NP - 1):
            k(ask(h, r), f"s_sleep {OPT.get('pgap', 3)}")
        k.label(f"L_f_gate{h}{tag}")
        for r in range(NP):
            k(ask(h, (r - 1) % NP), f"s_waitcnt vmcnt({NP-1})", f"v_readfirstlane_b32 s{sT}, v{PF4+r}", "s_nop 0",
              f"s_cmp_ge_u32 s{sT}, s{sStr}", f"s_cbranch_scc1 {op}")
        k(f"s_sub_u32 s{sN}, s{sN}, 1", f"s_cbranch_scc0 L_f_gate{h}{tag}")
        k.label(op)
    k(f"v_mov_b32 v{PF4}, 0", f"s_cmp_lt_u32 s{sHG}, 4", "s_cbranch_scc1 L_f_late", f"s_sleep {OPT['odl']}" if OPT.get('odl') else None, ask(0), "s_waitcnt vmcnt(0)",
      f"v_readfirstlane_b32 s{sT}, v{PF4}", "s_nop 0", f"s_cmp_lt_u32 s{sT}, 16", "s_cbranch_scc1 L_f_late")
    o_x(2); o_x(3)
    del vm[-4:]
    hstamp(k, 24)
    k("s_barrier")
    hstamp(k, 25)
    k("s_branch L_f_both")
    k.label("L_f_late")
    k(f"s_cmp_eq_u32 s{sW}, 0", f"s_cselect_b32 s{sStr}, 16, 0")
    gate(0, None)
    hstamp(k, 24)
    k("s_barrier")
    hstamp(k, 25)
    o_x(2); o_x(3)
    k.label("L_f_both")
    k(f"s_cmp_eq_u32 s{sW}, 0", f"s_cselect_b32 s{sKo}, s{sKo}, {OOB}", f"s_cselect_b32 s{sStr}, 16, 0",
      f"s_cmp_lt_u32 s{sHG}, 4", f"s_cselect_b32 s{sJa}, {OOB}, s{sKo}", f"s_cselect_b32 s{sJb}, 0, s{sStr}",
      f"s_cselect_b32 s{sKo}, s{sKo}, {OOB}", f"s_cselect_b32 s{sStr}, s{sStr}, 0")
    k("s_barrier")
    G2 = OPT.get("g2", 3)
    for n in range(1, 15):
        if n + 3 < 16:
            o_x(n + 3)
        if n in (G2, G2 + 2):
            k(look(1) if OPT.get("lk", 1) else ask(1)); vm.append("ask")
        cum = [[0, 0, 3, 5, 8, 10, 13, 15, 18, 20, 23, 25, 28, 32, 32], [0, 0, 3, 6, 9, 12, 15, 18, 21, 24, 27, 30, 32, 32, 32]][OPT.get("wsch", 1)]
        for m in range(8, 16):
            pcs = [q for q in range(4) if cum[n - 1] <= 4 * (m - 8) + q < cum[n]]
            if pcs:
                assert m - 6 <= n <= m - 2
                o_w(m, pcs)
        if n == 4:
            gate(1, wait_for("ask"))
            k(f"s_mov_b32 s{sKo}, s{sJa}", f"s_mov_b32 s{sStr}, s{sJb}")
        if n == 6:
            gate(1, wait_for("ask"), "b")
        k(wait_for(f"x{n+1}", f"w{n+1}"), "s_barrier")
        if n in (1, 4, 6, 9, 14):
            hstamp(k, 26 + (1, 4, 6, 9, 14).index(n))
    if OPT.get("hprof"):
        k(f"s_lshl_b32 s{sT}, s{sGW}, 7", f"s_add_u32 s{sT}, s{sT}, {STAMP+2*MB}", f"v_lshlrev_b32 v{T0}, 2, v{L}", "s_mov_b64 exec, 0xffffffff",
          f"buffer_store_dword v200, v{T0}, s[{SWS}:{SWS+3}], s{sT} offen")
    hop(k, sW)
    k.label("L_k1_slow")
    k("s_waitcnt vmcnt(0) lgkmcnt(0)", "s_nop 15")
    C = [S[2], S[3]]
    ldK = [f"buffer_load_dwordx4 {vr(KB[0]+4*m,4)}, v{vLin}, s[{SKV}:{SKV+3}], s{sKo} offen offset:{1024*m} sc1" for m in range(2)]
    ldV = [f"buffer_load_dwordx4 {vr(VB[0]+4*m,4)}, v{vLin}, s[{SKV}:{SKV+3}], s{sKo} offen offset:{2048+1024*m} sc1" for m in range(2)]
    k(f"v_mov_b32 v{T0}, 0xff800000", f"v_mov_b32 v{T1}, 0xff800000", f"s_mov_b32 s{sKo}, 0")
    k.label("L_k1_s1")
    k(ldK, "s_waitcnt vmcnt(0)", qk(0), qk(1), "s_nop 15")
    for q in range(2):
        for i in range(0, 16, 2):
            k(f"v_max3_f32 v{[T0,T1][q]}, v{S[q]+i}, v{S[q]+i+1}, v{[T0,T1][q]}")
    k(f"s_add_u32 s{sKo}, s{sKo}, 4096", f"s_cmp_lt_u32 s{sKo}, 262144", "s_cbranch_scc1 L_k1_s1")
    for q in range(2):
        t = [T0, T1][q]
        k(f"v_mov_b32 v{T2}, v{t}", "s_nop 1", f"v_permlane32_swap_b32 v{t}, v{T2}", "s_nop 1", f"v_max_f32 v{t}, v{t}, v{T2}")
        for i in range(16):
            k(f"v_sub_f32 v{C[q]+i}, 0, v{t}", f"v_mov_b32 v{O[q]+i}, 0")
        for i in range(4):
            k(f"v_mov_b32 v{LS[q]+i}, 0")
    k(f"s_mov_b32 s{sKo}, 0")
    k.label("L_k1_s2")
    k(ldK, ldV, "s_waitcnt vmcnt(0)", qk(0, vr(C[0], 16)), qk(1, vr(C[1], 16)), "s_nop 15")
    for q in range(2):
        for i in range(16):
            k(f"v_exp_f32 v{S[q]+i}, v{S[q]+i}")
    k("s_nop 1", pv(0), sm(0), pv(1), sm(1))
    k(f"s_add_u32 s{sKo}, s{sKo}, 4096", f"s_cmp_lt_u32 s{sKo}, 262144", "s_cbranch_scc1 L_k1_s2")
    k("s_nop 15", "s_nop 7", out(0), "s_branch L_k1_out")
    return k


def k_gemm(name, kidx, K, tok_region, w_region, is_down):
    D = OPT.get("gd", 4)
    STG, NS = 24576, D + 2
    N = K // 64
    k = Kern(name, 256, 512, STG * NS)
    SWS, ST_, SW_, SR, SO = 4, 8, 12, 16, 20
    sW, sTB, sNB, sN, sT, sT2, sRd, sWr, sTo, sWo, sTH, sCH, sRes, sDW = range(28, 42)
    v = Alloc(1)
    L, G, TOK, T0, T1, vLin, bT, bW, aT, aW, vRow = [v() for _ in range(11)]
    F = [[dict(X=[v(4, 4) for _ in range(2)], W=[v(4, 4) for _ in range(4)]) for s in range(2)] for _ in range(2)]
    acc = [[v(4, 4) for i in range(2)] for t in range(4)]
    RES = [[v(4, 4) for b in range(2)] for i in range(2)]
    k.vgpr = k.acc = (v.n + 7) // 8 * 8
    head(k)
    k(f"s_load_dwordx2 s[{SWS}:{SWS+1}], s[0:1], {A_WS}",
      f"s_load_dwordx2 s[{SO}:{SO+1}], s[0:1], {A_OUT if is_down else A_X}")
    k(f"v_lshrrev_b32 v{T1}, 6, v0", f"v_and_b32 v{L}, 63, v0", f"v_readfirstlane_b32 s{sW}, v{T1}", f"v_lshlrev_b32 v{vLin}, 4, v{L}")
    ids_8x4(k, sNB, sTB, sT)
    k(f"s_cmp_lt_u32 s{sW}, 4", f"s_cbranch_scc1 L_{name}_comp")
    k(f"s_and_b32 s{sW}, s{sW}, 3",
      f"s_lshl_b32 s{sTo}, s{sW}, 11", f"s_lshl_b32 s{sWo}, s{sW}, 12", f"s_mov_b32 s{sWr}, s{sTo}",
      f"s_add_u32 s{sDW}, s{sTo}, 8192")
    rot = K == 1024 and OPT.get("rot2", 0)
    if rot:
        k(f"s_lshl_b32 s{sT}, s{sNB}, 1", f"s_add_u32 s{sT}, s{sT}, s{sTB}", f"s_and_b32 s{sT}, s{sT}, 7",
          f"s_lshl_b32 s{sT2}, s{sT}, 14", f"s_add_u32 s{sTo}, s{sTo}, s{sT2}", f"s_lshl_b32 s{sT2}, s{sT}, 15", f"s_add_u32 s{sWo}, s{sWo}, s{sT2}")
    k(f"s_mul_i32 s{sT}, s{sTB}, {K*128}", f"s_add_u32 s{sT}, s{sT}, {tok_region}",
      f"s_mul_i32 s{sT2}, s{sNB}, {K*256}", f"s_add_u32 s{sT2}, s{sT2}, {w_region}")
    k("s_waitcnt lgkmcnt(0)", ws_shift(SWS))
    k(srd_from(ST_, SWS, f"s{sT}", K * 128), srd_from(SW_, SWS, f"s{sT2}", K * 256))

    def dma_stage():
        o = [f"s_mov_b32 m0, s{sWr}", "s_nop 0"]
        for i in range(2):
            o.append(f"buffer_load_dwordx4 v{vLin}, s[{ST_}:{ST_+3}], s{sTo} offen offset:{1024*i} lds")
        o += [f"s_add_u32 m0, s{sWr}, s{sDW}", f"s_add_u32 s{sTo}, s{sTo}, 8192"]
        for i in range(4):
            o.append(f"buffer_load_dwordx4 v{vLin}, s[{SW_}:{SW_+3}], s{sWo} offen offset:{1024*i} lds")
        o += [f"s_add_u32 s{sWo}, s{sWo}, 16384", f"s_add_u32 s{sWr}, s{sWr}, {STG}", f"s_cmp_ge_u32 s{sWr}, {STG*NS}",
              f"s_cselect_b32 s{sT}, {STG*NS}, 0", f"s_sub_u32 s{sWr}, s{sWr}, s{sT}"]
        if rot:
            o += [f"s_and_b32 s{sTo}, s{sTo}, {K*128-1}", f"s_and_b32 s{sWo}, s{sWo}, {K*256-1}"]
        return o
    k(f"s_mov_b32 s{sN}, {N}")
    k.label(f"L_{name}_ld")
    k(dma_stage())
    k(f"s_sub_u32 s{sN}, s{sN}, 1", f"s_cmp_lg_u32 s{sN}, 0")
    k(f"s_waitcnt vmcnt({6*D})", "s_barrier", f"s_cbranch_scc1 L_{name}_ld")
    for d in range(D - 1, -1, -1):
        k(f"s_waitcnt vmcnt({6*d})", "s_barrier")
    if is_down:
        k("s_endpgm")
    else:
        hop(k, sW)
    k.label(f"L_{name}_comp")
    k(f"s_and_b32 s{sTH}, s{sW}, 1", f"s_lshr_b32 s{sCH}, s{sW}, 1")
    k(f"v_lshrrev_b32 v{G}, 4, v{L}", f"v_and_b32 v{TOK}, 15, v{L}",
      f"v_lshlrev_b32 v{T0}, 11, v{TOK}", f"v_lshl_add_u32 v{T0}, v{G}, 4, v{T0}",
      f"s_lshl_b32 s{sN}, s{sTB}, 1", f"s_add_u32 s{sN}, s{sN}, s{sTH}", f"s_lshl_b32 s{sN}, s{sN}, 16",
      f"s_lshl_b32 s{sRes}, s{sNB}, 1", f"s_add_u32 s{sRes}, s{sRes}, s{sCH}", f"s_lshl_b32 s{sRd}, s{sRes}, 7",
      f"s_add_u32 s{sN}, s{sN}, s{sRd}", f"v_add_u32 v{vRow}, s{sN}, v{T0}")
    k(f"s_lshl_b32 s{sRes}, s{sRes}, 13", f"s_lshl_b32 s{sN}, s{sTB}, 17", f"s_add_u32 s{sRes}, s{sRes}, s{sN}",
      f"s_lshl_b32 s{sN}, s{sTH}, 11", f"s_add_u32 s{sRes}, s{sRes}, s{sN}", f"s_add_u32 s{sRes}, s{sRes}, {HF}")
    k(f"s_lshl_b32 s{sT}, s{sTH}, 11", f"v_add_u32 v{bT}, s{sT}, v{vLin}",
      f"s_lshl_b32 s{sT}, s{sCH}, 12", f"s_add_u32 s{sT}, s{sT}, 8192", f"v_add_u32 v{bW}, s{sT}, v{vLin}",
      f"v_mov_b32 v{aT}, v{bT}", f"v_mov_b32 v{aW}, v{bW}")
    k("s_waitcnt lgkmcnt(0)", ws_shift(SWS))
    k(srd_tail(SWS, WS_SZ), srd_tail(SO, 4 * MB))
    for _ in range(NS - 2):
        k("s_barrier")
    k(f"s_add_u32 s{sT2}, s{sRes}, 4096", f"s_mov_b32 s{sN}, 32768")
    for i in range(2):
        for b in range(2):
            if is_down:
                k(f"buffer_load_dwordx4 {vr(RES[i][b],4)}, v{vLin}, s[{SWS}:{SWS+3}], s{[sRes,sT2][b]} offen offset:{1024*i}")
            else:
                k(f"buffer_load_dwordx4 {vr(RES[i][b],4)}, v{vRow}, s[{SO}:{SO+3}], {['0', f's{sN}'][i]} offen offset:{64*b}{' nt' if OPT.get('jnt', 0) else ''}")
    for t in range(4):
        for i in range(2):
            for r in range(4):
                k(f"v_mov_b32 v{acc[t][i]+r}, 0")

    def reads(f):
        o = []
        for s in range(2):
            o += [f"ds_read_b128 {vr(F[f][s]['X'][i],4)}, v{aT} offset:{s*4096+i*1024}" for i in range(2)]
            o += [f"ds_read_b128 {vr(F[f][s]['W'][t],4)}, v{aW} offset:{s*8192+t*1024}" for t in range(4)]
        return o

    def mfmas(f):
        return [m16(vr(acc[t][i ^ (t & 1)], 4), vr(F[f][s]["W"][t], 4), vr(F[f][s]["X"][i ^ (t & 1)], 4))
                for t in range(4) for i in range(2) for s in range(2)]
    adv = [[f"s_add_u32 s{sRd}, s{sRd}, {STG}", f"s_cmp_eq_u32 s{sRd}, {STG*NS}"], [f"s_cselect_b32 s{sRd}, 0, s{sRd}"],
           [f"v_add_u32 v{aT}, s{sRd}, v{bT}", f"v_add_u32 v{aW}, s{sRd}, v{bW}"]]
    k(f"s_mov_b32 s{sRd}, 0", f"s_mov_b32 s{sN}, {N//2-1}")
    k("s_barrier")
    mid_stamp(k, 0)
    k(reads(0), adv, "s_waitcnt lgkmcnt(0)")
    k(".p2align 6")
    k.label(f"L_{name}_loop")
    for f in range(2):
        k("s_barrier")
        m = weave(mfmas(f), reads(1 - f), 0, 9)
        tl = adv + ([[f"s_sub_u32 s{sN}, s{sN}, 1", f"s_cmp_lg_u32 s{sN}, 0"]] if f == 1 else [])
        k(weave(m, tl, len(m) - 6, len(m) - 1))
        k("s_waitcnt lgkmcnt(0)")
    k(f"s_cbranch_scc1 L_{name}_loop")
    k("s_barrier")
    k(weave(mfmas(0), reads(1), 0, 9), "s_waitcnt lgkmcnt(0)", mfmas(1))
    mid_stamp(k, 1)
    k("s_waitcnt vmcnt(0)", f"s_mov_b32 s{sN}, 32768", "s_nop 5")
    SUM = F[0][0]["X"]
    U = F[0][0]["W"][0]
    for i in range(2):
        if not is_down:
            k(f"v_mov_b32 v{SUM[i]}, 0", f"v_mov_b32 v{SUM[i]+1}, 0")
        for b in range(2):
            o = F[0][1]["W"][2 * i + b]
            for jt in range(2):
                a = acc[2 * b + jt][i]
                for h in range(2):
                    r = RES[i][b] + 2 * jt + h
                    k(f"v_lshlrev_b32 v{U}, 16, v{r}", f"v_and_b32 v{U+1}, 0xffff0000, v{r}",
                      f"v_add_f32 v{a+2*h}, v{a+2*h}, v{U}", f"v_add_f32 v{a+2*h+1}, v{a+2*h+1}, v{U+1}",
                      f"v_cvt_pk_bf16_f32 v{o+2*jt+h}, v{a+2*h}, v{a+2*h+1}")
            if is_down:
                k(f"buffer_store_dwordx4 {vr(o,4)}, v{vRow}, s[{SO}:{SO+3}], {['0', f's{sN}'][i]} offen offset:{64*b} sc1")
            else:
                k(f"buffer_store_dwordx4 {vr(o,4)}, v{vLin}, s[{SWS}:{SWS+3}], s{[sRes,sT2][b]} offen offset:{1024*i} sc1")
    if not is_down:
        for t in range(4):
            for r in range(4):
                for i in range(2):
                    a = acc[t][i] + r
                    k(f"v_add_f32 v{SUM[i]}, v{SUM[i]}, v{a}", f"v_fmac_f32 v{SUM[i]+1}, v{a}, v{a}")
        k("s_nop 1", f"v_permlane32_swap_b32 v{SUM[0]}, v{SUM[0]+1}", f"v_permlane32_swap_b32 v{SUM[1]}, v{SUM[1]+1}", "s_nop 0",
          f"v_add_f32 v{SUM[0]}, v{SUM[0]}, v{SUM[0]+1}", f"v_add_f32 v{SUM[1]}, v{SUM[1]}, v{SUM[1]+1}",
          f"v_lshlrev_b32 v{T0}, 2, v{L}", "s_nop 0",
          f"v_permlane16_swap_b32 v{SUM[0]}, v{SUM[1]}",
          f"s_lshl_b32 s{sT}, s{sTB}, 1", f"s_add_u32 s{sT}, s{sT}, s{sTH}", f"s_lshl_b32 s{sT}, s{sT}, 12",
          f"v_add_f32 v{SUM[0]}, v{SUM[0]}, v{SUM[1]}",
          f"s_lshl_b32 s{sT2}, s{sNB}, 1", f"s_add_u32 s{sT2}, s{sT2}, s{sCH}", f"s_lshl_b32 s{sT2}, s{sT2}, 8",
          f"s_add_u32 s{sT}, s{sT}, s{sT2}", f"s_add_u32 s{sT}, s{sT}, {STP}",
          f"buffer_store_dword v{SUM[0]}, v{T0}, s[{SWS}:{SWS+3}], s{sT} offen sc1")
    tail(k, kidx, sW)
    return k


def k4_down(kidx):
    name, K = "down_kernel", 3584
    D = OPT.get("dd", 2)
    N1 = OPT.get("n1", 25)
    N2 = 56 - 2 * N1
    STG, NS = 32768, D + 2
    k = Kern(name, 256, 512, STG * NS)
    SWS, ST_, SW_, SO = 4, 8, 12, 20
    sW, sTB, sNB, sN, sT, sT2, sRd, sWr, sTo, sWo, sTH, sCH, sRes, sDW, sKH, sX0, sX1 = range(28, 45)
    v = Alloc(1)
    L, G, TOK, T0, T1, vLin, bT, bW, aT, aW, vRow = [v() for _ in range(11)]
    F = [[dict(X=[v(4, 4) for _ in range(4)], W=[v(4, 4) for _ in range(4)]) for s in range(2)] for _ in range(2)]
    acc = [[v(4, 4) for i in range(4)] for t in range(4)]
    RES = [[v(4, 4) for b in range(2)] for i in range(2)]
    RCV = [[acc[2 * b][2 + i] for b in range(2)] for i in range(2)]
    k.vgpr = k.acc = (v.n + 7) // 8 * 8
    head(k, True)
    k(f"s_load_dwordx2 s[{SWS}:{SWS+1}], s[0:1], {A_WS}", f"s_load_dwordx2 s[{SO}:{SO+1}], s[0:1], {A_OUT}")
    k(f"v_lshrrev_b32 v{T1}, 6, v0", f"v_and_b32 v{L}, 63, v0", f"v_readfirstlane_b32 s{sW}, v{T1}", f"v_lshlrev_b32 v{vLin}, 4, v{L}")
    ids_8x4(k, sNB, sTB, sT)
    if OPT.get("dmap", 1):
        k(f"s_and_b32 s{sT}, s{sTB}, 7", f"s_lshl_b32 s{sT}, s{sT}, 1", f"s_bfe_u32 s{sT2}, s{sTB}, 0x10003",
          f"s_and_b32 s{sTB}, s{sTB}, 16", f"s_add_u32 s{sTB}, s{sTB}, s{sT}", f"s_add_u32 s{sTB}, s{sTB}, s{sT2}")
    k(f"s_cmp_lt_u32 s{sW}, 4", f"s_cbranch_scc1 L_{name}_comp")
    vOwn, vPar = bT, bW
    k(f"s_and_b32 s{sW}, s{sW}, 3", f"s_and_b32 s{sKH}, s{sTB}, 1",
      f"s_lshl_b32 s{sWr}, s{sW}, 11", f"s_add_u32 s{sDW}, s{sWr}, 8192",
      f"s_mul_i32 s{sTo}, s{sKH}, {N1*8192}", f"s_add_u32 s{sTo}, s{sTo}, s{sWr}", f"s_lshl_b32 s{sWo}, s{sTo}, 1",
      f"s_mul_i32 s{sT}, s{sKH}, {K*128}", f"v_add_u32 v{vOwn}, s{sT}, v{vLin}", f"s_sub_u32 s{sT}, {K*128}, s{sT}", f"v_add_u32 v{vPar}, s{sT}, v{vLin}",
      f"s_lshr_b32 s{sT}, s{sTB}, 1", f"s_mul_i32 s{sT}, s{sT}, {K*256}", f"s_add_u32 s{sT}, s{sT}, {AF}",
      f"s_mul_i32 s{sT2}, s{sNB}, {K*256}", f"s_add_u32 s{sT2}, s{sT2}, {WDF}")
    k("s_waitcnt lgkmcnt(0)", ws_shift(SWS))
    k(srd_from(ST_, SWS, f"s{sT}", K * 256), srd_from(SW_, SWS, f"s{sT2}", K * 256))

    def dma_stage(full):
        o = [f"s_mov_b32 m0, s{sWr}", "s_nop 0"]
        o += [f"buffer_load_dwordx4 v{vOwn}, s[{ST_}:{ST_+3}], s{sTo} offen offset:{1024*i} lds" for i in range(2)]
        if full:
            o += [f"s_add_u32 m0, s{sWr}, 24576", "s_nop 0"]
            o += [f"buffer_load_dwordx4 v{vPar}, s[{ST_}:{ST_+3}], s{sTo} offen offset:{1024*i} lds" for i in range(2)]
        o += [f"s_add_u32 m0, s{sWr}, s{sDW}", f"s_add_u32 s{sTo}, s{sTo}, 8192"]
        o += [f"buffer_load_dwordx4 v{vLin}, s[{SW_}:{SW_+3}], s{sWo} offen offset:{1024*i} lds" for i in range(4)]
        o += [f"s_add_u32 s{sWo}, s{sWo}, 16384", f"s_add_u32 s{sWr}, s{sWr}, {STG}", f"s_cmp_ge_u32 s{sWr}, {STG*NS}",
              f"s_cselect_b32 s{sT}, {STG*NS}, 0", f"s_sub_u32 s{sWr}, s{sWr}, s{sT}"]
        return o
    k(f"s_mov_b32 s{sN}, {N1}")
    k.label(f"L_{name}_ld")
    k(dma_stage(True))
    k(f"s_sub_u32 s{sN}, s{sN}, 1", f"s_cmp_lg_u32 s{sN}, 0")
    k(f"s_waitcnt vmcnt({8*D})", "s_barrier", f"s_cbranch_scc1 L_{name}_ld")
    k(f"s_lshl_b32 s{sTo}, s{sW}, 11", f"s_add_u32 s{sTo}, s{sTo}, {2*N1*8192}", f"s_lshl_b32 s{sWo}, s{sTo}, 1")
    cnt = lambda n: 8 if n < N1 else (6 if n < N1 + N2 else 0)
    for n in range(N1, N1 + N2 + D):
        if n < N1 + N2:
            k(dma_stage(False))
        k(f"s_waitcnt vmcnt({sum(cnt(m) for m in range(n-D+1, n+1))})", "s_barrier")
    k("s_endpgm")
    if OPT.get("epad", 1):
        k(island(jump=False))
    k.label(f"L_{name}_comp")
    k(f"s_and_b32 s{sTH}, s{sW}, 1", f"s_lshr_b32 s{sCH}, s{sW}, 1")
    k(f"v_lshrrev_b32 v{G}, 4, v{L}", f"v_and_b32 v{TOK}, 15, v{L}",
      f"v_lshlrev_b32 v{T0}, 11, v{TOK}", f"v_lshl_add_u32 v{T0}, v{G}, 4, v{T0}",
      f"s_lshl_b32 s{sN}, s{sTB}, 1", f"s_add_u32 s{sN}, s{sN}, s{sTH}", f"s_lshl_b32 s{sN}, s{sN}, 16",
      f"s_lshl_b32 s{sRes}, s{sNB}, 1", f"s_add_u32 s{sRes}, s{sRes}, s{sCH}", f"s_lshl_b32 s{sRd}, s{sRes}, 7",
      f"s_add_u32 s{sN}, s{sN}, s{sRd}", f"v_add_u32 v{vRow}, s{sN}, v{T0}")
    k(f"s_lshl_b32 s{sRes}, s{sRes}, 13", f"s_lshl_b32 s{sN}, s{sTB}, 17", f"s_add_u32 s{sRes}, s{sRes}, s{sN}",
      f"s_lshl_b32 s{sN}, s{sTH}, 11", f"s_add_u32 s{sRes}, s{sRes}, s{sN}",
      f"s_xor_b32 s{sX0}, s{sRes}, {1<<17}", f"s_add_u32 s{sX0}, s{sX0}, {XB}", f"s_add_u32 s{sX1}, s{sX0}, 4096")
    k(f"s_lshl_b32 s{sT}, s{sTH}, 11", f"v_add_u32 v{bT}, s{sT}, v{vLin}",
      f"s_lshl_b32 s{sT}, s{sCH}, 12", f"s_add_u32 s{sT}, s{sT}, 8192", f"v_add_u32 v{bW}, s{sT}, v{vLin}",
      f"v_mov_b32 v{aT}, v{bT}", f"v_mov_b32 v{aW}, v{bW}")
    k("s_waitcnt lgkmcnt(0)", ws_shift(SWS))
    k(srd_tail(SWS, WS_SZ), srd_tail(SO, 4 * MB))
    for _ in range(D):
        k("s_barrier")
    for i in range(acc[0][0], acc[0][0] + 64, 2):
        k(f"v_mov_b64 {vr(i,2)}, 0")

    def reads(f, full):
        o = []
        for s in range(2):
            o += [f"ds_read_b128 {vr(F[f][s]['X'][i],4)}, v{aT} offset:{(i>>1)*24576+s*4096+(i&1)*1024}" for i in range(4 if full else 2)]
            o += [f"ds_read_b128 {vr(F[f][s]['W'][t],4)}, v{aW} offset:{s*8192+t*1024}" for t in range(4)]
        return o

    def mfmas(f, tiles):
        return [m16(vr(acc[t][i], 4), vr(F[f][s]["W"][t], 4), vr(F[f][s]["X"][i], 4))
                for t in range(4) for i in (tiles if t % 2 == 0 else tiles[::-1]) for s in range(2)]
    adv = [[f"s_add_u32 s{sRd}, s{sRd}, {STG}", f"s_cmp_eq_u32 s{sRd}, {STG*NS}"], [f"s_cselect_b32 s{sRd}, 0, s{sRd}"],
           [f"v_add_u32 v{aT}, s{sRd}, v{bT}", f"v_add_u32 v{aW}, s{sRd}, v{bW}"]]
    ALL, OWN, PAR = [0, 1, 2, 3], [0, 1], [2, 3]
    k(f"s_mov_b32 s{sRd}, 0", f"s_mov_b32 s{sN}, {(N1-1)//2}")
    k("s_barrier")
    mid_stamp(k, 0)
    k(reads(0, True), adv, "s_waitcnt lgkmcnt(0)")

    def step(f, extra):
        k("s_barrier")
        m = weave(mfmas(f, ALL), reads(1 - f, True), 0, 18)
        k(weave(m, adv + extra, len(m) - 8, len(m) - 1), "s_waitcnt lgkmcnt(0)")
    k(".p2align 6")
    k.label(f"L_{name}_loop")
    step(0, [])
    step(1, [[f"s_sub_u32 s{sN}, s{sN}, 1", f"s_cmp_lg_u32 s{sN}, 0"]])
    k(f"s_cbranch_scc1 L_{name}_loop")
    f = 0
    if (N1 - 1) % 2:
        step(0, [])
        f = 1
    if OPT.get("p1"):
        mid_stamp(k, 1)
    snd = []
    for b in range(2):
        for i in range(2):
            o = F[1 - f][b]["X"][2 + i]
            for jt in range(2):
                a = acc[2 * b + jt][2 + i]
                snd += [[f"v_cvt_pk_bf16_f32 v{o+2*jt}, v{a}, v{a+1}", f"v_cvt_pk_bf16_f32 v{o+2*jt+1}, v{a+2}, v{a+3}"]]
            snd += [[f"v_min_u32 v{o+r}, -2, v{o+r}" for r in (0, 1)], [f"v_min_u32 v{o+r}, -2, v{o+r}" for r in (2, 3)] +
                    [f"buffer_store_dwordx4 {vr(o,4)}, v{vLin}, s[{SWS}:{SWS+3}], s{[sX0,sX1][b]} offen offset:{1024*i} sc1"]]
    k("s_barrier")
    k(weave(weave(mfmas(f, PAR), reads(1 - f, False), 0, 10), adv, 22, 27), weave(mfmas(f, OWN), snd, 0, 16), "s_waitcnt lgkmcnt(0)")
    f = 1 - f
    res = [f"buffer_load_dwordx4 {vr(RES[i][b],4)}, v{vLin}, s[{SWS}:{SWS+3}], s{[sT,sT2][b]} offen offset:{1024*i}" for i in range(2) for b in range(2)]
    rcv = [f"buffer_load_dwordx4 {vr(RCV[i][b],4)}, v{vLin}, s[{SWS}:{SWS+3}], s{[sX0,sX1][b]} offen offset:{1024*i} sc1" for i in range(2) for b in range(2)]
    rstep = N1 + N2 - OPT.get("rl", 2)
    for n in range(N1 + 1, N1 + N2):
        k("s_barrier")
        m = weave(mfmas(f, OWN), reads(1 - f, False), 0, 9)
        ex = list(adv) if n < N1 + N2 - 1 else []
        if n == N1 + 1:
            ex += [[f"s_add_u32 s{sT}, s{sRes}, {HF}", f"s_add_u32 s{sT2}, s{sRes}, {HF+4096}",
                    f"s_add_u32 s{sX0}, s{sRes}, {XB}", f"s_add_u32 s{sX1}, s{sRes}, {XB+4096}"], res]
        if n == rstep:
            ex += [rcv]
        k(weave(m, ex, len(m) - 6, len(m)) if ex else m, island() if (n == N1 + 2 and OPT.get("epad", 1)) else None, "s_waitcnt lgkmcnt(0)")
        f = 1 - f
    if rstep >= N1 + N2:
        k(rcv)
    k(mfmas(f, OWN))
    if not OPT.get("p1"):
        mid_stamp(k, 1)
    k(f"s_mov_b32 s{sN}, {1<<20}")
    k.label(f"L_{name}_chk")
    k("s_waitcnt vmcnt(0)")
    rr = [RCV[i][b] + r for i in range(2) for b in range(2) for r in range(4)]
    k(f"v_max3_u32 v{T0}, v{rr[0]}, v{rr[1]}, v{rr[2]}", f"v_max3_u32 v{T1}, v{rr[3]}, v{rr[4]}, v{rr[5]}")
    for j in range(6, 16, 2):
        t = [T0, T1][(j // 2) & 1]
        k(f"v_max3_u32 v{t}, v{rr[j]}, v{rr[j+1]}, v{t}")
    k(f"v_max_u32 v{T0}, v{T0}, v{T1}", f"v_cmp_eq_u32 vcc, -1, v{T0}", f"s_sub_u32 s{sN}, s{sN}, 1", f"s_cbranch_scc1 L_{name}_out",
      f"s_cbranch_vccz L_{name}_out", "s_sleep 2", rcv, f"s_branch L_{name}_chk")
    k.label(f"L_{name}_out")
    k(f"s_mov_b32 s{sN}, 32768")
    U = F[0][0]["W"][0]
    for i in range(2):
        for b in range(2):
            o = F[0][1]["W"][2 * i + b]
            for jt in range(2):
                a = acc[2 * b + jt][i]
                for h in range(2):
                    r, q = RES[i][b] + 2 * jt + h, RCV[i][b] + 2 * jt + h
                    k(f"v_lshlrev_b32 v{U}, 16, v{q}", f"v_and_b32 v{U+1}, 0xffff0000, v{q}",
                      f"v_lshlrev_b32 v{U+2}, 16, v{r}", f"v_and_b32 v{U+3}, 0xffff0000, v{r}",
                      f"v_pk_add_f32 {vr(a+2*h,2)}, {vr(a+2*h,2)}, {vr(U,2)}", f"v_pk_add_f32 {vr(a+2*h,2)}, {vr(a+2*h,2)}, {vr(U+2,2)}",
                      f"v_cvt_pk_bf16_f32 v{o+2*jt+h}, v{a+2*h}, v{a+2*h+1}")
            k(f"buffer_store_dwordx4 {vr(o,4)}, v{vRow}, s[{SO}:{SO+3}], {['0', f's{sN}'][i]} offen offset:{64*b} sc1")
    tail(k, kidx, sW)
    return k


def k4_down4(kidx):
    name, K = "down_kernel", 3584
    D = OPT.get("dd", 2)
    N1 = OPT.get("n1", 25)
    N2 = 56 - 2 * N1
    STG, NS = 24576, D + 2
    k = Kern(name, 256, 512, STG * NS)
    SWS, SO = 4, 20
    sW, sTB, sNB, sN, sT, sT2, sRd, sWr, sTo, sWo, sTH, sCH, sRes, sDW, sKQ = range(28, 43)
    sX = [[44 + 2 * r + b for b in range(2)] for r in range(4)]
    v = Alloc(1)
    L, G, TOK, T0, T1, vLin, bT, bW, aT, aW, vRow = [v() for _ in range(11)]
    F = [[dict(X=[v(4, 4) for _ in range(2)], W=[v(4, 4) for _ in range(4)]) for s in range(2)] for _ in range(2)]
    acc = [[[v(4, 4) for i in range(2)] for t in range(4)] for r in range(4)]
    RES = [[v(4, 4) for b in range(2)] for i in range(2)]
    SND = lambda r, i, b: acc[r][2 * b][i]
    RCV = lambda r, i, b: acc[r][2 * b + 1][i] if r else RES[i][b]
    k.vgpr = k.acc = (v.n + 7) // 8 * 8
    head(k, True)
    k(f"s_load_dwordx2 s[{SWS}:{SWS+1}], s[0:1], {A_WS}", f"s_load_dwordx2 s[{SO}:{SO+1}], s[0:1], {A_OUT}")
    k(f"v_lshrrev_b32 v{T1}, 6, v0", f"v_and_b32 v{L}, 63, v0", f"v_readfirstlane_b32 s{sW}, v{T1}", f"v_lshlrev_b32 v{vLin}, 4, v{L}")
    k(f"s_bfe_u32 s{sNB}, s2, 0x20003", f"s_lshl_b32 s{sNB}, s{sNB}, 1", f"s_and_b32 s{sT}, s2, 1", f"s_add_u32 s{sNB}, s{sNB}, s{sT}",
      f"s_lshr_b32 s{sTB}, s2, 5", f"s_lshl_b32 s{sTB}, s{sTB}, 1", f"s_bfe_u32 s{sT}, s2, 0x10001", f"s_add_u32 s{sTB}, s{sTB}, s{sT}",
      f"s_and_b32 s{sT}, s2, 4", f"s_lshl_b32 s{sT}, s{sT}, 2", f"s_add_u32 s{sTB}, s{sTB}, s{sT}",
      f"s_and_b32 s{sTH}, s{sW}, 1", f"s_bfe_u32 s{sCH}, s{sW}, 0x10001")
    k(f"s_cmp_lt_u32 s{sW}, 4", f"s_cbranch_scc1 L_{name}_comp")
    k(f"s_and_b32 s{sW}, s{sW}, 3", f"s_and_b32 s{sKQ}, s2, 3",
      f"s_lshl_b32 s{sWr}, s{sW}, 11", f"s_add_u32 s{sDW}, s{sWr}, 8192",
      f"s_mul_i32 s{sT2}, s{sKQ}, {N1*4096}", f"s_lshl_b32 s{sT}, s{sTH}, 11", f"s_add_u32 s{sT2}, s{sT2}, s{sT}",
      f"s_xor_b32 s{sT}, s{sTB}, s{sCH}", f"s_mul_i32 s{sTo}, s{sT}, {K*128}", f"s_add_u32 s{sTo}, s{sTo}, s{sT2}", f"s_add_u32 s{sTo}, s{sTo}, {AF}",
      f"s_xor_b32 s{sT}, s{sNB}, s{sCH}", f"s_mul_i32 s{sWo}, s{sT}, {K*128}", f"s_add_u32 s{sWo}, s{sWo}, s{sT2}", f"s_lshl_b32 s{sWo}, s{sWo}, 1",
      f"s_add_u32 s{sWo}, s{sWo}, {WDF}")
    k("s_waitcnt lgkmcnt(0)", ws_shift(SWS), srd_tail(SWS, WS_SZ))

    def dma_stage(step):
        o = [f"s_mov_b32 m0, s{sWr}", "s_nop 0"]
        o += [f"buffer_load_dwordx4 v{vLin}, s[{SWS}:{SWS+3}], s{sTo} offen offset:{1024*i} lds" for i in range(2)]
        o += [f"s_add_u32 m0, s{sWr}, s{sDW}", f"s_add_u32 s{sTo}, s{sTo}, {step}"]
        o += [f"buffer_load_dwordx4 v{vLin}, s[{SWS}:{SWS+3}], s{sWo} offen offset:{1024*i} lds" for i in range(4)]
        o += [f"s_add_u32 s{sWo}, s{sWo}, {2*step}", f"s_add_u32 s{sWr}, s{sWr}, {STG}", f"s_cmp_ge_u32 s{sWr}, {STG*NS}",
              f"s_cselect_b32 s{sT}, {STG*NS}, 0", f"s_sub_u32 s{sWr}, s{sWr}, s{sT}",
              f"s_sub_u32 s{sN}, s{sN}, 1", f"s_cmp_lg_u32 s{sN}, 0", f"s_waitcnt vmcnt({6*D})", "s_barrier"]
        return o
    k(f"s_mov_b32 s{sN}, {N1}")
    k.label(f"L_{name}_ld")
    k(dma_stage(4096), f"s_cbranch_scc1 L_{name}_ld")
    k(f"s_lshl_b32 s{sT2}, s{sW}, 11", f"s_add_u32 s{sT2}, s{sT2}, {4*N1*4096}",
      f"s_mul_i32 s{sTo}, s{sTB}, {K*128}", f"s_add_u32 s{sTo}, s{sTo}, s{sT2}", f"s_add_u32 s{sTo}, s{sTo}, {AF}",
      f"s_mul_i32 s{sWo}, s{sNB}, {K*128}", f"s_add_u32 s{sWo}, s{sWo}, s{sT2}", f"s_lshl_b32 s{sWo}, s{sWo}, 1",
      f"s_add_u32 s{sWo}, s{sWo}, {WDF}", f"s_mov_b32 s{sN}, {N2}")
    k.label(f"L_{name}_ld2")
    k(dma_stage(8192), f"s_cbranch_scc1 L_{name}_ld2")
    for d in range(D - 1, -1, -1):
        k(f"s_waitcnt vmcnt({6*d})", "s_barrier")
    k("s_endpgm")
    k(island(jump=False))
    k.label(f"L_{name}_comp")
    k(f"v_lshrrev_b32 v{G}, 4, v{L}", f"v_and_b32 v{TOK}, 15, v{L}",
      f"v_lshlrev_b32 v{T0}, 11, v{TOK}", f"v_lshl_add_u32 v{T0}, v{G}, 4, v{T0}",
      f"s_lshl_b32 s{sN}, s{sTB}, 1", f"s_add_u32 s{sN}, s{sN}, s{sTH}", f"s_lshl_b32 s{sN}, s{sN}, 16",
      f"s_lshl_b32 s{sRes}, s{sNB}, 1", f"s_add_u32 s{sRes}, s{sRes}, s{sCH}", f"s_lshl_b32 s{sRd}, s{sRes}, 7",
      f"s_add_u32 s{sN}, s{sN}, s{sRd}", f"v_add_u32 v{vRow}, s{sN}, v{T0}")
    for _ in range(D):
        k("s_barrier")
    k(f"s_lshl_b32 s{sRes}, s{sRes}, 13", f"s_lshl_b32 s{sN}, s{sTB}, 17", f"s_add_u32 s{sRes}, s{sRes}, s{sN}",
      f"s_lshl_b32 s{sN}, s{sTH}, 11", f"s_add_u32 s{sRes}, s{sRes}, s{sN}")
    for r in range(1, 4):
        k(f"s_xor_b32 s{sT}, s{sRes}, {((r&1)<<17)|((r>>1)<<14)}", f"s_add_u32 s{sX[r][0]}, s{sT}, {XB4[r]}", f"s_add_u32 s{sX[r][1]}, s{sT}, {XB4[r]+4096}")
    k(f"s_lshl_b32 s{sT}, s{sTH}, 11", f"v_add_u32 v{bT}, s{sT}, v{vLin}",
      f"s_lshl_b32 s{sT}, s{sCH}, 12", f"s_add_u32 s{sT}, s{sT}, 8192", f"v_add_u32 v{bW}, s{sT}, v{vLin}",
      f"v_mov_b32 v{aT}, v{bT}", f"v_mov_b32 v{aW}, v{bW}")
    k("s_waitcnt lgkmcnt(0)", ws_shift(SWS))
    k(srd_tail(SWS, WS_SZ), srd_tail(SO, 4 * MB))

    def reads(f):
        o = []
        for s in range(2):
            o += [f"ds_read_b128 {vr(F[f][s]['X'][i],4)}, v{aT} offset:{s*4096+i*1024}" for i in range(2)]
            o += [f"ds_read_b128 {vr(F[f][s]['W'][t],4)}, v{aW} offset:{s*8192+t*1024}" for t in range(4)]
        return o

    def mf1(f, c=None):
        o = []
        for sw in range(2):
            for t in range(4):
                xs = [(0, 0), (0, 1), (1, 0), (1, 1)]
                for sx, i in (xs if t % 2 == 0 else xs[::-1]):
                    o.append(m16(vr(acc[2 * sw + sx][t][i], 4), vr(F[f][sw]["W"][t], 4), vr(F[f][sx]["X"][i], 4), c))
        return o

    def mf1r(f, r):
        return [m16(vr(acc[r][t][i], 4), vr(F[f][r >> 1]["W"][t], 4), vr(F[f][r & 1]["X"][i], 4)) for t in range(4) for i in ((0, 1) if t % 2 == 0 else (1, 0))]

    def mf2(f):
        return [m16(vr(acc[0][t][i], 4), vr(F[f][s]["W"][t], 4), vr(F[f][s]["X"][i], 4))
                for t in range(4) for i in ((0, 1) if t % 2 == 0 else (1, 0)) for s in range(2)]
    adv = [[f"s_add_u32 s{sRd}, s{sRd}, {STG}", f"s_cmp_eq_u32 s{sRd}, {STG*NS}"], [f"s_cselect_b32 s{sRd}, 0, s{sRd}"],
           [f"v_add_u32 v{aT}, s{sRd}, v{bT}", f"v_add_u32 v{aW}, s{sRd}, v{bW}"]]
    k(f"s_mov_b32 s{sRd}, 0", f"s_mov_b32 s{sN}, {(N1-2)//2}")
    k("s_barrier")
    mid_stamp(k, 0)
    k(reads(0), adv, "s_waitcnt lgkmcnt(0)")

    def step(f, extra, c=None):
        k("s_barrier")
        m = weave(mf1(f, c), reads(1 - f), 0, 14)
        k(weave(m, adv + extra, len(m) - 10, len(m) - 2), "s_waitcnt lgkmcnt(0)")
    step(0, [], "0")
    k(".p2align 6")
    k.label(f"L_{name}_loop")
    step(1, [])
    step(0, [[f"s_sub_u32 s{sN}, s{sN}, 1", f"s_cmp_lg_u32 s{sN}, 0"]])
    k(f"s_cbranch_scc1 L_{name}_loop")
    f = 1
    if (N1 - 2) % 2:
        step(1, [])
        f = 0

    def snd(r):
        o = []
        for b in range(2):
            for i in range(2):
                d, a = SND(r, i, b), acc[r][2 * b + 1][i]
                o += [[f"v_cvt_pk_bf16_f32 v{d}, v{d}, v{d+1}", f"v_cvt_pk_bf16_f32 v{d+1}, v{d+2}, v{d+3}"],
                      [f"v_cvt_pk_bf16_f32 v{d+2}, v{a}, v{a+1}", f"v_cvt_pk_bf16_f32 v{d+3}, v{a+2}, v{a+3}"],
                      [f"v_min_u32 v{d+q}, -2, v{d+q}" for q in (0, 1)], [f"v_min_u32 v{d+q}, -2, v{d+q}" for q in (2, 3)] +
                      [f"buffer_store_dwordx4 {vr(d,4)}, v{vLin}, s[{SWS}:{SWS+3}], s{sX[r][b]} offen offset:{1024*i} sc1"]]
        return o
    if OPT.get("p1"):
        mid_stamp(k, 1)
    k("s_barrier")
    k(weave(weave(mf1r(f, 3) + mf1r(f, 2), reads(1 - f), 0, 10), adv, 22, 27), weave(mf1r(f, 1) + mf1r(f, 0), snd(3), 0, 16), "s_waitcnt lgkmcnt(0)")
    k(island())
    f = 1 - f
    rcv = lambda r: [f"buffer_load_dwordx4 {vr(RCV(r,i,b),4)}, v{vLin}, s[{SWS}:{SWS+3}], s{sX[r][b]} offen offset:{1024*i}{' sc1' if r else ''}"
                     for i in range(2) for b in range(2)]
    radr = [[f"s_add_u32 s{sX[r][b]}, s{sRes}, {XB4[r]+4096*b}" for b in range(2)] for r in range(4)]
    rl = OPT.get("rl", 2)
    for n in range(1, N2):
        k("s_barrier")
        m = weave(mf2(f), reads(1 - f), 0, 9)
        ex = list(adv) if n < N2 - 1 else []
        if n == 1:
            k(weave(m, ex, len(m) - 6, len(m) - 2), snd(2), snd(1), radr, rcv(0))
        else:
            if n == N2 - rl:
                ex += [rcv(3), rcv(2), rcv(1)]
            k(weave(m, ex, len(m) - 6, len(m)) if ex else m)
        k("s_waitcnt lgkmcnt(0)")
        f = 1 - f
    if rl == 0:
        k(rcv(3), rcv(2), rcv(1))
    k(mf2(f))
    if not OPT.get("p1"):
        mid_stamp(k, 1)
    U = F[0][0]["W"][0]

    def add(r):
        for i in range(2):
            for b in range(2):
                for jt in range(2):
                    a, q = acc[0][2 * b + jt][i], RCV(r, i, b) + 2 * jt
                    k(f"v_lshlrev_b32 v{U}, 16, v{q}", f"v_and_b32 v{U+1}, 0xffff0000, v{q}",
                      f"v_lshlrev_b32 v{U+2}, 16, v{q+1}", f"v_and_b32 v{U+3}, 0xffff0000, v{q+1}",
                      f"v_pk_add_f32 {vr(a,2)}, {vr(a,2)}, {vr(U,2)}", f"v_pk_add_f32 {vr(a+2,2)}, {vr(a+2,2)}, {vr(U+2,2)}")
                if r == 1:
                    o = F[0][1]["W"][2 * i + b]
                    for jt in range(2):
                        a = acc[0][2 * b + jt][i]
                        k(f"v_cvt_pk_bf16_f32 v{o+2*jt}, v{a}, v{a+1}", f"v_cvt_pk_bf16_f32 v{o+2*jt+1}, v{a+2}, v{a+3}")
                    k(f"buffer_store_dwordx4 {vr(o,4)}, v{vRow}, s[{SO}:{SO+3}], {['0', f's{sT2}'][i]} offen offset:{64*b} sc1")
    k(f"s_mov_b32 s{sN}, {1<<20}", f"s_mov_b32 s{sT2}, 32768", "s_waitcnt vmcnt(12)", "s_nop 1")
    add(0)
    for r in (3, 2, 1):
        k(f"s_waitcnt vmcnt({4*(r-1)})")
        k.label(f"L_{name}_chk{r}")
        rr = [RCV(r, i, b) + q for i in range(2) for b in range(2) for q in range(4)]
        k(f"v_max3_u32 v{T0}, v{rr[0]}, v{rr[1]}, v{rr[2]}", f"v_max3_u32 v{T1}, v{rr[3]}, v{rr[4]}, v{rr[5]}")
        for j in range(6, 16, 2):
            t = [T0, T1][(j // 2) & 1]
            k(f"v_max3_u32 v{t}, v{rr[j]}, v{rr[j+1]}, v{t}")
        k(f"v_max_u32 v{T0}, v{T0}, v{T1}", f"v_cmp_eq_u32 vcc, -1, v{T0}", f"s_sub_u32 s{sN}, s{sN}, 1", f"s_cbranch_scc1 L_{name}_ok{r}",
          f"s_cbranch_vccz L_{name}_ok{r}", [rcv(q) for q in range(r, 0, -1)], "s_waitcnt vmcnt(0)", f"s_branch L_{name}_chk{r}")
        k.label(f"L_{name}_ok{r}")
        add(r)
    tail(k, kidx, sW)
    return k


class Op:
    def __init__(self, text, kind="v", needs=(), bar=False):
        self.text, self.kind, self.needs, self.bar = text, kind, list(needs), bar
        self.seq = None

    @property
    def cost(self):
        return 8 if self.kind == "t" else 4


def emit_stream(k, ops, nl=0, nv=0):
    cnt = {"lds": nl, "vm": nv}
    done = {"lds": 0, "vm": 0}
    for o in ops:
        if o.kind in cnt:
            cnt[o.kind] += 1
            o.seq = cnt[o.kind]
            k(o.text)
        elif o.kind == "wait":
            parts = []
            for kind, nm, mx in (("vm", "vmcnt", 63), ("lds", "lgkmcnt", 15)):
                need = [x.seq for x in o.needs if x.kind == kind]
                assert None not in need, "wait on an op that was not issued yet"
                tgt = cnt[kind] if (o.bar and kind == "lds") else max(need, default=0)
                if tgt > done[kind]:
                    n = cnt[kind] - tgt
                    assert n <= mx or kind == "vm"
                    parts.append(f"{nm}({min(n, mx)})")
                    done[kind] = tgt
            if parts:
                k("s_waitcnt " + " ".join(parts))
            if o.bar:
                k("s_barrier")
        else:
            k(o.text)
    return cnt


def k3_gateup():
    STG, NS = 28672, 5
    TBL = NS * STG
    k = Kern("ffn_kernel", 256, 256, 163840)
    SWS, ST_, SW_, SO = 4, 8, 12, 20
    slot = lambda n: (n + 3) % NS
    sW, sMB, sFB, sN, sT, sT2, sTo, sWo, sWr, sTB, sA0, sA1, sSt, sCp = range(28, 42)
    v = Alloc(1)
    vLin, vR1, vR2, vCs, vSt, vTid, vOut = [v() for _ in range(7)]
    PA = [v(2, 2) for _ in range(4)]
    SD = [v(2, 2) for _ in range(2)]
    TA, TB_, TC = v(4, 4), v(4, 4), v(4, 4)
    assert v.n <= 32, v.n
    acc = [[32 + (a * 4 + b) * 4 for b in range(4)] for a in range(14)]
    TK = [[[32 * n + 16 * s + 4 * b for b in range(4)] for s in range(2)] for n in range(NS)]
    WF = [[160 + 8 * n + 4 * s for s in range(2)] for n in range(4)]
    SP, CP = 192, 224
    k.vgpr, k.acc = 512, 256
    head(k, True)
    k(f"s_load_dwordx2 s[{SWS}:{SWS+1}], s[0:1], {A_WS}", f"s_load_dwordx2 s[{SO}:{SO+1}], s[0:1], {A_OUT}")
    k(f"v_lshrrev_b32 v{TA}, 6, v0", f"v_and_b32 v{TA+1}, 63, v0", f"v_readfirstlane_b32 s{sW}, v{TA}", f"v_lshlrev_b32 v{vLin}, 4, v{TA+1}")
    k(f"s_lshr_b32 s{sT}, s2, 3", f"s_lshr_b32 s{sMB}, s{sT}, 2", f"s_and_b32 s{sT}, s{sT}, 3",
      f"s_and_b32 s{sFB}, s2, 7", f"s_lshl_b32 s{sFB}, s{sFB}, 2", f"s_add_u32 s{sFB}, s{sFB}, s{sT}",
      f"s_lshl_b32 s{sTB}, s{sMB}, 2", f"s_add_u32 s{sTB}, s{sTB}, s{sW}",
      f"s_lshl_b32 s{sT}, s{sTB}, 17", f"s_add_u32 s{sT}, s{sT}, {HF}",
      f"s_mul_i32 s{sT2}, s{sFB}, {32*14*1024}", f"s_add_u32 s{sT2}, s{sT2}, {WGU}",
      f"s_mul_i32 s{sWo}, s{sW}, 7168", f"s_mov_b32 s{sWr}, s{sWo}", f"s_mov_b32 s{sTo}, 0")
    k("s_waitcnt lgkmcnt(0)", ws_shift(SWS))
    k(srd_from(ST_, SWS, f"s{sT}", 131072), srd_from(SW_, SWS, f"s{sT2}", 32 * 14 * 1024))

    def vm_stage(n):
        o = []
        for i in range(7):
            pre, post = [], []
            if i % 4 == 0:
                pre = [f"s_add_u32 m0, s{sWr}, {slot(n)*STG+1024*i}"]
            if i == 3:
                post = [f"s_add_u32 s{sWo}, s{sWo}, 4096"]
            if i == 6:
                post = [f"s_add_u32 s{sWo}, s{sWo}, {STG-4096}"]
            o.append((pre, Op(f"buffer_load_dwordx4 v{vLin}, s[{SW_}:{SW_+3}], s{sWo} offen offset:{1024*(i%4)} lds", "vm"), post, n))
        for s in range(2):
            for b in range(4):
                post = [f"s_add_u32 s{sTo}, s{sTo}, 4096"] if b == 3 else []
                o.append(([], Op(f"buffer_load_dwordx4 {ar(TK[slot(n)][s][b],4)}, v{vLin}, s[{ST_}:{ST_+3}], s{sTo} offen offset:{1024*b}", "vm"), post, n))
        return o
    VM = [vm_stage(n) for n in range(16)]
    HALF = OPT.get("k3half", 2)
    for n in range(HALF):
        wl = [([f"s_add_u32 m0, s{sN}, {(slot(n)-n)*STG}"], Op(f"buffer_load_dwordx4 v{vLin}, s[{SW_}:{SW_+3}], s{sN} offen lds", "vm"),
               [f"s_add_u32 s{sN}, s{sN}, 4096"], n) for i in range(7)]
        VM[n] = VM[n][7:11] + wl[:4] + VM[n][11:15] + wl[4:]
    if HALF:
        k(f"s_lshl_b32 s{sN}, s{sW}, 10", f"s_add_u32 s{sWo}, s{sWo}, {HALF*STG}")
    stat_ld = [([], Op(f"buffer_load_dwordx4 {ar(SP+4*i,4)}, v{vLin}, s[{SWS}:{SWS+3}], s{sSt} offen offset:{1024*(i%4)}", "vm"),
                [f"s_add_u32 s{sSt}, s{sSt}, 4096"] if i == 3 else [], None) for i in range(8)]
    cs_ld = [([], Op(f"buffer_load_dword {ar(CP+p)}, v{vTid}, s[{SWS}:{SWS+3}], s{sCp} offen", "vm"),
              [f"s_add_u32 s{sCp}, s{sCp}, {32*896}"], None) for p in range(8)]
    pro = []
    for i, (pre, ld, post, _) in enumerate(VM[0] if HALF else VM[0] + VM[1]):
        pro += [Op(x, "s") for x in pre] + ([Op("s_nop 0", "s")] if pre else []) + [ld] + [Op(x, "s") for x in post]
        if i == (7 if HALF else 14):
            cut = len(pro)
            pro.append(Op("s_barrier", "s"))
    pro, pro2 = pro[:cut], pro[cut:]
    misc = srd_tail(SWS, WS_SZ) + [
        f"s_lshl_b32 s{sSt}, s{sTB}, 13", f"s_add_u32 s{sSt}, s{sSt}, {STP}",
        f"s_mul_i32 s{sCp}, s{sFB}, 896", f"s_add_u32 s{sCp}, s{sCp}, {CSP}",
        f"v_add_u32 v{vR1}, {2*STG}, v{vLin}", f"v_add_u32 v{vR2}, {4*STG}, v{vLin}",
        f"v_lshlrev_b32 v{vTid}, 2, v0",
        f"v_lshrrev_b32 v{TA}, 4, v{TA+1}", f"v_lshlrev_b32 v{vCs}, 4, v{TA}", f"v_add_u32 v{vCs}, {TBL}, v{vCs}",
        f"v_and_b32 v{TA+2}, 1, v{TA}", f"v_lshlrev_b32 v{TA+2}, 10, v{TA+2}", f"v_lshrrev_b32 v{TA}, 1, v{TA}",
        f"v_lshl_add_u32 v{TA+2}, v{TA}, 8, v{TA+2}", f"v_and_b32 v{TA+1}, 15, v{TA+1}", f"v_lshl_add_u32 v{vOut}, v{TA+1}, 4, v{TA+2}",
        f"s_mul_i32 s{sT}, s{sTB}, {112*4096}", f"s_add_u32 s{sT}, s{sT}, {AF}", f"s_and_b32 s{sT2}, s{sFB}, 1", f"s_lshl_b32 s{sT2}, s{sT2}, 9",
        f"s_add_u32 s{sT}, s{sT}, s{sT2}", f"s_lshr_b32 s{sT2}, s{sFB}, 1", f"s_lshl_b32 s{sT2}, s{sT2}, 12", f"s_add_u32 s{sT}, s{sT}, s{sT2}",
        f"s_add_u32 s{sA1}, s{sT}, {96*4096}", f"s_lshr_b32 s{sT2}, s{sFB}, 4", f"s_mul_i32 s{sT2}, s{sT2}, {40*4096}", f"s_add_u32 s{sA0}, s{sT}, s{sT2}"]
    pro += [Op(x, "s") for x in misc]
    if OPT.get("k3pf", 1):
        pro += [Op(x, "s") for x in ["s_getpc_b64 s[16:17]", f"s_lshr_b32 s{sT}, s2, 3", f"s_lshl_b32 s{sT}, s{sT}, 10",
                                     f"v_add_u32 v{TA}, s{sT}, v{vTid}", f"v_min_u32 v{TA}, L_code_end-L_k3_pf-4, v{TA}", "L_k3_pf:"]]
        pro.append(Op(f"global_load_dword v{TC}, v{TA}, s[16:17]", "vm"))

    if OPT.get("isl", 1):
        pro.append(Op(island(), "s"))
    seg0 = len(pro)
    pro += pro2
    order = [a for p in range(7) for a in (p, p + 7)]
    S0 = 12
    seq = [(n, a) for n in range(S0) for a in order]
    seq += [(n, a) for p in range(7) for n in range(S0, 16) for a in (p, p + 7)]
    NT_ = len(seq)
    mf, fixed = [], [[] for _ in range(8 * NT_)]
    RD = []
    for gt, (n, a) in enumerate(seq):
        sl = slot(n)
        fr = [(a, 0), (a, 1)] if n >= HALF else [(gt % 7, (gt // 7) & 1), (gt % 7 + 7, (gt // 7) & 1)]
        RD.append([Op(f"ds_read_b128 {ar(WF[gt%4][e],4)}, v{[vLin,vR1,vR2][sl>>1]} offset:{(sl&1)*STG+s*14336+t*1024}", "lds") for e, (t, s) in enumerate(fr)])
        bs = range(4) if gt % 2 == 0 else range(3, -1, -1)
        for b in bs:
            for e, (t, s) in enumerate(fr):
                mf.append(Op(m16(vr(acc[t][b], 4), ar(WF[gt % 4][e], 4), ar(TK[sl][s][b], 4), "0" if (n == 0 and s == 0) else None), "m"))
    first = {}
    for gt, (n, a) in enumerate(seq):
        first.setdefault(n, gt)
    barpos = {}
    for gt in range(NT_):
        if gt + 2 < NT_:
            fixed[8 * gt].append(RD[gt + 2][0]); fixed[8 * gt + 1].append(RD[gt + 2][1])
        newst = [n for n in range(1, 16) if first[n] == gt + 3]
        if gt % 14 == 4 and gt // 14 < HALF:
            fixed[8 * gt + 7].append(Op("", "wait", [x[1] for x in VM[gt // 14]], bar=True))
        elif newst:
            fixed[8 * gt + 7].append(Op("", "wait", [x[1] for x in VM[newst[0]][:8 if newst[0] < HALF else 15]], bar=True))
            barpos[newst[0]] = 8 * gt + 7
        elif gt + 1 < NT_:
            fixed[8 * gt + 7].append(Op("", "wait", RD[gt + 1]))
    flat = (VM[1] if HALF else []) + VM[2] + VM[3] + VM[4] + stat_ld + cs_ld + [x for n in range(5, 16) for x in VM[n]]
    nfast = OPT.get("k3fast", 0) if HALF else 0
    slots = [8 * gt + o for gt in range(S0 * 14) for o in (3, 6)]
    nsl = len(slots) - 2 * OPT.get("k3lead", 8)
    vpos = {}
    si = -1
    for i, (pre, ld, post, n) in enumerate(flat):
        si = max(si + 1, nfast + ((i - nfast) * (nsl - nfast)) // (len(flat) - nfast) if i >= nfast else 0)
        if n is not None and n >= NS:
            lim = barpos[n - NS + 1] + 2 if "lds" in ld.text else 8 * 14 * (n - NS + 1)
            while slots[si] < lim:
                si += 1
        p = slots[si]
        fixed[p - 1] += [Op(x, "s") for x in pre]
        fixed[p] += [ld] + [Op(x, "s") for x in post]
        vpos[id(ld)] = p
    used = [sum(o.cost for o in f if not (o.kind == "wait" and False)) for f in fixed]
    flo = [[] for _ in fixed]

    def flow(ops, start, deadline=None):
        p = start
        for o in ops:
            while used[p] + o.cost > 8:
                p += 1
            flo[p].append(o); used[p] += o.cost
        assert deadline is None or p < deadline, (p, deadline)
        return p + 1

    def spread(ops, start, stop):
        tot = sum(o.cost for o in ops) + sum(used[start:stop])
        cap = max(8.0, tot / (stop - start))
        p, acc_used, acc_cap = start, used[start], cap
        for o in ops:
            while acc_used + o.cost > acc_cap + 2 and p < stop - 1:
                p += 1
                if cap == 8.0:
                    acc_used, acc_cap = used[p], cap
                else:
                    acc_used += used[p]; acc_cap += cap
            flo[p].append(o); acc_used += o.cost
        return p
    V = lambda t: Op(t, "v")
    st = [Op("", "wait", [x[1] for x in stat_ld + cs_ld])]
    st += [V(f"v_accvgpr_read_b32 v{TC}, a{CP}")]
    for p in range(1, 8):
        st += [V(f"v_accvgpr_read_b32 v{TB_}, a{CP+p}"), V(f"v_add_f32 v{TC}, v{TC}, v{TB_}")]
    st += [V(f"v_add_u32 v{vTid}, {TBL}, v{vTid}"), Op(f"ds_write_b32 v{vTid}, v{TC}", "lds")]
    for hf in range(2):
        A = TA
        st += [V(f"v_accvgpr_read_b32 v{A+r}, a{SP+16*hf+r}") for r in range(4)]
        for i in range(1, 4):
            st += [V(f"v_accvgpr_read_b32 v{TB_+r}, a{SP+16*hf+4*i+r}") for r in range(4)]
            st += [V(f"v_add_f32 v{A+r}, v{A+r}, v{TB_+r}") for r in range(4)]
        for op in ("v_permlane16_swap_b32", "v_permlane32_swap_b32"):
            st += [V(f"v_mov_b32 v{TB_+r}, v{A+r}") for r in range(4)]
            st += [V(f"{op} v{A+r}, v{TB_+r}") for r in range(4)]
            st += [V(f"v_add_f32 v{A+r}, v{A+r}, v{TB_+r}") for r in range(4)]
        for b in (2 * hf, 2 * hf + 1):
            sd = SD[b >> 1] + (b & 1)
            st += [V(f"v_mul_f32 v{PA[b]+1}, {f32(-1/1024)}, v{A+2*(b&1)}"),
                   V(f"v_mul_f32 v{PA[b]}, {f32(1/1024)}, v{A+2*(b&1)+1}"),
                   V(f"v_fma_f32 v{PA[b]}, -v{PA[b]+1}, v{PA[b]+1}, v{PA[b]}"),
                   V(f"v_max_f32 v{PA[b]}, 0, v{PA[b]}"),
                   V(f"v_add_f32 v{sd}, {f32(EPS)}, v{PA[b]}"),
                   Op(f"v_rsq_f32 v{PA[b]}, v{sd}", "t"), V("v_nop"),
                   V(f"v_mul_f32 v{sd}, v{sd}, v{PA[b]}"),
                   V(f"v_mul_f32 v{PA[b]}, {f32(-LOG2E)}, v{PA[b]}")]
    p = flow(st, vpos[id(cs_ld[-1][1])] + 90)
    n0 = min(n for n in range(1, S0) if barpos[n] >= p)
    p = barpos[n0] + 1
    todo = list(order)
    step = (8 * 14 * S0 - 40 - p) // 14
    for i in range(14):
        cur = lambda a: all(seq[q // 8][1] != a for q in range(p - 2, p + 48))
        cand = [a for a in todo if cur(a)]
        while not cand:
            p += 4
            cand = [a for a in todo if cur(a)]
        a = cand[0]
        todo.remove(a)
        C = [TA, TC][i & 1]
        r = Op(f"ds_read_b128 {vr(C,4)}, v{vCs} offset:{64*a}", "lds")
        ops = [V(f"v_fmac_f32 v{acc[a][b]+e}, v{PA[b]+1}, v{C+e}") for b in range(4) for e in range(4)]
        q = flow([r], p)
        q = flow([Op("", "wait", [r])] + ops, q + 6, p + 46)
        p = max(q, p + min(step, 24))
    assert p < barpos[15], p
    def epi(pr, packed):
        o = []
        for bb in (0, 2):
            d = acc[pr][bb]
            for b in (bb, bb + 1):
                g_, u = acc[pr][b], acc[pr + 7][b]
                sd = SD[b >> 1] + (b & 1)
                if packed:
                    sel = f"op_sel:[0,{b&1},{b&1}] op_sel_hi:[1,{b&1},{b&1}]"
                    o += [V(f"v_pk_mul_f32 {vr(g_+h,2)}, {vr(g_+h,2)}, {vr(PA[b],2)} op_sel:[0,0] op_sel_hi:[1,0]") for h in (0, 2)]
                    o += [Op(f"v_exp_f32 v{g_+r}, v{g_+r}", "t") for r in range(4)]
                    o += [V(f"v_pk_fma_f32 {vr(g_+h,2)}, {vr(g_+h,2)}, {vr(SD[b>>1],2)}, {vr(SD[b>>1],2)} {sel}") for h in (0, 2)]
                    o += [Op(f"v_rcp_f32 v{g_+r}, v{g_+r}", "t") for r in range(4)]
                    o += [V(f"v_pk_mul_f32 {vr(u+h,2)}, {vr(u+h,2)}, {vr(g_+h,2)}") for h in (0, 2)]
                else:
                    o += [V(f"v_mul_f32 v{g_+r}, v{PA[b]}, v{g_+r}") for r in range(4)]
                    o += [Op(f"v_exp_f32 v{g_+r}, v{g_+r}", "t") for r in range(4)]
                    o += [V(f"v_fma_f32 v{g_+r}, v{g_+r}, v{sd}, v{sd}") for r in range(4)]
                    o += [Op(f"v_rcp_f32 v{g_+r}, v{g_+r}", "t") for r in range(4)]
                    o += [V(f"v_mul_f32 v{u+r}, v{u+r}, v{g_+r}") for r in range(4)]
                o += [V(f"v_cvt_pk_bf16_f32 v{d+2*(b&1)}, v{u}, v{u+1}"), V(f"v_cvt_pk_bf16_f32 v{d+2*(b&1)+1}, v{u+2}, v{u+3}")]
            o += [V("v_nop"), V(f"v_permlane16_swap_b32 v{d}, v{d+2}"), V(f"v_permlane16_swap_b32 v{d+1}, v{d+3}")]
            sa = sA1 if pr == 6 else sA0
            o.append(Op(f"buffer_store_dwordx4 {vr(d,4)}, v{vOut}, s[{SWS}:{SWS+3}], s{sa} offen offset:{1024*bb} sc1", "vm"))
        o.append(Op(f"s_add_u32 s{sa}, s{sa}, {8*4096}", "s"))
        return o
    run = 8 * 2 * (16 - S0)
    t0 = 8 * 14 * S0
    D, N1, K = OPT.get("dd", 3), OPT.get("n1", 26), 3584
    N2 = 56 - 2 * N1
    NST = N1 + N2
    S = lambda t: Op(t, "s")
    dTB, dNB, dXo, dXp, dWo, dM, dM2, dRes, dX0, dX1, dSig, dPol, dSigA, dPolA, dJ = range(44, 59)
    dS = [62, 63, 64, 65]
    dW2 = [66, 67, 68, 69]
    aT, aWd = [TA, TA + 1, TA + 2], [TB_, TB_ + 1, TB_ + 2]
    vRow, vP, vOne, T0, T1 = TA + 3, TB_ + 3, TC, TC + 1, TC + 2
    pool = acc[0] + acc[1] + acc[7] + acc[8]
    dacc = [[pool[4 * t + i] for i in range(4)] for t in range(4)]
    RES = [[128 + 8 * i + 4 * b for b in range(2)] for i in range(2)]
    SND = [[acc[9][2 * i + b] for b in range(2)] for i in range(2)]
    RCV = [[dacc[2 * b][2 + i] for b in range(2)] for i in range(2)]
    F = [[dict(X=[f0 + 32 * s + 4 * i for i in range(4)], W=[f0 + 32 * s + 16 + 4 * t for t in range(4)]) for s in range(2)] for f0 in (192, 0)]
    dslot = lambda n: (4 - n) % 5
    setup = [S(x) for x in srd_tail(SO, 4 * MB) + [
        f"s_bfe_u32 s{dNB}, s2, 0x20003", f"s_and_b32 s{sT}, s2, 1", f"s_lshl_b32 s{sT}, s{sT}, 2", f"s_add_u32 s{dNB}, s{dNB}, s{sT}",
        f"s_lshr_b32 s{dTB}, s2, 5", f"s_and_b32 s{sT}, s2, 4", f"s_lshl_b32 s{sT}, s{sT}, 1", f"s_add_u32 s{dTB}, s{dTB}, s{sT}",
        f"s_lshr_b32 s{dPol}, s{dTB}, 1", f"s_lshl_b32 s{dPol}, s{dPol}, 10", f"s_add_u32 s{dPol}, s{dPol}, {FL2}",
        f"s_lshl_b32 s{dSig}, s{sMB}, 10", f"s_add_u32 s{dSig}, s{dSig}, {FL2}",
        f"s_cmp_eq_u32 s{sW}, 0\ns_cselect_b32 s{dSig}, s{dSig}, {OOB}",
        f"s_lshl_b32 s{dTB}, s{dTB}, 1", f"s_bfe_u32 s{sT}, s2, 0x10001", f"s_add_u32 s{dTB}, s{dTB}, s{sT}",
        f"s_lshl_b32 s{dPolA}, s{sT}, 7", f"s_add_u32 s{dPolA}, s{dPolA}, s{dPol}",
        f"s_lshr_b32 s{dSigA}, s{sFB}, 4", f"s_lshl_b32 s{dSigA}, s{dSigA}, 7", f"s_add_u32 s{dSigA}, s{dSigA}, s{dSig}",
        f"s_lshl_b32 s{dM}, s{sW}, 11", f"s_lshl_b32 s{dM2}, s{sW}, 12",
        f"s_mul_i32 s{dJ}, s{sT}, {(N1-48)*8192}", f"s_add_u32 s{dJ}, s{dJ}, {24*8192}",
        f"s_mul_i32 s{sT}, s{sT}, {24*8192}", f"s_add_u32 s{sT}, s{sT}, s{dM}",
        f"s_mul_i32 s{dWo}, s{dNB}, {K*128}", f"s_add_u32 s{dWo}, s{dWo}, s{sT}", f"s_lshl_b32 s{dWo}, s{dWo}, 1", f"s_add_u32 s{dWo}, s{dWo}, {WDF}",
        f"s_add_u32 s{sT}, s{sT}, {AF}", f"s_mul_i32 s{dXo}, s{dTB}, {K*128}", f"s_add_u32 s{dXo}, s{dXo}, s{sT}",
        f"s_xor_b32 s{dXp}, s{dTB}, 1", f"s_mul_i32 s{dXp}, s{dXp}, {K*128}", f"s_add_u32 s{dXp}, s{dXp}, s{sT}",
        ] + ([f"s_and_b32 s{sT}, s{dNB}, {OPT.get('krot', 3)}", f"s_lshl_b32 s{sT}, s{sT}, 13",
              f"s_add_u32 s{dXo}, s{dXo}, s{sT}", f"s_add_u32 s{dXp}, s{dXp}, s{sT}", f"s_add_u32 s{dWo}, s{dWo}, s{sT}", f"s_add_u32 s{dWo}, s{dWo}, s{sT}",
              f"s_sub_u32 s{dJ}, s{dJ}, s{sT}"] +
             [x for q in range(4) for x in (f"s_xor_b32 s{dS[q]}, s{sT}, {(q+1)*8192}", f"s_xor_b32 s{sT2}, s{sT}, {q*8192}",
                                            f"s_sub_u32 s{dS[q]}, s{dS[q]}, s{sT2}", f"s_lshl_b32 s{dW2[q]}, s{dS[q]}, 1")]) + [
        f"s_lshr_b32 s{sT}, s{sW}, 1", f"s_lshl_b32 s{sT2}, s{dNB}, 1", f"s_add_u32 s{sT2}, s{sT2}, s{sT}",
        f"s_lshl_b32 s{sT}, s{sT}, 12", f"s_add_u32 s{sT}, s{sT}, 16384"]]
    setup += [V(f"v_add_u32 v{aWd[0]}, s{sT}, v{vLin}"), V(f"v_add_u32 v{aWd[1]}, 0x10000, v{aWd[0]}"), V(f"v_add_u32 v{aWd[2]}, 0x20000, v{aWd[0]}")]
    setup += [S(x) for x in [f"s_and_b32 s{sT}, s{sW}, 1", f"s_lshl_b32 s{sT}, s{sT}, 11"]]
    setup += [V(f"v_add_u32 v{aT[0]}, s{sT}, v{vLin}"), V(f"v_add_u32 v{aT[1]}, 0x10000, v{aT[0]}"), V(f"v_add_u32 v{aT[2]}, 0x20000, v{aT[0]}")]
    setup += [S(x) for x in [
        f"s_lshl_b32 s{dRes}, s{sT2}, 13", f"s_add_u32 s{dRes}, s{dRes}, s{sT}", f"s_lshl_b32 s{dX0}, s{dTB}, 17", f"s_add_u32 s{dRes}, s{dRes}, s{dX0}",
        f"s_lshl_b32 s{sT}, s{sT}, 5", f"s_add_u32 s{sT}, s{sT}, s{dX0}", f"s_lshl_b32 s{sT2}, s{sT2}, 7", f"s_add_u32 s{sT}, s{sT}, s{sT2}"]]
    setup += [V(f"v_and_b32 v{T0}, 0xf0, v{vLin}"), V(f"v_lshlrev_b32 v{T0}, 7, v{T0}"), V(f"v_lshrrev_b32 v{T1}, 8, v{vLin}"),
              V(f"v_lshl_add_u32 v{T0}, v{T1}, 4, v{T0}"), V(f"v_add_u32 v{vRow}, s{sT}, v{T0}"), V(f"v_mov_b32 v{vOne}, 1")]
    setup += [S(f"s_add_u32 s{dX0}, s{dRes}, {HF}"), S(f"s_add_u32 s{dX1}, s{dRes}, {HF+4096}")]
    setup += [S(f"s_lshr_b32 s{sT}, s2, 5"), S(f"s_add_u32 s{sT}, s{sT}, 2"), S(f"s_lshl_b32 s{sT}, s{sT}, 14"), S(f"s_add_u32 s{sT}, s{sT}, s{dWo}"),
              V(f"v_lshlrev_b32 v{T0}, 2, v{vLin}")]
    pset = flow(setup, max(p, t0 - 80), t0 + 16)

    def dma(m0, so, n, step):
        o = [[S(f"s_add_u32 m0, {m0}"), S("s_nop 0")]] + [[] for _ in range(n - 1)]
        for i in range(n):
            o[i].append(Op(f"buffer_load_dwordx4 v{vLin}, s[{SWS}:{SWS+3}], s{so} offen offset:{1024*i}{' sc1' if so != dWo else ''} lds", "vm"))
        o[-1].append(S(f"s_add_u32 s{so}, s{so}, {step}"))
        return o
    DX, DW = [], []
    for n in range(NST):
        base = dslot(n) * 32768
        sx_, sw_ = (f"s{dS[n&3]}", f"s{dW2[n&3]}") if n < 24 else (8192, 16384)
        x = dma(f"s{dM}, {base}", dXo, 2, sx_) + (dma(f"s{dM}, {base+8192}", dXp, 2, sx_) if n < N1 else [])
        w = dma(f"s{dM2}, {base+16384}", dWo, 4, sw_)
        if n == 24 and N1 > 24:
            x[0] = [S(f"s_add_u32 s{dXo}, s{dXo}, s{dJ}"), S(f"s_add_u32 s{dXp}, s{dXp}, s{dJ}")] + x[0]
            w[0] = [S(f"s_add_u32 s{dWo}, s{dWo}, s{dJ}"), S(f"s_add_u32 s{dWo}, s{dWo}, s{dJ}")] + w[0]
        if n == N1:
            x[0] = [S(f"s_mul_i32 s{dXo}, s{dTB}, {K*128}"), S(f"s_add_u32 s{dXo}, s{dXo}, s{dM}"), S(f"s_add_u32 s{dXo}, s{dXo}, {AF+2*N1*8192}")] + x[0]
            w[0] = [S(f"s_mul_i32 s{dWo}, s{dNB}, {K*256}"), S(f"s_add_u32 s{dWo}, s{dWo}, s{dM2}"), S(f"s_add_u32 s{dWo}, s{dWo}, {WDF+2*N1*16384}")] + w[0]
        DX.append(x); DW.append(w)
    vms = lambda gs: [o for g_ in gs for o in g_ if o.kind == "vm"]
    res = [Op(f"buffer_load_dwordx4 {ar(RES[i][b],4)}, v{vLin}, s[{SWS}:{SWS+3}], s{[dX0,dX1][b]} offen offset:{1024*i}", "vm") for i in range(2) for b in range(2)]
    signal = lambda w: Op(f"s_mov_b64 exec, 1\nbuffer_atomic_add v{vOne}, off, s[{SWS}:{SWS+3}], s{[dSigA,dSigA,dSigA,dSig][w]} offset:{256*w} sc1\ns_mov_b64 exec, -1", "vm")
    polltxt = lambda w: f"buffer_load_dword v{vP}, off, s[{SWS}:{SWS+3}], s{[dPolA,dPolA,dPolA,dPol][w]} offset:{256*w} sc1"
    POL = [Op(polltxt(w), "vm") for w in range(4)]
    pcheck = lambda w: [Op("", "wait", [POL[w]]), S(f"v_cmp_ne_u32 vcc, {[16,16,16,32][w]}, v{vP}\ns_nop 1\ns_cbranch_vccnz L_ffn_spin{w}\nL_ffn_go{w}:")]

    def put(pos, group):
        if len(group) > 2 and group[1].text == "s_nop 0":
            put(pos - 1, group[:1])
            group = group[2:]
        fixed2[pos] += group
        used[pos] += sum(o.cost for o in group)
    fixed2 = [[] for _ in fixed]
    EP = [epi(pr, False) for pr in range(6)]
    for w in range(2):
        qa = t0 + (2 + 2 * w) * run + 8 * OPT.get("siga", 6) + 7
        fixed[qa] = [Op("", "wait", vms(EP[:1 + 2 * w]), bar=True)]
        put(qa + 3, [signal(w)])
    q = t0 + 19
    for g_ in DW[0] + DW[1] + [[r] for r in res]:
        put(q, g_); q += 3 if q % 8 == 3 else 5
    for i in range(OPT.get("wpf", 2)):
        put(t0 + OPT.get("wpr", 75) + OPT.get("wps", 130) * i, [Op(f"buffer_load_dword v{T1}, v{T0}, s[{SWS}:{SWS+3}], s{sT} offen", "vm"), S(f"s_add_u32 s{sT}, s{sT}, {8*16384}")])
    put(t0 + 5 * run + OPT.get("pola", 4), [POL[0]])
    q = t0 + 6 * run + OPT.get("chka", -22)
    put(q, pcheck(0))
    for i, g_ in enumerate(DX[0]):
        put(q + 2 + 2 * i, g_)
    b0 = 8 * (NT_ - 3) + 7
    fixed[b0] = [Op("", "wait", vms(DX[0] + DW[0]), bar=True)]
    for i, g_ in enumerate(DX[1] + DX[2]):
        put(b0 + 2 + 2 * i - (i == 7), g_)
    for pr in range(6):
        spread(EP[pr], t0 + run * (pr + 1), t0 + run * (pr + 2))
    ops = pro + [Op("", "wait", [x[1] for x in VM[0][:8 if HALF else 15]], bar=True)]
    if OPT["stamp"]:
        ops.append(Op("s_memrealtime s[96:97]\ns_memtime s[84:85]\ns_waitcnt lgkmcnt(0)", "s"))
    ops += RD[0] + RD[1] + [Op("", "wait", RD[0])]
    seg = dict(n=4, last=seg0)

    def page(room):
        if OPT.get("isl", 1) and sum(1 for _, b in ISL if b is None) < OPT.get("maxisl", 20):
            seg["n"] += sum(isize(o.text) for o in ops[seg["last"]:])
            seg["last"] = len(ops)
            if seg["n"] + room > 4088:
                ops.append(Op(island(), "s"))
                seg["n"], seg["last"] = 4, len(ops)
    npf = [0]

    def prof():
        if OPT.get("prof"):
            j = npf[0]; npf[0] += 1
            ops.append(S((f"v_writelane_b32 v{vSt}, s60, {j-1}\n" if j else "") + ("s_memtime s[60:61]" if OPT["prof"] == 1 else "s_memrealtime s[60:61]")))
    for i, m in enumerate(mf):
        if i in [112 * n for n in range(S0)] + [t0 + run * pr for pr in range(7)]:
            prof()
        if not fixed[i - 1]:
            page(160)
        late = [o for o in fixed[i] if o.kind == "wait"]
        ops += [m] + [o for o in fixed[i] if o.kind != "wait"] + late + fixed2[i] + flo[i]
    if OPT["stamp"]:
        ops.append(Op("s_memrealtime s[98:99]\ns_memtime s[86:87]", "s"))

    def dreads(n):
        f, sl = n & 1, dslot(n)
        o = []
        for s in range(2):
            o += [Op(f"ds_read_b128 {ar(F[f][s]['X'][i],4)}, v{aT[sl>>1]} offset:{(sl&1)*32768+(i>>1)*8192+s*4096+(i&1)*1024}", "lds") for i in range(4 if n < N1 else 2)]
            o += [Op(f"ds_read_b128 {ar(F[f][s]['W'][t],4)}, v{aWd[sl>>1]} offset:{(sl&1)*32768+s*8192+t*1024}", "lds") for t in range(4)]
        return o

    def dmf(n, tiles):
        f = n & 1
        return [Op(m16(vr(dacc[t][i], 4), ar(F[f][s]["W"][t], 4), ar(F[f][s]["X"][i], 4), "0" if (n == 0 and s == 0 and i >= 2) else None), "m")
                for t in range(4) for i in (tiles if t % 2 == 0 else tiles[::-1]) for s in range(2)]
    E6 = epi(6, True)
    init = [Op("", "wait", res)]
    for i in range(2):
        for b in range(2):
            for jt in range(2):
                for h in range(2):
                    a, r = dacc[2 * b + jt][i] + 2 * h, RES[i][b] + 2 * jt + h
                    init += [V(f"v_accvgpr_read_b32 v{a+1}, a{r}"), V(f"v_lshlrev_b32 v{a}, 16, v{a+1}"), V(f"v_and_b32 v{a+1}, 0xffff0000, v{a+1}")]
    init += [S(f"s_xor_b32 s{dX0}, s{dRes}, {1<<17}"), S(f"s_add_u32 s{dX1}, s{dX0}, {XB+4096}"), S(f"s_add_u32 s{dX0}, s{dX0}, {XB}")]
    prof()
    page(1250)
    todo = [(n, g_) for n in range(3, NST) for g_ in DX[n] + DW[n]]
    NZ = OPT.get("nz", 0)
    ops += weave(E6 + dreads(0) + init, DW[2] + [g_ for _, g_ in todo[:NZ]], 4)
    tgt = sum(1 for n, _ in todo if n <= N1 + D + 1)
    assert OPT.get("rl", 1) < N2
    done = NZ
    snd = []
    for b in range(2):
        for i in range(2):
            o = SND[i][b]
            for jt in range(2):
                a = dacc[2 * b + jt][2 + i]
                snd += [[V(f"v_cvt_pk_bf16_f32 v{o+2*jt}, v{a}, v{a+1}"), V(f"v_cvt_pk_bf16_f32 v{o+2*jt+1}, v{a+2}, v{a+3}")]]
            snd += [[V(f"v_min_u32 v{o+r}, -2, v{o+r}") for r in (0, 1)], [V(f"v_min_u32 v{o+r}, -2, v{o+r}") for r in (2, 3)] +
                    [Op(f"buffer_store_dwordx4 {vr(o,4)}, v{vLin}, s[{SWS}:{SWS+3}], s{[dX0,dX1][b]} offen offset:{1024*i} sc1", "vm")]]
    rcvt = [f"buffer_load_dwordx4 {vr(RCV[i][b],4)}, v{vLin}, s[{SWS}:{SWS+3}], s{[dX0,dX1][b]} offen offset:{1024*i} sc1" for i in range(2) for b in range(2)]
    gate = {4: 1, 12: 2, 20: 3}
    upto = lambda n: max(NZ + ((tgt - NZ) * n) // N1, sum(1 for m, _ in todo if m <= n + 2)) if n <= N1 else sum(1 for m, _ in todo if m <= n + D + 1)
    first_of = {m: min(i for i, (q, _) in enumerate(todo) if q == m) for m in gate}
    for n in range(1, NST):
        page(860)
        ops.append(Op("", "wait", vms(DX[n] + DW[n] + ([E6] if n == OPT.get("sigb", 3) else []) + (EP[:5] if n == 1 else [])), bar=True))
        prof()
        ld = []
        for i in range(done, upto(n)):
            assert todo[i][0] <= n + 4
            if todo[i][0] in gate and first_of[todo[i][0]] == i:
                ld.append(pcheck(gate[todo[i][0]]))
            ld.append(todo[i][1])
        done = upto(n)
        assert done == len(todo) or todo[done][0] > n + 1
        for m, w in gate.items():
            if upto(n) <= first_of[m] < upto(n + 1):
                ld = [[POL[w]]] + ld
        if n == OPT.get("sigb", 3):
            ld = [[signal(3)]] + ld
        if n == 1:
            ld = ld + [[signal(2)]]
        if n == N1 + 1:
            ld = ld + [[S(f"s_add_u32 s{dX0}, s{dRes}, {XB}"), S(f"s_add_u32 s{dX1}, s{dRes}, {XB+4096}")]]
        if n == NST - OPT.get("rl", 1):
            ld = ld + [[Op(x, "vm")] for x in rcvt]
        mm = dmf(n - 1, [0, 1, 2, 3]) if n < N1 else (dmf(n - 1, [2, 3]) + dmf(n - 1, [0, 1]) if n == N1 else dmf(n - 1, [0, 1]))
        sl = [[] for _ in mm]
        rd = dreads(n)
        for i, r in enumerate(rd):
            sl[i * (len(mm) * 5 // 8) // len(rd)].append(r)
        for i, g_ in enumerate(ld):
            q = (i * (len(mm) if n != N1 else 18)) // len(ld)
            if q and len(g_) > 2 and g_[1].text == "s_nop 0" and not any(o.kind == "vm" for o in sl[q]):
                sl[q - 1].append(g_[0])
                g_ = g_[2:]
            sl[q] += g_
        if n == N1:
            for i, g_ in enumerate(snd):
                sl[16 + i] += g_
        for m, e in zip(mm, sl):
            ops += [m] + e
    ops.append(Op("", "wait", rd))
    page(1200)
    ops += dmf(NST - 1, [0, 1])
    prof()
    ops.append(S("s_waitcnt lgkmcnt(0)" if OPT.get("prof") else "s_nop 0"))
    prof()
    emit_stream(k, ops)
    xstamp(k, 0)
    k(f"s_mov_b32 s{sN}, {1<<20}")
    k.label("L_ffn_chk")
    k("s_waitcnt vmcnt(0)")
    rr = [RCV[i][b] + r for i in range(2) for b in range(2) for r in range(4)]
    k(f"v_max3_u32 v{T0}, v{rr[0]}, v{rr[1]}, v{rr[2]}", f"v_max3_u32 v{T1}, v{rr[3]}, v{rr[4]}, v{rr[5]}")
    for j in range(6, 16, 2):
        t = [T0, T1][(j // 2) & 1]
        k(f"v_max3_u32 v{t}, v{rr[j]}, v{rr[j+1]}, v{t}")
    k(f"v_max_u32 v{T0}, v{T0}, v{T1}", f"v_cmp_eq_u32 vcc, -1, v{T0}", f"s_sub_u32 s{sN}, s{sN}, 1", "s_cbranch_scc1 L_ffn_out",
      "s_cbranch_vccz L_ffn_out", "s_sleep 2", rcvt, "s_branch L_ffn_chk")
    k.label("L_ffn_out")
    k(f"s_mov_b32 s{sN}, 32768")
    U = acc[3][0]
    for i in range(2):
        for b in range(2):
            o = acc[10][2 * i + b]
            for jt in range(2):
                a, q = dacc[2 * b + jt][i], RCV[i][b] + 2 * jt
                k(f"v_lshlrev_b32 v{U}, 16, v{q}", f"v_and_b32 v{U+1}, 0xffff0000, v{q}",
                  f"v_lshlrev_b32 v{U+2}, 16, v{q+1}", f"v_and_b32 v{U+3}, 0xffff0000, v{q+1}",
                  f"v_pk_add_f32 {vr(a,2)}, {vr(a,2)}, {vr(U,2)}", f"v_pk_add_f32 {vr(a+2,2)}, {vr(a+2,2)}, {vr(U+2,2)}",
                  f"v_cvt_pk_bf16_f32 v{o+2*jt}, v{a}, v{a+1}", f"v_cvt_pk_bf16_f32 v{o+2*jt+1}, v{a+2}, v{a+3}")
            k(f"buffer_store_dwordx4 {vr(o,4)}, v{vRow}, s[{SO}:{SO+3}], {['0', f's{sN}'][i]} offen offset:{64*b} sc1")
    if OPT.get("prof"):
        k("s_lshl_b32 s3, s89, 2", f"s_add_u32 s3, s3, s{sW}", "s_lshl_b32 s3, s3, 8", f"s_add_u32 s3, s3, {STAMP+2*MB}",
          f"v_lshrrev_b32 v{T0}, 2, v{vLin}", f"buffer_store_dword v{vSt}, v{T0}, s[{SWS}:{SWS+3}], s3 offen sc1")
    tail(k, 1, sW)
    for w in range(4):
        k.label(f"L_ffn_spin{w}")
        k(f"s_mov_b32 s{sN}, {1<<20}")
        k.label(f"L_ffn_spin{w}b")
        k(f"s_sleep {OPT.get('spsl', 4)}", polltxt(w), "s_waitcnt vmcnt(0)", f"v_cmp_ne_u32 vcc, {[16,16,16,32][w]}, v{vP}", f"s_sub_u32 s{sN}, s{sN}, 1", f"s_cbranch_scc1 L_ffn_go{w}",
          f"s_cbranch_vccnz L_ffn_spin{w}b", f"s_branch L_ffn_go{w}")
    return k


HEADER = open("sequential_preLN__grouped_kv_mqa__glu_gated_glu__prompt.s.ref").read().split("; Override launch")[0]


DOC = """;
"""


def k_diag():
    k = Kern("diag_kernel", 1, 64, 0)
    k.vgpr = k.acc = 8
    a, b, m = OPT["da"], OPT["db"], OPT["dm"]
    off = lambda x: STAMP + (x // 10) * 16384 + (x % 10) * 4 + OPT.get("dwg", 0) * 64
    k("s_cmp_ge_u32 s2, 1", "s_cbranch_scc1 L_diag_end", "s_load_dwordx2 s[4:5], s[0:1], 88", "s_waitcnt lgkmcnt(0)",
      f"v_mov_b32 v1, {off(a)}", f"v_mov_b32 v2, {off(b)}", "global_load_dword v3, v1, s[4:5]", "global_load_dword v4, v2, s[4:5]",
      "s_memrealtime s[8:9]", "s_waitcnt vmcnt(0) lgkmcnt(0)", "v_mov_b32 v4, s8" if OPT.get("dself") else None, "v_sub_u32 v3, v4, v3", "s_nop 1", "v_readfirstlane_b32 s6, v3", "s_nop 3",
      "s_min_u32 s6, s6, 20000", f"s_mul_i32 s6, s6, {m}")
    k.label("L_diag_loop")
    k("s_memrealtime s[10:11]", "s_waitcnt lgkmcnt(0)", "s_sub_u32 s10, s10, s8", "s_cmp_lt_u32 s10, s6", "s_cbranch_scc1 L_diag_loop")
    k.label("L_diag_end")
    k("s_endpgm")
    return k


def build():
    ks = [k01_attn(), k3_gateup()]
    if "dm" in OPT:
        ks.append(k_diag())
    if OPT.get("mark"):
        m = Kern("mark_kernel", 1, 64, 0)
        m.vgpr = m.acc = 8
        m("s_memrealtime s[8:9]", "s_cmp_ge_u32 s2, 1", "s_cbranch_scc1 L_mark_end", "s_load_dwordx2 s[4:5], s[0:1], 88", "s_waitcnt lgkmcnt(0)",
          f"v_mov_b32 v1, {STAMP+5*16384}", "v_mov_b32 v2, s8", "global_store_dword v1, v2, s[4:5] sc1", "L_mark_end:", "s_endpgm")
        ks.append(m)
    s = HEADER + "".join(ks[int(c)].launch_line() + "\n" for c in str(OPT.get("seq", "".join(str(i) for i in range(len(ks))))).lstrip("9"))
    s += DOC
    s += '.amdgcn_target "amdgcn-amd-amdhsa--gfx950"\n.text\n'
    for i, k in enumerate(ks):
        s += k.text()
        if i == 0:
            s += "L_code_rest:\n"
    s += "L_code_end:\n"
    chain = [n for n, back in ISL if back is None]
    for n, back in ISL:
        if back:
            s = s.replace(f"@ISL{n}@", f"s_branch {back}")
    call = lambda l: "\n    ".join(f"s_call_b64 s[14:15], L_isl{n}" for n in l) or "s_nop 0"
    per = -(-len(chain) // 6)
    for q in range(6):
        s = s.replace(f"@SER{q}@", call((chain[::-1] if OPT.get("ser", 0) == 2 else chain)[q * per:(q + 1) * per]))
    for w in range(4):
        s = s.replace(f"@HOP{w}@", call(chain[w::4]))
    for n in chain:
        s = s.replace(f"@ISL{n}@", "s_setpc_b64 s[14:15]")
    s += '.section .rodata,"a"\n' + "".join(k.desc() for k in ks)
    return s


if __name__ == "__main__":
    out = sys.argv[1]
    for a in sys.argv[2:]:
        key, _, val = a.partition("=")
        OPT[key] = int(val) if val else True
    open(out, "w").write(build())
```

```python
import sys, math
sys.path.insert(0, __file__.rsplit("/", 1)[0])
from asmlib import *

MB = 1 << 20
QF, KVF, OF, HF, AF = 0, 4 * MB, 5 * MB, 9 * MB, 13 * MB
WOF, WGU, WDF, CSP, STP, STAMP = 28 * MB, 30 * MB, 44 * MB, 52 * MB, 53 * MB, 60 * MB
XB = 0
XB4 = [HF, XB, 56 * MB, 64 * MB]
FLG = 54 * MB
ST1 = 55 * MB
FL2 = FLG + 65536
WS_SZ = 72 * MB
OOB = 0x40000000
LOG2E = 1.4426950408889634
QSCALE = LOG2E / math.sqrt(32.0)
EPS = 1e-5
OPT = dict(stamp=False, force_slow=False)
A_X, A_WQ, A_WK, A_WV, A_WO, A_WG, A_WU, A_WD, A_OUT, A_WS = 0, 8, 16, 24, 32, 48, 56, 64, 72, 88


def ws_shift(s):
    if OPT.get("wsoff"):
        return [f"s_add_u32 s{s}, s{s}, {OPT['wsoff']*MB}", f"s_addc_u32 s{s+1}, s{s+1}, 0"]
    return []


ISL = []


def island(back=None, jump=True):
    if not OPT.get("isl", 1):
        return None
    n = len(ISL)
    ISL.append((n, back))
    skip = f".fill {OPT.get('skip', 1024)//4}, 4, 0xbf800000\n" if (back and OPT.get("skip", 1024)) else ""
    return (f"s_branch L_isl{n}_over\n" if jump else "") + f".p2align 12\n{skip}L_isl{n}:\n@ISL{n}@\nL_isl{n}_over:"


def isize(text):
    import re
    t = 0
    for ln in text.split("\n"):
        ln = ln.strip()
        if not ln:
            t += 8
        elif ln.endswith(":") or ln.startswith("."):
            continue
        elif re.match(r"(v_mfma|v_smfmac|ds_|buffer_|global_|s_load|s_mem|v_fma_|v_cvt_pk|v_accvgpr|v_pk_|v_lshl_add|v_bfe|v_max3|v_maximum3|v_mul_lo)", ln):
            t += 8
        else:
            lit = [x for x in re.findall(r"(?<![\w\[:])(0x[0-9a-f]+|\d+)(?![\w\]:])", ln.split(None, 1)[1] if " " in ln else "") if int(x, 0) > 64]
            t += 8 if lit else 4
    return t


def hop(k, sw):
    if OPT.get("isl", 1) and not OPT.get("nohop"):
        for w in range(4):
            if w < 3:
                k(f"s_cmp_lg_u32 s{sw}, {w}", f"s_cbranch_scc1 L_hop{w}")
            k(f"@HOP{w}@", "s_endpgm")
            if w < 3:
                k.label(f"L_hop{w}")
    else:
        k("s_endpgm")


def srd_tail(s, size):
    return [f"s_mov_b32 s{s+2}, {size}", f"s_mov_b32 s{s+3}, 0x00020000"]


def srd_from(s, base, off, size):
    return [f"s_add_u32 s{s}, s{base}, {off}", f"s_addc_u32 s{s+1}, s{base+1}, 0"] + srd_tail(s, size)


def head(k, pad=False):
    if pad and OPT.get("isl", 1) and OPT.get("epad", 1):
        n = len(ISL)
        ISL.append((n, None))
        k("s_cmp_lt_u32 s2, 256", f"s_cbranch_scc1 L_isl{n}_over", "s_endpgm", f"L_isl{n}:", f"@ISL{n}@", f"L_isl{n}_over:")
    else:
        k("s_cmp_ge_u32 s2, 256", f"s_cbranch_scc1 L_end_{k.name}")
    if OPT["stamp"]:
        k("s_memrealtime s[92:93]", "s_load_dwordx2 s[90:91], s[0:1], 88", "s_mov_b32 s89, s2")


def mid_stamp(k, i):
    if OPT["stamp"] and i < 2:
        k(f"s_memrealtime s[{96+2*i}:{97+2*i}]", f"s_memtime s[{84+2*i}:{85+2*i}]")
    elif OPT["stamp"]:
        k("s_memrealtime s[100:101]", "s_waitcnt lgkmcnt(0)", f"s_mov_b32 s{[93,88,3][i-2]}, s100")


def hstamp(k, lane):
    if OPT.get("hprof"):
        k("s_memrealtime s[84:85]", "s_waitcnt lgkmcnt(0)", f"v_writelane_b32 v200, s84, {lane}")


def xstamp(k, n):
    sel = str(OPT.get("xs", 378)).zfill(3)
    if str(n) in sel:
        mid_stamp(k, 2 + sel.index(str(n)))


def tail(k, kidx, swave):
    if OPT["stamp"]:
        k("s_waitcnt vmcnt(0)", "s_memrealtime s[94:95]", "s_waitcnt lgkmcnt(0)",
          "v_mov_b32 v0, s92", "v_mov_b32 v1, s96", "v_mov_b32 v2, s98", "v_mov_b32 v3, s94",
          "s_lshl_b32 s89, s89, 2", f"s_add_u32 s89, s89, s{swave}", "s_lshl_b32 s89, s89, 4",
          f"s_add_u32 s89, s89, {STAMP + kidx*16384}", "v_mov_b32 v4, s89",
          "global_store_dwordx4 v4, v[0:3], s[90:91]",
          "s_sub_u32 s86, s86, s84", "v_mov_b32 v8, s86", "v_mov_b32 v9, s93", "v_mov_b32 v10, s88", "v_mov_b32 v11, s3",
          "v_add_u32 v4, 0x100000, v4", "global_store_dwordx4 v4, v[8:11], s[90:91]")
    k.label(f"L_end_{k.name}")
    k("s_endpgm")


def ids_8x4(k, s_a, s_b, tmp):
    k(f"s_lshr_b32 s{tmp}, s2, 3",
      f"s_and_b32 s{s_a}, s{tmp}, 3",
      f"s_lshr_b32 s{s_b}, s{tmp}, 2",
      f"s_and_b32 s{tmp}, s2, 1",
      f"s_lshl_b32 s{tmp}, s{tmp}, 2",
      f"s_add_u32 s{s_a}, s{s_a}, s{tmp}",
      f"s_and_b32 s{tmp}, s2, 6",
      f"s_lshl_b32 s{tmp}, s{tmp}, 2",
      f"s_add_u32 s{s_b}, s{s_b}, s{tmp}")


def code_prefetch(k, vtmp, vdst, stmp, start, nkb_per_wg=1):
    k(f"s_getpc_b64 s[{stmp}:{stmp+1}]")
    lab = f"L_pc_{k.name}_{start}"
    k.label(lab)
    k(f"s_add_u32 s{stmp}, s{stmp}, {start}-{lab}",
      f"s_addc_u32 s{stmp+1}, s{stmp+1}, 0",
      f"global_load_dwordx4 {vr(vdst,4)}, v{vtmp}, s[{stmp}:{stmp+1}]" if not OPT.get("nopf") else None)


def k01_attn():
    D = 2
    STG, NS = 24576, D + 2
    EA = STG * NS
    SLOT, KVB, JB, TBL = 32768, 65536, 16384, 0
    k = Kern("attn_kernel", 256, 512, 163840)
    SX, SWQ, SE, SWS, SKV, SJ = 4, 8, 12, 16, 72, 76
    (sW, sTB, sHG, sC, sT, sT2, sRd, sWr, sKo, sJo, sJa, sJb, sGW, sStr, sDstep, sOo) = range(32, 48)
    sN, sX, sWo, sTH, sCH, sBW, sOo1, sFl, sKV = 48, 49, 54, 55, 56, 57, 65, 80, 81
    sD = [50, 51, 52, 53]
    sCs = [58, 59, 60, 61]
    sDB, sBsz, sWrJ = 62, 63, 64
    SDBG = 30
    v = Alloc(1)
    L, G, R, CQ, TOK, T0, T1, T2, vLin, vRd, IDX = [v() for _ in range(11)]
    h = Alloc(v.n)
    Q = [v(8, 4) for _ in range(2)]
    O = [v(16, 4) for _ in range(2)]
    LS = [v(4, 4) for _ in range(2)]
    acc = [[v(4, 4) for i in range(2)] for t in range(4)]
    cs = [v(4, 4) for _ in range(2)]
    sx, sxx = v(4, 4), v(4, 4)
    z1 = v.n
    SUMA, ONES = v(4, 4), v(4, 4)
    bX, bQ, aX, aQ = [[v() for i in range(2)] for _ in range(4)]
    bW = [v() for _ in range(4)]
    aW = [v() for _ in range(4)]
    F0 = v(96, 4)
    FQ = [[dict(X=[F0 + 48 * f + 24 * s + 4 * i for i in range(4)], W=[F0 + 48 * f + 24 * s + 16 + 4 * t for t in range(2)]) for s in range(2)] for f in range(2)]
    qacc = [[acc[0][0] + 16 * t + 4 * i for i in range(4)] for t in range(2)]
    F = [[dict(X=[F0 + 48 * f + 24 * s + 4 * i for i in range(2)], W=[F0 + 48 * f + 24 * s + 8 + 4 * t for t in range(4)]) for s in range(2)] for f in range(2)]
    S = [F0 + 16 * i for i in range(4)]
    KB = [F0 + 64 + 8 * i for i in range(2)]
    VB = [F0 + 80 + 8 * i for i in range(2)]
    XK = [F0 + 4 * j for j in range(8)]
    EK = [[F0 + 32 + 8 * j + 4 * t for t in range(2)] for j in range(8)]
    accE, csE = [Q[0], Q[0] + 4], [Q[1], Q[1] + 4]
    sxE, sxxE = v(4, 4), v(4, 4)
    vXk, vE, aE0, aE1, aP, aS, aG0, aG1, vKo, PF, vHo, vRow = [v() for _ in range(12)]
    RES = [[cs[0], cs[1]], [sx, sxx]]
    XR = 131072
    sFg, sRx, sH0, sH1, sS1 = 58, 59, 60, 61, 62
    k.vgpr = k.acc = 256
    vX, vX2 = h(), h()
    vW = [h() for _ in range(4)]
    vJ, vJB, vCs, vPo = h(), h(), h(), h()
    aJ = [h() for _ in range(4)]
    bJ = [h() for _ in range(2)]
    JF = [h(4, 4) for _ in range(4)]
    CS = [h(4, 4) for _ in range(4)]
    PF4 = h(4, 4)
    head(k)
    k(f"s_load_dwordx2 s[{SX}:{SX+1}], s[0:1], {A_X}",
      f"s_load_dwordx2 s[{SWQ}:{SWQ+1}], s[0:1], {A_WQ}",
      f"s_load_dwordx4 s[24:27], s[0:1], {A_WK}",
      f"s_load_dwordx2 s[{SWS}:{SWS+1}], s[0:1], {A_WS}",
      f"s_load_dwordx2 s[{SDBG}:{SDBG+1}], s[0:1], 80")
    k(f"s_lshl_b32 s{sT}, s2, 7", f"s_and_b32 s{sT}, s{sT}, 0x7c00", f"v_lshl_add_u32 v{T0}, v0, 1, s{sT}", f"v_and_b32 v{T0}, -4, v{T0}", "s_getpc_b64 s[20:21]", f"global_load_dword v{PF}, v{T0}, s[20:21]" if not OPT.get("nopf") else None)
    k(f"v_lshrrev_b32 v{T1}, 6, v0", f"v_and_b32 v{L}, 63, v0", f"v_readfirstlane_b32 s{sW}, v{T1}")
    ids_8x4(k, sHG, sTB, sT)
    k(f"v_lshrrev_b32 v{G}, 4, v{L}", f"v_and_b32 v{TOK}, 15, v{L}", f"v_lshlrev_b32 v{vLin}, 4, v{L}")
    k(f"s_and_b32 s{sTH}, s{sW}, 1", f"s_bfe_u32 s{sCH}, s{sW}, 0x10001",
      f"s_cmp_ge_u32 s{sW}, 4", "s_cbranch_scc1 L_f_help")
    k(f"s_and_b32 s{sT}, s{sHG}, 3", f"s_lshl_b32 s{sT2}, s{sTB}, 2", f"s_add_u32 s{sT}, s{sT}, s{sT2}", f"s_lshl_b32 s{sT}, s{sT}, 15",
      f"s_lshl_b32 s{sT2}, s{sW}, 9", f"s_add_u32 s{sT}, s{sT}, s{sT2}",
      f"v_lshrrev_b32 v{T0}, 3, v{L}", f"v_lshlrev_b32 v{T0}, 11, v{T0}", f"v_and_b32 v{T1}, 7, v{L}", f"v_xor_b32 v{T1}, v{T1}, v{G}",
      f"v_lshl_add_u32 v{T0}, v{T1}, 4, v{T0}", f"v_add_u32 v{vXk}, s{sT}, v{T0}", f"v_xor_b32 v{T1}, {16384+64}, v{vXk}", f"s_lshl_b32 s{sX}, s{sW}, 13",
      f"v_and_b32 v{T0}, 32, v{L}", f"v_xor_b32 v{T0}, v{T0}, v{vLin}",
      f"s_lshl_b32 s{sWr}, s{sW}, 14", f"v_add_u32 v{vE}, s{sWr}, v{T0}",
      f"s_lshr_b32 s{sT}, s2, 3", f"s_lshl_b32 s{sT}, s{sT}, 11", f"v_lshlrev_b32 v{T0}, 3, v0",
      f"s_bitcmp1_b32 s{sHG}, 2", "s_waitcnt lgkmcnt(0)",
      f"s_cselect_b32 s{SE}, s26, s24", f"s_cselect_b32 s{SE+1}, s27, s25", srd_tail(SE, 0x10000), srd_tail(SX, 4 * MB))
    xstamp(k, 0)
    k(f"buffer_load_dword v{PF}, v{T0}, s[{SE}:{SE+3}], s{sT} offen")
    for j in range(8):
        k(f"s_add_u32 m0, s{sX}, {1024*j-128*(j>>1)}", "s_nop 0", f"buffer_load_dwordx4 v{[vXk,T1][j&1]}, s[{SX}:{SX+3}], 0 offen offset:{128*(j>>1)} lds")

    def kv_ld(gi):
        k(f"s_add_u32 m0, s{sWr}, {EA+4096*gi}", f"s_mov_b32 s{sWo}, {4096*gi}")
        for i in range(4):
            k(f"buffer_load_dwordx4 v{vE}, s[{SE}:{SE+3}], s{sWo} offen offset:{1024*i} lds")
    k("s_branch L_f_comp")
    k.label("L_f_help")
    k(f"s_and_b32 s{sW}, s{sW}, 3")
    if OPT.get("wqpf", 0):
        k(f"v_and_b32 v{T0}, 255, v0", f"v_lshlrev_b32 v{T0}, 5, v{T0}", f"s_lshl_b32 s{sT}, s2, 13", "s_waitcnt lgkmcnt(0)", srd_tail(SWQ, 2 * MB),
          f"buffer_load_dword v{PF4}, v{T0}, s[{SWQ}:{SWQ+3}], s{sT} offen")
    k(f"v_lshrrev_b32 v{T0}, 3, v{L}",
      f"s_lshl_b32 s{sT}, s{sTH}, 2",
      f"v_add_u32 v{T1}, s{sT}, v{G}",
      f"v_and_b32 v{T2}, 7, v{L}",
      f"v_xor_b32 v{T1}, v{T1}, v{T2}",
      f"s_lshl_b32 s{sT}, s{sTB}, 6",
      f"s_lshl_b32 s{sT2}, s{sW}, 3",
      f"s_add_u32 s{sT}, s{sT}, s{sT2}",
      f"v_add_u32 v{T0}, s{sT}, v{T0}",
      f"v_lshlrev_b32 v{T0}, 11, v{T0}",
      f"v_lshl_add_u32 v{vX}, v{T1}, 4, v{T0}",
      f"v_add_u32 v{vX2}, 0x10000, v{vX}")
    k(f"v_lshlrev_b32 v{T1}, 1, v{G}",
      f"v_xor_b32 v{T1}, v{T1}, v{TOK}",
      f"s_lshl_b32 s{sT}, s{sTH}, 3",
      f"v_xor_b32 v{T1}, s{sT}, v{T1}",
      f"s_lshl_b32 s{sBW}, s{sTH}, 1",
      f"s_add_u32 s{sBW}, s{sBW}, s{sCH}",
      f"s_lshl_b32 s{sT}, s{sBW}, 13",
      f"s_lshl_b32 s{sT2}, s{sHG}, 8",
      f"s_add_u32 s{sT}, s{sT}, s{sT2}",
      f"v_lshlrev_b32 v{T0}, 11, v{G}",
      f"v_add_u32 v{T0}, s{sT}, v{T0}",
      f"v_lshl_add_u32 v{vW[0]}, v{T1}, 4, v{T0}")
    for i in range(1, 4):
        k(f"v_add_u32 v{vW[i]}, {32768*i}, v{vW[0]}")
    k(f"s_sub_u32 s{sBW}, s{sBW}, s{sW}", f"s_lshl_b32 s{sBW}, s{sBW}, 10", f"s_add_u32 s{sBW}, s{sBW}, 8192",
      f"s_lshl_b32 s{sWr}, s{sW}, 10", f"s_mov_b32 s{sN}, 12")
    k(f"s_and_b32 s{sT}, s{sTB}, {7 if OPT.get('rot', 1) else 0}",
      f"s_lshl_b32 s{sX}, s{sT}, 8", f"s_lshl_b32 s{sWo}, s{sT}, 18")
    k("s_waitcnt lgkmcnt(0)", srd_tail(SX, 4 * MB), srd_tail(SWQ, 2 * MB))
    k(f"s_load_dwordx2 s[20:21], s[0:1], {A_WO}", f"s_load_dwordx4 s[24:27], s[0:1], {A_WG}", f"s_load_dwordx2 s[28:29], s[0:1], {A_WD}")
    def q_x(slot):
        k(f"s_add_u32 m0, s{sWr}, {slot}", "s_nop 0", f"buffer_load_dwordx4 v{vX}, s[{SX}:{SX+3}], s{sX} offen lds",
          f"s_add_u32 m0, s{sWr}, {slot+4096}", "s_nop 0", f"buffer_load_dwordx4 v{vX2}, s[{SX}:{SX+3}], s{sX} offen lds",
          f"s_add_u32 s{sX}, s{sX}, 128", f"s_and_b32 s{sX}, s{sX}, 2047")

    def q_w(slot):
        k(f"s_add_u32 s{sT}, s{sWr}, s{sBW}")
        for i in range(4):
            k(f"s_add_u32 m0, s{sT}, {slot+4096*i}", "s_nop 0", f"buffer_load_dwordx4 v{vW[i]}, s[{SWQ}:{SWQ+3}], s{sWo} offen lds")
        k(f"s_add_u32 s{sWo}, s{sWo}, 0x20000", f"s_and_b32 s{sWo}, s{sWo}, 0x1fffff")

    def q_stage():
        q_x(0); q_w(0)
        k(f"s_add_u32 s{sWr}, s{sWr}, {STG}", f"s_cmp_ge_u32 s{sWr}, {EA}", f"s_cselect_b32 s{sT}, {EA}, 0",
          f"s_sub_u32 s{sWr}, s{sWr}, s{sT}", f"s_sub_u32 s{sN}, s{sN}, 1")
    k("s_branch L_f_setup")
    k.label("L_f_comp")
    k(f"v_bfe_u32 v{R}, v{L}, 2, 2", f"v_and_b32 v{CQ}, 3, v{L}", f"v_and_b32 v{T2}, 1, v{G}",
      f"s_lshl_b32 s{sT}, s{sW}, 14", f"s_add_u32 s{sT}, s{sT}, {EA}",
      f"v_lshlrev_b32 v{T0}, 5, v{T2}", f"v_lshl_add_u32 v{T0}, v{CQ}, 3, v{T0}",
      f"v_lshl_add_u32 v{T0}, v{R}, 6, v{T0}", f"v_lshl_add_u32 v{T0}, v{G}, 9, v{T0}",
      f"v_add_u32 v{aE0}, s{sT}, v{T0}", f"v_xor_b32 v{aE1}, 32, v{aE0}")
    for i in range(4):
        k(f"v_mov_b32 v{ONES+i}, 0x3f803f80")
    k(ws_shift(SWS), srd_tail(SWS, WS_SZ), srd_from(SKV, SWS, KVF, 262144))
    k(f"s_lshl_b32 s{sT}, s{sCH}, 10", f"s_lshl_b32 s{sT2}, s{sTH}, 3", f"s_add_u32 s{sT}, s{sT}, s{sT2}", f"s_add_u32 s{sT}, s{sT}, {EA}",
      f"v_add_u32 v{aP}, s{sT}, v{vLin}", f"v_lshlrev_b32 v{aS}, 3, v{TOK}", f"v_add_u32 v{aS}, {EA+4096}, v{aS}")
    k(f"s_bfe_u32 s{sT}, s{sHG}, 0x10001", f"s_lshl_b32 s{sKV}, s{sTB}, 1", f"s_add_u32 s{sKV}, s{sKV}, s{sT}", f"s_lshl_b32 s{sKV}, s{sKV}, 12",
      f"s_and_b32 s{sT2}, s{sHG}, 1", f"s_bitcmp1_b32 s{sHG}, 2", "s_cbranch_scc1 L_f_av")
    k(f"s_lshl_b32 s{sT2}, s{sT2}, 8", f"s_add_u32 s{sKV}, s{sKV}, s{sT2}",
      f"s_lshl_b32 s{sT}, s{sW}, 2", f"s_add_u32 s{sT}, s{sT}, {EA+8192}", f"v_add_u32 v{aG0}, s{sT}, v{vLin}", f"v_add_u32 v{aG1}, 2, v{aG0}",
      f"v_lshlrev_b32 v{T0}, 10, v{T2}", f"v_lshrrev_b32 v{T1}, 1, v{G}", f"v_lshl_add_u32 v{T0}, v{T1}, 9, v{T0}", f"v_lshl_add_u32 v{vKo}, v{TOK}, 4, v{T0}",
      "s_branch L_f_ax")
    k.label("L_f_av")
    k(f"s_lshl_b32 s{sT2}, s{sT2}, 10", f"s_add_u32 s{sKV}, s{sKV}, s{sT2}", f"s_add_u32 s{sKV}, s{sKV}, 2048",
      f"v_lshlrev_b32 v{T0}, 7, v{T2}", f"v_lshrrev_b32 v{T1}, 1, v{G}", f"v_lshl_add_u32 v{T0}, v{T1}, 6, v{T0}",
      f"v_bfe_u32 v{T1}, v{L}, 3, 1", f"v_lshl_add_u32 v{T0}, v{T1}, 9, v{T0}", f"v_and_b32 v{T1}, 7, v{L}", f"v_lshl_add_u32 v{T0}, v{T1}, 1, v{T0}",
      f"s_lshl_b32 s{sT}, s{sCH}, 8", f"s_lshl_b32 s{sT2}, s{sTH}, 5", f"s_add_u32 s{sT}, s{sT}, s{sT2}", f"s_add_u32 s{sT}, s{sT}, {EA+8192}",
      f"v_add_u32 v{aG0}, s{sT}, v{T0}", f"v_add_u32 v{aG1}, 16, v{aG0}", f"v_mov_b32 v{vKo}, v{vLin}")
    k.label("L_f_ax")
    k(f"v_lshrrev_b32 v{T0}, 1, v{TOK}", f"v_xor_b32 v{T0}, v{T0}, v{G}", f"v_lshlrev_b32 v{T0}, 4, v{T0}",
      f"v_lshl_add_u32 v{bX[0]}, v{TOK}, 7, v{T0}", f"v_add_u32 v{vXk}, s{sX}, v{bX[0]}", f"v_xor_b32 v{bX[1]}, 64, v{bX[0]}")
    k(f"v_lshlrev_b32 v{T0}, 2, v{T2}", f"v_xor_b32 v{T0}, v{T0}, v{R}",
      f"v_lshlrev_b32 v{T0}, 5, v{T0}",
      f"v_lshl_add_u32 v{T0}, v{CQ}, 3, v{T0}",
      f"v_lshl_add_u32 v{T0}, v{R}, 8, v{T0}",
      f"v_lshl_add_u32 v{T0}, v{G}, 11, v{T0}",
      f"s_lshl_b32 s{sT}, s{sW}, 6", f"s_add_u32 s{sT}, s{sT}, 8192", f"v_xor_b32 v{bQ[0]}, s{sT}, v{T0}", f"v_xor_b32 v{bQ[1]}, 32, v{bQ[0]}",
      f"s_lshl_b32 s{sT}, s{sCH}, 7", f"v_xor_b32 v{bW[0]}, s{sT}, v{T0}")
    for t in range(1, 4):
        k(f"v_xor_b32 v{bW[t]}, {32*t}, v{bW[0]}")
    bases = list(zip(aX + aQ, bX + bQ))
    for a, b in bases + list(zip(aW, bW)):
        k(f"v_mov_b32 v{a}, v{b}")
    for i in range(O[0], z1, 2):
        k(f"v_mov_b64 {vr(i,2)}, 0")
    k(f"v_and_b32 v{T0}, 7, v{L}", f"v_cmp_eq_u32 vcc, 0, v{T0}", f"v_mov_b32 v{IDX}, 0xdddd", f"v_add_u32 v{vRd}, {KVB+SLOT}, v{vLin}",
      f"v_cndmask_b32 v{SUMA}, 0, v{ONES}, vcc", f"v_cndmask_b32 v{SUMA+1}, 0, v{ONES}, vcc",
      f"v_cmp_eq_u32 vcc, 4, v{T0}", f"v_and_b32 v{T0}, 1, v{TOK}", f"v_and_b32 v{T1}, 2, v{TOK}",
      f"v_cndmask_b32 v{SUMA+2}, 0, v{ONES}, vcc", f"v_cndmask_b32 v{SUMA+3}, 0, v{ONES}, vcc",
      f"v_cmp_eq_u32 s[66:67], 1, v{T0}", f"v_cmp_eq_u32 s[68:69], 2, v{T1}", f"v_cmp_eq_u32 s[82:83], v{R}, v{G}")
    k(f"s_lshl_b32 s{sFg}, s{sTB}, 9", f"s_add_u32 s{sFg}, s{sFg}, {FLG}")
    k(f"s_lshr_b32 s{sS1}, s{sHG}, 2", f"s_lshl_b32 s{sS1}, s{sS1}, 5", f"s_add_u32 s{sS1}, s{sS1}, s{sTB}", f"s_lshl_b32 s{sS1}, s{sS1}, 9",
      f"s_add_u32 s{sS1}, s{sS1}, {ST1}")
    k(f"v_lshrrev_b32 v{T0}, 1, v{G}", f"v_lshl_add_u32 v{T0}, v{T2}, 1, v{T0}", f"v_lshlrev_b32 v{T1}, 4, v{TOK}", f"v_lshl_add_u32 v{vHo}, v{T0}, 8, v{T1}",
      f"v_lshlrev_b32 v{T1}, 11, v{TOK}", f"v_lshl_add_u32 v{T0}, v{T0}, 4, v{T1}",
      f"s_lshl_b32 s{sT}, s{sTB}, 1", f"s_add_u32 s{sT}, s{sT}, s{sTH}", f"s_lshl_b32 s{sT}, s{sT}, 16",
      f"s_lshl_b32 s{sT2}, s{sHG}, 1", f"s_add_u32 s{sT2}, s{sT2}, s{sCH}", f"s_lshl_b32 s{sT2}, s{sT2}, 7", f"s_add_u32 s{sT}, s{sT}, s{sT2}",
      f"v_add_u32 v{vRow}, s{sT}, v{T0}")
    k(f"s_lshl_b32 s{sT}, s{sTB}, 3", f"s_add_u32 s{sT}, s{sT}, s{sHG}", f"s_lshl_b32 s{sT}, s{sT}, 14",
      f"s_lshl_b32 s{sT2}, s{sW}, 12", f"s_add_u32 s{sOo}, s{sT}, s{sT2}", f"s_add_u32 s{sOo}, s{sOo}, {OF}",
      f"s_lshl_b32 s{sT2}, s{sCH}, 13", f"s_add_u32 s{sT}, s{sT}, s{sT2}", f"s_lshl_b32 s{sT2}, s{sTH}, 11", f"s_add_u32 s{sT}, s{sT}, s{sT2}",
      f"s_add_u32 s{sH0}, s{sT}, {HF}", f"s_add_u32 s{sH1}, s{sT}, {HF+4096}")
    k(f"s_mov_b32 s{sRd}, 0", f"s_mov_b32 s{sN}, 7", f"s_cmp_eq_u32 s{sW}, 0", f"s_cselect_b32 s{sFl}, 7, -1")
    xstamp(k, 1)

    def diag(dst, src):
        return [f"v_cndmask_b32 v{T0}, v{src}, v{src+1}, s[66:67]", f"v_cndmask_b32 v{T1}, v{src+2}, v{src+3}, s[66:67]",
                f"v_cndmask_b32 v{dst}, v{T0}, v{T1}, s[68:69]"]

    def kv_mf(gi):
        o = []
        for j in (2 * gi, 2 * gi + 1):
            c = "0" if j == 0 else None
            for t in range(2):
                o += [m16(vr(accE[t], 4), vr(EK[j][t], 4), vr(XK[j], 4), c), m16(vr(csE[t], 4), vr(EK[j][t], 4), vr(ONES, 4), c)]
        return o
    kv_rd = lambda gi: [f"ds_read_b64_tr_b16 {vr(EK[j][t]+2*jj,2)}, v{[aE0,aE1][t]} offset:{j*2048+jj*256}"
                        for j in (2 * gi, 2 * gi + 1) for t in range(2) for jj in range(2)]
    kv_ld(0); kv_ld(1)
    k(f"v_xor_b32 v{T0}, 64, v{vXk}", "s_waitcnt vmcnt(8)")
    xstamp(k, 2)
    for j in range(8):
        k(f"ds_read_b128 {vr(XK[j],4)}, v{[vXk,T0][j&1]} offset:{2048*(j>>1)}")
    kv_ld(2)
    k("s_waitcnt lgkmcnt(0)")
    for j in range(8):
        k(m16(vr(sxxE, 4), vr(XK[j], 4), vr(XK[j], 4), "0" if j == 0 else None), m16(vr(sxE, 4), vr(ONES, 4), vr(XK[j], 4), "0" if j == 0 else None))
    k("s_waitcnt vmcnt(8)", kv_rd(0))
    kv_ld(3)
    xstamp(k, 3)
    k("s_barrier")
    k(f"s_add_u32 s{sT}, s{sWr}, {EA}", f"v_add_u32 v{vE}, s{sT}, v{vLin}", f"v_lshl_add_u32 v{vXk}, v{TOK}, 3, s{sT}")
    k(diag(sxE + 1, sxxE))
    for gi in range(1, 4):
        k(f"s_waitcnt vmcnt({12-4*gi}) lgkmcnt(0)", weave(kv_mf(gi - 1), kv_rd(gi), 0, 5))
    xstamp(k, 4)
    k("s_waitcnt lgkmcnt(0)", kv_mf(3), "s_mov_b64 exec, s[82:83]", f"ds_write_b64 v{vXk}, {vr(sxE,2)} offset:4096", "s_mov_b64 exec, -1", "s_nop 3")
    for i, r in enumerate(accE + csE):
        k(f"ds_write_b128 v{vE}, {vr(r,4)} offset:{1024*i}")
    k("s_waitcnt lgkmcnt(0)")
    xstamp(k, 5)
    k(island(back="L_f_back"))
    U = F0 + 48

    def sum4(r):
        return [f"v_add_f32 v{r+e}, v{r+e}, v{r+2+e}" for e in range(2)] + [f"v_add_f32 v{r+4+e}, v{r+4+e}, v{r+6+e}" for e in range(2)] + \
               [f"v_add_f32 v{r+e}, v{r+e}, v{r+4+e}" for e in range(2)]

    def stats(s, scale):
        return [f"v_mul_f32 v{s}, {f32(-1/1024)}, v{s}", f"v_mul_f32 v{s+1}, {f32(1/1024)}, v{s+1}",
                f"v_fma_f32 v{s+1}, -v{s}, v{s}, v{s+1}", f"v_max_f32 v{s+1}, 0, v{s+1}", f"v_add_f32 v{s+1}, {f32(EPS)}, v{s+1}",
                f"v_rsq_f32 v{s+2}, v{s+1}", "s_nop 0", f"v_mul_f32 v{s+2}, {f32(scale)}, v{s+2}" if scale != 1 else None,
                f"v_mul_f32 v{s+1}, v{s}, v{s+2}", f"v_mov_b32 v{s}, v{s+2}"]
    def reads(fi):
        o = []
        for s in range(2):
            f = FQ[fi][s]
            for t in range(2):
                for j in range(2):
                    o.append(f"ds_read_b64_tr_b16 {vr(f['W'][t]+2*j,2)}, v{aQ[t]} offset:{s*8192+j*1024}")
            o += [f"ds_read_b128 {vr(f['X'][i],4)}, v{aX[s]} offset:{2048*i}" for i in range(4)]
        return o

    def mfmas(fi):
        X = lambda s, i: vr(FQ[fi][s]["X"][i], 4)
        W = lambda s, t: vr(FQ[fi][s]["W"][t], 4)
        o = [m16(vr(cs[t], 4), W(s, t), vr(ONES, 4)) for t in range(2) for s in range(2)]
        for i in range(4):
            o += [m16(vr(qacc[t ^ (i & 1)][i], 4), W(s, t ^ (i & 1)), X(s, i)) for t in range(2) for s in range(2)]
        return o
    va = [f"v_add_u32 v{a}, s{sRd}, v{b}" for a, b in bases]
    adv = [[f"s_add_u32 s{sRd}, s{sRd}, {STG}", f"s_cmp_eq_u32 s{sRd}, {EA}"], [f"s_cselect_b32 s{sRd}, 0, s{sRd}"]] + \
          [va[i:i + 2] for i in range(0, len(va), 2)]
    k("s_barrier")
    xstamp(k, 7)
    if OPT.get('qcyc'):
        mid_stamp(k, 0)
    for w in range(4):
        k(f"ds_read_b64 {vr(U+2*w,2)}, v{aS} offset:{16384*w}")
    for w in range(4):
        k(f"ds_read_b64 {vr(U+8+2*w,2)}, v{aP} offset:{16384*w}", f"ds_read_b64 {vr(U+16+2*w,2)}, v{aP} offset:{16384*w+2048}")
    r0 = reads(0)
    k(r0[:3], "s_waitcnt lgkmcnt(11)", weave(sum4(U) + [x for x in stats(U, 1) if x], r0[3:12], 0, 12), "s_waitcnt lgkmcnt(12)",
      weave(sum4(U + 8) + sum4(U + 16), r0[12:]))
    for e in range(2):
        k(f"v_mul_f32 v{U+8+e}, v{U}, v{U+8+e}", f"v_fmac_f32 v{U+8+e}, v{U+1}, v{U+16+e}")
    k(f"v_cvt_pk_bf16_f32 v{U+8}, v{U+8}, v{U+9}", f"ds_write_b16 v{aG0}, v{U+8}", f"ds_write_b16_d16_hi v{aG1}, v{U+8}",
      f"v_mov_b64 {vr(sxxE,2)}, {vr(U,2)}")
    k(adv, f"v_lshlrev_b32 v{aP}, 3, v{L}", "s_waitcnt lgkmcnt(0)")
    k.label("L_f_qloop")
    for f in range(2):
        k("s_barrier")
        m = weave(mfmas(f), reads(1 - f), 0, OPT.get('qw', 13))
        if f == 0:
            k(weave(m, adv + [[f"s_cmp_eq_u32 s{sN}, s{sFl}"]], len(m) - 6, len(m) - 1))
            k("s_cbranch_scc1 L_f_flag")
            k.label("L_f_flagged")
        else:
            k(weave(m, adv + [[f"s_sub_u32 s{sN}, s{sN}, 1", f"s_cmp_lg_u32 s{sN}, 0"]], len(m) - 6, len(m) - 1))
        k("s_waitcnt lgkmcnt(0)")
    k("s_cbranch_scc1 L_f_qloop")
    k("s_barrier")
    ST = [sx + 2 * i for i in range(4)]
    k(f"buffer_load_dwordx2 {vr(ST[0],2)}, v{aP}, s[{SWS}:{SWS+3}], s{sS1} offen sc1")
    k(weave(mfmas(0), reads(1), 0, 11), "s_waitcnt lgkmcnt(0)")

    def qfin(i, packed):
        o, d = [], Q[i >> 1] + 4 * (i & 1)
        for t in range(2):
            a = qacc[t][i]
            if packed:
                o += [f"v_pk_mul_f32 {vr(a+hh,2)}, {vr(a+hh,2)}, {vr(ST[i],2)} op_sel_hi:[1,0]" for hh in (0, 2)]
                o += [f"v_pk_fma_f32 {vr(a+hh,2)}, {vr(cs[t]+hh,2)}, {vr(ST[i],2)}, {vr(a+hh,2)} op_sel:[0,1,0] op_sel_hi:[1,1,1]" for hh in (0, 2)]
            else:
                o += [f"v_mul_f32 v{a+r}, v{ST[i]}, v{a+r}" for r in range(4)] + [f"v_fmac_f32 v{a+r}, v{ST[i]+1}, v{cs[t]+r}" for r in range(4)]
            o += [f"v_cvt_pk_bf16_f32 v{d+2*t}, v{a}, v{a+1}", f"v_cvt_pk_bf16_f32 v{d+2*t+1}, v{a+2}, v{a+3}"]
        return o
    m = mfmas(1)
    q0 = qfin(0, False)
    two = lambda f_: [f_(e) for e in range(2)]
    bc = [two(lambda e: f"v_mul_f32 v{ST[1]+e}, {f32(QSCALE)}, v{ST[0]+e}"), two(lambda e: f"v_mul_f32 v{ST[0]+e}, {f32(QSCALE)}, v{ST[0]+e}"), ["s_nop 0"],
          two(lambda e: f"v_permlane16_swap_b32 v{ST[0]+e}, v{ST[1]+e}"),
          two(lambda e: f"v_mov_b32 v{ST[2]+e}, v{ST[0]+e}"), two(lambda e: f"v_mov_b32 v{ST[3]+e}, v{ST[1]+e}"),
          two(lambda e: f"v_permlane32_swap_b32 v{ST[0]+e}, v{ST[2]+e}"), two(lambda e: f"v_permlane32_swap_b32 v{ST[1]+e}, v{ST[3]+e}")]
    k(m[0], f"s_mov_b32 s{sRd}, {KVB+SLOT}", m[1], f"s_mov_b32 s{sC}, 8", m[2:5], "s_waitcnt vmcnt(0)",
      weave(m[5:13], bc), weave(m[13:], q0[:14]), q0[14:])
    xstamp(k, 8)
    if OPT.get('qcyc'):
        mid_stamp(k, 1)
    k(qfin(1, True), qfin(2, True), qfin(3, True))
    for r0, n in ((S[3], 16), (VB[1], 8)):
        for i in range(0, n, 2):
            k(f"v_mov_b64 {vr(r0+i,2)}, 0")
    for p in range(2):
        for r in range(4):
            k(f"v_permlane16_swap_b32 v{Q[p]+r}, v{Q[p]+4+r}")
    k("s_branch L_f_att")
    k.label("L_f_flag")
    k(f"s_cmp_lg_u32 s{sFl}, 7", "s_cbranch_scc1 L_f_flag2")
    k(f"ds_read_b128 {vr(sxE,4)}, v{vE} offset:8192", f"v_lshlrev_b32 v{T0}, 3, v{L}",
      f"s_cmp_eq_u32 s{sHG}, 0", f"s_cselect_b32 s{sT}, s{sFg}, {OOB}",
      f"buffer_store_dwordx2 {vr(O[0],2)}, v{T0}, s[{SWS}:{SWS+3}], s{sT} offen sc1",
      f"s_and_b32 s{sT}, s{sHG}, 3", f"s_lshl_b32 s{sT}, s{sT}, 7", f"s_add_u32 s{sT}, s{sT}, s{sS1}", "s_mov_b64 exec, 0xffff",
      f"buffer_store_dwordx2 {vr(sxxE,2)}, v{T0}, s[{SWS}:{SWS+3}], s{sT} offen sc1", "s_mov_b64 exec, -1", "s_waitcnt lgkmcnt(0)",
      f"buffer_store_dwordx4 {vr(sxE,4)}, v{vKo}, s[{SKV}:{SKV+3}], s{sKV} offen sc1",
      f"s_mov_b32 s{sFl}, {OPT.get('flagit', 5)}", "s_branch L_f_flagged")
    k.label("L_f_flag2")
    k(f"s_and_b32 s{sT}, s2, 0xfc", f"v_mov_b32 v{T0}, s{sT}", f"v_mov_b32 v{T1}, 1", "s_mov_b64 exec, 1", "s_waitcnt vmcnt(0)",
      f"global_atomic_add v{T0}, v{T1}, s[{SDBG}:{SDBG+1}] sc1", "s_mov_b64 exec, -1", "s_branch L_f_flagged")
    k(island(back="L_f_back", jump=False))
    k.label("L_f_att")
    k("s_barrier")
    if not (OPT.get('qcyc') or OPT.get('ocyc')):
        mid_stamp(k, 0)
    rdK = lambda t: [f"ds_read_b128 {vr(KB[t&1]+4*m,4)}, v{vRd} offset:{(t%8)*4096+1024*m}" for m in range(2)]
    rdV = lambda t: [f"ds_read_b128 {vr(VB[t&1]+4*m,4)}, v{vRd} offset:{(t%8)*4096+2048+1024*m}" for m in range(2)]
    qk = lambda u, c="0": [m32(vr(S[u % 4], 16), vr(KB[(u >> 1) & 1], 4), vr(Q[u & 1], 4), c),
                           m32(vr(S[u % 4], 16), vr(KB[(u >> 1) & 1] + 4, 4), vr(Q[u & 1] + 4, 4))]
    pv = lambda u: [f"v_smfmac_f32_32x32x32_bf16 {vr(O[u&1],16)}, {vr(VB[(u>>1)&1]+4*m,4)}, {vr(S[u%4]+8*m,8)}, v{IDX}" for m in range(2)]
    sm = lambda u: [f"v_smfmac_f32_16x16x64_bf16 {vr(LS[u&1],4)}, {vr(SUMA,4)}, {vr(S[u%4]+8*m,8)}, v{IDX}" for m in range(2)]
    vO, aO0, aO1 = aG0, aG1, vKo
    k(rdK(0), rdV(0), rdK(1))
    k(f"s_mov_b32 s{sT}, 32768")
    for i in range(2):
        for b in range(2):
            k(f"buffer_load_dwordx4 {vr(RES[i][b],4)}, v{vRow}, s[{SX}:{SX+3}], {['0', f's{sT}'][i]} offen offset:{64*b}")
    k("s_waitcnt lgkmcnt(4)", qk(0))
    bT, aT = bX[0], aX[0]
    k(f"v_and_b32 v{T0}, 1, v{G}", f"v_lshlrev_b32 v{T0}, 10, v{T0}", f"v_lshrrev_b32 v{T1}, 5, v{L}",
      f"v_lshl_add_u32 v{T0}, v{T1}, 8, v{T0}", f"v_lshl_add_u32 v{vO}, v{TOK}, 4, v{T0}",
      f"s_lshl_b32 s{sT}, s{sW}, 12", f"s_add_u32 s{sT}, s{sT}, {XR}", f"v_add_u32 v{aO0}, s{sT}, v{vO}",
      f"s_lshl_b32 s{sT}, s{sTH}, 11", f"s_add_u32 s{sT}, s{sT}, {XR}", f"v_add_u32 v{bT}, s{sT}, v{vLin}", f"v_add_u32 v{aT}, s{sT}, v{vLin}")
    k(".p2align 6")
    k.label("L_k1_loop")
    for u in range(16):
        ex = [f"v_exp_f32 v{S[u%4]+i}, v{S[u%4]+i}" for i in range(16)]
        mf = qk(u + 1) + pv(u - 1) + sm(u - 1)
        sl = [[] for _ in range(6)]
        rd = rdV(u // 2 + 1) if u % 2 == 0 else rdK((u + 3) // 2)
        sl[4].append(rd[0]); sl[5].append(rd[1])
        if u % 2 == 0:
            sl[3].append("s_waitcnt lgkmcnt(0)")
        if u == 9:
            sl[2].append(f"s_add_u32 s{sRd}, s{sRd}, {SLOT}"); sl[3].append(f"s_cmp_eq_u32 s{sRd}, {KVB+3*SLOT}")
        if u == 10:
            sl[2].append(f"s_cselect_b32 s{sRd}, {KVB}, s{sRd}")
        if u == 13:
            sl[1].append(f"v_add_u32 v{vRd}, s{sRd}, v{vLin}")
            sl[2].append("s_waitcnt lgkmcnt(0)"); sl[3].append("s_barrier")
        if u == 15:
            sl[2].append(f"s_sub_u32 s{sC}, s{sC}, 1"); sl[3].append(f"s_cmp_lg_u32 s{sC}, 0")
        cuts = [0, 3, 6, 9, 12, 14, 16] if (u < 15 or not OPT.get("brs", 1)) else [0, 3, 7, 10, 14, 16, 16]
        for i in range(6):
            k(mf[i], sl[i], ex[cuts[i]:cuts[i + 1]])
    k("s_cbranch_scc1 L_k1_loop")
    if not (OPT.get('qcyc') or OPT.get('ocyc')):
        mid_stamp(k, 1)
    vO, aO0, aO1 = aG0, aG1, vKo
    PK = [KB[0], VB[1]]

    def check(q):
        o = [f"v_maximum3_f32 v{T0}, abs(v{O[q]}), abs(v{O[q]+1}), v{LS[q]}", f"v_maximum3_f32 v{T1}, abs(v{O[q]+2}), abs(v{O[q]+3}), abs(v{O[q]+4})"]
        for i in range(5, 15, 2):
            t = [T0, T1][(i // 2) & 1]
            o.append(f"v_maximum3_f32 v{t}, abs(v{O[q]+i}), abs(v{O[q]+i+1}), v{t}")
        o += [f"v_maximum3_f32 v{T0}, abs(v{O[q]+15}), v{T1}, v{T0}",
              f"v_cmp_nle_f32 vcc, {f32(2.0**-80)}, v{LS[q]}", f"s_mov_b64 s[70:71], vcc",
              f"v_cmp_nge_f32 vcc, {f32(2.0**100)}, v{T0}", f"s_or_b64 s[70:71], s[70:71], vcc",
              "s_branch L_k1_slow" if OPT["force_slow"] == q + 1 else None, "s_cbranch_scc1 L_k1_slow"]
        return o

    def out(q):
        o = [f"v_rcp_f32 v{LS[q]}, v{LS[q]}", "s_nop 0"]
        for m in range(2):
            d = PK[q] + 4 * m
            o += [f"v_pk_mul_f32 {vr(O[q]+8*m+i,2)}, {vr(O[q]+8*m+i,2)}, {vr(LS[q],2)} op_sel_hi:[1,0]" for i in range(0, 8, 2)]
            o += [f"v_cvt_pk_bf16_f32 v{d+i}, v{O[q]+8*m+2*i}, v{O[q]+8*m+2*i+1}" for i in range(4)]
            o.append(f"buffer_store_dwordx4 {vr(d,4)}, v{vO}, s[{SWS}:{SWS+3}], s{sOo} offen offset:{2048*q+512*m} sc1")
        return o
    k(pv(15), sm(15), "s_nop 9", check(0), out(0), check(1))
    k.label("L_k1_out")
    k(out(1))
    for q in range(2):
        for m in range(2):
            k(f"ds_write_b128 v{aO0}, {vr(PK[q]+4*m,4)} offset:{2048*q+512*m}")
    k("s_branch L_f_oproj")
    k(island(back="L_f_back2", jump=False))
    k.label("L_f_oproj")
    k("s_waitcnt vmcnt(4)")
    for i in range(2):
        for b in range(2):
            k(f"v_permlane16_swap_b32 v{RES[i][b]}, v{RES[i][b]+2}", f"v_permlane16_swap_b32 v{RES[i][b]+1}, v{RES[i][b]+3}")
    sig = lambda h: ["s_mov_b64 exec, 1", "s_waitcnt vmcnt(0)", f"buffer_atomic_add v{T0}, off, s[{SWS}:{SWS+3}], s{sFg} offset:{256*h} sc1", "s_mov_b64 exec, -1"]
    k(f"v_mov_b32 v{T0}, 1", f"s_cmp_ge_u32 s{sHG}, 4", "s_cbranch_scc1 L_f_sig0", sig(0))
    k.label("L_f_sig0")
    k(f"s_mov_b32 s{sRd}, 0", "s_waitcnt lgkmcnt(0)", "s_barrier")

    def oreads(fi):
        o = [f"ds_read_b128 {vr(F[fi][s]['X'][i],4)}, v{aT} offset:{s*4096+i*1024}" for s in range(2) for i in range(2)]
        for s in range(2):
            for t in range(4):
                for j in range(2):
                    o.append(f"ds_read_b64_tr_b16 {vr(F[fi][s]['W'][t]+2*j,2)}, v{aW[t]} offset:{s*8192+j*1024}")
        return o

    def omf(fi, s):
        return [m16(vr(acc[t][i ^ (t & 1)], 4), vr(F[fi][s]["W"][t], 4), vr(F[fi][s]["X"][i ^ (t & 1)], 4)) for t in range(4) for i in range(2)]
    oadv = [[f"s_add_u32 s{sRd}, s{sRd}, 16384", f"s_and_b32 s{sRd}, s{sRd}, 0x1ffff"], [f"s_bfe_u32 s{sRx}, s{sRd}, 0xf0001", f"v_add_u32 v{aW[0]}, s{sRd}, v{bW[0]}"],
            [f"v_add_u32 v{aW[t]}, s{sRd}, v{bW[t]}" for t in (1, 2)], [f"v_add_u32 v{aW[3]}, s{sRd}, v{bW[3]}", f"v_add_u32 v{aT}, s{sRx}, v{bT}"]]

    def ostep(f, adv_, extra=()):
        r = oreads(1 - f)
        sl = [[] for _ in range(16)]
        for i, x in enumerate(r[:12]):
            sl[(i * 8) // 12].append(x)
        for i, x in enumerate(r[12:]):
            sl[8 + i].append(x)
        if adv_:
            sl[1].append(f"s_add_u32 s{sRd}, s{sRd}, 16384"); sl[3].append(f"s_and_b32 s{sRd}, s{sRd}, 0x1ffff")
            sl[5].append(f"s_bfe_u32 s{sRx}, s{sRd}, 0xf0001"); sl[8].append(f"v_add_u32 v{aT}, s{sRx}, v{bT}")
            for t in range(4):
                sl[9 + 2 * t].append(f"v_add_u32 v{aW[t]}, s{sRd}, v{bW[t]}")
        for i, x in enumerate(extra):
            sl[10 + 2 * i].append(x)
        sl[7].append("s_waitcnt lgkmcnt(12)"); sl[15].append("s_waitcnt lgkmcnt(8)")
        for m, e in zip(omf(f, 0) + omf(f, 1), sl):
            k(m, e)
    if OPT.get("ocyc"):
        mid_stamp(k, 0)
    k(oreads(0), oadv)
    for i in range(2):
        for b in range(2):
            for jt in range(2):
                for hh in range(2):
                    a, r = acc[2 * b + jt][i] + 2 * hh, RES[i][b] + 2 * jt + hh
                    k(f"v_lshlrev_b32 v{a}, 16, v{r}", f"v_and_b32 v{a+1}, 0xffff0000, v{r}")
    k(f"s_cmp_lt_u32 s{sHG}, 4", "s_cbranch_scc1 L_f_sig1", sig(1))
    k.label("L_f_sig1")
    xstamp(k, 9)
    k(f"s_lshl_b32 s{sT}, s{sTB}, 1", f"s_add_u32 s{sT}, s{sT}, s{sTH}", f"s_lshl_b32 s{sT}, s{sT}, 12",
      f"s_lshl_b32 s{sT2}, s{sHG}, 1", f"s_add_u32 s{sT2}, s{sT2}, s{sCH}", f"s_lshl_b32 s{sT2}, s{sT2}, 8",
      f"s_add_u32 s{sT}, s{sT}, s{sT2}", f"s_add_u32 s{sFg}, s{sT}, {STP}", f"s_mov_b32 s{sN}, 7", "s_waitcnt lgkmcnt(0)")
    k.label("L_f_oloop")
    k("s_barrier")
    ostep(0, True)
    k("s_barrier")
    ostep(1, True, [f"s_sub_u32 s{sN}, s{sN}, 1", f"s_cmp_lg_u32 s{sN}, 0"])
    k("s_cbranch_scc1 L_f_oloop")
    k("s_barrier")
    ostep(0, False)
    k(omf(1, 0), "s_waitcnt lgkmcnt(0)", omf(1, 1), "s_nop 3")
    if OPT.get("ocyc"):
        mid_stamp(k, 1)
    SUM = [O[0], O[0] + 4]
    for b in range(2):
        for i in range(2):
            o = Q[b] + 4 * i
            for jt in range(2):
                a = acc[2 * b + jt][i]
                k(f"v_cvt_pk_bf16_f32 v{o+2*jt}, v{a}, v{a+1}", f"v_cvt_pk_bf16_f32 v{o+2*jt+1}, v{a+2}, v{a+3}")
        k("s_nop 0")
        for i in range(2):
            o = Q[b] + 4 * i
            k(f"v_permlane16_swap_b32 v{o}, v{o+2}", f"v_permlane16_swap_b32 v{o+1}, v{o+3}",
              f"buffer_store_dwordx4 {vr(o,4)}, v{vHo}, s[{SWS}:{SWS+3}], s{[sH0,sH1][b]} offen offset:{1024*i} sc1")
    for t in range(4):
        for hh in (0, 2):
            for i in range(2):
                a = vr(acc[t][i] + hh, 2)
                if t == 0 and hh == 0:
                    k(f"v_pk_mul_f32 {vr(SUM[i]+2,2)}, {a}, {a}")
                else:
                    src = vr(acc[0][i], 2) if (t == 0 and hh == 2) else vr(SUM[i], 2)
                    k(f"v_pk_add_f32 {vr(SUM[i],2)}, {src}, {a}", f"v_pk_fma_f32 {vr(SUM[i]+2,2)}, {a}, {a}, {vr(SUM[i]+2,2)}")
    for i in range(2):
        k(f"v_add_f32 v{SUM[i]}, v{SUM[i]}, v{SUM[i]+1}", f"v_add_f32 v{SUM[i]+1}, v{SUM[i]+2}, v{SUM[i]+3}")
    k(f"v_lshrrev_b32 v{T0}, 6, v{vHo}", f"v_permlane32_swap_b32 v{SUM[0]}, v{SUM[0]+1}", f"v_permlane32_swap_b32 v{SUM[1]}, v{SUM[1]+1}", "s_nop 0",
      f"v_add_f32 v{SUM[0]}, v{SUM[0]}, v{SUM[0]+1}", f"v_add_f32 v{SUM[1]}, v{SUM[1]}, v{SUM[1]+1}",
      f"v_and_b32 v{T0}, 12, v{T0}", f"v_lshl_add_u32 v{T0}, v{TOK}, 4, v{T0}",
      f"v_permlane16_swap_b32 v{SUM[0]}, v{SUM[1]}", "s_nop 0",
      f"v_add_f32 v{SUM[0]}, v{SUM[0]}, v{SUM[1]}",
      f"buffer_store_dword v{SUM[0]}, v{T0}, s[{SWS}:{SWS+3}], s{sFg} offen sc1")
    tail(k, 0, sW)
    k(island(back="L_f_back", jump=False))
    k.label("L_f_setup")
    if OPT.get("isl", 1):
        k(f"s_cmp_eq_u32 s{sW}, 0", f"s_cbranch_scc1 L_isl{ISL[0][0]}", f"s_cmp_eq_u32 s{sW}, 1", f"s_cbranch_scc1 L_isl{ISL[1][0]}")
    k.label("L_f_back")
    k("s_waitcnt lgkmcnt(0)", ws_shift(SWS), srd_tail(SWS, WS_SZ), srd_from(SKV, SWS, KVF, 262144))
    k(f"s_lshl_b32 s{sGW}, s2, 2", f"s_add_u32 s{sGW}, s{sGW}, s{sW}",
      f"s_lshl_b32 s{sWrJ}, s{sW}, 12", f"s_add_u32 s{sWrJ}, s{sWrJ}, {JB}")
    k(f"v_lshrrev_b32 v{T0}, 4, v{L}", f"v_lshlrev_b32 v{T0}, 10, v{T0}", f"v_bfe_u32 v{T1}, v{L}, 2, 2", f"v_lshl_add_u32 v{T0}, v{T1}, 7, v{T0}",
      f"v_bfe_u32 v{T1}, v{L}, 3, 1", f"v_lshl_add_u32 v{T0}, v{T1}, 6, v{T0}", f"v_add_u32 v{T0}, s{sWrJ}, v{T0}", f"v_and_b32 v{T1}, 3, v{L}",
      f"v_lshl_add_u32 v{bJ[0]}, v{T1}, 4, v{T0}", f"v_xor_b32 v{bJ[1]}, 64, v{bJ[0]}")
    strip, kb0, mat = 66, 67, 68
    k(f"s_lshr_b32 s{strip}, s{sGW}, 3", f"s_and_b32 s{kb0}, s{sGW}, 7", f"s_lshl_b32 s{kb0}, s{kb0}, 2",
      f"s_cmp_ge_u32 s{strip}, 112", "s_cbranch_scc1 L_k1_wo")
    if "jskip" in OPT:
        k(f"s_and_b32 s{sT}, s2, 1", f"s_cmp_eq_u32 s{sT}, {OPT['jskip']}", "s_cbranch_scc1 L_k1_wo")
    k(f"s_cmp_ge_u32 s{strip}, 56", f"s_cselect_b32 s{mat}, 1, 0",
      f"s_cselect_b32 s{SJ}, s26, s24", f"s_cselect_b32 s{SJ+1}, s27, s25",
      f"s_mul_i32 s{sT}, s{mat}, 56", f"s_sub_u32 s{strip}, s{strip}, s{sT}",
      f"s_mov_b32 s{SJ+2}, {1024*7168}", f"s_mov_b32 s{sStr}, 7168", f"s_mov_b32 s{sDstep}, {14*1024}",
      f"s_mov_b32 s{sBsz}, {3584*2048}",
      f"v_lshl_add_u32 v{aJ[0]}, v{T1}, 3, v{T0}")
    for i in range(1, 4):
        k(f"v_xor_b32 v{aJ[i]}, {32*i}, v{aJ[0]}")
    for i in range(4):
        T, fb, pos = 69, 70, 71
        k(f"s_lshl_b32 s{T}, s{strip}, 2", f"s_add_u32 s{T}, s{T}, {i}",
          f"s_mul_i32 s{fb}, s{T}, 9363", f"s_lshr_b32 s{fb}, s{fb}, 16",
          f"s_sub_u32 s{pos}, s{mat}, s{fb}", f"s_mul_i32 s{pos}, s{pos}, 7", f"s_add_u32 s{pos}, s{T}, s{pos}",
          f"s_lshl_b32 s{sT}, s{fb}, 5", f"s_add_u32 s{sT}, s{sT}, s{kb0}", f"s_mul_i32 s{sT}, s{sT}, 14",
          f"s_add_u32 s{sT}, s{sT}, s{pos}", f"s_lshl_b32 s{sT}, s{sT}, 10", f"s_add_u32 s{sD[i]}, s{sT}, {WGU}",
          f"s_lshl_b32 s{sT}, s{kb0}, 3", f"s_add_u32 s{sT}, s{sT}, s{fb}", f"s_mul_i32 s{sT}, s{sT}, 14",
          f"s_add_u32 s{sT}, s{sT}, s{pos}", f"s_lshl_b32 s{sT}, s{sT}, 6", f"s_add_u32 s{sCs[i]}, s{sT}, {CSP}")
    k("s_branch L_k1_jp")
    k.label("L_k1_wo")
    k(f"s_mov_b32 s{SJ}, s24", f"s_mov_b32 s{SJ+1}, s25", f"s_mov_b32 s{SJ+2}, 0", f"s_mov_b32 s{sStr}, 2048", f"s_mov_b32 s{sDstep}, 0", f"s_mov_b32 s{sBsz}, 0")
    for i in range(4):
        k(f"s_mov_b32 s{sD[i]}, {OOB}", f"s_mov_b32 s{sCs[i]}, {OOB}", f"v_mov_b32 v{aJ[i]}, v{bJ[0]}")
    k.label("L_k1_jp")
    k(f"s_mov_b32 s{SJ+3}, 0x00020000")
    k(f"v_lshrrev_b32 v{T0}, 3, v{L}", f"v_bfe_u32 v{T1}, v{L}, 4, 1", f"v_lshlrev_b32 v{T1}, 2, v{T1}",
      f"v_and_b32 v{T2}, 7, v{L}", f"v_xor_b32 v{T1}, v{T1}, v{T2}", f"v_lshlrev_b32 v{T1}, 4, v{T1}",
      f"v_mul_lo_u32 v{vJ}, v{T0}, s{sStr}", f"v_lshl_add_u32 v{vJB}, v{T0}, 11, v{T1}", f"v_add_u32 v{vJ}, v{vJ}, v{T1}",
      f"s_lshl_b32 s{sT}, s{kb0}, 5", f"s_mul_i32 s{sT}, s{sT}, s{sStr}", f"s_lshl_b32 s{sT2}, s{strip}, 7", f"s_add_u32 s{sT}, s{sT}, s{sT2}",
      f"v_add_u32 v{vJ}, s{sT}, v{vJ}",
      f"s_lshl_b32 s{sT}, s{sStr}, 3", f"s_sub_u32 s{sJa}, s{sT}, 1024", f"s_add_u32 s{sJb}, s{sT}, 3072", f"s_mov_b32 s{sJo}, 0")
    k(f"s_mul_i32 s{strip}, s{sGW}, 1171", f"s_lshr_b32 s{strip}, s{strip}, 16",
      f"s_mul_i32 s{sT}, s{strip}, 56", f"s_sub_u32 s{kb0}, s{sGW}, s{sT}", f"s_lshl_b32 s{kb0}, s{kb0}, 1",
      f"s_cmp_ge_u32 s{kb0}, 48", f"s_cselect_b32 s69, 48, 0", f"s_cselect_b32 s70, 8, 0", f"s_sub_u32 s69, s{kb0}, s69",
      f"s_and_b32 s71, s69, 7", f"s_add_u32 s70, s70, s71", f"s_lshr_b32 s69, s69, 3",
      f"s_sub_u32 s71, s{kb0}, 96", f"s_cmp_ge_u32 s{kb0}, 96", f"s_cselect_b32 s69, 6, s69", f"s_cselect_b32 s70, s71, s70",
      f"s_mul_i32 s70, s70, 14", f"s_add_u32 s{sT}, s70, s69", f"s_lshl_b32 s{sT}, s{sT}, 15",
      f"s_lshl_b32 s{sT2}, s{strip}, 7", f"s_add_u32 s{sT}, s{sT}, s{sT2}",
      f"v_add_u32 v{vJB}, s{sT}, v{vJB}",
      f"s_lshr_b32 s{sT}, s{strip}, 1", f"s_mul_i32 s{sT}, s{sT}, 112", f"s_add_u32 s{sT}, s{sT}, s{kb0}", f"s_lshl_b32 s{sT}, s{sT}, 1",
      f"s_and_b32 s{sT2}, s{strip}, 1", f"s_add_u32 s{sT}, s{sT}, s{sT2}", f"s_lshl_b32 s{sT}, s{sT}, 12",
      f"s_add_u32 s{sDB}, s{sT}, {WDF}", f"s_cmp_eq_u32 s{sBsz}, 0", f"s_cselect_b32 s{sDB}, {OOB}, s{sDB}")
    k(f"v_and_b32 v{T0}, 15, v{L}", f"v_cmp_eq_u32 vcc, 0, v{T0}", f"v_mov_b32 v{T1}, {OOB}", "s_nop 0",
      f"v_cndmask_b32 v{vCs}, v{T1}, v{L}, vcc")
    for i in range(4):
        k(f"v_mov_b32 v{ONES+i}, 0x3f803f80")
    k(f"v_lshlrev_b32 v{vPo}, 2, v{L}")
    if OPT.get("hprof"):
        k("v_writelane_b32 v200, s92, 0", "s_mov_b32 s86, 5")
    hstamp(k, 1)
    k("s_barrier")
    hstamp(k, 2)
    npre = OPT.get("npre", 2)
    for n in range(npre):
        q_x(n * STG); q_w(n * STG)
    hstamp(k, 3)
    k(f"s_waitcnt vmcnt({6*(npre-1)})", "s_barrier")
    hstamp(k, 4)
    for n in range(npre, 4):
        q_x(n * STG); q_w(n * STG)
    k("s_waitcnt vmcnt(12)", "s_barrier")
    k.label("L_f_ld2")
    if OPT.get("hprof"):
        k("s_mov_b32 m0, s86", "s_add_u32 s86, s86, 1")
    hstamp(k, "m0")
    q_stage()
    k(f"s_cmp_lg_u32 s{sN}, 0", f"s_waitcnt vmcnt({6*D})", "s_barrier", "s_cbranch_scc1 L_f_ld2")
    hstamp(k, 17)
    poll = f"global_load_dword v{PF4}, v{vPo}, s[{SDBG}:{SDBG+1}] sc1"
    k(f"s_lshl_b32 s{sKo}, s{sW}, 13", f"s_add_u32 s{sWr}, s{sKo}, {KVB}", f"s_mov_b32 s{sN}, {1<<20}")
    if OPT.get("kvrot", 0):
        k(f"s_bfe_u32 s{sT}, s2, {0x30003 if OPT.get('kvrot', 1) == 1 else 0x30000}", f"s_lshl_b32 s{sT}, s{sT}, 15", f"s_add_u32 s{sKo}, s{sKo}, s{sT}")
    k(f"s_cmp_eq_u32 s{sW}, 0", "s_cbranch_scc1 L_f_poll0", "s_waitcnt vmcnt(6)", "s_barrier", "s_waitcnt vmcnt(0)", "s_branch L_f_polled")
    k.label("L_f_poll0")
    k(poll, "s_waitcnt vmcnt(7)", "s_barrier")
    k.label("L_f_poll")
    k("s_waitcnt vmcnt(0)", f"v_cmp_ne_u32 vcc, 4, v{PF4}", f"s_sub_u32 s{sN}, s{sN}, 1", "s_cbranch_scc1 L_f_polled",
      "s_cbranch_vccz L_f_polled", "s_sleep 2", poll, "s_branch L_f_poll")
    k.label("L_f_polled")
    hstamp(k, 18)
    k("s_barrier")
    hstamp(k, 19)

    def kv_dma(c):
        o = []
        for hh in range(2):
            o += [f"s_add_u32 m0, s{sWr}, {((c+1)%3)*SLOT+4096*hh}", "s_nop 0"]
            for i in range(4):
                o.append(f"buffer_load_dwordx4 v{vLin}, s[{SKV}:{SKV+3}], s{sKo} offen offset:{1024*i} sc1 lds")
            o.append(f"s_add_u32 s{sKo}, s{sKo}, {4096 if hh == 0 else 32768-4096}")
        o.append(f"s_and_b32 s{sKo}, s{sKo}, 0x3ffff")
        return o
    k(kv_dma(0))
    hstamp(k, 20)
    k([kv_dma(1), "s_waitcnt vmcnt(8)"] if OPT.get("kv1", 0) else "s_waitcnt vmcnt(0)")
    hstamp(k, 21)
    k("s_barrier")
    hstamp(k, 22)
    vm = []

    def wait_for(*tag):
        n = len(vm) - 1 - max(i for i, t in enumerate(vm) if t in tag)
        return f"s_waitcnt vmcnt({n})"
    vm += ["kv1"] * 8
    k(f"s_mov_b32 s{SWQ}, s20", f"s_mov_b32 s{SWQ+1}, s21",
      f"s_lshl_b32 s{sBW}, s{sTH}, 1", f"s_add_u32 s{sBW}, s{sBW}, s{sCH}", f"s_lshl_b32 s{sBW}, s{sBW}, 10",
      f"s_lshl_b32 s{sRd}, s{sW}, 11", f"s_lshl_b32 s{sOo}, s{sTB}, 17", f"s_add_u32 s{sOo}, s{sOo}, s{sRd}", f"s_add_u32 s{sOo}, s{sOo}, {OF}")
    if not OPT.get("kv1", 0):
        k(kv_dma(1))

    def kstage(n, sh):
        if n < 2:
            return [f"s_lshl_b32 s{sT}, s{sHG}, {sh+1}", f"s_add_u32 s{sT}, s{sT}, {n<<sh}"]
        i = n >> 1
        if i == 4:
            return [f"s_xor_b32 s{sT}, s{sHG}, 4", f"s_lshl_b32 s{sT}, s{sT}, {sh+1}", f"s_add_u32 s{sT}, s{sT}, {(n&1)<<sh}"]
        return [f"s_add_u32 s{sT}, s{sHG}, {i}", f"s_and_b32 s{sT}, s{sT}, 3", f"s_lshl_b32 s{sT}, s{sT}, {sh+1}",
                f"s_add_u32 s{sT}, s{sT}, {((n&1) + (8 if i > 4 else 0))<<sh}"]

    def o_w(n, pieces=range(4)):
        k(kstage(n, 17))
        for i in pieces:
            k(f"s_add_u32 m0, s{sBW}, {(n%8)*16384+4096*i}", "s_nop 0", f"buffer_load_dwordx4 v{vW[i]}, s[{SWQ}:{SWQ+3}], s{sT} offen lds")
        vm.extend([f"w{n}"] * len(pieces))

    def o_x(n):
        k(kstage(n, 13), f"s_add_u32 m0, s{sRd}, {XR+(n%4)*8192}", f"s_add_u32 s{sT}, s{sT}, s{sOo}")
        for i in range(2):
            k(f"buffer_load_dwordx4 v{vLin}, s[{SWS}:{SWS+3}], s{sT} offen offset:{1024*i} sc1 lds")
        vm.extend([f"x{n}"] * 2)
    for c in range(8):
        if c + 2 < 8:
            k(kv_dma(c + 2)); vm += [f"kv{c+2}"] * 8
        if c < (3 if OPT.get("s4", 0) else 1):
            k(f"s_lshl_b32 s{sT}, s{sGW}, 12", f"s_add_u32 s{sT}, s{sT}, {XB4[c+1]}", f"v_mov_b64 {vr(PF4,2)}, -1", f"v_mov_b64 {vr(PF4+2,2)}, -1")
            for i in range(4):
                k(f"buffer_store_dwordx4 {vr(PF4,4)}, v{vLin}, s[{SWS}:{SWS+3}], s{sT} offen offset:{1024*i} sc1")
            vm += ["st"] * 4
        if c == 3:
            k(f"s_lshl_b32 s{sT}, s{sGW}, 10", f"s_add_u32 s{sT}, s{sT}, {FL2}", f"s_cmp_lt_u32 s{sGW}, 8", f"s_cselect_b32 s{sT}, s{sT}, {OOB}",
              f"v_mov_b64 {vr(PF4,2)}, 0", f"v_mov_b64 {vr(PF4+2,2)}, 0",
              f"buffer_store_dwordx4 {vr(PF4,4)}, v{vLin}, s[{SWS}:{SWS+3}], s{sT} offen sc1")
            vm += ["st"]
        j = c - 1
        proc = 0 <= j < 6 and not OPT.get("nojob")
        if proc:
            k(wait_for(f"j{j}"))
            for f in range(4):
                for jj in range(2):
                    if j < 4:
                        k(f"ds_read_b64_tr_b16 {vr(JF[f]+2*jj,2)}, v{aJ[f]} offset:{jj*512}")
                    else:
                        k(f"ds_read_b64_tr_b16 {vr(JF[f]+2*jj,2)}, v{bJ[f>>1]} offset:{jj*512+(f&1)*8}")
            k("s_waitcnt lgkmcnt(0)")
        if c < 6 and not OPT.get("nojob"):
            if c == 4:
                k(f"s_mov_b32 s{SJ}, s28", f"s_mov_b32 s{SJ+1}, s29", f"s_mov_b32 s{SJ+2}, s{sBsz}",
                  f"s_mov_b32 s{sJo}, 0")
            k(f"s_mov_b32 m0, s{sWrJ}", "s_nop 0")
            for i in range(4):
                k(f"buffer_load_dwordx4 v{vJ if c < 4 else vJB}, s[{SJ}:{SJ+3}], s{sJo} offen offset:{1024*i}{' nt' if OPT.get('jnt', 0) else ''} lds",
                  f"s_add_u32 s{sJo}, s{sJo}, " + (f"s{sJa if i < 3 else sJb}" if c < 4 else str([8, 104, 8, 104][i] * 2048 + (-1024 if i < 3 else 3072))))
            vm += [f"j{c}"] * 4
        if proc:
            for f in range(4):
                if j < 4:
                    k(f"buffer_store_dwordx4 {vr(JF[f],4)}, v{vLin}, s[{SWS}:{SWS+3}], s{sD[f]} offen sc1",
                      f"s_add_u32 s{sD[f]}, s{sD[f]}, s{sDstep}",
                      m16(vr(CS[f], 4), vr(JF[f], 4), vr(ONES, 4), "0" if j == 0 else None))
                else:
                    k(f"buffer_store_dwordx4 {vr(JF[f],4)}, v{vLin}, s[{SWS}:{SWS+3}], s{sDB} offen offset:{1024*f} sc1")
            vm += ["st"] * 4
            if j == 4:
                k(f"s_add_u32 s{sDB}, s{sDB}, 8192")
                for f in range(4):
                    k(f"buffer_store_dwordx4 {vr(CS[f],4)}, v{vCs}, s[{SWS}:{SWS+3}], s{sCs[f]} offen sc1")
                vm += ["st"] * 4
        for n in {5: [0, 2, 3], 6: [4, 5], 7: [1, 6, 7]}.get(c, []):
            o_w(n)
        if c == 1 and OPT.get("isl", 1):
            k(f"s_branch L_isl{[n for n, b in ISL if b == 'L_f_back2'][0]}")
            k.label("L_f_back2")
        if c in (1, 7) and OPT.get("skip", 1024):
            k(f"s_branch L_f_pg{c}", ".p2align 12", f".fill {OPT.get('skip', 1024)//4}, 4, 0xbf800000", f"L_f_pg{c}:")
        if c >= 2 and OPT.get("ser", 0) and OPT.get("isl", 1):
            k(f"s_cmp_lg_u32 s{sW}, {c&3}", f"s_cbranch_scc1 L_f_hb{c-2}", f"@SER{c-2}@")
            k.label(f"L_f_hb{c-2}")
        if c == (5 if not OPT.get("ser", 0) else 0):
            k(f"s_lshr_b32 s{sT}, s2, 3", f"s_lshl_b32 s{sT}, s{sT}, 11", f"v_and_b32 v{T0}, 255, v0", f"v_lshlrev_b32 v{T0}, 3, v{T0}",
              f"v_add_u32 v{T0}, s{sT}, v{T0}")
            k(f"s_getpc_b64 s[22:23]")
            k.label("L_f_pc2")
            k("s_add_u32 s22, s22, L_code_rest-L_f_pc2", "s_addc_u32 s23, s23, 0",
              f"v_min_u32 v{T0}, L_code_end-L_code_rest-4, v{T0}", f"global_load_dword v{T1}, v{T0}, s[22:23]")
            vm.append("pf")
        if c == 6:
            k(f"s_and_b32 s{sT}, s{sTB}, 7", f"s_add_u32 s{sT}, s{sT}, 8", f"s_lshr_b32 s{sT2}, s{sT}, 1", f"s_cmp_eq_u32 s{sHG}, s{sT2}",
              f"s_cselect_b32 s{sT2}, 8, 0", f"s_sub_u32 s{sT}, s{sT}, s{sT2}", f"s_lshl_b32 s{sT}, s{sT}, 17")
            for i in range(4):
                k(f"buffer_load_dwordx4 {vr(PF4,4)}, v{vW[i]}, s[{SWQ}:{SWQ+3}], s{sT} offen")
            vm.extend(["pf"] * 4)
        if c + 1 < 8:
            k(wait_for(f"kv{c+1}"))
        k("s_barrier")
    k(f"s_lshl_b32 s{sKo}, s{sTB}, 9", f"s_add_u32 s{sKo}, s{sKo}, {FLG}", f"s_mov_b32 s{sN}, {1<<20}", "s_waitcnt vmcnt(0)")
    hstamp(k, 23)
    look = lambda h: f"buffer_load_dword v{PF4}, off, s[{SWS}:{SWS+3}], s{sKo} offset:{256*h} sc1"
    ask = lambda h, r=0: ["s_mov_b64 exec, 1", f"v_mov_b32 v{PF4+r}, 0", f"buffer_atomic_add v{PF4+r}, off, s[{SWS}:{SWS+3}], s{sKo} offset:{256*h} sc0 sc1", "s_mov_b64 exec, -1"]
    NP = OPT.get("np", 3)

    def gate(h, wait, tag=""):
        op = f"L_f_open{h}{tag}"
        k(wait, f"v_readfirstlane_b32 s{sT}, v{PF4}", "s_nop 0", f"s_cmp_ge_u32 s{sT}, s{sStr}", f"s_cbranch_scc1 {op}")
        for r in range(NP - 1):
            k(ask(h, r), f"s_sleep {OPT.get('pgap', 3)}")
        k.label(f"L_f_gate{h}{tag}")
        for r in range(NP):
            k(ask(h, (r - 1) % NP), f"s_waitcnt vmcnt({NP-1})", f"v_readfirstlane_b32 s{sT}, v{PF4+r}", "s_nop 0",
              f"s_cmp_ge_u32 s{sT}, s{sStr}", f"s_cbranch_scc1 {op}")
        k(f"s_sub_u32 s{sN}, s{sN}, 1", f"s_cbranch_scc0 L_f_gate{h}{tag}")
        k.label(op)
    k(f"v_mov_b32 v{PF4}, 0", f"s_cmp_lt_u32 s{sHG}, 4", "s_cbranch_scc1 L_f_late", f"s_sleep {OPT['odl']}" if OPT.get('odl') else None, ask(0), "s_waitcnt vmcnt(0)",
      f"v_readfirstlane_b32 s{sT}, v{PF4}", "s_nop 0", f"s_cmp_lt_u32 s{sT}, 16", "s_cbranch_scc1 L_f_late")
    o_x(2); o_x(3)
    del vm[-4:]
    hstamp(k, 24)
    k("s_barrier")
    hstamp(k, 25)
    k("s_branch L_f_both")
    k.label("L_f_late")
    k(f"s_cmp_eq_u32 s{sW}, 0", f"s_cselect_b32 s{sStr}, 16, 0")
    gate(0, None)
    hstamp(k, 24)
    k("s_barrier")
    hstamp(k, 25)
    o_x(2); o_x(3)
    k.label("L_f_both")
    k(f"s_cmp_eq_u32 s{sW}, 0", f"s_cselect_b32 s{sKo}, s{sKo}, {OOB}", f"s_cselect_b32 s{sStr}, 16, 0",
      f"s_cmp_lt_u32 s{sHG}, 4", f"s_cselect_b32 s{sJa}, {OOB}, s{sKo}", f"s_cselect_b32 s{sJb}, 0, s{sStr}",
      f"s_cselect_b32 s{sKo}, s{sKo}, {OOB}", f"s_cselect_b32 s{sStr}, s{sStr}, 0")
    k("s_barrier")
    G2 = OPT.get("g2", 3)
    for n in range(1, 15):
        if n + 3 < 16:
            o_x(n + 3)
        if n in (G2, G2 + 2):
            k(look(1) if OPT.get("lk", 1) else ask(1)); vm.append("ask")
        cum = [[0, 0, 3, 5, 8, 10, 13, 15, 18, 20, 23, 25, 28, 32, 32], [0, 0, 3, 6, 9, 12, 15, 18, 21, 24, 27, 30, 32, 32, 32]][OPT.get("wsch", 1)]
        for m in range(8, 16):
            pcs = [q for q in range(4) if cum[n - 1] <= 4 * (m - 8) + q < cum[n]]
            if pcs:
                assert m - 6 <= n <= m - 2
                o_w(m, pcs)
        if n == 4:
            gate(1, wait_for("ask"))
            k(f"s_mov_b32 s{sKo}, s{sJa}", f"s_mov_b32 s{sStr}, s{sJb}")
        if n == 6:
            gate(1, wait_for("ask"), "b")
        k(wait_for(f"x{n+1}", f"w{n+1}"), "s_barrier")
        if n in (1, 4, 6, 9, 14):
            hstamp(k, 26 + (1, 4, 6, 9, 14).index(n))
    if OPT.get("hprof"):
        k(f"s_lshl_b32 s{sT}, s{sGW}, 7", f"s_add_u32 s{sT}, s{sT}, {STAMP+2*MB}", f"v_lshlrev_b32 v{T0}, 2, v{L}", "s_mov_b64 exec, 0xffffffff",
          f"buffer_store_dword v200, v{T0}, s[{SWS}:{SWS+3}], s{sT} offen")
    hop(k, sW)
    k.label("L_k1_slow")
    k("s_waitcnt vmcnt(0) lgkmcnt(0)", "s_nop 15")
    C = [S[2], S[3]]
    ldK = [f"buffer_load_dwordx4 {vr(KB[0]+4*m,4)}, v{vLin}, s[{SKV}:{SKV+3}], s{sKo} offen offset:{1024*m} sc1" for m in range(2)]
    ldV = [f"buffer_load_dwordx4 {vr(VB[0]+4*m,4)}, v{vLin}, s[{SKV}:{SKV+3}], s{sKo} offen offset:{2048+1024*m} sc1" for m in range(2)]
    k(f"v_mov_b32 v{T0}, 0xff800000", f"v_mov_b32 v{T1}, 0xff800000", f"s_mov_b32 s{sKo}, 0")
    k.label("L_k1_s1")
    k(ldK, "s_waitcnt vmcnt(0)", qk(0), qk(1), "s_nop 15")
    for q in range(2):
        for i in range(0, 16, 2):
            k(f"v_max3_f32 v{[T0,T1][q]}, v{S[q]+i}, v{S[q]+i+1}, v{[T0,T1][q]}")
    k(f"s_add_u32 s{sKo}, s{sKo}, 4096", f"s_cmp_lt_u32 s{sKo}, 262144", "s_cbranch_scc1 L_k1_s1")
    for q in range(2):
        t = [T0, T1][q]
        k(f"v_mov_b32 v{T2}, v{t}", "s_nop 1", f"v_permlane32_swap_b32 v{t}, v{T2}", "s_nop 1", f"v_max_f32 v{t}, v{t}, v{T2}")
        for i in range(16):
            k(f"v_sub_f32 v{C[q]+i}, 0, v{t}", f"v_mov_b32 v{O[q]+i}, 0")
        for i in range(4):
            k(f"v_mov_b32 v{LS[q]+i}, 0")
    k(f"s_mov_b32 s{sKo}, 0")
    k.label("L_k1_s2")
    k(ldK, ldV, "s_waitcnt vmcnt(0)", qk(0, vr(C[0], 16)), qk(1, vr(C[1], 16)), "s_nop 15")
    for q in range(2):
        for i in range(16):
            k(f"v_exp_f32 v{S[q]+i}, v{S[q]+i}")
    k("s_nop 1", pv(0), sm(0), pv(1), sm(1))
    k(f"s_add_u32 s{sKo}, s{sKo}, 4096", f"s_cmp_lt_u32 s{sKo}, 262144", "s_cbranch_scc1 L_k1_s2")
    k("s_nop 15", "s_nop 7", out(0), "s_branch L_k1_out")
    return k


def k_gemm(name, kidx, K, tok_region, w_region, is_down):
    D = OPT.get("gd", 4)
    STG, NS = 24576, D + 2
    N = K // 64
    k = Kern(name, 256, 512, STG * NS)
    SWS, ST_, SW_, SR, SO = 4, 8, 12, 16, 20
    sW, sTB, sNB, sN, sT, sT2, sRd, sWr, sTo, sWo, sTH, sCH, sRes, sDW = range(28, 42)
    v = Alloc(1)
    L, G, TOK, T0, T1, vLin, bT, bW, aT, aW, vRow = [v() for _ in range(11)]
    F = [[dict(X=[v(4, 4) for _ in range(2)], W=[v(4, 4) for _ in range(4)]) for s in range(2)] for _ in range(2)]
    acc = [[v(4, 4) for i in range(2)] for t in range(4)]
    RES = [[v(4, 4) for b in range(2)] for i in range(2)]
    k.vgpr = k.acc = (v.n + 7) // 8 * 8
    head(k)
    k(f"s_load_dwordx2 s[{SWS}:{SWS+1}], s[0:1], {A_WS}",
      f"s_load_dwordx2 s[{SO}:{SO+1}], s[0:1], {A_OUT if is_down else A_X}")
    k(f"v_lshrrev_b32 v{T1}, 6, v0", f"v_and_b32 v{L}, 63, v0", f"v_readfirstlane_b32 s{sW}, v{T1}", f"v_lshlrev_b32 v{vLin}, 4, v{L}")
    ids_8x4(k, sNB, sTB, sT)
    k(f"s_cmp_lt_u32 s{sW}, 4", f"s_cbranch_scc1 L_{name}_comp")
    k(f"s_and_b32 s{sW}, s{sW}, 3",
      f"s_lshl_b32 s{sTo}, s{sW}, 11", f"s_lshl_b32 s{sWo}, s{sW}, 12", f"s_mov_b32 s{sWr}, s{sTo}",
      f"s_add_u32 s{sDW}, s{sTo}, 8192")
    rot = K == 1024 and OPT.get("rot2", 0)
    if rot:
        k(f"s_lshl_b32 s{sT}, s{sNB}, 1", f"s_add_u32 s{sT}, s{sT}, s{sTB}", f"s_and_b32 s{sT}, s{sT}, 7",
          f"s_lshl_b32 s{sT2}, s{sT}, 14", f"s_add_u32 s{sTo}, s{sTo}, s{sT2}", f"s_lshl_b32 s{sT2}, s{sT}, 15", f"s_add_u32 s{sWo}, s{sWo}, s{sT2}")
    k(f"s_mul_i32 s{sT}, s{sTB}, {K*128}", f"s_add_u32 s{sT}, s{sT}, {tok_region}",
      f"s_mul_i32 s{sT2}, s{sNB}, {K*256}", f"s_add_u32 s{sT2}, s{sT2}, {w_region}")
    k("s_waitcnt lgkmcnt(0)", ws_shift(SWS))
    k(srd_from(ST_, SWS, f"s{sT}", K * 128), srd_from(SW_, SWS, f"s{sT2}", K * 256))

    def dma_stage():
        o = [f"s_mov_b32 m0, s{sWr}", "s_nop 0"]
        for i in range(2):
            o.append(f"buffer_load_dwordx4 v{vLin}, s[{ST_}:{ST_+3}], s{sTo} offen offset:{1024*i} lds")
        o += [f"s_add_u32 m0, s{sWr}, s{sDW}", f"s_add_u32 s{sTo}, s{sTo}, 8192"]
        for i in range(4):
            o.append(f"buffer_load_dwordx4 v{vLin}, s[{SW_}:{SW_+3}], s{sWo} offen offset:{1024*i} lds")
        o += [f"s_add_u32 s{sWo}, s{sWo}, 16384", f"s_add_u32 s{sWr}, s{sWr}, {STG}", f"s_cmp_ge_u32 s{sWr}, {STG*NS}",
              f"s_cselect_b32 s{sT}, {STG*NS}, 0", f"s_sub_u32 s{sWr}, s{sWr}, s{sT}"]
        if rot:
            o += [f"s_and_b32 s{sTo}, s{sTo}, {K*128-1}", f"s_and_b32 s{sWo}, s{sWo}, {K*256-1}"]
        return o
    k(f"s_mov_b32 s{sN}, {N}")
    k.label(f"L_{name}_ld")
    k(dma_stage())
    k(f"s_sub_u32 s{sN}, s{sN}, 1", f"s_cmp_lg_u32 s{sN}, 0")
    k(f"s_waitcnt vmcnt({6*D})", "s_barrier", f"s_cbranch_scc1 L_{name}_ld")
    for d in range(D - 1, -1, -1):
        k(f"s_waitcnt vmcnt({6*d})", "s_barrier")
    if is_down:
        k("s_endpgm")
    else:
        hop(k, sW)
    k.label(f"L_{name}_comp")
    k(f"s_and_b32 s{sTH}, s{sW}, 1", f"s_lshr_b32 s{sCH}, s{sW}, 1")
    k(f"v_lshrrev_b32 v{G}, 4, v{L}", f"v_and_b32 v{TOK}, 15, v{L}",
      f"v_lshlrev_b32 v{T0}, 11, v{TOK}", f"v_lshl_add_u32 v{T0}, v{G}, 4, v{T0}",
      f"s_lshl_b32 s{sN}, s{sTB}, 1", f"s_add_u32 s{sN}, s{sN}, s{sTH}", f"s_lshl_b32 s{sN}, s{sN}, 16",
      f"s_lshl_b32 s{sRes}, s{sNB}, 1", f"s_add_u32 s{sRes}, s{sRes}, s{sCH}", f"s_lshl_b32 s{sRd}, s{sRes}, 7",
      f"s_add_u32 s{sN}, s{sN}, s{sRd}", f"v_add_u32 v{vRow}, s{sN}, v{T0}")
    k(f"s_lshl_b32 s{sRes}, s{sRes}, 13", f"s_lshl_b32 s{sN}, s{sTB}, 17", f"s_add_u32 s{sRes}, s{sRes}, s{sN}",
      f"s_lshl_b32 s{sN}, s{sTH}, 11", f"s_add_u32 s{sRes}, s{sRes}, s{sN}", f"s_add_u32 s{sRes}, s{sRes}, {HF}")
    k(f"s_lshl_b32 s{sT}, s{sTH}, 11", f"v_add_u32 v{bT}, s{sT}, v{vLin}",
      f"s_lshl_b32 s{sT}, s{sCH}, 12", f"s_add_u32 s{sT}, s{sT}, 8192", f"v_add_u32 v{bW}, s{sT}, v{vLin}",
      f"v_mov_b32 v{aT}, v{bT}", f"v_mov_b32 v{aW}, v{bW}")
    k("s_waitcnt lgkmcnt(0)", ws_shift(SWS))
    k(srd_tail(SWS, WS_SZ), srd_tail(SO, 4 * MB))
    for _ in range(NS - 2):
        k("s_barrier")
    k(f"s_add_u32 s{sT2}, s{sRes}, 4096", f"s_mov_b32 s{sN}, 32768")
    for i in range(2):
        for b in range(2):
            if is_down:
                k(f"buffer_load_dwordx4 {vr(RES[i][b],4)}, v{vLin}, s[{SWS}:{SWS+3}], s{[sRes,sT2][b]} offen offset:{1024*i}")
            else:
                k(f"buffer_load_dwordx4 {vr(RES[i][b],4)}, v{vRow}, s[{SO}:{SO+3}], {['0', f's{sN}'][i]} offen offset:{64*b}{' nt' if OPT.get('jnt', 0) else ''}")
    for t in range(4):
        for i in range(2):
            for r in range(4):
                k(f"v_mov_b32 v{acc[t][i]+r}, 0")

    def reads(f):
        o = []
        for s in range(2):
            o += [f"ds_read_b128 {vr(F[f][s]['X'][i],4)}, v{aT} offset:{s*4096+i*1024}" for i in range(2)]
            o += [f"ds_read_b128 {vr(F[f][s]['W'][t],4)}, v{aW} offset:{s*8192+t*1024}" for t in range(4)]
        return o

    def mfmas(f):
        return [m16(vr(acc[t][i ^ (t & 1)], 4), vr(F[f][s]["W"][t], 4), vr(F[f][s]["X"][i ^ (t & 1)], 4))
                for t in range(4) for i in range(2) for s in range(2)]
    adv = [[f"s_add_u32 s{sRd}, s{sRd}, {STG}", f"s_cmp_eq_u32 s{sRd}, {STG*NS}"], [f"s_cselect_b32 s{sRd}, 0, s{sRd}"],
           [f"v_add_u32 v{aT}, s{sRd}, v{bT}", f"v_add_u32 v{aW}, s{sRd}, v{bW}"]]
    k(f"s_mov_b32 s{sRd}, 0", f"s_mov_b32 s{sN}, {N//2-1}")
    k("s_barrier")
    mid_stamp(k, 0)
    k(reads(0), adv, "s_waitcnt lgkmcnt(0)")
    k(".p2align 6")
    k.label(f"L_{name}_loop")
    for f in range(2):
        k("s_barrier")
        m = weave(mfmas(f), reads(1 - f), 0, 9)
        tl = adv + ([[f"s_sub_u32 s{sN}, s{sN}, 1", f"s_cmp_lg_u32 s{sN}, 0"]] if f == 1 else [])
        k(weave(m, tl, len(m) - 6, len(m) - 1))
        k("s_waitcnt lgkmcnt(0)")
    k(f"s_cbranch_scc1 L_{name}_loop")
    k("s_barrier")
    k(weave(mfmas(0), reads(1), 0, 9), "s_waitcnt lgkmcnt(0)", mfmas(1))
    mid_stamp(k, 1)
    k("s_waitcnt vmcnt(0)", f"s_mov_b32 s{sN}, 32768", "s_nop 5")
    SUM = F[0][0]["X"]
    U = F[0][0]["W"][0]
    for i in range(2):
        if not is_down:
            k(f"v_mov_b32 v{SUM[i]}, 0", f"v_mov_b32 v{SUM[i]+1}, 0")
        for b in range(2):
            o = F[0][1]["W"][2 * i + b]
            for jt in range(2):
                a = acc[2 * b + jt][i]
                for h in range(2):
                    r = RES[i][b] + 2 * jt + h
                    k(f"v_lshlrev_b32 v{U}, 16, v{r}", f"v_and_b32 v{U+1}, 0xffff0000, v{r}",
                      f"v_add_f32 v{a+2*h}, v{a+2*h}, v{U}", f"v_add_f32 v{a+2*h+1}, v{a+2*h+1}, v{U+1}",
                      f"v_cvt_pk_bf16_f32 v{o+2*jt+h}, v{a+2*h}, v{a+2*h+1}")
            if is_down:
                k(f"buffer_store_dwordx4 {vr(o,4)}, v{vRow}, s[{SO}:{SO+3}], {['0', f's{sN}'][i]} offen offset:{64*b} sc1")
            else:
                k(f"buffer_store_dwordx4 {vr(o,4)}, v{vLin}, s[{SWS}:{SWS+3}], s{[sRes,sT2][b]} offen offset:{1024*i} sc1")
    if not is_down:
        for t in range(4):
            for r in range(4):
                for i in range(2):
                    a = acc[t][i] + r
                    k(f"v_add_f32 v{SUM[i]}, v{SUM[i]}, v{a}", f"v_fmac_f32 v{SUM[i]+1}, v{a}, v{a}")
        k("s_nop 1", f"v_permlane32_swap_b32 v{SUM[0]}, v{SUM[0]+1}", f"v_permlane32_swap_b32 v{SUM[1]}, v{SUM[1]+1}", "s_nop 0",
          f"v_add_f32 v{SUM[0]}, v{SUM[0]}, v{SUM[0]+1}", f"v_add_f32 v{SUM[1]}, v{SUM[1]}, v{SUM[1]+1}",
          f"v_lshlrev_b32 v{T0}, 2, v{L}", "s_nop 0",
          f"v_permlane16_swap_b32 v{SUM[0]}, v{SUM[1]}",
          f"s_lshl_b32 s{sT}, s{sTB}, 1", f"s_add_u32 s{sT}, s{sT}, s{sTH}", f"s_lshl_b32 s{sT}, s{sT}, 12",
          f"v_add_f32 v{SUM[0]}, v{SUM[0]}, v{SUM[1]}",
          f"s_lshl_b32 s{sT2}, s{sNB}, 1", f"s_add_u32 s{sT2}, s{sT2}, s{sCH}", f"s_lshl_b32 s{sT2}, s{sT2}, 8",
          f"s_add_u32 s{sT}, s{sT}, s{sT2}", f"s_add_u32 s{sT}, s{sT}, {STP}",
          f"buffer_store_dword v{SUM[0]}, v{T0}, s[{SWS}:{SWS+3}], s{sT} offen sc1")
    tail(k, kidx, sW)
    return k


def k4_down(kidx):
    name, K = "down_kernel", 3584
    D = OPT.get("dd", 2)
    N1 = OPT.get("n1", 25)
    N2 = 56 - 2 * N1
    STG, NS = 32768, D + 2
    k = Kern(name, 256, 512, STG * NS)
    SWS, ST_, SW_, SO = 4, 8, 12, 20
    sW, sTB, sNB, sN, sT, sT2, sRd, sWr, sTo, sWo, sTH, sCH, sRes, sDW, sKH, sX0, sX1 = range(28, 45)
    v = Alloc(1)
    L, G, TOK, T0, T1, vLin, bT, bW, aT, aW, vRow = [v() for _ in range(11)]
    F = [[dict(X=[v(4, 4) for _ in range(4)], W=[v(4, 4) for _ in range(4)]) for s in range(2)] for _ in range(2)]
    acc = [[v(4, 4) for i in range(4)] for t in range(4)]
    RES = [[v(4, 4) for b in range(2)] for i in range(2)]
    RCV = [[acc[2 * b][2 + i] for b in range(2)] for i in range(2)]
    k.vgpr = k.acc = (v.n + 7) // 8 * 8
    head(k, True)
    k(f"s_load_dwordx2 s[{SWS}:{SWS+1}], s[0:1], {A_WS}", f"s_load_dwordx2 s[{SO}:{SO+1}], s[0:1], {A_OUT}")
    k(f"v_lshrrev_b32 v{T1}, 6, v0", f"v_and_b32 v{L}, 63, v0", f"v_readfirstlane_b32 s{sW}, v{T1}", f"v_lshlrev_b32 v{vLin}, 4, v{L}")
    ids_8x4(k, sNB, sTB, sT)
    if OPT.get("dmap", 1):
        k(f"s_and_b32 s{sT}, s{sTB}, 7", f"s_lshl_b32 s{sT}, s{sT}, 1", f"s_bfe_u32 s{sT2}, s{sTB}, 0x10003",
          f"s_and_b32 s{sTB}, s{sTB}, 16", f"s_add_u32 s{sTB}, s{sTB}, s{sT}", f"s_add_u32 s{sTB}, s{sTB}, s{sT2}")
    k(f"s_cmp_lt_u32 s{sW}, 4", f"s_cbranch_scc1 L_{name}_comp")
    vOwn, vPar = bT, bW
    k(f"s_and_b32 s{sW}, s{sW}, 3", f"s_and_b32 s{sKH}, s{sTB}, 1",
      f"s_lshl_b32 s{sWr}, s{sW}, 11", f"s_add_u32 s{sDW}, s{sWr}, 8192",
      f"s_mul_i32 s{sTo}, s{sKH}, {N1*8192}", f"s_add_u32 s{sTo}, s{sTo}, s{sWr}", f"s_lshl_b32 s{sWo}, s{sTo}, 1",
      f"s_mul_i32 s{sT}, s{sKH}, {K*128}", f"v_add_u32 v{vOwn}, s{sT}, v{vLin}", f"s_sub_u32 s{sT}, {K*128}, s{sT}", f"v_add_u32 v{vPar}, s{sT}, v{vLin}",
      f"s_lshr_b32 s{sT}, s{sTB}, 1", f"s_mul_i32 s{sT}, s{sT}, {K*256}", f"s_add_u32 s{sT}, s{sT}, {AF}",
      f"s_mul_i32 s{sT2}, s{sNB}, {K*256}", f"s_add_u32 s{sT2}, s{sT2}, {WDF}")
    k("s_waitcnt lgkmcnt(0)", ws_shift(SWS))
    k(srd_from(ST_, SWS, f"s{sT}", K * 256), srd_from(SW_, SWS, f"s{sT2}", K * 256))

    def dma_stage(full):
        o = [f"s_mov_b32 m0, s{sWr}", "s_nop 0"]
        o += [f"buffer_load_dwordx4 v{vOwn}, s[{ST_}:{ST_+3}], s{sTo} offen offset:{1024*i} lds" for i in range(2)]
        if full:
            o += [f"s_add_u32 m0, s{sWr}, 24576", "s_nop 0"]
            o += [f"buffer_load_dwordx4 v{vPar}, s[{ST_}:{ST_+3}], s{sTo} offen offset:{1024*i} lds" for i in range(2)]
        o += [f"s_add_u32 m0, s{sWr}, s{sDW}", f"s_add_u32 s{sTo}, s{sTo}, 8192"]
        o += [f"buffer_load_dwordx4 v{vLin}, s[{SW_}:{SW_+3}], s{sWo} offen offset:{1024*i} lds" for i in range(4)]
        o += [f"s_add_u32 s{sWo}, s{sWo}, 16384", f"s_add_u32 s{sWr}, s{sWr}, {STG}", f"s_cmp_ge_u32 s{sWr}, {STG*NS}",
              f"s_cselect_b32 s{sT}, {STG*NS}, 0", f"s_sub_u32 s{sWr}, s{sWr}, s{sT}"]
        return o
    k(f"s_mov_b32 s{sN}, {N1}")
    k.label(f"L_{name}_ld")
    k(dma_stage(True))
    k(f"s_sub_u32 s{sN}, s{sN}, 1", f"s_cmp_lg_u32 s{sN}, 0")
    k(f"s_waitcnt vmcnt({8*D})", "s_barrier", f"s_cbranch_scc1 L_{name}_ld")
    k(f"s_lshl_b32 s{sTo}, s{sW}, 11", f"s_add_u32 s{sTo}, s{sTo}, {2*N1*8192}", f"s_lshl_b32 s{sWo}, s{sTo}, 1")
    cnt = lambda n: 8 if n < N1 else (6 if n < N1 + N2 else 0)
    for n in range(N1, N1 + N2 + D):
        if n < N1 + N2:
            k(dma_stage(False))
        k(f"s_waitcnt vmcnt({sum(cnt(m) for m in range(n-D+1, n+1))})", "s_barrier")
    k("s_endpgm")
    if OPT.get("epad", 1):
        k(island(jump=False))
    k.label(f"L_{name}_comp")
    k(f"s_and_b32 s{sTH}, s{sW}, 1", f"s_lshr_b32 s{sCH}, s{sW}, 1")
    k(f"v_lshrrev_b32 v{G}, 4, v{L}", f"v_and_b32 v{TOK}, 15, v{L}",
      f"v_lshlrev_b32 v{T0}, 11, v{TOK}", f"v_lshl_add_u32 v{T0}, v{G}, 4, v{T0}",
      f"s_lshl_b32 s{sN}, s{sTB}, 1", f"s_add_u32 s{sN}, s{sN}, s{sTH}", f"s_lshl_b32 s{sN}, s{sN}, 16",
      f"s_lshl_b32 s{sRes}, s{sNB}, 1", f"s_add_u32 s{sRes}, s{sRes}, s{sCH}", f"s_lshl_b32 s{sRd}, s{sRes}, 7",
      f"s_add_u32 s{sN}, s{sN}, s{sRd}", f"v_add_u32 v{vRow}, s{sN}, v{T0}")
    k(f"s_lshl_b32 s{sRes}, s{sRes}, 13", f"s_lshl_b32 s{sN}, s{sTB}, 17", f"s_add_u32 s{sRes}, s{sRes}, s{sN}",
      f"s_lshl_b32 s{sN}, s{sTH}, 11", f"s_add_u32 s{sRes}, s{sRes}, s{sN}",
      f"s_xor_b32 s{sX0}, s{sRes}, {1<<17}", f"s_add_u32 s{sX0}, s{sX0}, {XB}", f"s_add_u32 s{sX1}, s{sX0}, 4096")
    k(f"s_lshl_b32 s{sT}, s{sTH}, 11", f"v_add_u32 v{bT}, s{sT}, v{vLin}",
      f"s_lshl_b32 s{sT}, s{sCH}, 12", f"s_add_u32 s{sT}, s{sT}, 8192", f"v_add_u32 v{bW}, s{sT}, v{vLin}",
      f"v_mov_b32 v{aT}, v{bT}", f"v_mov_b32 v{aW}, v{bW}")
    k("s_waitcnt lgkmcnt(0)", ws_shift(SWS))
    k(srd_tail(SWS, WS_SZ), srd_tail(SO, 4 * MB))
    for _ in range(D):
        k("s_barrier")
    for i in range(acc[0][0], acc[0][0] + 64, 2):
        k(f"v_mov_b64 {vr(i,2)}, 0")

    def reads(f, full):
        o = []
        for s in range(2):
            o += [f"ds_read_b128 {vr(F[f][s]['X'][i],4)}, v{aT} offset:{(i>>1)*24576+s*4096+(i&1)*1024}" for i in range(4 if full else 2)]
            o += [f"ds_read_b128 {vr(F[f][s]['W'][t],4)}, v{aW} offset:{s*8192+t*1024}" for t in range(4)]
        return o

    def mfmas(f, tiles):
        return [m16(vr(acc[t][i], 4), vr(F[f][s]["W"][t], 4), vr(F[f][s]["X"][i], 4))
                for t in range(4) for i in (tiles if t % 2 == 0 else tiles[::-1]) for s in range(2)]
    adv = [[f"s_add_u32 s{sRd}, s{sRd}, {STG}", f"s_cmp_eq_u32 s{sRd}, {STG*NS}"], [f"s_cselect_b32 s{sRd}, 0, s{sRd}"],
           [f"v_add_u32 v{aT}, s{sRd}, v{bT}", f"v_add_u32 v{aW}, s{sRd}, v{bW}"]]
    ALL, OWN, PAR = [0, 1, 2, 3], [0, 1], [2, 3]
    k(f"s_mov_b32 s{sRd}, 0", f"s_mov_b32 s{sN}, {(N1-1)//2}")
    k("s_barrier")
    mid_stamp(k, 0)
    k(reads(0, True), adv, "s_waitcnt lgkmcnt(0)")

    def step(f, extra):
        k("s_barrier")
        m = weave(mfmas(f, ALL), reads(1 - f, True), 0, 18)
        k(weave(m, adv + extra, len(m) - 8, len(m) - 1), "s_waitcnt lgkmcnt(0)")
    k(".p2align 6")
    k.label(f"L_{name}_loop")
    step(0, [])
    step(1, [[f"s_sub_u32 s{sN}, s{sN}, 1", f"s_cmp_lg_u32 s{sN}, 0"]])
    k(f"s_cbranch_scc1 L_{name}_loop")
    f = 0
    if (N1 - 1) % 2:
        step(0, [])
        f = 1
    if OPT.get("p1"):
        mid_stamp(k, 1)
    snd = []
    for b in range(2):
        for i in range(2):
            o = F[1 - f][b]["X"][2 + i]
            for jt in range(2):
                a = acc[2 * b + jt][2 + i]
                snd += [[f"v_cvt_pk_bf16_f32 v{o+2*jt}, v{a}, v{a+1}", f"v_cvt_pk_bf16_f32 v{o+2*jt+1}, v{a+2}, v{a+3}"]]
            snd += [[f"v_min_u32 v{o+r}, -2, v{o+r}" for r in (0, 1)], [f"v_min_u32 v{o+r}, -2, v{o+r}" for r in (2, 3)] +
                    [f"buffer_store_dwordx4 {vr(o,4)}, v{vLin}, s[{SWS}:{SWS+3}], s{[sX0,sX1][b]} offen offset:{1024*i} sc1"]]
    k("s_barrier")
    k(weave(weave(mfmas(f, PAR), reads(1 - f, False), 0, 10), adv, 22, 27), weave(mfmas(f, OWN), snd, 0, 16), "s_waitcnt lgkmcnt(0)")
    f = 1 - f
    res = [f"buffer_load_dwordx4 {vr(RES[i][b],4)}, v{vLin}, s[{SWS}:{SWS+3}], s{[sT,sT2][b]} offen offset:{1024*i}" for i in range(2) for b in range(2)]
    rcv = [f"buffer_load_dwordx4 {vr(RCV[i][b],4)}, v{vLin}, s[{SWS}:{SWS+3}], s{[sX0,sX1][b]} offen offset:{1024*i} sc1" for i in range(2) for b in range(2)]
    rstep = N1 + N2 - OPT.get("rl", 2)
    for n in range(N1 + 1, N1 + N2):
        k("s_barrier")
        m = weave(mfmas(f, OWN), reads(1 - f, False), 0, 9)
        ex = list(adv) if n < N1 + N2 - 1 else []
        if n == N1 + 1:
            ex += [[f"s_add_u32 s{sT}, s{sRes}, {HF}", f"s_add_u32 s{sT2}, s{sRes}, {HF+4096}",
                    f"s_add_u32 s{sX0}, s{sRes}, {XB}", f"s_add_u32 s{sX1}, s{sRes}, {XB+4096}"], res]
        if n == rstep:
            ex += [rcv]
        k(weave(m, ex, len(m) - 6, len(m)) if ex else m, island() if (n == N1 + 2 and OPT.get("epad", 1)) else None, "s_waitcnt lgkmcnt(0)")
        f = 1 - f
    if rstep >= N1 + N2:
        k(rcv)
    k(mfmas(f, OWN))
    if not OPT.get("p1"):
        mid_stamp(k, 1)
    k(f"s_mov_b32 s{sN}, {1<<20}")
    k.label(f"L_{name}_chk")
    k("s_waitcnt vmcnt(0)")
    rr = [RCV[i][b] + r for i in range(2) for b in range(2) for r in range(4)]
    k(f"v_max3_u32 v{T0}, v{rr[0]}, v{rr[1]}, v{rr[2]}", f"v_max3_u32 v{T1}, v{rr[3]}, v{rr[4]}, v{rr[5]}")
    for j in range(6, 16, 2):
        t = [T0, T1][(j // 2) & 1]
        k(f"v_max3_u32 v{t}, v{rr[j]}, v{rr[j+1]}, v{t}")
    k(f"v_max_u32 v{T0}, v{T0}, v{T1}", f"v_cmp_eq_u32 vcc, -1, v{T0}", f"s_sub_u32 s{sN}, s{sN}, 1", f"s_cbranch_scc1 L_{name}_out",
      f"s_cbranch_vccz L_{name}_out", "s_sleep 2", rcv, f"s_branch L_{name}_chk")
    k.label(f"L_{name}_out")
    k(f"s_mov_b32 s{sN}, 32768")
    U = F[0][0]["W"][0]
    for i in range(2):
        for b in range(2):
            o = F[0][1]["W"][2 * i + b]
            for jt in range(2):
                a = acc[2 * b + jt][i]
                for h in range(2):
                    r, q = RES[i][b] + 2 * jt + h, RCV[i][b] + 2 * jt + h
                    k(f"v_lshlrev_b32 v{U}, 16, v{q}", f"v_and_b32 v{U+1}, 0xffff0000, v{q}",
                      f"v_lshlrev_b32 v{U+2}, 16, v{r}", f"v_and_b32 v{U+3}, 0xffff0000, v{r}",
                      f"v_pk_add_f32 {vr(a+2*h,2)}, {vr(a+2*h,2)}, {vr(U,2)}", f"v_pk_add_f32 {vr(a+2*h,2)}, {vr(a+2*h,2)}, {vr(U+2,2)}",
                      f"v_cvt_pk_bf16_f32 v{o+2*jt+h}, v{a+2*h}, v{a+2*h+1}")
            k(f"buffer_store_dwordx4 {vr(o,4)}, v{vRow}, s[{SO}:{SO+3}], {['0', f's{sN}'][i]} offen offset:{64*b} sc1")
    tail(k, kidx, sW)
    return k


def k4_down4(kidx):
    name, K = "down_kernel", 3584
    D = OPT.get("dd", 2)
    N1 = OPT.get("n1", 25)
    N2 = 56 - 2 * N1
    STG, NS = 24576, D + 2
    k = Kern(name, 256, 512, STG * NS)
    SWS, SO = 4, 20
    sW, sTB, sNB, sN, sT, sT2, sRd, sWr, sTo, sWo, sTH, sCH, sRes, sDW, sKQ = range(28, 43)
    sX = [[44 + 2 * r + b for b in range(2)] for r in range(4)]
    v = Alloc(1)
    L, G, TOK, T0, T1, vLin, bT, bW, aT, aW, vRow = [v() for _ in range(11)]
    F = [[dict(X=[v(4, 4) for _ in range(2)], W=[v(4, 4) for _ in range(4)]) for s in range(2)] for _ in range(2)]
    acc = [[[v(4, 4) for i in range(2)] for t in range(4)] for r in range(4)]
    RES = [[v(4, 4) for b in range(2)] for i in range(2)]
    SND = lambda r, i, b: acc[r][2 * b][i]
    RCV = lambda r, i, b: acc[r][2 * b + 1][i] if r else RES[i][b]
    k.vgpr = k.acc = (v.n + 7) // 8 * 8
    head(k, True)
    k(f"s_load_dwordx2 s[{SWS}:{SWS+1}], s[0:1], {A_WS}", f"s_load_dwordx2 s[{SO}:{SO+1}], s[0:1], {A_OUT}")
    k(f"v_lshrrev_b32 v{T1}, 6, v0", f"v_and_b32 v{L}, 63, v0", f"v_readfirstlane_b32 s{sW}, v{T1}", f"v_lshlrev_b32 v{vLin}, 4, v{L}")
    k(f"s_bfe_u32 s{sNB}, s2, 0x20003", f"s_lshl_b32 s{sNB}, s{sNB}, 1", f"s_and_b32 s{sT}, s2, 1", f"s_add_u32 s{sNB}, s{sNB}, s{sT}",
      f"s_lshr_b32 s{sTB}, s2, 5", f"s_lshl_b32 s{sTB}, s{sTB}, 1", f"s_bfe_u32 s{sT}, s2, 0x10001", f"s_add_u32 s{sTB}, s{sTB}, s{sT}",
      f"s_and_b32 s{sT}, s2, 4", f"s_lshl_b32 s{sT}, s{sT}, 2", f"s_add_u32 s{sTB}, s{sTB}, s{sT}",
      f"s_and_b32 s{sTH}, s{sW}, 1", f"s_bfe_u32 s{sCH}, s{sW}, 0x10001")
    k(f"s_cmp_lt_u32 s{sW}, 4", f"s_cbranch_scc1 L_{name}_comp")
    k(f"s_and_b32 s{sW}, s{sW}, 3", f"s_and_b32 s{sKQ}, s2, 3",
      f"s_lshl_b32 s{sWr}, s{sW}, 11", f"s_add_u32 s{sDW}, s{sWr}, 8192",
      f"s_mul_i32 s{sT2}, s{sKQ}, {N1*4096}", f"s_lshl_b32 s{sT}, s{sTH}, 11", f"s_add_u32 s{sT2}, s{sT2}, s{sT}",
      f"s_xor_b32 s{sT}, s{sTB}, s{sCH}", f"s_mul_i32 s{sTo}, s{sT}, {K*128}", f"s_add_u32 s{sTo}, s{sTo}, s{sT2}", f"s_add_u32 s{sTo}, s{sTo}, {AF}",
      f"s_xor_b32 s{sT}, s{sNB}, s{sCH}", f"s_mul_i32 s{sWo}, s{sT}, {K*128}", f"s_add_u32 s{sWo}, s{sWo}, s{sT2}", f"s_lshl_b32 s{sWo}, s{sWo}, 1",
      f"s_add_u32 s{sWo}, s{sWo}, {WDF}")
    k("s_waitcnt lgkmcnt(0)", ws_shift(SWS), srd_tail(SWS, WS_SZ))

    def dma_stage(step):
        o = [f"s_mov_b32 m0, s{sWr}", "s_nop 0"]
        o += [f"buffer_load_dwordx4 v{vLin}, s[{SWS}:{SWS+3}], s{sTo} offen offset:{1024*i} lds" for i in range(2)]
        o += [f"s_add_u32 m0, s{sWr}, s{sDW}", f"s_add_u32 s{sTo}, s{sTo}, {step}"]
        o += [f"buffer_load_dwordx4 v{vLin}, s[{SWS}:{SWS+3}], s{sWo} offen offset:{1024*i} lds" for i in range(4)]
        o += [f"s_add_u32 s{sWo}, s{sWo}, {2*step}", f"s_add_u32 s{sWr}, s{sWr}, {STG}", f"s_cmp_ge_u32 s{sWr}, {STG*NS}",
              f"s_cselect_b32 s{sT}, {STG*NS}, 0", f"s_sub_u32 s{sWr}, s{sWr}, s{sT}",
              f"s_sub_u32 s{sN}, s{sN}, 1", f"s_cmp_lg_u32 s{sN}, 0", f"s_waitcnt vmcnt({6*D})", "s_barrier"]
        return o
    k(f"s_mov_b32 s{sN}, {N1}")
    k.label(f"L_{name}_ld")
    k(dma_stage(4096), f"s_cbranch_scc1 L_{name}_ld")
    k(f"s_lshl_b32 s{sT2}, s{sW}, 11", f"s_add_u32 s{sT2}, s{sT2}, {4*N1*4096}",
      f"s_mul_i32 s{sTo}, s{sTB}, {K*128}", f"s_add_u32 s{sTo}, s{sTo}, s{sT2}", f"s_add_u32 s{sTo}, s{sTo}, {AF}",
      f"s_mul_i32 s{sWo}, s{sNB}, {K*128}", f"s_add_u32 s{sWo}, s{sWo}, s{sT2}", f"s_lshl_b32 s{sWo}, s{sWo}, 1",
      f"s_add_u32 s{sWo}, s{sWo}, {WDF}", f"s_mov_b32 s{sN}, {N2}")
    k.label(f"L_{name}_ld2")
    k(dma_stage(8192), f"s_cbranch_scc1 L_{name}_ld2")
    for d in range(D - 1, -1, -1):
        k(f"s_waitcnt vmcnt({6*d})", "s_barrier")
    k("s_endpgm")
    k(island(jump=False))
    k.label(f"L_{name}_comp")
    k(f"v_lshrrev_b32 v{G}, 4, v{L}", f"v_and_b32 v{TOK}, 15, v{L}",
      f"v_lshlrev_b32 v{T0}, 11, v{TOK}", f"v_lshl_add_u32 v{T0}, v{G}, 4, v{T0}",
      f"s_lshl_b32 s{sN}, s{sTB}, 1", f"s_add_u32 s{sN}, s{sN}, s{sTH}", f"s_lshl_b32 s{sN}, s{sN}, 16",
      f"s_lshl_b32 s{sRes}, s{sNB}, 1", f"s_add_u32 s{sRes}, s{sRes}, s{sCH}", f"s_lshl_b32 s{sRd}, s{sRes}, 7",
      f"s_add_u32 s{sN}, s{sN}, s{sRd}", f"v_add_u32 v{vRow}, s{sN}, v{T0}")
    for _ in range(D):
        k("s_barrier")
    k(f"s_lshl_b32 s{sRes}, s{sRes}, 13", f"s_lshl_b32 s{sN}, s{sTB}, 17", f"s_add_u32 s{sRes}, s{sRes}, s{sN}",
      f"s_lshl_b32 s{sN}, s{sTH}, 11", f"s_add_u32 s{sRes}, s{sRes}, s{sN}")
    for r in range(1, 4):
        k(f"s_xor_b32 s{sT}, s{sRes}, {((r&1)<<17)|((r>>1)<<14)}", f"s_add_u32 s{sX[r][0]}, s{sT}, {XB4[r]}", f"s_add_u32 s{sX[r][1]}, s{sT}, {XB4[r]+4096}")
    k(f"s_lshl_b32 s{sT}, s{sTH}, 11", f"v_add_u32 v{bT}, s{sT}, v{vLin}",
      f"s_lshl_b32 s{sT}, s{sCH}, 12", f"s_add_u32 s{sT}, s{sT}, 8192", f"v_add_u32 v{bW}, s{sT}, v{vLin}",
      f"v_mov_b32 v{aT}, v{bT}", f"v_mov_b32 v{aW}, v{bW}")
    k("s_waitcnt lgkmcnt(0)", ws_shift(SWS))
    k(srd_tail(SWS, WS_SZ), srd_tail(SO, 4 * MB))

    def reads(f):
        o = []
        for s in range(2):
            o += [f"ds_read_b128 {vr(F[f][s]['X'][i],4)}, v{aT} offset:{s*4096+i*1024}" for i in range(2)]
            o += [f"ds_read_b128 {vr(F[f][s]['W'][t],4)}, v{aW} offset:{s*8192+t*1024}" for t in range(4)]
        return o

    def mf1(f, c=None):
        o = []
        for sw in range(2):
            for t in range(4):
                xs = [(0, 0), (0, 1), (1, 0), (1, 1)]
                for sx, i in (xs if t % 2 == 0 else xs[::-1]):
                    o.append(m16(vr(acc[2 * sw + sx][t][i], 4), vr(F[f][sw]["W"][t], 4), vr(F[f][sx]["X"][i], 4), c))
        return o

    def mf1r(f, r):
        return [m16(vr(acc[r][t][i], 4), vr(F[f][r >> 1]["W"][t], 4), vr(F[f][r & 1]["X"][i], 4)) for t in range(4) for i in ((0, 1) if t % 2 == 0 else (1, 0))]

    def mf2(f):
        return [m16(vr(acc[0][t][i], 4), vr(F[f][s]["W"][t], 4), vr(F[f][s]["X"][i], 4))
                for t in range(4) for i in ((0, 1) if t % 2 == 0 else (1, 0)) for s in range(2)]
    adv = [[f"s_add_u32 s{sRd}, s{sRd}, {STG}", f"s_cmp_eq_u32 s{sRd}, {STG*NS}"], [f"s_cselect_b32 s{sRd}, 0, s{sRd}"],
           [f"v_add_u32 v{aT}, s{sRd}, v{bT}", f"v_add_u32 v{aW}, s{sRd}, v{bW}"]]
    k(f"s_mov_b32 s{sRd}, 0", f"s_mov_b32 s{sN}, {(N1-2)//2}")
    k("s_barrier")
    mid_stamp(k, 0)
    k(reads(0), adv, "s_waitcnt lgkmcnt(0)")

    def step(f, extra, c=None):
        k("s_barrier")
        m = weave(mf1(f, c), reads(1 - f), 0, 14)
        k(weave(m, adv + extra, len(m) - 10, len(m) - 2), "s_waitcnt lgkmcnt(0)")
    step(0, [], "0")
    k(".p2align 6")
    k.label(f"L_{name}_loop")
    step(1, [])
    step(0, [[f"s_sub_u32 s{sN}, s{sN}, 1", f"s_cmp_lg_u32 s{sN}, 0"]])
    k(f"s_cbranch_scc1 L_{name}_loop")
    f = 1
    if (N1 - 2) % 2:
        step(1, [])
        f = 0

    def snd(r):
        o = []
        for b in range(2):
            for i in range(2):
                d, a = SND(r, i, b), acc[r][2 * b + 1][i]
                o += [[f"v_cvt_pk_bf16_f32 v{d}, v{d}, v{d+1}", f"v_cvt_pk_bf16_f32 v{d+1}, v{d+2}, v{d+3}"],
                      [f"v_cvt_pk_bf16_f32 v{d+2}, v{a}, v{a+1}", f"v_cvt_pk_bf16_f32 v{d+3}, v{a+2}, v{a+3}"],
                      [f"v_min_u32 v{d+q}, -2, v{d+q}" for q in (0, 1)], [f"v_min_u32 v{d+q}, -2, v{d+q}" for q in (2, 3)] +
                      [f"buffer_store_dwordx4 {vr(d,4)}, v{vLin}, s[{SWS}:{SWS+3}], s{sX[r][b]} offen offset:{1024*i} sc1"]]
        return o
    if OPT.get("p1"):
        mid_stamp(k, 1)
    k("s_barrier")
    k(weave(weave(mf1r(f, 3) + mf1r(f, 2), reads(1 - f), 0, 10), adv, 22, 27), weave(mf1r(f, 1) + mf1r(f, 0), snd(3), 0, 16), "s_waitcnt lgkmcnt(0)")
    k(island())
    f = 1 - f
    rcv = lambda r: [f"buffer_load_dwordx4 {vr(RCV(r,i,b),4)}, v{vLin}, s[{SWS}:{SWS+3}], s{sX[r][b]} offen offset:{1024*i}{' sc1' if r else ''}"
                     for i in range(2) for b in range(2)]
    radr = [[f"s_add_u32 s{sX[r][b]}, s{sRes}, {XB4[r]+4096*b}" for b in range(2)] for r in range(4)]
    rl = OPT.get("rl", 2)
    for n in range(1, N2):
        k("s_barrier")
        m = weave(mf2(f), reads(1 - f), 0, 9)
        ex = list(adv) if n < N2 - 1 else []
        if n == 1:
            k(weave(m, ex, len(m) - 6, len(m) - 2), snd(2), snd(1), radr, rcv(0))
        else:
            if n == N2 - rl:
                ex += [rcv(3), rcv(2), rcv(1)]
            k(weave(m, ex, len(m) - 6, len(m)) if ex else m)
        k("s_waitcnt lgkmcnt(0)")
        f = 1 - f
    if rl == 0:
        k(rcv(3), rcv(2), rcv(1))
    k(mf2(f))
    if not OPT.get("p1"):
        mid_stamp(k, 1)
    U = F[0][0]["W"][0]

    def add(r):
        for i in range(2):
            for b in range(2):
                for jt in range(2):
                    a, q = acc[0][2 * b + jt][i], RCV(r, i, b) + 2 * jt
                    k(f"v_lshlrev_b32 v{U}, 16, v{q}", f"v_and_b32 v{U+1}, 0xffff0000, v{q}",
                      f"v_lshlrev_b32 v{U+2}, 16, v{q+1}", f"v_and_b32 v{U+3}, 0xffff0000, v{q+1}",
                      f"v_pk_add_f32 {vr(a,2)}, {vr(a,2)}, {vr(U,2)}", f"v_pk_add_f32 {vr(a+2,2)}, {vr(a+2,2)}, {vr(U+2,2)}")
                if r == 1:
                    o = F[0][1]["W"][2 * i + b]
                    for jt in range(2):
                        a = acc[0][2 * b + jt][i]
                        k(f"v_cvt_pk_bf16_f32 v{o+2*jt}, v{a}, v{a+1}", f"v_cvt_pk_bf16_f32 v{o+2*jt+1}, v{a+2}, v{a+3}")
                    k(f"buffer_store_dwordx4 {vr(o,4)}, v{vRow}, s[{SO}:{SO+3}], {['0', f's{sT2}'][i]} offen offset:{64*b} sc1")
    k(f"s_mov_b32 s{sN}, {1<<20}", f"s_mov_b32 s{sT2}, 32768", "s_waitcnt vmcnt(12)", "s_nop 1")
    add(0)
    for r in (3, 2, 1):
        k(f"s_waitcnt vmcnt({4*(r-1)})")
        k.label(f"L_{name}_chk{r}")
        rr = [RCV(r, i, b) + q for i in range(2) for b in range(2) for q in range(4)]
        k(f"v_max3_u32 v{T0}, v{rr[0]}, v{rr[1]}, v{rr[2]}", f"v_max3_u32 v{T1}, v{rr[3]}, v{rr[4]}, v{rr[5]}")
        for j in range(6, 16, 2):
            t = [T0, T1][(j // 2) & 1]
            k(f"v_max3_u32 v{t}, v{rr[j]}, v{rr[j+1]}, v{t}")
        k(f"v_max_u32 v{T0}, v{T0}, v{T1}", f"v_cmp_eq_u32 vcc, -1, v{T0}", f"s_sub_u32 s{sN}, s{sN}, 1", f"s_cbranch_scc1 L_{name}_ok{r}",
          f"s_cbranch_vccz L_{name}_ok{r}", [rcv(q) for q in range(r, 0, -1)], "s_waitcnt vmcnt(0)", f"s_branch L_{name}_chk{r}")
        k.label(f"L_{name}_ok{r}")
        add(r)
    tail(k, kidx, sW)
    return k


class Op:
    def __init__(self, text, kind="v", needs=(), bar=False):
        self.text, self.kind, self.needs, self.bar = text, kind, list(needs), bar
        self.seq = None

    @property
    def cost(self):
        return 8 if self.kind == "t" else 4


def emit_stream(k, ops, nl=0, nv=0):
    cnt = {"lds": nl, "vm": nv}
    done = {"lds": 0, "vm": 0}
    for o in ops:
        if o.kind in cnt:
            cnt[o.kind] += 1
            o.seq = cnt[o.kind]
            k(o.text)
        elif o.kind == "wait":
            parts = []
            for kind, nm, mx in (("vm", "vmcnt", 63), ("lds", "lgkmcnt", 15)):
                need = [x.seq for x in o.needs if x.kind == kind]
                assert None not in need, "wait on an op that was not issued yet"
                tgt = cnt[kind] if (o.bar and kind == "lds") else max(need, default=0)
                if tgt > done[kind]:
                    n = cnt[kind] - tgt
                    assert n <= mx or kind == "vm"
                    parts.append(f"{nm}({min(n, mx)})")
                    done[kind] = tgt
            if parts:
                k("s_waitcnt " + " ".join(parts))
            if o.bar:
                k("s_barrier")
        else:
            k(o.text)
    return cnt


def k3_gateup():
    STG, NS = 28672, 5
    TBL = NS * STG
    k = Kern("ffn_kernel", 256, 256, 163840)
    SWS, ST_, SW_, SO = 4, 8, 12, 20
    slot = lambda n: (n + 3) % NS
    sW, sMB, sFB, sN, sT, sT2, sTo, sWo, sWr, sTB, sA0, sA1, sSt, sCp = range(28, 42)
    v = Alloc(1)
    vLin, vR1, vR2, vCs, vSt, vTid, vOut = [v() for _ in range(7)]
    PA = [v(2, 2) for _ in range(4)]
    SD = [v(2, 2) for _ in range(2)]
    TA, TB_, TC = v(4, 4), v(4, 4), v(4, 4)
    assert v.n <= 32, v.n
    acc = [[32 + (a * 4 + b) * 4 for b in range(4)] for a in range(14)]
    TK = [[[32 * n + 16 * s + 4 * b for b in range(4)] for s in range(2)] for n in range(NS)]
    WF = [[160 + 8 * n + 4 * s for s in range(2)] for n in range(4)]
    SP, CP = 192, 224
    k.vgpr, k.acc = 512, 256
    head(k, True)
    k(f"s_load_dwordx2 s[{SWS}:{SWS+1}], s[0:1], {A_WS}", f"s_load_dwordx2 s[{SO}:{SO+1}], s[0:1], {A_OUT}")
    k(f"v_lshrrev_b32 v{TA}, 6, v0", f"v_and_b32 v{TA+1}, 63, v0", f"v_readfirstlane_b32 s{sW}, v{TA}", f"v_lshlrev_b32 v{vLin}, 4, v{TA+1}")
    k(f"s_lshr_b32 s{sT}, s2, 3", f"s_lshr_b32 s{sMB}, s{sT}, 2", f"s_and_b32 s{sT}, s{sT}, 3",
      f"s_and_b32 s{sFB}, s2, 7", f"s_lshl_b32 s{sFB}, s{sFB}, 2", f"s_add_u32 s{sFB}, s{sFB}, s{sT}",
      f"s_lshl_b32 s{sTB}, s{sMB}, 2", f"s_add_u32 s{sTB}, s{sTB}, s{sW}",
      f"s_lshl_b32 s{sT}, s{sTB}, 17", f"s_add_u32 s{sT}, s{sT}, {HF}",
      f"s_mul_i32 s{sT2}, s{sFB}, {32*14*1024}", f"s_add_u32 s{sT2}, s{sT2}, {WGU}",
      f"s_mul_i32 s{sWo}, s{sW}, 7168", f"s_mov_b32 s{sWr}, s{sWo}", f"s_mov_b32 s{sTo}, 0")
    k("s_waitcnt lgkmcnt(0)", ws_shift(SWS))
    k(srd_from(ST_, SWS, f"s{sT}", 131072), srd_from(SW_, SWS, f"s{sT2}", 32 * 14 * 1024))

    def vm_stage(n):
        o = []
        for i in range(7):
            pre, post = [], []
            if i % 4 == 0:
                pre = [f"s_add_u32 m0, s{sWr}, {slot(n)*STG+1024*i}"]
            if i == 3:
                post = [f"s_add_u32 s{sWo}, s{sWo}, 4096"]
            if i == 6:
                post = [f"s_add_u32 s{sWo}, s{sWo}, {STG-4096}"]
            o.append((pre, Op(f"buffer_load_dwordx4 v{vLin}, s[{SW_}:{SW_+3}], s{sWo} offen offset:{1024*(i%4)} lds", "vm"), post, n))
        for s in range(2):
            for b in range(4):
                post = [f"s_add_u32 s{sTo}, s{sTo}, 4096"] if b == 3 else []
                o.append(([], Op(f"buffer_load_dwordx4 {ar(TK[slot(n)][s][b],4)}, v{vLin}, s[{ST_}:{ST_+3}], s{sTo} offen offset:{1024*b}", "vm"), post, n))
        return o
    VM = [vm_stage(n) for n in range(16)]
    HALF = OPT.get("k3half", 2)
    for n in range(HALF):
        wl = [([f"s_add_u32 m0, s{sN}, {(slot(n)-n)*STG}"], Op(f"buffer_load_dwordx4 v{vLin}, s[{SW_}:{SW_+3}], s{sN} offen lds", "vm"),
               [f"s_add_u32 s{sN}, s{sN}, 4096"], n) for i in range(7)]
        VM[n] = VM[n][7:11] + wl[:4] + VM[n][11:15] + wl[4:]
    if HALF:
        k(f"s_lshl_b32 s{sN}, s{sW}, 10", f"s_add_u32 s{sWo}, s{sWo}, {HALF*STG}")
    stat_ld = [([], Op(f"buffer_load_dwordx4 {ar(SP+4*i,4)}, v{vLin}, s[{SWS}:{SWS+3}], s{sSt} offen offset:{1024*(i%4)}", "vm"),
                [f"s_add_u32 s{sSt}, s{sSt}, 4096"] if i == 3 else [], None) for i in range(8)]
    cs_ld = [([], Op(f"buffer_load_dword {ar(CP+p)}, v{vTid}, s[{SWS}:{SWS+3}], s{sCp} offen", "vm"),
              [f"s_add_u32 s{sCp}, s{sCp}, {32*896}"], None) for p in range(8)]
    pro = []
    for i, (pre, ld, post, _) in enumerate(VM[0] if HALF else VM[0] + VM[1]):
        pro += [Op(x, "s") for x in pre] + ([Op("s_nop 0", "s")] if pre else []) + [ld] + [Op(x, "s") for x in post]
        if i == (7 if HALF else 14):
            cut = len(pro)
            pro.append(Op("s_barrier", "s"))
    pro, pro2 = pro[:cut], pro[cut:]
    misc = srd_tail(SWS, WS_SZ) + [
        f"s_lshl_b32 s{sSt}, s{sTB}, 13", f"s_add_u32 s{sSt}, s{sSt}, {STP}",
        f"s_mul_i32 s{sCp}, s{sFB}, 896", f"s_add_u32 s{sCp}, s{sCp}, {CSP}",
        f"v_add_u32 v{vR1}, {2*STG}, v{vLin}", f"v_add_u32 v{vR2}, {4*STG}, v{vLin}",
        f"v_lshlrev_b32 v{vTid}, 2, v0",
        f"v_lshrrev_b32 v{TA}, 4, v{TA+1}", f"v_lshlrev_b32 v{vCs}, 4, v{TA}", f"v_add_u32 v{vCs}, {TBL}, v{vCs}",
        f"v_and_b32 v{TA+2}, 1, v{TA}", f"v_lshlrev_b32 v{TA+2}, 10, v{TA+2}", f"v_lshrrev_b32 v{TA}, 1, v{TA}",
        f"v_lshl_add_u32 v{TA+2}, v{TA}, 8, v{TA+2}", f"v_and_b32 v{TA+1}, 15, v{TA+1}", f"v_lshl_add_u32 v{vOut}, v{TA+1}, 4, v{TA+2}",
        f"s_mul_i32 s{sT}, s{sTB}, {112*4096}", f"s_add_u32 s{sT}, s{sT}, {AF}", f"s_and_b32 s{sT2}, s{sFB}, 1", f"s_lshl_b32 s{sT2}, s{sT2}, 9",
        f"s_add_u32 s{sT}, s{sT}, s{sT2}", f"s_lshr_b32 s{sT2}, s{sFB}, 1", f"s_lshl_b32 s{sT2}, s{sT2}, 12", f"s_add_u32 s{sT}, s{sT}, s{sT2}",
        f"s_add_u32 s{sA1}, s{sT}, {96*4096}", f"s_lshr_b32 s{sT2}, s{sFB}, 4", f"s_mul_i32 s{sT2}, s{sT2}, {40*4096}", f"s_add_u32 s{sA0}, s{sT}, s{sT2}"]
    pro += [Op(x, "s") for x in misc]
    if OPT.get("k3pf", 1):
        pro += [Op(x, "s") for x in ["s_getpc_b64 s[16:17]", f"s_lshr_b32 s{sT}, s2, 3", f"s_lshl_b32 s{sT}, s{sT}, 10",
                                     f"v_add_u32 v{TA}, s{sT}, v{vTid}", f"v_min_u32 v{TA}, L_code_end-L_k3_pf-4, v{TA}", "L_k3_pf:"]]
        pro.append(Op(f"global_load_dword v{TC}, v{TA}, s[16:17]", "vm"))

    if OPT.get("isl", 1):
        pro.append(Op(island(), "s"))
    seg0 = len(pro)
    pro += pro2
    order = [a for p in range(7) for a in (p, p + 7)]
    S0 = 12
    seq = [(n, a) for n in range(S0) for a in order]
    seq += [(n, a) for p in range(7) for n in range(S0, 16) for a in (p, p + 7)]
    NT_ = len(seq)
    mf, fixed = [], [[] for _ in range(8 * NT_)]
    RD = []
    for gt, (n, a) in enumerate(seq):
        sl = slot(n)
        fr = [(a, 0), (a, 1)] if n >= HALF else [(gt % 7, (gt // 7) & 1), (gt % 7 + 7, (gt // 7) & 1)]
        RD.append([Op(f"ds_read_b128 {ar(WF[gt%4][e],4)}, v{[vLin,vR1,vR2][sl>>1]} offset:{(sl&1)*STG+s*14336+t*1024}", "lds") for e, (t, s) in enumerate(fr)])
        bs = range(4) if gt % 2 == 0 else range(3, -1, -1)
        for b in bs:
            for e, (t, s) in enumerate(fr):
                mf.append(Op(m16(vr(acc[t][b], 4), ar(WF[gt % 4][e], 4), ar(TK[sl][s][b], 4), "0" if (n == 0 and s == 0) else None), "m"))
    first = {}
    for gt, (n, a) in enumerate(seq):
        first.setdefault(n, gt)
    barpos = {}
    for gt in range(NT_):
        if gt + 2 < NT_:
            fixed[8 * gt].append(RD[gt + 2][0]); fixed[8 * gt + 1].append(RD[gt + 2][1])
        newst = [n for n in range(1, 16) if first[n] == gt + 3]
        if gt % 14 == 4 and gt // 14 < HALF:
            fixed[8 * gt + 7].append(Op("", "wait", [x[1] for x in VM[gt // 14]], bar=True))
        elif newst:
            fixed[8 * gt + 7].append(Op("", "wait", [x[1] for x in VM[newst[0]][:8 if newst[0] < HALF else 15]], bar=True))
            barpos[newst[0]] = 8 * gt + 7
        elif gt + 1 < NT_:
            fixed[8 * gt + 7].append(Op("", "wait", RD[gt + 1]))
    flat = (VM[1] if HALF else []) + VM[2] + VM[3] + VM[4] + stat_ld + cs_ld + [x for n in range(5, 16) for x in VM[n]]
    nfast = OPT.get("k3fast", 0) if HALF else 0
    slots = [8 * gt + o for gt in range(S0 * 14) for o in (3, 6)]
    nsl = len(slots) - 2 * OPT.get("k3lead", 8)
    vpos = {}
    si = -1
    for i, (pre, ld, post, n) in enumerate(flat):
        si = max(si + 1, nfast + ((i - nfast) * (nsl - nfast)) // (len(flat) - nfast) if i >= nfast else 0)
        if n is not None and n >= NS:
            lim = barpos[n - NS + 1] + 2 if "lds" in ld.text else 8 * 14 * (n - NS + 1)
            while slots[si] < lim:
                si += 1
        p = slots[si]
        fixed[p - 1] += [Op(x, "s") for x in pre]
        fixed[p] += [ld] + [Op(x, "s") for x in post]
        vpos[id(ld)] = p
    used = [sum(o.cost for o in f if not (o.kind == "wait" and False)) for f in fixed]
    flo = [[] for _ in fixed]

    def flow(ops, start, deadline=None):
        p = start
        for o in ops:
            while used[p] + o.cost > 8:
                p += 1
            flo[p].append(o); used[p] += o.cost
        assert deadline is None or p < deadline, (p, deadline)
        return p + 1

    def spread(ops, start, stop):
        tot = sum(o.cost for o in ops) + sum(used[start:stop])
        cap = max(8.0, tot / (stop - start))
        p, acc_used, acc_cap = start, used[start], cap
        for o in ops:
            while acc_used + o.cost > acc_cap + 2 and p < stop - 1:
                p += 1
                if cap == 8.0:
                    acc_used, acc_cap = used[p], cap
                else:
                    acc_used += used[p]; acc_cap += cap
            flo[p].append(o); acc_used += o.cost
        return p
    V = lambda t: Op(t, "v")
    st = [Op("", "wait", [x[1] for x in stat_ld + cs_ld])]
    st += [V(f"v_accvgpr_read_b32 v{TC}, a{CP}")]
    for p in range(1, 8):
        st += [V(f"v_accvgpr_read_b32 v{TB_}, a{CP+p}"), V(f"v_add_f32 v{TC}, v{TC}, v{TB_}")]
    st += [V(f"v_add_u32 v{vTid}, {TBL}, v{vTid}"), Op(f"ds_write_b32 v{vTid}, v{TC}", "lds")]
    for hf in range(2):
        A = TA
        st += [V(f"v_accvgpr_read_b32 v{A+r}, a{SP+16*hf+r}") for r in range(4)]
        for i in range(1, 4):
            st += [V(f"v_accvgpr_read_b32 v{TB_+r}, a{SP+16*hf+4*i+r}") for r in range(4)]
            st += [V(f"v_add_f32 v{A+r}, v{A+r}, v{TB_+r}") for r in range(4)]
        for op in ("v_permlane16_swap_b32", "v_permlane32_swap_b32"):
            st += [V(f"v_mov_b32 v{TB_+r}, v{A+r}") for r in range(4)]
            st += [V(f"{op} v{A+r}, v{TB_+r}") for r in range(4)]
            st += [V(f"v_add_f32 v{A+r}, v{A+r}, v{TB_+r}") for r in range(4)]
        for b in (2 * hf, 2 * hf + 1):
            sd = SD[b >> 1] + (b & 1)
            st += [V(f"v_mul_f32 v{PA[b]+1}, {f32(-1/1024)}, v{A+2*(b&1)}"),
                   V(f"v_mul_f32 v{PA[b]}, {f32(1/1024)}, v{A+2*(b&1)+1}"),
                   V(f"v_fma_f32 v{PA[b]}, -v{PA[b]+1}, v{PA[b]+1}, v{PA[b]}"),
                   V(f"v_max_f32 v{PA[b]}, 0, v{PA[b]}"),
                   V(f"v_add_f32 v{sd}, {f32(EPS)}, v{PA[b]}"),
                   Op(f"v_rsq_f32 v{PA[b]}, v{sd}", "t"), V("v_nop"),
                   V(f"v_mul_f32 v{sd}, v{sd}, v{PA[b]}"),
                   V(f"v_mul_f32 v{PA[b]}, {f32(-LOG2E)}, v{PA[b]}")]
    p = flow(st, vpos[id(cs_ld[-1][1])] + 90)
    n0 = min(n for n in range(1, S0) if barpos[n] >= p)
    p = barpos[n0] + 1
    todo = list(order)
    step = (8 * 14 * S0 - 40 - p) // 14
    for i in range(14):
        cur = lambda a: all(seq[q // 8][1] != a for q in range(p - 2, p + 48))
        cand = [a for a in todo if cur(a)]
        while not cand:
            p += 4
            cand = [a for a in todo if cur(a)]
        a = cand[0]
        todo.remove(a)
        C = [TA, TC][i & 1]
        r = Op(f"ds_read_b128 {vr(C,4)}, v{vCs} offset:{64*a}", "lds")
        ops = [V(f"v_fmac_f32 v{acc[a][b]+e}, v{PA[b]+1}, v{C+e}") for b in range(4) for e in range(4)]
        q = flow([r], p)
        q = flow([Op("", "wait", [r])] + ops, q + 6, p + 46)
        p = max(q, p + min(step, 24))
    assert p < barpos[15], p
    def epi(pr, packed):
        o = []
        for bb in (0, 2):
            d = acc[pr][bb]
            for b in (bb, bb + 1):
                g_, u = acc[pr][b], acc[pr + 7][b]
                sd = SD[b >> 1] + (b & 1)
                if packed:
                    sel = f"op_sel:[0,{b&1},{b&1}] op_sel_hi:[1,{b&1},{b&1}]"
                    o += [V(f"v_pk_mul_f32 {vr(g_+h,2)}, {vr(g_+h,2)}, {vr(PA[b],2)} op_sel:[0,0] op_sel_hi:[1,0]") for h in (0, 2)]
                    o += [Op(f"v_exp_f32 v{g_+r}, v{g_+r}", "t") for r in range(4)]
                    o += [V(f"v_pk_fma_f32 {vr(g_+h,2)}, {vr(g_+h,2)}, {vr(SD[b>>1],2)}, {vr(SD[b>>1],2)} {sel}") for h in (0, 2)]
                    o += [Op(f"v_rcp_f32 v{g_+r}, v{g_+r}", "t") for r in range(4)]
                    o += [V(f"v_pk_mul_f32 {vr(u+h,2)}, {vr(u+h,2)}, {vr(g_+h,2)}") for h in (0, 2)]
                else:
                    o += [V(f"v_mul_f32 v{g_+r}, v{PA[b]}, v{g_+r}") for r in range(4)]
                    o += [Op(f"v_exp_f32 v{g_+r}, v{g_+r}", "t") for r in range(4)]
                    o += [V(f"v_fma_f32 v{g_+r}, v{g_+r}, v{sd}, v{sd}") for r in range(4)]
                    o += [Op(f"v_rcp_f32 v{g_+r}, v{g_+r}", "t") for r in range(4)]
                    o += [V(f"v_mul_f32 v{u+r}, v{u+r}, v{g_+r}") for r in range(4)]
                o += [V(f"v_cvt_pk_bf16_f32 v{d+2*(b&1)}, v{u}, v{u+1}"), V(f"v_cvt_pk_bf16_f32 v{d+2*(b&1)+1}, v{u+2}, v{u+3}")]
            o += [V("v_nop"), V(f"v_permlane16_swap_b32 v{d}, v{d+2}"), V(f"v_permlane16_swap_b32 v{d+1}, v{d+3}")]
            sa = sA1 if pr == 6 else sA0
            o.append(Op(f"buffer_store_dwordx4 {vr(d,4)}, v{vOut}, s[{SWS}:{SWS+3}], s{sa} offen offset:{1024*bb} sc1", "vm"))
        o.append(Op(f"s_add_u32 s{sa}, s{sa}, {8*4096}", "s"))
        return o
    run = 8 * 2 * (16 - S0)
    t0 = 8 * 14 * S0
    D, N1, K = OPT.get("dd", 3), OPT.get("n1", 25), 3584
    N2 = 56 - 2 * N1
    NST = N1 + N2
    S = lambda t: Op(t, "s")
    dTB, dNB, dXo, dXp, dWo, dM, dM2, dRes, dX0, dX1, dSig, dPol, dSigA, dPolA, dJ = range(44, 59)
    dS = [62, 63, 64, 65]
    dW2 = [66, 67, 68, 69]
    dT16, dT32 = 70, 71
    aT, aWd = [TA, TA + 1, TA + 2], [TB_, TB_ + 1, TB_ + 2]
    vRow, vP, vOne, T0, T1 = TA + 3, TB_ + 3, TC, TC + 1, TC + 2
    pool = acc[0] + acc[1] + acc[7] + acc[8]
    dacc = [[pool[4 * t + i] for i in range(4)] for t in range(4)]
    RES = [[128 + 8 * i + 4 * b for b in range(2)] for i in range(2)]
    SND = [[acc[9][2 * i + b] for b in range(2)] for i in range(2)]
    RCV = [[dacc[2 * b][2 + i] for b in range(2)] for i in range(2)]
    F = [[dict(X=[f0 + 32 * s + 4 * i for i in range(4)], W=[f0 + 32 * s + 16 + 4 * t for t in range(4)]) for s in range(2)] for f0 in (192, 0)]
    dslot = lambda n: (4 - n) % 5
    setup = [S(x) for x in srd_tail(SO, 4 * MB) + [
        f"s_bfe_u32 s{dNB}, s2, 0x20003", f"s_and_b32 s{sT}, s2, 1", f"s_lshl_b32 s{sT}, s{sT}, 2", f"s_add_u32 s{dNB}, s{dNB}, s{sT}",
        f"s_lshr_b32 s{dTB}, s2, 5", f"s_and_b32 s{sT}, s2, 4", f"s_lshl_b32 s{sT}, s{sT}, 1", f"s_add_u32 s{dTB}, s{dTB}, s{sT}",
        f"s_lshr_b32 s{dPol}, s{dTB}, 1", f"s_lshl_b32 s{dPol}, s{dPol}, 10", f"s_add_u32 s{dPol}, s{dPol}, {FL2}",
        f"s_lshl_b32 s{dSig}, s{sMB}, 10", f"s_add_u32 s{dSig}, s{dSig}, {FL2}",
        f"s_cmp_eq_u32 s{sW}, 0\ns_cselect_b32 s{dSig}, s{dSig}, {OOB}\ns_cselect_b32 s{dPol}, s{dPol}, {OOB}\ns_cselect_b32 s{dT16}, 16, 0",
        f"s_lshl_b32 s{dT32}, s{dT16}, 1",
        f"s_lshl_b32 s{dTB}, s{dTB}, 1", f"s_bfe_u32 s{sT}, s2, 0x10001", f"s_add_u32 s{dTB}, s{dTB}, s{sT}",
        f"s_lshl_b32 s{dPolA}, s{sT}, 7", f"s_add_u32 s{dPolA}, s{dPolA}, s{dPol}",
        f"s_lshr_b32 s{dSigA}, s{sFB}, 4", f"s_lshl_b32 s{dSigA}, s{dSigA}, 7", f"s_add_u32 s{dSigA}, s{dSigA}, s{dSig}",
        f"s_lshl_b32 s{dM}, s{sW}, 11", f"s_lshl_b32 s{dM2}, s{sW}, 12",
        f"s_mul_i32 s{dJ}, s{sT}, {(N1-48)*8192}", f"s_add_u32 s{dJ}, s{dJ}, {24*8192}",
        f"s_mul_i32 s{sT}, s{sT}, {24*8192}", f"s_add_u32 s{sT}, s{sT}, s{dM}",
        f"s_mul_i32 s{dWo}, s{dNB}, {K*128}", f"s_add_u32 s{dWo}, s{dWo}, s{sT}", f"s_lshl_b32 s{dWo}, s{dWo}, 1", f"s_add_u32 s{dWo}, s{dWo}, {WDF}",
        f"s_add_u32 s{sT}, s{sT}, {AF}", f"s_mul_i32 s{dXo}, s{dTB}, {K*128}", f"s_add_u32 s{dXo}, s{dXo}, s{sT}",
        f"s_xor_b32 s{dXp}, s{dTB}, 1", f"s_mul_i32 s{dXp}, s{dXp}, {K*128}", f"s_add_u32 s{dXp}, s{dXp}, s{sT}",
        ] + ([f"s_and_b32 s{sT}, s{dNB}, {OPT.get('krot', 3)}", f"s_lshl_b32 s{sT}, s{sT}, 13",
              f"s_add_u32 s{dXo}, s{dXo}, s{sT}", f"s_add_u32 s{dXp}, s{dXp}, s{sT}", f"s_add_u32 s{dWo}, s{dWo}, s{sT}", f"s_add_u32 s{dWo}, s{dWo}, s{sT}",
              f"s_sub_u32 s{dJ}, s{dJ}, s{sT}"] +
             [x for q in range(4) for x in (f"s_xor_b32 s{dS[q]}, s{sT}, {(q+1)*8192}", f"s_xor_b32 s{sT2}, s{sT}, {q*8192}",
                                            f"s_sub_u32 s{dS[q]}, s{dS[q]}, s{sT2}", f"s_lshl_b32 s{dW2[q]}, s{dS[q]}, 1")]) + [
        f"s_lshr_b32 s{sT}, s{sW}, 1", f"s_lshl_b32 s{sT2}, s{dNB}, 1", f"s_add_u32 s{sT2}, s{sT2}, s{sT}",
        f"s_lshl_b32 s{sT}, s{sT}, 12", f"s_add_u32 s{sT}, s{sT}, 16384"]]
    setup += [V(f"v_add_u32 v{aWd[0]}, s{sT}, v{vLin}"), V(f"v_add_u32 v{aWd[1]}, 0x10000, v{aWd[0]}"), V(f"v_add_u32 v{aWd[2]}, 0x20000, v{aWd[0]}")]
    setup += [S(x) for x in [f"s_and_b32 s{sT}, s{sW}, 1", f"s_lshl_b32 s{sT}, s{sT}, 11"]]
    setup += [V(f"v_add_u32 v{aT[0]}, s{sT}, v{vLin}"), V(f"v_add_u32 v{aT[1]}, 0x10000, v{aT[0]}"), V(f"v_add_u32 v{aT[2]}, 0x20000, v{aT[0]}")]
    setup += [S(x) for x in [
        f"s_lshl_b32 s{dRes}, s{sT2}, 13", f"s_add_u32 s{dRes}, s{dRes}, s{sT}", f"s_lshl_b32 s{dX0}, s{dTB}, 17", f"s_add_u32 s{dRes}, s{dRes}, s{dX0}",
        f"s_lshl_b32 s{sT}, s{sT}, 5", f"s_add_u32 s{sT}, s{sT}, s{dX0}", f"s_lshl_b32 s{sT2}, s{sT2}, 7", f"s_add_u32 s{sT}, s{sT}, s{sT2}"]]
    setup += [V(f"v_and_b32 v{T0}, 0xf0, v{vLin}"), V(f"v_lshlrev_b32 v{T0}, 7, v{T0}"), V(f"v_lshrrev_b32 v{T1}, 8, v{vLin}"),
              V(f"v_lshl_add_u32 v{T0}, v{T1}, 4, v{T0}"), V(f"v_add_u32 v{vRow}, s{sT}, v{T0}"), V(f"v_mov_b32 v{vOne}, 1")]
    setup += [S(f"s_add_u32 s{dX0}, s{dRes}, {HF}"), S(f"s_add_u32 s{dX1}, s{dRes}, {HF+4096}")]
    setup += [S(f"s_lshr_b32 s{sT}, s2, 5"), S(f"s_add_u32 s{sT}, s{sT}, 2"), S(f"s_lshl_b32 s{sT}, s{sT}, 14"), S(f"s_add_u32 s{sT}, s{sT}, s{dWo}"),
              V(f"v_lshlrev_b32 v{T0}, 2, v{vLin}")]
    pset = flow(setup, max(p, t0 - 80), t0 + 16)

    def dma(m0, so, n, step):
        o = [[S(f"s_add_u32 m0, {m0}"), S("s_nop 0")]] + [[] for _ in range(n - 1)]
        for i in range(n):
            o[i].append(Op(f"buffer_load_dwordx4 v{vLin}, s[{SWS}:{SWS+3}], s{so} offen offset:{1024*i}{' sc1' if so != dWo else ''} lds", "vm"))
        o[-1].append(S(f"s_add_u32 s{so}, s{so}, {step}"))
        return o
    DX, DW = [], []
    for n in range(NST):
        base = dslot(n) * 32768
        sx_, sw_ = (f"s{dS[n&3]}", f"s{dW2[n&3]}") if n < 24 else (8192, 16384)
        x = dma(f"s{dM}, {base}", dXo, 2, sx_) + (dma(f"s{dM}, {base+8192}", dXp, 2, sx_) if n < N1 else [])
        w = dma(f"s{dM2}, {base+16384}", dWo, 4, sw_)
        if n == 24 and N1 > 24:
            x[0] = [S(f"s_add_u32 s{dXo}, s{dXo}, s{dJ}"), S(f"s_add_u32 s{dXp}, s{dXp}, s{dJ}")] + x[0]
            w[0] = [S(f"s_add_u32 s{dWo}, s{dWo}, s{dJ}"), S(f"s_add_u32 s{dWo}, s{dWo}, s{dJ}")] + w[0]
        if n == N1:
            x[0] = [S(f"s_mul_i32 s{dXo}, s{dTB}, {K*128}"), S(f"s_add_u32 s{dXo}, s{dXo}, s{dM}"), S(f"s_add_u32 s{dXo}, s{dXo}, {AF+2*N1*8192}")] + x[0]
            w[0] = [S(f"s_mul_i32 s{dWo}, s{dNB}, {K*256}"), S(f"s_add_u32 s{dWo}, s{dWo}, s{dM2}"), S(f"s_add_u32 s{dWo}, s{dWo}, {WDF+2*N1*16384}")] + w[0]
        DX.append(x); DW.append(w)
    vms = lambda gs: [o for g_ in gs for o in g_ if o.kind == "vm"]
    res = [Op(f"buffer_load_dwordx4 {ar(RES[i][b],4)}, v{vLin}, s[{SWS}:{SWS+3}], s{[dX0,dX1][b]} offen offset:{1024*i}", "vm") for i in range(2) for b in range(2)]
    signal = lambda w: Op(f"s_mov_b64 exec, 1\nbuffer_atomic_add v{vOne}, off, s[{SWS}:{SWS+3}], s{[dSigA,dSigA,dSigA,dSig][w]} offset:{256*w} sc1\ns_mov_b64 exec, -1", "vm")
    polltxt = lambda w: f"buffer_load_dword v{vP}, off, s[{SWS}:{SWS+3}], s{[dPolA,dPolA,dPolA,dPol][w]} offset:{256*w} sc1"
    POL = [Op(polltxt(w), "vm") for w in range(4)]
    pcheck = lambda w: [Op("", "wait", [POL[w]]), S(f"v_cmp_gt_u32 vcc, s{[dT16,dT16,dT16,dT32][w]}, v{vP}\ns_nop 1\ns_cbranch_vccnz L_ffn_spin{w}\nL_ffn_go{w}:")]

    def put(pos, group):
        if len(group) > 2 and group[1].text == "s_nop 0":
            put(pos - 1, group[:1])
            group = group[2:]
        fixed2[pos] += group
        used[pos] += sum(o.cost for o in group)
    fixed2 = [[] for _ in fixed]
    EP = [epi(pr, False) for pr in range(6)]
    for w in range(2):
        qa = t0 + (2 + 2 * w) * run + 8 * OPT.get("siga", 6) + 7
        fixed[qa] = [Op("", "wait", vms(EP[:1 + 2 * w]), bar=True)]
        put(qa + 3, [signal(w)])
    q = t0 + 19
    for g_ in DW[0] + DW[1] + [[r] for r in res]:
        put(q, g_); q += 3 if q % 8 == 3 else 5
    for i in range(OPT.get("wpf", 2)):
        put(t0 + OPT.get("wpr", 75) + OPT.get("wps", 130) * i, [Op(f"buffer_load_dword v{T1}, v{T0}, s[{SWS}:{SWS+3}], s{sT} offen", "vm"), S(f"s_add_u32 s{sT}, s{sT}, {8*16384}")])
    put(t0 + 5 * run + OPT.get("pola", 4), [POL[0]])
    q = t0 + 6 * run + OPT.get("chka", -22)
    q |= 7
    put(q - 2, pcheck(0))
    fixed[q] = [Op("", "wait", [], bar=True)]
    for i, g_ in enumerate(DX[0]):
        put(q + 3 + 2 * i, g_)
    b0 = 8 * (NT_ - 3) + 7
    fixed[b0] = [Op("", "wait", vms(DX[0] + DW[0]), bar=True)]
    for i, g_ in enumerate(DX[1] + DX[2]):
        put(b0 + 2 + 2 * i - (i == 7), g_)
    for pr in range(6):
        spread(EP[pr], t0 + run * (pr + 1), t0 + run * (pr + 2))
    ops = pro + [Op("", "wait", [x[1] for x in VM[0][:8 if HALF else 15]], bar=True)]
    if OPT["stamp"]:
        ops.append(Op("s_memrealtime s[96:97]\ns_memtime s[84:85]\ns_waitcnt lgkmcnt(0)", "s"))
    ops += RD[0] + RD[1] + [Op("", "wait", RD[0])]
    seg = dict(n=4, last=seg0)

    def page(room):
        if OPT.get("isl", 1) and sum(1 for _, b in ISL if b is None) < OPT.get("maxisl", 20):
            seg["n"] += sum(isize(o.text) for o in ops[seg["last"]:])
            seg["last"] = len(ops)
            if seg["n"] + room > 4088:
                ops.append(Op(island(), "s"))
                seg["n"], seg["last"] = 4, len(ops)
    npf = [0]

    def prof():
        if OPT.get("prof"):
            j = npf[0]; npf[0] += 1
            ops.append(S((f"v_writelane_b32 v{vSt}, s60, {j-1}\n" if j else "") + ("s_memtime s[60:61]" if OPT["prof"] == 1 else "s_memrealtime s[60:61]")))
    for i, m in enumerate(mf):
        if i in [112 * n for n in range(S0)] + [t0 + run * pr for pr in range(7)]:
            prof()
        if not fixed[i - 1]:
            page(160)
        late = [o for o in fixed[i] if o.kind == "wait"]
        ops += [m] + [o for o in fixed[i] if o.kind != "wait"] + late + fixed2[i] + flo[i]
    if OPT["stamp"]:
        ops.append(Op("s_memrealtime s[98:99]\ns_memtime s[86:87]", "s"))

    def dreads(n):
        f, sl = n & 1, dslot(n)
        o = []
        for s in range(2):
            o += [Op(f"ds_read_b128 {ar(F[f][s]['X'][i],4)}, v{aT[sl>>1]} offset:{(sl&1)*32768+(i>>1)*8192+s*4096+(i&1)*1024}", "lds") for i in range(4 if n < N1 else 2)]
            o += [Op(f"ds_read_b128 {ar(F[f][s]['W'][t],4)}, v{aWd[sl>>1]} offset:{(sl&1)*32768+s*8192+t*1024}", "lds") for t in range(4)]
        return o

    def dmf(n, tiles):
        f = n & 1
        return [Op(m16(vr(dacc[t][i], 4), ar(F[f][s]["W"][t], 4), ar(F[f][s]["X"][i], 4), "0" if (n == 0 and s == 0 and i >= 2) else None), "m")
                for t in range(4) for i in (tiles if t % 2 == 0 else tiles[::-1]) for s in range(2)]
    E6 = epi(6, True)
    init = [Op("", "wait", res)]
    for i in range(2):
        for b in range(2):
            for jt in range(2):
                for h in range(2):
                    a, r = dacc[2 * b + jt][i] + 2 * h, RES[i][b] + 2 * jt + h
                    init += [V(f"v_accvgpr_read_b32 v{a+1}, a{r}"), V(f"v_lshlrev_b32 v{a}, 16, v{a+1}"), V(f"v_and_b32 v{a+1}, 0xffff0000, v{a+1}")]
    init += [S(f"s_xor_b32 s{dX0}, s{dRes}, {1<<17}"), S(f"s_add_u32 s{dX1}, s{dX0}, {XB+4096}"), S(f"s_add_u32 s{dX0}, s{dX0}, {XB}")]
    prof()
    page(1250)
    todo = [(n, g_) for n in range(3, NST) for g_ in DX[n] + DW[n]]
    NZ = OPT.get("nz", 0)
    ops += weave(E6 + dreads(0) + init, DW[2] + [g_ for _, g_ in todo[:NZ]], 4)
    tgt = sum(1 for n, _ in todo if n <= N1 + D + 1)
    assert OPT.get("rl", 1) < N2
    done = NZ
    snd = []
    for b in range(2):
        for i in range(2):
            o = SND[i][b]
            for jt in range(2):
                a = dacc[2 * b + jt][2 + i]
                snd += [[V(f"v_cvt_pk_bf16_f32 v{o+2*jt}, v{a}, v{a+1}"), V(f"v_cvt_pk_bf16_f32 v{o+2*jt+1}, v{a+2}, v{a+3}")]]
            snd += [[V(f"v_min_u32 v{o+r}, -2, v{o+r}") for r in (0, 1)], [V(f"v_min_u32 v{o+r}, -2, v{o+r}") for r in (2, 3)] +
                    [Op(f"buffer_store_dwordx4 {vr(o,4)}, v{vLin}, s[{SWS}:{SWS+3}], s{[dX0,dX1][b]} offen offset:{1024*i} sc1", "vm")]]
    rcvt = [f"buffer_load_dwordx4 {vr(RCV[i][b],4)}, v{vLin}, s[{SWS}:{SWS+3}], s{[dX0,dX1][b]} offen offset:{1024*i} sc1" for i in range(2) for b in range(2)]
    gate = {4: 1, 12: 2, 20: 3}
    upto = lambda n: max(NZ + ((tgt - NZ) * n) // N1, sum(1 for m, _ in todo if m <= n + 2)) if n <= N1 else sum(1 for m, _ in todo if m <= n + D + 1)
    first_of = {m: min(i for i, (q, _) in enumerate(todo) if q == m) for m in gate}
    for n in range(1, NST):
        page(860)
        ops.append(Op("", "wait", vms(DX[n] + DW[n] + ([E6] if n == OPT.get("sigb", 3) else []) + (EP[:5] if n == 1 else [])), bar=True))
        prof()
        ld = []
        for i in range(done, upto(n)):
            assert todo[i][0] <= n + 4
            ld.append(todo[i][1])
        done = upto(n)
        assert done == len(todo) or todo[done][0] > n + 1
        for m, w in gate.items():
            if upto(n) <= first_of[m] < upto(n + 1):
                ld = [[POL[w]]] + ld + [pcheck(w)]
        if n == OPT.get("sigb", 3):
            ld = [[signal(3)]] + ld
        if n == 1:
            ld = ld[:2] + [[signal(2)]] + ld[2:]
        if n == N1 + 1:
            ld = ld + [[S(f"s_add_u32 s{dX0}, s{dRes}, {XB}"), S(f"s_add_u32 s{dX1}, s{dRes}, {XB+4096}")]]
        if n == NST - OPT.get("rl", 1):
            ld = ld + [[Op(x, "vm")] for x in rcvt]
        mm = dmf(n - 1, [0, 1, 2, 3]) if n < N1 else (dmf(n - 1, [2, 3]) + dmf(n - 1, [0, 1]) if n == N1 else dmf(n - 1, [0, 1]))
        sl = [[] for _ in mm]
        rd = dreads(n)
        for i, r in enumerate(rd):
            sl[i * (len(mm) * 5 // 8) // len(rd)].append(r)
        for i, g_ in enumerate(ld):
            q = (i * (len(mm) if n != N1 else 18)) // len(ld)
            if q and len(g_) > 2 and g_[1].text == "s_nop 0" and not any(o.kind == "vm" for o in sl[q]):
                sl[q - 1].append(g_[0])
                g_ = g_[2:]
            sl[q] += g_
        if n == N1:
            for i, g_ in enumerate(snd):
                sl[16 + i] += g_
        for m, e in zip(mm, sl):
            ops += [m] + e
    ops.append(Op("", "wait", rd))
    page(1200)
    ops += dmf(NST - 1, [0, 1])
    prof()
    ops.append(S("s_waitcnt lgkmcnt(0)" if OPT.get("prof") else "s_nop 0"))
    prof()
    emit_stream(k, ops)
    xstamp(k, 0)
    k(f"s_mov_b32 s{sN}, {1<<20}")
    k.label("L_ffn_chk")
    k("s_waitcnt vmcnt(0)")
    rr = [RCV[i][b] + r for i in range(2) for b in range(2) for r in range(4)]
    k(f"v_max3_u32 v{T0}, v{rr[0]}, v{rr[1]}, v{rr[2]}", f"v_max3_u32 v{T1}, v{rr[3]}, v{rr[4]}, v{rr[5]}")
    for j in range(6, 16, 2):
        t = [T0, T1][(j // 2) & 1]
        k(f"v_max3_u32 v{t}, v{rr[j]}, v{rr[j+1]}, v{t}")
    k(f"v_max_u32 v{T0}, v{T0}, v{T1}", f"v_cmp_eq_u32 vcc, -1, v{T0}", f"s_sub_u32 s{sN}, s{sN}, 1", "s_cbranch_scc1 L_ffn_out",
      "s_cbranch_vccz L_ffn_out")
    k.label("L_ffn_wait")
    k(f"buffer_load_dword v{T0}, off, s[{SWS}:{SWS+3}], s{dX1} offset:2044 sc1", "s_waitcnt vmcnt(0)", f"v_cmp_eq_u32 vcc, -1, v{T0}",
      f"s_sub_u32 s{sN}, s{sN}, 1", "s_cbranch_scc1 L_ffn_out", "s_cbranch_vccnz L_ffn_wait" if OPT.get("gentle", 1) else None, rcvt, "s_branch L_ffn_chk")
    k.label("L_ffn_out")
    k(f"s_mov_b32 s{sN}, 32768")
    U = acc[3][0]
    for i in range(2):
        for b in range(2):
            o = acc[10][2 * i + b]
            for jt in range(2):
                a, q = dacc[2 * b + jt][i], RCV[i][b] + 2 * jt
                k(f"v_lshlrev_b32 v{U}, 16, v{q}", f"v_and_b32 v{U+1}, 0xffff0000, v{q}",
                  f"v_lshlrev_b32 v{U+2}, 16, v{q+1}", f"v_and_b32 v{U+3}, 0xffff0000, v{q+1}",
                  f"v_pk_add_f32 {vr(a,2)}, {vr(a,2)}, {vr(U,2)}", f"v_pk_add_f32 {vr(a+2,2)}, {vr(a+2,2)}, {vr(U+2,2)}",
                  f"v_cvt_pk_bf16_f32 v{o+2*jt}, v{a}, v{a+1}", f"v_cvt_pk_bf16_f32 v{o+2*jt+1}, v{a+2}, v{a+3}")
            k(f"buffer_store_dwordx4 {vr(o,4)}, v{vRow}, s[{SO}:{SO+3}], {['0', f's{sN}'][i]} offen offset:{64*b} sc1")
    if OPT.get("prof"):
        k("s_lshl_b32 s3, s89, 2", f"s_add_u32 s3, s3, s{sW}", "s_lshl_b32 s3, s3, 8", f"s_add_u32 s3, s3, {STAMP+2*MB}",
          f"v_lshrrev_b32 v{T0}, 2, v{vLin}", f"buffer_store_dword v{vSt}, v{T0}, s[{SWS}:{SWS+3}], s3 offen sc1")
    tail(k, 1, sW)
    for w in range(4):
        k.label(f"L_ffn_spin{w}")
        k(f"s_mov_b32 s{sN}, {1<<20}")
        k.label(f"L_ffn_spin{w}b")
        k("s_mov_b64 exec, 1", f"v_mov_b32 v{vP}, 0", f"buffer_atomic_add v{vP}, off, s[{SWS}:{SWS+3}], s{[dPolA,dPolA,dPolA,dPol][w]} offset:{256*w} sc0 sc1",
          "s_waitcnt vmcnt(0)", f"v_cmp_gt_u32 vcc, {[16,16,16,32][w]}, v{vP}", "s_mov_b64 exec, -1", f"s_sub_u32 s{sN}, s{sN}, 1", f"s_cbranch_scc1 L_ffn_go{w}",
          f"s_cbranch_vccnz L_ffn_spin{w}b", f"s_branch L_ffn_go{w}")
    return k


HEADER = open("sequential_preLN__grouped_kv_mqa__glu_gated_glu__prompt.s.ref").read().split("; Override launch")[0]


DOC = """;
"""


def k_diag():
    k = Kern("diag_kernel", 1, 64, 0)
    k.vgpr = k.acc = 8
    a, b, m = OPT["da"], OPT["db"], OPT["dm"]
    off = lambda x: STAMP + (x // 10) * 16384 + (x % 10) * 4 + OPT.get("dwg", 0) * 64
    k("s_cmp_ge_u32 s2, 1", "s_cbranch_scc1 L_diag_end", "s_load_dwordx2 s[4:5], s[0:1], 88", "s_waitcnt lgkmcnt(0)",
      f"v_mov_b32 v1, {off(a)}", f"v_mov_b32 v2, {off(b)}", "global_load_dword v3, v1, s[4:5]", "global_load_dword v4, v2, s[4:5]",
      "s_memrealtime s[8:9]", "s_waitcnt vmcnt(0) lgkmcnt(0)", "v_mov_b32 v4, s8" if OPT.get("dself") else None, "v_sub_u32 v3, v4, v3", "s_nop 1", "v_readfirstlane_b32 s6, v3", "s_nop 3",
      "s_min_u32 s6, s6, 20000", f"s_mul_i32 s6, s6, {m}")
    k.label("L_diag_loop")
    k("s_memrealtime s[10:11]", "s_waitcnt lgkmcnt(0)", "s_sub_u32 s10, s10, s8", "s_cmp_lt_u32 s10, s6", "s_cbranch_scc1 L_diag_loop")
    k.label("L_diag_end")
    k("s_endpgm")
    return k


def build():
    ks = [k01_attn(), k3_gateup()]
    if "dm" in OPT:
        ks.append(k_diag())
    if OPT.get("mark"):
        m = Kern("mark_kernel", 1, 64, 0)
        m.vgpr = m.acc = 8
        m("s_memrealtime s[8:9]", "s_cmp_ge_u32 s2, 1", "s_cbranch_scc1 L_mark_end", "s_load_dwordx2 s[4:5], s[0:1], 88", "s_waitcnt lgkmcnt(0)",
          f"v_mov_b32 v1, {STAMP+5*16384}", "v_mov_b32 v2, s8", "global_store_dword v1, v2, s[4:5] sc1", "L_mark_end:", "s_endpgm")
        ks.append(m)
    s = HEADER + "".join(ks[int(c)].launch_line() + "\n" for c in str(OPT.get("seq", "".join(str(i) for i in range(len(ks))))).lstrip("9"))
    s += DOC
    s += '.amdgcn_target "amdgcn-amd-amdhsa--gfx950"\n.text\n'
    for i, k in enumerate(ks):
        s += k.text()
        if i == 0:
            s += "L_code_rest:\n"
    s += "L_code_end:\n"
    chain = [n for n, back in ISL if back is None]
    for n, back in ISL:
        if back:
            s = s.replace(f"@ISL{n}@", f"s_branch {back}")
    call = lambda l: "\n    ".join(f"s_call_b64 s[14:15], L_isl{n}" for n in l) or "s_nop 0"
    per = -(-len(chain) // 6)
    for q in range(6):
        s = s.replace(f"@SER{q}@", call((chain[::-1] if OPT.get("ser", 0) == 2 else chain)[q * per:(q + 1) * per]))
    for w in range(4):
        s = s.replace(f"@HOP{w}@", call(chain[w::4]))
    for n in chain:
        s = s.replace(f"@ISL{n}@", "s_setpc_b64 s[14:15]")
    s += '.section .rodata,"a"\n' + "".join(k.desc() for k in ks)
    return s


if __name__ == "__main__":
    out = sys.argv[1]
    for a in sys.argv[2:]:
        key, _, val = a.partition("=")
        OPT[key] = int(val) if val else True
    open(out, "w").write(build())
```

```python
import sys, math
sys.path.insert(0, __file__.rsplit("/", 1)[0])
from asmlib import *

MB = 1 << 20
QF, KVF, OF, HF, AF = 0, 4 * MB, 5 * MB, 9 * MB, 13 * MB
WOF, WGU, WDF, CSP, STP, STAMP = 28 * MB, 30 * MB, 44 * MB, 52 * MB, 53 * MB, 60 * MB
XB = 0
XB4 = [HF, XB, 56 * MB, 64 * MB]
FLG = 54 * MB
ST1 = 55 * MB
FL2 = FLG + 65536
WS_SZ = 72 * MB
OOB = 0x40000000
LOG2E = 1.4426950408889634
QSCALE = LOG2E / math.sqrt(32.0)
EPS = 1e-5
OPT = dict(stamp=False, force_slow=False)
A_X, A_WQ, A_WK, A_WV, A_WO, A_WG, A_WU, A_WD, A_OUT, A_WS = 0, 8, 16, 24, 32, 48, 56, 64, 72, 88


def ws_shift(s):
    if OPT.get("wsoff"):
        return [f"s_add_u32 s{s}, s{s}, {OPT['wsoff']*MB}", f"s_addc_u32 s{s+1}, s{s+1}, 0"]
    return []


ISL = []


def island(back=None, jump=True):
    if not OPT.get("isl", 1):
        return None
    n = len(ISL)
    ISL.append((n, back))
    skip = f".fill {OPT.get('skip', 1024)//4}, 4, 0xbf800000\n" if (back and OPT.get("skip", 1024)) else ""
    return (f"s_branch L_isl{n}_over\n" if jump else "") + f".p2align 12\n{skip}L_isl{n}:\n@ISL{n}@\nL_isl{n}_over:"


def isize(text):
    import re
    t = 0
    for ln in text.split("\n"):
        ln = ln.strip()
        if not ln:
            t += 8
        elif ln.endswith(":") or ln.startswith("."):
            continue
        elif re.match(r"(v_mfma|v_smfmac|ds_|buffer_|global_|s_load|s_mem|v_fma_|v_cvt_pk|v_accvgpr|v_pk_|v_lshl_add|v_bfe|v_max3|v_maximum3|v_mul_lo)", ln):
            t += 8
        else:
            lit = [x for x in re.findall(r"(?<![\w\[:])(0x[0-9a-f]+|\d+)(?![\w\]:])", ln.split(None, 1)[1] if " " in ln else "") if int(x, 0) > 64]
            t += 8 if lit else 4
    return t


def hop(k, sw):
    if OPT.get("isl", 1) and not OPT.get("nohop"):
        for w in range(4):
            if w < 3:
                k(f"s_cmp_lg_u32 s{sw}, {w}", f"s_cbranch_scc1 L_hop{w}")
            k(f"@HOP{w}@", "s_endpgm")
            if w < 3:
                k.label(f"L_hop{w}")
    else:
        k("s_endpgm")


def srd_tail(s, size):
    return [f"s_mov_b32 s{s+2}, {size}", f"s_mov_b32 s{s+3}, 0x00020000"]


def srd_from(s, base, off, size):
    return [f"s_add_u32 s{s}, s{base}, {off}", f"s_addc_u32 s{s+1}, s{base+1}, 0"] + srd_tail(s, size)


def head(k, pad=False):
    if pad and OPT.get("isl", 1) and OPT.get("epad", 1):
        n = len(ISL)
        ISL.append((n, None))
        k("s_cmp_lt_u32 s2, 256", f"s_cbranch_scc1 L_isl{n}_over", "s_endpgm", f"L_isl{n}:", f"@ISL{n}@", f"L_isl{n}_over:")
    else:
        k("s_cmp_ge_u32 s2, 256", f"s_cbranch_scc1 L_end_{k.name}")
    if OPT["stamp"]:
        k("s_memrealtime s[92:93]", "s_load_dwordx2 s[90:91], s[0:1], 88", "s_mov_b32 s89, s2")


def mid_stamp(k, i):
    if OPT["stamp"] and i < 2:
        k(f"s_memrealtime s[{96+2*i}:{97+2*i}]", f"s_memtime s[{84+2*i}:{85+2*i}]")
    elif OPT["stamp"]:
        k("s_memrealtime s[100:101]", "s_waitcnt lgkmcnt(0)", f"s_mov_b32 s{[93,88,3][i-2]}, s100")


def hstamp(k, lane):
    if OPT.get("hprof"):
        k("s_memrealtime s[84:85]", "s_waitcnt lgkmcnt(0)", f"v_writelane_b32 v200, s84, {lane}")


def xstamp(k, n):
    sel = str(OPT.get("xs", 378)).zfill(3)
    if str(n) in sel:
        mid_stamp(k, 2 + sel.index(str(n)))


def tail(k, kidx, swave):
    if OPT["stamp"]:
        k("s_waitcnt vmcnt(0)", "s_memrealtime s[94:95]", "s_waitcnt lgkmcnt(0)",
          "v_mov_b32 v0, s92", "v_mov_b32 v1, s96", "v_mov_b32 v2, s98", "v_mov_b32 v3, s94",
          "s_lshl_b32 s89, s89, 2", f"s_add_u32 s89, s89, s{swave}", "s_lshl_b32 s89, s89, 4",
          f"s_add_u32 s89, s89, {STAMP + kidx*16384}", "v_mov_b32 v4, s89",
          "global_store_dwordx4 v4, v[0:3], s[90:91]",
          "s_sub_u32 s86, s86, s84", "v_mov_b32 v8, s86", "v_mov_b32 v9, s93", "v_mov_b32 v10, s88", "v_mov_b32 v11, s3",
          "v_add_u32 v4, 0x100000, v4", "global_store_dwordx4 v4, v[8:11], s[90:91]")
    k.label(f"L_end_{k.name}")
    k("s_endpgm")


def ids_8x4(k, s_a, s_b, tmp):
    k(f"s_lshr_b32 s{tmp}, s2, 3",
      f"s_and_b32 s{s_a}, s{tmp}, 3",
      f"s_lshr_b32 s{s_b}, s{tmp}, 2",
      f"s_and_b32 s{tmp}, s2, 1",
      f"s_lshl_b32 s{tmp}, s{tmp}, 2",
      f"s_add_u32 s{s_a}, s{s_a}, s{tmp}",
      f"s_and_b32 s{tmp}, s2, 6",
      f"s_lshl_b32 s{tmp}, s{tmp}, 2",
      f"s_add_u32 s{s_b}, s{s_b}, s{tmp}")


def code_prefetch(k, vtmp, vdst, stmp, start, nkb_per_wg=1):
    k(f"s_getpc_b64 s[{stmp}:{stmp+1}]")
    lab = f"L_pc_{k.name}_{start}"
    k.label(lab)
    k(f"s_add_u32 s{stmp}, s{stmp}, {start}-{lab}",
      f"s_addc_u32 s{stmp+1}, s{stmp+1}, 0",
      f"global_load_dwordx4 {vr(vdst,4)}, v{vtmp}, s[{stmp}:{stmp+1}]" if not OPT.get("nopf") else None)


def k01_attn():
    D = 2
    STG, NS = 24576, D + 2
    EA = STG * NS
    SLOT, KVB, JB, TBL = 32768, 65536, 16384, 0
    k = Kern("attn_kernel", 256, 512, 163840)
    SX, SWQ, SE, SWS, SKV, SJ = 4, 8, 12, 16, 72, 76
    (sW, sTB, sHG, sC, sT, sT2, sRd, sWr, sKo, sJo, sJa, sJb, sGW, sStr, sDstep, sOo) = range(32, 48)
    sN, sX, sWo, sTH, sCH, sBW, sOo1, sFl, sKV = 48, 49, 54, 55, 56, 57, 65, 80, 81
    sD = [50, 51, 52, 53]
    sCs = [58, 59, 60, 61]
    sDB, sBsz, sWrJ = 62, 63, 64
    SDBG = 30
    v = Alloc(1)
    L, G, R, CQ, TOK, T0, T1, T2, vLin, vRd, IDX = [v() for _ in range(11)]
    h = Alloc(v.n)
    Q = [v(8, 4) for _ in range(2)]
    O = [v(16, 4) for _ in range(2)]
    LS = [v(4, 4) for _ in range(2)]
    acc = [[v(4, 4) for i in range(2)] for t in range(4)]
    cs = [v(4, 4) for _ in range(2)]
    sx, sxx = v(4, 4), v(4, 4)
    z1 = v.n
    SUMA, ONES = v(4, 4), v(4, 4)
    bX, bQ, aX, aQ = [[v() for i in range(2)] for _ in range(4)]
    bW = [v() for _ in range(4)]
    aW = [v() for _ in range(4)]
    F0 = v(96, 4)
    FQ = [[dict(X=[F0 + 48 * f + 24 * s + 4 * i for i in range(4)], W=[F0 + 48 * f + 24 * s + 16 + 4 * t for t in range(2)]) for s in range(2)] for f in range(2)]
    qacc = [[acc[0][0] + 16 * t + 4 * i for i in range(4)] for t in range(2)]
    F = [[dict(X=[F0 + 48 * f + 24 * s + 4 * i for i in range(2)], W=[F0 + 48 * f + 24 * s + 8 + 4 * t for t in range(4)]) for s in range(2)] for f in range(2)]
    S = [F0 + 16 * i for i in range(4)]
    KB = [F0 + 64 + 8 * i for i in range(2)]
    VB = [F0 + 80 + 8 * i for i in range(2)]
    XK = [F0 + 4 * j for j in range(8)]
    EK = [[F0 + 32 + 8 * j + 4 * t for t in range(2)] for j in range(8)]
    accE, csE = [Q[0], Q[0] + 4], [Q[1], Q[1] + 4]
    sxE, sxxE = v(4, 4), v(4, 4)
    vXk, vE, aE0, aE1, aP, aS, aG0, aG1, vKo, PF, vHo, vRow = [v() for _ in range(12)]
    RES = [[cs[0], cs[1]], [sx, sxx]]
    XR = 131072
    sFg, sRx, sH0, sH1, sS1 = 58, 59, 60, 61, 62
    k.vgpr = k.acc = 256
    vX, vX2 = h(), h()
    vW = [h() for _ in range(4)]
    vJ, vJB, vCs, vPo = h(), h(), h(), h()
    aJ = [h() for _ in range(4)]
    bJ = [h() for _ in range(2)]
    JF = [h(4, 4) for _ in range(4)]
    CS = [h(4, 4) for _ in range(4)]
    PF4 = h(4, 4)
    head(k)
    k(f"s_load_dwordx2 s[{SX}:{SX+1}], s[0:1], {A_X}",
      f"s_load_dwordx2 s[{SWQ}:{SWQ+1}], s[0:1], {A_WQ}",
      f"s_load_dwordx4 s[24:27], s[0:1], {A_WK}",
      f"s_load_dwordx2 s[{SWS}:{SWS+1}], s[0:1], {A_WS}",
      f"s_load_dwordx2 s[{SDBG}:{SDBG+1}], s[0:1], 80")
    k(f"s_lshl_b32 s{sT}, s2, 7", f"s_and_b32 s{sT}, s{sT}, 0x7c00", f"v_lshl_add_u32 v{T0}, v0, 1, s{sT}", f"v_and_b32 v{T0}, -4, v{T0}", "s_getpc_b64 s[20:21]", f"global_load_dword v{PF}, v{T0}, s[20:21]" if not OPT.get("nopf") else None)
    k(f"v_lshrrev_b32 v{T1}, 6, v0", f"v_and_b32 v{L}, 63, v0", f"v_readfirstlane_b32 s{sW}, v{T1}")
    ids_8x4(k, sHG, sTB, sT)
    k(f"v_lshrrev_b32 v{G}, 4, v{L}", f"v_and_b32 v{TOK}, 15, v{L}", f"v_lshlrev_b32 v{vLin}, 4, v{L}")
    k(f"s_and_b32 s{sTH}, s{sW}, 1", f"s_bfe_u32 s{sCH}, s{sW}, 0x10001",
      f"s_cmp_ge_u32 s{sW}, 4", "s_cbranch_scc1 L_f_help")
    k(f"s_and_b32 s{sT}, s{sHG}, 3", f"s_lshl_b32 s{sT2}, s{sTB}, 2", f"s_add_u32 s{sT}, s{sT}, s{sT2}", f"s_lshl_b32 s{sT}, s{sT}, 15",
      f"s_lshl_b32 s{sT2}, s{sW}, 9", f"s_add_u32 s{sT}, s{sT}, s{sT2}",
      f"v_lshrrev_b32 v{T0}, 3, v{L}", f"v_lshlrev_b32 v{T0}, 11, v{T0}", f"v_and_b32 v{T1}, 7, v{L}", f"v_xor_b32 v{T1}, v{T1}, v{G}",
      f"v_lshl_add_u32 v{T0}, v{T1}, 4, v{T0}", f"v_add_u32 v{vXk}, s{sT}, v{T0}", f"v_xor_b32 v{T1}, {16384+64}, v{vXk}", f"s_lshl_b32 s{sX}, s{sW}, 13",
      f"v_and_b32 v{T0}, 32, v{L}", f"v_xor_b32 v{T0}, v{T0}, v{vLin}",
      f"s_lshl_b32 s{sWr}, s{sW}, 14", f"v_add_u32 v{vE}, s{sWr}, v{T0}",
      f"s_lshr_b32 s{sT}, s2, 3", f"s_lshl_b32 s{sT}, s{sT}, 11", f"v_lshlrev_b32 v{T0}, 3, v0",
      f"s_bitcmp1_b32 s{sHG}, 2", "s_waitcnt lgkmcnt(0)",
      f"s_cselect_b32 s{SE}, s26, s24", f"s_cselect_b32 s{SE+1}, s27, s25", srd_tail(SE, 0x10000), srd_tail(SX, 4 * MB))
    xstamp(k, 0)
    k(f"buffer_load_dword v{PF}, v{T0}, s[{SE}:{SE+3}], s{sT} offen")
    for j in range(8):
        k(f"s_add_u32 m0, s{sX}, {1024*j-128*(j>>1)}", "s_nop 0", f"buffer_load_dwordx4 v{[vXk,T1][j&1]}, s[{SX}:{SX+3}], 0 offen offset:{128*(j>>1)} lds")

    def kv_ld(gi):
        k(f"s_add_u32 m0, s{sWr}, {EA+4096*gi}", f"s_mov_b32 s{sWo}, {4096*gi}")
        for i in range(4):
            k(f"buffer_load_dwordx4 v{vE}, s[{SE}:{SE+3}], s{sWo} offen offset:{1024*i} lds")
    k("s_branch L_f_comp")
    k.label("L_f_help")
    k(f"s_and_b32 s{sW}, s{sW}, 3")
    if OPT.get("wqpf", 0):
        k(f"v_and_b32 v{T0}, 255, v0", f"v_lshlrev_b32 v{T0}, 5, v{T0}", f"s_lshl_b32 s{sT}, s2, 13", "s_waitcnt lgkmcnt(0)", srd_tail(SWQ, 2 * MB),
          f"buffer_load_dword v{PF4}, v{T0}, s[{SWQ}:{SWQ+3}], s{sT} offen")
    k(f"v_lshrrev_b32 v{T0}, 3, v{L}",
      f"s_lshl_b32 s{sT}, s{sTH}, 2",
      f"v_add_u32 v{T1}, s{sT}, v{G}",
      f"v_and_b32 v{T2}, 7, v{L}",
      f"v_xor_b32 v{T1}, v{T1}, v{T2}",
      f"s_lshl_b32 s{sT}, s{sTB}, 6",
      f"s_lshl_b32 s{sT2}, s{sW}, 3",
      f"s_add_u32 s{sT}, s{sT}, s{sT2}",
      f"v_add_u32 v{T0}, s{sT}, v{T0}",
      f"v_lshlrev_b32 v{T0}, 11, v{T0}",
      f"v_lshl_add_u32 v{vX}, v{T1}, 4, v{T0}",
      f"v_add_u32 v{vX2}, 0x10000, v{vX}")
    k(f"v_lshlrev_b32 v{T1}, 1, v{G}",
      f"v_xor_b32 v{T1}, v{T1}, v{TOK}",
      f"s_lshl_b32 s{sT}, s{sTH}, 3",
      f"v_xor_b32 v{T1}, s{sT}, v{T1}",
      f"s_lshl_b32 s{sBW}, s{sTH}, 1",
      f"s_add_u32 s{sBW}, s{sBW}, s{sCH}",
      f"s_lshl_b32 s{sT}, s{sBW}, 13",
      f"s_lshl_b32 s{sT2}, s{sHG}, 8",
      f"s_add_u32 s{sT}, s{sT}, s{sT2}",
      f"v_lshlrev_b32 v{T0}, 11, v{G}",
      f"v_add_u32 v{T0}, s{sT}, v{T0}",
      f"v_lshl_add_u32 v{vW[0]}, v{T1}, 4, v{T0}")
    for i in range(1, 4):
        k(f"v_add_u32 v{vW[i]}, {32768*i}, v{vW[0]}")
    k(f"s_sub_u32 s{sBW}, s{sBW}, s{sW}", f"s_lshl_b32 s{sBW}, s{sBW}, 10", f"s_add_u32 s{sBW}, s{sBW}, 8192",
      f"s_lshl_b32 s{sWr}, s{sW}, 10", f"s_mov_b32 s{sN}, 12")
    k(f"s_and_b32 s{sT}, s{sTB}, {7 if OPT.get('rot', 1) else 0}",
      f"s_lshl_b32 s{sX}, s{sT}, 8", f"s_lshl_b32 s{sWo}, s{sT}, 18")
    k("s_waitcnt lgkmcnt(0)", srd_tail(SX, 4 * MB), srd_tail(SWQ, 2 * MB))
    k(f"s_load_dwordx2 s[20:21], s[0:1], {A_WO}", f"s_load_dwordx4 s[24:27], s[0:1], {A_WG}", f"s_load_dwordx2 s[28:29], s[0:1], {A_WD}")
    def q_x(slot):
        k(f"s_add_u32 m0, s{sWr}, {slot}", "s_nop 0", f"buffer_load_dwordx4 v{vX}, s[{SX}:{SX+3}], s{sX} offen lds",
          f"s_add_u32 m0, s{sWr}, {slot+4096}", "s_nop 0", f"buffer_load_dwordx4 v{vX2}, s[{SX}:{SX+3}], s{sX} offen lds",
          f"s_add_u32 s{sX}, s{sX}, 128", f"s_and_b32 s{sX}, s{sX}, 2047")

    def q_w(slot):
        k(f"s_add_u32 s{sT}, s{sWr}, s{sBW}")
        for i in range(4):
            k(f"s_add_u32 m0, s{sT}, {slot+4096*i}", "s_nop 0", f"buffer_load_dwordx4 v{vW[i]}, s[{SWQ}:{SWQ+3}], s{sWo} offen lds")
        k(f"s_add_u32 s{sWo}, s{sWo}, 0x20000", f"s_and_b32 s{sWo}, s{sWo}, 0x1fffff")

    def q_stage():
        q_x(0); q_w(0)
        k(f"s_add_u32 s{sWr}, s{sWr}, {STG}", f"s_cmp_ge_u32 s{sWr}, {EA}", f"s_cselect_b32 s{sT}, {EA}, 0",
          f"s_sub_u32 s{sWr}, s{sWr}, s{sT}", f"s_sub_u32 s{sN}, s{sN}, 1")
    k("s_branch L_f_setup")
    k.label("L_f_comp")
    k(f"v_bfe_u32 v{R}, v{L}, 2, 2", f"v_and_b32 v{CQ}, 3, v{L}", f"v_and_b32 v{T2}, 1, v{G}",
      f"s_lshl_b32 s{sT}, s{sW}, 14", f"s_add_u32 s{sT}, s{sT}, {EA}",
      f"v_lshlrev_b32 v{T0}, 5, v{T2}", f"v_lshl_add_u32 v{T0}, v{CQ}, 3, v{T0}",
      f"v_lshl_add_u32 v{T0}, v{R}, 6, v{T0}", f"v_lshl_add_u32 v{T0}, v{G}, 9, v{T0}",
      f"v_add_u32 v{aE0}, s{sT}, v{T0}", f"v_xor_b32 v{aE1}, 32, v{aE0}")
    for i in range(4):
        k(f"v_mov_b32 v{ONES+i}, 0x3f803f80")
    k(ws_shift(SWS), srd_tail(SWS, WS_SZ), srd_from(SKV, SWS, KVF, 262144))
    k(f"s_lshl_b32 s{sT}, s{sCH}, 10", f"s_lshl_b32 s{sT2}, s{sTH}, 3", f"s_add_u32 s{sT}, s{sT}, s{sT2}", f"s_add_u32 s{sT}, s{sT}, {EA}",
      f"v_add_u32 v{aP}, s{sT}, v{vLin}", f"v_lshlrev_b32 v{aS}, 3, v{TOK}", f"v_add_u32 v{aS}, {EA+4096}, v{aS}")
    k(f"s_bfe_u32 s{sT}, s{sHG}, 0x10001", f"s_lshl_b32 s{sKV}, s{sTB}, 1", f"s_add_u32 s{sKV}, s{sKV}, s{sT}", f"s_lshl_b32 s{sKV}, s{sKV}, 12",
      f"s_and_b32 s{sT2}, s{sHG}, 1", f"s_bitcmp1_b32 s{sHG}, 2", "s_cbranch_scc1 L_f_av")
    k(f"s_lshl_b32 s{sT2}, s{sT2}, 8", f"s_add_u32 s{sKV}, s{sKV}, s{sT2}",
      f"s_lshl_b32 s{sT}, s{sW}, 2", f"s_add_u32 s{sT}, s{sT}, {EA+8192}", f"v_add_u32 v{aG0}, s{sT}, v{vLin}", f"v_add_u32 v{aG1}, 2, v{aG0}",
      f"v_lshlrev_b32 v{T0}, 10, v{T2}", f"v_lshrrev_b32 v{T1}, 1, v{G}", f"v_lshl_add_u32 v{T0}, v{T1}, 9, v{T0}", f"v_lshl_add_u32 v{vKo}, v{TOK}, 4, v{T0}",
      "s_branch L_f_ax")
    k.label("L_f_av")
    k(f"s_lshl_b32 s{sT2}, s{sT2}, 10", f"s_add_u32 s{sKV}, s{sKV}, s{sT2}", f"s_add_u32 s{sKV}, s{sKV}, 2048",
      f"v_lshlrev_b32 v{T0}, 7, v{T2}", f"v_lshrrev_b32 v{T1}, 1, v{G}", f"v_lshl_add_u32 v{T0}, v{T1}, 6, v{T0}",
      f"v_bfe_u32 v{T1}, v{L}, 3, 1", f"v_lshl_add_u32 v{T0}, v{T1}, 9, v{T0}", f"v_and_b32 v{T1}, 7, v{L}", f"v_lshl_add_u32 v{T0}, v{T1}, 1, v{T0}",
      f"s_lshl_b32 s{sT}, s{sCH}, 8", f"s_lshl_b32 s{sT2}, s{sTH}, 5", f"s_add_u32 s{sT}, s{sT}, s{sT2}", f"s_add_u32 s{sT}, s{sT}, {EA+8192}",
      f"v_add_u32 v{aG0}, s{sT}, v{T0}", f"v_add_u32 v{aG1}, 16, v{aG0}", f"v_mov_b32 v{vKo}, v{vLin}")
    k.label("L_f_ax")
    k(f"v_lshrrev_b32 v{T0}, 1, v{TOK}", f"v_xor_b32 v{T0}, v{T0}, v{G}", f"v_lshlrev_b32 v{T0}, 4, v{T0}",
      f"v_lshl_add_u32 v{bX[0]}, v{TOK}, 7, v{T0}", f"v_add_u32 v{vXk}, s{sX}, v{bX[0]}", f"v_xor_b32 v{bX[1]}, 64, v{bX[0]}")
    k(f"v_lshlrev_b32 v{T0}, 2, v{T2}", f"v_xor_b32 v{T0}, v{T0}, v{R}",
      f"v_lshlrev_b32 v{T0}, 5, v{T0}",
      f"v_lshl_add_u32 v{T0}, v{CQ}, 3, v{T0}",
      f"v_lshl_add_u32 v{T0}, v{R}, 8, v{T0}",
      f"v_lshl_add_u32 v{T0}, v{G}, 11, v{T0}",
      f"s_lshl_b32 s{sT}, s{sW}, 6", f"s_add_u32 s{sT}, s{sT}, 8192", f"v_xor_b32 v{bQ[0]}, s{sT}, v{T0}", f"v_xor_b32 v{bQ[1]}, 32, v{bQ[0]}",
      f"s_lshl_b32 s{sT}, s{sCH}, 7", f"v_xor_b32 v{bW[0]}, s{sT}, v{T0}")
    for t in range(1, 4):
        k(f"v_xor_b32 v{bW[t]}, {32*t}, v{bW[0]}")
    bases = list(zip(aX + aQ, bX + bQ))
    for a, b in bases + list(zip(aW, bW)):
        k(f"v_mov_b32 v{a}, v{b}")
    for i in range(O[0], z1, 2):
        k(f"v_mov_b64 {vr(i,2)}, 0")
    k(f"v_and_b32 v{T0}, 7, v{L}", f"v_cmp_eq_u32 vcc, 0, v{T0}", f"v_mov_b32 v{IDX}, 0xdddd", f"v_add_u32 v{vRd}, {KVB+SLOT}, v{vLin}",
      f"v_cndmask_b32 v{SUMA}, 0, v{ONES}, vcc", f"v_cndmask_b32 v{SUMA+1}, 0, v{ONES}, vcc",
      f"v_cmp_eq_u32 vcc, 4, v{T0}", f"v_and_b32 v{T0}, 1, v{TOK}", f"v_and_b32 v{T1}, 2, v{TOK}",
      f"v_cndmask_b32 v{SUMA+2}, 0, v{ONES}, vcc", f"v_cndmask_b32 v{SUMA+3}, 0, v{ONES}, vcc",
      f"v_cmp_eq_u32 s[66:67], 1, v{T0}", f"v_cmp_eq_u32 s[68:69], 2, v{T1}", f"v_cmp_eq_u32 s[82:83], v{R}, v{G}")
    k(f"s_lshl_b32 s{sFg}, s{sTB}, 9", f"s_add_u32 s{sFg}, s{sFg}, {FLG}")
    k(f"s_lshr_b32 s{sS1}, s{sHG}, 2", f"s_lshl_b32 s{sS1}, s{sS1}, 5", f"s_add_u32 s{sS1}, s{sS1}, s{sTB}", f"s_lshl_b32 s{sS1}, s{sS1}, 9",
      f"s_add_u32 s{sS1}, s{sS1}, {ST1}")
    k(f"v_lshrrev_b32 v{T0}, 1, v{G}", f"v_lshl_add_u32 v{T0}, v{T2}, 1, v{T0}", f"v_lshlrev_b32 v{T1}, 4, v{TOK}", f"v_lshl_add_u32 v{vHo}, v{T0}, 8, v{T1}",
      f"v_lshlrev_b32 v{T1}, 11, v{TOK}", f"v_lshl_add_u32 v{T0}, v{T0}, 4, v{T1}",
      f"s_lshl_b32 s{sT}, s{sTB}, 1", f"s_add_u32 s{sT}, s{sT}, s{sTH}", f"s_lshl_b32 s{sT}, s{sT}, 16",
      f"s_lshl_b32 s{sT2}, s{sHG}, 1", f"s_add_u32 s{sT2}, s{sT2}, s{sCH}", f"s_lshl_b32 s{sT2}, s{sT2}, 7", f"s_add_u32 s{sT}, s{sT}, s{sT2}",
      f"v_add_u32 v{vRow}, s{sT}, v{T0}")
    k(f"s_lshl_b32 s{sT}, s{sTB}, 3", f"s_add_u32 s{sT}, s{sT}, s{sHG}", f"s_lshl_b32 s{sT}, s{sT}, 14",
      f"s_lshl_b32 s{sT2}, s{sW}, 12", f"s_add_u32 s{sOo}, s{sT}, s{sT2}", f"s_add_u32 s{sOo}, s{sOo}, {OF}",
      f"s_lshl_b32 s{sT2}, s{sCH}, 13", f"s_add_u32 s{sT}, s{sT}, s{sT2}", f"s_lshl_b32 s{sT2}, s{sTH}, 11", f"s_add_u32 s{sT}, s{sT}, s{sT2}",
      f"s_add_u32 s{sH0}, s{sT}, {HF}", f"s_add_u32 s{sH1}, s{sT}, {HF+4096}")
    k(f"s_mov_b32 s{sRd}, 0", f"s_mov_b32 s{sN}, 7", f"s_cmp_eq_u32 s{sW}, 0", f"s_cselect_b32 s{sFl}, 7, -1")
    xstamp(k, 1)

    def diag(dst, src):
        return [f"v_cndmask_b32 v{T0}, v{src}, v{src+1}, s[66:67]", f"v_cndmask_b32 v{T1}, v{src+2}, v{src+3}, s[66:67]",
                f"v_cndmask_b32 v{dst}, v{T0}, v{T1}, s[68:69]"]

    def kv_mf(gi):
        o = []
        for j in (2 * gi, 2 * gi + 1):
            c = "0" if j == 0 else None
            for t in range(2):
                o += [m16(vr(accE[t], 4), vr(EK[j][t], 4), vr(XK[j], 4), c), m16(vr(csE[t], 4), vr(EK[j][t], 4), vr(ONES, 4), c)]
        return o
    kv_rd = lambda gi: [f"ds_read_b64_tr_b16 {vr(EK[j][t]+2*jj,2)}, v{[aE0,aE1][t]} offset:{j*2048+jj*256}"
                        for j in (2 * gi, 2 * gi + 1) for t in range(2) for jj in range(2)]
    kv_ld(0); kv_ld(1)
    k(f"v_xor_b32 v{T0}, 64, v{vXk}", "s_waitcnt vmcnt(8)")
    xstamp(k, 2)
    for j in range(8):
        k(f"ds_read_b128 {vr(XK[j],4)}, v{[vXk,T0][j&1]} offset:{2048*(j>>1)}")
    kv_ld(2)
    k("s_waitcnt lgkmcnt(0)")
    for j in range(8):
        k(m16(vr(sxxE, 4), vr(XK[j], 4), vr(XK[j], 4), "0" if j == 0 else None), m16(vr(sxE, 4), vr(ONES, 4), vr(XK[j], 4), "0" if j == 0 else None))
    k("s_waitcnt vmcnt(8)", kv_rd(0))
    kv_ld(3)
    xstamp(k, 3)
    k("s_barrier")
    k(f"s_add_u32 s{sT}, s{sWr}, {EA}", f"v_add_u32 v{vE}, s{sT}, v{vLin}", f"v_lshl_add_u32 v{vXk}, v{TOK}, 3, s{sT}")
    k(diag(sxE + 1, sxxE))
    for gi in range(1, 4):
        k(f"s_waitcnt vmcnt({12-4*gi}) lgkmcnt(0)", weave(kv_mf(gi - 1), kv_rd(gi), 0, 5))
    xstamp(k, 4)
    k("s_waitcnt lgkmcnt(0)", kv_mf(3), "s_mov_b64 exec, s[82:83]", f"ds_write_b64 v{vXk}, {vr(sxE,2)} offset:4096", "s_mov_b64 exec, -1", "s_nop 3")
    for i, r in enumerate(accE + csE):
        k(f"ds_write_b128 v{vE}, {vr(r,4)} offset:{1024*i}")
    k("s_waitcnt lgkmcnt(0)")
    xstamp(k, 5)
    k(island(back="L_f_back"))
    U = F0 + 48

    def sum4(r):
        return [f"v_add_f32 v{r+e}, v{r+e}, v{r+2+e}" for e in range(2)] + [f"v_add_f32 v{r+4+e}, v{r+4+e}, v{r+6+e}" for e in range(2)] + \
               [f"v_add_f32 v{r+e}, v{r+e}, v{r+4+e}" for e in range(2)]

    def stats(s, scale):
        return [f"v_mul_f32 v{s}, {f32(-1/1024)}, v{s}", f"v_mul_f32 v{s+1}, {f32(1/1024)}, v{s+1}",
                f"v_fma_f32 v{s+1}, -v{s}, v{s}, v{s+1}", f"v_max_f32 v{s+1}, 0, v{s+1}", f"v_add_f32 v{s+1}, {f32(EPS)}, v{s+1}",
                f"v_rsq_f32 v{s+2}, v{s+1}", "s_nop 0", f"v_mul_f32 v{s+2}, {f32(scale)}, v{s+2}" if scale != 1 else None,
                f"v_mul_f32 v{s+1}, v{s}, v{s+2}", f"v_mov_b32 v{s}, v{s+2}"]
    def reads(fi):
        o = []
        for s in range(2):
            f = FQ[fi][s]
            for t in range(2):
                for j in range(2):
                    o.append(f"ds_read_b64_tr_b16 {vr(f['W'][t]+2*j,2)}, v{aQ[t]} offset:{s*8192+j*1024}")
            o += [f"ds_read_b128 {vr(f['X'][i],4)}, v{aX[s]} offset:{2048*i}" for i in range(4)]
        return o

    def mfmas(fi):
        X = lambda s, i: vr(FQ[fi][s]["X"][i], 4)
        W = lambda s, t: vr(FQ[fi][s]["W"][t], 4)
        o = [m16(vr(cs[t], 4), W(s, t), vr(ONES, 4)) for t in range(2) for s in range(2)]
        for i in range(4):
            o += [m16(vr(qacc[t ^ (i & 1)][i], 4), W(s, t ^ (i & 1)), X(s, i)) for t in range(2) for s in range(2)]
        return o
    va = [f"v_add_u32 v{a}, s{sRd}, v{b}" for a, b in bases]
    adv = [[f"s_add_u32 s{sRd}, s{sRd}, {STG}", f"s_cmp_eq_u32 s{sRd}, {EA}"], [f"s_cselect_b32 s{sRd}, 0, s{sRd}"]] + \
          [va[i:i + 2] for i in range(0, len(va), 2)]
    k("s_barrier")
    xstamp(k, 7)
    if OPT.get('qcyc'):
        mid_stamp(k, 0)
    for w in range(4):
        k(f"ds_read_b64 {vr(U+2*w,2)}, v{aS} offset:{16384*w}")
    for w in range(4):
        k(f"ds_read_b64 {vr(U+8+2*w,2)}, v{aP} offset:{16384*w}", f"ds_read_b64 {vr(U+16+2*w,2)}, v{aP} offset:{16384*w+2048}")
    r0 = reads(0)
    k(r0[:3], "s_waitcnt lgkmcnt(11)", weave(sum4(U) + [x for x in stats(U, 1) if x], r0[3:12], 0, 12), "s_waitcnt lgkmcnt(12)",
      weave(sum4(U + 8) + sum4(U + 16), r0[12:]))
    for e in range(2):
        k(f"v_mul_f32 v{U+8+e}, v{U}, v{U+8+e}", f"v_fmac_f32 v{U+8+e}, v{U+1}, v{U+16+e}")
    k(f"v_cvt_pk_bf16_f32 v{U+8}, v{U+8}, v{U+9}", f"ds_write_b16 v{aG0}, v{U+8}", f"ds_write_b16_d16_hi v{aG1}, v{U+8}",
      f"v_mov_b64 {vr(sxxE,2)}, {vr(U,2)}")
    k(adv, f"v_lshlrev_b32 v{aP}, 3, v{L}", "s_waitcnt lgkmcnt(0)")
    k.label("L_f_qloop")
    for f in range(2):
        k("s_barrier")
        m = weave(mfmas(f), reads(1 - f), 0, OPT.get('qw', 13))
        if f == 0:
            k(weave(m, adv + [[f"s_cmp_eq_u32 s{sN}, s{sFl}"]], len(m) - 6, len(m) - 1))
            k("s_cbranch_scc1 L_f_flag")
            k.label("L_f_flagged")
        else:
            k(weave(m, adv + [[f"s_sub_u32 s{sN}, s{sN}, 1", f"s_cmp_lg_u32 s{sN}, 0"]], len(m) - 6, len(m) - 1))
        k("s_waitcnt lgkmcnt(0)")
    k("s_cbranch_scc1 L_f_qloop")
    k("s_barrier")
    ST = [sx + 2 * i for i in range(4)]
    k(f"buffer_load_dwordx2 {vr(ST[0],2)}, v{aP}, s[{SWS}:{SWS+3}], s{sS1} offen sc1")
    k(weave(mfmas(0), reads(1), 0, 11), "s_waitcnt lgkmcnt(0)")

    def qfin(i, packed):
        o, d = [], Q[i >> 1] + 4 * (i & 1)
        for t in range(2):
            a = qacc[t][i]
            if packed:
                o += [f"v_pk_mul_f32 {vr(a+hh,2)}, {vr(a+hh,2)}, {vr(ST[i],2)} op_sel_hi:[1,0]" for hh in (0, 2)]
                o += [f"v_pk_fma_f32 {vr(a+hh,2)}, {vr(cs[t]+hh,2)}, {vr(ST[i],2)}, {vr(a+hh,2)} op_sel:[0,1,0] op_sel_hi:[1,1,1]" for hh in (0, 2)]
            else:
                o += [f"v_mul_f32 v{a+r}, v{ST[i]}, v{a+r}" for r in range(4)] + [f"v_fmac_f32 v{a+r}, v{ST[i]+1}, v{cs[t]+r}" for r in range(4)]
            o += [f"v_cvt_pk_bf16_f32 v{d+2*t}, v{a}, v{a+1}", f"v_cvt_pk_bf16_f32 v{d+2*t+1}, v{a+2}, v{a+3}"]
        return o
    m = mfmas(1)
    q0 = qfin(0, False)
    two = lambda f_: [f_(e) for e in range(2)]
    bc = [two(lambda e: f"v_mul_f32 v{ST[1]+e}, {f32(QSCALE)}, v{ST[0]+e}"), two(lambda e: f"v_mul_f32 v{ST[0]+e}, {f32(QSCALE)}, v{ST[0]+e}"), ["s_nop 0"],
          two(lambda e: f"v_permlane16_swap_b32 v{ST[0]+e}, v{ST[1]+e}"),
          two(lambda e: f"v_mov_b32 v{ST[2]+e}, v{ST[0]+e}"), two(lambda e: f"v_mov_b32 v{ST[3]+e}, v{ST[1]+e}"),
          two(lambda e: f"v_permlane32_swap_b32 v{ST[0]+e}, v{ST[2]+e}"), two(lambda e: f"v_permlane32_swap_b32 v{ST[1]+e}, v{ST[3]+e}")]
    k(m[0], f"s_mov_b32 s{sRd}, {KVB+SLOT}", m[1], f"s_mov_b32 s{sC}, 8", m[2:5], "s_waitcnt vmcnt(0)",
      weave(m[5:13], bc), weave(m[13:], q0[:14]), q0[14:])
    xstamp(k, 8)
    if OPT.get('qcyc'):
        mid_stamp(k, 1)
    k(qfin(1, True), qfin(2, True), qfin(3, True))
    for r0, n in ((S[3], 16), (VB[1], 8)):
        for i in range(0, n, 2):
            k(f"v_mov_b64 {vr(r0+i,2)}, 0")
    for p in range(2):
        for r in range(4):
            k(f"v_permlane16_swap_b32 v{Q[p]+r}, v{Q[p]+4+r}")
    k("s_branch L_f_att")
    k.label("L_f_flag")
    k(f"s_cmp_lg_u32 s{sFl}, 7", "s_cbranch_scc1 L_f_flag2")
    k(f"ds_read_b128 {vr(sxE,4)}, v{vE} offset:8192", f"v_lshlrev_b32 v{T0}, 3, v{L}",
      f"s_cmp_eq_u32 s{sHG}, 0", f"s_cselect_b32 s{sT}, s{sFg}, {OOB}",
      f"buffer_store_dwordx2 {vr(O[0],2)}, v{T0}, s[{SWS}:{SWS+3}], s{sT} offen sc1",
      f"s_and_b32 s{sT}, s{sHG}, 3", f"s_lshl_b32 s{sT}, s{sT}, 7", f"s_add_u32 s{sT}, s{sT}, s{sS1}", "s_mov_b64 exec, 0xffff",
      f"buffer_store_dwordx2 {vr(sxxE,2)}, v{T0}, s[{SWS}:{SWS+3}], s{sT} offen sc1", "s_mov_b64 exec, -1", "s_waitcnt lgkmcnt(0)",
      f"buffer_store_dwordx4 {vr(sxE,4)}, v{vKo}, s[{SKV}:{SKV+3}], s{sKV} offen sc1",
      f"s_mov_b32 s{sFl}, {OPT.get('flagit', 5)}", "s_branch L_f_flagged")
    k.label("L_f_flag2")
    k(f"s_and_b32 s{sT}, s2, 0xfc", f"v_mov_b32 v{T0}, s{sT}", f"v_mov_b32 v{T1}, 1", "s_mov_b64 exec, 1", "s_waitcnt vmcnt(0)",
      f"global_atomic_add v{T0}, v{T1}, s[{SDBG}:{SDBG+1}] sc1", "s_mov_b64 exec, -1", "s_branch L_f_flagged")
    k(island(back="L_f_back", jump=False))
    k.label("L_f_att")
    k("s_barrier")
    if not (OPT.get('qcyc') or OPT.get('ocyc')):
        mid_stamp(k, 0)
    rdK = lambda t: [f"ds_read_b128 {vr(KB[t&1]+4*m,4)}, v{vRd} offset:{(t%8)*4096+1024*m}" for m in range(2)]
    rdV = lambda t: [f"ds_read_b128 {vr(VB[t&1]+4*m,4)}, v{vRd} offset:{(t%8)*4096+2048+1024*m}" for m in range(2)]
    qk = lambda u, c="0": [m32(vr(S[u % 4], 16), vr(KB[(u >> 1) & 1], 4), vr(Q[u & 1], 4), c),
                           m32(vr(S[u % 4], 16), vr(KB[(u >> 1) & 1] + 4, 4), vr(Q[u & 1] + 4, 4))]
    pv = lambda u: [f"v_smfmac_f32_32x32x32_bf16 {vr(O[u&1],16)}, {vr(VB[(u>>1)&1]+4*m,4)}, {vr(S[u%4]+8*m,8)}, v{IDX}" for m in range(2)]
    sm = lambda u: [f"v_smfmac_f32_16x16x64_bf16 {vr(LS[u&1],4)}, {vr(SUMA,4)}, {vr(S[u%4]+8*m,8)}, v{IDX}" for m in range(2)]
    vO, aO0, aO1 = aG0, aG1, vKo
    k(rdK(0), rdV(0), rdK(1))
    k(f"s_mov_b32 s{sT}, 32768")
    for i in range(2):
        for b in range(2):
            k(f"buffer_load_dwordx4 {vr(RES[i][b],4)}, v{vRow}, s[{SX}:{SX+3}], {['0', f's{sT}'][i]} offen offset:{64*b}")
    k("s_waitcnt lgkmcnt(4)", qk(0))
    bT, aT = bX[0], aX[0]
    k(f"v_and_b32 v{T0}, 1, v{G}", f"v_lshlrev_b32 v{T0}, 10, v{T0}", f"v_lshrrev_b32 v{T1}, 5, v{L}",
      f"v_lshl_add_u32 v{T0}, v{T1}, 8, v{T0}", f"v_lshl_add_u32 v{vO}, v{TOK}, 4, v{T0}",
      f"s_lshl_b32 s{sT}, s{sW}, 12", f"s_add_u32 s{sT}, s{sT}, {XR}", f"v_add_u32 v{aO0}, s{sT}, v{vO}",
      f"s_lshl_b32 s{sT}, s{sTH}, 11", f"s_add_u32 s{sT}, s{sT}, {XR}", f"v_add_u32 v{bT}, s{sT}, v{vLin}", f"v_add_u32 v{aT}, s{sT}, v{vLin}")
    k(".p2align 6")
    k.label("L_k1_loop")
    for u in range(16):
        ex = [f"v_exp_f32 v{S[u%4]+i}, v{S[u%4]+i}" for i in range(16)]
        mf = qk(u + 1) + pv(u - 1) + sm(u - 1)
        sl = [[] for _ in range(6)]
        rd = rdV(u // 2 + 1) if u % 2 == 0 else rdK((u + 3) // 2)
        sl[4].append(rd[0]); sl[5].append(rd[1])
        if u % 2 == 0:
            sl[3].append("s_waitcnt lgkmcnt(0)")
        if u == 9:
            sl[2].append(f"s_add_u32 s{sRd}, s{sRd}, {SLOT}"); sl[3].append(f"s_cmp_eq_u32 s{sRd}, {KVB+3*SLOT}")
        if u == 10:
            sl[2].append(f"s_cselect_b32 s{sRd}, {KVB}, s{sRd}")
        if u == 13:
            sl[1].append(f"v_add_u32 v{vRd}, s{sRd}, v{vLin}")
            sl[2].append("s_waitcnt lgkmcnt(0)"); sl[3].append("s_barrier")
        if u == 15:
            sl[2].append(f"s_sub_u32 s{sC}, s{sC}, 1"); sl[3].append(f"s_cmp_lg_u32 s{sC}, 0")
        cuts = [0, 3, 6, 9, 12, 14, 16] if (u < 15 or not OPT.get("brs", 1)) else [0, 3, 7, 10, 14, 16, 16]
        for i in range(6):
            k(mf[i], sl[i], ex[cuts[i]:cuts[i + 1]])
    k("s_cbranch_scc1 L_k1_loop")
    if not (OPT.get('qcyc') or OPT.get('ocyc')):
        mid_stamp(k, 1)
    vO, aO0, aO1 = aG0, aG1, vKo
    PK = [KB[0], VB[1]]

    def check(q):
        o = [f"v_maximum3_f32 v{T0}, abs(v{O[q]}), abs(v{O[q]+1}), v{LS[q]}", f"v_maximum3_f32 v{T1}, abs(v{O[q]+2}), abs(v{O[q]+3}), abs(v{O[q]+4})"]
        for i in range(5, 15, 2):
            t = [T0, T1][(i // 2) & 1]
            o.append(f"v_maximum3_f32 v{t}, abs(v{O[q]+i}), abs(v{O[q]+i+1}), v{t}")
        o += [f"v_maximum3_f32 v{T0}, abs(v{O[q]+15}), v{T1}, v{T0}",
              f"v_cmp_nle_f32 vcc, {f32(2.0**-80)}, v{LS[q]}", f"s_mov_b64 s[70:71], vcc",
              f"v_cmp_nge_f32 vcc, {f32(2.0**100)}, v{T0}", f"s_or_b64 s[70:71], s[70:71], vcc",
              "s_branch L_k1_slow" if OPT["force_slow"] == q + 1 else None, "s_cbranch_scc1 L_k1_slow"]
        return o

    def out(q):
        o = [f"v_rcp_f32 v{LS[q]}, v{LS[q]}", "s_nop 0"]
        for m in range(2):
            d = PK[q] + 4 * m
            o += [f"v_pk_mul_f32 {vr(O[q]+8*m+i,2)}, {vr(O[q]+8*m+i,2)}, {vr(LS[q],2)} op_sel_hi:[1,0]" for i in range(0, 8, 2)]
            o += [f"v_cvt_pk_bf16_f32 v{d+i}, v{O[q]+8*m+2*i}, v{O[q]+8*m+2*i+1}" for i in range(4)]
            o.append(f"buffer_store_dwordx4 {vr(d,4)}, v{vO}, s[{SWS}:{SWS+3}], s{sOo} offen offset:{2048*q+512*m} sc1")
        return o
    k(pv(15), sm(15), "s_nop 9", check(0), out(0), check(1))
    k.label("L_k1_out")
    k(out(1))
    for q in range(2):
        for m in range(2):
            k(f"ds_write_b128 v{aO0}, {vr(PK[q]+4*m,4)} offset:{2048*q+512*m}")
    k("s_branch L_f_oproj")
    k(island(back="L_f_back2", jump=False))
    k.label("L_f_oproj")
    k("s_waitcnt vmcnt(4)")
    for i in range(2):
        for b in range(2):
            k(f"v_permlane16_swap_b32 v{RES[i][b]}, v{RES[i][b]+2}", f"v_permlane16_swap_b32 v{RES[i][b]+1}, v{RES[i][b]+3}")
    sig = lambda h: ["s_mov_b64 exec, 1", "s_waitcnt vmcnt(0)", f"buffer_atomic_add v{T0}, off, s[{SWS}:{SWS+3}], s{sFg} offset:{256*h} sc1", "s_mov_b64 exec, -1"]
    k(f"v_mov_b32 v{T0}, 1", f"s_cmp_ge_u32 s{sHG}, 4", "s_cbranch_scc1 L_f_sig0", sig(0))
    k.label("L_f_sig0")
    k(f"s_mov_b32 s{sRd}, 0", "s_waitcnt lgkmcnt(0)", "s_barrier")

    def oreads(fi):
        o = [f"ds_read_b128 {vr(F[fi][s]['X'][i],4)}, v{aT} offset:{s*4096+i*1024}" for s in range(2) for i in range(2)]
        for s in range(2):
            for t in range(4):
                for j in range(2):
                    o.append(f"ds_read_b64_tr_b16 {vr(F[fi][s]['W'][t]+2*j,2)}, v{aW[t]} offset:{s*8192+j*1024}")
        return o

    def omf(fi, s):
        return [m16(vr(acc[t][i ^ (t & 1)], 4), vr(F[fi][s]["W"][t], 4), vr(F[fi][s]["X"][i ^ (t & 1)], 4)) for t in range(4) for i in range(2)]
    oadv = [[f"s_add_u32 s{sRd}, s{sRd}, 16384", f"s_and_b32 s{sRd}, s{sRd}, 0x1ffff"], [f"s_bfe_u32 s{sRx}, s{sRd}, 0xf0001", f"v_add_u32 v{aW[0]}, s{sRd}, v{bW[0]}"],
            [f"v_add_u32 v{aW[t]}, s{sRd}, v{bW[t]}" for t in (1, 2)], [f"v_add_u32 v{aW[3]}, s{sRd}, v{bW[3]}", f"v_add_u32 v{aT}, s{sRx}, v{bT}"]]

    def ostep(f, adv_, extra=()):
        r = oreads(1 - f)
        sl = [[] for _ in range(16)]
        for i, x in enumerate(r[:12]):
            sl[(i * 8) // 12].append(x)
        for i, x in enumerate(r[12:]):
            sl[8 + i].append(x)
        if adv_:
            sl[1].append(f"s_add_u32 s{sRd}, s{sRd}, 16384"); sl[3].append(f"s_and_b32 s{sRd}, s{sRd}, 0x1ffff")
            sl[5].append(f"s_bfe_u32 s{sRx}, s{sRd}, 0xf0001"); sl[8].append(f"v_add_u32 v{aT}, s{sRx}, v{bT}")
            for t in range(4):
                sl[9 + 2 * t].append(f"v_add_u32 v{aW[t]}, s{sRd}, v{bW[t]}")
        for i, x in enumerate(extra):
            sl[10 + 2 * i].append(x)
        sl[7].append("s_waitcnt lgkmcnt(12)"); sl[15].append("s_waitcnt lgkmcnt(8)")
        for m, e in zip(omf(f, 0) + omf(f, 1), sl):
            k(m, e)
    if OPT.get("ocyc"):
        mid_stamp(k, 0)
    k(oreads(0), oadv)
    for i in range(2):
        for b in range(2):
            for jt in range(2):
                for hh in range(2):
                    a, r = acc[2 * b + jt][i] + 2 * hh, RES[i][b] + 2 * jt + hh
                    k(f"v_lshlrev_b32 v{a}, 16, v{r}", f"v_and_b32 v{a+1}, 0xffff0000, v{r}")
    k(f"s_cmp_lt_u32 s{sHG}, 4", "s_cbranch_scc1 L_f_sig1", sig(1))
    k.label("L_f_sig1")
    xstamp(k, 9)
    k(f"s_lshl_b32 s{sT}, s{sTB}, 1", f"s_add_u32 s{sT}, s{sT}, s{sTH}", f"s_lshl_b32 s{sT}, s{sT}, 12",
      f"s_lshl_b32 s{sT2}, s{sHG}, 1", f"s_add_u32 s{sT2}, s{sT2}, s{sCH}", f"s_lshl_b32 s{sT2}, s{sT2}, 8",
      f"s_add_u32 s{sT}, s{sT}, s{sT2}", f"s_add_u32 s{sFg}, s{sT}, {STP}", f"s_mov_b32 s{sN}, 7", "s_waitcnt lgkmcnt(0)")
    k.label("L_f_oloop")
    k("s_barrier")
    ostep(0, True)
    k("s_barrier")
    ostep(1, True, [f"s_sub_u32 s{sN}, s{sN}, 1", f"s_cmp_lg_u32 s{sN}, 0"])
    k("s_cbranch_scc1 L_f_oloop")
    k("s_barrier")
    ostep(0, False)
    k(omf(1, 0), "s_waitcnt lgkmcnt(0)", omf(1, 1), "s_nop 3")
    if OPT.get("ocyc"):
        mid_stamp(k, 1)
    SUM = [O[0], O[0] + 4]
    for b in range(2):
        for i in range(2):
            o = Q[b] + 4 * i
            for jt in range(2):
                a = acc[2 * b + jt][i]
                k(f"v_cvt_pk_bf16_f32 v{o+2*jt}, v{a}, v{a+1}", f"v_cvt_pk_bf16_f32 v{o+2*jt+1}, v{a+2}, v{a+3}")
        k("s_nop 0")
        for i in range(2):
            o = Q[b] + 4 * i
            k(f"v_permlane16_swap_b32 v{o}, v{o+2}", f"v_permlane16_swap_b32 v{o+1}, v{o+3}",
              f"buffer_store_dwordx4 {vr(o,4)}, v{vHo}, s[{SWS}:{SWS+3}], s{[sH0,sH1][b]} offen offset:{1024*i} sc1")
    for t in range(4):
        for hh in (0, 2):
            for i in range(2):
                a = vr(acc[t][i] + hh, 2)
                if t == 0 and hh == 0:
                    k(f"v_pk_mul_f32 {vr(SUM[i]+2,2)}, {a}, {a}")
                else:
                    src = vr(acc[0][i], 2) if (t == 0 and hh == 2) else vr(SUM[i], 2)
                    k(f"v_pk_add_f32 {vr(SUM[i],2)}, {src}, {a}", f"v_pk_fma_f32 {vr(SUM[i]+2,2)}, {a}, {a}, {vr(SUM[i]+2,2)}")
    for i in range(2):
        k(f"v_add_f32 v{SUM[i]}, v{SUM[i]}, v{SUM[i]+1}", f"v_add_f32 v{SUM[i]+1}, v{SUM[i]+2}, v{SUM[i]+3}")
    k(f"v_lshrrev_b32 v{T0}, 6, v{vHo}", f"v_permlane32_swap_b32 v{SUM[0]}, v{SUM[0]+1}", f"v_permlane32_swap_b32 v{SUM[1]}, v{SUM[1]+1}", "s_nop 0",
      f"v_add_f32 v{SUM[0]}, v{SUM[0]}, v{SUM[0]+1}", f"v_add_f32 v{SUM[1]}, v{SUM[1]}, v{SUM[1]+1}",
      f"v_and_b32 v{T0}, 12, v{T0}", f"v_lshl_add_u32 v{T0}, v{TOK}, 4, v{T0}",
      f"v_permlane16_swap_b32 v{SUM[0]}, v{SUM[1]}", "s_nop 0",
      f"v_add_f32 v{SUM[0]}, v{SUM[0]}, v{SUM[1]}",
      f"buffer_store_dword v{SUM[0]}, v{T0}, s[{SWS}:{SWS+3}], s{sFg} offen sc1")
    tail(k, 0, sW)
    k(island(back="L_f_back", jump=False))
    k.label("L_f_setup")
    if OPT.get("isl", 1):
        k(f"s_cmp_eq_u32 s{sW}, 0", f"s_cbranch_scc1 L_isl{ISL[0][0]}", f"s_cmp_eq_u32 s{sW}, 1", f"s_cbranch_scc1 L_isl{ISL[1][0]}")
    k.label("L_f_back")
    k("s_waitcnt lgkmcnt(0)", ws_shift(SWS), srd_tail(SWS, WS_SZ), srd_from(SKV, SWS, KVF, 262144))
    k(f"s_lshl_b32 s{sGW}, s2, 2", f"s_add_u32 s{sGW}, s{sGW}, s{sW}",
      f"s_lshl_b32 s{sWrJ}, s{sW}, 12", f"s_add_u32 s{sWrJ}, s{sWrJ}, {JB}")
    k(f"v_lshrrev_b32 v{T0}, 4, v{L}", f"v_lshlrev_b32 v{T0}, 10, v{T0}", f"v_bfe_u32 v{T1}, v{L}, 2, 2", f"v_lshl_add_u32 v{T0}, v{T1}, 7, v{T0}",
      f"v_bfe_u32 v{T1}, v{L}, 3, 1", f"v_lshl_add_u32 v{T0}, v{T1}, 6, v{T0}", f"v_add_u32 v{T0}, s{sWrJ}, v{T0}", f"v_and_b32 v{T1}, 3, v{L}",
      f"v_lshl_add_u32 v{bJ[0]}, v{T1}, 4, v{T0}", f"v_xor_b32 v{bJ[1]}, 64, v{bJ[0]}")
    strip, kb0, mat = 66, 67, 68
    k(f"s_lshr_b32 s{strip}, s{sGW}, 3", f"s_and_b32 s{kb0}, s{sGW}, 7", f"s_lshl_b32 s{kb0}, s{kb0}, 2",
      f"s_cmp_ge_u32 s{strip}, 112", "s_cbranch_scc1 L_k1_wo")
    if "jskip" in OPT:
        k(f"s_and_b32 s{sT}, s2, 1", f"s_cmp_eq_u32 s{sT}, {OPT['jskip']}", "s_cbranch_scc1 L_k1_wo")
    k(f"s_cmp_ge_u32 s{strip}, 56", f"s_cselect_b32 s{mat}, 1, 0",
      f"s_cselect_b32 s{SJ}, s26, s24", f"s_cselect_b32 s{SJ+1}, s27, s25",
      f"s_mul_i32 s{sT}, s{mat}, 56", f"s_sub_u32 s{strip}, s{strip}, s{sT}",
      f"s_mov_b32 s{SJ+2}, {1024*7168}", f"s_mov_b32 s{sStr}, 7168", f"s_mov_b32 s{sDstep}, {14*1024}",
      f"s_mov_b32 s{sBsz}, {3584*2048}",
      f"v_lshl_add_u32 v{aJ[0]}, v{T1}, 3, v{T0}")
    for i in range(1, 4):
        k(f"v_xor_b32 v{aJ[i]}, {32*i}, v{aJ[0]}")
    for i in range(4):
        T, fb, pos = 69, 70, 71
        k(f"s_lshl_b32 s{T}, s{strip}, 2", f"s_add_u32 s{T}, s{T}, {i}",
          f"s_mul_i32 s{fb}, s{T}, 9363", f"s_lshr_b32 s{fb}, s{fb}, 16",
          f"s_sub_u32 s{pos}, s{mat}, s{fb}", f"s_mul_i32 s{pos}, s{pos}, 7", f"s_add_u32 s{pos}, s{T}, s{pos}",
          f"s_lshl_b32 s{sT}, s{fb}, 5", f"s_add_u32 s{sT}, s{sT}, s{kb0}", f"s_mul_i32 s{sT}, s{sT}, 14",
          f"s_add_u32 s{sT}, s{sT}, s{pos}", f"s_lshl_b32 s{sT}, s{sT}, 10", f"s_add_u32 s{sD[i]}, s{sT}, {WGU}",
          f"s_lshl_b32 s{sT}, s{kb0}, 3", f"s_add_u32 s{sT}, s{sT}, s{fb}", f"s_mul_i32 s{sT}, s{sT}, 14",
          f"s_add_u32 s{sT}, s{sT}, s{pos}", f"s_lshl_b32 s{sT}, s{sT}, 6", f"s_add_u32 s{sCs[i]}, s{sT}, {CSP}")
    k("s_branch L_k1_jp")
    k.label("L_k1_wo")
    k(f"s_mov_b32 s{SJ}, s24", f"s_mov_b32 s{SJ+1}, s25", f"s_mov_b32 s{SJ+2}, 0", f"s_mov_b32 s{sStr}, 2048", f"s_mov_b32 s{sDstep}, 0", f"s_mov_b32 s{sBsz}, 0")
    for i in range(4):
        k(f"s_mov_b32 s{sD[i]}, {OOB}", f"s_mov_b32 s{sCs[i]}, {OOB}", f"v_mov_b32 v{aJ[i]}, v{bJ[0]}")
    k.label("L_k1_jp")
    k(f"s_mov_b32 s{SJ+3}, 0x00020000")
    k(f"v_lshrrev_b32 v{T0}, 3, v{L}", f"v_bfe_u32 v{T1}, v{L}, 4, 1", f"v_lshlrev_b32 v{T1}, 2, v{T1}",
      f"v_and_b32 v{T2}, 7, v{L}", f"v_xor_b32 v{T1}, v{T1}, v{T2}", f"v_lshlrev_b32 v{T1}, 4, v{T1}",
      f"v_mul_lo_u32 v{vJ}, v{T0}, s{sStr}", f"v_lshl_add_u32 v{vJB}, v{T0}, 11, v{T1}", f"v_add_u32 v{vJ}, v{vJ}, v{T1}",
      f"s_lshl_b32 s{sT}, s{kb0}, 5", f"s_mul_i32 s{sT}, s{sT}, s{sStr}", f"s_lshl_b32 s{sT2}, s{strip}, 7", f"s_add_u32 s{sT}, s{sT}, s{sT2}",
      f"v_add_u32 v{vJ}, s{sT}, v{vJ}",
      f"s_lshl_b32 s{sT}, s{sStr}, 3", f"s_sub_u32 s{sJa}, s{sT}, 1024", f"s_add_u32 s{sJb}, s{sT}, 3072", f"s_mov_b32 s{sJo}, 0")
    k(f"s_mul_i32 s{strip}, s{sGW}, 1171", f"s_lshr_b32 s{strip}, s{strip}, 16",
      f"s_mul_i32 s{sT}, s{strip}, 56", f"s_sub_u32 s{kb0}, s{sGW}, s{sT}", f"s_lshl_b32 s{kb0}, s{kb0}, 1",
      f"s_cmp_ge_u32 s{kb0}, 48", f"s_cselect_b32 s69, 48, 0", f"s_cselect_b32 s70, 8, 0", f"s_sub_u32 s69, s{kb0}, s69",
      f"s_and_b32 s71, s69, 7", f"s_add_u32 s70, s70, s71", f"s_lshr_b32 s69, s69, 3",
      f"s_sub_u32 s71, s{kb0}, 96", f"s_cmp_ge_u32 s{kb0}, 96", f"s_cselect_b32 s69, 6, s69", f"s_cselect_b32 s70, s71, s70",
      f"s_mul_i32 s70, s70, 14", f"s_add_u32 s{sT}, s70, s69", f"s_lshl_b32 s{sT}, s{sT}, 15",
      f"s_lshl_b32 s{sT2}, s{strip}, 7", f"s_add_u32 s{sT}, s{sT}, s{sT2}",
      f"v_add_u32 v{vJB}, s{sT}, v{vJB}",
      f"s_lshr_b32 s{sT}, s{strip}, 1", f"s_mul_i32 s{sT}, s{sT}, 112", f"s_add_u32 s{sT}, s{sT}, s{kb0}", f"s_lshl_b32 s{sT}, s{sT}, 1",
      f"s_and_b32 s{sT2}, s{strip}, 1", f"s_add_u32 s{sT}, s{sT}, s{sT2}", f"s_lshl_b32 s{sT}, s{sT}, 12",
      f"s_add_u32 s{sDB}, s{sT}, {WDF}", f"s_cmp_eq_u32 s{sBsz}, 0", f"s_cselect_b32 s{sDB}, {OOB}, s{sDB}")
    k(f"v_and_b32 v{T0}, 15, v{L}", f"v_cmp_eq_u32 vcc, 0, v{T0}", f"v_mov_b32 v{T1}, {OOB}", "s_nop 0",
      f"v_cndmask_b32 v{vCs}, v{T1}, v{L}, vcc")
    for i in range(4):
        k(f"v_mov_b32 v{ONES+i}, 0x3f803f80")
    k(f"v_lshlrev_b32 v{vPo}, 2, v{L}")
    if OPT.get("hprof"):
        k("v_writelane_b32 v200, s92, 0", "s_mov_b32 s86, 5")
    hstamp(k, 1)
    k("s_barrier")
    hstamp(k, 2)
    npre = OPT.get("npre", 2)
    for n in range(npre):
        q_x(n * STG); q_w(n * STG)
    hstamp(k, 3)
    k(f"s_waitcnt vmcnt({6*(npre-1)})", "s_barrier")
    hstamp(k, 4)
    for n in range(npre, 4):
        q_x(n * STG); q_w(n * STG)
    k("s_waitcnt vmcnt(12)", "s_barrier")
    k.label("L_f_ld2")
    if OPT.get("hprof"):
        k("s_mov_b32 m0, s86", "s_add_u32 s86, s86, 1")
    hstamp(k, "m0")
    q_stage()
    k(f"s_cmp_lg_u32 s{sN}, 0", f"s_waitcnt vmcnt({6*D})", "s_barrier", "s_cbranch_scc1 L_f_ld2")
    hstamp(k, 17)
    poll = f"global_load_dword v{PF4}, v{vPo}, s[{SDBG}:{SDBG+1}] sc1"
    k(f"s_lshl_b32 s{sKo}, s{sW}, 13", f"s_add_u32 s{sWr}, s{sKo}, {KVB}", f"s_mov_b32 s{sN}, {1<<20}")
    if OPT.get("kvrot", 0):
        k(f"s_bfe_u32 s{sT}, s2, {0x30003 if OPT.get('kvrot', 1) == 1 else 0x30000}", f"s_lshl_b32 s{sT}, s{sT}, 15", f"s_add_u32 s{sKo}, s{sKo}, s{sT}")
    k(f"s_cmp_eq_u32 s{sW}, 0", "s_cbranch_scc1 L_f_poll0", "s_waitcnt vmcnt(6)", "s_barrier", "s_waitcnt vmcnt(0)", "s_branch L_f_polled")
    k.label("L_f_poll0")
    k(poll, "s_waitcnt vmcnt(7)", "s_barrier")
    k.label("L_f_poll")
    k("s_waitcnt vmcnt(0)", f"v_cmp_ne_u32 vcc, 4, v{PF4}", f"s_sub_u32 s{sN}, s{sN}, 1", "s_cbranch_scc1 L_f_polled",
      "s_cbranch_vccz L_f_polled", "s_sleep 2", poll, "s_branch L_f_poll")
    k.label("L_f_polled")
    hstamp(k, 18)
    k("s_barrier")
    hstamp(k, 19)

    def kv_dma(c):
        o = []
        for hh in range(2):
            o += [f"s_add_u32 m0, s{sWr}, {((c+1)%3)*SLOT+4096*hh}", "s_nop 0"]
            for i in range(4):
                o.append(f"buffer_load_dwordx4 v{vLin}, s[{SKV}:{SKV+3}], s{sKo} offen offset:{1024*i} sc1 lds")
            o.append(f"s_add_u32 s{sKo}, s{sKo}, {4096 if hh == 0 else 32768-4096}")
        o.append(f"s_and_b32 s{sKo}, s{sKo}, 0x3ffff")
        return o
    k(kv_dma(0))
    hstamp(k, 20)
    k([kv_dma(1), "s_waitcnt vmcnt(8)"] if OPT.get("kv1", 0) else "s_waitcnt vmcnt(0)")
    hstamp(k, 21)
    k("s_barrier")
    hstamp(k, 22)
    vm = []

    def wait_for(*tag):
        n = len(vm) - 1 - max(i for i, t in enumerate(vm) if t in tag)
        return f"s_waitcnt vmcnt({n})"
    vm += ["kv1"] * 8
    k(f"s_mov_b32 s{SWQ}, s20", f"s_mov_b32 s{SWQ+1}, s21",
      f"s_lshl_b32 s{sBW}, s{sTH}, 1", f"s_add_u32 s{sBW}, s{sBW}, s{sCH}", f"s_lshl_b32 s{sBW}, s{sBW}, 10",
      f"s_lshl_b32 s{sRd}, s{sW}, 11", f"s_lshl_b32 s{sOo}, s{sTB}, 17", f"s_add_u32 s{sOo}, s{sOo}, s{sRd}", f"s_add_u32 s{sOo}, s{sOo}, {OF}")
    if not OPT.get("kv1", 0):
        k(kv_dma(1))

    def kstage(n, sh):
        if n < 2:
            return [f"s_lshl_b32 s{sT}, s{sHG}, {sh+1}", f"s_add_u32 s{sT}, s{sT}, {n<<sh}"]
        i = n >> 1
        if i == 4:
            return [f"s_xor_b32 s{sT}, s{sHG}, 4", f"s_lshl_b32 s{sT}, s{sT}, {sh+1}", f"s_add_u32 s{sT}, s{sT}, {(n&1)<<sh}"]
        return [f"s_add_u32 s{sT}, s{sHG}, {i}", f"s_and_b32 s{sT}, s{sT}, 3", f"s_lshl_b32 s{sT}, s{sT}, {sh+1}",
                f"s_add_u32 s{sT}, s{sT}, {((n&1) + (8 if i > 4 else 0))<<sh}"]

    def o_w(n, pieces=range(4)):
        k(kstage(n, 17))
        for i in pieces:
            k(f"s_add_u32 m0, s{sBW}, {(n%8)*16384+4096*i}", "s_nop 0", f"buffer_load_dwordx4 v{vW[i]}, s[{SWQ}:{SWQ+3}], s{sT} offen lds")
        vm.extend([f"w{n}"] * len(pieces))

    def o_x(n):
        k(kstage(n, 13), f"s_add_u32 m0, s{sRd}, {XR+(n%4)*8192}", f"s_add_u32 s{sT}, s{sT}, s{sOo}")
        for i in range(2):
            k(f"buffer_load_dwordx4 v{vLin}, s[{SWS}:{SWS+3}], s{sT} offen offset:{1024*i} sc1 lds")
        vm.extend([f"x{n}"] * 2)
    for c in range(8):
        if c + 2 < 8:
            k(kv_dma(c + 2)); vm += [f"kv{c+2}"] * 8
        if c < (3 if OPT.get("s4", 0) else 1):
            k(f"s_lshl_b32 s{sT}, s{sGW}, 12", f"s_add_u32 s{sT}, s{sT}, {XB4[c+1]}", f"v_mov_b64 {vr(PF4,2)}, -1", f"v_mov_b64 {vr(PF4+2,2)}, -1")
            for i in range(4):
                k(f"buffer_store_dwordx4 {vr(PF4,4)}, v{vLin}, s[{SWS}:{SWS+3}], s{sT} offen offset:{1024*i} sc1")
            vm += ["st"] * 4
        if c == 3:
            k(f"s_lshl_b32 s{sT}, s{sGW}, 10", f"s_add_u32 s{sT}, s{sT}, {FL2}", f"s_cmp_lt_u32 s{sGW}, 8", f"s_cselect_b32 s{sT}, s{sT}, {OOB}",
              f"v_mov_b64 {vr(PF4,2)}, 0", f"v_mov_b64 {vr(PF4+2,2)}, 0",
              f"buffer_store_dwordx4 {vr(PF4,4)}, v{vLin}, s[{SWS}:{SWS+3}], s{sT} offen sc1")
            vm += ["st"]
        j = c - 1
        proc = 0 <= j < 6 and not OPT.get("nojob")
        if proc:
            k(wait_for(f"j{j}"))
            for f in range(4):
                for jj in range(2):
                    if j < 4:
                        k(f"ds_read_b64_tr_b16 {vr(JF[f]+2*jj,2)}, v{aJ[f]} offset:{jj*512}")
                    else:
                        k(f"ds_read_b64_tr_b16 {vr(JF[f]+2*jj,2)}, v{bJ[f>>1]} offset:{jj*512+(f&1)*8}")
            k("s_waitcnt lgkmcnt(0)")
        if c < 6 and not OPT.get("nojob"):
            if c == 4:
                k(f"s_mov_b32 s{SJ}, s28", f"s_mov_b32 s{SJ+1}, s29", f"s_mov_b32 s{SJ+2}, s{sBsz}",
                  f"s_mov_b32 s{sJo}, 0")
            k(f"s_mov_b32 m0, s{sWrJ}", "s_nop 0")
            for i in range(4):
                k(f"buffer_load_dwordx4 v{vJ if c < 4 else vJB}, s[{SJ}:{SJ+3}], s{sJo} offen offset:{1024*i}{' nt' if OPT.get('jnt', 0) else ''} lds",
                  f"s_add_u32 s{sJo}, s{sJo}, " + (f"s{sJa if i < 3 else sJb}" if c < 4 else str([8, 104, 8, 104][i] * 2048 + (-1024 if i < 3 else 3072))))
            vm += [f"j{c}"] * 4
        if proc:
            for f in range(4):
                if j < 4:
                    k(f"buffer_store_dwordx4 {vr(JF[f],4)}, v{vLin}, s[{SWS}:{SWS+3}], s{sD[f]} offen sc1",
                      f"s_add_u32 s{sD[f]}, s{sD[f]}, s{sDstep}",
                      m16(vr(CS[f], 4), vr(JF[f], 4), vr(ONES, 4), "0" if j == 0 else None))
                else:
                    k(f"buffer_store_dwordx4 {vr(JF[f],4)}, v{vLin}, s[{SWS}:{SWS+3}], s{sDB} offen offset:{1024*f} sc1")
            vm += ["st"] * 4
            if j == 4:
                k(f"s_add_u32 s{sDB}, s{sDB}, 8192")
                for f in range(4):
                    k(f"buffer_store_dwordx4 {vr(CS[f],4)}, v{vCs}, s[{SWS}:{SWS+3}], s{sCs[f]} offen sc1")
                vm += ["st"] * 4
        for n in {5: [0, 2, 3], 6: [4, 5], 7: [1, 6, 7]}.get(c, []):
            o_w(n)
        if c == 1 and OPT.get("isl", 1):
            k(f"s_branch L_isl{[n for n, b in ISL if b == 'L_f_back2'][0]}")
            k.label("L_f_back2")
        if c in (1, 7) and OPT.get("skip", 1024):
            k(f"s_branch L_f_pg{c}", ".p2align 12", f".fill {OPT.get('skip', 1024)//4}, 4, 0xbf800000", f"L_f_pg{c}:")
        if c >= 2 and OPT.get("ser", 0) and OPT.get("isl", 1):
            k(f"s_cmp_lg_u32 s{sW}, {c&3}", f"s_cbranch_scc1 L_f_hb{c-2}", f"@SER{c-2}@")
            k.label(f"L_f_hb{c-2}")
        if c == (5 if not OPT.get("ser", 0) else 0):
            k(f"s_lshr_b32 s{sT}, s2, 3", f"s_lshl_b32 s{sT}, s{sT}, 11", f"v_and_b32 v{T0}, 255, v0", f"v_lshlrev_b32 v{T0}, 3, v{T0}",
              f"v_add_u32 v{T0}, s{sT}, v{T0}")
            k(f"s_getpc_b64 s[22:23]")
            k.label("L_f_pc2")
            k("s_add_u32 s22, s22, L_code_rest-L_f_pc2", "s_addc_u32 s23, s23, 0",
              f"v_min_u32 v{T0}, L_code_end-L_code_rest-4, v{T0}", f"global_load_dword v{T1}, v{T0}, s[22:23]")
            vm.append("pf")
        if c == 6:
            k(f"s_and_b32 s{sT}, s{sTB}, 7", f"s_add_u32 s{sT}, s{sT}, 8", f"s_lshr_b32 s{sT2}, s{sT}, 1", f"s_cmp_eq_u32 s{sHG}, s{sT2}",
              f"s_cselect_b32 s{sT2}, 8, 0", f"s_sub_u32 s{sT}, s{sT}, s{sT2}", f"s_lshl_b32 s{sT}, s{sT}, 17")
            for i in range(4):
                k(f"buffer_load_dwordx4 {vr(PF4,4)}, v{vW[i]}, s[{SWQ}:{SWQ+3}], s{sT} offen")
            vm.extend(["pf"] * 4)
        if c + 1 < 8:
            k(wait_for(f"kv{c+1}"))
        k("s_barrier")
    k(f"s_lshl_b32 s{sKo}, s{sTB}, 9", f"s_add_u32 s{sKo}, s{sKo}, {FLG}", f"s_mov_b32 s{sN}, {1<<20}", "s_waitcnt vmcnt(0)")
    hstamp(k, 23)
    look = lambda h: f"buffer_load_dword v{PF4}, off, s[{SWS}:{SWS+3}], s{sKo} offset:{256*h} sc1"
    ask = lambda h, r=0: ["s_mov_b64 exec, 1", f"v_mov_b32 v{PF4+r}, 0", f"buffer_atomic_add v{PF4+r}, off, s[{SWS}:{SWS+3}], s{sKo} offset:{256*h} sc0 sc1", "s_mov_b64 exec, -1"]
    NP = OPT.get("np", 3)

    def gate(h, wait, tag=""):
        op = f"L_f_open{h}{tag}"
        k(wait, f"v_readfirstlane_b32 s{sT}, v{PF4}", "s_nop 0", f"s_cmp_ge_u32 s{sT}, s{sStr}", f"s_cbranch_scc1 {op}")
        for r in range(NP - 1):
            k(ask(h, r), f"s_sleep {OPT.get('pgap', 3)}")
        k.label(f"L_f_gate{h}{tag}")
        for r in range(NP):
            k(ask(h, (r - 1) % NP), f"s_waitcnt vmcnt({NP-1})", f"v_readfirstlane_b32 s{sT}, v{PF4+r}", "s_nop 0",
              f"s_cmp_ge_u32 s{sT}, s{sStr}", f"s_cbranch_scc1 {op}")
        k(f"s_sub_u32 s{sN}, s{sN}, 1", f"s_cbranch_scc0 L_f_gate{h}{tag}")
        k.label(op)
    k(f"v_mov_b32 v{PF4}, 0", f"s_cmp_lt_u32 s{sHG}, 4", "s_cbranch_scc1 L_f_late", f"s_sleep {OPT['odl']}" if OPT.get('odl') else None, ask(0), "s_waitcnt vmcnt(0)",
      f"v_readfirstlane_b32 s{sT}, v{PF4}", "s_nop 0", f"s_cmp_lt_u32 s{sT}, 16", "s_cbranch_scc1 L_f_late")
    o_x(2); o_x(3)
    del vm[-4:]
    hstamp(k, 24)
    k("s_barrier")
    hstamp(k, 25)
    k("s_branch L_f_both")
    k.label("L_f_late")
    k(f"s_cmp_eq_u32 s{sW}, 0", f"s_cselect_b32 s{sStr}, 16, 0")
    gate(0, None)
    hstamp(k, 24)
    k("s_barrier")
    hstamp(k, 25)
    o_x(2); o_x(3)
    k.label("L_f_both")
    k(f"s_cmp_eq_u32 s{sW}, 0", f"s_cselect_b32 s{sKo}, s{sKo}, {OOB}", f"s_cselect_b32 s{sStr}, 16, 0",
      f"s_cmp_lt_u32 s{sHG}, 4", f"s_cselect_b32 s{sJa}, {OOB}, s{sKo}", f"s_cselect_b32 s{sJb}, 0, s{sStr}",
      f"s_cselect_b32 s{sKo}, s{sKo}, {OOB}", f"s_cselect_b32 s{sStr}, s{sStr}, 0")
    k("s_barrier")
    G2 = OPT.get("g2", 3)
    for n in range(1, 15):
        if n + 3 < 16:
            o_x(n + 3)
        if n in (G2, G2 + 2):
            k(look(1) if OPT.get("lk", 1) else ask(1)); vm.append("ask")
        cum = [[0, 0, 3, 5, 8, 10, 13, 15, 18, 20, 23, 25, 28, 32, 32], [0, 0, 3, 6, 9, 12, 15, 18, 21, 24, 27, 30, 32, 32, 32]][OPT.get("wsch", 1)]
        for m in range(8, 16):
            pcs = [q for q in range(4) if cum[n - 1] <= 4 * (m - 8) + q < cum[n]]
            if pcs:
                assert m - 6 <= n <= m - 2
                o_w(m, pcs)
        if n == 4:
            gate(1, wait_for("ask"))
            k(f"s_mov_b32 s{sKo}, s{sJa}", f"s_mov_b32 s{sStr}, s{sJb}")
        if n == 6:
            gate(1, wait_for("ask"), "b")
        k(wait_for(f"x{n+1}", f"w{n+1}"), "s_barrier")
        if n in (1, 4, 6, 9, 14):
            hstamp(k, 26 + (1, 4, 6, 9, 14).index(n))
    if OPT.get("hprof"):
        k(f"s_lshl_b32 s{sT}, s{sGW}, 7", f"s_add_u32 s{sT}, s{sT}, {STAMP+2*MB}", f"v_lshlrev_b32 v{T0}, 2, v{L}", "s_mov_b64 exec, 0xffffffff",
          f"buffer_store_dword v200, v{T0}, s[{SWS}:{SWS+3}], s{sT} offen")
    hop(k, sW)
    k.label("L_k1_slow")
    k("s_waitcnt vmcnt(0) lgkmcnt(0)", "s_nop 15")
    C = [S[2], S[3]]
    ldK = [f"buffer_load_dwordx4 {vr(KB[0]+4*m,4)}, v{vLin}, s[{SKV}:{SKV+3}], s{sKo} offen offset:{1024*m} sc1" for m in range(2)]
    ldV = [f"buffer_load_dwordx4 {vr(VB[0]+4*m,4)}, v{vLin}, s[{SKV}:{SKV+3}], s{sKo} offen offset:{2048+1024*m} sc1" for m in range(2)]
    k(f"v_mov_b32 v{T0}, 0xff800000", f"v_mov_b32 v{T1}, 0xff800000", f"s_mov_b32 s{sKo}, 0")
    k.label("L_k1_s1")
    k(ldK, "s_waitcnt vmcnt(0)", qk(0), qk(1), "s_nop 15")
    for q in range(2):
        for i in range(0, 16, 2):
            k(f"v_max3_f32 v{[T0,T1][q]}, v{S[q]+i}, v{S[q]+i+1}, v{[T0,T1][q]}")
    k(f"s_add_u32 s{sKo}, s{sKo}, 4096", f"s_cmp_lt_u32 s{sKo}, 262144", "s_cbranch_scc1 L_k1_s1")
    for q in range(2):
        t = [T0, T1][q]
        k(f"v_mov_b32 v{T2}, v{t}", "s_nop 1", f"v_permlane32_swap_b32 v{t}, v{T2}", "s_nop 1", f"v_max_f32 v{t}, v{t}, v{T2}")
        for i in range(16):
            k(f"v_sub_f32 v{C[q]+i}, 0, v{t}", f"v_mov_b32 v{O[q]+i}, 0")
        for i in range(4):
            k(f"v_mov_b32 v{LS[q]+i}, 0")
    k(f"s_mov_b32 s{sKo}, 0")
    k.label("L_k1_s2")
    k(ldK, ldV, "s_waitcnt vmcnt(0)", qk(0, vr(C[0], 16)), qk(1, vr(C[1], 16)), "s_nop 15")
    for q in range(2):
        for i in range(16):
            k(f"v_exp_f32 v{S[q]+i}, v{S[q]+i}")
    k("s_nop 1", pv(0), sm(0), pv(1), sm(1))
    k(f"s_add_u32 s{sKo}, s{sKo}, 4096", f"s_cmp_lt_u32 s{sKo}, 262144", "s_cbranch_scc1 L_k1_s2")
    k("s_nop 15", "s_nop 7", out(0), "s_branch L_k1_out")
    return k


def k_gemm(name, kidx, K, tok_region, w_region, is_down):
    D = OPT.get("gd", 4)
    STG, NS = 24576, D + 2
    N = K // 64
    k = Kern(name, 256, 512, STG * NS)
    SWS, ST_, SW_, SR, SO = 4, 8, 12, 16, 20
    sW, sTB, sNB, sN, sT, sT2, sRd, sWr, sTo, sWo, sTH, sCH, sRes, sDW = range(28, 42)
    v = Alloc(1)
    L, G, TOK, T0, T1, vLin, bT, bW, aT, aW, vRow = [v() for _ in range(11)]
    F = [[dict(X=[v(4, 4) for _ in range(2)], W=[v(4, 4) for _ in range(4)]) for s in range(2)] for _ in range(2)]
    acc = [[v(4, 4) for i in range(2)] for t in range(4)]
    RES = [[v(4, 4) for b in range(2)] for i in range(2)]
    k.vgpr = k.acc = (v.n + 7) // 8 * 8
    head(k)
    k(f"s_load_dwordx2 s[{SWS}:{SWS+1}], s[0:1], {A_WS}",
      f"s_load_dwordx2 s[{SO}:{SO+1}], s[0:1], {A_OUT if is_down else A_X}")
    k(f"v_lshrrev_b32 v{T1}, 6, v0", f"v_and_b32 v{L}, 63, v0", f"v_readfirstlane_b32 s{sW}, v{T1}", f"v_lshlrev_b32 v{vLin}, 4, v{L}")
    ids_8x4(k, sNB, sTB, sT)
    k(f"s_cmp_lt_u32 s{sW}, 4", f"s_cbranch_scc1 L_{name}_comp")
    k(f"s_and_b32 s{sW}, s{sW}, 3",
      f"s_lshl_b32 s{sTo}, s{sW}, 11", f"s_lshl_b32 s{sWo}, s{sW}, 12", f"s_mov_b32 s{sWr}, s{sTo}",
      f"s_add_u32 s{sDW}, s{sTo}, 8192")
    rot = K == 1024 and OPT.get("rot2", 0)
    if rot:
        k(f"s_lshl_b32 s{sT}, s{sNB}, 1", f"s_add_u32 s{sT}, s{sT}, s{sTB}", f"s_and_b32 s{sT}, s{sT}, 7",
          f"s_lshl_b32 s{sT2}, s{sT}, 14", f"s_add_u32 s{sTo}, s{sTo}, s{sT2}", f"s_lshl_b32 s{sT2}, s{sT}, 15", f"s_add_u32 s{sWo}, s{sWo}, s{sT2}")
    k(f"s_mul_i32 s{sT}, s{sTB}, {K*128}", f"s_add_u32 s{sT}, s{sT}, {tok_region}",
      f"s_mul_i32 s{sT2}, s{sNB}, {K*256}", f"s_add_u32 s{sT2}, s{sT2}, {w_region}")
    k("s_waitcnt lgkmcnt(0)", ws_shift(SWS))
    k(srd_from(ST_, SWS, f"s{sT}", K * 128), srd_from(SW_, SWS, f"s{sT2}", K * 256))

    def dma_stage():
        o = [f"s_mov_b32 m0, s{sWr}", "s_nop 0"]
        for i in range(2):
            o.append(f"buffer_load_dwordx4 v{vLin}, s[{ST_}:{ST_+3}], s{sTo} offen offset:{1024*i} lds")
        o += [f"s_add_u32 m0, s{sWr}, s{sDW}", f"s_add_u32 s{sTo}, s{sTo}, 8192"]
        for i in range(4):
            o.append(f"buffer_load_dwordx4 v{vLin}, s[{SW_}:{SW_+3}], s{sWo} offen offset:{1024*i} lds")
        o += [f"s_add_u32 s{sWo}, s{sWo}, 16384", f"s_add_u32 s{sWr}, s{sWr}, {STG}", f"s_cmp_ge_u32 s{sWr}, {STG*NS}",
              f"s_cselect_b32 s{sT}, {STG*NS}, 0", f"s_sub_u32 s{sWr}, s{sWr}, s{sT}"]
        if rot:
            o += [f"s_and_b32 s{sTo}, s{sTo}, {K*128-1}", f"s_and_b32 s{sWo}, s{sWo}, {K*256-1}"]
        return o
    k(f"s_mov_b32 s{sN}, {N}")
    k.label(f"L_{name}_ld")
    k(dma_stage())
    k(f"s_sub_u32 s{sN}, s{sN}, 1", f"s_cmp_lg_u32 s{sN}, 0")
    k(f"s_waitcnt vmcnt({6*D})", "s_barrier", f"s_cbranch_scc1 L_{name}_ld")
    for d in range(D - 1, -1, -1):
        k(f"s_waitcnt vmcnt({6*d})", "s_barrier")
    if is_down:
        k("s_endpgm")
    else:
        hop(k, sW)
    k.label(f"L_{name}_comp")
    k(f"s_and_b32 s{sTH}, s{sW}, 1", f"s_lshr_b32 s{sCH}, s{sW}, 1")
    k(f"v_lshrrev_b32 v{G}, 4, v{L}", f"v_and_b32 v{TOK}, 15, v{L}",
      f"v_lshlrev_b32 v{T0}, 11, v{TOK}", f"v_lshl_add_u32 v{T0}, v{G}, 4, v{T0}",
      f"s_lshl_b32 s{sN}, s{sTB}, 1", f"s_add_u32 s{sN}, s{sN}, s{sTH}", f"s_lshl_b32 s{sN}, s{sN}, 16",
      f"s_lshl_b32 s{sRes}, s{sNB}, 1", f"s_add_u32 s{sRes}, s{sRes}, s{sCH}", f"s_lshl_b32 s{sRd}, s{sRes}, 7",
      f"s_add_u32 s{sN}, s{sN}, s{sRd}", f"v_add_u32 v{vRow}, s{sN}, v{T0}")
    k(f"s_lshl_b32 s{sRes}, s{sRes}, 13", f"s_lshl_b32 s{sN}, s{sTB}, 17", f"s_add_u32 s{sRes}, s{sRes}, s{sN}",
      f"s_lshl_b32 s{sN}, s{sTH}, 11", f"s_add_u32 s{sRes}, s{sRes}, s{sN}", f"s_add_u32 s{sRes}, s{sRes}, {HF}")
    k(f"s_lshl_b32 s{sT}, s{sTH}, 11", f"v_add_u32 v{bT}, s{sT}, v{vLin}",
      f"s_lshl_b32 s{sT}, s{sCH}, 12", f"s_add_u32 s{sT}, s{sT}, 8192", f"v_add_u32 v{bW}, s{sT}, v{vLin}",
      f"v_mov_b32 v{aT}, v{bT}", f"v_mov_b32 v{aW}, v{bW}")
    k("s_waitcnt lgkmcnt(0)", ws_shift(SWS))
    k(srd_tail(SWS, WS_SZ), srd_tail(SO, 4 * MB))
    for _ in range(NS - 2):
        k("s_barrier")
    k(f"s_add_u32 s{sT2}, s{sRes}, 4096", f"s_mov_b32 s{sN}, 32768")
    for i in range(2):
        for b in range(2):
            if is_down:
                k(f"buffer_load_dwordx4 {vr(RES[i][b],4)}, v{vLin}, s[{SWS}:{SWS+3}], s{[sRes,sT2][b]} offen offset:{1024*i}")
            else:
                k(f"buffer_load_dwordx4 {vr(RES[i][b],4)}, v{vRow}, s[{SO}:{SO+3}], {['0', f's{sN}'][i]} offen offset:{64*b}{' nt' if OPT.get('jnt', 0) else ''}")
    for t in range(4):
        for i in range(2):
            for r in range(4):
                k(f"v_mov_b32 v{acc[t][i]+r}, 0")

    def reads(f):
        o = []
        for s in range(2):
            o += [f"ds_read_b128 {vr(F[f][s]['X'][i],4)}, v{aT} offset:{s*4096+i*1024}" for i in range(2)]
            o += [f"ds_read_b128 {vr(F[f][s]['W'][t],4)}, v{aW} offset:{s*8192+t*1024}" for t in range(4)]
        return o

    def mfmas(f):
        return [m16(vr(acc[t][i ^ (t & 1)], 4), vr(F[f][s]["W"][t], 4), vr(F[f][s]["X"][i ^ (t & 1)], 4))
                for t in range(4) for i in range(2) for s in range(2)]
    adv = [[f"s_add_u32 s{sRd}, s{sRd}, {STG}", f"s_cmp_eq_u32 s{sRd}, {STG*NS}"], [f"s_cselect_b32 s{sRd}, 0, s{sRd}"],
           [f"v_add_u32 v{aT}, s{sRd}, v{bT}", f"v_add_u32 v{aW}, s{sRd}, v{bW}"]]
    k(f"s_mov_b32 s{sRd}, 0", f"s_mov_b32 s{sN}, {N//2-1}")
    k("s_barrier")
    mid_stamp(k, 0)
    k(reads(0), adv, "s_waitcnt lgkmcnt(0)")
    k(".p2align 6")
    k.label(f"L_{name}_loop")
    for f in range(2):
        k("s_barrier")
        m = weave(mfmas(f), reads(1 - f), 0, 9)
        tl = adv + ([[f"s_sub_u32 s{sN}, s{sN}, 1", f"s_cmp_lg_u32 s{sN}, 0"]] if f == 1 else [])
        k(weave(m, tl, len(m) - 6, len(m) - 1))
        k("s_waitcnt lgkmcnt(0)")
    k(f"s_cbranch_scc1 L_{name}_loop")
    k("s_barrier")
    k(weave(mfmas(0), reads(1), 0, 9), "s_waitcnt lgkmcnt(0)", mfmas(1))
    mid_stamp(k, 1)
    k("s_waitcnt vmcnt(0)", f"s_mov_b32 s{sN}, 32768", "s_nop 5")
    SUM = F[0][0]["X"]
    U = F[0][0]["W"][0]
    for i in range(2):
        if not is_down:
            k(f"v_mov_b32 v{SUM[i]}, 0", f"v_mov_b32 v{SUM[i]+1}, 0")
        for b in range(2):
            o = F[0][1]["W"][2 * i + b]
            for jt in range(2):
                a = acc[2 * b + jt][i]
                for h in range(2):
                    r = RES[i][b] + 2 * jt + h
                    k(f"v_lshlrev_b32 v{U}, 16, v{r}", f"v_and_b32 v{U+1}, 0xffff0000, v{r}",
                      f"v_add_f32 v{a+2*h}, v{a+2*h}, v{U}", f"v_add_f32 v{a+2*h+1}, v{a+2*h+1}, v{U+1}",
                      f"v_cvt_pk_bf16_f32 v{o+2*jt+h}, v{a+2*h}, v{a+2*h+1}")
            if is_down:
                k(f"buffer_store_dwordx4 {vr(o,4)}, v{vRow}, s[{SO}:{SO+3}], {['0', f's{sN}'][i]} offen offset:{64*b} sc1")
            else:
                k(f"buffer_store_dwordx4 {vr(o,4)}, v{vLin}, s[{SWS}:{SWS+3}], s{[sRes,sT2][b]} offen offset:{1024*i} sc1")
    if not is_down:
        for t in range(4):
            for r in range(4):
                for i in range(2):
                    a = acc[t][i] + r
                    k(f"v_add_f32 v{SUM[i]}, v{SUM[i]}, v{a}", f"v_fmac_f32 v{SUM[i]+1}, v{a}, v{a}")
        k("s_nop 1", f"v_permlane32_swap_b32 v{SUM[0]}, v{SUM[0]+1}", f"v_permlane32_swap_b32 v{SUM[1]}, v{SUM[1]+1}", "s_nop 0",
          f"v_add_f32 v{SUM[0]}, v{SUM[0]}, v{SUM[0]+1}", f"v_add_f32 v{SUM[1]}, v{SUM[1]}, v{SUM[1]+1}",
          f"v_lshlrev_b32 v{T0}, 2, v{L}", "s_nop 0",
          f"v_permlane16_swap_b32 v{SUM[0]}, v{SUM[1]}",
          f"s_lshl_b32 s{sT}, s{sTB}, 1", f"s_add_u32 s{sT}, s{sT}, s{sTH}", f"s_lshl_b32 s{sT}, s{sT}, 12",
          f"v_add_f32 v{SUM[0]}, v{SUM[0]}, v{SUM[1]}",
          f"s_lshl_b32 s{sT2}, s{sNB}, 1", f"s_add_u32 s{sT2}, s{sT2}, s{sCH}", f"s_lshl_b32 s{sT2}, s{sT2}, 8",
          f"s_add_u32 s{sT}, s{sT}, s{sT2}", f"s_add_u32 s{sT}, s{sT}, {STP}",
          f"buffer_store_dword v{SUM[0]}, v{T0}, s[{SWS}:{SWS+3}], s{sT} offen sc1")
    tail(k, kidx, sW)
    return k


def k4_down(kidx):
    name, K = "down_kernel", 3584
    D = OPT.get("dd", 2)
    N1 = OPT.get("n1", 25)
    N2 = 56 - 2 * N1
    STG, NS = 32768, D + 2
    k = Kern(name, 256, 512, STG * NS)
    SWS, ST_, SW_, SO = 4, 8, 12, 20
    sW, sTB, sNB, sN, sT, sT2, sRd, sWr, sTo, sWo, sTH, sCH, sRes, sDW, sKH, sX0, sX1 = range(28, 45)
    v = Alloc(1)
    L, G, TOK, T0, T1, vLin, bT, bW, aT, aW, vRow = [v() for _ in range(11)]
    F = [[dict(X=[v(4, 4) for _ in range(4)], W=[v(4, 4) for _ in range(4)]) for s in range(2)] for _ in range(2)]
    acc = [[v(4, 4) for i in range(4)] for t in range(4)]
    RES = [[v(4, 4) for b in range(2)] for i in range(2)]
    RCV = [[acc[2 * b][2 + i] for b in range(2)] for i in range(2)]
    k.vgpr = k.acc = (v.n + 7) // 8 * 8
    head(k, True)
    k(f"s_load_dwordx2 s[{SWS}:{SWS+1}], s[0:1], {A_WS}", f"s_load_dwordx2 s[{SO}:{SO+1}], s[0:1], {A_OUT}")
    k(f"v_lshrrev_b32 v{T1}, 6, v0", f"v_and_b32 v{L}, 63, v0", f"v_readfirstlane_b32 s{sW}, v{T1}", f"v_lshlrev_b32 v{vLin}, 4, v{L}")
    ids_8x4(k, sNB, sTB, sT)
    if OPT.get("dmap", 1):
        k(f"s_and_b32 s{sT}, s{sTB}, 7", f"s_lshl_b32 s{sT}, s{sT}, 1", f"s_bfe_u32 s{sT2}, s{sTB}, 0x10003",
          f"s_and_b32 s{sTB}, s{sTB}, 16", f"s_add_u32 s{sTB}, s{sTB}, s{sT}", f"s_add_u32 s{sTB}, s{sTB}, s{sT2}")
    k(f"s_cmp_lt_u32 s{sW}, 4", f"s_cbranch_scc1 L_{name}_comp")
    vOwn, vPar = bT, bW
    k(f"s_and_b32 s{sW}, s{sW}, 3", f"s_and_b32 s{sKH}, s{sTB}, 1",
      f"s_lshl_b32 s{sWr}, s{sW}, 11", f"s_add_u32 s{sDW}, s{sWr}, 8192",
      f"s_mul_i32 s{sTo}, s{sKH}, {N1*8192}", f"s_add_u32 s{sTo}, s{sTo}, s{sWr}", f"s_lshl_b32 s{sWo}, s{sTo}, 1",
      f"s_mul_i32 s{sT}, s{sKH}, {K*128}", f"v_add_u32 v{vOwn}, s{sT}, v{vLin}", f"s_sub_u32 s{sT}, {K*128}, s{sT}", f"v_add_u32 v{vPar}, s{sT}, v{vLin}",
      f"s_lshr_b32 s{sT}, s{sTB}, 1", f"s_mul_i32 s{sT}, s{sT}, {K*256}", f"s_add_u32 s{sT}, s{sT}, {AF}",
      f"s_mul_i32 s{sT2}, s{sNB}, {K*256}", f"s_add_u32 s{sT2}, s{sT2}, {WDF}")
    k("s_waitcnt lgkmcnt(0)", ws_shift(SWS))
    k(srd_from(ST_, SWS, f"s{sT}", K * 256), srd_from(SW_, SWS, f"s{sT2}", K * 256))

    def dma_stage(full):
        o = [f"s_mov_b32 m0, s{sWr}", "s_nop 0"]
        o += [f"buffer_load_dwordx4 v{vOwn}, s[{ST_}:{ST_+3}], s{sTo} offen offset:{1024*i} lds" for i in range(2)]
        if full:
            o += [f"s_add_u32 m0, s{sWr}, 24576", "s_nop 0"]
            o += [f"buffer_load_dwordx4 v{vPar}, s[{ST_}:{ST_+3}], s{sTo} offen offset:{1024*i} lds" for i in range(2)]
        o += [f"s_add_u32 m0, s{sWr}, s{sDW}", f"s_add_u32 s{sTo}, s{sTo}, 8192"]
        o += [f"buffer_load_dwordx4 v{vLin}, s[{SW_}:{SW_+3}], s{sWo} offen offset:{1024*i} lds" for i in range(4)]
        o += [f"s_add_u32 s{sWo}, s{sWo}, 16384", f"s_add_u32 s{sWr}, s{sWr}, {STG}", f"s_cmp_ge_u32 s{sWr}, {STG*NS}",
              f"s_cselect_b32 s{sT}, {STG*NS}, 0", f"s_sub_u32 s{sWr}, s{sWr}, s{sT}"]
        return o
    k(f"s_mov_b32 s{sN}, {N1}")
    k.label(f"L_{name}_ld")
    k(dma_stage(True))
    k(f"s_sub_u32 s{sN}, s{sN}, 1", f"s_cmp_lg_u32 s{sN}, 0")
    k(f"s_waitcnt vmcnt({8*D})", "s_barrier", f"s_cbranch_scc1 L_{name}_ld")
    k(f"s_lshl_b32 s{sTo}, s{sW}, 11", f"s_add_u32 s{sTo}, s{sTo}, {2*N1*8192}", f"s_lshl_b32 s{sWo}, s{sTo}, 1")
    cnt = lambda n: 8 if n < N1 else (6 if n < N1 + N2 else 0)
    for n in range(N1, N1 + N2 + D):
        if n < N1 + N2:
            k(dma_stage(False))
        k(f"s_waitcnt vmcnt({sum(cnt(m) for m in range(n-D+1, n+1))})", "s_barrier")
    k("s_endpgm")
    if OPT.get("epad", 1):
        k(island(jump=False))
    k.label(f"L_{name}_comp")
    k(f"s_and_b32 s{sTH}, s{sW}, 1", f"s_lshr_b32 s{sCH}, s{sW}, 1")
    k(f"v_lshrrev_b32 v{G}, 4, v{L}", f"v_and_b32 v{TOK}, 15, v{L}",
      f"v_lshlrev_b32 v{T0}, 11, v{TOK}", f"v_lshl_add_u32 v{T0}, v{G}, 4, v{T0}",
      f"s_lshl_b32 s{sN}, s{sTB}, 1", f"s_add_u32 s{sN}, s{sN}, s{sTH}", f"s_lshl_b32 s{sN}, s{sN}, 16",
      f"s_lshl_b32 s{sRes}, s{sNB}, 1", f"s_add_u32 s{sRes}, s{sRes}, s{sCH}", f"s_lshl_b32 s{sRd}, s{sRes}, 7",
      f"s_add_u32 s{sN}, s{sN}, s{sRd}", f"v_add_u32 v{vRow}, s{sN}, v{T0}")
    k(f"s_lshl_b32 s{sRes}, s{sRes}, 13", f"s_lshl_b32 s{sN}, s{sTB}, 17", f"s_add_u32 s{sRes}, s{sRes}, s{sN}",
      f"s_lshl_b32 s{sN}, s{sTH}, 11", f"s_add_u32 s{sRes}, s{sRes}, s{sN}",
      f"s_xor_b32 s{sX0}, s{sRes}, {1<<17}", f"s_add_u32 s{sX0}, s{sX0}, {XB}", f"s_add_u32 s{sX1}, s{sX0}, 4096")
    k(f"s_lshl_b32 s{sT}, s{sTH}, 11", f"v_add_u32 v{bT}, s{sT}, v{vLin}",
      f"s_lshl_b32 s{sT}, s{sCH}, 12", f"s_add_u32 s{sT}, s{sT}, 8192", f"v_add_u32 v{bW}, s{sT}, v{vLin}",
      f"v_mov_b32 v{aT}, v{bT}", f"v_mov_b32 v{aW}, v{bW}")
    k("s_waitcnt lgkmcnt(0)", ws_shift(SWS))
    k(srd_tail(SWS, WS_SZ), srd_tail(SO, 4 * MB))
    for _ in range(D):
        k("s_barrier")
    for i in range(acc[0][0], acc[0][0] + 64, 2):
        k(f"v_mov_b64 {vr(i,2)}, 0")

    def reads(f, full):
        o = []
        for s in range(2):
            o += [f"ds_read_b128 {vr(F[f][s]['X'][i],4)}, v{aT} offset:{(i>>1)*24576+s*4096+(i&1)*1024}" for i in range(4 if full else 2)]
            o += [f"ds_read_b128 {vr(F[f][s]['W'][t],4)}, v{aW} offset:{s*8192+t*1024}" for t in range(4)]
        return o

    def mfmas(f, tiles):
        return [m16(vr(acc[t][i], 4), vr(F[f][s]["W"][t], 4), vr(F[f][s]["X"][i], 4))
                for t in range(4) for i in (tiles if t % 2 == 0 else tiles[::-1]) for s in range(2)]
    adv = [[f"s_add_u32 s{sRd}, s{sRd}, {STG}", f"s_cmp_eq_u32 s{sRd}, {STG*NS}"], [f"s_cselect_b32 s{sRd}, 0, s{sRd}"],
           [f"v_add_u32 v{aT}, s{sRd}, v{bT}", f"v_add_u32 v{aW}, s{sRd}, v{bW}"]]
    ALL, OWN, PAR = [0, 1, 2, 3], [0, 1], [2, 3]
    k(f"s_mov_b32 s{sRd}, 0", f"s_mov_b32 s{sN}, {(N1-1)//2}")
    k("s_barrier")
    mid_stamp(k, 0)
    k(reads(0, True), adv, "s_waitcnt lgkmcnt(0)")

    def step(f, extra):
        k("s_barrier")
        m = weave(mfmas(f, ALL), reads(1 - f, True), 0, 18)
        k(weave(m, adv + extra, len(m) - 8, len(m) - 1), "s_waitcnt lgkmcnt(0)")
    k(".p2align 6")
    k.label(f"L_{name}_loop")
    step(0, [])
    step(1, [[f"s_sub_u32 s{sN}, s{sN}, 1", f"s_cmp_lg_u32 s{sN}, 0"]])
    k(f"s_cbranch_scc1 L_{name}_loop")
    f = 0
    if (N1 - 1) % 2:
        step(0, [])
        f = 1
    if OPT.get("p1"):
        mid_stamp(k, 1)
    snd = []
    for b in range(2):
        for i in range(2):
            o = F[1 - f][b]["X"][2 + i]
            for jt in range(2):
                a = acc[2 * b + jt][2 + i]
                snd += [[f"v_cvt_pk_bf16_f32 v{o+2*jt}, v{a}, v{a+1}", f"v_cvt_pk_bf16_f32 v{o+2*jt+1}, v{a+2}, v{a+3}"]]
            snd += [[f"v_min_u32 v{o+r}, -2, v{o+r}" for r in (0, 1)], [f"v_min_u32 v{o+r}, -2, v{o+r}" for r in (2, 3)] +
                    [f"buffer_store_dwordx4 {vr(o,4)}, v{vLin}, s[{SWS}:{SWS+3}], s{[sX0,sX1][b]} offen offset:{1024*i} sc1"]]
    k("s_barrier")
    k(weave(weave(mfmas(f, PAR), reads(1 - f, False), 0, 10), adv, 22, 27), weave(mfmas(f, OWN), snd, 0, 16), "s_waitcnt lgkmcnt(0)")
    f = 1 - f
    res = [f"buffer_load_dwordx4 {vr(RES[i][b],4)}, v{vLin}, s[{SWS}:{SWS+3}], s{[sT,sT2][b]} offen offset:{1024*i}" for i in range(2) for b in range(2)]
    rcv = [f"buffer_load_dwordx4 {vr(RCV[i][b],4)}, v{vLin}, s[{SWS}:{SWS+3}], s{[sX0,sX1][b]} offen offset:{1024*i} sc1" for i in range(2) for b in range(2)]
    rstep = N1 + N2 - OPT.get("rl", 2)
    for n in range(N1 + 1, N1 + N2):
        k("s_barrier")
        m = weave(mfmas(f, OWN), reads(1 - f, False), 0, 9)
        ex = list(adv) if n < N1 + N2 - 1 else []
        if n == N1 + 1:
            ex += [[f"s_add_u32 s{sT}, s{sRes}, {HF}", f"s_add_u32 s{sT2}, s{sRes}, {HF+4096}",
                    f"s_add_u32 s{sX0}, s{sRes}, {XB}", f"s_add_u32 s{sX1}, s{sRes}, {XB+4096}"], res]
        if n == rstep:
            ex += [rcv]
        k(weave(m, ex, len(m) - 6, len(m)) if ex else m, island() if (n == N1 + 2 and OPT.get("epad", 1)) else None, "s_waitcnt lgkmcnt(0)")
        f = 1 - f
    if rstep >= N1 + N2:
        k(rcv)
    k(mfmas(f, OWN))
    if not OPT.get("p1"):
        mid_stamp(k, 1)
    k(f"s_mov_b32 s{sN}, {1<<20}")
    k.label(f"L_{name}_chk")
    k("s_waitcnt vmcnt(0)")
    rr = [RCV[i][b] + r for i in range(2) for b in range(2) for r in range(4)]
    k(f"v_max3_u32 v{T0}, v{rr[0]}, v{rr[1]}, v{rr[2]}", f"v_max3_u32 v{T1}, v{rr[3]}, v{rr[4]}, v{rr[5]}")
    for j in range(6, 16, 2):
        t = [T0, T1][(j // 2) & 1]
        k(f"v_max3_u32 v{t}, v{rr[j]}, v{rr[j+1]}, v{t}")
    k(f"v_max_u32 v{T0}, v{T0}, v{T1}", f"v_cmp_eq_u32 vcc, -1, v{T0}", f"s_sub_u32 s{sN}, s{sN}, 1", f"s_cbranch_scc1 L_{name}_out",
      f"s_cbranch_vccz L_{name}_out", "s_sleep 2", rcv, f"s_branch L_{name}_chk")
    k.label(f"L_{name}_out")
    k(f"s_mov_b32 s{sN}, 32768")
    U = F[0][0]["W"][0]
    for i in range(2):
        for b in range(2):
            o = F[0][1]["W"][2 * i + b]
            for jt in range(2):
                a = acc[2 * b + jt][i]
                for h in range(2):
                    r, q = RES[i][b] + 2 * jt + h, RCV[i][b] + 2 * jt + h
                    k(f"v_lshlrev_b32 v{U}, 16, v{q}", f"v_and_b32 v{U+1}, 0xffff0000, v{q}",
                      f"v_lshlrev_b32 v{U+2}, 16, v{r}", f"v_and_b32 v{U+3}, 0xffff0000, v{r}",
                      f"v_pk_add_f32 {vr(a+2*h,2)}, {vr(a+2*h,2)}, {vr(U,2)}", f"v_pk_add_f32 {vr(a+2*h,2)}, {vr(a+2*h,2)}, {vr(U+2,2)}",
                      f"v_cvt_pk_bf16_f32 v{o+2*jt+h}, v{a+2*h}, v{a+2*h+1}")
            k(f"buffer_store_dwordx4 {vr(o,4)}, v{vRow}, s[{SO}:{SO+3}], {['0', f's{sN}'][i]} offen offset:{64*b} sc1")
    tail(k, kidx, sW)
    return k


def k4_down4(kidx):
    name, K = "down_kernel", 3584
    D = OPT.get("dd", 2)
    N1 = OPT.get("n1", 25)
    N2 = 56 - 2 * N1
    STG, NS = 24576, D + 2
    k = Kern(name, 256, 512, STG * NS)
    SWS, SO = 4, 20
    sW, sTB, sNB, sN, sT, sT2, sRd, sWr, sTo, sWo, sTH, sCH, sRes, sDW, sKQ = range(28, 43)
    sX = [[44 + 2 * r + b for b in range(2)] for r in range(4)]
    v = Alloc(1)
    L, G, TOK, T0, T1, vLin, bT, bW, aT, aW, vRow = [v() for _ in range(11)]
    F = [[dict(X=[v(4, 4) for _ in range(2)], W=[v(4, 4) for _ in range(4)]) for s in range(2)] for _ in range(2)]
    acc = [[[v(4, 4) for i in range(2)] for t in range(4)] for r in range(4)]
    RES = [[v(4, 4) for b in range(2)] for i in range(2)]
    SND = lambda r, i, b: acc[r][2 * b][i]
    RCV = lambda r, i, b: acc[r][2 * b + 1][i] if r else RES[i][b]
    k.vgpr = k.acc = (v.n + 7) // 8 * 8
    head(k, True)
    k(f"s_load_dwordx2 s[{SWS}:{SWS+1}], s[0:1], {A_WS}", f"s_load_dwordx2 s[{SO}:{SO+1}], s[0:1], {A_OUT}")
    k(f"v_lshrrev_b32 v{T1}, 6, v0", f"v_and_b32 v{L}, 63, v0", f"v_readfirstlane_b32 s{sW}, v{T1}", f"v_lshlrev_b32 v{vLin}, 4, v{L}")
    k(f"s_bfe_u32 s{sNB}, s2, 0x20003", f"s_lshl_b32 s{sNB}, s{sNB}, 1", f"s_and_b32 s{sT}, s2, 1", f"s_add_u32 s{sNB}, s{sNB}, s{sT}",
      f"s_lshr_b32 s{sTB}, s2, 5", f"s_lshl_b32 s{sTB}, s{sTB}, 1", f"s_bfe_u32 s{sT}, s2, 0x10001", f"s_add_u32 s{sTB}, s{sTB}, s{sT}",
      f"s_and_b32 s{sT}, s2, 4", f"s_lshl_b32 s{sT}, s{sT}, 2", f"s_add_u32 s{sTB}, s{sTB}, s{sT}",
      f"s_and_b32 s{sTH}, s{sW}, 1", f"s_bfe_u32 s{sCH}, s{sW}, 0x10001")
    k(f"s_cmp_lt_u32 s{sW}, 4", f"s_cbranch_scc1 L_{name}_comp")
    k(f"s_and_b32 s{sW}, s{sW}, 3", f"s_and_b32 s{sKQ}, s2, 3",
      f"s_lshl_b32 s{sWr}, s{sW}, 11", f"s_add_u32 s{sDW}, s{sWr}, 8192",
      f"s_mul_i32 s{sT2}, s{sKQ}, {N1*4096}", f"s_lshl_b32 s{sT}, s{sTH}, 11", f"s_add_u32 s{sT2}, s{sT2}, s{sT}",
      f"s_xor_b32 s{sT}, s{sTB}, s{sCH}", f"s_mul_i32 s{sTo}, s{sT}, {K*128}", f"s_add_u32 s{sTo}, s{sTo}, s{sT2}", f"s_add_u32 s{sTo}, s{sTo}, {AF}",
      f"s_xor_b32 s{sT}, s{sNB}, s{sCH}", f"s_mul_i32 s{sWo}, s{sT}, {K*128}", f"s_add_u32 s{sWo}, s{sWo}, s{sT2}", f"s_lshl_b32 s{sWo}, s{sWo}, 1",
      f"s_add_u32 s{sWo}, s{sWo}, {WDF}")
    k("s_waitcnt lgkmcnt(0)", ws_shift(SWS), srd_tail(SWS, WS_SZ))

    def dma_stage(step):
        o = [f"s_mov_b32 m0, s{sWr}", "s_nop 0"]
        o += [f"buffer_load_dwordx4 v{vLin}, s[{SWS}:{SWS+3}], s{sTo} offen offset:{1024*i} lds" for i in range(2)]
        o += [f"s_add_u32 m0, s{sWr}, s{sDW}", f"s_add_u32 s{sTo}, s{sTo}, {step}"]
        o += [f"buffer_load_dwordx4 v{vLin}, s[{SWS}:{SWS+3}], s{sWo} offen offset:{1024*i} lds" for i in range(4)]
        o += [f"s_add_u32 s{sWo}, s{sWo}, {2*step}", f"s_add_u32 s{sWr}, s{sWr}, {STG}", f"s_cmp_ge_u32 s{sWr}, {STG*NS}",
              f"s_cselect_b32 s{sT}, {STG*NS}, 0", f"s_sub_u32 s{sWr}, s{sWr}, s{sT}",
              f"s_sub_u32 s{sN}, s{sN}, 1", f"s_cmp_lg_u32 s{sN}, 0", f"s_waitcnt vmcnt({6*D})", "s_barrier"]
        return o
    k(f"s_mov_b32 s{sN}, {N1}")
    k.label(f"L_{name}_ld")
    k(dma_stage(4096), f"s_cbranch_scc1 L_{name}_ld")
    k(f"s_lshl_b32 s{sT2}, s{sW}, 11", f"s_add_u32 s{sT2}, s{sT2}, {4*N1*4096}",
      f"s_mul_i32 s{sTo}, s{sTB}, {K*128}", f"s_add_u32 s{sTo}, s{sTo}, s{sT2}", f"s_add_u32 s{sTo}, s{sTo}, {AF}",
      f"s_mul_i32 s{sWo}, s{sNB}, {K*128}", f"s_add_u32 s{sWo}, s{sWo}, s{sT2}", f"s_lshl_b32 s{sWo}, s{sWo}, 1",
      f"s_add_u32 s{sWo}, s{sWo}, {WDF}", f"s_mov_b32 s{sN}, {N2}")
    k.label(f"L_{name}_ld2")
    k(dma_stage(8192), f"s_cbranch_scc1 L_{name}_ld2")
    for d in range(D - 1, -1, -1):
        k(f"s_waitcnt vmcnt({6*d})", "s_barrier")
    k("s_endpgm")
    k(island(jump=False))
    k.label(f"L_{name}_comp")
    k(f"v_lshrrev_b32 v{G}, 4, v{L}", f"v_and_b32 v{TOK}, 15, v{L}",
      f"v_lshlrev_b32 v{T0}, 11, v{TOK}", f"v_lshl_add_u32 v{T0}, v{G}, 4, v{T0}",
      f"s_lshl_b32 s{sN}, s{sTB}, 1", f"s_add_u32 s{sN}, s{sN}, s{sTH}", f"s_lshl_b32 s{sN}, s{sN}, 16",
      f"s_lshl_b32 s{sRes}, s{sNB}, 1", f"s_add_u32 s{sRes}, s{sRes}, s{sCH}", f"s_lshl_b32 s{sRd}, s{sRes}, 7",
      f"s_add_u32 s{sN}, s{sN}, s{sRd}", f"v_add_u32 v{vRow}, s{sN}, v{T0}")
    for _ in range(D):
        k("s_barrier")
    k(f"s_lshl_b32 s{sRes}, s{sRes}, 13", f"s_lshl_b32 s{sN}, s{sTB}, 17", f"s_add_u32 s{sRes}, s{sRes}, s{sN}",
      f"s_lshl_b32 s{sN}, s{sTH}, 11", f"s_add_u32 s{sRes}, s{sRes}, s{sN}")
    for r in range(1, 4):
        k(f"s_xor_b32 s{sT}, s{sRes}, {((r&1)<<17)|((r>>1)<<14)}", f"s_add_u32 s{sX[r][0]}, s{sT}, {XB4[r]}", f"s_add_u32 s{sX[r][1]}, s{sT}, {XB4[r]+4096}")
    k(f"s_lshl_b32 s{sT}, s{sTH}, 11", f"v_add_u32 v{bT}, s{sT}, v{vLin}",
      f"s_lshl_b32 s{sT}, s{sCH}, 12", f"s_add_u32 s{sT}, s{sT}, 8192", f"v_add_u32 v{bW}, s{sT}, v{vLin}",
      f"v_mov_b32 v{aT}, v{bT}", f"v_mov_b32 v{aW}, v{bW}")
    k("s_waitcnt lgkmcnt(0)", ws_shift(SWS))
    k(srd_tail(SWS, WS_SZ), srd_tail(SO, 4 * MB))

    def reads(f):
        o = []
        for s in range(2):
            o += [f"ds_read_b128 {vr(F[f][s]['X'][i],4)}, v{aT} offset:{s*4096+i*1024}" for i in range(2)]
            o += [f"ds_read_b128 {vr(F[f][s]['W'][t],4)}, v{aW} offset:{s*8192+t*1024}" for t in range(4)]
        return o

    def mf1(f, c=None):
        o = []
        for sw in range(2):
            for t in range(4):
                xs = [(0, 0), (0, 1), (1, 0), (1, 1)]
                for sx, i in (xs if t % 2 == 0 else xs[::-1]):
                    o.append(m16(vr(acc[2 * sw + sx][t][i], 4), vr(F[f][sw]["W"][t], 4), vr(F[f][sx]["X"][i], 4), c))
        return o

    def mf1r(f, r):
        return [m16(vr(acc[r][t][i], 4), vr(F[f][r >> 1]["W"][t], 4), vr(F[f][r & 1]["X"][i], 4)) for t in range(4) for i in ((0, 1) if t % 2 == 0 else (1, 0))]

    def mf2(f):
        return [m16(vr(acc[0][t][i], 4), vr(F[f][s]["W"][t], 4), vr(F[f][s]["X"][i], 4))
                for t in range(4) for i in ((0, 1) if t % 2 == 0 else (1, 0)) for s in range(2)]
    adv = [[f"s_add_u32 s{sRd}, s{sRd}, {STG}", f"s_cmp_eq_u32 s{sRd}, {STG*NS}"], [f"s_cselect_b32 s{sRd}, 0, s{sRd}"],
           [f"v_add_u32 v{aT}, s{sRd}, v{bT}", f"v_add_u32 v{aW}, s{sRd}, v{bW}"]]
    k(f"s_mov_b32 s{sRd}, 0", f"s_mov_b32 s{sN}, {(N1-2)//2}")
    k("s_barrier")
    mid_stamp(k, 0)
    k(reads(0), adv, "s_waitcnt lgkmcnt(0)")

    def step(f, extra, c=None):
        k("s_barrier")
        m = weave(mf1(f, c), reads(1 - f), 0, 14)
        k(weave(m, adv + extra, len(m) - 10, len(m) - 2), "s_waitcnt lgkmcnt(0)")
    step(0, [], "0")
    k(".p2align 6")
    k.label(f"L_{name}_loop")
    step(1, [])
    step(0, [[f"s_sub_u32 s{sN}, s{sN}, 1", f"s_cmp_lg_u32 s{sN}, 0"]])
    k(f"s_cbranch_scc1 L_{name}_loop")
    f = 1
    if (N1 - 2) % 2:
        step(1, [])
        f = 0

    def snd(r):
        o = []
        for b in range(2):
            for i in range(2):
                d, a = SND(r, i, b), acc[r][2 * b + 1][i]
                o += [[f"v_cvt_pk_bf16_f32 v{d}, v{d}, v{d+1}", f"v_cvt_pk_bf16_f32 v{d+1}, v{d+2}, v{d+3}"],
                      [f"v_cvt_pk_bf16_f32 v{d+2}, v{a}, v{a+1}", f"v_cvt_pk_bf16_f32 v{d+3}, v{a+2}, v{a+3}"],
                      [f"v_min_u32 v{d+q}, -2, v{d+q}" for q in (0, 1)], [f"v_min_u32 v{d+q}, -2, v{d+q}" for q in (2, 3)] +
                      [f"buffer_store_dwordx4 {vr(d,4)}, v{vLin}, s[{SWS}:{SWS+3}], s{sX[r][b]} offen offset:{1024*i} sc1"]]
        return o
    if OPT.get("p1"):
        mid_stamp(k, 1)
    k("s_barrier")
    k(weave(weave(mf1r(f, 3) + mf1r(f, 2), reads(1 - f), 0, 10), adv, 22, 27), weave(mf1r(f, 1) + mf1r(f, 0), snd(3), 0, 16), "s_waitcnt lgkmcnt(0)")
    k(island())
    f = 1 - f
    rcv = lambda r: [f"buffer_load_dwordx4 {vr(RCV(r,i,b),4)}, v{vLin}, s[{SWS}:{SWS+3}], s{sX[r][b]} offen offset:{1024*i}{' sc1' if r else ''}"
                     for i in range(2) for b in range(2)]
    radr = [[f"s_add_u32 s{sX[r][b]}, s{sRes}, {XB4[r]+4096*b}" for b in range(2)] for r in range(4)]
    rl = OPT.get("rl", 2)
    for n in range(1, N2):
        k("s_barrier")
        m = weave(mf2(f), reads(1 - f), 0, 9)
        ex = list(adv) if n < N2 - 1 else []
        if n == 1:
            k(weave(m, ex, len(m) - 6, len(m) - 2), snd(2), snd(1), radr, rcv(0))
        else:
            if n == N2 - rl:
                ex += [rcv(3), rcv(2), rcv(1)]
            k(weave(m, ex, len(m) - 6, len(m)) if ex else m)
        k("s_waitcnt lgkmcnt(0)")
        f = 1 - f
    if rl == 0:
        k(rcv(3), rcv(2), rcv(1))
    k(mf2(f))
    if not OPT.get("p1"):
        mid_stamp(k, 1)
    U = F[0][0]["W"][0]

    def add(r):
        for i in range(2):
            for b in range(2):
                for jt in range(2):
                    a, q = acc[0][2 * b + jt][i], RCV(r, i, b) + 2 * jt
                    k(f"v_lshlrev_b32 v{U}, 16, v{q}", f"v_and_b32 v{U+1}, 0xffff0000, v{q}",
                      f"v_lshlrev_b32 v{U+2}, 16, v{q+1}", f"v_and_b32 v{U+3}, 0xffff0000, v{q+1}",
                      f"v_pk_add_f32 {vr(a,2)}, {vr(a,2)}, {vr(U,2)}", f"v_pk_add_f32 {vr(a+2,2)}, {vr(a+2,2)}, {vr(U+2,2)}")
                if r == 1:
                    o = F[0][1]["W"][2 * i + b]
                    for jt in range(2):
                        a = acc[0][2 * b + jt][i]
                        k(f"v_cvt_pk_bf16_f32 v{o+2*jt}, v{a}, v{a+1}", f"v_cvt_pk_bf16_f32 v{o+2*jt+1}, v{a+2}, v{a+3}")
                    k(f"buffer_store_dwordx4 {vr(o,4)}, v{vRow}, s[{SO}:{SO+3}], {['0', f's{sT2}'][i]} offen offset:{64*b} sc1")
    k(f"s_mov_b32 s{sN}, {1<<20}", f"s_mov_b32 s{sT2}, 32768", "s_waitcnt vmcnt(12)", "s_nop 1")
    add(0)
    for r in (3, 2, 1):
        k(f"s_waitcnt vmcnt({4*(r-1)})")
        k.label(f"L_{name}_chk{r}")
        rr = [RCV(r, i, b) + q for i in range(2) for b in range(2) for q in range(4)]
        k(f"v_max3_u32 v{T0}, v{rr[0]}, v{rr[1]}, v{rr[2]}", f"v_max3_u32 v{T1}, v{rr[3]}, v{rr[4]}, v{rr[5]}")
        for j in range(6, 16, 2):
            t = [T0, T1][(j // 2) & 1]
            k(f"v_max3_u32 v{t}, v{rr[j]}, v{rr[j+1]}, v{t}")
        k(f"v_max_u32 v{T0}, v{T0}, v{T1}", f"v_cmp_eq_u32 vcc, -1, v{T0}", f"s_sub_u32 s{sN}, s{sN}, 1", f"s_cbranch_scc1 L_{name}_ok{r}",
          f"s_cbranch_vccz L_{name}_ok{r}", [rcv(q) for q in range(r, 0, -1)], "s_waitcnt vmcnt(0)", f"s_branch L_{name}_chk{r}")
        k.label(f"L_{name}_ok{r}")
        add(r)
    tail(k, kidx, sW)
    return k


class Op:
    def __init__(self, text, kind="v", needs=(), bar=False):
        self.text, self.kind, self.needs, self.bar = text, kind, list(needs), bar
        self.seq = None

    @property
    def cost(self):
        return 8 if self.kind == "t" else 4


def emit_stream(k, ops, nl=0, nv=0):
    cnt = {"lds": nl, "vm": nv}
    done = {"lds": 0, "vm": 0}
    for o in ops:
        if o.kind in cnt:
            cnt[o.kind] += 1
            o.seq = cnt[o.kind]
            k(o.text)
        elif o.kind == "wait":
            parts = []
            for kind, nm, mx in (("vm", "vmcnt", 63), ("lds", "lgkmcnt", 15)):
                need = [x.seq for x in o.needs if x.kind == kind]
                assert None not in need, "wait on an op that was not issued yet"
                tgt = cnt[kind] if (o.bar and kind == "lds") else max(need, default=0)
                if tgt > done[kind]:
                    n = cnt[kind] - tgt
                    assert n <= mx or kind == "vm"
                    parts.append(f"{nm}({min(n, mx)})")
                    done[kind] = tgt
            if parts:
                k("s_waitcnt " + " ".join(parts))
            if o.bar:
                k("s_barrier")
        else:
            k(o.text)
    return cnt


def k3_gateup():
    STG, NS = 28672, 5
    TBL = NS * STG
    k = Kern("ffn_kernel", 256, 256, 163840)
    SWS, ST_, SW_, SO = 4, 8, 12, 20
    slot = lambda n: (n + 3) % NS
    sW, sMB, sFB, sN, sT, sT2, sTo, sWo, sWr, sTB, sA0, sA1, sSt, sCp = range(28, 42)
    v = Alloc(1)
    vLin, vR1, vR2, vCs, vSt, vTid, vOut = [v() for _ in range(7)]
    PA = [v(2, 2) for _ in range(4)]
    SD = [v(2, 2) for _ in range(2)]
    TA, TB_, TC = v(4, 4), v(4, 4), v(4, 4)
    assert v.n <= 32, v.n
    acc = [[32 + (a * 4 + b) * 4 for b in range(4)] for a in range(14)]
    TK = [[[32 * n + 16 * s + 4 * b for b in range(4)] for s in range(2)] for n in range(NS)]
    WF = [[160 + 8 * n + 4 * s for s in range(2)] for n in range(4)]
    SP, CP = 192, 224
    k.vgpr, k.acc = 512, 256
    head(k, True)
    k(f"s_load_dwordx2 s[{SWS}:{SWS+1}], s[0:1], {A_WS}", f"s_load_dwordx2 s[{SO}:{SO+1}], s[0:1], {A_OUT}")
    k(f"v_lshrrev_b32 v{TA}, 6, v0", f"v_and_b32 v{TA+1}, 63, v0", f"v_readfirstlane_b32 s{sW}, v{TA}", f"v_lshlrev_b32 v{vLin}, 4, v{TA+1}")
    k(f"s_lshr_b32 s{sT}, s2, 3", f"s_lshr_b32 s{sMB}, s{sT}, 2", f"s_and_b32 s{sT}, s{sT}, 3",
      f"s_and_b32 s{sFB}, s2, 7", f"s_lshl_b32 s{sFB}, s{sFB}, 2", f"s_add_u32 s{sFB}, s{sFB}, s{sT}",
      f"s_lshl_b32 s{sTB}, s{sMB}, 2", f"s_add_u32 s{sTB}, s{sTB}, s{sW}",
      f"s_lshl_b32 s{sT}, s{sTB}, 17", f"s_add_u32 s{sT}, s{sT}, {HF}",
      f"s_mul_i32 s{sT2}, s{sFB}, {32*14*1024}", f"s_add_u32 s{sT2}, s{sT2}, {WGU}",
      f"s_mul_i32 s{sWo}, s{sW}, 7168", f"s_mov_b32 s{sWr}, s{sWo}", f"s_mov_b32 s{sTo}, 0")
    k("s_waitcnt lgkmcnt(0)", ws_shift(SWS))
    k(srd_from(ST_, SWS, f"s{sT}", 131072), srd_from(SW_, SWS, f"s{sT2}", 32 * 14 * 1024))

    def vm_stage(n):
        o = []
        for i in range(7):
            pre, post = [], []
            if i % 4 == 0:
                pre = [f"s_add_u32 m0, s{sWr}, {slot(n)*STG+1024*i}"]
            if i == 3:
                post = [f"s_add_u32 s{sWo}, s{sWo}, 4096"]
            if i == 6:
                post = [f"s_add_u32 s{sWo}, s{sWo}, {STG-4096}"]
            o.append((pre, Op(f"buffer_load_dwordx4 v{vLin}, s[{SW_}:{SW_+3}], s{sWo} offen offset:{1024*(i%4)} lds", "vm"), post, n))
        for s in range(2):
            for b in range(4):
                post = [f"s_add_u32 s{sTo}, s{sTo}, 4096"] if b == 3 else []
                o.append(([], Op(f"buffer_load_dwordx4 {ar(TK[slot(n)][s][b],4)}, v{vLin}, s[{ST_}:{ST_+3}], s{sTo} offen offset:{1024*b}", "vm"), post, n))
        return o
    VM = [vm_stage(n) for n in range(16)]
    HALF = OPT.get("k3half", 2)
    for n in range(HALF):
        wl = [([f"s_add_u32 m0, s{sN}, {(slot(n)-n)*STG}"], Op(f"buffer_load_dwordx4 v{vLin}, s[{SW_}:{SW_+3}], s{sN} offen lds", "vm"),
               [f"s_add_u32 s{sN}, s{sN}, 4096"], n) for i in range(7)]
        VM[n] = VM[n][7:11] + wl[:4] + VM[n][11:15] + wl[4:]
    if HALF:
        k(f"s_lshl_b32 s{sN}, s{sW}, 10", f"s_add_u32 s{sWo}, s{sWo}, {HALF*STG}")
    stat_ld = [([], Op(f"buffer_load_dwordx4 {ar(SP+4*i,4)}, v{vLin}, s[{SWS}:{SWS+3}], s{sSt} offen offset:{1024*(i%4)}", "vm"),
                [f"s_add_u32 s{sSt}, s{sSt}, 4096"] if i == 3 else [], None) for i in range(8)]
    cs_ld = [([], Op(f"buffer_load_dword {ar(CP+p)}, v{vTid}, s[{SWS}:{SWS+3}], s{sCp} offen", "vm"),
              [f"s_add_u32 s{sCp}, s{sCp}, {32*896}"], None) for p in range(8)]
    pro = []
    for i, (pre, ld, post, _) in enumerate(VM[0] if HALF else VM[0] + VM[1]):
        pro += [Op(x, "s") for x in pre] + ([Op("s_nop 0", "s")] if pre else []) + [ld] + [Op(x, "s") for x in post]
        if i == (7 if HALF else 14):
            cut = len(pro)
            pro.append(Op("s_barrier", "s"))
    pro, pro2 = pro[:cut], pro[cut:]
    misc = srd_tail(SWS, WS_SZ) + [
        f"s_lshl_b32 s{sSt}, s{sTB}, 13", f"s_add_u32 s{sSt}, s{sSt}, {STP}",
        f"s_mul_i32 s{sCp}, s{sFB}, 896", f"s_add_u32 s{sCp}, s{sCp}, {CSP}",
        f"v_add_u32 v{vR1}, {2*STG}, v{vLin}", f"v_add_u32 v{vR2}, {4*STG}, v{vLin}",
        f"v_lshlrev_b32 v{vTid}, 2, v0",
        f"v_lshrrev_b32 v{TA}, 4, v{TA+1}", f"v_lshlrev_b32 v{vCs}, 4, v{TA}", f"v_add_u32 v{vCs}, {TBL}, v{vCs}",
        f"v_and_b32 v{TA+2}, 1, v{TA}", f"v_lshlrev_b32 v{TA+2}, 10, v{TA+2}", f"v_lshrrev_b32 v{TA}, 1, v{TA}",
        f"v_lshl_add_u32 v{TA+2}, v{TA}, 8, v{TA+2}", f"v_and_b32 v{TA+1}, 15, v{TA+1}", f"v_lshl_add_u32 v{vOut}, v{TA+1}, 4, v{TA+2}",
        f"s_mul_i32 s{sT}, s{sTB}, {112*4096}", f"s_add_u32 s{sT}, s{sT}, {AF}", f"s_and_b32 s{sT2}, s{sFB}, 1", f"s_lshl_b32 s{sT2}, s{sT2}, 9",
        f"s_add_u32 s{sT}, s{sT}, s{sT2}", f"s_lshr_b32 s{sT2}, s{sFB}, 1", f"s_lshl_b32 s{sT2}, s{sT2}, 12", f"s_add_u32 s{sT}, s{sT}, s{sT2}",
        f"s_add_u32 s{sA1}, s{sT}, {96*4096}", f"s_lshr_b32 s{sT2}, s{sFB}, 4", f"s_mul_i32 s{sT2}, s{sT2}, {40*4096}", f"s_add_u32 s{sA0}, s{sT}, s{sT2}"]
    pro += [Op(x, "s") for x in misc]
    if OPT.get("k3pf", 1):
        pro += [Op(x, "s") for x in ["s_getpc_b64 s[16:17]", f"s_lshr_b32 s{sT}, s2, 3", f"s_lshl_b32 s{sT}, s{sT}, 10",
                                     f"v_add_u32 v{TA}, s{sT}, v{vTid}", f"v_min_u32 v{TA}, L_code_end-L_k3_pf-4, v{TA}", "L_k3_pf:"]]
        pro.append(Op(f"global_load_dword v{TC}, v{TA}, s[16:17]", "vm"))

    if OPT.get("isl", 1):
        pro.append(Op(island(), "s"))
    seg0 = len(pro)
    pro += pro2
    order = [a for p in range(7) for a in (p, p + 7)]
    S0 = 12
    seq = [(n, a) for n in range(S0) for a in order]
    seq += [(n, a) for p in range(7) for n in range(S0, 16) for a in (p, p + 7)]
    NT_ = len(seq)
    mf, fixed = [], [[] for _ in range(8 * NT_)]
    RD = []
    for gt, (n, a) in enumerate(seq):
        sl = slot(n)
        fr = [(a, 0), (a, 1)] if n >= HALF else [(gt % 7, (gt // 7) & 1), (gt % 7 + 7, (gt // 7) & 1)]
        RD.append([Op(f"ds_read_b128 {ar(WF[gt%4][e],4)}, v{[vLin,vR1,vR2][sl>>1]} offset:{(sl&1)*STG+s*14336+t*1024}", "lds") for e, (t, s) in enumerate(fr)])
        bs = range(4) if gt % 2 == 0 else range(3, -1, -1)
        for b in bs:
            for e, (t, s) in enumerate(fr):
                mf.append(Op(m16(vr(acc[t][b], 4), ar(WF[gt % 4][e], 4), ar(TK[sl][s][b], 4), "0" if (n == 0 and s == 0) else None), "m"))
    first = {}
    for gt, (n, a) in enumerate(seq):
        first.setdefault(n, gt)
    barpos = {}
    for gt in range(NT_):
        if gt + 2 < NT_:
            fixed[8 * gt].append(RD[gt + 2][0]); fixed[8 * gt + 1].append(RD[gt + 2][1])
        newst = [n for n in range(1, 16) if first[n] == gt + 3]
        if gt % 14 == 4 and gt // 14 < HALF:
            fixed[8 * gt + 7].append(Op("", "wait", [x[1] for x in VM[gt // 14]], bar=True))
        elif newst:
            fixed[8 * gt + 7].append(Op("", "wait", [x[1] for x in VM[newst[0]][:8 if newst[0] < HALF else 15]], bar=True))
            barpos[newst[0]] = 8 * gt + 7
        elif gt + 1 < NT_:
            fixed[8 * gt + 7].append(Op("", "wait", RD[gt + 1]))
    flat = (VM[1] if HALF else []) + VM[2] + VM[3] + VM[4] + stat_ld + cs_ld + [x for n in range(5, 16) for x in VM[n]]
    nfast = OPT.get("k3fast", 0) if HALF else 0
    slots = [8 * gt + o for gt in range(S0 * 14) for o in (3, 6)]
    nsl = len(slots) - 2 * OPT.get("k3lead", 8)
    vpos = {}
    si = -1
    for i, (pre, ld, post, n) in enumerate(flat):
        si = max(si + 1, nfast + ((i - nfast) * (nsl - nfast)) // (len(flat) - nfast) if i >= nfast else 0)
        if n is not None and n >= NS:
            lim = barpos[n - NS + 1] + 2 if "lds" in ld.text else 8 * 14 * (n - NS + 1)
            while slots[si] < lim:
                si += 1
        p = slots[si]
        fixed[p - 1] += [Op(x, "s") for x in pre]
        fixed[p] += [ld] + [Op(x, "s") for x in post]
        vpos[id(ld)] = p
    used = [sum(o.cost for o in f if not (o.kind == "wait" and False)) for f in fixed]
    flo = [[] for _ in fixed]

    def flow(ops, start, deadline=None):
        p = start
        for o in ops:
            while used[p] + o.cost > 8:
                p += 1
            flo[p].append(o); used[p] += o.cost
        assert deadline is None or p < deadline, (p, deadline)
        return p + 1

    def spread(ops, start, stop):
        tot = sum(o.cost for o in ops) + sum(used[start:stop])
        cap = max(8.0, tot / (stop - start))
        p, acc_used, acc_cap = start, used[start], cap
        for o in ops:
            while acc_used + o.cost > acc_cap + 2 and p < stop - 1:
                p += 1
                if cap == 8.0:
                    acc_used, acc_cap = used[p], cap
                else:
                    acc_used += used[p]; acc_cap += cap
            flo[p].append(o); acc_used += o.cost
        return p
    V = lambda t: Op(t, "v")
    st = [Op("", "wait", [x[1] for x in stat_ld + cs_ld])]
    st += [V(f"v_accvgpr_read_b32 v{TC}, a{CP}")]
    for p in range(1, 8):
        st += [V(f"v_accvgpr_read_b32 v{TB_}, a{CP+p}"), V(f"v_add_f32 v{TC}, v{TC}, v{TB_}")]
    st += [V(f"v_add_u32 v{vTid}, {TBL}, v{vTid}"), Op(f"ds_write_b32 v{vTid}, v{TC}", "lds")]
    for hf in range(2):
        A = TA
        st += [V(f"v_accvgpr_read_b32 v{A+r}, a{SP+16*hf+r}") for r in range(4)]
        for i in range(1, 4):
            st += [V(f"v_accvgpr_read_b32 v{TB_+r}, a{SP+16*hf+4*i+r}") for r in range(4)]
            st += [V(f"v_add_f32 v{A+r}, v{A+r}, v{TB_+r}") for r in range(4)]
        for op in ("v_permlane16_swap_b32", "v_permlane32_swap_b32"):
            st += [V(f"v_mov_b32 v{TB_+r}, v{A+r}") for r in range(4)]
            st += [V(f"{op} v{A+r}, v{TB_+r}") for r in range(4)]
            st += [V(f"v_add_f32 v{A+r}, v{A+r}, v{TB_+r}") for r in range(4)]
        for b in (2 * hf, 2 * hf + 1):
            sd = SD[b >> 1] + (b & 1)
            st += [V(f"v_mul_f32 v{PA[b]+1}, {f32(-1/1024)}, v{A+2*(b&1)}"),
                   V(f"v_mul_f32 v{PA[b]}, {f32(1/1024)}, v{A+2*(b&1)+1}"),
                   V(f"v_fma_f32 v{PA[b]}, -v{PA[b]+1}, v{PA[b]+1}, v{PA[b]}"),
                   V(f"v_max_f32 v{PA[b]}, 0, v{PA[b]}"),
                   V(f"v_add_f32 v{sd}, {f32(EPS)}, v{PA[b]}"),
                   Op(f"v_rsq_f32 v{PA[b]}, v{sd}", "t"), V("v_nop"),
                   V(f"v_mul_f32 v{sd}, v{sd}, v{PA[b]}"),
                   V(f"v_mul_f32 v{PA[b]}, {f32(-LOG2E)}, v{PA[b]}")]
    p = flow(st, vpos[id(cs_ld[-1][1])] + 90)
    n0 = min(n for n in range(1, S0) if barpos[n] >= p)
    p = barpos[n0] + 1
    todo = list(order)
    step = (8 * 14 * S0 - 40 - p) // 14
    for i in range(14):
        cur = lambda a: all(seq[q // 8][1] != a for q in range(p - 2, p + 48))
        cand = [a for a in todo if cur(a)]
        while not cand:
            p += 4
            cand = [a for a in todo if cur(a)]
        a = cand[0]
        todo.remove(a)
        C = [TA, TC][i & 1]
        r = Op(f"ds_read_b128 {vr(C,4)}, v{vCs} offset:{64*a}", "lds")
        ops = [V(f"v_fmac_f32 v{acc[a][b]+e}, v{PA[b]+1}, v{C+e}") for b in range(4) for e in range(4)]
        q = flow([r], p)
        q = flow([Op("", "wait", [r])] + ops, q + 6, p + 46)
        p = max(q, p + min(step, 24))
    assert p < barpos[15], p
    def epi(pr, packed):
        o = []
        for bb in (0, 2):
            d = acc[pr][bb]
            for b in (bb, bb + 1):
                g_, u = acc[pr][b], acc[pr + 7][b]
                sd = SD[b >> 1] + (b & 1)
                if packed:
                    sel = f"op_sel:[0,{b&1},{b&1}] op_sel_hi:[1,{b&1},{b&1}]"
                    o += [V(f"v_pk_mul_f32 {vr(g_+h,2)}, {vr(g_+h,2)}, {vr(PA[b],2)} op_sel:[0,0] op_sel_hi:[1,0]") for h in (0, 2)]
                    o += [Op(f"v_exp_f32 v{g_+r}, v{g_+r}", "t") for r in range(4)]
                    o += [V(f"v_pk_fma_f32 {vr(g_+h,2)}, {vr(g_+h,2)}, {vr(SD[b>>1],2)}, {vr(SD[b>>1],2)} {sel}") for h in (0, 2)]
                    o += [Op(f"v_rcp_f32 v{g_+r}, v{g_+r}", "t") for r in range(4)]
                    o += [V(f"v_pk_mul_f32 {vr(u+h,2)}, {vr(u+h,2)}, {vr(g_+h,2)}") for h in (0, 2)]
                else:
                    o += [V(f"v_mul_f32 v{g_+r}, v{PA[b]}, v{g_+r}") for r in range(4)]
                    o += [Op(f"v_exp_f32 v{g_+r}, v{g_+r}", "t") for r in range(4)]
                    o += [V(f"v_fma_f32 v{g_+r}, v{g_+r}, v{sd}, v{sd}") for r in range(4)]
                    o += [Op(f"v_rcp_f32 v{g_+r}, v{g_+r}", "t") for r in range(4)]
                    o += [V(f"v_mul_f32 v{u+r}, v{u+r}, v{g_+r}") for r in range(4)]
                o += [V(f"v_cvt_pk_bf16_f32 v{d+2*(b&1)}, v{u}, v{u+1}"), V(f"v_cvt_pk_bf16_f32 v{d+2*(b&1)+1}, v{u+2}, v{u+3}")]
            o += [V("v_nop"), V(f"v_permlane16_swap_b32 v{d}, v{d+2}"), V(f"v_permlane16_swap_b32 v{d+1}, v{d+3}")]
            sa = sA1 if pr == 6 else sA0
            o.append(Op(f"buffer_store_dwordx4 {vr(d,4)}, v{vOut}, s[{SWS}:{SWS+3}], s{sa} offen offset:{1024*bb} sc1", "vm"))
        o.append(Op(f"s_add_u32 s{sa}, s{sa}, {8*4096}", "s"))
        return o
    run = 8 * 2 * (16 - S0)
    t0 = 8 * 14 * S0
    D, N1, K = OPT.get("dd", 3), OPT.get("n1", 26), 3584
    N2 = 56 - 2 * N1
    NST = N1 + N2
    S = lambda t: Op(t, "s")
    dTB, dNB, dXo, dXp, dWo, dM, dM2, dRes, dX0, dX1, dSig, dPol, dSigA, dPolA, dJ = range(44, 59)
    dS = [62, 63, 64, 65]
    dW2 = [66, 67, 68, 69]
    dT16, dT32 = 70, 71
    aT, aWd = [TA, TA + 1, TA + 2], [TB_, TB_ + 1, TB_ + 2]
    vRow, vP, vOne, T0, T1 = TA + 3, TB_ + 3, TC, TC + 1, TC + 2
    pool = acc[0] + acc[1] + acc[7] + acc[8]
    dacc = [[pool[4 * t + i] for i in range(4)] for t in range(4)]
    RES = [[128 + 8 * i + 4 * b for b in range(2)] for i in range(2)]
    SND = [[acc[9][2 * i + b] for b in range(2)] for i in range(2)]
    RCV = [[dacc[2 * b][2 + i] for b in range(2)] for i in range(2)]
    F = [[dict(X=[f0 + 32 * s + 4 * i for i in range(4)], W=[f0 + 32 * s + 16 + 4 * t for t in range(4)]) for s in range(2)] for f0 in (192, 0)]
    PRE = OPT.get("pre", 2)
    dslot = lambda n: (4 - n + PRE) % 5
    rS = [[72 + 3 * r + e for e in range(3)] for r in range(2)]
    vL4, vL8 = vCs, vTid
    FB = [dict(X=[acc[3 + 7 * s][i] for i in range(4)], W=[acc[2 + 7 * s][t] for t in range(4)]) for s in range(2)]
    setup = [S(x) for x in srd_tail(SO, 4 * MB) + [
        f"s_bfe_u32 s{dNB}, s2, 0x20003", f"s_and_b32 s{sT}, s2, 1", f"s_lshl_b32 s{sT}, s{sT}, 2", f"s_add_u32 s{dNB}, s{dNB}, s{sT}",
        f"s_lshr_b32 s{dTB}, s2, 5", f"s_and_b32 s{sT}, s2, 4", f"s_lshl_b32 s{sT}, s{sT}, 1", f"s_add_u32 s{dTB}, s{dTB}, s{sT}",
        f"s_lshr_b32 s{dPol}, s{dTB}, 1", f"s_lshl_b32 s{dPol}, s{dPol}, 10", f"s_add_u32 s{dPol}, s{dPol}, {FL2}",
        f"s_lshl_b32 s{dSig}, s{sMB}, 10", f"s_add_u32 s{dSig}, s{dSig}, {FL2}",
        f"s_cmp_eq_u32 s{sW}, 0\ns_cselect_b32 s{dSig}, s{dSig}, {OOB}\ns_cselect_b32 s{dPol}, s{dPol}, {OOB}\ns_cselect_b32 s{dT16}, 16, 0",
        f"s_lshl_b32 s{dT32}, s{dT16}, 1",
        f"s_lshl_b32 s{dTB}, s{dTB}, 1", f"s_bfe_u32 s{sT}, s2, 0x10001", f"s_add_u32 s{dTB}, s{dTB}, s{sT}",
        f"s_lshl_b32 s{dPolA}, s{sT}, 7", f"s_add_u32 s{dPolA}, s{dPolA}, s{dPol}",
        f"s_lshr_b32 s{dSigA}, s{sFB}, 4", f"s_lshl_b32 s{dSigA}, s{dSigA}, 7", f"s_add_u32 s{dSigA}, s{dSigA}, s{dSig}",
        f"s_lshl_b32 s{dM}, s{sW}, 11", f"s_lshl_b32 s{dM2}, s{sW}, 12",
        f"s_mul_i32 s{dJ}, s{sT}, {(N1-48)*8192}", f"s_add_u32 s{dJ}, s{dJ}, {24*8192}",
        f"s_mul_i32 s{sT}, s{sT}, {24*8192}", f"s_add_u32 s{sT}, s{sT}, s{dM}",
        f"s_mul_i32 s{dWo}, s{dNB}, {K*128}", f"s_add_u32 s{dWo}, s{dWo}, s{sT}", f"s_lshl_b32 s{dWo}, s{dWo}, 1", f"s_add_u32 s{dWo}, s{dWo}, {WDF}",
        f"s_add_u32 s{sT}, s{sT}, {AF}", f"s_mul_i32 s{dXo}, s{dTB}, {K*128}", f"s_add_u32 s{dXo}, s{dXo}, s{sT}",
        f"s_xor_b32 s{dXp}, s{dTB}, 1", f"s_mul_i32 s{dXp}, s{dXp}, {K*128}", f"s_add_u32 s{dXp}, s{dXp}, s{sT}",
        ] + ([f"s_and_b32 s{sT}, s{dNB}, {OPT.get('krot', 3)}", f"s_lshl_b32 s{sT}, s{sT}, 13",
              f"s_add_u32 s{dXo}, s{dXo}, s{sT}", f"s_add_u32 s{dXp}, s{dXp}, s{sT}", f"s_add_u32 s{dWo}, s{dWo}, s{sT}", f"s_add_u32 s{dWo}, s{dWo}, s{sT}",
              f"s_sub_u32 s{dJ}, s{dJ}, s{sT}"] +
             [x for q in range(4) for x in (f"s_xor_b32 s{dS[q]}, s{sT}, {(q+1)*8192}", f"s_xor_b32 s{sT2}, s{sT}, {q*8192}",
                                            f"s_sub_u32 s{dS[q]}, s{dS[q]}, s{sT2}", f"s_lshl_b32 s{dW2[q]}, s{dS[q]}, 1")]) + [
        f"s_lshr_b32 s{sT}, s{sW}, 1", f"s_lshl_b32 s{sT2}, s{dNB}, 1", f"s_add_u32 s{sT2}, s{sT2}, s{sT}",
        f"s_lshl_b32 s{sT}, s{sT}, 12", f"s_add_u32 s{sT}, s{sT}, 16384"]]
    setup += [V(f"v_add_u32 v{aWd[0]}, s{sT}, v{vLin}"), V(f"v_add_u32 v{aWd[1]}, 0x10000, v{aWd[0]}"), V(f"v_add_u32 v{aWd[2]}, 0x20000, v{aWd[0]}")]
    setup += [S(x) for x in [f"s_and_b32 s{sT}, s{sW}, 1", f"s_lshl_b32 s{sT}, s{sT}, 11"]]
    setup += [V(f"v_add_u32 v{aT[0]}, s{sT}, v{vLin}"), V(f"v_add_u32 v{aT[1]}, 0x10000, v{aT[0]}"), V(f"v_add_u32 v{aT[2]}, 0x20000, v{aT[0]}")]
    setup += [S(x) for x in [
        f"s_lshl_b32 s{dRes}, s{sT2}, 13", f"s_add_u32 s{dRes}, s{dRes}, s{sT}", f"s_lshl_b32 s{dX0}, s{dTB}, 17", f"s_add_u32 s{dRes}, s{dRes}, s{dX0}",
        f"s_lshl_b32 s{sT}, s{sT}, 5", f"s_add_u32 s{sT}, s{sT}, s{dX0}", f"s_lshl_b32 s{sT2}, s{sT2}, 7", f"s_add_u32 s{sT}, s{sT}, s{sT2}"]]
    setup += [V(f"v_and_b32 v{T0}, 0xf0, v{vLin}"), V(f"v_lshlrev_b32 v{T0}, 7, v{T0}"), V(f"v_lshrrev_b32 v{T1}, 8, v{vLin}"),
              V(f"v_lshl_add_u32 v{T0}, v{T1}, 4, v{T0}"), V(f"v_add_u32 v{vRow}, s{sT}, v{T0}"), V(f"v_mov_b32 v{vOne}, 1")]
    setup += [S(f"s_add_u32 s{dX0}, s{dRes}, {HF}"), S(f"s_add_u32 s{dX1}, s{dRes}, {HF+4096}")]
    if PRE:
        setup += [V(f"v_add_u32 v{vL4}, 4096, v{vLin}"), V(f"v_add_u32 v{vL8}, 8192, v{vLin}"),
                  S(f"s_and_b32 s{sT}, s{dM}, 4096"), S(f"s_sub_u32 s{sT2}, s{dM2}, s{sT}")]
        for r in range(PRE):
            setup += [S(x) for x in (f"s_sub_u32 s{rS[r][0]}, s{dXo}, s{sT}", f"s_sub_u32 s{rS[r][1]}, s{dXp}, s{sT}", f"s_sub_u32 s{rS[r][2]}, s{dWo}, s{sT2}",
                                     f"s_add_u32 s{dXo}, s{dXo}, s{dS[r]}", f"s_add_u32 s{dXp}, s{dXp}, s{dS[r]}", f"s_add_u32 s{dWo}, s{dWo}, s{dW2[r]}")]
    setup += [S(f"s_lshr_b32 s{sT}, s2, 5"), S(f"s_add_u32 s{sT}, s{sT}, 2"), S(f"s_lshl_b32 s{sT}, s{sT}, 14"), S(f"s_add_u32 s{sT}, s{sT}, s{dWo}"),
              V(f"v_lshlrev_b32 v{T0}, 2, v{vLin}")]
    pset = flow(setup, max(p, t0 - 96), t0 + 16)

    def dma(m0, so, n, step):
        o = [[S(f"s_add_u32 m0, {m0}"), S("s_nop 0")]] + [[] for _ in range(n - 1)]
        for i in range(n):
            o[i].append(Op(f"buffer_load_dwordx4 v{vLin}, s[{SWS}:{SWS+3}], s{so} offen offset:{1024*i}{' sc1' if so != dWo else ''} lds", "vm"))
        o[-1].append(S(f"s_add_u32 s{so}, s{so}, {step}"))
        return o
    DX, DW = [], []
    for n in range(NST):
        base = dslot(n) * 32768
        sx_, sw_ = (f"s{dS[n&3]}", f"s{dW2[n&3]}") if n < 24 else (8192, 16384)
        x = dma(f"s{dM}, {base}", dXo, 2, sx_) + (dma(f"s{dM}, {base+8192}", dXp, 2, sx_) if n < N1 else [])
        w = dma(f"s{dM2}, {base+16384}", dWo, 4, sw_)
        if n == 24 and N1 > 24:
            x[0] = [S(f"s_add_u32 s{dXo}, s{dXo}, s{dJ}"), S(f"s_add_u32 s{dXp}, s{dXp}, s{dJ}")] + x[0]
            w[0] = [S(f"s_add_u32 s{dWo}, s{dWo}, s{dJ}"), S(f"s_add_u32 s{dWo}, s{dWo}, s{dJ}")] + w[0]
        if n == N1:
            x[0] = [S(f"s_mul_i32 s{dXo}, s{dTB}, {K*128}"), S(f"s_add_u32 s{dXo}, s{dXo}, s{dM}"), S(f"s_add_u32 s{dXo}, s{dXo}, {AF+2*N1*8192}")] + x[0]
            w[0] = [S(f"s_mul_i32 s{dWo}, s{dNB}, {K*256}"), S(f"s_add_u32 s{dWo}, s{dWo}, s{dM2}"), S(f"s_add_u32 s{dWo}, s{dWo}, {WDF+2*N1*16384}")] + w[0]
        DX.append(x); DW.append(w)
    frag = lambda n, s, kind, i: vr(FB[s][kind][i], 4) if (n == 1 and PRE == 2) else ar(F[n & 1][s][kind][i], 4)
    RX = [[[Op(f"buffer_load_dwordx4 {frag(r,s,'X',i)}, v{[vLin,vL4][s]}, s[{SWS}:{SWS+3}], s{rS[r][i>>1]} offen offset:{1024*(i&1)} sc1", "vm")]
           for s in range(2) for i in range(4)] for r in range(PRE)]
    RW = [[[Op(f"buffer_load_dwordx4 {frag(r,s,'W',t)}, v{[vLin,vL8][s]}, s[{SWS}:{SWS+3}], s{rS[r][2]} offen offset:{1024*t}", "vm")]
           for s in range(2) for t in range(4)] for r in range(PRE)]
    vms = lambda gs: [o for g_ in gs for o in g_ if o.kind == "vm"]
    res = [Op(f"buffer_load_dwordx4 {ar(RES[i][b],4)}, v{vLin}, s[{SWS}:{SWS+3}], s{[dX0,dX1][b]} offen offset:{1024*i}", "vm") for i in range(2) for b in range(2)]
    signal = lambda w: Op(f"s_mov_b64 exec, 1\nbuffer_atomic_add v{vOne}, off, s[{SWS}:{SWS+3}], s{[dSigA,dSigA,dSigA,dSig][w]} offset:{256*w} sc1\ns_mov_b64 exec, -1", "vm")
    polltxt = lambda w: f"buffer_load_dword v{vP}, off, s[{SWS}:{SWS+3}], s{[dPolA,dPolA,dPolA,dPol][w]} offset:{256*w} sc1"
    POL = [Op(polltxt(w), "vm") for w in range(4)]
    pcheck = lambda w: [Op("", "wait", [POL[w]]), S(f"v_cmp_gt_u32 vcc, s{[dT16,dT16,dT16,dT32][w]}, v{vP}\ns_nop 1\ns_cbranch_vccnz L_ffn_spin{w}\nL_ffn_go{w}:")]

    def put(pos, group):
        if len(group) > 2 and group[1].text == "s_nop 0":
            put(pos - 1, group[:1])
            group = group[2:]
        fixed2[pos] += group
        used[pos] += sum(o.cost for o in group)
    fixed2 = [[] for _ in fixed]
    EP = [epi(pr, False) for pr in range(6)]
    for w in range(2):
        qa = t0 + (2 + 2 * w) * run + 8 * OPT.get("siga", 6) + 7
        fixed[qa] = [Op("", "wait", vms(EP[:1 + 2 * w]), bar=True)]
        put(qa + 3, [signal(w)])
    q = t0 + 19
    for g_ in DW[PRE] + DW[PRE + 1] + [[r] for r in res]:
        put(q, g_); q += 3 if q % 8 == 3 else 5
    for r in range(PRE):
        for i, g_ in enumerate(RW[r]):
            put(t0 + (1 + 3 * r) * run + 8 * i + (5 if r == 0 or i else 6), g_)
    for i in range(OPT.get("wpf", 2)):
        put(t0 + OPT.get("wpr", 75) + OPT.get("wps", 130) * i, [Op(f"buffer_load_dword v{T1}, v{T0}, s[{SWS}:{SWS+3}], s{sT} offen", "vm"), S(f"s_add_u32 s{sT}, s{sT}, {8*16384}")])
    put(t0 + 5 * run + OPT.get("pola", [4, -8, -36][PRE]), [POL[0]])
    q = t0 + 6 * run + OPT.get("chka", [-22, -38, -62][PRE])
    q |= 7
    put(q - 2, pcheck(0))
    fixed[q] = [Op("", "wait", [], bar=True)]
    b0 = 8 * (NT_ - 3) + 7
    for i, g_ in enumerate([x for r in range(PRE) for x in RX[r]] + DX[PRE]):
        qq = q + 3 + ((2 if not PRE else OPT.get("rsp", 4)) * i if PRE < 2 or not OPT.get("rauto", 1) else ((b0 - q - 6) * i) // 20)
        assert qq < b0
        put(qq, g_)
    fixed[b0] = [Op("", "wait", vms(DX[0] + DW[0]) if not PRE else [], bar=True)]
    early = [[("x", 1), ("x", 2), ("w", 2)], [("x", 2), ("x", 3), ("w", 3), ("w", 4)], [("x", 3), ("w", 4), ("w", 5), ("w", 6)]][PRE]
    early = early[:OPT.get("nearly", 3)]
    grp = lambda e: (DX if e[0] == "x" else DW)[e[1]]
    if PRE and OPT.get("p1e", 1):
        put(b0 - 1, [POL[1]])
    for i, g_ in enumerate(grp(early[0]) + grp(early[1])):
        put(b0 + 2 + 2 * i - (i == 7), g_)
    for pr in range(6):
        spread(EP[pr], t0 + run * (pr + 1), t0 + run * (pr + 2))
    ops = pro + [Op("", "wait", [x[1] for x in VM[0][:8 if HALF else 15]], bar=True)]
    if OPT["stamp"]:
        ops.append(Op("s_memrealtime s[96:97]\ns_memtime s[84:85]\ns_waitcnt lgkmcnt(0)", "s"))
    ops += RD[0] + RD[1] + [Op("", "wait", RD[0])]
    seg = dict(n=4, last=seg0)

    def page(room):
        if OPT.get("isl", 1) and sum(1 for _, b in ISL if b is None) < OPT.get("maxisl", 20):
            seg["n"] += sum(isize(o.text) for o in ops[seg["last"]:])
            seg["last"] = len(ops)
            if seg["n"] + room > 4088:
                ops.append(Op(island(), "s"))
                seg["n"], seg["last"] = 4, len(ops)
    npf = [0]

    def prof():
        if OPT.get("prof"):
            j = npf[0]; npf[0] += 1
            ops.append(S((f"v_writelane_b32 v{vSt}, s60, {j-1}\n" if j else "") + ("s_memtime s[60:61]" if OPT["prof"] == 1 else "s_memrealtime s[60:61]")))
    for i, m in enumerate(mf):
        if i in [112 * n for n in range(S0)] + [t0 + run * pr for pr in range(7)]:
            prof()
        if not fixed[i - 1]:
            page(160)
        late = [o for o in fixed[i] if o.kind == "wait"]
        ops += [m] + [o for o in fixed[i] if o.kind != "wait"] + late + fixed2[i] + flo[i]
    if OPT["stamp"]:
        ops.append(Op("s_memrealtime s[98:99]\ns_memtime s[86:87]", "s"))

    def dreads(n):
        f, sl = n & 1, dslot(n)
        o = []
        for s in range(2):
            o += [Op(f"ds_read_b128 {ar(F[f][s]['X'][i],4)}, v{aT[sl>>1]} offset:{(sl&1)*32768+(i>>1)*8192+s*4096+(i&1)*1024}", "lds") for i in range(4 if n < N1 else 2)]
            o += [Op(f"ds_read_b128 {ar(F[f][s]['W'][t],4)}, v{aWd[sl>>1]} offset:{(sl&1)*32768+s*8192+t*1024}", "lds") for t in range(4)]
        return o

    def dmf(n, tiles):
        return [Op(m16(vr(dacc[t][i], 4), frag(n, s, "W", t), frag(n, s, "X", i), "0" if (n == 0 and s == 0 and (i >= 2 or LATE)) else None), "m")
                for t in range(4) for i in (tiles if t % 2 == 0 else tiles[::-1]) for s in range(2)]
    NOZ = PRE == 2 and OPT.get('noz', 1)
    LATE = NOZ and OPT.get("late", 1)
    hres = [[acc[4 + 7 * (t >> 1)][2 * (t & 1) + i] for i in range(2)] for t in range(4)]
    E6 = epi(6, not NOZ)
    init = [Op("", "wait", res)]
    for i in range(2):
        for b in range(2):
            for jt in range(2):
                for h in range(2):
                    a, r = (hres if LATE else dacc)[2 * b + jt][i] + 2 * h, RES[i][b] + 2 * jt + h
                    init += [V(f"v_accvgpr_read_b32 v{a+1}, a{r}"), V(f"v_lshlrev_b32 v{a}, 16, v{a+1}"), V(f"v_and_b32 v{a+1}, 0xffff0000, v{a+1}")]
    init += [S(f"s_xor_b32 s{dX0}, s{dRes}, {1<<17}"), S(f"s_add_u32 s{dX1}, s{dX0}, {XB+4096}"), S(f"s_add_u32 s{dX0}, s{dX0}, {XB}")]
    prof()
    page(1250)
    have = set(early) | {("x", m) for m in range(PRE + 1)} | {("w", m) for m in range(PRE + 2)}
    todo = [(n, g_) for n in range(NST) for e in (("x", n), ("w", n)) if e not in have for g_ in grp(e)]
    NZ = 0
    zl = [g_ for e in early[2:] for g_ in grp(e)]
    if PRE:
        zl = ([[POL[1]]] if not OPT.get("p1e", 1) else []) + zl + [pcheck(1)]
    if not NOZ:
        ops += weave(E6 + (dreads(0) if not PRE else []) + init, zl, 4)
    pend = list(E6) if NOZ else []
    n0_ = 1 if NOZ else 0
    SB = OPT.get("sigb", 7 if NOZ else 3)
    tgt = sum(1 for n, _ in todo if n <= N1 + D + 1)
    assert OPT.get("rl", 1) < N2
    done = NZ
    snd = []
    for b in range(2):
        for i in range(2):
            o = SND[i][b]
            for jt in range(2):
                a = dacc[2 * b + jt][2 + i]
                snd += [[V(f"v_cvt_pk_bf16_f32 v{o+2*jt}, v{a}, v{a+1}"), V(f"v_cvt_pk_bf16_f32 v{o+2*jt+1}, v{a+2}, v{a+3}")]]
            snd += [[V(f"v_min_u32 v{o+r}, -2, v{o+r}") for r in (0, 1)], [V(f"v_min_u32 v{o+r}, -2, v{o+r}") for r in (2, 3)] +
                    [Op(f"buffer_store_dwordx4 {vr(o,4)}, v{vLin}, s[{SWS}:{SWS+3}], s{[dX0,dX1][b]} offen offset:{1024*i} sc1", "vm")]]
    rcvt = [f"buffer_load_dwordx4 {vr(RCV[i][b],4)}, v{vLin}, s[{SWS}:{SWS+3}], s{[dX0,dX1][b]} offen offset:{1024*i} sc1" for i in range(2) for b in range(2)]
    gate = {4: 1, 12: 2, 20: 3} if not PRE else {12: 2, 20: 3}
    cnt_ = lambda m_: sum(1 for m, _ in todo if m <= m_)
    upto = lambda n: min(max((tgt * (n - n0_)) // (N1 - n0_), cnt_(n + 2)), cnt_(max(n, PRE) + 4)) if n <= N1 else cnt_(n + D + 1)
    first_of = {m: min(i for i, (q, _) in enumerate(todo) if q == m) for m in gate}
    for n in range(1, NST):
        page(1150 if pend else 860)
        assert n not in (SB, 11) or not pend
        if LATE and n == SB + 1:
            pend = list(init)
        need = vms((DX[n] + DW[n] if n >= PRE else []) + (RX[n - 1] + RW[n - 1] if n <= PRE else []) + ([E6] if n == SB else []) + (EP[:5] if n == 1 + n0_ else []))
        ops.append(Op("", "wait", need, bar=not (NOZ and n == 1)))
        prof()
        ld = []
        for i in range(done, upto(n)):
            assert todo[i][0] <= max(n, PRE) + 4
            ld.append(todo[i][1])
        done = upto(n)
        assert done == len(todo) or todo[done][0] > n + 1
        if NOZ and n == 1:
            assert not ld
            ld = zl
        for m, w in gate.items():
            if upto(n) <= first_of[m] < upto(n + 1):
                ld = [[POL[w]]] + ld + [pcheck(w)]
        if n == SB:
            ld = [[signal(3)]] + ld
        if n == 1 + n0_:
            ld = ld[:2] + [[signal(2)]] + ld[2:]
        if n == N1 + 1:
            ld = ld + [[S(f"s_add_u32 s{dX0}, s{dRes}, {XB}"), S(f"s_add_u32 s{dX1}, s{dRes}, {XB+4096}")]]
        if n == NST - OPT.get("rl", 1):
            ld = ld + [[Op(x, "vm")] for x in rcvt]
        split = n == N1 or (NOZ and n == 1 and not LATE)
        mm = (dmf(n - 1, [2, 3]) + dmf(n - 1, [0, 1])) if split else dmf(n - 1, [0, 1, 2, 3] if n < N1 else [0, 1])
        sl = [[] for _ in mm]
        rd = dreads(n) if n >= PRE else []
        nice = len(mm) == 32 and n != N1 and OPT.get("nice", 1)
        rpos = [q for q in range(32) if q % 4 != 1][:len(rd)] if nice else [i * (len(mm) * 5 // 8) // len(rd) for i in range(len(rd))]
        for q, r in zip(rpos, rd):
            sl[q].append(r)
        for i, g_ in enumerate(ld):
            q = (i * (len(mm) if n != N1 else 18)) // len(ld)
            if nice and len(ld) <= 8:
                q = 4 * i + 1
            if q and len(g_) > 2 and g_[1].text == "s_nop 0" and not any(o.kind == "vm" for o in sl[q]):
                sl[q - 1].append(g_[0])
                g_ = g_[2:]
            sl[q] += g_
        if n == N1:
            for i, g_ in enumerate(snd):
                sl[16 + i] += g_
        if NOZ and n == 1 and not LATE:
            for i, o in enumerate(init):
                sl[(i * 15) // len(init)].append(o)
        if LATE and n in (11, 12):
            for t in range(4):
                for e in range(4):
                    a = dacc[t][n - 11] + e
                    sl[8 * ((t + 2) % 4) + (2, 3, 4, 6)[e]].append(V(f"v_add_f32 v{a}, v{a}, v{hres[t][n-11]+e}"))
        credit = 0.0
        for i, (m, e) in enumerate(zip(mm, sl)):
            credit = min(credit, 4) + OPT.get("cap4", 90) / 10 - sum(o.cost for o in e)
            if NOZ and n == 1 and i < 16 and not LATE:
                credit = 0.0
            while pend and pend[0].cost <= credit:
                e.append(pend.pop(0)); credit -= e[-1].cost
            ops += [m] + e
    ops.append(Op("", "wait", rd))
    page(1200)
    ops += dmf(NST - 1, [0, 1])
    prof()
    ops.append(S("s_waitcnt lgkmcnt(0)" if OPT.get("prof") else "s_nop 0"))
    prof()
    emit_stream(k, ops)
    xstamp(k, 0)
    k(f"s_mov_b32 s{sN}, {1<<20}")
    k.label("L_ffn_chk")
    k("s_waitcnt vmcnt(0)")
    rr = [RCV[i][b] + r for i in range(2) for b in range(2) for r in range(4)]
    k(f"v_max3_u32 v{T0}, v{rr[0]}, v{rr[1]}, v{rr[2]}", f"v_max3_u32 v{T1}, v{rr[3]}, v{rr[4]}, v{rr[5]}")
    for j in range(6, 16, 2):
        t = [T0, T1][(j // 2) & 1]
        k(f"v_max3_u32 v{t}, v{rr[j]}, v{rr[j+1]}, v{t}")
    k(f"v_max_u32 v{T0}, v{T0}, v{T1}", f"v_cmp_eq_u32 vcc, -1, v{T0}", f"s_sub_u32 s{sN}, s{sN}, 1", "s_cbranch_scc1 L_ffn_out",
      "s_cbranch_vccz L_ffn_out")
    k.label("L_ffn_wait")
    k(f"buffer_load_dword v{T0}, off, s[{SWS}:{SWS+3}], s{dX1} offset:2044 sc1", "s_waitcnt vmcnt(0)", f"v_cmp_eq_u32 vcc, -1, v{T0}",
      f"s_sub_u32 s{sN}, s{sN}, 1", "s_cbranch_scc1 L_ffn_out", "s_cbranch_vccnz L_ffn_wait" if OPT.get("gentle", 1) else None, rcvt, "s_branch L_ffn_chk")
    k.label("L_ffn_out")
    k(f"s_mov_b32 s{sN}, 32768")
    U = acc[3][0]
    for i in range(2):
        for b in range(2):
            o = acc[10][2 * i + b]
            for jt in range(2):
                a, q = dacc[2 * b + jt][i], RCV[i][b] + 2 * jt
                k(f"v_lshlrev_b32 v{U}, 16, v{q}", f"v_and_b32 v{U+1}, 0xffff0000, v{q}",
                  f"v_lshlrev_b32 v{U+2}, 16, v{q+1}", f"v_and_b32 v{U+3}, 0xffff0000, v{q+1}",
                  f"v_pk_add_f32 {vr(a,2)}, {vr(a,2)}, {vr(U,2)}", f"v_pk_add_f32 {vr(a+2,2)}, {vr(a+2,2)}, {vr(U+2,2)}",
                  f"v_cvt_pk_bf16_f32 v{o+2*jt}, v{a}, v{a+1}", f"v_cvt_pk_bf16_f32 v{o+2*jt+1}, v{a+2}, v{a+3}")
            k(f"buffer_store_dwordx4 {vr(o,4)}, v{vRow}, s[{SO}:{SO+3}], {['0', f's{sN}'][i]} offen offset:{64*b} sc1")
    if OPT.get("prof"):
        k("s_lshl_b32 s3, s89, 2", f"s_add_u32 s3, s3, s{sW}", "s_lshl_b32 s3, s3, 8", f"s_add_u32 s3, s3, {STAMP+2*MB}",
          f"v_lshrrev_b32 v{T0}, 2, v{vLin}", f"buffer_store_dword v{vSt}, v{T0}, s[{SWS}:{SWS+3}], s3 offen sc1")
    tail(k, 1, sW)
    for w in range(4):
        k.label(f"L_ffn_spin{w}")
        k(f"s_mov_b32 s{sN}, {1<<20}")
        k.label(f"L_ffn_spin{w}b")
        k("s_mov_b64 exec, 1", f"v_mov_b32 v{vP}, 0", f"buffer_atomic_add v{vP}, off, s[{SWS}:{SWS+3}], s{[dPolA,dPolA,dPolA,dPol][w]} offset:{256*w} sc0 sc1",
          "s_waitcnt vmcnt(0)", f"v_cmp_gt_u32 vcc, {[16,16,16,32][w]}, v{vP}", "s_mov_b64 exec, -1", f"s_sub_u32 s{sN}, s{sN}, 1", f"s_cbranch_scc1 L_ffn_go{w}",
          f"s_cbranch_vccnz L_ffn_spin{w}b", f"s_branch L_ffn_go{w}")
    return k


HEADER = open("sequential_preLN__grouped_kv_mqa__glu_gated_glu__prompt.s.ref").read().split("; Override launch")[0]


DOC = """;
"""


def k_diag():
    k = Kern("diag_kernel", 1, 64, 0)
    k.vgpr = k.acc = 8
    a, b, m = OPT["da"], OPT["db"], OPT["dm"]
    off = lambda x: STAMP + (x // 10) * 16384 + (x % 10) * 4 + OPT.get("dwg", 0) * 64
    k("s_cmp_ge_u32 s2, 1", "s_cbranch_scc1 L_diag_end", "s_load_dwordx2 s[4:5], s[0:1], 88", "s_waitcnt lgkmcnt(0)",
      f"v_mov_b32 v1, {off(a)}", f"v_mov_b32 v2, {off(b)}", "global_load_dword v3, v1, s[4:5]", "global_load_dword v4, v2, s[4:5]",
      "s_memrealtime s[8:9]", "s_waitcnt vmcnt(0) lgkmcnt(0)", "v_mov_b32 v4, s8" if OPT.get("dself") else None, "v_sub_u32 v3, v4, v3", "s_nop 1", "v_readfirstlane_b32 s6, v3", "s_nop 3",
      "s_min_u32 s6, s6, 20000", f"s_mul_i32 s6, s6, {m}")
    k.label("L_diag_loop")
    k("s_memrealtime s[10:11]", "s_waitcnt lgkmcnt(0)", "s_sub_u32 s10, s10, s8", "s_cmp_lt_u32 s10, s6", "s_cbranch_scc1 L_diag_loop")
    k.label("L_diag_end")
    k("s_endpgm")
    return k


def build():
    ks = [k01_attn(), k3_gateup()]
    if "dm" in OPT:
        ks.append(k_diag())
    if OPT.get("mark"):
        m = Kern("mark_kernel", 1, 64, 0)
        m.vgpr = m.acc = 8
        m("s_memrealtime s[8:9]", "s_cmp_ge_u32 s2, 1", "s_cbranch_scc1 L_mark_end", "s_load_dwordx2 s[4:5], s[0:1], 88", "s_waitcnt lgkmcnt(0)",
          f"v_mov_b32 v1, {STAMP+5*16384}", "v_mov_b32 v2, s8", "global_store_dword v1, v2, s[4:5] sc1", "L_mark_end:", "s_endpgm")
        ks.append(m)
    s = HEADER + "".join(ks[int(c)].launch_line() + "\n" for c in str(OPT.get("seq", "".join(str(i) for i in range(len(ks))))).lstrip("9"))
    s += DOC
    s += '.amdgcn_target "amdgcn-amd-amdhsa--gfx950"\n.text\n'
    for i, k in enumerate(ks):
        s += k.text()
        if i == 0:
            s += "L_code_rest:\n"
    s += "L_code_end:\n"
    chain = [n for n, back in ISL if back is None]
    for n, back in ISL:
        if back:
            s = s.replace(f"@ISL{n}@", f"s_branch {back}")
    call = lambda l: "\n    ".join(f"s_call_b64 s[14:15], L_isl{n}" for n in l) or "s_nop 0"
    per = -(-len(chain) // 6)
    for q in range(6):
        s = s.replace(f"@SER{q}@", call((chain[::-1] if OPT.get("ser", 0) == 2 else chain)[q * per:(q + 1) * per]))
    for w in range(4):
        s = s.replace(f"@HOP{w}@", call(chain[w::4]))
    for n in chain:
        s = s.replace(f"@ISL{n}@", "s_setpc_b64 s[14:15]")
    s += '.section .rodata,"a"\n' + "".join(k.desc() for k in ks)
    return s


if __name__ == "__main__":
    out = sys.argv[1]
    for a in sys.argv[2:]:
        key, _, val = a.partition("=")
        OPT[key] = int(val) if val else True
    open(out, "w").write(build())
```

```python
import sys, math
sys.path.insert(0, __file__.rsplit("/", 1)[0])
from asmlib import *

MB = 1 << 20
QF, KVF, OF, HF, AF = 0, 4 * MB, 5 * MB, 9 * MB, 13 * MB
WOF, WGU, WDF, CSP, STP, STAMP = 28 * MB, 30 * MB, 44 * MB, 52 * MB, 53 * MB, 60 * MB
XB = 0
XB4 = [HF, XB, 56 * MB, 64 * MB]
FLG = 54 * MB
ST1 = 55 * MB
FL2 = FLG + 65536
WS_SZ = 72 * MB
OOB = 0x40000000
LOG2E = 1.4426950408889634
QSCALE = LOG2E / math.sqrt(32.0)
EPS = 1e-5
OPT = dict(stamp=False, force_slow=False)
A_X, A_WQ, A_WK, A_WV, A_WO, A_WG, A_WU, A_WD, A_OUT, A_WS = 0, 8, 16, 24, 32, 48, 56, 64, 72, 88


def ws_shift(s):
    if OPT.get("wsoff"):
        return [f"s_add_u32 s{s}, s{s}, {OPT['wsoff']*MB}", f"s_addc_u32 s{s+1}, s{s+1}, 0"]
    return []


ISL = []


def island(back=None, jump=True):
    if not OPT.get("isl", 1):
        return None
    n = len(ISL)
    ISL.append((n, back))
    skip = f".fill {OPT.get('skip', 1024)//4}, 4, 0xbf800000\n" if (back and OPT.get("skip", 1024)) else ""
    return (f"s_branch L_isl{n}_over\n" if jump else "") + f".p2align 12\n{skip}L_isl{n}:\n@ISL{n}@\nL_isl{n}_over:"


def isize(text):
    import re
    t = 0
    for ln in text.split("\n"):
        ln = ln.strip()
        if not ln:
            t += 8
        elif ln.endswith(":") or ln.startswith("."):
            continue
        elif re.match(r"(v_mfma|v_smfmac|ds_|buffer_|global_|s_load|s_mem|v_fma_|v_cvt_pk|v_accvgpr|v_pk_|v_lshl_add|v_bfe|v_max3|v_maximum3|v_mul_lo)", ln):
            t += 8
        else:
            lit = [x for x in re.findall(r"(?<![\w\[:])(0x[0-9a-f]+|\d+)(?![\w\]:])", ln.split(None, 1)[1] if " " in ln else "") if int(x, 0) > 64]
            t += 8 if lit else 4
    return t


def hop(k, sw):
    if OPT.get("isl", 1) and not OPT.get("nohop"):
        for w in range(4):
            if w < 3:
                k(f"s_cmp_lg_u32 s{sw}, {w}", f"s_cbranch_scc1 L_hop{w}")
            k(f"@HOP{w}@", "s_endpgm")
            if w < 3:
                k.label(f"L_hop{w}")
    else:
        k("s_endpgm")


def srd_tail(s, size):
    return [f"s_mov_b32 s{s+2}, {size}", f"s_mov_b32 s{s+3}, 0x00020000"]


def srd_from(s, base, off, size):
    return [f"s_add_u32 s{s}, s{base}, {off}", f"s_addc_u32 s{s+1}, s{base+1}, 0"] + srd_tail(s, size)


def head(k, pad=False):
    if pad and OPT.get("isl", 1) and OPT.get("epad", 1):
        n = len(ISL)
        ISL.append((n, None))
        k("s_cmp_lt_u32 s2, 256", f"s_cbranch_scc1 L_isl{n}_over", "s_endpgm", f"L_isl{n}:", f"@ISL{n}@", f"L_isl{n}_over:")
    else:
        k("s_cmp_ge_u32 s2, 256", f"s_cbranch_scc1 L_end_{k.name}")
    if OPT["stamp"]:
        k("s_memrealtime s[92:93]", "s_load_dwordx2 s[90:91], s[0:1], 88", "s_mov_b32 s89, s2")


def mid_stamp(k, i):
    if OPT["stamp"] and i < 2:
        k(f"s_memrealtime s[{96+2*i}:{97+2*i}]", f"s_memtime s[{84+2*i}:{85+2*i}]")
    elif OPT["stamp"]:
        k("s_memrealtime s[100:101]", "s_waitcnt lgkmcnt(0)", f"s_mov_b32 s{[93,88,3][i-2]}, s100")


def hstamp(k, lane):
    if OPT.get("hprof"):
        k("s_memrealtime s[84:85]", "s_waitcnt lgkmcnt(0)", f"v_writelane_b32 v200, s84, {lane}")


def xstamp(k, n):
    sel = str(OPT.get("xs", 378)).zfill(3)
    if str(n) in sel:
        mid_stamp(k, 2 + sel.index(str(n)))


def tail(k, kidx, swave):
    if OPT["stamp"]:
        k("s_waitcnt vmcnt(0)", "s_memrealtime s[94:95]", "s_waitcnt lgkmcnt(0)",
          "v_mov_b32 v0, s92", "v_mov_b32 v1, s96", "v_mov_b32 v2, s98", "v_mov_b32 v3, s94",
          "s_lshl_b32 s89, s89, 2", f"s_add_u32 s89, s89, s{swave}", "s_lshl_b32 s89, s89, 4",
          f"s_add_u32 s89, s89, {STAMP + kidx*16384}", "v_mov_b32 v4, s89",
          "global_store_dwordx4 v4, v[0:3], s[90:91]",
          "s_sub_u32 s86, s86, s84", "v_mov_b32 v8, s86", "v_mov_b32 v9, s93", "v_mov_b32 v10, s88", "v_mov_b32 v11, s3",
          "v_add_u32 v4, 0x100000, v4", "global_store_dwordx4 v4, v[8:11], s[90:91]")
    k.label(f"L_end_{k.name}")
    k("s_endpgm")


def ids_8x4(k, s_a, s_b, tmp):
    k(f"s_lshr_b32 s{tmp}, s2, 3",
      f"s_and_b32 s{s_a}, s{tmp}, 3",
      f"s_lshr_b32 s{s_b}, s{tmp}, 2",
      f"s_and_b32 s{tmp}, s2, 1",
      f"s_lshl_b32 s{tmp}, s{tmp}, 2",
      f"s_add_u32 s{s_a}, s{s_a}, s{tmp}",
      f"s_and_b32 s{tmp}, s2, 6",
      f"s_lshl_b32 s{tmp}, s{tmp}, 2",
      f"s_add_u32 s{s_b}, s{s_b}, s{tmp}")


def code_prefetch(k, vtmp, vdst, stmp, start, nkb_per_wg=1):
    k(f"s_getpc_b64 s[{stmp}:{stmp+1}]")
    lab = f"L_pc_{k.name}_{start}"
    k.label(lab)
    k(f"s_add_u32 s{stmp}, s{stmp}, {start}-{lab}",
      f"s_addc_u32 s{stmp+1}, s{stmp+1}, 0",
      f"global_load_dwordx4 {vr(vdst,4)}, v{vtmp}, s[{stmp}:{stmp+1}]" if not OPT.get("nopf") else None)


def k01_attn():
    D = 2
    STG, NS = 24576, D + 2
    EA = STG * NS
    SLOT, KVB, JB, TBL = 32768, 65536, 16384, 0
    k = Kern("attn_kernel", 256, 512, 163840)
    SX, SWQ, SE, SWS, SKV, SJ = 4, 8, 12, 16, 72, 76
    (sW, sTB, sHG, sC, sT, sT2, sRd, sWr, sKo, sJo, sJa, sJb, sGW, sStr, sDstep, sOo) = range(32, 48)
    sN, sX, sWo, sTH, sCH, sBW, sOo1, sFl, sKV = 48, 49, 54, 55, 56, 57, 65, 80, 81
    sD = [50, 51, 52, 53]
    sCs = [58, 59, 60, 61]
    sDB, sBsz, sWrJ = 62, 63, 64
    SDBG = 30
    v = Alloc(1)
    L, G, R, CQ, TOK, T0, T1, T2, vLin, vRd, IDX = [v() for _ in range(11)]
    h = Alloc(v.n)
    Q = [v(8, 4) for _ in range(2)]
    O = [v(16, 4) for _ in range(2)]
    LS = [v(4, 4) for _ in range(2)]
    acc = [[v(4, 4) for i in range(2)] for t in range(4)]
    cs = [v(4, 4) for _ in range(2)]
    sx, sxx = v(4, 4), v(4, 4)
    z1 = v.n
    SUMA, ONES = v(4, 4), v(4, 4)
    bX, bQ, aX, aQ = [[v() for i in range(2)] for _ in range(4)]
    bW = [v() for _ in range(4)]
    aW = [v() for _ in range(4)]
    F0 = v(96, 4)
    FQ = [[dict(X=[F0 + 48 * f + 24 * s + 4 * i for i in range(4)], W=[F0 + 48 * f + 24 * s + 16 + 4 * t for t in range(2)]) for s in range(2)] for f in range(2)]
    qacc = [[acc[0][0] + 16 * t + 4 * i for i in range(4)] for t in range(2)]
    F = [[dict(X=[F0 + 48 * f + 24 * s + 4 * i for i in range(2)], W=[F0 + 48 * f + 24 * s + 8 + 4 * t for t in range(4)]) for s in range(2)] for f in range(2)]
    S = [F0 + 16 * i for i in range(4)]
    KB = [F0 + 64 + 8 * i for i in range(2)]
    VB = [F0 + 80 + 8 * i for i in range(2)]
    XK = [F0 + 4 * j for j in range(8)]
    EK = [[F0 + 32 + 8 * j + 4 * t for t in range(2)] for j in range(8)]
    accE, csE = [Q[0], Q[0] + 4], [Q[1], Q[1] + 4]
    sxE, sxxE = v(4, 4), v(4, 4)
    vXk, vE, aE0, aE1, aP, aS, aG0, aG1, vKo, PF, vHo, vRow = [v() for _ in range(12)]
    RES = [[cs[0], cs[1]], [sx, sxx]]
    XR = 131072
    sFg, sRx, sH0, sH1, sS1 = 58, 59, 60, 61, 62
    k.vgpr = k.acc = 256
    vX, vX2 = h(), h()
    vW = [h() for _ in range(4)]
    vJ, vJB, vCs, vPo = h(), h(), h(), h()
    aJ = [h() for _ in range(4)]
    bJ = [h() for _ in range(2)]
    JF = [h(4, 4) for _ in range(4)]
    CS = [h(4, 4) for _ in range(4)]
    PF4 = h(4, 4)
    head(k)
    k(f"s_load_dwordx2 s[{SX}:{SX+1}], s[0:1], {A_X}",
      f"s_load_dwordx2 s[{SWQ}:{SWQ+1}], s[0:1], {A_WQ}",
      f"s_load_dwordx4 s[24:27], s[0:1], {A_WK}",
      f"s_load_dwordx2 s[{SWS}:{SWS+1}], s[0:1], {A_WS}",
      f"s_load_dwordx2 s[{SDBG}:{SDBG+1}], s[0:1], 80")
    k(f"s_lshl_b32 s{sT}, s2, 7", f"s_and_b32 s{sT}, s{sT}, 0x7c00", f"v_lshl_add_u32 v{T0}, v0, 1, s{sT}", f"v_and_b32 v{T0}, -4, v{T0}", "s_getpc_b64 s[20:21]", f"global_load_dword v{PF}, v{T0}, s[20:21]" if not OPT.get("nopf") else None)
    k(f"v_lshrrev_b32 v{T1}, 6, v0", f"v_and_b32 v{L}, 63, v0", f"v_readfirstlane_b32 s{sW}, v{T1}")
    ids_8x4(k, sHG, sTB, sT)
    k(f"v_lshrrev_b32 v{G}, 4, v{L}", f"v_and_b32 v{TOK}, 15, v{L}", f"v_lshlrev_b32 v{vLin}, 4, v{L}")
    k(f"s_and_b32 s{sTH}, s{sW}, 1", f"s_bfe_u32 s{sCH}, s{sW}, 0x10001",
      f"s_cmp_ge_u32 s{sW}, 4", "s_cbranch_scc1 L_f_help")
    k(f"s_and_b32 s{sT}, s{sHG}, 3", f"s_lshl_b32 s{sT2}, s{sTB}, 2", f"s_add_u32 s{sT}, s{sT}, s{sT2}", f"s_lshl_b32 s{sT}, s{sT}, 15",
      f"s_lshl_b32 s{sT2}, s{sW}, 9", f"s_add_u32 s{sT}, s{sT}, s{sT2}",
      f"v_lshrrev_b32 v{T0}, 3, v{L}", f"v_lshlrev_b32 v{T0}, 11, v{T0}", f"v_and_b32 v{T1}, 7, v{L}", f"v_xor_b32 v{T1}, v{T1}, v{G}",
      f"v_lshl_add_u32 v{T0}, v{T1}, 4, v{T0}", f"v_add_u32 v{vXk}, s{sT}, v{T0}", f"v_xor_b32 v{T1}, {16384+64}, v{vXk}", f"s_lshl_b32 s{sX}, s{sW}, 13",
      f"v_and_b32 v{T0}, 32, v{L}", f"v_xor_b32 v{T0}, v{T0}, v{vLin}",
      f"s_lshl_b32 s{sWr}, s{sW}, 14", f"v_add_u32 v{vE}, s{sWr}, v{T0}",
      f"s_lshr_b32 s{sT}, s2, 3", f"s_lshl_b32 s{sT}, s{sT}, 11", f"v_lshlrev_b32 v{T0}, 3, v0",
      f"s_bitcmp1_b32 s{sHG}, 2", "s_waitcnt lgkmcnt(0)",
      f"s_cselect_b32 s{SE}, s26, s24", f"s_cselect_b32 s{SE+1}, s27, s25", srd_tail(SE, 0x10000), srd_tail(SX, 4 * MB))
    xstamp(k, 0)
    k(f"buffer_load_dword v{PF}, v{T0}, s[{SE}:{SE+3}], s{sT} offen")
    for j in range(8):
        k(f"s_add_u32 m0, s{sX}, {1024*j-128*(j>>1)}", "s_nop 0", f"buffer_load_dwordx4 v{[vXk,T1][j&1]}, s[{SX}:{SX+3}], 0 offen offset:{128*(j>>1)} lds")

    def kv_ld(gi):
        k(f"s_add_u32 m0, s{sWr}, {EA+4096*gi}", f"s_mov_b32 s{sWo}, {4096*gi}")
        for i in range(4):
            k(f"buffer_load_dwordx4 v{vE}, s[{SE}:{SE+3}], s{sWo} offen offset:{1024*i} lds")
    k("s_branch L_f_comp")
    k.label("L_f_help")
    k(f"s_and_b32 s{sW}, s{sW}, 3")
    if OPT.get("wqpf", 0):
        k(f"v_and_b32 v{T0}, 255, v0", f"v_lshlrev_b32 v{T0}, 5, v{T0}", f"s_lshl_b32 s{sT}, s2, 13", "s_waitcnt lgkmcnt(0)", srd_tail(SWQ, 2 * MB),
          f"buffer_load_dword v{PF4}, v{T0}, s[{SWQ}:{SWQ+3}], s{sT} offen")
    k(f"v_lshrrev_b32 v{T0}, 3, v{L}",
      f"s_lshl_b32 s{sT}, s{sTH}, 2",
      f"v_add_u32 v{T1}, s{sT}, v{G}",
      f"v_and_b32 v{T2}, 7, v{L}",
      f"v_xor_b32 v{T1}, v{T1}, v{T2}",
      f"s_lshl_b32 s{sT}, s{sTB}, 6",
      f"s_lshl_b32 s{sT2}, s{sW}, 3",
      f"s_add_u32 s{sT}, s{sT}, s{sT2}",
      f"v_add_u32 v{T0}, s{sT}, v{T0}",
      f"v_lshlrev_b32 v{T0}, 11, v{T0}",
      f"v_lshl_add_u32 v{vX}, v{T1}, 4, v{T0}",
      f"v_add_u32 v{vX2}, 0x10000, v{vX}")
    k(f"v_lshlrev_b32 v{T1}, 1, v{G}",
      f"v_xor_b32 v{T1}, v{T1}, v{TOK}",
      f"s_lshl_b32 s{sT}, s{sTH}, 3",
      f"v_xor_b32 v{T1}, s{sT}, v{T1}",
      f"s_lshl_b32 s{sBW}, s{sTH}, 1",
      f"s_add_u32 s{sBW}, s{sBW}, s{sCH}",
      f"s_lshl_b32 s{sT}, s{sBW}, 13",
      f"s_lshl_b32 s{sT2}, s{sHG}, 8",
      f"s_add_u32 s{sT}, s{sT}, s{sT2}",
      f"v_lshlrev_b32 v{T0}, 11, v{G}",
      f"v_add_u32 v{T0}, s{sT}, v{T0}",
      f"v_lshl_add_u32 v{vW[0]}, v{T1}, 4, v{T0}")
    for i in range(1, 4):
        k(f"v_add_u32 v{vW[i]}, {32768*i}, v{vW[0]}")
    k(f"s_sub_u32 s{sBW}, s{sBW}, s{sW}", f"s_lshl_b32 s{sBW}, s{sBW}, 10", f"s_add_u32 s{sBW}, s{sBW}, 8192",
      f"s_lshl_b32 s{sWr}, s{sW}, 10", f"s_mov_b32 s{sN}, 12")
    k(f"s_and_b32 s{sT}, s{sTB}, {7 if OPT.get('rot', 1) else 0}",
      f"s_lshl_b32 s{sX}, s{sT}, 8", f"s_lshl_b32 s{sWo}, s{sT}, 18")
    k("s_waitcnt lgkmcnt(0)", srd_tail(SX, 4 * MB), srd_tail(SWQ, 2 * MB))
    k(f"s_load_dwordx2 s[20:21], s[0:1], {A_WO}", f"s_load_dwordx4 s[24:27], s[0:1], {A_WG}", f"s_load_dwordx2 s[28:29], s[0:1], {A_WD}")
    def q_x(slot):
        k(f"s_add_u32 m0, s{sWr}, {slot}", "s_nop 0", f"buffer_load_dwordx4 v{vX}, s[{SX}:{SX+3}], s{sX} offen lds",
          f"s_add_u32 m0, s{sWr}, {slot+4096}", "s_nop 0", f"buffer_load_dwordx4 v{vX2}, s[{SX}:{SX+3}], s{sX} offen lds",
          f"s_add_u32 s{sX}, s{sX}, 128", f"s_and_b32 s{sX}, s{sX}, 2047")

    def q_w(slot):
        k(f"s_add_u32 s{sT}, s{sWr}, s{sBW}")
        for i in range(4):
            k(f"s_add_u32 m0, s{sT}, {slot+4096*i}", "s_nop 0", f"buffer_load_dwordx4 v{vW[i]}, s[{SWQ}:{SWQ+3}], s{sWo} offen lds")
        k(f"s_add_u32 s{sWo}, s{sWo}, 0x20000", f"s_and_b32 s{sWo}, s{sWo}, 0x1fffff")

    def q_stage():
        q_x(0); q_w(0)
        k(f"s_add_u32 s{sWr}, s{sWr}, {STG}", f"s_cmp_ge_u32 s{sWr}, {EA}", f"s_cselect_b32 s{sT}, {EA}, 0",
          f"s_sub_u32 s{sWr}, s{sWr}, s{sT}", f"s_sub_u32 s{sN}, s{sN}, 1")
    k("s_branch L_f_setup")
    k.label("L_f_comp")
    k(f"v_bfe_u32 v{R}, v{L}, 2, 2", f"v_and_b32 v{CQ}, 3, v{L}", f"v_and_b32 v{T2}, 1, v{G}",
      f"s_lshl_b32 s{sT}, s{sW}, 14", f"s_add_u32 s{sT}, s{sT}, {EA}",
      f"v_lshlrev_b32 v{T0}, 5, v{T2}", f"v_lshl_add_u32 v{T0}, v{CQ}, 3, v{T0}",
      f"v_lshl_add_u32 v{T0}, v{R}, 6, v{T0}", f"v_lshl_add_u32 v{T0}, v{G}, 9, v{T0}",
      f"v_add_u32 v{aE0}, s{sT}, v{T0}", f"v_xor_b32 v{aE1}, 32, v{aE0}")
    for i in range(4):
        k(f"v_mov_b32 v{ONES+i}, 0x3f803f80")
    k(ws_shift(SWS), srd_tail(SWS, WS_SZ), srd_from(SKV, SWS, KVF, 262144))
    k(f"s_lshl_b32 s{sT}, s{sCH}, 10", f"s_lshl_b32 s{sT2}, s{sTH}, 3", f"s_add_u32 s{sT}, s{sT}, s{sT2}", f"s_add_u32 s{sT}, s{sT}, {EA}",
      f"v_add_u32 v{aP}, s{sT}, v{vLin}", f"v_lshlrev_b32 v{aS}, 3, v{TOK}", f"v_add_u32 v{aS}, {EA+4096}, v{aS}")
    k(f"s_bfe_u32 s{sT}, s{sHG}, 0x10001", f"s_lshl_b32 s{sKV}, s{sTB}, 1", f"s_add_u32 s{sKV}, s{sKV}, s{sT}", f"s_lshl_b32 s{sKV}, s{sKV}, 12",
      f"s_and_b32 s{sT2}, s{sHG}, 1", f"s_bitcmp1_b32 s{sHG}, 2", "s_cbranch_scc1 L_f_av")
    k(f"s_lshl_b32 s{sT2}, s{sT2}, 8", f"s_add_u32 s{sKV}, s{sKV}, s{sT2}",
      f"s_lshl_b32 s{sT}, s{sW}, 2", f"s_add_u32 s{sT}, s{sT}, {EA+8192}", f"v_add_u32 v{aG0}, s{sT}, v{vLin}", f"v_add_u32 v{aG1}, 2, v{aG0}",
      f"v_lshlrev_b32 v{T0}, 10, v{T2}", f"v_lshrrev_b32 v{T1}, 1, v{G}", f"v_lshl_add_u32 v{T0}, v{T1}, 9, v{T0}", f"v_lshl_add_u32 v{vKo}, v{TOK}, 4, v{T0}",
      "s_branch L_f_ax")
    k.label("L_f_av")
    k(f"s_lshl_b32 s{sT2}, s{sT2}, 10", f"s_add_u32 s{sKV}, s{sKV}, s{sT2}", f"s_add_u32 s{sKV}, s{sKV}, 2048",
      f"v_lshlrev_b32 v{T0}, 7, v{T2}", f"v_lshrrev_b32 v{T1}, 1, v{G}", f"v_lshl_add_u32 v{T0}, v{T1}, 6, v{T0}",
      f"v_bfe_u32 v{T1}, v{L}, 3, 1", f"v_lshl_add_u32 v{T0}, v{T1}, 9, v{T0}", f"v_and_b32 v{T1}, 7, v{L}", f"v_lshl_add_u32 v{T0}, v{T1}, 1, v{T0}",
      f"s_lshl_b32 s{sT}, s{sCH}, 8", f"s_lshl_b32 s{sT2}, s{sTH}, 5", f"s_add_u32 s{sT}, s{sT}, s{sT2}", f"s_add_u32 s{sT}, s{sT}, {EA+8192}",
      f"v_add_u32 v{aG0}, s{sT}, v{T0}", f"v_add_u32 v{aG1}, 16, v{aG0}", f"v_mov_b32 v{vKo}, v{vLin}")
    k.label("L_f_ax")
    k(f"v_lshrrev_b32 v{T0}, 1, v{TOK}", f"v_xor_b32 v{T0}, v{T0}, v{G}", f"v_lshlrev_b32 v{T0}, 4, v{T0}",
      f"v_lshl_add_u32 v{bX[0]}, v{TOK}, 7, v{T0}", f"v_add_u32 v{vXk}, s{sX}, v{bX[0]}", f"v_xor_b32 v{bX[1]}, 64, v{bX[0]}")
    k(f"v_lshlrev_b32 v{T0}, 2, v{T2}", f"v_xor_b32 v{T0}, v{T0}, v{R}",
      f"v_lshlrev_b32 v{T0}, 5, v{T0}",
      f"v_lshl_add_u32 v{T0}, v{CQ}, 3, v{T0}",
      f"v_lshl_add_u32 v{T0}, v{R}, 8, v{T0}",
      f"v_lshl_add_u32 v{T0}, v{G}, 11, v{T0}",
      f"s_lshl_b32 s{sT}, s{sW}, 6", f"s_add_u32 s{sT}, s{sT}, 8192", f"v_xor_b32 v{bQ[0]}, s{sT}, v{T0}", f"v_xor_b32 v{bQ[1]}, 32, v{bQ[0]}",
      f"s_lshl_b32 s{sT}, s{sCH}, 7", f"v_xor_b32 v{bW[0]}, s{sT}, v{T0}")
    for t in range(1, 4):
        k(f"v_xor_b32 v{bW[t]}, {32*t}, v{bW[0]}")
    bases = list(zip(aX + aQ, bX + bQ))
    for a, b in bases + list(zip(aW, bW)):
        k(f"v_mov_b32 v{a}, v{b}")
    for i in range(O[0], z1, 2):
        k(f"v_mov_b64 {vr(i,2)}, 0")
    k(f"v_and_b32 v{T0}, 7, v{L}", f"v_cmp_eq_u32 vcc, 0, v{T0}", f"v_mov_b32 v{IDX}, 0xdddd", f"v_add_u32 v{vRd}, {KVB+SLOT}, v{vLin}",
      f"v_cndmask_b32 v{SUMA}, 0, v{ONES}, vcc", f"v_cndmask_b32 v{SUMA+1}, 0, v{ONES}, vcc",
      f"v_cmp_eq_u32 vcc, 4, v{T0}", f"v_and_b32 v{T0}, 1, v{TOK}", f"v_and_b32 v{T1}, 2, v{TOK}",
      f"v_cndmask_b32 v{SUMA+2}, 0, v{ONES}, vcc", f"v_cndmask_b32 v{SUMA+3}, 0, v{ONES}, vcc",
      f"v_cmp_eq_u32 s[66:67], 1, v{T0}", f"v_cmp_eq_u32 s[68:69], 2, v{T1}", f"v_cmp_eq_u32 s[82:83], v{R}, v{G}")
    k(f"s_lshl_b32 s{sFg}, s{sTB}, 9", f"s_add_u32 s{sFg}, s{sFg}, {FLG}")
    k(f"s_lshr_b32 s{sS1}, s{sHG}, 2", f"s_lshl_b32 s{sS1}, s{sS1}, 5", f"s_add_u32 s{sS1}, s{sS1}, s{sTB}", f"s_lshl_b32 s{sS1}, s{sS1}, 9",
      f"s_add_u32 s{sS1}, s{sS1}, {ST1}")
    k(f"v_lshrrev_b32 v{T0}, 1, v{G}", f"v_lshl_add_u32 v{T0}, v{T2}, 1, v{T0}", f"v_lshlrev_b32 v{T1}, 4, v{TOK}", f"v_lshl_add_u32 v{vHo}, v{T0}, 8, v{T1}",
      f"v_lshlrev_b32 v{T1}, 11, v{TOK}", f"v_lshl_add_u32 v{T0}, v{T0}, 4, v{T1}",
      f"s_lshl_b32 s{sT}, s{sTB}, 1", f"s_add_u32 s{sT}, s{sT}, s{sTH}", f"s_lshl_b32 s{sT}, s{sT}, 16",
      f"s_lshl_b32 s{sT2}, s{sHG}, 1", f"s_add_u32 s{sT2}, s{sT2}, s{sCH}", f"s_lshl_b32 s{sT2}, s{sT2}, 7", f"s_add_u32 s{sT}, s{sT}, s{sT2}",
      f"v_add_u32 v{vRow}, s{sT}, v{T0}")
    k(f"s_lshl_b32 s{sT}, s{sTB}, 3", f"s_add_u32 s{sT}, s{sT}, s{sHG}", f"s_lshl_b32 s{sT}, s{sT}, 14",
      f"s_lshl_b32 s{sT2}, s{sW}, 12", f"s_add_u32 s{sOo}, s{sT}, s{sT2}", f"s_add_u32 s{sOo}, s{sOo}, {OF}",
      f"s_lshl_b32 s{sT2}, s{sCH}, 13", f"s_add_u32 s{sT}, s{sT}, s{sT2}", f"s_lshl_b32 s{sT2}, s{sTH}, 11", f"s_add_u32 s{sT}, s{sT}, s{sT2}",
      f"s_add_u32 s{sH0}, s{sT}, {HF}", f"s_add_u32 s{sH1}, s{sT}, {HF+4096}")
    k(f"s_mov_b32 s{sRd}, 0", f"s_mov_b32 s{sN}, 7", f"s_cmp_eq_u32 s{sW}, 0", f"s_cselect_b32 s{sFl}, 7, -1")
    xstamp(k, 1)

    def diag(dst, src):
        return [f"v_cndmask_b32 v{T0}, v{src}, v{src+1}, s[66:67]", f"v_cndmask_b32 v{T1}, v{src+2}, v{src+3}, s[66:67]",
                f"v_cndmask_b32 v{dst}, v{T0}, v{T1}, s[68:69]"]

    def kv_mf(gi):
        o = []
        for j in (2 * gi, 2 * gi + 1):
            c = "0" if j == 0 else None
            for t in range(2):
                o += [m16(vr(accE[t], 4), vr(EK[j][t], 4), vr(XK[j], 4), c), m16(vr(csE[t], 4), vr(EK[j][t], 4), vr(ONES, 4), c)]
        return o
    kv_rd = lambda gi: [f"ds_read_b64_tr_b16 {vr(EK[j][t]+2*jj,2)}, v{[aE0,aE1][t]} offset:{j*2048+jj*256}"
                        for j in (2 * gi, 2 * gi + 1) for t in range(2) for jj in range(2)]
    kv_ld(0); kv_ld(1)
    k(f"v_xor_b32 v{T0}, 64, v{vXk}", "s_waitcnt vmcnt(8)")
    xstamp(k, 2)
    for j in range(8):
        k(f"ds_read_b128 {vr(XK[j],4)}, v{[vXk,T0][j&1]} offset:{2048*(j>>1)}")
    kv_ld(2)
    k("s_waitcnt lgkmcnt(0)")
    for j in range(8):
        k(m16(vr(sxxE, 4), vr(XK[j], 4), vr(XK[j], 4), "0" if j == 0 else None), m16(vr(sxE, 4), vr(ONES, 4), vr(XK[j], 4), "0" if j == 0 else None))
    k("s_waitcnt vmcnt(8)", kv_rd(0))
    kv_ld(3)
    xstamp(k, 3)
    k("s_barrier")
    k(f"s_add_u32 s{sT}, s{sWr}, {EA}", f"v_add_u32 v{vE}, s{sT}, v{vLin}", f"v_lshl_add_u32 v{vXk}, v{TOK}, 3, s{sT}")
    k(diag(sxE + 1, sxxE))
    for gi in range(1, 4):
        k(f"s_waitcnt vmcnt({12-4*gi}) lgkmcnt(0)", weave(kv_mf(gi - 1), kv_rd(gi), 0, 5))
    xstamp(k, 4)
    k("s_waitcnt lgkmcnt(0)", kv_mf(3), "s_mov_b64 exec, s[82:83]", f"ds_write_b64 v{vXk}, {vr(sxE,2)} offset:4096", "s_mov_b64 exec, -1", "s_nop 3")
    for i, r in enumerate(accE + csE):
        k(f"ds_write_b128 v{vE}, {vr(r,4)} offset:{1024*i}")
    k("s_waitcnt lgkmcnt(0)")
    xstamp(k, 5)
    k(island(back="L_f_back"))
    U = F0 + 48

    def sum4(r):
        return [f"v_add_f32 v{r+e}, v{r+e}, v{r+2+e}" for e in range(2)] + [f"v_add_f32 v{r+4+e}, v{r+4+e}, v{r+6+e}" for e in range(2)] + \
               [f"v_add_f32 v{r+e}, v{r+e}, v{r+4+e}" for e in range(2)]

    def stats(s, scale):
        return [f"v_mul_f32 v{s}, {f32(-1/1024)}, v{s}", f"v_mul_f32 v{s+1}, {f32(1/1024)}, v{s+1}",
                f"v_fma_f32 v{s+1}, -v{s}, v{s}, v{s+1}", f"v_max_f32 v{s+1}, 0, v{s+1}", f"v_add_f32 v{s+1}, {f32(EPS)}, v{s+1}",
                f"v_rsq_f32 v{s+2}, v{s+1}", "s_nop 0", f"v_mul_f32 v{s+2}, {f32(scale)}, v{s+2}" if scale != 1 else None,
                f"v_mul_f32 v{s+1}, v{s}, v{s+2}", f"v_mov_b32 v{s}, v{s+2}"]
    def reads(fi):
        o = []
        for s in range(2):
            f = FQ[fi][s]
            for t in range(2):
                for j in range(2):
                    o.append(f"ds_read_b64_tr_b16 {vr(f['W'][t]+2*j,2)}, v{aQ[t]} offset:{s*8192+j*1024}")
            o += [f"ds_read_b128 {vr(f['X'][i],4)}, v{aX[s]} offset:{2048*i}" for i in range(4)]
        return o

    def mfmas(fi):
        X = lambda s, i: vr(FQ[fi][s]["X"][i], 4)
        W = lambda s, t: vr(FQ[fi][s]["W"][t], 4)
        o = [m16(vr(cs[t], 4), W(s, t), vr(ONES, 4)) for t in range(2) for s in range(2)]
        for i in range(4):
            o += [m16(vr(qacc[t ^ (i & 1)][i], 4), W(s, t ^ (i & 1)), X(s, i)) for t in range(2) for s in range(2)]
        return o
    va = [f"v_add_u32 v{a}, s{sRd}, v{b}" for a, b in bases]
    adv = [[f"s_add_u32 s{sRd}, s{sRd}, {STG}", f"s_cmp_eq_u32 s{sRd}, {EA}"], [f"s_cselect_b32 s{sRd}, 0, s{sRd}"]] + \
          [va[i:i + 2] for i in range(0, len(va), 2)]
    k("s_barrier")
    xstamp(k, 7)
    if OPT.get('qcyc'):
        mid_stamp(k, 0)
    for w in range(4):
        k(f"ds_read_b64 {vr(U+2*w,2)}, v{aS} offset:{16384*w}")
    for w in range(4):
        k(f"ds_read_b64 {vr(U+8+2*w,2)}, v{aP} offset:{16384*w}", f"ds_read_b64 {vr(U+16+2*w,2)}, v{aP} offset:{16384*w+2048}")
    r0 = reads(0)
    k(r0[:3], "s_waitcnt lgkmcnt(11)", weave(sum4(U) + [x for x in stats(U, 1) if x], r0[3:12], 0, 12), "s_waitcnt lgkmcnt(12)",
      weave(sum4(U + 8) + sum4(U + 16), r0[12:]))
    for e in range(2):
        k(f"v_mul_f32 v{U+8+e}, v{U}, v{U+8+e}", f"v_fmac_f32 v{U+8+e}, v{U+1}, v{U+16+e}")
    k(f"v_cvt_pk_bf16_f32 v{U+8}, v{U+8}, v{U+9}", f"ds_write_b16 v{aG0}, v{U+8}", f"ds_write_b16_d16_hi v{aG1}, v{U+8}",
      f"v_mov_b64 {vr(sxxE,2)}, {vr(U,2)}")
    k(adv, f"v_lshlrev_b32 v{aP}, 3, v{L}", "s_waitcnt lgkmcnt(0)")
    k.label("L_f_qloop")
    for f in range(2):
        k("s_barrier")
        m = weave(mfmas(f), reads(1 - f), 0, OPT.get('qw', 13))
        if f == 0:
            k(weave(m, adv + [[f"s_cmp_eq_u32 s{sN}, s{sFl}"]], len(m) - 6, len(m) - 1))
            k("s_cbranch_scc1 L_f_flag")
            k.label("L_f_flagged")
        else:
            k(weave(m, adv + [[f"s_sub_u32 s{sN}, s{sN}, 1", f"s_cmp_lg_u32 s{sN}, 0"]], len(m) - 6, len(m) - 1))
        k("s_waitcnt lgkmcnt(0)")
    k("s_cbranch_scc1 L_f_qloop")
    k("s_barrier")
    ST = [sx + 2 * i for i in range(4)]
    k(f"buffer_load_dwordx2 {vr(ST[0],2)}, v{aP}, s[{SWS}:{SWS+3}], s{sS1} offen sc1")
    k(weave(mfmas(0), reads(1), 0, 11), "s_waitcnt lgkmcnt(0)")

    def qfin(i, packed):
        o, d = [], Q[i >> 1] + 4 * (i & 1)
        for t in range(2):
            a = qacc[t][i]
            if packed:
                o += [f"v_pk_mul_f32 {vr(a+hh,2)}, {vr(a+hh,2)}, {vr(ST[i],2)} op_sel_hi:[1,0]" for hh in (0, 2)]
                o += [f"v_pk_fma_f32 {vr(a+hh,2)}, {vr(cs[t]+hh,2)}, {vr(ST[i],2)}, {vr(a+hh,2)} op_sel:[0,1,0] op_sel_hi:[1,1,1]" for hh in (0, 2)]
            else:
                o += [f"v_mul_f32 v{a+r}, v{ST[i]}, v{a+r}" for r in range(4)] + [f"v_fmac_f32 v{a+r}, v{ST[i]+1}, v{cs[t]+r}" for r in range(4)]
            o += [f"v_cvt_pk_bf16_f32 v{d+2*t}, v{a}, v{a+1}", f"v_cvt_pk_bf16_f32 v{d+2*t+1}, v{a+2}, v{a+3}"]
        return o
    m = mfmas(1)
    q0 = qfin(0, False)
    two = lambda f_: [f_(e) for e in range(2)]
    bc = [two(lambda e: f"v_mul_f32 v{ST[1]+e}, {f32(QSCALE)}, v{ST[0]+e}"), two(lambda e: f"v_mul_f32 v{ST[0]+e}, {f32(QSCALE)}, v{ST[0]+e}"), ["s_nop 0"],
          two(lambda e: f"v_permlane16_swap_b32 v{ST[0]+e}, v{ST[1]+e}"),
          two(lambda e: f"v_mov_b32 v{ST[2]+e}, v{ST[0]+e}"), two(lambda e: f"v_mov_b32 v{ST[3]+e}, v{ST[1]+e}"),
          two(lambda e: f"v_permlane32_swap_b32 v{ST[0]+e}, v{ST[2]+e}"), two(lambda e: f"v_permlane32_swap_b32 v{ST[1]+e}, v{ST[3]+e}")]
    k(m[0], f"s_mov_b32 s{sRd}, {KVB+SLOT}", m[1], f"s_mov_b32 s{sC}, 8", m[2:5], "s_waitcnt vmcnt(0)",
      weave(m[5:13], bc), weave(m[13:], q0[:14]), q0[14:])
    xstamp(k, 8)
    if OPT.get('qcyc'):
        mid_stamp(k, 1)
    k(qfin(1, True), qfin(2, True), qfin(3, True))
    for r0, n in ((S[3], 16), (VB[1], 8)):
        for i in range(0, n, 2):
            k(f"v_mov_b64 {vr(r0+i,2)}, 0")
    for p in range(2):
        for r in range(4):
            k(f"v_permlane16_swap_b32 v{Q[p]+r}, v{Q[p]+4+r}")
    k("s_branch L_f_att")
    k.label("L_f_flag")
    k(f"s_cmp_lg_u32 s{sFl}, 7", "s_cbranch_scc1 L_f_flag2")
    k(f"ds_read_b128 {vr(sxE,4)}, v{vE} offset:8192", f"v_lshlrev_b32 v{T0}, 3, v{L}",
      f"s_cmp_eq_u32 s{sHG}, 0", f"s_cselect_b32 s{sT}, s{sFg}, {OOB}",
      f"buffer_store_dwordx2 {vr(O[0],2)}, v{T0}, s[{SWS}:{SWS+3}], s{sT} offen sc1",
      f"s_and_b32 s{sT}, s{sHG}, 3", f"s_lshl_b32 s{sT}, s{sT}, 7", f"s_add_u32 s{sT}, s{sT}, s{sS1}", "s_mov_b64 exec, 0xffff",
      f"buffer_store_dwordx2 {vr(sxxE,2)}, v{T0}, s[{SWS}:{SWS+3}], s{sT} offen sc1", "s_mov_b64 exec, -1", "s_waitcnt lgkmcnt(0)",
      f"buffer_store_dwordx4 {vr(sxE,4)}, v{vKo}, s[{SKV}:{SKV+3}], s{sKV} offen sc1",
      f"s_mov_b32 s{sFl}, {OPT.get('flagit', 5)}", "s_branch L_f_flagged")
    k.label("L_f_flag2")
    k(f"s_and_b32 s{sT}, s2, 0xfc", f"v_mov_b32 v{T0}, s{sT}", f"v_mov_b32 v{T1}, 1", "s_mov_b64 exec, 1", "s_waitcnt vmcnt(0)",
      f"global_atomic_add v{T0}, v{T1}, s[{SDBG}:{SDBG+1}] sc1", "s_mov_b64 exec, -1", "s_branch L_f_flagged")
    k(island(back="L_f_back", jump=False))
    k.label("L_f_att")
    k("s_barrier")
    if not (OPT.get('qcyc') or OPT.get('ocyc')):
        mid_stamp(k, 0)
    rdK = lambda t: [f"ds_read_b128 {vr(KB[t&1]+4*m,4)}, v{vRd} offset:{(t%8)*4096+1024*m}" for m in range(2)]
    rdV = lambda t: [f"ds_read_b128 {vr(VB[t&1]+4*m,4)}, v{vRd} offset:{(t%8)*4096+2048+1024*m}" for m in range(2)]
    qk = lambda u, c="0": [m32(vr(S[u % 4], 16), vr(KB[(u >> 1) & 1], 4), vr(Q[u & 1], 4), c),
                           m32(vr(S[u % 4], 16), vr(KB[(u >> 1) & 1] + 4, 4), vr(Q[u & 1] + 4, 4))]
    pv = lambda u: [f"v_smfmac_f32_32x32x32_bf16 {vr(O[u&1],16)}, {vr(VB[(u>>1)&1]+4*m,4)}, {vr(S[u%4]+8*m,8)}, v{IDX}" for m in range(2)]
    sm = lambda u: [f"v_smfmac_f32_16x16x64_bf16 {vr(LS[u&1],4)}, {vr(SUMA,4)}, {vr(S[u%4]+8*m,8)}, v{IDX}" for m in range(2)]
    vO, aO0, aO1 = aG0, aG1, vKo
    k(rdK(0), rdV(0), rdK(1))
    k(f"s_mov_b32 s{sT}, 32768")
    for i in range(2):
        for b in range(2):
            k(f"buffer_load_dwordx4 {vr(RES[i][b],4)}, v{vRow}, s[{SX}:{SX+3}], {['0', f's{sT}'][i]} offen offset:{64*b}")
    k("s_waitcnt lgkmcnt(4)", qk(0))
    bT, aT = bX[0], aX[0]
    k(f"v_and_b32 v{T0}, 1, v{G}", f"v_lshlrev_b32 v{T0}, 10, v{T0}", f"v_lshrrev_b32 v{T1}, 5, v{L}",
      f"v_lshl_add_u32 v{T0}, v{T1}, 8, v{T0}", f"v_lshl_add_u32 v{vO}, v{TOK}, 4, v{T0}",
      f"s_lshl_b32 s{sT}, s{sW}, 12", f"s_add_u32 s{sT}, s{sT}, {XR}", f"v_add_u32 v{aO0}, s{sT}, v{vO}",
      f"s_lshl_b32 s{sT}, s{sTH}, 11", f"s_add_u32 s{sT}, s{sT}, {XR}", f"v_add_u32 v{bT}, s{sT}, v{vLin}", f"v_add_u32 v{aT}, s{sT}, v{vLin}")
    k(".p2align 6")
    k.label("L_k1_loop")
    for u in range(16):
        ex = [f"v_exp_f32 v{S[u%4]+i}, v{S[u%4]+i}" for i in range(16)]
        mf = qk(u + 1) + pv(u - 1) + sm(u - 1)
        sl = [[] for _ in range(6)]
        rd = rdV(u // 2 + 1) if u % 2 == 0 else rdK((u + 3) // 2)
        sl[4].append(rd[0]); sl[5].append(rd[1])
        if u % 2 == 0:
            sl[3].append("s_waitcnt lgkmcnt(0)")
        if u == 9:
            sl[2].append(f"s_add_u32 s{sRd}, s{sRd}, {SLOT}"); sl[3].append(f"s_cmp_eq_u32 s{sRd}, {KVB+3*SLOT}")
        if u == 10:
            sl[2].append(f"s_cselect_b32 s{sRd}, {KVB}, s{sRd}")
        if u == 13:
            sl[1].append(f"v_add_u32 v{vRd}, s{sRd}, v{vLin}")
            sl[2].append("s_waitcnt lgkmcnt(0)"); sl[3].append("s_barrier")
        if u == 15:
            sl[2].append(f"s_sub_u32 s{sC}, s{sC}, 1"); sl[3].append(f"s_cmp_lg_u32 s{sC}, 0")
        cuts = [0, 3, 6, 9, 12, 14, 16] if (u < 15 or not OPT.get("brs", 1)) else [0, 3, 7, 10, 14, 16, 16]
        for i in range(6):
            k(mf[i], sl[i], ex[cuts[i]:cuts[i + 1]])
    k("s_cbranch_scc1 L_k1_loop")
    if not (OPT.get('qcyc') or OPT.get('ocyc')):
        mid_stamp(k, 1)
    vO, aO0, aO1 = aG0, aG1, vKo
    PK = [KB[0], VB[1]]

    def check(q):
        o = [f"v_maximum3_f32 v{T0}, abs(v{O[q]}), abs(v{O[q]+1}), v{LS[q]}", f"v_maximum3_f32 v{T1}, abs(v{O[q]+2}), abs(v{O[q]+3}), abs(v{O[q]+4})"]
        for i in range(5, 15, 2):
            t = [T0, T1][(i // 2) & 1]
            o.append(f"v_maximum3_f32 v{t}, abs(v{O[q]+i}), abs(v{O[q]+i+1}), v{t}")
        o += [f"v_maximum3_f32 v{T0}, abs(v{O[q]+15}), v{T1}, v{T0}",
              f"v_cmp_nle_f32 vcc, {f32(2.0**-80)}, v{LS[q]}", f"s_mov_b64 s[70:71], vcc",
              f"v_cmp_nge_f32 vcc, {f32(2.0**100)}, v{T0}", f"s_or_b64 s[70:71], s[70:71], vcc",
              "s_branch L_k1_slow" if OPT["force_slow"] == q + 1 else None, "s_cbranch_scc1 L_k1_slow"]
        return o

    def out(q):
        o = [f"v_rcp_f32 v{LS[q]}, v{LS[q]}", "s_nop 0"]
        for m in range(2):
            d = PK[q] + 4 * m
            o += [f"v_pk_mul_f32 {vr(O[q]+8*m+i,2)}, {vr(O[q]+8*m+i,2)}, {vr(LS[q],2)} op_sel_hi:[1,0]" for i in range(0, 8, 2)]
            o += [f"v_cvt_pk_bf16_f32 v{d+i}, v{O[q]+8*m+2*i}, v{O[q]+8*m+2*i+1}" for i in range(4)]
            o.append(f"buffer_store_dwordx4 {vr(d,4)}, v{vO}, s[{SWS}:{SWS+3}], s{sOo} offen offset:{2048*q+512*m} sc1")
        return o
    k(pv(15), sm(15), "s_nop 9", check(0), out(0), check(1))
    k.label("L_k1_out")
    k(out(1))
    for q in range(2):
        for m in range(2):
            k(f"ds_write_b128 v{aO0}, {vr(PK[q]+4*m,4)} offset:{2048*q+512*m}")
    k("s_branch L_f_oproj")
    k(island(back="L_f_back2", jump=False))
    k.label("L_f_oproj")
    k("s_waitcnt vmcnt(4)")
    for i in range(2):
        for b in range(2):
            k(f"v_permlane16_swap_b32 v{RES[i][b]}, v{RES[i][b]+2}", f"v_permlane16_swap_b32 v{RES[i][b]+1}, v{RES[i][b]+3}")
    sig = lambda h: ["s_mov_b64 exec, 1", "s_waitcnt vmcnt(0)", f"buffer_atomic_add v{T0}, off, s[{SWS}:{SWS+3}], s{sFg} offset:{256*h} sc1", "s_mov_b64 exec, -1"]
    k(f"v_mov_b32 v{T0}, 1", f"s_cmp_ge_u32 s{sHG}, 4", "s_cbranch_scc1 L_f_sig0", sig(0))
    k.label("L_f_sig0")
    k(f"s_mov_b32 s{sRd}, 0", "s_waitcnt lgkmcnt(0)", "s_barrier")

    def oreads(fi):
        o = [f"ds_read_b128 {vr(F[fi][s]['X'][i],4)}, v{aT} offset:{s*4096+i*1024}" for s in range(2) for i in range(2)]
        for s in range(2):
            for t in range(4):
                for j in range(2):
                    o.append(f"ds_read_b64_tr_b16 {vr(F[fi][s]['W'][t]+2*j,2)}, v{aW[t]} offset:{s*8192+j*1024}")
        return o

    def omf(fi, s):
        return [m16(vr(acc[t][i ^ (t & 1)], 4), vr(F[fi][s]["W"][t], 4), vr(F[fi][s]["X"][i ^ (t & 1)], 4)) for t in range(4) for i in range(2)]
    oadv = [[f"s_add_u32 s{sRd}, s{sRd}, 16384", f"s_and_b32 s{sRd}, s{sRd}, 0x1ffff"], [f"s_bfe_u32 s{sRx}, s{sRd}, 0xf0001", f"v_add_u32 v{aW[0]}, s{sRd}, v{bW[0]}"],
            [f"v_add_u32 v{aW[t]}, s{sRd}, v{bW[t]}" for t in (1, 2)], [f"v_add_u32 v{aW[3]}, s{sRd}, v{bW[3]}", f"v_add_u32 v{aT}, s{sRx}, v{bT}"]]

    def ostep(f, adv_, extra=()):
        r = oreads(1 - f)
        sl = [[] for _ in range(16)]
        for i, x in enumerate(r[:12]):
            sl[(i * 8) // 12].append(x)
        for i, x in enumerate(r[12:]):
            sl[8 + i].append(x)
        if adv_:
            sl[1].append(f"s_add_u32 s{sRd}, s{sRd}, 16384"); sl[3].append(f"s_and_b32 s{sRd}, s{sRd}, 0x1ffff")
            sl[5].append(f"s_bfe_u32 s{sRx}, s{sRd}, 0xf0001"); sl[8].append(f"v_add_u32 v{aT}, s{sRx}, v{bT}")
            for t in range(4):
                sl[9 + 2 * t].append(f"v_add_u32 v{aW[t]}, s{sRd}, v{bW[t]}")
        for i, x in enumerate(extra):
            sl[10 + 2 * i].append(x)
        sl[7].append("s_waitcnt lgkmcnt(12)"); sl[15].append("s_waitcnt lgkmcnt(8)")
        for m, e in zip(omf(f, 0) + omf(f, 1), sl):
            k(m, e)
    if OPT.get("ocyc"):
        mid_stamp(k, 0)
    k(oreads(0), oadv)
    for i in range(2):
        for b in range(2):
            for jt in range(2):
                for hh in range(2):
                    a, r = acc[2 * b + jt][i] + 2 * hh, RES[i][b] + 2 * jt + hh
                    k(f"v_lshlrev_b32 v{a}, 16, v{r}", f"v_and_b32 v{a+1}, 0xffff0000, v{r}")
    k(f"s_cmp_lt_u32 s{sHG}, 4", "s_cbranch_scc1 L_f_sig1", sig(1))
    k.label("L_f_sig1")
    xstamp(k, 9)
    k(f"s_lshl_b32 s{sT}, s{sTB}, 1", f"s_add_u32 s{sT}, s{sT}, s{sTH}", f"s_lshl_b32 s{sT}, s{sT}, 12",
      f"s_lshl_b32 s{sT2}, s{sHG}, 1", f"s_add_u32 s{sT2}, s{sT2}, s{sCH}", f"s_lshl_b32 s{sT2}, s{sT2}, 8",
      f"s_add_u32 s{sT}, s{sT}, s{sT2}", f"s_add_u32 s{sFg}, s{sT}, {STP}", f"s_mov_b32 s{sN}, 7", "s_waitcnt lgkmcnt(0)")
    k.label("L_f_oloop")
    k("s_barrier")
    ostep(0, True)
    k("s_barrier")
    ostep(1, True, [f"s_sub_u32 s{sN}, s{sN}, 1", f"s_cmp_lg_u32 s{sN}, 0"])
    k("s_cbranch_scc1 L_f_oloop")
    k("s_barrier")
    ostep(0, False)
    k(omf(1, 0), "s_waitcnt lgkmcnt(0)", omf(1, 1), "s_nop 3")
    if OPT.get("ocyc"):
        mid_stamp(k, 1)
    SUM = [O[0], O[0] + 4]
    for b in range(2):
        for i in range(2):
            o = Q[b] + 4 * i
            for jt in range(2):
                a = acc[2 * b + jt][i]
                k(f"v_cvt_pk_bf16_f32 v{o+2*jt}, v{a}, v{a+1}", f"v_cvt_pk_bf16_f32 v{o+2*jt+1}, v{a+2}, v{a+3}")
        k("s_nop 0")
        for i in range(2):
            o = Q[b] + 4 * i
            k(f"v_permlane16_swap_b32 v{o}, v{o+2}", f"v_permlane16_swap_b32 v{o+1}, v{o+3}",
              f"buffer_store_dwordx4 {vr(o,4)}, v{vHo}, s[{SWS}:{SWS+3}], s{[sH0,sH1][b]} offen offset:{1024*i} sc1")
    for t in range(4):
        for hh in (0, 2):
            for i in range(2):
                a = vr(acc[t][i] + hh, 2)
                if t == 0 and hh == 0:
                    k(f"v_pk_mul_f32 {vr(SUM[i]+2,2)}, {a}, {a}")
                else:
                    src = vr(acc[0][i], 2) if (t == 0 and hh == 2) else vr(SUM[i], 2)
                    k(f"v_pk_add_f32 {vr(SUM[i],2)}, {src}, {a}", f"v_pk_fma_f32 {vr(SUM[i]+2,2)}, {a}, {a}, {vr(SUM[i]+2,2)}")
    for i in range(2):
        k(f"v_add_f32 v{SUM[i]}, v{SUM[i]}, v{SUM[i]+1}", f"v_add_f32 v{SUM[i]+1}, v{SUM[i]+2}, v{SUM[i]+3}")
    k(f"v_lshrrev_b32 v{T0}, 6, v{vHo}", f"v_permlane32_swap_b32 v{SUM[0]}, v{SUM[0]+1}", f"v_permlane32_swap_b32 v{SUM[1]}, v{SUM[1]+1}", "s_nop 0",
      f"v_add_f32 v{SUM[0]}, v{SUM[0]}, v{SUM[0]+1}", f"v_add_f32 v{SUM[1]}, v{SUM[1]}, v{SUM[1]+1}",
      f"v_and_b32 v{T0}, 12, v{T0}", f"v_lshl_add_u32 v{T0}, v{TOK}, 4, v{T0}",
      f"v_permlane16_swap_b32 v{SUM[0]}, v{SUM[1]}", "s_nop 0",
      f"v_add_f32 v{SUM[0]}, v{SUM[0]}, v{SUM[1]}",
      f"buffer_store_dword v{SUM[0]}, v{T0}, s[{SWS}:{SWS+3}], s{sFg} offen sc1")
    tail(k, 0, sW)
    k(island(back="L_f_back", jump=False))
    k.label("L_f_setup")
    if OPT.get("isl", 1):
        k(f"s_cmp_eq_u32 s{sW}, 0", f"s_cbranch_scc1 L_isl{ISL[0][0]}", f"s_cmp_eq_u32 s{sW}, 1", f"s_cbranch_scc1 L_isl{ISL[1][0]}")
    k.label("L_f_back")
    k("s_waitcnt lgkmcnt(0)", ws_shift(SWS), srd_tail(SWS, WS_SZ), srd_from(SKV, SWS, KVF, 262144))
    k(f"s_lshl_b32 s{sGW}, s2, 2", f"s_add_u32 s{sGW}, s{sGW}, s{sW}",
      f"s_lshl_b32 s{sWrJ}, s{sW}, 12", f"s_add_u32 s{sWrJ}, s{sWrJ}, {JB}")
    k(f"v_lshrrev_b32 v{T0}, 4, v{L}", f"v_lshlrev_b32 v{T0}, 10, v{T0}", f"v_bfe_u32 v{T1}, v{L}, 2, 2", f"v_lshl_add_u32 v{T0}, v{T1}, 7, v{T0}",
      f"v_bfe_u32 v{T1}, v{L}, 3, 1", f"v_lshl_add_u32 v{T0}, v{T1}, 6, v{T0}", f"v_add_u32 v{T0}, s{sWrJ}, v{T0}", f"v_and_b32 v{T1}, 3, v{L}",
      f"v_lshl_add_u32 v{bJ[0]}, v{T1}, 4, v{T0}", f"v_xor_b32 v{bJ[1]}, 64, v{bJ[0]}")
    strip, kb0, mat = 66, 67, 68
    k(f"s_lshr_b32 s{strip}, s{sGW}, 3", f"s_and_b32 s{kb0}, s{sGW}, 7", f"s_lshl_b32 s{kb0}, s{kb0}, 2",
      f"s_cmp_ge_u32 s{strip}, 112", "s_cbranch_scc1 L_k1_wo")
    if "jskip" in OPT:
        k(f"s_and_b32 s{sT}, s2, 1", f"s_cmp_eq_u32 s{sT}, {OPT['jskip']}", "s_cbranch_scc1 L_k1_wo")
    k(f"s_cmp_ge_u32 s{strip}, 56", f"s_cselect_b32 s{mat}, 1, 0",
      f"s_cselect_b32 s{SJ}, s26, s24", f"s_cselect_b32 s{SJ+1}, s27, s25",
      f"s_mul_i32 s{sT}, s{mat}, 56", f"s_sub_u32 s{strip}, s{strip}, s{sT}",
      f"s_mov_b32 s{SJ+2}, {1024*7168}", f"s_mov_b32 s{sStr}, 7168", f"s_mov_b32 s{sDstep}, {14*1024}",
      f"s_mov_b32 s{sBsz}, {3584*2048}",
      f"v_lshl_add_u32 v{aJ[0]}, v{T1}, 3, v{T0}")
    for i in range(1, 4):
        k(f"v_xor_b32 v{aJ[i]}, {32*i}, v{aJ[0]}")
    for i in range(4):
        T, fb, pos = 69, 70, 71
        k(f"s_lshl_b32 s{T}, s{strip}, 2", f"s_add_u32 s{T}, s{T}, {i}",
          f"s_mul_i32 s{fb}, s{T}, 9363", f"s_lshr_b32 s{fb}, s{fb}, 16",
          f"s_sub_u32 s{pos}, s{mat}, s{fb}", f"s_mul_i32 s{pos}, s{pos}, 7", f"s_add_u32 s{pos}, s{T}, s{pos}",
          f"s_lshl_b32 s{sT}, s{fb}, 5", f"s_add_u32 s{sT}, s{sT}, s{kb0}", f"s_mul_i32 s{sT}, s{sT}, 14",
          f"s_add_u32 s{sT}, s{sT}, s{pos}", f"s_lshl_b32 s{sT}, s{sT}, 10", f"s_add_u32 s{sD[i]}, s{sT}, {WGU}",
          f"s_lshl_b32 s{sT}, s{kb0}, 3", f"s_add_u32 s{sT}, s{sT}, s{fb}", f"s_mul_i32 s{sT}, s{sT}, 14",
          f"s_add_u32 s{sT}, s{sT}, s{pos}", f"s_lshl_b32 s{sT}, s{sT}, 6", f"s_add_u32 s{sCs[i]}, s{sT}, {CSP}")
    k("s_branch L_k1_jp")
    k.label("L_k1_wo")
    k(f"s_mov_b32 s{SJ}, s24", f"s_mov_b32 s{SJ+1}, s25", f"s_mov_b32 s{SJ+2}, 0", f"s_mov_b32 s{sStr}, 2048", f"s_mov_b32 s{sDstep}, 0", f"s_mov_b32 s{sBsz}, 0")
    for i in range(4):
        k(f"s_mov_b32 s{sD[i]}, {OOB}", f"s_mov_b32 s{sCs[i]}, {OOB}", f"v_mov_b32 v{aJ[i]}, v{bJ[0]}")
    k.label("L_k1_jp")
    k(f"s_mov_b32 s{SJ+3}, 0x00020000")
    k(f"v_lshrrev_b32 v{T0}, 3, v{L}", f"v_bfe_u32 v{T1}, v{L}, 4, 1", f"v_lshlrev_b32 v{T1}, 2, v{T1}",
      f"v_and_b32 v{T2}, 7, v{L}", f"v_xor_b32 v{T1}, v{T1}, v{T2}", f"v_lshlrev_b32 v{T1}, 4, v{T1}",
      f"v_mul_lo_u32 v{vJ}, v{T0}, s{sStr}", f"v_lshl_add_u32 v{vJB}, v{T0}, 11, v{T1}", f"v_add_u32 v{vJ}, v{vJ}, v{T1}",
      f"s_lshl_b32 s{sT}, s{kb0}, 5", f"s_mul_i32 s{sT}, s{sT}, s{sStr}", f"s_lshl_b32 s{sT2}, s{strip}, 7", f"s_add_u32 s{sT}, s{sT}, s{sT2}",
      f"v_add_u32 v{vJ}, s{sT}, v{vJ}",
      f"s_lshl_b32 s{sT}, s{sStr}, 3", f"s_sub_u32 s{sJa}, s{sT}, 1024", f"s_add_u32 s{sJb}, s{sT}, 3072", f"s_mov_b32 s{sJo}, 0")
    k(f"s_mul_i32 s{strip}, s{sGW}, 1171", f"s_lshr_b32 s{strip}, s{strip}, 16",
      f"s_mul_i32 s{sT}, s{strip}, 56", f"s_sub_u32 s{kb0}, s{sGW}, s{sT}", f"s_lshl_b32 s{kb0}, s{kb0}, 1",
      f"s_cmp_ge_u32 s{kb0}, 48", f"s_cselect_b32 s69, 48, 0", f"s_cselect_b32 s70, 8, 0", f"s_sub_u32 s69, s{kb0}, s69",
      f"s_and_b32 s71, s69, 7", f"s_add_u32 s70, s70, s71", f"s_lshr_b32 s69, s69, 3",
      f"s_sub_u32 s71, s{kb0}, 96", f"s_cmp_ge_u32 s{kb0}, 96", f"s_cselect_b32 s69, 6, s69", f"s_cselect_b32 s70, s71, s70",
      f"s_mul_i32 s70, s70, 14", f"s_add_u32 s{sT}, s70, s69", f"s_lshl_b32 s{sT}, s{sT}, 15",
      f"s_lshl_b32 s{sT2}, s{strip}, 7", f"s_add_u32 s{sT}, s{sT}, s{sT2}",
      f"v_add_u32 v{vJB}, s{sT}, v{vJB}",
      f"s_lshr_b32 s{sT}, s{strip}, 1", f"s_mul_i32 s{sT}, s{sT}, 112", f"s_add_u32 s{sT}, s{sT}, s{kb0}", f"s_lshl_b32 s{sT}, s{sT}, 1",
      f"s_and_b32 s{sT2}, s{strip}, 1", f"s_add_u32 s{sT}, s{sT}, s{sT2}", f"s_lshl_b32 s{sT}, s{sT}, 12",
      f"s_add_u32 s{sDB}, s{sT}, {WDF}", f"s_cmp_eq_u32 s{sBsz}, 0", f"s_cselect_b32 s{sDB}, {OOB}, s{sDB}")
    k(f"v_and_b32 v{T0}, 15, v{L}", f"v_cmp_eq_u32 vcc, 0, v{T0}", f"v_mov_b32 v{T1}, {OOB}", "s_nop 0",
      f"v_cndmask_b32 v{vCs}, v{T1}, v{L}, vcc")
    for i in range(4):
        k(f"v_mov_b32 v{ONES+i}, 0x3f803f80")
    k(f"v_lshlrev_b32 v{vPo}, 2, v{L}")
    if OPT.get("hprof"):
        k("v_writelane_b32 v200, s92, 0", "s_mov_b32 s86, 5")
    hstamp(k, 1)
    k("s_barrier")
    hstamp(k, 2)
    npre = OPT.get("npre", 2)
    for n in range(npre):
        q_x(n * STG); q_w(n * STG)
    hstamp(k, 3)
    k(f"s_waitcnt vmcnt({6*(npre-1)})", "s_barrier")
    hstamp(k, 4)
    for n in range(npre, 4):
        q_x(n * STG); q_w(n * STG)
    k("s_waitcnt vmcnt(12)", "s_barrier")
    k.label("L_f_ld2")
    if OPT.get("hprof"):
        k("s_mov_b32 m0, s86", "s_add_u32 s86, s86, 1")
    hstamp(k, "m0")
    q_stage()
    k(f"s_cmp_lg_u32 s{sN}, 0", f"s_waitcnt vmcnt({6*D})", "s_barrier", "s_cbranch_scc1 L_f_ld2")
    hstamp(k, 17)
    poll = f"global_load_dword v{PF4}, v{vPo}, s[{SDBG}:{SDBG+1}] sc1"
    k(f"s_lshl_b32 s{sKo}, s{sW}, 13", f"s_add_u32 s{sWr}, s{sKo}, {KVB}", f"s_mov_b32 s{sN}, {1<<20}")
    if OPT.get("kvrot", 0):
        k(f"s_bfe_u32 s{sT}, s2, {0x30003 if OPT.get('kvrot', 1) == 1 else 0x30000}", f"s_lshl_b32 s{sT}, s{sT}, 15", f"s_add_u32 s{sKo}, s{sKo}, s{sT}")
    k(f"s_cmp_eq_u32 s{sW}, 0", "s_cbranch_scc1 L_f_poll0", "s_waitcnt vmcnt(6)", "s_barrier", "s_waitcnt vmcnt(0)", "s_branch L_f_polled")
    k.label("L_f_poll0")
    k(poll, "s_waitcnt vmcnt(7)", "s_barrier")
    k.label("L_f_poll")
    k("s_waitcnt vmcnt(0)", f"v_cmp_ne_u32 vcc, 4, v{PF4}", f"s_sub_u32 s{sN}, s{sN}, 1", "s_cbranch_scc1 L_f_polled",
      "s_cbranch_vccz L_f_polled", "s_sleep 2", poll, "s_branch L_f_poll")
    k.label("L_f_polled")
    hstamp(k, 18)
    k("s_barrier")
    hstamp(k, 19)

    def kv_dma(c):
        o = []
        for hh in range(2):
            o += [f"s_add_u32 m0, s{sWr}, {((c+1)%3)*SLOT+4096*hh}", "s_nop 0"]
            for i in range(4):
                o.append(f"buffer_load_dwordx4 v{vLin}, s[{SKV}:{SKV+3}], s{sKo} offen offset:{1024*i} sc1 lds")
            o.append(f"s_add_u32 s{sKo}, s{sKo}, {4096 if hh == 0 else 32768-4096}")
        o.append(f"s_and_b32 s{sKo}, s{sKo}, 0x3ffff")
        return o
    k(kv_dma(0))
    hstamp(k, 20)
    k([kv_dma(1), "s_waitcnt vmcnt(8)"] if OPT.get("kv1", 0) else "s_waitcnt vmcnt(0)")
    hstamp(k, 21)
    k("s_barrier")
    hstamp(k, 22)
    vm = []

    def wait_for(*tag):
        n = len(vm) - 1 - max(i for i, t in enumerate(vm) if t in tag)
        return f"s_waitcnt vmcnt({n})"
    vm += ["kv1"] * 8
    k(f"s_mov_b32 s{SWQ}, s20", f"s_mov_b32 s{SWQ+1}, s21",
      f"s_lshl_b32 s{sBW}, s{sTH}, 1", f"s_add_u32 s{sBW}, s{sBW}, s{sCH}", f"s_lshl_b32 s{sBW}, s{sBW}, 10",
      f"s_lshl_b32 s{sRd}, s{sW}, 11", f"s_lshl_b32 s{sOo}, s{sTB}, 17", f"s_add_u32 s{sOo}, s{sOo}, s{sRd}", f"s_add_u32 s{sOo}, s{sOo}, {OF}")
    if not OPT.get("kv1", 0):
        k(kv_dma(1))

    def kstage(n, sh):
        if n < 2:
            return [f"s_lshl_b32 s{sT}, s{sHG}, {sh+1}", f"s_add_u32 s{sT}, s{sT}, {n<<sh}"]
        i = n >> 1
        if i == 4:
            return [f"s_xor_b32 s{sT}, s{sHG}, 4", f"s_lshl_b32 s{sT}, s{sT}, {sh+1}", f"s_add_u32 s{sT}, s{sT}, {(n&1)<<sh}"]
        return [f"s_add_u32 s{sT}, s{sHG}, {i}", f"s_and_b32 s{sT}, s{sT}, 3", f"s_lshl_b32 s{sT}, s{sT}, {sh+1}",
                f"s_add_u32 s{sT}, s{sT}, {((n&1) + (8 if i > 4 else 0))<<sh}"]

    def o_w(n, pieces=range(4)):
        k(kstage(n, 17))
        for i in pieces:
            k(f"s_add_u32 m0, s{sBW}, {(n%8)*16384+4096*i}", "s_nop 0", f"buffer_load_dwordx4 v{vW[i]}, s[{SWQ}:{SWQ+3}], s{sT} offen lds")
        vm.extend([f"w{n}"] * len(pieces))

    def o_x(n):
        k(kstage(n, 13), f"s_add_u32 m0, s{sRd}, {XR+(n%4)*8192}", f"s_add_u32 s{sT}, s{sT}, s{sOo}")
        for i in range(2):
            k(f"buffer_load_dwordx4 v{vLin}, s[{SWS}:{SWS+3}], s{sT} offen offset:{1024*i} sc1 lds")
        vm.extend([f"x{n}"] * 2)
    for c in range(8):
        if c + 2 < 8:
            k(kv_dma(c + 2)); vm += [f"kv{c+2}"] * 8
        if c < (3 if OPT.get("s4", 0) else 1):
            k(f"s_lshl_b32 s{sT}, s{sGW}, 12", f"s_add_u32 s{sT}, s{sT}, {XB4[c+1]}", f"v_mov_b64 {vr(PF4,2)}, -1", f"v_mov_b64 {vr(PF4+2,2)}, -1")
            for i in range(4):
                k(f"buffer_store_dwordx4 {vr(PF4,4)}, v{vLin}, s[{SWS}:{SWS+3}], s{sT} offen offset:{1024*i} sc1")
            vm += ["st"] * 4
        if c == 3:
            k(f"s_lshl_b32 s{sT}, s{sGW}, 10", f"s_add_u32 s{sT}, s{sT}, {FL2}", f"s_cmp_lt_u32 s{sGW}, 8", f"s_cselect_b32 s{sT}, s{sT}, {OOB}",
              f"v_mov_b64 {vr(PF4,2)}, 0", f"v_mov_b64 {vr(PF4+2,2)}, 0",
              f"buffer_store_dwordx4 {vr(PF4,4)}, v{vLin}, s[{SWS}:{SWS+3}], s{sT} offen sc1")
            vm += ["st"]
        j = c - 1
        proc = 0 <= j < 6 and not OPT.get("nojob")
        if proc:
            k(wait_for(f"j{j}"))
            for f in range(4):
                for jj in range(2):
                    if j < 4:
                        k(f"ds_read_b64_tr_b16 {vr(JF[f]+2*jj,2)}, v{aJ[f]} offset:{jj*512}")
                    else:
                        k(f"ds_read_b64_tr_b16 {vr(JF[f]+2*jj,2)}, v{bJ[f>>1]} offset:{jj*512+(f&1)*8}")
            k("s_waitcnt lgkmcnt(0)")
        if c < 6 and not OPT.get("nojob"):
            if c == 4:
                k(f"s_mov_b32 s{SJ}, s28", f"s_mov_b32 s{SJ+1}, s29", f"s_mov_b32 s{SJ+2}, s{sBsz}",
                  f"s_mov_b32 s{sJo}, 0")
            k(f"s_mov_b32 m0, s{sWrJ}", "s_nop 0")
            for i in range(4):
                k(f"buffer_load_dwordx4 v{vJ if c < 4 else vJB}, s[{SJ}:{SJ+3}], s{sJo} offen offset:{1024*i}{' nt' if OPT.get('jnt', 0) else ''} lds",
                  f"s_add_u32 s{sJo}, s{sJo}, " + (f"s{sJa if i < 3 else sJb}" if c < 4 else str([8, 104, 8, 104][i] * 2048 + (-1024 if i < 3 else 3072))))
            vm += [f"j{c}"] * 4
        if proc:
            for f in range(4):
                if j < 4:
                    k(f"buffer_store_dwordx4 {vr(JF[f],4)}, v{vLin}, s[{SWS}:{SWS+3}], s{sD[f]} offen sc1",
                      f"s_add_u32 s{sD[f]}, s{sD[f]}, s{sDstep}",
                      m16(vr(CS[f], 4), vr(JF[f], 4), vr(ONES, 4), "0" if j == 0 else None))
                else:
                    k(f"buffer_store_dwordx4 {vr(JF[f],4)}, v{vLin}, s[{SWS}:{SWS+3}], s{sDB} offen offset:{1024*f} sc1")
            vm += ["st"] * 4
            if j == 4:
                k(f"s_add_u32 s{sDB}, s{sDB}, 8192")
                for f in range(4):
                    k(f"buffer_store_dwordx4 {vr(CS[f],4)}, v{vCs}, s[{SWS}:{SWS+3}], s{sCs[f]} offen sc1")
                vm += ["st"] * 4
        for n in {5: [0, 2, 3], 6: [4, 5], 7: [1, 6, 7]}.get(c, []):
            o_w(n)
        if c == 1 and OPT.get("isl", 1):
            k(f"s_branch L_isl{[n for n, b in ISL if b == 'L_f_back2'][0]}")
            k.label("L_f_back2")
        if c in (1, 7) and OPT.get("skip", 1024):
            k(f"s_branch L_f_pg{c}", ".p2align 12", f".fill {OPT.get('skip', 1024)//4}, 4, 0xbf800000", f"L_f_pg{c}:")
        if c >= 2 and OPT.get("ser", 0) and OPT.get("isl", 1):
            k(f"s_cmp_lg_u32 s{sW}, {c&3}", f"s_cbranch_scc1 L_f_hb{c-2}", f"@SER{c-2}@")
            k.label(f"L_f_hb{c-2}")
        if c == (5 if not OPT.get("ser", 0) else 0):
            k(f"s_lshr_b32 s{sT}, s2, 3", f"s_lshl_b32 s{sT}, s{sT}, 11", f"v_and_b32 v{T0}, 255, v0", f"v_lshlrev_b32 v{T0}, 3, v{T0}",
              f"v_add_u32 v{T0}, s{sT}, v{T0}")
            k(f"s_getpc_b64 s[22:23]")
            k.label("L_f_pc2")
            k("s_add_u32 s22, s22, L_code_rest-L_f_pc2", "s_addc_u32 s23, s23, 0",
              f"v_min_u32 v{T0}, L_code_end-L_code_rest-4, v{T0}", f"global_load_dword v{T1}, v{T0}, s[22:23]")
            vm.append("pf")
        if c == 6:
            k(f"s_and_b32 s{sT}, s{sTB}, 7", f"s_add_u32 s{sT}, s{sT}, 8", f"s_lshr_b32 s{sT2}, s{sT}, 1", f"s_cmp_eq_u32 s{sHG}, s{sT2}",
              f"s_cselect_b32 s{sT2}, 8, 0", f"s_sub_u32 s{sT}, s{sT}, s{sT2}", f"s_lshl_b32 s{sT}, s{sT}, 17")
            for i in range(4):
                k(f"buffer_load_dwordx4 {vr(PF4,4)}, v{vW[i]}, s[{SWQ}:{SWQ+3}], s{sT} offen")
            vm.extend(["pf"] * 4)
        if c + 1 < 8:
            k(wait_for(f"kv{c+1}"))
        k("s_barrier")
    k(f"s_lshl_b32 s{sKo}, s{sTB}, 9", f"s_add_u32 s{sKo}, s{sKo}, {FLG}", f"s_mov_b32 s{sN}, {1<<20}", "s_waitcnt vmcnt(0)")
    hstamp(k, 23)
    look = lambda h: f"buffer_load_dword v{PF4}, off, s[{SWS}:{SWS+3}], s{sKo} offset:{256*h} sc1"
    ask = lambda h, r=0: ["s_mov_b64 exec, 1", f"v_mov_b32 v{PF4+r}, 0", f"buffer_atomic_add v{PF4+r}, off, s[{SWS}:{SWS+3}], s{sKo} offset:{256*h} sc0 sc1", "s_mov_b64 exec, -1"]
    NP = OPT.get("np", 3)

    def gate(h, wait, tag=""):
        op = f"L_f_open{h}{tag}"
        k(wait, f"v_readfirstlane_b32 s{sT}, v{PF4}", "s_nop 0", f"s_cmp_ge_u32 s{sT}, s{sStr}", f"s_cbranch_scc1 {op}")
        for r in range(NP - 1):
            k(ask(h, r), f"s_sleep {OPT.get('pgap', 3)}")
        k.label(f"L_f_gate{h}{tag}")
        for r in range(NP):
            k(ask(h, (r - 1) % NP), f"s_waitcnt vmcnt({NP-1})", f"v_readfirstlane_b32 s{sT}, v{PF4+r}", "s_nop 0",
              f"s_cmp_ge_u32 s{sT}, s{sStr}", f"s_cbranch_scc1 {op}")
        k(f"s_sub_u32 s{sN}, s{sN}, 1", f"s_cbranch_scc0 L_f_gate{h}{tag}")
        k.label(op)
    k(f"v_mov_b32 v{PF4}, 0", f"s_cmp_lt_u32 s{sHG}, 4", "s_cbranch_scc1 L_f_late", f"s_sleep {OPT['odl']}" if OPT.get('odl') else None, ask(0), "s_waitcnt vmcnt(0)",
      f"v_readfirstlane_b32 s{sT}, v{PF4}", "s_nop 0", f"s_cmp_lt_u32 s{sT}, 16", "s_cbranch_scc1 L_f_late")
    o_x(2); o_x(3)
    del vm[-4:]
    hstamp(k, 24)
    k("s_barrier")
    hstamp(k, 25)
    k("s_branch L_f_both")
    k.label("L_f_late")
    k(f"s_cmp_eq_u32 s{sW}, 0", f"s_cselect_b32 s{sStr}, 16, 0")
    gate(0, None)
    hstamp(k, 24)
    k("s_barrier")
    hstamp(k, 25)
    o_x(2); o_x(3)
    k.label("L_f_both")
    k(f"s_cmp_eq_u32 s{sW}, 0", f"s_cselect_b32 s{sKo}, s{sKo}, {OOB}", f"s_cselect_b32 s{sStr}, 16, 0",
      f"s_cmp_lt_u32 s{sHG}, 4", f"s_cselect_b32 s{sJa}, {OOB}, s{sKo}", f"s_cselect_b32 s{sJb}, 0, s{sStr}",
      f"s_cselect_b32 s{sKo}, s{sKo}, {OOB}", f"s_cselect_b32 s{sStr}, s{sStr}, 0")
    k("s_barrier")
    G2 = OPT.get("g2", 3)
    for n in range(1, 15):
        if n + 3 < 16:
            o_x(n + 3)
        if n in (G2, G2 + 2):
            k(look(1) if OPT.get("lk", 1) else ask(1)); vm.append("ask")
        cum = [[0, 0, 3, 5, 8, 10, 13, 15, 18, 20, 23, 25, 28, 32, 32], [0, 0, 3, 6, 9, 12, 15, 18, 21, 24, 27, 30, 32, 32, 32]][OPT.get("wsch", 1)]
        for m in range(8, 16):
            pcs = [q for q in range(4) if cum[n - 1] <= 4 * (m - 8) + q < cum[n]]
            if pcs:
                assert m - 6 <= n <= m - 2
                o_w(m, pcs)
        if n == 4:
            gate(1, wait_for("ask"))
            k(f"s_mov_b32 s{sKo}, s{sJa}", f"s_mov_b32 s{sStr}, s{sJb}")
        if n == 6:
            gate(1, wait_for("ask"), "b")
        k(wait_for(f"x{n+1}", f"w{n+1}"), "s_barrier")
        if n in (1, 4, 6, 9, 14):
            hstamp(k, 26 + (1, 4, 6, 9, 14).index(n))
    if OPT.get("hprof"):
        k(f"s_lshl_b32 s{sT}, s{sGW}, 7", f"s_add_u32 s{sT}, s{sT}, {STAMP+2*MB}", f"v_lshlrev_b32 v{T0}, 2, v{L}", "s_mov_b64 exec, 0xffffffff",
          f"buffer_store_dword v200, v{T0}, s[{SWS}:{SWS+3}], s{sT} offen")
    hop(k, sW)
    k.label("L_k1_slow")
    k("s_waitcnt vmcnt(0) lgkmcnt(0)", "s_nop 15")
    C = [S[2], S[3]]
    ldK = [f"buffer_load_dwordx4 {vr(KB[0]+4*m,4)}, v{vLin}, s[{SKV}:{SKV+3}], s{sKo} offen offset:{1024*m} sc1" for m in range(2)]
    ldV = [f"buffer_load_dwordx4 {vr(VB[0]+4*m,4)}, v{vLin}, s[{SKV}:{SKV+3}], s{sKo} offen offset:{2048+1024*m} sc1" for m in range(2)]
    k(f"v_mov_b32 v{T0}, 0xff800000", f"v_mov_b32 v{T1}, 0xff800000", f"s_mov_b32 s{sKo}, 0")
    k.label("L_k1_s1")
    k(ldK, "s_waitcnt vmcnt(0)", qk(0), qk(1), "s_nop 15")
    for q in range(2):
        for i in range(0, 16, 2):
            k(f"v_max3_f32 v{[T0,T1][q]}, v{S[q]+i}, v{S[q]+i+1}, v{[T0,T1][q]}")
    k(f"s_add_u32 s{sKo}, s{sKo}, 4096", f"s_cmp_lt_u32 s{sKo}, 262144", "s_cbranch_scc1 L_k1_s1")
    for q in range(2):
        t = [T0, T1][q]
        k(f"v_mov_b32 v{T2}, v{t}", "s_nop 1", f"v_permlane32_swap_b32 v{t}, v{T2}", "s_nop 1", f"v_max_f32 v{t}, v{t}, v{T2}")
        for i in range(16):
            k(f"v_sub_f32 v{C[q]+i}, 0, v{t}", f"v_mov_b32 v{O[q]+i}, 0")
        for i in range(4):
            k(f"v_mov_b32 v{LS[q]+i}, 0")
    k(f"s_mov_b32 s{sKo}, 0")
    k.label("L_k1_s2")
    k(ldK, ldV, "s_waitcnt vmcnt(0)", qk(0, vr(C[0], 16)), qk(1, vr(C[1], 16)), "s_nop 15")
    for q in range(2):
        for i in range(16):
            k(f"v_exp_f32 v{S[q]+i}, v{S[q]+i}")
    k("s_nop 1", pv(0), sm(0), pv(1), sm(1))
    k(f"s_add_u32 s{sKo}, s{sKo}, 4096", f"s_cmp_lt_u32 s{sKo}, 262144", "s_cbranch_scc1 L_k1_s2")
    k("s_nop 15", "s_nop 7", out(0), "s_branch L_k1_out")
    return k


def k_gemm(name, kidx, K, tok_region, w_region, is_down):
    D = OPT.get("gd", 4)
    STG, NS = 24576, D + 2
    N = K // 64
    k = Kern(name, 256, 512, STG * NS)
    SWS, ST_, SW_, SR, SO = 4, 8, 12, 16, 20
    sW, sTB, sNB, sN, sT, sT2, sRd, sWr, sTo, sWo, sTH, sCH, sRes, sDW = range(28, 42)
    v = Alloc(1)
    L, G, TOK, T0, T1, vLin, bT, bW, aT, aW, vRow = [v() for _ in range(11)]
    F = [[dict(X=[v(4, 4) for _ in range(2)], W=[v(4, 4) for _ in range(4)]) for s in range(2)] for _ in range(2)]
    acc = [[v(4, 4) for i in range(2)] for t in range(4)]
    RES = [[v(4, 4) for b in range(2)] for i in range(2)]
    k.vgpr = k.acc = (v.n + 7) // 8 * 8
    head(k)
    k(f"s_load_dwordx2 s[{SWS}:{SWS+1}], s[0:1], {A_WS}",
      f"s_load_dwordx2 s[{SO}:{SO+1}], s[0:1], {A_OUT if is_down else A_X}")
    k(f"v_lshrrev_b32 v{T1}, 6, v0", f"v_and_b32 v{L}, 63, v0", f"v_readfirstlane_b32 s{sW}, v{T1}", f"v_lshlrev_b32 v{vLin}, 4, v{L}")
    ids_8x4(k, sNB, sTB, sT)
    k(f"s_cmp_lt_u32 s{sW}, 4", f"s_cbranch_scc1 L_{name}_comp")
    k(f"s_and_b32 s{sW}, s{sW}, 3",
      f"s_lshl_b32 s{sTo}, s{sW}, 11", f"s_lshl_b32 s{sWo}, s{sW}, 12", f"s_mov_b32 s{sWr}, s{sTo}",
      f"s_add_u32 s{sDW}, s{sTo}, 8192")
    rot = K == 1024 and OPT.get("rot2", 0)
    if rot:
        k(f"s_lshl_b32 s{sT}, s{sNB}, 1", f"s_add_u32 s{sT}, s{sT}, s{sTB}", f"s_and_b32 s{sT}, s{sT}, 7",
          f"s_lshl_b32 s{sT2}, s{sT}, 14", f"s_add_u32 s{sTo}, s{sTo}, s{sT2}", f"s_lshl_b32 s{sT2}, s{sT}, 15", f"s_add_u32 s{sWo}, s{sWo}, s{sT2}")
    k(f"s_mul_i32 s{sT}, s{sTB}, {K*128}", f"s_add_u32 s{sT}, s{sT}, {tok_region}",
      f"s_mul_i32 s{sT2}, s{sNB}, {K*256}", f"s_add_u32 s{sT2}, s{sT2}, {w_region}")
    k("s_waitcnt lgkmcnt(0)", ws_shift(SWS))
    k(srd_from(ST_, SWS, f"s{sT}", K * 128), srd_from(SW_, SWS, f"s{sT2}", K * 256))

    def dma_stage():
        o = [f"s_mov_b32 m0, s{sWr}", "s_nop 0"]
        for i in range(2):
            o.append(f"buffer_load_dwordx4 v{vLin}, s[{ST_}:{ST_+3}], s{sTo} offen offset:{1024*i} lds")
        o += [f"s_add_u32 m0, s{sWr}, s{sDW}", f"s_add_u32 s{sTo}, s{sTo}, 8192"]
        for i in range(4):
            o.append(f"buffer_load_dwordx4 v{vLin}, s[{SW_}:{SW_+3}], s{sWo} offen offset:{1024*i} lds")
        o += [f"s_add_u32 s{sWo}, s{sWo}, 16384", f"s_add_u32 s{sWr}, s{sWr}, {STG}", f"s_cmp_ge_u32 s{sWr}, {STG*NS}",
              f"s_cselect_b32 s{sT}, {STG*NS}, 0", f"s_sub_u32 s{sWr}, s{sWr}, s{sT}"]
        if rot:
            o += [f"s_and_b32 s{sTo}, s{sTo}, {K*128-1}", f"s_and_b32 s{sWo}, s{sWo}, {K*256-1}"]
        return o
    k(f"s_mov_b32 s{sN}, {N}")
    k.label(f"L_{name}_ld")
    k(dma_stage())
    k(f"s_sub_u32 s{sN}, s{sN}, 1", f"s_cmp_lg_u32 s{sN}, 0")
    k(f"s_waitcnt vmcnt({6*D})", "s_barrier", f"s_cbranch_scc1 L_{name}_ld")
    for d in range(D - 1, -1, -1):
        k(f"s_waitcnt vmcnt({6*d})", "s_barrier")
    if is_down:
        k("s_endpgm")
    else:
        hop(k, sW)
    k.label(f"L_{name}_comp")
    k(f"s_and_b32 s{sTH}, s{sW}, 1", f"s_lshr_b32 s{sCH}, s{sW}, 1")
    k(f"v_lshrrev_b32 v{G}, 4, v{L}", f"v_and_b32 v{TOK}, 15, v{L}",
      f"v_lshlrev_b32 v{T0}, 11, v{TOK}", f"v_lshl_add_u32 v{T0}, v{G}, 4, v{T0}",
      f"s_lshl_b32 s{sN}, s{sTB}, 1", f"s_add_u32 s{sN}, s{sN}, s{sTH}", f"s_lshl_b32 s{sN}, s{sN}, 16",
      f"s_lshl_b32 s{sRes}, s{sNB}, 1", f"s_add_u32 s{sRes}, s{sRes}, s{sCH}", f"s_lshl_b32 s{sRd}, s{sRes}, 7",
      f"s_add_u32 s{sN}, s{sN}, s{sRd}", f"v_add_u32 v{vRow}, s{sN}, v{T0}")
    k(f"s_lshl_b32 s{sRes}, s{sRes}, 13", f"s_lshl_b32 s{sN}, s{sTB}, 17", f"s_add_u32 s{sRes}, s{sRes}, s{sN}",
      f"s_lshl_b32 s{sN}, s{sTH}, 11", f"s_add_u32 s{sRes}, s{sRes}, s{sN}", f"s_add_u32 s{sRes}, s{sRes}, {HF}")
    k(f"s_lshl_b32 s{sT}, s{sTH}, 11", f"v_add_u32 v{bT}, s{sT}, v{vLin}",
      f"s_lshl_b32 s{sT}, s{sCH}, 12", f"s_add_u32 s{sT}, s{sT}, 8192", f"v_add_u32 v{bW}, s{sT}, v{vLin}",
      f"v_mov_b32 v{aT}, v{bT}", f"v_mov_b32 v{aW}, v{bW}")
    k("s_waitcnt lgkmcnt(0)", ws_shift(SWS))
    k(srd_tail(SWS, WS_SZ), srd_tail(SO, 4 * MB))
    for _ in range(NS - 2):
        k("s_barrier")
    k(f"s_add_u32 s{sT2}, s{sRes}, 4096", f"s_mov_b32 s{sN}, 32768")
    for i in range(2):
        for b in range(2):
            if is_down:
                k(f"buffer_load_dwordx4 {vr(RES[i][b],4)}, v{vLin}, s[{SWS}:{SWS+3}], s{[sRes,sT2][b]} offen offset:{1024*i}")
            else:
                k(f"buffer_load_dwordx4 {vr(RES[i][b],4)}, v{vRow}, s[{SO}:{SO+3}], {['0', f's{sN}'][i]} offen offset:{64*b}{' nt' if OPT.get('jnt', 0) else ''}")
    for t in range(4):
        for i in range(2):
            for r in range(4):
                k(f"v_mov_b32 v{acc[t][i]+r}, 0")

    def reads(f):
        o = []
        for s in range(2):
            o += [f"ds_read_b128 {vr(F[f][s]['X'][i],4)}, v{aT} offset:{s*4096+i*1024}" for i in range(2)]
            o += [f"ds_read_b128 {vr(F[f][s]['W'][t],4)}, v{aW} offset:{s*8192+t*1024}" for t in range(4)]
        return o

    def mfmas(f):
        return [m16(vr(acc[t][i ^ (t & 1)], 4), vr(F[f][s]["W"][t], 4), vr(F[f][s]["X"][i ^ (t & 1)], 4))
                for t in range(4) for i in range(2) for s in range(2)]
    adv = [[f"s_add_u32 s{sRd}, s{sRd}, {STG}", f"s_cmp_eq_u32 s{sRd}, {STG*NS}"], [f"s_cselect_b32 s{sRd}, 0, s{sRd}"],
           [f"v_add_u32 v{aT}, s{sRd}, v{bT}", f"v_add_u32 v{aW}, s{sRd}, v{bW}"]]
    k(f"s_mov_b32 s{sRd}, 0", f"s_mov_b32 s{sN}, {N//2-1}")
    k("s_barrier")
    mid_stamp(k, 0)
    k(reads(0), adv, "s_waitcnt lgkmcnt(0)")
    k(".p2align 6")
    k.label(f"L_{name}_loop")
    for f in range(2):
        k("s_barrier")
        m = weave(mfmas(f), reads(1 - f), 0, 9)
        tl = adv + ([[f"s_sub_u32 s{sN}, s{sN}, 1", f"s_cmp_lg_u32 s{sN}, 0"]] if f == 1 else [])
        k(weave(m, tl, len(m) - 6, len(m) - 1))
        k("s_waitcnt lgkmcnt(0)")
    k(f"s_cbranch_scc1 L_{name}_loop")
    k("s_barrier")
    k(weave(mfmas(0), reads(1), 0, 9), "s_waitcnt lgkmcnt(0)", mfmas(1))
    mid_stamp(k, 1)
    k("s_waitcnt vmcnt(0)", f"s_mov_b32 s{sN}, 32768", "s_nop 5")
    SUM = F[0][0]["X"]
    U = F[0][0]["W"][0]
    for i in range(2):
        if not is_down:
            k(f"v_mov_b32 v{SUM[i]}, 0", f"v_mov_b32 v{SUM[i]+1}, 0")
        for b in range(2):
            o = F[0][1]["W"][2 * i + b]
            for jt in range(2):
                a = acc[2 * b + jt][i]
                for h in range(2):
                    r = RES[i][b] + 2 * jt + h
                    k(f"v_lshlrev_b32 v{U}, 16, v{r}", f"v_and_b32 v{U+1}, 0xffff0000, v{r}",
                      f"v_add_f32 v{a+2*h}, v{a+2*h}, v{U}", f"v_add_f32 v{a+2*h+1}, v{a+2*h+1}, v{U+1}",
                      f"v_cvt_pk_bf16_f32 v{o+2*jt+h}, v{a+2*h}, v{a+2*h+1}")
            if is_down:
                k(f"buffer_store_dwordx4 {vr(o,4)}, v{vRow}, s[{SO}:{SO+3}], {['0', f's{sN}'][i]} offen offset:{64*b} sc1")
            else:
                k(f"buffer_store_dwordx4 {vr(o,4)}, v{vLin}, s[{SWS}:{SWS+3}], s{[sRes,sT2][b]} offen offset:{1024*i} sc1")
    if not is_down:
        for t in range(4):
            for r in range(4):
                for i in range(2):
                    a = acc[t][i] + r
                    k(f"v_add_f32 v{SUM[i]}, v{SUM[i]}, v{a}", f"v_fmac_f32 v{SUM[i]+1}, v{a}, v{a}")
        k("s_nop 1", f"v_permlane32_swap_b32 v{SUM[0]}, v{SUM[0]+1}", f"v_permlane32_swap_b32 v{SUM[1]}, v{SUM[1]+1}", "s_nop 0",
          f"v_add_f32 v{SUM[0]}, v{SUM[0]}, v{SUM[0]+1}", f"v_add_f32 v{SUM[1]}, v{SUM[1]}, v{SUM[1]+1}",
          f"v_lshlrev_b32 v{T0}, 2, v{L}", "s_nop 0",
          f"v_permlane16_swap_b32 v{SUM[0]}, v{SUM[1]}",
          f"s_lshl_b32 s{sT}, s{sTB}, 1", f"s_add_u32 s{sT}, s{sT}, s{sTH}", f"s_lshl_b32 s{sT}, s{sT}, 12",
          f"v_add_f32 v{SUM[0]}, v{SUM[0]}, v{SUM[1]}",
          f"s_lshl_b32 s{sT2}, s{sNB}, 1", f"s_add_u32 s{sT2}, s{sT2}, s{sCH}", f"s_lshl_b32 s{sT2}, s{sT2}, 8",
          f"s_add_u32 s{sT}, s{sT}, s{sT2}", f"s_add_u32 s{sT}, s{sT}, {STP}",
          f"buffer_store_dword v{SUM[0]}, v{T0}, s[{SWS}:{SWS+3}], s{sT} offen sc1")
    tail(k, kidx, sW)
    return k


def k4_down(kidx):
    name, K = "down_kernel", 3584
    D = OPT.get("dd", 2)
    N1 = OPT.get("n1", 25)
    N2 = 56 - 2 * N1
    STG, NS = 32768, D + 2
    k = Kern(name, 256, 512, STG * NS)
    SWS, ST_, SW_, SO = 4, 8, 12, 20
    sW, sTB, sNB, sN, sT, sT2, sRd, sWr, sTo, sWo, sTH, sCH, sRes, sDW, sKH, sX0, sX1 = range(28, 45)
    v = Alloc(1)
    L, G, TOK, T0, T1, vLin, bT, bW, aT, aW, vRow = [v() for _ in range(11)]
    F = [[dict(X=[v(4, 4) for _ in range(4)], W=[v(4, 4) for _ in range(4)]) for s in range(2)] for _ in range(2)]
    acc = [[v(4, 4) for i in range(4)] for t in range(4)]
    RES = [[v(4, 4) for b in range(2)] for i in range(2)]
    RCV = [[acc[2 * b][2 + i] for b in range(2)] for i in range(2)]
    k.vgpr = k.acc = (v.n + 7) // 8 * 8
    head(k, True)
    k(f"s_load_dwordx2 s[{SWS}:{SWS+1}], s[0:1], {A_WS}", f"s_load_dwordx2 s[{SO}:{SO+1}], s[0:1], {A_OUT}")
    k(f"v_lshrrev_b32 v{T1}, 6, v0", f"v_and_b32 v{L}, 63, v0", f"v_readfirstlane_b32 s{sW}, v{T1}", f"v_lshlrev_b32 v{vLin}, 4, v{L}")
    ids_8x4(k, sNB, sTB, sT)
    if OPT.get("dmap", 1):
        k(f"s_and_b32 s{sT}, s{sTB}, 7", f"s_lshl_b32 s{sT}, s{sT}, 1", f"s_bfe_u32 s{sT2}, s{sTB}, 0x10003",
          f"s_and_b32 s{sTB}, s{sTB}, 16", f"s_add_u32 s{sTB}, s{sTB}, s{sT}", f"s_add_u32 s{sTB}, s{sTB}, s{sT2}")
    k(f"s_cmp_lt_u32 s{sW}, 4", f"s_cbranch_scc1 L_{name}_comp")
    vOwn, vPar = bT, bW
    k(f"s_and_b32 s{sW}, s{sW}, 3", f"s_and_b32 s{sKH}, s{sTB}, 1",
      f"s_lshl_b32 s{sWr}, s{sW}, 11", f"s_add_u32 s{sDW}, s{sWr}, 8192",
      f"s_mul_i32 s{sTo}, s{sKH}, {N1*8192}", f"s_add_u32 s{sTo}, s{sTo}, s{sWr}", f"s_lshl_b32 s{sWo}, s{sTo}, 1",
      f"s_mul_i32 s{sT}, s{sKH}, {K*128}", f"v_add_u32 v{vOwn}, s{sT}, v{vLin}", f"s_sub_u32 s{sT}, {K*128}, s{sT}", f"v_add_u32 v{vPar}, s{sT}, v{vLin}",
      f"s_lshr_b32 s{sT}, s{sTB}, 1", f"s_mul_i32 s{sT}, s{sT}, {K*256}", f"s_add_u32 s{sT}, s{sT}, {AF}",
      f"s_mul_i32 s{sT2}, s{sNB}, {K*256}", f"s_add_u32 s{sT2}, s{sT2}, {WDF}")
    k("s_waitcnt lgkmcnt(0)", ws_shift(SWS))
    k(srd_from(ST_, SWS, f"s{sT}", K * 256), srd_from(SW_, SWS, f"s{sT2}", K * 256))

    def dma_stage(full):
        o = [f"s_mov_b32 m0, s{sWr}", "s_nop 0"]
        o += [f"buffer_load_dwordx4 v{vOwn}, s[{ST_}:{ST_+3}], s{sTo} offen offset:{1024*i} lds" for i in range(2)]
        if full:
            o += [f"s_add_u32 m0, s{sWr}, 24576", "s_nop 0"]
            o += [f"buffer_load_dwordx4 v{vPar}, s[{ST_}:{ST_+3}], s{sTo} offen offset:{1024*i} lds" for i in range(2)]
        o += [f"s_add_u32 m0, s{sWr}, s{sDW}", f"s_add_u32 s{sTo}, s{sTo}, 8192"]
        o += [f"buffer_load_dwordx4 v{vLin}, s[{SW_}:{SW_+3}], s{sWo} offen offset:{1024*i} lds" for i in range(4)]
        o += [f"s_add_u32 s{sWo}, s{sWo}, 16384", f"s_add_u32 s{sWr}, s{sWr}, {STG}", f"s_cmp_ge_u32 s{sWr}, {STG*NS}",
              f"s_cselect_b32 s{sT}, {STG*NS}, 0", f"s_sub_u32 s{sWr}, s{sWr}, s{sT}"]
        return o
    k(f"s_mov_b32 s{sN}, {N1}")
    k.label(f"L_{name}_ld")
    k(dma_stage(True))
    k(f"s_sub_u32 s{sN}, s{sN}, 1", f"s_cmp_lg_u32 s{sN}, 0")
    k(f"s_waitcnt vmcnt({8*D})", "s_barrier", f"s_cbranch_scc1 L_{name}_ld")
    k(f"s_lshl_b32 s{sTo}, s{sW}, 11", f"s_add_u32 s{sTo}, s{sTo}, {2*N1*8192}", f"s_lshl_b32 s{sWo}, s{sTo}, 1")
    cnt = lambda n: 8 if n < N1 else (6 if n < N1 + N2 else 0)
    for n in range(N1, N1 + N2 + D):
        if n < N1 + N2:
            k(dma_stage(False))
        k(f"s_waitcnt vmcnt({sum(cnt(m) for m in range(n-D+1, n+1))})", "s_barrier")
    k("s_endpgm")
    if OPT.get("epad", 1):
        k(island(jump=False))
    k.label(f"L_{name}_comp")
    k(f"s_and_b32 s{sTH}, s{sW}, 1", f"s_lshr_b32 s{sCH}, s{sW}, 1")
    k(f"v_lshrrev_b32 v{G}, 4, v{L}", f"v_and_b32 v{TOK}, 15, v{L}",
      f"v_lshlrev_b32 v{T0}, 11, v{TOK}", f"v_lshl_add_u32 v{T0}, v{G}, 4, v{T0}",
      f"s_lshl_b32 s{sN}, s{sTB}, 1", f"s_add_u32 s{sN}, s{sN}, s{sTH}", f"s_lshl_b32 s{sN}, s{sN}, 16",
      f"s_lshl_b32 s{sRes}, s{sNB}, 1", f"s_add_u32 s{sRes}, s{sRes}, s{sCH}", f"s_lshl_b32 s{sRd}, s{sRes}, 7",
      f"s_add_u32 s{sN}, s{sN}, s{sRd}", f"v_add_u32 v{vRow}, s{sN}, v{T0}")
    k(f"s_lshl_b32 s{sRes}, s{sRes}, 13", f"s_lshl_b32 s{sN}, s{sTB}, 17", f"s_add_u32 s{sRes}, s{sRes}, s{sN}",
      f"s_lshl_b32 s{sN}, s{sTH}, 11", f"s_add_u32 s{sRes}, s{sRes}, s{sN}",
      f"s_xor_b32 s{sX0}, s{sRes}, {1<<17}", f"s_add_u32 s{sX0}, s{sX0}, {XB}", f"s_add_u32 s{sX1}, s{sX0}, 4096")
    k(f"s_lshl_b32 s{sT}, s{sTH}, 11", f"v_add_u32 v{bT}, s{sT}, v{vLin}",
      f"s_lshl_b32 s{sT}, s{sCH}, 12", f"s_add_u32 s{sT}, s{sT}, 8192", f"v_add_u32 v{bW}, s{sT}, v{vLin}",
      f"v_mov_b32 v{aT}, v{bT}", f"v_mov_b32 v{aW}, v{bW}")
    k("s_waitcnt lgkmcnt(0)", ws_shift(SWS))
    k(srd_tail(SWS, WS_SZ), srd_tail(SO, 4 * MB))
    for _ in range(D):
        k("s_barrier")
    for i in range(acc[0][0], acc[0][0] + 64, 2):
        k(f"v_mov_b64 {vr(i,2)}, 0")

    def reads(f, full):
        o = []
        for s in range(2):
            o += [f"ds_read_b128 {vr(F[f][s]['X'][i],4)}, v{aT} offset:{(i>>1)*24576+s*4096+(i&1)*1024}" for i in range(4 if full else 2)]
            o += [f"ds_read_b128 {vr(F[f][s]['W'][t],4)}, v{aW} offset:{s*8192+t*1024}" for t in range(4)]
        return o

    def mfmas(f, tiles):
        return [m16(vr(acc[t][i], 4), vr(F[f][s]["W"][t], 4), vr(F[f][s]["X"][i], 4))
                for t in range(4) for i in (tiles if t % 2 == 0 else tiles[::-1]) for s in range(2)]
    adv = [[f"s_add_u32 s{sRd}, s{sRd}, {STG}", f"s_cmp_eq_u32 s{sRd}, {STG*NS}"], [f"s_cselect_b32 s{sRd}, 0, s{sRd}"],
           [f"v_add_u32 v{aT}, s{sRd}, v{bT}", f"v_add_u32 v{aW}, s{sRd}, v{bW}"]]
    ALL, OWN, PAR = [0, 1, 2, 3], [0, 1], [2, 3]
    k(f"s_mov_b32 s{sRd}, 0", f"s_mov_b32 s{sN}, {(N1-1)//2}")
    k("s_barrier")
    mid_stamp(k, 0)
    k(reads(0, True), adv, "s_waitcnt lgkmcnt(0)")

    def step(f, extra):
        k("s_barrier")
        m = weave(mfmas(f, ALL), reads(1 - f, True), 0, 18)
        k(weave(m, adv + extra, len(m) - 8, len(m) - 1), "s_waitcnt lgkmcnt(0)")
    k(".p2align 6")
    k.label(f"L_{name}_loop")
    step(0, [])
    step(1, [[f"s_sub_u32 s{sN}, s{sN}, 1", f"s_cmp_lg_u32 s{sN}, 0"]])
    k(f"s_cbranch_scc1 L_{name}_loop")
    f = 0
    if (N1 - 1) % 2:
        step(0, [])
        f = 1
    if OPT.get("p1"):
        mid_stamp(k, 1)
    snd = []
    for b in range(2):
        for i in range(2):
            o = F[1 - f][b]["X"][2 + i]
            for jt in range(2):
                a = acc[2 * b + jt][2 + i]
                snd += [[f"v_cvt_pk_bf16_f32 v{o+2*jt}, v{a}, v{a+1}", f"v_cvt_pk_bf16_f32 v{o+2*jt+1}, v{a+2}, v{a+3}"]]
            snd += [[f"v_min_u32 v{o+r}, -2, v{o+r}" for r in (0, 1)], [f"v_min_u32 v{o+r}, -2, v{o+r}" for r in (2, 3)] +
                    [f"buffer_store_dwordx4 {vr(o,4)}, v{vLin}, s[{SWS}:{SWS+3}], s{[sX0,sX1][b]} offen offset:{1024*i} sc1"]]
    k("s_barrier")
    k(weave(weave(mfmas(f, PAR), reads(1 - f, False), 0, 10), adv, 22, 27), weave(mfmas(f, OWN), snd, 0, 16), "s_waitcnt lgkmcnt(0)")
    f = 1 - f
    res = [f"buffer_load_dwordx4 {vr(RES[i][b],4)}, v{vLin}, s[{SWS}:{SWS+3}], s{[sT,sT2][b]} offen offset:{1024*i}" for i in range(2) for b in range(2)]
    rcv = [f"buffer_load_dwordx4 {vr(RCV[i][b],4)}, v{vLin}, s[{SWS}:{SWS+3}], s{[sX0,sX1][b]} offen offset:{1024*i} sc1" for i in range(2) for b in range(2)]
    rstep = N1 + N2 - OPT.get("rl", 2)
    for n in range(N1 + 1, N1 + N2):
        k("s_barrier")
        m = weave(mfmas(f, OWN), reads(1 - f, False), 0, 9)
        ex = list(adv) if n < N1 + N2 - 1 else []
        if n == N1 + 1:
            ex += [[f"s_add_u32 s{sT}, s{sRes}, {HF}", f"s_add_u32 s{sT2}, s{sRes}, {HF+4096}",
                    f"s_add_u32 s{sX0}, s{sRes}, {XB}", f"s_add_u32 s{sX1}, s{sRes}, {XB+4096}"], res]
        if n == rstep:
            ex += [rcv]
        k(weave(m, ex, len(m) - 6, len(m)) if ex else m, island() if (n == N1 + 2 and OPT.get("epad", 1)) else None, "s_waitcnt lgkmcnt(0)")
        f = 1 - f
    if rstep >= N1 + N2:
        k(rcv)
    k(mfmas(f, OWN))
    if not OPT.get("p1"):
        mid_stamp(k, 1)
    k(f"s_mov_b32 s{sN}, {1<<20}")
    k.label(f"L_{name}_chk")
    k("s_waitcnt vmcnt(0)")
    rr = [RCV[i][b] + r for i in range(2) for b in range(2) for r in range(4)]
    k(f"v_max3_u32 v{T0}, v{rr[0]}, v{rr[1]}, v{rr[2]}", f"v_max3_u32 v{T1}, v{rr[3]}, v{rr[4]}, v{rr[5]}")
    for j in range(6, 16, 2):
        t = [T0, T1][(j // 2) & 1]
        k(f"v_max3_u32 v{t}, v{rr[j]}, v{rr[j+1]}, v{t}")
    k(f"v_max_u32 v{T0}, v{T0}, v{T1}", f"v_cmp_eq_u32 vcc, -1, v{T0}", f"s_sub_u32 s{sN}, s{sN}, 1", f"s_cbranch_scc1 L_{name}_out",
      f"s_cbranch_vccz L_{name}_out", "s_sleep 2", rcv, f"s_branch L_{name}_chk")
    k.label(f"L_{name}_out")
    k(f"s_mov_b32 s{sN}, 32768")
    U = F[0][0]["W"][0]
    for i in range(2):
        for b in range(2):
            o = F[0][1]["W"][2 * i + b]
            for jt in range(2):
                a = acc[2 * b + jt][i]
                for h in range(2):
                    r, q = RES[i][b] + 2 * jt + h, RCV[i][b] + 2 * jt + h
                    k(f"v_lshlrev_b32 v{U}, 16, v{q}", f"v_and_b32 v{U+1}, 0xffff0000, v{q}",
                      f"v_lshlrev_b32 v{U+2}, 16, v{r}", f"v_and_b32 v{U+3}, 0xffff0000, v{r}",
                      f"v_pk_add_f32 {vr(a+2*h,2)}, {vr(a+2*h,2)}, {vr(U,2)}", f"v_pk_add_f32 {vr(a+2*h,2)}, {vr(a+2*h,2)}, {vr(U+2,2)}",
                      f"v_cvt_pk_bf16_f32 v{o+2*jt+h}, v{a+2*h}, v{a+2*h+1}")
            k(f"buffer_store_dwordx4 {vr(o,4)}, v{vRow}, s[{SO}:{SO+3}], {['0', f's{sN}'][i]} offen offset:{64*b} sc1")
    tail(k, kidx, sW)
    return k


def k4_down4(kidx):
    name, K = "down_kernel", 3584
    D = OPT.get("dd", 2)
    N1 = OPT.get("n1", 25)
    N2 = 56 - 2 * N1
    STG, NS = 24576, D + 2
    k = Kern(name, 256, 512, STG * NS)
    SWS, SO = 4, 20
    sW, sTB, sNB, sN, sT, sT2, sRd, sWr, sTo, sWo, sTH, sCH, sRes, sDW, sKQ = range(28, 43)
    sX = [[44 + 2 * r + b for b in range(2)] for r in range(4)]
    v = Alloc(1)
    L, G, TOK, T0, T1, vLin, bT, bW, aT, aW, vRow = [v() for _ in range(11)]
    F = [[dict(X=[v(4, 4) for _ in range(2)], W=[v(4, 4) for _ in range(4)]) for s in range(2)] for _ in range(2)]
    acc = [[[v(4, 4) for i in range(2)] for t in range(4)] for r in range(4)]
    RES = [[v(4, 4) for b in range(2)] for i in range(2)]
    SND = lambda r, i, b: acc[r][2 * b][i]
    RCV = lambda r, i, b: acc[r][2 * b + 1][i] if r else RES[i][b]
    k.vgpr = k.acc = (v.n + 7) // 8 * 8
    head(k, True)
    k(f"s_load_dwordx2 s[{SWS}:{SWS+1}], s[0:1], {A_WS}", f"s_load_dwordx2 s[{SO}:{SO+1}], s[0:1], {A_OUT}")
    k(f"v_lshrrev_b32 v{T1}, 6, v0", f"v_and_b32 v{L}, 63, v0", f"v_readfirstlane_b32 s{sW}, v{T1}", f"v_lshlrev_b32 v{vLin}, 4, v{L}")
    k(f"s_bfe_u32 s{sNB}, s2, 0x20003", f"s_lshl_b32 s{sNB}, s{sNB}, 1", f"s_and_b32 s{sT}, s2, 1", f"s_add_u32 s{sNB}, s{sNB}, s{sT}",
      f"s_lshr_b32 s{sTB}, s2, 5", f"s_lshl_b32 s{sTB}, s{sTB}, 1", f"s_bfe_u32 s{sT}, s2, 0x10001", f"s_add_u32 s{sTB}, s{sTB}, s{sT}",
      f"s_and_b32 s{sT}, s2, 4", f"s_lshl_b32 s{sT}, s{sT}, 2", f"s_add_u32 s{sTB}, s{sTB}, s{sT}",
      f"s_and_b32 s{sTH}, s{sW}, 1", f"s_bfe_u32 s{sCH}, s{sW}, 0x10001")
    k(f"s_cmp_lt_u32 s{sW}, 4", f"s_cbranch_scc1 L_{name}_comp")
    k(f"s_and_b32 s{sW}, s{sW}, 3", f"s_and_b32 s{sKQ}, s2, 3",
      f"s_lshl_b32 s{sWr}, s{sW}, 11", f"s_add_u32 s{sDW}, s{sWr}, 8192",
      f"s_mul_i32 s{sT2}, s{sKQ}, {N1*4096}", f"s_lshl_b32 s{sT}, s{sTH}, 11", f"s_add_u32 s{sT2}, s{sT2}, s{sT}",
      f"s_xor_b32 s{sT}, s{sTB}, s{sCH}", f"s_mul_i32 s{sTo}, s{sT}, {K*128}", f"s_add_u32 s{sTo}, s{sTo}, s{sT2}", f"s_add_u32 s{sTo}, s{sTo}, {AF}",
      f"s_xor_b32 s{sT}, s{sNB}, s{sCH}", f"s_mul_i32 s{sWo}, s{sT}, {K*128}", f"s_add_u32 s{sWo}, s{sWo}, s{sT2}", f"s_lshl_b32 s{sWo}, s{sWo}, 1",
      f"s_add_u32 s{sWo}, s{sWo}, {WDF}")
    k("s_waitcnt lgkmcnt(0)", ws_shift(SWS), srd_tail(SWS, WS_SZ))

    def dma_stage(step):
        o = [f"s_mov_b32 m0, s{sWr}", "s_nop 0"]
        o += [f"buffer_load_dwordx4 v{vLin}, s[{SWS}:{SWS+3}], s{sTo} offen offset:{1024*i} lds" for i in range(2)]
        o += [f"s_add_u32 m0, s{sWr}, s{sDW}", f"s_add_u32 s{sTo}, s{sTo}, {step}"]
        o += [f"buffer_load_dwordx4 v{vLin}, s[{SWS}:{SWS+3}], s{sWo} offen offset:{1024*i} lds" for i in range(4)]
        o += [f"s_add_u32 s{sWo}, s{sWo}, {2*step}", f"s_add_u32 s{sWr}, s{sWr}, {STG}", f"s_cmp_ge_u32 s{sWr}, {STG*NS}",
              f"s_cselect_b32 s{sT}, {STG*NS}, 0", f"s_sub_u32 s{sWr}, s{sWr}, s{sT}",
              f"s_sub_u32 s{sN}, s{sN}, 1", f"s_cmp_lg_u32 s{sN}, 0", f"s_waitcnt vmcnt({6*D})", "s_barrier"]
        return o
    k(f"s_mov_b32 s{sN}, {N1}")
    k.label(f"L_{name}_ld")
    k(dma_stage(4096), f"s_cbranch_scc1 L_{name}_ld")
    k(f"s_lshl_b32 s{sT2}, s{sW}, 11", f"s_add_u32 s{sT2}, s{sT2}, {4*N1*4096}",
      f"s_mul_i32 s{sTo}, s{sTB}, {K*128}", f"s_add_u32 s{sTo}, s{sTo}, s{sT2}", f"s_add_u32 s{sTo}, s{sTo}, {AF}",
      f"s_mul_i32 s{sWo}, s{sNB}, {K*128}", f"s_add_u32 s{sWo}, s{sWo}, s{sT2}", f"s_lshl_b32 s{sWo}, s{sWo}, 1",
      f"s_add_u32 s{sWo}, s{sWo}, {WDF}", f"s_mov_b32 s{sN}, {N2}")
    k.label(f"L_{name}_ld2")
    k(dma_stage(8192), f"s_cbranch_scc1 L_{name}_ld2")
    for d in range(D - 1, -1, -1):
        k(f"s_waitcnt vmcnt({6*d})", "s_barrier")
    k("s_endpgm")
    k(island(jump=False))
    k.label(f"L_{name}_comp")
    k(f"v_lshrrev_b32 v{G}, 4, v{L}", f"v_and_b32 v{TOK}, 15, v{L}",
      f"v_lshlrev_b32 v{T0}, 11, v{TOK}", f"v_lshl_add_u32 v{T0}, v{G}, 4, v{T0}",
      f"s_lshl_b32 s{sN}, s{sTB}, 1", f"s_add_u32 s{sN}, s{sN}, s{sTH}", f"s_lshl_b32 s{sN}, s{sN}, 16",
      f"s_lshl_b32 s{sRes}, s{sNB}, 1", f"s_add_u32 s{sRes}, s{sRes}, s{sCH}", f"s_lshl_b32 s{sRd}, s{sRes}, 7",
      f"s_add_u32 s{sN}, s{sN}, s{sRd}", f"v_add_u32 v{vRow}, s{sN}, v{T0}")
    for _ in range(D):
        k("s_barrier")
    k(f"s_lshl_b32 s{sRes}, s{sRes}, 13", f"s_lshl_b32 s{sN}, s{sTB}, 17", f"s_add_u32 s{sRes}, s{sRes}, s{sN}",
      f"s_lshl_b32 s{sN}, s{sTH}, 11", f"s_add_u32 s{sRes}, s{sRes}, s{sN}")
    for r in range(1, 4):
        k(f"s_xor_b32 s{sT}, s{sRes}, {((r&1)<<17)|((r>>1)<<14)}", f"s_add_u32 s{sX[r][0]}, s{sT}, {XB4[r]}", f"s_add_u32 s{sX[r][1]}, s{sT}, {XB4[r]+4096}")
    k(f"s_lshl_b32 s{sT}, s{sTH}, 11", f"v_add_u32 v{bT}, s{sT}, v{vLin}",
      f"s_lshl_b32 s{sT}, s{sCH}, 12", f"s_add_u32 s{sT}, s{sT}, 8192", f"v_add_u32 v{bW}, s{sT}, v{vLin}",
      f"v_mov_b32 v{aT}, v{bT}", f"v_mov_b32 v{aW}, v{bW}")
    k("s_waitcnt lgkmcnt(0)", ws_shift(SWS))
    k(srd_tail(SWS, WS_SZ), srd_tail(SO, 4 * MB))

    def reads(f):
        o = []
        for s in range(2):
            o += [f"ds_read_b128 {vr(F[f][s]['X'][i],4)}, v{aT} offset:{s*4096+i*1024}" for i in range(2)]
            o += [f"ds_read_b128 {vr(F[f][s]['W'][t],4)}, v{aW} offset:{s*8192+t*1024}" for t in range(4)]
        return o

    def mf1(f, c=None):
        o = []
        for sw in range(2):
            for t in range(4):
                xs = [(0, 0), (0, 1), (1, 0), (1, 1)]
                for sx, i in (xs if t % 2 == 0 else xs[::-1]):
                    o.append(m16(vr(acc[2 * sw + sx][t][i], 4), vr(F[f][sw]["W"][t], 4), vr(F[f][sx]["X"][i], 4), c))
        return o

    def mf1r(f, r):
        return [m16(vr(acc[r][t][i], 4), vr(F[f][r >> 1]["W"][t], 4), vr(F[f][r & 1]["X"][i], 4)) for t in range(4) for i in ((0, 1) if t % 2 == 0 else (1, 0))]

    def mf2(f):
        return [m16(vr(acc[0][t][i], 4), vr(F[f][s]["W"][t], 4), vr(F[f][s]["X"][i], 4))
                for t in range(4) for i in ((0, 1) if t % 2 == 0 else (1, 0)) for s in range(2)]
    adv = [[f"s_add_u32 s{sRd}, s{sRd}, {STG}", f"s_cmp_eq_u32 s{sRd}, {STG*NS}"], [f"s_cselect_b32 s{sRd}, 0, s{sRd}"],
           [f"v_add_u32 v{aT}, s{sRd}, v{bT}", f"v_add_u32 v{aW}, s{sRd}, v{bW}"]]
    k(f"s_mov_b32 s{sRd}, 0", f"s_mov_b32 s{sN}, {(N1-2)//2}")
    k("s_barrier")
    mid_stamp(k, 0)
    k(reads(0), adv, "s_waitcnt lgkmcnt(0)")

    def step(f, extra, c=None):
        k("s_barrier")
        m = weave(mf1(f, c), reads(1 - f), 0, 14)
        k(weave(m, adv + extra, len(m) - 10, len(m) - 2), "s_waitcnt lgkmcnt(0)")
    step(0, [], "0")
    k(".p2align 6")
    k.label(f"L_{name}_loop")
    step(1, [])
    step(0, [[f"s_sub_u32 s{sN}, s{sN}, 1", f"s_cmp_lg_u32 s{sN}, 0"]])
    k(f"s_cbranch_scc1 L_{name}_loop")
    f = 1
    if (N1 - 2) % 2:
        step(1, [])
        f = 0

    def snd(r):
        o = []
        for b in range(2):
            for i in range(2):
                d, a = SND(r, i, b), acc[r][2 * b + 1][i]
                o += [[f"v_cvt_pk_bf16_f32 v{d}, v{d}, v{d+1}", f"v_cvt_pk_bf16_f32 v{d+1}, v{d+2}, v{d+3}"],
                      [f"v_cvt_pk_bf16_f32 v{d+2}, v{a}, v{a+1}", f"v_cvt_pk_bf16_f32 v{d+3}, v{a+2}, v{a+3}"],
                      [f"v_min_u32 v{d+q}, -2, v{d+q}" for q in (0, 1)], [f"v_min_u32 v{d+q}, -2, v{d+q}" for q in (2, 3)] +
                      [f"buffer_store_dwordx4 {vr(d,4)}, v{vLin}, s[{SWS}:{SWS+3}], s{sX[r][b]} offen offset:{1024*i} sc1"]]
        return o
    if OPT.get("p1"):
        mid_stamp(k, 1)
    k("s_barrier")
    k(weave(weave(mf1r(f, 3) + mf1r(f, 2), reads(1 - f), 0, 10), adv, 22, 27), weave(mf1r(f, 1) + mf1r(f, 0), snd(3), 0, 16), "s_waitcnt lgkmcnt(0)")
    k(island())
    f = 1 - f
    rcv = lambda r: [f"buffer_load_dwordx4 {vr(RCV(r,i,b),4)}, v{vLin}, s[{SWS}:{SWS+3}], s{sX[r][b]} offen offset:{1024*i}{' sc1' if r else ''}"
                     for i in range(2) for b in range(2)]
    radr = [[f"s_add_u32 s{sX[r][b]}, s{sRes}, {XB4[r]+4096*b}" for b in range(2)] for r in range(4)]
    rl = OPT.get("rl", 2)
    for n in range(1, N2):
        k("s_barrier")
        m = weave(mf2(f), reads(1 - f), 0, 9)
        ex = list(adv) if n < N2 - 1 else []
        if n == 1:
            k(weave(m, ex, len(m) - 6, len(m) - 2), snd(2), snd(1), radr, rcv(0))
        else:
            if n == N2 - rl:
                ex += [rcv(3), rcv(2), rcv(1)]
            k(weave(m, ex, len(m) - 6, len(m)) if ex else m)
        k("s_waitcnt lgkmcnt(0)")
        f = 1 - f
    if rl == 0:
        k(rcv(3), rcv(2), rcv(1))
    k(mf2(f))
    if not OPT.get("p1"):
        mid_stamp(k, 1)
    U = F[0][0]["W"][0]

    def add(r):
        for i in range(2):
            for b in range(2):
                for jt in range(2):
                    a, q = acc[0][2 * b + jt][i], RCV(r, i, b) + 2 * jt
                    k(f"v_lshlrev_b32 v{U}, 16, v{q}", f"v_and_b32 v{U+1}, 0xffff0000, v{q}",
                      f"v_lshlrev_b32 v{U+2}, 16, v{q+1}", f"v_and_b32 v{U+3}, 0xffff0000, v{q+1}",
                      f"v_pk_add_f32 {vr(a,2)}, {vr(a,2)}, {vr(U,2)}", f"v_pk_add_f32 {vr(a+2,2)}, {vr(a+2,2)}, {vr(U+2,2)}")
                if r == 1:
                    o = F[0][1]["W"][2 * i + b]
                    for jt in range(2):
                        a = acc[0][2 * b + jt][i]
                        k(f"v_cvt_pk_bf16_f32 v{o+2*jt}, v{a}, v{a+1}", f"v_cvt_pk_bf16_f32 v{o+2*jt+1}, v{a+2}, v{a+3}")
                    k(f"buffer_store_dwordx4 {vr(o,4)}, v{vRow}, s[{SO}:{SO+3}], {['0', f's{sT2}'][i]} offen offset:{64*b} sc1")
    k(f"s_mov_b32 s{sN}, {1<<20}", f"s_mov_b32 s{sT2}, 32768", "s_waitcnt vmcnt(12)", "s_nop 1")
    add(0)
    for r in (3, 2, 1):
        k(f"s_waitcnt vmcnt({4*(r-1)})")
        k.label(f"L_{name}_chk{r}")
        rr = [RCV(r, i, b) + q for i in range(2) for b in range(2) for q in range(4)]
        k(f"v_max3_u32 v{T0}, v{rr[0]}, v{rr[1]}, v{rr[2]}", f"v_max3_u32 v{T1}, v{rr[3]}, v{rr[4]}, v{rr[5]}")
        for j in range(6, 16, 2):
            t = [T0, T1][(j // 2) & 1]
            k(f"v_max3_u32 v{t}, v{rr[j]}, v{rr[j+1]}, v{t}")
        k(f"v_max_u32 v{T0}, v{T0}, v{T1}", f"v_cmp_eq_u32 vcc, -1, v{T0}", f"s_sub_u32 s{sN}, s{sN}, 1", f"s_cbranch_scc1 L_{name}_ok{r}",
          f"s_cbranch_vccz L_{name}_ok{r}", [rcv(q) for q in range(r, 0, -1)], "s_waitcnt vmcnt(0)", f"s_branch L_{name}_chk{r}")
        k.label(f"L_{name}_ok{r}")
        add(r)
    tail(k, kidx, sW)
    return k


class Op:
    def __init__(self, text, kind="v", needs=(), bar=False):
        self.text, self.kind, self.needs, self.bar = text, kind, list(needs), bar
        self.seq = None

    @property
    def cost(self):
        return 8 if self.kind == "t" else 4


def emit_stream(k, ops, nl=0, nv=0):
    cnt = {"lds": nl, "vm": nv}
    done = {"lds": 0, "vm": 0}
    for o in ops:
        if o.kind in cnt:
            cnt[o.kind] += 1
            o.seq = cnt[o.kind]
            k(o.text)
        elif o.kind == "wait":
            parts = []
            for kind, nm, mx in (("vm", "vmcnt", 63), ("lds", "lgkmcnt", 15)):
                need = [x.seq for x in o.needs if x.kind == kind]
                assert None not in need, "wait on an op that was not issued yet"
                tgt = cnt[kind] if (o.bar and kind == "lds") else max(need, default=0)
                if tgt > done[kind]:
                    n = cnt[kind] - tgt
                    assert n <= mx or kind == "vm"
                    parts.append(f"{nm}({min(n, mx)})")
                    done[kind] = tgt
            if parts:
                k("s_waitcnt " + " ".join(parts))
            if o.bar:
                k("s_barrier")
        else:
            k(o.text)
    return cnt


def k3_gateup():
    STG, NS = 28672, 5
    TBL = NS * STG
    k = Kern("ffn_kernel", 256, 256, 163840)
    SWS, ST_, SW_, SO = 4, 8, 12, 20
    slot = lambda n: (n + 3) % NS
    sW, sMB, sFB, sN, sT, sT2, sTo, sWo, sWr, sTB, sA0, sA1, sSt, sCp = range(28, 42)
    v = Alloc(1)
    vLin, vR1, vR2, vCs, vSt, vTid, vOut = [v() for _ in range(7)]
    PA = [v(2, 2) for _ in range(4)]
    SD = [v(2, 2) for _ in range(2)]
    TA, TB_, TC = v(4, 4), v(4, 4), v(4, 4)
    assert v.n <= 32, v.n
    acc = [[32 + (a * 4 + b) * 4 for b in range(4)] for a in range(14)]
    TK = [[[32 * n + 16 * s + 4 * b for b in range(4)] for s in range(2)] for n in range(NS)]
    WF = [[160 + 8 * n + 4 * s for s in range(2)] for n in range(4)]
    SP, CP = 192, 224
    k.vgpr, k.acc = 512, 256
    head(k, True)
    k(f"s_load_dwordx2 s[{SWS}:{SWS+1}], s[0:1], {A_WS}", f"s_load_dwordx2 s[{SO}:{SO+1}], s[0:1], {A_OUT}")
    k(f"v_lshrrev_b32 v{TA}, 6, v0", f"v_and_b32 v{TA+1}, 63, v0", f"v_readfirstlane_b32 s{sW}, v{TA}", f"v_lshlrev_b32 v{vLin}, 4, v{TA+1}")
    k(f"s_lshr_b32 s{sT}, s2, 3", f"s_lshr_b32 s{sMB}, s{sT}, 2", f"s_and_b32 s{sT}, s{sT}, 3",
      f"s_and_b32 s{sFB}, s2, 7", f"s_lshl_b32 s{sFB}, s{sFB}, 2", f"s_add_u32 s{sFB}, s{sFB}, s{sT}",
      f"s_lshl_b32 s{sTB}, s{sMB}, 2", f"s_add_u32 s{sTB}, s{sTB}, s{sW}",
      f"s_lshl_b32 s{sT}, s{sTB}, 17", f"s_add_u32 s{sT}, s{sT}, {HF}",
      f"s_mul_i32 s{sT2}, s{sFB}, {32*14*1024}", f"s_add_u32 s{sT2}, s{sT2}, {WGU}",
      f"s_mul_i32 s{sWo}, s{sW}, 7168", f"s_mov_b32 s{sWr}, s{sWo}", f"s_mov_b32 s{sTo}, 0")
    k("s_waitcnt lgkmcnt(0)", ws_shift(SWS))
    k(srd_from(ST_, SWS, f"s{sT}", 131072), srd_from(SW_, SWS, f"s{sT2}", 32 * 14 * 1024))

    def vm_stage(n):
        o = []
        for i in range(7):
            pre, post = [], []
            if i % 4 == 0:
                pre = [f"s_add_u32 m0, s{sWr}, {slot(n)*STG+1024*i}"]
            if i == 3:
                post = [f"s_add_u32 s{sWo}, s{sWo}, 4096"]
            if i == 6:
                post = [f"s_add_u32 s{sWo}, s{sWo}, {STG-4096}"]
            o.append((pre, Op(f"buffer_load_dwordx4 v{vLin}, s[{SW_}:{SW_+3}], s{sWo} offen offset:{1024*(i%4)} lds", "vm"), post, n))
        for s in range(2):
            for b in range(4):
                post = [f"s_add_u32 s{sTo}, s{sTo}, 4096"] if b == 3 else []
                o.append(([], Op(f"buffer_load_dwordx4 {ar(TK[slot(n)][s][b],4)}, v{vLin}, s[{ST_}:{ST_+3}], s{sTo} offen offset:{1024*b}", "vm"), post, n))
        return o
    VM = [vm_stage(n) for n in range(16)]
    HALF = OPT.get("k3half", 2)
    for n in range(HALF):
        wl = [([f"s_add_u32 m0, s{sN}, {(slot(n)-n)*STG}"], Op(f"buffer_load_dwordx4 v{vLin}, s[{SW_}:{SW_+3}], s{sN} offen lds", "vm"),
               [f"s_add_u32 s{sN}, s{sN}, 4096"], n) for i in range(7)]
        VM[n] = VM[n][7:11] + wl[:4] + VM[n][11:15] + wl[4:]
    if HALF:
        k(f"s_lshl_b32 s{sN}, s{sW}, 10", f"s_add_u32 s{sWo}, s{sWo}, {HALF*STG}")
    stat_ld = [([], Op(f"buffer_load_dwordx4 {ar(SP+4*i,4)}, v{vLin}, s[{SWS}:{SWS+3}], s{sSt} offen offset:{1024*(i%4)}", "vm"),
                [f"s_add_u32 s{sSt}, s{sSt}, 4096"] if i == 3 else [], None) for i in range(8)]
    cs_ld = [([], Op(f"buffer_load_dword {ar(CP+p)}, v{vTid}, s[{SWS}:{SWS+3}], s{sCp} offen", "vm"),
              [f"s_add_u32 s{sCp}, s{sCp}, {32*896}"], None) for p in range(8)]
    pro = []
    for i, (pre, ld, post, _) in enumerate(VM[0] if HALF else VM[0] + VM[1]):
        pro += [Op(x, "s") for x in pre] + ([Op("s_nop 0", "s")] if pre else []) + [ld] + [Op(x, "s") for x in post]
        if i == (7 if HALF else 14):
            cut = len(pro)
            pro.append(Op("s_barrier", "s"))
    pro, pro2 = pro[:cut], pro[cut:]
    misc = srd_tail(SWS, WS_SZ) + [
        f"s_lshl_b32 s{sSt}, s{sTB}, 13", f"s_add_u32 s{sSt}, s{sSt}, {STP}",
        f"s_mul_i32 s{sCp}, s{sFB}, 896", f"s_add_u32 s{sCp}, s{sCp}, {CSP}",
        f"v_add_u32 v{vR1}, {2*STG}, v{vLin}", f"v_add_u32 v{vR2}, {4*STG}, v{vLin}",
        f"v_lshlrev_b32 v{vTid}, 2, v0",
        f"v_lshrrev_b32 v{TA}, 4, v{TA+1}", f"v_lshlrev_b32 v{vCs}, 4, v{TA}", f"v_add_u32 v{vCs}, {TBL}, v{vCs}",
        f"v_and_b32 v{TA+2}, 1, v{TA}", f"v_lshlrev_b32 v{TA+2}, 10, v{TA+2}", f"v_lshrrev_b32 v{TA}, 1, v{TA}",
        f"v_lshl_add_u32 v{TA+2}, v{TA}, 8, v{TA+2}", f"v_and_b32 v{TA+1}, 15, v{TA+1}", f"v_lshl_add_u32 v{vOut}, v{TA+1}, 4, v{TA+2}",
        f"s_mul_i32 s{sT}, s{sTB}, {112*4096}", f"s_add_u32 s{sT}, s{sT}, {AF}", f"s_and_b32 s{sT2}, s{sFB}, 1", f"s_lshl_b32 s{sT2}, s{sT2}, 9",
        f"s_add_u32 s{sT}, s{sT}, s{sT2}", f"s_lshr_b32 s{sT2}, s{sFB}, 1", f"s_lshl_b32 s{sT2}, s{sT2}, 12", f"s_add_u32 s{sT}, s{sT}, s{sT2}",
        f"s_add_u32 s{sA1}, s{sT}, {96*4096}", f"s_lshr_b32 s{sT2}, s{sFB}, 4", f"s_mul_i32 s{sT2}, s{sT2}, {40*4096}", f"s_add_u32 s{sA0}, s{sT}, s{sT2}"]
    pro += [Op(x, "s") for x in misc]
    if OPT.get("k3pf", 1):
        pro += [Op(x, "s") for x in ["s_getpc_b64 s[16:17]", f"s_lshr_b32 s{sT}, s2, 3", f"s_lshl_b32 s{sT}, s{sT}, 10",
                                     f"v_add_u32 v{TA}, s{sT}, v{vTid}", f"v_min_u32 v{TA}, L_code_end-L_k3_pf-4, v{TA}", "L_k3_pf:"]]
        pro.append(Op(f"global_load_dword v{TC}, v{TA}, s[16:17]", "vm"))

    if OPT.get("isl", 1):
        pro.append(Op(island(), "s"))
    seg0 = len(pro)
    pro += pro2
    order = [a for p in range(7) for a in (p, p + 7)]
    S0 = 12
    seq = [(n, a) for n in range(S0) for a in order]
    seq += [(n, a) for p in range(7) for n in range(S0, 16) for a in (p, p + 7)]
    NT_ = len(seq)
    mf, fixed = [], [[] for _ in range(8 * NT_)]
    RD = []
    for gt, (n, a) in enumerate(seq):
        sl = slot(n)
        fr = [(a, 0), (a, 1)] if n >= HALF else [(gt % 7, (gt // 7) & 1), (gt % 7 + 7, (gt // 7) & 1)]
        RD.append([Op(f"ds_read_b128 {ar(WF[gt%4][e],4)}, v{[vLin,vR1,vR2][sl>>1]} offset:{(sl&1)*STG+s*14336+t*1024}", "lds") for e, (t, s) in enumerate(fr)])
        bs = range(4) if gt % 2 == 0 else range(3, -1, -1)
        for b in bs:
            for e, (t, s) in enumerate(fr):
                mf.append(Op(m16(vr(acc[t][b], 4), ar(WF[gt % 4][e], 4), ar(TK[sl][s][b], 4), "0" if (n == 0 and s == 0) else None), "m"))
    first = {}
    for gt, (n, a) in enumerate(seq):
        first.setdefault(n, gt)
    barpos = {}
    for gt in range(NT_):
        if gt + 2 < NT_:
            fixed[8 * gt].append(RD[gt + 2][0]); fixed[8 * gt + 1].append(RD[gt + 2][1])
        newst = [n for n in range(1, 16) if first[n] == gt + 3]
        if gt % 14 == 4 and gt // 14 < HALF:
            fixed[8 * gt + 7].append(Op("", "wait", [x[1] for x in VM[gt // 14]], bar=True))
        elif newst:
            fixed[8 * gt + 7].append(Op("", "wait", [x[1] for x in VM[newst[0]][:8 if newst[0] < HALF else 15]], bar=True))
            barpos[newst[0]] = 8 * gt + 7
        elif gt + 1 < NT_:
            fixed[8 * gt + 7].append(Op("", "wait", RD[gt + 1]))
    flat = (VM[1] if HALF else []) + VM[2] + VM[3] + VM[4] + stat_ld + cs_ld + [x for n in range(5, 16) for x in VM[n]]
    nfast = OPT.get("k3fast", 0) if HALF else 0
    slots = [8 * gt + o for gt in range(S0 * 14) for o in (3, 6)]
    nsl = len(slots) - 2 * OPT.get("k3lead", 8)
    vpos = {}
    si = -1
    for i, (pre, ld, post, n) in enumerate(flat):
        si = max(si + 1, nfast + ((i - nfast) * (nsl - nfast)) // (len(flat) - nfast) if i >= nfast else 0)
        if n is not None and n >= NS:
            lim = barpos[n - NS + 1] + 2 if "lds" in ld.text else 8 * 14 * (n - NS + 1)
            while slots[si] < lim:
                si += 1
        p = slots[si]
        fixed[p - 1] += [Op(x, "s") for x in pre]
        fixed[p] += [ld] + [Op(x, "s") for x in post]
        vpos[id(ld)] = p
    used = [sum(o.cost for o in f if not (o.kind == "wait" and False)) for f in fixed]
    flo = [[] for _ in fixed]

    def flow(ops, start, deadline=None):
        p = start
        for o in ops:
            while used[p] + o.cost > 8:
                p += 1
            flo[p].append(o); used[p] += o.cost
        assert deadline is None or p < deadline, (p, deadline)
        return p + 1

    def spread(ops, start, stop):
        tot = sum(o.cost for o in ops) + sum(used[start:stop])
        cap = max(8.0, tot / (stop - start))
        p, acc_used, acc_cap = start, used[start], cap
        for o in ops:
            while acc_used + o.cost > acc_cap + 2 and p < stop - 1:
                p += 1
                if cap == 8.0:
                    acc_used, acc_cap = used[p], cap
                else:
                    acc_used += used[p]; acc_cap += cap
            flo[p].append(o); acc_used += o.cost
        return p
    V = lambda t: Op(t, "v")
    st = [Op("", "wait", [x[1] for x in stat_ld + cs_ld])]
    st += [V(f"v_accvgpr_read_b32 v{TC}, a{CP}")]
    for p in range(1, 8):
        st += [V(f"v_accvgpr_read_b32 v{TB_}, a{CP+p}"), V(f"v_add_f32 v{TC}, v{TC}, v{TB_}")]
    st += [V(f"v_add_u32 v{vTid}, {TBL}, v{vTid}"), Op(f"ds_write_b32 v{vTid}, v{TC}", "lds")]
    for hf in range(2):
        A = TA
        st += [V(f"v_accvgpr_read_b32 v{A+r}, a{SP+16*hf+r}") for r in range(4)]
        for i in range(1, 4):
            st += [V(f"v_accvgpr_read_b32 v{TB_+r}, a{SP+16*hf+4*i+r}") for r in range(4)]
            st += [V(f"v_add_f32 v{A+r}, v{A+r}, v{TB_+r}") for r in range(4)]
        for op in ("v_permlane16_swap_b32", "v_permlane32_swap_b32"):
            st += [V(f"v_mov_b32 v{TB_+r}, v{A+r}") for r in range(4)]
            st += [V(f"{op} v{A+r}, v{TB_+r}") for r in range(4)]
            st += [V(f"v_add_f32 v{A+r}, v{A+r}, v{TB_+r}") for r in range(4)]
        for b in (2 * hf, 2 * hf + 1):
            sd = SD[b >> 1] + (b & 1)
            st += [V(f"v_mul_f32 v{PA[b]+1}, {f32(-1/1024)}, v{A+2*(b&1)}"),
                   V(f"v_mul_f32 v{PA[b]}, {f32(1/1024)}, v{A+2*(b&1)+1}"),
                   V(f"v_fma_f32 v{PA[b]}, -v{PA[b]+1}, v{PA[b]+1}, v{PA[b]}"),
                   V(f"v_max_f32 v{PA[b]}, 0, v{PA[b]}"),
                   V(f"v_add_f32 v{sd}, {f32(EPS)}, v{PA[b]}"),
                   Op(f"v_rsq_f32 v{PA[b]}, v{sd}", "t"), V("v_nop"),
                   V(f"v_mul_f32 v{sd}, v{sd}, v{PA[b]}"),
                   V(f"v_mul_f32 v{PA[b]}, {f32(-LOG2E)}, v{PA[b]}")]
    p = flow(st, vpos[id(cs_ld[-1][1])] + 90)
    n0 = min(n for n in range(1, S0) if barpos[n] >= p)
    p = barpos[n0] + 1
    todo = list(order)
    step = (8 * 14 * S0 - 40 - p) // 14
    for i in range(14):
        cur = lambda a: all(seq[q // 8][1] != a for q in range(p - 2, p + 48))
        cand = [a for a in todo if cur(a)]
        while not cand:
            p += 4
            cand = [a for a in todo if cur(a)]
        a = cand[0]
        todo.remove(a)
        C = [TA, TC][i & 1]
        r = Op(f"ds_read_b128 {vr(C,4)}, v{vCs} offset:{64*a}", "lds")
        ops = [V(f"v_fmac_f32 v{acc[a][b]+e}, v{PA[b]+1}, v{C+e}") for b in range(4) for e in range(4)]
        q = flow([r], p)
        q = flow([Op("", "wait", [r])] + ops, q + 6, p + 46)
        p = max(q, p + min(step, 24))
    assert p < barpos[15], p
    def epi(pr, packed):
        o = []
        for bb in (0, 2):
            d = acc[pr][bb]
            for b in (bb, bb + 1):
                g_, u = acc[pr][b], acc[pr + 7][b]
                sd = SD[b >> 1] + (b & 1)
                if packed:
                    sel = f"op_sel:[0,{b&1},{b&1}] op_sel_hi:[1,{b&1},{b&1}]"
                    o += [V(f"v_pk_mul_f32 {vr(g_+h,2)}, {vr(g_+h,2)}, {vr(PA[b],2)} op_sel:[0,0] op_sel_hi:[1,0]") for h in (0, 2)]
                    o += [Op(f"v_exp_f32 v{g_+r}, v{g_+r}", "t") for r in range(4)]
                    o += [V(f"v_pk_fma_f32 {vr(g_+h,2)}, {vr(g_+h,2)}, {vr(SD[b>>1],2)}, {vr(SD[b>>1],2)} {sel}") for h in (0, 2)]
                    o += [Op(f"v_rcp_f32 v{g_+r}, v{g_+r}", "t") for r in range(4)]
                    o += [V(f"v_pk_mul_f32 {vr(u+h,2)}, {vr(u+h,2)}, {vr(g_+h,2)}") for h in (0, 2)]
                else:
                    o += [V(f"v_mul_f32 v{g_+r}, v{PA[b]}, v{g_+r}") for r in range(4)]
                    o += [Op(f"v_exp_f32 v{g_+r}, v{g_+r}", "t") for r in range(4)]
                    o += [V(f"v_fma_f32 v{g_+r}, v{g_+r}, v{sd}, v{sd}") for r in range(4)]
                    o += [Op(f"v_rcp_f32 v{g_+r}, v{g_+r}", "t") for r in range(4)]
                    o += [V(f"v_mul_f32 v{u+r}, v{u+r}, v{g_+r}") for r in range(4)]
                o += [V(f"v_cvt_pk_bf16_f32 v{d+2*(b&1)}, v{u}, v{u+1}"), V(f"v_cvt_pk_bf16_f32 v{d+2*(b&1)+1}, v{u+2}, v{u+3}")]
            o += [V("v_nop"), V(f"v_permlane16_swap_b32 v{d}, v{d+2}"), V(f"v_permlane16_swap_b32 v{d+1}, v{d+3}")]
            sa = sA1 if pr == 6 else sA0
            o.append(Op(f"buffer_store_dwordx4 {vr(d,4)}, v{vOut}, s[{SWS}:{SWS+3}], s{sa} offen offset:{1024*bb} sc1", "vm"))
        o.append(Op(f"s_add_u32 s{sa}, s{sa}, {8*4096}", "s"))
        return o
    run = 8 * 2 * (16 - S0)
    t0 = 8 * 14 * S0
    D, N1, K = OPT.get("dd", 3), OPT.get("n1", 26), 3584
    N2 = 56 - 2 * N1
    NST = N1 + N2
    S = lambda t: Op(t, "s")
    dTB, dNB, dXo, dXp, dWo, dM, dM2, dRes, dX0, dX1, dSig, dPol, dSigA, dPolA, dJ = range(44, 59)
    dS = [62, 63, 64, 65]
    dW2 = [66, 67, 68, 69]
    dT16, dT32 = 70, 71
    aT, aWd = [TA, TA + 1, TA + 2], [TB_, TB_ + 1, TB_ + 2]
    vRow, vP, vOne, T0, T1 = TA + 3, TB_ + 3, TC, TC + 1, TC + 2
    pool = acc[0] + acc[1] + acc[7] + acc[8]
    dacc = [[pool[4 * t + i] for i in range(4)] for t in range(4)]
    RES = [[128 + 8 * i + 4 * b for b in range(2)] for i in range(2)]
    SND = [[acc[9][2 * i + b] for b in range(2)] for i in range(2)]
    RCV = [[dacc[2 * b][2 + i] for b in range(2)] for i in range(2)]
    F = [[dict(X=[f0 + 32 * s + 4 * i for i in range(4)], W=[f0 + 32 * s + 16 + 4 * t for t in range(4)]) for s in range(2)] for f0 in (192, 0)]
    PRE = OPT.get("pre", 2)
    dslot = lambda n: (4 - n + PRE) % 5
    rS = [[72 + 3 * r + e for e in range(3)] for r in range(2)]
    vL4, vL8 = vCs, vTid
    FB = [dict(X=[acc[3 + 7 * s][i] for i in range(4)], W=[acc[2 + 7 * s][t] for t in range(4)]) for s in range(2)]
    setup = [S(x) for x in srd_tail(SO, 4 * MB) + [
        f"s_bfe_u32 s{dNB}, s2, 0x20003", f"s_and_b32 s{sT}, s2, 1", f"s_lshl_b32 s{sT}, s{sT}, 2", f"s_add_u32 s{dNB}, s{dNB}, s{sT}",
        f"s_lshr_b32 s{dTB}, s2, 5", f"s_and_b32 s{sT}, s2, 4", f"s_lshl_b32 s{sT}, s{sT}, 1", f"s_add_u32 s{dTB}, s{dTB}, s{sT}",
        f"s_lshr_b32 s{dPol}, s{dTB}, 1", f"s_lshl_b32 s{dPol}, s{dPol}, 10", f"s_add_u32 s{dPol}, s{dPol}, {FL2}",
        f"s_lshl_b32 s{dSig}, s{sMB}, 10", f"s_add_u32 s{dSig}, s{dSig}, {FL2}",
        f"s_cmp_eq_u32 s{sW}, 0\ns_cselect_b32 s{dSig}, s{dSig}, {OOB}\ns_cselect_b32 s{dPol}, s{dPol}, {OOB}\ns_cselect_b32 s{dT16}, 16, 0",
        f"s_lshl_b32 s{dT32}, s{dT16}, 1",
        f"s_lshl_b32 s{dTB}, s{dTB}, 1", f"s_bfe_u32 s{sT}, s2, 0x10001", f"s_add_u32 s{dTB}, s{dTB}, s{sT}",
        f"s_lshl_b32 s{dPolA}, s{sT}, 7", f"s_add_u32 s{dPolA}, s{dPolA}, s{dPol}",
        f"s_lshr_b32 s{dSigA}, s{sFB}, 4", f"s_lshl_b32 s{dSigA}, s{dSigA}, 7", f"s_add_u32 s{dSigA}, s{dSigA}, s{dSig}",
        f"s_lshl_b32 s{dM}, s{sW}, 11", f"s_lshl_b32 s{dM2}, s{sW}, 12",
        f"s_mul_i32 s{dJ}, s{sT}, {(N1-48)*8192}", f"s_add_u32 s{dJ}, s{dJ}, {24*8192}",
        f"s_mul_i32 s{sT}, s{sT}, {24*8192}", f"s_add_u32 s{sT}, s{sT}, s{dM}",
        f"s_mul_i32 s{dWo}, s{dNB}, {K*128}", f"s_add_u32 s{dWo}, s{dWo}, s{sT}", f"s_lshl_b32 s{dWo}, s{dWo}, 1", f"s_add_u32 s{dWo}, s{dWo}, {WDF}",
        f"s_add_u32 s{sT}, s{sT}, {AF}", f"s_mul_i32 s{dXo}, s{dTB}, {K*128}", f"s_add_u32 s{dXo}, s{dXo}, s{sT}",
        f"s_xor_b32 s{dXp}, s{dTB}, 1", f"s_mul_i32 s{dXp}, s{dXp}, {K*128}", f"s_add_u32 s{dXp}, s{dXp}, s{sT}",
        ] + ([f"s_and_b32 s{sT}, s{dNB}, {OPT.get('krot', 3)}", f"s_lshl_b32 s{sT}, s{sT}, 13",
              f"s_add_u32 s{dXo}, s{dXo}, s{sT}", f"s_add_u32 s{dXp}, s{dXp}, s{sT}", f"s_add_u32 s{dWo}, s{dWo}, s{sT}", f"s_add_u32 s{dWo}, s{dWo}, s{sT}",
              f"s_sub_u32 s{dJ}, s{dJ}, s{sT}"] +
             [x for q in range(4) for x in (f"s_xor_b32 s{dS[q]}, s{sT}, {(q+1)*8192}", f"s_xor_b32 s{sT2}, s{sT}, {q*8192}",
                                            f"s_sub_u32 s{dS[q]}, s{dS[q]}, s{sT2}", f"s_lshl_b32 s{dW2[q]}, s{dS[q]}, 1")]) + [
        f"s_lshr_b32 s{sT}, s{sW}, 1", f"s_lshl_b32 s{sT2}, s{dNB}, 1", f"s_add_u32 s{sT2}, s{sT2}, s{sT}",
        f"s_lshl_b32 s{sT}, s{sT}, 12", f"s_add_u32 s{sT}, s{sT}, 16384"]]
    setup += [V(f"v_add_u32 v{aWd[0]}, s{sT}, v{vLin}"), V(f"v_add_u32 v{aWd[1]}, 0x10000, v{aWd[0]}"), V(f"v_add_u32 v{aWd[2]}, 0x20000, v{aWd[0]}")]
    setup += [S(x) for x in [f"s_and_b32 s{sT}, s{sW}, 1", f"s_lshl_b32 s{sT}, s{sT}, 11"]]
    setup += [V(f"v_add_u32 v{aT[0]}, s{sT}, v{vLin}"), V(f"v_add_u32 v{aT[1]}, 0x10000, v{aT[0]}"), V(f"v_add_u32 v{aT[2]}, 0x20000, v{aT[0]}")]
    setup += [S(x) for x in [
        f"s_lshl_b32 s{dRes}, s{sT2}, 13", f"s_add_u32 s{dRes}, s{dRes}, s{sT}", f"s_lshl_b32 s{dX0}, s{dTB}, 17", f"s_add_u32 s{dRes}, s{dRes}, s{dX0}",
        f"s_lshl_b32 s{sT}, s{sT}, 5", f"s_add_u32 s{sT}, s{sT}, s{dX0}", f"s_lshl_b32 s{sT2}, s{sT2}, 7", f"s_add_u32 s{sT}, s{sT}, s{sT2}"]]
    setup += [V(f"v_and_b32 v{T0}, 0xf0, v{vLin}"), V(f"v_lshlrev_b32 v{T0}, 7, v{T0}"), V(f"v_lshrrev_b32 v{T1}, 8, v{vLin}"),
              V(f"v_lshl_add_u32 v{T0}, v{T1}, 4, v{T0}"), V(f"v_add_u32 v{vRow}, s{sT}, v{T0}"), V(f"v_mov_b32 v{vOne}, 1")]
    setup += [S(f"s_add_u32 s{dX0}, s{dRes}, {HF}"), S(f"s_add_u32 s{dX1}, s{dRes}, {HF+4096}")]
    if PRE:
        setup += [V(f"v_add_u32 v{vL4}, 4096, v{vLin}"), V(f"v_add_u32 v{vL8}, 8192, v{vLin}"),
                  S(f"s_and_b32 s{sT}, s{dM}, 4096"), S(f"s_sub_u32 s{sT2}, s{dM2}, s{sT}")]
        for r in range(PRE):
            setup += [S(x) for x in (f"s_sub_u32 s{rS[r][0]}, s{dXo}, s{sT}", f"s_sub_u32 s{rS[r][1]}, s{dXp}, s{sT}", f"s_sub_u32 s{rS[r][2]}, s{dWo}, s{sT2}",
                                     f"s_add_u32 s{dXo}, s{dXo}, s{dS[r]}", f"s_add_u32 s{dXp}, s{dXp}, s{dS[r]}", f"s_add_u32 s{dWo}, s{dWo}, s{dW2[r]}")]
    setup += [S(f"s_lshr_b32 s{sT}, s2, 5"), S(f"s_add_u32 s{sT}, s{sT}, 2"), S(f"s_lshl_b32 s{sT}, s{sT}, 14"), S(f"s_add_u32 s{sT}, s{sT}, s{dWo}"),
              V(f"v_lshlrev_b32 v{T0}, 2, v{vLin}")]
    pset = flow(setup, max(p, t0 - 96), t0 + 16)

    def dma(m0, so, n, step):
        o = [[S(f"s_add_u32 m0, {m0}"), S("s_nop 0")]] + [[] for _ in range(n - 1)]
        for i in range(n):
            o[i].append(Op(f"buffer_load_dwordx4 v{vLin}, s[{SWS}:{SWS+3}], s{so} offen offset:{1024*i}{' sc1' if so != dWo else ''} lds", "vm"))
        o[-1].append(S(f"s_add_u32 s{so}, s{so}, {step}"))
        return o
    DX, DW = [], []
    for n in range(NST):
        base = dslot(n) * 32768
        sx_, sw_ = (f"s{dS[n&3]}", f"s{dW2[n&3]}") if n < 24 else (8192, 16384)
        x = dma(f"s{dM}, {base}", dXo, 2, sx_) + (dma(f"s{dM}, {base+8192}", dXp, 2, sx_) if n < N1 else [])
        w = dma(f"s{dM2}, {base+16384}", dWo, 4, sw_)
        if n == 24 and N1 > 24:
            x[0] = [S(f"s_add_u32 s{dXo}, s{dXo}, s{dJ}"), S(f"s_add_u32 s{dXp}, s{dXp}, s{dJ}")] + x[0]
            w[0] = [S(f"s_add_u32 s{dWo}, s{dWo}, s{dJ}"), S(f"s_add_u32 s{dWo}, s{dWo}, s{dJ}")] + w[0]
        if n == N1:
            x[0] = [S(f"s_mul_i32 s{dXo}, s{dTB}, {K*128}"), S(f"s_add_u32 s{dXo}, s{dXo}, s{dM}"), S(f"s_add_u32 s{dXo}, s{dXo}, {AF+2*N1*8192}")] + x[0]
            w[0] = [S(f"s_mul_i32 s{dWo}, s{dNB}, {K*256}"), S(f"s_add_u32 s{dWo}, s{dWo}, s{dM2}"), S(f"s_add_u32 s{dWo}, s{dWo}, {WDF+2*N1*16384}")] + w[0]
        DX.append(x); DW.append(w)
    frag = lambda n, s, kind, i: vr(FB[s][kind][i], 4) if (n == 1 and PRE == 2) else ar(F[n & 1][s][kind][i], 4)
    RX = [[[Op(f"buffer_load_dwordx4 {frag(r,s,'X',i)}, v{[vLin,vL4][s]}, s[{SWS}:{SWS+3}], s{rS[r][i>>1]} offen offset:{1024*(i&1)} sc1", "vm")]
           for s in range(2) for i in range(4)] for r in range(PRE)]
    RW = [[[Op(f"buffer_load_dwordx4 {frag(r,s,'W',t)}, v{[vLin,vL8][s]}, s[{SWS}:{SWS+3}], s{rS[r][2]} offen offset:{1024*t}", "vm")]
           for s in range(2) for t in range(4)] for r in range(PRE)]
    vms = lambda gs: [o for g_ in gs for o in g_ if o.kind == "vm"]
    res = [Op(f"buffer_load_dwordx4 {ar(RES[i][b],4)}, v{vLin}, s[{SWS}:{SWS+3}], s{[dX0,dX1][b]} offen offset:{1024*i}", "vm") for i in range(2) for b in range(2)]
    signal = lambda w: Op(f"s_mov_b64 exec, 1\nbuffer_atomic_add v{vOne}, off, s[{SWS}:{SWS+3}], s{[dSigA,dSigA,dSigA,dSig][w]} offset:{256*w} sc1\ns_mov_b64 exec, -1", "vm")
    polltxt = lambda w: f"buffer_load_dword v{vP}, off, s[{SWS}:{SWS+3}], s{[dPolA,dPolA,dPolA,dPol][w]} offset:{256*w} sc1"
    POL = [Op(polltxt(w), "vm") for w in range(4)]
    pcheck = lambda w: [Op("", "wait", [POL[w]]), S(f"v_cmp_gt_u32 vcc, s{[dT16,dT16,dT16,dT32][w]}, v{vP}\ns_nop 1\ns_cbranch_vccnz L_ffn_spin{w}\nL_ffn_go{w}:")]

    def put(pos, group):
        if len(group) > 2 and group[1].text == "s_nop 0":
            put(pos - 1, group[:1])
            group = group[2:]
        fixed2[pos] += group
        used[pos] += sum(o.cost for o in group)
    fixed2 = [[] for _ in fixed]
    EP = [epi(pr, False) for pr in range(6)]
    for w in range(2):
        qa = t0 + (2 + 2 * w) * run + 8 * OPT.get("siga", 6) + 7
        fixed[qa] = [Op("", "wait", vms(EP[:1 + 2 * w]), bar=True)]
        put(qa + 3, [signal(w)])
    q = t0 + 19
    for g_ in DW[PRE] + DW[PRE + 1] + [[r] for r in res]:
        put(q, g_); q += 3 if q % 8 == 3 else 5
    for r in range(PRE):
        for i, g_ in enumerate(RW[r]):
            put(t0 + (1 + 3 * r) * run + 8 * i + (5 if r == 0 or i else 6), g_)
    for i in range(OPT.get("wpf", 2)):
        put(t0 + OPT.get("wpr", 75) + OPT.get("wps", 130) * i, [Op(f"buffer_load_dword v{T1}, v{T0}, s[{SWS}:{SWS+3}], s{sT} offen", "vm"), S(f"s_add_u32 s{sT}, s{sT}, {8*16384}")])
    put(t0 + 5 * run + OPT.get("pola", [4, -8, -36][PRE]), [POL[0]])
    q = t0 + 6 * run + OPT.get("chka", [-22, -38, -62][PRE])
    q |= 7
    put(q - 2, pcheck(0))
    fixed[q] = [Op("", "wait", [], bar=True)]
    b0 = 8 * (NT_ - 3) + 7
    for i, g_ in enumerate([x for r in range(PRE) for x in RX[r]] + DX[PRE]):
        qq = q + 3 + ((2 if not PRE else OPT.get("rsp", 4)) * i if PRE < 2 or not OPT.get("rauto", 1) else ((b0 - q - 6) * i) // 20)
        assert qq < b0
        put(qq, g_)
    fixed[b0] = [Op("", "wait", vms(DX[0] + DW[0]) if not PRE else [], bar=True)]
    early = [[("x", 1), ("x", 2), ("w", 2)], [("x", 2), ("x", 3), ("w", 3), ("w", 4)], [("x", 3), ("w", 4), ("w", 5), ("w", 6)]][PRE]
    early = early[:OPT.get("nearly", 3)]
    grp = lambda e: (DX if e[0] == "x" else DW)[e[1]]
    if PRE and OPT.get("p1e", 1):
        put(b0 - 1, [POL[1]])
    for i, g_ in enumerate(grp(early[0]) + grp(early[1])):
        put(b0 + 2 + 2 * i - (i == 7), g_)
    SP0 = OPT.get("sp0", 4)
    for pr in range(SP0):
        spread(EP[pr], t0 + run * (pr + 1), t0 + run * (pr + 2))
    left = [(o, pr) for pr in range(SP0, 6) for o in EP[pr]]
    credit = 0.0
    for q in range(t0 + run * (SP0 + 1), len(mf)):
        credit = min(credit, 4) + OPT.get("cap3", 95) / 10 - used[q]
        while left and q >= t0 + run * (left[0][1] + 1) and left[0][0].cost <= credit:
            flo[q].append(left[0][0]); credit -= left.pop(0)[0].cost
    if OPT.get("v"):
        print("left", len(left), "of pair", left[0][1] if left else None)
    ops = pro + [Op("", "wait", [x[1] for x in VM[0][:8 if HALF else 15]], bar=True)]
    if OPT["stamp"]:
        ops.append(Op("s_memrealtime s[96:97]\ns_memtime s[84:85]\ns_waitcnt lgkmcnt(0)", "s"))
    ops += RD[0] + RD[1] + [Op("", "wait", RD[0])]
    seg = dict(n=4, last=seg0)

    def page(room):
        if OPT.get("isl", 1) and sum(1 for _, b in ISL if b is None) < OPT.get("maxisl", 20):
            seg["n"] += sum(isize(o.text) for o in ops[seg["last"]:])
            seg["last"] = len(ops)
            if seg["n"] + room > 4088:
                ops.append(Op(island(), "s"))
                seg["n"], seg["last"] = 4, len(ops)
    npf = [0]

    def prof():
        if OPT.get("prof"):
            j = npf[0]; npf[0] += 1
            ops.append(S((f"v_writelane_b32 v{vSt}, s60, {j-1}\n" if j else "") + ("s_memtime s[60:61]" if OPT["prof"] == 1 else "s_memrealtime s[60:61]")))
    for i, m in enumerate(mf):
        if i in [112 * n for n in range(S0)] + [t0 + run * pr for pr in range(7)]:
            prof()
        if not fixed[i - 1]:
            page(160)
        late = [o for o in fixed[i] if o.kind == "wait"]
        ops += [m] + [o for o in fixed[i] if o.kind != "wait"] + late + fixed2[i] + flo[i]
    if OPT["stamp"]:
        ops.append(Op("s_memrealtime s[98:99]\ns_memtime s[86:87]", "s"))

    def dreads(n):
        f, sl = n & 1, dslot(n)
        o = []
        for s in range(2):
            o += [Op(f"ds_read_b128 {ar(F[f][s]['X'][i],4)}, v{aT[sl>>1]} offset:{(sl&1)*32768+(i>>1)*8192+s*4096+(i&1)*1024}", "lds") for i in range(4 if n < N1 else 2)]
            o += [Op(f"ds_read_b128 {ar(F[f][s]['W'][t],4)}, v{aWd[sl>>1]} offset:{(sl&1)*32768+s*8192+t*1024}", "lds") for t in range(4)]
        return o

    def dmf(n, tiles):
        return [Op(m16(vr(dacc[t][i], 4), frag(n, s, "W", t), frag(n, s, "X", i), "0" if (n == 0 and s == 0 and (i >= 2 or LATE)) else None), "m")
                for t in range(4) for i in (tiles if t % 2 == 0 else tiles[::-1]) for s in range(2)]
    NOZ = PRE == 2 and OPT.get('noz', 1)
    LATE = NOZ and OPT.get("late", 1)
    hres = [[acc[4 + 7 * (t >> 1)][2 * (t & 1) + i] for i in range(2)] for t in range(4)]
    E6 = epi(6, not NOZ)
    init = [Op("", "wait", res)]
    for i in range(2):
        for b in range(2):
            for jt in range(2):
                for h in range(2):
                    a, r = (hres if LATE else dacc)[2 * b + jt][i] + 2 * h, RES[i][b] + 2 * jt + h
                    init += [V(f"v_accvgpr_read_b32 v{a+1}, a{r}"), V(f"v_lshlrev_b32 v{a}, 16, v{a+1}"), V(f"v_and_b32 v{a+1}, 0xffff0000, v{a+1}")]
    init += [S(f"s_xor_b32 s{dX0}, s{dRes}, {1<<17}"), S(f"s_add_u32 s{dX1}, s{dX0}, {XB+4096}"), S(f"s_add_u32 s{dX0}, s{dX0}, {XB}")]
    prof()
    page(1250)
    have = set(early) | {("x", m) for m in range(PRE + 1)} | {("w", m) for m in range(PRE + 2)}
    todo = [(n, g_) for n in range(NST) for e in (("x", n), ("w", n)) if e not in have for g_ in grp(e)]
    NZ = 0
    zl = [g_ for e in early[2:] for g_ in grp(e)]
    if PRE:
        zl = ([[POL[1]]] if not OPT.get("p1e", 1) else []) + zl + [pcheck(1)]
    if not NOZ:
        ops += weave(E6 + (dreads(0) if not PRE else []) + init, zl, 4)
    pend = [o for o, _ in left] + list(E6) if NOZ else []
    S2 = OPT.get("sig2", 3 if left else 2)
    n0_ = 1 if NOZ else 0
    SB = OPT.get("sigb", 9 if NOZ else 3)
    tgt = sum(1 for n, _ in todo if n <= N1 + D + 1)
    assert OPT.get("rl", 1) < N2
    done = NZ
    snd = []
    for b in range(2):
        for i in range(2):
            o = SND[i][b]
            for jt in range(2):
                a = dacc[2 * b + jt][2 + i]
                snd += [[V(f"v_cvt_pk_bf16_f32 v{o+2*jt}, v{a}, v{a+1}"), V(f"v_cvt_pk_bf16_f32 v{o+2*jt+1}, v{a+2}, v{a+3}")]]
            snd += [[V(f"v_min_u32 v{o+r}, -2, v{o+r}") for r in (0, 1)], [V(f"v_min_u32 v{o+r}, -2, v{o+r}") for r in (2, 3)] +
                    [Op(f"buffer_store_dwordx4 {vr(o,4)}, v{vLin}, s[{SWS}:{SWS+3}], s{[dX0,dX1][b]} offen offset:{1024*i} sc1", "vm")]]
    rcvt = [f"buffer_load_dwordx4 {vr(RCV[i][b],4)}, v{vLin}, s[{SWS}:{SWS+3}], s{[dX0,dX1][b]} offen offset:{1024*i} sc1" for i in range(2) for b in range(2)]
    gate = {4: 1, 12: 2, 20: 3} if not PRE else {12: 2, 20: 3}
    cnt_ = lambda m_: sum(1 for m, _ in todo if m <= m_)
    upto = lambda n: min(max((tgt * (n - n0_)) // (N1 - n0_), cnt_(n + 2)), cnt_(max(n, PRE) + 4)) if n <= N1 else cnt_(n + D + 1)
    first_of = {m: min(i for i, (q, _) in enumerate(todo) if q == m) for m in gate}
    for n in range(1, NST):
        page(1150 if pend else 860)
        if OPT.get("v") and pend:
            print("step", n, "pending", len(pend))
        assert n not in (SB, SB + 4) or not pend
        if LATE and n == SB + 1:
            pend = list(init)
        need = vms((DX[n] + DW[n] if n >= PRE else []) + (RX[n - 1] + RW[n - 1] if n <= PRE else []) + ([E6] if n == SB else []) + (EP[:5] if n == S2 else []))
        ops.append(Op("", "wait", need, bar=not (NOZ and n == 1)))
        prof()
        ld = []
        for i in range(done, upto(n)):
            assert todo[i][0] <= max(n, PRE) + 4
            ld.append(todo[i][1])
        done = upto(n)
        assert done == len(todo) or todo[done][0] > n + 1
        if NOZ and n == 1:
            assert not ld
            ld = zl
        for m, w in gate.items():
            if upto(n) <= first_of[m] < upto(n + 1):
                ld = [[POL[w]]] + ld + [pcheck(w)]
        if n == SB:
            ld = [[signal(3)]] + ld
        if n == S2:
            ld = ld[:2] + [[signal(2)]] + ld[2:]
        if n == N1 + 1:
            ld = ld + [[S(f"s_add_u32 s{dX0}, s{dRes}, {XB}"), S(f"s_add_u32 s{dX1}, s{dRes}, {XB+4096}")]]
        if n == NST - OPT.get("rl", 1):
            ld = ld + [[Op(x, "vm")] for x in rcvt]
        split = n == N1 or (NOZ and n == 1 and not LATE)
        mm = (dmf(n - 1, [2, 3]) + dmf(n - 1, [0, 1])) if split else dmf(n - 1, [0, 1, 2, 3] if n < N1 else [0, 1])
        sl = [[] for _ in mm]
        rd = dreads(n) if n >= PRE else []
        nice = len(mm) == 32 and n != N1 and OPT.get("nice", 1)
        rpos = [q for q in range(32) if q % 4 != 1][:len(rd)] if nice else [i * (len(mm) * 5 // 8) // len(rd) for i in range(len(rd))]
        for q, r in zip(rpos, rd):
            sl[q].append(r)
        for i, g_ in enumerate(ld):
            q = (i * (len(mm) if n != N1 else 18)) // len(ld)
            if nice and len(ld) <= 8:
                q = 4 * i + 1
            if q and len(g_) > 2 and g_[1].text == "s_nop 0" and not any(o.kind == "vm" for o in sl[q]):
                sl[q - 1].append(g_[0])
                g_ = g_[2:]
            sl[q] += g_
        if n == N1:
            for i, g_ in enumerate(snd):
                sl[16 + i] += g_
        if NOZ and n == 1 and not LATE:
            for i, o in enumerate(init):
                sl[(i * 15) // len(init)].append(o)
        if LATE and n in (SB + 4, SB + 5):
            for t in range(4):
                for e in range(4):
                    a = dacc[t][n - SB - 4] + e
                    sl[8 * ((t + 2) % 4) + (2, 3, 4, 6)[e]].append(V(f"v_add_f32 v{a}, v{a}, v{hres[t][n-SB-4]+e}"))
        credit = 0.0
        for i, (m, e) in enumerate(zip(mm, sl)):
            credit = min(credit, 4) + OPT.get("cap4", 90) / 10 - sum(o.cost for o in e)
            if NOZ and n == 1 and i < 16 and not LATE:
                credit = 0.0
            while pend and pend[0].cost <= credit:
                e.append(pend.pop(0)); credit -= e[-1].cost
            ops += [m] + e
    ops.append(Op("", "wait", rd))
    page(1200)
    ops += dmf(NST - 1, [0, 1])
    prof()
    ops.append(S("s_waitcnt lgkmcnt(0)" if OPT.get("prof") else "s_nop 0"))
    prof()
    emit_stream(k, ops)
    xstamp(k, 0)
    k(f"s_mov_b32 s{sN}, {1<<20}")
    k.label("L_ffn_chk")
    k("s_waitcnt vmcnt(0)")
    rr = [RCV[i][b] + r for i in range(2) for b in range(2) for r in range(4)]
    k(f"v_max3_u32 v{T0}, v{rr[0]}, v{rr[1]}, v{rr[2]}", f"v_max3_u32 v{T1}, v{rr[3]}, v{rr[4]}, v{rr[5]}")
    for j in range(6, 16, 2):
        t = [T0, T1][(j // 2) & 1]
        k(f"v_max3_u32 v{t}, v{rr[j]}, v{rr[j+1]}, v{t}")
    k(f"v_max_u32 v{T0}, v{T0}, v{T1}", f"v_cmp_eq_u32 vcc, -1, v{T0}", f"s_sub_u32 s{sN}, s{sN}, 1", "s_cbranch_scc1 L_ffn_out",
      "s_cbranch_vccz L_ffn_out")
    k.label("L_ffn_wait")
    k(f"buffer_load_dword v{T0}, off, s[{SWS}:{SWS+3}], s{dX1} offset:2044 sc1", "s_waitcnt vmcnt(0)", f"v_cmp_eq_u32 vcc, -1, v{T0}",
      f"s_sub_u32 s{sN}, s{sN}, 1", "s_cbranch_scc1 L_ffn_out", "s_cbranch_vccnz L_ffn_wait" if OPT.get("gentle", 1) else None, rcvt, "s_branch L_ffn_chk")
    k.label("L_ffn_out")
    k(f"s_mov_b32 s{sN}, 32768")
    U = acc[3][0]
    for i in range(2):
        for b in range(2):
            o = acc[10][2 * i + b]
            for jt in range(2):
                a, q = dacc[2 * b + jt][i], RCV[i][b] + 2 * jt
                k(f"v_lshlrev_b32 v{U}, 16, v{q}", f"v_and_b32 v{U+1}, 0xffff0000, v{q}",
                  f"v_lshlrev_b32 v{U+2}, 16, v{q+1}", f"v_and_b32 v{U+3}, 0xffff0000, v{q+1}",
                  f"v_pk_add_f32 {vr(a,2)}, {vr(a,2)}, {vr(U,2)}", f"v_pk_add_f32 {vr(a+2,2)}, {vr(a+2,2)}, {vr(U+2,2)}",
                  f"v_cvt_pk_bf16_f32 v{o+2*jt}, v{a}, v{a+1}", f"v_cvt_pk_bf16_f32 v{o+2*jt+1}, v{a+2}, v{a+3}")
            k(f"buffer_store_dwordx4 {vr(o,4)}, v{vRow}, s[{SO}:{SO+3}], {['0', f's{sN}'][i]} offen offset:{64*b} sc1")
    if OPT.get("prof"):
        k("s_lshl_b32 s3, s89, 2", f"s_add_u32 s3, s3, s{sW}", "s_lshl_b32 s3, s3, 8", f"s_add_u32 s3, s3, {STAMP+2*MB}",
          f"v_lshrrev_b32 v{T0}, 2, v{vLin}", f"buffer_store_dword v{vSt}, v{T0}, s[{SWS}:{SWS+3}], s3 offen sc1")
    tail(k, 1, sW)
    for w in range(4):
        k.label(f"L_ffn_spin{w}")
        k(f"s_mov_b32 s{sN}, {1<<20}")
        k.label(f"L_ffn_spin{w}b")
        k("s_mov_b64 exec, 1", f"v_mov_b32 v{vP}, 0", f"buffer_atomic_add v{vP}, off, s[{SWS}:{SWS+3}], s{[dPolA,dPolA,dPolA,dPol][w]} offset:{256*w} sc0 sc1",
          "s_waitcnt vmcnt(0)", f"v_cmp_gt_u32 vcc, {[16,16,16,32][w]}, v{vP}", "s_mov_b64 exec, -1", f"s_sub_u32 s{sN}, s{sN}, 1", f"s_cbranch_scc1 L_ffn_go{w}",
          f"s_cbranch_vccnz L_ffn_spin{w}b", f"s_branch L_ffn_go{w}")
    return k


HEADER = open("sequential_preLN__grouped_kv_mqa__glu_gated_glu__prompt.s.ref").read().split("; Override launch")[0]


DOC = """;
"""


def k_diag():
    k = Kern("diag_kernel", 1, 64, 0)
    k.vgpr = k.acc = 8
    a, b, m = OPT["da"], OPT["db"], OPT["dm"]
    off = lambda x: STAMP + (x // 10) * 16384 + (x % 10) * 4 + OPT.get("dwg", 0) * 64
    k("s_cmp_ge_u32 s2, 1", "s_cbranch_scc1 L_diag_end", "s_load_dwordx2 s[4:5], s[0:1], 88", "s_waitcnt lgkmcnt(0)",
      f"v_mov_b32 v1, {off(a)}", f"v_mov_b32 v2, {off(b)}", "global_load_dword v3, v1, s[4:5]", "global_load_dword v4, v2, s[4:5]",
      "s_memrealtime s[8:9]", "s_waitcnt vmcnt(0) lgkmcnt(0)", "v_mov_b32 v4, s8" if OPT.get("dself") else None, "v_sub_u32 v3, v4, v3", "s_nop 1", "v_readfirstlane_b32 s6, v3", "s_nop 3",
      "s_min_u32 s6, s6, 20000", f"s_mul_i32 s6, s6, {m}")
    k.label("L_diag_loop")
    k("s_memrealtime s[10:11]", "s_waitcnt lgkmcnt(0)", "s_sub_u32 s10, s10, s8", "s_cmp_lt_u32 s10, s6", "s_cbranch_scc1 L_diag_loop")
    k.label("L_diag_end")
    k("s_endpgm")
    return k


def build():
    ks = [k01_attn(), k3_gateup()]
    if "dm" in OPT:
        ks.append(k_diag())
    if OPT.get("mark"):
        m = Kern("mark_kernel", 1, 64, 0)
        m.vgpr = m.acc = 8
        m("s_memrealtime s[8:9]", "s_cmp_ge_u32 s2, 1", "s_cbranch_scc1 L_mark_end", "s_load_dwordx2 s[4:5], s[0:1], 88", "s_waitcnt lgkmcnt(0)",
          f"v_mov_b32 v1, {STAMP+5*16384}", "v_mov_b32 v2, s8", "global_store_dword v1, v2, s[4:5] sc1", "L_mark_end:", "s_endpgm")
        ks.append(m)
    s = HEADER + "".join(ks[int(c)].launch_line() + "\n" for c in str(OPT.get("seq", "".join(str(i) for i in range(len(ks))))).lstrip("9"))
    s += DOC
    s += '.amdgcn_target "amdgcn-amd-amdhsa--gfx950"\n.text\n'
    for i, k in enumerate(ks):
        s += k.text()
        if i == 0:
            s += "L_code_rest:\n"
    s += "L_code_end:\n"
    chain = [n for n, back in ISL if back is None]
    for n, back in ISL:
        if back:
            s = s.replace(f"@ISL{n}@", f"s_branch {back}")
    call = lambda l: "\n    ".join(f"s_call_b64 s[14:15], L_isl{n}" for n in l) or "s_nop 0"
    per = -(-len(chain) // 6)
    for q in range(6):
        s = s.replace(f"@SER{q}@", call((chain[::-1] if OPT.get("ser", 0) == 2 else chain)[q * per:(q + 1) * per]))
    for w in range(4):
        s = s.replace(f"@HOP{w}@", call(chain[w::4]))
    for n in chain:
        s = s.replace(f"@ISL{n}@", "s_setpc_b64 s[14:15]")
    s += '.section .rodata,"a"\n' + "".join(k.desc() for k in ks)
    return s


if __name__ == "__main__":
    out = sys.argv[1]
    for a in sys.argv[2:]:
        key, _, val = a.partition("=")
        OPT[key] = int(val) if val else True
    open(out, "w").write(build())
```
